```python
import torch

def _softmax(x, axis=-1):
    return torch.softmax(x, dim=axis)
def _gelu(x):
    return torch.nn.functional.gelu(x, approximate="tanh")
def _silu(x):
    return torch.nn.functional.silu(x)
def _sigmoid(x):
    return torch.sigmoid(x)
def _layernorm(x, axis=-1, eps=1e-5):
    m = x.mean(dim=axis, keepdim=True)
    v = x.var(dim=axis, keepdim=True, unbiased=False)
    return (x - m) / torch.sqrt(v + eps)
def _scatter_add(tgt, idx, src, axis=0):
    return tgt.clone().index_add_(axis, idx, src)
def _segment_sum(src, seg, n):
    out = torch.zeros((n,) + src.shape[1:], dtype=src.dtype)
    return out.index_add_(0, seg, src)
def _pad(x, pw):
    flat = tuple(v for pair in reversed(pw) for v in pair)
    return torch.nn.functional.pad(x, flat)

kernel_name = 'gated_mix__sliding_block_cached__glu_gated_reglu__decode'

def setup_inputs():

    _w = (lambda a: (lambda t: t.to(torch.bfloat16) if t.is_floating_point() else t)(torch.as_tensor(a)))
    def _A_setup():
        B, Sq, D = 8, 1, 1024
        Hq, Hkv, Sk, Dh = 32, 4, 4096, 128
        assert Hq % Hkv == 0, (Hq, Hkv)
        return {
            "x": _w((lambda *s: torch.randn(*s, dtype=torch.bfloat16) * 0.05)(B, Sq, D)),
            "k_cache": _w((lambda *s: torch.randn(*s, dtype=torch.bfloat16) * 3.2)(B, Hkv, Sk, Dh)),
            "v_cache": _w((lambda *s: torch.randn(*s, dtype=torch.bfloat16) * 0.05)(B, Hkv, Sk, Dh)),
            "wq": _w((lambda *s: torch.randn(*s, dtype=torch.bfloat16) * 3.2)(D, Hq * Dh) * (D ** -0.5)),
            "wo": _w((lambda *s: torch.randn(*s, dtype=torch.bfloat16) * 0.05)(Hq * Dh, D) * ((Hq * Dh) ** -0.5)),
        }
    _A_in = _A_setup()

    def _B_setup():
        B, S, D, F = 8, 1, 1024, 3584
        return {
            "x": _w((lambda *s: torch.randn(*s, dtype=torch.bfloat16) * 0.05)(B, S, D)),
            "W_gate": _w((lambda *s: torch.randn(*s, dtype=torch.bfloat16) * 0.2)(D, F) * (2.0 / D) ** 0.5),
            "W_up": _w((lambda *s: torch.randn(*s, dtype=torch.bfloat16) * 0.2)(D, F) * (2.0 / D) ** 0.5),
            "W_down": _w((lambda *s: torch.randn(*s, dtype=torch.bfloat16) * 0.2)(F, D) * (1.0 / F) ** 0.5),
        }
    _B_in = _B_setup()

    return {
        "A_x": _A_in["x"],
        "A_k_cache": _A_in["k_cache"],
        "A_v_cache": _A_in["v_cache"],
        "A_wq": _A_in["wq"],
        "A_wo": _A_in["wo"],
        "B_x": _B_in["x"],
        "B_W_gate": _B_in["W_gate"],
        "B_W_up": _B_in["W_up"],
        "B_W_down": _B_in["W_down"],
        "gate_w": _w((lambda *s: torch.randn(*s, dtype=torch.bfloat16) * 0.05)(1024) * 16.0),
    }

def reference(A_x, A_k_cache, A_v_cache, A_wq, A_wo, B_x, B_W_gate, B_W_up, B_W_down, gate_w):
    def _A_ref(x, k_cache, v_cache, wq, wo):
        B, Sq, D = x.shape
        Hq, Dh = 32, 128
        Hkv, Sk = k_cache.shape[1], k_cache.shape[2]
        W = min(4096, max(256, Sk // 4))
        rep = Hq // Hkv
        q = (lambda x, *d: x.permute(*d))((x @ wq).reshape(B, Sq, Hq, Dh), 0, 2, 1, 3)
        k = (lambda x, n, axis: torch.repeat_interleave(x, n, dim=axis))(k_cache[:, :, Sk - W:, :], rep, axis=1)
        v = (lambda x, n, axis: torch.repeat_interleave(x, n, dim=axis))(v_cache[:, :, Sk - W:, :], rep, axis=1)
        scores = torch.einsum("bhqd,bhkd->bhqk", q, k) * (Dh ** -0.5)
        p = _softmax(scores, axis=-1)
        o = torch.einsum("bhqk,bhkd->bhqd", p, v)
        return (lambda x, *d: x.permute(*d))(o, 0, 2, 1, 3).reshape(B, Sq, Hq * Dh) @ wo

    def _B_ref(x, W_gate, W_up, W_down):
        gate = torch.einsum("bsd,df->bsf", x, W_gate)
        up = torch.einsum("bsd,df->bsf", x, W_up)
        gate = gate * (lambda x, dt: x.to(dt))(gate > 0, gate.dtype)
        h = gate * up
        return torch.einsum("bsf,fd->bsd", h, W_down)

    x = A_x
    g = _sigmoid((x * gate_w).sum(-1, keepdims=True))
    a = _A_ref(x, A_k_cache, A_v_cache, A_wq, A_wo)
    b = _B_ref(x, B_W_gate, B_W_up, B_W_down)
    return g * a + (1 - g) * b
```

```python
import sys, argparse

KNAME = "gated_mix__sliding_block_cached__glu_gated_reglu__decode_kernel"

HEADER = open("gated_mix__sliding_block_cached__glu_gated_reglu__decode.s.ref").read().split("; Override launch")[0]

RA = 0
RB = 65536
RQ = RB + 32768
XQ = 131072
XG = XQ + 2048
QF = XG + 8192
PF = QF + 2048
AF = PF + 4096
FL = AF + 4096
F_PROG, F_FREE0, F_FREE1, F_BQ, F_BM, F_BP, F_BA, F_DONE = [4*i for i in range(8)]
F_MAX = 64
LDS_BYTES = FL + 128

WS_EPOCH = 0
WS_QP = 1 << 20
WS_OP = 2 << 20
WS_LSE = (2 << 20) + (512 << 10)
WS_GP = 3 << 20
WS_FP = 4 << 20
WS_STAMP = 8 << 20
WS_SIZE = 16 << 20

class G:
    def __init__(self, opt):
        self.o = []
        self.opt = opt
        self.nlab = 0
    def A(self, s):
        for line in s.split("\n"):
            self.o.append("    " + line.strip() if not line.strip().endswith(":") else line.strip())
    def lab(self, p="L"):
        self.nlab += 1
        return f"{p}_{self.nlab}"

def gen(opt):
    g = G(opt); A = g.A
    NT = opt.nt
    WIN = opt.win
    WB = WIN // 8
    STAMP = opt.stamp
    sX, sK, sV, sWQ, sWO, sBX, sWG, sWU = [16+2*i for i in range(8)]
    sWD, sGW, sOUT, sDBG = 32, 34, 36, 38
    sWS = 40
    sXCD, sR, sROLE = 42, 43, 44
    sB, sG, sSPL, sRBK, sCB, sFB, sMT, sKH = 45, 46, 47, 48, 49, 50, 51, 52
    sT = 53
    sT0, sT1, sT2, sT3 = 53, 54, 55, 56
    sSEL0, sSEL1, sSEL2, sSEL3 = 57, 58, 59, 60
    sPROG = 61
    sC = 62
    sTMP, sTMP2, sTMP3, sCNT = 63, 64, 65, 66
    sGA = 68
    sGB = 70
    sEX = 72
    sST = 76
    SRD = 8
    nst = [0]
    def stamp(idx):
        if STAMP: A(f"s_memrealtime s[{sST+2*idx}:{sST+2*idx+1}]")

    A(f"s_cmp_ge_u32 s2, 256")
    A("s_cbranch_scc1 L_end")
    if STAMP:
        for i in range(12): A(f"s_mov_b32 s{sST+2*i}, 0")
    stamp(0)
    A("s_load_dwordx16 s[16:31], s[0:1], 0")
    A("s_load_dwordx8 s[32:39], s[0:1], 64")
    A("s_load_dwordx2 s[40:41], s[0:1], 96")
    A("v_lshrrev_b32 v1, 6, v0")
    A("v_and_b32 v0, 63, v0")
    A("v_readfirstlane_b32 s3, v1")
    A(f"s_and_b32 s{sXCD}, s2, 7")
    A(f"s_lshr_b32 s{sR}, s2, 3")
    A(f"s_mov_b32 s{sROLE}, 0")
    A(f"s_mov_b32 s{sB}, s{sXCD}")
    A(f"s_lshr_b32 s{sG}, s{sR}, 2")
    A(f"s_and_b32 s{sG}, s{sG}, 3")
    A(f"s_and_b32 s{sSPL}, s{sR}, 3")
    A(f"s_lshl_b32 s{sRBK}, s{sXCD}, 1")
    A(f"s_lshr_b32 s{sTMP}, s{sR}, 3")
    A(f"s_add_u32 s{sRBK}, s{sRBK}, s{sTMP}")
    A(f"s_and_b32 s{sCB}, s{sR}, 7")
    A(f"s_mov_b32 s{sFB}, 0\ns_mov_b32 s{sMT}, 0\ns_mov_b32 s{sKH}, 0")
    A(f"s_cmp_lt_u32 s{sR}, 16")
    A("s_cbranch_scc1 L_role_done")
    A(f"s_mov_b32 s{sROLE}, 2")
    A(f"s_cmp_ge_u32 s{sR}, 30")
    A("s_cbranch_scc1 L_role_done")
    A(f"s_mov_b32 s{sROLE}, 1")
    A(f"s_mul_i32 s{sTMP}, s{sXCD}, 14")
    A(f"s_add_u32 s{sTMP}, s{sTMP}, s{sR}")
    A(f"s_sub_u32 s{sTMP}, s{sTMP}, 16")
    A(f"s_lshr_b32 s{sRBK}, s{sTMP}, 3")
    A(f"s_and_b32 s{sCB}, s{sTMP}, 7")
    A(f"s_lshr_b32 s{sFB}, s{sTMP}, 2")
    A(f"s_lshr_b32 s{sMT}, s{sTMP}, 1")
    A(f"s_and_b32 s{sMT}, s{sMT}, 1")
    A(f"s_and_b32 s{sKH}, s{sTMP}, 1")
    A("L_role_done:")
    A("s_cmp_lg_u32 s3, 0")
    A("s_cbranch_scc1 L_not_loader")

    sSOFF, sSTEP, sNB, sBLK = 4, 5, 6, 7
    A("s_setprio 3")
    A("v_lshrrev_b32 v2, 4, v0")
    A("v_and_b32 v3, 15, v0")
    A("v_lshrrev_b32 v3, 1, v3")
    A("v_xor_b32 v3, v3, v2")
    A("v_lshlrev_b32 v3, 5, v3")
    A("v_and_b32 v4, 1, v0")
    A("v_lshlrev_b32 v4, 4, v4")
    A("v_or_b32 v3, v3, v4")
    A("v_xor_b32 v4, 0x80, v3")
    A("v_and_b32 v7, 7, v0")
    A("v_lshlrev_b32 v7, 11, v7")
    A("v_lshrrev_b32 v8, 3, v0")
    A("v_lshlrev_b32 v8, 4, v8")
    A("v_add_u32 v7, v7, v8")
    A("v_lshl_add_u32 v5, v2, 13, v3")
    A("v_lshl_add_u32 v6, v2, 13, v4")
    A(f"v_mov_b32 v9, {FL}")
    A(f"s_lshl_b32 s{sSOFF}, s{sXCD}, 8")
    A(f"s_mov_b32 s{SRD+2}, 16384\ns_mov_b32 s{SRD+3}, 0x20000")
    A("s_waitcnt lgkmcnt(0)")
    A(f"s_mov_b32 s{SRD}, s{sX}\ns_mov_b32 s{SRD+1}, s{sX+1}")
    A(f"s_mov_b32 m0, {XQ}")
    A("s_nop 0")
    A(f"buffer_load_dwordx4 v7, s[{SRD}:{SRD+3}], s{sSOFF} offen lds")
    A(f"s_add_u32 s{sSOFF}, s{sSOFF}, 128")
    A(f"s_mov_b32 m0, {XQ+1024}")
    A("s_nop 0")
    A(f"buffer_load_dwordx4 v7, s[{SRD}:{SRD+3}], s{sSOFF} offen lds")
    A(f"s_cmp_lg_u32 s{sROLE}, 1")
    A("s_cbranch_scc1 L_ld_noxg")
    A(f"s_lshl_b32 s{sSOFF}, s{sKH}, 10")
    for n in range(8):
        A(f"s_mov_b32 m0, {XG+1024*n}")
        A("s_nop 0")
        A(f"buffer_load_dwordx4 v7, s[{SRD}:{SRD+3}], s{sSOFF} offen lds")
        A(f"s_add_u32 s{sSOFF}, s{sSOFF}, 128")
    A("L_ld_noxg:")
    def seg_loop(nblk, name, first=False):
        l = f"L_ldloop_{name}"
        A(f"s_mov_b32 s{sNB}, {nblk}")
        A(f"{l}:")
        for half in range(2):
            if not first: A(f"s_waitcnt vmcnt({WIN})")
            if half == 0 and not first:
                A(f"s_sub_u32 s{sTMP}, s{sBLK}, {WB}")
                A(f"v_mov_b32 v10, s{sTMP}")
                A(f"ds_write_b32 v9, v10 offset:{F_PROG}")
            for i in range(4):
                v = 5 if ((i >> 1) & 1) == 0 else 6
                A(f"buffer_load_dwordx4 v{v}, s[{SRD}:{SRD+3}], s{sSOFF} offen {NT} lds")
                A(f"s_add_u32 m0, m0, 1024")
                A(f"s_add_u32 s{sSOFF}, s{sSOFF}, s{sSTEP}")
        A(f"s_add_u32 s{sBLK}, s{sBLK}, 1")
        A(f"s_sub_u32 s{sNB}, s{sNB}, 1")
        A(f"s_cmp_lg_u32 s{sNB}, 0")
        A(f"s_cbranch_scc1 {l}")
    def lds_wait_ge(off, val, vtmp="v11", vaddr="v9", sleep=1):
        l = g.lab("L_w")
        A(f"{l}:")
        A(f"ds_read_b32 {vtmp}, {vaddr} offset:{off}")
        A("s_waitcnt lgkmcnt(0)")
        A(f"v_readfirstlane_b32 s{sTMP}, {vtmp}")
        A(f"s_cmp_ge_u32 s{sTMP}, {val}")
        A(f"s_cbranch_scc0 {l}")
    A(f"s_mov_b32 s{SRD}, s{sWQ}\ns_mov_b32 s{SRD+1}, s{sWQ+1}\ns_mov_b32 s{SRD+2}, {1024*4096*2}")
    A(f"s_lshl_b32 s{sSOFF}, s{sXCD}, 20")
    A(f"s_lshl_b32 s{sTMP}, s{sR}, 8")
    A(f"s_add_u32 s{sSOFF}, s{sSOFF}, s{sTMP}")
    A(f"s_mov_b32 s{sSTEP}, {4*8192}")
    A(f"s_mov_b32 m0, {RQ}")
    A(f"s_mov_b32 s{sBLK}, 0")
    assert WB <= 4
    seg_loop(min(WB, 4), "q0", first=True)
    A("s_barrier")
    stamp(1)
    if WB < 4:
        seg_loop(4 - WB, "q1")
    A(f"s_cmp_eq_u32 s{sROLE}, 2")
    A("s_cbranch_scc1 L_ld_drain")
    A(f"s_cmp_eq_u32 s{sROLE}, 1")
    A("s_cbranch_scc1 L_ld_seg1B")
    A(f"s_mov_b32 s{SRD}, s{sK}\ns_mov_b32 s{SRD+1}, s{sK+1}\ns_mov_b32 s{SRD+2}, {8*4*4096*128*2}")
    A(f"s_lshl_b32 s{sSOFF}, s{sB}, 2")
    A(f"s_add_u32 s{sSOFF}, s{sSOFF}, s{sG}")
    A(f"s_lshl_b32 s{sSOFF}, s{sSOFF}, 20")
    A(f"s_lshl_b32 s{sTMP}, s{sSPL}, 16")
    A(f"s_add_u32 s{sSOFF}, s{sSOFF}, s{sTMP}")
    A(f"s_add_u32 s{sSOFF}, s{sSOFF}, {3072*256}")
    A(f"s_mov_b32 s{sSTEP}, 1024")
    A("v_lshl_add_u32 v5, v2, 8, v3")
    A("v_lshl_add_u32 v6, v2, 8, v4")
    A("s_branch L_ld_seg1")
    A("L_ld_seg1B:")
    A(f"s_cmp_eq_u32 s{sMT}, 0")
    A(f"s_cselect_b32 s{SRD}, s{sWG}, s{sWU}")
    A(f"s_cselect_b32 s{SRD+1}, s{sWG+1}, s{sWU+1}")
    A(f"s_mov_b32 s{SRD+2}, {1024*3584*2}")
    A(f"s_mul_i32 s{sSOFF}, s{sKH}, {512*7168}")
    A(f"s_lshl_b32 s{sTMP}, s{sFB}, 8")
    A(f"s_add_u32 s{sSOFF}, s{sSOFF}, s{sTMP}")
    A(f"s_mov_b32 s{sSTEP}, {4*7168}")
    A("v_mul_u32_u24 v8, 7168, v2")
    A("v_add_u32 v5, v8, v3")
    A("v_add_u32 v6, v8, v4")
    A("L_ld_seg1:")
    A(f"s_mov_b32 m0, {RA}")
    seg_loop(8, "s1")
    stamp(2)
    lds_wait_ge(F_FREE0, 8)
    A(f"s_cmp_eq_u32 s{sROLE}, 1")
    A("s_cbranch_scc1 L_ld_seg2")
    A(f"s_mov_b32 s{SRD}, s{sV}\ns_mov_b32 s{SRD+1}, s{sV+1}")
    A(f"s_sub_u32 s{sSOFF}, s{sSOFF}, 65536")
    A("L_ld_seg2:")
    A(f"s_mov_b32 m0, {RB}")
    seg_loop(8, "s2")
    stamp(3)
    lds_wait_ge(F_FREE1, 8)
    A(f"s_cmp_eq_u32 s{sROLE}, 1")
    A(f"s_cselect_b32 s{SRD}, s{sWD}, s{sWO}")
    A(f"s_cselect_b32 s{SRD+1}, s{sWD+1}, s{sWO+1}")
    A(f"s_mov_b32 s{sTMP}, {3584*1024*2}")
    A(f"s_mov_b32 s{sTMP2}, {4096*1024*2}")
    A(f"s_cselect_b32 s{SRD+2}, s{sTMP}, s{sTMP2}")
    A(f"s_lshl_b32 s{sSOFF}, s{sRBK}, 19")
    A(f"s_lshl_b32 s{sTMP}, s{sCB}, 8")
    A(f"s_add_u32 s{sSOFF}, s{sSOFF}, s{sTMP}")
    A(f"s_mov_b32 s{sSTEP}, {4*2048}")
    A("v_lshl_add_u32 v5, v2, 11, v3")
    A("v_lshl_add_u32 v6, v2, 11, v4")
    A(f"s_mov_b32 m0, {RA}")
    seg_loop(8, "s3")
    stamp(4)
    A("L_ld_drain:")
    for k in range(WB, -1, -1):
        A(f"s_sub_u32 s{sTMP}, s{sBLK}, {k}")
        A(f"v_mov_b32 v10, s{sTMP}")
        A(f"s_waitcnt vmcnt({8*k})")
        A(f"ds_write_b32 v9, v10 offset:{F_PROG}")
    stamp(5)
    A("s_branch L_exit")

    A("L_not_loader:")
    A("s_waitcnt lgkmcnt(0)")
    A(f"s_load_dword s{sT}, s[{sWS}:{sWS+1}], {WS_EPOCH}")
    A(f"s_mov_b32 s{sSEL0}, 0x07060500\ns_mov_b32 s{sSEL1}, 0x07060501\ns_mov_b32 s{sSEL2}, 0x07060502\ns_mov_b32 s{sSEL3}, 0x07060503")
    A(f"v_mov_b32 v9, {FL}")
    A(f"s_mov_b32 s{sPROG}, 0")
    A("s_cmp_eq_u32 s3, 9")
    A("s_cbranch_scc1 L_reducer")

    vL16, vTR, vACT, vT, vPUB = 1, 2, 3, 4, 5
    vTMP, vTMP2, vTMP3 = 6, 7, 8
    vW = 12
    vB = 16
    vACC = 20
    vACC2 = 24
    vGA = 28
    vLS = 44
    vK = 52
    vQ = 84
    vWA, vAA = 10, 11
    A(f"s_sub_u32 s{sC}, s3, 1")
    A(f"v_lshlrev_b32 v{vL16}, 4, v0")
    A(f"v_and_b32 v{vTMP}, 15, v0")
    A(f"v_lshrrev_b32 v{vTMP2}, 4, v0")
    A(f"v_lshrrev_b32 v{vTMP3}, 2, v{vTMP}")
    A(f"v_lshl_add_u32 v{vTR}, v{vTMP2}, 3, v{vTMP3}")
    A(f"v_lshlrev_b32 v{vTR}, 8, v{vTR}")
    A(f"v_and_b32 v{vACT}, 1, v{vTMP2}")
    A(f"v_lshl_or_b32 v{vTMP3}, v{vACT}, 2, v{vTMP3}")
    A(f"v_xor_b32 v{vTMP3}, s{sC}, v{vTMP3}")
    A(f"v_lshl_or_b32 v{vTR}, v{vTMP3}, 5, v{vTR}")
    A(f"v_and_b32 v{vTMP3}, 3, v0")
    A(f"v_lshl_or_b32 v{vTR}, v{vTMP3}, 3, v{vTR}")
    A(f"v_and_b32 v{vTMP3}, 7, v0")
    A(f"v_lshl_add_u32 v{vACT}, v{vTMP2}, 3, v{vTMP3}")
    A(f"v_lshlrev_b32 v{vACT}, 4, v{vACT}")
    A(f"s_cmp_lg_u32 s{sC}, 0")
    A("s_cbranch_scc1 L_noinit")
    A(f"v_mov_b32 v{vTMP}, 0xff7fffff")
    A(f"v_cmp_gt_u32 vcc, 16, v0")
    A(f"v_lshl_add_u32 v{vTMP2}, v0, 2, v9")
    A("s_nop 1")
    A(f"v_cndmask_b32 v{vTMP}, v{vTMP}, 0, vcc")
    A(f"s_mov_b32 exec_hi, 0")
    A(f"ds_write_b32 v{vTMP2}, v{vTMP}")
    A(f"s_mov_b64 exec, -1")
    A("L_noinit:")
    def tag_setup():
        A("s_waitcnt lgkmcnt(0)")
        A(f"s_add_u32 s{sT}, s{sT}, 0x01010101")
        A(f"s_lshr_b32 s{sT1}, s{sT}, 8\ns_lshr_b32 s{sT2}, s{sT}, 16\ns_lshr_b32 s{sT3}, s{sT}, 24")
        A(f"v_mov_b32 v{vT}, s{sT}")
    tag_setup()
    A("s_barrier")
    stamp(1)

    def wait_prog(val_is_sgpr, val):
        l = g.lab("L_wp"); d = g.lab("L_wpd")
        v = f"s{val}" if val_is_sgpr else str(val)
        A(f"s_cmp_ge_u32 s{sPROG}, {v}")
        A(f"s_cbranch_scc1 {d}")
        A(f"{l}:")
        A(f"ds_read_b32 v{vTMP}, v9 offset:{F_PROG}")
        A("s_waitcnt lgkmcnt(0)")
        A(f"v_readfirstlane_b32 s{sPROG}, v{vTMP}")
        A(f"s_cmp_ge_u32 s{sPROG}, {v}")
        A(f"s_cbranch_scc0 {l}")
        A(f"{d}:")
    def signal(off):
        A(f"v_mov_b32 v{vTMP}, 1")
        A("s_mov_b64 exec, 1")
        A(f"ds_add_u32 v9, v{vTMP} offset:{off}")
        A("s_mov_b64 exec, -1")
    def cwait(off, val):
        lds_wait_ge(off, val, vtmp=f"v{vTMP}")
    def gemv(nblk, prog0, wbase, abase, zero=True):
        l = g.lab("L_gv")
        if zero:
            for r in range(4): A(f"v_mov_b32 v{vACC+r}, 0")
        A(f"v_add_u32 v{vWA}, {wbase}, v{vTR}")
        A(f"v_add_u32 v{vAA}, {abase}, v{vACT}")
        A(f"s_mov_b32 s{sCNT}, {prog0+1}")
        A(f"{l}:")
        wait_prog(True, sCNT)
        A(f"ds_read_b64_tr_b16 v[{vW}:{vW+1}], v{vWA}")
        A(f"ds_read_b64_tr_b16 v[{vW+2}:{vW+3}], v{vWA} offset:1024")
        A(f"ds_read_b128 v[{vB}:{vB+3}], v{vAA}")
        A(f"v_add_u32 v{vWA}, 8192, v{vWA}")
        A(f"v_add_u32 v{vAA}, 512, v{vAA}")
        A(f"s_add_u32 s{sCNT}, s{sCNT}, 1")
        A("s_waitcnt lgkmcnt(0)")
        A(f"v_mfma_f32_16x16x32_bf16 v[{vACC}:{vACC+3}], v[{vW}:{vW+3}], v[{vB}:{vB+3}], v[{vACC}:{vACC+3}]")
        A(f"s_cmp_le_u32 s{sCNT}, {prog0+nblk}")
        A(f"s_cbranch_scc1 {l}")
    def publish(src):
        for r, sel in enumerate([sSEL0, sSEL1, sSEL2, sSEL3]):
            A(f"v_perm_b32 v{src+r}, v{src+r}, v{vT}, s{sel}")
        A("s_mov_b32 exec_lo, 0x00ff00ff\ns_mov_b32 exec_hi, 0x00ff00ff")
        A(f"global_store_dwordx4 v{vPUB}, v[{src}:{src+3}], s[{sGA}:{sGA+1}] sc1")
        A("s_mov_b64 exec, -1")
    def ws_addr(dst, base_const, soff):
        A(f"s_add_u32 s{soff}, s{soff}, {base_const}")
        A(f"s_add_u32 s{dst}, s{sWS}, s{soff}")
        A(f"s_addc_u32 s{dst+1}, s{sWS+1}, 0")
    def gather(lse=False, voff=vL16, vbase=vGA, lastmask=None, sleep=0):
        l = g.lab("L_ga"); d = g.lab("L_gad")
        A(f"s_mov_b32 s{sCNT}, 0")
        A(f"{l}:")
        if sleep: A(f"s_sleep {sleep}")
        for i in range(4):
            A(f"global_load_dwordx4 v[{vbase+4*i}:{vbase+4*i+3}], v{voff}, s[{sGA}:{sGA+1}] offset:{1024*i} sc1")
        if lse:
            A(f"global_load_dwordx4 v[{vLS}:{vLS+3}], v{vTMP3}, s[{sGB}:{sGB+1}] sc1")
            A(f"global_load_dwordx4 v[{vLS+4}:{vLS+7}], v{vTMP3}, s[{sGB}:{sGB+1}] offset:16 sc1")
        A(f"s_add_u32 s{sCNT}, s{sCNT}, 1")
        A(f"s_cmp_gt_u32 s{sCNT}, {opt.maxpoll}")
        A(f"s_cbranch_scc1 {d}")
        n = 6 if lse else 4
        ts = [sT0, sT1, sT2, sT3]
        for i in range(4):
            A(f"s_waitcnt vmcnt({n-1-i})")
            if i == 3 and lastmask is not None:
                A(f"s_mov_b32 exec_hi, {lastmask}")
            for r in range(4):
                if i == 0 and r == 0:
                    A(f"v_xor_b32 v{vTMP}, s{ts[r]}, v{vbase}")
                else:
                    A(f"v_bitop3_b32 v{vTMP}, v{vTMP}, v{vbase+4*i+r}, s{ts[r]} bitop3:0xf6")
            if i == 3 and lastmask is not None:
                A("s_mov_b32 exec_hi, -1")
        A(f"v_and_b32 v{vTMP}, 0xff, v{vTMP}")
        if lse:
            A("s_waitcnt vmcnt(0)")
            for r in (1, 3, 5, 7):
                A(f"v_bitop3_b32 v{vTMP}, v{vTMP}, v{vLS+r}, s{sT} bitop3:0xf6")
        A(f"v_cmp_ne_u32 vcc, 0, v{vTMP}")
        A(f"s_cbranch_vccnz {l}")
        A(f"{d}:")
        A("s_waitcnt vmcnt(0)")

    gemv(4, 0, RQ, XQ)
    signal(F_FREE0)
    A(f"v_and_b32 v{vTMP2}, 15, v0")
    A(f"v_lshrrev_b32 v{vTMP3}, 4, v0")
    A(f"v_lshlrev_b32 v{vPUB}, 17, v{vTMP2}")
    A(f"v_lshl_or_b32 v{vPUB}, v{vTMP3}, 4, v{vPUB}")
    A(f"s_lshl_b32 s{sTMP}, s2, 9")
    A(f"s_lshl_b32 s{sTMP2}, s{sC}, 6")
    A(f"s_add_u32 s{sTMP}, s{sTMP}, s{sTMP2}")
    ws_addr(sGA, WS_QP, sTMP)
    publish(vACC)
    stamp(2)
    A(f"s_cmp_eq_u32 s{sROLE}, 2")
    A("s_cbranch_scc1 L_exit")
    A(f"s_cmp_eq_u32 s{sROLE}, 1")
    A("s_cbranch_scc1 L_roleB")

    A(f"s_add_u32 s{sTMP2}, s{sC}, 5")
    wait_prog(True, sTMP2)
    A(f"v_and_b32 v{vTMP}, 15, v0")
    A(f"v_lshrrev_b32 v{vTMP2}, 2, v{vTMP}")
    A(f"v_and_b32 v{vTMP3}, 3, v0")
    A(f"v_lshl_add_u32 v{vTMP2}, v{vTMP2}, 3, v{vTMP3}")
    A(f"v_lshlrev_b32 v{vWA}, 8, v{vTMP2}")
    A(f"v_lshrrev_b32 v{vTMP2}, 5, v0")
    A(f"v_and_b32 v{vTMP3}, 7, v0")
    A(f"v_xor_b32 v{vTMP2}, v{vTMP2}, v{vTMP3}")
    A(f"v_lshl_or_b32 v{vWA}, v{vTMP2}, 5, v{vWA}")
    A(f"v_and_b32 v{vTMP2}, 16, v0")
    A(f"v_or_b32 v{vWA}, v{vWA}, v{vTMP2}")
    A(f"s_lshl_b32 s{sTMP}, s{sC}, 13")
    A(f"v_add_u32 v{vWA}, s{sTMP}, v{vWA}")
    for db in range(4):
        if db: A(f"v_xor_b32 v{vAA}, {64*db}, v{vWA}")
        a = vAA if db else vWA
        A(f"ds_read_b128 v[{vK+4*db}:{vK+4*db+3}], v{a}")
        A(f"ds_read_b128 v[{vK+16+4*db}:{vK+16+4*db+3}], v{a} offset:1024")
    signal(F_FREE1)
    stamp(3)
    wait_prog(False, opt.qgate)
    A(f"s_lshl_b32 s{sTMP}, s{sB}, 5")
    A(f"s_lshl_b32 s{sTMP2}, s{sG}, 3")
    A(f"s_add_u32 s{sTMP}, s{sTMP}, s{sTMP2}")
    A(f"s_add_u32 s{sTMP}, s{sTMP}, s{sC}")
    A(f"s_lshl_b32 s{sTMP}, s{sTMP}, 12")
    ws_addr(sGA, WS_QP, sTMP)
    gather()
    stamp(4)
    for r in range(4):
        A(f"v_add_f32 v{vGA+r}, v{vGA+r}, v{vGA+4+r}")
        A(f"v_add_f32 v{vGA+8+r}, v{vGA+8+r}, v{vGA+12+r}")
    for r in range(4):
        A(f"v_add_f32 v{vGA+r}, v{vGA+r}, v{vGA+8+r}")
    A(f"v_and_b32 v{vTMP2}, 30, v0")
    A(f"v_lshlrev_b32 v{vTMP2}, 6, v{vTMP2}")
    A(f"v_permlane32_swap_b32 v{vGA}, v{vGA+2}")
    A(f"v_permlane32_swap_b32 v{vGA+1}, v{vGA+3}")
    A(f"v_and_b32 v{vTMP3}, 1, v0")
    A(f"v_lshl_or_b32 v{vTMP2}, v{vTMP3}, 3, v{vTMP2}")
    A(f"v_lshrrev_b32 v{vTMP3}, 5, v0")
    A(f"v_lshl_or_b32 v{vTMP2}, v{vTMP3}, 2, v{vTMP2}")
    A(f"s_lshl_b32 s{sTMP}, s{sC}, 4")
    A(f"s_add_u32 s{sTMP}, s{sTMP}, {QF}")
    A(f"v_add_u32 v{vTMP2}, s{sTMP}, v{vTMP2}")
    A(f"v_add_f32 v{vGA}, v{vGA}, v{vGA+2}")
    A(f"v_add_f32 v{vGA+1}, v{vGA+1}, v{vGA+3}")
    A(f"v_cvt_pk_bf16_f32 v{vGA}, v{vGA}, v{vGA+1}")
    A(f"ds_write_b32 v{vTMP2}, v{vGA}")
    signal(F_BQ)
    cwait(F_BQ, 8)
    A(f"v_add_u32 v{vAA}, {QF}, v{vACT}")
    for kb in range(4):
        A(f"ds_read_b128 v[{vQ+4*kb}:{vQ+4*kb+3}], v{vAA} offset:{512*kb}")
    A("s_waitcnt lgkmcnt(0)")
    for db in range(4):
        c0 = "0" if db == 0 else f"v[{vACC}:{vACC+3}]"
        c1 = "0" if db == 0 else f"v[{vACC2}:{vACC2+3}]"
        A(f"v_mfma_f32_16x16x32_bf16 v[{vACC}:{vACC+3}], v[{vK+4*db}:{vK+4*db+3}], v[{vQ+4*db}:{vQ+4*db+3}], {c0}")
        A(f"v_mfma_f32_16x16x32_bf16 v[{vACC2}:{vACC2+3}], v[{vK+16+4*db}:{vK+16+4*db+3}], v[{vQ+4*db}:{vQ+4*db+3}], {c1}")
    A(f"v_and_b32 v{vTMP3}, 7, v0")
    A(f"v_lshl_add_u32 v{vTMP3}, v{vTMP3}, 2, v9")
    A("s_nop 6")
    A(f"v_max3_f32 v{vTMP2}, v{vACC}, v{vACC+1}, v{vACC+2}")
    A(f"v_max3_f32 v{vTMP2}, v{vTMP2}, v{vACC+3}, v{vACC2}")
    A(f"v_max3_f32 v{vTMP2}, v{vTMP2}, v{vACC2+1}, v{vACC2+2}")
    A(f"v_max_f32 v{vTMP2}, v{vTMP2}, v{vACC2+3}")
    A(f"ds_max_f32 v{vTMP3}, v{vTMP2} offset:{F_MAX}")
    signal(F_BM)
    cwait(F_BM, 8)
    vM = vLS
    A(f"ds_read_b32 v{vM}, v{vTMP3} offset:{F_MAX}")
    import struct, math
    cbits = struct.unpack("<I", struct.pack("<f", math.log2(math.e) / math.sqrt(128.0)))[0]
    A(f"s_mov_b32 s{sTMP}, {cbits:#x}")
    A("s_waitcnt lgkmcnt(0)")
    A(f"v_mul_f32 v{vM}, s{sTMP}, v{vM}")
    for r in range(8):
        A(f"v_fma_f32 v{vACC+r}, v{vACC+r}, s{sTMP}, -v{vM}")
    for r in range(8):
        A(f"v_exp_f32 v{vACC+r}, v{vACC+r}")
    A(f"s_lshl_b32 s{sTMP}, s{sC}, 9")
    A(f"s_add_u32 s{sTMP}, s{sTMP}, {PF}")
    A(f"v_add_u32 v{vTMP2}, s{sTMP}, v{vACT}")
    for r in range(4):
        A(f"v_cvt_pk_bf16_f32 v{vB+r}, v{vACC+2*r}, v{vACC+2*r+1}")
    A(f"ds_write_b128 v{vTMP2}, v[{vB}:{vB+3}]")
    signal(F_BP)
    cwait(F_BP, 8)
    A(f"v_add_u32 v{vAA}, {PF}, v{vACT}")
    for r in range(4): A(f"v_mov_b32 v{vW+r}, 0x3f803f80")
    for kb in range(8):
        A(f"ds_read_b128 v[{vK+4*kb}:{vK+4*kb+3}], v{vAA} offset:{512*kb}")
    for kb in range(8):
        A(f"s_waitcnt lgkmcnt({7-kb})")
        c1 = "0" if kb == 0 else f"v[{vACC2}:{vACC2+3}]"
        A(f"v_mfma_f32_16x16x32_bf16 v[{vACC2}:{vACC2+3}], v[{vW}:{vW+3}], v[{vK+4*kb}:{vK+4*kb+3}], {c1}")
    A("s_nop 7")
    vRL = vLS + 2
    A(f"v_log_f32 v{vLS+1}, v{vACC2}")
    A(f"v_rcp_f32 v{vRL}, v{vACC2}")
    A("s_nop 0")
    A(f"v_add_f32 v{vM}, v{vM}, v{vLS+1}")
    A(f"v_mov_b32 v{vLS+1}, s{sT}")
    A(f"s_cmp_lg_u32 s{sC}, 0")
    A("s_cbranch_scc1 L_nolse")
    A(f"s_lshl_b32 s{sTMP}, s{sG}, 11")
    A(f"s_lshl_b32 s{sTMP2}, s{sB}, 5")
    A(f"s_add_u32 s{sTMP}, s{sTMP}, s{sTMP2}")
    A(f"s_lshl_b32 s{sTMP2}, s{sSPL}, 3")
    A(f"s_add_u32 s{sTMP}, s{sTMP}, s{sTMP2}")
    ws_addr(sGA, WS_LSE, sTMP)
    A(f"v_lshlrev_b32 v{vTMP2}, 8, v0")
    A("s_mov_b64 exec, 0xff")
    A(f"global_store_dwordx2 v{vTMP2}, v[{vLS}:{vLS+1}], s[{sGA}:{sGA+1}] sc1")
    A("s_mov_b64 exec, -1")
    A("L_nolse:")
    stamp(5)
    A(f"v_and_b32 v{vTMP2}, 15, v0")
    A(f"v_lshrrev_b32 v{vTMP3}, 4, v0")
    A(f"v_lshlrev_b32 v{vPUB}, 14, v{vTMP2}")
    A(f"v_lshl_or_b32 v{vPUB}, v{vTMP3}, 4, v{vPUB}")
    A(f"s_lshl_b32 s{sTMP}, s{sG}, 17")
    A(f"s_lshr_b32 s{sTMP2}, s{sC}, 1")
    A(f"s_lshl_b32 s{sTMP2}, s{sTMP2}, 12")
    A(f"s_add_u32 s{sTMP}, s{sTMP}, s{sTMP2}")
    A(f"s_lshl_b32 s{sTMP2}, s{sSPL}, 10")
    A(f"s_add_u32 s{sTMP}, s{sTMP}, s{sTMP2}")
    A(f"s_and_b32 s{sTMP2}, s{sC}, 1")
    A(f"s_lshl_b32 s{sTMP2}, s{sTMP2}, 9")
    A(f"s_add_u32 s{sTMP}, s{sTMP}, s{sTMP2}")
    A(f"s_lshl_b32 s{sTMP2}, s{sB}, 6")
    A(f"s_add_u32 s{sTMP}, s{sTMP}, s{sTMP2}")
    ws_addr(sGA, WS_OP, sTMP)
    gemv(8, 12, RB, PF)
    A("s_nop 6")
    for r in range(4): A(f"v_mul_f32 v{vACC+r}, v{vACC+r}, v{vRL}")
    publish(vACC)
    stamp(6)
    A(f"s_lshl_b32 s{sTMP}, s{sRBK}, 3")
    A(f"s_add_u32 s{sTMP}, s{sTMP}, s{sC}")
    A(f"s_lshr_b32 s{sTMP3}, s{sTMP}, 2")
    A(f"s_lshl_b32 s{sTMP}, s{sTMP}, 12")
    ws_addr(sGA, WS_OP, sTMP)
    A(f"s_lshl_b32 s{sTMP3}, s{sTMP3}, 8")
    ws_addr(sGB, WS_LSE, sTMP3)
    wait_prog(False, opt.lgate)
    A(f"v_lshrrev_b32 v{vTMP3}, 2, v0")
    A(f"v_and_b32 v{vTMP3}, 7, v{vTMP3}")
    A(f"v_lshlrev_b32 v{vTMP3}, 5, v{vTMP3}")
    gather(lse=True)
    stamp(7)
    A(f"v_max3_f32 v{vTMP}, v{vLS}, v{vLS+2}, v{vLS+4}")
    A(f"v_max_f32 v{vTMP}, v{vTMP}, v{vLS+6}")
    for i in range(4): A(f"v_sub_f32 v{vLS+2*i}, v{vLS+2*i}, v{vTMP}")
    for i in range(4): A(f"v_exp_f32 v{vLS+2*i}, v{vLS+2*i}")
    A("s_nop 0")
    A(f"v_add_f32 v{vTMP}, v{vLS}, v{vLS+2}")
    A(f"v_add_f32 v{vTMP2}, v{vLS+4}, v{vLS+6}")
    A(f"v_add_f32 v{vTMP}, v{vTMP}, v{vTMP2}")
    A(f"v_rcp_f32 v{vTMP}, v{vTMP}")
    for r in range(4): A(f"v_mul_f32 v{vGA+r}, v{vGA+r}, v{vLS}")
    for i in range(1, 4):
        for r in range(4): A(f"v_fmac_f32 v{vGA+r}, v{vGA+4*i+r}, v{vLS+2*i}")
    for r in range(4): A(f"v_mul_f32 v{vGA+r}, v{vGA+r}, v{vTMP}")
    A(f"v_cvt_pk_bf16_f32 v{vGA}, v{vGA}, v{vGA+1}")
    A(f"v_cvt_pk_bf16_f32 v{vGA+1}, v{vGA+2}, v{vGA+3}")
    A(f"s_mov_b32 s{sTMP3}, s{sRBK}")
    A("s_branch L_late")

    A("L_roleB:")
    A(f"v_and_b32 v{vTMP2}, 15, v0")
    A(f"v_lshrrev_b32 v{vTMP3}, 4, v0")
    A(f"v_lshlrev_b32 v{vPUB}, 6, v{vTMP2}")
    A(f"v_lshl_or_b32 v{vPUB}, v{vTMP3}, 4, v{vPUB}")
    A(f"s_lshl_b32 s{sTMP}, s{sFB}, 14")
    A(f"s_lshr_b32 s{sTMP2}, s{sC}, 1")
    A(f"s_lshl_b32 s{sTMP2}, s{sTMP2}, 12")
    A(f"s_add_u32 s{sTMP}, s{sTMP}, s{sTMP2}")
    A(f"s_lshl_b32 s{sTMP2}, s{sMT}, 11")
    A(f"s_add_u32 s{sTMP}, s{sTMP}, s{sTMP2}")
    A(f"s_lshl_b32 s{sTMP2}, s{sKH}, 10")
    A(f"s_add_u32 s{sTMP}, s{sTMP}, s{sTMP2}")
    A(f"s_and_b32 s{sTMP2}, s{sC}, 1")
    A(f"s_lshl_b32 s{sTMP2}, s{sTMP2}, 9")
    A(f"s_add_u32 s{sTMP}, s{sTMP}, s{sTMP2}")
    ws_addr(sGA, WS_GP, sTMP)
    gemv(8, 4, RA, XG)
    signal(F_FREE1)
    stamp(3)
    gemv(8, 12, RB, XG + 4096, zero=False)
    A("s_nop 6")
    publish(vACC)
    stamp(6)
    A(f"s_lshl_b32 s{sTMP}, s{sRBK}, 3")
    A(f"s_add_u32 s{sTMP}, s{sTMP}, s{sC}")
    A(f"s_lshl_b32 s{sTMP}, s{sTMP}, 12")
    ws_addr(sGA, WS_GP, sTMP)
    wait_prog(False, opt.lgate)
    gather()
    stamp(7)
    for r in range(4):
        A(f"v_add_f32 v{vGA+r}, v{vGA+r}, v{vGA+4+r}")
        A(f"v_add_f32 v{vGA+8+r}, v{vGA+8+r}, v{vGA+12+r}")
    for r in range(4): A(f"v_max_f32 v{vGA+r}, 0, v{vGA+r}")
    A(f"v_cvt_pk_bf16_f32 v{vGA+4}, v{vGA}, v{vGA+1}")
    A(f"v_cvt_pk_bf16_f32 v{vGA+5}, v{vGA+2}, v{vGA+3}")
    A(f"v_cvt_pk_bf16_f32 v{vGA+6}, v{vGA+8}, v{vGA+9}")
    A(f"v_cvt_pk_bf16_f32 v{vGA+7}, v{vGA+10}, v{vGA+11}")
    for h in range(2):
        A(f"v_lshlrev_b32 v{vGA+2*h}, 16, v{vGA+4+h}")
        A(f"v_and_b32 v{vGA+2*h+1}, 0xffff0000, v{vGA+4+h}")
        A(f"v_lshlrev_b32 v{vGA+8+2*h}, 16, v{vGA+6+h}")
        A(f"v_and_b32 v{vGA+8+2*h+1}, 0xffff0000, v{vGA+6+h}")
    for r in range(4): A(f"v_mul_f32 v{vGA+r}, v{vGA+r}, v{vGA+8+r}")
    A(f"v_cvt_pk_bf16_f32 v{vGA}, v{vGA}, v{vGA+1}")
    A(f"v_cvt_pk_bf16_f32 v{vGA+1}, v{vGA+2}, v{vGA+3}")
    A(f"s_add_u32 s{sTMP3}, s{sRBK}, 16")

    A("L_late:")
    A(f"v_lshrrev_b32 v{vTMP}, 5, v0")
    A(f"v_lshlrev_b32 v{vTMP}, 8, v{vTMP}")
    A(f"v_and_b32 v{vTMP2}, 2, v0")
    A(f"v_lshl_or_b32 v{vTMP}, v{vTMP2}, 6, v{vTMP}")
    A(f"v_and_b32 v{vTMP2}, 28, v0")
    A(f"v_lshl_or_b32 v{vTMP}, v{vTMP2}, 2, v{vTMP}")
    A(f"v_and_b32 v{vTMP2}, 1, v0")
    A(f"v_lshl_or_b32 v{vTMP}, v{vTMP2}, 3, v{vTMP}")
    A(f"s_lshl_b32 s{sTMP}, s{sC}, 9")
    A(f"s_add_u32 s{sTMP}, s{sTMP}, {AF}")
    A(f"v_add_u32 v{vTMP2}, s{sTMP}, v{vTMP}")
    A(f"ds_write_b64 v{vTMP2}, v[{vGA}:{vGA+1}]")
    signal(F_BA)
    A(f"v_and_b32 v{vTMP2}, 14, v0")
    A(f"v_lshlrev_b32 v{vPUB}, 11, v{vTMP2}")
    A(f"v_and_b32 v{vTMP2}, 1, v0")
    A(f"v_lshl_or_b32 v{vPUB}, v{vTMP2}, 6, v{vPUB}")
    A(f"v_and_b32 v{vTMP2}, 48, v0")
    A(f"v_or_b32 v{vPUB}, v{vPUB}, v{vTMP2}")
    A(f"s_lshl_b32 s{sTMP}, s{sCB}, 3")
    A(f"s_add_u32 s{sTMP}, s{sTMP}, s{sC}")
    A(f"s_lshl_b32 s{sTMP}, s{sTMP}, 14")
    A(f"s_lshl_b32 s{sTMP3}, s{sTMP3}, 7")
    A(f"s_add_u32 s{sTMP}, s{sTMP}, s{sTMP3}")
    ws_addr(sGA, WS_FP, sTMP)
    cwait(F_BA, 8)
    stamp(8)
    gemv(8, 20, RA, AF)
    A("s_nop 6")
    publish(vACC)
    signal(F_DONE)
    stamp(9)
    A("s_branch L_exit")

    A("L_reducer:")
    vXr, vGWr = 28, 44
    A(f"v_lshlrev_b32 v{vL16}, 4, v0")
    tag_setup()
    A("s_barrier")
    stamp(1)
    wait_prog(False, 2)
    A(f"v_and_b32 v{vTMP2}, 31, v0")
    A(f"v_lshlrev_b32 v{vTMP2}, 4, v{vTMP2}")
    A(f"v_lshrrev_b32 v{vTMP3}, 5, v0")
    A(f"s_and_b32 s{sTMP}, s2, 3")
    A(f"s_lshl_b32 s{sTMP}, s{sTMP}, 12")
    A(f"v_lshl_add_u32 v{vTMP3}, v{vTMP3}, 11, v{vTMP2}")
    A(f"v_add_u32 v{vTMP3}, s{sTMP}, v{vTMP3}")
    for i in range(4):
        A(f"global_load_dwordx4 v[{vXr+4*i}:{vXr+4*i+3}], v{vTMP3}, s[{sX}:{sX+1}] offset:{512*i}")
        A(f"global_load_dwordx4 v[{vGWr+4*i}:{vGWr+4*i+3}], v{vTMP2}, s[{sGW}:{sGW+1}] offset:{512*i}")
    A(f"v_mov_b32 v{vACC}, 0")
    A("s_waitcnt vmcnt(0)")
    for i in range(16):
        A(f"v_lshlrev_b32 v{vW}, 16, v{vXr+i}")
        A(f"v_and_b32 v{vW+1}, 0xffff0000, v{vXr+i}")
        A(f"v_lshlrev_b32 v{vW+2}, 16, v{vGWr+i}")
        A(f"v_and_b32 v{vW+3}, 0xffff0000, v{vGWr+i}")
        A(f"v_mul_f32 v{vW}, v{vW}, v{vW+2}")
        A(f"v_mul_f32 v{vW+1}, v{vW+1}, v{vW+3}")
        A(f"v_cvt_pk_bf16_f32 v{vW}, v{vW}, v{vW+1}")
        A(f"v_lshlrev_b32 v{vW+1}, 16, v{vW}")
        A(f"v_and_b32 v{vW}, 0xffff0000, v{vW}")
        A(f"v_add_f32 v{vACC}, v{vACC}, v{vW+1}")
        A(f"v_add_f32 v{vACC}, v{vACC}, v{vW}")
    for off in (0x041F, 0x081F, 0x101F, 0x201F, 0x401F):
        A(f"ds_swizzle_b32 v{vW}, v{vACC} offset:{off:#x}")
        A("s_waitcnt lgkmcnt(0)")
        A(f"v_add_f32 v{vACC}, v{vACC}, v{vW}")
    def rbf(v):
        A(f"v_cvt_pk_bf16_f32 v{v}, v{v}, v{v}")
        A(f"v_and_b32 v{v}, 0xffff0000, v{v}")
    rbf(vACC)
    A(f"v_mul_f32 v{vACC}, 0xbfb8aa3b, v{vACC}")
    A(f"v_exp_f32 v{vACC}, v{vACC}")
    A("s_nop 0")
    A(f"v_add_f32 v{vACC}, 1.0, v{vACC}")
    A(f"v_rcp_f32 v{vACC}, v{vACC}")
    A("s_nop 0")
    rbf(vACC)
    A("s_nop 0")
    A(f"v_readlane_b32 s{sTMP}, v{vACC}, 0")
    A(f"v_readlane_b32 s{sTMP2}, v{vACC}, 32")
    A(f"v_and_b32 v{vTMP2}, 4, v0")
    A(f"v_cmp_eq_u32 vcc, 0, v{vTMP2}")
    A(f"v_mov_b32 v{vB}, s{sTMP}")
    A(f"v_mov_b32 v{vB+1}, s{sTMP2}")
    vGt, vOM = vB + 2, vB + 3
    A(f"v_cndmask_b32 v{vGt}, v{vB+1}, v{vB}, vcc")
    A(f"v_sub_f32 v{vOM}, 1.0, v{vGt}")
    rbf(vOM)
    A(f"v_lshlrev_b32 v{vPUB}, 9, v{vTMP2}")
    A(f"v_and_b32 v{vTMP2}, 3, v0")
    A(f"v_lshl_or_b32 v{vPUB}, v{vTMP2}, 3, v{vPUB}")
    A(f"s_and_b32 s{sTMP}, s2, 3")
    A(f"s_lshl_b32 s{sTMP}, s{sTMP}, 12")
    A(f"s_lshr_b32 s{sTMP2}, s2, 2")
    A(f"s_lshl_b32 s{sTMP2}, s{sTMP2}, 5")
    A(f"s_add_u32 s{sTMP}, s{sTMP}, s{sTMP2}")
    A(f"v_add_u32 v{vPUB}, s{sTMP}, v{vPUB}")
    A(f"s_lshl_b32 s{sTMP}, s2, 12")
    ws_addr(sGA, WS_FP, sTMP)
    stamp(2)
    A(f"s_cmp_eq_u32 s{sROLE}, 2")
    A("s_cbranch_scc1 L_red_go")
    cwait(F_DONE, 8)
    A("L_red_go:")
    stamp(3)
    gather(lastmask="0x0000ffff", sleep=opt.rsleep)
    stamp(4)
    A("s_mov_b32 exec_lo, 0\ns_mov_b32 exec_hi, 0xffff0000")
    for r in range(4): A(f"v_mov_b32 v{vGA+12+r}, 0")
    A("s_mov_b64 exec, -1")
    for r in range(4):
        A(f"v_add_f32 v{vGA+r}, v{vGA+r}, v{vGA+4+r}")
        A(f"v_add_f32 v{vGA+8+r}, v{vGA+8+r}, v{vGA+12+r}")
    A("s_nop 1")
    for r in range(4): A(f"v_permlane32_swap_b32 v{vGA+r}, v{vGA+8+r}")
    for r in range(4): A(f"v_add_f32 v{vGA+r}, v{vGA+r}, v{vGA+8+r}")
    for r in range(4): A(f"v_mov_b32 v{vGA+4+r}, v{vGA+r}")
    A("s_nop 1")
    for r in range(4): A(f"v_permlane16_swap_b32 v{vGA+r}, v{vGA+4+r}")
    for r in range(4): A(f"v_add_f32 v{vGA+r}, v{vGA+r}, v{vGA+4+r}")
    A("s_nop 1")
    for r in range(4): A(f"v_add_f32_dpp v{vGA+r}, v{vGA+r}, v{vGA+r} row_ror:8 row_mask:0xf bank_mask:0xf")
    A(f"v_cmp_gt_u32 vcc, 32, v0")
    A(f"v_cvt_pk_bf16_f32 v{vGA+4}, v{vGA}, v{vGA+1}")
    A(f"v_cvt_pk_bf16_f32 v{vGA+5}, v{vGA+2}, v{vGA+3}")
    A(f"v_cndmask_b32 v{vGt}, v{vOM}, v{vGt}, vcc")
    for h in range(2):
        A(f"v_lshlrev_b32 v{vGA+2*h}, 16, v{vGA+4+h}")
        A(f"v_and_b32 v{vGA+2*h+1}, 0xffff0000, v{vGA+4+h}")
    for r in range(4): A(f"v_mul_f32 v{vGA+r}, v{vGA+r}, v{vGt}")
    A(f"v_cvt_pk_bf16_f32 v{vGA+4}, v{vGA}, v{vGA+1}")
    A(f"v_cvt_pk_bf16_f32 v{vGA+5}, v{vGA+2}, v{vGA+3}")
    A(f"v_mov_b32 v{vGA+6}, v{vGA+4}")
    A(f"v_mov_b32 v{vGA+7}, v{vGA+5}")
    A("s_nop 1")
    A(f"v_permlane32_swap_b32 v{vGA+4}, v{vGA+6}")
    A(f"v_permlane32_swap_b32 v{vGA+5}, v{vGA+7}")
    for h in range(2):
        A(f"v_lshlrev_b32 v{vGA+2*h}, 16, v{vGA+4+h}")
        A(f"v_and_b32 v{vGA+2*h+1}, 0xffff0000, v{vGA+4+h}")
        A(f"v_lshlrev_b32 v{vGA+8+2*h}, 16, v{vGA+6+h}")
        A(f"v_and_b32 v{vGA+8+2*h+1}, 0xffff0000, v{vGA+6+h}")
    for r in range(4): A(f"v_add_f32 v{vGA+r}, v{vGA+r}, v{vGA+8+r}")
    A(f"v_cvt_pk_bf16_f32 v{vGA}, v{vGA}, v{vGA+1}")
    A(f"v_cvt_pk_bf16_f32 v{vGA+1}, v{vGA+2}, v{vGA+3}")
    A("s_mov_b64 exec, 0xff")
    A(f"global_store_dwordx2 v{vPUB}, v[{vGA}:{vGA+1}], s[{sOUT}:{sOUT+1}] {opt.outflags}")
    A("s_cmp_lg_u32 s2, 0")
    A("s_cbranch_scc1 L_noepoch")
    A("s_mov_b64 exec, 1")
    A(f"v_mov_b32 v{vTMP}, 0")
    A(f"global_store_dword v{vTMP}, v{vT}, s[{sWS}:{sWS+1}] sc1")
    A("L_noepoch:")
    A("s_mov_b64 exec, -1")
    stamp(5)
    if STAMP:
        A("s_waitcnt vmcnt(0)")
        stamp(6)
        A(f"s_mov_b32 s{sST+2*11}, s{sCNT}")

    A("L_exit:")
    if STAMP:
        A("s_waitcnt lgkmcnt(0)")
        A(f"s_mul_i32 s{sTMP}, s2, 10")
        A(f"s_add_u32 s{sTMP}, s{sTMP}, s3")
        A(f"s_lshl_b32 s{sTMP}, s{sTMP}, 6")
        A(f"s_add_u32 s{sTMP}, s{sTMP}, {WS_STAMP}")
        A(f"v_mov_b32 v1, s{sTMP}")
        A("s_mov_b64 exec, 1")
        for i in range(12):
            A(f"v_mov_b32 v2, s{sST+2*i}")
            A(f"global_store_dword v1, v2, s[{sWS}:{sWS+1}] offset:{4*i}")
    A("L_end:")
    A("s_endpgm")

    body = "\n".join(g.o)
    NV = 104
    txt = HEADER
    txt += f"; @launch grid=(256,1,1) block=(640,1,1) lds={LDS_BYTES}\n"
    txt += f""".amdgcn_target "amdgcn-amd-amdhsa--gfx950"
.text
.globl {KNAME}
.p2align 8
.type {KNAME},@function
{KNAME}:
{body}
.section .rodata,"a"
.p2align 6
.amdhsa_kernel {KNAME}
  .amdhsa_next_free_vgpr {NV}
  .amdhsa_next_free_sgpr 102
  .amdhsa_accum_offset {NV}
  .amdhsa_group_segment_fixed_size 0
  .amdhsa_kernarg_size 104
  .amdhsa_user_sgpr_count 2
  .amdhsa_user_sgpr_kernarg_segment_ptr 1
  .amdhsa_system_sgpr_workgroup_id_x 1
.end_amdhsa_kernel
"""
    return txt

def parse(argv):
    ap = argparse.ArgumentParser()
    ap.add_argument("--nt", default="nt")
    ap.add_argument("--win", type=int, default=24)
    ap.add_argument("--stamp", type=int, default=0)
    ap.add_argument("--qgate", type=int, default=8)
    ap.add_argument("--lgate", type=int, default=23)
    ap.add_argument("--maxpoll", type=int, default=100000)
    ap.add_argument("--rsleep", type=int, default=0)
    ap.add_argument("--outflags", default="")
    ap.add_argument("-o", default=None)
    return ap.parse_args(argv)

if __name__ == "__main__":
    opt = parse(sys.argv[1:])
    t = gen(opt)
    if opt.o: open(opt.o, "w").write(t)
    else: print(t)
```

```python
import sys, argparse

KNAME = "gated_mix__sliding_block_cached__glu_gated_reglu__decode_kernel"

HEADER = open("gated_mix__sliding_block_cached__glu_gated_reglu__decode.s.ref").read().split("; Override launch")[0]

RA = 0
RB = 65536
RQ = RB + 32768
XQ = 131072
XG = XQ + 2048
QF = XG + 8192
PF = QF + 2048
AF = PF + 4096
FL = AF + 4096
F_PROG, F_FREE0, F_FREE1, F_BQ, F_BM, F_BP, F_BA, F_DONE = [4*i for i in range(8)]
F_MAX = 64
LDS_BYTES = FL + 128

WS_EPOCH = 0
WS_QP = 1 << 20
WS_OP = 2 << 20
WS_LSE = (2 << 20) + (512 << 10)
WS_GP = 3 << 20
WS_FP = 4 << 20
WS_STAMP = 8 << 20
WS_SIZE = 16 << 20

class G:
    def __init__(self, opt):
        self.o = []
        self.opt = opt
        self.nlab = 0
    def A(self, s):
        for line in s.split("\n"):
            self.o.append("    " + line.strip() if not line.strip().endswith(":") else line.strip())
    def lab(self, p="L"):
        self.nlab += 1
        return f"{p}_{self.nlab}"

def gen(opt):
    g = G(opt); A = g.A
    NT = opt.nt
    WIN = opt.win
    WB = WIN // 8
    STAMP = opt.stamp
    sX, sK, sV, sWQ, sWO, sBX, sWG, sWU = [16+2*i for i in range(8)]
    sWD, sGW, sOUT, sDBG = 32, 34, 36, 38
    sWS = 40
    sXCD, sR, sROLE = 42, 43, 44
    sB, sG, sSPL, sRBK, sCB, sFB, sMT, sKH = 45, 46, 47, 48, 49, 50, 51, 52
    sT = 53
    sT0, sT1, sT2, sT3 = 53, 54, 55, 56
    sSEL0, sSEL1, sSEL2, sSEL3 = 57, 58, 59, 60
    sPROG = 61
    sC = 62
    sTMP, sTMP2, sTMP3, sCNT = 63, 64, 65, 66
    sGA = 68
    sGB = 70
    sEX = 72
    sST = 76
    SRD = 8
    nst = [0]
    def stamp(idx):
        if STAMP: A(f"s_memrealtime s[{sST+2*idx}:{sST+2*idx+1}]")

    A(f"s_cmp_ge_u32 s2, 256")
    A("s_cbranch_scc1 L_end")
    if STAMP:
        for i in range(12): A(f"s_mov_b32 s{sST+2*i}, 0")
    stamp(0)
    if opt.fixdur: A("s_memrealtime s[12:13]")
    A("s_load_dwordx16 s[16:31], s[0:1], 0")
    A("s_load_dwordx8 s[32:39], s[0:1], 64")
    A("s_load_dwordx2 s[40:41], s[0:1], 96")
    A("v_lshrrev_b32 v1, 6, v0")
    A("v_and_b32 v0, 63, v0")
    A("v_readfirstlane_b32 s3, v1")
    A(f"s_and_b32 s{sXCD}, s2, 7")
    A(f"s_lshr_b32 s{sR}, s2, 3")
    A(f"s_mov_b32 s{sROLE}, 0")
    A(f"s_mov_b32 s{sB}, s{sXCD}")
    A(f"s_lshr_b32 s{sG}, s{sR}, 2")
    A(f"s_and_b32 s{sG}, s{sG}, 3")
    A(f"s_and_b32 s{sSPL}, s{sR}, 3")
    A(f"s_lshl_b32 s{sRBK}, s{sXCD}, 1")
    A(f"s_lshr_b32 s{sTMP}, s{sR}, 3")
    A(f"s_add_u32 s{sRBK}, s{sRBK}, s{sTMP}")
    A(f"s_and_b32 s{sCB}, s{sR}, 7")
    A(f"s_mov_b32 s{sFB}, 0\ns_mov_b32 s{sMT}, 0\ns_mov_b32 s{sKH}, 0")
    A(f"s_cmp_lt_u32 s{sR}, 16")
    A("s_cbranch_scc1 L_role_done")
    A(f"s_mov_b32 s{sROLE}, 2")
    A(f"s_cmp_ge_u32 s{sR}, 30")
    A("s_cbranch_scc1 L_role_done")
    A(f"s_mov_b32 s{sROLE}, 1")
    A(f"s_mul_i32 s{sTMP}, s{sXCD}, 14")
    A(f"s_add_u32 s{sTMP}, s{sTMP}, s{sR}")
    A(f"s_sub_u32 s{sTMP}, s{sTMP}, 16")
    A(f"s_lshr_b32 s{sRBK}, s{sTMP}, 3")
    A(f"s_and_b32 s{sCB}, s{sTMP}, 7")
    A(f"s_lshr_b32 s{sFB}, s{sTMP}, 2")
    A(f"s_lshr_b32 s{sMT}, s{sTMP}, 1")
    A(f"s_and_b32 s{sMT}, s{sMT}, 1")
    A(f"s_and_b32 s{sKH}, s{sTMP}, 1")
    A("L_role_done:")
    A("s_cmp_lg_u32 s3, 0")
    A("s_cbranch_scc1 L_not_loader")

    sSOFF, sSTEP, sNB, sBLK = 4, 5, 6, 7
    A("s_setprio 3")
    A("v_lshrrev_b32 v2, 4, v0")
    A("v_and_b32 v3, 15, v0")
    A("v_lshrrev_b32 v3, 1, v3")
    A("v_xor_b32 v3, v3, v2")
    A("v_lshlrev_b32 v3, 5, v3")
    A("v_and_b32 v4, 1, v0")
    A("v_lshlrev_b32 v4, 4, v4")
    A("v_or_b32 v3, v3, v4")
    A("v_xor_b32 v4, 0x80, v3")
    A("v_and_b32 v7, 7, v0")
    A("v_lshlrev_b32 v7, 11, v7")
    A("v_lshrrev_b32 v8, 3, v0")
    A("v_lshlrev_b32 v8, 4, v8")
    A("v_add_u32 v7, v7, v8")
    A("v_lshl_add_u32 v5, v2, 13, v3")
    A("v_lshl_add_u32 v6, v2, 13, v4")
    A(f"v_mov_b32 v9, {FL}")
    A(f"s_lshl_b32 s{sSOFF}, s{sXCD}, 8")
    A(f"s_mov_b32 s{SRD+2}, 16384\ns_mov_b32 s{SRD+3}, 0x20000")
    A("s_waitcnt lgkmcnt(0)")
    A(f"s_mov_b32 s{SRD}, s{sX}\ns_mov_b32 s{SRD+1}, s{sX+1}")
    A(f"s_mov_b32 m0, {XQ}")
    A("s_nop 0")
    A(f"buffer_load_dwordx4 v7, s[{SRD}:{SRD+3}], s{sSOFF} offen lds")
    A(f"s_add_u32 s{sSOFF}, s{sSOFF}, 128")
    A(f"s_mov_b32 m0, {XQ+1024}")
    A("s_nop 0")
    A(f"buffer_load_dwordx4 v7, s[{SRD}:{SRD+3}], s{sSOFF} offen lds")
    A(f"s_cmp_lg_u32 s{sROLE}, 1")
    A("s_cbranch_scc1 L_ld_noxg")
    A(f"s_lshl_b32 s{sSOFF}, s{sKH}, 10")
    for n in range(8):
        A(f"s_mov_b32 m0, {XG+1024*n}")
        A("s_nop 0")
        A(f"buffer_load_dwordx4 v7, s[{SRD}:{SRD+3}], s{sSOFF} offen lds")
        A(f"s_add_u32 s{sSOFF}, s{sSOFF}, 128")
    A("L_ld_noxg:")
    def seg_loop(nblk, name, first=False):
        l = f"L_ldloop_{name}"
        A(f"s_mov_b32 s{sNB}, {nblk}")
        A(f"{l}:")
        for half in range(2):
            if not first: A(f"s_waitcnt vmcnt({WIN})")
            if half == 0 and not first:
                A(f"s_sub_u32 s{sTMP}, s{sBLK}, {WB}")
                A(f"v_mov_b32 v10, s{sTMP}")
                A(f"ds_write_b32 v9, v10 offset:{F_PROG}")
            for i in range(4):
                v = 5 if ((i >> 1) & 1) == 0 else 6
                A(f"buffer_load_dwordx4 v{v}, s[{SRD}:{SRD+3}], s{sSOFF} offen {NT} lds")
                A(f"s_add_u32 m0, m0, 1024")
                A(f"s_add_u32 s{sSOFF}, s{sSOFF}, s{sSTEP}")
        A(f"s_add_u32 s{sBLK}, s{sBLK}, 1")
        A(f"s_sub_u32 s{sNB}, s{sNB}, 1")
        A(f"s_cmp_lg_u32 s{sNB}, 0")
        A(f"s_cbranch_scc1 {l}")
    def lds_wait_ge(off, val, vtmp="v11", vaddr="v9", sleep=1):
        l = g.lab("L_w")
        A(f"{l}:")
        A(f"ds_read_b32 {vtmp}, {vaddr} offset:{off}")
        A("s_waitcnt lgkmcnt(0)")
        A(f"v_readfirstlane_b32 s{sTMP}, {vtmp}")
        A(f"s_cmp_ge_u32 s{sTMP}, {val}")
        A(f"s_cbranch_scc0 {l}")
    A(f"s_mov_b32 s{SRD}, s{sWQ}\ns_mov_b32 s{SRD+1}, s{sWQ+1}\ns_mov_b32 s{SRD+2}, {1024*4096*2}")
    A(f"s_lshl_b32 s{sSOFF}, s{sXCD}, 20")
    A(f"s_lshl_b32 s{sTMP}, s{sR}, 8")
    A(f"s_add_u32 s{sSOFF}, s{sSOFF}, s{sTMP}")
    A(f"s_mov_b32 s{sSTEP}, {4*8192}")
    A(f"s_mov_b32 m0, {RQ}")
    A(f"s_mov_b32 s{sBLK}, 0")
    assert WB <= 4
    seg_loop(min(WB, 4), "q0", first=True)
    A("s_barrier")
    stamp(1)
    if WB < 4:
        seg_loop(4 - WB, "q1")
    A(f"s_cmp_eq_u32 s{sROLE}, 2")
    A("s_cbranch_scc1 L_ld_drain")
    A(f"s_cmp_eq_u32 s{sROLE}, 1")
    A("s_cbranch_scc1 L_ld_seg1B")
    A(f"s_mov_b32 s{SRD}, s{sK}\ns_mov_b32 s{SRD+1}, s{sK+1}\ns_mov_b32 s{SRD+2}, {8*4*4096*128*2}")
    A(f"s_lshl_b32 s{sSOFF}, s{sB}, 2")
    A(f"s_add_u32 s{sSOFF}, s{sSOFF}, s{sG}")
    A(f"s_lshl_b32 s{sSOFF}, s{sSOFF}, 20")
    A(f"s_lshl_b32 s{sTMP}, s{sSPL}, 16")
    A(f"s_add_u32 s{sSOFF}, s{sSOFF}, s{sTMP}")
    A(f"s_add_u32 s{sSOFF}, s{sSOFF}, {3072*256}")
    A(f"s_mov_b32 s{sSTEP}, 1024")
    A("v_lshl_add_u32 v5, v2, 8, v3")
    A("v_lshl_add_u32 v6, v2, 8, v4")
    A("s_branch L_ld_seg1")
    A("L_ld_seg1B:")
    A(f"s_cmp_eq_u32 s{sMT}, 0")
    A(f"s_cselect_b32 s{SRD}, s{sWG}, s{sWU}")
    A(f"s_cselect_b32 s{SRD+1}, s{sWG+1}, s{sWU+1}")
    A(f"s_mov_b32 s{SRD+2}, {1024*3584*2}")
    A(f"s_mul_i32 s{sSOFF}, s{sKH}, {512*7168}")
    A(f"s_lshl_b32 s{sTMP}, s{sFB}, 8")
    A(f"s_add_u32 s{sSOFF}, s{sSOFF}, s{sTMP}")
    A(f"s_mov_b32 s{sSTEP}, {4*7168}")
    A("v_mul_u32_u24 v8, 7168, v2")
    A("v_add_u32 v5, v8, v3")
    A("v_add_u32 v6, v8, v4")
    A("L_ld_seg1:")
    A(f"s_mov_b32 m0, {RA}")
    seg_loop(8, "s1")
    stamp(2)
    lds_wait_ge(F_FREE0, 8)
    A(f"s_cmp_eq_u32 s{sROLE}, 1")
    A("s_cbranch_scc1 L_ld_seg2")
    A(f"s_mov_b32 s{SRD}, s{sV}\ns_mov_b32 s{SRD+1}, s{sV+1}")
    A(f"s_sub_u32 s{sSOFF}, s{sSOFF}, 65536")
    A("L_ld_seg2:")
    A(f"s_mov_b32 m0, {RB}")
    seg_loop(8, "s2")
    stamp(3)
    lds_wait_ge(F_FREE1, 8)
    A(f"s_cmp_eq_u32 s{sROLE}, 1")
    A(f"s_cselect_b32 s{SRD}, s{sWD}, s{sWO}")
    A(f"s_cselect_b32 s{SRD+1}, s{sWD+1}, s{sWO+1}")
    A(f"s_mov_b32 s{sTMP}, {3584*1024*2}")
    A(f"s_mov_b32 s{sTMP2}, {4096*1024*2}")
    A(f"s_cselect_b32 s{SRD+2}, s{sTMP}, s{sTMP2}")
    A(f"s_lshl_b32 s{sSOFF}, s{sRBK}, 19")
    A(f"s_lshl_b32 s{sTMP}, s{sCB}, 8")
    A(f"s_add_u32 s{sSOFF}, s{sSOFF}, s{sTMP}")
    A(f"s_mov_b32 s{sSTEP}, {4*2048}")
    A("v_lshl_add_u32 v5, v2, 11, v3")
    A("v_lshl_add_u32 v6, v2, 11, v4")
    A(f"s_mov_b32 m0, {RA}")
    seg_loop(8, "s3")
    stamp(4)
    A("L_ld_drain:")
    for k in range(WB, -1, -1):
        A(f"s_sub_u32 s{sTMP}, s{sBLK}, {k}")
        A(f"v_mov_b32 v10, s{sTMP}")
        A(f"s_waitcnt vmcnt({8*k})")
        A(f"ds_write_b32 v9, v10 offset:{F_PROG}")
    stamp(5)
    A("s_branch L_exit")

    A("L_not_loader:")
    A("s_waitcnt lgkmcnt(0)")
    A(f"s_load_dword s{sT}, s[{sWS}:{sWS+1}], {WS_EPOCH}")
    A(f"s_mov_b32 s{sSEL0}, 0x07060500\ns_mov_b32 s{sSEL1}, 0x07060501\ns_mov_b32 s{sSEL2}, 0x07060502\ns_mov_b32 s{sSEL3}, 0x07060503")
    A(f"v_mov_b32 v9, {FL}")
    A(f"s_mov_b32 s{sPROG}, 0")
    A("s_cmp_eq_u32 s3, 9")
    A("s_cbranch_scc1 L_reducer")

    vL16, vTR, vACT, vT, vPUB = 1, 2, 3, 4, 5
    vTMP, vTMP2, vTMP3 = 6, 7, 8
    vW = 12
    vB = 16
    vACC = 20
    vACC2 = 24
    vGA = 28
    vLS = 44
    vK = 52
    vQ = 84
    vWA, vAA = 10, 11
    A(f"s_sub_u32 s{sC}, s3, 1")
    A(f"v_lshlrev_b32 v{vL16}, 4, v0")
    A(f"v_and_b32 v{vTMP}, 15, v0")
    A(f"v_lshrrev_b32 v{vTMP2}, 4, v0")
    A(f"v_lshrrev_b32 v{vTMP3}, 2, v{vTMP}")
    A(f"v_lshl_add_u32 v{vTR}, v{vTMP2}, 3, v{vTMP3}")
    A(f"v_lshlrev_b32 v{vTR}, 8, v{vTR}")
    A(f"v_and_b32 v{vACT}, 1, v{vTMP2}")
    A(f"v_lshl_or_b32 v{vTMP3}, v{vACT}, 2, v{vTMP3}")
    A(f"v_xor_b32 v{vTMP3}, s{sC}, v{vTMP3}")
    A(f"v_lshl_or_b32 v{vTR}, v{vTMP3}, 5, v{vTR}")
    A(f"v_and_b32 v{vTMP3}, 3, v0")
    A(f"v_lshl_or_b32 v{vTR}, v{vTMP3}, 3, v{vTR}")
    A(f"v_and_b32 v{vTMP3}, 7, v0")
    A(f"v_lshl_add_u32 v{vACT}, v{vTMP2}, 3, v{vTMP3}")
    A(f"v_lshlrev_b32 v{vACT}, 4, v{vACT}")
    A(f"s_cmp_lg_u32 s{sC}, 0")
    A("s_cbranch_scc1 L_noinit")
    A(f"v_mov_b32 v{vTMP}, 0xff7fffff")
    A(f"v_cmp_gt_u32 vcc, 16, v0")
    A(f"v_lshl_add_u32 v{vTMP2}, v0, 2, v9")
    A("s_nop 1")
    A(f"v_cndmask_b32 v{vTMP}, v{vTMP}, 0, vcc")
    A(f"s_mov_b32 exec_hi, 0")
    A(f"ds_write_b32 v{vTMP2}, v{vTMP}")
    A(f"s_mov_b64 exec, -1")
    A("L_noinit:")
    def tag_setup():
        A("s_waitcnt lgkmcnt(0)")
        A(f"s_add_u32 s{sT}, s{sT}, 0x01010101")
        A(f"s_lshr_b32 s{sT1}, s{sT}, 8\ns_lshr_b32 s{sT2}, s{sT}, 16\ns_lshr_b32 s{sT3}, s{sT}, 24")
        A(f"v_mov_b32 v{vT}, s{sT}")
    tag_setup()
    A("s_barrier")
    stamp(1)

    def wait_prog(val_is_sgpr, val):
        l = g.lab("L_wp"); d = g.lab("L_wpd")
        v = f"s{val}" if val_is_sgpr else str(val)
        A(f"s_cmp_ge_u32 s{sPROG}, {v}")
        A(f"s_cbranch_scc1 {d}")
        A(f"{l}:")
        A(f"ds_read_b32 v{vTMP}, v9 offset:{F_PROG}")
        A("s_waitcnt lgkmcnt(0)")
        A(f"v_readfirstlane_b32 s{sPROG}, v{vTMP}")
        A(f"s_cmp_ge_u32 s{sPROG}, {v}")
        A(f"s_cbranch_scc0 {l}")
        A(f"{d}:")
    def signal(off):
        A(f"v_mov_b32 v{vTMP}, 1")
        A("s_mov_b64 exec, 1")
        A(f"ds_add_u32 v9, v{vTMP} offset:{off}")
        A("s_mov_b64 exec, -1")
    def cwait(off, val):
        lds_wait_ge(off, val, vtmp=f"v{vTMP}")
    def gemv(nblk, prog0, wbase, abase, zero=True):
        l = g.lab("L_gv")
        if zero:
            for r in range(4): A(f"v_mov_b32 v{vACC+r}, 0")
        A(f"v_add_u32 v{vWA}, {wbase}, v{vTR}")
        A(f"v_add_u32 v{vAA}, {abase}, v{vACT}")
        A(f"s_mov_b32 s{sCNT}, {prog0+1}")
        A(f"{l}:")
        wait_prog(True, sCNT)
        A(f"ds_read_b64_tr_b16 v[{vW}:{vW+1}], v{vWA}")
        A(f"ds_read_b64_tr_b16 v[{vW+2}:{vW+3}], v{vWA} offset:1024")
        A(f"ds_read_b128 v[{vB}:{vB+3}], v{vAA}")
        A(f"v_add_u32 v{vWA}, 8192, v{vWA}")
        A(f"v_add_u32 v{vAA}, 512, v{vAA}")
        A(f"s_add_u32 s{sCNT}, s{sCNT}, 1")
        A("s_waitcnt lgkmcnt(0)")
        A(f"v_mfma_f32_16x16x32_bf16 v[{vACC}:{vACC+3}], v[{vW}:{vW+3}], v[{vB}:{vB+3}], v[{vACC}:{vACC+3}]")
        A(f"s_cmp_le_u32 s{sCNT}, {prog0+nblk}")
        A(f"s_cbranch_scc1 {l}")
    def publish(src):
        for r, sel in enumerate([sSEL0, sSEL1, sSEL2, sSEL3]):
            A(f"v_perm_b32 v{src+r}, v{src+r}, v{vT}, s{sel}")
        A("s_mov_b32 exec_lo, 0x00ff00ff\ns_mov_b32 exec_hi, 0x00ff00ff")
        A(f"global_store_dwordx4 v{vPUB}, v[{src}:{src+3}], s[{sGA}:{sGA+1}] sc1")
        A("s_mov_b64 exec, -1")
    def ws_addr(dst, base_const, soff):
        A(f"s_add_u32 s{soff}, s{soff}, {base_const}")
        A(f"s_add_u32 s{dst}, s{sWS}, s{soff}")
        A(f"s_addc_u32 s{dst+1}, s{sWS+1}, 0")
    def gather(lse=False, voff=vL16, vbase=vGA, lastmask=None, sleep=0):
        l = g.lab("L_ga"); d = g.lab("L_gad")
        A(f"s_mov_b32 s{sCNT}, 0")
        A(f"{l}:")
        if sleep: A(f"s_sleep {sleep}")
        for i in range(4):
            A(f"global_load_dwordx4 v[{vbase+4*i}:{vbase+4*i+3}], v{voff}, s[{sGA}:{sGA+1}] offset:{1024*i} sc1")
        if lse:
            A(f"global_load_dwordx4 v[{vLS}:{vLS+3}], v{vTMP3}, s[{sGB}:{sGB+1}] sc1")
            A(f"global_load_dwordx4 v[{vLS+4}:{vLS+7}], v{vTMP3}, s[{sGB}:{sGB+1}] offset:16 sc1")
        A(f"s_add_u32 s{sCNT}, s{sCNT}, 1")
        A(f"s_cmp_gt_u32 s{sCNT}, {opt.maxpoll}")
        A(f"s_cbranch_scc1 {d}")
        n = 6 if lse else 4
        ts = [sT0, sT1, sT2, sT3]
        for i in range(4):
            A(f"s_waitcnt vmcnt({n-1-i})")
            if i == 3 and lastmask is not None:
                A(f"s_mov_b32 exec_hi, {lastmask}")
            for r in range(4):
                if i == 0 and r == 0:
                    A(f"v_xor_b32 v{vTMP}, s{ts[r]}, v{vbase}")
                else:
                    A(f"v_bitop3_b32 v{vTMP}, v{vTMP}, v{vbase+4*i+r}, s{ts[r]} bitop3:0xf6")
            if i == 3 and lastmask is not None:
                A("s_mov_b32 exec_hi, -1")
        A(f"v_and_b32 v{vTMP}, 0xff, v{vTMP}")
        if lse:
            A("s_waitcnt vmcnt(0)")
            for r in (1, 3, 5, 7):
                A(f"v_bitop3_b32 v{vTMP}, v{vTMP}, v{vLS+r}, s{sT} bitop3:0xf6")
        A(f"v_cmp_ne_u32 vcc, 0, v{vTMP}")
        A(f"s_cbranch_vccnz {l}")
        A(f"{d}:")
        A("s_waitcnt vmcnt(0)")

    gemv(4, 0, RQ, XQ)
    signal(F_FREE0)
    A(f"v_and_b32 v{vTMP2}, 15, v0")
    A(f"v_lshrrev_b32 v{vTMP3}, 4, v0")
    A(f"v_lshlrev_b32 v{vPUB}, 17, v{vTMP2}")
    A(f"v_lshl_or_b32 v{vPUB}, v{vTMP3}, 4, v{vPUB}")
    A(f"s_lshl_b32 s{sTMP}, s2, 9")
    A(f"s_lshl_b32 s{sTMP2}, s{sC}, 6")
    A(f"s_add_u32 s{sTMP}, s{sTMP}, s{sTMP2}")
    ws_addr(sGA, WS_QP, sTMP)
    publish(vACC)
    stamp(2)
    A(f"s_cmp_eq_u32 s{sROLE}, 2")
    A("s_cbranch_scc1 L_exit")
    A(f"s_cmp_eq_u32 s{sROLE}, 1")
    A("s_cbranch_scc1 L_roleB")

    A(f"s_add_u32 s{sTMP2}, s{sC}, 5")
    wait_prog(True, sTMP2)
    A(f"v_and_b32 v{vTMP}, 15, v0")
    A(f"v_lshrrev_b32 v{vTMP2}, 2, v{vTMP}")
    A(f"v_and_b32 v{vTMP3}, 3, v0")
    A(f"v_lshl_add_u32 v{vTMP2}, v{vTMP2}, 3, v{vTMP3}")
    A(f"v_lshlrev_b32 v{vWA}, 8, v{vTMP2}")
    A(f"v_lshrrev_b32 v{vTMP2}, 5, v0")
    A(f"v_and_b32 v{vTMP3}, 7, v0")
    A(f"v_xor_b32 v{vTMP2}, v{vTMP2}, v{vTMP3}")
    A(f"v_lshl_or_b32 v{vWA}, v{vTMP2}, 5, v{vWA}")
    A(f"v_and_b32 v{vTMP2}, 16, v0")
    A(f"v_or_b32 v{vWA}, v{vWA}, v{vTMP2}")
    A(f"s_lshl_b32 s{sTMP}, s{sC}, 13")
    A(f"v_add_u32 v{vWA}, s{sTMP}, v{vWA}")
    for db in range(4):
        if db: A(f"v_xor_b32 v{vAA}, {64*db}, v{vWA}")
        a = vAA if db else vWA
        A(f"ds_read_b128 v[{vK+4*db}:{vK+4*db+3}], v{a}")
        A(f"ds_read_b128 v[{vK+16+4*db}:{vK+16+4*db+3}], v{a} offset:1024")
    signal(F_FREE1)
    stamp(3)
    wait_prog(False, opt.qgate)
    A(f"s_lshl_b32 s{sTMP}, s{sB}, 5")
    A(f"s_lshl_b32 s{sTMP2}, s{sG}, 3")
    A(f"s_add_u32 s{sTMP}, s{sTMP}, s{sTMP2}")
    A(f"s_add_u32 s{sTMP}, s{sTMP}, s{sC}")
    A(f"s_lshl_b32 s{sTMP}, s{sTMP}, 12")
    ws_addr(sGA, WS_QP, sTMP)
    gather()
    stamp(4)
    for r in range(4):
        A(f"v_add_f32 v{vGA+r}, v{vGA+r}, v{vGA+4+r}")
        A(f"v_add_f32 v{vGA+8+r}, v{vGA+8+r}, v{vGA+12+r}")
    for r in range(4):
        A(f"v_add_f32 v{vGA+r}, v{vGA+r}, v{vGA+8+r}")
    A(f"v_and_b32 v{vTMP2}, 30, v0")
    A(f"v_lshlrev_b32 v{vTMP2}, 6, v{vTMP2}")
    A(f"v_permlane32_swap_b32 v{vGA}, v{vGA+2}")
    A(f"v_permlane32_swap_b32 v{vGA+1}, v{vGA+3}")
    A(f"v_and_b32 v{vTMP3}, 1, v0")
    A(f"v_lshl_or_b32 v{vTMP2}, v{vTMP3}, 3, v{vTMP2}")
    A(f"v_lshrrev_b32 v{vTMP3}, 5, v0")
    A(f"v_lshl_or_b32 v{vTMP2}, v{vTMP3}, 2, v{vTMP2}")
    A(f"s_lshl_b32 s{sTMP}, s{sC}, 4")
    A(f"s_add_u32 s{sTMP}, s{sTMP}, {QF}")
    A(f"v_add_u32 v{vTMP2}, s{sTMP}, v{vTMP2}")
    A(f"v_add_f32 v{vGA}, v{vGA}, v{vGA+2}")
    A(f"v_add_f32 v{vGA+1}, v{vGA+1}, v{vGA+3}")
    A(f"v_cvt_pk_bf16_f32 v{vGA}, v{vGA}, v{vGA+1}")
    A(f"ds_write_b32 v{vTMP2}, v{vGA}")
    signal(F_BQ)
    cwait(F_BQ, 8)
    A(f"v_add_u32 v{vAA}, {QF}, v{vACT}")
    for kb in range(4):
        A(f"ds_read_b128 v[{vQ+4*kb}:{vQ+4*kb+3}], v{vAA} offset:{512*kb}")
    A("s_waitcnt lgkmcnt(0)")
    for db in range(4):
        c0 = "0" if db == 0 else f"v[{vACC}:{vACC+3}]"
        c1 = "0" if db == 0 else f"v[{vACC2}:{vACC2+3}]"
        A(f"v_mfma_f32_16x16x32_bf16 v[{vACC}:{vACC+3}], v[{vK+4*db}:{vK+4*db+3}], v[{vQ+4*db}:{vQ+4*db+3}], {c0}")
        A(f"v_mfma_f32_16x16x32_bf16 v[{vACC2}:{vACC2+3}], v[{vK+16+4*db}:{vK+16+4*db+3}], v[{vQ+4*db}:{vQ+4*db+3}], {c1}")
    A(f"v_and_b32 v{vTMP3}, 7, v0")
    A(f"v_lshl_add_u32 v{vTMP3}, v{vTMP3}, 2, v9")
    A("s_nop 6")
    A(f"v_max3_f32 v{vTMP2}, v{vACC}, v{vACC+1}, v{vACC+2}")
    A(f"v_max3_f32 v{vTMP2}, v{vTMP2}, v{vACC+3}, v{vACC2}")
    A(f"v_max3_f32 v{vTMP2}, v{vTMP2}, v{vACC2+1}, v{vACC2+2}")
    A(f"v_max_f32 v{vTMP2}, v{vTMP2}, v{vACC2+3}")
    A(f"ds_max_f32 v{vTMP3}, v{vTMP2} offset:{F_MAX}")
    signal(F_BM)
    cwait(F_BM, 8)
    vM = vLS
    A(f"ds_read_b32 v{vM}, v{vTMP3} offset:{F_MAX}")
    import struct, math
    cbits = struct.unpack("<I", struct.pack("<f", math.log2(math.e) / math.sqrt(128.0)))[0]
    A(f"s_mov_b32 s{sTMP}, {cbits:#x}")
    A("s_waitcnt lgkmcnt(0)")
    A(f"v_mul_f32 v{vM}, s{sTMP}, v{vM}")
    for r in range(8):
        A(f"v_fma_f32 v{vACC+r}, v{vACC+r}, s{sTMP}, -v{vM}")
    for r in range(8):
        A(f"v_exp_f32 v{vACC+r}, v{vACC+r}")
    A(f"s_lshl_b32 s{sTMP}, s{sC}, 9")
    A(f"s_add_u32 s{sTMP}, s{sTMP}, {PF}")
    A(f"v_add_u32 v{vTMP2}, s{sTMP}, v{vACT}")
    for r in range(4):
        A(f"v_cvt_pk_bf16_f32 v{vB+r}, v{vACC+2*r}, v{vACC+2*r+1}")
    A(f"ds_write_b128 v{vTMP2}, v[{vB}:{vB+3}]")
    signal(F_BP)
    cwait(F_BP, 8)
    A(f"v_add_u32 v{vAA}, {PF}, v{vACT}")
    for r in range(4): A(f"v_mov_b32 v{vW+r}, 0x3f803f80")
    for kb in range(8):
        A(f"ds_read_b128 v[{vK+4*kb}:{vK+4*kb+3}], v{vAA} offset:{512*kb}")
    for kb in range(8):
        A(f"s_waitcnt lgkmcnt({7-kb})")
        c1 = "0" if kb == 0 else f"v[{vACC2}:{vACC2+3}]"
        A(f"v_mfma_f32_16x16x32_bf16 v[{vACC2}:{vACC2+3}], v[{vW}:{vW+3}], v[{vK+4*kb}:{vK+4*kb+3}], {c1}")
    A("s_nop 7")
    vRL = vLS + 2
    A(f"v_log_f32 v{vLS+1}, v{vACC2}")
    A(f"v_rcp_f32 v{vRL}, v{vACC2}")
    A("s_nop 0")
    A(f"v_add_f32 v{vM}, v{vM}, v{vLS+1}")
    A(f"v_mov_b32 v{vLS+1}, s{sT}")
    A(f"s_cmp_lg_u32 s{sC}, 0")
    A("s_cbranch_scc1 L_nolse")
    A(f"s_lshl_b32 s{sTMP}, s{sG}, 11")
    A(f"s_lshl_b32 s{sTMP2}, s{sB}, 5")
    A(f"s_add_u32 s{sTMP}, s{sTMP}, s{sTMP2}")
    A(f"s_lshl_b32 s{sTMP2}, s{sSPL}, 3")
    A(f"s_add_u32 s{sTMP}, s{sTMP}, s{sTMP2}")
    ws_addr(sGA, WS_LSE, sTMP)
    A(f"v_lshlrev_b32 v{vTMP2}, 8, v0")
    A("s_mov_b64 exec, 0xff")
    A(f"global_store_dwordx2 v{vTMP2}, v[{vLS}:{vLS+1}], s[{sGA}:{sGA+1}] sc1")
    A("s_mov_b64 exec, -1")
    A("L_nolse:")
    stamp(5)
    A(f"v_and_b32 v{vTMP2}, 15, v0")
    A(f"v_lshrrev_b32 v{vTMP3}, 4, v0")
    A(f"v_lshlrev_b32 v{vPUB}, 14, v{vTMP2}")
    A(f"v_lshl_or_b32 v{vPUB}, v{vTMP3}, 4, v{vPUB}")
    A(f"s_lshl_b32 s{sTMP}, s{sG}, 17")
    A(f"s_lshr_b32 s{sTMP2}, s{sC}, 1")
    A(f"s_lshl_b32 s{sTMP2}, s{sTMP2}, 12")
    A(f"s_add_u32 s{sTMP}, s{sTMP}, s{sTMP2}")
    A(f"s_lshl_b32 s{sTMP2}, s{sSPL}, 10")
    A(f"s_add_u32 s{sTMP}, s{sTMP}, s{sTMP2}")
    A(f"s_and_b32 s{sTMP2}, s{sC}, 1")
    A(f"s_lshl_b32 s{sTMP2}, s{sTMP2}, 9")
    A(f"s_add_u32 s{sTMP}, s{sTMP}, s{sTMP2}")
    A(f"s_lshl_b32 s{sTMP2}, s{sB}, 6")
    A(f"s_add_u32 s{sTMP}, s{sTMP}, s{sTMP2}")
    ws_addr(sGA, WS_OP, sTMP)
    gemv(8, 12, RB, PF)
    A("s_nop 6")
    for r in range(4): A(f"v_mul_f32 v{vACC+r}, v{vACC+r}, v{vRL}")
    publish(vACC)
    stamp(6)
    A(f"s_lshl_b32 s{sTMP}, s{sRBK}, 3")
    A(f"s_add_u32 s{sTMP}, s{sTMP}, s{sC}")
    A(f"s_lshr_b32 s{sTMP3}, s{sTMP}, 2")
    A(f"s_lshl_b32 s{sTMP}, s{sTMP}, 12")
    ws_addr(sGA, WS_OP, sTMP)
    A(f"s_lshl_b32 s{sTMP3}, s{sTMP3}, 8")
    ws_addr(sGB, WS_LSE, sTMP3)
    wait_prog(False, opt.lgate)
    A(f"v_lshrrev_b32 v{vTMP3}, 2, v0")
    A(f"v_and_b32 v{vTMP3}, 7, v{vTMP3}")
    A(f"v_lshlrev_b32 v{vTMP3}, 5, v{vTMP3}")
    gather(lse=True)
    stamp(7)
    A(f"v_max3_f32 v{vTMP}, v{vLS}, v{vLS+2}, v{vLS+4}")
    A(f"v_max_f32 v{vTMP}, v{vTMP}, v{vLS+6}")
    for i in range(4): A(f"v_sub_f32 v{vLS+2*i}, v{vLS+2*i}, v{vTMP}")
    for i in range(4): A(f"v_exp_f32 v{vLS+2*i}, v{vLS+2*i}")
    A("s_nop 0")
    A(f"v_add_f32 v{vTMP}, v{vLS}, v{vLS+2}")
    A(f"v_add_f32 v{vTMP2}, v{vLS+4}, v{vLS+6}")
    A(f"v_add_f32 v{vTMP}, v{vTMP}, v{vTMP2}")
    A(f"v_rcp_f32 v{vTMP}, v{vTMP}")
    for r in range(4): A(f"v_mul_f32 v{vGA+r}, v{vGA+r}, v{vLS}")
    for i in range(1, 4):
        for r in range(4): A(f"v_fmac_f32 v{vGA+r}, v{vGA+4*i+r}, v{vLS+2*i}")
    for r in range(4): A(f"v_mul_f32 v{vGA+r}, v{vGA+r}, v{vTMP}")
    A(f"v_cvt_pk_bf16_f32 v{vGA}, v{vGA}, v{vGA+1}")
    A(f"v_cvt_pk_bf16_f32 v{vGA+1}, v{vGA+2}, v{vGA+3}")
    A(f"s_mov_b32 s{sTMP3}, s{sRBK}")
    A("s_branch L_late")

    A("L_roleB:")
    A(f"v_and_b32 v{vTMP2}, 15, v0")
    A(f"v_lshrrev_b32 v{vTMP3}, 4, v0")
    A(f"v_lshlrev_b32 v{vPUB}, 6, v{vTMP2}")
    A(f"v_lshl_or_b32 v{vPUB}, v{vTMP3}, 4, v{vPUB}")
    A(f"s_lshl_b32 s{sTMP}, s{sFB}, 14")
    A(f"s_lshr_b32 s{sTMP2}, s{sC}, 1")
    A(f"s_lshl_b32 s{sTMP2}, s{sTMP2}, 12")
    A(f"s_add_u32 s{sTMP}, s{sTMP}, s{sTMP2}")
    A(f"s_lshl_b32 s{sTMP2}, s{sMT}, 11")
    A(f"s_add_u32 s{sTMP}, s{sTMP}, s{sTMP2}")
    A(f"s_lshl_b32 s{sTMP2}, s{sKH}, 10")
    A(f"s_add_u32 s{sTMP}, s{sTMP}, s{sTMP2}")
    A(f"s_and_b32 s{sTMP2}, s{sC}, 1")
    A(f"s_lshl_b32 s{sTMP2}, s{sTMP2}, 9")
    A(f"s_add_u32 s{sTMP}, s{sTMP}, s{sTMP2}")
    ws_addr(sGA, WS_GP, sTMP)
    gemv(8, 4, RA, XG)
    signal(F_FREE1)
    stamp(3)
    gemv(8, 12, RB, XG + 4096, zero=False)
    A("s_nop 6")
    publish(vACC)
    stamp(6)
    A(f"s_lshl_b32 s{sTMP}, s{sRBK}, 3")
    A(f"s_add_u32 s{sTMP}, s{sTMP}, s{sC}")
    A(f"s_lshl_b32 s{sTMP}, s{sTMP}, 12")
    ws_addr(sGA, WS_GP, sTMP)
    wait_prog(False, opt.lgate)
    gather()
    stamp(7)
    for r in range(4):
        A(f"v_add_f32 v{vGA+r}, v{vGA+r}, v{vGA+4+r}")
        A(f"v_add_f32 v{vGA+8+r}, v{vGA+8+r}, v{vGA+12+r}")
    for r in range(4): A(f"v_max_f32 v{vGA+r}, 0, v{vGA+r}")
    A(f"v_cvt_pk_bf16_f32 v{vGA+4}, v{vGA}, v{vGA+1}")
    A(f"v_cvt_pk_bf16_f32 v{vGA+5}, v{vGA+2}, v{vGA+3}")
    A(f"v_cvt_pk_bf16_f32 v{vGA+6}, v{vGA+8}, v{vGA+9}")
    A(f"v_cvt_pk_bf16_f32 v{vGA+7}, v{vGA+10}, v{vGA+11}")
    for h in range(2):
        A(f"v_lshlrev_b32 v{vGA+2*h}, 16, v{vGA+4+h}")
        A(f"v_and_b32 v{vGA+2*h+1}, 0xffff0000, v{vGA+4+h}")
        A(f"v_lshlrev_b32 v{vGA+8+2*h}, 16, v{vGA+6+h}")
        A(f"v_and_b32 v{vGA+8+2*h+1}, 0xffff0000, v{vGA+6+h}")
    for r in range(4): A(f"v_mul_f32 v{vGA+r}, v{vGA+r}, v{vGA+8+r}")
    A(f"v_cvt_pk_bf16_f32 v{vGA}, v{vGA}, v{vGA+1}")
    A(f"v_cvt_pk_bf16_f32 v{vGA+1}, v{vGA+2}, v{vGA+3}")
    A(f"s_add_u32 s{sTMP3}, s{sRBK}, 16")

    A("L_late:")
    A(f"v_lshrrev_b32 v{vTMP}, 5, v0")
    A(f"v_lshlrev_b32 v{vTMP}, 8, v{vTMP}")
    A(f"v_and_b32 v{vTMP2}, 2, v0")
    A(f"v_lshl_or_b32 v{vTMP}, v{vTMP2}, 6, v{vTMP}")
    A(f"v_and_b32 v{vTMP2}, 28, v0")
    A(f"v_lshl_or_b32 v{vTMP}, v{vTMP2}, 2, v{vTMP}")
    A(f"v_and_b32 v{vTMP2}, 1, v0")
    A(f"v_lshl_or_b32 v{vTMP}, v{vTMP2}, 3, v{vTMP}")
    A(f"s_lshl_b32 s{sTMP}, s{sC}, 9")
    A(f"s_add_u32 s{sTMP}, s{sTMP}, {AF}")
    A(f"v_add_u32 v{vTMP2}, s{sTMP}, v{vTMP}")
    A(f"ds_write_b64 v{vTMP2}, v[{vGA}:{vGA+1}]")
    signal(F_BA)
    A(f"v_and_b32 v{vTMP2}, 14, v0")
    A(f"v_lshlrev_b32 v{vPUB}, 11, v{vTMP2}")
    A(f"v_and_b32 v{vTMP2}, 1, v0")
    A(f"v_lshl_or_b32 v{vPUB}, v{vTMP2}, 6, v{vPUB}")
    A(f"v_and_b32 v{vTMP2}, 48, v0")
    A(f"v_or_b32 v{vPUB}, v{vPUB}, v{vTMP2}")
    A(f"s_lshl_b32 s{sTMP}, s{sCB}, 3")
    A(f"s_add_u32 s{sTMP}, s{sTMP}, s{sC}")
    A(f"s_lshl_b32 s{sTMP}, s{sTMP}, 14")
    A(f"s_lshl_b32 s{sTMP3}, s{sTMP3}, 7")
    A(f"s_add_u32 s{sTMP}, s{sTMP}, s{sTMP3}")
    ws_addr(sGA, WS_FP, sTMP)
    cwait(F_BA, 8)
    stamp(8)
    gemv(8, 20, RA, AF)
    A("s_nop 6")
    publish(vACC)
    signal(F_DONE)
    stamp(9)
    A("s_branch L_exit")

    A("L_reducer:")
    vXr, vGWr = 28, 44
    A(f"v_lshlrev_b32 v{vL16}, 4, v0")
    tag_setup()
    A("s_barrier")
    stamp(1)
    wait_prog(False, 2)
    A(f"v_and_b32 v{vTMP2}, 31, v0")
    A(f"v_lshlrev_b32 v{vTMP2}, 4, v{vTMP2}")
    A(f"v_lshrrev_b32 v{vTMP3}, 5, v0")
    A(f"s_and_b32 s{sTMP}, s2, 3")
    A(f"s_lshl_b32 s{sTMP}, s{sTMP}, 12")
    A(f"v_lshl_add_u32 v{vTMP3}, v{vTMP3}, 11, v{vTMP2}")
    A(f"v_add_u32 v{vTMP3}, s{sTMP}, v{vTMP3}")
    for i in range(4):
        A(f"global_load_dwordx4 v[{vXr+4*i}:{vXr+4*i+3}], v{vTMP3}, s[{sX}:{sX+1}] offset:{512*i}")
        A(f"global_load_dwordx4 v[{vGWr+4*i}:{vGWr+4*i+3}], v{vTMP2}, s[{sGW}:{sGW+1}] offset:{512*i}")
    A(f"v_mov_b32 v{vACC}, 0")
    A("s_waitcnt vmcnt(0)")
    for i in range(16):
        A(f"v_lshlrev_b32 v{vW}, 16, v{vXr+i}")
        A(f"v_and_b32 v{vW+1}, 0xffff0000, v{vXr+i}")
        A(f"v_lshlrev_b32 v{vW+2}, 16, v{vGWr+i}")
        A(f"v_and_b32 v{vW+3}, 0xffff0000, v{vGWr+i}")
        A(f"v_mul_f32 v{vW}, v{vW}, v{vW+2}")
        A(f"v_mul_f32 v{vW+1}, v{vW+1}, v{vW+3}")
        A(f"v_cvt_pk_bf16_f32 v{vW}, v{vW}, v{vW+1}")
        A(f"v_lshlrev_b32 v{vW+1}, 16, v{vW}")
        A(f"v_and_b32 v{vW}, 0xffff0000, v{vW}")
        A(f"v_add_f32 v{vACC}, v{vACC}, v{vW+1}")
        A(f"v_add_f32 v{vACC}, v{vACC}, v{vW}")
    for off in (0x041F, 0x081F, 0x101F, 0x201F, 0x401F):
        A(f"ds_swizzle_b32 v{vW}, v{vACC} offset:{off:#x}")
        A("s_waitcnt lgkmcnt(0)")
        A(f"v_add_f32 v{vACC}, v{vACC}, v{vW}")
    def rbf(v):
        A(f"v_cvt_pk_bf16_f32 v{v}, v{v}, v{v}")
        A(f"v_and_b32 v{v}, 0xffff0000, v{v}")
    rbf(vACC)
    A(f"v_mul_f32 v{vACC}, 0xbfb8aa3b, v{vACC}")
    A(f"v_exp_f32 v{vACC}, v{vACC}")
    A("s_nop 0")
    A(f"v_add_f32 v{vACC}, 1.0, v{vACC}")
    A(f"v_rcp_f32 v{vACC}, v{vACC}")
    A("s_nop 0")
    rbf(vACC)
    A("s_nop 0")
    A(f"v_readlane_b32 s{sTMP}, v{vACC}, 0")
    A(f"v_readlane_b32 s{sTMP2}, v{vACC}, 32")
    A(f"v_and_b32 v{vTMP2}, 4, v0")
    A(f"v_cmp_eq_u32 vcc, 0, v{vTMP2}")
    A(f"v_mov_b32 v{vB}, s{sTMP}")
    A(f"v_mov_b32 v{vB+1}, s{sTMP2}")
    vGt, vOM = vB + 2, vB + 3
    A(f"v_cndmask_b32 v{vGt}, v{vB+1}, v{vB}, vcc")
    A(f"v_sub_f32 v{vOM}, 1.0, v{vGt}")
    rbf(vOM)
    A(f"v_lshlrev_b32 v{vPUB}, 9, v{vTMP2}")
    A(f"v_and_b32 v{vTMP2}, 3, v0")
    A(f"v_lshl_or_b32 v{vPUB}, v{vTMP2}, 3, v{vPUB}")
    A(f"s_and_b32 s{sTMP}, s2, 3")
    A(f"s_lshl_b32 s{sTMP}, s{sTMP}, 12")
    A(f"s_lshr_b32 s{sTMP2}, s2, 2")
    A(f"s_lshl_b32 s{sTMP2}, s{sTMP2}, 5")
    A(f"s_add_u32 s{sTMP}, s{sTMP}, s{sTMP2}")
    A(f"v_add_u32 v{vPUB}, s{sTMP}, v{vPUB}")
    A(f"s_lshl_b32 s{sTMP}, s2, 12")
    ws_addr(sGA, WS_FP, sTMP)
    stamp(2)
    A(f"s_cmp_eq_u32 s{sROLE}, 2")
    A("s_cbranch_scc1 L_red_go")
    cwait(F_DONE, 8)
    A("L_red_go:")
    stamp(3)
    gather(lastmask="0x0000ffff", sleep=opt.rsleep)
    stamp(4)
    A("s_mov_b32 exec_lo, 0\ns_mov_b32 exec_hi, 0xffff0000")
    for r in range(4): A(f"v_mov_b32 v{vGA+12+r}, 0")
    A("s_mov_b64 exec, -1")
    for r in range(4):
        A(f"v_add_f32 v{vGA+r}, v{vGA+r}, v{vGA+4+r}")
        A(f"v_add_f32 v{vGA+8+r}, v{vGA+8+r}, v{vGA+12+r}")
    A("s_nop 1")
    for r in range(4): A(f"v_permlane32_swap_b32 v{vGA+r}, v{vGA+8+r}")
    for r in range(4): A(f"v_add_f32 v{vGA+r}, v{vGA+r}, v{vGA+8+r}")
    for r in range(4): A(f"v_mov_b32 v{vGA+4+r}, v{vGA+r}")
    A("s_nop 1")
    for r in range(4): A(f"v_permlane16_swap_b32 v{vGA+r}, v{vGA+4+r}")
    for r in range(4): A(f"v_add_f32 v{vGA+r}, v{vGA+r}, v{vGA+4+r}")
    A("s_nop 1")
    for r in range(4): A(f"v_add_f32_dpp v{vGA+r}, v{vGA+r}, v{vGA+r} row_ror:8 row_mask:0xf bank_mask:0xf")
    A(f"v_cmp_gt_u32 vcc, 32, v0")
    A(f"v_cvt_pk_bf16_f32 v{vGA+4}, v{vGA}, v{vGA+1}")
    A(f"v_cvt_pk_bf16_f32 v{vGA+5}, v{vGA+2}, v{vGA+3}")
    A(f"v_cndmask_b32 v{vGt}, v{vOM}, v{vGt}, vcc")
    for h in range(2):
        A(f"v_lshlrev_b32 v{vGA+2*h}, 16, v{vGA+4+h}")
        A(f"v_and_b32 v{vGA+2*h+1}, 0xffff0000, v{vGA+4+h}")
    for r in range(4): A(f"v_mul_f32 v{vGA+r}, v{vGA+r}, v{vGt}")
    A(f"v_cvt_pk_bf16_f32 v{vGA+4}, v{vGA}, v{vGA+1}")
    A(f"v_cvt_pk_bf16_f32 v{vGA+5}, v{vGA+2}, v{vGA+3}")
    A(f"v_mov_b32 v{vGA+6}, v{vGA+4}")
    A(f"v_mov_b32 v{vGA+7}, v{vGA+5}")
    A("s_nop 1")
    A(f"v_permlane32_swap_b32 v{vGA+4}, v{vGA+6}")
    A(f"v_permlane32_swap_b32 v{vGA+5}, v{vGA+7}")
    for h in range(2):
        A(f"v_lshlrev_b32 v{vGA+2*h}, 16, v{vGA+4+h}")
        A(f"v_and_b32 v{vGA+2*h+1}, 0xffff0000, v{vGA+4+h}")
        A(f"v_lshlrev_b32 v{vGA+8+2*h}, 16, v{vGA+6+h}")
        A(f"v_and_b32 v{vGA+8+2*h+1}, 0xffff0000, v{vGA+6+h}")
    for r in range(4): A(f"v_add_f32 v{vGA+r}, v{vGA+r}, v{vGA+8+r}")
    A(f"v_cvt_pk_bf16_f32 v{vGA}, v{vGA}, v{vGA+1}")
    A(f"v_cvt_pk_bf16_f32 v{vGA+1}, v{vGA+2}, v{vGA+3}")
    A("s_mov_b64 exec, 0xff")
    A(f"global_store_dwordx2 v{vPUB}, v[{vGA}:{vGA+1}], s[{sOUT}:{sOUT+1}] {opt.outflags}")
    A("s_cmp_lg_u32 s2, 0")
    A("s_cbranch_scc1 L_noepoch")
    A("s_mov_b64 exec, 1")
    A(f"v_mov_b32 v{vTMP}, 0")
    A(f"global_store_dword v{vTMP}, v{vT}, s[{sWS}:{sWS+1}] sc1")
    if opt.fixdur:
        A("L_fix:")
        A("s_memrealtime s[14:15]")
        A("s_waitcnt lgkmcnt(0)")
        A("s_sub_u32 s14, s14, s12")
        A(f"s_cmp_lt_u32 s14, {opt.fixdur}")
        A("s_cbranch_scc1 L_fix")
    A("L_noepoch:")
    A("s_mov_b64 exec, -1")
    stamp(5)
    if STAMP:
        A("s_waitcnt vmcnt(0)")
        stamp(6)
        A(f"s_mov_b32 s{sST+2*11}, s{sCNT}")

    A("L_exit:")
    if STAMP:
        A("s_waitcnt lgkmcnt(0)")
        A(f"s_mul_i32 s{sTMP}, s2, 10")
        A(f"s_add_u32 s{sTMP}, s{sTMP}, s3")
        A(f"s_lshl_b32 s{sTMP}, s{sTMP}, 6")
        A(f"s_add_u32 s{sTMP}, s{sTMP}, {WS_STAMP}")
        A(f"v_mov_b32 v1, s{sTMP}")
        A("s_mov_b64 exec, 1")
        for i in range(12):
            A(f"v_mov_b32 v2, s{sST+2*i}")
            A(f"global_store_dword v1, v2, s[{sWS}:{sWS+1}] offset:{4*i}")
    A("L_end:")
    A("s_endpgm")

    body = "\n".join(g.o)
    NV = 104
    txt = HEADER
    txt += f"; @launch grid=(256,1,1) block=(640,1,1) lds={LDS_BYTES}\n"
    txt += f""".amdgcn_target "amdgcn-amd-amdhsa--gfx950"
.text
.globl {KNAME}
.p2align 8
.type {KNAME},@function
{KNAME}:
{body}
.section .rodata,"a"
.p2align 6
.amdhsa_kernel {KNAME}
  .amdhsa_next_free_vgpr {NV}
  .amdhsa_next_free_sgpr 102
  .amdhsa_accum_offset {NV}
  .amdhsa_group_segment_fixed_size 0
  .amdhsa_kernarg_size 104
  .amdhsa_user_sgpr_count 2
  .amdhsa_user_sgpr_kernarg_segment_ptr 1
  .amdhsa_system_sgpr_workgroup_id_x 1
.end_amdhsa_kernel
"""
    return txt

def parse(argv):
    ap = argparse.ArgumentParser()
    ap.add_argument("--nt", default="nt")
    ap.add_argument("--win", type=int, default=24)
    ap.add_argument("--stamp", type=int, default=0)
    ap.add_argument("--qgate", type=int, default=8)
    ap.add_argument("--lgate", type=int, default=23)
    ap.add_argument("--maxpoll", type=int, default=100000)
    ap.add_argument("--rsleep", type=int, default=0)
    ap.add_argument("--outflags", default="")
    ap.add_argument("--fixdur", type=int, default=0)
    ap.add_argument("-o", default=None)
    return ap.parse_args(argv)

if __name__ == "__main__":
    opt = parse(sys.argv[1:])
    t = gen(opt)
    if opt.o: open(opt.o, "w").write(t)
    else: print(t)
```

```python
import sys, argparse, struct, math

KNAME = "gated_mix__sliding_block_cached__glu_gated_reglu__decode_kernel"
HEADER = open("gated_mix__sliding_block_cached__glu_gated_reglu__decode.s.ref").read().split("; Override launch")[0]

RA = 0
RB = 65536
XA = 131072
XF = XA
QF = XA
PF = XA + 2048
RS = XA + 6144
AF = XA + 12288
FL = XA + 16384
F_PROG, F_BQ, F_BM, F_BP, F_BA, F_RDY, F_RED, F_GD, F_FREE = [4*i for i in range(9)]
F_MAX = 64
F_G = 96
LDS_BYTES = FL + 128

WS_EPOCH = 0
WS_QP = 1 << 20
WS_OP = 2 << 20
WS_LSE = (2 << 20) + (512 << 10)
WS_GP = 3 << 20
WS_FP = 4 << 20
WS_STAMP = 8 << 20

class G:
    def __init__(self):
        self.o = []; self.nlab = 0
    def A(self, s):
        for line in s.split("\n"):
            self.o.append("    " + line.strip() if not line.strip().endswith(":") else line.strip())
    def lab(self, p="L"):
        self.nlab += 1
        return f"{p}_{self.nlab}"

def plan(s):
    out = []
    for t in s.split(","):
        if t == "d": out.append("d")
        else:
            a, b = t.split(":"); out.append((int(a), int(b)))
    return out

def gen(opt):
    g = G(); A = g.A
    NT = opt.nt
    STAMP = opt.stamp
    sX, sK, sV, sWQ, sWO, sBX, sWG, sWU = [16+2*i for i in range(8)]
    sWD, sGW, sOUT, sDBG = 32, 34, 36, 38
    sWS = 40
    sXCD, sR, sROLE = 42, 43, 44
    sHQ, sKS, sG, sSPL, sRBK, sCB, sFB, sMK = 45, 46, 47, 48, 49, 50, 51, 52
    sBB = 45
    sT = 53
    sT0, sT1, sT2, sT3 = 53, 54, 55, 56
    sSEL0, sSEL1, sSEL2, sSEL3 = 57, 58, 59, 60
    sPROG, sC = 61, 62
    sTMP, sTMP2, sTMP3, sCNT = 63, 64, 65, 66
    sROT = 67
    sGA, sGB = 68, 70
    sSM = 4
    sST = 72
    NST = 14
    SRD = 8
    def stamp(idx):
        if STAMP: A(f"s_memrealtime s[{sST+2*idx}:{sST+2*idx+1}]")
    def stampval(idx, sreg):
        if STAMP: A(f"s_mov_b32 s{sST+2*idx}, s{sreg}")

    A(f"s_cmp_ge_u32 s2, 256")
    A("s_cbranch_scc1 L_end")
    if STAMP:
        for i in range(NST): A(f"s_mov_b32 s{sST+2*i}, 0")
    stamp(0)
    if opt.fixdur: A("s_memrealtime s[100:101]")
    A("s_load_dwordx16 s[16:31], s[0:1], 0")
    A("s_load_dwordx8 s[32:39], s[0:1], 64")
    A("s_load_dwordx2 s[40:41], s[0:1], 96")
    A("v_lshrrev_b32 v1, 6, v0")
    A("v_and_b32 v0, 63, v0")
    A("v_readfirstlane_b32 s3, v1")
    A(f"s_and_b32 s{sXCD}, s2, 7")
    A(f"s_lshr_b32 s{sR}, s2, 3")
    A(f"s_add_u32 s{sROT}, s{sR}, s{sXCD}")
    A(f"s_mul_i32 s{sTMP3}, s{sXCD}, 14")
    A(f"s_cmp_ge_u32 s{sR}, 16")
    A("s_cbranch_scc1 L_dec_M")
    A(f"s_and_b32 s{sROT}, s{sROT}, {6 if opt.rot & 2 else 0}")
    A(f"s_cmp_ge_u32 s{sR}, 14")
    A(f"s_cselect_b32 s{sROLE}, 2, 1")
    A(f"s_lshr_b32 s{sTMP}, s{sXCD}, 1")
    A(f"s_lshl_b32 s{sTMP}, s{sTMP}, 3")
    A(f"s_and_b32 s{sHQ}, s{sR}, 7")
    A(f"s_add_u32 s{sHQ}, s{sTMP}, s{sHQ}")
    A(f"s_lshr_b32 s{sTMP}, s{sR}, 3")
    A(f"s_and_b32 s{sKS}, s{sXCD}, 1")
    A(f"s_lshl_b32 s{sKS}, s{sKS}, 1")
    A(f"s_add_u32 s{sKS}, s{sKS}, s{sTMP}")
    A(f"s_lshl_b32 s{sRBK}, s{sXCD}, 1")
    A(f"s_add_u32 s{sRBK}, s{sRBK}, s{sTMP}")
    A(f"s_add_u32 s{sCB}, s{sR}, {opt.cbshift}")
    A(f"s_and_b32 s{sCB}, s{sCB}, 7")
    A(f"s_add_u32 s{sTMP}, s{sTMP3}, s{sR}")
    A(f"s_lshr_b32 s{sFB}, s{sTMP}, 2")
    A(f"s_and_b32 s{sMK}, s{sTMP}, 3")
    A("s_branch L_role_done")
    A("L_dec_M:")
    A(f"s_and_b32 s{sROT}, s{sROT}, {7 if opt.rot & 1 else 0}")
    A(f"s_cmp_ge_u32 s{sR}, 30")
    A(f"s_cselect_b32 s{sROLE}, 3, 0")
    A(f"s_lshr_b32 s{sG}, s{sXCD}, 1")
    A(f"s_lshr_b32 s{sBB}, s{sR}, 2")
    A(f"s_and_b32 s{sBB}, s{sBB}, 3")
    A(f"s_and_b32 s{sTMP}, s{sXCD}, 1")
    A(f"s_lshl_b32 s{sTMP}, s{sTMP}, 2")
    A(f"s_add_u32 s{sBB}, s{sBB}, s{sTMP}")
    A(f"s_and_b32 s{sSPL}, s{sR}, 3")
    A(f"s_add_u32 s{sTMP}, s{sTMP3}, s{sR}")
    A(f"s_sub_u32 s{sTMP}, s{sTMP}, 16")
    A(f"s_lshr_b32 s{sRBK}, s{sTMP}, 3")
    A(f"s_and_b32 s{sCB}, s{sTMP}, 7")
    A("L_role_done:")
    A("s_cmp_lg_u32 s3, 0")
    A("s_cbranch_scc1 L_not_loader")

    sSOFF, sSTEP, sNB, sBLK = 4, 5, 6, 7
    sIDX, sWRAP, sBASE = 12, 13, 14
    A("s_setprio 3")
    A("v_lshrrev_b32 v2, 4, v0")
    A("v_and_b32 v3, 15, v0")
    A("v_lshrrev_b32 v3, 1, v3")
    A("v_xor_b32 v3, v3, v2")
    A("v_lshlrev_b32 v3, 5, v3")
    A("v_and_b32 v4, 1, v0")
    A("v_lshlrev_b32 v4, 4, v4")
    A("v_or_b32 v3, v3, v4")
    A("v_xor_b32 v4, 0x80, v3")
    A("v_and_b32 v7, 7, v0")
    A("v_lshlrev_b32 v7, 11, v7")
    A("v_lshrrev_b32 v8, 3, v0")
    A("v_lshlrev_b32 v8, 4, v8")
    A("v_add_u32 v7, v7, v8")
    A(f"v_mov_b32 v9, {FL}")
    A(f"s_mov_b32 s{SRD+3}, 0x20000")
    A(f"s_mov_b32 s{sBLK}, 0")
    A(f"s_mov_b32 s{sPROG}, 0")
    def lds_wait_ge(off, val, vtmp="v11", vaddr="v9"):
        l = g.lab("L_w")
        A(f"{l}:")
        A(f"ds_read_b32 {vtmp}, {vaddr} offset:{off}")
        A("s_waitcnt lgkmcnt(0)")
        A(f"v_readfirstlane_b32 s{sTMP}, {vtmp}")
        A(f"s_cmp_ge_u32 s{sTMP}, {val}")
        A(f"s_cbranch_scc0 {l}")
    def blk_loop(nblk, win, nowait=False, rot=True):
        l = g.lab("L_ld")
        ph = (win // 4) & 1
        back = (win - 4*ph) // 8
        if nblk > 1:
            A(f"s_mov_b32 s{sNB}, {nblk}")
            A(f"{l}:")
        for half in range(2):
            if not nowait:
                if half == ph:
                    A(f"s_sub_u32 s{sTMP}, s{sBLK}, {back}")
                    A(f"s_max_i32 s{sPROG}, s{sTMP}, s{sPROG}")
                    A(f"v_mov_b32 v10, s{sPROG}")
                A(f"s_waitcnt vmcnt({win})")
                if half == ph: A(f"ds_write_b32 v9, v10 offset:{F_PROG}")
            for i in range(4):
                v = 5 if ((i >> 1) & 1) == 0 else 6
                A(f"buffer_load_dwordx4 v{v}, s[{SRD}:{SRD+3}], s{sSOFF} offen {NT} lds")
                A(f"s_add_u32 m0, m0, 1024")
                A(f"s_add_u32 s{sSOFF}, s{sSOFF}, s{sSTEP}")
        if rot:
            A(f"s_add_u32 s{sIDX}, s{sIDX}, 1")
            A(f"s_and_b32 s{sIDX}, s{sIDX}, 7")
            A(f"s_cselect_b32 s{sTMP}, 0, s{sWRAP}")
            A(f"s_sub_u32 s{sSOFF}, s{sSOFF}, s{sTMP}")
        A(f"s_add_u32 s{sBLK}, s{sBLK}, 1")
        if nblk > 1:
            A(f"s_sub_u32 s{sNB}, s{sNB}, 1")
            A(f"s_cmp_lg_u32 s{sNB}, 0")
            A(f"s_cbranch_scc1 {l}")
    def drain(maxwin):
        for k in range((maxwin + 4 + 7)//8 - 1, -1, -1):
            A(f"s_sub_u32 s{sTMP}, s{sBLK}, {k}")
            A(f"s_max_i32 s{sPROG}, s{sTMP}, s{sPROG}")
            A(f"v_mov_b32 v10, s{sPROG}")
            A(f"s_waitcnt vmcnt({8*k})")
            A(f"ds_write_b32 v9, v10 offset:{F_PROG}")
    def set_stride(stride):
        A(f"s_mov_b32 s{sSTEP}, {4*stride}")
        if stride & (stride-1) == 0:
            sh = stride.bit_length()-1
            A(f"v_lshl_add_u32 v5, v2, {sh}, v3")
            A(f"v_lshl_add_u32 v6, v2, {sh}, v4")
        else:
            A(f"v_mul_u32_u24 v8, {stride}, v2")
            A("v_add_u32 v5, v8, v3")
            A("v_add_u32 v6, v8, v4")
        A(f"s_mov_b32 s{sWRAP}, {256*stride}")
    def rot_start(stride):
        A(f"s_mov_b32 s{sIDX}, s{sROT}")
        A(f"s_mul_i32 s{sSOFF}, s{sROT}, {32*stride}")
        A(f"s_add_u32 s{sSOFF}, s{sSOFF}, s{sBASE}")
    def xloads(n, ldsbase):
        for j in range(4):
            A(f"s_add_u32 s{sTMP}, s{sROT}, {2*j}")
            A(f"s_and_b32 s{sTMP}, s{sTMP}, 7")
            A(f"s_lshl_b32 s{sTMP}, s{sTMP}, 6")
            A(f"s_add_u32 s{sTMP}, s{sTMP}, s{sTMP3}")
            for q in range(n//4):
                A(f"s_mov_b32 m0, {ldsbase + 4096*q + 1024*j - 512*q}")
                A("s_nop 0")
                A(f"buffer_load_dwordx4 v7, s[{SRD}:{SRD+3}], s{sTMP} offen offset:{512*q} lds")
    def run_plan(pl, segs, first_nowait, endlabel=None):
        blk = 0; lastwin = 0
        segmap = {s[0]: s for s in segs}
        rot = True
        items = []
        for it in pl:
            if it == "d": items.append(it); continue
            n, w = it
            while n:
                c = min(n, 8 - (blk % 8))
                if blk < first_nowait: c = min(c, first_nowait - blk)
                items.append((blk, c, w)); blk += c; n -= c
        for it in items:
            if it == "d":
                drain(lastwin); continue
            b0, c, w = it
            if b0 % 8 == 0:
                seg = b0 // 8
                if seg >= 1: stamp(1 + seg)
                if seg >= 2: lds_wait_ge(F_FREE + 4*(seg-2), 8)
                if b0 in segmap:
                    segmap[b0][1](); rot = segmap[b0][2]
                elif rot:
                    A(f"s_add_u32 s{sSOFF}, s{sSOFF}, s{sWRAP}")
                A(f"s_mov_b32 m0, {RA if seg % 2 == 0 else RB}")
                A("s_nop 0")
            blk_loop(c, w, nowait=(b0 < first_nowait), rot=rot)
            if b0 + c == first_nowait:
                A("s_barrier"); stamp(1)
            lastwin = w
        if endlabel: A(f"{endlabel}:")
        stamp(8)
        drain(max(x[1] for x in pl if x != "d"))
        stamp(9)
    A(f"s_cmp_ge_u32 s{sR}, 16")
    A("s_cbranch_scc1 L_ld_M")
    def xsrd(): A(f"s_mov_b32 s{SRD}, s{sX}\ns_mov_b32 s{SRD+1}, s{sX+1}\ns_mov_b32 s{SRD+2}, 16384")
    def b_seg0():
        set_stride(8192)
        A(f"s_lshl_b32 s{sBASE}, s{sKS}, 21")
        A(f"s_lshl_b32 s{sTMP}, s{sHQ}, 8")
        A(f"s_add_u32 s{sBASE}, s{sBASE}, s{sTMP}")
        rot_start(8192)
        A(f"s_lshl_b32 s{sTMP3}, s{sKS}, 9")
        A("s_waitcnt lgkmcnt(0)")
        xsrd()
        xloads(4, XF)
        A(f"s_mov_b32 s{SRD}, s{sWQ}\ns_mov_b32 s{SRD+1}, s{sWQ+1}\ns_mov_b32 s{SRD+2}, {1024*4096*2}")
    def b_seg1():
        xsrd()
        A(f"s_and_b32 s{sTMP2}, s{sMK}, 1")
        A(f"s_lshl_b32 s{sTMP3}, s{sTMP2}, 10")
        xloads(8, XF + 4096)
        set_stride(7168)
        A(f"s_mul_i32 s{sBASE}, s{sTMP2}, {512*7168}")
        A(f"s_lshl_b32 s{sTMP}, s{sFB}, 8")
        A(f"s_add_u32 s{sBASE}, s{sBASE}, s{sTMP}")
        rot_start(7168)
        A(f"s_cmp_lt_u32 s{sMK}, 2")
        A(f"s_cselect_b32 s{SRD}, s{sWG}, s{sWU}")
        A(f"s_cselect_b32 s{SRD+1}, s{sWG+1}, s{sWU+1}")
        A(f"s_mov_b32 s{SRD+2}, {1024*3584*2}")
    def late_seg(ptr, nbytes):
        def f():
            set_stride(2048)
            A(f"s_mov_b32 s{SRD}, s{ptr}\ns_mov_b32 s{SRD+1}, s{ptr+1}\ns_mov_b32 s{SRD+2}, {nbytes}")
            A(f"s_lshl_b32 s{sSOFF}, s{sRBK}, 19")
            A(f"s_lshl_b32 s{sTMP}, s{sCB}, 8")
            A(f"s_add_u32 s{sSOFF}, s{sSOFF}, s{sTMP}")
        return f
    A(f"s_cmp_eq_u32 s{sROLE}, 2")
    A("s_cbranch_scc1 L_ld_C")
    pb = plan(opt.pb); assert sum(x[0] for x in pb if x != "d") == 32
    run_plan(pb, [(0, b_seg0, True), (8, b_seg1, True), (24, late_seg(sWO, 4096*1024*2), False)], max(1, (pb[0][1]+4)//8))
    A("s_branch L_exit")
    A("L_ld_C:")
    pc = plan(opt.pc); assert sum(x[0] for x in pc if x != "d") == 16 and pc[1] == "d" and pc[0][0] == 8
    def c_seg1():
        late_seg(sWO, 4096*1024*2)()
        A(f"s_mov_b32 s{sBLK}, 24")
    run_plan(pc, [(0, b_seg0, True), (8, c_seg1, False)], max(1, (pc[0][1]+4)//8))
    A("s_branch L_exit")
    A("L_ld_M:")
    def m_seg0():
        set_stride(256)
        A(f"s_lshl_b32 s{sBASE}, s{sBB}, 2")
        A(f"s_add_u32 s{sBASE}, s{sBASE}, s{sG}")
        A(f"s_lshl_b32 s{sBASE}, s{sBASE}, 20")
        A(f"s_lshl_b32 s{sTMP}, s{sSPL}, 16")
        A(f"s_add_u32 s{sBASE}, s{sBASE}, s{sTMP}")
        A(f"s_add_u32 s{sBASE}, s{sBASE}, {3072*256}")
        rot_start(256)
        A(f"s_mov_b32 s{SRD+2}, {8*4*4096*128*2}")
        A("s_waitcnt lgkmcnt(0)")
        A(f"s_mov_b32 s{SRD}, s{sK}\ns_mov_b32 s{SRD+1}, s{sK+1}")
    def m_seg1():
        A(f"s_mov_b32 s{SRD}, s{sV}\ns_mov_b32 s{SRD+1}, s{sV+1}")
    def m_seg2():
        A(f"s_cmp_eq_u32 s{sROLE}, 3")
        A("s_cbranch_scc1 L_ld_Mend")
        late_seg(sWD, 3584*1024*2)()
    pm = plan(opt.pm); assert sum(x[0] for x in pm if x != "d") == 24
    run_plan(pm, [(0, m_seg0, True), (8, m_seg1, True), (16, m_seg2, False)], max(1, (pm[0][1]+4)//8), endlabel="L_ld_Mend")
    A("s_branch L_exit")

    A("L_not_loader:")
    vL16, vTR, vACT, vT, vPUB = 1, 2, 3, 4, 5
    vTMP, vTMP2, vTMP3 = 6, 7, 8
    vWA, vAA = 10, 11
    vW, vB, vACC, vACC2 = 12, 16, 20, 24
    vGA = 28
    vLS = 44
    vK = 52
    vQ = 84
    NV = 128
    vPF0, vPF1 = 120, 121
    A("s_waitcnt lgkmcnt(0)")
    A(f"s_load_dword s{sT}, s[{sWS}:{sWS+1}], {WS_EPOCH}")
    A(f"s_sub_u32 s{sC}, s3, 1")
    if opt.cpf:
        A(f"s_cmp_lg_u32 s{sC}, 7")
        A("s_cbranch_scc1 L_cpf_done")
        A("s_getpc_b64 s[4:5]")
        A("L_pc:")
        A(f"s_sub_u32 s4, s4, L_pc-{KNAME}")
        A("s_subb_u32 s5, s5, 0")
        A(f"v_lshlrev_b32 v{vTMP}, 7, v0")
        A(f"global_load_dword v{vPF0}, v{vTMP}, s[4:5]")
        A(f"v_add_u32 v{vTMP2}, 8192, v{vTMP}")
        A(f"v_cmp_gt_u32 vcc, L_end-{KNAME}, v{vTMP2}")
        A("s_and_saveexec_b64 s[6:7], vcc")
        A("s_cbranch_execz L_cpf_done2")
        A(f"global_load_dword v{vPF1}, v{vTMP2}, s[4:5]")
        A("L_cpf_done2:")
        A("s_mov_b64 exec, -1")
        A("L_cpf_done:")
    A(f"s_mov_b32 s{sSEL0}, 0x07060500\ns_mov_b32 s{sSEL1}, 0x07060501\ns_mov_b32 s{sSEL2}, 0x07060502\ns_mov_b32 s{sSEL3}, 0x07060503")
    A(f"v_mov_b32 v9, {FL}")
    A(f"s_mov_b32 s{sPROG}, 0")
    A(f"v_lshlrev_b32 v{vL16}, 4, v0")
    A(f"v_and_b32 v{vTMP}, 15, v0")
    A(f"v_lshrrev_b32 v{vTMP2}, 4, v0")
    A(f"v_lshrrev_b32 v{vTMP3}, 2, v{vTMP}")
    A(f"v_lshl_add_u32 v{vTR}, v{vTMP2}, 3, v{vTMP3}")
    A(f"v_lshlrev_b32 v{vTR}, 8, v{vTR}")
    A(f"v_and_b32 v{vACT}, 1, v{vTMP2}")
    A(f"v_lshl_or_b32 v{vTMP3}, v{vACT}, 2, v{vTMP3}")
    A(f"v_xor_b32 v{vTMP3}, s{sC}, v{vTMP3}")
    A(f"v_lshl_or_b32 v{vTR}, v{vTMP3}, 5, v{vTR}")
    A(f"v_and_b32 v{vTMP3}, 3, v0")
    A(f"v_lshl_or_b32 v{vTR}, v{vTMP3}, 3, v{vTR}")
    A(f"v_and_b32 v{vTMP3}, 7, v0")
    A(f"v_lshl_add_u32 v{vACT}, v{vTMP2}, 3, v{vTMP3}")
    A(f"v_lshlrev_b32 v{vACT}, 4, v{vACT}")
    A(f"s_cmp_lg_u32 s{sC}, 0")
    A("s_cbranch_scc1 L_noinit")
    A(f"v_mov_b32 v{vTMP}, 0xff7fffff")
    A(f"v_cmp_gt_u32 vcc, 16, v0")
    A(f"v_lshl_add_u32 v{vTMP2}, v0, 2, v9")
    A("s_nop 1")
    A(f"v_cndmask_b32 v{vTMP}, v{vTMP}, 0, vcc")
    A(f"s_mov_b32 exec_hi, 0")
    A(f"ds_write_b32 v{vTMP2}, v{vTMP}")
    A(f"s_mov_b64 exec, -1")
    A("L_noinit:")
    A("s_waitcnt lgkmcnt(0)")
    A(f"s_add_u32 s{sT}, s{sT}, 0x01010101")
    A(f"s_lshr_b32 s{sT1}, s{sT}, 8\ns_lshr_b32 s{sT2}, s{sT}, 16\ns_lshr_b32 s{sT3}, s{sT}, 24")
    A(f"v_mov_b32 v{vT}, s{sT}")
    A("s_barrier")
    stamp(1)

    def refresh_prog():
        A(f"ds_read_b32 v{vTMP}, v9 offset:{F_PROG}")
        A("s_waitcnt lgkmcnt(0)")
        A(f"v_readfirstlane_b32 s{sPROG}, v{vTMP}")
    def wait_prog(val_is_sgpr, val):
        l = g.lab("L_wp"); d = g.lab("L_wpd")
        v = f"s{val}" if val_is_sgpr else str(val)
        A(f"s_cmp_ge_u32 s{sPROG}, {v}")
        A(f"s_cbranch_scc1 {d}")
        A(f"{l}:")
        if opt.spin: A(f"s_sleep {opt.spin}")
        refresh_prog()
        A(f"s_cmp_ge_u32 s{sPROG}, {v}")
        A(f"s_cbranch_scc0 {l}")
        A(f"{d}:")
    def signal(off):
        A(f"v_mov_b32 v{vTMP}, 1")
        A("s_mov_b64 exec, 1")
        A(f"ds_add_u32 v9, v{vTMP} offset:{off}")
        A("s_mov_b64 exec, -1")
    def cwait(off, val):
        lds_wait_ge(off, val, vtmp=f"v{vTMP}")
    def publish(src, base=sGA):
        for r, sel in enumerate([sSEL0, sSEL1, sSEL2, sSEL3]):
            A(f"v_perm_b32 v{src+r}, v{src+r}, v{vT}, s{sel}")
        A("s_mov_b32 exec_lo, 0x00ff00ff\ns_mov_b32 exec_hi, 0x00ff00ff")
        if not (opt.dbg & 1): A(f"global_store_dwordx4 v{vPUB}, v[{src}:{src+3}], s[{base}:{base+1}] sc1")
        A("s_mov_b64 exec, -1")
    def ws_addr(dst, base_const, soff):
        A(f"s_add_u32 s{soff}, s{soff}, {base_const}")
        A(f"s_add_u32 s{dst}, s{sWS}, s{soff}")
        A(f"s_addc_u32 s{dst+1}, s{sWS+1}, 0")
    def pub_voff(shift):
        A(f"v_and_b32 v{vTMP2}, 15, v0")
        A(f"v_and_b32 v{vTMP3}, 48, v0")
        A(f"v_lshl_or_b32 v{vPUB}, v{vTMP2}, {shift}, v{vTMP3}")
    def sample(base, offs, sleep=0, cntstamp=None, exact=False):
        l = g.lab("L_sm"); d = g.lab("L_smd"); e = g.lab("L_sme")
        if opt.dbg & 7: return
        A(f"s_mov_b32 s{sCNT}, 0")
        if sleep:
            A(f"s_branch {e}")
        A(f"{l}:")
        if sleep:
            A(f"s_sleep {sleep}")
            A(f"{e}:")
        for i, o in enumerate(offs):
            A(f"s_load_dword s{sSM+i}, s[{base}:{base+1}], {o} glc")
        A(f"s_add_u32 s{sCNT}, s{sCNT}, 1")
        A(f"s_cmp_gt_u32 s{sCNT}, {opt.maxpoll}")
        A("s_waitcnt lgkmcnt(0)")
        A(f"s_cbranch_scc1 {d}")
        for i in range(len(offs)):
            A(f"s_xor_b32 s{sSM+i}, s{sSM+i}, s{sT}")
            if i: A(f"s_or_b32 s{sSM}, s{sSM}, s{sSM+i}")
        A(f"s_and_b32 s{sSM}, s{sSM}, {-1 if exact else 0xff}")
        A(f"s_cbranch_scc1 {l}")
        A(f"{d}:")
        if cntstamp is not None: stampval(cntstamp, sCNT)
    def gather(nld=4, lse=False, lasthalf=False, mid=None, midw=None, cntstamp=None, sleep=0):
        l = g.lab("L_ga"); d = g.lab("L_gad"); c = g.lab("L_gac")
        def issue():
            if opt.dbg & 2: return
            if lse:
                A(f"global_load_dwordx4 v[{vLS}:{vLS+3}], v{vTMP3}, s[{sGB}:{sGB+1}] sc1")
                A(f"global_load_dwordx4 v[{vLS+4}:{vLS+7}], v{vTMP3}, s[{sGB}:{sGB+1}] offset:16 sc1")
            for i in range(nld):
                if lasthalf and i == nld-1: A("s_mov_b32 exec_hi, 0")
                A(f"global_load_dwordx4 v[{vGA+4*i}:{vGA+4*i+3}], v{vL16}, s[{sGA}:{sGA+1}] offset:{1024*i} sc1")
            if lasthalf: A("s_mov_b32 exec_hi, -1")
        if mid is not None or sleep:
            issue()
            if mid is not None: mid()
            A(f"s_mov_b32 s{sCNT}, 0")
            A(f"s_branch {c}")
        else:
            A(f"s_mov_b32 s{sCNT}, 0")
        A(f"{l}:")
        if sleep: A(f"s_sleep {sleep}")
        issue()
        A(f"{c}:")
        A(f"s_add_u32 s{sCNT}, s{sCNT}, 1")
        ts = [sT0, sT1, sT2, sT3]
        vC = vTMP2
        if lse:
            A(f"s_waitcnt vmcnt({nld})")
            A(f"v_xor_b32 v{vB}, s{sT}, v{vLS+1}")
            for r in (3, 5, 7):
                A(f"v_bitop3_b32 v{vB}, v{vB}, v{vLS+r}, s{sT} bitop3:0xf6")
            midw()
        for i in range(nld):
            A(f"s_waitcnt vmcnt({nld-1-i})")
            if lasthalf and i == nld-1: A("s_mov_b32 exec_hi, 0")
            for r in range(4):
                if i == 0 and r == 0:
                    A(f"v_xor_b32 v{vC}, s{ts[r]}, v{vGA}")
                else:
                    A(f"v_bitop3_b32 v{vC}, v{vC}, v{vGA+4*i+r}, s{ts[r]} bitop3:0xf6")
            if lasthalf and i == nld-1: A("s_mov_b32 exec_hi, -1")
        A(f"v_and_b32 v{vC}, 0xff, v{vC}")
        if lse: A(f"v_or_b32 v{vC}, v{vC}, v{vB}")
        A(f"v_cmp_ne_u32 vcc, 0, v{vC}")
        A(f"s_cbranch_vccz {d}")
        A(f"s_cmp_le_u32 s{sCNT}, {0 if (opt.dbg & 6) else opt.maxpoll}")
        A(f"s_cbranch_scc1 {l}")
        A(f"{d}:")
        if cntstamp is not None: stampval(cntstamp, sCNT)
    def wreads(k0, k1):
        for kb in range(k0, k1):
            o = 8192*kb
            A(f"ds_read_b64_tr_b16 v[{vK+4*kb}:{vK+4*kb+1}], v{vWA} offset:{o}")
            A(f"ds_read_b64_tr_b16 v[{vK+4*kb+2}:{vK+4*kb+3}], v{vWA} offset:{o+1024}")
    def mf(kb, first):
        c = "0" if first else f"v[{vACC}:{vACC+3}]"
        A(f"v_mfma_f32_16x16x32_bf16 v[{vACC}:{vACC+3}], v[{vK+4*kb}:{vK+4*kb+3}], v[{vQ+4*kb}:{vQ+4*kb+3}], {c}")
    def actreads(n):
        for kb in range(n):
            A(f"ds_read_b128 v[{vQ+4*kb}:{vQ+4*kb+3}], v{vAA} offset:{512*kb}")
    vAFW = vW + 1
    def af_addr():
        dst = vAFW
        A(f"v_lshrrev_b32 v{dst}, 5, v0")
        A(f"v_lshlrev_b32 v{dst}, 8, v{dst}")
        A(f"v_and_b32 v{vTMP2}, 2, v0")
        A(f"v_lshl_or_b32 v{dst}, v{vTMP2}, 6, v{dst}")
        A(f"v_and_b32 v{vTMP2}, 28, v0")
        A(f"v_lshl_or_b32 v{dst}, v{vTMP2}, 2, v{dst}")
        A(f"v_and_b32 v{vTMP2}, 1, v0")
        A(f"v_lshl_or_b32 v{dst}, v{vTMP2}, 3, v{dst}")
        A(f"s_lshl_b32 s{sTMP}, s{sC}, 9")
        A(f"s_add_u32 s{sTMP}, s{sTMP}, {AF}")
        A(f"v_add_u32 v{dst}, s{sTMP}, v{dst}")
        A(f"v_add_u32 v{vAA}, {AF}, v{vACT}")
    sFA = 14
    def fp_addr(padd):
        A(f"v_and_b32 v{vTMP2}, 4, v0")
        A(f"v_lshlrev_b32 v{vPUB}, 11, v{vTMP2}")
        A(f"v_and_b32 v{vTMP2}, 3, v0")
        A(f"v_lshl_or_b32 v{vPUB}, v{vTMP2}, 6, v{vPUB}")
        A(f"v_and_b32 v{vTMP2}, 48, v0")
        A(f"v_or_b32 v{vPUB}, v{vPUB}, v{vTMP2}")
        A(f"s_lshl_b32 s{sTMP}, s{sCB}, 3")
        A(f"s_add_u32 s{sTMP}, s{sTMP}, s{sC}")
        A(f"s_lshl_b32 s{sTMP}, s{sTMP}, 6")
        A(f"s_add_u32 s{sTMP}, s{sTMP}, s{sRBK}")
        A(f"s_lshl_b32 s{sTMP}, s{sTMP}, 8")
        ws_addr(sFA, WS_FP + 256*padd, sTMP)
    def late(prog0, npre, name):
        nb = 8
        if npre < nb:
            refresh_prog()
            A(f"s_cmp_lt_u32 s{sPROG}, {prog0+nb}")
            A(f"s_cbranch_scc1 L_late_slow{name}")
            wreads(npre, nb)
        cwait(F_BA, 8)
        actreads(nb)
        for kb in range(nb):
            A(f"s_waitcnt lgkmcnt({nb-1-kb})")
            mf(kb, kb == 0)
        if npre < nb:
            A(f"s_branch L_late_done{name}")
            A(f"L_late_slow{name}:")
            cwait(F_BA, 8)
            actreads(nb)
            for kb in range(npre):
                A(f"s_waitcnt lgkmcnt({nb-1-kb})")
                mf(kb, kb == 0)
            for kb in range(npre, nb):
                wait_prog(False, prog0 + kb + 1)
                wreads(kb, kb+1)
                if kb > npre:
                    A("s_waitcnt lgkmcnt(2)")
                    mf(kb-1, kb-1 == 0)
            A("s_waitcnt lgkmcnt(0)")
            mf(nb-1, False)
            A(f"L_late_done{name}:")
        A("s_nop 7")
        publish(vACC, sFA)
        stamp(9)
    def egemv(nblk, prog0, name):
        for r in range(4): A(f"v_mov_b32 v{vACC+r}, 0")
        A(f"s_mov_b32 s{sCNT}, {prog0+1}")
        wait_prog(False, prog0+1)
        A(f"L_eg_loop{name}:")
        A(f"ds_read_b128 v[{vB}:{vB+3}], v{vAA}")
        wait_prog(True, sCNT)
        A(f"ds_read_b64_tr_b16 v[{vW}:{vW+1}], v{vWA}")
        A(f"ds_read_b64_tr_b16 v[{vW+2}:{vW+3}], v{vWA} offset:1024")
        A(f"v_add_u32 v{vWA}, 8192, v{vWA}")
        A(f"v_and_b32 v{vWA}, 0x1ffff, v{vWA}")
        A(f"v_add_u32 v{vAA}, 512, v{vAA}")
        A(f"s_add_u32 s{sCNT}, s{sCNT}, 1")
        A(f"s_cmp_le_u32 s{sCNT}, {prog0+nblk}")
        A("s_waitcnt lgkmcnt(0)")
        A(f"v_mfma_f32_16x16x32_bf16 v[{vACC}:{vACC+3}], v[{vW}:{vW+3}], v[{vB}:{vB+3}], v[{vACC}:{vACC+3}]")
        A(f"s_cbranch_scc1 L_eg_loop{name}")

    if opt.nocomm:
        for i in range(3): signal(F_FREE + 4*i)
        A("s_branch L_exit")
    A(f"s_cmp_ge_u32 s{sR}, 16")
    A("s_cbranch_scc1 L_roleM")

    pub_voff(16)
    A(f"s_lshl_b32 s{sTMP}, s{sHQ}, 2")
    A(f"s_add_u32 s{sTMP}, s{sTMP}, s{sKS}")
    A(f"s_lshl_b32 s{sTMP}, s{sTMP}, 9")
    A(f"s_lshl_b32 s{sTMP2}, s{sC}, 6")
    A(f"s_add_u32 s{sTMP}, s{sTMP}, s{sTMP2}")
    ws_addr(sGA, WS_QP, sTMP)
    A(f"v_mov_b32 v{vWA}, v{vTR}")
    A(f"v_add_u32 v{vAA}, {XF}, v{vACT}")
    egemv(8, 0, "Q")
    signal(F_FREE)
    A("s_nop 3")
    publish(vACC)
    stamp(2)
    A(f"s_cmp_eq_u32 s{sROLE}, 2")
    A("s_cbranch_scc1 L_bc_late")
    pub_voff(6)
    A(f"s_lshl_b32 s{sTMP}, s{sFB}, 14")
    A(f"s_lshr_b32 s{sTMP2}, s{sC}, 1")
    A(f"s_lshl_b32 s{sTMP2}, s{sTMP2}, 12")
    A(f"s_add_u32 s{sTMP}, s{sTMP}, s{sTMP2}")
    A(f"s_lshl_b32 s{sTMP2}, s{sMK}, 10")
    A(f"s_add_u32 s{sTMP}, s{sTMP}, s{sTMP2}")
    A(f"s_and_b32 s{sTMP2}, s{sC}, 1")
    A(f"s_lshl_b32 s{sTMP2}, s{sTMP2}, 9")
    A(f"s_add_u32 s{sTMP}, s{sTMP}, s{sTMP2}")
    ws_addr(sGA, WS_GP, sTMP)
    egemv(8, 8, "G1")
    signal(F_FREE + 4)
    stamp(3)
    A(f"L_eg_loopG2:")
    A(f"ds_read_b128 v[{vB}:{vB+3}], v{vAA}")
    wait_prog(True, sCNT)
    A(f"ds_read_b64_tr_b16 v[{vW}:{vW+1}], v{vWA}")
    A(f"ds_read_b64_tr_b16 v[{vW+2}:{vW+3}], v{vWA} offset:1024")
    A(f"v_add_u32 v{vWA}, 8192, v{vWA}")
    A(f"v_add_u32 v{vAA}, 512, v{vAA}")
    A(f"s_add_u32 s{sCNT}, s{sCNT}, 1")
    A(f"s_cmp_le_u32 s{sCNT}, 24")
    A("s_waitcnt lgkmcnt(0)")
    A(f"v_mfma_f32_16x16x32_bf16 v[{vACC}:{vACC+3}], v[{vW}:{vW+3}], v[{vB}:{vB+3}], v[{vACC}:{vACC+3}]")
    A(f"s_cbranch_scc1 L_eg_loopG2")
    A("s_nop 7")
    publish(vACC)
    stamp(6)
    A("L_bc_late:")
    skp = g.lab("L_nosm")
    if not (opt.sample & 2):
        A(f"s_cmp_lg_u32 s{sROLE}, 2")
        A(f"s_cbranch_scc1 {skp}")
    A(f"s_lshl_b32 s{sTMP}, s{sRBK}, 3")
    A(f"s_add_u32 s{sTMP}, s{sTMP}, s{sCB}")
    A(f"s_lshl_b32 s{sTMP}, s{sTMP}, 12")
    A(f"s_lshl_b32 s{sTMP2}, s{sC}, 6")
    A(f"s_add_u32 s{sTMP}, s{sTMP}, s{sTMP2}")
    ws_addr(sGB, WS_OP, sTMP)
    sample(sGB, [1024*i + 512 for i in range(4)], sleep=opt.lsleep, cntstamp=12)
    signal(F_RDY)
    cwait(F_RDY, 8)
    A(f"{skp}:")
    A(f"s_lshl_b32 s{sTMP}, s{sRBK}, 3")
    A(f"s_add_u32 s{sTMP}, s{sTMP}, s{sC}")
    A(f"s_lshr_b32 s{sTMP3}, s{sTMP}, 2")
    A(f"s_lshl_b32 s{sTMP}, s{sTMP}, 12")
    ws_addr(sGA, WS_OP, sTMP)
    A(f"s_lshl_b32 s{sTMP3}, s{sTMP3}, 8")
    ws_addr(sGB, WS_LSE, sTMP3)
    A(f"v_and_b32 v{vTMP3}, 28, v0")
    A(f"v_lshlrev_b32 v{vTMP3}, 3, v{vTMP3}")
    wait_prog(False, opt.ogate)
    stamp(7)
    def late_mid_b():
        af_addr()
        fp_addr(0)
        A(f"v_add_u32 v{vWA}, {RB}, v{vTR}")
        if opt.npreb:
            wait_prog(False, 24 + opt.npreb)
            wreads(0, opt.npreb)
    def weights():
        A(f"v_max3_f32 v{vTMP}, v{vLS}, v{vLS+2}, v{vLS+4}")
        A(f"v_max_f32 v{vTMP}, v{vTMP}, v{vLS+6}")
        for i in range(4): A(f"v_sub_f32 v{vLS+2*i}, v{vLS+2*i}, v{vTMP}")
        for i in range(4): A(f"v_exp_f32 v{vLS+2*i}, v{vLS+2*i}")
        A("s_nop 0")
        A(f"v_add_f32 v{vTMP}, v{vLS}, v{vLS+2}")
        A(f"v_add_f32 v{vB+1}, v{vLS+4}, v{vLS+6}")
        A(f"v_add_f32 v{vTMP}, v{vTMP}, v{vB+1}")
        A(f"v_rcp_f32 v{vTMP}, v{vTMP}")
        A("s_nop 0")
        for i in range(4): A(f"v_mul_f32 v{vLS+2*i}, v{vLS+2*i}, v{vTMP}")
    gather(lse=True, mid=late_mid_b, midw=weights, cntstamp=13, sleep=opt.gsleep)
    stamp(8)
    for r in range(4): A(f"v_mul_f32 v{vGA+r}, v{vGA+r}, v{vLS}")
    for i in range(1, 4):
        for r in range(4): A(f"v_fmac_f32 v{vGA+r}, v{vGA+4*i+r}, v{vLS+2*i}")
    A(f"v_cvt_pk_bf16_f32 v{vGA}, v{vGA}, v{vGA+1}")
    A(f"v_cvt_pk_bf16_f32 v{vGA+1}, v{vGA+2}, v{vGA+3}")
    A(f"ds_write_b64 v{vAFW}, v[{vGA}:{vGA+1}]")
    signal(F_BA)
    late(24, opt.npreb, "B")
    A("s_branch L_exit")

    A("L_roleM:")
    vXr, vGWr = vK, vK + 8
    A(f"s_cmp_lt_u32 s{sC}, 4")
    A("s_cbranch_scc1 L_nogate")
    wait_prog(False, opt.ggate)
    A(f"s_and_b32 s{sTMP}, s{sR}, 1")
    A(f"s_lshl_b32 s{sTMP}, s{sTMP}, 2")
    A(f"s_add_u32 s{sTMP}, s{sTMP}, s{sC}")
    A(f"s_sub_u32 s{sTMP3}, s{sTMP}, 4")
    A(f"s_lshl_b32 s{sTMP}, s{sTMP3}, 11")
    A(f"v_add_u32 v{vTMP3}, s{sTMP}, v{vL16}")
    for i in range(2):
        A(f"global_load_dwordx4 v[{vXr+4*i}:{vXr+4*i+3}], v{vTMP3}, s[{sX}:{sX+1}] offset:{1024*i}")
        A(f"global_load_dwordx4 v[{vGWr+4*i}:{vGWr+4*i+3}], v{vL16}, s[{sGW}:{sGW+1}] offset:{1024*i}")
    A(f"v_mov_b32 v{vACC2}, 0")
    A("s_waitcnt vmcnt(0)")
    for i in range(8):
        A(f"v_lshlrev_b32 v{vW}, 16, v{vXr+i}")
        A(f"v_and_b32 v{vW+1}, 0xffff0000, v{vXr+i}")
        A(f"v_lshlrev_b32 v{vW+2}, 16, v{vGWr+i}")
        A(f"v_and_b32 v{vW+3}, 0xffff0000, v{vGWr+i}")
        A(f"v_mul_f32 v{vW}, v{vW}, v{vW+2}")
        A(f"v_mul_f32 v{vW+1}, v{vW+1}, v{vW+3}")
        A(f"v_cvt_pk_bf16_f32 v{vW}, v{vW}, v{vW+1}")
        A(f"v_lshlrev_b32 v{vW+1}, 16, v{vW}")
        A(f"v_and_b32 v{vW}, 0xffff0000, v{vW}")
        A(f"v_add_f32 v{vACC2}, v{vACC2}, v{vW+1}")
        A(f"v_add_f32 v{vACC2}, v{vACC2}, v{vW}")
    for off in (0x041F, 0x081F, 0x101F, 0x201F, 0x401F):
        A(f"ds_swizzle_b32 v{vW}, v{vACC2} offset:{off:#x}")
        A("s_waitcnt lgkmcnt(0)")
        A(f"v_add_f32 v{vACC2}, v{vACC2}, v{vW}")
    A(f"v_mov_b32 v{vW}, v{vACC2}")
    A("s_nop 1")
    A(f"v_permlane32_swap_b32 v{vACC2}, v{vW}")
    A(f"v_add_f32 v{vACC2}, v{vACC2}, v{vW}")
    def rbf(v):
        A(f"v_cvt_pk_bf16_f32 v{v}, v{v}, v{v}")
        A(f"v_and_b32 v{v}, 0xffff0000, v{v}")
    rbf(vACC2)
    A(f"v_mul_f32 v{vACC2}, 0xbfb8aa3b, v{vACC2}")
    A(f"v_exp_f32 v{vACC2}, v{vACC2}")
    A("s_nop 0")
    A(f"v_add_f32 v{vACC2}, 1.0, v{vACC2}")
    A(f"v_rcp_f32 v{vACC2}, v{vACC2}")
    A("s_nop 0")
    rbf(vACC2)
    A(f"s_lshl_b32 s{sTMP}, s{sTMP3}, 2")
    A(f"v_add_u32 v{vTMP2}, s{sTMP}, v9")
    A("s_mov_b64 exec, 1")
    A(f"ds_write_b32 v{vTMP2}, v{vACC2} offset:{F_G}")
    A("s_mov_b64 exec, -1")
    A("L_nogate:")
    A(f"s_lshl_b32 s{sTMP}, s{sBB}, 5")
    A(f"s_lshl_b32 s{sTMP2}, s{sG}, 3")
    A(f"s_add_u32 s{sTMP}, s{sTMP}, s{sTMP2}")
    A(f"s_add_u32 s{sTMP}, s{sTMP}, s{sC}")
    A(f"s_lshl_b32 s{sTMP}, s{sTMP}, 11")
    ws_addr(sGA, WS_QP, sTMP)
    A(f"s_lshl_b32 s{sTMP}, s{sSPL}, 7")
    A(f"s_add_u32 s{sGB}, s{sGA}, s{sTMP}")
    A(f"s_addc_u32 s{sGB+1}, s{sGA+1}, 0")
    def kfrags():
        A(f"v_and_b32 v{vTMP}, 15, v0")
        A(f"v_lshrrev_b32 v{vTMP2}, 2, v{vTMP}")
        A(f"v_and_b32 v{vTMP3}, 3, v0")
        A(f"v_lshl_add_u32 v{vTMP2}, v{vTMP2}, 3, v{vTMP3}")
        A(f"v_lshlrev_b32 v{vWA}, 8, v{vTMP2}")
        A(f"v_lshrrev_b32 v{vTMP2}, 5, v0")
        A(f"v_and_b32 v{vTMP3}, 7, v0")
        A(f"v_xor_b32 v{vTMP2}, v{vTMP2}, v{vTMP3}")
        A(f"v_lshl_or_b32 v{vWA}, v{vTMP2}, 5, v{vWA}")
        A(f"v_and_b32 v{vTMP2}, 16, v0")
        A(f"v_or_b32 v{vWA}, v{vWA}, v{vTMP2}")
        A(f"s_lshl_b32 s{sTMP}, s{sC}, 13")
        A(f"v_add_u32 v{vWA}, s{sTMP}, v{vWA}")
        A(f"s_add_u32 s{sTMP2}, s{sC}, 1")
        wait_prog(True, sTMP2)
        for db in range(4):
            if db: A(f"v_xor_b32 v{vAA}, {64*db}, v{vWA}")
            a = vAA if db else vWA
            A(f"ds_read_b128 v[{vK+4*db}:{vK+4*db+3}], v{a}")
            A(f"ds_read_b128 v[{vK+16+4*db}:{vK+16+4*db+3}], v{a} offset:1024")
        signal(F_FREE)
    kfrags()
    stamp(2)
    vQA = vW
    A(f"v_and_b32 v{vQA}, 30, v0")
    A(f"v_lshlrev_b32 v{vQA}, 6, v{vQA}")
    A(f"v_and_b32 v{vTMP3}, 1, v0")
    A(f"v_lshl_or_b32 v{vQA}, v{vTMP3}, 3, v{vQA}")
    A(f"v_lshrrev_b32 v{vTMP3}, 5, v0")
    A(f"v_lshl_or_b32 v{vQA}, v{vTMP3}, 2, v{vQA}")
    A(f"s_lshl_b32 s{sTMP}, s{sC}, 4")
    A(f"s_add_u32 s{sTMP}, s{sTMP}, {QF}")
    A(f"v_add_u32 v{vQA}, s{sTMP}, v{vQA}")
    A(f"v_add_u32 v{vAA}, {QF}, v{vACT}")
    wait_prog(False, opt.qgate)
    if opt.sample & 1:
        sample(sGB, [512*i + 64 for i in range(4)], sleep=opt.qsleep, cntstamp=10)
    stamp(3)
    gather(nld=2, cntstamp=11, sleep=opt.gsleep)
    stamp(4)
    for r in range(4): A(f"v_add_f32 v{vGA+r}, v{vGA+r}, v{vGA+4+r}")
    A("s_nop 0")
    A(f"v_permlane32_swap_b32 v{vGA}, v{vGA+2}")
    A(f"v_permlane32_swap_b32 v{vGA+1}, v{vGA+3}")
    A(f"v_add_f32 v{vGA}, v{vGA}, v{vGA+2}")
    A(f"v_add_f32 v{vGA+1}, v{vGA+1}, v{vGA+3}")
    A(f"v_cvt_pk_bf16_f32 v{vGA}, v{vGA}, v{vGA+1}")
    A(f"ds_write_b32 v{vQA}, v{vGA}")
    signal(F_BQ)
    A(f"v_and_b32 v{vTMP3}, 7, v0")
    A(f"v_lshl_add_u32 v{vTMP3}, v{vTMP3}, 2, v9")
    cwait(F_BQ, 8)
    for kb in range(4):
        A(f"ds_read_b128 v[{vQ+4*kb}:{vQ+4*kb+3}], v{vAA} offset:{512*kb}")
    for db in range(4):
        A(f"s_waitcnt lgkmcnt({3-db})")
        c0 = "0" if db == 0 else f"v[{vACC}:{vACC+3}]"
        c1 = "0" if db == 0 else f"v[{vACC2}:{vACC2+3}]"
        A(f"v_mfma_f32_16x16x32_bf16 v[{vACC}:{vACC+3}], v[{vK+4*db}:{vK+4*db+3}], v[{vQ+4*db}:{vQ+4*db+3}], {c0}")
        A(f"v_mfma_f32_16x16x32_bf16 v[{vACC2}:{vACC2+3}], v[{vK+16+4*db}:{vK+16+4*db+3}], v[{vQ+4*db}:{vQ+4*db+3}], {c1}")
    cbits = struct.unpack("<I", struct.pack("<f", math.log2(math.e) / math.sqrt(128.0)))[0]
    A(f"s_lshl_b32 s{sTMP}, s{sC}, 9")
    A(f"s_add_u32 s{sTMP}, s{sTMP}, {PF}")
    A(f"v_add_u32 v{vQA}, s{sTMP}, v{vACT}")
    A(f"v_add_u32 v{vAA}, {PF}, v{vACT}")
    A(f"s_mov_b32 s{sTMP2}, {cbits:#x}")
    A("s_nop 3")
    A(f"v_max3_f32 v{vTMP2}, v{vACC}, v{vACC+1}, v{vACC+2}")
    A(f"v_max3_f32 v{vTMP2}, v{vTMP2}, v{vACC+3}, v{vACC2}")
    A(f"v_max3_f32 v{vTMP2}, v{vTMP2}, v{vACC2+1}, v{vACC2+2}")
    A(f"v_max_f32 v{vTMP2}, v{vTMP2}, v{vACC2+3}")
    A("s_mov_b32 exec_lo, 0x00ff00ff\ns_mov_b32 exec_hi, 0x00ff00ff")
    A(f"ds_max_f32 v{vTMP3}, v{vTMP2} offset:{F_MAX}")
    A("s_mov_b64 exec, -1")
    signal(F_BM)
    cwait(F_BM, 8)
    vM = vLS
    A(f"ds_read_b32 v{vM}, v{vTMP3} offset:{F_MAX}")
    A("s_waitcnt lgkmcnt(0)")
    A(f"v_mul_f32 v{vM}, s{sTMP2}, v{vM}")
    for r in range(8):
        A(f"v_fma_f32 v{vACC+r}, v{vACC+r}, s{sTMP2}, -v{vM}")
    for r in range(8):
        A(f"v_exp_f32 v{vACC+r}, v{vACC+r}")
    A("s_nop 0")
    for r in range(4):
        A(f"v_cvt_pk_bf16_f32 v{vB+r}, v{vACC+2*r}, v{vACC+2*r+1}")
    A(f"ds_write_b128 v{vQA}, v[{vB}:{vB+3}]")
    signal(F_BP)
    for r in range(4): A(f"v_mov_b32 v{vW+r}, 0x3f803f80")
    cwait(F_BP, 8)
    for kb in range(8):
        A(f"ds_read_b128 v[{vQ+4*kb}:{vQ+4*kb+3}], v{vAA} offset:{512*kb}")
    for kb in range(8):
        A(f"s_waitcnt lgkmcnt({7-kb})")
        c1 = "0" if kb == 0 else f"v[{vACC2}:{vACC2+3}]"
        A(f"v_mfma_f32_16x16x32_bf16 v[{vACC2}:{vACC2+3}], v[{vW}:{vW+3}], v[{vQ+4*kb}:{vQ+4*kb+3}], {c1}")
    stamp(5)
    pub_voff(14)
    A(f"v_add_u32 v{vWA}, {RB}, v{vTR}")
    A(f"s_lshl_b32 s{sTMP}, s{sG}, 17")
    A(f"s_lshr_b32 s{sTMP2}, s{sC}, 1")
    A(f"s_lshl_b32 s{sTMP2}, s{sTMP2}, 12")
    A(f"s_add_u32 s{sTMP}, s{sTMP}, s{sTMP2}")
    A(f"s_lshl_b32 s{sTMP2}, s{sSPL}, 10")
    A(f"s_add_u32 s{sTMP}, s{sTMP}, s{sTMP2}")
    A(f"s_and_b32 s{sTMP2}, s{sC}, 1")
    A(f"s_lshl_b32 s{sTMP2}, s{sTMP2}, 9")
    A(f"s_add_u32 s{sTMP}, s{sTMP}, s{sTMP2}")
    A(f"s_lshl_b32 s{sTMP2}, s{sBB}, 6")
    A(f"s_add_u32 s{sTMP}, s{sTMP}, s{sTMP2}")
    ws_addr(sGA, WS_OP, sTMP)
    vRL = vLS + 2
    A(f"v_log_f32 v{vLS+1}, v{vACC2}")
    A(f"v_rcp_f32 v{vRL}, v{vACC2}")
    A(f"s_cmp_lg_u32 s{sC}, 0")
    A("s_cbranch_scc1 L_nolse")
    A(f"v_add_f32 v{vM}, v{vM}, v{vLS+1}")
    A(f"v_mov_b32 v{vLS+1}, s{sT}")
    A(f"s_lshl_b32 s{sTMP}, s{sG}, 11")
    A(f"s_lshl_b32 s{sTMP2}, s{sBB}, 5")
    A(f"s_add_u32 s{sTMP}, s{sTMP}, s{sTMP2}")
    A(f"s_lshl_b32 s{sTMP2}, s{sSPL}, 3")
    A(f"s_add_u32 s{sTMP}, s{sTMP}, s{sTMP2}")
    ws_addr(sGB, WS_LSE, sTMP)
    A(f"v_lshlrev_b32 v{vTMP2}, 8, v0")
    A("s_mov_b64 exec, 0xff")
    A(f"global_store_dwordx2 v{vTMP2}, v[{vLS}:{vLS+1}], s[{sGB}:{sGB+1}] sc1")
    A("s_mov_b64 exec, -1")
    A("L_nolse:")
    refresh_prog()
    A(f"s_cmp_lt_u32 s{sPROG}, 16")
    A("s_cbranch_scc1 L_pv_slow")
    wreads(0, 7)
    for kb in range(7):
        A(f"s_waitcnt lgkmcnt({14-2*kb if kb else 12})")
        if kb == 0: wreads(7, 8)
        mf(kb, kb == 0)
    A("s_branch L_pv_last")
    A("L_pv_slow:")
    for kb in range(8):
        wait_prog(False, 8 + kb + 1)
        wreads(kb, kb+1)
        if kb:
            A("s_waitcnt lgkmcnt(2)")
            mf(kb-1, kb == 1)
    A("L_pv_last:")
    A("s_waitcnt lgkmcnt(0)")
    mf(7, False)
    A("s_nop 7")
    for r in range(4): A(f"v_mul_f32 v{vACC+r}, v{vACC+r}, v{vRL}")
    publish(vACC)
    stamp(6)
    vRG, vRW, vRR, vOUT, vONE = 116, 117, 118, 119, vW + 2
    sRA = 12
    A(f"s_and_b32 s{sTMP2}, s{sR}, 1")
    A(f"s_lshl_b32 s{sTMP2}, s{sTMP2}, 4")
    A(f"v_and_b32 v{vTMP2}, 12, v0")
    A(f"v_add3_u32 v{vTMP2}, v{vTMP2}, s{sTMP2}, v9")
    A(f"ds_read_b32 v{vRG}, v{vTMP2} offset:{F_G}")
    A(f"s_lshl_b32 s{sTMP}, s{sXCD}, 4")
    A(f"s_add_u32 s{sTMP}, s{sTMP}, s{sR}")
    A(f"s_sub_u32 s{sTMP3}, s{sTMP}, 16")
    A(f"s_lshl_b32 s{sTMP}, s{sTMP3}, 3")
    A(f"s_add_u32 s{sTMP}, s{sTMP}, s{sC}")
    A(f"s_lshl_b32 s{sTMP}, s{sTMP}, 10")
    ws_addr(sRA, WS_FP, sTMP)
    A(f"v_lshlrev_b32 v{vRR}, 2, v0")
    A(f"v_add_u32 v{vRR}, {RS}, v{vRR}")
    A(f"s_lshl_b32 s{sTMP}, s{sC}, 8")
    A(f"v_add_u32 v{vRW}, s{sTMP}, v{vRR}")
    A(f"v_and_b32 v{vOUT}, 12, v0")
    A(f"v_lshlrev_b32 v{vOUT}, 9, v{vOUT}")
    A(f"v_and_b32 v{vTMP2}, 3, v0")
    A(f"v_lshl_or_b32 v{vOUT}, v{vTMP2}, 3, v{vOUT}")
    A(f"v_lshrrev_b32 v{vTMP2}, 4, v0")
    A(f"v_lshl_or_b32 v{vOUT}, v{vTMP2}, 1, v{vOUT}")
    A(f"s_lshl_b32 s{sTMP2}, s{sTMP2}, 9")
    A(f"s_lshr_b32 s{sTMP3}, s{sTMP3}, 1")
    A(f"s_lshl_b32 s{sTMP3}, s{sTMP3}, 5")
    A(f"s_add_u32 s{sTMP2}, s{sTMP2}, s{sTMP3}")
    A(f"v_add_u32 v{vOUT}, s{sTMP2}, v{vOUT}")
    A(f"v_mov_b32 v{vONE}, 1")
    A("s_waitcnt lgkmcnt(0)")
    A(f"s_cmp_lt_u32 s{sC}, 4")
    A("s_cbranch_scc1 L_wg_done")
    A(f"v_sub_f32 v{vRG}, 1.0, v{vRG}")
    rbf(vRG)
    A("L_wg_done:")
    A(f"s_cmp_eq_u32 s{sROLE}, 3")
    A("s_cbranch_scc1 L_reduce_early")
    A(f"s_lshl_b32 s{sTMP}, s{sRBK}, 3")
    A(f"s_add_u32 s{sTMP}, s{sTMP}, s{sC}")
    A(f"s_lshl_b32 s{sTMP}, s{sTMP}, 12")
    ws_addr(sGA, WS_GP, sTMP)
    af_addr()
    fp_addr(16)
    A(f"v_mov_b32 v{vWA}, v{vTR}")
    if opt.nprem:
        wait_prog(False, 16 + opt.nprem)
        wreads(0, opt.nprem)
    if opt.sample & 8:
        A(f"s_lshl_b32 s{sTMP}, s{sCB}, 6")
        A(f"s_add_u32 s{sGB}, s{sGA}, s{sTMP}")
        A(f"s_addc_u32 s{sGB+1}, s{sGA+1}, 0")
        sample(sGB, [1024*i + 512 for i in range(4)], sleep=opt.hsleep, cntstamp=12)
    stamp(7)
    gather(cntstamp=13, sleep=opt.gsleep)
    stamp(8)
    for r in range(4):
        A(f"v_add_f32 v{vGA+r}, v{vGA+r}, v{vGA+4+r}")
        A(f"v_add_f32 v{vGA+8+r}, v{vGA+8+r}, v{vGA+12+r}")
    for r in range(4): A(f"v_max_f32 v{vGA+r}, 0, v{vGA+r}")
    A(f"v_cvt_pk_bf16_f32 v{vGA+4}, v{vGA}, v{vGA+1}")
    A(f"v_cvt_pk_bf16_f32 v{vGA+5}, v{vGA+2}, v{vGA+3}")
    A(f"v_cvt_pk_bf16_f32 v{vGA+6}, v{vGA+8}, v{vGA+9}")
    A(f"v_cvt_pk_bf16_f32 v{vGA+7}, v{vGA+10}, v{vGA+11}")
    for h in range(2):
        A(f"v_lshlrev_b32 v{vGA+2*h}, 16, v{vGA+4+h}")
        A(f"v_and_b32 v{vGA+2*h+1}, 0xffff0000, v{vGA+4+h}")
        A(f"v_lshlrev_b32 v{vGA+8+2*h}, 16, v{vGA+6+h}")
        A(f"v_and_b32 v{vGA+8+2*h+1}, 0xffff0000, v{vGA+6+h}")
    for r in range(4): A(f"v_mul_f32 v{vGA+r}, v{vGA+r}, v{vGA+8+r}")
    A(f"v_cvt_pk_bf16_f32 v{vGA}, v{vGA}, v{vGA+1}")
    A(f"v_cvt_pk_bf16_f32 v{vGA+1}, v{vGA+2}, v{vGA+3}")
    A(f"ds_write_b64 v{vAFW}, v[{vGA}:{vGA+1}]")
    signal(F_BA)
    late(16, opt.nprem, "M")
    if not (opt.sample & 4): A("s_branch L_reduce")
    A("L_reduce_early:")
    A(f"s_cmp_eq_u32 s{sC}, 7")
    A(f"s_cselect_b32 s{sTMP}, 512, 0")
    A(f"s_sub_u32 s{sGB}, s{sRA}, s{sTMP}")
    A(f"s_subb_u32 s{sGB+1}, s{sRA+1}, 0")
    sample(sGB, [256*i + 192 for i in range(4)], sleep=opt.fsleep, cntstamp=None if opt.stq else 10)
    A("L_reduce:")
    A(f"s_mov_b32 s{sGA}, s{sRA}\ns_mov_b32 s{sGA+1}, s{sRA+1}")
    for r in range(4): A(f"v_mov_b32 v{vGA+r}, 0")
    A(f"s_cmp_eq_u32 s{sC}, 7")
    A(f"s_cselect_b32 exec_hi, 0, -1")
    if not opt.stq: stamp(2)
    gather(nld=1, cntstamp=None if opt.stq else 11, sleep=opt.fgsleep)
    A("s_mov_b32 exec_hi, -1")
    if not opt.stq: stamp(3)
    A(f"v_permlane32_swap_b32 v{vGA}, v{vGA+2}")
    A(f"v_permlane32_swap_b32 v{vGA+1}, v{vGA+3}")
    A(f"v_add_f32 v{vGA}, v{vGA}, v{vGA+2}")
    A(f"v_add_f32 v{vGA+1}, v{vGA+1}, v{vGA+3}")
    A("s_nop 1")
    A(f"v_permlane16_swap_b32 v{vGA}, v{vGA+1}")
    A(f"v_add_f32 v{vGA}, v{vGA}, v{vGA+1}")
    A(f"v_mul_f32 v{vGA}, v{vGA}, v{vRG}")
    A(f"ds_write_b32 v{vRW}, v{vGA}")
    A("s_mov_b64 exec, 1")
    A(f"ds_add_rtn_u32 v{vTMP}, v9, v{vONE} offset:{F_RED}")
    A("s_mov_b64 exec, -1")
    for i in range(4):
        A(f"ds_read2st64_b32 v[{vGA+2*i}:{vGA+2*i+1}], v{vRR} offset0:{2*i} offset1:{2*i+1}")
    A("s_waitcnt lgkmcnt(4)")
    A(f"v_readfirstlane_b32 s{sTMP}, v{vTMP}")
    A(f"s_cmp_lg_u32 s{sTMP}, 7")
    A("s_cbranch_scc1 L_exit")
    A("s_waitcnt lgkmcnt(0)")
    A(f"v_pk_add_f32 v[{vGA}:{vGA+1}], v[{vGA}:{vGA+1}], v[{vGA+2}:{vGA+3}]")
    A(f"v_pk_add_f32 v[{vGA+4}:{vGA+5}], v[{vGA+4}:{vGA+5}], v[{vGA+6}:{vGA+7}]")
    A(f"v_pk_add_f32 v[{vGA}:{vGA+1}], v[{vGA}:{vGA+1}], v[{vGA+4}:{vGA+5}]")
    A(f"v_add_f32 v{vGA}, v{vGA}, v{vGA+1}")
    A(f"v_cvt_pk_bf16_f32 v{vGA}, v{vGA}, v{vGA}")
    A(f"global_store_short v{vOUT}, v{vGA}, s[{sOUT}:{sOUT+1}] {opt.outflags}")
    A(f"s_cmp_lg_u32 s2, 128")
    A("s_cbranch_scc1 L_noepoch")
    A("s_mov_b64 exec, 1")
    A(f"v_mov_b32 v{vTMP}, 0")
    A(f"global_store_dword v{vTMP}, v{vT}, s[{sWS}:{sWS+1}] sc1")
    A("s_mov_b64 exec, -1")
    A("L_noepoch:")
    if opt.fixdur:
        A(f"s_cmp_lg_u32 s2, {opt.fixwg}")
        A("s_cbranch_scc1 L_nofix")
        A("L_fix:")
        A("s_memrealtime s[14:15]")
        A("s_waitcnt lgkmcnt(0)")
        A("s_sub_u32 s14, s14, s100")
        A(f"s_cmp_lt_u32 s14, {opt.fixdur}")
        A("s_cbranch_scc1 L_fix")
        A("L_nofix:")
    if STAMP:
        A("s_waitcnt vmcnt(0)")
        stamp(1)

    A("L_exit:")
    if STAMP:
        A("s_waitcnt lgkmcnt(0)")
        A(f"s_mul_i32 s{sTMP}, s2, 9")
        A(f"s_add_u32 s{sTMP}, s{sTMP}, s3")
        A(f"s_lshl_b32 s{sTMP}, s{sTMP}, 6")
        A(f"s_add_u32 s{sTMP}, s{sTMP}, {WS_STAMP}")
        A(f"v_mov_b32 v1, s{sTMP}")
        A("s_mov_b64 exec, 1")
        for i in range(NST):
            A(f"v_mov_b32 v2, s{sST+2*i}")
            A(f"global_store_dword v1, v2, s[{sWS}:{sWS+1}] offset:{4*i}")
        A(f"v_mov_b32 v2, s{sROLE}")
        A(f"global_store_dword v1, v2, s[{sWS}:{sWS+1}] offset:60")
    A("L_end:")
    A("s_endpgm")

    body = "\n".join(g.o)
    txt = HEADER
    txt += f"; @launch grid=(256,1,1) block=(576,1,1) lds={LDS_BYTES}\n"
    txt += f""".amdgcn_target "amdgcn-amd-amdhsa--gfx950"
.text
.globl {KNAME}
.p2align 8
.type {KNAME},@function
{KNAME}:
{body}
.section .rodata,"a"
.p2align 6
.amdhsa_kernel {KNAME}
  .amdhsa_next_free_vgpr {NV}
  .amdhsa_next_free_sgpr 102
  .amdhsa_accum_offset {NV}
  .amdhsa_group_segment_fixed_size 0
  .amdhsa_kernarg_size 104
  .amdhsa_user_sgpr_count 2
  .amdhsa_user_sgpr_kernarg_segment_ptr 1
  .amdhsa_system_sgpr_workgroup_id_x 1
.end_amdhsa_kernel
"""
    return txt

def parse(argv):
    ap = argparse.ArgumentParser()
    ap.add_argument("--nt", default="nt")
    ap.add_argument("--pb", default="32:24")
    ap.add_argument("--pc", default="8:24,d,8:8")
    ap.add_argument("--pm", default="16:20,8:16")
    ap.add_argument("--stamp", type=int, default=0)
    ap.add_argument("--qgate", type=int, default=8)
    ap.add_argument("--ogate", type=int, default=24)
    ap.add_argument("--nprem", type=int, default=8)
    ap.add_argument("--npreb", type=int, default=2)
    ap.add_argument("--cbshift", type=int, default=2)
    ap.add_argument("--hsleep", type=int, default=1)
    ap.add_argument("--maxpoll", type=int, default=100000)
    ap.add_argument("--qsleep", type=int, default=4)
    ap.add_argument("--lsleep", type=int, default=2)
    ap.add_argument("--fsleep", type=int, default=1)
    ap.add_argument("--gsleep", type=int, default=0)
    ap.add_argument("--fgsleep", type=int, default=0)
    ap.add_argument("--sample", type=int, default=9)
    ap.add_argument("--outflags", default="")
    ap.add_argument("--fixdur", type=int, default=0)
    ap.add_argument("--fixwg", type=int, default=128)
    ap.add_argument("--nocomm", type=int, default=0)
    ap.add_argument("--rot", type=int, default=3)
    ap.add_argument("--dbg", type=int, default=0)
    ap.add_argument("--spin", type=int, default=0)
    ap.add_argument("--cpf", type=int, default=1)
    ap.add_argument("--stq", type=int, default=0)
    ap.add_argument("--ggate", type=int, default=1)
    ap.add_argument("-o", default=None)
    return ap.parse_args(argv)

if __name__ == "__main__":
    opt = parse(sys.argv[1:])
    t = gen(opt)
    if opt.o: open(opt.o, "w").write(t)
    else: print(t)
```

```python
import sys, argparse, struct, math

KNAME = "gated_mix__sliding_block_cached__glu_gated_reglu__decode_kernel"
HEADER = open("gated_mix__sliding_block_cached__glu_gated_reglu__decode.s.ref").read().split("; Override launch")[0]

RA = 0
RB = 65536
XA = 131072
XF = XA
QF = XA
PF = XA + 2048
RS = XA + 6144
AF = XA + 12288
FL = XA + 16384
F_PROG, F_LRDY, F_QRDY, F_WRDY, F_BQ, F_BM, F_BP, F_BA, F_RED, F_PUB0, F_PUB1, F_FREE0, F_FREE1 = [4*i for i in range(13)]
F_MAX = 64
F_G = 96
F_WT = 128
LDS_BYTES = FL + 128 + 256

WS_QP = 1 << 20
WS_OP = 2 << 20
WS_LSE = (2 << 20) + (512 << 10)
WS_GP = 3 << 20
WS_FP = 4 << 20
WS_QFL = 5 << 20
WS_OFL = WS_QFL + 4096
WS_HFL = WS_QFL + 8192
WS_STAMP = 8 << 20

class G:
    def __init__(self):
        self.o = []; self.nlab = 0
    def A(self, s):
        for line in s.split("\n"):
            self.o.append("    " + line.strip() if not line.strip().endswith(":") else line.strip())
    def lab(self, p="L"):
        self.nlab += 1
        return f"{p}_{self.nlab}"

def plan(s):
    out = []
    for t in s.split(","):
        if t == "d": out.append("d")
        else:
            a, b = t.split(":"); out.append((int(a), int(b)))
    return out

def gen(opt):
    g = G(); A = g.A
    NT = opt.nt
    STAMP = opt.stamp
    sX, sK, sV, sWQ, sWO, sBX, sWG, sWU = [16+2*i for i in range(8)]
    sWD, sGW, sOUT, sDBG = 32, 34, 36, 38
    sWS = 40
    sXCD, sR, sROLE = 42, 43, 44
    sU, sBETA, sG, sSPL, sRBK, sCB, sBB = 45, 46, 47, 48, 49, 50, 51
    sWDN = 52
    sT = 54
    sT0, sT1, sT2, sT3 = 54, 56, 57, 53
    sSEL0, sSEL1, sSEL2, sSEL3 = 58, 59, 60, 61
    sPROG, sC = 62, 63
    sTMP, sTMP2, sTMP3, sCNT = 64, 65, 66, 67
    sGA, sGB = 68, 70
    sROT = 15
    sSM = 4
    sST = 72
    NST = 14
    SRD = 8
    def stamp(idx):
        if STAMP: A(f"s_memrealtime s[{sST+2*idx}:{sST+2*idx+1}]")
    def stampval(idx, sreg):
        if STAMP: A(f"s_mov_b32 s{sST+2*idx}, s{sreg}")
    pb, pc, pm = plan(opt.pb), plan(opt.pc), plan(opt.pm)
    NB0B, NB0M = opt.nb0b, opt.nb0m

    stamp(0)
    if opt.fixdur: A("s_memrealtime s[100:101]")
    A("s_load_dwordx16 s[16:31], s[0:1], 0")
    A("s_load_dwordx8 s[32:39], s[0:1], 64")
    A("s_load_dwordx2 s[40:41], s[0:1], 96")
    A(f"s_cmp_ge_u32 s2, 256")
    A("s_cbranch_scc1 L_end")
    A("v_lshrrev_b32 v1, 6, v0")
    A("v_and_b32 v0, 63, v0")
    A("v_readfirstlane_b32 s3, v1")
    A(f"s_and_b32 s{sXCD}, s2, 7")
    A(f"s_lshr_b32 s{sR}, s2, 3")
    A(f"s_lshr_b32 s{sG}, s{sXCD}, 1")
    A(f"s_and_b32 s{sTMP3}, s{sXCD}, 1")
    A(f"s_add_u32 s{sROT}, s{sR}, s{sXCD}")
    A(f"s_lshl_b32 s{sTMP}, s{sXCD}, 1")
    A(f"s_sub_u32 s{sTMP}, s{sR}, s{sTMP}")
    A(f"s_sub_u32 s{sTMP}, s{sTMP}, 4")
    A(f"s_bfe_u32 s{sTMP2}, s{sTMP}, 0x20002")
    A(f"s_and_b32 s{sTMP}, s{sTMP}, 3")
    A(f"s_lshl2_add_u32 s{sU}, s{sTMP}, s{sTMP2}")
    A(f"s_bfe_u32 s{sBB}, s{sR}, 0x20002")
    A(f"s_lshl2_add_u32 s{sBB}, s{sTMP3}, s{sBB}")
    A(f"s_and_b32 s{sSPL}, s{sR}, 3")
    A("s_cmp_lg_u32 s3, 0")
    A("s_cbranch_scc1 L_notloader")
    sSOFF, sSTEP, sNB, sBLK = 4, 5, 6, 7
    sIDX, sWRAP, sBASE = 12, 13, 14
    A("s_setprio 3")
    A(f"v_mov_b32 v9, {FL}")
    A("v_mov_b32 v10, 0xff7fffff")
    A("v_cmp_gt_u32 vcc, 16, v0")
    A("v_lshl_add_u32 v11, v0, 2, v9")
    A("v_lshrrev_b32 v2, 4, v0")
    A("v_cndmask_b32 v10, v10, 0, vcc")
    A("ds_write_b32 v11, v10")
    A("v_bfe_u32 v3, v0, 1, 3")
    A("v_xor_b32 v3, v3, v2")
    A("v_lshlrev_b32 v3, 5, v3")
    A("v_and_b32 v4, 1, v0")
    A("v_lshl_or_b32 v3, v4, 4, v3")
    A("v_xor_b32 v4, 0x80, v3")
    A(f"s_mov_b32 s{SRD+3}, 0x20000")
    A(f"s_cmp_ge_u32 s{sR}, 16")
    A("s_cbranch_scc1 L_top_M")
    A(f"s_and_b32 s{sROT}, s{sROT}, 6")
    A(f"s_lshr_b32 s{sTMP}, s{sU}, 3")
    A(f"s_lshl1_add_u32 s{sTMP3}, s{sTMP3}, s{sTMP}")
    A(f"s_and_b32 s{sTMP}, s{sU}, 7")
    A(f"s_lshl3_add_u32 s{sTMP}, s{sG}, s{sTMP}")
    A(f"s_lshl_b32 s{sTMP}, s{sTMP}, 8")
    A(f"s_lshl_b32 s{sBASE}, s{sTMP3}, 21")
    A(f"s_add_u32 s{sBASE}, s{sBASE}, s{sTMP}")
    A(f"s_mov_b32 s{sTMP2}, 13")
    A(f"s_mov_b32 s{SRD+2}, {1024*4096*2}")
    A(f"s_mov_b32 s{sNB}, {NB0B}")
    A("s_waitcnt lgkmcnt(0)")
    A(f"s_mov_b64 s[{SRD}:{SRD+1}], s[{sWQ}:{sWQ+1}]")
    A("s_branch L_top_go")
    A("L_top_M:")
    A(f"s_and_b32 s{sROT}, s{sROT}, 7")
    A(f"s_lshl2_add_u32 s{sBASE}, s{sBB}, s{sG}")
    A(f"s_lshl4_add_u32 s{sBASE}, s{sBASE}, s{sSPL}")
    A(f"s_add_u32 s{sBASE}, s{sBASE}, 12")
    A(f"s_lshl_b32 s{sBASE}, s{sBASE}, 16")
    A(f"s_mov_b32 s{sTMP2}, 8")
    A(f"s_mov_b32 s{SRD+2}, {8*4*4096*128*2}")
    A(f"s_mov_b32 s{sNB}, {NB0M}")
    A("s_waitcnt lgkmcnt(0)")
    A(f"s_mov_b64 s[{SRD}:{SRD+1}], s[{sK}:{sK+1}]")
    A("L_top_go:")
    A(f"v_lshl_add_u32 v5, v2, s{sTMP2}, v3")
    A(f"v_lshl_add_u32 v6, v2, s{sTMP2}, v4")
    A(f"s_lshl_b32 s{sSTEP}, 4, s{sTMP2}")
    A(f"s_lshl_b32 s{sWRAP}, s{sSTEP}, 6")
    A(f"s_lshl_b32 s{sTMP}, s{sROT}, 5")
    A(f"s_lshl_b32 s{sTMP}, s{sTMP}, s{sTMP2}")
    A(f"s_add_u32 s{sSOFF}, s{sBASE}, s{sTMP}")
    A(f"s_mov_b32 s{sIDX}, s{sROT}")
    A(f"s_mov_b32 m0, {RA}")
    A(f"s_mov_b32 s{sBLK}, s{sNB}")
    A("s_barrier")
    def blk_body(win, rot):
        ph = (win // 4) & 1 if win is not None else 0
        back = (win - 4*ph) // 8 if win is not None else 0
        for half in range(2):
            if win is not None:
                if half == ph:
                    A(f"s_sub_u32 s{sTMP}, s{sBLK}, {back}")
                    A(f"s_max_i32 s{sPROG}, s{sTMP}, s{sPROG}")
                    A(f"v_mov_b32 v10, s{sPROG}")
                A(f"s_waitcnt vmcnt({win})")
                if half == ph: A(f"ds_write_b32 v9, v10 offset:{F_PROG}")
            for i in range(4):
                v = 5 if ((i >> 1) & 1) == 0 else 6
                A(f"buffer_load_dwordx4 v{v}, s[{SRD}:{SRD+3}], s{sSOFF} offen {NT} lds")
                A(f"s_add_u32 m0, m0, 1024")
                A(f"s_add_u32 s{sSOFF}, s{sSOFF}, s{sSTEP}")
        if rot:
            A(f"s_add_u32 s{sIDX}, s{sIDX}, 1")
            A(f"s_and_b32 s{sIDX}, s{sIDX}, 7")
            A(f"s_cselect_b32 s{sTMP}, 0, s{sWRAP}")
            A(f"s_sub_u32 s{sSOFF}, s{sSOFF}, s{sTMP}")
    A("L_top_loop:")
    blk_body(None, True)
    A(f"s_sub_u32 s{sNB}, s{sNB}, 1")
    A(f"s_cmp_lg_u32 s{sNB}, 0")
    A("s_cbranch_scc1 L_top_loop")
    A("s_branch L_loader2")
    A("L_notloader:")
    if opt.cpf:
        A(f"s_cmp_gt_u32 s3, {opt.cpf}")
        A("s_cbranch_scc1 L_cpf_done")
        A("s_getpc_b64 s[4:5]")
        A("L_pc:")
        A(f"s_lshl_b32 s{sTMP}, s3, 13")
        A(f"s_sub_u32 s{sTMP}, s{sTMP}, 8192")
        A(f"v_lshl_add_u32 v1, v0, 7, s{sTMP}")
        A(f"v_cmp_gt_u32 vcc, L_end-L_pc, v1")
        A("s_and_saveexec_b64 s[6:7], vcc")
        A("s_cbranch_execz L_cpf_done2")
        A(f"global_load_dword v127, v1, s[4:5]")
        A("L_cpf_done2:")
        A("s_mov_b64 exec, -1")
        A("L_cpf_done:")
    A("s_barrier")
    A("s_branch L_cons")

    def decode2():
        d = g.lab("L_d2"); m = g.lab("L_d2m")
        if STAMP:
            for i in range(1, NST): A(f"s_mov_b32 s{sST+2*i}, 0")
        A(f"s_mul_i32 s{sBETA}, s{sXCD}, 14")
        A(f"s_add_u32 s{sBETA}, s{sBETA}, s{sR}")
        A(f"s_mov_b32 s{sPROG}, 0")
        A(f"s_cmp_ge_u32 s{sR}, 16")
        A(f"s_cbranch_scc1 {m}")
        A(f"s_cmp_ge_u32 s{sR}, 14")
        A(f"s_cselect_b32 s{sROLE}, 2, 1")
        A(f"s_lshr_b32 s{sTMP}, s{sU}, 3")
        A(f"s_lshl1_add_u32 s{sRBK}, s{sXCD}, s{sTMP}")
        A(f"s_add_u32 s{sTMP}, s{sU}, 3")
        A(f"s_and_b32 s{sTMP}, s{sTMP}, 3")
        A(f"s_and_b32 s{sCB}, s{sU}, 4")
        A(f"s_or_b32 s{sCB}, s{sCB}, s{sTMP}")
        A(f"s_branch {d}")
        A(f"{m}:")
        A(f"s_cmp_ge_u32 s{sR}, 30")
        A(f"s_cselect_b32 s{sROLE}, 3, 0")
        A(f"s_sub_u32 s{sTMP}, s{sBETA}, 16")
        A(f"s_lshr_b32 s{sRBK}, s{sTMP}, 3")
        A(f"s_and_b32 s{sCB}, s{sTMP}, 7")
        A(f"{d}:")

    A("L_loader2:")
    decode2()
    stamp(1)
    def lds_wait_ge(off, val, vtmp="v11", vaddr="v9", sleep=0):
        l = g.lab("L_w")
        A(f"{l}:")
        if sleep: A(f"s_sleep {sleep}")
        A(f"ds_read_b32 {vtmp}, {vaddr} offset:{off}")
        A("s_waitcnt lgkmcnt(0)")
        A(f"v_readfirstlane_b32 s{sTMP}, {vtmp}")
        A(f"s_cmp_ge_u32 s{sTMP}, {val}")
        A(f"s_cbranch_scc0 {l}")
    def blk_loop(nblk, win, rot):
        l = g.lab("L_ld")
        if nblk > 1:
            A(f"s_mov_b32 s{sNB}, {nblk}")
            A(f"{l}:")
        blk_body(win, rot)
        A(f"s_add_u32 s{sBLK}, s{sBLK}, 1")
        if nblk > 1:
            A(f"s_sub_u32 s{sNB}, s{sNB}, 1")
            A(f"s_cmp_lg_u32 s{sNB}, 0")
            A(f"s_cbranch_scc1 {l}")
    def drain(maxwin):
        for k in range((maxwin + 4 + 7)//8 - 1, -1, -1):
            A(f"s_sub_u32 s{sTMP}, s{sBLK}, {k}")
            A(f"s_max_i32 s{sPROG}, s{sTMP}, s{sPROG}")
            A(f"v_mov_b32 v10, s{sPROG}")
            A(f"s_waitcnt vmcnt({8*k})")
            A(f"ds_write_b32 v9, v10 offset:{F_PROG}")
    def set_stride(stride):
        A(f"s_mov_b32 s{sSTEP}, {4*stride}")
        if stride & (stride-1) == 0:
            sh = stride.bit_length()-1
            A(f"v_lshl_add_u32 v5, v2, {sh}, v3")
            A(f"v_lshl_add_u32 v6, v2, {sh}, v4")
        else:
            A(f"v_mul_u32_u24 v8, {stride}, v2")
            A("v_add_u32 v5, v8, v3")
            A("v_add_u32 v6, v8, v4")
        A(f"s_mov_b32 s{sWRAP}, {256*stride}")
    XSRD = 68
    def xloads(n, ldsbase):
        for j in range(4):
            A(f"s_add_u32 s{sTMP}, s{sROT}, {2*j}")
            A(f"s_and_b32 s{sTMP}, s{sTMP}, 7")
            A(f"s_lshl_b32 s{sTMP}, s{sTMP}, 6")
            A(f"s_add_u32 s{sTMP}, s{sTMP}, s{sTMP3}")
            for q in range(n//4):
                A(f"s_mov_b32 m0, {ldsbase + 4096*q + 1024*j - 512*q}")
                A("s_nop 0")
                A(f"buffer_load_dwordx4 v7, s[{XSRD}:{XSRD+3}], s{sTMP} offen offset:{512*q} lds")
    def run_plan(pl, segs, start, endlabel=None):
        blk = 0; lastwin = 0
        segmap = {s[0]: s for s in segs}
        rot = True
        items = []
        for it in pl:
            if it == "d": items.append(it); continue
            n, w = it
            while n:
                c = min(n, 8 - (blk % 8))
                if blk < start: c = min(c, start - blk)
                if blk >= start: items.append((blk, c, w))
                blk += c; n -= c
        for it in items:
            if it == "d":
                drain(lastwin); continue
            b0, c, w = it
            if b0 % 8 == 0:
                seg = b0 // 8
                stamp(1 + seg)
                if seg >= 2: lds_wait_ge(F_FREE0 + 4*(seg-2), 8)
                if b0 in segmap:
                    segmap[b0][1](); rot = segmap[b0][2]
                elif rot:
                    A(f"s_add_u32 s{sSOFF}, s{sSOFF}, s{sWRAP}")
                A(f"s_mov_b32 m0, {RA if seg % 2 == 0 else RB}")
            blk_loop(c, w, rot)
            lastwin = w
        if endlabel: A(f"{endlabel}:")
        stamp(8)
        drain(max(x[1] for x in pl if x != "d"))
        stamp(9)
    def late_seg(ptr, nbytes):
        def f():
            set_stride(2048)
            A(f"s_mov_b64 s[{SRD}:{SRD+1}], s[{ptr}:{ptr+1}]\ns_mov_b32 s{SRD+2}, {nbytes}")
            A(f"s_lshl_b32 s{sSOFF}, s{sRBK}, 19")
            A(f"s_lshl_b32 s{sTMP}, s{sCB}, 8")
            A(f"s_add_u32 s{sSOFF}, s{sSOFF}, s{sTMP}")
        return f
    A(f"s_cmp_ge_u32 s{sR}, 16")
    A("s_cbranch_scc1 L_ld_M")
    A("v_and_b32 v7, 7, v0")
    A("v_lshlrev_b32 v7, 11, v7")
    A("v_lshrrev_b32 v8, 3, v0")
    A("v_lshl_add_u32 v7, v8, 4, v7")
    A(f"s_mov_b64 s[{XSRD}:{XSRD+1}], s[{sX}:{sX+1}]\ns_mov_b32 s{XSRD+2}, 16384\ns_mov_b32 s{XSRD+3}, 0x20000")
    A(f"s_lshl_b32 s{sTMP3}, s{sTMP3}, 9")
    xloads(4, XF)
    A(f"s_mov_b32 m0, {RA + 8192*NB0B}")
    def b_seg1():
        A(f"s_and_b32 s{sTMP2}, s{sBETA}, 1")
        A(f"s_lshl_b32 s{sTMP3}, s{sTMP2}, 10")
        xloads(8, XF + 4096)
        set_stride(7168)
        A(f"s_mul_i32 s{sSOFF}, s{sTMP2}, {512*7168}")
        A(f"s_lshr_b32 s{sTMP}, s{sBETA}, 2")
        A(f"s_lshl_b32 s{sTMP}, s{sTMP}, 8")
        A(f"s_add_u32 s{sSOFF}, s{sSOFF}, s{sTMP}")
        A(f"s_mul_i32 s{sTMP}, s{sROT}, {32*7168}")
        A(f"s_add_u32 s{sSOFF}, s{sSOFF}, s{sTMP}")
        A(f"s_bitcmp0_b32 s{sBETA}, 1")
        A(f"s_cselect_b64 s[{SRD}:{SRD+1}], s[{sWG}:{sWG+1}], s[{sWU}:{sWU+1}]")
        A(f"s_mov_b32 s{SRD+2}, {1024*3584*2}")
    A(f"s_cmp_eq_u32 s{sROLE}, 2")
    A("s_cbranch_scc1 L_ld_C")
    assert sum(x[0] for x in pb if x != "d") == 32
    run_plan(pb, [(8, b_seg1, True), (24, late_seg(sWO, 4096*1024*2), False)], NB0B)
    A("s_branch L_exit")
    A("L_ld_C:")
    assert sum(x[0] for x in pc if x != "d") == 16 and pc[1] == "d" and pc[0][0] == 8
    def c_seg1():
        late_seg(sWO, 4096*1024*2)()
        A(f"s_mov_b32 s{sBLK}, 24")
    run_plan(pc, [(8, c_seg1, False)], NB0B)
    A("s_branch L_exit")
    A("L_ld_M:")
    def m_seg1():
        A(f"s_mov_b64 s[{SRD}:{SRD+1}], s[{sV}:{sV+1}]")
    def m_seg2():
        A(f"s_cmp_eq_u32 s{sROLE}, 3")
        A("s_cbranch_scc1 L_ld_Mend")
        late_seg(sWD, 3584*1024*2)()
    assert sum(x[0] for x in pm if x != "d") == 24
    run_plan(pm, [(8, m_seg1, True), (16, m_seg2, False)], NB0M, endlabel="L_ld_Mend")
    A("s_branch L_exit")

    A("L_cons:")
    vL16, vTR, vACT, vT, vPUB = 1, 2, 3, 4, 5
    vTMP, vTMP2, vTMP3 = 6, 7, 8
    vWA, vAA = 10, 11
    vW, vB, vACC, vACC2 = 12, 16, 20, 24
    vGA = 28
    vLS = 44
    vK = 52
    vQ = 84
    vRG, vRW, vRR, vOUT, vONE, vAFW, vFLG = 116, 117, 118, 119, 120, 121, 122
    NV = 128
    A("s_waitcnt lgkmcnt(0)")
    A(f"s_load_dword s{sT}, s[{sWS}:{sWS+1}], 0")
    decode2()
    stamp(1)
    A(f"s_sub_u32 s{sC}, s3, 1")
    A(f"s_mov_b32 s{sSEL0}, 0x07060500\ns_mov_b32 s{sSEL1}, 0x07060501\ns_mov_b32 s{sSEL2}, 0x07060502\ns_mov_b32 s{sSEL3}, 0x07060503")
    A(f"v_mov_b32 v9, {FL}")
    A(f"v_mov_b32 v{vONE}, 1")
    A(f"v_lshlrev_b32 v{vL16}, 4, v0")
    A(f"v_lshlrev_b32 v{vFLG}, 7, v0")
    A(f"v_lshrrev_b32 v{vTMP2}, 4, v0")
    A(f"v_bfe_u32 v{vTMP3}, v0, 2, 2")
    A(f"v_lshl_add_u32 v{vTR}, v{vTMP2}, 3, v{vTMP3}")
    A(f"v_lshlrev_b32 v{vTR}, 8, v{vTR}")
    A(f"v_and_b32 v{vACT}, 1, v{vTMP2}")
    A(f"v_lshl_or_b32 v{vTMP3}, v{vACT}, 2, v{vTMP3}")
    A(f"v_xor_b32 v{vTMP3}, s{sC}, v{vTMP3}")
    A(f"v_lshl_or_b32 v{vTR}, v{vTMP3}, 5, v{vTR}")
    A(f"v_and_b32 v{vTMP3}, 3, v0")
    A(f"v_lshl_or_b32 v{vTR}, v{vTMP3}, 3, v{vTR}")
    A(f"v_and_b32 v{vTMP3}, 7, v0")
    A(f"v_lshl_add_u32 v{vACT}, v{vTMP2}, 3, v{vTMP3}")
    A(f"v_lshlrev_b32 v{vACT}, 4, v{vACT}")
    A(f"v_lshrrev_b32 v{vAFW}, 5, v0")
    A(f"v_lshlrev_b32 v{vAFW}, 8, v{vAFW}")
    A(f"v_and_b32 v{vTMP2}, 2, v0")
    A(f"v_lshl_or_b32 v{vAFW}, v{vTMP2}, 6, v{vAFW}")
    A(f"v_and_b32 v{vTMP2}, 28, v0")
    A(f"v_lshl_or_b32 v{vAFW}, v{vTMP2}, 2, v{vAFW}")
    A(f"v_and_b32 v{vTMP2}, 1, v0")
    A(f"v_lshl_or_b32 v{vAFW}, v{vTMP2}, 3, v{vAFW}")
    A(f"s_lshl_b32 s{sTMP}, s{sC}, 9")
    A(f"s_add_u32 s{sTMP}, s{sTMP}, {AF}")
    A(f"v_add_u32 v{vAFW}, s{sTMP}, v{vAFW}")
    A("s_waitcnt lgkmcnt(0)")
    A(f"s_add_u32 s{sT}, s{sT}, 0x01010101")
    A(f"s_mov_b32 s{sT+1}, s{sT}")
    A(f"s_lshr_b32 s{sT1}, s{sT}, 8\ns_lshr_b32 s{sT2}, s{sT}, 16\ns_lshr_b32 s{sT3}, s{sT}, 24")
    A(f"v_mov_b32 v{vT}, s{sT}")

    def refresh_prog():
        A(f"ds_read_b32 v{vTMP}, v9 offset:{F_PROG}")
        A("s_waitcnt lgkmcnt(0)")
        A(f"v_readfirstlane_b32 s{sPROG}, v{vTMP}")
    def wait_prog(val_is_sgpr, val, sleep=0):
        l = g.lab("L_wp"); d = g.lab("L_wpd")
        v = f"s{val}" if val_is_sgpr else str(val)
        A(f"s_cmp_ge_u32 s{sPROG}, {v}")
        A(f"s_cbranch_scc1 {d}")
        A(f"{l}:")
        if sleep: A(f"s_sleep {sleep}")
        refresh_prog()
        A(f"s_cmp_ge_u32 s{sPROG}, {v}")
        A(f"s_cbranch_scc0 {l}")
        A(f"{d}:")
    def signal(off):
        A("s_mov_b64 exec, 1")
        A(f"ds_add_u32 v9, v{vONE} offset:{off}")
        A("s_mov_b64 exec, -1")
    def cwait(off, val, sleep=0):
        lds_wait_ge(off, val, vtmp=f"v{vTMP}", sleep=sleep)
    def publish(src, base=sGA):
        for r, sel in enumerate([sSEL0, sSEL1, sSEL2, sSEL3]):
            A(f"v_perm_b32 v{src+r}, v{src+r}, v{vT}, s{sel}")
        A("s_mov_b32 exec_lo, 0x00ff00ff\ns_mov_b32 exec_hi, 0x00ff00ff")
        if not (opt.dbg & 1): A(f"global_store_dwordx4 v{vPUB}, v[{src}:{src+3}], s[{base}:{base+1}] sc1")
    def flag(cnt, nrep):
        d = g.lab("L_fl")
        A("s_mov_b64 exec, 1")
        A(f"ds_add_rtn_u32 v{vTMP}, v9, v{vONE} offset:{cnt}")
        A("s_waitcnt lgkmcnt(0)")
        A(f"v_readfirstlane_b32 s{sTMP}, v{vTMP}")
        A(f"s_cmp_lg_u32 s{sTMP}, 7")
        A(f"s_cbranch_scc1 {d}")
        A(f"s_mov_b64 exec, {(1 << nrep) - 1}")
        if not (opt.dbg & 1): A(f"global_store_dword v{vFLG}, v{vT}, s[{sGB}:{sGB+1}] sc1")
        A(f"{d}:")
        A("s_mov_b64 exec, -1")
    def flag_now(nrep):
        d = g.lab("L_fn")
        A(f"s_cmp_lg_u32 s{sC}, {opt.flagwave}")
        A(f"s_cbranch_scc1 {d}")
        A(f"s_mov_b64 exec, {(1 << nrep) - 1}")
        if not (opt.dbg & 1): A(f"global_store_dword v{vFLG}, v{vT}, s[{sGB}:{sGB+1}] sc1")
        A("s_mov_b64 exec, -1")
        A(f"{d}:")
    def ws_addr(dst, base_const, soff):
        A(f"s_add_u32 s{soff}, s{soff}, {base_const}")
        A(f"s_add_u32 s{dst}, s{sWS}, s{soff}")
        A(f"s_addc_u32 s{dst+1}, s{sWS+1}, 0")
    def pub_voff(shift):
        A(f"v_and_b32 v{vTMP2}, 15, v0")
        A(f"v_and_b32 v{vTMP3}, 48, v0")
        A(f"v_lshl_or_b32 v{vPUB}, v{vTMP2}, {shift}, v{vTMP3}")
    def sample(base, offs, sleep=0, cntstamp=None):
        l = g.lab("L_sm"); d = g.lab("L_smd"); e = g.lab("L_sme")
        if opt.dbg & 7: return
        A(f"s_mov_b32 s{sCNT}, 0")
        if sleep: A(f"s_branch {e}")
        A(f"{l}:")
        if sleep:
            A(f"s_sleep {sleep}")
            A(f"{e}:")
        for i, o in enumerate(offs):
            A(f"s_load_dword s{sSM+i}, s[{base}:{base+1}], {o} glc")
        A(f"s_add_u32 s{sCNT}, s{sCNT}, 1")
        A(f"s_cmp_gt_u32 s{sCNT}, {opt.maxpoll}")
        A("s_waitcnt lgkmcnt(0)")
        A(f"s_cbranch_scc1 {d}")
        for i in range(len(offs)):
            A(f"s_xor_b32 s{sSM+i}, s{sSM+i}, s{sT}")
            if i: A(f"s_or_b32 s{sSM}, s{sSM}, s{sSM+i}")
        A(f"s_and_b32 s{sSM}, s{sSM}, 0xff")
        A(f"s_cbranch_scc1 {l}")
        A(f"{d}:")
        if cntstamp is not None: stampval(cntstamp, sCNT)
    def pollflags(ndw, sleep, cntstamp=None):
        l = g.lab("L_pf"); d = g.lab("L_pfd"); e = g.lab("L_pfe")
        if opt.dbg & 7: return
        A(f"s_mov_b32 s{sCNT}, 0")
        A(f"s_branch {e}")
        A(f"{l}:")
        if sleep: A(f"s_sleep {sleep}")
        A(f"{e}:")
        if ndw == 32:
            A(f"s_load_dwordx16 s[8:23], s[{sGB}:{sGB+1}], 0 glc")
            A(f"s_load_dwordx16 s[24:39], s[{sGB}:{sGB+1}], 64 glc")
        else:
            A(f"s_load_dwordx8 s[8:15], s[{sGB}:{sGB+1}], 0 glc")
        A(f"s_add_u32 s{sCNT}, s{sCNT}, 1")
        A(f"s_cmp_gt_u32 s{sCNT}, {opt.maxpoll}")
        A("s_waitcnt lgkmcnt(0)")
        A(f"s_cbranch_scc1 {d}")
        for i in range(ndw//2):
            A(f"s_cmp_eq_u64 s[{8+2*i}:{9+2*i}], s[{sT}:{sT+1}]")
            A(f"s_cbranch_scc0 {l}")
        A(f"{d}:")
        if cntstamp is not None: stampval(cntstamp, sCNT)
    def gather(nld=4, mid=None, cntstamp=None, sleep=0):
        l = g.lab("L_ga"); d = g.lab("L_gad"); c = g.lab("L_gac")
        def issue():
            if opt.dbg & 2: return
            for i in range(nld):
                A(f"global_load_dwordx4 v[{vGA+4*i}:{vGA+4*i+3}], v{vL16}, s[{sGA}:{sGA+1}] offset:{1024*i} sc1")
        if mid is not None or sleep:
            issue()
            if mid is not None: mid()
            A(f"s_mov_b32 s{sCNT}, 0")
            A(f"s_branch {c}")
        else:
            A(f"s_mov_b32 s{sCNT}, 0")
        A(f"{l}:")
        if sleep: A(f"s_sleep {sleep}")
        issue()
        A(f"{c}:")
        A(f"s_add_u32 s{sCNT}, s{sCNT}, 1")
        ts = [sT0, sT1, sT2, sT3]
        vC = vTMP2
        for i in range(nld):
            A(f"s_waitcnt vmcnt({nld-1-i})")
            for r in range(4):
                if i == 0 and r == 0:
                    A(f"v_xor_b32 v{vC}, s{ts[r]}, v{vGA}")
                else:
                    A(f"v_bitop3_b32 v{vC}, v{vC}, v{vGA+4*i+r}, s{ts[r]} bitop3:0xf6")
        A(f"v_and_b32 v{vC}, 0xff, v{vC}")
        A(f"v_cmp_ne_u32 vcc, 0, v{vC}")
        A(f"s_cbranch_vccz {d}")
        A(f"s_cmp_le_u32 s{sCNT}, {0 if (opt.dbg & 6) else opt.maxpoll}")
        A(f"s_cbranch_scc1 {l}")
        A(f"{d}:")
        if cntstamp is not None: stampval(cntstamp, sCNT)
    def wreads(k0, k1):
        for kb in range(k0, k1):
            o = 8192*kb
            A(f"ds_read_b64_tr_b16 v[{vK+4*kb}:{vK+4*kb+1}], v{vWA} offset:{o}")
            A(f"ds_read_b64_tr_b16 v[{vK+4*kb+2}:{vK+4*kb+3}], v{vWA} offset:{o+1024}")
    def mf(kb, first):
        c = "0" if first else f"v[{vACC}:{vACC+3}]"
        A(f"v_mfma_f32_16x16x32_bf16 v[{vACC}:{vACC+3}], v[{vK+4*kb}:{vK+4*kb+3}], v[{vQ+4*kb}:{vQ+4*kb+3}], {c}")
    def actreads(n):
        for kb in range(n):
            A(f"ds_read_b128 v[{vQ+4*kb}:{vQ+4*kb+3}], v{vAA} offset:{512*kb}")
    sFA, sRA, sPE = 12, 10, 14
    def late_setup(wbase, padd, pend):
        A(f"v_add_u32 v{vWA}, {wbase}, v{vTR}")
        A(f"v_add_u32 v{vAA}, {AF}, v{vACT}")
        A(f"v_and_b32 v{vTMP2}, 4, v0")
        A(f"v_lshlrev_b32 v{vPUB}, 11, v{vTMP2}")
        A(f"v_and_b32 v{vTMP2}, 3, v0")
        A(f"v_lshl_or_b32 v{vPUB}, v{vTMP2}, 6, v{vPUB}")
        A(f"v_and_b32 v{vTMP2}, 48, v0")
        A(f"v_or_b32 v{vPUB}, v{vPUB}, v{vTMP2}")
        A(f"s_lshl3_add_u32 s{sTMP}, s{sCB}, s{sC}")
        A(f"s_lshl_b32 s{sTMP}, s{sTMP}, 6")
        A(f"s_add_u32 s{sTMP}, s{sTMP}, s{sRBK}")
        A(f"s_lshl_b32 s{sTMP}, s{sTMP}, 8")
        ws_addr(sFA, WS_FP + 256*padd, sTMP)
        A(f"s_mov_b32 s{sPE}, {pend}")
        A(f"s_mov_b32 s{sWDN}, 0")
        A(f"s_lshl3_add_u32 s{sTMP}, s{sRBK}, s{sC}")
        A(f"s_lshl_b32 s{sTMP}, s{sTMP}, 12")
    def late_wait():
        l = g.lab("L_lw"); d = g.lab("L_lwd"); w = g.lab("L_lww")
        A(f"{l}:")
        A(f"ds_read_b64 v[{vTMP}:{vTMP+1}], v9 offset:{F_PROG}")
        A("s_waitcnt lgkmcnt(0)")
        A(f"v_readfirstlane_b32 s{sTMP}, v{vTMP+1}")
        A(f"v_readfirstlane_b32 s{sPROG}, v{vTMP}")
        A(f"s_cmp_lg_u32 s{sTMP}, 0")
        A(f"s_cbranch_scc1 {d}")
        A(f"s_cmp_lt_u32 s{sPROG}, s{sPE}")
        A(f"s_cbranch_scc1 {l}")
        wreads(0, 8)
        A(f"s_mov_b32 s{sWDN}, 1")
        cwait(F_LRDY, 1)
        A(f"{d}:")

    A(f"s_cmp_eq_u32 s3, 9")
    A("s_cbranch_scc1 L_poller")
    if opt.nocomm:
        signal(F_FREE0); signal(F_FREE1)
        A("s_branch L_exit")
    A(f"s_cmp_ge_u32 s{sR}, 16")
    A("s_cbranch_scc1 L_roleM")

    def egloop(last, name, lead=None, nrep=0):
        A(f"L_eg_loop{name}:")
        A(f"ds_read_b128 v[{vB}:{vB+3}], v{vAA}")
        wait_prog(True, sCNT)
        A(f"ds_read_b64_tr_b16 v[{vW}:{vW+1}], v{vWA}")
        A(f"ds_read_b64_tr_b16 v[{vW+2}:{vW+3}], v{vWA} offset:1024")
        if lead is not None and lead >= 0:
            A(f"s_cmp_lg_u32 s{sCNT}, {last - lead}")
            A(f"s_cbranch_scc1 L_eg_nf{name}")
            flag_now(nrep)
            A(f"L_eg_nf{name}:")
        A(f"v_add_u32 v{vWA}, 8192, v{vWA}")
        A(f"v_add_u32 v{vAA}, 512, v{vAA}")
        A(f"s_add_u32 s{sCNT}, s{sCNT}, 1")
        A(f"s_cmp_le_u32 s{sCNT}, {last}")
        A("s_waitcnt lgkmcnt(0)")
        A(f"v_mfma_f32_16x16x32_bf16 v[{vACC}:{vACC+3}], v[{vW}:{vW+3}], v[{vB}:{vB+3}], v[{vACC}:{vACC+3}]")
        A(f"s_cbranch_scc1 L_eg_loop{name}")
    pub_voff(16)
    A(f"s_and_b32 s{sTMP3}, s{sXCD}, 1")
    A(f"s_lshr_b32 s{sTMP}, s{sU}, 3")
    A(f"s_lshl1_add_u32 s{sTMP3}, s{sTMP3}, s{sTMP}")
    A(f"s_and_b32 s{sTMP}, s{sU}, 7")
    A(f"s_lshl2_add_u32 s{sTMP3}, s{sTMP}, s{sTMP3}")
    A(f"s_lshl_b32 s{sTMP}, s{sG}, 5")
    A(f"s_add_u32 s{sTMP}, s{sTMP}, s{sTMP3}")
    A(f"s_lshl3_add_u32 s{sTMP}, s{sTMP}, s{sC}")
    A(f"s_lshl_b32 s{sTMP}, s{sTMP}, 6")
    ws_addr(sGA, WS_QP, sTMP)
    A(f"s_lshl_b32 s{sTMP}, s{sG}, 10")
    A(f"s_lshl2_add_u32 s{sTMP}, s{sTMP3}, s{sTMP}")
    ws_addr(sGB, WS_QFL, sTMP)
    A(f"v_mov_b32 v{vWA}, v{vTR}")
    A(f"v_add_u32 v{vAA}, {XF}, v{vACT}")
    for r in range(4): A(f"v_mov_b32 v{vACC+r}, 0")
    A(f"s_mov_b32 s{sCNT}, 1")
    wait_prog(False, NB0B + 1, sleep=1)
    egloop(8, "Q", opt.qlead, 8)
    signal(F_FREE0)
    A("s_nop 4")
    publish(vACC)
    if opt.qlead < 0: flag(F_PUB0, 8)
    else: A("s_mov_b64 exec, -1")
    stamp(2)
    A(f"s_cmp_eq_u32 s{sROLE}, 2")
    A("s_cbranch_scc1 L_bc_late")
    pub_voff(6)
    A(f"s_and_b32 s{sTMP}, s{sBETA}, -4")
    A(f"s_lshr_b32 s{sTMP2}, s{sC}, 1")
    A(f"s_add_u32 s{sTMP}, s{sTMP}, s{sTMP2}")
    A(f"s_and_b32 s{sTMP2}, s{sBETA}, 3")
    A(f"s_lshl2_add_u32 s{sTMP}, s{sTMP}, s{sTMP2}")
    A(f"s_and_b32 s{sTMP2}, s{sC}, 1")
    A(f"s_lshl1_add_u32 s{sTMP}, s{sTMP}, s{sTMP2}")
    A(f"s_lshl_b32 s{sTMP}, s{sTMP}, 9")
    ws_addr(sGA, WS_GP, sTMP)
    A(f"s_lshr_b32 s{sTMP}, s{sBETA}, 3")
    A(f"s_lshl_b32 s{sTMP}, s{sTMP}, 8")
    A(f"s_and_b32 s{sTMP2}, s{sBETA}, 7")
    A(f"s_lshl2_add_u32 s{sTMP}, s{sTMP2}, s{sTMP}")
    ws_addr(sGB, WS_HFL, sTMP)
    for r in range(4): A(f"v_mov_b32 v{vACC+r}, 0")
    wait_prog(False, 9)
    egloop(16, "G1")
    signal(F_FREE1)
    A(f"v_mov_b32 v{vWA}, v{vTR}")
    stamp(3)
    egloop(24, "G2", opt.hlead, 2)
    A("s_nop 7")
    publish(vACC)
    if opt.hlead < 0: flag(F_PUB1, 2)
    else: A("s_mov_b64 exec, -1")
    stamp(6)
    A("L_bc_late:")
    late_setup(RB, 0, 32)
    ws_addr(sGA, WS_OP, sTMP)
    A(f"s_and_b32 s{sTMP}, s{sC}, 4")
    A(f"s_lshl_b32 s{sTMP}, s{sTMP}, 5")
    A(f"v_and_b32 v{vTMP3}, 28, v0")
    A(f"v_lshlrev_b32 v{vTMP3}, 2, v{vTMP3}")
    A(f"v_add3_u32 v{vTMP3}, v{vTMP3}, s{sTMP}, v9")
    late_wait()
    stamp(7)
    def wmid():
        cwait(F_WRDY, 1)
        A(f"ds_read_b128 v[{vLS}:{vLS+3}], v{vTMP3} offset:{F_WT}")
    gather(mid=wmid, cntstamp=13, sleep=opt.gsleep)
    stamp(8)
    A("s_waitcnt lgkmcnt(0)")
    for r in range(4): A(f"v_mul_f32 v{vGA+r}, v{vGA+r}, v{vLS}")
    for i in range(1, 4):
        for r in range(4): A(f"v_fmac_f32 v{vGA+r}, v{vGA+4*i+r}, v{vLS+i}")
    A("s_branch L_late")

    A("L_roleM:")
    vXr, vGWr = vK, vK + 8
    A(f"s_cmp_lt_u32 s{sC}, 4")
    A("s_cbranch_scc1 L_nogate")
    wait_prog(False, opt.ggate, sleep=1)
    A(f"s_and_b32 s{sTMP}, s{sR}, 1")
    A(f"s_lshl2_add_u32 s{sTMP}, s{sTMP}, s{sC}")
    A(f"s_sub_u32 s{sTMP3}, s{sTMP}, 4")
    A(f"s_lshl_b32 s{sTMP}, s{sTMP3}, 11")
    A(f"v_add_u32 v{vTMP3}, s{sTMP}, v{vL16}")
    for i in range(2):
        A(f"global_load_dwordx4 v[{vXr+4*i}:{vXr+4*i+3}], v{vTMP3}, s[{sX}:{sX+1}] offset:{1024*i}")
        A(f"global_load_dwordx4 v[{vGWr+4*i}:{vGWr+4*i+3}], v{vL16}, s[{sGW}:{sGW+1}] offset:{1024*i}")
    A(f"v_mov_b32 v{vACC2}, 0")
    A("s_waitcnt vmcnt(0)")
    for i in range(8):
        A(f"v_lshlrev_b32 v{vW}, 16, v{vXr+i}")
        A(f"v_and_b32 v{vW+1}, 0xffff0000, v{vXr+i}")
        A(f"v_lshlrev_b32 v{vW+2}, 16, v{vGWr+i}")
        A(f"v_and_b32 v{vW+3}, 0xffff0000, v{vGWr+i}")
        A(f"v_mul_f32 v{vW}, v{vW}, v{vW+2}")
        A(f"v_mul_f32 v{vW+1}, v{vW+1}, v{vW+3}")
        A(f"v_cvt_pk_bf16_f32 v{vW}, v{vW}, v{vW+1}")
        A(f"v_lshlrev_b32 v{vW+1}, 16, v{vW}")
        A(f"v_and_b32 v{vW}, 0xffff0000, v{vW}")
        A(f"v_add_f32 v{vACC2}, v{vACC2}, v{vW+1}")
        A(f"v_add_f32 v{vACC2}, v{vACC2}, v{vW}")
    for off in (0x041F, 0x081F, 0x101F, 0x201F, 0x401F):
        A(f"ds_swizzle_b32 v{vW}, v{vACC2} offset:{off:#x}")
        A("s_waitcnt lgkmcnt(0)")
        A(f"v_add_f32 v{vACC2}, v{vACC2}, v{vW}")
    A(f"v_mov_b32 v{vW}, v{vACC2}")
    A("s_nop 1")
    A(f"v_permlane32_swap_b32 v{vACC2}, v{vW}")
    A(f"v_add_f32 v{vACC2}, v{vACC2}, v{vW}")
    def rbf(v):
        A(f"v_cvt_pk_bf16_f32 v{v}, v{v}, v{v}")
        A(f"v_and_b32 v{v}, 0xffff0000, v{v}")
    rbf(vACC2)
    A(f"v_mul_f32 v{vACC2}, 0xbfb8aa3b, v{vACC2}")
    A(f"v_exp_f32 v{vACC2}, v{vACC2}")
    A("s_nop 0")
    A(f"v_add_f32 v{vACC2}, 1.0, v{vACC2}")
    A(f"v_rcp_f32 v{vACC2}, v{vACC2}")
    A("s_nop 0")
    rbf(vACC2)
    A(f"s_lshl_b32 s{sTMP}, s{sTMP3}, 2")
    A(f"v_add_u32 v{vTMP2}, s{sTMP}, v9")
    A("s_mov_b64 exec, 1")
    A(f"ds_write_b32 v{vTMP2}, v{vACC2} offset:{F_G}")
    A("s_mov_b64 exec, -1")
    A("L_nogate:")
    A(f"s_lshl2_add_u32 s{sTMP}, s{sBB}, s{sG}")
    A(f"s_lshl3_add_u32 s{sTMP}, s{sTMP}, s{sC}")
    A(f"s_lshl_b32 s{sTMP}, s{sTMP}, 11")
    ws_addr(sGA, WS_QP, sTMP)
    A(f"v_bfe_u32 v{vTMP2}, v0, 2, 2")
    A(f"v_and_b32 v{vTMP3}, 3, v0")
    A(f"v_lshl_add_u32 v{vTMP2}, v{vTMP2}, 3, v{vTMP3}")
    A(f"v_lshlrev_b32 v{vWA}, 8, v{vTMP2}")
    A(f"v_lshrrev_b32 v{vTMP2}, 5, v0")
    A(f"v_and_b32 v{vTMP3}, 7, v0")
    A(f"v_xor_b32 v{vTMP2}, v{vTMP2}, v{vTMP3}")
    A(f"v_lshl_or_b32 v{vWA}, v{vTMP2}, 5, v{vWA}")
    A(f"v_and_b32 v{vTMP2}, 16, v0")
    A(f"s_lshl_b32 s{sTMP}, s{sC}, 13")
    A(f"v_add3_u32 v{vWA}, v{vWA}, v{vTMP2}, s{sTMP}")
    vQA, vMX, vPA = vW, vW + 1, vW + 2
    A(f"v_and_b32 v{vQA}, 30, v0")
    A(f"v_lshlrev_b32 v{vQA}, 6, v{vQA}")
    A(f"v_and_b32 v{vTMP2}, 1, v0")
    A(f"v_lshl_or_b32 v{vQA}, v{vTMP2}, 3, v{vQA}")
    A(f"v_lshrrev_b32 v{vTMP2}, 5, v0")
    A(f"v_lshl_or_b32 v{vQA}, v{vTMP2}, 2, v{vQA}")
    A(f"s_lshl_b32 s{sTMP}, s{sC}, 4")
    A(f"s_add_u32 s{sTMP}, s{sTMP}, {QF}")
    A(f"v_add_u32 v{vQA}, s{sTMP}, v{vQA}")
    A(f"v_lshl_add_u32 v{vMX}, v{vTMP3}, 2, v9")
    A(f"s_lshl_b32 s{sTMP}, s{sC}, 9")
    A(f"s_add_u32 s{sTMP}, s{sTMP}, {PF}")
    A(f"v_add_u32 v{vPA}, s{sTMP}, v{vACT}")
    pub_voff(14)
    cwait(F_QRDY, 1, sleep=1)
    stamp(3)
    def kfrags():
        A(f"s_add_u32 s{sTMP2}, s{sC}, 1")
        wait_prog(True, sTMP2)
        for db in range(4):
            if db: A(f"v_xor_b32 v{vAA}, {64*db}, v{vWA}")
            a = vAA if db else vWA
            A(f"ds_read_b128 v[{vK+4*db}:{vK+4*db+3}], v{a}")
            A(f"ds_read_b128 v[{vK+16+4*db}:{vK+16+4*db+3}], v{a} offset:1024")
        signal(F_FREE0)
        A(f"v_add_u32 v{vAA}, {QF}, v{vACT}")
    gather(nld=2, mid=kfrags, cntstamp=11, sleep=opt.gsleep)
    stamp(4)
    for r in range(4): A(f"v_add_f32 v{vGA+r}, v{vGA+r}, v{vGA+4+r}")
    A("s_nop 0")
    A(f"v_permlane32_swap_b32 v{vGA}, v{vGA+2}")
    A(f"v_permlane32_swap_b32 v{vGA+1}, v{vGA+3}")
    A(f"v_add_f32 v{vGA}, v{vGA}, v{vGA+2}")
    A(f"v_add_f32 v{vGA+1}, v{vGA+1}, v{vGA+3}")
    A(f"v_cvt_pk_bf16_f32 v{vGA}, v{vGA}, v{vGA+1}")
    A(f"ds_write_b32 v{vQA}, v{vGA}")
    signal(F_BQ)
    A(f"s_lshl_b32 s{sTMP}, s{sG}, 5")
    A(f"s_lshr_b32 s{sTMP2}, s{sC}, 1")
    A(f"s_add_u32 s{sTMP}, s{sTMP}, s{sTMP2}")
    A(f"s_lshl2_add_u32 s{sTMP}, s{sTMP}, s{sSPL}")
    A(f"s_and_b32 s{sTMP2}, s{sC}, 1")
    A(f"s_lshl1_add_u32 s{sTMP}, s{sTMP}, s{sTMP2}")
    A(f"s_lshl3_add_u32 s{sTMP}, s{sTMP}, s{sBB}")
    A(f"s_lshl_b32 s{sTMP}, s{sTMP}, 6")
    ws_addr(sGA, WS_OP, sTMP)
    A(f"s_lshl2_add_u32 s{sTMP3}, s{sBB}, s{sSPL}")
    A(f"s_lshl_b32 s{sTMP}, s{sG}, 10")
    A(f"s_lshl2_add_u32 s{sTMP}, s{sTMP3}, s{sTMP}")
    ws_addr(sGB, WS_OFL, sTMP)
    A(f"s_lshl_b32 s{sTMP}, s{sG}, 11")
    A(f"s_lshl3_add_u32 s{sTMP}, s{sTMP3}, s{sTMP}")
    ws_addr(sFA, WS_LSE, sTMP)
    cbits = struct.unpack("<I", struct.pack("<f", math.log2(math.e) / math.sqrt(128.0)))[0]
    A(f"s_mov_b32 s{sTMP2}, {cbits:#x}")
    cwait(F_BQ, 8)
    for kb in range(4):
        A(f"ds_read_b128 v[{vQ+4*kb}:{vQ+4*kb+3}], v{vAA} offset:{512*kb}")
    for db in range(4):
        A(f"s_waitcnt lgkmcnt({3-db})")
        c0 = "0" if db == 0 else f"v[{vACC}:{vACC+3}]"
        c1 = "0" if db == 0 else f"v[{vACC2}:{vACC2+3}]"
        A(f"v_mfma_f32_16x16x32_bf16 v[{vACC}:{vACC+3}], v[{vK+4*db}:{vK+4*db+3}], v[{vQ+4*db}:{vQ+4*db+3}], {c0}")
        A(f"v_mfma_f32_16x16x32_bf16 v[{vACC2}:{vACC2+3}], v[{vK+16+4*db}:{vK+16+4*db+3}], v[{vQ+4*db}:{vQ+4*db+3}], {c1}")
    A(f"v_add_u32 v{vAA}, {PF}, v{vACT}")
    A(f"v_add_u32 v{vWA}, {RB}, v{vTR}")
    vONES = vGA
    for r in range(4): A(f"v_mov_b32 v{vONES+r}, 0x3f803f80")
    A("s_nop 1")
    A(f"v_max3_f32 v{vTMP2}, v{vACC}, v{vACC+1}, v{vACC+2}")
    A(f"v_max3_f32 v{vTMP2}, v{vTMP2}, v{vACC+3}, v{vACC2}")
    A(f"v_max3_f32 v{vTMP2}, v{vTMP2}, v{vACC2+1}, v{vACC2+2}")
    A(f"v_max_f32 v{vTMP2}, v{vTMP2}, v{vACC2+3}")
    A("s_mov_b32 exec_lo, 0x00ff00ff\ns_mov_b32 exec_hi, 0x00ff00ff")
    A(f"ds_max_f32 v{vMX}, v{vTMP2} offset:{F_MAX}")
    signal(F_BM)
    cwait(F_BM, 8)
    vM = vLS
    A(f"ds_read_b32 v{vM}, v{vMX} offset:{F_MAX}")
    if opt.olead >= 0 and opt.oearly:
        A(f"ds_read_b32 v{vTMP}, v9 offset:{F_PROG}")
    A("s_waitcnt lgkmcnt(0)")
    A(f"s_mov_b32 s{sWDN}, 0")
    if opt.olead >= 0 and opt.oearly:
        A(f"v_readfirstlane_b32 s{sPROG}, v{vTMP}")
        A(f"s_cmp_lt_u32 s{sPROG}, {16 - opt.olead}")
        A("s_cbranch_scc1 L_of_no1")
        flag_now(8)
        A(f"s_mov_b32 s{sWDN}, 1")
        A("L_of_no1:")
    A(f"v_mul_f32 v{vM}, s{sTMP2}, v{vM}")
    for r in range(8):
        A(f"v_fma_f32 v{vACC+r}, v{vACC+r}, s{sTMP2}, -v{vM}")
    for r in range(8):
        A(f"v_exp_f32 v{vACC+r}, v{vACC+r}")
    A("s_nop 0")
    for r in range(4):
        A(f"v_cvt_pk_bf16_f32 v{vB+r}, v{vACC+2*r}, v{vACC+2*r+1}")
    A(f"ds_write_b128 v{vPA}, v[{vB}:{vB+3}]")
    signal(F_BP)
    cwait(F_BP, 8)
    for kb in range(8):
        A(f"ds_read_b128 v[{vQ+4*kb}:{vQ+4*kb+3}], v{vAA} offset:{512*kb}")
    A(f"ds_read_b32 v{vTMP}, v9 offset:{F_PROG}")
    for kb in range(8):
        A(f"s_waitcnt lgkmcnt({8-kb})")
        c1 = "0" if kb == 0 else f"v[{vACC2}:{vACC2+3}]"
        A(f"v_mfma_f32_16x16x32_bf16 v[{vACC2}:{vACC2+3}], v[{vONES}:{vONES+3}], v[{vQ+4*kb}:{vQ+4*kb+3}], {c1}")
    A("s_waitcnt lgkmcnt(0)")
    A(f"v_readfirstlane_b32 s{sPROG}, v{vTMP}")
    stamp(5)
    vRL = vLS + 2
    def lse_part():
        A(f"v_log_f32 v{vLS+1}, v{vACC2}")
        A(f"v_rcp_f32 v{vRL}, v{vACC2}")
        d = g.lab("L_nolse")
        A(f"s_cmp_lg_u32 s{sC}, 0")
        A(f"s_cbranch_scc1 {d}")
        A(f"v_add_f32 v{vM}, v{vM}, v{vLS+1}")
        A(f"v_mov_b32 v{vLS+1}, s{sT}")
        A(f"v_lshlrev_b32 v{vTMP2}, 8, v0")
        A("s_mov_b64 exec, 0xff")
        if not (opt.dbg & 1): A(f"global_store_dwordx2 v{vTMP2}, v[{vLS}:{vLS+1}], s[{sFA}:{sFA+1}] sc1")
        A("s_mov_b64 exec, -1")
        A(f"{d}:")
    A(f"s_cmp_lt_u32 s{sPROG}, 16")
    A("s_cbranch_scc1 L_pv_slow")
    def oflag():
        if opt.olead < 0: return
        d = g.lab("L_of")
        A(f"s_cmp_lg_u32 s{sWDN}, 0")
        A(f"s_cbranch_scc1 {d}")
        flag_now(8)
        A(f"{d}:")
    wreads(0, 7)
    lse_part()
    oflag()
    for kb in range(7):
        A(f"s_waitcnt lgkmcnt({14-2*kb if kb else 12})")
        if kb == 0: wreads(7, 8)
        mf(kb, kb == 0)
    A("s_branch L_pv_last")
    A("L_pv_slow:")
    A("s_nop 4")
    lse_part()
    for kb in range(8):
        wait_prog(False, 8 + kb + 1)
        wreads(kb, kb+1)
        if 8 + kb + 1 == 16 - opt.olead: oflag()
        if kb:
            A("s_waitcnt lgkmcnt(2)")
            mf(kb-1, kb == 1)
    A("L_pv_last:")
    A("s_waitcnt lgkmcnt(0)")
    mf(7, False)
    A("s_nop 7")
    for r in range(4): A(f"v_mul_f32 v{vACC+r}, v{vACC+r}, v{vRL}")
    publish(vACC)
    if opt.olead < 0: flag(F_PUB0, 8)
    else: A("s_mov_b64 exec, -1")
    stamp(6)
    A(f"s_and_b32 s{sTMP2}, s{sR}, 1")
    A(f"s_lshl_b32 s{sTMP2}, s{sTMP2}, 4")
    A(f"v_and_b32 v{vTMP2}, 12, v0")
    A(f"v_add3_u32 v{vTMP2}, v{vTMP2}, s{sTMP2}, v9")
    A(f"ds_read_b32 v{vRG}, v{vTMP2} offset:{F_G}")
    A(f"s_lshl4_add_u32 s{sTMP}, s{sXCD}, s{sR}")
    A(f"s_sub_u32 s{sTMP3}, s{sTMP}, 16")
    A(f"s_lshl3_add_u32 s{sTMP}, s{sTMP3}, s{sC}")
    A(f"s_lshl_b32 s{sTMP}, s{sTMP}, 10")
    ws_addr(sRA, WS_FP, sTMP)
    A(f"v_lshlrev_b32 v{vRR}, 2, v0")
    A(f"v_add_u32 v{vRR}, {RS}, v{vRR}")
    A(f"s_lshl_b32 s{sTMP}, s{sC}, 8")
    A(f"v_add_u32 v{vRW}, s{sTMP}, v{vRR}")
    A(f"v_and_b32 v{vOUT}, 12, v0")
    A(f"v_lshlrev_b32 v{vOUT}, 9, v{vOUT}")
    A(f"v_and_b32 v{vTMP2}, 3, v0")
    A(f"v_lshl_or_b32 v{vOUT}, v{vTMP2}, 3, v{vOUT}")
    A(f"v_lshrrev_b32 v{vTMP2}, 4, v0")
    A(f"v_lshl_or_b32 v{vOUT}, v{vTMP2}, 1, v{vOUT}")
    A(f"s_lshl_b32 s{sTMP2}, s{sTMP2}, 9")
    A(f"s_lshr_b32 s{sTMP3}, s{sTMP3}, 1")
    A(f"s_lshl_b32 s{sTMP3}, s{sTMP3}, 5")
    A(f"s_add_u32 s{sTMP2}, s{sTMP2}, s{sTMP3}")
    A(f"v_add_u32 v{vOUT}, s{sTMP2}, v{vOUT}")
    A("s_waitcnt lgkmcnt(0)")
    A(f"s_cmp_lt_u32 s{sC}, 4")
    A("s_cbranch_scc1 L_wg_done")
    A(f"v_sub_f32 v{vRG}, 1.0, v{vRG}")
    rbf(vRG)
    A("L_wg_done:")
    A(f"s_cmp_eq_u32 s{sROLE}, 3")
    A("s_cbranch_scc1 L_reduce_early")
    late_setup(RA, 16, 24)
    ws_addr(sGA, WS_GP, sTMP)
    late_wait()
    stamp(7)
    gather(cntstamp=13, sleep=opt.gsleep)
    stamp(8)
    for r in range(4):
        A(f"v_add_f32 v{vGA+r}, v{vGA+r}, v{vGA+4+r}")
        A(f"v_add_f32 v{vGA+8+r}, v{vGA+8+r}, v{vGA+12+r}")
    for r in range(4): A(f"v_max_f32 v{vGA+r}, 0, v{vGA+r}")
    A(f"v_cvt_pk_bf16_f32 v{vGA+4}, v{vGA}, v{vGA+1}")
    A(f"v_cvt_pk_bf16_f32 v{vGA+5}, v{vGA+2}, v{vGA+3}")
    A(f"v_cvt_pk_bf16_f32 v{vGA+6}, v{vGA+8}, v{vGA+9}")
    A(f"v_cvt_pk_bf16_f32 v{vGA+7}, v{vGA+10}, v{vGA+11}")
    for h in range(2):
        A(f"v_lshlrev_b32 v{vGA+2*h}, 16, v{vGA+4+h}")
        A(f"v_and_b32 v{vGA+2*h+1}, 0xffff0000, v{vGA+4+h}")
        A(f"v_lshlrev_b32 v{vGA+8+2*h}, 16, v{vGA+6+h}")
        A(f"v_and_b32 v{vGA+8+2*h+1}, 0xffff0000, v{vGA+6+h}")
    for r in range(4): A(f"v_mul_f32 v{vGA+r}, v{vGA+r}, v{vGA+8+r}")

    A("L_late:")
    A(f"v_cvt_pk_bf16_f32 v{vGA}, v{vGA}, v{vGA+1}")
    A(f"v_cvt_pk_bf16_f32 v{vGA+1}, v{vGA+2}, v{vGA+3}")
    A(f"ds_write_b64 v{vAFW}, v[{vGA}:{vGA+1}]")
    signal(F_BA)
    A(f"s_cmp_lg_u32 s{sWDN}, 0")
    A("s_cbranch_scc1 L_late_fast")
    refresh_prog()
    A(f"s_cmp_lt_u32 s{sPROG}, s{sPE}")
    A("s_cbranch_scc1 L_late_slow")
    wreads(0, 8)
    A("L_late_fast:")
    cwait(F_BA, 8)
    actreads(8)
    for kb in range(8):
        A(f"s_waitcnt lgkmcnt({7-kb})")
        mf(kb, kb == 0)
    A("s_branch L_late_done")
    A("L_late_slow:")
    cwait(F_BA, 8)
    actreads(8)
    A(f"s_sub_u32 s{sTMP2}, s{sPE}, 7")
    for kb in range(8):
        wait_prog(True, sTMP2)
        wreads(kb, kb+1)
        A(f"s_add_u32 s{sTMP2}, s{sTMP2}, 1")
        if kb:
            A("s_waitcnt lgkmcnt(2)")
            mf(kb-1, kb == 1)
    A("s_waitcnt lgkmcnt(0)")
    mf(7, False)
    A("L_late_done:")
    A("s_nop 7")
    publish(vACC, sFA)
    A("s_mov_b64 exec, -1")
    stamp(9)
    A(f"s_cmp_lg_u32 s{sROLE}, 0")
    A("s_cbranch_scc1 L_exit")
    if not (opt.sample & 4): A("s_branch L_reduce")
    A("L_reduce_early:")
    A(f"s_cmp_eq_u32 s{sC}, 7")
    A(f"s_cselect_b32 s{sTMP}, 512, 0")
    A(f"s_sub_u32 s{sGB}, s{sRA}, s{sTMP}")
    A(f"s_subb_u32 s{sGB+1}, s{sRA+1}, 0")
    sample(sGB, [256*i + 192 for i in range(4)], sleep=opt.fsleep, cntstamp=10)
    A("L_reduce:")
    A(f"s_mov_b64 s[{sGA}:{sGA+1}], s[{sRA}:{sRA+1}]")
    for r in range(4): A(f"v_mov_b32 v{vGA+r}, 0")
    A(f"s_cmp_eq_u32 s{sC}, 7")
    A(f"s_cselect_b32 exec_hi, 0, -1")
    gather(nld=1, cntstamp=12, sleep=opt.fgsleep)
    A("s_mov_b32 exec_hi, -1")
    stamp(2)
    A(f"v_permlane32_swap_b32 v{vGA}, v{vGA+2}")
    A(f"v_permlane32_swap_b32 v{vGA+1}, v{vGA+3}")
    A(f"v_add_f32 v{vGA}, v{vGA}, v{vGA+2}")
    A(f"v_add_f32 v{vGA+1}, v{vGA+1}, v{vGA+3}")
    A("s_nop 1")
    A(f"v_permlane16_swap_b32 v{vGA}, v{vGA+1}")
    A(f"v_add_f32 v{vGA}, v{vGA}, v{vGA+1}")
    A(f"v_mul_f32 v{vGA}, v{vGA}, v{vRG}")
    A(f"ds_write_b32 v{vRW}, v{vGA}")
    A("s_mov_b64 exec, 1")
    A(f"ds_add_rtn_u32 v{vTMP}, v9, v{vONE} offset:{F_RED}")
    A("s_mov_b64 exec, -1")
    for i in range(4):
        A(f"ds_read2st64_b32 v[{vGA+2*i}:{vGA+2*i+1}], v{vRR} offset0:{2*i} offset1:{2*i+1}")
    A("s_waitcnt lgkmcnt(4)")
    A(f"v_readfirstlane_b32 s{sTMP}, v{vTMP}")
    A(f"s_cmp_lg_u32 s{sTMP}, 7")
    A("s_cbranch_scc1 L_exit")
    A("s_waitcnt lgkmcnt(0)")
    A(f"v_pk_add_f32 v[{vGA}:{vGA+1}], v[{vGA}:{vGA+1}], v[{vGA+2}:{vGA+3}]")
    A(f"v_pk_add_f32 v[{vGA+4}:{vGA+5}], v[{vGA+4}:{vGA+5}], v[{vGA+6}:{vGA+7}]")
    A(f"v_pk_add_f32 v[{vGA}:{vGA+1}], v[{vGA}:{vGA+1}], v[{vGA+4}:{vGA+5}]")
    A(f"v_add_f32 v{vGA}, v{vGA}, v{vGA+1}")
    A(f"v_cvt_pk_bf16_f32 v{vGA}, v{vGA}, v{vGA}")
    A(f"global_store_short v{vOUT}, v{vGA}, s[{sOUT}:{sOUT+1}] {opt.outflags}")
    A(f"s_cmp_lg_u32 s2, 128")
    A("s_cbranch_scc1 L_noepoch")
    A("s_mov_b64 exec, 1")
    A(f"v_mov_b32 v{vTMP}, 0")
    A(f"global_store_dword v{vTMP}, v{vT}, s[{sWS}:{sWS+1}] sc1")
    A("s_mov_b64 exec, -1")
    A("L_noepoch:")
    if opt.fixdur:
        A(f"s_cmp_lg_u32 s2, {opt.fixwg}")
        A("s_cbranch_scc1 L_nofix")
        A("L_fix:")
        A("s_memrealtime s[14:15]")
        A("s_waitcnt lgkmcnt(0)")
        A("s_sub_u32 s14, s14, s100")
        A(f"s_cmp_lt_u32 s14, {opt.fixdur}")
        A("s_cbranch_scc1 L_fix")
        A("L_nofix:")
    if STAMP:
        A("s_waitcnt vmcnt(0)")
        stamp(1)
    A("s_branch L_exit")

    A("L_poller:")
    if opt.nocomm: A("s_branch L_exit")
    A(f"s_cmp_ge_u32 s{sR}, 16")
    A("s_cbranch_scc1 L_pollM")
    A(f"s_and_b32 s{sTMP}, s{sCB}, 1")
    A(f"s_lshl1_add_u32 s{sTMP}, s{sRBK}, s{sTMP}")
    A(f"s_lshl_b32 s{sTMP}, s{sTMP}, 7")
    ws_addr(sGB, WS_OFL, sTMP)
    A(f"s_lshl_b32 s{sTMP}, s{sRBK}, 9")
    ws_addr(sGA, WS_LSE, sTMP)
    A(f"v_lshlrev_b32 v{vTMP3}, 3, v0")
    A(f"v_lshl_add_u32 v{vWA}, v0, 2, v9")
    A(f"s_cmp_eq_u32 s{sROLE}, 2")
    A(f"s_cselect_b32 s{sTMP2}, {opt.ogatec}, {opt.ogate}")
    wait_prog(True, sTMP2, sleep=2)
    stamp(2)
    pollflags(32, opt.psleep, cntstamp=10)
    stamp(3)
    lp = g.lab("L_lse"); ld = g.lab("L_lsed")
    A(f"s_mov_b32 s{sCNT}, 0")
    A(f"{lp}:")
    if not (opt.dbg & 2): A(f"global_load_dwordx2 v[{vLS}:{vLS+1}], v{vTMP3}, s[{sGA}:{sGA+1}] sc1")
    signal(F_LRDY)
    A(f"s_add_u32 s{sCNT}, s{sCNT}, 1")
    A("s_waitcnt vmcnt(0)")
    A(f"v_cmp_ne_u32 vcc, s{sT}, v{vLS+1}")
    A(f"s_cbranch_vccz {ld}")
    A(f"s_cmp_le_u32 s{sCNT}, {0 if (opt.dbg & 7) else opt.maxpoll}")
    A(f"s_cbranch_scc1 {lp}")
    A(f"{ld}:")
    A(f"v_max_f32_dpp v{vTMP}, v{vLS}, v{vLS} quad_perm:[1,0,3,2] row_mask:0xf bank_mask:0xf")
    A("s_nop 1")
    A(f"v_max_f32_dpp v{vTMP}, v{vTMP}, v{vTMP} quad_perm:[2,3,0,1] row_mask:0xf bank_mask:0xf")
    A(f"v_sub_f32 v{vLS}, v{vLS}, v{vTMP}")
    A(f"v_exp_f32 v{vLS}, v{vLS}")
    A("s_nop 1")
    A(f"v_add_f32_dpp v{vTMP}, v{vLS}, v{vLS} quad_perm:[1,0,3,2] row_mask:0xf bank_mask:0xf")
    A("s_nop 1")
    A(f"v_add_f32_dpp v{vTMP}, v{vTMP}, v{vTMP} quad_perm:[2,3,0,1] row_mask:0xf bank_mask:0xf")
    A(f"v_rcp_f32 v{vTMP}, v{vTMP}")
    A("s_nop 0")
    A(f"v_mul_f32 v{vLS}, v{vLS}, v{vTMP}")
    A(f"ds_write_b32 v{vWA}, v{vLS} offset:{F_WT}")
    signal(F_WRDY)
    stamp(4)
    A("s_branch L_exit")
    A("L_pollM:")
    A(f"s_lshl3_add_u32 s{sTMP}, s{sG}, s{sBB}")
    A(f"s_lshl_b32 s{sTMP}, s{sTMP}, 7")
    ws_addr(sGB, WS_QFL, sTMP)
    wait_prog(False, opt.qgate, sleep=2)
    stamp(2)
    pollflags(32, opt.psleep, cntstamp=10)
    signal(F_QRDY)
    stamp(3)
    A(f"s_cmp_eq_u32 s{sROLE}, 3")
    A("s_cbranch_scc1 L_exit")
    A(f"s_and_b32 s{sTMP}, s{sCB}, 1")
    A(f"s_lshl1_add_u32 s{sTMP}, s{sRBK}, s{sTMP}")
    A(f"s_lshl_b32 s{sTMP}, s{sTMP}, 7")
    ws_addr(sGB, WS_HFL, sTMP)
    wait_prog(False, opt.hgate, sleep=2)
    stamp(4)
    pollflags(8, opt.psleep, cntstamp=11)
    signal(F_LRDY)
    stamp(5)

    A("L_exit:")
    if STAMP:
        A("s_waitcnt lgkmcnt(0)")
        A(f"s_mul_i32 s{sTMP}, s2, 10")
        A(f"s_add_u32 s{sTMP}, s{sTMP}, s3")
        A(f"s_lshl_b32 s{sTMP}, s{sTMP}, 6")
        A(f"s_add_u32 s{sTMP}, s{sTMP}, {WS_STAMP}")
        A(f"v_mov_b32 v1, s{sTMP}")
        A("s_mov_b64 exec, 1")
        for i in range(NST):
            A(f"v_mov_b32 v2, s{sST+2*i}")
            A(f"global_store_dword v1, v2, s[{sWS}:{sWS+1}] offset:{4*i}")
        A(f"v_mov_b32 v2, s{sROLE}")
        A(f"global_store_dword v1, v2, s[{sWS}:{sWS+1}] offset:60")
    A("L_end:")
    A("s_endpgm")

    body = "\n".join(g.o)
    txt = HEADER
    txt += f"; @launch grid=(256,1,1) block=(640,1,1) lds={LDS_BYTES}\n"
    txt += f""".amdgcn_target "amdgcn-amd-amdhsa--gfx950"
.text
.globl {KNAME}
.p2align 8
.type {KNAME},@function
{KNAME}:
{body}
.section .rodata,"a"
.p2align 6
.amdhsa_kernel {KNAME}
  .amdhsa_next_free_vgpr {NV}
  .amdhsa_next_free_sgpr 102
  .amdhsa_accum_offset {NV}
  .amdhsa_group_segment_fixed_size 0
  .amdhsa_kernarg_size 104
  .amdhsa_user_sgpr_count 2
  .amdhsa_user_sgpr_kernarg_segment_ptr 1
  .amdhsa_system_sgpr_workgroup_id_x 1
.end_amdhsa_kernel
"""
    return txt

def parse(argv):
    ap = argparse.ArgumentParser()
    ap.add_argument("--nt", default="nt")
    ap.add_argument("--pb", default="8:24,24:20")
    ap.add_argument("--pc", default="8:24,d,8:8")
    ap.add_argument("--pm", default="4:4,12:20,8:20")
    ap.add_argument("--nb0b", type=int, default=3)
    ap.add_argument("--nb0m", type=int, default=1)
    ap.add_argument("--stamp", type=int, default=0)
    ap.add_argument("--qgate", type=int, default=5)
    ap.add_argument("--ogate", type=int, default=20)
    ap.add_argument("--ogatec", type=int, default=29)
    ap.add_argument("--hgate", type=int, default=18)
    ap.add_argument("--ggate", type=int, default=1)
    ap.add_argument("--maxpoll", type=int, default=100000)
    ap.add_argument("--psleep", type=int, default=2)
    ap.add_argument("--fsleep", type=int, default=2)
    ap.add_argument("--gsleep", type=int, default=0)
    ap.add_argument("--fgsleep", type=int, default=0)
    ap.add_argument("--sample", type=int, default=0)
    ap.add_argument("--outflags", default="")
    ap.add_argument("--fixdur", type=int, default=0)
    ap.add_argument("--fixwg", type=int, default=128)
    ap.add_argument("--nocomm", type=int, default=0)
    ap.add_argument("--dbg", type=int, default=0)
    ap.add_argument("--cpf", type=int, default=2)
    ap.add_argument("--qlead", type=int, default=2)
    ap.add_argument("--hlead", type=int, default=2)
    ap.add_argument("--olead", type=int, default=2)
    ap.add_argument("--oearly", type=int, default=1)
    ap.add_argument("--flagwave", type=int, default=1)
    ap.add_argument("-o", default=None)
    return ap.parse_args(argv)

if __name__ == "__main__":
    opt = parse(sys.argv[1:])
    t = gen(opt)
    if opt.o: open(opt.o, "w").write(t)
    else: print(t)
```

```python
import sys, argparse, struct, math

KNAME = "gated_mix__sliding_block_cached__glu_gated_reglu__decode_kernel"
HEADER = open("gated_mix__sliding_block_cached__glu_gated_reglu__decode.s.ref").read().split("; Override launch")[0]

RA = 0
RB = 65536
XA = 131072
RQ = RB + 32768
XF = XA
QF = XA + 2048
PF = XA + 4096
RS = XA + 8192
AF = XA + 12288
FL = XA + 16384
F_PROG, F_LRDY, F_QRDY, F_WRDY, F_BQ, F_BM, F_BP, F_BA, F_RED, F_PUB0, F_PUB1, F_FREE0, F_FREE1 = [4*i for i in range(13)]
F_MAX = 64
F_G = 96
F_WT = 128
LDS_BYTES = FL + 128 + 256

WS_QP = 1 << 20
WS_OP = 2 << 20
WS_LSE = (2 << 20) + (512 << 10)
WS_GP = 3 << 20
WS_FP = 4 << 20
WS_QC = 5 << 20
WS_OC = WS_QC + 16384
WS_HC = WS_QC + 32768
WS_STAMP = 8 << 20

class G:
    def __init__(self):
        self.o = []; self.nlab = 0
    def A(self, s):
        for line in s.split("\n"):
            self.o.append("    " + line.strip() if not line.strip().endswith(":") else line.strip())
    def lab(self, p="L"):
        self.nlab += 1
        return f"{p}_{self.nlab}"

def plan(s):
    out = []
    for t in s.split(","):
        if t == "d": out.append("d")
        else:
            a, b = t.split(":"); out.append((int(a), int(b)))
    return out

def gen(opt):
    g = G(); A = g.A
    NT = opt.nt
    STAMP = opt.stamp
    sX, sK, sV, sWQ, sWO, sBX, sWG, sWU = [16+2*i for i in range(8)]
    sWD, sGW, sOUT, sDBG = 32, 34, 36, 38
    sWS = 40
    sXCD, sR, sROLE = 42, 43, 44
    sU, sBETA, sG, sSPL, sRBK, sCB, sBB = 45, 46, 47, 48, 49, 50, 51
    sKS, sKB0 = 100, 101
    sWDN = 52
    sT = 54
    sT0, sT1, sT2, sT3 = 54, 56, 57, 53
    sSEL0, sSEL1, sSEL2, sSEL3 = 58, 59, 60, 61
    sPROG, sC = 62, 63
    sTMP, sTMP2, sTMP3, sCNT = 64, 65, 66, 67
    sGA, sGB = 68, 70
    sROT = 15
    sSM = 4
    sST = 72
    NST = 14
    SRD = 8
    def stamp(idx):
        if STAMP: A(f"s_memrealtime s[{sST+2*idx}:{sST+2*idx+1}]")
    def stampval(idx, sreg):
        if STAMP: A(f"s_mov_b32 s{sST+2*idx}, s{sreg}")
    pb, pc, pm = plan(opt.pb), plan(opt.pc), plan(opt.pm)
    NB0 = opt.nb0
    assert NB0 <= 3

    stamp(0)
    if opt.fixdur: A("s_memrealtime s[98:99]")
    A("s_load_dwordx16 s[16:31], s[0:1], 0")
    A("s_load_dwordx8 s[32:39], s[0:1], 64")
    A("s_load_dwordx2 s[40:41], s[0:1], 96")
    A(f"s_cmp_ge_u32 s2, 256")
    A("s_cbranch_scc1 L_end")
    A("v_lshrrev_b32 v1, 6, v0")
    A("v_and_b32 v0, 63, v0")
    A("v_readfirstlane_b32 s3, v1")
    A(f"s_and_b32 s{sXCD}, s2, 7")
    A(f"s_lshr_b32 s{sR}, s2, 3")
    A(f"s_lshr_b32 s{sG}, s{sXCD}, 1")
    A(f"s_and_b32 s{sTMP3}, s{sXCD}, 1")
    A(f"s_add_u32 s{sROT}, s{sR}, s{sXCD}")
    A(f"s_lshl_b32 s{sTMP}, s{sXCD}, 1")
    A(f"s_sub_u32 s{sTMP}, s{sR}, s{sTMP}")
    A(f"s_sub_u32 s{sTMP}, s{sTMP}, 4")
    A(f"s_bfe_u32 s{sTMP2}, s{sTMP}, 0x20002")
    A(f"s_and_b32 s{sTMP}, s{sTMP}, 3")
    A(f"s_lshl2_add_u32 s{sU}, s{sTMP}, s{sTMP2}")
    A(f"s_cmp_ge_u32 s{sR}, 16")
    A(f"s_cselect_b32 s{sU}, s{sR}, s{sU}")
    A(f"s_lshr_b32 s{sTMP}, s{sU}, 3")
    A(f"s_lshl2_add_u32 s{sKS}, s{sTMP3}, s{sTMP}")
    A("s_cmp_lg_u32 s3, 0")
    A("s_cbranch_scc1 L_notloader")
    sSOFF, sSTEP, sNB, sBLK = 4, 5, 6, 7
    sIDX, sWRAP, sBASE = 12, 13, 14
    A("s_setprio 3")
    A(f"v_mov_b32 v9, {FL}")
    A("v_mov_b32 v10, 0xff7fffff")
    A("v_cmp_gt_u32 vcc, 16, v0")
    A("v_lshl_add_u32 v11, v0, 2, v9")
    A("v_lshrrev_b32 v2, 4, v0")
    A("v_cndmask_b32 v10, v10, 0, vcc")
    A("ds_write_b32 v11, v10")
    A("v_bfe_u32 v3, v0, 1, 3")
    A("v_xor_b32 v3, v3, v2")
    A("v_lshlrev_b32 v3, 5, v3")
    A("v_and_b32 v4, 1, v0")
    A("v_lshl_or_b32 v3, v4, 4, v3")
    A("v_xor_b32 v4, 0x80, v3")
    A("v_lshl_add_u32 v5, v2, 13, v3")
    A("v_lshl_add_u32 v6, v2, 13, v4")
    A(f"s_mov_b32 s{SRD+3}, 0x20000")
    A(f"s_and_b32 s{sTMP}, s{sU}, 7")
    A(f"s_lshl3_add_u32 s{sTMP}, s{sG}, s{sTMP}")
    A(f"s_lshl_b32 s{sTMP}, s{sTMP}, 8")
    A(f"s_lshl_b32 s{sSOFF}, s{sKS}, 20")
    A(f"s_add_u32 s{sSOFF}, s{sSOFF}, s{sTMP}")
    A(f"s_mov_b32 s{SRD+2}, {1024*4096*2}")
    A(f"s_mov_b32 s{sNB}, {NB0}")
    A(f"s_mov_b32 s{sSTEP}, {4*8192}")
    A(f"s_mov_b32 m0, {RQ}")
    A(f"s_mov_b32 s{sBLK}, {NB0}")
    A("s_waitcnt lgkmcnt(0)")
    A(f"s_mov_b64 s[{SRD}:{SRD+1}], s[{sWQ}:{sWQ+1}]")
    A("s_barrier")
    def blk_body(win, rot):
        ph = (win // 4) & 1 if win is not None else 0
        back = (win - 4*ph) // 8 if win is not None else 0
        for half in range(2):
            if win is not None:
                if half == ph:
                    A(f"s_sub_u32 s{sTMP}, s{sBLK}, {back}")
                    A(f"s_max_i32 s{sPROG}, s{sTMP}, s{sPROG}")
                    A(f"v_mov_b32 v10, s{sPROG}")
                A(f"s_waitcnt vmcnt({win})")
                if half == ph: A(f"ds_write_b32 v9, v10 offset:{F_PROG}")
            for i in range(4):
                v = 5 if ((i >> 1) & 1) == 0 else 6
                A(f"buffer_load_dwordx4 v{v}, s[{SRD}:{SRD+3}], s{sSOFF} offen {NT} lds")
                A(f"s_add_u32 m0, m0, 1024")
                A(f"s_add_u32 s{sSOFF}, s{sSOFF}, s{sSTEP}")
        if rot:
            A(f"s_add_u32 s{sIDX}, s{sIDX}, 1")
            A(f"s_and_b32 s{sIDX}, s{sIDX}, 7")
            A(f"s_cselect_b32 s{sTMP}, 0, s{sWRAP}")
            A(f"s_sub_u32 s{sSOFF}, s{sSOFF}, s{sTMP}")
    A("L_top_loop:")
    blk_body(None, False)
    A(f"s_sub_u32 s{sNB}, s{sNB}, 1")
    A(f"s_cmp_lg_u32 s{sNB}, 0")
    A("s_cbranch_scc1 L_top_loop")
    A("s_branch L_loader2")
    A("L_notloader:")
    if opt.cpf:
        A(f"s_cmp_gt_u32 s3, {opt.cpf}")
        A("s_cbranch_scc1 L_cpf_done")
        A("s_getpc_b64 s[4:5]")
        A("L_pc:")
        A(f"s_lshl_b32 s{sTMP}, s3, 13")
        A(f"s_sub_u32 s{sTMP}, s{sTMP}, 8192")
        A(f"v_lshl_add_u32 v1, v0, 7, s{sTMP}")
        A(f"v_cmp_gt_u32 vcc, L_end-L_pc, v1")
        A("s_and_saveexec_b64 s[6:7], vcc")
        A("s_cbranch_execz L_cpf_done2")
        A(f"global_load_dword v127, v1, s[4:5]")
        A("L_cpf_done2:")
        A("s_mov_b64 exec, -1")
        A("L_cpf_done:")
    A("s_barrier")
    A("s_branch L_cons")

    def decode2():
        d = g.lab("L_d2"); m = g.lab("L_d2m")
        if STAMP:
            for i in range(1, NST): A(f"s_mov_b32 s{sST+2*i}, 0")
        A(f"s_mul_i32 s{sBETA}, s{sXCD}, 14")
        A(f"s_add_u32 s{sBETA}, s{sBETA}, s{sR}")
        A(f"s_mov_b32 s{sPROG}, 0")
        A(f"s_cmp_ge_u32 s{sR}, 16")
        A(f"s_cbranch_scc1 {m}")
        A(f"s_cmp_ge_u32 s{sR}, 14")
        A(f"s_cselect_b32 s{sROLE}, 2, 1")
        A(f"s_lshr_b32 s{sTMP}, s{sU}, 3")
        A(f"s_lshl1_add_u32 s{sRBK}, s{sXCD}, s{sTMP}")
        A(f"s_add_u32 s{sTMP}, s{sU}, 3")
        A(f"s_and_b32 s{sTMP}, s{sTMP}, 3")
        A(f"s_and_b32 s{sCB}, s{sU}, 4")
        A(f"s_or_b32 s{sCB}, s{sCB}, s{sTMP}")
        A(f"s_lshl_b32 s{sKB0}, s{sRBK}, 3")
        A(f"s_branch {d}")
        A(f"{m}:")
        A(f"s_mov_b32 s{sROLE}, 0")
        A(f"s_and_b32 s{sTMP}, s{sXCD}, 1")
        A(f"s_bfe_u32 s{sBB}, s{sR}, 0x20002")
        A(f"s_lshl2_add_u32 s{sBB}, s{sTMP}, s{sBB}")
        A(f"s_and_b32 s{sSPL}, s{sR}, 3")
        A(f"s_bfe_u32 s{sTMP}, s{sR}, 0x10003")
        A(f"s_lshl1_add_u32 s{sRBK}, s{sXCD}, s{sTMP}")
        A(f"s_mul_i32 s{sKB0}, s{sRBK}, 7")
        A(f"s_add_u32 s{sCB}, s{sR}, 1")
        A(f"s_and_b32 s{sCB}, s{sCB}, 7")
        A(f"{d}:")

    A("L_loader2:")
    decode2()
    stamp(1)
    def lds_wait_ge(off, val, vtmp="v11", vaddr="v9", sleep=0):
        l = g.lab("L_w")
        A(f"{l}:")
        if sleep: A(f"s_sleep {sleep}")
        A(f"ds_read_b32 {vtmp}, {vaddr} offset:{off}")
        A("s_waitcnt lgkmcnt(0)")
        A(f"v_readfirstlane_b32 s{sTMP}, {vtmp}")
        A(f"s_cmp_ge_u32 s{sTMP}, {val}")
        A(f"s_cbranch_scc0 {l}")
    def blk_loop(nblk, win, rot):
        l = g.lab("L_ld")
        if nblk > 1:
            A(f"s_mov_b32 s{sNB}, {nblk}")
            A(f"{l}:")
        blk_body(win, rot)
        A(f"s_add_u32 s{sBLK}, s{sBLK}, 1")
        if nblk > 1:
            A(f"s_sub_u32 s{sNB}, s{sNB}, 1")
            A(f"s_cmp_lg_u32 s{sNB}, 0")
            A(f"s_cbranch_scc1 {l}")
    def drain(maxwin):
        for k in range((maxwin + 4 + 7)//8 - 1, -1, -1):
            A(f"s_sub_u32 s{sTMP}, s{sBLK}, {k}")
            A(f"s_max_i32 s{sPROG}, s{sTMP}, s{sPROG}")
            A(f"v_mov_b32 v10, s{sPROG}")
            A(f"s_waitcnt vmcnt({8*k})")
            A(f"ds_write_b32 v9, v10 offset:{F_PROG}")
    def set_stride(stride):
        A(f"s_mov_b32 s{sSTEP}, {4*stride}")
        if stride & (stride-1) == 0:
            sh = stride.bit_length()-1
            A(f"v_lshl_add_u32 v5, v2, {sh}, v3")
            A(f"v_lshl_add_u32 v6, v2, {sh}, v4")
        else:
            A(f"v_mul_u32_u24 v8, {stride}, v2")
            A("v_add_u32 v5, v8, v3")
            A("v_add_u32 v6, v8, v4")
        A(f"s_mov_b32 s{sWRAP}, {256*stride}")
    XSRD = 68
    def xloads(n, ldsbase):
        for j in range(4):
            A(f"s_add_u32 s{sTMP}, s{sROT}, {2*j}")
            A(f"s_and_b32 s{sTMP}, s{sTMP}, 7")
            A(f"s_lshl_b32 s{sTMP}, s{sTMP}, 6")
            A(f"s_add_u32 s{sTMP}, s{sTMP}, s{sTMP3}")
            for q in range(n//4):
                A(f"s_mov_b32 m0, {ldsbase + 4096*q + 1024*j - 512*q}")
                A("s_nop 0")
                A(f"buffer_load_dwordx4 v7, s[{XSRD}:{XSRD+3}], s{sTMP} offen offset:{512*q} lds")
    def run_plan(pl, segs, start, hook=None):
        blk = 0; lastwin = 0
        segmap = {x[0]: x for x in segs}
        rot = False
        items = []
        for it in pl:
            if it == "d": items.append(it); continue
            n, w = it
            while n:
                c = min(n, 4 - blk if blk < 4 else 8 - ((blk - 4) % 8))
                if blk < start: c = min(c, start - blk)
                if hook and blk < hook[0]: c = min(c, hook[0] - blk)
                if blk >= start: items.append((blk, c, w))
                blk += c; n -= c
            lastw = w
        lastwin = pl[0][1]
        for it in items:
            if it == "d":
                drain(max(lastwin, 8*start)); continue
            b0, c, w = it
            if b0 >= 4 and (b0 - 4) % 8 == 0:
                seg = (b0 - 4) // 8 + 1
                stamp(1 + seg)
                if seg >= 2: lds_wait_ge(F_FREE0 + 4*(seg-2), 8)
                if b0 in segmap:
                    segmap[b0][1](); rot = segmap[b0][2]
                elif rot:
                    A(f"s_add_u32 s{sSOFF}, s{sSOFF}, s{sWRAP}")
                A(f"s_mov_b32 m0, {RA if seg % 2 == 1 else RB}")
            if hook and b0 == hook[0]: hook[1]()
            blk_loop(c, w, rot)
            lastwin = w
        stamp(8)
        drain(max(x[1] for x in pl if x != "d"))
        stamp(9)
    def late_seg(ptr, nbytes):
        def f():
            set_stride(2048)
            A(f"s_mov_b64 s[{SRD}:{SRD+1}], s[{ptr}:{ptr+1}]\ns_mov_b32 s{SRD+2}, {nbytes}")
            A(f"s_lshl_b32 s{sSOFF}, s{sKB0}, 16")
            A(f"s_lshl_b32 s{sTMP}, s{sCB}, 8")
            A(f"s_add_u32 s{sSOFF}, s{sSOFF}, s{sTMP}")
        return f
    A("v_and_b32 v7, 7, v0")
    A("v_lshlrev_b32 v7, 11, v7")
    A("v_lshrrev_b32 v8, 3, v0")
    A("v_lshl_add_u32 v7, v8, 4, v7")
    A(f"s_mov_b64 s[{XSRD}:{XSRD+1}], s[{sX}:{sX+1}]\ns_mov_b32 s{XSRD+2}, 16384\ns_mov_b32 s{XSRD+3}, 0x20000")
    A(f"s_lshl_b32 s{sTMP3}, s{sKS}, 8")
    A(f"s_mov_b32 m0, {XF}")
    A("s_nop 0")
    A(f"buffer_load_dwordx4 v7, s[{XSRD}:{XSRD+3}], s{sTMP3} offen lds")
    A(f"s_mov_b32 m0, {XF + 1024 - 128}")
    A("s_nop 0")
    A(f"buffer_load_dwordx4 v7, s[{XSRD}:{XSRD+3}], s{sTMP3} offen offset:128 lds")
    A(f"s_mov_b32 m0, {RQ + 8192*NB0}")
    A(f"s_cmp_ge_u32 s{sR}, 16")
    A("s_cbranch_scc1 L_ld_M")
    def b_seg1():
        A(f"s_and_b32 s{sROT}, s{sROT}, 6")
        A(f"s_mov_b32 s{sIDX}, s{sROT}")
        A(f"s_and_b32 s{sTMP2}, s{sBETA}, 1")
        set_stride(7168)
        A(f"s_mul_i32 s{sSOFF}, s{sTMP2}, {512*7168}")
        A(f"s_lshr_b32 s{sTMP}, s{sBETA}, 2")
        A(f"s_lshl_b32 s{sTMP}, s{sTMP}, 8")
        A(f"s_add_u32 s{sSOFF}, s{sSOFF}, s{sTMP}")
        A(f"s_mul_i32 s{sTMP}, s{sROT}, {32*7168}")
        A(f"s_add_u32 s{sSOFF}, s{sSOFF}, s{sTMP}")
        A(f"s_bitcmp0_b32 s{sBETA}, 1")
        A(f"s_cselect_b64 s[{SRD}:{SRD+1}], s[{sWG}:{sWG+1}], s[{sWU}:{sWU+1}]")
        A(f"s_mov_b32 s{SRD+2}, {1024*3584*2}")
    A(f"s_cmp_eq_u32 s{sROLE}, 2")
    A("s_cbranch_scc1 L_ld_C")
    assert sum(x[0] for x in pb if x != "d") == 28
    XGAT = opt.xgat
    def xg_hook():
        A(f"s_and_b32 s{sTMP3}, s{sBETA}, 1")
        A(f"s_lshl_b32 s{sTMP3}, s{sTMP3}, 10")
        xloads(8, XF + 2048)
        A(f"s_mov_b32 m0, {RA + 8192*(XGAT-4)}")
    run_plan(pb, [(4, b_seg1, True), (20, late_seg(sWO, 4096*1024*2), False)], NB0, hook=(XGAT, xg_hook))
    A("s_branch L_exit")
    A("L_ld_C:")
    assert sum(x[0] for x in pc if x != "d") == 12 and pc[1] == "d" and pc[0][0] == 4
    def c_seg1():
        late_seg(sWO, 4096*1024*2)()
        A(f"s_mov_b32 s{sBLK}, 20")
    run_plan(pc, [(4, c_seg1, False)], NB0)
    A("s_branch L_exit")
    A("L_ld_M:")
    def m_seg1():
        A(f"s_and_b32 s{sROT}, s{sROT}, 7")
        A(f"s_mov_b32 s{sIDX}, s{sROT}")
        set_stride(256)
        A(f"s_lshl2_add_u32 s{sTMP}, s{sBB}, s{sG}")
        A(f"s_lshl4_add_u32 s{sTMP}, s{sTMP}, s{sSPL}")
        A(f"s_add_u32 s{sTMP}, s{sTMP}, 12")
        A(f"s_lshl3_add_u32 s{sTMP}, s{sTMP}, s{sROT}")
        A(f"s_lshl_b32 s{sSOFF}, s{sTMP}, 13")
        A(f"s_mov_b64 s[{SRD}:{SRD+1}], s[{sK}:{sK+1}]\ns_mov_b32 s{SRD+2}, {8*4*4096*128*2}")
    def m_seg2():
        A(f"s_mov_b64 s[{SRD}:{SRD+1}], s[{sV}:{sV+1}]")
    assert sum(x[0] for x in pm if x != "d") == 27
    run_plan(pm, [(4, m_seg1, True), (12, m_seg2, True), (20, late_seg(sWD, 3584*1024*2), False)], NB0)
    A("s_branch L_exit")

    A("L_cons:")
    vL16, vTR, vACT, vT, vPUB = 1, 2, 3, 4, 5
    vTMP, vTMP2, vTMP3 = 6, 7, 8
    vWA, vAA = 10, 11
    vW, vB, vACC, vACC2 = 12, 16, 20, 24
    vGA = 28
    vLS = 44
    vK = 52
    vQ = 84
    vRG, vRW, vRR, vOUT, vONE, vAFW, vFLG = 116, 117, 118, 119, 120, 121, 122
    NV = 128
    A("s_waitcnt lgkmcnt(0)")
    A(f"s_load_dword s{sT}, s[{sWS}:{sWS+1}], 0")
    decode2()
    stamp(1)
    A(f"s_sub_u32 s{sC}, s3, 1")
    A(f"s_mov_b32 s{sSEL0}, 0x07060500\ns_mov_b32 s{sSEL1}, 0x07060501\ns_mov_b32 s{sSEL2}, 0x07060502\ns_mov_b32 s{sSEL3}, 0x07060503")
    A(f"v_mov_b32 v9, {FL}")
    A(f"v_mov_b32 v{vONE}, 1")
    A(f"v_lshlrev_b32 v{vL16}, 4, v0")
    A(f"v_lshlrev_b32 v{vFLG}, 7, v0")
    A(f"v_lshrrev_b32 v{vTMP2}, 4, v0")
    A(f"v_bfe_u32 v{vTMP3}, v0, 2, 2")
    A(f"v_lshl_add_u32 v{vTR}, v{vTMP2}, 3, v{vTMP3}")
    A(f"v_lshlrev_b32 v{vTR}, 8, v{vTR}")
    A(f"v_and_b32 v{vACT}, 1, v{vTMP2}")
    A(f"v_lshl_or_b32 v{vTMP3}, v{vACT}, 2, v{vTMP3}")
    A(f"v_xor_b32 v{vTMP3}, s{sC}, v{vTMP3}")
    A(f"v_lshl_or_b32 v{vTR}, v{vTMP3}, 5, v{vTR}")
    A(f"v_and_b32 v{vTMP3}, 3, v0")
    A(f"v_lshl_or_b32 v{vTR}, v{vTMP3}, 3, v{vTR}")
    A(f"v_and_b32 v{vTMP3}, 7, v0")
    A(f"v_lshl_add_u32 v{vACT}, v{vTMP2}, 3, v{vTMP3}")
    A(f"v_lshlrev_b32 v{vACT}, 4, v{vACT}")
    A(f"v_lshrrev_b32 v{vAFW}, 5, v0")
    A(f"v_lshlrev_b32 v{vAFW}, 8, v{vAFW}")
    A(f"v_and_b32 v{vTMP2}, 2, v0")
    A(f"v_lshl_or_b32 v{vAFW}, v{vTMP2}, 6, v{vAFW}")
    A(f"v_and_b32 v{vTMP2}, 28, v0")
    A(f"v_lshl_or_b32 v{vAFW}, v{vTMP2}, 2, v{vAFW}")
    A(f"v_and_b32 v{vTMP2}, 1, v0")
    A(f"v_lshl_or_b32 v{vAFW}, v{vTMP2}, 3, v{vAFW}")
    A(f"s_lshl_b32 s{sTMP}, s{sC}, 9")
    A(f"s_add_u32 s{sTMP}, s{sTMP}, {AF}")
    A(f"v_add_u32 v{vAFW}, s{sTMP}, v{vAFW}")
    A("s_waitcnt lgkmcnt(0)")
    A(f"s_add_u32 s{sT}, s{sT}, 0x01010101")
    A(f"s_mov_b32 s{sT+1}, s{sT}")
    A(f"s_lshr_b32 s{sT1}, s{sT}, 8\ns_lshr_b32 s{sT2}, s{sT}, 16\ns_lshr_b32 s{sT3}, s{sT}, 24")
    A(f"v_mov_b32 v{vT}, s{sT}")

    def refresh_prog():
        A(f"ds_read_b32 v{vTMP}, v9 offset:{F_PROG}")
        A("s_waitcnt lgkmcnt(0)")
        A(f"v_readfirstlane_b32 s{sPROG}, v{vTMP}")
    def wait_prog(val_is_sgpr, val, sleep=0):
        l = g.lab("L_wp"); d = g.lab("L_wpd")
        v = f"s{val}" if val_is_sgpr else str(val)
        A(f"s_cmp_ge_u32 s{sPROG}, {v}")
        A(f"s_cbranch_scc1 {d}")
        A(f"{l}:")
        if sleep: A(f"s_sleep {sleep}")
        refresh_prog()
        A(f"s_cmp_ge_u32 s{sPROG}, {v}")
        A(f"s_cbranch_scc0 {l}")
        A(f"{d}:")
    def signal(off):
        A("s_mov_b64 exec, 1")
        A(f"ds_add_u32 v9, v{vONE} offset:{off}")
        A("s_mov_b64 exec, -1")
    def cwait(off, val, sleep=0):
        lds_wait_ge(off, val, vtmp=f"v{vTMP}", sleep=sleep)
    def publish(src, base=sGA):
        for r, sel in enumerate([sSEL0, sSEL1, sSEL2, sSEL3]):
            A(f"v_perm_b32 v{src+r}, v{src+r}, v{vT}, s{sel}")
        A("s_mov_b32 exec_lo, 0x00ff00ff\ns_mov_b32 exec_hi, 0x00ff00ff")
        if not (opt.dbg & 1): A(f"global_store_dwordx4 v{vPUB}, v[{src}:{src+3}], s[{base}:{base+1}] sc1")
    NREP = opt.nrep; HREP = max(1, NREP // 4)
    sNH = 9
    def bump(kind):
        if opt.dbg & 1: return
        if opt.satom:
            A(f"s_mov_b32 s8, 1")
            if kind == "h":
                e = g.lab("L_bh")
                for r in range(HREP): A(f"s_atomic_add s8, s[{sGB}:{sGB+1}], {128*r}")
                A(f"s_cmp_eq_u32 s{sNH}, {HREP}")
                A(f"s_cbranch_scc1 {e}")
                for r in range(HREP, 2*HREP): A(f"s_atomic_add s8, s[{sGB}:{sGB+1}], {128*r}")
                A(f"{e}:")
            else:
                for r in range(NREP): A(f"s_atomic_add s8, s[{sGB}:{sGB+1}], {128*r}")
        else:
            if kind == "h": A(f"s_bfm_b64 exec, s{sNH}, 0")
            else: A(f"s_bfm_b64 exec, {NREP}, 0")
            A(f"global_atomic_add v{vFLG}, v{vONE}, s[{sGB}:{sGB+1}] sc1")
    def flag(cnt, nrep, last=7):
        d = g.lab("L_fl")
        A("s_mov_b64 exec, 1")
        A(f"ds_add_rtn_u32 v{vTMP}, v9, v{vONE} offset:{cnt}")
        A("s_waitcnt lgkmcnt(0)")
        A(f"v_readfirstlane_b32 s{sTMP}, v{vTMP}")
        A(f"s_cmp_lg_u32 s{sTMP}, {last}")
        A(f"s_cbranch_scc1 {d}")
        bump(nrep)
        A(f"{d}:")
        A("s_mov_b64 exec, -1")
    def flag_now(nrep):
        d = g.lab("L_fn")
        A(f"s_cmp_lg_u32 s{sC}, {opt.flagwave}")
        A(f"s_cbranch_scc1 {d}")
        bump(nrep)
        A("s_mov_b64 exec, -1")
        A(f"{d}:")
    def ws_addr(dst, base_const, soff):
        A(f"s_add_u32 s{soff}, s{soff}, {base_const}")
        A(f"s_add_u32 s{dst}, s{sWS}, s{soff}")
        A(f"s_addc_u32 s{dst+1}, s{sWS+1}, 0")
    def pub_voff(shift):
        A(f"v_and_b32 v{vTMP2}, 15, v0")
        A(f"v_and_b32 v{vTMP3}, 48, v0")
        A(f"v_lshl_or_b32 v{vPUB}, v{vTMP2}, {shift}, v{vTMP3}")
    def sample(base, offs, sleep=0, cntstamp=None):
        l = g.lab("L_sm"); d = g.lab("L_smd"); e = g.lab("L_sme")
        if opt.dbg & 7: return
        A(f"s_mov_b32 s{sCNT}, 0")
        if sleep: A(f"s_branch {e}")
        A(f"{l}:")
        if sleep:
            A(f"s_sleep {sleep}")
            A(f"{e}:")
        for i, o in enumerate(offs):
            A(f"s_load_dword s{sSM+i}, s[{base}:{base+1}], {o} glc")
        A(f"s_add_u32 s{sCNT}, s{sCNT}, 1")
        A(f"s_cmp_gt_u32 s{sCNT}, {opt.maxpoll}")
        A("s_waitcnt lgkmcnt(0)")
        A(f"s_cbranch_scc1 {d}")
        for i in range(len(offs)):
            A(f"s_xor_b32 s{sSM+i}, s{sSM+i}, s{sT}")
            if i: A(f"s_or_b32 s{sSM}, s{sSM}, s{sSM+i}")
        A(f"s_and_b32 s{sSM}, s{sSM}, 0xff")
        A(f"s_cbranch_scc1 {l}")
        A(f"{d}:")
        if cntstamp is not None: stampval(cntstamp, sCNT)
    def pollcnt(base, target, sleep, cntstamp=None):
        l = g.lab("L_pf"); d = g.lab("L_pfd"); e = g.lab("L_pfe")
        if opt.dbg & 7: return
        A(f"s_mov_b32 s{sCNT}, 0")
        if sleep: A(f"s_branch {e}")
        A(f"{l}:")
        if sleep:
            A(f"s_sleep {sleep}")
            A(f"{e}:")
        A(f"s_load_dword s8, s[{base}:{base+1}], 0 glc")
        A(f"s_add_u32 s{sCNT}, s{sCNT}, 1")
        A(f"s_cmp_gt_u32 s{sCNT}, {opt.maxhint}")
        A("s_waitcnt lgkmcnt(0)")
        A(f"s_cbranch_scc1 {d}")
        A(f"s_cmp_eq_u32 s8, s{target}")
        A(f"s_cbranch_scc0 {l}")
        A(f"{d}:")
        if cntstamp is not None: stampval(cntstamp, sCNT)
    def gather(nld=4, mid=None, cntstamp=None, sleep=0, lsb=None):
        l = g.lab("L_ga"); d = g.lab("L_gad"); c = g.lab("L_gac")
        def issue():
            if opt.dbg & 2: return
            for i in range(nld):
                A(f"global_load_dwordx4 v[{vGA+4*i}:{vGA+4*i+3}], v{vL16}, s[{sGA}:{sGA+1}] offset:{1024*i} sc1")
        if mid is not None or sleep:
            issue()
            if mid is not None: mid()
            A(f"s_mov_b32 s{sCNT}, 0")
            A(f"s_branch {c}")
        else:
            A(f"s_mov_b32 s{sCNT}, 0")
        A(f"{l}:")
        if sleep: A(f"s_sleep {sleep}")
        issue()
        A(f"{c}:")
        A(f"s_add_u32 s{sCNT}, s{sCNT}, 1")
        ts = [sT0, sT1, sT2, sT3]
        vC = vTMP2
        for i in range(nld):
            A(f"s_waitcnt vmcnt({nld-1-i})")
            for r in range(4):
                t = f"s{ts[r]}" if lsb is None else f"v{lsb+r}"
                if i == 0 and r == 0:
                    A(f"v_xor_b32 v{vC}, {t}, v{vGA}")
                else:
                    A(f"v_bitop3_b32 v{vC}, v{vC}, v{vGA+4*i+r}, {t} bitop3:0xf6")
        A(f"v_and_b32 v{vC}, {'0xff' if lsb is None else '0x00010001'}, v{vC}")
        A(f"v_cmp_ne_u32 vcc, 0, v{vC}")
        A(f"s_cbranch_vccz {d}")
        A(f"s_cmp_le_u32 s{sCNT}, {0 if (opt.dbg & 6) else opt.maxpoll}")
        A(f"s_cbranch_scc1 {l}")
        A(f"{d}:")
        if cntstamp is not None: stampval(cntstamp, sCNT)
    def wreads(k0, k1):
        for kb in range(k0, k1):
            o = 8192*kb
            A(f"ds_read_b64_tr_b16 v[{vK+4*kb}:{vK+4*kb+1}], v{vWA} offset:{o}")
            A(f"ds_read_b64_tr_b16 v[{vK+4*kb+2}:{vK+4*kb+3}], v{vWA} offset:{o+1024}")
    def mf(kb, first):
        c = "0" if first else f"v[{vACC}:{vACC+3}]"
        A(f"v_mfma_f32_16x16x32_bf16 v[{vACC}:{vACC+3}], v[{vK+4*kb}:{vK+4*kb+3}], v[{vQ+4*kb}:{vQ+4*kb+3}], {c}")
    def actreads(n):
        for kb in range(n):
            A(f"ds_read_b128 v[{vQ+4*kb}:{vQ+4*kb+3}], v{vAA} offset:{512*kb}")
    sFA, sRA, sPE = 12, 10, 14
    def late_setup(wbase, padd, pend):
        A(f"v_add_u32 v{vWA}, {wbase}, v{vTR}")
        A(f"v_add_u32 v{vAA}, {AF}, v{vACT}")
        A(f"v_and_b32 v{vTMP2}, 4, v0")
        A(f"v_lshlrev_b32 v{vPUB}, 11, v{vTMP2}")
        A(f"v_and_b32 v{vTMP2}, 3, v0")
        A(f"v_lshl_or_b32 v{vPUB}, v{vTMP2}, 6, v{vPUB}")
        A(f"v_and_b32 v{vTMP2}, 48, v0")
        A(f"v_or_b32 v{vPUB}, v{vPUB}, v{vTMP2}")
        A(f"s_lshl3_add_u32 s{sTMP}, s{sCB}, s{sC}")
        A(f"s_lshl_b32 s{sTMP}, s{sTMP}, 6")
        A(f"s_add_u32 s{sTMP}, s{sTMP}, s{sRBK}")
        A(f"s_lshl_b32 s{sTMP}, s{sTMP}, 8")
        ws_addr(sFA, WS_FP + 256*padd, sTMP)
        A(f"s_mov_b32 s{sPE}, {pend}")
        A(f"s_mov_b32 s{sWDN}, 0")
        A(f"s_add_u32 s{sTMP}, s{sKB0}, s{sC}")
        A(f"s_lshl_b32 s{sTMP}, s{sTMP}, 12")
    def late_wait():
        l = g.lab("L_lw"); d = g.lab("L_lwd"); w = g.lab("L_lww")
        A(f"{l}:")
        A(f"ds_read_b64 v[{vTMP}:{vTMP+1}], v9 offset:{F_PROG}")
        A("s_waitcnt lgkmcnt(0)")
        A(f"v_readfirstlane_b32 s{sTMP}, v{vTMP+1}")
        A(f"v_readfirstlane_b32 s{sPROG}, v{vTMP}")
        A(f"s_cmp_lg_u32 s{sTMP}, 0")
        A(f"s_cbranch_scc1 {d}")
        A(f"s_cmp_lt_u32 s{sPROG}, s{sPE}")
        A(f"s_cbranch_scc1 {l}")
        wreads(0, 8)
        A(f"s_mov_b32 s{sWDN}, 1")
        cwait(F_LRDY, 1)
        A(f"{d}:")

    A(f"s_cmp_eq_u32 s3, 9")
    A("s_cbranch_scc1 L_poller")
    if opt.nocomm:
        signal(F_FREE0); signal(F_FREE1)
        A("s_branch L_exit")
    def egloop(last, name, lead=None, nrep=0):
        A(f"L_eg_loop{name}:")
        A(f"ds_read_b128 v[{vB}:{vB+3}], v{vAA}")
        wait_prog(True, sCNT)
        A(f"ds_read_b64_tr_b16 v[{vW}:{vW+1}], v{vWA}")
        A(f"ds_read_b64_tr_b16 v[{vW+2}:{vW+3}], v{vWA} offset:1024")
        if lead is not None and lead >= 0:
            A(f"s_cmp_lg_u32 s{sCNT}, {last - lead}")
            A(f"s_cbranch_scc1 L_eg_nf{name}")
            flag_now(nrep)
            A(f"L_eg_nf{name}:")
        A(f"v_add_u32 v{vWA}, 8192, v{vWA}")
        A(f"v_add_u32 v{vAA}, 512, v{vAA}")
        A(f"s_add_u32 s{sCNT}, s{sCNT}, 1")
        A(f"s_cmp_le_u32 s{sCNT}, {last}")
        A("s_waitcnt lgkmcnt(0)")
        A(f"v_mfma_f32_16x16x32_bf16 v[{vACC}:{vACC+3}], v[{vW}:{vW+3}], v[{vB}:{vB+3}], v[{vACC}:{vACC+3}]")
        A(f"s_cbranch_scc1 L_eg_loop{name}")
    sLSB = 14
    A(f"s_mov_b32 s{sLSB}, 0x00010001")
    def tagmask(dst, vsh):
        A(f"v_lshrrev_b32 v{dst}, v{vsh}, v{vT}")
        A(f"v_lshlrev_b32 v{vTMP}, 15, v{dst}")
        A(f"v_and_b32 v{dst}, 1, v{dst}")
        A(f"v_and_b32 v{vTMP}, 0x10000, v{vTMP}")
        A(f"v_or_b32 v{dst}, v{dst}, v{vTMP}")
    A(f"s_cmp_ge_u32 s{sC}, 4")
    A("s_cbranch_scc1 L_noq")
    A(f"v_and_b32 v{vTMP2}, 7, v0")
    A(f"v_lshlrev_b32 v{vPUB}, 16, v{vTMP2}")
    A(f"v_and_b32 v{vTMP2}, 8, v0")
    A(f"v_lshl_or_b32 v{vPUB}, v{vTMP2}, 2, v{vPUB}")
    A(f"v_lshrrev_b32 v{vTMP3}, 4, v0")
    A(f"v_lshl_or_b32 v{vPUB}, v{vTMP3}, 3, v{vPUB}")
    A(f"v_lshlrev_b32 v{vTMP3}, 2, v{vTMP3}")
    A(f"v_lshl_or_b32 v{vTMP3}, v{vTMP2}, 1, v{vTMP3}")
    tagmask(vB, vTMP3)
    A(f"v_add_u32 v{vTMP3}, 2, v{vTMP3}")
    tagmask(vB+1, vTMP3)
    A(f"s_and_b32 s{sTMP3}, s{sU}, 7")
    A(f"s_lshl3_add_u32 s{sTMP}, s{sG}, s{sTMP3}")
    A(f"s_lshl3_add_u32 s{sTMP}, s{sTMP}, s{sKS}")
    A(f"s_lshl2_add_u32 s{sTMP}, s{sTMP}, s{sC}")
    A(f"s_lshl_b32 s{sTMP}, s{sTMP}, 6")
    ws_addr(sGA, WS_QP, sTMP)
    A(f"s_lshl_b32 s{sTMP}, s{sG}, 12")
    ws_addr(sGB, WS_QC, sTMP)
    A(f"s_lshl_b32 s{sTMP}, s{sC}, 1")
    A(f"s_xor_b32 s{sTMP}, s{sTMP}, s{sC}")
    A(f"s_lshl_b32 s{sTMP}, s{sTMP}, 5")
    A(f"v_xor_b32 v{vWA}, s{sTMP}, v{vTR}")
    A(f"v_add_u32 v{vWA}, {RQ}, v{vWA}")
    A(f"v_xor_b32 v{vW}, 32, v{vWA}")
    A(f"v_add_u32 v{vAA}, {XF}, v{vACT}")
    A(f"v_cmp_eq_u32 s[4:5], 0, v{vTMP2}")
    wait_prog(False, 4, sleep=1)
    if opt.qlead >= 0: flag_now("q")
    actreads(4)
    wreads(0, 4)
    for kb in range(4):
        A(f"s_waitcnt lgkmcnt({6 if kb == 0 else 6})")
        A(f"ds_read_b64_tr_b16 v[{vK+16+4*kb}:{vK+16+4*kb+1}], v{vW} offset:{8192*kb}")
        A(f"ds_read_b64_tr_b16 v[{vK+16+4*kb+2}:{vK+16+4*kb+3}], v{vW} offset:{8192*kb+1024}")
        mf(kb, kb == 0)
    A("s_mov_b64 exec, 3")
    A(f"ds_add_u32 v9, v{vONE} offset:{F_FREE0}")
    A("s_mov_b64 exec, -1")
    for kb in range(4):
        A(f"s_waitcnt lgkmcnt({7-2*kb})")
        c1 = "0" if kb == 0 else f"v[{vACC2}:{vACC2+3}]"
        A(f"v_mfma_f32_16x16x32_bf16 v[{vACC2}:{vACC2+3}], v[{vK+16+4*kb}:{vK+16+4*kb+3}], v[{vQ+4*kb}:{vQ+4*kb+3}], {c1}")
    A("s_nop 7")
    for r in range(4): A(f"v_cndmask_b32 v{vACC+r}, v{vACC2+r}, v{vACC+r}, s[4:5]")
    A(f"v_cvt_pk_bf16_f32 v{vACC}, v{vACC}, v{vACC+1}")
    A(f"v_cvt_pk_bf16_f32 v{vACC+1}, v{vACC+2}, v{vACC+3}")
    A(f"v_bfi_b32 v{vACC}, s{sLSB}, v{vB}, v{vACC}")
    A(f"v_bfi_b32 v{vACC+1}, s{sLSB}, v{vB+1}, v{vACC+1}")
    if not (opt.dbg & 1): A(f"global_store_dwordx2 v{vPUB}, v[{vACC}:{vACC+1}], s[{sGA}:{sGA+1}] sc1")
    if opt.qlead < 0: flag(F_PUB0, "q", last=3)
    A("L_noq:")
    stamp(2)
    A(f"s_cmp_ge_u32 s{sR}, 16")
    A("s_cbranch_scc1 L_roleM")
    A(f"s_cmp_eq_u32 s{sROLE}, 2")
    A("s_cbranch_scc1 L_bc_late")
    pub_voff(6)
    A(f"s_and_b32 s{sTMP}, s{sBETA}, -4")
    A(f"s_lshr_b32 s{sTMP2}, s{sC}, 1")
    A(f"s_add_u32 s{sTMP}, s{sTMP}, s{sTMP2}")
    A(f"s_and_b32 s{sTMP2}, s{sBETA}, 3")
    A(f"s_lshl2_add_u32 s{sTMP}, s{sTMP}, s{sTMP2}")
    A(f"s_and_b32 s{sTMP2}, s{sC}, 1")
    A(f"s_lshl1_add_u32 s{sTMP}, s{sTMP}, s{sTMP2}")
    A(f"s_lshl_b32 s{sTMP}, s{sTMP}, 9")
    ws_addr(sGA, WS_GP, sTMP)
    A(f"s_and_b32 s{sTMP}, s{sBETA}, -4")
    A(f"s_or_b32 s{sTMP2}, s{sBETA}, 3")
    A(f"s_mul_i32 s{sTMP}, s{sTMP}, 147")
    A(f"s_mul_i32 s{sTMP2}, s{sTMP2}, 147")
    A(f"s_lshr_b32 s{sTMP}, s{sTMP}, 10")
    A(f"s_lshr_b32 s{sTMP2}, s{sTMP2}, 10")
    A(f"s_cmp_eq_u32 s{sTMP}, s{sTMP2}")
    A(f"s_cselect_b32 s{sNH}, {HREP}, {2*HREP}")
    A(f"s_mul_i32 s{sTMP}, s{sTMP}, {128*HREP}")
    ws_addr(sGB, WS_HC, sTMP)
    for r in range(4): A(f"v_mov_b32 v{vACC+r}, 0")
    A(f"v_mov_b32 v{vWA}, v{vTR}")
    A(f"v_add_u32 v{vAA}, {XF + 2048}, v{vACT}")
    A(f"s_mov_b32 s{sCNT}, 5")
    wait_prog(False, opt.xgat + 1, sleep=1)
    egloop(12, "G1")
    signal(F_FREE1)
    stamp(3)
    egloop(20, "G2", opt.hlead, "h")
    A("s_nop 7")
    publish(vACC)
    if opt.hlead < 0: flag(F_PUB1, "h")
    else: A("s_mov_b64 exec, -1")
    stamp(6)
    A("L_bc_late:")
    late_setup(RA, 0, 28)
    ws_addr(sGA, WS_OP, sTMP)
    A(f"s_and_b32 s{sTMP}, s{sC}, 4")
    A(f"s_lshl_b32 s{sTMP}, s{sTMP}, 5")
    A(f"v_and_b32 v{vTMP3}, 28, v0")
    A(f"v_lshlrev_b32 v{vTMP3}, 2, v{vTMP3}")
    A(f"v_add3_u32 v{vTMP3}, v{vTMP3}, s{sTMP}, v9")
    late_wait()
    stamp(7)
    def wmid():
        cwait(F_WRDY, 1)
        A(f"ds_read_b128 v[{vLS}:{vLS+3}], v{vTMP3} offset:{F_WT}")
    gather(mid=wmid, cntstamp=13, sleep=opt.gsleep)
    stamp(8)
    A("s_waitcnt lgkmcnt(0)")
    for r in range(4): A(f"v_mul_f32 v{vGA+r}, v{vGA+r}, v{vLS}")
    for i in range(1, 4):
        for r in range(4): A(f"v_fmac_f32 v{vGA+r}, v{vGA+4*i+r}, v{vLS+i}")
    A("s_branch L_late")

    A("L_roleM:")
    vXr, vGWr = vK, vK + 8
    A(f"s_cmp_lt_u32 s{sC}, 4")
    A("s_cbranch_scc1 L_nogate")
    wait_prog(False, opt.ggate, sleep=1)
    A(f"s_and_b32 s{sTMP}, s{sR}, 1")
    A(f"s_lshl2_add_u32 s{sTMP}, s{sTMP}, s{sC}")
    A(f"s_sub_u32 s{sTMP3}, s{sTMP}, 4")
    A(f"s_lshl_b32 s{sTMP}, s{sTMP3}, 11")
    A(f"v_add_u32 v{vTMP3}, s{sTMP}, v{vL16}")
    for i in range(2):
        A(f"global_load_dwordx4 v[{vXr+4*i}:{vXr+4*i+3}], v{vTMP3}, s[{sX}:{sX+1}] offset:{1024*i}")
        A(f"global_load_dwordx4 v[{vGWr+4*i}:{vGWr+4*i+3}], v{vL16}, s[{sGW}:{sGW+1}] offset:{1024*i}")
    A(f"v_mov_b32 v{vACC2}, 0")
    A("s_waitcnt vmcnt(0)")
    for i in range(8):
        A(f"v_lshlrev_b32 v{vW}, 16, v{vXr+i}")
        A(f"v_and_b32 v{vW+1}, 0xffff0000, v{vXr+i}")
        A(f"v_lshlrev_b32 v{vW+2}, 16, v{vGWr+i}")
        A(f"v_and_b32 v{vW+3}, 0xffff0000, v{vGWr+i}")
        A(f"v_mul_f32 v{vW}, v{vW}, v{vW+2}")
        A(f"v_mul_f32 v{vW+1}, v{vW+1}, v{vW+3}")
        A(f"v_cvt_pk_bf16_f32 v{vW}, v{vW}, v{vW+1}")
        A(f"v_lshlrev_b32 v{vW+1}, 16, v{vW}")
        A(f"v_and_b32 v{vW}, 0xffff0000, v{vW}")
        A(f"v_add_f32 v{vACC2}, v{vACC2}, v{vW+1}")
        A(f"v_add_f32 v{vACC2}, v{vACC2}, v{vW}")
    for off in (0x041F, 0x081F, 0x101F, 0x201F, 0x401F):
        A(f"ds_swizzle_b32 v{vW}, v{vACC2} offset:{off:#x}")
        A("s_waitcnt lgkmcnt(0)")
        A(f"v_add_f32 v{vACC2}, v{vACC2}, v{vW}")
    A(f"v_mov_b32 v{vW}, v{vACC2}")
    A("s_nop 1")
    A(f"v_permlane32_swap_b32 v{vACC2}, v{vW}")
    A(f"v_add_f32 v{vACC2}, v{vACC2}, v{vW}")
    def rbf(v):
        A(f"v_cvt_pk_bf16_f32 v{v}, v{v}, v{v}")
        A(f"v_and_b32 v{v}, 0xffff0000, v{v}")
    rbf(vACC2)
    A(f"v_mul_f32 v{vACC2}, 0xbfb8aa3b, v{vACC2}")
    A(f"v_exp_f32 v{vACC2}, v{vACC2}")
    A("s_nop 0")
    A(f"v_add_f32 v{vACC2}, 1.0, v{vACC2}")
    A(f"v_rcp_f32 v{vACC2}, v{vACC2}")
    A("s_nop 0")
    rbf(vACC2)
    A(f"s_lshl_b32 s{sTMP}, s{sTMP3}, 2")
    A(f"v_add_u32 v{vTMP2}, s{sTMP}, v9")
    A("s_mov_b64 exec, 1")
    A(f"ds_write_b32 v{vTMP2}, v{vACC2} offset:{F_G}")
    A("s_mov_b64 exec, -1")
    A("L_nogate:")
    A(f"s_lshl2_add_u32 s{sTMP}, s{sBB}, s{sG}")
    A(f"s_lshl3_add_u32 s{sTMP}, s{sTMP}, s{sC}")
    A(f"s_lshl_b32 s{sTMP}, s{sTMP}, 11")
    ws_addr(sGA, WS_QP, sTMP)
    A(f"v_and_b32 v{vTMP3}, 3, v0")
    A(f"v_lshlrev_b32 v{vTMP3}, 3, v{vTMP3}")
    for r in range(4):
        tagmask(vB + r, vTMP3)
        if r < 3: A(f"v_add_u32 v{vTMP3}, 2, v{vTMP3}")
    A(f"v_bfe_u32 v{vTMP2}, v0, 2, 2")
    A(f"v_and_b32 v{vTMP3}, 3, v0")
    A(f"v_lshl_add_u32 v{vTMP2}, v{vTMP2}, 3, v{vTMP3}")
    A(f"v_lshlrev_b32 v{vWA}, 8, v{vTMP2}")
    A(f"v_lshrrev_b32 v{vTMP2}, 5, v0")
    A(f"v_and_b32 v{vTMP3}, 7, v0")
    A(f"v_xor_b32 v{vTMP2}, v{vTMP2}, v{vTMP3}")
    A(f"v_lshl_or_b32 v{vWA}, v{vTMP2}, 5, v{vWA}")
    A(f"v_and_b32 v{vTMP2}, 16, v0")
    A(f"s_lshl_b32 s{sTMP}, s{sC}, 13")
    A(f"v_add3_u32 v{vWA}, v{vWA}, v{vTMP2}, s{sTMP}")
    vQA, vMX, vPA = vW, vW + 1, vW + 2
    A(f"v_and_b32 v{vQA}, 15, v0")
    A(f"v_lshlrev_b32 v{vQA}, 7, v{vQA}")
    A(f"v_lshrrev_b32 v{vTMP2}, 4, v0")
    A(f"v_lshl_or_b32 v{vQA}, v{vTMP2}, 2, v{vQA}")
    A(f"s_lshl_b32 s{sTMP}, s{sC}, 4")
    A(f"s_add_u32 s{sTMP}, s{sTMP}, {QF}")
    A(f"v_add_u32 v{vQA}, s{sTMP}, v{vQA}")
    A(f"v_lshl_add_u32 v{vMX}, v{vTMP3}, 2, v9")
    A(f"s_lshl_b32 s{sTMP}, s{sC}, 9")
    A(f"s_add_u32 s{sTMP}, s{sTMP}, {PF}")
    A(f"v_add_u32 v{vPA}, s{sTMP}, v{vACT}")
    pub_voff(14)
    cwait(F_QRDY, 1, sleep=1)
    stamp(3)
    def kfrags():
        A(f"s_add_u32 s{sTMP2}, s{sC}, 5")
        wait_prog(True, sTMP2)
        for db in range(4):
            if db: A(f"v_xor_b32 v{vAA}, {64*db}, v{vWA}")
            a = vAA if db else vWA
            A(f"ds_read_b128 v[{vK+4*db}:{vK+4*db+3}], v{a}")
            A(f"ds_read_b128 v[{vK+16+4*db}:{vK+16+4*db+3}], v{a} offset:1024")
        signal(F_FREE1)
        A(f"v_add_u32 v{vAA}, {QF}, v{vACT}")
    gather(nld=2, mid=kfrags, cntstamp=11, sleep=opt.gsleep, lsb=vB)
    stamp(4)
    vS = vGA + 8
    for r in range(4):
        A(f"v_lshlrev_b32 v{vS+2*r}, 16, v{vGA+r}")
        A(f"v_lshlrev_b32 v{vTMP}, 16, v{vGA+4+r}")
        A(f"v_and_b32 v{vS+2*r+1}, 0xffff0000, v{vGA+r}")
        A(f"v_and_b32 v{vTMP2}, 0xffff0000, v{vGA+4+r}")
        A(f"v_add_f32 v{vS+2*r}, v{vS+2*r}, v{vTMP}")
        A(f"v_add_f32 v{vS+2*r+1}, v{vS+2*r+1}, v{vTMP2}")
    A("s_nop 1")
    for r in range(4): A(f"v_permlane32_swap_b32 v{vS+r}, v{vS+4+r}")
    for r in range(4): A(f"v_add_f32 v{vS+r}, v{vS+r}, v{vS+4+r}")
    A("s_nop 1")
    for r in range(2): A(f"v_permlane16_swap_b32 v{vS+r}, v{vS+2+r}")
    for r in range(2): A(f"v_add_f32 v{vS+r}, v{vS+r}, v{vS+2+r}")
    A(f"v_cvt_pk_bf16_f32 v{vGA}, v{vS}, v{vS+1}")
    A(f"ds_write_b32 v{vQA}, v{vGA}")
    signal(F_BQ)
    A(f"s_lshl_b32 s{sTMP}, s{sG}, 5")
    A(f"s_lshr_b32 s{sTMP2}, s{sC}, 1")
    A(f"s_add_u32 s{sTMP}, s{sTMP}, s{sTMP2}")
    A(f"s_lshl2_add_u32 s{sTMP}, s{sTMP}, s{sSPL}")
    A(f"s_and_b32 s{sTMP2}, s{sC}, 1")
    A(f"s_lshl1_add_u32 s{sTMP}, s{sTMP}, s{sTMP2}")
    A(f"s_lshl3_add_u32 s{sTMP}, s{sTMP}, s{sBB}")
    A(f"s_lshl_b32 s{sTMP}, s{sTMP}, 6")
    ws_addr(sGA, WS_OP, sTMP)
    A(f"s_lshl2_add_u32 s{sTMP3}, s{sBB}, s{sSPL}")
    A(f"s_lshl_b32 s{sTMP}, s{sG}, 12")
    ws_addr(sGB, WS_OC, sTMP)
    A(f"s_lshl_b32 s{sTMP}, s{sG}, 5")
    A(f"s_add_u32 s{sTMP}, s{sTMP}, s{sTMP3}")
    A(f"s_lshl_b32 s{sTMP}, s{sTMP}, 6")
    ws_addr(sFA, WS_LSE, sTMP)
    cbits = struct.unpack("<I", struct.pack("<f", math.log2(math.e) / math.sqrt(128.0)))[0]
    A(f"s_mov_b32 s{sTMP2}, {cbits:#x}")
    cwait(F_BQ, 8)
    for kb in range(4):
        A(f"ds_read_b128 v[{vQ+4*kb}:{vQ+4*kb+3}], v{vAA} offset:{512*kb}")
    for db in range(4):
        A(f"s_waitcnt lgkmcnt({3-db})")
        c0 = "0" if db == 0 else f"v[{vACC}:{vACC+3}]"
        c1 = "0" if db == 0 else f"v[{vACC2}:{vACC2+3}]"
        A(f"v_mfma_f32_16x16x32_bf16 v[{vACC}:{vACC+3}], v[{vK+4*db}:{vK+4*db+3}], v[{vQ+4*db}:{vQ+4*db+3}], {c0}")
        A(f"v_mfma_f32_16x16x32_bf16 v[{vACC2}:{vACC2+3}], v[{vK+16+4*db}:{vK+16+4*db+3}], v[{vQ+4*db}:{vQ+4*db+3}], {c1}")
    A(f"v_add_u32 v{vAA}, {PF}, v{vACT}")
    A(f"v_add_u32 v{vWA}, {RB}, v{vTR}")
    vONES = vGA
    for r in range(4): A(f"v_mov_b32 v{vONES+r}, 0x3f803f80")
    A("s_nop 1")
    A(f"v_max3_f32 v{vTMP2}, v{vACC}, v{vACC+1}, v{vACC+2}")
    A(f"v_max3_f32 v{vTMP2}, v{vTMP2}, v{vACC+3}, v{vACC2}")
    A(f"v_max3_f32 v{vTMP2}, v{vTMP2}, v{vACC2+1}, v{vACC2+2}")
    A(f"v_max_f32 v{vTMP2}, v{vTMP2}, v{vACC2+3}")
    A("s_mov_b32 exec_lo, 0x00ff00ff\ns_mov_b32 exec_hi, 0x00ff00ff")
    A(f"ds_max_f32 v{vMX}, v{vTMP2} offset:{F_MAX}")
    signal(F_BM)
    cwait(F_BM, 8)
    vM = vLS
    A(f"ds_read_b32 v{vM}, v{vMX} offset:{F_MAX}")
    if opt.olead >= 0 and opt.oearly:
        A(f"ds_read_b32 v{vTMP}, v9 offset:{F_PROG}")
    A("s_waitcnt lgkmcnt(0)")
    A(f"s_mov_b32 s{sWDN}, 0")
    if opt.olead >= 0 and opt.oearly:
        A(f"v_readfirstlane_b32 s{sPROG}, v{vTMP}")
        A(f"s_cmp_lt_u32 s{sPROG}, {20 - opt.olead}")
        A("s_cbranch_scc1 L_of_no1")
        flag_now("q")
        A(f"s_mov_b32 s{sWDN}, 1")
        A("L_of_no1:")
    A(f"v_mul_f32 v{vM}, s{sTMP2}, v{vM}")
    for r in range(8):
        A(f"v_fma_f32 v{vACC+r}, v{vACC+r}, s{sTMP2}, -v{vM}")
    for r in range(8):
        A(f"v_exp_f32 v{vACC+r}, v{vACC+r}")
    A("s_nop 0")
    for r in range(4):
        A(f"v_cvt_pk_bf16_f32 v{vB+r}, v{vACC+2*r}, v{vACC+2*r+1}")
    A(f"ds_write_b128 v{vPA}, v[{vB}:{vB+3}]")
    signal(F_BP)
    cwait(F_BP, 8)
    for kb in range(8):
        A(f"ds_read_b128 v[{vQ+4*kb}:{vQ+4*kb+3}], v{vAA} offset:{512*kb}")
    A(f"ds_read_b32 v{vTMP}, v9 offset:{F_PROG}")
    for kb in range(8):
        A(f"s_waitcnt lgkmcnt({8-kb})")
        c1 = "0" if kb == 0 else f"v[{vACC2}:{vACC2+3}]"
        A(f"v_mfma_f32_16x16x32_bf16 v[{vACC2}:{vACC2+3}], v[{vONES}:{vONES+3}], v[{vQ+4*kb}:{vQ+4*kb+3}], {c1}")
    A("s_waitcnt lgkmcnt(0)")
    A(f"v_readfirstlane_b32 s{sPROG}, v{vTMP}")
    stamp(5)
    vRL = vLS + 2
    def lse_part():
        A(f"v_log_f32 v{vLS+1}, v{vACC2}")
        A(f"v_rcp_f32 v{vRL}, v{vACC2}")
        d = g.lab("L_nolse")
        A(f"s_cmp_lg_u32 s{sC}, 0")
        A(f"s_cbranch_scc1 {d}")
        A(f"v_add_f32 v{vM}, v{vM}, v{vLS+1}")
        A(f"v_mov_b32 v{vLS+1}, s{sT}")
        A(f"v_lshlrev_b32 v{vTMP2}, 3, v0")
        A("s_mov_b64 exec, 0xff")
        if not (opt.dbg & 1): A(f"global_store_dwordx2 v{vTMP2}, v[{vLS}:{vLS+1}], s[{sFA}:{sFA+1}] sc1")
        A("s_mov_b64 exec, -1")
        A(f"{d}:")
    A(f"s_cmp_lt_u32 s{sPROG}, 20")
    A("s_cbranch_scc1 L_pv_slow")
    def oflag():
        if opt.olead < 0: return
        d = g.lab("L_of")
        A(f"s_cmp_lg_u32 s{sWDN}, 0")
        A(f"s_cbranch_scc1 {d}")
        flag_now("q")
        A(f"{d}:")
    wreads(0, 7)
    lse_part()
    oflag()
    for kb in range(7):
        A(f"s_waitcnt lgkmcnt({14-2*kb if kb else 12})")
        if kb == 0: wreads(7, 8)
        mf(kb, kb == 0)
    A("s_branch L_pv_last")
    A("L_pv_slow:")
    A("s_nop 4")
    lse_part()
    for kb in range(8):
        wait_prog(False, 12 + kb + 1)
        wreads(kb, kb+1)
        if 12 + kb + 1 == 20 - opt.olead: oflag()
        if kb:
            A("s_waitcnt lgkmcnt(2)")
            mf(kb-1, kb == 1)
    A("L_pv_last:")
    A("s_waitcnt lgkmcnt(0)")
    mf(7, False)
    A("s_nop 7")
    for r in range(4): A(f"v_mul_f32 v{vACC+r}, v{vACC+r}, v{vRL}")
    publish(vACC)
    if opt.olead < 0: flag(F_PUB1, "q")
    else: A("s_mov_b64 exec, -1")
    stamp(6)
    A(f"s_and_b32 s{sTMP2}, s{sR}, 1")
    A(f"s_lshl_b32 s{sTMP2}, s{sTMP2}, 4")
    A(f"v_and_b32 v{vTMP2}, 12, v0")
    A(f"v_add3_u32 v{vTMP2}, v{vTMP2}, s{sTMP2}, v9")
    A(f"ds_read_b32 v{vRG}, v{vTMP2} offset:{F_G}")
    A(f"s_lshl4_add_u32 s{sTMP}, s{sXCD}, s{sR}")
    A(f"s_sub_u32 s{sTMP3}, s{sTMP}, 16")
    A(f"s_lshl3_add_u32 s{sTMP}, s{sTMP3}, s{sC}")
    A(f"s_lshl_b32 s{sTMP}, s{sTMP}, 10")
    ws_addr(sRA, WS_FP, sTMP)
    A(f"v_lshlrev_b32 v{vRR}, 2, v0")
    A(f"v_add_u32 v{vRR}, {RS}, v{vRR}")
    A(f"s_lshl_b32 s{sTMP}, s{sC}, 8")
    A(f"v_add_u32 v{vRW}, s{sTMP}, v{vRR}")
    A(f"v_and_b32 v{vOUT}, 12, v0")
    A(f"v_lshlrev_b32 v{vOUT}, 9, v{vOUT}")
    A(f"v_and_b32 v{vTMP2}, 3, v0")
    A(f"v_lshl_or_b32 v{vOUT}, v{vTMP2}, 3, v{vOUT}")
    A(f"v_lshrrev_b32 v{vTMP2}, 4, v0")
    A(f"v_lshl_or_b32 v{vOUT}, v{vTMP2}, 1, v{vOUT}")
    A(f"s_lshl_b32 s{sTMP2}, s{sTMP2}, 9")
    A(f"s_lshr_b32 s{sTMP3}, s{sTMP3}, 1")
    A(f"s_lshl_b32 s{sTMP3}, s{sTMP3}, 5")
    A(f"s_add_u32 s{sTMP2}, s{sTMP2}, s{sTMP3}")
    A(f"v_add_u32 v{vOUT}, s{sTMP2}, v{vOUT}")
    A("s_waitcnt lgkmcnt(0)")
    A(f"s_cmp_lt_u32 s{sC}, 4")
    A("s_cbranch_scc1 L_wg_done")
    A(f"v_sub_f32 v{vRG}, 1.0, v{vRG}")
    rbf(vRG)
    A("L_wg_done:")
    late_setup(RA, 16, 27)
    ws_addr(sGA, WS_GP, sTMP)
    for r in range(4): A(f"v_mov_b32 v{vGA+r}, 0")
    late_wait()
    A(f"s_cmp_eq_u32 s{sC}, 7")
    A("s_cbranch_scc1 L_late")
    stamp(7)
    gather(cntstamp=13, sleep=opt.gsleep)
    stamp(8)
    for r in range(4):
        A(f"v_add_f32 v{vGA+r}, v{vGA+r}, v{vGA+4+r}")
        A(f"v_add_f32 v{vGA+8+r}, v{vGA+8+r}, v{vGA+12+r}")
    for r in range(4): A(f"v_max_f32 v{vGA+r}, 0, v{vGA+r}")
    A(f"v_cvt_pk_bf16_f32 v{vGA+4}, v{vGA}, v{vGA+1}")
    A(f"v_cvt_pk_bf16_f32 v{vGA+5}, v{vGA+2}, v{vGA+3}")
    A(f"v_cvt_pk_bf16_f32 v{vGA+6}, v{vGA+8}, v{vGA+9}")
    A(f"v_cvt_pk_bf16_f32 v{vGA+7}, v{vGA+10}, v{vGA+11}")
    for h in range(2):
        A(f"v_lshlrev_b32 v{vGA+2*h}, 16, v{vGA+4+h}")
        A(f"v_and_b32 v{vGA+2*h+1}, 0xffff0000, v{vGA+4+h}")
        A(f"v_lshlrev_b32 v{vGA+8+2*h}, 16, v{vGA+6+h}")
        A(f"v_and_b32 v{vGA+8+2*h+1}, 0xffff0000, v{vGA+6+h}")
    for r in range(4): A(f"v_mul_f32 v{vGA+r}, v{vGA+r}, v{vGA+8+r}")

    A("L_late:")
    A(f"v_cvt_pk_bf16_f32 v{vGA}, v{vGA}, v{vGA+1}")
    A(f"v_cvt_pk_bf16_f32 v{vGA+1}, v{vGA+2}, v{vGA+3}")
    A(f"ds_write_b64 v{vAFW}, v[{vGA}:{vGA+1}]")
    signal(F_BA)
    A(f"s_cmp_lg_u32 s{sWDN}, 0")
    A("s_cbranch_scc1 L_late_fast")
    A("L_late_spin:")
    A(f"ds_read2_b32 v[{vTMP}:{vTMP+1}], v9 offset0:{F_PROG//4} offset1:{F_BA//4}")
    A("s_waitcnt lgkmcnt(0)")
    A(f"v_readfirstlane_b32 s{sPROG}, v{vTMP}")
    A(f"v_readfirstlane_b32 s{sTMP}, v{vTMP+1}")
    A(f"s_cmp_ge_u32 s{sPROG}, s{sPE}")
    A("s_cbranch_scc1 L_late_rd")
    A(f"s_cmp_lt_u32 s{sTMP}, 8")
    A("s_cbranch_scc1 L_late_spin")
    A("s_branch L_late_slow")
    A("L_late_rd:")
    wreads(0, 8)
    A("L_late_fast:")
    cwait(F_BA, 8)
    actreads(8)
    for kb in range(8):
        A(f"s_waitcnt lgkmcnt({7-kb})")
        mf(kb, kb == 0)
    A("s_branch L_late_done")
    A("L_late_slow:")
    actreads(8)
    for kb in range(8):
        if kb < 7: wait_prog(False, 21 + kb)
        else: wait_prog(True, sPE)
        wreads(kb, kb+1)
        if kb:
            A("s_waitcnt lgkmcnt(2)")
            mf(kb-1, kb == 1)
    A("s_waitcnt lgkmcnt(0)")
    mf(7, False)
    A("L_late_done:")
    A("s_nop 7")
    publish(vACC, sFA)
    A("s_mov_b64 exec, -1")
    stamp(9)
    A(f"s_cmp_lt_u32 s{sR}, 16")
    A("s_cbranch_scc1 L_exit")
    if opt.sample & 4:
        sample(sRA, [256*i + 192 for i in range(4)], sleep=opt.fsleep, cntstamp=10)
    A(f"s_mov_b64 s[{sGA}:{sGA+1}], s[{sRA}:{sRA+1}]")
    if opt.fdelay: A(f"s_sleep {opt.fdelay}")
    gather(nld=1, cntstamp=12, sleep=opt.fgsleep)
    if not opt.stq: stamp(2)
    A(f"v_permlane32_swap_b32 v{vGA}, v{vGA+2}")
    A(f"v_permlane32_swap_b32 v{vGA+1}, v{vGA+3}")
    A(f"v_add_f32 v{vGA}, v{vGA}, v{vGA+2}")
    A(f"v_add_f32 v{vGA+1}, v{vGA+1}, v{vGA+3}")
    A("s_nop 1")
    A(f"v_permlane16_swap_b32 v{vGA}, v{vGA+1}")
    A(f"v_add_f32 v{vGA}, v{vGA}, v{vGA+1}")
    A(f"v_mul_f32 v{vGA}, v{vGA}, v{vRG}")
    A(f"ds_write_b32 v{vRW}, v{vGA}")
    A("s_mov_b64 exec, 1")
    A(f"ds_add_rtn_u32 v{vTMP}, v9, v{vONE} offset:{F_RED}")
    A("s_mov_b64 exec, -1")
    for i in range(4):
        A(f"ds_read2st64_b32 v[{vGA+2*i}:{vGA+2*i+1}], v{vRR} offset0:{2*i} offset1:{2*i+1}")
    A("s_waitcnt lgkmcnt(4)")
    A(f"v_readfirstlane_b32 s{sTMP}, v{vTMP}")
    A(f"s_cmp_lg_u32 s{sTMP}, 7")
    A("s_cbranch_scc1 L_exit")
    A("s_waitcnt lgkmcnt(0)")
    A(f"v_pk_add_f32 v[{vGA}:{vGA+1}], v[{vGA}:{vGA+1}], v[{vGA+2}:{vGA+3}]")
    A(f"v_pk_add_f32 v[{vGA+4}:{vGA+5}], v[{vGA+4}:{vGA+5}], v[{vGA+6}:{vGA+7}]")
    A(f"v_pk_add_f32 v[{vGA}:{vGA+1}], v[{vGA}:{vGA+1}], v[{vGA+4}:{vGA+5}]")
    A(f"v_add_f32 v{vGA}, v{vGA}, v{vGA+1}")
    A(f"v_cvt_pk_bf16_f32 v{vGA}, v{vGA}, v{vGA}")
    A(f"global_store_short v{vOUT}, v{vGA}, s[{sOUT}:{sOUT+1}] {opt.outflags}")
    A(f"s_cmp_lg_u32 s2, 128")
    A("s_cbranch_scc1 L_noepoch")
    A("s_mov_b64 exec, 1")
    A(f"v_mov_b32 v{vTMP}, 0")
    A(f"global_store_dword v{vTMP}, v{vT}, s[{sWS}:{sWS+1}] sc1")
    A("s_mov_b64 exec, -1")
    A("L_noepoch:")
    if opt.fixdur:
        A(f"s_cmp_lg_u32 s2, {opt.fixwg}")
        A("s_cbranch_scc1 L_nofix")
        A("L_fix:")
        A("s_memrealtime s[14:15]")
        A("s_waitcnt lgkmcnt(0)")
        A("s_sub_u32 s14, s14, s98")
        A(f"s_cmp_lt_u32 s14, {opt.fixdur}")
        A("s_cbranch_scc1 L_fix")
        A("L_nofix:")
    if STAMP:
        A("s_waitcnt vmcnt(0)")
        stamp(1)
    A("s_branch L_exit")

    A("L_poller:")
    if opt.nocomm: A("s_branch L_exit")
    A(f"s_cmp_ge_u32 s{sR}, 16")
    A("s_cbranch_scc1 L_pollM")
    A(f"s_lshl3_add_u32 s{sTMP}, s{sRBK}, s{sCB}")
    A(f"s_and_b32 s{sTMP}, s{sTMP}, {NREP-1}")
    A(f"s_lshl_b32 s{sTMP2}, s{sG}, 5")
    A(f"s_add_u32 s{sTMP}, s{sTMP}, s{sTMP2}")
    A(f"s_lshl_b32 s{sTMP}, s{sTMP}, 7")
    ws_addr(sGB, WS_OC, sTMP)
    A(f"s_load_dword s4, s[{sGB}:{sGB+1}], 0 glc")
    A(f"s_and_b32 s{sTMP}, s{sRBK}, 3")
    A(f"s_lshl_b32 s{sTMP}, s{sTMP}, 4")
    A(f"s_lshl_b32 s{sTMP2}, s{sG}, 11")
    A(f"s_add_u32 s{sTMP}, s{sTMP}, s{sTMP2}")
    ws_addr(sGA, WS_LSE, sTMP)
    A(f"v_and_b32 v{vTMP3}, 31, v0")
    A(f"v_lshlrev_b32 v{vTMP3}, 6, v{vTMP3}")
    A(f"v_lshrrev_b32 v{vTMP2}, 5, v0")
    A(f"v_lshl_or_b32 v{vTMP3}, v{vTMP2}, 3, v{vTMP3}")
    A("s_waitcnt lgkmcnt(0)")
    A("s_add_u32 s4, s4, 32")
    A(f"v_lshl_add_u32 v{vWA}, v0, 2, v9")
    A(f"s_cmp_eq_u32 s{sROLE}, 2")
    A(f"s_cselect_b32 s{sTMP2}, {opt.ogatec}, {opt.ogate}")
    wait_prog(True, sTMP2, sleep=2)
    stamp(2)
    pollcnt(sGB, 4, opt.psleep, cntstamp=10)
    stamp(3)
    lp = g.lab("L_lse"); ld = g.lab("L_lsed")
    A(f"s_mov_b32 s{sCNT}, 0")
    A(f"{lp}:")
    if not (opt.dbg & 2): A(f"global_load_dwordx2 v[{vLS}:{vLS+1}], v{vTMP3}, s[{sGA}:{sGA+1}] sc1")
    signal(F_LRDY)
    A(f"s_add_u32 s{sCNT}, s{sCNT}, 1")
    A("s_waitcnt vmcnt(0)")
    A(f"v_cmp_ne_u32 vcc, s{sT}, v{vLS+1}")
    A(f"s_cbranch_vccz {ld}")
    A(f"s_cmp_le_u32 s{sCNT}, {0 if (opt.dbg & 7) else opt.maxpoll}")
    A(f"s_cbranch_scc1 {lp}")
    A(f"{ld}:")
    A(f"v_max_f32_dpp v{vTMP}, v{vLS}, v{vLS} quad_perm:[1,0,3,2] row_mask:0xf bank_mask:0xf")
    A("s_nop 1")
    A(f"v_max_f32_dpp v{vTMP}, v{vTMP}, v{vTMP} quad_perm:[2,3,0,1] row_mask:0xf bank_mask:0xf")
    A(f"v_sub_f32 v{vLS}, v{vLS}, v{vTMP}")
    A(f"v_exp_f32 v{vLS}, v{vLS}")
    A("s_nop 1")
    A(f"v_add_f32_dpp v{vTMP}, v{vLS}, v{vLS} quad_perm:[1,0,3,2] row_mask:0xf bank_mask:0xf")
    A("s_nop 1")
    A(f"v_add_f32_dpp v{vTMP}, v{vTMP}, v{vTMP} quad_perm:[2,3,0,1] row_mask:0xf bank_mask:0xf")
    A(f"v_rcp_f32 v{vTMP}, v{vTMP}")
    A("s_nop 0")
    A(f"v_mul_f32 v{vLS}, v{vLS}, v{vTMP}")
    A(f"ds_write_b32 v{vWA}, v{vLS} offset:{F_WT}")
    signal(F_WRDY)
    stamp(4)
    A("s_branch L_exit")
    A("L_pollM:")
    A(f"s_lshl2_add_u32 s{sTMP}, s{sBB}, s{sSPL}")
    A(f"s_lshr_b32 s{sTMP}, s{sTMP}, {int(math.log2(32//NREP))}")
    A(f"s_lshl_b32 s{sTMP2}, s{sG}, 5")
    A(f"s_add_u32 s{sTMP}, s{sTMP}, s{sTMP2}")
    A(f"s_lshl_b32 s{sTMP}, s{sTMP}, 7")
    ws_addr(sGB, WS_QC, sTMP)
    A(f"s_load_dword s4, s[{sGB}:{sGB+1}], 0 glc")
    A(f"s_mul_i32 s{sTMP}, s{sRBK}, {HREP}")
    A(f"s_and_b32 s{sTMP2}, s{sCB}, {HREP-1}")
    A(f"s_add_u32 s{sTMP}, s{sTMP}, s{sTMP2}")
    A(f"s_lshl_b32 s{sTMP}, s{sTMP}, 7")
    ws_addr(sGA, WS_HC, sTMP)
    A(f"s_load_dword s5, s[{sGA}:{sGA+1}], 0 glc")
    A(f"s_bitcmp1_b32 s{sKB0}, 1")
    A(f"s_cselect_b32 s{sTMP}, 12, 8")
    A("s_waitcnt lgkmcnt(0)")
    A("s_add_u32 s4, s4, 64")
    A(f"s_add_u32 s5, s5, s{sTMP}")
    wait_prog(False, opt.qgate, sleep=2)
    stamp(2)
    pollcnt(sGB, 4, opt.psleep, cntstamp=10)
    signal(F_QRDY)
    stamp(3)
    wait_prog(False, opt.hgate, sleep=2)
    stamp(4)
    pollcnt(sGA, 5, opt.psleep, cntstamp=11)
    signal(F_LRDY)
    stamp(5)

    A("L_exit:")
    if STAMP:
        A("s_waitcnt lgkmcnt(0)")
        A(f"s_mul_i32 s{sTMP}, s2, 10")
        A(f"s_add_u32 s{sTMP}, s{sTMP}, s3")
        A(f"s_lshl_b32 s{sTMP}, s{sTMP}, 6")
        A(f"s_add_u32 s{sTMP}, s{sTMP}, {WS_STAMP}")
        A(f"v_mov_b32 v1, s{sTMP}")
        A("s_mov_b64 exec, 1")
        for i in range(NST):
            A(f"v_mov_b32 v2, s{sST+2*i}")
            A(f"global_store_dword v1, v2, s[{sWS}:{sWS+1}] offset:{4*i}")
        A(f"v_mov_b32 v2, s{sROLE}")
        A(f"global_store_dword v1, v2, s[{sWS}:{sWS+1}] offset:60")
    A("L_end:")
    A("s_endpgm")

    body = "\n".join(g.o)
    txt = HEADER
    txt += f"; @launch grid=(256,1,1) block=(640,1,1) lds={LDS_BYTES}\n"
    txt += f""".amdgcn_target "amdgcn-amd-amdhsa--gfx950"
.text
.globl {KNAME}
.p2align 8
.type {KNAME},@function
{KNAME}:
{body}
.section .rodata,"a"
.p2align 6
.amdhsa_kernel {KNAME}
  .amdhsa_next_free_vgpr {NV}
  .amdhsa_next_free_sgpr 102
  .amdhsa_accum_offset {NV}
  .amdhsa_group_segment_fixed_size 0
  .amdhsa_kernarg_size 104
  .amdhsa_user_sgpr_count 2
  .amdhsa_user_sgpr_kernarg_segment_ptr 1
  .amdhsa_system_sgpr_workgroup_id_x 1
.end_amdhsa_kernel
"""
    return txt

def parse(argv):
    ap = argparse.ArgumentParser()
    ap.add_argument("--nt", default="nt")
    ap.add_argument("--pb", default="28:20")
    ap.add_argument("--pc", default="4:20,d,3:4,5:12")
    ap.add_argument("--pm", default="27:20")
    ap.add_argument("--nb0", type=int, default=3)
    ap.add_argument("--stamp", type=int, default=0)
    ap.add_argument("--stq", type=int, default=0)
    ap.add_argument("--fdelay", type=int, default=0)
    ap.add_argument("--qgate", type=int, default=6)
    ap.add_argument("--ogate", type=int, default=19)
    ap.add_argument("--ogatec", type=int, default=26)
    ap.add_argument("--hgate", type=int, default=19)
    ap.add_argument("--ggate", type=int, default=4)
    ap.add_argument("--maxpoll", type=int, default=100000)
    ap.add_argument("--psleep", type=int, default=0)
    ap.add_argument("--fsleep", type=int, default=2)
    ap.add_argument("--gsleep", type=int, default=0)
    ap.add_argument("--fgsleep", type=int, default=0)
    ap.add_argument("--sample", type=int, default=0)
    ap.add_argument("--outflags", default="sc1")
    ap.add_argument("--fixdur", type=int, default=0)
    ap.add_argument("--fixwg", type=int, default=128)
    ap.add_argument("--nocomm", type=int, default=0)
    ap.add_argument("--dbg", type=int, default=0)
    ap.add_argument("--cpf", type=int, default=2)
    ap.add_argument("--qlead", type=int, default=-1)
    ap.add_argument("--hlead", type=int, default=0)
    ap.add_argument("--olead", type=int, default=0)
    ap.add_argument("--oearly", type=int, default=0)
    ap.add_argument("--flagwave", type=int, default=1)
    ap.add_argument("--xgat", type=int, default=8)
    ap.add_argument("--nrep", type=int, default=8)
    ap.add_argument("--satom", type=int, default=0)
    ap.add_argument("--maxhint", type=int, default=60)
    ap.add_argument("-o", default=None)
    return ap.parse_args(argv)

if __name__ == "__main__":
    opt = parse(sys.argv[1:])
    t = gen(opt)
    if opt.o: open(opt.o, "w").write(t)
    else: print(t)
```

```python
import sys, argparse, struct, math

KNAME = "gated_mix__sliding_block_cached__glu_gated_reglu__decode_kernel"
HEADER = open("gated_mix__sliding_block_cached__glu_gated_reglu__decode.s.ref").read().split("; Override launch")[0]

RA = 0
RB = 65536
XA = 131072
RQ = RB + 32768
XF = XA
QF = XA + 2048
PF = XA + 4096
RS = XA + 8192
AF = XA + 12288
FL = XA + 16384
F_PROG, F_LRDY, F_QRDY, F_WRDY, F_BQ, F_BM, F_BP, F_BA, F_RED, F_PUB0, F_PUB1, F_FREE0, F_FREE1, F_ERD, F_FRDY = [4*i for i in range(15)]
F_MAX = 64
F_G = 96
F_WT = 128
LDS_BYTES = FL + 128 + 256

WS_QP = 1 << 20
WS_OP = 2 << 20
WS_LSE = (2 << 20) + (512 << 10)
WS_GP = 3 << 20
WS_FP = 4 << 20
WS_QC = 5 << 20
WS_OC = WS_QC + 16384
WS_HC = WS_QC + 32768
WS_FC = WS_QC + 49152
WS_STAMP = 8 << 20

class G:
    def __init__(self):
        self.o = []; self.nlab = 0
    def A(self, s):
        for line in s.split("\n"):
            self.o.append("    " + line.strip() if not line.strip().endswith(":") else line.strip())
    def lab(self, p="L"):
        self.nlab += 1
        return f"{p}_{self.nlab}"

def plan(s):
    out = []
    for t in s.split(","):
        if t == "d": out.append("d")
        else:
            a, b = t.split(":"); out.append((int(a), int(b)))
    return out

def gen(opt):
    g = G(); A = g.A
    NT = opt.nt
    STAMP = opt.stamp
    sX, sK, sV, sWQ, sWO, sBX, sWG, sWU = [16+2*i for i in range(8)]
    sWD, sGW, sOUT, sDBG = 32, 34, 36, 38
    sWS = 40
    sXCD, sR, sROLE = 42, 43, 44
    sU, sBETA, sG, sSPL, sRBK, sCB, sBB = 45, 46, 47, 48, 49, 50, 51
    sKS, sKB0 = 100, 101
    sWDN = 52
    sT = 54
    sT0, sT1, sT2, sT3 = 54, 56, 57, 53
    sSEL0, sSEL1, sSEL2, sSEL3 = 58, 59, 60, 61
    sPROG, sC = 62, 63
    sTMP, sTMP2, sTMP3, sCNT = 64, 65, 66, 67
    sGA, sGB = 68, 70
    sROT = 15
    sSM = 4
    sST = 72
    NST = 14
    SRD = 8
    def stamp(idx):
        if STAMP: A(f"s_memrealtime s[{sST+2*idx}:{sST+2*idx+1}]")
    def stampval(idx, sreg):
        if STAMP: A(f"s_mov_b32 s{sST+2*idx}, s{sreg}")
    pb, pc, pm = plan(opt.pb), plan(opt.pc), plan(opt.pm)
    NB0 = opt.nb0
    assert NB0 <= 3

    stamp(0)
    if opt.fixdur: A("s_memrealtime s[98:99]")
    A("s_load_dwordx16 s[16:31], s[0:1], 0")
    A("s_load_dwordx8 s[32:39], s[0:1], 64")
    A("s_load_dwordx2 s[40:41], s[0:1], 96")
    A(f"s_cmp_ge_u32 s2, 256")
    A("s_cbranch_scc1 L_end")
    A("v_lshrrev_b32 v1, 6, v0")
    A("v_and_b32 v0, 63, v0")
    A("v_readfirstlane_b32 s3, v1")
    A(f"s_and_b32 s{sXCD}, s2, 7")
    A(f"s_lshr_b32 s{sR}, s2, 3")
    A(f"s_lshr_b32 s{sG}, s{sXCD}, 1")
    A(f"s_and_b32 s{sTMP3}, s{sXCD}, 1")
    A(f"s_add_u32 s{sROT}, s{sR}, s{sXCD}")
    A(f"s_lshl_b32 s{sTMP}, s{sXCD}, 1")
    A(f"s_sub_u32 s{sTMP}, s{sR}, s{sTMP}")
    A(f"s_sub_u32 s{sTMP}, s{sTMP}, 4")
    A(f"s_bfe_u32 s{sTMP2}, s{sTMP}, 0x20002")
    A(f"s_and_b32 s{sTMP}, s{sTMP}, 3")
    A(f"s_lshl2_add_u32 s{sU}, s{sTMP}, s{sTMP2}")
    A(f"s_cmp_ge_u32 s{sR}, 16")
    A(f"s_cselect_b32 s{sU}, s{sR}, s{sU}")
    A(f"s_lshr_b32 s{sTMP}, s{sU}, 3")
    A(f"s_lshl2_add_u32 s{sKS}, s{sTMP3}, s{sTMP}")
    A("s_cmp_lg_u32 s3, 0")
    A("s_cbranch_scc1 L_notloader")
    sSOFF, sSTEP, sNB, sBLK = 4, 5, 6, 7
    sIDX, sWRAP, sBASE = 12, 13, 14
    A("s_setprio 3")
    A(f"v_mov_b32 v9, {FL}")
    A("v_mov_b32 v10, 0xff7fffff")
    A("v_cmp_gt_u32 vcc, 16, v0")
    A("v_lshl_add_u32 v11, v0, 2, v9")
    A("v_lshrrev_b32 v2, 4, v0")
    A("v_cndmask_b32 v10, v10, 0, vcc")
    A("ds_write_b32 v11, v10")
    A("v_bfe_u32 v3, v0, 1, 3")
    A("v_xor_b32 v3, v3, v2")
    A("v_lshlrev_b32 v3, 5, v3")
    A("v_and_b32 v4, 1, v0")
    A("v_lshl_or_b32 v3, v4, 4, v3")
    A("v_xor_b32 v4, 0x80, v3")
    A("v_lshl_add_u32 v5, v2, 13, v3")
    A("v_lshl_add_u32 v6, v2, 13, v4")
    A(f"s_mov_b32 s{SRD+3}, 0x20000")
    A(f"s_and_b32 s{sTMP}, s{sU}, 7")
    A(f"s_lshl3_add_u32 s{sTMP}, s{sG}, s{sTMP}")
    A(f"s_lshl_b32 s{sTMP}, s{sTMP}, 8")
    A(f"s_lshl_b32 s{sSOFF}, s{sKS}, 20")
    A(f"s_add_u32 s{sSOFF}, s{sSOFF}, s{sTMP}")
    A(f"s_mov_b32 s{SRD+2}, {1024*4096*2}")
    A(f"s_mov_b32 s{sNB}, {NB0}")
    A(f"s_mov_b32 s{sSTEP}, {4*8192}")
    A(f"s_mov_b32 m0, {RQ}")
    A(f"s_mov_b32 s{sBLK}, {NB0}")
    A("s_waitcnt lgkmcnt(0)")
    A(f"s_mov_b64 s[{SRD}:{SRD+1}], s[{sWQ}:{sWQ+1}]")
    A("s_barrier")
    def blk_body(win, rot):
        ph = (win // 4) & 1 if win is not None else 0
        back = (win - 4*ph) // 8 if win is not None else 0
        for half in range(2):
            if win is not None:
                if half == ph:
                    A(f"s_sub_u32 s{sTMP}, s{sBLK}, {back}")
                    A(f"s_max_i32 s{sPROG}, s{sTMP}, s{sPROG}")
                    A(f"v_mov_b32 v10, s{sPROG}")
                A(f"s_waitcnt vmcnt({win})")
                if half == ph: A(f"ds_write_b32 v9, v10 offset:{F_PROG}")
            for i in range(4):
                v = 5 if ((i >> 1) & 1) == 0 else 6
                A(f"buffer_load_dwordx4 v{v}, s[{SRD}:{SRD+3}], s{sSOFF} offen {NT} lds")
                A(f"s_add_u32 m0, m0, 1024")
                A(f"s_add_u32 s{sSOFF}, s{sSOFF}, s{sSTEP}")
        if rot:
            A(f"s_add_u32 s{sIDX}, s{sIDX}, 1")
            A(f"s_and_b32 s{sIDX}, s{sIDX}, 7")
            A(f"s_cselect_b32 s{sTMP}, 0, s{sWRAP}")
            A(f"s_sub_u32 s{sSOFF}, s{sSOFF}, s{sTMP}")
    A("L_top_loop:")
    blk_body(None, False)
    A(f"s_sub_u32 s{sNB}, s{sNB}, 1")
    A(f"s_cmp_lg_u32 s{sNB}, 0")
    A("s_cbranch_scc1 L_top_loop")
    A("s_branch L_loader2")
    A("L_notloader:")
    if opt.cpf:
        A(f"s_cmp_gt_u32 s3, {opt.cpf}")
        A("s_cbranch_scc1 L_cpf_done")
        A("s_getpc_b64 s[4:5]")
        A("L_pc:")
        A(f"s_lshl_b32 s{sTMP}, s3, 13")
        A(f"s_sub_u32 s{sTMP}, s{sTMP}, 8192")
        A(f"v_lshl_add_u32 v1, v0, 7, s{sTMP}")
        A(f"v_cmp_gt_u32 vcc, L_end-L_pc, v1")
        A("s_and_saveexec_b64 s[6:7], vcc")
        A("s_cbranch_execz L_cpf_done2")
        A(f"global_load_dword v127, v1, s[4:5]")
        A("L_cpf_done2:")
        A("s_mov_b64 exec, -1")
        A("L_cpf_done:")
    A("s_barrier")
    A("s_branch L_cons")

    def decode2():
        d = g.lab("L_d2"); m = g.lab("L_d2m")
        if STAMP:
            for i in range(1, NST): A(f"s_mov_b32 s{sST+2*i}, 0")
        A(f"s_mul_i32 s{sBETA}, s{sXCD}, 14")
        A(f"s_add_u32 s{sBETA}, s{sBETA}, s{sR}")
        A(f"s_mov_b32 s{sPROG}, 0")
        A(f"s_cmp_ge_u32 s{sR}, 16")
        A(f"s_cbranch_scc1 {m}")
        A(f"s_cmp_ge_u32 s{sR}, 14")
        A(f"s_cselect_b32 s{sROLE}, 2, 1")
        A(f"s_lshr_b32 s{sTMP}, s{sU}, 3")
        A(f"s_lshl1_add_u32 s{sRBK}, s{sXCD}, s{sTMP}")
        A(f"s_add_u32 s{sTMP}, s{sU}, 3")
        A(f"s_and_b32 s{sTMP}, s{sTMP}, 3")
        A(f"s_and_b32 s{sCB}, s{sU}, 4")
        A(f"s_or_b32 s{sCB}, s{sCB}, s{sTMP}")
        A(f"s_lshl_b32 s{sKB0}, s{sRBK}, 3")
        A(f"s_branch {d}")
        A(f"{m}:")
        A(f"s_mov_b32 s{sROLE}, 0")
        A(f"s_and_b32 s{sTMP}, s{sXCD}, 1")
        A(f"s_bfe_u32 s{sBB}, s{sR}, 0x20002")
        A(f"s_lshl2_add_u32 s{sBB}, s{sTMP}, s{sBB}")
        A(f"s_and_b32 s{sSPL}, s{sR}, 3")
        A(f"s_bfe_u32 s{sTMP}, s{sR}, 0x10003")
        A(f"s_lshl1_add_u32 s{sRBK}, s{sXCD}, s{sTMP}")
        A(f"s_mul_i32 s{sKB0}, s{sRBK}, 7")
        A(f"s_add_u32 s{sCB}, s{sR}, 1")
        A(f"s_and_b32 s{sCB}, s{sCB}, 7")
        A(f"{d}:")

    A("L_loader2:")
    decode2()
    stamp(1)
    def lds_wait_ge(off, val, vtmp="v11", vaddr="v9", sleep=0):
        l = g.lab("L_w")
        A(f"{l}:")
        if sleep: A(f"s_sleep {sleep}")
        A(f"ds_read_b32 {vtmp}, {vaddr} offset:{off}")
        A("s_waitcnt lgkmcnt(0)")
        A(f"v_readfirstlane_b32 s{sTMP}, {vtmp}")
        A(f"s_cmp_ge_u32 s{sTMP}, {val}")
        A(f"s_cbranch_scc0 {l}")
    def blk_loop(nblk, win, rot):
        l = g.lab("L_ld")
        if nblk > 1:
            A(f"s_mov_b32 s{sNB}, {nblk}")
            A(f"{l}:")
        blk_body(win, rot)
        A(f"s_add_u32 s{sBLK}, s{sBLK}, 1")
        if nblk > 1:
            A(f"s_sub_u32 s{sNB}, s{sNB}, 1")
            A(f"s_cmp_lg_u32 s{sNB}, 0")
            A(f"s_cbranch_scc1 {l}")
    def drain(maxwin):
        for k in range((maxwin + 4 + 7)//8 - 1, -1, -1):
            A(f"s_sub_u32 s{sTMP}, s{sBLK}, {k}")
            A(f"s_max_i32 s{sPROG}, s{sTMP}, s{sPROG}")
            A(f"v_mov_b32 v10, s{sPROG}")
            A(f"s_waitcnt vmcnt({8*k})")
            A(f"ds_write_b32 v9, v10 offset:{F_PROG}")
    def set_stride(stride):
        A(f"s_mov_b32 s{sSTEP}, {4*stride}")
        if stride & (stride-1) == 0:
            sh = stride.bit_length()-1
            A(f"v_lshl_add_u32 v5, v2, {sh}, v3")
            A(f"v_lshl_add_u32 v6, v2, {sh}, v4")
        else:
            A(f"v_mul_u32_u24 v8, {stride}, v2")
            A("v_add_u32 v5, v8, v3")
            A("v_add_u32 v6, v8, v4")
        A(f"s_mov_b32 s{sWRAP}, {256*stride}")
    XSRD = 68
    def xloads(n, ldsbase):
        for j in range(4):
            A(f"s_add_u32 s{sTMP}, s{sROT}, {2*j}")
            A(f"s_and_b32 s{sTMP}, s{sTMP}, 7")
            A(f"s_lshl_b32 s{sTMP}, s{sTMP}, 6")
            A(f"s_add_u32 s{sTMP}, s{sTMP}, s{sTMP3}")
            for q in range(n//4):
                A(f"s_mov_b32 m0, {ldsbase + 4096*q + 1024*j - 512*q}")
                A("s_nop 0")
                A(f"buffer_load_dwordx4 v7, s[{XSRD}:{XSRD+3}], s{sTMP} offen offset:{512*q} lds")
    def run_plan(pl, segs, start, hook=None):
        blk = 0; lastwin = 0
        segmap = {x[0]: x for x in segs}
        rot = False
        items = []
        for it in pl:
            if it == "d": items.append(it); continue
            n, w = it
            while n:
                c = min(n, 4 - blk if blk < 4 else 8 - ((blk - 4) % 8))
                if blk < start: c = min(c, start - blk)
                if hook and blk < hook[0]: c = min(c, hook[0] - blk)
                if blk >= start: items.append((blk, c, w))
                blk += c; n -= c
            lastw = w
        lastwin = pl[0][1]
        for it in items:
            if it == "d":
                drain(max(lastwin, 8*start)); continue
            b0, c, w = it
            if b0 >= 4 and (b0 - 4) % 8 == 0:
                seg = (b0 - 4) // 8 + 1
                stamp(1 + seg)
                if seg >= 2: lds_wait_ge(F_FREE0 + 4*(seg-2), 8)
                if b0 in segmap:
                    segmap[b0][1](); rot = segmap[b0][2]
                elif rot:
                    A(f"s_add_u32 s{sSOFF}, s{sSOFF}, s{sWRAP}")
                A(f"s_mov_b32 m0, {RA if seg % 2 == 1 else RB}")
            if hook and b0 == hook[0]: hook[1]()
            blk_loop(c, w, rot)
            lastwin = w
        stamp(8)
        if opt.fgate:
            A(f"s_lshl_b32 s{sTMP}, s{sCB}, 11")
            A(f"s_add_u32 s{sTMP}, s{sTMP}, {WS_FC}")
            A(f"s_add_u32 s4, s{sWS}, s{sTMP}")
            A(f"s_addc_u32 s5, s{sWS+1}, 0")
            A("v_lshlrev_b32 v5, 7, v0")
            A("v_mov_b32 v6, 1")
        drain(max(x[1] for x in pl if x != "d"))
        stamp(9)
        A("s_branch L_ld_end")
    def late_seg(ptr, nbytes):
        def f():
            set_stride(2048)
            A(f"s_mov_b64 s[{SRD}:{SRD+1}], s[{ptr}:{ptr+1}]\ns_mov_b32 s{SRD+2}, {nbytes}")
            A(f"s_lshl_b32 s{sSOFF}, s{sKB0}, 16")
            A(f"s_lshl_b32 s{sTMP}, s{sCB}, 8")
            A(f"s_add_u32 s{sSOFF}, s{sSOFF}, s{sTMP}")
        return f
    A("v_and_b32 v7, 7, v0")
    A("v_lshlrev_b32 v7, 11, v7")
    A("v_lshrrev_b32 v8, 3, v0")
    A("v_lshl_add_u32 v7, v8, 4, v7")
    A(f"s_mov_b64 s[{XSRD}:{XSRD+1}], s[{sX}:{sX+1}]\ns_mov_b32 s{XSRD+2}, 16384\ns_mov_b32 s{XSRD+3}, 0x20000")
    A(f"s_lshl_b32 s{sTMP3}, s{sKS}, 8")
    A(f"s_mov_b32 m0, {XF}")
    A("s_nop 0")
    A(f"buffer_load_dwordx4 v7, s[{XSRD}:{XSRD+3}], s{sTMP3} offen lds")
    A(f"s_mov_b32 m0, {XF + 1024 - 128}")
    A("s_nop 0")
    A(f"buffer_load_dwordx4 v7, s[{XSRD}:{XSRD+3}], s{sTMP3} offen offset:128 lds")
    A(f"s_mov_b32 m0, {RQ + 8192*NB0}")
    A(f"s_cmp_ge_u32 s{sR}, 16")
    A("s_cbranch_scc1 L_ld_M")
    def b_seg1():
        A(f"s_and_b32 s{sROT}, s{sROT}, 6")
        A(f"s_mov_b32 s{sIDX}, s{sROT}")
        A(f"s_and_b32 s{sTMP2}, s{sBETA}, 1")
        set_stride(7168)
        A(f"s_mul_i32 s{sSOFF}, s{sTMP2}, {512*7168}")
        A(f"s_lshr_b32 s{sTMP}, s{sBETA}, 2")
        A(f"s_lshl_b32 s{sTMP}, s{sTMP}, 8")
        A(f"s_add_u32 s{sSOFF}, s{sSOFF}, s{sTMP}")
        A(f"s_mul_i32 s{sTMP}, s{sROT}, {32*7168}")
        A(f"s_add_u32 s{sSOFF}, s{sSOFF}, s{sTMP}")
        A(f"s_bitcmp0_b32 s{sBETA}, 1")
        A(f"s_cselect_b64 s[{SRD}:{SRD+1}], s[{sWG}:{sWG+1}], s[{sWU}:{sWU+1}]")
        A(f"s_mov_b32 s{SRD+2}, {1024*3584*2}")
    A(f"s_cmp_eq_u32 s{sROLE}, 2")
    A("s_cbranch_scc1 L_ld_C")
    assert sum(x[0] for x in pb if x != "d") == 28
    XGAT = opt.xgat
    def xg_hook():
        A(f"s_and_b32 s{sTMP3}, s{sBETA}, 1")
        A(f"s_lshl_b32 s{sTMP3}, s{sTMP3}, 10")
        xloads(8, XF + 2048)
        A(f"s_mov_b32 m0, {RA + 8192*(XGAT-4)}")
    run_plan(pb, [(4, b_seg1, True), (20, late_seg(sWO, 4096*1024*2), False)], NB0, hook=(XGAT, xg_hook))
    A("L_ld_C:")
    assert sum(x[0] for x in pc if x != "d") == 12 and pc[1] == "d" and pc[0][0] == 4
    def c_seg1():
        late_seg(sWO, 4096*1024*2)()
        A(f"s_mov_b32 s{sBLK}, 20")
    run_plan(pc, [(4, c_seg1, False)], NB0)
    A("L_ld_M:")
    def m_seg1():
        A(f"s_and_b32 s{sROT}, s{sROT}, 7")
        A(f"s_mov_b32 s{sIDX}, s{sROT}")
        set_stride(256)
        A(f"s_lshl2_add_u32 s{sTMP}, s{sBB}, s{sG}")
        A(f"s_lshl4_add_u32 s{sTMP}, s{sTMP}, s{sSPL}")
        A(f"s_add_u32 s{sTMP}, s{sTMP}, 12")
        A(f"s_lshl3_add_u32 s{sTMP}, s{sTMP}, s{sROT}")
        A(f"s_lshl_b32 s{sSOFF}, s{sTMP}, 13")
        A(f"s_mov_b64 s[{SRD}:{SRD+1}], s[{sK}:{sK+1}]\ns_mov_b32 s{SRD+2}, {8*4*4096*128*2}")
    def m_seg2():
        A(f"s_mov_b64 s[{SRD}:{SRD+1}], s[{sV}:{sV+1}]")
    assert sum(x[0] for x in pm if x != "d") == 27
    run_plan(pm, [(4, m_seg1, True), (12, m_seg2, True), (20, late_seg(sWD, 3584*1024*2), False)], NB0)
    A("L_ld_end:")
    if opt.nocomm: A("s_branch L_exit")
    A("s_barrier")
    if opt.fgate and not (opt.dbg & 1):
        if opt.flag_delay: A(f"s_sleep {opt.flag_delay}")
        A(f"s_bfm_b64 exec, {opt.frep}, 0")
        A("global_atomic_add v5, v6, s[4:5] sc1")
    A("s_branch L_exit")

    A("L_cons:")
    vL16, vTR, vACT, vT, vPUB = 1, 2, 3, 4, 5
    vTMP, vTMP2, vTMP3 = 6, 7, 8
    vWA, vAA = 10, 11
    vW, vB, vACC, vACC2 = 12, 16, 20, 24
    vGA = 28
    vLS = 44
    vK = 52
    vQ = 84
    vRG, vRW, vRR, vOUT, vONE, vAFW, vFLG = 116, 117, 118, 119, 120, 121, 122
    vTP, vTC, vL8 = 123, 124, 125
    NV = 128
    A("s_waitcnt lgkmcnt(0)")
    A(f"s_load_dword s{sT}, s[{sWS}:{sWS+1}], 0")
    decode2()
    stamp(1)
    A(f"s_sub_u32 s{sC}, s3, 1")
    sMAGIC, sUP = sSEL0, sSEL1
    A(f"s_mov_b32 s{sMAGIC}, 0x4b400000")
    A(f"s_mov_b32 s{sUP}, 0x3f802000")
    A(f"v_lshlrev_b32 v{vL8}, 3, v0")
    A(f"v_mov_b32 v9, {FL}")
    A(f"v_mov_b32 v{vONE}, 1")
    A(f"v_lshlrev_b32 v{vL16}, 4, v0")
    A(f"v_lshlrev_b32 v{vFLG}, 7, v0")
    A(f"v_lshrrev_b32 v{vTMP2}, 4, v0")
    A(f"v_bfe_u32 v{vTMP3}, v0, 2, 2")
    A(f"v_lshl_add_u32 v{vTR}, v{vTMP2}, 3, v{vTMP3}")
    A(f"v_lshlrev_b32 v{vTR}, 8, v{vTR}")
    A(f"v_and_b32 v{vACT}, 1, v{vTMP2}")
    A(f"v_lshl_or_b32 v{vTMP3}, v{vACT}, 2, v{vTMP3}")
    A(f"v_xor_b32 v{vTMP3}, s{sC}, v{vTMP3}")
    A(f"v_lshl_or_b32 v{vTR}, v{vTMP3}, 5, v{vTR}")
    A(f"v_and_b32 v{vTMP3}, 3, v0")
    A(f"v_lshl_or_b32 v{vTR}, v{vTMP3}, 3, v{vTR}")
    A(f"v_and_b32 v{vTMP3}, 7, v0")
    A(f"v_lshl_add_u32 v{vACT}, v{vTMP2}, 3, v{vTMP3}")
    A(f"v_lshlrev_b32 v{vACT}, 4, v{vACT}")
    A(f"v_lshrrev_b32 v{vAFW}, 5, v0")
    A(f"v_lshlrev_b32 v{vAFW}, 8, v{vAFW}")
    A(f"v_and_b32 v{vTMP2}, 2, v0")
    A(f"v_lshl_or_b32 v{vAFW}, v{vTMP2}, 6, v{vAFW}")
    A(f"v_and_b32 v{vTMP2}, 28, v0")
    A(f"v_lshl_or_b32 v{vAFW}, v{vTMP2}, 2, v{vAFW}")
    A(f"v_and_b32 v{vTMP2}, 1, v0")
    A(f"v_lshl_or_b32 v{vAFW}, v{vTMP2}, 3, v{vAFW}")
    A(f"s_lshl_b32 s{sTMP}, s{sC}, 9")
    A(f"s_add_u32 s{sTMP}, s{sTMP}, {AF}")
    A(f"v_add_u32 v{vAFW}, s{sTMP}, v{vAFW}")
    A("s_waitcnt lgkmcnt(0)")
    A(f"s_add_u32 s{sT}, s{sT}, 0x01010101")
    A(f"s_mov_b32 s{sT+1}, s{sT}")
    A(f"v_mov_b32 v{vT}, s{sT}")
    A(f"v_lshrrev_b32 v{vTMP}, 1, v0")
    A(f"v_and_b32 v{vTMP}, 24, v{vTMP}")
    A(f"v_bfe_u32 v{vTP}, v{vT}, v{vTMP}, 8")
    A(f"v_and_b32 v{vTMP}, 24, v{vL8}")
    A(f"v_bfe_u32 v{vTC}, v{vT}, v{vTMP}, 8")

    def refresh_prog():
        A(f"ds_read_b32 v{vTMP}, v9 offset:{F_PROG}")
        A("s_waitcnt lgkmcnt(0)")
        A(f"v_readfirstlane_b32 s{sPROG}, v{vTMP}")
    def wait_prog(val_is_sgpr, val, sleep=0):
        l = g.lab("L_wp"); d = g.lab("L_wpd")
        v = f"s{val}" if val_is_sgpr else str(val)
        A(f"s_cmp_ge_u32 s{sPROG}, {v}")
        A(f"s_cbranch_scc1 {d}")
        A(f"{l}:")
        if sleep: A(f"s_sleep {sleep}")
        refresh_prog()
        A(f"s_cmp_ge_u32 s{sPROG}, {v}")
        A(f"s_cbranch_scc0 {l}")
        A(f"{d}:")
    def signal(off):
        A("s_mov_b64 exec, 1")
        A(f"ds_add_u32 v9, v{vONE} offset:{off}")
        A("s_mov_b64 exec, -1")
    def cwait(off, val, sleep=0):
        lds_wait_ge(off, val, vtmp=f"v{vTMP}", sleep=sleep)
    def cwait_rd(off, val, nrd, reads):
        l = g.lab("L_cw")
        A(f"{l}:")
        A(f"ds_read_b32 v{vTMP}, v9 offset:{off}")
        reads()
        A(f"s_waitcnt lgkmcnt({nrd})")
        A(f"v_readfirstlane_b32 s{sTMP}, v{vTMP}")
        A(f"s_cmp_ge_u32 s{sTMP}, {val}")
        A(f"s_cbranch_scc0 {l}")
    def encode(src):
        A(f"v_max3_f32 v{vTMP}, |v{src}|, |v{src+1}|, |v{src+2}|")
        A(f"v_max_f32 v{vTMP}, |v{src+3}|, v{vTMP}")
        A(f"v_mul_f32 v{vTMP}, s{sUP}, v{vTMP}")
        A(f"v_lshrrev_b32 v{vTMP}, 23, v{vTMP}")
        A(f"v_max_u32 v{vTMP}, 11, v{vTMP}")
        A(f"v_sub_u32 v{vTMP2}, 264, v{vTMP}")
        A(f"v_lshlrev_b32 v{vTMP2}, 23, v{vTMP2}")
        A(f"v_subrev_u32 v{vTMP}, 10, v{vTMP}")
        for r in (0, 2): A(f"v_pk_fma_f32 v[{src+r}:{src+r+1}], v[{src+r}:{src+r+1}], v[{vTMP}:{vTMP+1}], s[{sMAGIC}:{sMAGIC+1}] op_sel:[0,1,0] op_sel_hi:[1,1,0]")
        A(f"v_and_b32 v{src+1}, 0xfff, v{src+1}")
        A(f"v_and_b32 v{src+3}, 0xfff, v{src+3}")
        A(f"v_lshl_or_b32 v{src}, v{src}, 12, v{src+1}")
        A(f"v_lshl_or_b32 v{src+2}, v{src+2}, 12, v{src+3}")
        A(f"v_lshl_or_b32 v{src}, v{src}, 8, v{vTMP}")
        A(f"v_lshl_or_b32 v{src+1}, v{src+2}, 8, v{vTP}")
    def decode(d, dst, sc):
        A(f"v_lshlrev_b32 v{sc}, 24, v{d}")
        A(f"v_ashrrev_i32 v{dst}, 20, v{d}")
        A(f"v_bfe_i32 v{dst+1}, v{d}, 8, 12")
        A(f"v_ashrrev_i32 v{dst+2}, 20, v{d+1}")
        A(f"v_bfe_i32 v{dst+3}, v{d+1}, 8, 12")
        A(f"v_lshrrev_b32 v{sc}, 1, v{sc}")
        for r in range(4): A(f"v_cvt_f32_i32 v{dst+r}, v{dst+r}")
    def publish(src, base=sGA):
        encode(src)
        A("s_mov_b32 exec_lo, 0x00ff00ff\ns_mov_b32 exec_hi, 0x00ff00ff")
        if not (opt.dbg & 1): A(f"global_store_dwordx2 v{vPUB}, v[{src}:{src+1}], s[{base}:{base+1}] sc1")
    NREP = opt.nrep; HREP = max(1, NREP // 4)
    sNH = 9
    def bump(kind):
        if opt.dbg & 1: return
        if opt.satom:
            A(f"s_mov_b32 s8, 1")
            if kind == "h":
                e = g.lab("L_bh")
                for r in range(HREP): A(f"s_atomic_add s8, s[{sGB}:{sGB+1}], {128*r}")
                A(f"s_cmp_eq_u32 s{sNH}, {HREP}")
                A(f"s_cbranch_scc1 {e}")
                for r in range(HREP, 2*HREP): A(f"s_atomic_add s8, s[{sGB}:{sGB+1}], {128*r}")
                A(f"{e}:")
            else:
                for r in range(NREP): A(f"s_atomic_add s8, s[{sGB}:{sGB+1}], {128*r}")
        else:
            if kind == "h": A(f"s_bfm_b64 exec, s{sNH}, 0")
            else: A(f"s_bfm_b64 exec, {NREP}, 0")
            A(f"global_atomic_add v{vFLG}, v{vONE}, s[{sGB}:{sGB+1}] sc1")
    def flag(cnt, nrep, last=7):
        d = g.lab("L_fl")
        A("s_mov_b64 exec, 1")
        A(f"ds_add_rtn_u32 v{vTMP}, v9, v{vONE} offset:{cnt}")
        A("s_waitcnt lgkmcnt(0)")
        A(f"v_readfirstlane_b32 s{sTMP}, v{vTMP}")
        A(f"s_cmp_lg_u32 s{sTMP}, {last}")
        A(f"s_cbranch_scc1 {d}")
        bump(nrep)
        A(f"{d}:")
        A("s_mov_b64 exec, -1")
    def flag_now(nrep):
        d = g.lab("L_fn")
        A(f"s_cmp_lg_u32 s{sC}, {opt.flagwave}")
        A(f"s_cbranch_scc1 {d}")
        bump(nrep)
        A("s_mov_b64 exec, -1")
        A(f"{d}:")
    def ws_addr(dst, base_const, soff):
        A(f"s_add_u32 s{soff}, s{soff}, {base_const}")
        A(f"s_add_u32 s{dst}, s{sWS}, s{soff}")
        A(f"s_addc_u32 s{dst+1}, s{sWS+1}, 0")
    def pub_voff(shift):
        A(f"v_and_b32 v{vTMP2}, 15, v0")
        A(f"v_lshrrev_b32 v{vTMP3}, 4, v0")
        A(f"v_lshlrev_b32 v{vTMP3}, 3, v{vTMP3}")
        A(f"v_lshl_or_b32 v{vPUB}, v{vTMP2}, {shift}, v{vTMP3}")
    def sample(base, offs, sleep=0, cntstamp=None):
        l = g.lab("L_sm"); d = g.lab("L_smd"); e = g.lab("L_sme")
        if opt.dbg & 7: return
        A(f"s_mov_b32 s{sCNT}, 0")
        if sleep: A(f"s_branch {e}")
        A(f"{l}:")
        if sleep:
            A(f"s_sleep {sleep}")
            A(f"{e}:")
        for i, o in enumerate(offs):
            A(f"s_load_dword s{sSM+i}, s[{base}:{base+1}], {o} glc")
        A(f"s_add_u32 s{sCNT}, s{sCNT}, 1")
        A(f"s_cmp_gt_u32 s{sCNT}, {opt.maxpoll}")
        A("s_waitcnt lgkmcnt(0)")
        A(f"s_cbranch_scc1 {d}")
        for i in range(len(offs)):
            A(f"s_xor_b32 s{sSM+i}, s{sSM+i}, s{sT}")
            if i: A(f"s_or_b32 s{sSM}, s{sSM}, s{sSM+i}")
        A(f"s_and_b32 s{sSM}, s{sSM}, 0xff")
        A(f"s_cbranch_scc1 {l}")
        A(f"{d}:")
        if cntstamp is not None: stampval(cntstamp, sCNT)
    def pollcnt(base, target, sleep, cntstamp=None):
        l = g.lab("L_pf"); d = g.lab("L_pfd"); e = g.lab("L_pfe")
        if opt.dbg & 7: return
        A(f"s_mov_b32 s{sCNT}, 0")
        if sleep: A(f"s_branch {e}")
        A(f"{l}:")
        if sleep:
            A(f"s_sleep {sleep}")
            A(f"{e}:")
        A(f"s_load_dword s8, s[{base}:{base+1}], 0 glc")
        A(f"s_add_u32 s{sCNT}, s{sCNT}, 1")
        A(f"s_cmp_gt_u32 s{sCNT}, {opt.maxhint}")
        A("s_waitcnt lgkmcnt(0)")
        A(f"s_cbranch_scc1 {d}")
        A(f"s_cmp_eq_u32 s8, s{target}")
        A(f"s_cbranch_scc0 {l}")
        A(f"{d}:")
        if cntstamp is not None: stampval(cntstamp, sCNT)
    def gather(nld=4, mid=None, cntstamp=None, sleep=0, work=None):
        l = g.lab("L_ga"); d = g.lab("L_gad"); c = g.lab("L_gac")
        def issue():
            if opt.dbg & 2: return
            for i in range(nld):
                A(f"global_load_dwordx2 v[{vGA+2*i}:{vGA+2*i+1}], v{vL8}, s[{sGA}:{sGA+1}] offset:{512*i} sc1")
        if mid is not None or sleep:
            issue()
            if mid is not None: mid()
            A(f"s_mov_b32 s{sCNT}, 0")
            A(f"s_branch {c}")
        else:
            A(f"s_mov_b32 s{sCNT}, 0")
        A(f"{l}:")
        if sleep: A(f"s_sleep {sleep}")
        issue()
        A(f"{c}:")
        A(f"s_add_u32 s{sCNT}, s{sCNT}, 1")
        vC = vTMP2
        for i in range(nld):
            A(f"s_waitcnt vmcnt({nld-1-i})")
            if i == 0: A(f"v_xor_b32 v{vC}, v{vTC}, v{vGA+1}")
            else: A(f"v_bitop3_b32 v{vC}, v{vC}, v{vGA+2*i+1}, v{vTC} bitop3:0xf6")
            if i == nld-1:
                A(f"v_and_b32 v{vC}, 0xff, v{vC}")
                A(f"v_cmp_ne_u32 vcc, 0, v{vC}")
            if work is not None and i < nld-1: work(i)
        A(f"s_cbranch_vccz {d}")
        A(f"s_cmp_le_u32 s{sCNT}, {0 if (opt.dbg & 6) else opt.maxpoll}")
        A(f"s_cbranch_scc1 {l}")
        A(f"{d}:")
        if cntstamp is not None: stampval(cntstamp, sCNT)
        if work is not None: work(nld-1)
    vD, vSC, vS0, vS1 = vGA + 8, vTMP, vGA + 12, vB
    def acc(dst, first):
        for r in (0, 2):
            if first: A(f"v_pk_mul_f32 v[{dst+r}:{dst+r+1}], v[{vD+r}:{vD+r+1}], v[{vSC}:{vSC+1}] op_sel_hi:[1,0]")
            else: A(f"v_pk_fma_f32 v[{dst+r}:{dst+r+1}], v[{vD+r}:{vD+r+1}], v[{vSC}:{vSC+1}], v[{dst+r}:{dst+r+1}] op_sel_hi:[1,0,1]")
    def wreads(k0, k1):
        for kb in range(k0, k1):
            o = 8192*kb
            A(f"ds_read_b64_tr_b16 v[{vK+4*kb}:{vK+4*kb+1}], v{vWA} offset:{o}")
            A(f"ds_read_b64_tr_b16 v[{vK+4*kb+2}:{vK+4*kb+3}], v{vWA} offset:{o+1024}")
    def mf(kb, first):
        c = "0" if first else f"v[{vACC}:{vACC+3}]"
        A(f"v_mfma_f32_16x16x32_bf16 v[{vACC}:{vACC+3}], v[{vK+4*kb}:{vK+4*kb+3}], v[{vQ+4*kb}:{vQ+4*kb+3}], {c}")
    def actreads(n):
        for kb in range(n):
            A(f"ds_read_b128 v[{vQ+4*kb}:{vQ+4*kb+3}], v{vAA} offset:{512*kb}")
    sFA, sRA, sPE = 12, 10, 14
    def late_setup(wbase, padd, pend):
        A(f"v_add_u32 v{vWA}, {wbase}, v{vTR}")
        A(f"v_add_u32 v{vAA}, {AF}, v{vACT}")
        A(f"v_and_b32 v{vTMP2}, 4, v0")
        A(f"v_lshlrev_b32 v{vPUB}, 10, v{vTMP2}")
        A(f"v_and_b32 v{vTMP2}, 3, v0")
        A(f"v_lshl_or_b32 v{vPUB}, v{vTMP2}, 5, v{vPUB}")
        A(f"v_lshrrev_b32 v{vTMP2}, 4, v0")
        A(f"v_lshl_or_b32 v{vPUB}, v{vTMP2}, 3, v{vPUB}")
        A(f"s_lshl3_add_u32 s{sTMP}, s{sCB}, s{sC}")
        A(f"s_lshl_b32 s{sTMP}, s{sTMP}, 6")
        A(f"s_add_u32 s{sTMP}, s{sTMP}, s{sRBK}")
        A(f"s_lshl_b32 s{sTMP}, s{sTMP}, 7")
        ws_addr(sFA, WS_FP + 128*padd, sTMP)
        A(f"s_mov_b32 s{sPE}, {pend}")
        A(f"s_mov_b32 s{sWDN}, 0")
        A(f"s_add_u32 s{sTMP}, s{sKB0}, s{sC}")
        A(f"s_lshl_b32 s{sTMP}, s{sTMP}, 11")
    def late_wait():
        l = g.lab("L_lw"); d = g.lab("L_lwd"); l2 = g.lab("L_lw2")
        def look():
            A(f"ds_read_b64 v[{vTMP}:{vTMP+1}], v9 offset:{F_PROG}")
            A("s_waitcnt lgkmcnt(0)")
            A(f"v_readfirstlane_b32 s{sTMP}, v{vTMP+1}")
            A(f"v_readfirstlane_b32 s{sPROG}, v{vTMP}")
            A(f"s_cmp_lg_u32 s{sTMP}, 0")
            A(f"s_cbranch_scc1 {d}")
        A(f"{l}:")
        look()
        A(f"s_cmp_lt_u32 s{sPROG}, 26")
        A(f"s_cbranch_scc1 {l}")
        wreads(0, 6)
        A(f"s_mov_b32 s{sWDN}, 6")
        A(f"{l2}:")
        look()
        A(f"s_cmp_lt_u32 s{sPROG}, s{sPE}")
        A(f"s_cbranch_scc1 {l2}")
        wreads(6, 8)
        A(f"s_mov_b32 s{sWDN}, 8")
        cwait(F_LRDY, 1)
        A(f"{d}:")
    def late_mid():
        d = g.lab("L_lm")
        A(f"s_cmp_lg_u32 s{sWDN}, 0")
        A(f"s_cbranch_scc1 {d}")
        A(f"s_cmp_lt_u32 s{sPROG}, 26")
        A(f"s_cbranch_scc1 {d}")
        wreads(0, 6)
        A(f"s_mov_b32 s{sWDN}, 6")
        A(f"{d}:")

    signal(F_ERD)
    A(f"s_cmp_eq_u32 s3, 9")
    A("s_cbranch_scc1 L_poller")
    if opt.nocomm:
        signal(F_FREE0); signal(F_FREE1)
        A("s_branch L_exit")
    def egloop(last, name, lead=None, nrep=0):
        A(f"L_eg_loop{name}:")
        A(f"ds_read_b128 v[{vB}:{vB+3}], v{vAA}")
        wait_prog(True, sCNT)
        A(f"ds_read_b64_tr_b16 v[{vW}:{vW+1}], v{vWA}")
        A(f"ds_read_b64_tr_b16 v[{vW+2}:{vW+3}], v{vWA} offset:1024")
        if lead is not None and lead >= 0:
            A(f"s_cmp_lg_u32 s{sCNT}, {last - lead}")
            A(f"s_cbranch_scc1 L_eg_nf{name}")
            flag_now(nrep)
            A(f"L_eg_nf{name}:")
        A(f"v_add_u32 v{vWA}, 8192, v{vWA}")
        A(f"v_add_u32 v{vAA}, 512, v{vAA}")
        A(f"s_add_u32 s{sCNT}, s{sCNT}, 1")
        A(f"s_cmp_le_u32 s{sCNT}, {last}")
        A("s_waitcnt lgkmcnt(0)")
        A(f"v_mfma_f32_16x16x32_bf16 v[{vACC}:{vACC+3}], v[{vW}:{vW+3}], v[{vB}:{vB+3}], v[{vACC}:{vACC+3}]")
        A(f"s_cbranch_scc1 L_eg_loop{name}")
    A(f"s_cmp_ge_u32 s{sC}, 4")
    A("s_cbranch_scc1 L_noq")
    A(f"v_and_b32 v{vTMP2}, 7, v0")
    A(f"v_lshlrev_b32 v{vPUB}, 16, v{vTMP2}")
    A(f"v_and_b32 v{vTMP2}, 8, v0")
    A(f"v_lshl_or_b32 v{vPUB}, v{vTMP2}, 2, v{vPUB}")
    A(f"v_lshrrev_b32 v{vTMP3}, 4, v0")
    A(f"v_lshl_or_b32 v{vPUB}, v{vTMP3}, 3, v{vPUB}")
    A(f"s_and_b32 s{sTMP3}, s{sU}, 7")
    A(f"s_lshl3_add_u32 s{sTMP}, s{sG}, s{sTMP3}")
    A(f"s_lshl3_add_u32 s{sTMP}, s{sTMP}, s{sKS}")
    A(f"s_lshl2_add_u32 s{sTMP}, s{sTMP}, s{sC}")
    A(f"s_lshl_b32 s{sTMP}, s{sTMP}, 6")
    ws_addr(sGA, WS_QP, sTMP)
    A(f"s_lshl_b32 s{sTMP}, s{sG}, 12")
    ws_addr(sGB, WS_QC, sTMP)
    A(f"s_lshl_b32 s{sTMP}, s{sC}, 1")
    A(f"s_xor_b32 s{sTMP}, s{sTMP}, s{sC}")
    A(f"s_lshl_b32 s{sTMP}, s{sTMP}, 5")
    A(f"v_xor_b32 v{vWA}, s{sTMP}, v{vTR}")
    A(f"v_add_u32 v{vWA}, {RQ}, v{vWA}")
    A(f"v_xor_b32 v{vW}, 32, v{vWA}")
    A(f"v_add_u32 v{vAA}, {XF}, v{vACT}")
    A(f"v_cmp_eq_u32 s[4:5], 0, v{vTMP2}")
    cwait(F_ERD, 9, sleep=1)
    wait_prog(False, 4, sleep=1)
    if opt.qlead >= 0: flag_now("q")
    actreads(4)
    wreads(0, 4)
    for kb in range(4):
        A(f"s_waitcnt lgkmcnt({6 if kb == 0 else 6})")
        A(f"ds_read_b64_tr_b16 v[{vK+16+4*kb}:{vK+16+4*kb+1}], v{vW} offset:{8192*kb}")
        A(f"ds_read_b64_tr_b16 v[{vK+16+4*kb+2}:{vK+16+4*kb+3}], v{vW} offset:{8192*kb+1024}")
        mf(kb, kb == 0)
    A("s_mov_b64 exec, 3")
    A(f"ds_add_u32 v9, v{vONE} offset:{F_FREE0}")
    A("s_mov_b64 exec, -1")
    for kb in range(4):
        A(f"s_waitcnt lgkmcnt({7-2*kb})")
        c1 = "0" if kb == 0 else f"v[{vACC2}:{vACC2+3}]"
        A(f"v_mfma_f32_16x16x32_bf16 v[{vACC2}:{vACC2+3}], v[{vK+16+4*kb}:{vK+16+4*kb+3}], v[{vQ+4*kb}:{vQ+4*kb+3}], {c1}")
    A("s_nop 7")
    for r in range(4): A(f"v_cndmask_b32 v{vACC+r}, v{vACC2+r}, v{vACC+r}, s[4:5]")
    encode(vACC)
    if not (opt.dbg & 1): A(f"global_store_dwordx2 v{vPUB}, v[{vACC}:{vACC+1}], s[{sGA}:{sGA+1}] sc1")
    if opt.qlead < 0 and opt.qhint: flag(F_PUB0, "q", last=3)
    A("L_noq:")
    stamp(2)
    A(f"s_cmp_ge_u32 s{sR}, 16")
    A("s_cbranch_scc1 L_roleM")
    A(f"s_cmp_eq_u32 s{sROLE}, 2")
    A("s_cbranch_scc1 L_bc_late")
    pub_voff(5)
    A(f"s_and_b32 s{sTMP}, s{sBETA}, -4")
    A(f"s_lshr_b32 s{sTMP2}, s{sC}, 1")
    A(f"s_add_u32 s{sTMP}, s{sTMP}, s{sTMP2}")
    A(f"s_and_b32 s{sTMP2}, s{sBETA}, 3")
    A(f"s_lshl2_add_u32 s{sTMP}, s{sTMP}, s{sTMP2}")
    A(f"s_and_b32 s{sTMP2}, s{sC}, 1")
    A(f"s_lshl1_add_u32 s{sTMP}, s{sTMP}, s{sTMP2}")
    A(f"s_lshl_b32 s{sTMP}, s{sTMP}, 8")
    ws_addr(sGA, WS_GP, sTMP)
    A(f"s_and_b32 s{sTMP}, s{sBETA}, -4")
    A(f"s_or_b32 s{sTMP2}, s{sBETA}, 3")
    A(f"s_mul_i32 s{sTMP}, s{sTMP}, 147")
    A(f"s_mul_i32 s{sTMP2}, s{sTMP2}, 147")
    A(f"s_lshr_b32 s{sTMP}, s{sTMP}, 10")
    A(f"s_lshr_b32 s{sTMP2}, s{sTMP2}, 10")
    A(f"s_cmp_eq_u32 s{sTMP}, s{sTMP2}")
    A(f"s_cselect_b32 s{sNH}, {HREP}, {2*HREP}")
    A(f"s_mul_i32 s{sTMP}, s{sTMP}, {128*HREP}")
    ws_addr(sGB, WS_HC, sTMP)
    for r in range(4): A(f"v_mov_b32 v{vACC+r}, 0")
    A(f"v_mov_b32 v{vWA}, v{vTR}")
    A(f"v_add_u32 v{vAA}, {XF + 2048}, v{vACT}")
    A(f"s_mov_b32 s{sCNT}, 5")
    wait_prog(False, opt.xgat + 1, sleep=1)
    egloop(12, "G1")
    signal(F_FREE1)
    stamp(3)
    egloop(20, "G2", opt.hlead, "h")
    A("s_nop 7")
    publish(vACC)
    if opt.hlead < 0: flag(F_PUB1, "h")
    else: A("s_mov_b64 exec, -1")
    stamp(6)
    A("L_bc_late:")
    late_setup(RA, 0, 28)
    ws_addr(sGA, WS_OP, sTMP)
    A(f"v_and_b32 v{vTMP3}, 4, v0")
    A(f"v_lshlrev_b32 v{vTMP3}, 5, v{vTMP3}")
    A(f"v_and_b32 v{vTMP2}, 56, v0")
    A(f"v_lshl_or_b32 v{vTMP3}, v{vTMP2}, 1, v{vTMP3}")
    A(f"v_and_b32 v{vAFW}, 4, v0")
    A(f"v_lshlrev_b32 v{vAFW}, 9, v{vAFW}")
    A(f"v_lshl_or_b32 v{vAFW}, v{vTMP2}, 1, v{vAFW}")
    A(f"v_and_b32 v{vTMP2}, 2, v0")
    A(f"v_lshl_or_b32 v{vAFW}, v{vTMP2}, 6, v{vAFW}")
    A(f"v_and_b32 v{vTMP2}, 1, v0")
    A(f"v_lshl_or_b32 v{vAFW}, v{vTMP2}, 3, v{vAFW}")
    A(f"s_lshl_b32 s{sTMP}, s{sC}, 8")
    A(f"s_add_u32 s{sTMP}, s{sTMP}, {AF}")
    A(f"v_add_u32 v{vAFW}, s{sTMP}, v{vAFW}")
    A(f"v_add_u32 v{vTMP3}, v{vTMP3}, v9")
    late_wait()
    stamp(7)
    vO = vQ
    def owork(i):
        decode(vGA + 2*i, vD, vSC)
        acc(vO + 4*i, True)
    gather(mid=late_mid, cntstamp=13, sleep=opt.gsleep, work=owork)
    if STAMP: A("s_waitcnt lgkmcnt(0)")
    cwait_rd(F_WRDY, 1, 0, lambda: A(f"ds_read_b128 v[{vLS}:{vLS+3}], v{vTMP3} offset:{F_WT}"))
    stamp(8)
    for i in range(4):
        w = vLS + (i & 2); sel = i & 1
        for r in (0, 2):
            if i == 0: A(f"v_pk_mul_f32 v[{vS0+r}:{vS0+r+1}], v[{vO+r}:{vO+r+1}], v[{w}:{w+1}] op_sel_hi:[1,0]")
            else: A(f"v_pk_fma_f32 v[{vS0+r}:{vS0+r+1}], v[{vO+4*i+r}:{vO+4*i+r+1}], v[{w}:{w+1}], v[{vS0+r}:{vS0+r+1}] op_sel:[0,{sel},0] op_sel_hi:[1,{sel},1]")
    A("s_branch L_late")

    A("L_roleM:")
    vXr, vGWr = vK, vK + 8
    A(f"s_cmp_lt_u32 s{sC}, 4")
    A("s_cbranch_scc1 L_nogate")
    wait_prog(False, opt.ggate, sleep=1)
    A(f"s_and_b32 s{sTMP}, s{sR}, 1")
    A(f"s_lshl2_add_u32 s{sTMP}, s{sTMP}, s{sC}")
    A(f"s_sub_u32 s{sTMP3}, s{sTMP}, 4")
    A(f"s_lshl_b32 s{sTMP}, s{sTMP3}, 11")
    A(f"v_add_u32 v{vTMP3}, s{sTMP}, v{vL16}")
    for i in range(2):
        A(f"global_load_dwordx4 v[{vXr+4*i}:{vXr+4*i+3}], v{vTMP3}, s[{sX}:{sX+1}] offset:{1024*i}")
        A(f"global_load_dwordx4 v[{vGWr+4*i}:{vGWr+4*i+3}], v{vL16}, s[{sGW}:{sGW+1}] offset:{1024*i}")
    A(f"v_mov_b32 v{vACC2}, 0")
    A("s_waitcnt vmcnt(0)")
    for i in range(8):
        A(f"v_lshlrev_b32 v{vW}, 16, v{vXr+i}")
        A(f"v_and_b32 v{vW+1}, 0xffff0000, v{vXr+i}")
        A(f"v_lshlrev_b32 v{vW+2}, 16, v{vGWr+i}")
        A(f"v_and_b32 v{vW+3}, 0xffff0000, v{vGWr+i}")
        A(f"v_mul_f32 v{vW}, v{vW}, v{vW+2}")
        A(f"v_mul_f32 v{vW+1}, v{vW+1}, v{vW+3}")
        A(f"v_cvt_pk_bf16_f32 v{vW}, v{vW}, v{vW+1}")
        A(f"v_lshlrev_b32 v{vW+1}, 16, v{vW}")
        A(f"v_and_b32 v{vW}, 0xffff0000, v{vW}")
        A(f"v_add_f32 v{vACC2}, v{vACC2}, v{vW+1}")
        A(f"v_add_f32 v{vACC2}, v{vACC2}, v{vW}")
    for off in (0x041F, 0x081F, 0x101F, 0x201F, 0x401F):
        A(f"ds_swizzle_b32 v{vW}, v{vACC2} offset:{off:#x}")
        A("s_waitcnt lgkmcnt(0)")
        A(f"v_add_f32 v{vACC2}, v{vACC2}, v{vW}")
    A(f"v_mov_b32 v{vW}, v{vACC2}")
    A("s_nop 1")
    A(f"v_permlane32_swap_b32 v{vACC2}, v{vW}")
    A(f"v_add_f32 v{vACC2}, v{vACC2}, v{vW}")
    def rbf(v):
        A(f"v_cvt_pk_bf16_f32 v{v}, v{v}, v{v}")
        A(f"v_and_b32 v{v}, 0xffff0000, v{v}")
    rbf(vACC2)
    A(f"v_mul_f32 v{vACC2}, 0xbfb8aa3b, v{vACC2}")
    A(f"v_exp_f32 v{vACC2}, v{vACC2}")
    A("s_nop 0")
    A(f"v_add_f32 v{vACC2}, 1.0, v{vACC2}")
    A(f"v_rcp_f32 v{vACC2}, v{vACC2}")
    A("s_nop 0")
    rbf(vACC2)
    A(f"s_lshl_b32 s{sTMP}, s{sTMP3}, 2")
    A(f"v_add_u32 v{vTMP2}, s{sTMP}, v9")
    A("s_mov_b64 exec, 1")
    A(f"ds_write_b32 v{vTMP2}, v{vACC2} offset:{F_G}")
    A("s_mov_b64 exec, -1")
    A("L_nogate:")
    A(f"s_lshl2_add_u32 s{sTMP}, s{sBB}, s{sG}")
    A(f"s_lshl3_add_u32 s{sTMP}, s{sTMP}, s{sC}")
    A(f"s_lshl_b32 s{sTMP}, s{sTMP}, 11")
    ws_addr(sGA, WS_QP, sTMP)
    A(f"v_bfe_u32 v{vTMP2}, v0, 2, 2")
    A(f"v_and_b32 v{vTMP3}, 3, v0")
    A(f"v_lshl_add_u32 v{vTMP2}, v{vTMP2}, 3, v{vTMP3}")
    A(f"v_lshlrev_b32 v{vWA}, 8, v{vTMP2}")
    A(f"v_lshrrev_b32 v{vTMP2}, 5, v0")
    A(f"v_and_b32 v{vTMP3}, 7, v0")
    A(f"v_xor_b32 v{vTMP2}, v{vTMP2}, v{vTMP3}")
    A(f"v_lshl_or_b32 v{vWA}, v{vTMP2}, 5, v{vWA}")
    A(f"v_and_b32 v{vTMP2}, 16, v0")
    A(f"s_lshl_b32 s{sTMP}, s{sC}, 13")
    A(f"v_add3_u32 v{vWA}, v{vWA}, v{vTMP2}, s{sTMP}")
    vQA, vMX, vPA = vW, vW + 1, vW + 2
    A(f"v_and_b32 v{vQA}, 30, v0")
    A(f"v_lshlrev_b32 v{vQA}, 6, v{vQA}")
    A(f"v_and_b32 v{vTMP2}, 1, v0")
    A(f"v_lshl_or_b32 v{vQA}, v{vTMP2}, 3, v{vQA}")
    A(f"v_lshrrev_b32 v{vTMP2}, 5, v0")
    A(f"v_lshl_or_b32 v{vQA}, v{vTMP2}, 2, v{vQA}")
    A(f"s_lshl_b32 s{sTMP}, s{sC}, 4")
    A(f"s_add_u32 s{sTMP}, s{sTMP}, {QF}")
    A(f"v_add_u32 v{vQA}, s{sTMP}, v{vQA}")
    A(f"v_lshl_add_u32 v{vMX}, v{vTMP3}, 2, v9")
    A(f"s_lshl_b32 s{sTMP}, s{sC}, 9")
    A(f"s_add_u32 s{sTMP}, s{sTMP}, {PF}")
    A(f"v_add_u32 v{vPA}, s{sTMP}, v{vACT}")
    A(f"v_and_b32 v{vTMP2}, 6, v0")
    A(f"v_lshlrev_b32 v{vPUB}, 13, v{vTMP2}")
    A(f"v_and_b32 v{vTMP2}, 1, v0")
    A(f"v_lshl_or_b32 v{vPUB}, v{vTMP2}, 5, v{vPUB}")
    A(f"v_lshrrev_b32 v{vTMP2}, 4, v0")
    A(f"v_lshl_or_b32 v{vPUB}, v{vTMP2}, 3, v{vPUB}")
    if opt.qhint: cwait(F_QRDY, 1, sleep=1)
    else: wait_prog(False, opt.qgate, sleep=1)
    stamp(3)
    def kfrags():
        A(f"s_add_u32 s{sTMP2}, s{sC}, 5")
        wait_prog(True, sTMP2)
        for db in range(4):
            if db: A(f"v_xor_b32 v{vAA}, {64*db}, v{vWA}")
            a = vAA if db else vWA
            A(f"ds_read_b128 v[{vK+4*db}:{vK+4*db+3}], v{a}")
            A(f"ds_read_b128 v[{vK+16+4*db}:{vK+16+4*db+3}], v{a} offset:1024")
        signal(F_FREE1)
        A(f"v_add_u32 v{vAA}, {QF}, v{vACT}")
    def qwork(i):
        decode(vGA + 2*i, vD, vSC)
        acc(vS0, i == 0)
    gather(nld=4, mid=kfrags, cntstamp=11, sleep=opt.qsleep, work=qwork)
    stamp(4)
    A("s_nop 1")
    A(f"v_permlane32_swap_b32 v{vS0}, v{vS0+2}")
    A(f"v_permlane32_swap_b32 v{vS0+1}, v{vS0+3}")
    A(f"v_add_f32 v{vS0}, v{vS0}, v{vS0+2}")
    A(f"v_add_f32 v{vS0+1}, v{vS0+1}, v{vS0+3}")
    A(f"v_cvt_pk_bf16_f32 v{vGA}, v{vS0}, v{vS0+1}")
    A(f"ds_write_b32 v{vQA}, v{vGA}")
    signal(F_BQ)
    A(f"s_lshl_b32 s{sTMP}, s{sG}, 5")
    A(f"s_add_u32 s{sTMP}, s{sTMP}, s{sC}")
    A(f"s_lshl2_add_u32 s{sTMP}, s{sTMP}, s{sSPL}")
    A(f"s_lshl3_add_u32 s{sTMP}, s{sTMP}, s{sBB}")
    A(f"s_lshl_b32 s{sTMP}, s{sTMP}, 6")
    ws_addr(sGA, WS_OP, sTMP)
    A(f"s_lshl2_add_u32 s{sTMP3}, s{sBB}, s{sSPL}")
    A(f"s_lshl_b32 s{sTMP}, s{sG}, 12")
    ws_addr(sGB, WS_OC, sTMP)
    A(f"s_lshl_b32 s{sTMP}, s{sG}, 5")
    A(f"s_add_u32 s{sTMP}, s{sTMP}, s{sTMP3}")
    A(f"s_lshl_b32 s{sTMP}, s{sTMP}, 6")
    ws_addr(sFA, WS_LSE, sTMP)
    cbits = struct.unpack("<I", struct.pack("<f", math.log2(math.e) / math.sqrt(128.0)))[0]
    A(f"s_mov_b32 s{sTMP2}, {cbits:#x}")
    if STAMP: A("s_waitcnt lgkmcnt(0)")
    if opt.spec: cwait_rd(F_BQ, 8, 4, lambda: actreads(4))
    else:
        cwait(F_BQ, 8); actreads(4)
    for db in range(4):
        A(f"s_waitcnt lgkmcnt({3-db})")
        c0 = "0" if db == 0 else f"v[{vACC}:{vACC+3}]"
        c1 = "0" if db == 0 else f"v[{vACC2}:{vACC2+3}]"
        A(f"v_mfma_f32_16x16x32_bf16 v[{vACC}:{vACC+3}], v[{vK+4*db}:{vK+4*db+3}], v[{vQ+4*db}:{vQ+4*db+3}], {c0}")
        A(f"v_mfma_f32_16x16x32_bf16 v[{vACC2}:{vACC2+3}], v[{vK+16+4*db}:{vK+16+4*db+3}], v[{vQ+4*db}:{vQ+4*db+3}], {c1}")
    A(f"v_add_u32 v{vAA}, {PF}, v{vACT}")
    A(f"v_add_u32 v{vWA}, {RB}, v{vTR}")
    vONES = vGA
    for r in range(4): A(f"v_mov_b32 v{vONES+r}, 0x3f803f80")
    A("s_nop 1")
    A(f"v_max3_f32 v{vTMP2}, v{vACC}, v{vACC+1}, v{vACC+2}")
    A(f"v_max3_f32 v{vTMP2}, v{vTMP2}, v{vACC+3}, v{vACC2}")
    A(f"v_max3_f32 v{vTMP2}, v{vTMP2}, v{vACC2+1}, v{vACC2+2}")
    A(f"v_max_f32 v{vTMP2}, v{vTMP2}, v{vACC2+3}")
    A("s_mov_b32 exec_lo, 0x00ff00ff\ns_mov_b32 exec_hi, 0x00ff00ff")
    A(f"ds_max_f32 v{vMX}, v{vTMP2} offset:{F_MAX}")
    signal(F_BM)
    vM = vLS
    cwait_rd(F_BM, 8, 1, lambda: A(f"ds_read_b32 v{vM}, v{vMX} offset:{F_MAX}"))
    if opt.olead >= 0 and opt.oearly:
        A(f"ds_read_b32 v{vTMP}, v9 offset:{F_PROG}")
    A("s_waitcnt lgkmcnt(0)")
    A(f"s_mov_b32 s{sWDN}, 0")
    if opt.olead >= 0 and opt.oearly:
        A(f"v_readfirstlane_b32 s{sPROG}, v{vTMP}")
        A(f"s_cmp_lt_u32 s{sPROG}, {20 - opt.olead}")
        A("s_cbranch_scc1 L_of_no1")
        flag_now("q")
        A(f"s_mov_b32 s{sWDN}, 1")
        A("L_of_no1:")
    A(f"v_mul_f32 v{vM}, s{sTMP2}, v{vM}")
    for r in range(8):
        A(f"v_fma_f32 v{vACC+r}, v{vACC+r}, s{sTMP2}, -v{vM}")
    for r in range(8):
        A(f"v_exp_f32 v{vACC+r}, v{vACC+r}")
    A("s_nop 0")
    for r in range(4):
        A(f"v_cvt_pk_bf16_f32 v{vB+r}, v{vACC+2*r}, v{vACC+2*r+1}")
    A(f"ds_write_b128 v{vPA}, v[{vB}:{vB+3}]")
    signal(F_BP)
    if opt.spec: cwait_rd(F_BP, 8, 8, lambda: actreads(8))
    else:
        cwait(F_BP, 8); actreads(8)
    A(f"ds_read_b32 v{vTMP}, v9 offset:{F_PROG}")
    for kb in range(8):
        A(f"s_waitcnt lgkmcnt({8-kb})")
        c1 = "0" if kb == 0 else f"v[{vACC2}:{vACC2+3}]"
        A(f"v_mfma_f32_16x16x32_bf16 v[{vACC2}:{vACC2+3}], v[{vONES}:{vONES+3}], v[{vQ+4*kb}:{vQ+4*kb+3}], {c1}")
    A("s_waitcnt lgkmcnt(0)")
    A(f"v_readfirstlane_b32 s{sPROG}, v{vTMP}")
    stamp(5)
    vRL = vLS + 2
    def lse_part():
        A(f"v_log_f32 v{vLS+1}, v{vACC2}")
        A(f"v_rcp_f32 v{vRL}, v{vACC2}")
        d = g.lab("L_nolse")
        A(f"s_cmp_lg_u32 s{sC}, 0")
        A(f"s_cbranch_scc1 {d}")
        A(f"v_add_f32 v{vM}, v{vM}, v{vLS+1}")
        A(f"v_mov_b32 v{vLS+1}, s{sT}")
        A(f"v_lshlrev_b32 v{vTMP2}, 3, v0")
        A("s_mov_b64 exec, 0xff")
        if not (opt.dbg & 1):
            A(f"global_store_dwordx2 v{vTMP2}, v[{vLS}:{vLS+1}], s[{sFA}:{sFA+1}] sc1")
            if opt.lcnt:
                A(f"s_bfm_b64 exec, {NREP}, 0")
                A(f"v_mov_b32 v{vTMP2}, 0x10000")
                A(f"global_atomic_add v{vFLG}, v{vTMP2}, s[{sGB}:{sGB+1}] sc1")
        A("s_mov_b64 exec, -1")
        A(f"{d}:")
    A(f"s_cmp_lt_u32 s{sPROG}, 20")
    A("s_cbranch_scc1 L_pv_slow")
    def oflag():
        if opt.olead < 0: return
        d = g.lab("L_of")
        A(f"s_cmp_lg_u32 s{sWDN}, 0")
        A(f"s_cbranch_scc1 {d}")
        flag_now("q")
        A(f"{d}:")
    wreads(0, 7)
    lse_part()
    oflag()
    for kb in range(7):
        A(f"s_waitcnt lgkmcnt({14-2*kb if kb else 12})")
        if kb == 0: wreads(7, 8)
        mf(kb, kb == 0)
    A("s_branch L_pv_last")
    A("L_pv_slow:")
    A("s_nop 4")
    lse_part()
    for kb in range(8):
        wait_prog(False, 12 + kb + 1)
        wreads(kb, kb+1)
        if 12 + kb + 1 == 20 - opt.olead: oflag()
        if kb:
            A("s_waitcnt lgkmcnt(2)")
            mf(kb-1, kb == 1)
    A("L_pv_last:")
    A("s_waitcnt lgkmcnt(0)")
    mf(7, False)
    A("s_nop 7")
    for r in range(4): A(f"v_mul_f32 v{vACC+r}, v{vACC+r}, v{vRL}")
    publish(vACC)
    if opt.olead < 0: flag(F_PUB1, "q")
    else: A("s_mov_b64 exec, -1")
    stamp(6)
    A(f"s_and_b32 s{sTMP2}, s{sR}, 1")
    A(f"s_lshl_b32 s{sTMP2}, s{sTMP2}, 4")
    A(f"v_and_b32 v{vTMP2}, 12, v0")
    A(f"v_add3_u32 v{vTMP2}, v{vTMP2}, s{sTMP2}, v9")
    A(f"ds_read_b32 v{vRG}, v{vTMP2} offset:{F_G}")
    A(f"s_lshl4_add_u32 s{sTMP}, s{sXCD}, s{sR}")
    A(f"s_sub_u32 s{sTMP3}, s{sTMP}, 16")
    A(f"s_lshl3_add_u32 s{sTMP}, s{sTMP3}, s{sC}")
    A(f"s_lshl_b32 s{sTMP}, s{sTMP}, 9")
    ws_addr(sRA, WS_FP, sTMP)
    A(f"v_lshlrev_b32 v{vRR}, 2, v0")
    A(f"v_add_u32 v{vRR}, {RS}, v{vRR}")
    A(f"s_lshl_b32 s{sTMP}, s{sC}, 8")
    A(f"v_add_u32 v{vRW}, s{sTMP}, v{vRR}")
    A(f"v_and_b32 v{vOUT}, 12, v0")
    A(f"v_lshlrev_b32 v{vOUT}, 9, v{vOUT}")
    A(f"v_and_b32 v{vTMP2}, 3, v0")
    A(f"v_lshl_or_b32 v{vOUT}, v{vTMP2}, 3, v{vOUT}")
    A(f"v_lshrrev_b32 v{vTMP2}, 4, v0")
    A(f"v_lshl_or_b32 v{vOUT}, v{vTMP2}, 1, v{vOUT}")
    A(f"s_lshl_b32 s{sTMP2}, s{sTMP2}, 9")
    A(f"s_lshr_b32 s{sTMP3}, s{sTMP3}, 1")
    A(f"s_lshl_b32 s{sTMP3}, s{sTMP3}, 5")
    A(f"s_add_u32 s{sTMP2}, s{sTMP2}, s{sTMP3}")
    A(f"v_add_u32 v{vOUT}, s{sTMP2}, v{vOUT}")
    A("s_waitcnt lgkmcnt(0)")
    A(f"s_cmp_lt_u32 s{sC}, 4")
    A("s_cbranch_scc1 L_wg_done")
    A(f"v_sub_f32 v{vRG}, 1.0, v{vRG}")
    rbf(vRG)
    A("L_wg_done:")
    late_setup(RA, 16, 27)
    ws_addr(sGA, WS_GP, sTMP)
    for r in range(4): A(f"v_mov_b32 v{vS0+r}, 0")
    late_wait()
    A(f"s_cmp_eq_u32 s{sC}, 7")
    A("s_cbranch_scc1 L_late")
    stamp(7)
    def rnd4(v):
        A(f"v_cvt_pk_bf16_f32 v{vD}, v{v}, v{v+1}")
        A(f"v_cvt_pk_bf16_f32 v{vD+1}, v{v+2}, v{v+3}")
        for h in range(2):
            A(f"v_lshlrev_b32 v{v+2*h}, 16, v{vD+h}")
            A(f"v_and_b32 v{v+2*h+1}, 0xffff0000, v{vD+h}")
    def hwork(i):
        decode(vGA + 2*i, vD, vSC)
        acc(vS0 if i < 2 else vS1, i in (0, 2))
        if i == 1:
            for r in range(4): A(f"v_max_f32 v{vS0+r}, 0, v{vS0+r}")
            if opt.hround: rnd4(vS0)
        if i == 3:
            if opt.hround: rnd4(vS1)
            for r in (0, 2): A(f"v_pk_mul_f32 v[{vS0+r}:{vS0+r+1}], v[{vS0+r}:{vS0+r+1}], v[{vS1+r}:{vS1+r+1}]")
    gather(mid=late_mid, cntstamp=13, sleep=opt.gsleep, work=hwork)
    stamp(8)

    A("L_late:")
    A(f"v_cvt_pk_bf16_f32 v{vGA}, v{vS0}, v{vS0+1}")
    A(f"v_cvt_pk_bf16_f32 v{vGA+1}, v{vS0+2}, v{vS0+3}")
    A(f"ds_write_b64 v{vAFW}, v[{vGA}:{vGA+1}]")
    signal(F_BA)
    A(f"s_cmp_eq_u32 s{sWDN}, 8")
    A("s_cbranch_scc1 L_late_bar")
    A(f"s_cmp_lg_u32 s{sWDN}, 0")
    A("s_cbranch_scc1 L_late_spin")
    wait_prog(False, 26)
    wreads(0, 6)
    A("L_late_spin:")
    A(f"ds_read2_b32 v[{vTMP}:{vTMP+1}], v9 offset0:{F_PROG//4} offset1:{F_BA//4}")
    A("s_waitcnt lgkmcnt(0)")
    A(f"v_readfirstlane_b32 s{sPROG}, v{vTMP}")
    A(f"v_readfirstlane_b32 s{sTMP}, v{vTMP+1}")
    A(f"s_cmp_ge_u32 s{sPROG}, s{sPE}")
    A("s_cbranch_scc1 L_late_rd")
    A(f"s_cmp_lt_u32 s{sTMP}, 8")
    A("s_cbranch_scc1 L_late_spin")
    actreads(8)
    for kb in range(6):
        A(f"s_waitcnt lgkmcnt({7-kb})")
        mf(kb, kb == 0)
    A("s_barrier")
    wreads(6, 8)
    A("s_waitcnt lgkmcnt(2)")
    mf(6, False)
    A("s_waitcnt lgkmcnt(0)")
    mf(7, False)
    A("s_branch L_late_done")
    A("L_late_rd:")
    wreads(6, 8)
    A("L_late_bar:")
    A("s_waitcnt lgkmcnt(0)")
    A("s_barrier")
    actreads(8)
    for kb in range(8):
        A(f"s_waitcnt lgkmcnt({7-kb})")
        mf(kb, kb == 0)
    A("L_late_done:")
    A("s_nop 7")
    publish(vACC, sFA)
    A("s_mov_b64 exec, -1")
    stamp(9)
    A(f"s_cmp_lt_u32 s{sR}, 16")
    A("s_cbranch_scc1 L_exit")
    A(f"s_mov_b64 s[{sGA}:{sGA+1}], s[{sRA}:{sRA+1}]")
    if opt.fgate: cwait(F_FRDY, 1)
    def fwork(i):
        decode(vGA, vD, vSC)
        A(f"v_mul_f32 v{vSC}, v{vSC}, v{vRG}")
        acc(vS0, True)
    gather(nld=1, cntstamp=12, sleep=opt.fgsleep, work=fwork)
    if not opt.stq: stamp(2)
    A("s_nop 1")
    A(f"v_permlane32_swap_b32 v{vS0}, v{vS0+2}")
    A(f"v_permlane32_swap_b32 v{vS0+1}, v{vS0+3}")
    A(f"v_add_f32 v{vS0}, v{vS0}, v{vS0+2}")
    A(f"v_add_f32 v{vS0+1}, v{vS0+1}, v{vS0+3}")
    A("s_nop 1")
    A(f"v_permlane16_swap_b32 v{vS0}, v{vS0+1}")
    A(f"v_add_f32 v{vGA}, v{vS0}, v{vS0+1}")
    A(f"ds_write_b32 v{vRW}, v{vGA}")
    A("s_mov_b64 exec, 1")
    A(f"ds_add_rtn_u32 v{vTMP}, v9, v{vONE} offset:{F_RED}")
    A("s_mov_b64 exec, -1")
    for i in range(4):
        A(f"ds_read2st64_b32 v[{vGA+2*i}:{vGA+2*i+1}], v{vRR} offset0:{2*i} offset1:{2*i+1}")
    A("s_waitcnt lgkmcnt(4)")
    A(f"v_readfirstlane_b32 s{sTMP}, v{vTMP}")
    A(f"s_cmp_lg_u32 s{sTMP}, 7")
    A("s_cbranch_scc1 L_exit")
    A("s_waitcnt lgkmcnt(0)")
    A(f"v_pk_add_f32 v[{vGA}:{vGA+1}], v[{vGA}:{vGA+1}], v[{vGA+2}:{vGA+3}]")
    A(f"v_pk_add_f32 v[{vGA+4}:{vGA+5}], v[{vGA+4}:{vGA+5}], v[{vGA+6}:{vGA+7}]")
    A(f"v_pk_add_f32 v[{vGA}:{vGA+1}], v[{vGA}:{vGA+1}], v[{vGA+4}:{vGA+5}]")
    A(f"v_add_f32 v{vGA}, v{vGA}, v{vGA+1}")
    A(f"v_cvt_pk_bf16_f32 v{vGA}, v{vGA}, v{vGA}")
    A(f"global_store_short v{vOUT}, v{vGA}, s[{sOUT}:{sOUT+1}] {opt.outflags}")
    A(f"s_cmp_lg_u32 s2, 128")
    A("s_cbranch_scc1 L_noepoch")
    A("s_mov_b64 exec, 1")
    A(f"v_mov_b32 v{vTMP}, 0")
    A(f"global_store_dword v{vTMP}, v{vT}, s[{sWS}:{sWS+1}] sc1")
    A("s_mov_b64 exec, -1")
    A("L_noepoch:")
    if opt.fixdur:
        A(f"s_cmp_lg_u32 s2, {opt.fixwg}")
        A("s_cbranch_scc1 L_nofix")
        A("L_fix:")
        A("s_memrealtime s[14:15]")
        A("s_waitcnt lgkmcnt(0)")
        A("s_sub_u32 s14, s14, s98")
        A(f"s_cmp_lt_u32 s14, {opt.fixdur}")
        A("s_cbranch_scc1 L_fix")
        A("L_nofix:")
    if STAMP:
        A("s_waitcnt vmcnt(0)")
        stamp(1)
    A("s_branch L_exit")

    A("L_poller:")
    if opt.nocomm: A("s_branch L_exit")
    A(f"s_cmp_ge_u32 s{sR}, 16")
    A("s_cbranch_scc1 L_pollM")
    A(f"s_lshl3_add_u32 s{sTMP}, s{sRBK}, s{sCB}")
    A(f"s_and_b32 s{sTMP}, s{sTMP}, {NREP-1}")
    A(f"s_lshl_b32 s{sTMP2}, s{sG}, 5")
    A(f"s_add_u32 s{sTMP}, s{sTMP}, s{sTMP2}")
    A(f"s_lshl_b32 s{sTMP}, s{sTMP}, 7")
    ws_addr(sGB, WS_OC, sTMP)
    A(f"s_load_dword s4, s[{sGB}:{sGB+1}], 0 glc")
    A(f"s_and_b32 s{sTMP}, s{sRBK}, 3")
    A(f"s_lshl_b32 s{sTMP}, s{sTMP}, 4")
    A(f"s_lshl_b32 s{sTMP2}, s{sG}, 11")
    A(f"s_add_u32 s{sTMP}, s{sTMP}, s{sTMP2}")
    ws_addr(sGA, WS_LSE, sTMP)
    A(f"v_and_b32 v{vTMP3}, 31, v0")
    A(f"v_lshlrev_b32 v{vTMP3}, 6, v{vTMP3}")
    A(f"v_lshrrev_b32 v{vTMP2}, 5, v0")
    A(f"v_lshl_or_b32 v{vTMP3}, v{vTMP2}, 3, v{vTMP3}")
    A("s_waitcnt lgkmcnt(0)")
    A(f"v_lshl_add_u32 v{vWA}, v0, 2, v9")
    A(f"s_cmp_eq_u32 s{sROLE}, 2")
    A(f"s_cselect_b32 s{sTMP2}, {opt.ogatec}, {opt.ogate}")
    A(f"s_add_u32 s5, s4, {0x200020 if opt.lcnt else 32}")
    wait_prog(True, sTMP2, sleep=2)
    stamp(2)
    if not (opt.dbg & 7):
        A(f"s_mov_b32 s{sCNT}, 0")
        A("L_pl1:")
        A(f"s_load_dword s8, s[{sGB}:{sGB+1}], 0 glc")
        A(f"s_add_u32 s{sCNT}, s{sCNT}, 1")
        A(f"s_cmp_gt_u32 s{sCNT}, {opt.maxhint}")
        A("s_waitcnt lgkmcnt(0)")
        A("s_cbranch_scc1 L_pl1d")
        A("s_sub_u32 s9, s8, s4")
        A(f"s_cmp_lt_u32 s9, {0x200000 if opt.lcnt else opt.lthr}")
        A("s_cbranch_scc1 L_pl1")
        A("L_pl1d:")
        stampval(10, sCNT)
    stamp(3)
    lp = g.lab("L_lse"); ld = g.lab("L_lsed")
    A(f"s_mov_b32 s{sCNT}, 0")
    A(f"{lp}:")
    if not (opt.dbg & 2): A(f"global_load_dwordx2 v[{vLS}:{vLS+1}], v{vTMP3}, s[{sGA}:{sGA+1}] sc1")
    if not (opt.dbg & 7):
        A("s_cmp_eq_u32 s8, s5")
        A("s_cbranch_scc1 L_pl_sig")
        A(f"s_load_dword s8, s[{sGB}:{sGB+1}], 0 glc")
        A("s_waitcnt lgkmcnt(0)")
        A("s_cmp_eq_u32 s8, s5")
        A("s_cbranch_scc0 L_pl_nosig")
        A("L_pl_sig:")
        signal(F_LRDY)
        A("L_pl_nosig:")
    A(f"s_add_u32 s{sCNT}, s{sCNT}, 1")
    A("s_waitcnt vmcnt(0)")
    A(f"v_cmp_ne_u32 vcc, s{sT}, v{vLS+1}")
    A(f"s_cbranch_vccz {ld}")
    A(f"s_cmp_le_u32 s{sCNT}, {0 if (opt.dbg & 7) else opt.maxpoll}")
    A(f"s_cbranch_scc1 {lp}")
    A(f"{ld}:")
    stampval(12, sCNT)
    A(f"v_max_f32_dpp v{vTMP}, v{vLS}, v{vLS} quad_perm:[1,0,3,2] row_mask:0xf bank_mask:0xf")
    A("s_nop 1")
    A(f"v_max_f32_dpp v{vTMP}, v{vTMP}, v{vTMP} quad_perm:[2,3,0,1] row_mask:0xf bank_mask:0xf")
    A(f"v_sub_f32 v{vLS}, v{vLS}, v{vTMP}")
    A(f"v_exp_f32 v{vLS}, v{vLS}")
    A("s_nop 1")
    A(f"v_add_f32_dpp v{vTMP}, v{vLS}, v{vLS} quad_perm:[1,0,3,2] row_mask:0xf bank_mask:0xf")
    A("s_nop 1")
    A(f"v_add_f32_dpp v{vTMP}, v{vTMP}, v{vTMP} quad_perm:[2,3,0,1] row_mask:0xf bank_mask:0xf")
    A(f"v_rcp_f32 v{vTMP}, v{vTMP}")
    A("s_nop 0")
    A(f"v_mul_f32 v{vLS}, v{vLS}, v{vTMP}")
    A(f"ds_write_b32 v{vWA}, v{vLS} offset:{F_WT}")
    signal(F_WRDY)
    stamp(4)
    if not (opt.dbg & 7):
        A("s_cmp_eq_u32 s8, s5")
        A("s_cbranch_scc1 L_pl_fin")
    pollcnt(sGB, 5, opt.psleep, cntstamp=11)
    signal(F_LRDY)
    A("L_pl_fin:")
    stamp(5)
    A("s_barrier")
    A("s_branch L_exit")
    A("L_pollM:")
    A(f"s_lshl2_add_u32 s{sTMP}, s{sBB}, s{sSPL}")
    A(f"s_lshr_b32 s{sTMP}, s{sTMP}, {int(math.log2(32//NREP))}")
    A(f"s_lshl_b32 s{sTMP2}, s{sG}, 5")
    A(f"s_add_u32 s{sTMP}, s{sTMP}, s{sTMP2}")
    A(f"s_lshl_b32 s{sTMP}, s{sTMP}, 7")
    ws_addr(sGB, WS_QC, sTMP)
    A(f"s_load_dword s4, s[{sGB}:{sGB+1}], 0 glc")
    A(f"s_mul_i32 s{sTMP}, s{sRBK}, {HREP}")
    A(f"s_and_b32 s{sTMP2}, s{sCB}, {HREP-1}")
    A(f"s_add_u32 s{sTMP}, s{sTMP}, s{sTMP2}")
    A(f"s_lshl_b32 s{sTMP}, s{sTMP}, 7")
    ws_addr(sGA, WS_HC, sTMP)
    A(f"s_load_dword s5, s[{sGA}:{sGA+1}], 0 glc")
    if opt.fgate:
        A(f"s_and_b32 s{sTMP}, s{sR}, {opt.frep-1}")
        A(f"s_lshl4_add_u32 s{sTMP}, s{sXCD}, s{sTMP}")
        A(f"s_lshl_b32 s{sTMP}, s{sTMP}, 7")
        ws_addr(10, WS_FC, sTMP)
        A(f"s_load_dword s6, s[10:11], 0 glc")
    A(f"s_bitcmp1_b32 s{sKB0}, 1")
    A(f"s_cselect_b32 s{sTMP}, 12, 8")
    A("s_waitcnt lgkmcnt(0)")
    if opt.fgate: A("s_add_u32 s6, s6, 32")
    A("s_add_u32 s4, s4, 64")
    A(f"s_add_u32 s5, s5, s{sTMP}")
    if opt.qhint:
        wait_prog(False, opt.qgate, sleep=2)
        stamp(2)
        pollcnt(sGB, 4, opt.psleep, cntstamp=10)
        signal(F_QRDY)
        stamp(3)
    wait_prog(False, opt.hgate, sleep=2)
    stamp(4)
    pollcnt(sGA, 5, opt.psleep, cntstamp=11)
    signal(F_LRDY)
    stamp(5)
    A("s_barrier")
    if opt.fgate:
        stamp(6)
        pollcnt(10, 6, 0, cntstamp=12)
        signal(F_FRDY)
        stamp(7)

    A("L_exit:")
    if STAMP:
        A("s_waitcnt lgkmcnt(0)")
        A(f"s_mul_i32 s{sTMP}, s2, 10")
        A(f"s_add_u32 s{sTMP}, s{sTMP}, s3")
        A(f"s_lshl_b32 s{sTMP}, s{sTMP}, 6")
        A(f"s_add_u32 s{sTMP}, s{sTMP}, {WS_STAMP}")
        A(f"v_mov_b32 v1, s{sTMP}")
        A("s_mov_b64 exec, 1")
        for i in range(NST):
            A(f"v_mov_b32 v2, s{sST+2*i}")
            A(f"global_store_dword v1, v2, s[{sWS}:{sWS+1}] offset:{4*i}")
        A(f"v_mov_b32 v2, s{sROLE}")
        A(f"global_store_dword v1, v2, s[{sWS}:{sWS+1}] offset:60")
    A("L_end:")
    A("s_endpgm")

    body = "\n".join(g.o)
    txt = HEADER
    txt += f"; @launch grid=(256,1,1) block=(640,1,1) lds={LDS_BYTES}\n"
    txt += f""".amdgcn_target "amdgcn-amd-amdhsa--gfx950"
.text
.globl {KNAME}
.p2align 8
.type {KNAME},@function
{KNAME}:
{body}
.section .rodata,"a"
.p2align 6
.amdhsa_kernel {KNAME}
  .amdhsa_next_free_vgpr {NV}
  .amdhsa_next_free_sgpr 102
  .amdhsa_accum_offset {NV}
  .amdhsa_group_segment_fixed_size 0
  .amdhsa_kernarg_size 104
  .amdhsa_user_sgpr_count 2
  .amdhsa_user_sgpr_kernarg_segment_ptr 1
  .amdhsa_system_sgpr_workgroup_id_x 1
.end_amdhsa_kernel
"""
    return txt

def parse(argv):
    ap = argparse.ArgumentParser()
    ap.add_argument("--nt", default="nt")
    ap.add_argument("--pb", default="28:20")
    ap.add_argument("--pc", default="4:20,d,3:4,5:12")
    ap.add_argument("--pm", default="20:24,7:20")
    ap.add_argument("--nb0", type=int, default=3)
    ap.add_argument("--stamp", type=int, default=0)
    ap.add_argument("--stq", type=int, default=0)
    ap.add_argument("--fdelay", type=int, default=0)
    ap.add_argument("--qgate", type=int, default=9)
    ap.add_argument("--ogate", type=int, default=19)
    ap.add_argument("--ogatec", type=int, default=26)
    ap.add_argument("--hgate", type=int, default=19)
    ap.add_argument("--ggate", type=int, default=4)
    ap.add_argument("--maxpoll", type=int, default=100000)
    ap.add_argument("--psleep", type=int, default=0)
    ap.add_argument("--fsleep", type=int, default=2)
    ap.add_argument("--gsleep", type=int, default=0)
    ap.add_argument("--fgsleep", type=int, default=0)
    ap.add_argument("--sample", type=int, default=0)
    ap.add_argument("--outflags", default="sc1")
    ap.add_argument("--fixdur", type=int, default=0)
    ap.add_argument("--fixwg", type=int, default=128)
    ap.add_argument("--nocomm", type=int, default=0)
    ap.add_argument("--dbg", type=int, default=0)
    ap.add_argument("--cpf", type=int, default=2)
    ap.add_argument("--qlead", type=int, default=-1)
    ap.add_argument("--hlead", type=int, default=-1)
    ap.add_argument("--olead", type=int, default=-1)
    ap.add_argument("--oearly", type=int, default=0)
    ap.add_argument("--flagwave", type=int, default=1)
    ap.add_argument("--xgat", type=int, default=8)
    ap.add_argument("--nrep", type=int, default=8)
    ap.add_argument("--satom", type=int, default=1)
    ap.add_argument("--maxhint", type=int, default=12)
    ap.add_argument("--hround", type=int, default=0)
    ap.add_argument("--fgate", type=int, default=0)
    ap.add_argument("--frep", type=int, default=8)
    ap.add_argument("--flag_delay", type=int, default=0)
    ap.add_argument("--qhint", type=int, default=0)
    ap.add_argument("--qsleep", type=int, default=4)
    ap.add_argument("--lcnt", type=int, default=0)
    ap.add_argument("--lthr", type=int, default=32)
    ap.add_argument("--spec", type=int, default=0)
    ap.add_argument("-o", default=None)
    return ap.parse_args(argv)

if __name__ == "__main__":
    opt = parse(sys.argv[1:])
    t = gen(opt)
    if opt.o: open(opt.o, "w").write(t)
    else: print(t)
```

```python
import sys, argparse, struct, math

KNAME = "gated_mix__sliding_block_cached__glu_gated_reglu__decode_kernel"
HEADER = open("gated_mix__sliding_block_cached__glu_gated_reglu__decode.s.ref").read().split("; Override launch")[0]

RA = 0
RB = 65536
XA = 131072
RQ = RB + 32768
XF = XA
QF = XA + 2048
PF = XA + 4096
RS = XA + 8192
AF = XA + 12288
FL = XA + 16384
F_PROG, F_LRDY, F_QRDY, F_WRDY, F_BQ, F_BM, F_BP, F_BA, F_RED, F_PUB0, F_PUB1, F_FREE0, F_FREE1, F_ERD, F_FRDY = [4*i for i in range(15)]
F_MAX = 64
F_G = 96
F_WT = 128
LDS_BYTES = FL + 128 + 256

WS_QP = 1 << 20
WS_OP = 2 << 20
WS_LSE = (2 << 20) + (512 << 10)
WS_GP = 3 << 20
WS_FP = 4 << 20
WS_QC = 5 << 20
WS_OC = WS_QC + (640 << 10)
WS_HC = WS_QC + 2*(640 << 10) + 1024
WS_FC = WS_QC + 3*(640 << 10) + 2048
WS_STAMP = 8 << 20

class G:
    def __init__(self):
        self.o = []; self.nlab = 0
    def A(self, s):
        for line in s.split("\n"):
            self.o.append("    " + line.strip() if not line.strip().endswith(":") else line.strip())
    def lab(self, p="L"):
        self.nlab += 1
        return f"{p}_{self.nlab}"

def plan(s):
    out = []
    for t in s.split(","):
        if t == "d": out.append("d")
        else:
            a, b = t.split(":"); out.append((int(a), int(b)))
    return out

def gen(opt):
    g = G(); A = g.A
    CS = opt.cstride
    NT = opt.nt
    STAMP = opt.stamp
    sX, sK, sV, sWQ, sWO, sBX, sWG, sWU = [16+2*i for i in range(8)]
    sWD, sGW, sOUT, sDBG = 32, 34, 36, 38
    sWS = 40
    sXCD, sR, sROLE = 42, 43, 44
    sU, sBETA, sG, sSPL, sRBK, sCB, sBB = 45, 46, 47, 48, 49, 50, 51
    sKS, sKB0 = 100, 101
    sWDN = 52
    sT = 54
    sT0, sT1, sT2, sT3 = 54, 56, 57, 53
    sSEL0, sSEL1, sSEL2, sSEL3 = 58, 59, 60, 61
    sPROG, sC = 62, 63
    sTMP, sTMP2, sTMP3, sCNT = 64, 65, 66, 67
    sGA, sGB = 68, 70
    sROT = 15
    sSM = 4
    sST = 72
    NST = 14
    SRD = 8
    def stamp(idx):
        if STAMP: A(f"s_memrealtime s[{sST+2*idx}:{sST+2*idx+1}]")
    touch = []
    def pad(kind):
        if not opt.touch: return
        l = g.lab("L_tp"); touch.append((kind, l))
        A(f"{l}:")
        A("s_setpc_b64 s[6:7]")
    def stampval(idx, sreg):
        if STAMP: A(f"s_mov_b32 s{sST+2*idx}, s{sreg}")
    pb, pc, pm = plan(opt.pb), plan(opt.pc), plan(opt.pm)
    NB0 = opt.nb0
    assert NB0 <= 3

    stamp(0)
    if opt.fixdur: A("s_memrealtime s[98:99]")
    A("s_load_dwordx16 s[16:31], s[0:1], 0")
    A("s_load_dwordx8 s[32:39], s[0:1], 64")
    A("s_load_dwordx2 s[40:41], s[0:1], 96")
    A(f"s_cmp_ge_u32 s2, 256")
    A("s_cbranch_scc1 L_end")
    A("v_lshrrev_b32 v1, 6, v0")
    A("v_and_b32 v0, 63, v0")
    A("v_readfirstlane_b32 s3, v1")
    A(f"s_and_b32 s{sXCD}, s2, 7")
    A(f"s_lshr_b32 s{sR}, s2, 3")
    A(f"s_lshr_b32 s{sG}, s{sXCD}, 1")
    A(f"s_and_b32 s{sTMP3}, s{sXCD}, 1")
    A(f"s_add_u32 s{sROT}, s{sR}, s{sXCD}")
    A(f"s_lshl_b32 s{sTMP}, s{sXCD}, 1")
    A(f"s_sub_u32 s{sTMP}, s{sR}, s{sTMP}")
    A(f"s_sub_u32 s{sTMP}, s{sTMP}, 4")
    A(f"s_bfe_u32 s{sTMP2}, s{sTMP}, 0x20002")
    A(f"s_and_b32 s{sTMP}, s{sTMP}, 3")
    A(f"s_lshl2_add_u32 s{sU}, s{sTMP}, s{sTMP2}")
    A(f"s_cmp_ge_u32 s{sR}, 16")
    A(f"s_cselect_b32 s{sU}, s{sR}, s{sU}")
    A(f"s_lshr_b32 s{sTMP}, s{sU}, 3")
    A(f"s_lshl2_add_u32 s{sKS}, s{sTMP3}, s{sTMP}")
    A("s_cmp_lg_u32 s3, 0")
    A("s_cbranch_scc1 L_notloader")
    sSOFF, sSTEP, sNB, sBLK = 4, 5, 6, 7
    sIDX, sWRAP, sBASE = 12, 13, 14
    A("s_setprio 3")
    A(f"v_mov_b32 v9, {FL}")
    A("v_mov_b32 v10, 0xff7fffff")
    A("v_cmp_gt_u32 vcc, 16, v0")
    A("v_lshl_add_u32 v11, v0, 2, v9")
    A("v_lshrrev_b32 v2, 4, v0")
    A("v_cndmask_b32 v10, v10, 0, vcc")
    A("ds_write_b32 v11, v10")
    A("v_bfe_u32 v3, v0, 1, 3")
    A("v_xor_b32 v3, v3, v2")
    A("v_lshlrev_b32 v3, 5, v3")
    A("v_and_b32 v4, 1, v0")
    A("v_lshl_or_b32 v3, v4, 4, v3")
    A("v_xor_b32 v4, 0x80, v3")
    A("v_lshl_add_u32 v5, v2, 13, v3")
    A("v_lshl_add_u32 v6, v2, 13, v4")
    A(f"s_mov_b32 s{SRD+3}, 0x20000")
    A(f"s_and_b32 s{sTMP}, s{sU}, 7")
    A(f"s_lshl3_add_u32 s{sTMP}, s{sG}, s{sTMP}")
    A(f"s_lshl_b32 s{sTMP}, s{sTMP}, 8")
    A(f"s_lshl_b32 s{sSOFF}, s{sKS}, 20")
    A(f"s_add_u32 s{sSOFF}, s{sSOFF}, s{sTMP}")
    A(f"s_mov_b32 s{SRD+2}, {1024*4096*2}")
    A(f"s_mov_b32 s{sNB}, {NB0}")
    A(f"s_mov_b32 s{sSTEP}, {4*8192}")
    A(f"s_mov_b32 m0, {RQ}")
    A(f"s_mov_b32 s{sBLK}, {NB0}")
    if opt.fine == 2: stamp(5)
    A("s_waitcnt lgkmcnt(0)")
    if opt.fine == 2: stamp(6)
    A(f"s_mov_b64 s[{SRD}:{SRD+1}], s[{sWQ}:{sWQ+1}]")
    A("s_barrier")
    if opt.fine == 2: stamp(7)
    def blk_body(win, rot):
        ph = (win // 4) & 1 if win is not None else 0
        back = (win - 4*ph) // 8 if win is not None else 0
        for half in range(2):
            if win is not None:
                if half == ph:
                    A(f"s_sub_u32 s{sTMP}, s{sBLK}, {back}")
                    A(f"s_max_i32 s{sPROG}, s{sTMP}, s{sPROG}")
                    A(f"v_mov_b32 v10, s{sPROG}")
                A(f"s_waitcnt vmcnt({win})")
                if half == ph: A(f"ds_write_b32 v9, v10 offset:{F_PROG}")
            for i in range(4):
                v = 5 if ((i >> 1) & 1) == 0 else 6
                A(f"buffer_load_dwordx4 v{v}, s[{SRD}:{SRD+3}], s{sSOFF} offen {NT} lds")
                A(f"s_add_u32 m0, m0, 1024")
                A(f"s_add_u32 s{sSOFF}, s{sSOFF}, s{sSTEP}")
        if rot:
            A(f"s_add_u32 s{sIDX}, s{sIDX}, 1")
            A(f"s_and_b32 s{sIDX}, s{sIDX}, 7")
            A(f"s_cselect_b32 s{sTMP}, 0, s{sWRAP}")
            A(f"s_sub_u32 s{sSOFF}, s{sSOFF}, s{sTMP}")
    A("L_top_loop:")
    blk_body(None, False)
    A(f"s_sub_u32 s{sNB}, s{sNB}, 1")
    A(f"s_cmp_lg_u32 s{sNB}, 0")
    A("s_cbranch_scc1 L_top_loop")
    A("s_branch L_loader2")
    A("L_notloader:")
    if opt.cpf:
        A(f"s_cmp_gt_u32 s3, {opt.cpf}")
        A("s_cbranch_scc1 L_cpf_done")
        A("s_getpc_b64 s[4:5]")
        A("L_pc:")
        A(f"s_lshl_b32 s{sTMP}, s3, 13")
        A(f"s_sub_u32 s{sTMP}, s{sTMP}, 8192")
        A(f"v_lshl_add_u32 v1, v0, 7, s{sTMP}")
        A(f"v_cmp_gt_u32 vcc, L_end-L_pc, v1")
        A("s_and_saveexec_b64 s[6:7], vcc")
        A("s_cbranch_execz L_cpf_done2")
        A(f"global_load_dword v127, v1, s[4:5]")
        A("L_cpf_done2:")
        A("s_mov_b64 exec, -1")
        A("L_cpf_done:")
    A("s_barrier")
    A("s_branch L_cons")

    def decode2(keep=False):
        d = g.lab("L_d2"); m = g.lab("L_d2m")
        if STAMP:
            for i in range(1, NST):
                if not (opt.fine == 2 and keep and i in (5, 6, 7)): A(f"s_mov_b32 s{sST+2*i}, 0")
        A(f"s_mul_i32 s{sBETA}, s{sXCD}, 14")
        A(f"s_add_u32 s{sBETA}, s{sBETA}, s{sR}")
        A(f"s_mov_b32 s{sPROG}, 0")
        A(f"s_cmp_ge_u32 s{sR}, 16")
        A(f"s_cbranch_scc1 {m}")
        A(f"s_cmp_ge_u32 s{sR}, 14")
        A(f"s_cselect_b32 s{sROLE}, 2, 1")
        A(f"s_lshr_b32 s{sTMP}, s{sU}, 3")
        A(f"s_lshl1_add_u32 s{sRBK}, s{sXCD}, s{sTMP}")
        A(f"s_add_u32 s{sTMP}, s{sU}, 3")
        A(f"s_and_b32 s{sTMP}, s{sTMP}, 3")
        A(f"s_and_b32 s{sCB}, s{sU}, 4")
        A(f"s_or_b32 s{sCB}, s{sCB}, s{sTMP}")
        A(f"s_lshl_b32 s{sKB0}, s{sRBK}, 3")
        A(f"s_branch {d}")
        A(f"{m}:")
        A(f"s_mov_b32 s{sROLE}, 0")
        A(f"s_and_b32 s{sTMP}, s{sXCD}, 1")
        A(f"s_bfe_u32 s{sBB}, s{sR}, 0x20002")
        A(f"s_lshl2_add_u32 s{sBB}, s{sTMP}, s{sBB}")
        A(f"s_and_b32 s{sSPL}, s{sR}, 3")
        A(f"s_bfe_u32 s{sTMP}, s{sR}, 0x10003")
        A(f"s_lshl1_add_u32 s{sRBK}, s{sXCD}, s{sTMP}")
        A(f"s_mul_i32 s{sKB0}, s{sRBK}, 7")
        A(f"s_add_u32 s{sCB}, s{sR}, 1")
        A(f"s_and_b32 s{sCB}, s{sCB}, 7")
        A(f"{d}:")

    A("L_loader2:")
    decode2(True)
    stamp(1)
    def lds_wait_ge(off, val, vtmp="v11", vaddr="v9", sleep=0):
        l = g.lab("L_w")
        A(f"{l}:")
        if sleep: A(f"s_sleep {sleep}")
        A(f"ds_read_b32 {vtmp}, {vaddr} offset:{off}")
        A("s_waitcnt lgkmcnt(0)")
        A(f"v_readfirstlane_b32 s{sTMP}, {vtmp}")
        A(f"s_cmp_ge_u32 s{sTMP}, {val}")
        A(f"s_cbranch_scc0 {l}")
    def blk_loop(nblk, win, rot):
        l = g.lab("L_ld")
        if nblk > 1:
            A(f"s_mov_b32 s{sNB}, {nblk}")
            A(f"{l}:")
        blk_body(win, rot)
        A(f"s_add_u32 s{sBLK}, s{sBLK}, 1")
        if nblk > 1:
            A(f"s_sub_u32 s{sNB}, s{sNB}, 1")
            A(f"s_cmp_lg_u32 s{sNB}, 0")
            A(f"s_cbranch_scc1 {l}")
    def drain(maxwin):
        for k in range((maxwin + 4 + 7)//8 - 1, -1, -1):
            A(f"s_sub_u32 s{sTMP}, s{sBLK}, {k}")
            A(f"s_max_i32 s{sPROG}, s{sTMP}, s{sPROG}")
            A(f"v_mov_b32 v10, s{sPROG}")
            A(f"s_waitcnt vmcnt({8*k})")
            A(f"ds_write_b32 v9, v10 offset:{F_PROG}")
    def set_stride(stride):
        A(f"s_mov_b32 s{sSTEP}, {4*stride}")
        if stride & (stride-1) == 0:
            sh = stride.bit_length()-1
            A(f"v_lshl_add_u32 v5, v2, {sh}, v3")
            A(f"v_lshl_add_u32 v6, v2, {sh}, v4")
        else:
            A(f"v_mul_u32_u24 v8, {stride}, v2")
            A("v_add_u32 v5, v8, v3")
            A("v_add_u32 v6, v8, v4")
        A(f"s_mov_b32 s{sWRAP}, {256*stride}")
    XSRD = 68
    def xloads(n, ldsbase):
        for j in range(4):
            A(f"s_add_u32 s{sTMP}, s{sROT}, {2*j}")
            A(f"s_and_b32 s{sTMP}, s{sTMP}, 7")
            A(f"s_lshl_b32 s{sTMP}, s{sTMP}, 6")
            A(f"s_add_u32 s{sTMP}, s{sTMP}, s{sTMP3}")
            for q in range(n//4):
                A(f"s_mov_b32 m0, {ldsbase + 4096*q + 1024*j - 512*q}")
                A("s_nop 0")
                A(f"buffer_load_dwordx4 v7, s[{XSRD}:{XSRD+3}], s{sTMP} offen offset:{512*q} lds")
    def run_plan(pl, segs, start, hook=None):
        blk = 0; lastwin = 0
        segmap = {x[0]: x for x in segs}
        rot = False
        items = []
        for it in pl:
            if it == "d": items.append(it); continue
            n, w = it
            while n:
                c = min(n, 4 - blk if blk < 4 else 8 - ((blk - 4) % 8))
                if blk < start: c = min(c, start - blk)
                if hook and blk < hook[0]: c = min(c, hook[0] - blk)
                if blk >= start: items.append((blk, c, w))
                blk += c; n -= c
            lastw = w
        lastwin = pl[0][1]
        for it in items:
            if it == "d":
                drain(max(lastwin, 8*start)); continue
            b0, c, w = it
            if b0 >= 4 and (b0 - 4) % 8 == 0:
                seg = (b0 - 4) // 8 + 1
                stamp(1 + seg)
                if seg >= 2: lds_wait_ge(F_FREE0 + 4*(seg-2), 8)
                if b0 in segmap:
                    segmap[b0][1](); rot = segmap[b0][2]
                elif rot:
                    A(f"s_add_u32 s{sSOFF}, s{sSOFF}, s{sWRAP}")
                A(f"s_mov_b32 m0, {RA if seg % 2 == 1 else RB}")
            if hook and b0 == hook[0]: hook[1]()
            blk_loop(c, w, rot)
            lastwin = w
        stamp(8)
        if opt.fgate:
            A(f"s_mul_i32 s{sTMP}, s{sCB}, {16*CS}")
            A(f"s_add_u32 s{sTMP}, s{sTMP}, {WS_FC}")
            A(f"s_add_u32 s4, s{sWS}, s{sTMP}")
            A(f"s_addc_u32 s5, s{sWS+1}, 0")
            A(f"v_mul_u32_u24 v5, {CS}, v0")
            A("v_mov_b32 v6, 1")
        drain(max(x[1] for x in pl if x != "d"))
        stamp(9)
        A("s_branch L_ld_end")
    def late_seg(ptr, nbytes):
        def f():
            set_stride(2048)
            A(f"s_mov_b64 s[{SRD}:{SRD+1}], s[{ptr}:{ptr+1}]\ns_mov_b32 s{SRD+2}, {nbytes}")
            A(f"s_lshl_b32 s{sSOFF}, s{sKB0}, 16")
            A(f"s_lshl_b32 s{sTMP}, s{sCB}, 8")
            A(f"s_add_u32 s{sSOFF}, s{sSOFF}, s{sTMP}")
        return f
    A("v_and_b32 v7, 7, v0")
    A("v_lshlrev_b32 v7, 11, v7")
    A("v_lshrrev_b32 v8, 3, v0")
    A("v_lshl_add_u32 v7, v8, 4, v7")
    A(f"s_mov_b64 s[{XSRD}:{XSRD+1}], s[{sX}:{sX+1}]\ns_mov_b32 s{XSRD+2}, 16384\ns_mov_b32 s{XSRD+3}, 0x20000")
    A(f"s_lshl_b32 s{sTMP3}, s{sKS}, 8")
    A(f"s_mov_b32 m0, {XF}")
    A("s_nop 0")
    A(f"buffer_load_dwordx4 v7, s[{XSRD}:{XSRD+3}], s{sTMP3} offen lds")
    A(f"s_mov_b32 m0, {XF + 1024 - 128}")
    A("s_nop 0")
    A(f"buffer_load_dwordx4 v7, s[{XSRD}:{XSRD+3}], s{sTMP3} offen offset:128 lds")
    A(f"s_mov_b32 m0, {RQ + 8192*NB0}")
    A(f"s_cmp_ge_u32 s{sR}, 16")
    A("s_cbranch_scc1 L_ld_M")
    def b_seg1():
        A(f"s_and_b32 s{sROT}, s{sROT}, 6")
        A(f"s_mov_b32 s{sIDX}, s{sROT}")
        A(f"s_and_b32 s{sTMP2}, s{sBETA}, 1")
        set_stride(7168)
        A(f"s_mul_i32 s{sSOFF}, s{sTMP2}, {512*7168}")
        A(f"s_lshr_b32 s{sTMP}, s{sBETA}, 2")
        A(f"s_lshl_b32 s{sTMP}, s{sTMP}, 8")
        A(f"s_add_u32 s{sSOFF}, s{sSOFF}, s{sTMP}")
        A(f"s_mul_i32 s{sTMP}, s{sROT}, {32*7168}")
        A(f"s_add_u32 s{sSOFF}, s{sSOFF}, s{sTMP}")
        A(f"s_bitcmp0_b32 s{sBETA}, 1")
        A(f"s_cselect_b64 s[{SRD}:{SRD+1}], s[{sWG}:{sWG+1}], s[{sWU}:{sWU+1}]")
        A(f"s_mov_b32 s{SRD+2}, {1024*3584*2}")
    A(f"s_cmp_eq_u32 s{sROLE}, 2")
    A("s_cbranch_scc1 L_ld_C")
    assert sum(x[0] for x in pb if x != "d") == 28
    XGAT = opt.xgat
    def xg_hook():
        A(f"s_and_b32 s{sTMP3}, s{sBETA}, 1")
        A(f"s_lshl_b32 s{sTMP3}, s{sTMP3}, 10")
        xloads(8, XF + 2048)
        A(f"s_mov_b32 m0, {RA + 8192*(XGAT-4)}")
    run_plan(pb, [(4, b_seg1, True), (20, late_seg(sWO, 4096*1024*2), False)], NB0, hook=(XGAT, xg_hook))
    A("L_ld_C:")
    assert sum(x[0] for x in pc if x != "d") == 12 and pc[1] == "d" and pc[0][0] == 4
    def c_seg1():
        late_seg(sWO, 4096*1024*2)()
        A(f"s_mov_b32 s{sBLK}, 20")
    run_plan(pc, [(4, c_seg1, False)], NB0)
    A("L_ld_M:")
    def m_seg1():
        A(f"s_and_b32 s{sROT}, s{sROT}, 7")
        A(f"s_mov_b32 s{sIDX}, s{sROT}")
        set_stride(256)
        A(f"s_lshl2_add_u32 s{sTMP}, s{sBB}, s{sG}")
        A(f"s_lshl4_add_u32 s{sTMP}, s{sTMP}, s{sSPL}")
        A(f"s_add_u32 s{sTMP}, s{sTMP}, 12")
        A(f"s_lshl3_add_u32 s{sTMP}, s{sTMP}, s{sROT}")
        A(f"s_lshl_b32 s{sSOFF}, s{sTMP}, 13")
        A(f"s_mov_b64 s[{SRD}:{SRD+1}], s[{sK}:{sK+1}]\ns_mov_b32 s{SRD+2}, {8*4*4096*128*2}")
    def m_seg2():
        A(f"s_mov_b64 s[{SRD}:{SRD+1}], s[{sV}:{sV+1}]")
    assert sum(x[0] for x in pm if x != "d") == 27
    run_plan(pm, [(4, m_seg1, True), (12, m_seg2, True), (20, late_seg(sWD, 3584*1024*2), False)], NB0)
    A("L_ld_end:")
    if opt.nocomm: A("s_branch L_exit")
    A("s_barrier")
    if opt.fgate and not (opt.dbg & 1):
        if opt.flag_delay: A(f"s_sleep {opt.flag_delay}")
        A(f"s_bfm_b64 exec, {opt.frep}, 0")
        A("global_atomic_add v5, v6, s[4:5] sc1")
    A("s_branch L_exit")

    A("L_cons:")
    vL16, vTR, vACT, vT, vPUB = 1, 2, 3, 4, 5
    vTMP, vTMP2, vTMP3 = 6, 7, 8
    vWA, vAA = 10, 11
    vW, vB, vACC, vACC2 = 12, 16, 20, 24
    vGA = 28
    vLS = 44
    vK = 52
    vQ = 84
    vRG, vRW, vRR, vOUT, vONE, vAFW, vFLG = 116, 117, 118, 119, 120, 121, 122
    vTP, vTC, vL8 = 123, 124, 125
    vTA, vAX = 48, 49
    NV = 128
    A("s_waitcnt lgkmcnt(0)")
    A(f"s_load_dword s{sT}, s[{sWS}:{sWS+1}], 0")
    decode2()
    stamp(1)
    A(f"s_sub_u32 s{sC}, s3, 1")
    sSC, sM3, sMN, sEM, sRNG = 58, 60, 61, 56, 57
    A(f"s_mov_b32 s{sM3}, 0x00030003")
    A(f"s_mov_b32 s{sMN}, 0xfffcfffc")
    A(f"s_mov_b32 s{sRNG}, {27 << 23:#x}")
    A(f"v_mov_b32 v{vAX}, 0")
    A(f"v_lshlrev_b32 v{vL8}, 3, v0")
    A(f"v_mov_b32 v9, {FL}")
    A(f"v_mov_b32 v{vONE}, 1")
    A(f"v_lshlrev_b32 v{vL16}, 4, v0")
    A(f"v_mul_u32_u24 v{vFLG}, {CS}, v0")
    A(f"v_lshrrev_b32 v{vTMP2}, 4, v0")
    A(f"v_bfe_u32 v{vTMP3}, v0, 2, 2")
    A(f"v_lshl_add_u32 v{vTR}, v{vTMP2}, 3, v{vTMP3}")
    A(f"v_lshlrev_b32 v{vTR}, 8, v{vTR}")
    A(f"v_and_b32 v{vACT}, 1, v{vTMP2}")
    A(f"v_lshl_or_b32 v{vTMP3}, v{vACT}, 2, v{vTMP3}")
    A(f"v_xor_b32 v{vTMP3}, s{sC}, v{vTMP3}")
    A(f"v_lshl_or_b32 v{vTR}, v{vTMP3}, 5, v{vTR}")
    A(f"v_and_b32 v{vTMP3}, 3, v0")
    A(f"v_lshl_or_b32 v{vTR}, v{vTMP3}, 3, v{vTR}")
    A(f"v_and_b32 v{vTMP3}, 7, v0")
    A(f"v_lshl_add_u32 v{vACT}, v{vTMP2}, 3, v{vTMP3}")
    A(f"v_lshlrev_b32 v{vACT}, 4, v{vACT}")
    A(f"v_lshrrev_b32 v{vAFW}, 5, v0")
    A(f"v_lshlrev_b32 v{vAFW}, 8, v{vAFW}")
    A(f"v_and_b32 v{vTMP2}, 2, v0")
    A(f"v_lshl_or_b32 v{vAFW}, v{vTMP2}, 6, v{vAFW}")
    A(f"v_and_b32 v{vTMP2}, 28, v0")
    A(f"v_lshl_or_b32 v{vAFW}, v{vTMP2}, 2, v{vAFW}")
    A(f"v_and_b32 v{vTMP2}, 1, v0")
    A(f"v_lshl_or_b32 v{vAFW}, v{vTMP2}, 3, v{vAFW}")
    A(f"s_lshl_b32 s{sTMP}, s{sC}, 9")
    A(f"s_add_u32 s{sTMP}, s{sTMP}, {AF}")
    A(f"v_add_u32 v{vAFW}, s{sTMP}, v{vAFW}")
    A("s_waitcnt lgkmcnt(0)")
    A(f"s_add_u32 s{sT}, s{sT}, 0x11111111")
    A(f"s_mov_b32 s{sT+1}, s{sT}")
    A(f"v_mov_b32 v{vT}, s{sT}")
    def tagbits(dst, vsh):
        A(f"v_lshrrev_b32 v{dst}, v{vsh}, v{vT}")
        A(f"v_and_b32 v{dst}, 15, v{dst}")
        A(f"v_lshl_or_b32 v{dst}, v{dst}, 14, v{dst}")
        A(f"v_and_b32 v{dst}, s{sM3}, v{dst}")
    A(f"v_and_b32 v{vTMP}, 7, v0")
    A(f"v_lshlrev_b32 v{vTMP}, 2, v{vTMP}")
    tagbits(vTC, vTMP)
    A(f"v_lshrrev_b32 v{vTMP}, 2, v0")
    A(f"v_and_b32 v{vTMP}, 12, v{vTMP}")
    A(f"v_and_b32 v{vTMP2}, 1, v0")
    A(f"v_lshl_or_b32 v{vTMP}, v{vTMP2}, 4, v{vTMP}")
    tagbits(vTP, vTMP)
    A(f"v_sub_u32 v{vTA}, s{sM3}, v{vTP}")

    def refresh_prog():
        A(f"ds_read_b32 v{vTMP}, v9 offset:{F_PROG}")
        A("s_waitcnt lgkmcnt(0)")
        A(f"v_readfirstlane_b32 s{sPROG}, v{vTMP}")
    def wait_prog(val_is_sgpr, val, sleep=0):
        l = g.lab("L_wp"); d = g.lab("L_wpd")
        v = f"s{val}" if val_is_sgpr else str(val)
        A(f"s_cmp_ge_u32 s{sPROG}, {v}")
        A(f"s_cbranch_scc1 {d}")
        A(f"{l}:")
        if sleep: A(f"s_sleep {sleep}")
        refresh_prog()
        A(f"s_cmp_ge_u32 s{sPROG}, {v}")
        A(f"s_cbranch_scc0 {l}")
        A(f"{d}:")
    def signal(off):
        A("s_mov_b64 exec, 1")
        A(f"ds_add_u32 v9, v{vONE} offset:{off}")
        A("s_mov_b64 exec, -1")
    def cwait(off, val, sleep=0):
        lds_wait_ge(off, val, vtmp=f"v{vTMP}", sleep=sleep)
    def cwait_rd(off, val, nrd, reads):
        l = g.lab("L_cw")
        A(f"{l}:")
        A(f"ds_read_b32 v{vTMP}, v9 offset:{off}")
        reads()
        A(f"s_waitcnt lgkmcnt({nrd})")
        A(f"v_readfirstlane_b32 s{sTMP}, v{vTMP}")
        A(f"s_cmp_ge_u32 s{sTMP}, {val}")
        A(f"s_cbranch_scc0 {l}")
    def fbits(x): return struct.unpack("<I", struct.pack("<f", x))[0]
    ADJ = 1.0 - 0.7 * 2.0**-10
    LQ, LO_, LG, LF = [x + opt.sbias for x in (8, 12, 10, 20)]
    def setscale(lg):
        A(f"s_mov_b32 s{sSC}, {fbits(2.0**lg):#x}")
        A(f"s_mov_b32 s{sSC+1}, {fbits(2.0**lg * ADJ):#x}")
    def encode(sc=None, tp=vTP, ta=vTA):
        src = vACC
        d = g.lab("L_en")
        scs = f"s[{sSC}:{sSC+1}]" if sc is None else f"v[{sc}:{sc+1}]"
        A(f"v_pk_mul_f32 v[{src}:{src+1}], v[{src}:{src+1}], {scs} op_sel_hi:[1,0]")
        A(f"v_pk_mul_f32 v[{src+2}:{src+3}], v[{src+2}:{src+3}], {scs} op_sel:[0,1] op_sel_hi:[1,1]")
        A(f"v_max3_f32 v{vTMP}, |v{src}|, |v{src+1}|, |v{src+2}|")
        A(f"v_max_f32 v{vTMP}, |v{src+3}|, v{vTMP}")
        A(f"v_subrev_u32 v{vTMP2}, {115 << 23:#x}, v{vTMP}")
        A(f"v_cmp_le_u32 vcc, s{sRNG}, v{vTMP2}")
        A(f"s_cbranch_vccz {d}")
        A(f"s_call_b64 s[6:7], L_encs")
        A(f"{d}:")
        A(f"v_cvt_pkrtz_f16_f32 v{src}, v{src}, v{src+1}")
        A(f"v_cvt_pkrtz_f16_f32 v{src+1}, v{src+2}, v{src+3}")
        A(f"v_add_u32 v{src}, 0x00020002, v{src}")
        A(f"v_add_u32 v{src+1}, v{src+1}, v{ta}")
        A(f"v_and_or_b32 v{src}, v{src}, s{sMN}, v{vAX}")
        A(f"v_and_or_b32 v{src+1}, v{src+1}, s{sMN}, v{tp}")
    def publish(src, base=sGA, sc=None):
        encode(sc)
        A("s_mov_b32 exec_lo, 0x00ff00ff\ns_mov_b32 exec_hi, 0x00ff00ff")
        if not (opt.dbg & 1): A(f"global_store_dwordx2 v{vPUB}, v[{src}:{src+1}], s[{base}:{base+1}] sc1")
    NREP = opt.nrep; HREP = max(1, NREP // 4)
    sNH = 9
    def bump(kind):
        if opt.dbg & 1: return
        if opt.satom:
            A(f"s_mov_b32 s8, 1")
            if kind == "h":
                e = g.lab("L_bh")
                for r in range(HREP): A(f"s_atomic_add s8, s[{sGB}:{sGB+1}], {CS*r}")
                A(f"s_cmp_eq_u32 s{sNH}, {HREP}")
                A(f"s_cbranch_scc1 {e}")
                for r in range(HREP, 2*HREP): A(f"s_atomic_add s8, s[{sGB}:{sGB+1}], {CS*r}")
                A(f"{e}:")
            else:
                for r in range(NREP): A(f"s_atomic_add s8, s[{sGB}:{sGB+1}], {CS*r}")
        else:
            if kind == "h": A(f"s_bfm_b64 exec, s{sNH}, 0")
            else: A(f"s_bfm_b64 exec, {NREP}, 0")
            A(f"global_atomic_add v{vFLG}, v{vONE}, s[{sGB}:{sGB+1}] sc1")
    def flag(cnt, nrep, last=7):
        d = g.lab("L_fl")
        A("s_mov_b64 exec, 1")
        A(f"ds_add_rtn_u32 v{vTMP}, v9, v{vONE} offset:{cnt}")
        A("s_waitcnt lgkmcnt(0)")
        A(f"v_readfirstlane_b32 s{sTMP}, v{vTMP}")
        A(f"s_cmp_lg_u32 s{sTMP}, {last}")
        A(f"s_cbranch_scc1 {d}")
        bump(nrep)
        A(f"{d}:")
        A("s_mov_b64 exec, -1")
    def flag_now(nrep):
        d = g.lab("L_fn")
        A(f"s_cmp_lg_u32 s{sC}, {opt.flagwave}")
        A(f"s_cbranch_scc1 {d}")
        bump(nrep)
        A("s_mov_b64 exec, -1")
        A(f"{d}:")
    def ws_addr(dst, base_const, soff):
        A(f"s_add_u32 s{soff}, s{soff}, {base_const}")
        A(f"s_add_u32 s{dst}, s{sWS}, s{soff}")
        A(f"s_addc_u32 s{dst+1}, s{sWS+1}, 0")
    def pub_voff(shift):
        A(f"v_and_b32 v{vTMP2}, 15, v0")
        A(f"v_lshrrev_b32 v{vTMP3}, 4, v0")
        A(f"v_lshlrev_b32 v{vTMP3}, 3, v{vTMP3}")
        A(f"v_lshl_or_b32 v{vPUB}, v{vTMP2}, {shift}, v{vTMP3}")
    def sample(base, offs, sleep=0, cntstamp=None):
        l = g.lab("L_sm"); d = g.lab("L_smd"); e = g.lab("L_sme")
        if opt.dbg & 7: return
        A(f"s_mov_b32 s{sCNT}, 0")
        if sleep: A(f"s_branch {e}")
        A(f"{l}:")
        if sleep:
            A(f"s_sleep {sleep}")
            A(f"{e}:")
        for i, o in enumerate(offs):
            A(f"s_load_dword s{sSM+i}, s[{base}:{base+1}], {o} glc")
        A(f"s_add_u32 s{sCNT}, s{sCNT}, 1")
        A(f"s_cmp_gt_u32 s{sCNT}, {opt.maxpoll}")
        A("s_waitcnt lgkmcnt(0)")
        A(f"s_cbranch_scc1 {d}")
        for i in range(len(offs)):
            A(f"s_xor_b32 s{sSM+i}, s{sSM+i}, s{sT}")
            if i: A(f"s_or_b32 s{sSM}, s{sSM}, s{sSM+i}")
        A(f"s_and_b32 s{sSM}, s{sSM}, 0xff")
        A(f"s_cbranch_scc1 {l}")
        A(f"{d}:")
        if cntstamp is not None: stampval(cntstamp, sCNT)
    def pollcnt(base, target, sleep, cntstamp=None):
        l = g.lab("L_pf"); d = g.lab("L_pfd"); e = g.lab("L_pfe")
        if opt.dbg & 7: return
        A(f"s_mov_b32 s{sCNT}, 0")
        if sleep: A(f"s_branch {e}")
        A(f"{l}:")
        if sleep:
            A(f"s_sleep {sleep}")
            A(f"{e}:")
        A(f"s_load_dword s8, s[{base}:{base+1}], 0 glc")
        A(f"s_add_u32 s{sCNT}, s{sCNT}, 1")
        A(f"s_cmp_gt_u32 s{sCNT}, {opt.maxhint}")
        A("s_waitcnt lgkmcnt(0)")
        A(f"s_cbranch_scc1 {d}")
        A(f"s_cmp_eq_u32 s8, s{target}")
        A(f"s_cbranch_scc0 {l}")
        A(f"{d}:")
        if cntstamp is not None: stampval(cntstamp, sCNT)
    def gather(nld=4, mid=None, cntstamp=None, sleep=0, work=None, kind='M', defer=False):
        l = g.lab("L_ga"); d = g.lab("L_gad"); c = g.lab("L_gac"); rt = g.lab("L_gar")
        assert nld in (1, 4)
        def issue():
            if opt.dbg & 2: return
            for i in range(nld):
                A(f"global_load_dwordx2 v[{vGA+2*i}:{vGA+2*i+1}], v{vL8}, s[{sGA}:{sGA+1}] offset:{512*i} sc1")
        if mid is not None or sleep:
            issue()
            if mid is not None: mid()
            A(f"s_mov_b32 s{sEM}, s{sM3}")
            A(f"s_mov_b32 s{sCNT}, 0")
            A(f"s_branch {c}")
            pad(kind)
        else:
            A(f"s_mov_b32 s{sEM}, s{sM3}")
            A(f"s_mov_b32 s{sCNT}, 0")
        A(f"{l}:")
        if sleep: A(f"s_sleep {sleep}")
        issue()
        A(f"{c}:")
        A(f"s_add_u32 s{sCNT}, s{sCNT}, 1")
        vC, vC0 = vTMP2, vTMP
        for i in range(nld):
            A(f"s_waitcnt vmcnt({nld-1-i})")
            if i == 0: A(f"v_xor_b32 v{vC}, v{vTC}, v{vGA+1}")
            else: A(f"v_bitop3_b32 v{vC}, v{vC}, v{vGA+2*i+1}, v{vTC} bitop3:0xf6")
            if i == 2: A(f"v_or3_b32 v{vC0}, v{vGA}, v{vGA+2}, v{vGA+4}")
            if i == nld-1:
                if nld == 4: A(f"v_or_b32 v{vC0}, v{vC0}, v{vGA+6}")
                A(f"v_and_b32 v{vC}, s{sM3}, v{vC}")
                A(f"v_and_or_b32 v{vC0}, v{vC0 if nld == 4 else vGA}, s{sEM}, v{vC}")
                A(f"v_cmp_ne_u32 vcc, 0, v{vC0}")
            if work is not None and i < nld-1: work(i)
        A(f"s_cbranch_vccz {d}")
        A(f"v_cmp_ne_u32 vcc, 0, v{vC}")
        A(f"s_cbranch_vccnz {rt}")
        A(f"s_mov_b32 s{sEM}, 0")
        if defer: A(f"s_branch {d}")
        else:
            A("s_call_b64 s[6:7], L_fix")
            A(f"s_branch {c}")
        A(f"{rt}:")
        A(f"s_cmp_le_u32 s{sCNT}, {0 if (opt.dbg & 6) else opt.maxpoll}")
        A(f"s_cbranch_scc1 {l}")
        A(f"{d}:")
        if cntstamp is not None: stampval(cntstamp, sCNT)
        if work is not None: work(nld-1)
    vS0, vS1, vSCA = vGA + 12, vGA + 8, vLS
    def acc(i, dst, first):
        for r in range(4):
            c2 = "0" if first else f"v{dst+r}"
            A(f"v_fma_mix_f32 v{dst+r}, v{vGA+2*i+(r>>1)}, v{vSCA+i}, {c2} op_sel:[{r&1},0,0] op_sel_hi:[1,0,0]")
    def setsca(lg):
        for i in range(4): A(f"v_mov_b32 v{vSCA+i}, {fbits(2.0**-lg):#x}")
    def wreads(k0, k1):
        for kb in range(k0, k1):
            o = 8192*kb
            A(f"ds_read_b64_tr_b16 v[{vK+4*kb}:{vK+4*kb+1}], v{vWA} offset:{o}")
            A(f"ds_read_b64_tr_b16 v[{vK+4*kb+2}:{vK+4*kb+3}], v{vWA} offset:{o+1024}")
    def mf(kb, first):
        c = "0" if first else f"v[{vACC}:{vACC+3}]"
        A(f"v_mfma_f32_16x16x32_bf16 v[{vACC}:{vACC+3}], v[{vK+4*kb}:{vK+4*kb+3}], v[{vQ+4*kb}:{vQ+4*kb+3}], {c}")
    def actreads(n):
        for kb in range(n):
            A(f"ds_read_b128 v[{vQ+4*kb}:{vQ+4*kb+3}], v{vAA} offset:{512*kb}")
    sFA, sRA, sPE = 12, 10, 14
    def late_setup(wbase, padd, pend):
        A(f"v_add_u32 v{vWA}, {wbase}, v{vTR}")
        A(f"v_add_u32 v{vAA}, {AF}, v{vACT}")
        A(f"v_and_b32 v{vTMP2}, 4, v0")
        A(f"v_lshlrev_b32 v{vPUB}, 10, v{vTMP2}")
        A(f"v_and_b32 v{vTMP2}, 3, v0")
        A(f"v_lshl_or_b32 v{vPUB}, v{vTMP2}, 5, v{vPUB}")
        A(f"v_lshrrev_b32 v{vTMP2}, 4, v0")
        A(f"v_lshl_or_b32 v{vPUB}, v{vTMP2}, 3, v{vPUB}")
        A(f"s_lshl3_add_u32 s{sTMP}, s{sCB}, s{sC}")
        A(f"s_lshl_b32 s{sTMP}, s{sTMP}, 6")
        A(f"s_add_u32 s{sTMP}, s{sTMP}, s{sRBK}")
        A(f"s_lshl_b32 s{sTMP}, s{sTMP}, 7")
        ws_addr(sFA, WS_FP + 128*padd, sTMP)
        A(f"s_mov_b32 s{sPE}, {pend}")
        setscale(LF)
        A(f"v_mov_b32 v{vAX}, 0")
        A(f"s_mov_b32 s{sWDN}, 21")
        A(f"s_add_u32 s{sTMP}, s{sKB0}, s{sC}")
        A(f"s_lshl_b32 s{sTMP}, s{sTMP}, 11")
    sRET = 6
    def wcatch():
        d = g.lab("L_wc")
        A(f"s_cmp_lt_u32 s{sPROG}, s{sWDN}")
        A(f"s_cbranch_scc1 {d}")
        A(f"s_call_b64 s[{sRET}:{sRET+1}], L_wcatch")
        A(f"{d}:")
    def late_wait():
        l = g.lab("L_lw"); d = g.lab("L_lwd")
        A(f"{l}:")
        A(f"ds_read_b64 v[{vTMP}:{vTMP+1}], v9 offset:{F_PROG}")
        A("s_waitcnt lgkmcnt(0)")
        A(f"v_readfirstlane_b32 s{sTMP}, v{vTMP+1}")
        A(f"v_readfirstlane_b32 s{sPROG}, v{vTMP}")
        A(f"s_cmp_lg_u32 s{sTMP}, 0")
        A(f"s_cbranch_scc1 {d}")
        wcatch()
        A(f"s_branch {l}")
        A(f"{d}:")
    def late_mid():
        A(f"s_add_u32 s{sTMP2}, s{sPROG}, {opt.midahead}")
        A(f"s_min_u32 s{sTMP2}, s{sTMP2}, s{sPE}")
        wcatch()
        wait_prog(True, sTMP2)
        wcatch()
    vPG = 126
    def late_post_issue(): A(f"ds_read_b32 v{vPG}, v9 offset:{F_PROG}")
    def late_post():
        A("s_waitcnt lgkmcnt(0)")
        A(f"v_readfirstlane_b32 s{sPROG}, v{vPG}")
        wcatch()

    signal(F_ERD)
    A(f"s_cmp_eq_u32 s3, 9")
    A("s_cbranch_scc1 L_poller")
    if opt.nocomm:
        signal(F_FREE0); signal(F_FREE1)
        A("s_branch L_exit")
    def egloop(last, name, lead=None, nrep=0):
        A(f"L_eg_loop{name}:")
        A(f"ds_read_b128 v[{vB}:{vB+3}], v{vAA}")
        wait_prog(True, sCNT)
        A(f"ds_read_b64_tr_b16 v[{vW}:{vW+1}], v{vWA}")
        A(f"ds_read_b64_tr_b16 v[{vW+2}:{vW+3}], v{vWA} offset:1024")
        if lead is not None and lead >= 0:
            A(f"s_cmp_lg_u32 s{sCNT}, {last - lead}")
            A(f"s_cbranch_scc1 L_eg_nf{name}")
            flag_now(nrep)
            A(f"L_eg_nf{name}:")
        A(f"v_add_u32 v{vWA}, 8192, v{vWA}")
        A(f"v_add_u32 v{vAA}, 512, v{vAA}")
        A(f"s_add_u32 s{sCNT}, s{sCNT}, 1")
        A(f"s_cmp_le_u32 s{sCNT}, {last}")
        A("s_waitcnt lgkmcnt(0)")
        A(f"v_mfma_f32_16x16x32_bf16 v[{vACC}:{vACC+3}], v[{vW}:{vW+3}], v[{vB}:{vB+3}], v[{vACC}:{vACC+3}]")
        A(f"s_cbranch_scc1 L_eg_loop{name}")
    A(f"s_cmp_ge_u32 s{sC}, 4")
    A("s_cbranch_scc1 L_noq")
    A(f"v_and_b32 v{vTMP2}, 7, v0")
    A(f"v_lshlrev_b32 v{vPUB}, 16, v{vTMP2}")
    A(f"v_and_b32 v{vTMP2}, 8, v0")
    A(f"v_lshl_or_b32 v{vPUB}, v{vTMP2}, 2, v{vPUB}")
    A(f"v_lshrrev_b32 v{vTMP3}, 4, v0")
    A(f"v_lshl_or_b32 v{vPUB}, v{vTMP3}, 3, v{vPUB}")
    A(f"v_lshlrev_b32 v{vTMP3}, 2, v{vTMP3}")
    A(f"v_lshl_or_b32 v{vTMP3}, v{vTMP2}, 1, v{vTMP3}")
    tagbits(vB, vTMP3)
    A(f"v_sub_u32 v{vB+1}, s{sM3}, v{vB}")
    setscale(LQ)
    A(f"s_and_b32 s{sTMP3}, s{sU}, 7")
    A(f"s_lshl3_add_u32 s{sTMP}, s{sG}, s{sTMP3}")
    A(f"s_lshl3_add_u32 s{sTMP}, s{sTMP}, s{sKS}")
    A(f"s_lshl2_add_u32 s{sTMP}, s{sTMP}, s{sC}")
    A(f"s_lshl_b32 s{sTMP}, s{sTMP}, 6")
    ws_addr(sGA, WS_QP, sTMP)
    A(f"s_mul_i32 s{sTMP}, s{sG}, {32*CS}")
    ws_addr(sGB, WS_QC, sTMP)
    A(f"s_lshl_b32 s{sTMP}, s{sC}, 1")
    A(f"s_xor_b32 s{sTMP}, s{sTMP}, s{sC}")
    A(f"s_lshl_b32 s{sTMP}, s{sTMP}, 5")
    A(f"v_xor_b32 v{vWA}, s{sTMP}, v{vTR}")
    A(f"v_add_u32 v{vWA}, {RQ}, v{vWA}")
    A(f"v_xor_b32 v{vW}, 32, v{vWA}")
    A(f"v_add_u32 v{vAA}, {XF}, v{vACT}")
    A(f"v_cmp_eq_u32 s[4:5], 0, v{vTMP2}")
    cwait(F_ERD, 9, sleep=1)
    wait_prog(False, 4, sleep=1)
    if opt.qlead >= 0: flag_now("q")
    actreads(4)
    wreads(0, 4)
    for kb in range(4):
        A(f"s_waitcnt lgkmcnt({6 if kb == 0 else 6})")
        A(f"ds_read_b64_tr_b16 v[{vK+16+4*kb}:{vK+16+4*kb+1}], v{vW} offset:{8192*kb}")
        A(f"ds_read_b64_tr_b16 v[{vK+16+4*kb+2}:{vK+16+4*kb+3}], v{vW} offset:{8192*kb+1024}")
        mf(kb, kb == 0)
    A("s_mov_b64 exec, 3")
    A(f"ds_add_u32 v9, v{vONE} offset:{F_FREE0}")
    A("s_mov_b64 exec, -1")
    for kb in range(4):
        A(f"s_waitcnt lgkmcnt({7-2*kb})")
        c1 = "0" if kb == 0 else f"v[{vACC2}:{vACC2+3}]"
        A(f"v_mfma_f32_16x16x32_bf16 v[{vACC2}:{vACC2+3}], v[{vK+16+4*kb}:{vK+16+4*kb+3}], v[{vQ+4*kb}:{vQ+4*kb+3}], {c1}")
    A("s_nop 7")
    for r in range(4): A(f"v_cndmask_b32 v{vACC+r}, v{vACC2+r}, v{vACC+r}, s[4:5]")
    encode(None, vB, vB+1)
    if not (opt.dbg & 1): A(f"global_store_dwordx2 v{vPUB}, v[{vACC}:{vACC+1}], s[{sGA}:{sGA+1}] sc1")
    if opt.qlead < 0 and opt.qhint: flag(F_PUB0, "q", last=3)
    if opt.ackst:
        stamp(2); A("s_waitcnt vmcnt(0)"); stamp(5)
    A(f"v_mov_b32 v{vAX}, 0")
    A("L_noq:")
    if not opt.ackst: stamp(2)
    A(f"s_cmp_ge_u32 s{sR}, 16")
    A("s_cbranch_scc1 L_roleM")
    A(f"s_cmp_eq_u32 s{sROLE}, 2")
    A("s_cbranch_scc1 L_bc_late")
    pub_voff(5)
    setscale(LG)
    A(f"s_and_b32 s{sTMP}, s{sBETA}, -4")
    A(f"s_lshr_b32 s{sTMP2}, s{sC}, 1")
    A(f"s_add_u32 s{sTMP}, s{sTMP}, s{sTMP2}")
    A(f"s_and_b32 s{sTMP2}, s{sBETA}, 3")
    A(f"s_lshl2_add_u32 s{sTMP}, s{sTMP}, s{sTMP2}")
    A(f"s_and_b32 s{sTMP2}, s{sC}, 1")
    A(f"s_lshl1_add_u32 s{sTMP}, s{sTMP}, s{sTMP2}")
    A(f"s_lshl_b32 s{sTMP}, s{sTMP}, 8")
    ws_addr(sGA, WS_GP, sTMP)
    A(f"s_and_b32 s{sTMP}, s{sBETA}, -4")
    A(f"s_or_b32 s{sTMP2}, s{sBETA}, 3")
    A(f"s_mul_i32 s{sTMP}, s{sTMP}, 147")
    A(f"s_mul_i32 s{sTMP2}, s{sTMP2}, 147")
    A(f"s_lshr_b32 s{sTMP}, s{sTMP}, 10")
    A(f"s_lshr_b32 s{sTMP2}, s{sTMP2}, 10")
    A(f"s_cmp_eq_u32 s{sTMP}, s{sTMP2}")
    A(f"s_cselect_b32 s{sNH}, {HREP}, {2*HREP}")
    A(f"s_mul_i32 s{sTMP}, s{sTMP}, {CS*HREP}")
    ws_addr(sGB, WS_HC, sTMP)
    for r in range(4): A(f"v_mov_b32 v{vACC+r}, 0")
    A(f"v_mov_b32 v{vWA}, v{vTR}")
    A(f"v_add_u32 v{vAA}, {XF + 2048}, v{vACT}")
    A(f"s_mov_b32 s{sCNT}, 5")
    wait_prog(False, opt.xgat + 1, sleep=1)
    egloop(12, "G1")
    signal(F_FREE1)
    stamp(3)
    egloop(20, "G2", opt.hlead, "h")
    A("s_nop 7")
    publish(vACC)
    if opt.hlead < 0: flag(F_PUB1, "h")
    else: A("s_mov_b64 exec, -1")
    stamp(6)
    if opt.ackst:
        A("s_waitcnt vmcnt(0)"); stamp(4)
    A("L_bc_late:")
    late_setup(RA, 0, 28)
    ws_addr(sGA, WS_OP, sTMP)
    A(f"v_and_b32 v{vTMP3}, 4, v0")
    A(f"v_lshlrev_b32 v{vTMP3}, 5, v{vTMP3}")
    A(f"v_and_b32 v{vTMP2}, 56, v0")
    A(f"v_lshl_or_b32 v{vTMP3}, v{vTMP2}, 1, v{vTMP3}")
    A(f"v_and_b32 v{vAFW}, 4, v0")
    A(f"v_lshlrev_b32 v{vAFW}, 9, v{vAFW}")
    A(f"v_lshl_or_b32 v{vAFW}, v{vTMP2}, 1, v{vAFW}")
    A(f"v_and_b32 v{vTMP2}, 2, v0")
    A(f"v_lshl_or_b32 v{vAFW}, v{vTMP2}, 6, v{vAFW}")
    A(f"v_and_b32 v{vTMP2}, 1, v0")
    A(f"v_lshl_or_b32 v{vAFW}, v{vTMP2}, 3, v{vAFW}")
    A(f"s_lshl_b32 s{sTMP}, s{sC}, 8")
    A(f"s_add_u32 s{sTMP}, s{sTMP}, {AF}")
    A(f"v_add_u32 v{vAFW}, s{sTMP}, v{vAFW}")
    A(f"v_add_u32 v{vTMP3}, v{vTMP3}, v9")
    late_wait()
    stamp(7)
    def owork(i):
        if i == 2: late_post_issue()
        if i == 3: late_post()
    gather(mid=late_mid, cntstamp=13, sleep=opt.gsleep, work=owork, kind='B', defer=True)
    if STAMP: A("s_waitcnt lgkmcnt(0)")
    cwait_rd(F_WRDY, 1, 0, lambda: A(f"ds_read_b128 v[{vSCA}:{vSCA+3}], v{vTMP3} offset:{F_WT}"))
    stamp(8)
    A(f"s_cmp_lg_u32 s{sEM}, 0")
    A("s_cbranch_scc1 L_onofix")
    A("s_call_b64 s[6:7], L_fix")
    A("L_onofix:")
    for i in range(4): acc(i, vS0, i == 0)
    A("s_branch L_late")

    A("L_roleM:")
    vXr, vGWr = vK, vK + 8
    A(f"s_cmp_lt_u32 s{sC}, 4")
    A("s_cbranch_scc1 L_nogate")
    wait_prog(False, opt.ggate, sleep=1)
    A(f"s_and_b32 s{sTMP}, s{sR}, 1")
    A(f"s_lshl2_add_u32 s{sTMP}, s{sTMP}, s{sC}")
    A(f"s_sub_u32 s{sTMP3}, s{sTMP}, 4")
    A(f"s_lshl_b32 s{sTMP}, s{sTMP3}, 11")
    A(f"v_add_u32 v{vTMP3}, s{sTMP}, v{vL16}")
    for i in range(2):
        A(f"global_load_dwordx4 v[{vXr+4*i}:{vXr+4*i+3}], v{vTMP3}, s[{sX}:{sX+1}] offset:{1024*i}")
        A(f"global_load_dwordx4 v[{vGWr+4*i}:{vGWr+4*i+3}], v{vL16}, s[{sGW}:{sGW+1}] offset:{1024*i}")
    A(f"v_mov_b32 v{vACC2}, 0")
    A("s_waitcnt vmcnt(0)")
    for i in range(8):
        A(f"v_lshlrev_b32 v{vW}, 16, v{vXr+i}")
        A(f"v_and_b32 v{vW+1}, 0xffff0000, v{vXr+i}")
        A(f"v_lshlrev_b32 v{vW+2}, 16, v{vGWr+i}")
        A(f"v_and_b32 v{vW+3}, 0xffff0000, v{vGWr+i}")
        A(f"v_mul_f32 v{vW}, v{vW}, v{vW+2}")
        A(f"v_mul_f32 v{vW+1}, v{vW+1}, v{vW+3}")
        A(f"v_cvt_pk_bf16_f32 v{vW}, v{vW}, v{vW+1}")
        A(f"v_lshlrev_b32 v{vW+1}, 16, v{vW}")
        A(f"v_and_b32 v{vW}, 0xffff0000, v{vW}")
        A(f"v_add_f32 v{vACC2}, v{vACC2}, v{vW+1}")
        A(f"v_add_f32 v{vACC2}, v{vACC2}, v{vW}")
    for off in (0x041F, 0x081F, 0x101F, 0x201F, 0x401F):
        A(f"ds_swizzle_b32 v{vW}, v{vACC2} offset:{off:#x}")
        A("s_waitcnt lgkmcnt(0)")
        A(f"v_add_f32 v{vACC2}, v{vACC2}, v{vW}")
    A(f"v_mov_b32 v{vW}, v{vACC2}")
    A("s_nop 1")
    A(f"v_permlane32_swap_b32 v{vACC2}, v{vW}")
    A(f"v_add_f32 v{vACC2}, v{vACC2}, v{vW}")
    def rbf(v):
        A(f"v_cvt_pk_bf16_f32 v{v}, v{v}, v{v}")
        A(f"v_and_b32 v{v}, 0xffff0000, v{v}")
    rbf(vACC2)
    A(f"v_mul_f32 v{vACC2}, 0xbfb8aa3b, v{vACC2}")
    A(f"v_exp_f32 v{vACC2}, v{vACC2}")
    A("s_nop 0")
    A(f"v_add_f32 v{vACC2}, 1.0, v{vACC2}")
    A(f"v_rcp_f32 v{vACC2}, v{vACC2}")
    A("s_nop 0")
    rbf(vACC2)
    A(f"s_lshl_b32 s{sTMP}, s{sTMP3}, 2")
    A(f"v_add_u32 v{vTMP2}, s{sTMP}, v9")
    A("s_mov_b64 exec, 1")
    A(f"ds_write_b32 v{vTMP2}, v{vACC2} offset:{F_G}")
    A("s_mov_b64 exec, -1")
    A("L_nogate:")
    A(f"s_lshl2_add_u32 s{sTMP}, s{sBB}, s{sG}")
    A(f"s_lshl3_add_u32 s{sTMP}, s{sTMP}, s{sC}")
    A(f"s_lshl_b32 s{sTMP}, s{sTMP}, 11")
    ws_addr(sGA, WS_QP, sTMP)
    A(f"v_bfe_u32 v{vTMP2}, v0, 2, 2")
    A(f"v_and_b32 v{vTMP3}, 3, v0")
    A(f"v_lshl_add_u32 v{vTMP2}, v{vTMP2}, 3, v{vTMP3}")
    A(f"v_lshlrev_b32 v{vWA}, 8, v{vTMP2}")
    A(f"v_lshrrev_b32 v{vTMP2}, 5, v0")
    A(f"v_and_b32 v{vTMP3}, 7, v0")
    A(f"v_xor_b32 v{vTMP2}, v{vTMP2}, v{vTMP3}")
    A(f"v_lshl_or_b32 v{vWA}, v{vTMP2}, 5, v{vWA}")
    A(f"v_and_b32 v{vTMP2}, 16, v0")
    A(f"s_lshl_b32 s{sTMP}, s{sC}, 13")
    A(f"v_add3_u32 v{vWA}, v{vWA}, v{vTMP2}, s{sTMP}")
    vQA, vMX, vPA = vW, vW + 1, vW + 2
    A(f"v_and_b32 v{vQA}, 30, v0")
    A(f"v_lshlrev_b32 v{vQA}, 6, v{vQA}")
    A(f"v_and_b32 v{vTMP2}, 1, v0")
    A(f"v_lshl_or_b32 v{vQA}, v{vTMP2}, 3, v{vQA}")
    A(f"v_lshrrev_b32 v{vTMP2}, 5, v0")
    A(f"v_lshl_or_b32 v{vQA}, v{vTMP2}, 2, v{vQA}")
    A(f"s_lshl_b32 s{sTMP}, s{sC}, 4")
    A(f"s_add_u32 s{sTMP}, s{sTMP}, {QF}")
    A(f"v_add_u32 v{vQA}, s{sTMP}, v{vQA}")
    A(f"v_lshl_add_u32 v{vMX}, v{vTMP3}, 2, v9")
    A(f"s_lshl_b32 s{sTMP}, s{sC}, 9")
    A(f"s_add_u32 s{sTMP}, s{sTMP}, {PF}")
    A(f"v_add_u32 v{vPA}, s{sTMP}, v{vACT}")
    A(f"v_and_b32 v{vTMP2}, 6, v0")
    A(f"v_lshlrev_b32 v{vPUB}, 13, v{vTMP2}")
    A(f"v_and_b32 v{vTMP2}, 1, v0")
    A(f"v_lshl_or_b32 v{vPUB}, v{vTMP2}, 5, v{vPUB}")
    A(f"v_lshrrev_b32 v{vTMP2}, 4, v0")
    A(f"v_lshl_or_b32 v{vPUB}, v{vTMP2}, 3, v{vPUB}")
    if opt.qhint: cwait(F_QRDY, 1, sleep=1)
    else: wait_prog(False, opt.qgate, sleep=1)
    stamp(3)
    def kfrags():
        A(f"s_add_u32 s{sTMP2}, s{sC}, 5")
        wait_prog(True, sTMP2)
        for db in range(4):
            if db: A(f"v_xor_b32 v{vAA}, {64*db}, v{vWA}")
            a = vAA if db else vWA
            A(f"ds_read_b128 v[{vK+4*db}:{vK+4*db+3}], v{a}")
            A(f"ds_read_b128 v[{vK+16+4*db}:{vK+16+4*db+3}], v{a} offset:1024")
        signal(F_FREE1)
        A(f"v_add_u32 v{vAA}, {QF}, v{vACT}")
    setsca(LQ)
    def qwork(i): acc(i, vS0, i == 0)
    gather(nld=4, mid=kfrags, cntstamp=11, sleep=opt.qsleep, work=qwork)
    stamp(4)
    A("s_nop 1")
    A(f"v_permlane32_swap_b32 v{vS0}, v{vS0+2}")
    A(f"v_permlane32_swap_b32 v{vS0+1}, v{vS0+3}")
    A(f"v_add_f32 v{vS0}, v{vS0}, v{vS0+2}")
    A(f"v_add_f32 v{vS0+1}, v{vS0+1}, v{vS0+3}")
    A(f"v_cvt_pk_bf16_f32 v{vGA}, v{vS0}, v{vS0+1}")
    A(f"ds_write_b32 v{vQA}, v{vGA}")
    signal(F_BQ)
    A(f"s_lshl_b32 s{sTMP}, s{sG}, 5")
    A(f"s_add_u32 s{sTMP}, s{sTMP}, s{sC}")
    A(f"s_lshl2_add_u32 s{sTMP}, s{sTMP}, s{sSPL}")
    A(f"s_lshl3_add_u32 s{sTMP}, s{sTMP}, s{sBB}")
    A(f"s_lshl_b32 s{sTMP}, s{sTMP}, 6")
    ws_addr(sGA, WS_OP, sTMP)
    A(f"s_lshl2_add_u32 s{sTMP3}, s{sBB}, s{sSPL}")
    A(f"s_mul_i32 s{sTMP}, s{sG}, {32*CS}")
    ws_addr(sGB, WS_OC, sTMP)
    A(f"s_lshl_b32 s{sTMP}, s{sG}, 5")
    A(f"s_add_u32 s{sTMP}, s{sTMP}, s{sTMP3}")
    A(f"s_lshl_b32 s{sTMP}, s{sTMP}, 6")
    ws_addr(sFA, WS_LSE, sTMP)
    cbits = struct.unpack("<I", struct.pack("<f", math.log2(math.e) / math.sqrt(128.0)))[0]
    A(f"s_mov_b32 s{sTMP2}, {cbits:#x}")
    if STAMP: A("s_waitcnt lgkmcnt(0)")
    if opt.spec: cwait_rd(F_BQ, 8, 4, lambda: actreads(4))
    else:
        cwait(F_BQ, 8); actreads(4)
    for db in range(4):
        A(f"s_waitcnt lgkmcnt({3-db})")
        c0 = "0" if db == 0 else f"v[{vACC}:{vACC+3}]"
        c1 = "0" if db == 0 else f"v[{vACC2}:{vACC2+3}]"
        A(f"v_mfma_f32_16x16x32_bf16 v[{vACC}:{vACC+3}], v[{vK+4*db}:{vK+4*db+3}], v[{vQ+4*db}:{vQ+4*db+3}], {c0}")
        A(f"v_mfma_f32_16x16x32_bf16 v[{vACC2}:{vACC2+3}], v[{vK+16+4*db}:{vK+16+4*db+3}], v[{vQ+4*db}:{vQ+4*db+3}], {c1}")
    A(f"v_add_u32 v{vAA}, {PF}, v{vACT}")
    A(f"v_add_u32 v{vWA}, {RB}, v{vTR}")
    vONES = vGA
    for r in range(4): A(f"v_mov_b32 v{vONES+r}, 0x3f803f80")
    A("s_nop 1")
    A(f"v_max3_f32 v{vTMP2}, v{vACC}, v{vACC+1}, v{vACC+2}")
    A(f"v_max3_f32 v{vTMP2}, v{vTMP2}, v{vACC+3}, v{vACC2}")
    A(f"v_max3_f32 v{vTMP2}, v{vTMP2}, v{vACC2+1}, v{vACC2+2}")
    A(f"v_max_f32 v{vTMP2}, v{vTMP2}, v{vACC2+3}")
    A("s_mov_b32 exec_lo, 0x00ff00ff\ns_mov_b32 exec_hi, 0x00ff00ff")
    A(f"ds_max_f32 v{vMX}, v{vTMP2} offset:{F_MAX}")
    signal(F_BM)
    vM = vLS
    cwait_rd(F_BM, 8, 1, lambda: A(f"ds_read_b32 v{vM}, v{vMX} offset:{F_MAX}"))
    if opt.olead >= 0 and opt.oearly:
        A(f"ds_read_b32 v{vTMP}, v9 offset:{F_PROG}")
    A("s_waitcnt lgkmcnt(0)")
    A(f"s_mov_b32 s{sWDN}, 0")
    if opt.olead >= 0 and opt.oearly:
        A(f"v_readfirstlane_b32 s{sPROG}, v{vTMP}")
        A(f"s_cmp_lt_u32 s{sPROG}, {20 - opt.olead}")
        A("s_cbranch_scc1 L_of_no1")
        flag_now("q")
        A(f"s_mov_b32 s{sWDN}, 1")
        A("L_of_no1:")
    A(f"v_mul_f32 v{vM}, s{sTMP2}, v{vM}")
    for r in range(8):
        A(f"v_fma_f32 v{vACC+r}, v{vACC+r}, s{sTMP2}, -v{vM}")
    for r in range(8):
        A(f"v_exp_f32 v{vACC+r}, v{vACC+r}")
    A("s_nop 0")
    for r in range(4):
        A(f"v_cvt_pk_bf16_f32 v{vB+r}, v{vACC+2*r}, v{vACC+2*r+1}")
    A(f"ds_write_b128 v{vPA}, v[{vB}:{vB+3}]")
    signal(F_BP)
    if opt.spec: cwait_rd(F_BP, 8, 8, lambda: actreads(8))
    else:
        cwait(F_BP, 8); actreads(8)
    A(f"ds_read_b32 v{vTMP}, v9 offset:{F_PROG}")
    for kb in range(8):
        A(f"s_waitcnt lgkmcnt({8-kb})")
        c1 = "0" if kb == 0 else f"v[{vACC2}:{vACC2+3}]"
        A(f"v_mfma_f32_16x16x32_bf16 v[{vACC2}:{vACC2+3}], v[{vONES}:{vONES+3}], v[{vQ+4*kb}:{vQ+4*kb+3}], {c1}")
    A("s_waitcnt lgkmcnt(0)")
    A(f"v_readfirstlane_b32 s{sPROG}, v{vTMP}")
    stamp(5)
    vRL = vLS + 2
    def lse_part():
        A(f"v_log_f32 v{vLS+1}, v{vACC2}")
        A(f"v_rcp_f32 v{vRL}, v{vACC2}")
        A("s_nop 0")
        A(f"v_mul_f32 v{vRL+1}, {fbits(2.0**LO_ * ADJ):#x}, v{vRL}")
        A(f"v_mul_f32 v{vRL}, {fbits(2.0**LO_):#x}, v{vRL}")
        d = g.lab("L_nolse")
        A(f"s_cmp_lg_u32 s{sC}, 0")
        A(f"s_cbranch_scc1 {d}")
        A(f"v_add_f32 v{vM}, v{vM}, v{vLS+1}")
        A(f"v_mov_b32 v{vLS+1}, s{sT}")
        A(f"v_lshlrev_b32 v{vTMP2}, 3, v0")
        A("s_mov_b64 exec, 0xff")
        if not (opt.dbg & 1):
            A(f"global_store_dwordx2 v{vTMP2}, v[{vLS}:{vLS+1}], s[{sFA}:{sFA+1}] sc1")
            if opt.lcnt:
                A(f"s_bfm_b64 exec, {NREP}, 0")
                A(f"v_mov_b32 v{vTMP2}, 0x10000")
                A(f"global_atomic_add v{vFLG}, v{vTMP2}, s[{sGB}:{sGB+1}] sc1")
        A("s_mov_b64 exec, -1")
        A(f"{d}:")
    A(f"s_cmp_lt_u32 s{sPROG}, 20")
    A("s_cbranch_scc1 L_pv_slow")
    def oflag():
        if opt.olead < 0: return
        d = g.lab("L_of")
        A(f"s_cmp_lg_u32 s{sWDN}, 0")
        A(f"s_cbranch_scc1 {d}")
        flag_now("q")
        A(f"{d}:")
    wreads(0, 7)
    lse_part()
    oflag()
    for kb in range(7):
        A(f"s_waitcnt lgkmcnt({14-2*kb if kb else 12})")
        if kb == 0: wreads(7, 8)
        mf(kb, kb == 0)
    A("s_branch L_pv_last")
    pad("M")
    A("L_pv_slow:")
    A("s_nop 4")
    lse_part()
    for kb in range(8):
        wait_prog(False, 12 + kb + 1)
        wreads(kb, kb+1)
        if 12 + kb + 1 == 20 - opt.olead: oflag()
        if kb:
            A("s_waitcnt lgkmcnt(2)")
            mf(kb-1, kb == 1)
    A("L_pv_last:")
    A("s_waitcnt lgkmcnt(0)")
    mf(7, False)
    A("s_nop 7")
    publish(vACC, sc=vRL)
    if opt.olead < 0: flag(F_PUB1, "q")
    else: A("s_mov_b64 exec, -1")
    stamp(6)
    if opt.ackst:
        A("s_waitcnt vmcnt(0)"); stamp(3)
    A(f"s_and_b32 s{sTMP2}, s{sR}, 1")
    A(f"s_lshl_b32 s{sTMP2}, s{sTMP2}, 4")
    A(f"v_and_b32 v{vTMP2}, 12, v0")
    A(f"v_add3_u32 v{vTMP2}, v{vTMP2}, s{sTMP2}, v9")
    A(f"ds_read_b32 v{vRG}, v{vTMP2} offset:{F_G}")
    A(f"s_lshl4_add_u32 s{sTMP}, s{sXCD}, s{sR}")
    A(f"s_sub_u32 s{sTMP3}, s{sTMP}, 16")
    A(f"s_lshl3_add_u32 s{sTMP}, s{sTMP3}, s{sC}")
    A(f"s_lshl_b32 s{sTMP}, s{sTMP}, 9")
    ws_addr(sRA, WS_FP, sTMP)
    A(f"v_lshlrev_b32 v{vRR}, 2, v0")
    A(f"v_add_u32 v{vRR}, {RS}, v{vRR}")
    A(f"s_lshl_b32 s{sTMP}, s{sC}, 8")
    A(f"v_add_u32 v{vRW}, s{sTMP}, v{vRR}")
    A(f"v_and_b32 v{vOUT}, 12, v0")
    A(f"v_lshlrev_b32 v{vOUT}, 9, v{vOUT}")
    A(f"v_and_b32 v{vTMP2}, 3, v0")
    A(f"v_lshl_or_b32 v{vOUT}, v{vTMP2}, 3, v{vOUT}")
    A(f"v_lshrrev_b32 v{vTMP2}, 4, v0")
    A(f"v_lshl_or_b32 v{vOUT}, v{vTMP2}, 1, v{vOUT}")
    A(f"s_lshl_b32 s{sTMP2}, s{sTMP2}, 9")
    A(f"s_lshr_b32 s{sTMP3}, s{sTMP3}, 1")
    A(f"s_lshl_b32 s{sTMP3}, s{sTMP3}, 5")
    A(f"s_add_u32 s{sTMP2}, s{sTMP2}, s{sTMP3}")
    A(f"v_add_u32 v{vOUT}, s{sTMP2}, v{vOUT}")
    A("s_waitcnt lgkmcnt(0)")
    A(f"s_cmp_lt_u32 s{sC}, 4")
    A("s_cbranch_scc1 L_wg_done")
    A(f"v_sub_f32 v{vRG}, 1.0, v{vRG}")
    rbf(vRG)
    A("L_wg_done:")
    A(f"v_mul_f32 v{vRG}, {fbits(2.0**-LF):#x}, v{vRG}")
    setsca(LG)
    late_setup(RA, 16, 27)
    ws_addr(sGA, WS_GP, sTMP)
    for r in range(4): A(f"v_mov_b32 v{vS0+r}, 0")
    late_wait()
    A(f"s_cmp_eq_u32 s{sC}, 7")
    A("s_cbranch_scc1 L_late")
    stamp(7)
    def rnd4(v):
        A(f"v_cvt_pk_bf16_f32 v{vB}, v{v}, v{v+1}")
        A(f"v_cvt_pk_bf16_f32 v{vB+1}, v{v+2}, v{v+3}")
        for h in range(2):
            A(f"v_lshlrev_b32 v{v+2*h}, 16, v{vB+h}")
            A(f"v_and_b32 v{v+2*h+1}, 0xffff0000, v{vB+h}")
    def hwork(i):
        if i == 2: late_post_issue()
        if i == 3: late_post()
        acc(i, vS0 if i < 2 else vS1, i in (0, 2))
        if i == 1:
            for r in range(4): A(f"v_max_f32 v{vS0+r}, 0, v{vS0+r}")
            if opt.hround: rnd4(vS0)
        if i == 3:
            if opt.hround: rnd4(vS1)
            for r in (0, 2): A(f"v_pk_mul_f32 v[{vS0+r}:{vS0+r+1}], v[{vS0+r}:{vS0+r+1}], v[{vS1+r}:{vS1+r+1}]")
    gather(mid=late_mid, cntstamp=13, sleep=opt.gsleep, work=hwork)
    stamp(8)

    if opt.touch: A("s_branch L_late")
    pad("A")
    A("L_late:")
    A(f"v_cvt_pk_bf16_f32 v{vGA}, v{vS0}, v{vS0+1}")
    A(f"v_cvt_pk_bf16_f32 v{vGA+1}, v{vS0+2}, v{vS0+3}")
    A(f"ds_write_b64 v{vAFW}, v[{vGA}:{vGA+1}]")
    signal(F_BA)
    if opt.fine: stamp(3)
    A(f"s_cmp_eq_u32 s{sWDN}, 99")
    A("s_cbranch_scc1 L_late_bar")
    A("L_late_spin:")
    A(f"ds_read2_b32 v[{vTMP}:{vTMP+1}], v9 offset0:{F_PROG//4} offset1:{F_BA//4}")
    A("s_waitcnt lgkmcnt(0)")
    A(f"v_readfirstlane_b32 s{sPROG}, v{vTMP}")
    A(f"v_readfirstlane_b32 s{sTMP2}, v{vTMP+1}")
    wcatch()
    A(f"s_cmp_eq_u32 s{sWDN}, 99")
    A("s_cbranch_scc1 L_late_bar0")
    A(f"s_cmp_lt_u32 s{sWDN}, 27")
    A("s_cbranch_scc1 L_late_spin")
    A(f"s_cmp_lt_u32 s{sTMP2}, 8")
    A("s_cbranch_scc1 L_late_spin")
    actreads(8)
    for kb in range(6):
        A(f"s_waitcnt lgkmcnt({7-kb})")
        mf(kb, kb == 0)
    A("s_barrier")
    wreads(6, 8)
    A("s_waitcnt lgkmcnt(2)")
    mf(6, False)
    A("s_waitcnt lgkmcnt(0)")
    mf(7, False)
    A("s_branch L_late_done")
    pad("A")
    A("L_late_bar:")
    A("s_waitcnt lgkmcnt(0)")
    A("L_late_bar0:")
    A("s_barrier")
    if opt.fine: stamp(4)
    actreads(8)
    for kb in range(8):
        A(f"s_waitcnt lgkmcnt({7-kb})")
        mf(kb, kb == 0)
    A("L_late_done:")
    if opt.fine: stamp(5)
    A("s_nop 7")
    publish(vACC, sFA)
    A("s_mov_b64 exec, -1")
    stamp(9)
    A(f"s_cmp_ge_u32 s{sR}, 16")
    A("s_cbranch_scc1 L_red")
    A("s_branch L_exit")
    pad("A")
    A("L_red:")
    A(f"s_mov_b64 s[{sGA}:{sGA+1}], s[{sRA}:{sRA+1}]")
    if opt.fgate: cwait(F_FRDY, 1)
    A(f"v_mov_b32 v{vSCA}, v{vRG}")
    def fwork(i): acc(0, vS0, True)
    gather(nld=1, cntstamp=12, sleep=opt.fgsleep, work=fwork)
    if not opt.stq: stamp(2)
    A("s_nop 1")
    A(f"v_permlane32_swap_b32 v{vS0}, v{vS0+2}")
    A(f"v_permlane32_swap_b32 v{vS0+1}, v{vS0+3}")
    A(f"v_add_f32 v{vS0}, v{vS0}, v{vS0+2}")
    A(f"v_add_f32 v{vS0+1}, v{vS0+1}, v{vS0+3}")
    A("s_nop 1")
    A(f"v_permlane16_swap_b32 v{vS0}, v{vS0+1}")
    A(f"v_add_f32 v{vGA}, v{vS0}, v{vS0+1}")
    A(f"ds_write_b32 v{vRW}, v{vGA}")
    A("s_mov_b64 exec, 1")
    A(f"ds_add_rtn_u32 v{vTMP}, v9, v{vONE} offset:{F_RED}")
    A("s_mov_b64 exec, -1")
    for i in range(4):
        A(f"ds_read2st64_b32 v[{vGA+2*i}:{vGA+2*i+1}], v{vRR} offset0:{2*i} offset1:{2*i+1}")
    A("s_waitcnt lgkmcnt(4)")
    A(f"v_readfirstlane_b32 s{sTMP}, v{vTMP}")
    A(f"s_cmp_lg_u32 s{sTMP}, 7")
    A("s_cbranch_scc1 L_exit")
    A("s_waitcnt lgkmcnt(0)")
    A(f"v_pk_add_f32 v[{vGA}:{vGA+1}], v[{vGA}:{vGA+1}], v[{vGA+2}:{vGA+3}]")
    A(f"v_pk_add_f32 v[{vGA+4}:{vGA+5}], v[{vGA+4}:{vGA+5}], v[{vGA+6}:{vGA+7}]")
    A(f"v_pk_add_f32 v[{vGA}:{vGA+1}], v[{vGA}:{vGA+1}], v[{vGA+4}:{vGA+5}]")
    A(f"v_add_f32 v{vGA}, v{vGA}, v{vGA+1}")
    A(f"v_cvt_pk_bf16_f32 v{vGA}, v{vGA}, v{vGA}")
    A(f"global_store_short v{vOUT}, v{vGA}, s[{sOUT}:{sOUT+1}] {opt.outflags}")
    A(f"s_cmp_lg_u32 s2, 128")
    A("s_cbranch_scc1 L_noepoch")
    A("s_mov_b64 exec, 1")
    A(f"v_mov_b32 v{vTMP}, 0")
    A(f"global_store_dword v{vTMP}, v{vT}, s[{sWS}:{sWS+1}] sc1")
    A("s_mov_b64 exec, -1")
    A("L_noepoch:")
    if opt.fixdur:
        A(f"s_cmp_lg_u32 s2, {opt.fixwg}")
        A("s_cbranch_scc1 L_nofix")
        A("L_fixd:")
        A("s_memrealtime s[14:15]")
        A("s_waitcnt lgkmcnt(0)")
        A("s_sub_u32 s14, s14, s98")
        A(f"s_cmp_lt_u32 s14, {opt.fixdur}")
        A("s_cbranch_scc1 L_fixd")
        A("L_nofix:")
    if STAMP:
        A("s_waitcnt vmcnt(0)")
        stamp(1)
    A("s_branch L_exit")

    pad("A")
    A("L_wcatch:")
    for kb in range(8):
        nx = f"L_wcn{kb}"
        if kb < 7:
            A(f"s_cmp_gt_u32 s{sWDN}, {21+kb}")
            A(f"s_cbranch_scc1 {nx}")
        if kb:
            A(f"s_cmp_lt_u32 s{sPROG}, s{sWDN}")
            A("s_cbranch_scc1 L_wcret")
        wreads(kb, kb+1)
        if kb < 6: A(f"s_mov_b32 s{sWDN}, {22+kb}")
        elif kb == 6: A(f"s_mov_b32 s{sWDN}, s{sPE}")
        else: A(f"s_mov_b32 s{sWDN}, 99")
        if kb < 7: A(f"{nx}:")
    A("L_wcret:")
    A(f"s_setpc_b64 s[{sRET}:{sRET+1}]")

    A("L_encs:")
    A(f"v_lshrrev_b32 v{vTMP}, 23, v{vTMP}")
    A(f"v_subrev_u32 v{vTMP}, 126, v{vTMP}")
    A(f"v_ashrrev_i32 v{vTMP}, 4, v{vTMP}")
    A(f"v_med3_i32 v{vTMP}, v{vTMP}, -8, 7")
    A(f"v_cndmask_b32 v{vTMP}, 0, v{vTMP}, vcc")
    A(f"v_and_b32 v{vAX}, 15, v{vTMP}")
    A(f"v_lshl_or_b32 v{vAX}, v{vAX}, 14, v{vAX}")
    A(f"v_and_b32 v{vAX}, s{sM3}, v{vAX}")
    A(f"v_mul_i32_i24 v{vTMP}, -16, v{vTMP}")
    for r in range(4): A(f"v_ldexp_f32 v{vACC+r}, v{vACC+r}, v{vTMP}")
    A("s_setpc_b64 s[6:7]")
    A("L_fix:")
    for i in range(4):
        A(f"v_and_b32 v{vTMP}, 3, v{vGA+2*i}")
        A(f"v_bfe_i32 v{vTMP2}, v{vGA+2*i}, 16, 2")
        A(f"v_lshl_or_b32 v{vTMP}, v{vTMP2}, 2, v{vTMP}")
        A(f"v_lshlrev_b32 v{vTMP}, 4, v{vTMP}")
        A(f"v_ldexp_f32 v{vSCA+i}, v{vSCA+i}, v{vTMP}")
    A("s_setpc_b64 s[6:7]")

    A("L_poller:")
    if opt.nocomm: A("s_branch L_exit")
    A(f"s_cmp_ge_u32 s{sR}, 16")
    A("s_cbranch_scc1 L_pollM")
    A(f"s_lshl3_add_u32 s{sTMP}, s{sRBK}, s{sCB}")
    A(f"s_and_b32 s{sTMP}, s{sTMP}, {NREP-1}")
    A(f"s_lshl_b32 s{sTMP2}, s{sG}, 5")
    A(f"s_add_u32 s{sTMP}, s{sTMP}, s{sTMP2}")
    A(f"s_mul_i32 s{sTMP}, s{sTMP}, {CS}")
    ws_addr(sGB, WS_OC, sTMP)
    A(f"s_load_dword s4, s[{sGB}:{sGB+1}], 0 glc")
    A(f"s_and_b32 s{sTMP}, s{sRBK}, 3")
    A(f"s_lshl_b32 s{sTMP}, s{sTMP}, 4")
    A(f"s_lshl_b32 s{sTMP2}, s{sG}, 11")
    A(f"s_add_u32 s{sTMP}, s{sTMP}, s{sTMP2}")
    ws_addr(sGA, WS_LSE, sTMP)
    A(f"v_and_b32 v{vTMP3}, 31, v0")
    A(f"v_lshlrev_b32 v{vTMP3}, 6, v{vTMP3}")
    A(f"v_lshrrev_b32 v{vTMP2}, 5, v0")
    A(f"v_lshl_or_b32 v{vTMP3}, v{vTMP2}, 3, v{vTMP3}")
    A("s_waitcnt lgkmcnt(0)")
    A(f"v_lshl_add_u32 v{vWA}, v0, 2, v9")
    A(f"s_cmp_eq_u32 s{sROLE}, 2")
    A(f"s_cselect_b32 s{sTMP2}, {opt.ogatec}, {opt.ogate}")
    A(f"s_add_u32 s5, s4, {0x200020 if opt.lcnt else 32}")
    for k, l in touch:
        if k in "AB": A(f"s_call_b64 s[6:7], {l}")
    wait_prog(True, sTMP2, sleep=2)
    stamp(2)
    if not (opt.dbg & 7):
        A(f"s_mov_b32 s{sCNT}, 0")
        if opt.psleep: A("s_branch L_pl1e")
        A("L_pl1:")
        if opt.psleep:
            A(f"s_sleep {opt.psleep}")
            A("L_pl1e:")
        A(f"s_load_dword s8, s[{sGB}:{sGB+1}], 0 glc")
        A(f"s_add_u32 s{sCNT}, s{sCNT}, 1")
        A(f"s_cmp_gt_u32 s{sCNT}, {opt.maxhint}")
        A("s_waitcnt lgkmcnt(0)")
        A("s_cbranch_scc1 L_pl1d")
        A("s_sub_u32 s9, s8, s4")
        A(f"s_cmp_lt_u32 s9, {0x200000 if opt.lcnt else opt.lthr}")
        A("s_cbranch_scc1 L_pl1")
        A("L_pl1d:")
        stampval(10, sCNT)
    stamp(3)
    lp = g.lab("L_lse"); ld = g.lab("L_lsed")
    A(f"s_mov_b32 s{sCNT}, 0")
    A(f"{lp}:")
    if not (opt.dbg & 2): A(f"global_load_dwordx2 v[{vLS}:{vLS+1}], v{vTMP3}, s[{sGA}:{sGA+1}] sc1")
    if not (opt.dbg & 7):
        A("s_cmp_eq_u32 s8, s5")
        A("s_cbranch_scc1 L_pl_sig")
        A(f"s_load_dword s8, s[{sGB}:{sGB+1}], 0 glc")
        A("s_waitcnt lgkmcnt(0)")
        A("s_cmp_eq_u32 s8, s5")
        A("s_cbranch_scc0 L_pl_nosig")
        A("L_pl_sig:")
        signal(F_LRDY)
        A("L_pl_nosig:")
    A(f"s_add_u32 s{sCNT}, s{sCNT}, 1")
    A("s_waitcnt vmcnt(0)")
    A(f"v_cmp_ne_u32 vcc, s{sT}, v{vLS+1}")
    A(f"s_cbranch_vccz {ld}")
    A(f"s_cmp_le_u32 s{sCNT}, {0 if (opt.dbg & 7) else opt.maxpoll}")
    A(f"s_cbranch_scc1 {lp}")
    A(f"{ld}:")
    stampval(12, sCNT)
    A(f"v_max_f32_dpp v{vTMP}, v{vLS}, v{vLS} quad_perm:[1,0,3,2] row_mask:0xf bank_mask:0xf")
    A("s_nop 1")
    A(f"v_max_f32_dpp v{vTMP}, v{vTMP}, v{vTMP} quad_perm:[2,3,0,1] row_mask:0xf bank_mask:0xf")
    A(f"v_sub_f32 v{vLS}, v{vLS}, v{vTMP}")
    A(f"v_exp_f32 v{vLS}, v{vLS}")
    A("s_nop 1")
    A(f"v_add_f32_dpp v{vTMP}, v{vLS}, v{vLS} quad_perm:[1,0,3,2] row_mask:0xf bank_mask:0xf")
    A("s_nop 1")
    A(f"v_add_f32_dpp v{vTMP}, v{vTMP}, v{vTMP} quad_perm:[2,3,0,1] row_mask:0xf bank_mask:0xf")
    A(f"v_rcp_f32 v{vTMP}, v{vTMP}")
    A("s_nop 0")
    A(f"v_mul_f32 v{vLS}, v{vLS}, v{vTMP}")
    A(f"v_mul_f32 v{vLS}, {fbits(2.0**-LO_):#x}, v{vLS}")
    A(f"ds_write_b32 v{vWA}, v{vLS} offset:{F_WT}")
    signal(F_WRDY)
    stamp(4)
    if not (opt.dbg & 7):
        A("s_cmp_eq_u32 s8, s5")
        A("s_cbranch_scc1 L_pl_fin")
    pollcnt(sGB, 5, opt.psleep, cntstamp=11)
    signal(F_LRDY)
    A("L_pl_fin:")
    stamp(5)
    A("s_barrier")
    A("s_branch L_exit")
    A("L_pollM:")
    A(f"s_lshl2_add_u32 s{sTMP}, s{sBB}, s{sSPL}")
    A(f"s_lshr_b32 s{sTMP}, s{sTMP}, {int(math.log2(32//NREP))}")
    A(f"s_lshl_b32 s{sTMP2}, s{sG}, 5")
    A(f"s_add_u32 s{sTMP}, s{sTMP}, s{sTMP2}")
    A(f"s_mul_i32 s{sTMP}, s{sTMP}, {CS}")
    ws_addr(sGB, WS_QC, sTMP)
    if opt.qhint: A(f"s_load_dword s4, s[{sGB}:{sGB+1}], 0 glc")
    A(f"s_mul_i32 s{sTMP}, s{sRBK}, {HREP}")
    A(f"s_and_b32 s{sTMP2}, s{sCB}, {HREP-1}")
    A(f"s_add_u32 s{sTMP}, s{sTMP}, s{sTMP2}")
    A(f"s_mul_i32 s{sTMP}, s{sTMP}, {CS}")
    ws_addr(sGA, WS_HC, sTMP)
    A(f"s_load_dword s5, s[{sGA}:{sGA+1}], 0 glc")
    if opt.fgate:
        A(f"s_and_b32 s{sTMP}, s{sR}, {opt.frep-1}")
        A(f"s_lshl4_add_u32 s{sTMP}, s{sXCD}, s{sTMP}")
        A(f"s_mul_i32 s{sTMP}, s{sTMP}, {CS}")
        ws_addr(10, WS_FC, sTMP)
        A(f"s_load_dword s6, s[10:11], 0 glc")
    A(f"s_bitcmp1_b32 s{sKB0}, 1")
    A(f"s_cselect_b32 s{sTMP}, 12, 8")
    A("s_waitcnt lgkmcnt(0)")
    if opt.fgate: A("s_add_u32 s6, s6, 32")
    A("s_add_u32 s4, s4, 64")
    A(f"s_add_u32 s5, s5, s{sTMP}")
    if opt.fgate: A("s_mov_b32 s9, s6")
    for k, l in touch:
        if k in "AM": A(f"s_call_b64 s[6:7], {l}")
    if opt.qhint:
        wait_prog(False, opt.qgate, sleep=2)
        stamp(2)
        pollcnt(sGB, 4, opt.psleep, cntstamp=10)
        signal(F_QRDY)
        stamp(3)
    wait_prog(False, opt.hgate, sleep=2)
    stamp(4)
    pollcnt(sGA, 5, opt.psleep, cntstamp=11)
    signal(F_LRDY)
    stamp(5)
    A("s_barrier")
    if opt.fgate:
        stamp(6)
        pollcnt(10, 9, 0, cntstamp=12)
        signal(F_FRDY)
        stamp(7)

    A("L_exit:")
    if STAMP:
        A("s_waitcnt lgkmcnt(0)")
        A(f"s_mul_i32 s{sTMP}, s2, 10")
        A(f"s_add_u32 s{sTMP}, s{sTMP}, s3")
        A(f"s_lshl_b32 s{sTMP}, s{sTMP}, 6")
        A(f"s_add_u32 s{sTMP}, s{sTMP}, {WS_STAMP}")
        A(f"v_mov_b32 v1, s{sTMP}")
        A("s_mov_b64 exec, 1")
        for i in range(NST):
            A(f"v_mov_b32 v2, s{sST+2*i}")
            A(f"global_store_dword v1, v2, s[{sWS}:{sWS+1}] offset:{4*i}")
        A(f"v_mov_b32 v2, s{sROLE}")
        A(f"global_store_dword v1, v2, s[{sWS}:{sWS+1}] offset:60")
    A("L_end:")
    A("s_endpgm")

    body = "\n".join(g.o)
    PADTXT = f".p2align 12\n.fill {opt.pad//4}, 4, 0xbf810000\n" if opt.pad >= 0 else ""
    txt = HEADER
    txt += f"; @launch grid=(256,1,1) block=(640,1,1) lds={LDS_BYTES}\n"
    txt += f""".amdgcn_target "amdgcn-amd-amdhsa--gfx950"
.text
.globl {KNAME}
{PADTXT}.p2align 8
.type {KNAME},@function
{KNAME}:
{body}
.section .rodata,"a"
.p2align 6
.amdhsa_kernel {KNAME}
  .amdhsa_next_free_vgpr {NV}
  .amdhsa_next_free_sgpr 102
  .amdhsa_accum_offset {NV}
  .amdhsa_group_segment_fixed_size 0
  .amdhsa_kernarg_size 104
  .amdhsa_user_sgpr_count 2
  .amdhsa_user_sgpr_kernarg_segment_ptr 1
  .amdhsa_system_sgpr_workgroup_id_x 1
.end_amdhsa_kernel
"""
    return txt

def parse(argv):
    ap = argparse.ArgumentParser()
    ap.add_argument("--nt", default="nt")
    ap.add_argument("--pb", default="28:20")
    ap.add_argument("--pc", default="4:20,d,3:4,5:12")
    ap.add_argument("--pm", default="20:24,7:20")
    ap.add_argument("--nb0", type=int, default=3)
    ap.add_argument("--stamp", type=int, default=0)
    ap.add_argument("--stq", type=int, default=0)
    ap.add_argument("--fdelay", type=int, default=0)
    ap.add_argument("--qgate", type=int, default=9)
    ap.add_argument("--ogate", type=int, default=19)
    ap.add_argument("--ogatec", type=int, default=26)
    ap.add_argument("--hgate", type=int, default=19)
    ap.add_argument("--ggate", type=int, default=4)
    ap.add_argument("--maxpoll", type=int, default=100000)
    ap.add_argument("--psleep", type=int, default=0)
    ap.add_argument("--fsleep", type=int, default=2)
    ap.add_argument("--gsleep", type=int, default=0)
    ap.add_argument("--fgsleep", type=int, default=0)
    ap.add_argument("--sample", type=int, default=0)
    ap.add_argument("--outflags", default="sc1")
    ap.add_argument("--fixdur", type=int, default=0)
    ap.add_argument("--fixwg", type=int, default=128)
    ap.add_argument("--nocomm", type=int, default=0)
    ap.add_argument("--dbg", type=int, default=0)
    ap.add_argument("--cpf", type=int, default=2)
    ap.add_argument("--qlead", type=int, default=-1)
    ap.add_argument("--hlead", type=int, default=-1)
    ap.add_argument("--olead", type=int, default=-1)
    ap.add_argument("--oearly", type=int, default=0)
    ap.add_argument("--flagwave", type=int, default=1)
    ap.add_argument("--xgat", type=int, default=8)
    ap.add_argument("--nrep", type=int, default=8)
    ap.add_argument("--satom", type=int, default=1)
    ap.add_argument("--maxhint", type=int, default=12)
    ap.add_argument("--hround", type=int, default=0)
    ap.add_argument("--fgate", type=int, default=0)
    ap.add_argument("--frep", type=int, default=8)
    ap.add_argument("--flag_delay", type=int, default=0)
    ap.add_argument("--qhint", type=int, default=0)
    ap.add_argument("--qsleep", type=int, default=4)
    ap.add_argument("--lcnt", type=int, default=0)
    ap.add_argument("--lthr", type=int, default=32)
    ap.add_argument("--spec", type=int, default=0)
    ap.add_argument("--ackst", type=int, default=0)
    ap.add_argument("--cstride", type=int, default=4352)
    ap.add_argument("--midahead", type=int, default=2)
    ap.add_argument("--fine", type=int, default=0)
    ap.add_argument("--pad", type=lambda x: int(x, 0), default=0xd00)
    ap.add_argument("--touch", type=int, default=0)
    ap.add_argument("--sbias", type=int, default=0)
    ap.add_argument("-o", default=None)
    return ap.parse_args(argv)

if __name__ == "__main__":
    opt = parse(sys.argv[1:])
    t = gen(opt)
    if opt.o: open(opt.o, "w").write(t)
    else: print(t)
```

```python
import sys, argparse, struct, math

KNAME = "gated_mix__sliding_block_cached__glu_gated_reglu__decode_kernel"
HEADER = open("gated_mix__sliding_block_cached__glu_gated_reglu__decode.s.ref").read().split("; Override launch")[0]

RA = 0
RB = 65536
XA = 131072
RQ = RB + 32768
XF = XA
QF = XA + 2048
PF = XA + 4096
RS = XA + 8192
ST = XA + 10240
AF = XA + 12288
FL = XA + 16384
F_PROG, F_LRDY, F_QRDY, F_WRDY, F_BQ, F_BM, F_BP, F_BA, F_RED, F_PUB0, F_PUB1, F_FREE0, F_FREE1, F_ERD, F_FRDY = [4*i for i in range(15)]
F_MAX = 64
F_G = 96
F_WT = 128
LDS_BYTES = FL + 128 + 256

WS_QP = 1 << 20
WS_OP = 2 << 20
WS_LSE = (2 << 20) + (512 << 10)
WS_GP = 3 << 20
WS_FP = 4 << 20
WS_QC = 5 << 20
WS_OC = WS_QC + (640 << 10)
WS_HC = WS_QC + 2*(640 << 10) + 1024
WS_FC = WS_QC + 3*(640 << 10) + 2048
WS_STAMP = 8 << 20

class G:
    def __init__(self):
        self.o = []; self.nlab = 0
    def A(self, s):
        for line in s.split("\n"):
            self.o.append("    " + line.strip() if not line.strip().endswith(":") else line.strip())
    def lab(self, p="L"):
        self.nlab += 1
        return f"{p}_{self.nlab}"

def plan(s):
    out = []
    for t in s.split(","):
        if t == "d": out.append("d")
        else:
            a, b = t.split(":")
            out.append((int(a), tuple(int(x) for x in b.split("/")) if "/" in b else int(b)))
    return out

def gen(opt):
    g = G(); A = g.A
    CS = opt.cstride
    NWAVES = 11 if opt.notif else 10
    NT = opt.nt
    STAMP = opt.stamp
    sX, sK, sV, sWQ, sWO, sBX, sWG, sWU = [16+2*i for i in range(8)]
    sWD, sGW, sOUT, sDBG = 32, 34, 36, 38
    sWS = 40
    sXCD, sR, sROLE = 42, 43, 44
    sU, sBETA, sG, sSPL, sRBK, sCB, sBB = 45, 46, 47, 48, 49, 50, 51
    sKS, sKB0 = 100, 101
    sLR = 53
    sWDN = 52
    sT = 54
    sT0, sT1, sT2, sT3 = 54, 56, 57, 53
    sSEL0, sSEL1, sSEL2, sSEL3 = 58, 59, 60, 61
    sPROG, sC = 62, 63
    sTMP, sTMP2, sTMP3, sCNT = 64, 65, 66, 67
    sGA, sGB = 68, 70
    sROT = 15
    sSM = 4
    sST = 72
    NST = 14
    SRD = 8
    def stamp(idx, key=False):
        if STAMP == 1 or (STAMP and (key or idx == 0)): A(f"s_memrealtime s[{sST+2*idx}:{sST+2*idx+1}]")
    touch = []
    def pad(kind):
        if not opt.touch: return
        l = g.lab("L_tp"); touch.append((kind, l))
        A(f"{l}:")
        A("s_setpc_b64 s[6:7]")
    def stampval(idx, sreg):
        if STAMP == 1: A(f"s_mov_b32 s{sST+2*idx}, s{sreg}")
    pb, pc, pm = plan(opt.pb), plan(opt.pc), plan(opt.pm)
    NB0 = opt.nb0
    assert NB0 <= 3

    stamp(0)
    if opt.fixdur: A("s_memrealtime s[98:99]")
    A("s_load_dwordx16 s[16:31], s[0:1], 0")
    A("s_load_dwordx8 s[32:39], s[0:1], 64")
    A("s_load_dwordx2 s[40:41], s[0:1], 96")
    A(f"s_cmp_ge_u32 s2, 256")
    A("s_cbranch_scc1 L_end")
    A("v_lshrrev_b32 v1, 6, v0")
    A("v_and_b32 v0, 63, v0")
    A("v_readfirstlane_b32 s3, v1")
    A(f"s_and_b32 s{sXCD}, s2, 7")
    A(f"s_lshr_b32 s{sR}, s2, 3")
    A(f"s_lshr_b32 s{sG}, s{sXCD}, 1")
    A(f"s_and_b32 s{sTMP3}, s{sXCD}, 1")
    A(f"s_add_u32 s{sROT}, s{sR}, s{2 if opt.rotw else sXCD}")
    A(f"s_lshl_b32 s{sTMP}, s{sXCD}, 1")
    A(f"s_sub_u32 s{sTMP}, s{sR}, s{sTMP}")
    A(f"s_sub_u32 s{sTMP}, s{sTMP}, 4")
    A(f"s_bfe_u32 s{sTMP2}, s{sTMP}, 0x20002")
    A(f"s_and_b32 s{sTMP}, s{sTMP}, 3")
    A(f"s_lshl2_add_u32 s{sU}, s{sTMP}, s{sTMP2}")
    A(f"s_cmp_ge_u32 s{sR}, 16")
    A(f"s_cselect_b32 s{sU}, s{sR}, s{sU}")
    A(f"s_lshr_b32 s{sTMP}, s{sU}, 3")
    A(f"s_lshl2_add_u32 s{sKS}, s{sTMP3}, s{sTMP}")
    A("s_cmp_lg_u32 s3, 0")
    A("s_cbranch_scc1 L_notloader")
    sSOFF, sSTEP, sNB, sBLK = 4, 5, 6, 7
    sIDX, sWRAP, sBASE = 12, 13, 14
    sNOW, sDL = 56, 58
    TIMED = "/" in (opt.pb + opt.pm + opt.pc)
    if TIMED: A(f"s_memrealtime s[{sNOW}:{sNOW+1}]")
    A(f"s_setprio {opt.lprio}")
    A(f"v_mov_b32 v9, {FL}")
    A("v_mov_b32 v10, 0xff7fffff")
    A("v_cmp_gt_u32 vcc, 16, v0")
    A("v_lshl_add_u32 v11, v0, 2, v9")
    A("v_lshrrev_b32 v2, 4, v0")
    A("v_cndmask_b32 v10, v10, 0, vcc")
    A("ds_write_b32 v11, v10")
    A("v_bfe_u32 v3, v0, 1, 3")
    A("v_xor_b32 v3, v3, v2")
    A("v_lshlrev_b32 v3, 5, v3")
    A("v_and_b32 v4, 1, v0")
    A("v_lshl_or_b32 v3, v4, 4, v3")
    A("v_xor_b32 v4, 0x80, v3")
    A("v_lshl_add_u32 v5, v2, 13, v3")
    A("v_lshl_add_u32 v6, v2, 13, v4")
    A(f"s_mov_b32 s{SRD+3}, 0x20000")
    A(f"s_and_b32 s{sTMP}, s{sU}, 7")
    A(f"s_lshl3_add_u32 s{sTMP}, s{sG}, s{sTMP}")
    A(f"s_lshl_b32 s{sTMP}, s{sTMP}, 8")
    A(f"s_lshl_b32 s{sSOFF}, s{sKS}, 20")
    A(f"s_add_u32 s{sSOFF}, s{sSOFF}, s{sTMP}")
    A(f"s_mov_b32 s{SRD+2}, {1024*4096*2}")
    A(f"s_mov_b32 s{sNB}, {NB0}")
    A(f"s_mov_b32 s{sSTEP}, {4*8192}")
    A(f"s_mov_b32 m0, {RQ}")
    A(f"s_mov_b32 s{sBLK}, {NB0}")
    if opt.fine == 2: stamp(5)
    A("s_waitcnt lgkmcnt(0)")
    if opt.fine == 2: stamp(6)
    A(f"s_mov_b64 s[{SRD}:{SRD+1}], s[{sWQ}:{sWQ+1}]")
    if TIMED: A(f"s_mov_b32 s{sDL}, s{sNOW}")
    A("s_barrier")
    if opt.fine == 2: stamp(7)
    def blk_body(win, rot):
        GR = opt.gran
        if win is not None:
            assert win % GR == 0
            pj = win % 8
            back = (win - pj) // 8
        for j in range(8):
            half, i = j >> 2, j & 3
            if win is not None and j % GR == 0:
                if j == pj:
                    A(f"s_sub_u32 s{sTMP}, s{sBLK}, {back}")
                    A(f"s_max_i32 s{sPROG}, s{sTMP}, s{sPROG}")
                    A(f"v_mov_b32 v10, s{sPROG}")
                A(f"s_waitcnt vmcnt({win})")
                if j == pj: A(f"ds_write_b32 v9, v10 offset:{F_PROG}")
            v = 5 if ((i >> 1) & 1) == 0 else 6
            A(f"buffer_load_dwordx4 v{v}, s[{SRD}:{SRD+3}], s{sSOFF} offen {NT} lds")
            A(f"s_add_u32 m0, m0, 1024")
            if rot == "kv":
                st = {"lin": 1024, "tr1": 8192 + (1024 if (half, i) == (1, 3) else 0),
                      "tr2": (1024 if i % 2 == 0 else 15360) + (2048 if (half, i) == (1, 3) else 0)}[opt.kvmode]
                A(f"s_add_u32 s{sIDX}, s{sIDX}, {st}")
                A(f"s_pack_lh_b32_b16 s{sSOFF}, s{sIDX}, s{sSOFF}")
            else:
                A(f"s_add_u32 s{sSOFF}, s{sSOFF}, s{sSTEP}")
        if rot == 7:
            A(f"s_add_u32 s{sIDX}, s{sIDX}, 1")
            A(f"s_cmp_eq_u32 s{sIDX}, 7")
            A(f"s_cselect_b32 s{sTMP}, {7*65536}, 0")
            A(f"s_sub_u32 s{sSOFF}, s{sSOFF}, s{sTMP}")
        if rot is True:
            A(f"s_add_u32 s{sIDX}, s{sIDX}, 1")
            A(f"s_and_b32 s{sIDX}, s{sIDX}, 7")
            A(f"s_cselect_b32 s{sTMP}, 0, s{sWRAP}")
            A(f"s_sub_u32 s{sSOFF}, s{sSOFF}, s{sTMP}")
    A("L_top_loop:")
    blk_body(None, False)
    A(f"s_sub_u32 s{sNB}, s{sNB}, 1")
    A(f"s_cmp_lg_u32 s{sNB}, 0")
    A("s_cbranch_scc1 L_top_loop")
    A("s_branch L_loader2")
    A("L_notloader:")
    if opt.cpf:
        A(f"s_cmp_gt_u32 s3, {opt.cpf}")
        A("s_cbranch_scc1 L_cpf_done")
        A("s_getpc_b64 s[4:5]")
        A("L_pc:")
        A(f"s_lshl_b32 s{sTMP}, s3, 13")
        A(f"s_sub_u32 s{sTMP}, s{sTMP}, 8192")
        A(f"v_lshl_add_u32 v1, v0, 7, s{sTMP}")
        A(f"v_cmp_gt_u32 vcc, L_end-L_pc, v1")
        A("s_and_saveexec_b64 s[6:7], vcc")
        A("s_cbranch_execz L_cpf_done2")
        A(f"global_load_dword v127, v1, s[4:5]")
        A("L_cpf_done2:")
        A("s_mov_b64 exec, -1")
        A("L_cpf_done:")
    A("s_barrier")
    A("s_branch L_cons")

    def decode2(keep=False):
        d = g.lab("L_d2"); m = g.lab("L_d2m")
        if STAMP:
            for i in range(1, NST):
                if not (opt.fine == 2 and keep and i in (5, 6, 7)): A(f"s_mov_b32 s{sST+2*i}, 0")
        A(f"s_mul_i32 s{sBETA}, s{sXCD}, 14")
        A(f"s_add_u32 s{sBETA}, s{sBETA}, s{sR}")
        A(f"s_mov_b32 s{sPROG}, 0")
        A(f"s_cmp_ge_u32 s{sR}, 16")
        A(f"s_cbranch_scc1 {m}")
        A(f"s_cmp_ge_u32 s{sR}, 14")
        A(f"s_cselect_b32 s{sROLE}, 2, 1")
        A(f"s_lshr_b32 s{sTMP}, s{sU}, 3")
        A(f"s_lshl1_add_u32 s{sRBK}, s{sXCD}, s{sTMP}")
        A(f"s_add_u32 s{sTMP}, s{sU}, 3")
        A(f"s_and_b32 s{sTMP}, s{sTMP}, 3")
        A(f"s_and_b32 s{sCB}, s{sU}, 4")
        A(f"s_or_b32 s{sCB}, s{sCB}, s{sTMP}")
        A(f"s_lshl_b32 s{sKB0}, s{sRBK}, 3")
        A(f"s_add_u32 s{sLR}, s{sR}, s{sXCD}")
        A(f"s_and_b32 s{sLR}, s{sLR}, {7 if opt.lrot & 1 else 0}")
        A(f"s_branch {d}")
        A(f"{m}:")
        A(f"s_mov_b32 s{sROLE}, 0")
        A(f"s_and_b32 s{sTMP}, s{sXCD}, 1")
        A(f"s_bfe_u32 s{sBB}, s{sR}, 0x20002")
        A(f"s_lshl2_add_u32 s{sBB}, s{sTMP}, s{sBB}")
        A(f"s_and_b32 s{sSPL}, s{sR}, 3")
        A(f"s_bfe_u32 s{sTMP}, s{sR}, 0x10003")
        A(f"s_lshl1_add_u32 s{sRBK}, s{sXCD}, s{sTMP}")
        A(f"s_mul_i32 s{sKB0}, s{sRBK}, 7")
        A(f"s_and_b32 s{sLR}, s{sR}, {7 if opt.lrot & 2 else 0}")
        A(f"s_cmp_eq_u32 s{sLR}, 7")
        A(f"s_cselect_b32 s{sLR}, 3, s{sLR}")
        A(f"s_add_u32 s{sCB}, s{sR}, 1")
        A(f"s_and_b32 s{sCB}, s{sCB}, 7")
        A(f"{d}:")

    A("L_loader2:")
    decode2(True)
    stamp(1)
    def lds_wait_ge(off, val, vtmp="v11", vaddr="v9", sleep=0):
        l = g.lab("L_w")
        A(f"{l}:")
        if sleep: A(f"s_sleep {sleep}")
        A(f"ds_read_b32 {vtmp}, {vaddr} offset:{off}")
        A("s_waitcnt lgkmcnt(0)")
        A(f"v_readfirstlane_b32 s{sTMP}, {vtmp}")
        A(f"s_cmp_ge_u32 s{sTMP}, {val}")
        A(f"s_cbranch_scc0 {l}")
    def wmax(w): return max(w) if isinstance(w, tuple) else w
    def blk_loop(nblk, win, rot):
        l = g.lab("L_ld")
        if nblk > 1:
            A(f"s_mov_b32 s{sNB}, {nblk}")
            A(f"{l}:")
        if isinstance(win, tuple):
            hi = g.lab("L_hi"); j = g.lab("L_jn")
            A(f"s_memrealtime s[{sNOW}:{sNOW+1}]")
            A(f"s_mul_i32 s{sTMP2}, s{sBLK}, {opt.period}")
            A(f"s_add_u32 s{sTMP2}, s{sTMP2}, {opt.toff}")
            A("s_waitcnt lgkmcnt(0)")
            A(f"s_sub_u32 s{sTMP}, s{sNOW}, s{sDL}")
            A(f"s_cmp_gt_u32 s{sTMP}, s{sTMP2}")
            A(f"s_cbranch_scc1 {hi}")
            for k in range(3, win[0]//8, -1):
                A(f"s_sub_u32 s{sTMP}, s{sBLK}, {k}")
                A(f"s_max_i32 s{sPROG}, s{sTMP}, s{sPROG}")
                A(f"v_mov_b32 v10, s{sPROG}")
                A(f"s_waitcnt vmcnt({8*k})")
                A(f"ds_write_b32 v9, v10 offset:{F_PROG}")
            blk_body(win[0], False)
            A(f"s_branch {j}")
            A(f"{hi}:")
            blk_body(win[1], False)
            A(f"{j}:")
            assert not rot
        else:
            blk_body(win, rot)
        A(f"s_add_u32 s{sBLK}, s{sBLK}, 1")
        if nblk > 1:
            A(f"s_sub_u32 s{sNB}, s{sNB}, 1")
            A(f"s_cmp_lg_u32 s{sNB}, 0")
            A(f"s_cbranch_scc1 {l}")
    def drain(maxwin):
        for k in range((maxwin + 4 + 7)//8 - 1, -1, -1):
            A(f"s_sub_u32 s{sTMP}, s{sBLK}, {k}")
            A(f"s_max_i32 s{sPROG}, s{sTMP}, s{sPROG}")
            A(f"v_mov_b32 v10, s{sPROG}")
            A(f"s_waitcnt vmcnt({8*k})")
            A(f"ds_write_b32 v9, v10 offset:{F_PROG}")
    def set_stride(stride):
        A(f"s_mov_b32 s{sSTEP}, {4*stride}")
        if stride & (stride-1) == 0:
            sh = stride.bit_length()-1
            A(f"v_lshl_add_u32 v5, v2, {sh}, v3")
            A(f"v_lshl_add_u32 v6, v2, {sh}, v4")
        else:
            A(f"v_mul_u32_u24 v8, {stride}, v2")
            A("v_add_u32 v5, v8, v3")
            A("v_add_u32 v6, v8, v4")
        A(f"s_mov_b32 s{sWRAP}, {256*stride}")
    XSRD = 68
    def xloads(n, ldsbase):
        for j in range(4):
            A(f"s_add_u32 s{sTMP}, s{sROT}, {2*j}")
            A(f"s_and_b32 s{sTMP}, s{sTMP}, 7")
            A(f"s_lshl_b32 s{sTMP}, s{sTMP}, 6")
            A(f"s_add_u32 s{sTMP}, s{sTMP}, s{sTMP3}")
            for q in range(n//4):
                A(f"s_mov_b32 m0, {ldsbase + 4096*q + 1024*j - 512*q}")
                A("s_nop 0")
                A(f"buffer_load_dwordx4 v7, s[{XSRD}:{XSRD+3}], s{sTMP} offen offset:{512*q} lds")
    def run_plan(pl, segs, start, hook=None):
        blk = 0; lastwin = 0
        segmap = {x[0]: x for x in segs}
        rot = False
        items = []
        for it in pl:
            if it == "d": items.append(it); continue
            n, w = it
            while n:
                c = min(n, 4 - blk if blk < 4 else 8 - ((blk - 4) % 8))
                if blk < start: c = min(c, start - blk)
                if hook and blk < hook[0]: c = min(c, hook[0] - blk)
                if blk >= start: items.append((blk, c, w))
                blk += c; n -= c
            lastw = w
        lastwin = pl[0][1]
        for it in items:
            if it == "d":
                drain(max(wmax(lastwin), 8*start)); continue
            b0, c, w = it
            if b0 >= 4 and (b0 - 4) % 8 == 0:
                seg = (b0 - 4) // 8 + 1
                stamp(1 + seg)
                if seg >= 2: lds_wait_ge(F_FREE0 + 4*(seg-2), 8)
                if b0 in segmap:
                    segmap[b0][1](); rot = segmap[b0][2]
                elif rot:
                    A(f"s_add_u32 s{sSOFF}, s{sSOFF}, s{sWRAP}")
                A(f"s_mov_b32 m0, {RA if seg % 2 == 1 else RB}")
            if hook and b0 == hook[0]: hook[1]()
            blk_loop(c, w, rot)
            lastwin = w
        stamp(8)
        if opt.fgate:
            A(f"s_mul_i32 s{sTMP}, s{sCB}, {16*CS}")
            A(f"s_add_u32 s{sTMP}, s{sTMP}, {WS_FC}")
            A(f"s_add_u32 s4, s{sWS}, s{sTMP}")
            A(f"s_addc_u32 s5, s{sWS+1}, 0")
            A(f"v_mul_u32_u24 v5, {CS}, v0")
            A("v_mov_b32 v6, 1")
        drain(max(wmax(x[1]) for x in pl if x != "d"))
        stamp(9)
        A("s_branch L_ld_end")
    def late_seg(ptr, nbytes):
        def f():
            set_stride(2048)
            A(f"s_mov_b64 s[{SRD}:{SRD+1}], s[{ptr}:{ptr+1}]\ns_mov_b32 s{SRD+2}, {nbytes}")
            A(f"s_mov_b32 s{sIDX}, s{sLR}")
            A(f"s_add_u32 s{sSOFF}, s{sKB0}, s{sLR}")
            A(f"s_lshl_b32 s{sSOFF}, s{sSOFF}, 16")
            A(f"s_lshl_b32 s{sTMP}, s{sCB}, 8")
            A(f"s_add_u32 s{sSOFF}, s{sSOFF}, s{sTMP}")
        return f
    A("v_and_b32 v7, 7, v0")
    A("v_lshlrev_b32 v7, 11, v7")
    A("v_lshrrev_b32 v8, 3, v0")
    A("v_lshl_add_u32 v7, v8, 4, v7")
    A(f"s_mov_b64 s[{XSRD}:{XSRD+1}], s[{sX}:{sX+1}]\ns_mov_b32 s{XSRD+2}, 16384\ns_mov_b32 s{XSRD+3}, 0x20000")
    A(f"s_lshl_b32 s{sTMP3}, s{sKS}, 8")
    A(f"s_mov_b32 m0, {XF}")
    A("s_nop 0")
    A(f"buffer_load_dwordx4 v7, s[{XSRD}:{XSRD+3}], s{sTMP3} offen lds")
    A(f"s_mov_b32 m0, {XF + 1024 - 128}")
    A("s_nop 0")
    A(f"buffer_load_dwordx4 v7, s[{XSRD}:{XSRD+3}], s{sTMP3} offen offset:128 lds")
    A(f"s_mov_b32 m0, {RQ + 8192*NB0}")
    A(f"s_cmp_ge_u32 s{sR}, 16")
    A("s_cbranch_scc1 L_ld_M")
    def b_seg1():
        A(f"s_and_b32 s{sROT}, s{sROT}, 6")
        A(f"s_mov_b32 s{sIDX}, s{sROT}")
        A(f"s_and_b32 s{sTMP2}, s{sBETA}, 1")
        set_stride(7168)
        A(f"s_mul_i32 s{sSOFF}, s{sTMP2}, {512*7168}")
        A(f"s_lshr_b32 s{sTMP}, s{sBETA}, 2")
        A(f"s_lshl_b32 s{sTMP}, s{sTMP}, 8")
        A(f"s_add_u32 s{sSOFF}, s{sSOFF}, s{sTMP}")
        A(f"s_mul_i32 s{sTMP}, s{sROT}, {32*7168}")
        A(f"s_add_u32 s{sSOFF}, s{sSOFF}, s{sTMP}")
        A(f"s_bitcmp0_b32 s{sBETA}, 1")
        A(f"s_cselect_b64 s[{SRD}:{SRD+1}], s[{sWG}:{sWG+1}], s[{sWU}:{sWU+1}]")
        A(f"s_mov_b32 s{SRD+2}, {1024*3584*2}")
    A(f"s_cmp_eq_u32 s{sROLE}, 2")
    A("s_cbranch_scc1 L_ld_C")
    assert sum(x[0] for x in pb if x != "d") == 28
    XGAT = opt.xgat
    def xg_hook():
        A(f"s_and_b32 s{sTMP3}, s{sBETA}, 1")
        A(f"s_lshl_b32 s{sTMP3}, s{sTMP3}, 10")
        xloads(8, XF + 2048)
        A(f"s_mov_b32 m0, {RA + 8192*(XGAT-4)}")
    run_plan(pb, [(4, b_seg1, True), (20, late_seg(sWO, 4096*1024*2), True)], NB0, hook=(XGAT, xg_hook))
    A("L_ld_C:")
    assert sum(x[0] for x in pc if x != "d") == 12 and pc[1] == "d" and pc[0][0] == 4
    def c_seg1():
        late_seg(sWO, 4096*1024*2)()
        A(f"s_mov_b32 s{sBLK}, 20")
    run_plan(pc, [(4, c_seg1, True)], NB0)
    A("L_ld_M:")
    def m_seg1():
        set_stride(256)
        A(f"s_mul_i32 s{sROT}, s{sROT}, {opt.kvrot*1024}")
        A(f"s_mov_b32 s{sIDX}, s{sROT}")
        A(f"s_lshl2_add_u32 s{sTMP}, s{sBB}, s{sG}")
        A(f"s_lshl4_add_u32 s{sTMP}, s{sTMP}, s{sSPL}")
        A(f"s_add_u32 s{sTMP}, s{sTMP}, 12")
        A(f"s_pack_ll_b32_b16 s{sSOFF}, s{sIDX}, s{sTMP}")
        A(f"s_mov_b64 s[{SRD}:{SRD+1}], s[{sK}:{sK+1}]\ns_mov_b32 s{SRD+2}, {8*4*4096*128*2}")
    def m_seg2():
        A(f"s_mov_b64 s[{SRD}:{SRD+1}], s[{sV}:{sV+1}]")
        A(f"s_mov_b32 s{sIDX}, s{sROT}")
        A(f"s_pack_lh_b32_b16 s{sSOFF}, s{sIDX}, s{sSOFF}")
    assert sum(x[0] for x in pm if x != "d") == 27
    run_plan(pm, [(4, m_seg1, "kv"), (12, m_seg2, "kv"), (20, late_seg(sWD, 3584*1024*2), 7)], NB0)
    A("L_ld_end:")
    if opt.nocomm: A("s_branch L_exit")
    A("s_barrier")
    if opt.fgate and not (opt.dbg & 1):
        if opt.flag_delay: A(f"s_sleep {opt.flag_delay}")
        A(f"s_bfm_b64 exec, {opt.frep}, 0")
        A("global_atomic_add v5, v6, s[4:5] sc1")
    A("s_branch L_exit")

    A("L_cons:")
    vL16, vTR, vACT, vT, vPUB = 1, 2, 3, 4, 5
    vTMP, vTMP2, vTMP3 = 6, 7, 8
    vWA, vAA = 10, 11
    vW, vB, vACC, vACC2 = 12, 16, 20, 24
    vGA = 28
    vLS = 44
    vK = 52
    vQ = 84
    vRG, vRW, vRR, vOUT, vONE, vAFW, vFLG = 116, 117, 118, 119, 120, 121, 122
    vTP, vTC, vL8 = 123, 124, 125
    vSTW, vSTR = 126, 15
    vTA, vAX, vEN = 48, 49, 50
    NV = 128
    A("s_waitcnt lgkmcnt(0)")
    A(f"s_load_dword s{sT}, s[{sWS}:{sWS+1}], 0")
    decode2()
    stamp(1)
    A(f"s_sub_u32 s{sC}, s3, 1")
    sSC, sM3, sMN, sEM, sRNG = 58, 60, 61, 56, 57
    A(f"s_mov_b32 s{sM3}, 0x00030003")
    A(f"s_mov_b32 s{sMN}, 0xfffcfffc")
    A(f"s_mov_b32 s{sRNG}, {27 << 23:#x}")
    A(f"v_mov_b32 v{vAX}, 0")
    A(f"v_lshlrev_b32 v{vL8}, 3, v0")
    A(f"v_mov_b32 v9, {FL}")
    A(f"v_mov_b32 v{vONE}, 1")
    A(f"v_lshlrev_b32 v{vL16}, 4, v0")
    A(f"v_mul_u32_u24 v{vFLG}, {CS}, v0")
    A(f"v_lshrrev_b32 v{vTMP2}, 4, v0")
    A(f"v_bfe_u32 v{vTMP3}, v0, 2, 2")
    A(f"v_lshl_add_u32 v{vTR}, v{vTMP2}, 3, v{vTMP3}")
    A(f"v_lshlrev_b32 v{vTR}, 8, v{vTR}")
    A(f"v_and_b32 v{vACT}, 1, v{vTMP2}")
    A(f"v_lshl_or_b32 v{vTMP3}, v{vACT}, 2, v{vTMP3}")
    A(f"v_xor_b32 v{vTMP3}, s{sC}, v{vTMP3}")
    A(f"v_lshl_or_b32 v{vTR}, v{vTMP3}, 5, v{vTR}")
    A(f"v_and_b32 v{vTMP3}, 3, v0")
    A(f"v_lshl_or_b32 v{vTR}, v{vTMP3}, 3, v{vTR}")
    A(f"v_and_b32 v{vTMP3}, 7, v0")
    A(f"v_lshl_add_u32 v{vACT}, v{vTMP2}, 3, v{vTMP3}")
    A(f"v_lshlrev_b32 v{vACT}, 4, v{vACT}")
    A(f"v_lshrrev_b32 v{vAFW}, 5, v0")
    A(f"v_lshlrev_b32 v{vAFW}, 8, v{vAFW}")
    A(f"v_and_b32 v{vTMP2}, 2, v0")
    A(f"v_lshl_or_b32 v{vAFW}, v{vTMP2}, 6, v{vAFW}")
    A(f"v_and_b32 v{vTMP2}, 28, v0")
    A(f"v_lshl_or_b32 v{vAFW}, v{vTMP2}, 2, v{vAFW}")
    A(f"v_and_b32 v{vTMP2}, 1, v0")
    A(f"v_lshl_or_b32 v{vAFW}, v{vTMP2}, 3, v{vAFW}")
    A(f"s_lshl_b32 s{sTMP}, s{sC}, 9")
    A(f"s_add_u32 s{sTMP}, s{sTMP}, {AF}")
    A(f"v_add_u32 v{vAFW}, s{sTMP}, v{vAFW}")
    def afswz(v):
        A(f"v_lshrrev_b32 v{vTMP2}, 3, v{v}")
        A(f"v_and_b32 v{vTMP2}, 0x70, v{vTMP2}")
        A(f"v_xor_b32 v{v}, v{v}, v{vTMP2}")
    afswz(vAFW)
    A("s_waitcnt lgkmcnt(0)")
    A(f"s_add_u32 s{sT}, s{sT}, 0x11111111")
    A(f"s_mov_b32 s{sT+1}, s{sT}")
    A(f"v_mov_b32 v{vT}, s{sT}")
    def tagbits(dst, vsh):
        A(f"v_lshrrev_b32 v{dst}, v{vsh}, v{vT}")
        A(f"v_and_b32 v{dst}, 15, v{dst}")
        A(f"v_lshl_or_b32 v{dst}, v{dst}, 14, v{dst}")
        A(f"v_and_b32 v{dst}, s{sM3}, v{dst}")
    A(f"v_and_b32 v{vTMP}, 7, v0")
    A(f"v_lshlrev_b32 v{vTMP}, 2, v{vTMP}")
    tagbits(vTC, vTMP)
    A(f"v_lshrrev_b32 v{vTMP}, 2, v0")
    A(f"v_and_b32 v{vTMP}, 12, v{vTMP}")
    A(f"v_and_b32 v{vTMP2}, 1, v0")
    A(f"v_lshl_or_b32 v{vTMP}, v{vTMP2}, 4, v{vTMP}")
    tagbits(vTP, vTMP)
    A(f"v_sub_u32 v{vTA}, s{sM3}, v{vTP}")

    def refresh_prog():
        A(f"ds_read_b32 v{vTMP}, v9 offset:{F_PROG}")
        A("s_waitcnt lgkmcnt(0)")
        A(f"v_readfirstlane_b32 s{sPROG}, v{vTMP}")
    def wait_prog(val_is_sgpr, val, sleep=0):
        l = g.lab("L_wp"); d = g.lab("L_wpd")
        v = f"s{val}" if val_is_sgpr else str(val)
        A(f"s_cmp_ge_u32 s{sPROG}, {v}")
        A(f"s_cbranch_scc1 {d}")
        A(f"{l}:")
        if sleep: A(f"s_sleep {sleep}")
        refresh_prog()
        A(f"s_cmp_ge_u32 s{sPROG}, {v}")
        A(f"s_cbranch_scc0 {l}")
        A(f"{d}:")
    def signal(off):
        A("s_mov_b64 exec, 1")
        A(f"ds_add_u32 v9, v{vONE} offset:{off}")
        A("s_mov_b64 exec, -1")
    def cwait(off, val, sleep=0):
        lds_wait_ge(off, val, vtmp=f"v{vTMP}", sleep=sleep)
    def cwait_rd(off, val, nrd, reads):
        l = g.lab("L_cw")
        A(f"{l}:")
        A(f"ds_read_b32 v{vTMP}, v9 offset:{off}")
        reads()
        A(f"s_waitcnt lgkmcnt({nrd})")
        A(f"v_readfirstlane_b32 s{sTMP}, v{vTMP}")
        A(f"s_cmp_ge_u32 s{sTMP}, {val}")
        A(f"s_cbranch_scc0 {l}")
    def fbits(x): return struct.unpack("<I", struct.pack("<f", x))[0]
    ADJ = 1.0 - 0.7 * 2.0**-10
    LQ, LO_, LG, LF = [x + opt.sbias for x in (8, 12, 10, 20)]
    def setscale(lg):
        A(f"s_mov_b32 s{sSC}, {fbits(2.0**lg):#x}")
        A(f"s_mov_b32 s{sSC+1}, {fbits(2.0**lg * ADJ):#x}")
    def encode(sc=None, tp=vTP, ta=vTA):
        src = vACC
        d = g.lab("L_en")
        scs = f"s[{sSC}:{sSC+1}]" if sc is None else f"v[{sc}:{sc+1}]"
        A(f"v_pk_mul_f32 v[{src}:{src+1}], v[{src}:{src+1}], {scs} op_sel_hi:[1,0]")
        A(f"v_pk_mul_f32 v[{src+2}:{src+3}], v[{src+2}:{src+3}], {scs} op_sel:[0,1] op_sel_hi:[1,1]")
        A(f"v_max3_f32 v{vTMP}, |v{src}|, |v{src+1}|, |v{src+2}|")
        A(f"v_max_f32 v{vTMP}, |v{src+3}|, v{vTMP}")
        A(f"v_subrev_u32 v{vTMP2}, {115 << 23:#x}, v{vTMP}")
        A(f"v_cmp_le_u32 vcc, s{sRNG}, v{vTMP2}")
        r = g.lab("L_er")
        A(f"{r}:")
        A(f"v_cvt_pkrtz_f16_f32 v{vEN}, v{src}, v{src+1}")
        A(f"v_cvt_pkrtz_f16_f32 v{vEN+1}, v{src+2}, v{src+3}")
        A(f"v_add_u32 v{vEN}, 0x00020002, v{vEN}")
        A(f"v_add_u32 v{vEN+1}, v{vEN+1}, v{ta}")
        A(f"v_and_or_b32 v{vEN}, v{vEN}, s{sMN}, v{vAX}")
        A(f"v_and_or_b32 v{vEN+1}, v{vEN+1}, s{sMN}, v{tp}")
        A(f"s_cbranch_vccz {d}")
        A(f"s_call_b64 s[6:7], L_encs")
        A(f"s_branch {r}")
        A(f"{d}:")
    def publish(src, base=sGA, sc=None):
        encode(sc)
        A("s_mov_b32 exec_lo, 0x00ff00ff\ns_mov_b32 exec_hi, 0x00ff00ff")
        if not (opt.dbg & 33): A(f"global_store_dwordx2 v{vPUB}, v[{vEN}:{vEN+1}], s[{base}:{base+1}] sc1")
    NREP = opt.nrep; HREP = max(1, NREP // 4)
    sNH = 9
    def bump(kind):
        if opt.dbg & 33: return
        if opt.satom:
            A(f"s_mov_b32 s8, 1")
            if kind == "h":
                e = g.lab("L_bh")
                for r in range(HREP): A(f"s_atomic_add s8, s[{sGB}:{sGB+1}], {CS*r}")
                A(f"s_cmp_eq_u32 s{sNH}, {HREP}")
                A(f"s_cbranch_scc1 {e}")
                for r in range(HREP, 2*HREP): A(f"s_atomic_add s8, s[{sGB}:{sGB+1}], {CS*r}")
                A(f"{e}:")
            else:
                for r in range(NREP): A(f"s_atomic_add s8, s[{sGB}:{sGB+1}], {CS*r}")
        else:
            if kind == "h": A(f"s_bfm_b64 exec, s{sNH}, 0")
            else: A(f"s_bfm_b64 exec, {NREP}, 0")
            A(f"global_atomic_add v{vFLG}, v{vONE}, s[{sGB}:{sGB+1}] sc1")
    def flag(cnt, nrep, last=7):
        d = g.lab("L_fl")
        A("s_mov_b64 exec, 1")
        A(f"ds_add_rtn_u32 v{vTMP}, v9, v{vONE} offset:{cnt}")
        A("s_waitcnt lgkmcnt(0)")
        A(f"v_readfirstlane_b32 s{sTMP}, v{vTMP}")
        A(f"s_cmp_lg_u32 s{sTMP}, {last}")
        A(f"s_cbranch_scc1 {d}")
        bump(nrep)
        A(f"{d}:")
        A("s_mov_b64 exec, -1")
    def staged(cnt, last, hi_off, kind):
        d = g.lab("L_sg")
        A(f"ds_write_b64 v{vSTW}, v[{vEN}:{vEN+1}]")
        A("s_mov_b64 exec, 1")
        A(f"ds_add_rtn_u32 v{vTMP}, v9, v{vONE} offset:{cnt}")
        A("s_mov_b64 exec, -1")
        A(f"ds_read_b128 v[{vGA}:{vGA+3}], v{vSTR}")
        A(f"ds_read_b128 v[{vGA+4}:{vGA+7}], v{vSTR} offset:1024")
        A(f"v_add_u32 v{vTMP2}, {hi_off}, v{vPUB}")
        A("s_waitcnt lgkmcnt(2)")
        A(f"v_readfirstlane_b32 s{sTMP}, v{vTMP}")
        A(f"s_cmp_lg_u32 s{sTMP}, {last}")
        A(f"s_cbranch_scc1 {d}")
        A("s_waitcnt lgkmcnt(0)")
        if not (opt.dbg & 1):
            A(f"global_store_dwordx4 v{vPUB}, v[{vGA}:{vGA+3}], s[{sGA}:{sGA+1}] sc1")
            A(f"global_store_dwordx4 v{vTMP2}, v[{vGA+4}:{vGA+7}], s[{sGA}:{sGA+1}] sc1")
        if kind: bump(kind)
        A("s_mov_b64 exec, -1")
        A("s_nop 0")
        A(f"{d}:")
        A("s_waitcnt lgkmcnt(0)")
    def flag_now(nrep):
        d = g.lab("L_fn")
        A(f"s_cmp_lg_u32 s{sC}, {opt.flagwave}")
        A(f"s_cbranch_scc1 {d}")
        bump(nrep)
        A("s_mov_b64 exec, -1")
        A(f"{d}:")
    def ws_addr(dst, base_const, soff):
        A(f"s_add_u32 s{soff}, s{soff}, {base_const}")
        A(f"s_add_u32 s{dst}, s{sWS}, s{soff}")
        A(f"s_addc_u32 s{dst+1}, s{sWS+1}, 0")
    def pub_voff(shift):
        A(f"v_and_b32 v{vTMP2}, 15, v0")
        A(f"v_lshrrev_b32 v{vTMP3}, 4, v0")
        A(f"v_lshlrev_b32 v{vTMP3}, 3, v{vTMP3}")
        A(f"v_lshl_or_b32 v{vPUB}, v{vTMP2}, {shift}, v{vTMP3}")
    def sample(base, offs, sleep=0, cntstamp=None):
        l = g.lab("L_sm"); d = g.lab("L_smd"); e = g.lab("L_sme")
        if opt.dbg & 7: return
        A(f"s_mov_b32 s{sCNT}, 0")
        if sleep: A(f"s_branch {e}")
        A(f"{l}:")
        if sleep:
            A(f"s_sleep {sleep}")
            A(f"{e}:")
        for i, o in enumerate(offs):
            A(f"s_load_dword s{sSM+i}, s[{base}:{base+1}], {o} glc")
        A(f"s_add_u32 s{sCNT}, s{sCNT}, 1")
        A(f"s_cmp_gt_u32 s{sCNT}, {opt.maxpoll}")
        A("s_waitcnt lgkmcnt(0)")
        A(f"s_cbranch_scc1 {d}")
        for i in range(len(offs)):
            A(f"s_xor_b32 s{sSM+i}, s{sSM+i}, s{sT}")
            if i: A(f"s_or_b32 s{sSM}, s{sSM}, s{sSM+i}")
        A(f"s_and_b32 s{sSM}, s{sSM}, 0xff")
        A(f"s_cbranch_scc1 {l}")
        A(f"{d}:")
        if cntstamp is not None: stampval(cntstamp, sCNT)
    def pollcnt(base, target, sleep, cntstamp=None):
        l = g.lab("L_pf"); d = g.lab("L_pfd"); e = g.lab("L_pfe")
        if opt.dbg & 7: return
        A(f"s_mov_b32 s{sCNT}, 0")
        if sleep: A(f"s_branch {e}")
        A(f"{l}:")
        if sleep:
            A(f"s_sleep {sleep}")
            A(f"{e}:")
        A(f"s_load_dword s8, s[{base}:{base+1}], 0 glc")
        A(f"s_add_u32 s{sCNT}, s{sCNT}, 1")
        A(f"s_cmp_gt_u32 s{sCNT}, {opt.maxhint}")
        A("s_waitcnt lgkmcnt(0)")
        A(f"s_cbranch_scc1 {d}")
        A(f"s_cmp_eq_u32 s8, s{target}")
        A(f"s_cbranch_scc0 {l}")
        A(f"{d}:")
        if cntstamp is not None: stampval(cntstamp, sCNT)
    def gather(nld=4, mid=None, cntstamp=None, sleep=0, work=None, kind='M', defer=False):
        l = g.lab("L_ga"); d = g.lab("L_gad"); c = g.lab("L_gac"); rt = g.lab("L_gar")
        assert nld in (1, 4)
        def issue():
            if opt.dbg & 2: return
            if opt.gprio: A(f"s_setprio {opt.gprio}")
            for i in range(nld):
                A(f"global_load_dwordx2 v[{vGA+2*i}:{vGA+2*i+1}], v{vL8}, s[{sGA}:{sGA+1}] offset:{512*i} sc1")
        if mid is not None or sleep:
            issue()
            if mid is not None: mid()
            A(f"s_mov_b32 s{sEM}, s{sM3}")
            A(f"s_mov_b32 s{sCNT}, 0")
            A(f"s_branch {c}")
            pad(kind)
        else:
            A(f"s_mov_b32 s{sEM}, s{sM3}")
            A(f"s_mov_b32 s{sCNT}, 0")
        A(f"{l}:")
        if sleep: A(f"s_sleep {sleep}")
        issue()
        A(f"{c}:")
        A(f"s_add_u32 s{sCNT}, s{sCNT}, 1")
        vC, vC0 = vTMP2, vTMP
        for i in range(nld):
            A(f"s_waitcnt vmcnt({nld-1-i})")
            if i == 0: A(f"v_xor_b32 v{vC}, v{vTC}, v{vGA+1}")
            else: A(f"v_bitop3_b32 v{vC}, v{vC}, v{vGA+2*i+1}, v{vTC} bitop3:0xf6")
            if i == 2: A(f"v_or3_b32 v{vC0}, v{vGA}, v{vGA+2}, v{vGA+4}")
            if i == nld-1:
                if nld == 4: A(f"v_or_b32 v{vC0}, v{vC0}, v{vGA+6}")
                A(f"v_and_b32 v{vC}, s{sM3}, v{vC}")
                A(f"v_and_or_b32 v{vC0}, v{vC0 if nld == 4 else vGA}, s{sEM}, v{vC}")
                A(f"v_cmp_ne_u32 vcc, 0, v{vC0}")
            if work is not None and i < nld-1: work(i)
        A(f"s_cbranch_vccz {d}")
        A(f"v_cmp_ne_u32 vcc, 0, v{vC}")
        A(f"s_cbranch_vccnz {rt}")
        A(f"s_mov_b32 s{sEM}, 0")
        if defer: A(f"s_branch {d}")
        else:
            A("s_call_b64 s[6:7], L_fix")
            A(f"s_branch {c}")
        A(f"{rt}:")
        A(f"s_cmp_le_u32 s{sCNT}, {0 if (opt.dbg & 6) else opt.maxpoll}")
        A(f"s_cbranch_scc1 {l}")
        A(f"{d}:")
        if cntstamp is not None: stampval(cntstamp, sCNT)
        if work is not None: work(nld-1)
    vS0, vS1, vSCA = vGA + 12, vGA + 8, vLS
    def acc(i, dst, first):
        for r in range(4):
            c2 = "0" if first else f"v{dst+r}"
            A(f"v_fma_mix_f32 v{dst+r}, v{vGA+2*i+(r>>1)}, v{vSCA+i}, {c2} op_sel:[{r&1},0,0] op_sel_hi:[1,0,0]")
    def setsca(lg):
        for i in range(4): A(f"v_mov_b32 v{vSCA+i}, {fbits(2.0**-lg):#x}")
    def wreads(k0, k1):
        for kb in range(k0, k1):
            o = 8192*kb
            A(f"ds_read_b64_tr_b16 v[{vK+4*kb}:{vK+4*kb+1}], v{vWA} offset:{o}")
            A(f"ds_read_b64_tr_b16 v[{vK+4*kb+2}:{vK+4*kb+3}], v{vWA} offset:{o+1024}")
    def mf(kb, first):
        c = "0" if first else f"v[{vACC}:{vACC+3}]"
        A(f"v_mfma_f32_16x16x32_bf16 v[{vACC}:{vACC+3}], v[{vK+4*kb}:{vK+4*kb+3}], v[{vQ+4*kb}:{vQ+4*kb+3}], {c}")
    vAB = vW
    def actreads(n, swz=False):
        for kb in range(n):
            A(f"ds_read_b128 v[{vQ+4*kb}:{vQ+4*kb+3}], v{vAB if (swz and kb & 1) else vAA} offset:{512*kb}")
    sFA, sRA, sPE = 12, 10, 14
    def late_setup(wbase, padd, pend):
        A(f"v_add_u32 v{vWA}, {wbase}, v{vTR}")
        A(f"v_add_u32 v{vAA}, {AF}, v{vACT}")
        afswz(vAA)
        A(f"v_xor_b32 v{vAB}, 64, v{vAA}")
        A(f"v_and_b32 v{vTMP2}, 4, v0")
        A(f"v_lshlrev_b32 v{vPUB}, 10, v{vTMP2}")
        A(f"v_and_b32 v{vTMP2}, 3, v0")
        A(f"v_lshl_or_b32 v{vPUB}, v{vTMP2}, 5, v{vPUB}")
        A(f"v_lshrrev_b32 v{vTMP2}, 4, v0")
        A(f"v_lshl_or_b32 v{vPUB}, v{vTMP2}, 3, v{vPUB}")
        A(f"s_lshl3_add_u32 s{sTMP}, s{sCB}, s{sC}")
        A(f"s_lshl_b32 s{sTMP}, s{sTMP}, 6")
        A(f"s_add_u32 s{sTMP}, s{sTMP}, s{sRBK}")
        A(f"s_lshl_b32 s{sTMP}, s{sTMP}, 7")
        ws_addr(sFA, WS_FP + 128*padd, sTMP)
        A(f"s_mov_b32 s{sPE}, {pend}")
        setscale(LF)
        A(f"v_mov_b32 v{vAX}, 0")
        A(f"s_mov_b32 s{sWDN}, 21")
        A(f"s_add_u32 s{sTMP}, s{sKB0}, s{sC}")
        A(f"s_lshl_b32 s{sTMP}, s{sTMP}, 11")
    sRET = 6
    def wcatch():
        d = g.lab("L_wc")
        A(f"s_cmp_lt_u32 s{sPROG}, s{sWDN}")
        A(f"s_cbranch_scc1 {d}")
        A(f"s_call_b64 s[{sRET}:{sRET+1}], L_wcatch")
        A(f"{d}:")
    def late_wait():
        l = g.lab("L_lw"); d = g.lab("L_lwd")
        A(f"{l}:")
        A(f"ds_read_b64 v[{vTMP}:{vTMP+1}], v9 offset:{F_PROG}")
        A("s_waitcnt lgkmcnt(0)")
        A(f"v_readfirstlane_b32 s{sTMP}, v{vTMP+1}")
        A(f"v_readfirstlane_b32 s{sPROG}, v{vTMP}")
        A(f"s_cmp_lg_u32 s{sTMP}, 0")
        A(f"s_cbranch_scc1 {d}")
        wcatch()
        A(f"s_branch {l}")
        A(f"{d}:")
    def late_mid():
        A(f"s_add_u32 s{sTMP2}, s{sPROG}, {opt.midahead}")
        A(f"s_min_u32 s{sTMP2}, s{sTMP2}, s{sPE}")
        wcatch()
        wait_prog(True, sTMP2)
        wcatch()
    vPG = 126
    def late_post_issue():
        if opt.lflow == 1: A(f"ds_read_b32 v{vPG}, v9 offset:{F_PROG}")
    def late_post():
        if opt.lflow != 1: return
        A("s_waitcnt lgkmcnt(0)")
        A(f"v_readfirstlane_b32 s{sPROG}, v{vPG}")
        wcatch()

    if opt.cprio: A(f"s_setprio {opt.cprio}")
    signal(F_ERD)
    A(f"s_cmp_eq_u32 s3, 9")
    A("s_cbranch_scc1 L_poller")
    if opt.notif:
        A(f"s_cmp_eq_u32 s3, 10")
        A("s_cbranch_scc1 L_notif")
    if opt.nocomm:
        signal(F_FREE0); signal(F_FREE1)
        A("s_branch L_exit")
    def egloop(last, name, lead=None, nrep=0):
        A(f"L_eg_loop{name}:")
        A(f"ds_read_b128 v[{vB}:{vB+3}], v{vAA}")
        wait_prog(True, sCNT)
        A(f"ds_read_b64_tr_b16 v[{vW}:{vW+1}], v{vWA}")
        A(f"ds_read_b64_tr_b16 v[{vW+2}:{vW+3}], v{vWA} offset:1024")
        if lead is not None and lead >= 0:
            A(f"s_cmp_lg_u32 s{sCNT}, {last - lead}")
            A(f"s_cbranch_scc1 L_eg_nf{name}")
            flag_now(nrep)
            A(f"L_eg_nf{name}:")
        A(f"v_add_u32 v{vWA}, 8192, v{vWA}")
        A(f"v_add_u32 v{vAA}, 512, v{vAA}")
        A(f"s_add_u32 s{sCNT}, s{sCNT}, 1")
        A(f"s_cmp_le_u32 s{sCNT}, {last}")
        A("s_waitcnt lgkmcnt(0)")
        A(f"v_mfma_f32_16x16x32_bf16 v[{vACC}:{vACC+3}], v[{vW}:{vW+3}], v[{vB}:{vB+3}], v[{vACC}:{vACC+3}]")
        A(f"s_cbranch_scc1 L_eg_loop{name}")
    A(f"s_cmp_ge_u32 s{sC}, 4")
    A("s_cbranch_scc1 L_noq")
    A(f"v_and_b32 v{vTMP2}, 7, v0")
    A(f"v_lshlrev_b32 v{vSTW}, 8, v{vTMP2}")
    A(f"v_and_b32 v{vTMP2}, 8, v0")
    A(f"v_lshl_or_b32 v{vSTW}, v{vTMP2}, 2, v{vSTW}")
    A(f"v_lshrrev_b32 v{vTMP3}, 4, v0")
    A(f"v_lshl_or_b32 v{vSTW}, v{vTMP3}, 3, v{vSTW}")
    A(f"s_lshl_b32 s{sTMP}, s{sC}, 6")
    A(f"s_add_u32 s{sTMP}, s{sTMP}, {ST}")
    A(f"v_add_u32 v{vSTW}, s{sTMP}, v{vSTW}")
    A(f"v_add_u32 v{vSTR}, {ST}, v{vL16}")
    A(f"v_and_b32 v{vPUB}, 0xf0, v{vL16}")
    A(f"v_lshl_or_b32 v{vPUB}, v{vTMP3}, 16, v{vPUB}")
    A(f"v_lshlrev_b32 v{vTMP3}, 2, v{vTMP3}")
    A(f"v_lshl_or_b32 v{vTMP3}, v{vTMP2}, 1, v{vTMP3}")
    tagbits(vB, vTMP3)
    A(f"v_sub_u32 v{vB+1}, s{sM3}, v{vB}")
    setscale(LQ)
    A(f"s_and_b32 s{sTMP3}, s{sU}, 7")
    A(f"s_lshl3_add_u32 s{sTMP}, s{sG}, s{sTMP3}")
    A(f"s_lshl3_add_u32 s{sTMP}, s{sTMP}, s{sKS}")
    A(f"s_lshl_b32 s{sTMP}, s{sTMP}, 8")
    ws_addr(sGA, WS_QP, sTMP)
    A(f"s_mul_i32 s{sTMP}, s{sG}, {32*CS}")
    ws_addr(sGB, WS_QC, sTMP)
    A(f"s_lshl_b32 s{sTMP}, s{sC}, 1")
    A(f"s_xor_b32 s{sTMP}, s{sTMP}, s{sC}")
    A(f"s_lshl_b32 s{sTMP}, s{sTMP}, 5")
    A(f"v_xor_b32 v{vWA}, s{sTMP}, v{vTR}")
    A(f"v_add_u32 v{vWA}, {RQ}, v{vWA}")
    A(f"v_xor_b32 v{vW}, 32, v{vWA}")
    A(f"v_add_u32 v{vAA}, {XF}, v{vACT}")
    A(f"v_cmp_eq_u32 s[4:5], 0, v{vTMP2}")
    cwait(F_ERD, NWAVES - 1, sleep=1)
    wait_prog(False, 4, sleep=1)
    if opt.qlead >= 0: flag_now("q")
    actreads(4)
    wreads(0, 4)
    for kb in range(4):
        A(f"s_waitcnt lgkmcnt({6 if kb == 0 else 6})")
        A(f"ds_read_b64_tr_b16 v[{vK+16+4*kb}:{vK+16+4*kb+1}], v{vW} offset:{8192*kb}")
        A(f"ds_read_b64_tr_b16 v[{vK+16+4*kb+2}:{vK+16+4*kb+3}], v{vW} offset:{8192*kb+1024}")
        mf(kb, kb == 0)
    A("s_mov_b64 exec, 3")
    A(f"ds_add_u32 v9, v{vONE} offset:{F_FREE0}")
    A("s_mov_b64 exec, -1")
    for kb in range(4):
        A(f"s_waitcnt lgkmcnt({7-2*kb})")
        c1 = "0" if kb == 0 else f"v[{vACC2}:{vACC2+3}]"
        A(f"v_mfma_f32_16x16x32_bf16 v[{vACC2}:{vACC2+3}], v[{vK+16+4*kb}:{vK+16+4*kb+3}], v[{vQ+4*kb}:{vQ+4*kb+3}], {c1}")
    A("s_nop 7")
    for r in range(4): A(f"v_cndmask_b32 v{vACC+r}, v{vACC2+r}, v{vACC+r}, s[4:5]")
    encode(None, vB, vB+1)
    staged(F_PUB0, 3, 4 << 16, "q" if opt.qhint else None)
    if opt.ackst:
        stamp(2); A("s_waitcnt vmcnt(0)"); stamp(5)
    A(f"v_mov_b32 v{vAX}, 0")
    A("L_noq:")
    if not opt.ackst: stamp(2)
    A(f"s_cmp_ge_u32 s{sR}, 16")
    A("s_cbranch_scc1 L_roleM")
    A(f"s_cmp_eq_u32 s{sROLE}, 2")
    A("s_cbranch_scc1 L_bc_late")
    pub_voff(5)
    setscale(LG)
    A(f"s_and_b32 s{sTMP}, s{sBETA}, -4")
    A(f"s_lshr_b32 s{sTMP2}, s{sC}, 1")
    A(f"s_add_u32 s{sTMP}, s{sTMP}, s{sTMP2}")
    A(f"s_and_b32 s{sTMP2}, s{sBETA}, 3")
    A(f"s_lshl2_add_u32 s{sTMP}, s{sTMP}, s{sTMP2}")
    A(f"s_and_b32 s{sTMP2}, s{sC}, 1")
    A(f"s_lshl1_add_u32 s{sTMP}, s{sTMP}, s{sTMP2}")
    A(f"s_lshl_b32 s{sTMP}, s{sTMP}, 8")
    ws_addr(sGA, WS_GP, sTMP)
    def hc_addr():
        A(f"s_and_b32 s{sTMP}, s{sBETA}, -4")
        A(f"s_or_b32 s{sTMP2}, s{sBETA}, 3")
        A(f"s_mul_i32 s{sTMP}, s{sTMP}, 147")
        A(f"s_mul_i32 s{sTMP2}, s{sTMP2}, 147")
        A(f"s_lshr_b32 s{sTMP}, s{sTMP}, 10")
        A(f"s_lshr_b32 s{sTMP2}, s{sTMP2}, 10")
        A(f"s_cmp_eq_u32 s{sTMP}, s{sTMP2}")
        A(f"s_cselect_b32 s{sNH}, {HREP}, {2*HREP}")
        A(f"s_mul_i32 s{sTMP}, s{sTMP}, {CS*HREP}")
        ws_addr(sGB, WS_HC, sTMP)
    if not opt.notif: hc_addr()
    for r in range(4): A(f"v_mov_b32 v{vACC+r}, 0")
    A(f"v_mov_b32 v{vWA}, v{vTR}")
    A(f"v_add_u32 v{vAA}, {XF + 2048}, v{vACT}")
    A(f"s_mov_b32 s{sCNT}, 5")
    wait_prog(False, opt.xgat + 1, sleep=1)
    egloop(12, "G1")
    signal(F_FREE1)
    stamp(3)
    egloop(20, "G2", opt.hlead, "h")
    A("s_nop 7")
    publish(vACC)
    if opt.hlead < 0 and not opt.notif: flag(F_PUB1, "h")
    else: A("s_mov_b64 exec, -1")
    stamp(6)
    if opt.ackst:
        A("s_waitcnt vmcnt(0)"); stamp(4)
    A("L_bc_late:")
    late_setup(RA, 0, 28)
    ws_addr(sGA, WS_OP, sTMP)
    A(f"s_lshl_b32 s{sTMP2}, s{sC}, 4")
    A(f"v_and_b32 v{vTMP3}, 32, v0")
    A(f"v_lshlrev_b32 v{vTMP3}, 2, v{vTMP3}")
    A(f"v_add3_u32 v{vTMP3}, v{vTMP3}, s{sTMP2}, v9")
    A(f"s_lshl_b32 s{sTMP3}, s{sLR}, 3")
    A(f"v_subrev_u32 v{vAFW}, s{sTMP3}, v0")
    A(f"v_and_b32 v{vAFW}, 62, v{vAFW}")
    A(f"v_lshlrev_b32 v{vAFW}, 6, v{vAFW}")
    A(f"v_and_b32 v{vTMP2}, 1, v0")
    A(f"v_lshl_or_b32 v{vAFW}, v{vTMP2}, 3, v{vAFW}")
    A(f"s_add_u32 s{sTMP2}, s{sTMP2}, {AF}")
    A(f"v_add_u32 v{vAFW}, s{sTMP2}, v{vAFW}")
    afswz(vAFW)
    late_wait()
    stamp(7)
    def owork(i):
        if i == 2: late_post_issue()
        if i == 3: late_post()
    gather(mid=late_mid, cntstamp=13, sleep=opt.gsleep, work=owork, kind='B', defer=True)
    if STAMP == 1: A("s_waitcnt lgkmcnt(0)")
    cwait_rd(F_WRDY, 1, 0, lambda: A(f"ds_read_b128 v[{vSCA}:{vSCA+3}], v{vTMP3} offset:{F_WT}"))
    stamp(8)
    A(f"s_cmp_lg_u32 s{sEM}, 0")
    A("s_cbranch_scc1 L_onofix")
    A("s_call_b64 s[6:7], L_fix")
    A("L_onofix:")
    for i in range(4): acc(i, vS0, i == 0)
    A("s_branch L_late")

    A("L_roleM:")
    vXr, vGWr = vK, vK + 8
    A(f"s_cmp_lt_u32 s{sC}, 4")
    A("s_cbranch_scc1 L_nogate")
    wait_prog(False, opt.ggate, sleep=1)
    A(f"s_and_b32 s{sTMP}, s{sR}, 1")
    A(f"s_lshl2_add_u32 s{sTMP}, s{sTMP}, s{sC}")
    A(f"s_sub_u32 s{sTMP3}, s{sTMP}, 4")
    A(f"s_lshl_b32 s{sTMP}, s{sTMP3}, 11")
    A(f"v_add_u32 v{vTMP3}, s{sTMP}, v{vL16}")
    for i in range(2):
        A(f"global_load_dwordx4 v[{vXr+4*i}:{vXr+4*i+3}], v{vTMP3}, s[{sX}:{sX+1}] offset:{1024*i}")
        A(f"global_load_dwordx4 v[{vGWr+4*i}:{vGWr+4*i+3}], v{vL16}, s[{sGW}:{sGW+1}] offset:{1024*i}")
    A(f"v_mov_b32 v{vACC2}, 0")
    A("s_waitcnt vmcnt(0)")
    for i in range(8):
        A(f"v_lshlrev_b32 v{vW}, 16, v{vXr+i}")
        A(f"v_and_b32 v{vW+1}, 0xffff0000, v{vXr+i}")
        A(f"v_lshlrev_b32 v{vW+2}, 16, v{vGWr+i}")
        A(f"v_and_b32 v{vW+3}, 0xffff0000, v{vGWr+i}")
        A(f"v_mul_f32 v{vW}, v{vW}, v{vW+2}")
        A(f"v_mul_f32 v{vW+1}, v{vW+1}, v{vW+3}")
        A(f"v_cvt_pk_bf16_f32 v{vW}, v{vW}, v{vW+1}")
        A(f"v_lshlrev_b32 v{vW+1}, 16, v{vW}")
        A(f"v_and_b32 v{vW}, 0xffff0000, v{vW}")
        A(f"v_add_f32 v{vACC2}, v{vACC2}, v{vW+1}")
        A(f"v_add_f32 v{vACC2}, v{vACC2}, v{vW}")
    for off in (0x041F, 0x081F, 0x101F, 0x201F, 0x401F):
        A(f"ds_swizzle_b32 v{vW}, v{vACC2} offset:{off:#x}")
        A("s_waitcnt lgkmcnt(0)")
        A(f"v_add_f32 v{vACC2}, v{vACC2}, v{vW}")
    A(f"v_mov_b32 v{vW}, v{vACC2}")
    A("s_nop 1")
    A(f"v_permlane32_swap_b32 v{vACC2}, v{vW}")
    A(f"v_add_f32 v{vACC2}, v{vACC2}, v{vW}")
    def rbf(v):
        A(f"v_cvt_pk_bf16_f32 v{v}, v{v}, v{v}")
        A(f"v_and_b32 v{v}, 0xffff0000, v{v}")
    rbf(vACC2)
    A(f"v_mul_f32 v{vACC2}, 0xbfb8aa3b, v{vACC2}")
    A(f"v_exp_f32 v{vACC2}, v{vACC2}")
    A("s_nop 0")
    A(f"v_add_f32 v{vACC2}, 1.0, v{vACC2}")
    A(f"v_rcp_f32 v{vACC2}, v{vACC2}")
    A("s_nop 0")
    rbf(vACC2)
    A(f"s_lshl_b32 s{sTMP}, s{sTMP3}, 2")
    A(f"v_add_u32 v{vTMP2}, s{sTMP}, v9")
    A("s_mov_b64 exec, 1")
    A(f"ds_write_b32 v{vTMP2}, v{vACC2} offset:{F_G}")
    A("s_mov_b64 exec, -1")
    A("L_nogate:")
    A(f"s_lshl2_add_u32 s{sTMP}, s{sBB}, s{sG}")
    A(f"s_lshl3_add_u32 s{sTMP}, s{sTMP}, s{sC}")
    A(f"s_lshl_b32 s{sTMP}, s{sTMP}, 11")
    ws_addr(sGA, WS_QP, sTMP)
    A(f"v_bfe_u32 v{vTMP2}, v0, 2, 2")
    A(f"v_and_b32 v{vTMP3}, 3, v0")
    A(f"v_lshl_add_u32 v{vTMP2}, v{vTMP2}, 3, v{vTMP3}")
    A(f"v_lshlrev_b32 v{vWA}, 8, v{vTMP2}")
    A(f"v_lshrrev_b32 v{vTMP2}, 5, v0")
    A(f"v_and_b32 v{vTMP3}, 7, v0")
    A(f"v_xor_b32 v{vTMP2}, v{vTMP2}, v{vTMP3}")
    A(f"v_lshl_or_b32 v{vWA}, v{vTMP2}, 5, v{vWA}")
    A(f"v_and_b32 v{vTMP2}, 16, v0")
    A(f"s_lshl_b32 s{sTMP}, s{sC}, 13")
    A(f"v_add3_u32 v{vWA}, v{vWA}, v{vTMP2}, s{sTMP}")
    vQA, vMX, vPA = vW, vW + 1, vW + 2
    A(f"v_and_b32 v{vQA}, 30, v0")
    A(f"v_lshlrev_b32 v{vQA}, 6, v{vQA}")
    A(f"v_and_b32 v{vTMP2}, 1, v0")
    A(f"v_lshl_or_b32 v{vQA}, v{vTMP2}, 3, v{vQA}")
    A(f"v_lshrrev_b32 v{vTMP2}, 5, v0")
    A(f"v_lshl_or_b32 v{vQA}, v{vTMP2}, 2, v{vQA}")
    A(f"s_lshl_b32 s{sTMP}, s{sC}, 4")
    A(f"s_add_u32 s{sTMP}, s{sTMP}, {QF}")
    A(f"v_add_u32 v{vQA}, s{sTMP}, v{vQA}")
    A(f"v_lshl_add_u32 v{vMX}, v{vTMP3}, 2, v9")
    A(f"s_lshl_b32 s{sTMP}, s{sC}, 9")
    A(f"s_add_u32 s{sTMP}, s{sTMP}, {PF}")
    A(f"v_add_u32 v{vPA}, s{sTMP}, v{vACT}")
    vOTP, vOTA = vRW, vRR
    A(f"v_lshrrev_b32 v{vTMP3}, 4, v0")
    A(f"v_and_b32 v{vTMP2}, 7, v0")
    A(f"v_lshlrev_b32 v{vSTW}, 8, v{vTMP2}")
    A(f"v_lshl_or_b32 v{vSTW}, v{vTMP3}, 3, v{vSTW}")
    A(f"s_lshl_b32 s{sTMP}, s{sC}, 5")
    A(f"s_add_u32 s{sTMP}, s{sTMP}, {ST}")
    A(f"v_add_u32 v{vSTW}, s{sTMP}, v{vSTW}")
    A(f"v_add_u32 v{vSTR}, {ST}, v{vL16}")
    A(f"v_and_b32 v{vPUB}, 0x1f0, v{vL16}")
    A(f"v_and_b32 v{vTMP2}, 32, v0")
    A(f"v_lshl_or_b32 v{vPUB}, v{vTMP2}, 9, v{vPUB}")
    A(f"s_and_b32 s{sTMP}, s{sC}, 1")
    A(f"s_lshl_b32 s{sTMP}, s{sTMP}, 4")
    A(f"v_lshl_or_b32 v{vTMP3}, v{vTMP3}, 2, s{sTMP}")
    tagbits(vOTP, vTMP3)
    A(f"v_sub_u32 v{vOTA}, s{sM3}, v{vOTP}")
    if opt.qhint: cwait(F_QRDY, 1, sleep=1)
    else: wait_prog(False, opt.qgate, sleep=1)
    stamp(3)
    def kfrags():
        A(f"s_add_u32 s{sTMP2}, s{sC}, 5")
        wait_prog(True, sTMP2)
        for db in range(4):
            if db: A(f"v_xor_b32 v{vAA}, {64*db}, v{vWA}")
            a = vAA if db else vWA
            A(f"ds_read_b128 v[{vK+4*db}:{vK+4*db+3}], v{a}")
            A(f"ds_read_b128 v[{vK+16+4*db}:{vK+16+4*db+3}], v{a} offset:1024")
        signal(F_FREE1)
        A(f"v_add_u32 v{vAA}, {QF}, v{vACT}")
    setsca(LQ)
    def qwork(i): acc(i, vS0, i == 0)
    gather(nld=4, mid=kfrags, cntstamp=11, sleep=opt.qsleep, work=qwork)
    stamp(4)
    A("s_nop 1")
    A(f"v_permlane32_swap_b32 v{vS0}, v{vS0+2}")
    A(f"v_permlane32_swap_b32 v{vS0+1}, v{vS0+3}")
    A(f"v_add_f32 v{vS0}, v{vS0}, v{vS0+2}")
    A(f"v_add_f32 v{vS0+1}, v{vS0+1}, v{vS0+3}")
    A(f"v_cvt_pk_bf16_f32 v{vGA}, v{vS0}, v{vS0+1}")
    A(f"ds_write_b32 v{vQA}, v{vGA}")
    signal(F_BQ)
    A(f"s_lshl_b32 s{sTMP}, s{sG}, 5")
    A(f"s_add_u32 s{sTMP}, s{sTMP}, s{sBB}")
    A(f"s_lshl2_add_u32 s{sTMP}, s{sTMP}, s{sSPL}")
    A(f"s_lshl_b32 s{sTMP}, s{sTMP}, 9")
    ws_addr(sGA, WS_OP, sTMP)
    A(f"s_lshl2_add_u32 s{sTMP3}, s{sBB}, s{sSPL}")
    A(f"s_mul_i32 s{sTMP}, s{sG}, {32*CS}")
    ws_addr(sGB, WS_OC, sTMP)
    A(f"s_lshl_b32 s{sTMP}, s{sG}, 5")
    A(f"s_add_u32 s{sTMP}, s{sTMP}, s{sTMP3}")
    A(f"s_lshl_b32 s{sTMP}, s{sTMP}, 6")
    ws_addr(sFA, WS_LSE, sTMP)
    cbits = struct.unpack("<I", struct.pack("<f", math.log2(math.e) / math.sqrt(128.0)))[0]
    A(f"s_mov_b32 s{sTMP2}, {cbits:#x}")
    if STAMP == 1: A("s_waitcnt lgkmcnt(0)")
    if opt.spec: cwait_rd(F_BQ, 8, 4, lambda: actreads(4))
    else:
        cwait(F_BQ, 8); actreads(4)
    for db in range(4):
        A(f"s_waitcnt lgkmcnt({3-db})")
        c0 = "0" if db == 0 else f"v[{vACC}:{vACC+3}]"
        c1 = "0" if db == 0 else f"v[{vACC2}:{vACC2+3}]"
        A(f"v_mfma_f32_16x16x32_bf16 v[{vACC}:{vACC+3}], v[{vK+4*db}:{vK+4*db+3}], v[{vQ+4*db}:{vQ+4*db+3}], {c0}")
        A(f"v_mfma_f32_16x16x32_bf16 v[{vACC2}:{vACC2+3}], v[{vK+16+4*db}:{vK+16+4*db+3}], v[{vQ+4*db}:{vQ+4*db+3}], {c1}")
    A(f"v_add_u32 v{vAA}, {PF}, v{vACT}")
    A(f"v_add_u32 v{vWA}, {RB}, v{vTR}")
    vONES = vGA
    for r in range(4): A(f"v_mov_b32 v{vONES+r}, 0x3f803f80")
    A("s_nop 1")
    A(f"v_max3_f32 v{vTMP2}, v{vACC}, v{vACC+1}, v{vACC+2}")
    A(f"v_max3_f32 v{vTMP2}, v{vTMP2}, v{vACC+3}, v{vACC2}")
    A(f"v_max3_f32 v{vTMP2}, v{vTMP2}, v{vACC2+1}, v{vACC2+2}")
    A(f"v_max_f32 v{vTMP2}, v{vTMP2}, v{vACC2+3}")
    A("s_mov_b32 exec_lo, 0x00ff00ff\ns_mov_b32 exec_hi, 0x00ff00ff")
    A(f"ds_max_f32 v{vMX}, v{vTMP2} offset:{F_MAX}")
    signal(F_BM)
    vM = vLS
    cwait_rd(F_BM, 8, 1, lambda: A(f"ds_read_b32 v{vM}, v{vMX} offset:{F_MAX}"))
    if opt.olead >= 0 and opt.oearly:
        A(f"ds_read_b32 v{vTMP}, v9 offset:{F_PROG}")
    A("s_waitcnt lgkmcnt(0)")
    A(f"s_mov_b32 s{sWDN}, 0")
    if opt.olead >= 0 and opt.oearly:
        A(f"v_readfirstlane_b32 s{sPROG}, v{vTMP}")
        A(f"s_cmp_lt_u32 s{sPROG}, {20 - opt.olead}")
        A("s_cbranch_scc1 L_of_no1")
        flag_now("q")
        A(f"s_mov_b32 s{sWDN}, 1")
        A("L_of_no1:")
    A(f"v_mul_f32 v{vM}, s{sTMP2}, v{vM}")
    for r in range(8):
        A(f"v_fma_f32 v{vACC+r}, v{vACC+r}, s{sTMP2}, -v{vM}")
    for r in range(8):
        A(f"v_exp_f32 v{vACC+r}, v{vACC+r}")
    A("s_nop 0")
    for r in range(4):
        A(f"v_cvt_pk_bf16_f32 v{vB+r}, v{vACC+2*r}, v{vACC+2*r+1}")
    A(f"ds_write_b128 v{vPA}, v[{vB}:{vB+3}]")
    signal(F_BP)
    if opt.spec: cwait_rd(F_BP, 8, 8, lambda: actreads(8))
    else:
        cwait(F_BP, 8); actreads(8)
    A(f"ds_read_b32 v{vTMP}, v9 offset:{F_PROG}")
    for kb in range(8):
        A(f"s_waitcnt lgkmcnt({8-kb})")
        c1 = "0" if kb == 0 else f"v[{vACC2}:{vACC2+3}]"
        A(f"v_mfma_f32_16x16x32_bf16 v[{vACC2}:{vACC2+3}], v[{vONES}:{vONES+3}], v[{vQ+4*kb}:{vQ+4*kb+3}], {c1}")
    A("s_waitcnt lgkmcnt(0)")
    A(f"v_readfirstlane_b32 s{sPROG}, v{vTMP}")
    stamp(5)
    vRL = vLS + 2
    def lse_part():
        A(f"v_log_f32 v{vLS+1}, v{vACC2}")
        A(f"v_rcp_f32 v{vRL}, v{vACC2}")
        A("s_nop 0")
        A(f"v_mul_f32 v{vRL+1}, {fbits(2.0**LO_ * ADJ):#x}, v{vRL}")
        A(f"v_mul_f32 v{vRL}, {fbits(2.0**LO_):#x}, v{vRL}")
        d = g.lab("L_nolse")
        A(f"s_cmp_lg_u32 s{sC}, 0")
        A(f"s_cbranch_scc1 {d}")
        A(f"v_add_f32 v{vM}, v{vM}, v{vLS+1}")
        A(f"v_mov_b32 v{vLS+1}, s{sT}")
        A(f"v_lshlrev_b32 v{vTMP2}, 3, v0")
        A("s_mov_b64 exec, 0xff")
        if not (opt.dbg & 1):
            A(f"global_store_dwordx2 v{vTMP2}, v[{vLS}:{vLS+1}], s[{sFA}:{sFA+1}] sc1")
            if opt.lcnt:
                A(f"s_bfm_b64 exec, {NREP}, 0")
                A(f"v_mov_b32 v{vTMP2}, 0x10000")
                A(f"global_atomic_add v{vFLG}, v{vTMP2}, s[{sGB}:{sGB+1}] sc1")
        A("s_mov_b64 exec, -1")
        A(f"{d}:")
    A(f"s_cmp_lt_u32 s{sPROG}, 20")
    A("s_cbranch_scc1 L_pv_slow")
    def oflag():
        if opt.olead < 0: return
        d = g.lab("L_of")
        A(f"s_cmp_lg_u32 s{sWDN}, 0")
        A(f"s_cbranch_scc1 {d}")
        flag_now("q")
        A(f"{d}:")
    wreads(0, 7)
    lse_part()
    oflag()
    for kb in range(7):
        A(f"s_waitcnt lgkmcnt({14-2*kb if kb else 12})")
        if kb == 0: wreads(7, 8)
        mf(kb, kb == 0)
    A("s_branch L_pv_last")
    pad("M")
    A("L_pv_slow:")
    A("s_nop 4")
    lse_part()
    for kb in range(8):
        wait_prog(False, 12 + kb + 1)
        wreads(kb, kb+1)
        if 12 + kb + 1 == 20 - opt.olead: oflag()
        if kb:
            A("s_waitcnt lgkmcnt(2)")
            mf(kb-1, kb == 1)
    A("L_pv_last:")
    A("s_waitcnt lgkmcnt(0)")
    mf(7, False)
    A("s_nop 7")
    encode(vRL, vOTP, vOTA)
    A("s_mov_b32 exec_lo, 0x00ff00ff\ns_mov_b32 exec_hi, 0x00ff00ff")
    staged(F_PUB1, 7, 2 << 14, "q" if (opt.olead < 0 and not opt.notif) else None)
    stamp(6)
    if opt.ackst:
        A("s_waitcnt vmcnt(0)"); stamp(3)
    A(f"s_and_b32 s{sTMP2}, s{sR}, 1")
    A(f"s_lshl_b32 s{sTMP2}, s{sTMP2}, 4")
    A(f"v_and_b32 v{vTMP2}, 12, v0")
    A(f"v_add3_u32 v{vTMP2}, v{vTMP2}, s{sTMP2}, v9")
    A(f"ds_read_b32 v{vRG}, v{vTMP2} offset:{F_G}")
    A(f"s_lshl4_add_u32 s{sTMP}, s{sXCD}, s{sR}")
    A(f"s_sub_u32 s{sTMP3}, s{sTMP}, 16")
    A(f"s_lshl3_add_u32 s{sTMP}, s{sTMP3}, s{sC}")
    A(f"s_lshl_b32 s{sTMP}, s{sTMP}, 9")
    ws_addr(sRA, WS_FP, sTMP)
    A(f"v_lshlrev_b32 v{vRR}, 2, v0")
    A(f"v_add_u32 v{vRR}, {RS}, v{vRR}")
    A(f"s_lshl_b32 s{sTMP}, s{sC}, 8")
    A(f"v_add_u32 v{vRW}, s{sTMP}, v{vRR}")
    A(f"v_and_b32 v{vOUT}, 12, v0")
    A(f"v_lshlrev_b32 v{vOUT}, 9, v{vOUT}")
    A(f"v_and_b32 v{vTMP2}, 3, v0")
    A(f"v_lshl_or_b32 v{vOUT}, v{vTMP2}, 3, v{vOUT}")
    A(f"v_lshrrev_b32 v{vTMP2}, 4, v0")
    A(f"v_lshl_or_b32 v{vOUT}, v{vTMP2}, 1, v{vOUT}")
    A(f"s_lshl_b32 s{sTMP2}, s{sTMP2}, 9")
    A(f"s_lshr_b32 s{sTMP3}, s{sTMP3}, 1")
    A(f"s_lshl_b32 s{sTMP3}, s{sTMP3}, 5")
    A(f"s_add_u32 s{sTMP2}, s{sTMP2}, s{sTMP3}")
    A(f"v_add_u32 v{vOUT}, s{sTMP2}, v{vOUT}")
    A("s_waitcnt lgkmcnt(0)")
    A(f"s_cmp_lt_u32 s{sC}, 4")
    A("s_cbranch_scc1 L_wg_done")
    A(f"v_sub_f32 v{vRG}, 1.0, v{vRG}")
    rbf(vRG)
    A("L_wg_done:")
    A(f"v_mul_f32 v{vRG}, {fbits(2.0**-LF):#x}, v{vRG}")
    setsca(LG)
    late_setup(RA, 16, 27)
    A(f"s_add_u32 s{sTMP}, s{sC}, s{sLR}")
    A(f"s_cmp_ge_u32 s{sTMP}, 7")
    A(f"s_cselect_b32 s{sTMP2}, 7, 0")
    A(f"s_sub_u32 s{sTMP}, s{sTMP}, s{sTMP2}")
    A(f"s_add_u32 s{sTMP}, s{sTMP}, s{sKB0}")
    A(f"s_lshl_b32 s{sTMP}, s{sTMP}, 11")
    ws_addr(sGA, WS_GP, sTMP)
    for r in range(4): A(f"v_mov_b32 v{vS0+r}, 0")
    late_wait()
    A(f"s_cmp_eq_u32 s{sC}, 7")
    A("s_cbranch_scc1 L_late")
    stamp(7)
    def rnd4(v):
        A(f"v_cvt_pk_bf16_f32 v{vB}, v{v}, v{v+1}")
        A(f"v_cvt_pk_bf16_f32 v{vB+1}, v{v+2}, v{v+3}")
        for h in range(2):
            A(f"v_lshlrev_b32 v{v+2*h}, 16, v{vB+h}")
            A(f"v_and_b32 v{v+2*h+1}, 0xffff0000, v{vB+h}")
    def hwork(i):
        if i == 2: late_post_issue()
        if i == 3: late_post()
        acc(i, vS0 if i < 2 else vS1, i in (0, 2))
        if i == 1:
            for r in range(4): A(f"v_max_f32 v{vS0+r}, 0, v{vS0+r}")
            if opt.hround: rnd4(vS0)
        if i == 3:
            if opt.hround: rnd4(vS1)
            for r in (0, 2): A(f"v_pk_mul_f32 v[{vS0+r}:{vS0+r+1}], v[{vS0+r}:{vS0+r+1}], v[{vS1+r}:{vS1+r+1}]")
    gather(mid=late_mid, cntstamp=13, sleep=opt.gsleep, work=hwork)
    stamp(8)

    if opt.touch: A("s_branch L_late")
    pad("A")
    A("L_late:")
    A(f"v_cvt_pk_bf16_f32 v{vGA}, v{vS0}, v{vS0+1}")
    A(f"v_cvt_pk_bf16_f32 v{vGA+1}, v{vS0+2}, v{vS0+3}")
    A(f"ds_write_b64 v{vAFW}, v[{vGA}:{vGA+1}]")
    if opt.lflow == 1:
        signal(F_BA)
        if opt.fine: stamp(3)
        A(f"s_cmp_eq_u32 s{sWDN}, 99")
        A("s_cbranch_scc1 L_late_bar")
        A("L_late_spin:")
        A(f"ds_read2_b32 v[{vTMP}:{vTMP+1}], v9 offset0:{F_PROG//4} offset1:{F_BA//4}")
        A("s_waitcnt lgkmcnt(0)")
        A(f"v_readfirstlane_b32 s{sPROG}, v{vTMP}")
        A(f"v_readfirstlane_b32 s{sTMP2}, v{vTMP+1}")
        wcatch()
        A(f"s_cmp_eq_u32 s{sWDN}, 99")
        A("s_cbranch_scc1 L_late_bar0")
        A(f"s_cmp_lt_u32 s{sWDN}, 27")
        A("s_cbranch_scc1 L_late_spin")
        A(f"s_cmp_lt_u32 s{sTMP2}, 8")
        A("s_cbranch_scc1 L_late_spin")
        actreads(8, True)
        for kb in range(6):
            A(f"s_waitcnt lgkmcnt({7-kb})")
            mf(kb, kb == 0)
        A("s_barrier")
        wreads(6, 8)
        A("s_waitcnt lgkmcnt(2)")
        mf(6, False)
        A("s_waitcnt lgkmcnt(0)")
        mf(7, False)
        A("s_branch L_late_done")
        pad("A")
        A("L_late_bar:")
        A("s_waitcnt lgkmcnt(0)")
        A("L_late_bar0:")
        A("s_barrier")
        if opt.fine: stamp(4)
        actreads(8, True)
        for kb in range(8):
            A(f"s_waitcnt lgkmcnt({7-kb})")
            mf(kb, kb == 0)
    else:
        if opt.fine: stamp(3)
        A(f"s_cmp_ge_u32 s{sWDN}, {opt.wmin}")
        A("s_cbranch_scc1 L_late_bar")
        wait_prog(False, opt.wmin - 1)
        wcatch()
        A("L_late_bar:")
        A(f"s_cmp_eq_u32 s{sWDN}, 99")
        A("s_waitcnt lgkmcnt(0)")
        A("s_barrier")
        A("s_cbranch_scc1 L_late_act")
        wreads(opt.wmin - 21, 8)
        A("L_late_act:")
        if opt.fine: stamp(4)
        actreads(8, True)
        for kb in range(8):
            A(f"s_waitcnt lgkmcnt({7-kb})")
            mf(kb, kb == 0)
    A("L_late_done:")
    if opt.fine: stamp(5)
    A("s_nop 7")
    publish(vACC, sFA)
    A("s_mov_b64 exec, -1")
    stamp(9)
    A(f"s_cmp_ge_u32 s{sR}, 16")
    A("s_cbranch_scc1 L_red")
    A("s_branch L_exit")
    pad("A")
    A("L_red:")
    A(f"s_mov_b64 s[{sGA}:{sGA+1}], s[{sRA}:{sRA+1}]")
    if opt.fgate: cwait(F_FRDY, 1)
    A(f"v_mov_b32 v{vSCA}, v{vRG}")
    def fwork(i): acc(0, vS0, True)
    gather(nld=1, cntstamp=12, sleep=opt.fgsleep, work=fwork)
    if not opt.stq: stamp(2)
    A("s_nop 1")
    A(f"v_permlane32_swap_b32 v{vS0}, v{vS0+2}")
    A(f"v_permlane32_swap_b32 v{vS0+1}, v{vS0+3}")
    A(f"v_add_f32 v{vS0}, v{vS0}, v{vS0+2}")
    A(f"v_add_f32 v{vS0+1}, v{vS0+1}, v{vS0+3}")
    A("s_nop 1")
    A(f"v_permlane16_swap_b32 v{vS0}, v{vS0+1}")
    A(f"v_add_f32 v{vGA}, v{vS0}, v{vS0+1}")
    A(f"ds_write_b32 v{vRW}, v{vGA}")
    A("s_mov_b64 exec, 1")
    A(f"ds_add_rtn_u32 v{vTMP}, v9, v{vONE} offset:{F_RED}")
    A("s_mov_b64 exec, -1")
    for i in range(4):
        A(f"ds_read2st64_b32 v[{vGA+2*i}:{vGA+2*i+1}], v{vRR} offset0:{2*i} offset1:{2*i+1}")
    A("s_waitcnt lgkmcnt(4)")
    A(f"v_readfirstlane_b32 s{sTMP}, v{vTMP}")
    A(f"s_cmp_lg_u32 s{sTMP}, 7")
    A("s_cbranch_scc1 L_exit")
    A("s_waitcnt lgkmcnt(0)")
    A(f"v_pk_add_f32 v[{vGA}:{vGA+1}], v[{vGA}:{vGA+1}], v[{vGA+2}:{vGA+3}]")
    A(f"v_pk_add_f32 v[{vGA+4}:{vGA+5}], v[{vGA+4}:{vGA+5}], v[{vGA+6}:{vGA+7}]")
    A(f"v_pk_add_f32 v[{vGA}:{vGA+1}], v[{vGA}:{vGA+1}], v[{vGA+4}:{vGA+5}]")
    A(f"v_add_f32 v{vGA}, v{vGA}, v{vGA+1}")
    A(f"v_cvt_pk_bf16_f32 v{vGA}, v{vGA}, v{vGA}")
    A(f"global_store_short v{vOUT}, v{vGA}, s[{sOUT}:{sOUT+1}] {opt.outflags}")
    A(f"s_cmp_lg_u32 s2, 128")
    A("s_cbranch_scc1 L_noepoch")
    A("s_mov_b64 exec, 1")
    A(f"v_mov_b32 v{vTMP}, 0")
    A(f"global_store_dword v{vTMP}, v{vT}, s[{sWS}:{sWS+1}] sc1")
    A("s_mov_b64 exec, -1")
    A("L_noepoch:")
    if opt.fixdur:
        A(f"s_cmp_lg_u32 s2, {opt.fixwg}")
        A("s_cbranch_scc1 L_nofix")
        A("L_fixd:")
        A("s_memrealtime s[14:15]")
        A("s_waitcnt lgkmcnt(0)")
        A("s_sub_u32 s14, s14, s98")
        A(f"s_cmp_lt_u32 s14, {opt.fixdur}")
        A("s_cbranch_scc1 L_fixd")
        A("L_nofix:")
    if STAMP:
        A("s_waitcnt vmcnt(0)")
        stamp(1, True)
    A("s_branch L_exit")

    pad("A")
    A("L_wcatch:")
    for kb in range(8):
        nx = f"L_wcn{kb}"
        if kb < 7:
            A(f"s_cmp_gt_u32 s{sWDN}, {21+kb}")
            A(f"s_cbranch_scc1 {nx}")
        if kb:
            A(f"s_cmp_lt_u32 s{sPROG}, s{sWDN}")
            A("s_cbranch_scc1 L_wcret")
        wreads(kb, kb+1)
        if kb < 6: A(f"s_mov_b32 s{sWDN}, {22+kb}")
        elif kb == 6: A(f"s_mov_b32 s{sWDN}, s{sPE}")
        else: A(f"s_mov_b32 s{sWDN}, 99")
        if kb < 7: A(f"{nx}:")
    A("L_wcret:")
    A(f"s_setpc_b64 s[{sRET}:{sRET+1}]")

    A("L_encs:")
    A(f"v_lshrrev_b32 v{vTMP}, 23, v{vTMP}")
    A(f"v_subrev_u32 v{vTMP}, 126, v{vTMP}")
    A(f"v_ashrrev_i32 v{vTMP}, 4, v{vTMP}")
    A(f"v_med3_i32 v{vTMP}, v{vTMP}, -8, 7")
    A(f"v_cndmask_b32 v{vTMP}, 0, v{vTMP}, vcc")
    A(f"v_and_b32 v{vAX}, 15, v{vTMP}")
    A(f"v_lshl_or_b32 v{vAX}, v{vAX}, 14, v{vAX}")
    A(f"v_and_b32 v{vAX}, s{sM3}, v{vAX}")
    A(f"v_mul_i32_i24 v{vTMP}, -16, v{vTMP}")
    for r in range(4): A(f"v_ldexp_f32 v{vACC+r}, v{vACC+r}, v{vTMP}")
    A("s_mov_b64 vcc, 0")
    A("s_setpc_b64 s[6:7]")
    A("L_fix:")
    for i in range(4):
        A(f"v_and_b32 v{vTMP}, 3, v{vGA+2*i}")
        A(f"v_bfe_i32 v{vTMP2}, v{vGA+2*i}, 16, 2")
        A(f"v_lshl_or_b32 v{vTMP}, v{vTMP2}, 2, v{vTMP}")
        A(f"v_lshlrev_b32 v{vTMP}, 4, v{vTMP}")
        A(f"v_ldexp_f32 v{vSCA+i}, v{vSCA+i}, v{vTMP}")
    A("s_setpc_b64 s[6:7]")

    if opt.notif:
        A("L_notif:")
        if opt.nocomm: A("s_branch L_exit")
        A(f"s_cmp_eq_u32 s{sROLE}, 2")
        A("s_cbranch_scc1 L_exit")
        A(f"s_cmp_ge_u32 s{sR}, 16")
        A("s_cbranch_scc1 L_notifM")
        hc_addr()
        wait_prog(False, opt.nprogh - 1, sleep=2)
        wait_prog(False, opt.nprogh)
        if opt.ndelay: A(f"s_sleep {opt.ndelay}")
        bump("h")
        A("s_branch L_exit")
        A("L_notifM:")
        A(f"s_mul_i32 s{sTMP}, s{sG}, {32*CS}")
        ws_addr(sGB, WS_OC, sTMP)
        cwait(F_BP, 8, sleep=2)
        if opt.pdelay: A(f"s_sleep {opt.pdelay}")
        wait_prog(False, opt.nprogo - 1, sleep=2)
        wait_prog(False, opt.nprogo)
        if opt.ndelay + opt.odelay: A(f"s_sleep {opt.ndelay + opt.odelay}")
        bump("q")
        A("s_branch L_exit")

    A("L_poller:")
    if opt.nocomm: A("s_branch L_exit")
    A(f"s_cmp_ge_u32 s{sR}, 16")
    A("s_cbranch_scc1 L_pollM")
    A(f"s_lshl3_add_u32 s{sTMP}, s{sRBK}, s{sCB}")
    A(f"s_and_b32 s{sTMP}, s{sTMP}, {NREP-1}")
    A(f"s_lshl_b32 s{sTMP2}, s{sG}, 5")
    A(f"s_add_u32 s{sTMP}, s{sTMP}, s{sTMP2}")
    A(f"s_mul_i32 s{sTMP}, s{sTMP}, {CS}")
    ws_addr(sGB, WS_OC, sTMP)
    A(f"s_load_dword s4, s[{sGB}:{sGB+1}], 0 glc")
    A(f"s_and_b32 s{sTMP}, s{sRBK}, 3")
    A(f"s_lshl_b32 s{sTMP}, s{sTMP}, 4")
    A(f"s_lshl_b32 s{sTMP2}, s{sG}, 11")
    A(f"s_add_u32 s{sTMP}, s{sTMP}, s{sTMP2}")
    ws_addr(sGA, WS_LSE, sTMP)
    A(f"v_and_b32 v{vTMP3}, 31, v0")
    A(f"v_lshlrev_b32 v{vTMP3}, 6, v{vTMP3}")
    A(f"v_lshrrev_b32 v{vTMP2}, 5, v0")
    A(f"v_lshl_or_b32 v{vTMP3}, v{vTMP2}, 3, v{vTMP3}")
    A("s_waitcnt lgkmcnt(0)")
    A(f"v_lshl_add_u32 v{vWA}, v0, 2, v9")
    A(f"s_cmp_eq_u32 s{sROLE}, 2")
    A(f"s_cselect_b32 s{sTMP2}, {opt.ogatec}, {opt.ogate}")
    A(f"s_add_u32 s5, s4, {0x200020 if opt.lcnt else 32}")
    for k, l in touch:
        if k in "AB": A(f"s_call_b64 s[6:7], {l}")
    wait_prog(True, sTMP2, sleep=2)
    stamp(2)
    if not (opt.dbg & 7):
        A(f"s_mov_b32 s{sCNT}, 0")
        if opt.psleep: A("s_branch L_pl1e")
        A("L_pl1:")
        if opt.psleep:
            A(f"s_sleep {opt.psleep}")
            A("L_pl1e:")
        A(f"s_load_dword s8, s[{sGB}:{sGB+1}], 0 glc")
        A(f"s_add_u32 s{sCNT}, s{sCNT}, 1")
        A(f"s_cmp_gt_u32 s{sCNT}, {opt.maxhint}")
        A("s_waitcnt lgkmcnt(0)")
        A("s_cbranch_scc1 L_pl1d")
        A("s_sub_u32 s9, s8, s4")
        A(f"s_cmp_lt_u32 s9, {0x200000 if opt.lcnt else opt.lthr}")
        A("s_cbranch_scc1 L_pl1")
        A("L_pl1d:")
        stampval(10, sCNT)
    stamp(3)
    A("s_mov_b32 s9, 0")
    A(f"s_mov_b32 s{sTMP3}, 0")
    A("L_lse:")
    if not (opt.dbg & 2): A(f"global_load_dwordx2 v[{vLS}:{vLS+1}], v{vTMP3}, s[{sGA}:{sGA+1}] sc1")
    if not (opt.dbg & 7):
        A("s_cmp_lg_u32 s9, 0")
        A("s_cbranch_scc1 L_lse_wait")
        A("L_pl2:")
        A("s_cmp_eq_u32 s8, s5")
        A("s_cbranch_scc1 L_pl_sig")
        A(f"s_cmp_gt_u32 s{sCNT}, {opt.maxhint}")
        A("s_cbranch_scc1 L_pl_sig")
        A("s_getreg_b32 s10, hwreg(HW_REG_IB_STS, 0, 4)")
        A("s_cmp_eq_u32 s10, 0")
        A("s_cbranch_scc1 L_lse_wait")
        A(f"s_load_dword s8, s[{sGB}:{sGB+1}], 0 glc")
        A(f"s_add_u32 s{sCNT}, s{sCNT}, 1")
        A("s_waitcnt lgkmcnt(0)")
        A("s_branch L_pl2")
        A("L_pl_sig:")
        signal(F_LRDY)
        A("s_mov_b32 s9, 1")
        stamp(5)
    A("L_lse_wait:")
    if not (opt.dbg & 7):
        A(f"s_load_dword s8, s[{sGB}:{sGB+1}], 0 glc")
    A(f"s_add_u32 s{sTMP3}, s{sTMP3}, 1")
    A("s_waitcnt vmcnt(0)")
    A(f"v_cmp_ne_u32 vcc, s{sT}, v{vLS+1}")
    A(f"s_cbranch_vccz L_lsed")
    A(f"s_cmp_le_u32 s{sTMP3}, {0 if (opt.dbg & 7) else opt.maxpoll}")
    A("s_waitcnt lgkmcnt(0)")
    A(f"s_cbranch_scc1 L_lse")
    A("L_lsed:")
    stampval(12, sTMP3)
    A(f"v_max_f32_dpp v{vTMP}, v{vLS}, v{vLS} quad_perm:[1,0,3,2] row_mask:0xf bank_mask:0xf")
    A("s_nop 1")
    A(f"v_max_f32_dpp v{vTMP}, v{vTMP}, v{vTMP} quad_perm:[2,3,0,1] row_mask:0xf bank_mask:0xf")
    A(f"v_sub_f32 v{vLS}, v{vLS}, v{vTMP}")
    A(f"v_exp_f32 v{vLS}, v{vLS}")
    A("s_nop 1")
    A(f"v_add_f32_dpp v{vTMP}, v{vLS}, v{vLS} quad_perm:[1,0,3,2] row_mask:0xf bank_mask:0xf")
    A("s_nop 1")
    A(f"v_add_f32_dpp v{vTMP}, v{vTMP}, v{vTMP} quad_perm:[2,3,0,1] row_mask:0xf bank_mask:0xf")
    A(f"v_rcp_f32 v{vTMP}, v{vTMP}")
    A("s_nop 0")
    A(f"v_mul_f32 v{vLS}, v{vLS}, v{vTMP}")
    A(f"v_mul_f32 v{vLS}, {fbits(2.0**-LO_):#x}, v{vLS}")
    A(f"ds_write_b32 v{vWA}, v{vLS} offset:{F_WT}")
    signal(F_WRDY)
    stamp(4)
    if not (opt.dbg & 7):
        A("s_cmp_lg_u32 s9, 0")
        A("s_cbranch_scc1 L_pl_fin")
        A("s_waitcnt lgkmcnt(0)")
        A("s_cmp_eq_u32 s8, s5")
        A("s_cbranch_scc1 L_pl_sig2")
    pollcnt(sGB, 5, opt.psleep, cntstamp=11)
    A("L_pl_sig2:")
    signal(F_LRDY)
    stamp(5)
    A("L_pl_fin:")
    A("s_barrier")
    A("s_branch L_exit")
    A("L_pollM:")
    A(f"s_lshl2_add_u32 s{sTMP}, s{sBB}, s{sSPL}")
    A(f"s_lshr_b32 s{sTMP}, s{sTMP}, {int(math.log2(32//NREP))}")
    A(f"s_lshl_b32 s{sTMP2}, s{sG}, 5")
    A(f"s_add_u32 s{sTMP}, s{sTMP}, s{sTMP2}")
    A(f"s_mul_i32 s{sTMP}, s{sTMP}, {CS}")
    ws_addr(sGB, WS_QC, sTMP)
    if opt.qhint: A(f"s_load_dword s4, s[{sGB}:{sGB+1}], 0 glc")
    A(f"s_mul_i32 s{sTMP}, s{sRBK}, {HREP}")
    A(f"s_and_b32 s{sTMP2}, s{sCB}, {HREP-1}")
    A(f"s_add_u32 s{sTMP}, s{sTMP}, s{sTMP2}")
    A(f"s_mul_i32 s{sTMP}, s{sTMP}, {CS}")
    ws_addr(sGA, WS_HC, sTMP)
    A(f"s_load_dword s5, s[{sGA}:{sGA+1}], 0 glc")
    if opt.fgate:
        A(f"s_and_b32 s{sTMP}, s{sR}, {opt.frep-1}")
        A(f"s_lshl4_add_u32 s{sTMP}, s{sXCD}, s{sTMP}")
        A(f"s_mul_i32 s{sTMP}, s{sTMP}, {CS}")
        ws_addr(10, WS_FC, sTMP)
        A(f"s_load_dword s6, s[10:11], 0 glc")
    A(f"s_bitcmp1_b32 s{sKB0}, 1")
    A(f"s_cselect_b32 s{sTMP}, 12, 8")
    A("s_waitcnt lgkmcnt(0)")
    if opt.fgate: A("s_add_u32 s6, s6, 32")
    A("s_add_u32 s4, s4, 64")
    A(f"s_add_u32 s5, s5, s{sTMP}")
    if opt.fgate: A("s_mov_b32 s9, s6")
    for k, l in touch:
        if k in "AM": A(f"s_call_b64 s[6:7], {l}")
    if opt.qhint:
        wait_prog(False, opt.qgate, sleep=2)
        stamp(2)
        pollcnt(sGB, 4, opt.psleep, cntstamp=10)
        signal(F_QRDY)
        stamp(3)
    wait_prog(False, opt.hgate, sleep=2)
    stamp(4)
    pollcnt(sGA, 5, opt.psleep, cntstamp=11)
    signal(F_LRDY)
    stamp(5)
    A("s_barrier")
    if opt.fgate:
        stamp(6)
        pollcnt(10, 9, 0, cntstamp=12)
        signal(F_FRDY)
        stamp(7)

    A("L_exit:")
    if STAMP:
        A("s_waitcnt lgkmcnt(0)")
        A(f"s_mul_i32 s{sTMP}, s2, {NWAVES}")
        A(f"s_add_u32 s{sTMP}, s{sTMP}, s3")
        A(f"s_lshl_b32 s{sTMP}, s{sTMP}, 6")
        A(f"s_add_u32 s{sTMP}, s{sTMP}, {WS_STAMP}")
        A(f"v_mov_b32 v1, s{sTMP}")
        A("s_mov_b64 exec, 1")
        for i in range(NST if STAMP == 1 else 10):
            A(f"v_mov_b32 v2, s{sST+2*i}")
            A(f"global_store_dword v1, v2, s[{sWS}:{sWS+1}] offset:{4*i}")
        A(f"v_mov_b32 v2, s{sROLE}")
        A(f"global_store_dword v1, v2, s[{sWS}:{sWS+1}] offset:60")
    A("L_end:")
    A("s_endpgm")

    body = "\n".join(g.o)
    PADTXT = f".p2align 12\n.fill {opt.pad//4}, 4, 0xbf810000\n" if opt.pad >= 0 else ""
    txt = HEADER
    txt += f"; @launch grid=(256,1,1) block=({64*NWAVES},1,1) lds={LDS_BYTES}\n"
    txt += f""".amdgcn_target "amdgcn-amd-amdhsa--gfx950"
.text
.globl {KNAME}
{PADTXT}.p2align 8
.type {KNAME},@function
{KNAME}:
{body}
.section .rodata,"a"
.p2align 6
.amdhsa_kernel {KNAME}
  .amdhsa_next_free_vgpr {NV}
  .amdhsa_next_free_sgpr 102
  .amdhsa_accum_offset {NV}
  .amdhsa_group_segment_fixed_size 0
  .amdhsa_kernarg_size 104
  .amdhsa_user_sgpr_count 2
  .amdhsa_user_sgpr_kernarg_segment_ptr 1
  .amdhsa_system_sgpr_workgroup_id_x 1
.end_amdhsa_kernel
"""
    return txt

def parse(argv):
    ap = argparse.ArgumentParser()
    ap.add_argument("--nt", default="nt")
    ap.add_argument("--pb", default="28:20")
    ap.add_argument("--pc", default="4:20,d,3:4,5:12")
    ap.add_argument("--pm", default="20:24,7:20")
    ap.add_argument("--nb0", type=int, default=3)
    ap.add_argument("--stamp", type=int, default=0)
    ap.add_argument("--stq", type=int, default=0)
    ap.add_argument("--fdelay", type=int, default=0)
    ap.add_argument("--qgate", type=int, default=9)
    ap.add_argument("--ogate", type=int, default=19)
    ap.add_argument("--ogatec", type=int, default=26)
    ap.add_argument("--hgate", type=int, default=19)
    ap.add_argument("--ggate", type=int, default=4)
    ap.add_argument("--maxpoll", type=int, default=100000)
    ap.add_argument("--psleep", type=int, default=0)
    ap.add_argument("--fsleep", type=int, default=2)
    ap.add_argument("--gsleep", type=int, default=0)
    ap.add_argument("--fgsleep", type=int, default=0)
    ap.add_argument("--sample", type=int, default=0)
    ap.add_argument("--outflags", default="sc1")
    ap.add_argument("--fixdur", type=int, default=0)
    ap.add_argument("--fixwg", type=int, default=128)
    ap.add_argument("--nocomm", type=int, default=0)
    ap.add_argument("--dbg", type=int, default=0)
    ap.add_argument("--cpf", type=int, default=2)
    ap.add_argument("--qlead", type=int, default=-1)
    ap.add_argument("--hlead", type=int, default=-1)
    ap.add_argument("--olead", type=int, default=-1)
    ap.add_argument("--oearly", type=int, default=0)
    ap.add_argument("--flagwave", type=int, default=1)
    ap.add_argument("--xgat", type=int, default=8)
    ap.add_argument("--nrep", type=int, default=8)
    ap.add_argument("--satom", type=int, default=1)
    ap.add_argument("--maxhint", type=int, default=12)
    ap.add_argument("--hround", type=int, default=0)
    ap.add_argument("--fgate", type=int, default=0)
    ap.add_argument("--frep", type=int, default=8)
    ap.add_argument("--flag_delay", type=int, default=0)
    ap.add_argument("--qhint", type=int, default=0)
    ap.add_argument("--qsleep", type=int, default=4)
    ap.add_argument("--lcnt", type=int, default=0)
    ap.add_argument("--lthr", type=int, default=16)
    ap.add_argument("--spec", type=int, default=0)
    ap.add_argument("--ackst", type=int, default=0)
    ap.add_argument("--cstride", type=int, default=4352)
    ap.add_argument("--midahead", type=int, default=1)
    ap.add_argument("--fine", type=int, default=0)
    ap.add_argument("--pad", type=lambda x: int(x, 0), default=0xd00)
    ap.add_argument("--touch", type=int, default=0)
    ap.add_argument("--sbias", type=int, default=0)
    ap.add_argument("--period", type=int, default=0)
    ap.add_argument("--toff", type=int, default=650)
    ap.add_argument("--qsync", type=int, default=0)
    ap.add_argument("--lprio", type=int, default=3)
    ap.add_argument("--cprio", type=int, default=0)
    ap.add_argument("--gprio", type=int, default=0)
    ap.add_argument("--kvmode", default="lin")
    ap.add_argument("--kvrot", type=int, default=4)
    ap.add_argument("--rotw", type=int, default=1)
    ap.add_argument("--lrot", type=int, default=3)
    ap.add_argument("--lflow", type=int, default=2)
    ap.add_argument("--wmin", type=int, default=27)
    ap.add_argument("--notif", type=int, default=1)
    ap.add_argument("--ndelay", type=int, default=0)
    ap.add_argument("--odelay", type=int, default=0)
    ap.add_argument("--pdelay", type=int, default=6)
    ap.add_argument("--nprogh", type=int, default=20)
    ap.add_argument("--nprogo", type=int, default=20)
    ap.add_argument("--gran", type=int, default=4)
    ap.add_argument("-o", default=None)
    return ap.parse_args(argv)

if __name__ == "__main__":
    opt = parse(sys.argv[1:])
    t = gen(opt)
    if opt.o: open(opt.o, "w").write(t)
    else: print(t)
```

```python
import sys, argparse, struct, math

KNAME = "gated_mix__sliding_block_cached__glu_gated_reglu__decode_kernel"
HEADER = open("gated_mix__sliding_block_cached__glu_gated_reglu__decode.s.ref").read().split("; Override launch")[0]

RA = 0
RB = 65536
XA = 131072
RQ = RB + 32768
XF = XA
QF = XA + 2048
PF = XA + 4096
RS = XA + 8192
ST = XA + 10240
AF = XA + 12288
FL = XA + 16384
F_PROG, F_LRDY, F_QRDY, F_WRDY, F_BQ, F_BM, F_BP, F_BA, F_RED, F_PUB0, F_PUB1, F_FREE0, F_FREE1, F_ERD, F_FRDY = [4*i for i in range(15)]
F_MAX = 64
F_G = 96
F_WT = 128
LDS_BYTES = FL + 128 + 256

WS_QP = 1 << 20
WS_OP = 2 << 20
WS_LSE = (2 << 20) + (512 << 10)
WS_GP = 3 << 20
WS_FP = 4 << 20
WS_QC = 5 << 20
WS_OC = WS_QC + (640 << 10)
WS_HC = WS_QC + 2*(640 << 10) + 1024
WS_FC = WS_QC + 3*(640 << 10) + 2048
WS_STAMP = 8 << 20

class G:
    def __init__(self):
        self.o = []; self.nlab = 0
    def A(self, s):
        for line in s.split("\n"):
            self.o.append("    " + line.strip() if not line.strip().endswith(":") else line.strip())
    def lab(self, p="L"):
        self.nlab += 1
        return f"{p}_{self.nlab}"

def plan(s):
    out = []
    for t in s.split(","):
        if t == "d": out.append("d")
        else:
            a, b = t.split(":")
            out.append((int(a), tuple(int(x) for x in b.split("/")) if "/" in b else int(b)))
    return out

def gen(opt):
    g = G(); A = g.A
    CS = opt.cstride
    NWAVES = 11 if opt.notif else 10
    NT = opt.nt
    STAMP = opt.stamp
    sX, sK, sV, sWQ, sWO, sBX, sWG, sWU = [16+2*i for i in range(8)]
    sWD, sGW, sOUT, sDBG = 32, 34, 36, 38
    sWS = 40
    sXCD, sR, sROLE = 42, 43, 44
    sU, sBETA, sG, sSPL, sRBK, sCB, sBB = 45, 46, 47, 48, 49, 50, 51
    sKS, sKB0 = 100, 101
    sLR = 53
    sWDN = 52
    sT = 54
    sT0, sT1, sT2, sT3 = 54, 56, 57, 53
    sSEL0, sSEL1, sSEL2, sSEL3 = 58, 59, 60, 61
    sPROG, sC = 62, 63
    sTMP, sTMP2, sTMP3, sCNT = 64, 65, 66, 67
    sGA, sGB = 68, 70
    sROT = 15
    sSM = 4
    sST = 72
    NST = 14
    SRD = 8
    def stamp(idx, key=False):
        if STAMP == 1 or (STAMP and (key or idx == 0)): A(f"s_memrealtime s[{sST+2*idx}:{sST+2*idx+1}]")
    touch = []
    def pad(kind):
        if not opt.touch: return
        l = g.lab("L_tp"); touch.append((kind, l))
        A(f"{l}:")
        A("s_setpc_b64 s[6:7]")
    def stampval(idx, sreg):
        if STAMP == 1: A(f"s_mov_b32 s{sST+2*idx}, s{sreg}")
    pb, pc, pm = plan(opt.pb), plan(opt.pc), plan(opt.pm)
    NB0 = opt.nb0
    assert NB0 <= 3

    stamp(0)
    if opt.fixdur: A("s_memrealtime s[98:99]")
    A("s_load_dwordx16 s[16:31], s[0:1], 0")
    A("s_load_dwordx8 s[32:39], s[0:1], 64")
    A("s_load_dwordx2 s[40:41], s[0:1], 96")
    A(f"s_cmp_ge_u32 s2, 256")
    A("s_cbranch_scc1 L_end")
    A("v_lshrrev_b32 v1, 6, v0")
    A("v_and_b32 v0, 63, v0")
    A("v_readfirstlane_b32 s3, v1")
    A(f"s_and_b32 s{sXCD}, s2, 7")
    A(f"s_lshr_b32 s{sR}, s2, 3")
    A(f"s_lshr_b32 s{sG}, s{sXCD}, 1")
    A(f"s_and_b32 s{sTMP3}, s{sXCD}, 1")
    A(f"s_add_u32 s{sROT}, s{sR}, s{2 if opt.rotw else sXCD}")
    A(f"s_lshl_b32 s{sTMP}, s{sXCD}, 1")
    A(f"s_sub_u32 s{sTMP}, s{sR}, s{sTMP}")
    A(f"s_sub_u32 s{sTMP}, s{sTMP}, 4")
    A(f"s_bfe_u32 s{sTMP2}, s{sTMP}, 0x20002")
    A(f"s_and_b32 s{sTMP}, s{sTMP}, 3")
    A(f"s_lshl2_add_u32 s{sU}, s{sTMP}, s{sTMP2}")
    A(f"s_cmp_ge_u32 s{sR}, 16")
    A(f"s_cselect_b32 s{sU}, s{sR}, s{sU}")
    A(f"s_lshr_b32 s{sTMP}, s{sU}, 3")
    A(f"s_lshl2_add_u32 s{sKS}, s{sTMP3}, s{sTMP}")
    A("s_cmp_lg_u32 s3, 0")
    A("s_cbranch_scc1 L_notloader")
    sSOFF, sSTEP, sNB, sBLK = 4, 5, 6, 7
    sIDX, sWRAP, sBASE = 12, 13, 14
    sNOW, sDL = 56, 58
    TIMED = "/" in (opt.pb + opt.pm + opt.pc)
    if TIMED: A(f"s_memrealtime s[{sNOW}:{sNOW+1}]")
    A(f"s_setprio {opt.lprio}")
    A(f"v_mov_b32 v9, {FL}")
    A("v_mov_b32 v10, 0xff7fffff")
    A("v_cmp_gt_u32 vcc, 16, v0")
    A("v_lshl_add_u32 v11, v0, 2, v9")
    A("v_lshrrev_b32 v2, 4, v0")
    A("v_cndmask_b32 v10, v10, 0, vcc")
    A("ds_write_b32 v11, v10")
    A("v_bfe_u32 v3, v0, 1, 3")
    A("v_xor_b32 v3, v3, v2")
    A("v_lshlrev_b32 v3, 5, v3")
    A("v_and_b32 v4, 1, v0")
    A("v_lshl_or_b32 v3, v4, 4, v3")
    A("v_xor_b32 v4, 0x80, v3")
    A("v_lshl_add_u32 v5, v2, 13, v3")
    A("v_lshl_add_u32 v6, v2, 13, v4")
    A(f"s_mov_b32 s{SRD+3}, 0x20000")
    A(f"s_and_b32 s{sTMP}, s{sU}, 7")
    A(f"s_lshl3_add_u32 s{sTMP}, s{sG}, s{sTMP}")
    A(f"s_lshl_b32 s{sTMP}, s{sTMP}, 8")
    A(f"s_lshl_b32 s{sSOFF}, s{sKS}, 20")
    A(f"s_add_u32 s{sSOFF}, s{sSOFF}, s{sTMP}")
    A(f"s_mov_b32 s{SRD+2}, {1024*4096*2}")
    A(f"s_mov_b32 s{sNB}, {NB0}")
    A(f"s_mov_b32 s{sSTEP}, {4*8192}")
    A(f"s_mov_b32 m0, {RQ}")
    A(f"s_mov_b32 s{sBLK}, {NB0}")
    if opt.fine == 2: stamp(5)
    A("s_waitcnt lgkmcnt(0)")
    if opt.fine == 2: stamp(6)
    A(f"s_mov_b64 s[{SRD}:{SRD+1}], s[{sWQ}:{sWQ+1}]")
    if TIMED: A(f"s_mov_b32 s{sDL}, s{sNOW}")
    A("s_barrier")
    if opt.fine == 2: stamp(7)
    def blk_body(win, rot):
        GR = opt.gran
        if win is not None:
            assert win % GR == 0
            pj = win % 8
            back = (win - pj) // 8
        for j in range(8):
            half, i = j >> 2, j & 3
            if win is not None and j % GR == 0:
                if j == pj:
                    A(f"s_sub_u32 s{sTMP}, s{sBLK}, {back}")
                    A(f"s_max_i32 s{sPROG}, s{sTMP}, s{sPROG}")
                    A(f"v_mov_b32 v10, s{sPROG}")
                A(f"s_waitcnt vmcnt({win})")
                if j == pj: A(f"ds_write_b32 v9, v10 offset:{F_PROG}")
            v = 5 if ((i >> 1) & 1) == 0 else 6
            A(f"buffer_load_dwordx4 v{v}, s[{SRD}:{SRD+3}], s{sSOFF} offen {NT} lds")
            A(f"s_add_u32 m0, m0, 1024")
            if rot == "kv":
                st = {"lin": 1024, "tr1": 8192 + (1024 if (half, i) == (1, 3) else 0),
                      "tr2": (1024 if i % 2 == 0 else 15360) + (2048 if (half, i) == (1, 3) else 0)}[opt.kvmode]
                A(f"s_add_u32 s{sIDX}, s{sIDX}, {st}")
                A(f"s_pack_lh_b32_b16 s{sSOFF}, s{sIDX}, s{sSOFF}")
            else:
                A(f"s_add_u32 s{sSOFF}, s{sSOFF}, s{sSTEP}")
        if rot == 7:
            A(f"s_add_u32 s{sIDX}, s{sIDX}, 1")
            A(f"s_cmp_eq_u32 s{sIDX}, 7")
            A(f"s_cselect_b32 s{sTMP}, {7*65536}, 0")
            A(f"s_sub_u32 s{sSOFF}, s{sSOFF}, s{sTMP}")
        if rot is True:
            A(f"s_add_u32 s{sIDX}, s{sIDX}, 1")
            A(f"s_and_b32 s{sIDX}, s{sIDX}, 7")
            A(f"s_cselect_b32 s{sTMP}, 0, s{sWRAP}")
            A(f"s_sub_u32 s{sSOFF}, s{sSOFF}, s{sTMP}")
    A("L_top_loop:")
    blk_body(None, False)
    A(f"s_sub_u32 s{sNB}, s{sNB}, 1")
    A(f"s_cmp_lg_u32 s{sNB}, 0")
    A("s_cbranch_scc1 L_top_loop")
    A("s_branch L_loader2")
    A("L_notloader:")
    if opt.cpf:
        A(f"s_cmp_gt_u32 s3, {opt.cpf}")
        A("s_cbranch_scc1 L_cpf_done")
        A("s_getpc_b64 s[4:5]")
        A("L_pc:")
        A(f"s_lshl_b32 s{sTMP}, s3, 13")
        A(f"s_sub_u32 s{sTMP}, s{sTMP}, 8192")
        A(f"v_lshl_add_u32 v1, v0, 7, s{sTMP}")
        A(f"v_cmp_gt_u32 vcc, L_end-L_pc, v1")
        A("s_and_saveexec_b64 s[6:7], vcc")
        A("s_cbranch_execz L_cpf_done2")
        A(f"global_load_dword v127, v1, s[4:5]")
        A("L_cpf_done2:")
        A("s_mov_b64 exec, -1")
        A("L_cpf_done:")
    A("s_barrier")
    A("s_branch L_cons")

    def decode2(keep=False):
        d = g.lab("L_d2"); m = g.lab("L_d2m")
        if STAMP:
            for i in range(1, NST):
                if not (opt.fine == 2 and keep and i in (5, 6, 7)): A(f"s_mov_b32 s{sST+2*i}, 0")
        A(f"s_mul_i32 s{sBETA}, s{sXCD}, 14")
        A(f"s_add_u32 s{sBETA}, s{sBETA}, s{sR}")
        A(f"s_mov_b32 s{sPROG}, 0")
        A(f"s_cmp_ge_u32 s{sR}, 16")
        A(f"s_cbranch_scc1 {m}")
        A(f"s_cmp_ge_u32 s{sR}, 14")
        A(f"s_cselect_b32 s{sROLE}, 2, 1")
        A(f"s_lshr_b32 s{sTMP}, s{sU}, 3")
        A(f"s_lshl1_add_u32 s{sRBK}, s{sXCD}, s{sTMP}")
        A(f"s_add_u32 s{sTMP}, s{sU}, 3")
        A(f"s_and_b32 s{sTMP}, s{sTMP}, 3")
        A(f"s_and_b32 s{sCB}, s{sU}, 4")
        A(f"s_or_b32 s{sCB}, s{sCB}, s{sTMP}")
        A(f"s_lshl_b32 s{sKB0}, s{sRBK}, 3")
        A(f"s_add_u32 s{sLR}, s{sR}, s{sXCD}")
        A(f"s_and_b32 s{sLR}, s{sLR}, {7 if opt.lrot & 1 else 0}")
        A(f"s_branch {d}")
        A(f"{m}:")
        A(f"s_mov_b32 s{sROLE}, 0")
        A(f"s_and_b32 s{sTMP}, s{sXCD}, 1")
        A(f"s_bfe_u32 s{sBB}, s{sR}, 0x20002")
        A(f"s_lshl2_add_u32 s{sBB}, s{sTMP}, s{sBB}")
        A(f"s_and_b32 s{sSPL}, s{sR}, 3")
        A(f"s_bfe_u32 s{sTMP}, s{sR}, 0x10003")
        A(f"s_lshl1_add_u32 s{sRBK}, s{sXCD}, s{sTMP}")
        A(f"s_mul_i32 s{sKB0}, s{sRBK}, 7")
        A(f"s_and_b32 s{sLR}, s{sR}, {7 if opt.lrot & 2 else 0}")
        A(f"s_cmp_eq_u32 s{sLR}, 7")
        A(f"s_cselect_b32 s{sLR}, 3, s{sLR}")
        A(f"s_add_u32 s{sCB}, s{sR}, 1")
        A(f"s_and_b32 s{sCB}, s{sCB}, 7")
        A(f"{d}:")

    A("L_loader2:")
    decode2(True)
    stamp(1)
    def lds_wait_ge(off, val, vtmp="v11", vaddr="v9", sleep=0):
        l = g.lab("L_w")
        A(f"{l}:")
        if sleep: A(f"s_sleep {sleep}")
        A(f"ds_read_b32 {vtmp}, {vaddr} offset:{off}")
        A("s_waitcnt lgkmcnt(0)")
        A(f"v_readfirstlane_b32 s{sTMP}, {vtmp}")
        A(f"s_cmp_ge_u32 s{sTMP}, {val}")
        A(f"s_cbranch_scc0 {l}")
    def wmax(w): return max(w) if isinstance(w, tuple) else w
    def blk_loop(nblk, win, rot):
        l = g.lab("L_ld")
        if nblk > 1:
            A(f"s_mov_b32 s{sNB}, {nblk}")
            A(f"{l}:")
        if isinstance(win, tuple):
            hi = g.lab("L_hi"); j = g.lab("L_jn")
            A(f"s_memrealtime s[{sNOW}:{sNOW+1}]")
            A(f"s_mul_i32 s{sTMP2}, s{sBLK}, {opt.period}")
            A(f"s_add_u32 s{sTMP2}, s{sTMP2}, {opt.toff}")
            A("s_waitcnt lgkmcnt(0)")
            A(f"s_sub_u32 s{sTMP}, s{sNOW}, s{sDL}")
            A(f"s_cmp_gt_u32 s{sTMP}, s{sTMP2}")
            A(f"s_cbranch_scc1 {hi}")
            for k in range(3, win[0]//8, -1):
                A(f"s_sub_u32 s{sTMP}, s{sBLK}, {k}")
                A(f"s_max_i32 s{sPROG}, s{sTMP}, s{sPROG}")
                A(f"v_mov_b32 v10, s{sPROG}")
                A(f"s_waitcnt vmcnt({8*k})")
                A(f"ds_write_b32 v9, v10 offset:{F_PROG}")
            blk_body(win[0], False)
            A(f"s_branch {j}")
            A(f"{hi}:")
            blk_body(win[1], False)
            A(f"{j}:")
            assert not rot
        else:
            blk_body(win, rot)
        A(f"s_add_u32 s{sBLK}, s{sBLK}, 1")
        if nblk > 1:
            A(f"s_sub_u32 s{sNB}, s{sNB}, 1")
            A(f"s_cmp_lg_u32 s{sNB}, 0")
            A(f"s_cbranch_scc1 {l}")
    def drain(maxwin):
        for k in range((maxwin + 4 + 7)//8 - 1, -1, -1):
            A(f"s_sub_u32 s{sTMP}, s{sBLK}, {k}")
            A(f"s_max_i32 s{sPROG}, s{sTMP}, s{sPROG}")
            A(f"v_mov_b32 v10, s{sPROG}")
            A(f"s_waitcnt vmcnt({8*k})")
            A(f"ds_write_b32 v9, v10 offset:{F_PROG}")
    def set_stride(stride):
        A(f"s_mov_b32 s{sSTEP}, {4*stride}")
        if stride & (stride-1) == 0:
            sh = stride.bit_length()-1
            A(f"v_lshl_add_u32 v5, v2, {sh}, v3")
            A(f"v_lshl_add_u32 v6, v2, {sh}, v4")
        else:
            A(f"v_mul_u32_u24 v8, {stride}, v2")
            A("v_add_u32 v5, v8, v3")
            A("v_add_u32 v6, v8, v4")
        A(f"s_mov_b32 s{sWRAP}, {256*stride}")
    XSRD = 68
    def xloads(n, ldsbase):
        for j in range(4):
            A(f"s_add_u32 s{sTMP}, s{sROT}, {2*j}")
            A(f"s_and_b32 s{sTMP}, s{sTMP}, 7")
            A(f"s_lshl_b32 s{sTMP}, s{sTMP}, 6")
            A(f"s_add_u32 s{sTMP}, s{sTMP}, s{sTMP3}")
            for q in range(n//4):
                A(f"s_mov_b32 m0, {ldsbase + 4096*q + 1024*j - 512*q}")
                A("s_nop 0")
                A(f"buffer_load_dwordx4 v7, s[{XSRD}:{XSRD+3}], s{sTMP} offen offset:{512*q} lds")
    def run_plan(pl, segs, start, hook=None):
        blk = 0; lastwin = 0
        segmap = {x[0]: x for x in segs}
        rot = False
        items = []
        for it in pl:
            if it == "d": items.append(it); continue
            n, w = it
            while n:
                c = min(n, 4 - blk if blk < 4 else 8 - ((blk - 4) % 8))
                if blk < start: c = min(c, start - blk)
                if hook and blk < hook[0]: c = min(c, hook[0] - blk)
                if blk >= start: items.append((blk, c, w))
                blk += c; n -= c
            lastw = w
        lastwin = pl[0][1]
        for it in items:
            if it == "d":
                drain(max(wmax(lastwin), 8*start)); continue
            b0, c, w = it
            if b0 >= 4 and (b0 - 4) % 8 == 0:
                seg = (b0 - 4) // 8 + 1
                stamp(1 + seg)
                if seg >= 2: lds_wait_ge(F_FREE0 + 4*(seg-2), 8)
                if b0 in segmap:
                    segmap[b0][1](); rot = segmap[b0][2]
                elif rot:
                    A(f"s_add_u32 s{sSOFF}, s{sSOFF}, s{sWRAP}")
                A(f"s_mov_b32 m0, {RA if seg % 2 == 1 else RB}")
            if hook and b0 == hook[0]: hook[1]()
            blk_loop(c, w, rot)
            lastwin = w
        stamp(8)
        if opt.fgate:
            A(f"s_mul_i32 s{sTMP}, s{sCB}, {16*CS}")
            A(f"s_add_u32 s{sTMP}, s{sTMP}, {WS_FC}")
            A(f"s_add_u32 s4, s{sWS}, s{sTMP}")
            A(f"s_addc_u32 s5, s{sWS+1}, 0")
            A(f"v_mul_u32_u24 v5, {CS}, v0")
            A("v_mov_b32 v6, 1")
        drain(max(wmax(x[1]) for x in pl if x != "d"))
        stamp(9)
        A("s_branch L_ld_end")
    def late_seg(ptr, nbytes):
        def f():
            set_stride(2048)
            A(f"s_mov_b64 s[{SRD}:{SRD+1}], s[{ptr}:{ptr+1}]\ns_mov_b32 s{SRD+2}, {nbytes}")
            A(f"s_mov_b32 s{sIDX}, s{sLR}")
            A(f"s_add_u32 s{sSOFF}, s{sKB0}, s{sLR}")
            A(f"s_lshl_b32 s{sSOFF}, s{sSOFF}, 16")
            A(f"s_lshl_b32 s{sTMP}, s{sCB}, 8")
            A(f"s_add_u32 s{sSOFF}, s{sSOFF}, s{sTMP}")
        return f
    A("v_and_b32 v7, 7, v0")
    A("v_lshlrev_b32 v7, 11, v7")
    A("v_lshrrev_b32 v8, 3, v0")
    A("v_lshl_add_u32 v7, v8, 4, v7")
    A(f"s_mov_b64 s[{XSRD}:{XSRD+1}], s[{sX}:{sX+1}]\ns_mov_b32 s{XSRD+2}, 16384\ns_mov_b32 s{XSRD+3}, 0x20000")
    A(f"s_lshl_b32 s{sTMP3}, s{sKS}, 8")
    A(f"s_mov_b32 m0, {XF}")
    A("s_nop 0")
    A(f"buffer_load_dwordx4 v7, s[{XSRD}:{XSRD+3}], s{sTMP3} offen lds")
    A(f"s_mov_b32 m0, {XF + 1024 - 128}")
    A("s_nop 0")
    A(f"buffer_load_dwordx4 v7, s[{XSRD}:{XSRD+3}], s{sTMP3} offen offset:128 lds")
    A(f"s_mov_b32 m0, {RQ + 8192*NB0}")
    A(f"s_cmp_ge_u32 s{sR}, 16")
    A("s_cbranch_scc1 L_ld_M")
    def b_seg1():
        A(f"s_and_b32 s{sROT}, s{sROT}, 6")
        A(f"s_mov_b32 s{sIDX}, s{sROT}")
        A(f"s_and_b32 s{sTMP2}, s{sBETA}, 1")
        set_stride(7168)
        A(f"s_mul_i32 s{sSOFF}, s{sTMP2}, {512*7168}")
        A(f"s_lshr_b32 s{sTMP}, s{sBETA}, 2")
        A(f"s_lshl_b32 s{sTMP}, s{sTMP}, 8")
        A(f"s_add_u32 s{sSOFF}, s{sSOFF}, s{sTMP}")
        A(f"s_mul_i32 s{sTMP}, s{sROT}, {32*7168}")
        A(f"s_add_u32 s{sSOFF}, s{sSOFF}, s{sTMP}")
        A(f"s_bitcmp0_b32 s{sBETA}, 1")
        A(f"s_cselect_b64 s[{SRD}:{SRD+1}], s[{sWG}:{sWG+1}], s[{sWU}:{sWU+1}]")
        A(f"s_mov_b32 s{SRD+2}, {1024*3584*2}")
    A(f"s_cmp_eq_u32 s{sROLE}, 2")
    A("s_cbranch_scc1 L_ld_C")
    assert sum(x[0] for x in pb if x != "d") == 28
    XGAT = opt.xgat
    def xg_hook():
        A(f"s_and_b32 s{sTMP3}, s{sBETA}, 1")
        A(f"s_lshl_b32 s{sTMP3}, s{sTMP3}, 10")
        xloads(8, XF + 2048)
        A(f"s_mov_b32 m0, {RA + 8192*(XGAT-4)}")
    run_plan(pb, [(4, b_seg1, True), (20, late_seg(sWO, 4096*1024*2), True)], NB0, hook=(XGAT, xg_hook))
    A("L_ld_C:")
    assert sum(x[0] for x in pc if x != "d") == 12 and pc[1] == "d" and pc[0][0] == 4
    def c_seg1():
        late_seg(sWO, 4096*1024*2)()
        A(f"s_mov_b32 s{sBLK}, 20")
    run_plan(pc, [(4, c_seg1, True)], NB0)
    A("L_ld_M:")
    def m_seg1():
        set_stride(256)
        A(f"s_mul_i32 s{sROT}, s{sROT}, {opt.kvrot*1024}")
        A(f"s_mov_b32 s{sIDX}, s{sROT}")
        A(f"s_lshl2_add_u32 s{sTMP}, s{sBB}, s{sG}")
        A(f"s_lshl4_add_u32 s{sTMP}, s{sTMP}, s{sSPL}")
        A(f"s_add_u32 s{sTMP}, s{sTMP}, 12")
        A(f"s_pack_ll_b32_b16 s{sSOFF}, s{sIDX}, s{sTMP}")
        A(f"s_mov_b64 s[{SRD}:{SRD+1}], s[{sK}:{sK+1}]\ns_mov_b32 s{SRD+2}, {8*4*4096*128*2}")
    def m_seg2():
        A(f"s_mov_b64 s[{SRD}:{SRD+1}], s[{sV}:{sV+1}]")
        A(f"s_mov_b32 s{sIDX}, s{sROT}")
        A(f"s_pack_lh_b32_b16 s{sSOFF}, s{sIDX}, s{sSOFF}")
    assert sum(x[0] for x in pm if x != "d") == 27
    run_plan(pm, [(4, m_seg1, "kv"), (12, m_seg2, "kv"), (20, late_seg(sWD, 3584*1024*2), 7)], NB0)
    A("L_ld_end:")
    if opt.nocomm: A("s_branch L_exit")
    A("s_barrier")
    if opt.fgate and not (opt.dbg & 1):
        if opt.flag_delay: A(f"s_sleep {opt.flag_delay}")
        A(f"s_bfm_b64 exec, {opt.frep}, 0")
        A("global_atomic_add v5, v6, s[4:5] sc1")
    A("s_branch L_exit")

    A("L_cons:")
    vL16, vTR, vACT, vT, vPUB = 1, 2, 3, 4, 5
    vTMP, vTMP2, vTMP3 = 6, 7, 8
    vWA, vAA = 10, 11
    vW, vB, vACC, vACC2 = 12, 16, 20, 24
    vGA = 28
    vLS = 44
    vK = 52
    vQ = 84
    vRG, vRW, vRR, vOUT, vONE, vAFW, vFLG = 116, 117, 118, 119, 120, 121, 122
    vTP, vTC, vL8 = 123, 124, 125
    vSTW, vSTR = 126, 15
    vTA, vAX, vEN = 48, 49, 50
    NV = 128
    A("s_waitcnt lgkmcnt(0)")
    A(f"s_load_dword s{sT}, s[{sWS}:{sWS+1}], 0")
    decode2()
    stamp(1)
    A(f"s_sub_u32 s{sC}, s3, 1")
    sSC, sM3, sMN, sEM, sRNG = 58, 60, 61, 56, 57
    A(f"s_mov_b32 s{sM3}, 0x00030003")
    A(f"s_mov_b32 s{sMN}, 0xfffcfffc")
    A(f"s_mov_b32 s{sRNG}, {27 << 23:#x}")
    A(f"v_mov_b32 v{vAX}, 0")
    A(f"v_lshlrev_b32 v{vL8}, 3, v0")
    A(f"v_mov_b32 v9, {FL}")
    A(f"v_mov_b32 v{vONE}, 1")
    A(f"v_lshlrev_b32 v{vL16}, 4, v0")
    A(f"v_mul_u32_u24 v{vFLG}, {CS}, v0")
    A(f"v_lshrrev_b32 v{vTMP2}, 4, v0")
    A(f"v_bfe_u32 v{vTMP3}, v0, 2, 2")
    A(f"v_lshl_add_u32 v{vTR}, v{vTMP2}, 3, v{vTMP3}")
    A(f"v_lshlrev_b32 v{vTR}, 8, v{vTR}")
    A(f"v_and_b32 v{vACT}, 1, v{vTMP2}")
    A(f"v_lshl_or_b32 v{vTMP3}, v{vACT}, 2, v{vTMP3}")
    A(f"v_xor_b32 v{vTMP3}, s{sC}, v{vTMP3}")
    A(f"v_lshl_or_b32 v{vTR}, v{vTMP3}, 5, v{vTR}")
    A(f"v_and_b32 v{vTMP3}, 3, v0")
    A(f"v_lshl_or_b32 v{vTR}, v{vTMP3}, 3, v{vTR}")
    A(f"v_and_b32 v{vTMP3}, 7, v0")
    A(f"v_lshl_add_u32 v{vACT}, v{vTMP2}, 3, v{vTMP3}")
    A(f"v_lshlrev_b32 v{vACT}, 4, v{vACT}")
    A(f"v_lshrrev_b32 v{vAFW}, 5, v0")
    A(f"v_lshlrev_b32 v{vAFW}, 8, v{vAFW}")
    A(f"v_and_b32 v{vTMP2}, 2, v0")
    A(f"v_lshl_or_b32 v{vAFW}, v{vTMP2}, 6, v{vAFW}")
    A(f"v_and_b32 v{vTMP2}, 28, v0")
    A(f"v_lshl_or_b32 v{vAFW}, v{vTMP2}, 2, v{vAFW}")
    A(f"v_and_b32 v{vTMP2}, 1, v0")
    A(f"v_lshl_or_b32 v{vAFW}, v{vTMP2}, 3, v{vAFW}")
    A(f"s_lshl_b32 s{sTMP}, s{sC}, 9")
    A(f"s_add_u32 s{sTMP}, s{sTMP}, {AF}")
    A(f"v_add_u32 v{vAFW}, s{sTMP}, v{vAFW}")
    def afswz(v):
        A(f"v_lshrrev_b32 v{vTMP2}, 3, v{v}")
        A(f"v_and_b32 v{vTMP2}, 0x70, v{vTMP2}")
        A(f"v_xor_b32 v{v}, v{v}, v{vTMP2}")
    afswz(vAFW)
    A("s_waitcnt lgkmcnt(0)")
    A(f"s_add_u32 s{sT}, s{sT}, 0x11111111")
    A(f"s_mov_b32 s{sT+1}, s{sT}")
    A(f"v_mov_b32 v{vT}, s{sT}")
    def tagbits(dst, vsh):
        A(f"v_lshrrev_b32 v{dst}, v{vsh}, v{vT}")
        A(f"v_and_b32 v{dst}, 15, v{dst}")
        A(f"v_lshl_or_b32 v{dst}, v{dst}, 14, v{dst}")
        A(f"v_and_b32 v{dst}, s{sM3}, v{dst}")
    A(f"v_and_b32 v{vTMP}, 7, v0")
    A(f"v_lshlrev_b32 v{vTMP}, 2, v{vTMP}")
    tagbits(vTC, vTMP)
    A(f"v_lshrrev_b32 v{vTMP}, 2, v0")
    A(f"v_and_b32 v{vTMP}, 12, v{vTMP}")
    A(f"v_and_b32 v{vTMP2}, 1, v0")
    A(f"v_lshl_or_b32 v{vTMP}, v{vTMP2}, 4, v{vTMP}")
    tagbits(vTP, vTMP)

    def refresh_prog():
        A(f"ds_read_b32 v{vTMP}, v9 offset:{F_PROG}")
        A("s_waitcnt lgkmcnt(0)")
        A(f"v_readfirstlane_b32 s{sPROG}, v{vTMP}")
    def wait_prog(val_is_sgpr, val, sleep=0):
        l = g.lab("L_wp"); d = g.lab("L_wpd")
        v = f"s{val}" if val_is_sgpr else str(val)
        A(f"s_cmp_ge_u32 s{sPROG}, {v}")
        A(f"s_cbranch_scc1 {d}")
        A(f"{l}:")
        if sleep: A(f"s_sleep {sleep}")
        refresh_prog()
        A(f"s_cmp_ge_u32 s{sPROG}, {v}")
        A(f"s_cbranch_scc0 {l}")
        A(f"{d}:")
    def signal(off):
        A("s_mov_b64 exec, 1")
        A(f"ds_add_u32 v9, v{vONE} offset:{off}")
        A("s_mov_b64 exec, -1")
    def cwait(off, val, sleep=0):
        lds_wait_ge(off, val, vtmp=f"v{vTMP}", sleep=sleep)
    def cwait_rd(off, val, nrd, reads):
        l = g.lab("L_cw")
        A(f"{l}:")
        A(f"ds_read_b32 v{vTMP}, v9 offset:{off}")
        reads()
        A(f"s_waitcnt lgkmcnt({nrd})")
        A(f"v_readfirstlane_b32 s{sTMP}, v{vTMP}")
        A(f"s_cmp_ge_u32 s{sTMP}, {val}")
        A(f"s_cbranch_scc0 {l}")
    def fbits(x): return struct.unpack("<I", struct.pack("<f", x))[0]
    ADJ = 1.0
    LQ, LO_, LG, LF = [x + opt.sbias for x in (8, 12, 10, 20)]
    def setscale(lg):
        A(f"s_mov_b32 s{sSC}, {fbits(2.0**lg):#x}")
    def encode(sc=None, tp=vTP, ta=vTA):
        src = vACC
        d = g.lab("L_en")
        scs = f"s[{sSC}:{sSC+1}]" if sc is None else f"v[{sc}:{sc+1}]"
        A(f"v_pk_mul_f32 v[{src}:{src+1}], v[{src}:{src+1}], {scs} op_sel_hi:[1,0]")
        A(f"v_pk_mul_f32 v[{src+2}:{src+3}], v[{src+2}:{src+3}], {scs} op_sel_hi:[1,0]")
        A(f"v_max3_f32 v{vTMP}, |v{src}|, |v{src+1}|, |v{src+2}|")
        A(f"v_max_f32 v{vTMP}, |v{src+3}|, v{vTMP}")
        A(f"v_subrev_u32 v{vTMP2}, {115 << 23:#x}, v{vTMP}")
        A(f"v_cmp_le_u32 vcc, s{sRNG}, v{vTMP2}")
        r = g.lab("L_er")
        A(f"{r}:")
        A(f"v_cvt_pkrtz_f16_f32 v{vEN}, v{src}, v{src+1}")
        A(f"v_cvt_pkrtz_f16_f32 v{vEN+1}, v{src+2}, v{src+3}")
        A(f"v_add_u32 v{vEN}, 0x00020002, v{vEN}")
        A(f"v_add_u32 v{vEN+1}, 0x00020002, v{vEN+1}")
        A(f"v_and_or_b32 v{vEN}, v{vEN}, s{sMN}, v{vAX}")
        A(f"v_and_or_b32 v{vEN+1}, v{vEN+1}, s{sMN}, v{tp}")
        A(f"s_cbranch_vccz {d}")
        A(f"s_call_b64 s[6:7], L_encs")
        A(f"s_branch {r}")
        A(f"{d}:")
    def publish(src, base=sGA, sc=None):
        encode(sc)
        A("s_mov_b32 exec_lo, 0x00ff00ff\ns_mov_b32 exec_hi, 0x00ff00ff")
        if not (opt.dbg & 33): A(f"global_store_dwordx2 v{vPUB}, v[{vEN}:{vEN+1}], s[{base}:{base+1}] sc1")
    NREP = opt.nrep; HREP = max(1, NREP // 4)
    sNH = 9
    def bump(kind):
        if opt.dbg & 33: return
        if opt.satom:
            A(f"s_mov_b32 s8, 1")
            if kind == "h":
                e = g.lab("L_bh")
                for r in range(HREP): A(f"s_atomic_add s8, s[{sGB}:{sGB+1}], {CS*r}")
                A(f"s_cmp_eq_u32 s{sNH}, {HREP}")
                A(f"s_cbranch_scc1 {e}")
                for r in range(HREP, 2*HREP): A(f"s_atomic_add s8, s[{sGB}:{sGB+1}], {CS*r}")
                A(f"{e}:")
            else:
                for r in range(NREP): A(f"s_atomic_add s8, s[{sGB}:{sGB+1}], {CS*r}")
        else:
            if kind == "h": A(f"s_bfm_b64 exec, s{sNH}, 0")
            else: A(f"s_bfm_b64 exec, {NREP}, 0")
            A(f"global_atomic_add v{vFLG}, v{vONE}, s[{sGB}:{sGB+1}] sc1")
    def flag(cnt, nrep, last=7):
        d = g.lab("L_fl")
        A("s_mov_b64 exec, 1")
        A(f"ds_add_rtn_u32 v{vTMP}, v9, v{vONE} offset:{cnt}")
        A("s_waitcnt lgkmcnt(0)")
        A(f"v_readfirstlane_b32 s{sTMP}, v{vTMP}")
        A(f"s_cmp_lg_u32 s{sTMP}, {last}")
        A(f"s_cbranch_scc1 {d}")
        bump(nrep)
        A(f"{d}:")
        A("s_mov_b64 exec, -1")
    def staged(cnt, last, hi_off, kind):
        d = g.lab("L_sg")
        A(f"ds_write_b64 v{vSTW}, v[{vEN}:{vEN+1}]")
        A("s_mov_b64 exec, 1")
        A(f"ds_add_rtn_u32 v{vTMP}, v9, v{vONE} offset:{cnt}")
        A("s_mov_b64 exec, -1")
        A(f"ds_read_b128 v[{vGA}:{vGA+3}], v{vSTR}")
        A(f"ds_read_b128 v[{vGA+4}:{vGA+7}], v{vSTR} offset:1024")
        A(f"v_add_u32 v{vTMP2}, {hi_off}, v{vPUB}")
        A("s_waitcnt lgkmcnt(2)")
        A(f"v_readfirstlane_b32 s{sTMP}, v{vTMP}")
        A(f"s_cmp_lg_u32 s{sTMP}, {last}")
        A(f"s_cbranch_scc1 {d}")
        A("s_waitcnt lgkmcnt(0)")
        if not (opt.dbg & 1):
            A(f"global_store_dwordx4 v{vPUB}, v[{vGA}:{vGA+3}], s[{sGA}:{sGA+1}] sc1")
            A(f"global_store_dwordx4 v{vTMP2}, v[{vGA+4}:{vGA+7}], s[{sGA}:{sGA+1}] sc1")
        if kind: bump(kind)
        A("s_mov_b64 exec, -1")
        A("s_nop 0")
        A(f"{d}:")
        A("s_waitcnt lgkmcnt(0)")
    def flag_now(nrep):
        d = g.lab("L_fn")
        A(f"s_cmp_lg_u32 s{sC}, {opt.flagwave}")
        A(f"s_cbranch_scc1 {d}")
        bump(nrep)
        A("s_mov_b64 exec, -1")
        A(f"{d}:")
    def ws_addr(dst, base_const, soff):
        A(f"s_add_u32 s{soff}, s{soff}, {base_const}")
        A(f"s_add_u32 s{dst}, s{sWS}, s{soff}")
        A(f"s_addc_u32 s{dst+1}, s{sWS+1}, 0")
    def pub_voff(shift):
        A(f"v_and_b32 v{vTMP2}, 15, v0")
        A(f"v_lshrrev_b32 v{vTMP3}, 4, v0")
        A(f"v_lshlrev_b32 v{vTMP3}, 3, v{vTMP3}")
        A(f"v_lshl_or_b32 v{vPUB}, v{vTMP2}, {shift}, v{vTMP3}")
    def sample(base, offs, sleep=0, cntstamp=None):
        l = g.lab("L_sm"); d = g.lab("L_smd"); e = g.lab("L_sme")
        if opt.dbg & 7: return
        A(f"s_mov_b32 s{sCNT}, 0")
        if sleep: A(f"s_branch {e}")
        A(f"{l}:")
        if sleep:
            A(f"s_sleep {sleep}")
            A(f"{e}:")
        for i, o in enumerate(offs):
            A(f"s_load_dword s{sSM+i}, s[{base}:{base+1}], {o} glc")
        A(f"s_add_u32 s{sCNT}, s{sCNT}, 1")
        A(f"s_cmp_gt_u32 s{sCNT}, {opt.maxpoll}")
        A("s_waitcnt lgkmcnt(0)")
        A(f"s_cbranch_scc1 {d}")
        for i in range(len(offs)):
            A(f"s_xor_b32 s{sSM+i}, s{sSM+i}, s{sT}")
            if i: A(f"s_or_b32 s{sSM}, s{sSM}, s{sSM+i}")
        A(f"s_and_b32 s{sSM}, s{sSM}, 0xff")
        A(f"s_cbranch_scc1 {l}")
        A(f"{d}:")
        if cntstamp is not None: stampval(cntstamp, sCNT)
    def pollcnt(base, target, sleep, cntstamp=None):
        l = g.lab("L_pf"); d = g.lab("L_pfd"); e = g.lab("L_pfe")
        if opt.dbg & 7: return
        A(f"s_mov_b32 s{sCNT}, 0")
        if sleep: A(f"s_branch {e}")
        A(f"{l}:")
        if sleep:
            A(f"s_sleep {sleep}")
            A(f"{e}:")
        A(f"s_load_dword s8, s[{base}:{base+1}], 0 glc")
        A(f"s_add_u32 s{sCNT}, s{sCNT}, 1")
        A(f"s_cmp_gt_u32 s{sCNT}, {opt.maxhint}")
        A("s_waitcnt lgkmcnt(0)")
        A(f"s_cbranch_scc1 {d}")
        A(f"s_cmp_eq_u32 s8, s{target}")
        A(f"s_cbranch_scc0 {l}")
        A(f"{d}:")
        if cntstamp is not None: stampval(cntstamp, sCNT)
    def gather(nld=4, mid=None, cntstamp=None, sleep=0, work=None, kind='M', defer=False):
        l = g.lab("L_ga"); d = g.lab("L_gad"); c = g.lab("L_gac"); rt = g.lab("L_gar")
        assert nld in (1, 4)
        def issue():
            if opt.dbg & 2: return
            if opt.gprio: A(f"s_setprio {opt.gprio}")
            for i in range(nld):
                A(f"global_load_dwordx2 v[{vGA+2*i}:{vGA+2*i+1}], v{vL8}, s[{sGA}:{sGA+1}] offset:{512*i} sc1")
        if mid is not None or sleep:
            issue()
            if mid is not None: mid()
            A(f"s_mov_b32 s{sEM}, s{sM3}")
            A(f"s_mov_b32 s{sCNT}, 0")
            A(f"s_branch {c}")
            pad(kind)
        else:
            A(f"s_mov_b32 s{sEM}, s{sM3}")
            A(f"s_mov_b32 s{sCNT}, 0")
        A(f"{l}:")
        if sleep: A(f"s_sleep {sleep}")
        issue()
        A(f"{c}:")
        A(f"s_add_u32 s{sCNT}, s{sCNT}, 1")
        vC, vC0 = vTMP2, vTMP
        for i in range(nld):
            A(f"s_waitcnt vmcnt({nld-1-i})")
            A(f"v_xor_b32 v{vGA+2*i+1}, v{vTC}, v{vGA+2*i+1}")
            if i == 2:
                A(f"v_or3_b32 v{vC0}, v{vGA}, v{vGA+2}, v{vGA+4}")
                A(f"v_or3_b32 v{vC}, v{vGA+1}, v{vGA+3}, v{vGA+5}")
            if i == nld-1:
                if nld == 4:
                    A(f"v_or_b32 v{vC0}, v{vC0}, v{vGA+6}")
                    A(f"v_bitop3_b32 v{vC}, v{vC}, v{vGA+7}, s{sM3} bitop3:0xa8")
                else:
                    A(f"v_and_b32 v{vC}, s{sM3}, v{vGA+1}")
                A(f"v_and_or_b32 v{vC0}, v{vC0 if nld == 4 else vGA}, s{sEM}, v{vC}")
                A(f"v_cmp_ne_u32 vcc, 0, v{vC0}")
            if work is not None and i < nld-1: work(i)
        A(f"s_cbranch_vccz {d}")
        A(f"v_cmp_ne_u32 vcc, 0, v{vC}")
        A(f"s_cbranch_vccnz {rt}")
        A(f"s_mov_b32 s{sEM}, 0")
        if defer: A(f"s_branch {d}")
        else:
            A("s_call_b64 s[6:7], L_fixr")
            A(f"s_branch {c}")
        A(f"{rt}:")
        A(f"s_cmp_le_u32 s{sCNT}, {0 if (opt.dbg & 6) else opt.maxpoll}")
        A(f"s_cbranch_scc1 {l}")
        A(f"{d}:")
        if cntstamp is not None: stampval(cntstamp, sCNT)
        if work is not None: work(nld-1)
    vS0, vS1, vSCA = vGA + 12, vGA + 8, vLS
    def acc(i, dst, first):
        for r in range(4):
            c2 = "0" if first else f"v{dst+r}"
            A(f"v_fma_mix_f32 v{dst+r}, v{vGA+2*i+(r>>1)}, v{vSCA+i}, {c2} op_sel:[{r&1},0,0] op_sel_hi:[1,0,0]")
    def setsca(lg):
        for i in range(4): A(f"v_mov_b32 v{vSCA+i}, {fbits(2.0**-lg):#x}")
    def wreads(k0, k1):
        for kb in range(k0, k1):
            o = 8192*kb
            A(f"ds_read_b64_tr_b16 v[{vK+4*kb}:{vK+4*kb+1}], v{vWA} offset:{o}")
            A(f"ds_read_b64_tr_b16 v[{vK+4*kb+2}:{vK+4*kb+3}], v{vWA} offset:{o+1024}")
    def mf(kb, first):
        c = "0" if first else f"v[{vACC}:{vACC+3}]"
        A(f"v_mfma_f32_16x16x32_bf16 v[{vACC}:{vACC+3}], v[{vK+4*kb}:{vK+4*kb+3}], v[{vQ+4*kb}:{vQ+4*kb+3}], {c}")
    vAB = vW
    def actreads(n, swz=False):
        for kb in range(n):
            A(f"ds_read_b128 v[{vQ+4*kb}:{vQ+4*kb+3}], v{vAB if (swz and kb & 1) else vAA} offset:{512*kb}")
    sFA, sRA, sPE = 12, 10, 14
    def late_setup(wbase, padd, pend):
        A(f"v_add_u32 v{vWA}, {wbase}, v{vTR}")
        A(f"v_add_u32 v{vAA}, {AF}, v{vACT}")
        afswz(vAA)
        A(f"v_xor_b32 v{vAB}, 64, v{vAA}")
        A(f"v_and_b32 v{vTMP2}, 4, v0")
        A(f"v_lshlrev_b32 v{vPUB}, 10, v{vTMP2}")
        A(f"v_and_b32 v{vTMP2}, 3, v0")
        A(f"v_lshl_or_b32 v{vPUB}, v{vTMP2}, 5, v{vPUB}")
        A(f"v_lshrrev_b32 v{vTMP2}, 4, v0")
        A(f"v_lshl_or_b32 v{vPUB}, v{vTMP2}, 3, v{vPUB}")
        A(f"s_lshl3_add_u32 s{sTMP}, s{sCB}, s{sC}")
        A(f"s_lshl_b32 s{sTMP}, s{sTMP}, 6")
        A(f"s_add_u32 s{sTMP}, s{sTMP}, s{sRBK}")
        A(f"s_lshl_b32 s{sTMP}, s{sTMP}, 7")
        ws_addr(sFA, WS_FP + 128*padd, sTMP)
        A(f"s_mov_b32 s{sPE}, {pend}")
        setscale(LF)
        A(f"v_mov_b32 v{vAX}, 0")
        A(f"s_mov_b32 s{sWDN}, 21")
        A(f"s_add_u32 s{sTMP}, s{sKB0}, s{sC}")
        A(f"s_lshl_b32 s{sTMP}, s{sTMP}, 11")
    sRET = 6
    def wcatch():
        d = g.lab("L_wc")
        A(f"s_cmp_lt_u32 s{sPROG}, s{sWDN}")
        A(f"s_cbranch_scc1 {d}")
        A(f"s_call_b64 s[{sRET}:{sRET+1}], L_wcatch")
        A(f"{d}:")
    def late_wait():
        l = g.lab("L_lw"); d = g.lab("L_lwd")
        A(f"{l}:")
        A(f"ds_read_b64 v[{vTMP}:{vTMP+1}], v9 offset:{F_PROG}")
        A("s_waitcnt lgkmcnt(0)")
        A(f"v_readfirstlane_b32 s{sTMP}, v{vTMP+1}")
        A(f"v_readfirstlane_b32 s{sPROG}, v{vTMP}")
        A(f"s_cmp_lg_u32 s{sTMP}, 0")
        A(f"s_cbranch_scc1 {d}")
        wcatch()
        A(f"s_branch {l}")
        A(f"{d}:")
    def late_mid():
        A(f"s_add_u32 s{sTMP2}, s{sPROG}, {opt.midahead}")
        A(f"s_min_u32 s{sTMP2}, s{sTMP2}, s{sPE}")
        wcatch()
        wait_prog(True, sTMP2)
        wcatch()
    vPG = 126
    def late_post_issue():
        if opt.lflow == 1: A(f"ds_read_b32 v{vPG}, v9 offset:{F_PROG}")
    def late_post():
        if opt.lflow != 1: return
        A("s_waitcnt lgkmcnt(0)")
        A(f"v_readfirstlane_b32 s{sPROG}, v{vPG}")
        wcatch()

    if opt.cprio: A(f"s_setprio {opt.cprio}")
    signal(F_ERD)
    A(f"s_cmp_eq_u32 s3, 9")
    A("s_cbranch_scc1 L_poller")
    if opt.notif:
        A(f"s_cmp_eq_u32 s3, 10")
        A("s_cbranch_scc1 L_notif")
    if opt.nocomm:
        signal(F_FREE0); signal(F_FREE1)
        A("s_branch L_exit")
    def egloop(last, name, lead=None, nrep=0):
        A(f"L_eg_loop{name}:")
        A(f"ds_read_b128 v[{vB}:{vB+3}], v{vAA}")
        wait_prog(True, sCNT)
        A(f"ds_read_b64_tr_b16 v[{vW}:{vW+1}], v{vWA}")
        A(f"ds_read_b64_tr_b16 v[{vW+2}:{vW+3}], v{vWA} offset:1024")
        if lead is not None and lead >= 0:
            A(f"s_cmp_lg_u32 s{sCNT}, {last - lead}")
            A(f"s_cbranch_scc1 L_eg_nf{name}")
            flag_now(nrep)
            A(f"L_eg_nf{name}:")
        A(f"v_add_u32 v{vWA}, 8192, v{vWA}")
        A(f"v_add_u32 v{vAA}, 512, v{vAA}")
        A(f"s_add_u32 s{sCNT}, s{sCNT}, 1")
        A(f"s_cmp_le_u32 s{sCNT}, {last}")
        A("s_waitcnt lgkmcnt(0)")
        A(f"v_mfma_f32_16x16x32_bf16 v[{vACC}:{vACC+3}], v[{vW}:{vW+3}], v[{vB}:{vB+3}], v[{vACC}:{vACC+3}]")
        A(f"s_cbranch_scc1 L_eg_loop{name}")
    A(f"s_cmp_ge_u32 s{sC}, 4")
    A("s_cbranch_scc1 L_noq")
    A(f"v_and_b32 v{vTMP2}, 7, v0")
    A(f"v_lshlrev_b32 v{vSTW}, 8, v{vTMP2}")
    A(f"v_and_b32 v{vTMP2}, 8, v0")
    A(f"v_lshl_or_b32 v{vSTW}, v{vTMP2}, 2, v{vSTW}")
    A(f"v_lshrrev_b32 v{vTMP3}, 4, v0")
    A(f"v_lshl_or_b32 v{vSTW}, v{vTMP3}, 3, v{vSTW}")
    A(f"s_lshl_b32 s{sTMP}, s{sC}, 6")
    A(f"s_add_u32 s{sTMP}, s{sTMP}, {ST}")
    A(f"v_add_u32 v{vSTW}, s{sTMP}, v{vSTW}")
    A(f"v_add_u32 v{vSTR}, {ST}, v{vL16}")
    A(f"v_and_b32 v{vPUB}, 0xf0, v{vL16}")
    A(f"v_lshl_or_b32 v{vPUB}, v{vTMP3}, 16, v{vPUB}")
    A(f"v_lshlrev_b32 v{vTMP3}, 2, v{vTMP3}")
    A(f"v_lshl_or_b32 v{vTMP3}, v{vTMP2}, 1, v{vTMP3}")
    tagbits(vB, vTMP3)
    setscale(LQ)
    A(f"s_and_b32 s{sTMP3}, s{sU}, 7")
    A(f"s_lshl3_add_u32 s{sTMP}, s{sG}, s{sTMP3}")
    A(f"s_lshl3_add_u32 s{sTMP}, s{sTMP}, s{sKS}")
    A(f"s_lshl_b32 s{sTMP}, s{sTMP}, 8")
    ws_addr(sGA, WS_QP, sTMP)
    A(f"s_mul_i32 s{sTMP}, s{sG}, {32*CS}")
    ws_addr(sGB, WS_QC, sTMP)
    A(f"s_lshl_b32 s{sTMP}, s{sC}, 1")
    A(f"s_xor_b32 s{sTMP}, s{sTMP}, s{sC}")
    A(f"s_lshl_b32 s{sTMP}, s{sTMP}, 5")
    A(f"v_xor_b32 v{vWA}, s{sTMP}, v{vTR}")
    A(f"v_add_u32 v{vWA}, {RQ}, v{vWA}")
    A(f"v_xor_b32 v{vW}, 32, v{vWA}")
    A(f"v_add_u32 v{vAA}, {XF}, v{vACT}")
    A(f"v_cmp_eq_u32 s[4:5], 0, v{vTMP2}")
    cwait(F_ERD, NWAVES - 1, sleep=1)
    wait_prog(False, 4, sleep=1)
    if opt.qlead >= 0: flag_now("q")
    actreads(4)
    wreads(0, 4)
    for kb in range(4):
        A(f"s_waitcnt lgkmcnt({6 if kb == 0 else 6})")
        A(f"ds_read_b64_tr_b16 v[{vK+16+4*kb}:{vK+16+4*kb+1}], v{vW} offset:{8192*kb}")
        A(f"ds_read_b64_tr_b16 v[{vK+16+4*kb+2}:{vK+16+4*kb+3}], v{vW} offset:{8192*kb+1024}")
        mf(kb, kb == 0)
    A("s_mov_b64 exec, 3")
    A(f"ds_add_u32 v9, v{vONE} offset:{F_FREE0}")
    A("s_mov_b64 exec, -1")
    for kb in range(4):
        A(f"s_waitcnt lgkmcnt({7-2*kb})")
        c1 = "0" if kb == 0 else f"v[{vACC2}:{vACC2+3}]"
        A(f"v_mfma_f32_16x16x32_bf16 v[{vACC2}:{vACC2+3}], v[{vK+16+4*kb}:{vK+16+4*kb+3}], v[{vQ+4*kb}:{vQ+4*kb+3}], {c1}")
    A("s_nop 7")
    for r in range(4): A(f"v_cndmask_b32 v{vACC+r}, v{vACC2+r}, v{vACC+r}, s[4:5]")
    encode(None, vB, vB+1)
    staged(F_PUB0, 3, 4 << 16, "q" if opt.qhint else None)
    if opt.ackst:
        stamp(2); A("s_waitcnt vmcnt(0)"); stamp(5)
    A(f"v_mov_b32 v{vAX}, 0")
    A("L_noq:")
    if not opt.ackst: stamp(2)
    A(f"s_cmp_ge_u32 s{sR}, 16")
    A("s_cbranch_scc1 L_roleM")
    A(f"s_cmp_eq_u32 s{sROLE}, 2")
    A("s_cbranch_scc1 L_bc_late")
    pub_voff(5)
    setscale(LG)
    A(f"s_and_b32 s{sTMP}, s{sBETA}, -4")
    A(f"s_lshr_b32 s{sTMP2}, s{sC}, 1")
    A(f"s_add_u32 s{sTMP}, s{sTMP}, s{sTMP2}")
    A(f"s_and_b32 s{sTMP2}, s{sBETA}, 3")
    A(f"s_lshl2_add_u32 s{sTMP}, s{sTMP}, s{sTMP2}")
    A(f"s_and_b32 s{sTMP2}, s{sC}, 1")
    A(f"s_lshl1_add_u32 s{sTMP}, s{sTMP}, s{sTMP2}")
    A(f"s_lshl_b32 s{sTMP}, s{sTMP}, 8")
    ws_addr(sGA, WS_GP, sTMP)
    def hc_addr():
        A(f"s_and_b32 s{sTMP}, s{sBETA}, -4")
        A(f"s_or_b32 s{sTMP2}, s{sBETA}, 3")
        A(f"s_mul_i32 s{sTMP}, s{sTMP}, 147")
        A(f"s_mul_i32 s{sTMP2}, s{sTMP2}, 147")
        A(f"s_lshr_b32 s{sTMP}, s{sTMP}, 10")
        A(f"s_lshr_b32 s{sTMP2}, s{sTMP2}, 10")
        A(f"s_cmp_eq_u32 s{sTMP}, s{sTMP2}")
        A(f"s_cselect_b32 s{sNH}, {HREP}, {2*HREP}")
        A(f"s_mul_i32 s{sTMP}, s{sTMP}, {CS*HREP}")
        ws_addr(sGB, WS_HC, sTMP)
    if not opt.notif: hc_addr()
    for r in range(4): A(f"v_mov_b32 v{vACC+r}, 0")
    A(f"v_mov_b32 v{vWA}, v{vTR}")
    A(f"v_add_u32 v{vAA}, {XF + 2048}, v{vACT}")
    A(f"s_mov_b32 s{sCNT}, 5")
    wait_prog(False, opt.xgat + 1, sleep=1)
    egloop(12, "G1")
    signal(F_FREE1)
    stamp(3)
    egloop(20, "G2", opt.hlead, "h")
    A("s_nop 7")
    publish(vACC)
    if opt.hlead < 0 and not opt.notif: flag(F_PUB1, "h")
    else: A("s_mov_b64 exec, -1")
    stamp(6)
    if opt.ackst:
        A("s_waitcnt vmcnt(0)"); stamp(4)
    A("L_bc_late:")
    late_setup(RA, 0, 28)
    ws_addr(sGA, WS_OP, sTMP)
    A(f"s_lshl_b32 s{sTMP2}, s{sC}, 4")
    A(f"v_and_b32 v{vTMP3}, 32, v0")
    A(f"v_lshlrev_b32 v{vTMP3}, 2, v{vTMP3}")
    A(f"v_add3_u32 v{vTMP3}, v{vTMP3}, s{sTMP2}, v9")
    A(f"s_lshl_b32 s{sTMP3}, s{sLR}, 3")
    A(f"v_subrev_u32 v{vAFW}, s{sTMP3}, v0")
    A(f"v_and_b32 v{vAFW}, 62, v{vAFW}")
    A(f"v_lshlrev_b32 v{vAFW}, 6, v{vAFW}")
    A(f"v_and_b32 v{vTMP2}, 1, v0")
    A(f"v_lshl_or_b32 v{vAFW}, v{vTMP2}, 3, v{vAFW}")
    A(f"s_add_u32 s{sTMP2}, s{sTMP2}, {AF}")
    A(f"v_add_u32 v{vAFW}, s{sTMP2}, v{vAFW}")
    afswz(vAFW)
    late_wait()
    stamp(7)
    def owork(i):
        if i == 2: late_post_issue()
        if i == 3: late_post()
    gather(mid=late_mid, cntstamp=13, sleep=opt.gsleep, work=owork, kind='B', defer=True)
    if STAMP == 1: A("s_waitcnt lgkmcnt(0)")
    cwait_rd(F_WRDY, 1, 0, lambda: A(f"ds_read_b128 v[{vSCA}:{vSCA+3}], v{vTMP3} offset:{F_WT}"))
    stamp(8)
    A(f"s_cmp_lg_u32 s{sEM}, 0")
    A("s_cbranch_scc1 L_onofix")
    A("s_call_b64 s[6:7], L_fix")
    A("L_onofix:")
    for i in range(4): acc(i, vS0, i == 0)
    A("s_branch L_late")

    A("L_roleM:")
    vXr, vGWr = vK, vK + 8
    A(f"s_cmp_lt_u32 s{sC}, 4")
    A("s_cbranch_scc1 L_nogate")
    wait_prog(False, opt.ggate, sleep=1)
    A(f"s_and_b32 s{sTMP}, s{sR}, 1")
    A(f"s_lshl2_add_u32 s{sTMP}, s{sTMP}, s{sC}")
    A(f"s_sub_u32 s{sTMP3}, s{sTMP}, 4")
    A(f"s_lshl_b32 s{sTMP}, s{sTMP3}, 11")
    A(f"v_add_u32 v{vTMP3}, s{sTMP}, v{vL16}")
    for i in range(2):
        A(f"global_load_dwordx4 v[{vXr+4*i}:{vXr+4*i+3}], v{vTMP3}, s[{sX}:{sX+1}] offset:{1024*i}")
        A(f"global_load_dwordx4 v[{vGWr+4*i}:{vGWr+4*i+3}], v{vL16}, s[{sGW}:{sGW+1}] offset:{1024*i}")
    A(f"v_mov_b32 v{vACC2}, 0")
    A("s_waitcnt vmcnt(0)")
    for i in range(8):
        A(f"v_lshlrev_b32 v{vW}, 16, v{vXr+i}")
        A(f"v_and_b32 v{vW+1}, 0xffff0000, v{vXr+i}")
        A(f"v_lshlrev_b32 v{vW+2}, 16, v{vGWr+i}")
        A(f"v_and_b32 v{vW+3}, 0xffff0000, v{vGWr+i}")
        A(f"v_mul_f32 v{vW}, v{vW}, v{vW+2}")
        A(f"v_mul_f32 v{vW+1}, v{vW+1}, v{vW+3}")
        A(f"v_cvt_pk_bf16_f32 v{vW}, v{vW}, v{vW+1}")
        A(f"v_lshlrev_b32 v{vW+1}, 16, v{vW}")
        A(f"v_and_b32 v{vW}, 0xffff0000, v{vW}")
        A(f"v_add_f32 v{vACC2}, v{vACC2}, v{vW+1}")
        A(f"v_add_f32 v{vACC2}, v{vACC2}, v{vW}")
    for off in (0x041F, 0x081F, 0x101F, 0x201F, 0x401F):
        A(f"ds_swizzle_b32 v{vW}, v{vACC2} offset:{off:#x}")
        A("s_waitcnt lgkmcnt(0)")
        A(f"v_add_f32 v{vACC2}, v{vACC2}, v{vW}")
    A(f"v_mov_b32 v{vW}, v{vACC2}")
    A("s_nop 1")
    A(f"v_permlane32_swap_b32 v{vACC2}, v{vW}")
    A(f"v_add_f32 v{vACC2}, v{vACC2}, v{vW}")
    def rbf(v):
        A(f"v_cvt_pk_bf16_f32 v{v}, v{v}, v{v}")
        A(f"v_and_b32 v{v}, 0xffff0000, v{v}")
    rbf(vACC2)
    A(f"v_mul_f32 v{vACC2}, 0xbfb8aa3b, v{vACC2}")
    A(f"v_exp_f32 v{vACC2}, v{vACC2}")
    A("s_nop 0")
    A(f"v_add_f32 v{vACC2}, 1.0, v{vACC2}")
    A(f"v_rcp_f32 v{vACC2}, v{vACC2}")
    A("s_nop 0")
    rbf(vACC2)
    A(f"s_lshl_b32 s{sTMP}, s{sTMP3}, 2")
    A(f"v_add_u32 v{vTMP2}, s{sTMP}, v9")
    A("s_mov_b64 exec, 1")
    A(f"ds_write_b32 v{vTMP2}, v{vACC2} offset:{F_G}")
    A("s_mov_b64 exec, -1")
    A("L_nogate:")
    A(f"s_lshl2_add_u32 s{sTMP}, s{sBB}, s{sG}")
    A(f"s_lshl3_add_u32 s{sTMP}, s{sTMP}, s{sC}")
    A(f"s_lshl_b32 s{sTMP}, s{sTMP}, 11")
    ws_addr(sGA, WS_QP, sTMP)
    A(f"v_bfe_u32 v{vTMP2}, v0, 2, 2")
    A(f"v_and_b32 v{vTMP3}, 3, v0")
    A(f"v_lshl_add_u32 v{vTMP2}, v{vTMP2}, 3, v{vTMP3}")
    A(f"v_lshlrev_b32 v{vWA}, 8, v{vTMP2}")
    A(f"v_lshrrev_b32 v{vTMP2}, 5, v0")
    A(f"v_and_b32 v{vTMP3}, 7, v0")
    A(f"v_xor_b32 v{vTMP2}, v{vTMP2}, v{vTMP3}")
    A(f"v_lshl_or_b32 v{vWA}, v{vTMP2}, 5, v{vWA}")
    A(f"v_and_b32 v{vTMP2}, 16, v0")
    A(f"s_lshl_b32 s{sTMP}, s{sC}, 13")
    A(f"v_add3_u32 v{vWA}, v{vWA}, v{vTMP2}, s{sTMP}")
    vQA, vMX, vPA = vW, vW + 1, vW + 2
    A(f"v_and_b32 v{vQA}, 30, v0")
    A(f"v_lshlrev_b32 v{vQA}, 6, v{vQA}")
    A(f"v_and_b32 v{vTMP2}, 1, v0")
    A(f"v_lshl_or_b32 v{vQA}, v{vTMP2}, 3, v{vQA}")
    A(f"v_lshrrev_b32 v{vTMP2}, 5, v0")
    A(f"v_lshl_or_b32 v{vQA}, v{vTMP2}, 2, v{vQA}")
    A(f"s_lshl_b32 s{sTMP}, s{sC}, 4")
    A(f"s_add_u32 s{sTMP}, s{sTMP}, {QF}")
    A(f"v_add_u32 v{vQA}, s{sTMP}, v{vQA}")
    A(f"v_lshl_add_u32 v{vMX}, v{vTMP3}, 2, v9")
    A(f"s_lshl_b32 s{sTMP}, s{sC}, 9")
    A(f"s_add_u32 s{sTMP}, s{sTMP}, {PF}")
    A(f"v_add_u32 v{vPA}, s{sTMP}, v{vACT}")
    vOTP, vOTA = vRW, vRR
    A(f"v_lshrrev_b32 v{vTMP3}, 4, v0")
    A(f"v_and_b32 v{vTMP2}, 7, v0")
    A(f"v_lshlrev_b32 v{vSTW}, 8, v{vTMP2}")
    A(f"v_lshl_or_b32 v{vSTW}, v{vTMP3}, 3, v{vSTW}")
    A(f"s_lshl_b32 s{sTMP}, s{sC}, 5")
    A(f"s_add_u32 s{sTMP}, s{sTMP}, {ST}")
    A(f"v_add_u32 v{vSTW}, s{sTMP}, v{vSTW}")
    A(f"v_add_u32 v{vSTR}, {ST}, v{vL16}")
    A(f"v_and_b32 v{vPUB}, 0x1f0, v{vL16}")
    A(f"v_and_b32 v{vTMP2}, 32, v0")
    A(f"v_lshl_or_b32 v{vPUB}, v{vTMP2}, 9, v{vPUB}")
    A(f"s_and_b32 s{sTMP}, s{sC}, 1")
    A(f"s_lshl_b32 s{sTMP}, s{sTMP}, 4")
    A(f"v_lshl_or_b32 v{vTMP3}, v{vTMP3}, 2, s{sTMP}")
    tagbits(vOTP, vTMP3)
    if opt.qhint: cwait(F_QRDY, 1, sleep=1)
    else: wait_prog(False, opt.qgate, sleep=1)
    stamp(3)
    def kfrags():
        A(f"s_add_u32 s{sTMP2}, s{sC}, 5")
        wait_prog(True, sTMP2)
        for db in range(4):
            if db: A(f"v_xor_b32 v{vAA}, {64*db}, v{vWA}")
            a = vAA if db else vWA
            A(f"ds_read_b128 v[{vK+4*db}:{vK+4*db+3}], v{a}")
            A(f"ds_read_b128 v[{vK+16+4*db}:{vK+16+4*db+3}], v{a} offset:1024")
        signal(F_FREE1)
        A(f"v_add_u32 v{vAA}, {QF}, v{vACT}")
    setsca(LQ)
    def qwork(i): acc(i, vS0, i == 0)
    gather(nld=4, mid=kfrags, cntstamp=11, sleep=opt.qsleep, work=qwork)
    stamp(4)
    A("s_nop 1")
    A(f"v_permlane32_swap_b32 v{vS0}, v{vS0+2}")
    A(f"v_permlane32_swap_b32 v{vS0+1}, v{vS0+3}")
    A(f"v_add_f32 v{vS0}, v{vS0}, v{vS0+2}")
    A(f"v_add_f32 v{vS0+1}, v{vS0+1}, v{vS0+3}")
    A(f"v_cvt_pk_bf16_f32 v{vGA}, v{vS0}, v{vS0+1}")
    A(f"ds_write_b32 v{vQA}, v{vGA}")
    signal(F_BQ)
    A(f"s_lshl_b32 s{sTMP}, s{sG}, 5")
    A(f"s_add_u32 s{sTMP}, s{sTMP}, s{sBB}")
    A(f"s_lshl2_add_u32 s{sTMP}, s{sTMP}, s{sSPL}")
    A(f"s_lshl_b32 s{sTMP}, s{sTMP}, 9")
    ws_addr(sGA, WS_OP, sTMP)
    A(f"s_lshl2_add_u32 s{sTMP3}, s{sBB}, s{sSPL}")
    A(f"s_mul_i32 s{sTMP}, s{sG}, {32*CS}")
    ws_addr(sGB, WS_OC, sTMP)
    A(f"s_lshl_b32 s{sTMP}, s{sG}, 5")
    A(f"s_add_u32 s{sTMP}, s{sTMP}, s{sTMP3}")
    A(f"s_lshl_b32 s{sTMP}, s{sTMP}, 6")
    ws_addr(sFA, WS_LSE, sTMP)
    cbits = struct.unpack("<I", struct.pack("<f", math.log2(math.e) / math.sqrt(128.0)))[0]
    A(f"s_mov_b32 s{sTMP2}, {cbits:#x}")
    if STAMP == 1: A("s_waitcnt lgkmcnt(0)")
    if opt.spec: cwait_rd(F_BQ, 8, 4, lambda: actreads(4))
    else:
        cwait(F_BQ, 8); actreads(4)
    for db in range(4):
        A(f"s_waitcnt lgkmcnt({3-db})")
        c0 = "0" if db == 0 else f"v[{vACC}:{vACC+3}]"
        c1 = "0" if db == 0 else f"v[{vACC2}:{vACC2+3}]"
        A(f"v_mfma_f32_16x16x32_bf16 v[{vACC}:{vACC+3}], v[{vK+4*db}:{vK+4*db+3}], v[{vQ+4*db}:{vQ+4*db+3}], {c0}")
        A(f"v_mfma_f32_16x16x32_bf16 v[{vACC2}:{vACC2+3}], v[{vK+16+4*db}:{vK+16+4*db+3}], v[{vQ+4*db}:{vQ+4*db+3}], {c1}")
    A(f"v_add_u32 v{vAA}, {PF}, v{vACT}")
    A(f"v_add_u32 v{vWA}, {RB}, v{vTR}")
    vONES = vGA
    for r in range(4): A(f"v_mov_b32 v{vONES+r}, 0x3f803f80")
    A("s_nop 1")
    A(f"v_max3_f32 v{vTMP2}, v{vACC}, v{vACC+1}, v{vACC+2}")
    A(f"v_max3_f32 v{vTMP2}, v{vTMP2}, v{vACC+3}, v{vACC2}")
    A(f"v_max3_f32 v{vTMP2}, v{vTMP2}, v{vACC2+1}, v{vACC2+2}")
    A(f"v_max_f32 v{vTMP2}, v{vTMP2}, v{vACC2+3}")
    A("s_mov_b32 exec_lo, 0x00ff00ff\ns_mov_b32 exec_hi, 0x00ff00ff")
    A(f"ds_max_f32 v{vMX}, v{vTMP2} offset:{F_MAX}")
    signal(F_BM)
    vM = vLS
    cwait_rd(F_BM, 8, 1, lambda: A(f"ds_read_b32 v{vM}, v{vMX} offset:{F_MAX}"))
    if opt.olead >= 0 and opt.oearly:
        A(f"ds_read_b32 v{vTMP}, v9 offset:{F_PROG}")
    A("s_waitcnt lgkmcnt(0)")
    A(f"s_mov_b32 s{sWDN}, 0")
    if opt.olead >= 0 and opt.oearly:
        A(f"v_readfirstlane_b32 s{sPROG}, v{vTMP}")
        A(f"s_cmp_lt_u32 s{sPROG}, {20 - opt.olead}")
        A("s_cbranch_scc1 L_of_no1")
        flag_now("q")
        A(f"s_mov_b32 s{sWDN}, 1")
        A("L_of_no1:")
    A(f"v_mul_f32 v{vM}, s{sTMP2}, v{vM}")
    for r in range(8):
        A(f"v_fma_f32 v{vACC+r}, v{vACC+r}, s{sTMP2}, -v{vM}")
    for r in range(8):
        A(f"v_exp_f32 v{vACC+r}, v{vACC+r}")
    A("s_nop 0")
    for r in range(4):
        A(f"v_cvt_pk_bf16_f32 v{vB+r}, v{vACC+2*r}, v{vACC+2*r+1}")
    A(f"ds_write_b128 v{vPA}, v[{vB}:{vB+3}]")
    signal(F_BP)
    if opt.spec: cwait_rd(F_BP, 8, 8, lambda: actreads(8))
    else:
        cwait(F_BP, 8); actreads(8)
    A(f"ds_read_b32 v{vTMP}, v9 offset:{F_PROG}")
    for kb in range(8):
        A(f"s_waitcnt lgkmcnt({8-kb})")
        c1 = "0" if kb == 0 else f"v[{vACC2}:{vACC2+3}]"
        A(f"v_mfma_f32_16x16x32_bf16 v[{vACC2}:{vACC2+3}], v[{vONES}:{vONES+3}], v[{vQ+4*kb}:{vQ+4*kb+3}], {c1}")
    A("s_waitcnt lgkmcnt(0)")
    A(f"v_readfirstlane_b32 s{sPROG}, v{vTMP}")
    stamp(5)
    vRL = vLS + 2
    def lse_part():
        A(f"v_log_f32 v{vLS+1}, v{vACC2}")
        A(f"v_rcp_f32 v{vRL}, v{vACC2}")
        A("s_nop 0")
        A(f"v_mul_f32 v{vRL}, {fbits(2.0**LO_):#x}, v{vRL}")
        d = g.lab("L_nolse")
        A(f"s_cmp_lg_u32 s{sC}, 0")
        A(f"s_cbranch_scc1 {d}")
        A(f"v_add_f32 v{vM}, v{vM}, v{vLS+1}")
        A(f"v_mov_b32 v{vLS+1}, s{sT}")
        A(f"v_lshlrev_b32 v{vTMP2}, 3, v0")
        A("s_mov_b64 exec, 0xff")
        if not (opt.dbg & 1):
            A(f"global_store_dwordx2 v{vTMP2}, v[{vLS}:{vLS+1}], s[{sFA}:{sFA+1}] sc1")
            if opt.lcnt:
                A(f"s_bfm_b64 exec, {NREP}, 0")
                A(f"v_mov_b32 v{vTMP2}, 0x10000")
                A(f"global_atomic_add v{vFLG}, v{vTMP2}, s[{sGB}:{sGB+1}] sc1")
        A("s_mov_b64 exec, -1")
        A(f"{d}:")
    A(f"s_cmp_lt_u32 s{sPROG}, 20")
    A("s_cbranch_scc1 L_pv_slow")
    def oflag():
        if opt.olead < 0: return
        d = g.lab("L_of")
        A(f"s_cmp_lg_u32 s{sWDN}, 0")
        A(f"s_cbranch_scc1 {d}")
        flag_now("q")
        A(f"{d}:")
    wreads(0, 7)
    lse_part()
    oflag()
    for kb in range(7):
        A(f"s_waitcnt lgkmcnt({14-2*kb if kb else 12})")
        if kb == 0: wreads(7, 8)
        mf(kb, kb == 0)
    A("s_branch L_pv_last")
    pad("M")
    A("L_pv_slow:")
    A("s_nop 4")
    lse_part()
    for kb in range(8):
        wait_prog(False, 12 + kb + 1)
        wreads(kb, kb+1)
        if 12 + kb + 1 == 20 - opt.olead: oflag()
        if kb:
            A("s_waitcnt lgkmcnt(2)")
            mf(kb-1, kb == 1)
    A("L_pv_last:")
    A("s_waitcnt lgkmcnt(0)")
    mf(7, False)
    A("s_nop 7")
    encode(vRL, vOTP, vOTA)
    A("s_mov_b32 exec_lo, 0x00ff00ff\ns_mov_b32 exec_hi, 0x00ff00ff")
    staged(F_PUB1, 7, 2 << 14, "q" if (opt.olead < 0 and not opt.notif) else None)
    stamp(6)
    if opt.ackst:
        A("s_waitcnt vmcnt(0)"); stamp(3)
    A(f"s_and_b32 s{sTMP2}, s{sR}, 1")
    A(f"s_lshl_b32 s{sTMP2}, s{sTMP2}, 4")
    A(f"v_and_b32 v{vTMP2}, 12, v0")
    A(f"v_add3_u32 v{vTMP2}, v{vTMP2}, s{sTMP2}, v9")
    A(f"ds_read_b32 v{vRG}, v{vTMP2} offset:{F_G}")
    A(f"s_lshl4_add_u32 s{sTMP}, s{sXCD}, s{sR}")
    A(f"s_sub_u32 s{sTMP3}, s{sTMP}, 16")
    A(f"s_lshl3_add_u32 s{sTMP}, s{sTMP3}, s{sC}")
    A(f"s_lshl_b32 s{sTMP}, s{sTMP}, 9")
    ws_addr(sRA, WS_FP, sTMP)
    A(f"v_lshlrev_b32 v{vRR}, 2, v0")
    A(f"v_add_u32 v{vRR}, {RS}, v{vRR}")
    A(f"s_lshl_b32 s{sTMP}, s{sC}, 8")
    A(f"v_add_u32 v{vRW}, s{sTMP}, v{vRR}")
    A(f"v_and_b32 v{vOUT}, 12, v0")
    A(f"v_lshlrev_b32 v{vOUT}, 9, v{vOUT}")
    A(f"v_and_b32 v{vTMP2}, 3, v0")
    A(f"v_lshl_or_b32 v{vOUT}, v{vTMP2}, 3, v{vOUT}")
    A(f"v_lshrrev_b32 v{vTMP2}, 4, v0")
    A(f"v_lshl_or_b32 v{vOUT}, v{vTMP2}, 1, v{vOUT}")
    A(f"s_lshl_b32 s{sTMP2}, s{sTMP2}, 9")
    A(f"s_lshr_b32 s{sTMP3}, s{sTMP3}, 1")
    A(f"s_lshl_b32 s{sTMP3}, s{sTMP3}, 5")
    A(f"s_add_u32 s{sTMP2}, s{sTMP2}, s{sTMP3}")
    A(f"v_add_u32 v{vOUT}, s{sTMP2}, v{vOUT}")
    A("s_waitcnt lgkmcnt(0)")
    A(f"s_cmp_lt_u32 s{sC}, 4")
    A("s_cbranch_scc1 L_wg_done")
    A(f"v_sub_f32 v{vRG}, 1.0, v{vRG}")
    rbf(vRG)
    A("L_wg_done:")
    A(f"v_mul_f32 v{vRG}, {fbits(2.0**-LF):#x}, v{vRG}")
    setsca(LG)
    late_setup(RA, 16, 27)
    A(f"s_add_u32 s{sTMP}, s{sC}, s{sLR}")
    A(f"s_cmp_ge_u32 s{sTMP}, 7")
    A(f"s_cselect_b32 s{sTMP2}, 7, 0")
    A(f"s_sub_u32 s{sTMP}, s{sTMP}, s{sTMP2}")
    A(f"s_add_u32 s{sTMP}, s{sTMP}, s{sKB0}")
    A(f"s_lshl_b32 s{sTMP}, s{sTMP}, 11")
    ws_addr(sGA, WS_GP, sTMP)
    for r in range(4): A(f"v_mov_b32 v{vS0+r}, 0")
    late_wait()
    A(f"s_cmp_eq_u32 s{sC}, 7")
    A("s_cbranch_scc1 L_late")
    stamp(7)
    def rnd4(v):
        A(f"v_cvt_pk_bf16_f32 v{vB}, v{v}, v{v+1}")
        A(f"v_cvt_pk_bf16_f32 v{vB+1}, v{v+2}, v{v+3}")
        for h in range(2):
            A(f"v_lshlrev_b32 v{v+2*h}, 16, v{vB+h}")
            A(f"v_and_b32 v{v+2*h+1}, 0xffff0000, v{vB+h}")
    def hwork(i):
        if i == 2: late_post_issue()
        if i == 3: late_post()
        acc(i, vS0 if i < 2 else vS1, i in (0, 2))
        if i == 1:
            for r in range(4): A(f"v_max_f32 v{vS0+r}, 0, v{vS0+r}")
            if opt.hround: rnd4(vS0)
        if i == 3:
            if opt.hround: rnd4(vS1)
            for r in (0, 2): A(f"v_pk_mul_f32 v[{vS0+r}:{vS0+r+1}], v[{vS0+r}:{vS0+r+1}], v[{vS1+r}:{vS1+r+1}]")
    gather(mid=late_mid, cntstamp=13, sleep=opt.gsleep, work=hwork)
    stamp(8)

    if opt.touch: A("s_branch L_late")
    pad("A")
    A("L_late:")
    A(f"v_cvt_pk_bf16_f32 v{vGA}, v{vS0}, v{vS0+1}")
    A(f"v_cvt_pk_bf16_f32 v{vGA+1}, v{vS0+2}, v{vS0+3}")
    A(f"ds_write_b64 v{vAFW}, v[{vGA}:{vGA+1}]")
    if opt.lflow == 1:
        signal(F_BA)
        if opt.fine: stamp(3)
        A(f"s_cmp_eq_u32 s{sWDN}, 99")
        A("s_cbranch_scc1 L_late_bar")
        A("L_late_spin:")
        A(f"ds_read2_b32 v[{vTMP}:{vTMP+1}], v9 offset0:{F_PROG//4} offset1:{F_BA//4}")
        A("s_waitcnt lgkmcnt(0)")
        A(f"v_readfirstlane_b32 s{sPROG}, v{vTMP}")
        A(f"v_readfirstlane_b32 s{sTMP2}, v{vTMP+1}")
        wcatch()
        A(f"s_cmp_eq_u32 s{sWDN}, 99")
        A("s_cbranch_scc1 L_late_bar0")
        A(f"s_cmp_lt_u32 s{sWDN}, 27")
        A("s_cbranch_scc1 L_late_spin")
        A(f"s_cmp_lt_u32 s{sTMP2}, 8")
        A("s_cbranch_scc1 L_late_spin")
        actreads(8, True)
        for kb in range(6):
            A(f"s_waitcnt lgkmcnt({7-kb})")
            mf(kb, kb == 0)
        A("s_barrier")
        wreads(6, 8)
        A("s_waitcnt lgkmcnt(2)")
        mf(6, False)
        A("s_waitcnt lgkmcnt(0)")
        mf(7, False)
        A("s_branch L_late_done")
        pad("A")
        A("L_late_bar:")
        A("s_waitcnt lgkmcnt(0)")
        A("L_late_bar0:")
        A("s_barrier")
        if opt.fine: stamp(4)
        actreads(8, True)
        for kb in range(8):
            A(f"s_waitcnt lgkmcnt({7-kb})")
            mf(kb, kb == 0)
    else:
        if opt.fine: stamp(3)
        A(f"s_cmp_ge_u32 s{sWDN}, {opt.wmin}")
        A("s_cbranch_scc1 L_late_bar")
        wait_prog(False, opt.wmin - 1)
        wcatch()
        A("L_late_bar:")
        A(f"s_cmp_eq_u32 s{sWDN}, 99")
        A("s_waitcnt lgkmcnt(0)")
        A("s_barrier")
        A("s_cbranch_scc1 L_late_act")
        wreads(opt.wmin - 21, 8)
        A("L_late_act:")
        if opt.fine: stamp(4)
        actreads(8, True)
        for kb in range(8):
            A(f"s_waitcnt lgkmcnt({7-kb})")
            mf(kb, kb == 0)
    A("L_late_done:")
    if opt.fine: stamp(5)
    A("s_nop 7")
    publish(vACC, sFA)
    A("s_mov_b64 exec, -1")
    stamp(9)
    A(f"s_cmp_ge_u32 s{sR}, 16")
    A("s_cbranch_scc1 L_red")
    A("s_branch L_exit")
    pad("A")
    A("L_red:")
    A(f"s_mov_b64 s[{sGA}:{sGA+1}], s[{sRA}:{sRA+1}]")
    if opt.fgate: cwait(F_FRDY, 1)
    A(f"v_mov_b32 v{vSCA}, v{vRG}")
    def fwork(i): acc(0, vS0, True)
    gather(nld=1, cntstamp=12, sleep=opt.fgsleep, work=fwork)
    if not opt.stq: stamp(2)
    A("s_nop 1")
    A(f"v_permlane32_swap_b32 v{vS0}, v{vS0+2}")
    A(f"v_permlane32_swap_b32 v{vS0+1}, v{vS0+3}")
    A(f"v_add_f32 v{vS0}, v{vS0}, v{vS0+2}")
    A(f"v_add_f32 v{vS0+1}, v{vS0+1}, v{vS0+3}")
    A("s_nop 1")
    A(f"v_permlane16_swap_b32 v{vS0}, v{vS0+1}")
    A(f"v_add_f32 v{vGA}, v{vS0}, v{vS0+1}")
    A(f"ds_write_b32 v{vRW}, v{vGA}")
    A("s_mov_b64 exec, 1")
    A(f"ds_add_rtn_u32 v{vTMP}, v9, v{vONE} offset:{F_RED}")
    A("s_mov_b64 exec, -1")
    for i in range(4):
        A(f"ds_read2st64_b32 v[{vGA+2*i}:{vGA+2*i+1}], v{vRR} offset0:{2*i} offset1:{2*i+1}")
    A("s_waitcnt lgkmcnt(4)")
    A(f"v_readfirstlane_b32 s{sTMP}, v{vTMP}")
    A(f"s_cmp_lg_u32 s{sTMP}, 7")
    A("s_cbranch_scc1 L_exit")
    A("s_waitcnt lgkmcnt(0)")
    A(f"v_pk_add_f32 v[{vGA}:{vGA+1}], v[{vGA}:{vGA+1}], v[{vGA+2}:{vGA+3}]")
    A(f"v_pk_add_f32 v[{vGA+4}:{vGA+5}], v[{vGA+4}:{vGA+5}], v[{vGA+6}:{vGA+7}]")
    A(f"v_pk_add_f32 v[{vGA}:{vGA+1}], v[{vGA}:{vGA+1}], v[{vGA+4}:{vGA+5}]")
    A(f"v_add_f32 v{vGA}, v{vGA}, v{vGA+1}")
    A(f"v_cvt_pk_bf16_f32 v{vGA}, v{vGA}, v{vGA}")
    A(f"global_store_short v{vOUT}, v{vGA}, s[{sOUT}:{sOUT+1}] {opt.outflags}")
    A(f"s_cmp_lg_u32 s2, 128")
    A("s_cbranch_scc1 L_noepoch")
    A("s_mov_b64 exec, 1")
    A(f"v_mov_b32 v{vTMP}, 0")
    A(f"global_store_dword v{vTMP}, v{vT}, s[{sWS}:{sWS+1}] sc1")
    A("s_mov_b64 exec, -1")
    A("L_noepoch:")
    if opt.fixdur:
        A(f"s_cmp_lg_u32 s2, {opt.fixwg}")
        A("s_cbranch_scc1 L_nofix")
        A("L_fixd:")
        A("s_memrealtime s[14:15]")
        A("s_waitcnt lgkmcnt(0)")
        A("s_sub_u32 s14, s14, s98")
        A(f"s_cmp_lt_u32 s14, {opt.fixdur}")
        A("s_cbranch_scc1 L_fixd")
        A("L_nofix:")
    if STAMP:
        A("s_waitcnt vmcnt(0)")
        stamp(1, True)
    A("s_branch L_exit")

    pad("A")
    A("L_wcatch:")
    for kb in range(8):
        nx = f"L_wcn{kb}"
        if kb < 7:
            A(f"s_cmp_gt_u32 s{sWDN}, {21+kb}")
            A(f"s_cbranch_scc1 {nx}")
        if kb:
            A(f"s_cmp_lt_u32 s{sPROG}, s{sWDN}")
            A("s_cbranch_scc1 L_wcret")
        wreads(kb, kb+1)
        if kb < 6: A(f"s_mov_b32 s{sWDN}, {22+kb}")
        elif kb == 6: A(f"s_mov_b32 s{sWDN}, s{sPE}")
        else: A(f"s_mov_b32 s{sWDN}, 99")
        if kb < 7: A(f"{nx}:")
    A("L_wcret:")
    A(f"s_setpc_b64 s[{sRET}:{sRET+1}]")

    A("L_encs:")
    A(f"v_lshrrev_b32 v{vTMP}, 23, v{vTMP}")
    A(f"v_subrev_u32 v{vTMP}, 126, v{vTMP}")
    A(f"v_ashrrev_i32 v{vTMP}, 4, v{vTMP}")
    A(f"v_med3_i32 v{vTMP}, v{vTMP}, -8, 7")
    A(f"v_cndmask_b32 v{vTMP}, 0, v{vTMP}, vcc")
    A(f"v_and_b32 v{vAX}, 15, v{vTMP}")
    A(f"v_lshl_or_b32 v{vAX}, v{vAX}, 14, v{vAX}")
    A(f"v_and_b32 v{vAX}, s{sM3}, v{vAX}")
    A(f"v_mul_i32_i24 v{vTMP}, -16, v{vTMP}")
    for r in range(4): A(f"v_ldexp_f32 v{vACC+r}, v{vACC+r}, v{vTMP}")
    A("s_mov_b64 vcc, 0")
    A("s_setpc_b64 s[6:7]")
    A("L_fixr:")
    for i in range(4): A(f"v_xor_b32 v{vGA+2*i+1}, v{vTC}, v{vGA+2*i+1}")
    A("L_fix:")
    for i in range(4):
        A(f"v_and_b32 v{vTMP}, 3, v{vGA+2*i}")
        A(f"v_bfe_i32 v{vTMP2}, v{vGA+2*i}, 16, 2")
        A(f"v_lshl_or_b32 v{vTMP}, v{vTMP2}, 2, v{vTMP}")
        A(f"v_lshlrev_b32 v{vTMP}, 4, v{vTMP}")
        A(f"v_ldexp_f32 v{vSCA+i}, v{vSCA+i}, v{vTMP}")
    A("s_setpc_b64 s[6:7]")

    if opt.notif:
        A("L_notif:")
        if opt.nocomm: A("s_branch L_exit")
        A(f"s_cmp_eq_u32 s{sROLE}, 2")
        A("s_cbranch_scc1 L_exit")
        A(f"s_cmp_ge_u32 s{sR}, 16")
        A("s_cbranch_scc1 L_notifM")
        hc_addr()
        wait_prog(False, opt.nprogh - 1, sleep=2)
        wait_prog(False, opt.nprogh)
        if opt.ndelay: A(f"s_sleep {opt.ndelay}")
        bump("h")
        A("s_branch L_exit")
        A("L_notifM:")
        A(f"s_mul_i32 s{sTMP}, s{sG}, {32*CS}")
        ws_addr(sGB, WS_OC, sTMP)
        cwait(F_BP, 8, sleep=2)
        if opt.pdelay: A(f"s_sleep {opt.pdelay}")
        wait_prog(False, opt.nprogo - 1, sleep=2)
        wait_prog(False, opt.nprogo)
        if opt.ndelay + opt.odelay: A(f"s_sleep {opt.ndelay + opt.odelay}")
        bump("q")
        A("s_branch L_exit")

    A("L_poller:")
    if opt.nocomm: A("s_branch L_exit")
    A(f"s_cmp_ge_u32 s{sR}, 16")
    A("s_cbranch_scc1 L_pollM")
    A(f"s_lshl3_add_u32 s{sTMP}, s{sRBK}, s{sCB}")
    A(f"s_and_b32 s{sTMP}, s{sTMP}, {NREP-1}")
    A(f"s_lshl_b32 s{sTMP2}, s{sG}, 5")
    A(f"s_add_u32 s{sTMP}, s{sTMP}, s{sTMP2}")
    A(f"s_mul_i32 s{sTMP}, s{sTMP}, {CS}")
    ws_addr(sGB, WS_OC, sTMP)
    A(f"s_load_dword s4, s[{sGB}:{sGB+1}], 0 glc")
    A(f"s_and_b32 s{sTMP}, s{sRBK}, 3")
    A(f"s_lshl_b32 s{sTMP}, s{sTMP}, 4")
    A(f"s_lshl_b32 s{sTMP2}, s{sG}, 11")
    A(f"s_add_u32 s{sTMP}, s{sTMP}, s{sTMP2}")
    ws_addr(sGA, WS_LSE, sTMP)
    A(f"v_and_b32 v{vTMP3}, 31, v0")
    A(f"v_lshlrev_b32 v{vTMP3}, 6, v{vTMP3}")
    A(f"v_lshrrev_b32 v{vTMP2}, 5, v0")
    A(f"v_lshl_or_b32 v{vTMP3}, v{vTMP2}, 3, v{vTMP3}")
    A("s_waitcnt lgkmcnt(0)")
    A(f"v_lshl_add_u32 v{vWA}, v0, 2, v9")
    A(f"s_cmp_eq_u32 s{sROLE}, 2")
    A(f"s_cselect_b32 s{sTMP2}, {opt.ogatec}, {opt.ogate}")
    A(f"s_add_u32 s5, s4, {0x200020 if opt.lcnt else 32}")
    for k, l in touch:
        if k in "AB": A(f"s_call_b64 s[6:7], {l}")
    wait_prog(True, sTMP2, sleep=2)
    stamp(2)
    if not (opt.dbg & 7):
        A(f"s_mov_b32 s{sCNT}, 0")
        if opt.psleep: A("s_branch L_pl1e")
        A("L_pl1:")
        if opt.psleep:
            A(f"s_sleep {opt.psleep}")
            A("L_pl1e:")
        A(f"s_load_dword s8, s[{sGB}:{sGB+1}], 0 glc")
        A(f"s_add_u32 s{sCNT}, s{sCNT}, 1")
        A(f"s_cmp_gt_u32 s{sCNT}, {opt.maxhint}")
        A("s_waitcnt lgkmcnt(0)")
        A("s_cbranch_scc1 L_pl1d")
        A("s_sub_u32 s9, s8, s4")
        A(f"s_cmp_lt_u32 s9, {0x200000 if opt.lcnt else opt.lthr}")
        A("s_cbranch_scc1 L_pl1")
        A("L_pl1d:")
        stampval(10, sCNT)
    stamp(3)
    A("s_mov_b32 s9, 0")
    A(f"s_mov_b32 s{sTMP3}, 0")
    A("L_lse:")
    if not (opt.dbg & 2): A(f"global_load_dwordx2 v[{vLS}:{vLS+1}], v{vTMP3}, s[{sGA}:{sGA+1}] sc1")
    if not (opt.dbg & 7):
        A("s_cmp_lg_u32 s9, 0")
        A("s_cbranch_scc1 L_lse_wait")
        A("L_pl2:")
        A("s_cmp_eq_u32 s8, s5")
        A("s_cbranch_scc1 L_pl_sig")
        A(f"s_cmp_gt_u32 s{sCNT}, {opt.maxhint}")
        A("s_cbranch_scc1 L_pl_sig")
        A("s_getreg_b32 s10, hwreg(HW_REG_IB_STS, 0, 4)")
        A("s_cmp_eq_u32 s10, 0")
        A("s_cbranch_scc1 L_lse_wait")
        A(f"s_load_dword s8, s[{sGB}:{sGB+1}], 0 glc")
        A(f"s_add_u32 s{sCNT}, s{sCNT}, 1")
        A("s_waitcnt lgkmcnt(0)")
        A("s_branch L_pl2")
        A("L_pl_sig:")
        signal(F_LRDY)
        A("s_mov_b32 s9, 1")
        stamp(5)
    A("L_lse_wait:")
    if not (opt.dbg & 7):
        A(f"s_load_dword s8, s[{sGB}:{sGB+1}], 0 glc")
    A(f"s_add_u32 s{sTMP3}, s{sTMP3}, 1")
    A("s_waitcnt vmcnt(0)")
    A(f"v_cmp_ne_u32 vcc, s{sT}, v{vLS+1}")
    A(f"s_cbranch_vccz L_lsed")
    A(f"s_cmp_le_u32 s{sTMP3}, {0 if (opt.dbg & 7) else opt.maxpoll}")
    A("s_waitcnt lgkmcnt(0)")
    A(f"s_cbranch_scc1 L_lse")
    A("L_lsed:")
    stampval(12, sTMP3)
    A(f"v_max_f32_dpp v{vTMP}, v{vLS}, v{vLS} quad_perm:[1,0,3,2] row_mask:0xf bank_mask:0xf")
    A("s_nop 1")
    A(f"v_max_f32_dpp v{vTMP}, v{vTMP}, v{vTMP} quad_perm:[2,3,0,1] row_mask:0xf bank_mask:0xf")
    A(f"v_sub_f32 v{vLS}, v{vLS}, v{vTMP}")
    A(f"v_exp_f32 v{vLS}, v{vLS}")
    A("s_nop 1")
    A(f"v_add_f32_dpp v{vTMP}, v{vLS}, v{vLS} quad_perm:[1,0,3,2] row_mask:0xf bank_mask:0xf")
    A("s_nop 1")
    A(f"v_add_f32_dpp v{vTMP}, v{vTMP}, v{vTMP} quad_perm:[2,3,0,1] row_mask:0xf bank_mask:0xf")
    A(f"v_rcp_f32 v{vTMP}, v{vTMP}")
    A("s_nop 0")
    A(f"v_mul_f32 v{vLS}, v{vLS}, v{vTMP}")
    A(f"v_mul_f32 v{vLS}, {fbits(2.0**-LO_):#x}, v{vLS}")
    A(f"ds_write_b32 v{vWA}, v{vLS} offset:{F_WT}")
    signal(F_WRDY)
    stamp(4)
    if not (opt.dbg & 7):
        A("s_cmp_lg_u32 s9, 0")
        A("s_cbranch_scc1 L_pl_fin")
        A("s_waitcnt lgkmcnt(0)")
        A("s_cmp_eq_u32 s8, s5")
        A("s_cbranch_scc1 L_pl_sig2")
    pollcnt(sGB, 5, opt.psleep, cntstamp=11)
    A("L_pl_sig2:")
    signal(F_LRDY)
    stamp(5)
    A("L_pl_fin:")
    A("s_barrier")
    A("s_branch L_exit")
    A("L_pollM:")
    A(f"s_lshl2_add_u32 s{sTMP}, s{sBB}, s{sSPL}")
    A(f"s_lshr_b32 s{sTMP}, s{sTMP}, {int(math.log2(32//NREP))}")
    A(f"s_lshl_b32 s{sTMP2}, s{sG}, 5")
    A(f"s_add_u32 s{sTMP}, s{sTMP}, s{sTMP2}")
    A(f"s_mul_i32 s{sTMP}, s{sTMP}, {CS}")
    ws_addr(sGB, WS_QC, sTMP)
    if opt.qhint: A(f"s_load_dword s4, s[{sGB}:{sGB+1}], 0 glc")
    A(f"s_mul_i32 s{sTMP}, s{sRBK}, {HREP}")
    A(f"s_and_b32 s{sTMP2}, s{sCB}, {HREP-1}")
    A(f"s_add_u32 s{sTMP}, s{sTMP}, s{sTMP2}")
    A(f"s_mul_i32 s{sTMP}, s{sTMP}, {CS}")
    ws_addr(sGA, WS_HC, sTMP)
    A(f"s_load_dword s5, s[{sGA}:{sGA+1}], 0 glc")
    if opt.fgate:
        A(f"s_and_b32 s{sTMP}, s{sR}, {opt.frep-1}")
        A(f"s_lshl4_add_u32 s{sTMP}, s{sXCD}, s{sTMP}")
        A(f"s_mul_i32 s{sTMP}, s{sTMP}, {CS}")
        ws_addr(10, WS_FC, sTMP)
        A(f"s_load_dword s6, s[10:11], 0 glc")
    A(f"s_bitcmp1_b32 s{sKB0}, 1")
    A(f"s_cselect_b32 s{sTMP}, 12, 8")
    A("s_waitcnt lgkmcnt(0)")
    if opt.fgate: A("s_add_u32 s6, s6, 32")
    A("s_add_u32 s4, s4, 64")
    A(f"s_add_u32 s5, s5, s{sTMP}")
    if opt.fgate: A("s_mov_b32 s9, s6")
    for k, l in touch:
        if k in "AM": A(f"s_call_b64 s[6:7], {l}")
    if opt.qhint:
        wait_prog(False, opt.qgate, sleep=2)
        stamp(2)
        pollcnt(sGB, 4, opt.psleep, cntstamp=10)
        signal(F_QRDY)
        stamp(3)
    wait_prog(False, opt.hgate, sleep=2)
    stamp(4)
    pollcnt(sGA, 5, opt.psleep, cntstamp=11)
    signal(F_LRDY)
    stamp(5)
    A("s_barrier")
    if opt.fgate:
        stamp(6)
        pollcnt(10, 9, 0, cntstamp=12)
        signal(F_FRDY)
        stamp(7)

    A("L_exit:")
    if STAMP:
        A("s_waitcnt lgkmcnt(0)")
        A(f"s_mul_i32 s{sTMP}, s2, {NWAVES}")
        A(f"s_add_u32 s{sTMP}, s{sTMP}, s3")
        A(f"s_lshl_b32 s{sTMP}, s{sTMP}, 6")
        A(f"s_add_u32 s{sTMP}, s{sTMP}, {WS_STAMP}")
        A(f"v_mov_b32 v1, s{sTMP}")
        A("s_mov_b64 exec, 1")
        for i in range(NST if STAMP == 1 else 10):
            A(f"v_mov_b32 v2, s{sST+2*i}")
            A(f"global_store_dword v1, v2, s[{sWS}:{sWS+1}] offset:{4*i}")
        A(f"v_mov_b32 v2, s{sROLE}")
        A(f"global_store_dword v1, v2, s[{sWS}:{sWS+1}] offset:60")
    A("L_end:")
    A("s_endpgm")

    body = "\n".join(g.o)
    PADTXT = f".p2align 12\n.fill {opt.pad//4}, 4, 0xbf810000\n" if opt.pad >= 0 else ""
    txt = HEADER
    txt += f"; @launch grid=(256,1,1) block=({64*NWAVES},1,1) lds={LDS_BYTES}\n"
    txt += f""".amdgcn_target "amdgcn-amd-amdhsa--gfx950"
.text
.globl {KNAME}
{PADTXT}.p2align 8
.type {KNAME},@function
{KNAME}:
{body}
.section .rodata,"a"
.p2align 6
.amdhsa_kernel {KNAME}
  .amdhsa_next_free_vgpr {NV}
  .amdhsa_next_free_sgpr 102
  .amdhsa_accum_offset {NV}
  .amdhsa_group_segment_fixed_size 0
  .amdhsa_kernarg_size 104
  .amdhsa_user_sgpr_count 2
  .amdhsa_user_sgpr_kernarg_segment_ptr 1
  .amdhsa_system_sgpr_workgroup_id_x 1
.end_amdhsa_kernel
"""
    return txt

def parse(argv):
    ap = argparse.ArgumentParser()
    ap.add_argument("--nt", default="nt")
    ap.add_argument("--pb", default="20:24,8:22")
    ap.add_argument("--pc", default="4:20,d,3:4,5:12")
    ap.add_argument("--pm", default="20:24,7:20")
    ap.add_argument("--nb0", type=int, default=3)
    ap.add_argument("--stamp", type=int, default=0)
    ap.add_argument("--stq", type=int, default=0)
    ap.add_argument("--fdelay", type=int, default=0)
    ap.add_argument("--qgate", type=int, default=9)
    ap.add_argument("--ogate", type=int, default=19)
    ap.add_argument("--ogatec", type=int, default=26)
    ap.add_argument("--hgate", type=int, default=19)
    ap.add_argument("--ggate", type=int, default=1)
    ap.add_argument("--maxpoll", type=int, default=100000)
    ap.add_argument("--psleep", type=int, default=0)
    ap.add_argument("--fsleep", type=int, default=2)
    ap.add_argument("--gsleep", type=int, default=0)
    ap.add_argument("--fgsleep", type=int, default=0)
    ap.add_argument("--sample", type=int, default=0)
    ap.add_argument("--outflags", default="sc1")
    ap.add_argument("--fixdur", type=int, default=0)
    ap.add_argument("--fixwg", type=int, default=128)
    ap.add_argument("--nocomm", type=int, default=0)
    ap.add_argument("--dbg", type=int, default=0)
    ap.add_argument("--cpf", type=int, default=2)
    ap.add_argument("--qlead", type=int, default=-1)
    ap.add_argument("--hlead", type=int, default=-1)
    ap.add_argument("--olead", type=int, default=-1)
    ap.add_argument("--oearly", type=int, default=0)
    ap.add_argument("--flagwave", type=int, default=1)
    ap.add_argument("--xgat", type=int, default=10)
    ap.add_argument("--nrep", type=int, default=8)
    ap.add_argument("--satom", type=int, default=1)
    ap.add_argument("--maxhint", type=int, default=12)
    ap.add_argument("--hround", type=int, default=0)
    ap.add_argument("--fgate", type=int, default=0)
    ap.add_argument("--frep", type=int, default=8)
    ap.add_argument("--flag_delay", type=int, default=0)
    ap.add_argument("--qhint", type=int, default=0)
    ap.add_argument("--qsleep", type=int, default=4)
    ap.add_argument("--lcnt", type=int, default=0)
    ap.add_argument("--lthr", type=int, default=16)
    ap.add_argument("--spec", type=int, default=0)
    ap.add_argument("--ackst", type=int, default=0)
    ap.add_argument("--cstride", type=int, default=4352)
    ap.add_argument("--midahead", type=int, default=1)
    ap.add_argument("--fine", type=int, default=0)
    ap.add_argument("--pad", type=lambda x: int(x, 0), default=0xd00)
    ap.add_argument("--touch", type=int, default=0)
    ap.add_argument("--sbias", type=int, default=0)
    ap.add_argument("--period", type=int, default=0)
    ap.add_argument("--toff", type=int, default=650)
    ap.add_argument("--qsync", type=int, default=0)
    ap.add_argument("--lprio", type=int, default=3)
    ap.add_argument("--cprio", type=int, default=0)
    ap.add_argument("--gprio", type=int, default=0)
    ap.add_argument("--kvmode", default="lin")
    ap.add_argument("--kvrot", type=int, default=4)
    ap.add_argument("--rotw", type=int, default=1)
    ap.add_argument("--lrot", type=int, default=3)
    ap.add_argument("--lflow", type=int, default=2)
    ap.add_argument("--wmin", type=int, default=27)
    ap.add_argument("--notif", type=int, default=1)
    ap.add_argument("--ndelay", type=int, default=0)
    ap.add_argument("--odelay", type=int, default=0)
    ap.add_argument("--pdelay", type=int, default=6)
    ap.add_argument("--nprogh", type=int, default=20)
    ap.add_argument("--nprogo", type=int, default=20)
    ap.add_argument("--gran", type=int, default=2)
    ap.add_argument("-o", default=None)
    return ap.parse_args(argv)

if __name__ == "__main__":
    opt = parse(sys.argv[1:])
    t = gen(opt)
    if opt.o: open(opt.o, "w").write(t)
    else: print(t)
```

```python
import sys, argparse, struct, math

KNAME = "gated_mix__sliding_block_cached__glu_gated_reglu__decode_kernel"
HEADER = open("gated_mix__sliding_block_cached__glu_gated_reglu__decode.s.ref").read().split("; Override launch")[0]

RA = 0
RB = 65536
XA = 131072
RQ = RB + 32768
XF = XA
QF = XA + 2048
PF = XA + 4096
RS = XA + 8192
ST = XA + 10240
AF = XA + 12288
FL = XA + 16384
F_PROG, F_LRDY, F_QRDY, F_WRDY, F_BQ, F_BM, F_BP, F_BA, F_RED, F_PUB0, F_PUB1, F_FREE0, F_FREE1, F_ERD, F_FRDY = [4*i for i in range(15)]
F_MAX = 64
F_G = 96
F_WT = 128
LDS_BYTES = FL + 128 + 256

WS_QP = 512 << 10
WS_FP = 1024 << 10
WS_OP = 1536 << 10
WS_GP = 1792 << 10
WS_LSE = 16 << 10
WS_QC = 64 << 10
WS_OC = 160 << 10
WS_HC = 256 << 10
WS_FC = 352 << 10
WS_STAMP = 8 << 20

class G:
    def __init__(self):
        self.o = []; self.nlab = 0
    def A(self, s):
        for line in s.split("\n"):
            self.o.append("    " + line.strip() if not line.strip().endswith(":") else line.strip())
    def lab(self, p="L"):
        self.nlab += 1
        return f"{p}_{self.nlab}"

def plan(s):
    out = []
    for t in s.split(","):
        if t == "d": out.append("d")
        else:
            a, b = t.split(":")
            out.append((int(a), tuple(int(x) for x in b.split("/")) if "/" in b else int(b)))
    return out

def gen(opt):
    g = G(); A = g.A
    CS = opt.cstride
    NWAVES = 11 if opt.notif else 10
    NT = opt.nt
    STAMP = opt.stamp
    sX, sK, sV, sWQ, sWO, sBX, sWG, sWU = [16+2*i for i in range(8)]
    sWD, sGW, sOUT, sDBG = 32, 34, 36, 38
    sWS = 40
    sXCD, sR, sROLE = 42, 43, 44
    sU, sBETA, sG, sSPL, sRBK, sCB, sBB = 45, 46, 47, 48, 49, 50, 51
    sKS, sKB0 = 100, 101
    sLR = 53
    sWDN = 52
    sT = 54
    sT0, sT1, sT2, sT3 = 54, 56, 57, 53
    sSEL0, sSEL1, sSEL2, sSEL3 = 58, 59, 60, 61
    sPROG, sC = 62, 63
    sTMP, sTMP2, sTMP3, sCNT = 64, 65, 66, 67
    sGA, sGB = 68, 70
    sROT = 15
    sSM = 4
    sST = 72
    NST = 14
    SRD = 8
    def stamp(idx, key=False):
        if STAMP == 1 or (STAMP and (key or idx == 0)): A(f"s_memrealtime s[{sST+2*idx}:{sST+2*idx+1}]")
    touch = []
    def pad(kind):
        if not opt.touch: return
        l = g.lab("L_tp"); touch.append((kind, l))
        A(f"{l}:")
        A("s_setpc_b64 s[6:7]")
    def stampval(idx, sreg):
        if STAMP == 1: A(f"s_mov_b32 s{sST+2*idx}, s{sreg}")
    pb, pc, pm = plan(opt.pb), plan(opt.pc), plan(opt.pm)
    NB0 = opt.nb0
    assert NB0 <= 3

    stamp(0)
    if opt.fixdur: A("s_memrealtime s[98:99]")
    A("s_load_dwordx16 s[16:31], s[0:1], 0")
    A("s_load_dwordx8 s[32:39], s[0:1], 64")
    A("s_load_dwordx2 s[40:41], s[0:1], 96")
    A(f"s_cmp_ge_u32 s2, 256")
    A("s_cbranch_scc1 L_end")
    A("v_lshrrev_b32 v1, 6, v0")
    A("v_and_b32 v0, 63, v0")
    A("v_readfirstlane_b32 s3, v1")
    A(f"s_and_b32 s{sXCD}, s2, 7")
    A(f"s_lshr_b32 s{sR}, s2, 3")
    A(f"s_lshr_b32 s{sG}, s{sXCD}, 1")
    A(f"s_and_b32 s{sTMP3}, s{sXCD}, 1")
    A(f"s_add_u32 s{sROT}, s{sR}, s{2 if opt.rotw else sXCD}")
    A(f"s_lshl_b32 s{sTMP}, s{sXCD}, 1")
    A(f"s_sub_u32 s{sTMP}, s{sR}, s{sTMP}")
    A(f"s_sub_u32 s{sTMP}, s{sTMP}, 4")
    A(f"s_bfe_u32 s{sTMP2}, s{sTMP}, 0x20002")
    A(f"s_and_b32 s{sTMP}, s{sTMP}, 3")
    A(f"s_lshl2_add_u32 s{sU}, s{sTMP}, s{sTMP2}")
    A(f"s_cmp_ge_u32 s{sR}, 16")
    A(f"s_cselect_b32 s{sU}, s{sR}, s{sU}")
    A(f"s_lshr_b32 s{sTMP}, s{sU}, 3")
    A(f"s_lshl2_add_u32 s{sKS}, s{sTMP3}, s{sTMP}")
    A("s_cmp_lg_u32 s3, 0")
    A("s_cbranch_scc1 L_notloader")
    sSOFF, sSTEP, sNB, sBLK = 4, 5, 6, 7
    sIDX, sWRAP, sBASE = 12, 13, 14
    sNOW, sDL = 56, 58
    TIMED = "/" in (opt.pb + opt.pm + opt.pc)
    if TIMED: A(f"s_memrealtime s[{sNOW}:{sNOW+1}]")
    A(f"s_setprio {opt.lprio}")
    A(f"v_mov_b32 v9, {FL}")
    A("v_mov_b32 v10, 0xff7fffff")
    A("v_cmp_gt_u32 vcc, 16, v0")
    A("v_lshl_add_u32 v11, v0, 2, v9")
    A("v_lshrrev_b32 v2, 4, v0")
    A("v_cndmask_b32 v10, v10, 0, vcc")
    A("ds_write_b32 v11, v10")
    A("v_bfe_u32 v3, v0, 1, 3")
    A("v_xor_b32 v3, v3, v2")
    A("v_lshlrev_b32 v3, 5, v3")
    A("v_and_b32 v4, 1, v0")
    A("v_lshl_or_b32 v3, v4, 4, v3")
    A("v_xor_b32 v4, 0x80, v3")
    A("v_lshl_add_u32 v5, v2, 13, v3")
    A("v_lshl_add_u32 v6, v2, 13, v4")
    A(f"s_mov_b32 s{SRD+3}, 0x20000")
    A(f"s_and_b32 s{sTMP}, s{sU}, 7")
    A(f"s_lshl3_add_u32 s{sTMP}, s{sG}, s{sTMP}")
    A(f"s_lshl_b32 s{sTMP}, s{sTMP}, 8")
    A(f"s_lshl_b32 s{sSOFF}, s{sKS}, 20")
    A(f"s_add_u32 s{sSOFF}, s{sSOFF}, s{sTMP}")
    A(f"s_mov_b32 s{SRD+2}, {1024*4096*2}")
    A(f"s_mov_b32 s{sNB}, {NB0}")
    A(f"s_mov_b32 s{sSTEP}, {4*8192}")
    A(f"s_mov_b32 m0, {RQ}")
    A(f"s_mov_b32 s{sBLK}, {NB0}")
    if opt.fine == 2: stamp(5)
    A("s_waitcnt lgkmcnt(0)")
    if opt.fine == 2: stamp(6)
    A(f"s_mov_b64 s[{SRD}:{SRD+1}], s[{sWQ}:{sWQ+1}]")
    if TIMED: A(f"s_mov_b32 s{sDL}, s{sNOW}")
    if opt.barpos == 0: A("s_barrier")
    if opt.fine == 2: stamp(7)
    def blk_body(win, rot):
        GR = opt.gran
        if win is not None:
            assert win % GR == 0
            pj = win % 8
            back = (win - pj) // 8
        for j in range(8):
            half, i = j >> 2, j & 3
            if win is not None and j % GR == 0:
                if j == pj:
                    A(f"s_sub_u32 s{sTMP}, s{sBLK}, {back}")
                    A(f"s_max_i32 s{sPROG}, s{sTMP}, s{sPROG}")
                    A(f"v_mov_b32 v10, s{sPROG}")
                A(f"s_waitcnt vmcnt({win})")
                if j == pj: A(f"ds_write_b32 v9, v10 offset:{F_PROG}")
            v = 5 if ((i >> 1) & 1) == 0 else 6
            A(f"buffer_load_dwordx4 v{v}, s[{SRD}:{SRD+3}], s{sSOFF} offen {NT} lds")
            A(f"s_add_u32 m0, m0, 1024")
            if rot == "kv":
                st = {"lin": 1024, "tr1": 8192 + (1024 if (half, i) == (1, 3) else 0),
                      "tr2": (1024 if i % 2 == 0 else 15360) + (2048 if (half, i) == (1, 3) else 0)}[opt.kvmode]
                A(f"s_add_u32 s{sIDX}, s{sIDX}, {st}")
                A(f"s_pack_lh_b32_b16 s{sSOFF}, s{sIDX}, s{sSOFF}")
            else:
                A(f"s_add_u32 s{sSOFF}, s{sSOFF}, s{sSTEP}")
        if rot == 7:
            A(f"s_add_u32 s{sIDX}, s{sIDX}, 1")
            A(f"s_cmp_eq_u32 s{sIDX}, 7")
            A(f"s_cselect_b32 s{sTMP}, {7*65536}, 0")
            A(f"s_sub_u32 s{sSOFF}, s{sSOFF}, s{sTMP}")
        if rot is True:
            A(f"s_add_u32 s{sIDX}, s{sIDX}, 1")
            A(f"s_and_b32 s{sIDX}, s{sIDX}, 7")
            A(f"s_cselect_b32 s{sTMP}, 0, s{sWRAP}")
            A(f"s_sub_u32 s{sSOFF}, s{sSOFF}, s{sTMP}")
    if opt.barpos == 1:
        blk_body(None, False)
        A("s_barrier")
        A(f"s_mov_b32 s{sNB}, {NB0-1}")
    A("L_top_loop:")
    blk_body(None, False)
    A(f"s_sub_u32 s{sNB}, s{sNB}, 1")
    A(f"s_cmp_lg_u32 s{sNB}, 0")
    A("s_cbranch_scc1 L_top_loop")
    if opt.barpos == 2: A("s_barrier")
    A("s_branch L_loader2")
    A("L_notloader:")
    if opt.cpf:
        A(f"s_cmp_gt_u32 s3, {opt.cpf}")
        A("s_cbranch_scc1 L_cpf_done")
        A("s_getpc_b64 s[4:5]")
        A("L_pc:")
        A(f"s_lshl_b32 s{sTMP}, s3, 13")
        A(f"s_sub_u32 s{sTMP}, s{sTMP}, 8192")
        A(f"v_lshl_add_u32 v1, v0, 7, s{sTMP}")
        A(f"v_cmp_gt_u32 vcc, L_end-L_pc, v1")
        A("s_and_saveexec_b64 s[6:7], vcc")
        A("s_cbranch_execz L_cpf_done2")
        A(f"global_load_dword v127, v1, s[4:5]")
        A("L_cpf_done2:")
        A("s_mov_b64 exec, -1")
        A("L_cpf_done:")
    A("s_barrier")
    A("s_branch L_cons")

    def decode2(keep=False):
        d = g.lab("L_d2"); m = g.lab("L_d2m")
        if STAMP:
            for i in range(1, NST):
                if not (opt.fine == 2 and keep and i in (5, 6, 7)): A(f"s_mov_b32 s{sST+2*i}, 0")
        A(f"s_mul_i32 s{sBETA}, s{sXCD}, 14")
        A(f"s_add_u32 s{sBETA}, s{sBETA}, s{sR}")
        A(f"s_mov_b32 s{sPROG}, 0")
        A(f"s_cmp_ge_u32 s{sR}, 16")
        A(f"s_cbranch_scc1 {m}")
        A(f"s_cmp_ge_u32 s{sR}, 14")
        A(f"s_cselect_b32 s{sROLE}, 2, 1")
        A(f"s_lshr_b32 s{sTMP}, s{sU}, 3")
        A(f"s_lshl1_add_u32 s{sRBK}, s{sXCD}, s{sTMP}")
        A(f"s_add_u32 s{sTMP}, s{sU}, 3")
        A(f"s_and_b32 s{sTMP}, s{sTMP}, 3")
        A(f"s_and_b32 s{sCB}, s{sU}, 4")
        A(f"s_or_b32 s{sCB}, s{sCB}, s{sTMP}")
        A(f"s_lshl_b32 s{sKB0}, s{sRBK}, 3")
        A(f"s_add_u32 s{sLR}, s{sR}, s{sXCD}")
        A(f"s_and_b32 s{sLR}, s{sLR}, {7 if opt.lrot & 1 else 0}")
        A(f"s_branch {d}")
        A(f"{m}:")
        A(f"s_mov_b32 s{sROLE}, 0")
        A(f"s_and_b32 s{sTMP}, s{sXCD}, 1")
        A(f"s_bfe_u32 s{sBB}, s{sR}, 0x20002")
        A(f"s_lshl2_add_u32 s{sBB}, s{sTMP}, s{sBB}")
        A(f"s_and_b32 s{sSPL}, s{sR}, 3")
        A(f"s_bfe_u32 s{sTMP}, s{sR}, 0x10003")
        A(f"s_lshl1_add_u32 s{sRBK}, s{sXCD}, s{sTMP}")
        A(f"s_mul_i32 s{sKB0}, s{sRBK}, 7")
        A(f"s_and_b32 s{sLR}, s{sR}, {7 if opt.lrot & 2 else 0}")
        A(f"s_cmp_eq_u32 s{sLR}, 7")
        A(f"s_cselect_b32 s{sLR}, 3, s{sLR}")
        A(f"s_add_u32 s{sCB}, s{sR}, 1")
        A(f"s_and_b32 s{sCB}, s{sCB}, 7")
        A(f"{d}:")

    A("L_loader2:")
    decode2(True)
    stamp(1)
    def lds_wait_ge(off, val, vtmp="v11", vaddr="v9", sleep=0):
        l = g.lab("L_w")
        A(f"{l}:")
        if sleep: A(f"s_sleep {sleep}")
        A(f"ds_read_b32 {vtmp}, {vaddr} offset:{off}")
        A("s_waitcnt lgkmcnt(0)")
        A(f"v_readfirstlane_b32 s{sTMP}, {vtmp}")
        A(f"s_cmp_ge_u32 s{sTMP}, {val}")
        A(f"s_cbranch_scc0 {l}")
    def wmax(w): return max(w) if isinstance(w, tuple) else w
    def blk_loop(nblk, win, rot):
        l = g.lab("L_ld")
        if nblk > 1:
            A(f"s_mov_b32 s{sNB}, {nblk}")
            A(f"{l}:")
        if isinstance(win, tuple):
            hi = g.lab("L_hi"); j = g.lab("L_jn")
            A(f"s_memrealtime s[{sNOW}:{sNOW+1}]")
            A(f"s_mul_i32 s{sTMP2}, s{sBLK}, {opt.period}")
            A(f"s_add_u32 s{sTMP2}, s{sTMP2}, {opt.toff}")
            A("s_waitcnt lgkmcnt(0)")
            A(f"s_sub_u32 s{sTMP}, s{sNOW}, s{sDL}")
            A(f"s_cmp_gt_u32 s{sTMP}, s{sTMP2}")
            A(f"s_cbranch_scc1 {hi}")
            for k in range(3, win[0]//8, -1):
                A(f"s_sub_u32 s{sTMP}, s{sBLK}, {k}")
                A(f"s_max_i32 s{sPROG}, s{sTMP}, s{sPROG}")
                A(f"v_mov_b32 v10, s{sPROG}")
                A(f"s_waitcnt vmcnt({8*k})")
                A(f"ds_write_b32 v9, v10 offset:{F_PROG}")
            blk_body(win[0], False)
            A(f"s_branch {j}")
            A(f"{hi}:")
            blk_body(win[1], False)
            A(f"{j}:")
            assert not rot
        else:
            blk_body(win, rot)
        A(f"s_add_u32 s{sBLK}, s{sBLK}, 1")
        if nblk > 1:
            A(f"s_sub_u32 s{sNB}, s{sNB}, 1")
            A(f"s_cmp_lg_u32 s{sNB}, 0")
            A(f"s_cbranch_scc1 {l}")
    def drain(maxwin, kmin=0):
        for k in range((maxwin + 4 + 7)//8 - 1, kmin - 1, -1):
            A(f"s_sub_u32 s{sTMP}, s{sBLK}, {k}")
            A(f"s_max_i32 s{sPROG}, s{sTMP}, s{sPROG}")
            A(f"v_mov_b32 v10, s{sPROG}")
            A(f"s_waitcnt vmcnt({8*k})")
            A(f"ds_write_b32 v9, v10 offset:{F_PROG}")
    def set_stride(stride):
        A(f"s_mov_b32 s{sSTEP}, {4*stride}")
        if stride & (stride-1) == 0:
            sh = stride.bit_length()-1
            A(f"v_lshl_add_u32 v5, v2, {sh}, v3")
            A(f"v_lshl_add_u32 v6, v2, {sh}, v4")
        else:
            A(f"v_mul_u32_u24 v8, {stride}, v2")
            A("v_add_u32 v5, v8, v3")
            A("v_add_u32 v6, v8, v4")
        A(f"s_mov_b32 s{sWRAP}, {256*stride}")
    XSRD = 68
    def xloads(n, ldsbase):
        for j in range(4):
            A(f"s_add_u32 s{sTMP}, s{sROT}, {2*j}")
            A(f"s_and_b32 s{sTMP}, s{sTMP}, 7")
            A(f"s_lshl_b32 s{sTMP}, s{sTMP}, 6")
            A(f"s_add_u32 s{sTMP}, s{sTMP}, s{sTMP3}")
            for q in range(n//4):
                A(f"s_mov_b32 m0, {ldsbase + 4096*q + 1024*j - 512*q}")
                A("s_nop 0")
                A(f"buffer_load_dwordx4 v7, s[{XSRD}:{XSRD+3}], s{sTMP} offen offset:{512*q} lds")
    def run_plan(pl, segs, start, hook=None):
        blk = 0; lastwin = 0
        segmap = {x[0]: x for x in segs}
        rot = False
        items = []
        for it in pl:
            if it == "d": items.append(it); continue
            n, w = it
            while n:
                c = min(n, 4 - blk if blk < 4 else 8 - ((blk - 4) % 8))
                if blk < start: c = min(c, start - blk)
                if hook and blk < hook[0]: c = min(c, hook[0] - blk)
                if blk >= start: items.append((blk, c, w))
                blk += c; n -= c
            lastw = w
        lastwin = pl[0][1]
        for it in items:
            if it == "d":
                drain(max(wmax(lastwin), 8*start)); continue
            b0, c, w = it
            if b0 >= 4 and (b0 - 4) % 8 == 0:
                seg = (b0 - 4) // 8 + 1
                stamp(1 + seg)
                if seg >= 2: lds_wait_ge(F_FREE0 + 4*(seg-2), 8)
                if b0 in segmap:
                    segmap[b0][1](); rot = segmap[b0][2]
                elif rot:
                    A(f"s_add_u32 s{sSOFF}, s{sSOFF}, s{sWRAP}")
                A(f"s_mov_b32 m0, {RA if seg % 2 == 1 else RB}")
            if hook and b0 == hook[0]: hook[1]()
            blk_loop(c, w, rot)
            lastwin = w
        stamp(8)
        if opt.fgate:
            A(f"s_mul_i32 s{sTMP}, s{sCB}, {16*CS}")
            A(f"s_add_u32 s{sTMP}, s{sTMP}, {WS_FC}")
            A(f"s_add_u32 s4, s{sWS}, s{sTMP}")
            A(f"s_addc_u32 s5, s{sWS+1}, 0")
            A(f"v_mul_u32_u24 v5, {CS}, v0")
            A("v_mov_b32 v6, 1")
        drain(max(wmax(x[1]) for x in pl if x != "d"), 1 if opt.fearly else 0)
        if not opt.fearly: stamp(9)
        A("s_branch L_ld_end")
    def late_seg(ptr, nbytes):
        def f():
            set_stride(2048)
            A(f"s_mov_b64 s[{SRD}:{SRD+1}], s[{ptr}:{ptr+1}]\ns_mov_b32 s{SRD+2}, {nbytes}")
            A(f"s_mov_b32 s{sIDX}, s{sLR}")
            A(f"s_add_u32 s{sSOFF}, s{sKB0}, s{sLR}")
            A(f"s_lshl_b32 s{sSOFF}, s{sSOFF}, 16")
            A(f"s_lshl_b32 s{sTMP}, s{sCB}, 8")
            A(f"s_add_u32 s{sSOFF}, s{sSOFF}, s{sTMP}")
        return f
    A("v_and_b32 v7, 7, v0")
    A("v_lshlrev_b32 v7, 11, v7")
    A("v_lshrrev_b32 v8, 3, v0")
    A("v_lshl_add_u32 v7, v8, 4, v7")
    A(f"s_mov_b64 s[{XSRD}:{XSRD+1}], s[{sX}:{sX+1}]\ns_mov_b32 s{XSRD+2}, 16384\ns_mov_b32 s{XSRD+3}, 0x20000")
    A(f"s_lshl_b32 s{sTMP3}, s{sKS}, 8")
    A(f"s_mov_b32 m0, {XF}")
    A("s_nop 0")
    A(f"buffer_load_dwordx4 v7, s[{XSRD}:{XSRD+3}], s{sTMP3} offen lds")
    A(f"s_mov_b32 m0, {XF + 1024 - 128}")
    A("s_nop 0")
    A(f"buffer_load_dwordx4 v7, s[{XSRD}:{XSRD+3}], s{sTMP3} offen offset:128 lds")
    A(f"s_mov_b32 m0, {RQ + 8192*NB0}")
    A(f"s_cmp_ge_u32 s{sR}, 16")
    A("s_cbranch_scc1 L_ld_M")
    def b_seg1():
        A(f"s_and_b32 s{sROT}, s{sROT}, 6")
        A(f"s_mov_b32 s{sIDX}, s{sROT}")
        A(f"s_and_b32 s{sTMP2}, s{sBETA}, 1")
        set_stride(7168)
        A(f"s_mul_i32 s{sSOFF}, s{sTMP2}, {512*7168}")
        A(f"s_lshr_b32 s{sTMP}, s{sBETA}, 2")
        A(f"s_lshl_b32 s{sTMP}, s{sTMP}, 8")
        A(f"s_add_u32 s{sSOFF}, s{sSOFF}, s{sTMP}")
        A(f"s_mul_i32 s{sTMP}, s{sROT}, {32*7168}")
        A(f"s_add_u32 s{sSOFF}, s{sSOFF}, s{sTMP}")
        A(f"s_bitcmp0_b32 s{sBETA}, 1")
        A(f"s_cselect_b64 s[{SRD}:{SRD+1}], s[{sWG}:{sWG+1}], s[{sWU}:{sWU+1}]")
        A(f"s_mov_b32 s{SRD+2}, {1024*3584*2}")
    A(f"s_cmp_eq_u32 s{sROLE}, 2")
    A("s_cbranch_scc1 L_ld_C")
    assert sum(x[0] for x in pb if x != "d") == 28
    XGAT = opt.xgat
    def xg_hook():
        A(f"s_and_b32 s{sTMP3}, s{sBETA}, 1")
        A(f"s_lshl_b32 s{sTMP3}, s{sTMP3}, 10")
        xloads(8, XF + 2048)
        A(f"s_mov_b32 m0, {RA + 8192*(XGAT-4)}")
    run_plan(pb, [(4, b_seg1, True), (20, late_seg(sWO, 4096*1024*2), True)], NB0, hook=(XGAT, xg_hook))
    A("L_ld_C:")
    assert sum(x[0] for x in pc if x != "d") == 12 and pc[1] == "d" and pc[0][0] == 4
    def c_seg1():
        late_seg(sWO, 4096*1024*2)()
        A(f"s_mov_b32 s{sBLK}, 20")
    run_plan(pc, [(4, c_seg1, True)], NB0)
    A("L_ld_M:")
    def m_seg1():
        set_stride(256)
        A(f"s_mul_i32 s{sROT}, s{sROT}, {opt.kvrot*1024}")
        A(f"s_mov_b32 s{sIDX}, s{sROT}")
        A(f"s_lshl2_add_u32 s{sTMP}, s{sBB}, s{sG}")
        A(f"s_lshl4_add_u32 s{sTMP}, s{sTMP}, s{sSPL}")
        A(f"s_add_u32 s{sTMP}, s{sTMP}, 12")
        A(f"s_pack_ll_b32_b16 s{sSOFF}, s{sIDX}, s{sTMP}")
        A(f"s_mov_b64 s[{SRD}:{SRD+1}], s[{sK}:{sK+1}]\ns_mov_b32 s{SRD+2}, {8*4*4096*128*2}")
    def m_seg2():
        A(f"s_mov_b64 s[{SRD}:{SRD+1}], s[{sV}:{sV+1}]")
        A(f"s_mov_b32 s{sIDX}, s{sROT}")
        A(f"s_pack_lh_b32_b16 s{sSOFF}, s{sIDX}, s{sSOFF}")
    assert sum(x[0] for x in pm if x != "d") == 27
    run_plan(pm, [(4, m_seg1, "kv"), (12, m_seg2, "kv"), (20, late_seg(sWD, 3584*1024*2), 7)], NB0)
    A("L_ld_end:")
    if opt.nocomm: A("s_branch L_exit")
    def fbump():
        if opt.flag_delay: A(f"s_sleep {opt.flag_delay}")
        if opt.fsat:
            A("s_mov_b32 s6, 1")
            for r in range(opt.frep): A(f"s_atomic_add s6, s[4:5], {CS*r}")
        else:
            A(f"s_bfm_b64 exec, {opt.frep}, 0")
            A("global_atomic_add v5, v6, s[4:5] sc1")
            A("s_mov_b64 exec, -1")
    if opt.fearly:
        A(f"ds_read_b32 v11, v9 offset:{F_BA}")
        A(f"v_mov_b32 v10, s{sBLK}")
        A(f"s_waitcnt vmcnt({opt.fearly}) lgkmcnt(0)")
        A(f"v_readfirstlane_b32 s{sTMP}, v11")
        A(f"s_cmp_lt_u32 s{sTMP}, 8")
        A("s_cbranch_scc1 L_ld_late")
        A("s_mov_b32 s6, 1")
        for r in range(opt.frep): A(f"s_atomic_add s6, s[4:5], {CS*r}")
        A("s_waitcnt vmcnt(0)")
        A(f"ds_write_b32 v9, v10 offset:{F_PROG}")
        A("s_barrier")
        stamp(9)
        A("s_branch L_ld_fin")
        A("L_ld_late:")
        A("s_waitcnt vmcnt(0)")
        A(f"ds_write_b32 v9, v10 offset:{F_PROG}")
        stamp(9)
    if opt.fgate == 2 and not (opt.dbg & 1):
        lds_wait_ge(F_BA, opt.gok)
        fbump()
    A("s_barrier")
    if opt.fgate == 1 and not (opt.dbg & 1): fbump()
    A("L_ld_fin:")
    if opt.fgate and opt.fbar:
        A(f"s_cmp_lt_u32 s{sR}, 16")
        A("s_cbranch_scc1 L_exit")
        A("s_barrier")
    A("s_branch L_exit")

    A("L_cons:")
    vL16, vTR, vACT, vT, vPUB = 1, 2, 3, 4, 5
    vTMP, vTMP2, vTMP3 = 6, 7, 8
    vWA, vAA = 10, 11
    vW, vB, vACC, vACC2 = 12, 16, 20, 24
    vGA = 28
    vLS = 44
    vK = 52
    vQ = 84
    vRG, vRW, vRR, vOUT, vONE, vAFW, vFLG = 116, 117, 118, 119, 120, 121, 122
    vTP, vTC, vL8 = 123, 124, 125
    vSTW, vSTR = 126, 15
    vTA, vAX, vEN = 48, 49, 50
    NV = 128
    A("s_waitcnt lgkmcnt(0)")
    A(f"s_load_dword s{sT}, s[{sWS}:{sWS+1}], 0")
    decode2()
    stamp(1)
    A(f"s_sub_u32 s{sC}, s3, 1")
    sSC, sM3, sMN, sEM, sRNG = 58, 60, 61, 56, 57
    A(f"s_mov_b32 s{sM3}, 0x00030003")
    A(f"s_mov_b32 s{sMN}, 0xfffcfffc")
    A(f"s_mov_b32 s{sRNG}, {27 << 23:#x}")
    A(f"v_mov_b32 v{vAX}, 0")
    A(f"v_lshlrev_b32 v{vL8}, 3, v0")
    A(f"v_mov_b32 v9, {FL}")
    A(f"v_mov_b32 v{vONE}, 1")
    A(f"v_lshlrev_b32 v{vL16}, 4, v0")
    A(f"v_mul_u32_u24 v{vFLG}, {CS}, v0")
    A(f"v_lshrrev_b32 v{vTMP2}, 4, v0")
    A(f"v_bfe_u32 v{vTMP3}, v0, 2, 2")
    A(f"v_lshl_add_u32 v{vTR}, v{vTMP2}, 3, v{vTMP3}")
    A(f"v_lshlrev_b32 v{vTR}, 8, v{vTR}")
    A(f"v_and_b32 v{vACT}, 1, v{vTMP2}")
    A(f"v_lshl_or_b32 v{vTMP3}, v{vACT}, 2, v{vTMP3}")
    A(f"v_xor_b32 v{vTMP3}, s{sC}, v{vTMP3}")
    A(f"v_lshl_or_b32 v{vTR}, v{vTMP3}, 5, v{vTR}")
    A(f"v_and_b32 v{vTMP3}, 3, v0")
    A(f"v_lshl_or_b32 v{vTR}, v{vTMP3}, 3, v{vTR}")
    A(f"v_and_b32 v{vTMP3}, 7, v0")
    A(f"v_lshl_add_u32 v{vACT}, v{vTMP2}, 3, v{vTMP3}")
    A(f"v_lshlrev_b32 v{vACT}, 4, v{vACT}")
    A(f"v_lshrrev_b32 v{vAFW}, 5, v0")
    A(f"v_lshlrev_b32 v{vAFW}, 8, v{vAFW}")
    A(f"v_and_b32 v{vTMP2}, 2, v0")
    A(f"v_lshl_or_b32 v{vAFW}, v{vTMP2}, 6, v{vAFW}")
    A(f"v_and_b32 v{vTMP2}, 28, v0")
    A(f"v_lshl_or_b32 v{vAFW}, v{vTMP2}, 2, v{vAFW}")
    A(f"v_and_b32 v{vTMP2}, 1, v0")
    A(f"v_lshl_or_b32 v{vAFW}, v{vTMP2}, 3, v{vAFW}")
    A(f"s_lshl_b32 s{sTMP}, s{sC}, 9")
    A(f"s_add_u32 s{sTMP}, s{sTMP}, {AF}")
    A(f"v_add_u32 v{vAFW}, s{sTMP}, v{vAFW}")
    def afswz(v):
        A(f"v_lshrrev_b32 v{vTMP2}, 3, v{v}")
        A(f"v_and_b32 v{vTMP2}, 0x70, v{vTMP2}")
        A(f"v_xor_b32 v{v}, v{v}, v{vTMP2}")
    afswz(vAFW)
    A("s_waitcnt lgkmcnt(0)")
    A(f"s_add_u32 s{sT}, s{sT}, 0x11111111")
    A(f"s_mov_b32 s{sT+1}, s{sT}")
    A(f"v_mov_b32 v{vT}, s{sT}")
    def tagbits(dst, vsh):
        A(f"v_lshrrev_b32 v{dst}, v{vsh}, v{vT}")
        A(f"v_and_b32 v{dst}, 15, v{dst}")
        A(f"v_lshl_or_b32 v{dst}, v{dst}, 14, v{dst}")
        A(f"v_and_b32 v{dst}, s{sM3}, v{dst}")
    A(f"v_and_b32 v{vTMP}, 7, v0")
    A(f"v_lshlrev_b32 v{vTMP}, 2, v{vTMP}")
    tagbits(vTC, vTMP)
    A(f"v_lshrrev_b32 v{vTMP}, 2, v0")
    A(f"v_and_b32 v{vTMP}, 12, v{vTMP}")
    A(f"v_and_b32 v{vTMP2}, 1, v0")
    A(f"v_lshl_or_b32 v{vTMP}, v{vTMP2}, 4, v{vTMP}")
    tagbits(vTP, vTMP)

    def refresh_prog():
        A(f"ds_read_b32 v{vTMP}, v9 offset:{F_PROG}")
        A("s_waitcnt lgkmcnt(0)")
        A(f"v_readfirstlane_b32 s{sPROG}, v{vTMP}")
    def wait_prog(val_is_sgpr, val, sleep=0):
        l = g.lab("L_wp"); d = g.lab("L_wpd")
        v = f"s{val}" if val_is_sgpr else str(val)
        A(f"s_cmp_ge_u32 s{sPROG}, {v}")
        A(f"s_cbranch_scc1 {d}")
        A(f"{l}:")
        if sleep: A(f"s_sleep {sleep}")
        refresh_prog()
        A(f"s_cmp_ge_u32 s{sPROG}, {v}")
        A(f"s_cbranch_scc0 {l}")
        A(f"{d}:")
    def signal(off):
        A("s_mov_b64 exec, 1")
        A(f"ds_add_u32 v9, v{vONE} offset:{off}")
        A("s_mov_b64 exec, -1")
    def cwait(off, val, sleep=0):
        lds_wait_ge(off, val, vtmp=f"v{vTMP}", sleep=sleep)
    def cwait_rd(off, val, nrd, reads):
        l = g.lab("L_cw")
        A(f"{l}:")
        A(f"ds_read_b32 v{vTMP}, v9 offset:{off}")
        reads()
        A(f"s_waitcnt lgkmcnt({nrd})")
        A(f"v_readfirstlane_b32 s{sTMP}, v{vTMP}")
        A(f"s_cmp_ge_u32 s{sTMP}, {val}")
        A(f"s_cbranch_scc0 {l}")
    def fbits(x): return struct.unpack("<I", struct.pack("<f", x))[0]
    ADJ = 1.0
    LQ, LO_, LG, LF = [x + opt.sbias for x in (8, 12, 10, 20)]
    def setscale(lg):
        A(f"s_mov_b32 s{sSC}, {fbits(2.0**lg):#x}")
    def encode(sc=None, tp=vTP, ta=vTA):
        src = vACC
        d = g.lab("L_en")
        scs = f"s[{sSC}:{sSC+1}]" if sc is None else f"v[{sc}:{sc+1}]"
        A(f"v_pk_mul_f32 v[{src}:{src+1}], v[{src}:{src+1}], {scs} op_sel_hi:[1,0]")
        A(f"v_pk_mul_f32 v[{src+2}:{src+3}], v[{src+2}:{src+3}], {scs} op_sel_hi:[1,0]")
        A(f"v_max3_f32 v{vTMP}, |v{src}|, |v{src+1}|, |v{src+2}|")
        A(f"v_max_f32 v{vTMP}, |v{src+3}|, v{vTMP}")
        A(f"v_subrev_u32 v{vTMP2}, {115 << 23:#x}, v{vTMP}")
        A(f"v_cmp_le_u32 vcc, s{sRNG}, v{vTMP2}")
        r = g.lab("L_er")
        A(f"{r}:")
        A(f"v_cvt_pkrtz_f16_f32 v{vEN}, v{src}, v{src+1}")
        A(f"v_cvt_pkrtz_f16_f32 v{vEN+1}, v{src+2}, v{src+3}")
        A(f"v_add_u32 v{vEN}, 0x00020002, v{vEN}")
        A(f"v_add_u32 v{vEN+1}, 0x00020002, v{vEN+1}")
        A(f"v_and_or_b32 v{vEN}, v{vEN}, s{sMN}, v{vAX}")
        A(f"v_and_or_b32 v{vEN+1}, v{vEN+1}, s{sMN}, v{tp}")
        A(f"s_cbranch_vccz {d}")
        A(f"s_call_b64 s[6:7], L_encs")
        A(f"s_branch {r}")
        A(f"{d}:")
    def publish(src, base=sGA, sc=None):
        encode(sc)
        A("s_mov_b32 exec_lo, 0x00ff00ff\ns_mov_b32 exec_hi, 0x00ff00ff")
        if not (opt.dbg & 33): A(f"global_store_dwordx2 v{vPUB}, v[{vEN}:{vEN+1}], s[{base}:{base+1}] sc1")
    NREP = opt.nrep; HREP = max(1, NREP // 4)
    sNH = 9
    def bump(kind):
        if opt.dbg & 33: return
        if opt.satom:
            A(f"s_mov_b32 s8, 1")
            if kind == "h":
                e = g.lab("L_bh")
                for r in range(HREP): A(f"s_atomic_add s8, s[{sGB}:{sGB+1}], {CS*r}")
                A(f"s_cmp_eq_u32 s{sNH}, {HREP}")
                A(f"s_cbranch_scc1 {e}")
                for r in range(HREP, 2*HREP): A(f"s_atomic_add s8, s[{sGB}:{sGB+1}], {CS*r}")
                A(f"{e}:")
            else:
                for r in range(NREP): A(f"s_atomic_add s8, s[{sGB}:{sGB+1}], {CS*r}")
        else:
            if kind == "h": A(f"s_bfm_b64 exec, s{sNH}, 0")
            else: A(f"s_bfm_b64 exec, {NREP}, 0")
            A(f"global_atomic_add v{vFLG}, v{vONE}, s[{sGB}:{sGB+1}] sc1")
    def flag(cnt, nrep, last=7):
        d = g.lab("L_fl")
        A("s_mov_b64 exec, 1")
        A(f"ds_add_rtn_u32 v{vTMP}, v9, v{vONE} offset:{cnt}")
        A("s_waitcnt lgkmcnt(0)")
        A(f"v_readfirstlane_b32 s{sTMP}, v{vTMP}")
        A(f"s_cmp_lg_u32 s{sTMP}, {last}")
        A(f"s_cbranch_scc1 {d}")
        bump(nrep)
        A(f"{d}:")
        A("s_mov_b64 exec, -1")
    def staged(cnt, last, hi_off, kind):
        d = g.lab("L_sg")
        A(f"ds_write_b64 v{vSTW}, v[{vEN}:{vEN+1}]")
        A("s_mov_b64 exec, 1")
        A(f"ds_add_rtn_u32 v{vTMP}, v9, v{vONE} offset:{cnt}")
        A("s_mov_b64 exec, -1")
        A(f"ds_read_b128 v[{vGA}:{vGA+3}], v{vSTR}")
        A(f"ds_read_b128 v[{vGA+4}:{vGA+7}], v{vSTR} offset:1024")
        A(f"v_add_u32 v{vTMP2}, {hi_off}, v{vPUB}")
        A("s_waitcnt lgkmcnt(2)")
        A(f"v_readfirstlane_b32 s{sTMP}, v{vTMP}")
        A(f"s_cmp_lg_u32 s{sTMP}, {last}")
        A(f"s_cbranch_scc1 {d}")
        A("s_waitcnt lgkmcnt(0)")
        if not (opt.dbg & 1):
            A(f"global_store_dwordx4 v{vPUB}, v[{vGA}:{vGA+3}], s[{sGA}:{sGA+1}] sc1")
            A(f"global_store_dwordx4 v{vTMP2}, v[{vGA+4}:{vGA+7}], s[{sGA}:{sGA+1}] sc1")
        if kind: bump(kind)
        A("s_mov_b64 exec, -1")
        A("s_nop 0")
        A(f"{d}:")
        A("s_waitcnt lgkmcnt(0)")
    def flag_now(nrep):
        d = g.lab("L_fn")
        A(f"s_cmp_lg_u32 s{sC}, {opt.flagwave}")
        A(f"s_cbranch_scc1 {d}")
        bump(nrep)
        A("s_mov_b64 exec, -1")
        A(f"{d}:")
    def ws_addr(dst, base_const, soff):
        A(f"s_add_u32 s{soff}, s{soff}, {base_const}")
        A(f"s_add_u32 s{dst}, s{sWS}, s{soff}")
        A(f"s_addc_u32 s{dst+1}, s{sWS+1}, 0")
    def pub_voff(shift):
        A(f"v_and_b32 v{vTMP2}, 15, v0")
        A(f"v_lshrrev_b32 v{vTMP3}, 4, v0")
        A(f"v_lshlrev_b32 v{vTMP3}, 3, v{vTMP3}")
        A(f"v_lshl_or_b32 v{vPUB}, v{vTMP2}, {shift}, v{vTMP3}")
    def sample(base, offs, sleep=0, cntstamp=None):
        l = g.lab("L_sm"); d = g.lab("L_smd"); e = g.lab("L_sme")
        if opt.dbg & 7: return
        A(f"s_mov_b32 s{sCNT}, 0")
        if sleep: A(f"s_branch {e}")
        A(f"{l}:")
        if sleep:
            A(f"s_sleep {sleep}")
            A(f"{e}:")
        for i, o in enumerate(offs):
            A(f"s_load_dword s{sSM+i}, s[{base}:{base+1}], {o} glc")
        A(f"s_add_u32 s{sCNT}, s{sCNT}, 1")
        A(f"s_cmp_gt_u32 s{sCNT}, {opt.maxpoll}")
        A("s_waitcnt lgkmcnt(0)")
        A(f"s_cbranch_scc1 {d}")
        for i in range(len(offs)):
            A(f"s_xor_b32 s{sSM+i}, s{sSM+i}, s{sT}")
            if i: A(f"s_or_b32 s{sSM}, s{sSM}, s{sSM+i}")
        A(f"s_and_b32 s{sSM}, s{sSM}, 0xff")
        A(f"s_cbranch_scc1 {l}")
        A(f"{d}:")
        if cntstamp is not None: stampval(cntstamp, sCNT)
    def pollcnt(base, target, sleep, cntstamp=None):
        l = g.lab("L_pf"); d = g.lab("L_pfd"); e = g.lab("L_pfe")
        if opt.dbg & 7: return
        A(f"s_mov_b32 s{sCNT}, 0")
        if sleep: A(f"s_branch {e}")
        A(f"{l}:")
        if sleep:
            A(f"s_sleep {sleep}")
            A(f"{e}:")
        A(f"s_load_dword s8, s[{base}:{base+1}], 0 glc")
        A(f"s_add_u32 s{sCNT}, s{sCNT}, 1")
        A(f"s_cmp_gt_u32 s{sCNT}, {opt.maxhint}")
        A("s_waitcnt lgkmcnt(0)")
        A(f"s_cbranch_scc1 {d}")
        A(f"s_cmp_eq_u32 s8, s{target}")
        A(f"s_cbranch_scc0 {l}")
        A(f"{d}:")
        if cntstamp is not None: stampval(cntstamp, sCNT)
    def gather(nld=4, mid=None, cntstamp=None, sleep=0, work=None, kind='M', defer=False):
        l = g.lab("L_ga"); d = g.lab("L_gad"); c = g.lab("L_gac"); rt = g.lab("L_gar")
        assert nld in (1, 4)
        def issue():
            if opt.dbg & 2: return
            if opt.gprio: A(f"s_setprio {opt.gprio}")
            for i in range(nld):
                A(f"global_load_dwordx2 v[{vGA+2*i}:{vGA+2*i+1}], v{vL8}, s[{sGA}:{sGA+1}] offset:{512*i} sc1")
        if mid is not None or sleep:
            issue()
            if mid is not None: mid()
            A(f"s_mov_b32 s{sEM}, s{sM3}")
            A(f"s_mov_b32 s{sCNT}, 0")
            A(f"s_branch {c}")
            pad(kind)
        else:
            A(f"s_mov_b32 s{sEM}, s{sM3}")
            A(f"s_mov_b32 s{sCNT}, 0")
        A(f"{l}:")
        if sleep: A(f"s_sleep {sleep}")
        issue()
        A(f"{c}:")
        A(f"s_add_u32 s{sCNT}, s{sCNT}, 1")
        vC, vC0 = vTMP2, vTMP
        for i in range(nld):
            A(f"s_waitcnt vmcnt({nld-1-i})")
            A(f"v_xor_b32 v{vGA+2*i+1}, v{vTC}, v{vGA+2*i+1}")
            if i == 2:
                A(f"v_or3_b32 v{vC0}, v{vGA}, v{vGA+2}, v{vGA+4}")
                A(f"v_or3_b32 v{vC}, v{vGA+1}, v{vGA+3}, v{vGA+5}")
            if i == nld-1:
                if nld == 4:
                    A(f"v_or_b32 v{vC0}, v{vC0}, v{vGA+6}")
                    A(f"v_bitop3_b32 v{vC}, v{vC}, v{vGA+7}, s{sM3} bitop3:0xa8")
                else:
                    A(f"v_and_b32 v{vC}, s{sM3}, v{vGA+1}")
                A(f"v_and_or_b32 v{vC0}, v{vC0 if nld == 4 else vGA}, s{sEM}, v{vC}")
                A(f"v_cmp_ne_u32 vcc, 0, v{vC0}")
            if work is not None and (i < nld-1 or opt.specw): work(i)
        A(f"s_cbranch_vccz {d}")
        A(f"v_cmp_ne_u32 vcc, 0, v{vC}")
        A(f"s_cbranch_vccnz {rt}")
        A(f"s_mov_b32 s{sEM}, 0")
        if defer: A(f"s_branch {d}")
        else:
            A("s_call_b64 s[6:7], L_fixr")
            A(f"s_branch {c}")
        A(f"{rt}:")
        A(f"s_cmp_le_u32 s{sCNT}, {0 if (opt.dbg & 6) else opt.maxpoll}")
        A(f"s_cbranch_scc1 {l}")
        A(f"{d}:")
        if cntstamp is not None: stampval(cntstamp, sCNT)
        if work is not None and not opt.specw: work(nld-1)
    vS0, vS1, vSCA = vGA + 12, vGA + 8, vLS
    def acc(i, dst, first):
        for r in range(4):
            c2 = "0" if first else f"v{dst+r}"
            A(f"v_fma_mix_f32 v{dst+r}, v{vGA+2*i+(r>>1)}, v{vSCA+i}, {c2} op_sel:[{r&1},0,0] op_sel_hi:[1,0,0]")
    def setsca(lg):
        for i in range(4): A(f"v_mov_b32 v{vSCA+i}, {fbits(2.0**-lg):#x}")
    def wreads(k0, k1):
        for kb in range(k0, k1):
            o = 8192*kb
            A(f"ds_read_b64_tr_b16 v[{vK+4*kb}:{vK+4*kb+1}], v{vWA} offset:{o}")
            A(f"ds_read_b64_tr_b16 v[{vK+4*kb+2}:{vK+4*kb+3}], v{vWA} offset:{o+1024}")
    def mf(kb, first):
        c = "0" if first else f"v[{vACC}:{vACC+3}]"
        A(f"v_mfma_f32_16x16x32_bf16 v[{vACC}:{vACC+3}], v[{vK+4*kb}:{vK+4*kb+3}], v[{vQ+4*kb}:{vQ+4*kb+3}], {c}")
    vAB = vW
    def actreads(n, swz=False):
        for kb in range(n):
            A(f"ds_read_b128 v[{vQ+4*kb}:{vQ+4*kb+3}], v{vAB if (swz and kb & 1) else vAA} offset:{512*kb}")
    sFA, sRA, sPE = 12, 10, 14
    def late_setup(wbase, padd, pend):
        A(f"v_add_u32 v{vWA}, {wbase}, v{vTR}")
        A(f"v_add_u32 v{vAA}, {AF}, v{vACT}")
        afswz(vAA)
        A(f"v_xor_b32 v{vAB}, 64, v{vAA}")
        A(f"v_and_b32 v{vTMP2}, 4, v0")
        A(f"v_lshlrev_b32 v{vPUB}, 10, v{vTMP2}")
        A(f"v_and_b32 v{vTMP2}, 3, v0")
        A(f"v_lshl_or_b32 v{vPUB}, v{vTMP2}, 5, v{vPUB}")
        A(f"v_lshrrev_b32 v{vTMP2}, 4, v0")
        A(f"v_lshl_or_b32 v{vPUB}, v{vTMP2}, 3, v{vPUB}")
        A(f"s_lshl3_add_u32 s{sTMP}, s{sCB}, s{sC}")
        A(f"s_lshl_b32 s{sTMP}, s{sTMP}, 6")
        A(f"s_add_u32 s{sTMP}, s{sTMP}, s{sRBK}")
        A(f"s_lshl_b32 s{sTMP}, s{sTMP}, 7")
        ws_addr(sFA, WS_FP + 128*padd, sTMP)
        A(f"s_mov_b32 s{sPE}, {pend}")
        setscale(LF)
        A(f"v_mov_b32 v{vAX}, 0")
        A(f"s_mov_b32 s{sWDN}, 21")
        A(f"s_add_u32 s{sTMP}, s{sKB0}, s{sC}")
        A(f"s_lshl_b32 s{sTMP}, s{sTMP}, 11")
    sRET = 6
    def wcatch():
        d = g.lab("L_wc")
        A(f"s_cmp_lt_u32 s{sPROG}, s{sWDN}")
        A(f"s_cbranch_scc1 {d}")
        A(f"s_call_b64 s[{sRET}:{sRET+1}], L_wcatch")
        A(f"{d}:")
    def late_wait():
        l = g.lab("L_lw"); d = g.lab("L_lwd")
        A(f"{l}:")
        A(f"ds_read_b64 v[{vTMP}:{vTMP+1}], v9 offset:{F_PROG}")
        A("s_waitcnt lgkmcnt(0)")
        A(f"v_readfirstlane_b32 s{sTMP}, v{vTMP+1}")
        A(f"v_readfirstlane_b32 s{sPROG}, v{vTMP}")
        A(f"s_cmp_lg_u32 s{sTMP}, 0")
        A(f"s_cbranch_scc1 {d}")
        wcatch()
        A(f"s_branch {l}")
        A(f"{d}:")
    def late_mid():
        A(f"s_add_u32 s{sTMP2}, s{sPROG}, {opt.midahead}")
        A(f"s_min_u32 s{sTMP2}, s{sTMP2}, s{sPE}")
        wcatch()
        wait_prog(True, sTMP2)
        wcatch()
    vPG = 126
    def late_post_issue():
        if opt.lflow == 1: A(f"ds_read_b32 v{vPG}, v9 offset:{F_PROG}")
    def late_post():
        if opt.fgate == 2: signal(F_BA)
        if opt.lflow != 1: return
        A("s_waitcnt lgkmcnt(0)")
        A(f"v_readfirstlane_b32 s{sPROG}, v{vPG}")
        wcatch()

    if opt.cprio: A(f"s_setprio {opt.cprio}")
    signal(F_ERD)
    A(f"s_cmp_eq_u32 s3, 9")
    A("s_cbranch_scc1 L_poller")
    if opt.notif:
        A(f"s_cmp_eq_u32 s3, 10")
        A("s_cbranch_scc1 L_notif")
    if opt.nocomm:
        signal(F_FREE0); signal(F_FREE1)
        A("s_branch L_exit")
    def egloop(last, name, lead=None, nrep=0):
        A(f"L_eg_loop{name}:")
        A(f"ds_read_b128 v[{vB}:{vB+3}], v{vAA}")
        wait_prog(True, sCNT)
        A(f"ds_read_b64_tr_b16 v[{vW}:{vW+1}], v{vWA}")
        A(f"ds_read_b64_tr_b16 v[{vW+2}:{vW+3}], v{vWA} offset:1024")
        if lead is not None and lead >= 0:
            A(f"s_cmp_lg_u32 s{sCNT}, {last - lead}")
            A(f"s_cbranch_scc1 L_eg_nf{name}")
            flag_now(nrep)
            A(f"L_eg_nf{name}:")
        A(f"v_add_u32 v{vWA}, 8192, v{vWA}")
        A(f"v_add_u32 v{vAA}, 512, v{vAA}")
        A(f"s_add_u32 s{sCNT}, s{sCNT}, 1")
        A(f"s_cmp_le_u32 s{sCNT}, {last}")
        A("s_waitcnt lgkmcnt(0)")
        A(f"v_mfma_f32_16x16x32_bf16 v[{vACC}:{vACC+3}], v[{vW}:{vW+3}], v[{vB}:{vB+3}], v[{vACC}:{vACC+3}]")
        A(f"s_cbranch_scc1 L_eg_loop{name}")
    A(f"s_cmp_ge_u32 s{sC}, 4")
    A("s_cbranch_scc1 L_noq")
    A(f"v_and_b32 v{vTMP2}, 7, v0")
    A(f"v_lshlrev_b32 v{vSTW}, 8, v{vTMP2}")
    A(f"v_and_b32 v{vTMP2}, 8, v0")
    A(f"v_lshl_or_b32 v{vSTW}, v{vTMP2}, 2, v{vSTW}")
    A(f"v_lshrrev_b32 v{vTMP3}, 4, v0")
    A(f"v_lshl_or_b32 v{vSTW}, v{vTMP3}, 3, v{vSTW}")
    A(f"s_lshl_b32 s{sTMP}, s{sC}, 6")
    A(f"s_add_u32 s{sTMP}, s{sTMP}, {ST}")
    A(f"v_add_u32 v{vSTW}, s{sTMP}, v{vSTW}")
    A(f"v_add_u32 v{vSTR}, {ST}, v{vL16}")
    A(f"v_and_b32 v{vPUB}, 0xf0, v{vL16}")
    A(f"v_lshl_or_b32 v{vPUB}, v{vTMP3}, 16, v{vPUB}")
    A(f"v_lshlrev_b32 v{vTMP3}, 2, v{vTMP3}")
    A(f"v_lshl_or_b32 v{vTMP3}, v{vTMP2}, 1, v{vTMP3}")
    tagbits(vB, vTMP3)
    setscale(LQ)
    A(f"s_and_b32 s{sTMP3}, s{sU}, 7")
    A(f"s_lshl3_add_u32 s{sTMP}, s{sG}, s{sTMP3}")
    A(f"s_lshl3_add_u32 s{sTMP}, s{sTMP}, s{sKS}")
    A(f"s_lshl_b32 s{sTMP}, s{sTMP}, 8")
    ws_addr(sGA, WS_QP, sTMP)
    A(f"s_mul_i32 s{sTMP}, s{sG}, {32*CS}")
    ws_addr(sGB, WS_QC, sTMP)
    A(f"s_lshl_b32 s{sTMP}, s{sC}, 1")
    A(f"s_xor_b32 s{sTMP}, s{sTMP}, s{sC}")
    A(f"s_lshl_b32 s{sTMP}, s{sTMP}, 5")
    A(f"v_xor_b32 v{vWA}, s{sTMP}, v{vTR}")
    A(f"v_add_u32 v{vWA}, {RQ}, v{vWA}")
    A(f"v_xor_b32 v{vW}, 32, v{vWA}")
    A(f"v_add_u32 v{vAA}, {XF}, v{vACT}")
    A(f"v_cmp_eq_u32 s[4:5], 0, v{vTMP2}")
    cwait(F_ERD, NWAVES - 1, sleep=1)
    wait_prog(False, 4, sleep=1)
    if opt.qlead >= 0: flag_now("q")
    actreads(4)
    wreads(0, 4)
    for kb in range(4):
        A(f"s_waitcnt lgkmcnt({6 if kb == 0 else 6})")
        A(f"ds_read_b64_tr_b16 v[{vK+16+4*kb}:{vK+16+4*kb+1}], v{vW} offset:{8192*kb}")
        A(f"ds_read_b64_tr_b16 v[{vK+16+4*kb+2}:{vK+16+4*kb+3}], v{vW} offset:{8192*kb+1024}")
        mf(kb, kb == 0)
    A("s_mov_b64 exec, 3")
    A(f"ds_add_u32 v9, v{vONE} offset:{F_FREE0}")
    A("s_mov_b64 exec, -1")
    for kb in range(4):
        A(f"s_waitcnt lgkmcnt({7-2*kb})")
        c1 = "0" if kb == 0 else f"v[{vACC2}:{vACC2+3}]"
        A(f"v_mfma_f32_16x16x32_bf16 v[{vACC2}:{vACC2+3}], v[{vK+16+4*kb}:{vK+16+4*kb+3}], v[{vQ+4*kb}:{vQ+4*kb+3}], {c1}")
    A("s_nop 7")
    for r in range(4): A(f"v_cndmask_b32 v{vACC+r}, v{vACC2+r}, v{vACC+r}, s[4:5]")
    encode(None, vB, vB+1)
    staged(F_PUB0, 3, 4 << 16, "q" if opt.qhint else None)
    if opt.ackst:
        stamp(2); A("s_waitcnt vmcnt(0)"); stamp(5)
    A(f"v_mov_b32 v{vAX}, 0")
    A("L_noq:")
    if not opt.ackst: stamp(2)
    A(f"s_cmp_ge_u32 s{sR}, 16")
    A("s_cbranch_scc1 L_roleM")
    A(f"s_cmp_eq_u32 s{sROLE}, 2")
    A("s_cbranch_scc1 L_bc_late")
    pub_voff(5)
    setscale(LG)
    A(f"s_and_b32 s{sTMP}, s{sBETA}, -4")
    A(f"s_lshr_b32 s{sTMP2}, s{sC}, 1")
    A(f"s_add_u32 s{sTMP}, s{sTMP}, s{sTMP2}")
    A(f"s_and_b32 s{sTMP2}, s{sBETA}, 3")
    A(f"s_lshl2_add_u32 s{sTMP}, s{sTMP}, s{sTMP2}")
    A(f"s_and_b32 s{sTMP2}, s{sC}, 1")
    A(f"s_lshl1_add_u32 s{sTMP}, s{sTMP}, s{sTMP2}")
    A(f"s_lshl_b32 s{sTMP}, s{sTMP}, 8")
    ws_addr(sGA, WS_GP, sTMP)
    def hc_addr():
        A(f"s_and_b32 s{sTMP}, s{sBETA}, -4")
        A(f"s_or_b32 s{sTMP2}, s{sBETA}, 3")
        A(f"s_mul_i32 s{sTMP}, s{sTMP}, 147")
        A(f"s_mul_i32 s{sTMP2}, s{sTMP2}, 147")
        A(f"s_lshr_b32 s{sTMP}, s{sTMP}, 10")
        A(f"s_lshr_b32 s{sTMP2}, s{sTMP2}, 10")
        A(f"s_cmp_eq_u32 s{sTMP}, s{sTMP2}")
        A(f"s_cselect_b32 s{sNH}, {HREP}, {2*HREP}")
        A(f"s_mul_i32 s{sTMP}, s{sTMP}, {CS*HREP}")
        ws_addr(sGB, WS_HC, sTMP)
    if not opt.notif: hc_addr()
    for r in range(4): A(f"v_mov_b32 v{vACC+r}, 0")
    A(f"v_mov_b32 v{vWA}, v{vTR}")
    A(f"v_add_u32 v{vAA}, {XF + 2048}, v{vACT}")
    A(f"s_mov_b32 s{sCNT}, 5")
    wait_prog(False, opt.xgat + 1, sleep=1)
    egloop(12, "G1")
    signal(F_FREE1)
    stamp(3)
    egloop(20, "G2", opt.hlead, "h")
    A("s_nop 7")
    publish(vACC)
    if opt.hlead < 0 and not opt.notif: flag(F_PUB1, "h")
    else: A("s_mov_b64 exec, -1")
    stamp(6)
    if opt.ackst:
        A("s_waitcnt vmcnt(0)"); stamp(4)
    A("L_bc_late:")
    late_setup(RA, 0, 28)
    ws_addr(sGA, WS_OP, sTMP)
    A(f"s_lshl_b32 s{sTMP2}, s{sC}, 4")
    A(f"v_and_b32 v{vTMP3}, 32, v0")
    A(f"v_lshlrev_b32 v{vTMP3}, 2, v{vTMP3}")
    A(f"v_add3_u32 v{vTMP3}, v{vTMP3}, s{sTMP2}, v9")
    A(f"s_lshl_b32 s{sTMP3}, s{sLR}, 3")
    A(f"v_subrev_u32 v{vAFW}, s{sTMP3}, v0")
    A(f"v_and_b32 v{vAFW}, 62, v{vAFW}")
    A(f"v_lshlrev_b32 v{vAFW}, 6, v{vAFW}")
    A(f"v_and_b32 v{vTMP2}, 1, v0")
    A(f"v_lshl_or_b32 v{vAFW}, v{vTMP2}, 3, v{vAFW}")
    A(f"s_add_u32 s{sTMP2}, s{sTMP2}, {AF}")
    A(f"v_add_u32 v{vAFW}, s{sTMP2}, v{vAFW}")
    afswz(vAFW)
    late_wait()
    stamp(7)
    def owork(i):
        if i == 2: late_post_issue()
        if i == 3: late_post()
    gather(mid=late_mid, cntstamp=13, sleep=opt.gsleep, work=owork, kind='B', defer=True)
    if STAMP == 1: A("s_waitcnt lgkmcnt(0)")
    cwait_rd(F_WRDY, 1, 0, lambda: A(f"ds_read_b128 v[{vSCA}:{vSCA+3}], v{vTMP3} offset:{F_WT}"))
    stamp(8)
    A(f"s_cmp_lg_u32 s{sEM}, 0")
    A("s_cbranch_scc1 L_onofix")
    A("s_call_b64 s[6:7], L_fix")
    A("L_onofix:")
    for i in range(4): acc(i, vS0, i == 0)
    A("s_branch L_late")

    A("L_roleM:")
    vXr, vGWr = vK, vK + 8
    A(f"s_cmp_lt_u32 s{sC}, 4")
    A("s_cbranch_scc1 L_nogate")
    wait_prog(False, opt.ggate, sleep=1)
    A(f"s_and_b32 s{sTMP}, s{sR}, 1")
    A(f"s_lshl2_add_u32 s{sTMP}, s{sTMP}, s{sC}")
    A(f"s_sub_u32 s{sTMP3}, s{sTMP}, 4")
    A(f"s_lshl_b32 s{sTMP}, s{sTMP3}, 11")
    A(f"v_add_u32 v{vTMP3}, s{sTMP}, v{vL16}")
    for i in range(2):
        A(f"global_load_dwordx4 v[{vXr+4*i}:{vXr+4*i+3}], v{vTMP3}, s[{sX}:{sX+1}] offset:{1024*i}")
        A(f"global_load_dwordx4 v[{vGWr+4*i}:{vGWr+4*i+3}], v{vL16}, s[{sGW}:{sGW+1}] offset:{1024*i}")
    A(f"v_mov_b32 v{vACC2}, 0")
    A("s_waitcnt vmcnt(0)")
    for i in range(8):
        A(f"v_lshlrev_b32 v{vW}, 16, v{vXr+i}")
        A(f"v_and_b32 v{vW+1}, 0xffff0000, v{vXr+i}")
        A(f"v_lshlrev_b32 v{vW+2}, 16, v{vGWr+i}")
        A(f"v_and_b32 v{vW+3}, 0xffff0000, v{vGWr+i}")
        A(f"v_mul_f32 v{vW}, v{vW}, v{vW+2}")
        A(f"v_mul_f32 v{vW+1}, v{vW+1}, v{vW+3}")
        A(f"v_cvt_pk_bf16_f32 v{vW}, v{vW}, v{vW+1}")
        A(f"v_lshlrev_b32 v{vW+1}, 16, v{vW}")
        A(f"v_and_b32 v{vW}, 0xffff0000, v{vW}")
        A(f"v_add_f32 v{vACC2}, v{vACC2}, v{vW+1}")
        A(f"v_add_f32 v{vACC2}, v{vACC2}, v{vW}")
    for off in (0x041F, 0x081F, 0x101F, 0x201F, 0x401F):
        A(f"ds_swizzle_b32 v{vW}, v{vACC2} offset:{off:#x}")
        A("s_waitcnt lgkmcnt(0)")
        A(f"v_add_f32 v{vACC2}, v{vACC2}, v{vW}")
    A(f"v_mov_b32 v{vW}, v{vACC2}")
    A("s_nop 1")
    A(f"v_permlane32_swap_b32 v{vACC2}, v{vW}")
    A(f"v_add_f32 v{vACC2}, v{vACC2}, v{vW}")
    def rbf(v):
        A(f"v_cvt_pk_bf16_f32 v{v}, v{v}, v{v}")
        A(f"v_and_b32 v{v}, 0xffff0000, v{v}")
    rbf(vACC2)
    A(f"v_mul_f32 v{vACC2}, 0xbfb8aa3b, v{vACC2}")
    A(f"v_exp_f32 v{vACC2}, v{vACC2}")
    A("s_nop 0")
    A(f"v_add_f32 v{vACC2}, 1.0, v{vACC2}")
    A(f"v_rcp_f32 v{vACC2}, v{vACC2}")
    A("s_nop 0")
    rbf(vACC2)
    A(f"s_lshl_b32 s{sTMP}, s{sTMP3}, 2")
    A(f"v_add_u32 v{vTMP2}, s{sTMP}, v9")
    A("s_mov_b64 exec, 1")
    A(f"ds_write_b32 v{vTMP2}, v{vACC2} offset:{F_G}")
    A("s_mov_b64 exec, -1")
    A("L_nogate:")
    A(f"s_lshl2_add_u32 s{sTMP}, s{sBB}, s{sG}")
    A(f"s_lshl3_add_u32 s{sTMP}, s{sTMP}, s{sC}")
    A(f"s_lshl_b32 s{sTMP}, s{sTMP}, 11")
    ws_addr(sGA, WS_QP, sTMP)
    A(f"v_bfe_u32 v{vTMP2}, v0, 2, 2")
    A(f"v_and_b32 v{vTMP3}, 3, v0")
    A(f"v_lshl_add_u32 v{vTMP2}, v{vTMP2}, 3, v{vTMP3}")
    A(f"v_lshlrev_b32 v{vWA}, 8, v{vTMP2}")
    A(f"v_lshrrev_b32 v{vTMP2}, 5, v0")
    A(f"v_and_b32 v{vTMP3}, 7, v0")
    A(f"v_xor_b32 v{vTMP2}, v{vTMP2}, v{vTMP3}")
    A(f"v_lshl_or_b32 v{vWA}, v{vTMP2}, 5, v{vWA}")
    A(f"v_and_b32 v{vTMP2}, 16, v0")
    A(f"s_lshl_b32 s{sTMP}, s{sC}, 13")
    A(f"v_add3_u32 v{vWA}, v{vWA}, v{vTMP2}, s{sTMP}")
    vQA, vMX, vPA = vW, vW + 1, vW + 2
    A(f"v_and_b32 v{vQA}, 30, v0")
    A(f"v_lshlrev_b32 v{vQA}, 6, v{vQA}")
    A(f"v_and_b32 v{vTMP2}, 1, v0")
    A(f"v_lshl_or_b32 v{vQA}, v{vTMP2}, 3, v{vQA}")
    A(f"v_lshrrev_b32 v{vTMP2}, 5, v0")
    A(f"v_lshl_or_b32 v{vQA}, v{vTMP2}, 2, v{vQA}")
    A(f"s_lshl_b32 s{sTMP}, s{sC}, 4")
    A(f"s_add_u32 s{sTMP}, s{sTMP}, {QF}")
    A(f"v_add_u32 v{vQA}, s{sTMP}, v{vQA}")
    A(f"v_lshl_add_u32 v{vMX}, v{vTMP3}, 2, v9")
    A(f"s_lshl_b32 s{sTMP}, s{sC}, 9")
    A(f"s_add_u32 s{sTMP}, s{sTMP}, {PF}")
    A(f"v_add_u32 v{vPA}, s{sTMP}, v{vACT}")
    vOTP, vOTA = vRW, vRR
    A(f"v_lshrrev_b32 v{vTMP3}, 4, v0")
    A(f"v_and_b32 v{vTMP2}, 7, v0")
    A(f"v_lshlrev_b32 v{vSTW}, 8, v{vTMP2}")
    A(f"v_lshl_or_b32 v{vSTW}, v{vTMP3}, 3, v{vSTW}")
    A(f"s_lshl_b32 s{sTMP}, s{sC}, 5")
    A(f"s_add_u32 s{sTMP}, s{sTMP}, {ST}")
    A(f"v_add_u32 v{vSTW}, s{sTMP}, v{vSTW}")
    A(f"v_add_u32 v{vSTR}, {ST}, v{vL16}")
    A(f"v_and_b32 v{vPUB}, 0x1f0, v{vL16}")
    A(f"v_and_b32 v{vTMP2}, 32, v0")
    A(f"v_lshl_or_b32 v{vPUB}, v{vTMP2}, 9, v{vPUB}")
    A(f"s_and_b32 s{sTMP}, s{sC}, 1")
    A(f"s_lshl_b32 s{sTMP}, s{sTMP}, 4")
    A(f"v_lshl_or_b32 v{vTMP3}, v{vTMP3}, 2, s{sTMP}")
    tagbits(vOTP, vTMP3)
    if opt.qhint: cwait(F_QRDY, 1, sleep=1)
    else: wait_prog(False, opt.qgate, sleep=1)
    stamp(3)
    def kfrags():
        A(f"s_add_u32 s{sTMP2}, s{sC}, 5")
        wait_prog(True, sTMP2)
        for db in range(4):
            if db: A(f"v_xor_b32 v{vAA}, {64*db}, v{vWA}")
            a = vAA if db else vWA
            A(f"ds_read_b128 v[{vK+4*db}:{vK+4*db+3}], v{a}")
            A(f"ds_read_b128 v[{vK+16+4*db}:{vK+16+4*db+3}], v{a} offset:1024")
        signal(F_FREE1)
        A(f"v_add_u32 v{vAA}, {QF}, v{vACT}")
    setsca(LQ)
    def qwork(i): acc(i, vS0, i == 0)
    gather(nld=4, mid=kfrags, cntstamp=11, sleep=opt.qsleep, work=qwork)
    stamp(4)
    A("s_nop 1")
    A(f"v_permlane32_swap_b32 v{vS0}, v{vS0+2}")
    A(f"v_permlane32_swap_b32 v{vS0+1}, v{vS0+3}")
    A(f"v_add_f32 v{vS0}, v{vS0}, v{vS0+2}")
    A(f"v_add_f32 v{vS0+1}, v{vS0+1}, v{vS0+3}")
    A(f"v_cvt_pk_bf16_f32 v{vGA}, v{vS0}, v{vS0+1}")
    A(f"ds_write_b32 v{vQA}, v{vGA}")
    signal(F_BQ)
    A(f"s_lshl_b32 s{sTMP}, s{sG}, 5")
    A(f"s_add_u32 s{sTMP}, s{sTMP}, s{sBB}")
    A(f"s_lshl2_add_u32 s{sTMP}, s{sTMP}, s{sSPL}")
    A(f"s_lshl_b32 s{sTMP}, s{sTMP}, 9")
    ws_addr(sGA, WS_OP, sTMP)
    A(f"s_lshl2_add_u32 s{sTMP3}, s{sBB}, s{sSPL}")
    A(f"s_mul_i32 s{sTMP}, s{sG}, {32*CS}")
    ws_addr(sGB, WS_OC, sTMP)
    A(f"s_lshl_b32 s{sTMP}, s{sG}, 5")
    A(f"s_add_u32 s{sTMP}, s{sTMP}, s{sTMP3}")
    A(f"s_lshl_b32 s{sTMP}, s{sTMP}, 6")
    ws_addr(sFA, WS_LSE, sTMP)
    cbits = struct.unpack("<I", struct.pack("<f", math.log2(math.e) / math.sqrt(128.0)))[0]
    A(f"s_mov_b32 s{sTMP2}, {cbits:#x}")
    if STAMP == 1: A("s_waitcnt lgkmcnt(0)")
    if opt.spec: cwait_rd(F_BQ, 8, 4, lambda: actreads(4))
    else:
        cwait(F_BQ, 8); actreads(4)
    for db in range(4):
        A(f"s_waitcnt lgkmcnt({3-db})")
        c0 = "0" if db == 0 else f"v[{vACC}:{vACC+3}]"
        c1 = "0" if db == 0 else f"v[{vACC2}:{vACC2+3}]"
        A(f"v_mfma_f32_16x16x32_bf16 v[{vACC}:{vACC+3}], v[{vK+4*db}:{vK+4*db+3}], v[{vQ+4*db}:{vQ+4*db+3}], {c0}")
        A(f"v_mfma_f32_16x16x32_bf16 v[{vACC2}:{vACC2+3}], v[{vK+16+4*db}:{vK+16+4*db+3}], v[{vQ+4*db}:{vQ+4*db+3}], {c1}")
    A(f"v_add_u32 v{vAA}, {PF}, v{vACT}")
    A(f"v_add_u32 v{vWA}, {RB}, v{vTR}")
    vONES = vGA
    for r in range(4): A(f"v_mov_b32 v{vONES+r}, 0x3f803f80")
    A("s_nop 1")
    A(f"v_max3_f32 v{vTMP2}, v{vACC}, v{vACC+1}, v{vACC+2}")
    A(f"v_max3_f32 v{vTMP2}, v{vTMP2}, v{vACC+3}, v{vACC2}")
    A(f"v_max3_f32 v{vTMP2}, v{vTMP2}, v{vACC2+1}, v{vACC2+2}")
    A(f"v_max_f32 v{vTMP2}, v{vTMP2}, v{vACC2+3}")
    A("s_mov_b32 exec_lo, 0x00ff00ff\ns_mov_b32 exec_hi, 0x00ff00ff")
    A(f"ds_max_f32 v{vMX}, v{vTMP2} offset:{F_MAX}")
    signal(F_BM)
    vM = vLS
    cwait_rd(F_BM, 8, 1, lambda: A(f"ds_read_b32 v{vM}, v{vMX} offset:{F_MAX}"))
    if opt.olead >= 0 and opt.oearly:
        A(f"ds_read_b32 v{vTMP}, v9 offset:{F_PROG}")
    A("s_waitcnt lgkmcnt(0)")
    A(f"s_mov_b32 s{sWDN}, 0")
    if opt.olead >= 0 and opt.oearly:
        A(f"v_readfirstlane_b32 s{sPROG}, v{vTMP}")
        A(f"s_cmp_lt_u32 s{sPROG}, {20 - opt.olead}")
        A("s_cbranch_scc1 L_of_no1")
        flag_now("q")
        A(f"s_mov_b32 s{sWDN}, 1")
        A("L_of_no1:")
    A(f"v_mul_f32 v{vM}, s{sTMP2}, v{vM}")
    for r in range(8):
        A(f"v_fma_f32 v{vACC+r}, v{vACC+r}, s{sTMP2}, -v{vM}")
    for r in range(8):
        A(f"v_exp_f32 v{vACC+r}, v{vACC+r}")
    A("s_nop 0")
    for r in range(4):
        A(f"v_cvt_pk_bf16_f32 v{vB+r}, v{vACC+2*r}, v{vACC+2*r+1}")
    A(f"ds_write_b128 v{vPA}, v[{vB}:{vB+3}]")
    signal(F_BP)
    if opt.spec: cwait_rd(F_BP, 8, 8, lambda: actreads(8))
    else:
        cwait(F_BP, 8); actreads(8)
    A(f"ds_read_b32 v{vTMP}, v9 offset:{F_PROG}")
    for kb in range(8):
        A(f"s_waitcnt lgkmcnt({8-kb})")
        c1 = "0" if kb == 0 else f"v[{vACC2}:{vACC2+3}]"
        A(f"v_mfma_f32_16x16x32_bf16 v[{vACC2}:{vACC2+3}], v[{vONES}:{vONES+3}], v[{vQ+4*kb}:{vQ+4*kb+3}], {c1}")
    A("s_waitcnt lgkmcnt(0)")
    A(f"v_readfirstlane_b32 s{sPROG}, v{vTMP}")
    stamp(5)
    vRL = vLS + 2
    def lse_part():
        A(f"v_log_f32 v{vLS+1}, v{vACC2}")
        A(f"v_rcp_f32 v{vRL}, v{vACC2}")
        A("s_nop 0")
        A(f"v_mul_f32 v{vRL}, {fbits(2.0**LO_):#x}, v{vRL}")
        d = g.lab("L_nolse")
        A(f"s_cmp_lg_u32 s{sC}, 0")
        A(f"s_cbranch_scc1 {d}")
        A(f"v_add_f32 v{vM}, v{vM}, v{vLS+1}")
        A(f"v_mov_b32 v{vLS+1}, s{sT}")
        A(f"v_lshlrev_b32 v{vTMP2}, 3, v0")
        A("s_mov_b64 exec, 0xff")
        if not (opt.dbg & 1):
            A(f"global_store_dwordx2 v{vTMP2}, v[{vLS}:{vLS+1}], s[{sFA}:{sFA+1}] sc1")
            if opt.lcnt:
                A(f"s_bfm_b64 exec, {NREP}, 0")
                A(f"v_mov_b32 v{vTMP2}, 0x10000")
                A(f"global_atomic_add v{vFLG}, v{vTMP2}, s[{sGB}:{sGB+1}] sc1")
        A("s_mov_b64 exec, -1")
        A(f"{d}:")
    A(f"s_cmp_lt_u32 s{sPROG}, 20")
    A("s_cbranch_scc1 L_pv_slow")
    def oflag():
        if opt.olead < 0: return
        d = g.lab("L_of")
        A(f"s_cmp_lg_u32 s{sWDN}, 0")
        A(f"s_cbranch_scc1 {d}")
        flag_now("q")
        A(f"{d}:")
    wreads(0, 7)
    lse_part()
    oflag()
    for kb in range(7):
        A(f"s_waitcnt lgkmcnt({14-2*kb if kb else 12})")
        if kb == 0: wreads(7, 8)
        mf(kb, kb == 0)
    A("s_branch L_pv_last")
    pad("M")
    A("L_pv_slow:")
    A("s_nop 4")
    lse_part()
    for kb in range(8):
        wait_prog(False, 12 + kb + 1)
        wreads(kb, kb+1)
        if 12 + kb + 1 == 20 - opt.olead: oflag()
        if kb:
            A("s_waitcnt lgkmcnt(2)")
            mf(kb-1, kb == 1)
    A("L_pv_last:")
    A("s_waitcnt lgkmcnt(0)")
    mf(7, False)
    A("s_nop 7")
    encode(vRL, vOTP, vOTA)
    A("s_mov_b32 exec_lo, 0x00ff00ff\ns_mov_b32 exec_hi, 0x00ff00ff")
    staged(F_PUB1, 7, 2 << 14, "q" if (opt.olead < 0 and not opt.notif) else None)
    stamp(6)
    if opt.ackst:
        A("s_waitcnt vmcnt(0)"); stamp(3)
    A(f"s_and_b32 s{sTMP2}, s{sR}, 1")
    A(f"s_lshl_b32 s{sTMP2}, s{sTMP2}, 4")
    A(f"v_and_b32 v{vTMP2}, 12, v0")
    A(f"v_add3_u32 v{vTMP2}, v{vTMP2}, s{sTMP2}, v9")
    A(f"ds_read_b32 v{vRG}, v{vTMP2} offset:{F_G}")
    A(f"s_lshl4_add_u32 s{sTMP}, s{sXCD}, s{sR}")
    A(f"s_sub_u32 s{sTMP3}, s{sTMP}, 16")
    A(f"s_lshl3_add_u32 s{sTMP}, s{sTMP3}, s{sC}")
    A(f"s_lshl_b32 s{sTMP}, s{sTMP}, 9")
    ws_addr(sRA, WS_FP, sTMP)
    A(f"v_lshlrev_b32 v{vRR}, 2, v0")
    A(f"v_add_u32 v{vRR}, {RS}, v{vRR}")
    A(f"s_lshl_b32 s{sTMP}, s{sC}, 8")
    A(f"v_add_u32 v{vRW}, s{sTMP}, v{vRR}")
    A(f"v_and_b32 v{vOUT}, 12, v0")
    A(f"v_lshlrev_b32 v{vOUT}, 9, v{vOUT}")
    A(f"v_and_b32 v{vTMP2}, 3, v0")
    A(f"v_lshl_or_b32 v{vOUT}, v{vTMP2}, 3, v{vOUT}")
    A(f"v_lshrrev_b32 v{vTMP2}, 4, v0")
    A(f"v_lshl_or_b32 v{vOUT}, v{vTMP2}, 1, v{vOUT}")
    A(f"s_lshl_b32 s{sTMP2}, s{sTMP2}, 9")
    A(f"s_lshr_b32 s{sTMP3}, s{sTMP3}, 1")
    A(f"s_lshl_b32 s{sTMP3}, s{sTMP3}, 5")
    A(f"s_add_u32 s{sTMP2}, s{sTMP2}, s{sTMP3}")
    A(f"v_add_u32 v{vOUT}, s{sTMP2}, v{vOUT}")
    A("s_waitcnt lgkmcnt(0)")
    A(f"s_cmp_lt_u32 s{sC}, 4")
    A("s_cbranch_scc1 L_wg_done")
    A(f"v_sub_f32 v{vRG}, 1.0, v{vRG}")
    rbf(vRG)
    A("L_wg_done:")
    A(f"v_mul_f32 v{vRG}, {fbits(2.0**-LF):#x}, v{vRG}")
    setsca(LG)
    late_setup(RA, 16, 27)
    A(f"s_add_u32 s{sTMP}, s{sC}, s{sLR}")
    A(f"s_cmp_ge_u32 s{sTMP}, 7")
    A(f"s_cselect_b32 s{sTMP2}, 7, 0")
    A(f"s_sub_u32 s{sTMP}, s{sTMP}, s{sTMP2}")
    A(f"s_add_u32 s{sTMP}, s{sTMP}, s{sKB0}")
    A(f"s_lshl_b32 s{sTMP}, s{sTMP}, 11")
    ws_addr(sGA, WS_GP, sTMP)
    for r in range(4): A(f"v_mov_b32 v{vS0+r}, 0")
    late_wait()
    A(f"s_cmp_eq_u32 s{sC}, 7")
    A("s_cbranch_scc1 L_late")
    stamp(7)
    def rnd4(v):
        A(f"v_cvt_pk_bf16_f32 v{vB}, v{v}, v{v+1}")
        A(f"v_cvt_pk_bf16_f32 v{vB+1}, v{v+2}, v{v+3}")
        for h in range(2):
            A(f"v_lshlrev_b32 v{v+2*h}, 16, v{vB+h}")
            A(f"v_and_b32 v{v+2*h+1}, 0xffff0000, v{vB+h}")
    def hwork(i):
        if i == 2: late_post_issue()
        if i == 3: late_post()
        acc(i, vS0 if i < 2 else vS1, i in (0, 2))
        if i == 1:
            for r in range(4): A(f"v_max_f32 v{vS0+r}, 0, v{vS0+r}")
            if opt.hround: rnd4(vS0)
        if i == 3:
            if opt.hround: rnd4(vS1)
            for r in (0, 2): A(f"v_pk_mul_f32 v[{vS0+r}:{vS0+r+1}], v[{vS0+r}:{vS0+r+1}], v[{vS1+r}:{vS1+r+1}]")
    gather(mid=late_mid, cntstamp=13, sleep=opt.gsleep, work=hwork)
    stamp(8)

    if opt.touch: A("s_branch L_late")
    pad("A")
    A("L_late:")
    A(f"v_cvt_pk_bf16_f32 v{vGA}, v{vS0}, v{vS0+1}")
    A(f"v_cvt_pk_bf16_f32 v{vGA+1}, v{vS0+2}, v{vS0+3}")
    A(f"ds_write_b64 v{vAFW}, v[{vGA}:{vGA+1}]")
    if opt.lflow == 1:
        signal(F_BA)
        if opt.fine: stamp(3)
        A(f"s_cmp_eq_u32 s{sWDN}, 99")
        A("s_cbranch_scc1 L_late_bar")
        A("L_late_spin:")
        A(f"ds_read2_b32 v[{vTMP}:{vTMP+1}], v9 offset0:{F_PROG//4} offset1:{F_BA//4}")
        A("s_waitcnt lgkmcnt(0)")
        A(f"v_readfirstlane_b32 s{sPROG}, v{vTMP}")
        A(f"v_readfirstlane_b32 s{sTMP2}, v{vTMP+1}")
        wcatch()
        A(f"s_cmp_eq_u32 s{sWDN}, 99")
        A("s_cbranch_scc1 L_late_bar0")
        A(f"s_cmp_lt_u32 s{sWDN}, 27")
        A("s_cbranch_scc1 L_late_spin")
        A(f"s_cmp_lt_u32 s{sTMP2}, 8")
        A("s_cbranch_scc1 L_late_spin")
        actreads(8, True)
        for kb in range(6):
            A(f"s_waitcnt lgkmcnt({7-kb})")
            mf(kb, kb == 0)
        A("s_barrier")
        wreads(6, 8)
        A("s_waitcnt lgkmcnt(2)")
        mf(6, False)
        A("s_waitcnt lgkmcnt(0)")
        mf(7, False)
        A("s_branch L_late_done")
        pad("A")
        A("L_late_bar:")
        A("s_waitcnt lgkmcnt(0)")
        A("L_late_bar0:")
        A("s_barrier")
        if opt.fine: stamp(4)
        actreads(8, True)
        for kb in range(8):
            A(f"s_waitcnt lgkmcnt({7-kb})")
            mf(kb, kb == 0)
    else:
        if opt.fine: stamp(3)
        if opt.lflow == 3: signal(F_BA)
        A(f"s_cmp_ge_u32 s{sWDN}, {opt.wmin}")
        A(f"s_cbranch_scc1 {'L_late_w6' if opt.lflow == 3 else 'L_late_bar'}")
        wait_prog(False, opt.wmin - 1)
        wcatch()
        if opt.lflow == 3:
            A("L_late_w6:")
            A(f"s_cmp_eq_u32 s{sWDN}, 99")
            A("s_cbranch_scc1 L_late_bar")
            A("L_late_spin:")
            A(f"ds_read2_b32 v[{vTMP}:{vTMP+1}], v9 offset0:{F_PROG//4} offset1:{F_BA//4}")
            A("s_waitcnt lgkmcnt(0)")
            A(f"v_readfirstlane_b32 s{sPROG}, v{vTMP}")
            A(f"v_readfirstlane_b32 s{sTMP2}, v{vTMP+1}")
            A(f"s_cmp_ge_u32 s{sPROG}, s{sPE}")
            A("s_cbranch_scc1 L_late_bar")
            A(f"s_cmp_lt_u32 s{sTMP2}, 8")
            A("s_cbranch_scc1 L_late_spin")
            n0 = opt.wmin - 21
            actreads(8, True)
            for kb in range(n0):
                A(f"s_waitcnt lgkmcnt({7-kb})")
                mf(kb, kb == 0)
            A("s_barrier")
            wreads(n0, 8)
            for kb in range(n0, 8):
                A(f"s_waitcnt lgkmcnt({2*(7-kb)})")
                mf(kb, False)
            A("s_branch L_late_done")
        A("L_late_bar:")
        A(f"s_cmp_eq_u32 s{sWDN}, 99")
        A("s_waitcnt lgkmcnt(0)")
        A("s_barrier")
        A("s_cbranch_scc1 L_late_act")
        wreads(opt.wmin - 21, 8)
        A("L_late_act:")
        if opt.fine: stamp(4)
        actreads(8, True)
        for kb in range(8):
            A(f"s_waitcnt lgkmcnt({7-kb})")
            mf(kb, kb == 0)
    A("L_late_done:")
    if opt.fine: stamp(5)
    A("s_nop 7")
    publish(vACC, sFA)
    A("s_mov_b64 exec, -1")
    stamp(9)
    A(f"s_cmp_ge_u32 s{sR}, 16")
    A("s_cbranch_scc1 L_red")
    A("s_branch L_exit")
    pad("A")
    A("L_red:")
    A(f"s_mov_b64 s[{sGA}:{sGA+1}], s[{sRA}:{sRA+1}]")
    if opt.fgate and not opt.fbar: cwait(F_FRDY, 1)
    A(f"v_mov_b32 v{vSCA}, v{vRG}")
    if opt.fgate and opt.fbar: A("s_barrier")
    def fwork(i): acc(0, vS0, True)
    gather(nld=1, cntstamp=12, sleep=opt.fgsleep, work=fwork)
    if not opt.stq: stamp(2)
    A("s_nop 1")
    A(f"v_permlane32_swap_b32 v{vS0}, v{vS0+2}")
    A(f"v_permlane32_swap_b32 v{vS0+1}, v{vS0+3}")
    A(f"v_add_f32 v{vS0}, v{vS0}, v{vS0+2}")
    A(f"v_add_f32 v{vS0+1}, v{vS0+1}, v{vS0+3}")
    A("s_nop 1")
    A(f"v_permlane16_swap_b32 v{vS0}, v{vS0+1}")
    A(f"v_add_f32 v{vGA}, v{vS0}, v{vS0+1}")
    A(f"ds_write_b32 v{vRW}, v{vGA}")
    A("s_mov_b64 exec, 1")
    A(f"ds_add_rtn_u32 v{vTMP}, v9, v{vONE} offset:{F_RED}")
    A("s_mov_b64 exec, -1")
    for i in range(4):
        A(f"ds_read2st64_b32 v[{vGA+2*i}:{vGA+2*i+1}], v{vRR} offset0:{2*i} offset1:{2*i+1}")
    A("s_waitcnt lgkmcnt(4)")
    A(f"v_readfirstlane_b32 s{sTMP}, v{vTMP}")
    A(f"s_cmp_lg_u32 s{sTMP}, 7")
    A("s_cbranch_scc1 L_exit")
    A("s_waitcnt lgkmcnt(0)")
    A(f"v_pk_add_f32 v[{vGA}:{vGA+1}], v[{vGA}:{vGA+1}], v[{vGA+2}:{vGA+3}]")
    A(f"v_pk_add_f32 v[{vGA+4}:{vGA+5}], v[{vGA+4}:{vGA+5}], v[{vGA+6}:{vGA+7}]")
    A(f"v_pk_add_f32 v[{vGA}:{vGA+1}], v[{vGA}:{vGA+1}], v[{vGA+4}:{vGA+5}]")
    A(f"v_add_f32 v{vGA}, v{vGA}, v{vGA+1}")
    A(f"v_cvt_pk_bf16_f32 v{vGA}, v{vGA}, v{vGA}")
    A(f"global_store_short v{vOUT}, v{vGA}, s[{sOUT}:{sOUT+1}] {opt.outflags}")
    A(f"s_cmp_lg_u32 s2, 128")
    A("s_cbranch_scc1 L_noepoch")
    A("s_mov_b64 exec, 1")
    A(f"v_mov_b32 v{vTMP}, 0")
    A(f"global_store_dword v{vTMP}, v{vT}, s[{sWS}:{sWS+1}] sc1")
    A("s_mov_b64 exec, -1")
    A("L_noepoch:")
    if opt.fixdur:
        A(f"s_cmp_lg_u32 s2, {opt.fixwg}")
        A("s_cbranch_scc1 L_nofix")
        A("L_fixd:")
        A("s_memrealtime s[14:15]")
        A("s_waitcnt lgkmcnt(0)")
        A("s_sub_u32 s14, s14, s98")
        A(f"s_cmp_lt_u32 s14, {opt.fixdur}")
        A("s_cbranch_scc1 L_fixd")
        A("L_nofix:")
    if STAMP:
        A("s_waitcnt vmcnt(0)")
        stamp(1, True)
    A("s_branch L_exit")

    pad("A")
    A("L_wcatch:")
    for kb in range(8):
        nx = f"L_wcn{kb}"
        if kb < 7:
            A(f"s_cmp_gt_u32 s{sWDN}, {21+kb}")
            A(f"s_cbranch_scc1 {nx}")
        if kb:
            A(f"s_cmp_lt_u32 s{sPROG}, s{sWDN}")
            A("s_cbranch_scc1 L_wcret")
        wreads(kb, kb+1)
        if kb < 6: A(f"s_mov_b32 s{sWDN}, {22+kb}")
        elif kb == 6: A(f"s_mov_b32 s{sWDN}, s{sPE}")
        else: A(f"s_mov_b32 s{sWDN}, 99")
        if kb < 7: A(f"{nx}:")
    A("L_wcret:")
    A(f"s_setpc_b64 s[{sRET}:{sRET+1}]")

    A("L_encs:")
    A(f"v_lshrrev_b32 v{vTMP}, 23, v{vTMP}")
    A(f"v_subrev_u32 v{vTMP}, 126, v{vTMP}")
    A(f"v_ashrrev_i32 v{vTMP}, 4, v{vTMP}")
    A(f"v_med3_i32 v{vTMP}, v{vTMP}, -8, 7")
    A(f"v_cndmask_b32 v{vTMP}, 0, v{vTMP}, vcc")
    A(f"v_and_b32 v{vAX}, 15, v{vTMP}")
    A(f"v_lshl_or_b32 v{vAX}, v{vAX}, 14, v{vAX}")
    A(f"v_and_b32 v{vAX}, s{sM3}, v{vAX}")
    A(f"v_mul_i32_i24 v{vTMP}, -16, v{vTMP}")
    for r in range(4): A(f"v_ldexp_f32 v{vACC+r}, v{vACC+r}, v{vTMP}")
    A("s_mov_b64 vcc, 0")
    A("s_setpc_b64 s[6:7]")
    A("L_fixr:")
    for i in range(4): A(f"v_xor_b32 v{vGA+2*i+1}, v{vTC}, v{vGA+2*i+1}")
    A("L_fix:")
    for i in range(4):
        A(f"v_and_b32 v{vTMP}, 3, v{vGA+2*i}")
        A(f"v_bfe_i32 v{vTMP2}, v{vGA+2*i}, 16, 2")
        A(f"v_lshl_or_b32 v{vTMP}, v{vTMP2}, 2, v{vTMP}")
        A(f"v_lshlrev_b32 v{vTMP}, 4, v{vTMP}")
        A(f"v_ldexp_f32 v{vSCA+i}, v{vSCA+i}, v{vTMP}")
    A("s_setpc_b64 s[6:7]")

    if opt.notif:
        A("L_notif:")
        if opt.nocomm: A("s_branch L_exit")
        if opt.tlb:
            A("s_mov_b64 exec, 1")
            A(f"v_mov_b32 v{vGA}, 0")
            if opt.tlb & 1:
                A(f"global_load_dword v{vGA+1}, v{vGA}, s[{sOUT}:{sOUT+1}] sc1")
                A(f"global_load_dword v{vGA+2}, v{vGA}, s[{sWS}:{sWS+1}] offset:512 sc1")
            if opt.tlb & 2:
                A(f"s_lshl_b32 s{sTMP}, s{sKB0}, 16")
                A(f"v_mov_b32 v{vGA+8}, s{sTMP}")
                A(f"s_cmp_ge_u32 s{sR}, 16")
                A("s_cbranch_scc1 L_tlbM")
                A(f"global_load_dword v{vGA+3}, v{vGA+8}, s[{sWO}:{sWO+1}] nt")
                A(f"s_cmp_eq_u32 s{sROLE}, 2")
                A("s_cbranch_scc1 L_tlbD")
                A(f"s_bitcmp0_b32 s{sBETA}, 1")
                A(f"s_cselect_b64 s[4:5], s[{sWG}:{sWG+1}], s[{sWU}:{sWU+1}]")
                A(f"s_and_b32 s{sTMP}, s{sBETA}, 1")
                A(f"s_mul_i32 s{sTMP}, s{sTMP}, {512*7168}")
                A("s_mov_b64 exec, 7")
                A(f"v_mul_u32_u24 v{vGA+9}, {255*7168}, v0")
                A(f"v_add_u32 v{vGA+9}, s{sTMP}, v{vGA+9}")
                A(f"global_load_dword v{vGA+4}, v{vGA+9}, s[4:5] nt")
                A("s_branch L_tlbD")
                A("L_tlbM:")
                A(f"global_load_dword v{vGA+3}, v{vGA+8}, s[{sWD}:{sWD+1}] nt")
                A(f"s_lshl2_add_u32 s{sTMP}, s{sBB}, s{sG}")
                A(f"s_lshl_b32 s{sTMP}, s{sTMP}, 20")
                A(f"v_mov_b32 v{vGA+9}, s{sTMP}")
                A(f"global_load_dword v{vGA+4}, v{vGA+9}, s[{sV}:{sV+1}] nt")
                A("L_tlbD:")
            A("s_mov_b64 exec, -1")
        A(f"s_cmp_eq_u32 s{sROLE}, 2")
        A("s_cbranch_scc1 L_exit")
        A(f"s_cmp_ge_u32 s{sR}, 16")
        A("s_cbranch_scc1 L_notifM")
        hc_addr()
        wait_prog(False, opt.nprogh - 1, sleep=2)
        wait_prog(False, opt.nprogh)
        if opt.ndelay: A(f"s_sleep {opt.ndelay}")
        bump("h")
        A("s_branch L_exit")
        A("L_notifM:")
        A(f"s_mul_i32 s{sTMP}, s{sG}, {32*CS}")
        ws_addr(sGB, WS_OC, sTMP)
        cwait(F_BP, 8, sleep=2)
        if opt.pdelay: A(f"s_sleep {opt.pdelay}")
        wait_prog(False, opt.nprogo - 1, sleep=2)
        wait_prog(False, opt.nprogo)
        if opt.ndelay + opt.odelay: A(f"s_sleep {opt.ndelay + opt.odelay}")
        bump("q")
        A("s_branch L_exit")

    A("L_poller:")
    if opt.nocomm: A("s_branch L_exit")
    A(f"s_cmp_ge_u32 s{sR}, 16")
    A("s_cbranch_scc1 L_pollM")
    A(f"s_lshl3_add_u32 s{sTMP}, s{sRBK}, s{sCB}")
    A(f"s_and_b32 s{sTMP}, s{sTMP}, {NREP-1}")
    A(f"s_lshl_b32 s{sTMP2}, s{sG}, 5")
    A(f"s_add_u32 s{sTMP}, s{sTMP}, s{sTMP2}")
    A(f"s_mul_i32 s{sTMP}, s{sTMP}, {CS}")
    ws_addr(sGB, WS_OC, sTMP)
    A(f"s_load_dword s4, s[{sGB}:{sGB+1}], 0 glc")
    A(f"s_and_b32 s{sTMP}, s{sRBK}, 3")
    A(f"s_lshl_b32 s{sTMP}, s{sTMP}, 4")
    A(f"s_lshl_b32 s{sTMP2}, s{sG}, 11")
    A(f"s_add_u32 s{sTMP}, s{sTMP}, s{sTMP2}")
    ws_addr(sGA, WS_LSE, sTMP)
    A(f"v_and_b32 v{vTMP3}, 31, v0")
    A(f"v_lshlrev_b32 v{vTMP3}, 6, v{vTMP3}")
    A(f"v_lshrrev_b32 v{vTMP2}, 5, v0")
    A(f"v_lshl_or_b32 v{vTMP3}, v{vTMP2}, 3, v{vTMP3}")
    A("s_waitcnt lgkmcnt(0)")
    A(f"v_lshl_add_u32 v{vWA}, v0, 2, v9")
    A(f"s_cmp_eq_u32 s{sROLE}, 2")
    A(f"s_cselect_b32 s{sTMP2}, {opt.ogatec}, {opt.ogate}")
    A(f"s_add_u32 s5, s4, {0x200020 if opt.lcnt else 32}")
    for k, l in touch:
        if k in "AB": A(f"s_call_b64 s[6:7], {l}")
    wait_prog(True, sTMP2, sleep=2)
    stamp(2)
    if not (opt.dbg & 7):
        A(f"s_mov_b32 s{sCNT}, 0")
        if opt.psleep: A("s_branch L_pl1e")
        A("L_pl1:")
        if opt.psleep:
            A(f"s_sleep {opt.psleep}")
            A("L_pl1e:")
        A(f"s_load_dword s8, s[{sGB}:{sGB+1}], 0 glc")
        A(f"s_add_u32 s{sCNT}, s{sCNT}, 1")
        A(f"s_cmp_gt_u32 s{sCNT}, {opt.maxhint}")
        A("s_waitcnt lgkmcnt(0)")
        A("s_cbranch_scc1 L_pl1d")
        A("s_sub_u32 s9, s8, s4")
        A(f"s_cmp_lt_u32 s9, {0x200000 if opt.lcnt else opt.lthr}")
        A("s_cbranch_scc1 L_pl1")
        A("L_pl1d:")
        stampval(10, sCNT)
    stamp(3)
    A("s_mov_b32 s9, 0")
    A(f"s_mov_b32 s{sTMP3}, 0")
    A("L_lse:")
    if not (opt.dbg & 2): A(f"global_load_dwordx2 v[{vLS}:{vLS+1}], v{vTMP3}, s[{sGA}:{sGA+1}] sc1")
    if not (opt.dbg & 7):
        A("s_cmp_lg_u32 s9, 0")
        A("s_cbranch_scc1 L_lse_wait")
        A("L_pl2:")
        A("s_cmp_eq_u32 s8, s5")
        A("s_cbranch_scc1 L_pl_sig")
        A(f"s_cmp_gt_u32 s{sCNT}, {opt.maxhint}")
        A("s_cbranch_scc1 L_pl_sig")
        A("s_getreg_b32 s10, hwreg(HW_REG_IB_STS, 0, 4)")
        A("s_cmp_eq_u32 s10, 0")
        A("s_cbranch_scc1 L_lse_wait")
        A(f"s_load_dword s8, s[{sGB}:{sGB+1}], 0 glc")
        A(f"s_add_u32 s{sCNT}, s{sCNT}, 1")
        A("s_waitcnt lgkmcnt(0)")
        A("s_branch L_pl2")
        A("L_pl_sig:")
        signal(F_LRDY)
        A("s_mov_b32 s9, 1")
        stamp(5)
    A("L_lse_wait:")
    if not (opt.dbg & 7):
        A(f"s_load_dword s8, s[{sGB}:{sGB+1}], 0 glc")
    A(f"s_add_u32 s{sTMP3}, s{sTMP3}, 1")
    A("s_waitcnt vmcnt(0)")
    A(f"v_cmp_ne_u32 vcc, s{sT}, v{vLS+1}")
    A(f"s_cbranch_vccz L_lsed")
    A(f"s_cmp_le_u32 s{sTMP3}, {0 if (opt.dbg & 7) else opt.maxpoll}")
    A("s_waitcnt lgkmcnt(0)")
    A(f"s_cbranch_scc1 L_lse")
    A("L_lsed:")
    stampval(12, sTMP3)
    A(f"v_max_f32_dpp v{vTMP}, v{vLS}, v{vLS} quad_perm:[1,0,3,2] row_mask:0xf bank_mask:0xf")
    A("s_nop 1")
    A(f"v_max_f32_dpp v{vTMP}, v{vTMP}, v{vTMP} quad_perm:[2,3,0,1] row_mask:0xf bank_mask:0xf")
    A(f"v_sub_f32 v{vLS}, v{vLS}, v{vTMP}")
    A(f"v_exp_f32 v{vLS}, v{vLS}")
    A("s_nop 1")
    A(f"v_add_f32_dpp v{vTMP}, v{vLS}, v{vLS} quad_perm:[1,0,3,2] row_mask:0xf bank_mask:0xf")
    A("s_nop 1")
    A(f"v_add_f32_dpp v{vTMP}, v{vTMP}, v{vTMP} quad_perm:[2,3,0,1] row_mask:0xf bank_mask:0xf")
    A(f"v_rcp_f32 v{vTMP}, v{vTMP}")
    A("s_nop 0")
    A(f"v_mul_f32 v{vLS}, v{vLS}, v{vTMP}")
    A(f"v_mul_f32 v{vLS}, {fbits(2.0**-LO_):#x}, v{vLS}")
    A(f"ds_write_b32 v{vWA}, v{vLS} offset:{F_WT}")
    signal(F_WRDY)
    stamp(4)
    if not (opt.dbg & 7):
        A("s_cmp_lg_u32 s9, 0")
        A("s_cbranch_scc1 L_pl_fin")
        A("s_waitcnt lgkmcnt(0)")
        A("s_cmp_eq_u32 s8, s5")
        A("s_cbranch_scc1 L_pl_sig2")
    pollcnt(sGB, 5, opt.psleep, cntstamp=11)
    A("L_pl_sig2:")
    signal(F_LRDY)
    stamp(5)
    A("L_pl_fin:")
    A("s_barrier")
    A("s_branch L_exit")
    A("L_pollM:")
    A(f"s_lshl2_add_u32 s{sTMP}, s{sBB}, s{sSPL}")
    A(f"s_lshr_b32 s{sTMP}, s{sTMP}, {int(math.log2(32//NREP))}")
    A(f"s_lshl_b32 s{sTMP2}, s{sG}, 5")
    A(f"s_add_u32 s{sTMP}, s{sTMP}, s{sTMP2}")
    A(f"s_mul_i32 s{sTMP}, s{sTMP}, {CS}")
    ws_addr(sGB, WS_QC, sTMP)
    if opt.qhint: A(f"s_load_dword s4, s[{sGB}:{sGB+1}], 0 glc")
    A(f"s_mul_i32 s{sTMP}, s{sRBK}, {HREP}")
    A(f"s_and_b32 s{sTMP2}, s{sCB}, {HREP-1}")
    A(f"s_add_u32 s{sTMP}, s{sTMP}, s{sTMP2}")
    A(f"s_mul_i32 s{sTMP}, s{sTMP}, {CS}")
    ws_addr(sGA, WS_HC, sTMP)
    A(f"s_load_dword s5, s[{sGA}:{sGA+1}], 0 glc")
    if opt.fgate:
        A(f"s_and_b32 s{sTMP}, s{sR}, {opt.frep-1}")
        A(f"s_lshl4_add_u32 s{sTMP}, s{sXCD}, s{sTMP}")
        A(f"s_mul_i32 s{sTMP}, s{sTMP}, {CS}")
        ws_addr(10, WS_FC, sTMP)
        A(f"s_load_dword s6, s[10:11], 0 glc")
    A(f"s_bitcmp1_b32 s{sKB0}, 1")
    A(f"s_cselect_b32 s{sTMP}, 12, 8")
    A("s_waitcnt lgkmcnt(0)")
    if opt.fgate: A("s_add_u32 s6, s6, 32")
    A("s_add_u32 s4, s4, 64")
    A(f"s_add_u32 s5, s5, s{sTMP}")
    if opt.fgate: A("s_mov_b32 s9, s6")
    for k, l in touch:
        if k in "AM": A(f"s_call_b64 s[6:7], {l}")
    if opt.qhint:
        wait_prog(False, opt.qgate, sleep=2)
        stamp(2)
        pollcnt(sGB, 4, opt.psleep, cntstamp=10)
        signal(F_QRDY)
        stamp(3)
    wait_prog(False, opt.hgate, sleep=2)
    stamp(4)
    pollcnt(sGA, 5, opt.psleep, cntstamp=11)
    signal(F_LRDY)
    stamp(5)
    A("s_barrier")
    if opt.fgate:
        stamp(6)
        pollcnt(10, 9, 0, cntstamp=12)
        if opt.fbar: A("s_barrier")
        else: signal(F_FRDY)
        stamp(7)

    A("L_exit:")
    if STAMP:
        A("s_waitcnt lgkmcnt(0)")
        A(f"s_mul_i32 s{sTMP}, s2, {NWAVES}")
        A(f"s_add_u32 s{sTMP}, s{sTMP}, s3")
        A(f"s_lshl_b32 s{sTMP}, s{sTMP}, 6")
        A(f"s_add_u32 s{sTMP}, s{sTMP}, {WS_STAMP}")
        A(f"v_mov_b32 v1, s{sTMP}")
        A("s_mov_b64 exec, 1")
        for i in range(NST if STAMP == 1 else 10):
            A(f"v_mov_b32 v2, s{sST+2*i}")
            A(f"global_store_dword v1, v2, s[{sWS}:{sWS+1}] offset:{4*i}")
        A(f"v_mov_b32 v2, s{sROLE}")
        A(f"global_store_dword v1, v2, s[{sWS}:{sWS+1}] offset:60")
    A("L_end:")
    A("s_endpgm")

    body = "\n".join(g.o)
    PADTXT = f".p2align 12\n.fill {opt.pad//4}, 4, 0xbf810000\n" if opt.pad >= 0 else ""
    txt = HEADER
    txt += f"; @launch grid=(256,1,1) block=({64*NWAVES},1,1) lds={LDS_BYTES}\n"
    txt += f""".amdgcn_target "amdgcn-amd-amdhsa--gfx950"
.text
.globl {KNAME}
{PADTXT}.p2align 8
.type {KNAME},@function
{KNAME}:
{body}
.section .rodata,"a"
.p2align 6
.amdhsa_kernel {KNAME}
  .amdhsa_next_free_vgpr {NV}
  .amdhsa_next_free_sgpr 102
  .amdhsa_accum_offset {NV}
  .amdhsa_group_segment_fixed_size 0
  .amdhsa_kernarg_size 104
  .amdhsa_user_sgpr_count 2
  .amdhsa_user_sgpr_kernarg_segment_ptr 1
  .amdhsa_system_sgpr_workgroup_id_x 1
.end_amdhsa_kernel
"""
    return txt

def parse(argv):
    ap = argparse.ArgumentParser()
    ap.add_argument("--nt", default="nt")
    ap.add_argument("--pb", default="20:24,8:22")
    ap.add_argument("--pc", default="4:20,d,3:4,5:12")
    ap.add_argument("--pm", default="20:24,7:20")
    ap.add_argument("--nb0", type=int, default=3)
    ap.add_argument("--stamp", type=int, default=0)
    ap.add_argument("--stq", type=int, default=0)
    ap.add_argument("--fdelay", type=int, default=0)
    ap.add_argument("--qgate", type=int, default=9)
    ap.add_argument("--ogate", type=int, default=19)
    ap.add_argument("--ogatec", type=int, default=26)
    ap.add_argument("--hgate", type=int, default=19)
    ap.add_argument("--ggate", type=int, default=1)
    ap.add_argument("--maxpoll", type=int, default=100000)
    ap.add_argument("--psleep", type=int, default=0)
    ap.add_argument("--fsleep", type=int, default=2)
    ap.add_argument("--gsleep", type=int, default=0)
    ap.add_argument("--fgsleep", type=int, default=0)
    ap.add_argument("--sample", type=int, default=0)
    ap.add_argument("--outflags", default="sc1")
    ap.add_argument("--fixdur", type=int, default=0)
    ap.add_argument("--fixwg", type=int, default=128)
    ap.add_argument("--nocomm", type=int, default=0)
    ap.add_argument("--dbg", type=int, default=0)
    ap.add_argument("--cpf", type=int, default=2)
    ap.add_argument("--qlead", type=int, default=-1)
    ap.add_argument("--hlead", type=int, default=-1)
    ap.add_argument("--olead", type=int, default=-1)
    ap.add_argument("--oearly", type=int, default=0)
    ap.add_argument("--flagwave", type=int, default=1)
    ap.add_argument("--xgat", type=int, default=10)
    ap.add_argument("--nrep", type=int, default=8)
    ap.add_argument("--satom", type=int, default=1)
    ap.add_argument("--maxhint", type=int, default=20)
    ap.add_argument("--hround", type=int, default=0)
    ap.add_argument("--fgate", type=int, default=0)
    ap.add_argument("--frep", type=int, default=8)
    ap.add_argument("--flag_delay", type=int, default=1)
    ap.add_argument("--qhint", type=int, default=0)
    ap.add_argument("--qsleep", type=int, default=4)
    ap.add_argument("--lcnt", type=int, default=0)
    ap.add_argument("--lthr", type=int, default=16)
    ap.add_argument("--spec", type=int, default=0)
    ap.add_argument("--ackst", type=int, default=0)
    ap.add_argument("--cstride", type=int, default=640)
    ap.add_argument("--midahead", type=int, default=1)
    ap.add_argument("--fine", type=int, default=0)
    ap.add_argument("--pad", type=lambda x: int(x, 0), default=0xd00)
    ap.add_argument("--touch", type=int, default=0)
    ap.add_argument("--sbias", type=int, default=0)
    ap.add_argument("--period", type=int, default=0)
    ap.add_argument("--toff", type=int, default=650)
    ap.add_argument("--qsync", type=int, default=0)
    ap.add_argument("--lprio", type=int, default=3)
    ap.add_argument("--cprio", type=int, default=0)
    ap.add_argument("--gprio", type=int, default=0)
    ap.add_argument("--kvmode", default="lin")
    ap.add_argument("--kvrot", type=int, default=4)
    ap.add_argument("--rotw", type=int, default=1)
    ap.add_argument("--lrot", type=int, default=3)
    ap.add_argument("--lflow", type=int, default=2)
    ap.add_argument("--wmin", type=int, default=27)
    ap.add_argument("--notif", type=int, default=1)
    ap.add_argument("--ndelay", type=int, default=0)
    ap.add_argument("--odelay", type=int, default=0)
    ap.add_argument("--pdelay", type=int, default=6)
    ap.add_argument("--nprogh", type=int, default=20)
    ap.add_argument("--nprogo", type=int, default=20)
    ap.add_argument("--gran", type=int, default=2)
    ap.add_argument("--barpos", type=int, default=1)
    ap.add_argument("--fsat", type=int, default=1)
    ap.add_argument("--gok", type=int, default=7)
    ap.add_argument("--fbar", type=int, default=1)
    ap.add_argument("--specw", type=int, default=1)
    ap.add_argument("--fearly", type=int, default=0)
    ap.add_argument("--tlb", type=int, default=0)
    ap.add_argument("-o", default=None)
    return ap.parse_args(argv)

if __name__ == "__main__":
    opt = parse(sys.argv[1:])
    t = gen(opt)
    if opt.o: open(opt.o, "w").write(t)
    else: print(t)
```

```python
import sys, argparse, struct, math

KNAME = "gated_mix__sliding_block_cached__glu_gated_reglu__decode_kernel"
HEADER = open("gated_mix__sliding_block_cached__glu_gated_reglu__decode.s.ref").read().split("; Override launch")[0]

RA = 0
RB = 65536
XA = 131072
RQ = RB + 32768
XF = XA
QF = XA + 2048
PF = XA + 4096
RS = XA + 8192
ST = XA + 10240
AF = XA + 12288
FL = XA + 16384
F_PROG, F_LRDY, F_QRDY, F_WRDY, F_BQ, F_BM, F_BP, F_BA, F_RED, F_PUB0, F_PUB1, F_FREE0, F_FREE1, F_ERD, F_FRDY = [4*i for i in range(15)]
F_MAX = 64
F_G = 96
F_WT = 128
LDS_BYTES = FL + 128 + 256

WS_QP = 1 << 20
WS_OP = 2 << 20
WS_LSE = (2 << 20) + (512 << 10)
WS_GP = 3 << 20
WS_FP = 4 << 20
WS_QC = 5 << 20
WS_OC = WS_QC + (640 << 10)
WS_HC = WS_QC + 2*(640 << 10) + 1024
WS_FC = WS_QC + 3*(640 << 10) + 2048
WS_STAMP = 8 << 20

class G:
    def __init__(self):
        self.o = []; self.nlab = 0
    def A(self, s):
        for line in s.split("\n"):
            self.o.append("    " + line.strip() if not line.strip().endswith(":") else line.strip())
    def lab(self, p="L"):
        self.nlab += 1
        return f"{p}_{self.nlab}"

def plan(s):
    out = []
    for t in s.split(","):
        if t == "d": out.append("d")
        else:
            a, b = t.split(":")
            out.append((int(a), tuple(int(x) for x in b.split("/")) if "/" in b else int(b)))
    return out

def gen(opt):
    g = G(); A = g.A
    CS = opt.cstride
    NWAVES = 11 if opt.notif else 10
    NT = opt.nt
    STAMP = opt.stamp
    sX, sK, sV, sWQ, sWO, sBX, sWG, sWU = [16+2*i for i in range(8)]
    sWD, sGW, sOUT, sDBG = 32, 34, 36, 38
    sWS = 40
    sXCD, sR, sROLE = 42, 43, 44
    sU, sBETA, sG, sSPL, sRBK, sCB, sBB = 45, 46, 47, 48, 49, 50, 51
    sKS, sKB0 = 100, 101
    sLR = 53
    sWDN = 52
    sT = 54
    sT0, sT1, sT2, sT3 = 54, 56, 57, 53
    sSEL0, sSEL1, sSEL2, sSEL3 = 58, 59, 60, 61
    sPROG, sC = 62, 63
    sTMP, sTMP2, sTMP3, sCNT = 64, 65, 66, 67
    sGA, sGB = 68, 70
    sROT = 15
    sSM = 4
    sST = 72
    NST = 14
    SRD = 8
    def stamp(idx, key=False):
        if STAMP == 1 or (STAMP and (key or idx == 0)): A(f"s_memrealtime s[{sST+2*idx}:{sST+2*idx+1}]")
    touch = []
    def pad(kind):
        if not opt.touch: return
        l = g.lab("L_tp"); touch.append((kind, l))
        A(f"{l}:")
        A("s_setpc_b64 s[6:7]")
    def stampval(idx, sreg):
        if STAMP == 1: A(f"s_mov_b32 s{sST+2*idx}, s{sreg}")
    pb, pc, pm = plan(opt.pb), plan(opt.pc), plan(opt.pm)
    NB0 = opt.nb0
    assert NB0 <= 3

    stamp(0)
    if opt.fixdur: A("s_memrealtime s[98:99]")
    A("s_load_dwordx16 s[16:31], s[0:1], 0")
    A("s_load_dwordx8 s[32:39], s[0:1], 64")
    A("s_load_dwordx2 s[40:41], s[0:1], 96")
    A(f"s_cmp_ge_u32 s2, 256")
    A("s_cbranch_scc1 L_end")
    A("v_lshrrev_b32 v1, 6, v0")
    A("v_and_b32 v0, 63, v0")
    A("v_readfirstlane_b32 s3, v1")
    A(f"s_and_b32 s{sXCD}, s2, 7")
    A(f"s_lshr_b32 s{sR}, s2, 3")
    A(f"s_lshr_b32 s{sG}, s{sXCD}, 1")
    A(f"s_and_b32 s{sTMP3}, s{sXCD}, 1")
    A(f"s_add_u32 s{sROT}, s{sR}, s{2 if opt.rotw else sXCD}")
    A(f"s_lshl_b32 s{sTMP}, s{sXCD}, 1")
    A(f"s_sub_u32 s{sTMP}, s{sR}, s{sTMP}")
    A(f"s_sub_u32 s{sTMP}, s{sTMP}, 4")
    A(f"s_bfe_u32 s{sTMP2}, s{sTMP}, 0x20002")
    A(f"s_and_b32 s{sTMP}, s{sTMP}, 3")
    A(f"s_lshl2_add_u32 s{sU}, s{sTMP}, s{sTMP2}")
    A(f"s_cmp_ge_u32 s{sR}, 16")
    A(f"s_cselect_b32 s{sU}, s{sR}, s{sU}")
    A(f"s_lshr_b32 s{sTMP}, s{sU}, 3")
    A(f"s_lshl2_add_u32 s{sKS}, s{sTMP3}, s{sTMP}")
    A("s_cmp_lg_u32 s3, 0")
    A("s_cbranch_scc1 L_notloader")
    sSOFF, sSTEP, sNB, sBLK = 4, 5, 6, 7
    sIDX, sWRAP, sBASE = 12, 13, 14
    sNOW, sDL = 56, 58
    TIMED = "/" in (opt.pb + opt.pm + opt.pc)
    if TIMED: A(f"s_memrealtime s[{sNOW}:{sNOW+1}]")
    A(f"s_setprio {opt.lprio}")
    A(f"v_mov_b32 v9, {FL}")
    A("v_mov_b32 v10, 0xff7fffff")
    A("v_cmp_gt_u32 vcc, 16, v0")
    A("v_lshl_add_u32 v11, v0, 2, v9")
    A("v_lshrrev_b32 v2, 4, v0")
    A("v_cndmask_b32 v10, v10, 0, vcc")
    A("ds_write_b32 v11, v10")
    A("v_bfe_u32 v3, v0, 1, 3")
    A("v_xor_b32 v3, v3, v2")
    A("v_lshlrev_b32 v3, 5, v3")
    A("v_and_b32 v4, 1, v0")
    A("v_lshl_or_b32 v3, v4, 4, v3")
    A("v_xor_b32 v4, 0x80, v3")
    A("v_lshl_add_u32 v5, v2, 13, v3")
    A("v_lshl_add_u32 v6, v2, 13, v4")
    A(f"s_mov_b32 s{SRD+3}, 0x20000")
    A(f"s_and_b32 s{sTMP}, s{sU}, 7")
    A(f"s_lshl3_add_u32 s{sTMP}, s{sG}, s{sTMP}")
    A(f"s_lshl_b32 s{sTMP}, s{sTMP}, 8")
    A(f"s_lshl_b32 s{sSOFF}, s{sKS}, 20")
    A(f"s_add_u32 s{sSOFF}, s{sSOFF}, s{sTMP}")
    A(f"s_mov_b32 s{SRD+2}, {1024*4096*2}")
    A(f"s_mov_b32 s{sNB}, {NB0}")
    A(f"s_mov_b32 s{sSTEP}, {4*8192}")
    A(f"s_mov_b32 m0, {RQ}")
    A(f"s_mov_b32 s{sBLK}, {NB0}")
    if opt.fine == 2: stamp(5)
    A("s_waitcnt lgkmcnt(0)")
    if opt.fine == 2: stamp(6)
    A(f"s_mov_b64 s[{SRD}:{SRD+1}], s[{sWQ}:{sWQ+1}]")
    if TIMED: A(f"s_mov_b32 s{sDL}, s{sNOW}")
    if opt.barpos == 0: A("s_barrier")
    if opt.fine == 2: stamp(7)
    def blk_body(win, rot):
        GR = opt.gran
        if win is not None:
            assert win % GR == 0
            pj = win % 8
            back = (win - pj) // 8
        for j in range(8):
            half, i = j >> 2, j & 3
            if win is not None and j % GR == 0:
                if j == pj:
                    A(f"s_sub_u32 s{sTMP}, s{sBLK}, {back}")
                    A(f"s_max_i32 s{sPROG}, s{sTMP}, s{sPROG}")
                    A(f"v_mov_b32 v10, s{sPROG}")
                A(f"s_waitcnt vmcnt({win})")
                if j == pj: A(f"ds_write_b32 v9, v10 offset:{F_PROG}")
            v = 5 if ((i >> 1) & 1) == 0 else 6
            A(f"buffer_load_dwordx4 v{v}, s[{SRD}:{SRD+3}], s{sSOFF} offen {NT} lds")
            A(f"s_add_u32 m0, m0, 1024")
            if rot == "kv":
                st = {"lin": 1024, "tr1": 8192 + (1024 if (half, i) == (1, 3) else 0),
                      "tr2": (1024 if i % 2 == 0 else 15360) + (2048 if (half, i) == (1, 3) else 0)}[opt.kvmode]
                A(f"s_add_u32 s{sIDX}, s{sIDX}, {st}")
                A(f"s_pack_lh_b32_b16 s{sSOFF}, s{sIDX}, s{sSOFF}")
            else:
                A(f"s_add_u32 s{sSOFF}, s{sSOFF}, s{sSTEP}")
        if rot == 7:
            A(f"s_add_u32 s{sIDX}, s{sIDX}, 1")
            A(f"s_cmp_eq_u32 s{sIDX}, 7")
            A(f"s_cselect_b32 s{sTMP}, {7*65536}, 0")
            A(f"s_sub_u32 s{sSOFF}, s{sSOFF}, s{sTMP}")
        if rot is True:
            A(f"s_add_u32 s{sIDX}, s{sIDX}, 1")
            A(f"s_and_b32 s{sIDX}, s{sIDX}, 7")
            A(f"s_cselect_b32 s{sTMP}, 0, s{sWRAP}")
            A(f"s_sub_u32 s{sSOFF}, s{sSOFF}, s{sTMP}")
    if opt.barpos == 1:
        blk_body(None, False)
        A("s_barrier")
        A(f"s_mov_b32 s{sNB}, {NB0-1}")
    A("L_top_loop:")
    blk_body(None, False)
    A(f"s_sub_u32 s{sNB}, s{sNB}, 1")
    A(f"s_cmp_lg_u32 s{sNB}, 0")
    A("s_cbranch_scc1 L_top_loop")
    if opt.barpos == 2: A("s_barrier")
    A("s_branch L_loader2")
    A("L_notloader:")
    if opt.cpf:
        A(f"s_cmp_gt_u32 s3, {opt.cpf}")
        A("s_cbranch_scc1 L_cpf_done")
        A("s_getpc_b64 s[4:5]")
        A("L_pc:")
        A(f"s_lshl_b32 s{sTMP}, s3, 13")
        A(f"s_sub_u32 s{sTMP}, s{sTMP}, 8192")
        A(f"v_lshl_add_u32 v1, v0, 7, s{sTMP}")
        A(f"v_cmp_gt_u32 vcc, L_end-L_pc, v1")
        A("s_and_saveexec_b64 s[6:7], vcc")
        A("s_cbranch_execz L_cpf_done2")
        A(f"global_load_dword v127, v1, s[4:5]")
        A("L_cpf_done2:")
        A("s_mov_b64 exec, -1")
        A("L_cpf_done:")
    A("s_barrier")
    A("s_branch L_cons")

    def decode2(keep=False):
        d = g.lab("L_d2"); m = g.lab("L_d2m")
        if STAMP:
            for i in range(1, NST):
                if not (opt.fine == 2 and keep and i in (5, 6, 7)): A(f"s_mov_b32 s{sST+2*i}, 0")
        A(f"s_mul_i32 s{sBETA}, s{sXCD}, 14")
        A(f"s_add_u32 s{sBETA}, s{sBETA}, s{sR}")
        A(f"s_mov_b32 s{sPROG}, 0")
        A(f"s_cmp_ge_u32 s{sR}, 16")
        A(f"s_cbranch_scc1 {m}")
        A(f"s_cmp_ge_u32 s{sR}, 14")
        A(f"s_cselect_b32 s{sROLE}, 2, 1")
        A(f"s_lshr_b32 s{sTMP}, s{sU}, 3")
        A(f"s_lshl1_add_u32 s{sRBK}, s{sXCD}, s{sTMP}")
        A(f"s_add_u32 s{sTMP}, s{sU}, 3")
        A(f"s_and_b32 s{sTMP}, s{sTMP}, 3")
        A(f"s_and_b32 s{sCB}, s{sU}, 4")
        A(f"s_or_b32 s{sCB}, s{sCB}, s{sTMP}")
        A(f"s_lshl_b32 s{sKB0}, s{sRBK}, 3")
        A(f"s_add_u32 s{sLR}, s{sR}, s{sXCD}")
        A(f"s_and_b32 s{sLR}, s{sLR}, {7 if opt.lrot & 1 else 0}")
        A(f"s_branch {d}")
        A(f"{m}:")
        A(f"s_mov_b32 s{sROLE}, 0")
        A(f"s_and_b32 s{sTMP}, s{sXCD}, 1")
        A(f"s_bfe_u32 s{sBB}, s{sR}, 0x20002")
        A(f"s_lshl2_add_u32 s{sBB}, s{sTMP}, s{sBB}")
        A(f"s_and_b32 s{sSPL}, s{sR}, 3")
        A(f"s_bfe_u32 s{sTMP}, s{sR}, 0x10003")
        A(f"s_lshl1_add_u32 s{sRBK}, s{sXCD}, s{sTMP}")
        A(f"s_mul_i32 s{sKB0}, s{sRBK}, 7")
        A(f"s_and_b32 s{sLR}, s{sR}, {7 if opt.lrot & 2 else 0}")
        A(f"s_cmp_eq_u32 s{sLR}, 7")
        A(f"s_cselect_b32 s{sLR}, 3, s{sLR}")
        A(f"s_add_u32 s{sCB}, s{sR}, 1")
        A(f"s_and_b32 s{sCB}, s{sCB}, 7")
        A(f"{d}:")

    A("L_loader2:")
    decode2(True)
    stamp(1)
    def lds_wait_ge(off, val, vtmp="v11", vaddr="v9", sleep=0):
        l = g.lab("L_w")
        A(f"{l}:")
        if sleep: A(f"s_sleep {sleep}")
        A(f"ds_read_b32 {vtmp}, {vaddr} offset:{off}")
        A("s_waitcnt lgkmcnt(0)")
        A(f"v_readfirstlane_b32 s{sTMP}, {vtmp}")
        A(f"s_cmp_ge_u32 s{sTMP}, {val}")
        A(f"s_cbranch_scc0 {l}")
    def wmax(w): return max(w) if isinstance(w, tuple) else w
    def blk_loop(nblk, win, rot):
        l = g.lab("L_ld")
        if nblk > 1:
            A(f"s_mov_b32 s{sNB}, {nblk}")
            A(f"{l}:")
        if isinstance(win, tuple):
            hi = g.lab("L_hi"); j = g.lab("L_jn")
            A(f"s_memrealtime s[{sNOW}:{sNOW+1}]")
            A(f"s_mul_i32 s{sTMP2}, s{sBLK}, {opt.period}")
            A(f"s_add_u32 s{sTMP2}, s{sTMP2}, {opt.toff}")
            A("s_waitcnt lgkmcnt(0)")
            A(f"s_sub_u32 s{sTMP}, s{sNOW}, s{sDL}")
            A(f"s_cmp_gt_u32 s{sTMP}, s{sTMP2}")
            A(f"s_cbranch_scc1 {hi}")
            for k in range(3, win[0]//8, -1):
                A(f"s_sub_u32 s{sTMP}, s{sBLK}, {k}")
                A(f"s_max_i32 s{sPROG}, s{sTMP}, s{sPROG}")
                A(f"v_mov_b32 v10, s{sPROG}")
                A(f"s_waitcnt vmcnt({8*k})")
                A(f"ds_write_b32 v9, v10 offset:{F_PROG}")
            blk_body(win[0], False)
            A(f"s_branch {j}")
            A(f"{hi}:")
            blk_body(win[1], False)
            A(f"{j}:")
            assert not rot
        else:
            blk_body(win, rot)
        A(f"s_add_u32 s{sBLK}, s{sBLK}, 1")
        if nblk > 1:
            A(f"s_sub_u32 s{sNB}, s{sNB}, 1")
            A(f"s_cmp_lg_u32 s{sNB}, 0")
            A(f"s_cbranch_scc1 {l}")
    def drain(maxwin, kmin=0):
        for k in range((maxwin + 4 + 7)//8 - 1, kmin - 1, -1):
            A(f"s_sub_u32 s{sTMP}, s{sBLK}, {k}")
            A(f"s_max_i32 s{sPROG}, s{sTMP}, s{sPROG}")
            A(f"v_mov_b32 v10, s{sPROG}")
            A(f"s_waitcnt vmcnt({8*k})")
            A(f"ds_write_b32 v9, v10 offset:{F_PROG}")
    def set_stride(stride):
        A(f"s_mov_b32 s{sSTEP}, {4*stride}")
        if stride & (stride-1) == 0:
            sh = stride.bit_length()-1
            A(f"v_lshl_add_u32 v5, v2, {sh}, v3")
            A(f"v_lshl_add_u32 v6, v2, {sh}, v4")
        else:
            A(f"v_mul_u32_u24 v8, {stride}, v2")
            A("v_add_u32 v5, v8, v3")
            A("v_add_u32 v6, v8, v4")
        A(f"s_mov_b32 s{sWRAP}, {256*stride}")
    XSRD = 68
    def xloads(n, ldsbase):
        for j in range(4):
            A(f"s_add_u32 s{sTMP}, s{sROT}, {2*j}")
            A(f"s_and_b32 s{sTMP}, s{sTMP}, 7")
            A(f"s_lshl_b32 s{sTMP}, s{sTMP}, 6")
            A(f"s_add_u32 s{sTMP}, s{sTMP}, s{sTMP3}")
            for q in range(n//4):
                A(f"s_mov_b32 m0, {ldsbase + 4096*q + 1024*j - 512*q}")
                A("s_nop 0")
                A(f"buffer_load_dwordx4 v7, s[{XSRD}:{XSRD+3}], s{sTMP} offen offset:{512*q} lds")
    def run_plan(pl, segs, start, hook=None):
        blk = 0; lastwin = 0
        segmap = {x[0]: x for x in segs}
        rot = False
        items = []
        for it in pl:
            if it == "d": items.append(it); continue
            n, w = it
            while n:
                c = min(n, 4 - blk if blk < 4 else 8 - ((blk - 4) % 8))
                if blk < start: c = min(c, start - blk)
                if hook and blk < hook[0]: c = min(c, hook[0] - blk)
                if blk >= start: items.append((blk, c, w))
                blk += c; n -= c
            lastw = w
        lastwin = pl[0][1]
        for it in items:
            if it == "d":
                drain(max(wmax(lastwin), 8*start)); continue
            b0, c, w = it
            if b0 >= 4 and (b0 - 4) % 8 == 0:
                seg = (b0 - 4) // 8 + 1
                stamp(1 + seg)
                if seg >= 2: lds_wait_ge(F_FREE0 + 4*(seg-2), 8)
                if b0 in segmap:
                    segmap[b0][1](); rot = segmap[b0][2]
                elif rot:
                    A(f"s_add_u32 s{sSOFF}, s{sSOFF}, s{sWRAP}")
                A(f"s_mov_b32 m0, {RA if seg % 2 == 1 else RB}")
            if hook and b0 == hook[0]: hook[1]()
            blk_loop(c, w, rot)
            lastwin = w
        stamp(8)
        if opt.fgate:
            A(f"s_mul_i32 s{sTMP}, s{sCB}, {16*CS}")
            A(f"s_add_u32 s{sTMP}, s{sTMP}, {WS_FC}")
            A(f"s_add_u32 s4, s{sWS}, s{sTMP}")
            A(f"s_addc_u32 s5, s{sWS+1}, 0")
            A(f"v_mul_u32_u24 v5, {CS}, v0")
            A("v_mov_b32 v6, 1")
        drain(max(wmax(x[1]) for x in pl if x != "d"), 1 if opt.fearly else 0)
        if not opt.fearly: stamp(9)
        A("s_branch L_ld_end")
    def late_seg(ptr, nbytes):
        def f():
            set_stride(2048)
            A(f"s_mov_b64 s[{SRD}:{SRD+1}], s[{ptr}:{ptr+1}]\ns_mov_b32 s{SRD+2}, {nbytes}")
            A(f"s_mov_b32 s{sIDX}, s{sLR}")
            A(f"s_add_u32 s{sSOFF}, s{sKB0}, s{sLR}")
            A(f"s_lshl_b32 s{sSOFF}, s{sSOFF}, 16")
            A(f"s_lshl_b32 s{sTMP}, s{sCB}, 8")
            A(f"s_add_u32 s{sSOFF}, s{sSOFF}, s{sTMP}")
        return f
    A("v_and_b32 v7, 7, v0")
    A("v_lshlrev_b32 v7, 11, v7")
    A("v_lshrrev_b32 v8, 3, v0")
    A("v_lshl_add_u32 v7, v8, 4, v7")
    A(f"s_mov_b64 s[{XSRD}:{XSRD+1}], s[{sX}:{sX+1}]\ns_mov_b32 s{XSRD+2}, 16384\ns_mov_b32 s{XSRD+3}, 0x20000")
    A(f"s_lshl_b32 s{sTMP3}, s{sKS}, 8")
    A(f"s_mov_b32 m0, {XF}")
    A("s_nop 0")
    A(f"buffer_load_dwordx4 v7, s[{XSRD}:{XSRD+3}], s{sTMP3} offen lds")
    A(f"s_mov_b32 m0, {XF + 1024 - 128}")
    A("s_nop 0")
    A(f"buffer_load_dwordx4 v7, s[{XSRD}:{XSRD+3}], s{sTMP3} offen offset:128 lds")
    A(f"s_mov_b32 m0, {RQ + 8192*NB0}")
    A(f"s_cmp_ge_u32 s{sR}, 16")
    A("s_cbranch_scc1 L_ld_M")
    def b_seg1():
        A(f"s_and_b32 s{sROT}, s{sROT}, 6")
        A(f"s_mov_b32 s{sIDX}, s{sROT}")
        A(f"s_and_b32 s{sTMP2}, s{sBETA}, 1")
        set_stride(7168)
        A(f"s_mul_i32 s{sSOFF}, s{sTMP2}, {512*7168}")
        A(f"s_lshr_b32 s{sTMP}, s{sBETA}, 2")
        A(f"s_lshl_b32 s{sTMP}, s{sTMP}, 8")
        A(f"s_add_u32 s{sSOFF}, s{sSOFF}, s{sTMP}")
        A(f"s_mul_i32 s{sTMP}, s{sROT}, {32*7168}")
        A(f"s_add_u32 s{sSOFF}, s{sSOFF}, s{sTMP}")
        A(f"s_bitcmp0_b32 s{sBETA}, 1")
        A(f"s_cselect_b64 s[{SRD}:{SRD+1}], s[{sWG}:{sWG+1}], s[{sWU}:{sWU+1}]")
        A(f"s_mov_b32 s{SRD+2}, {1024*3584*2}")
    A(f"s_cmp_eq_u32 s{sROLE}, 2")
    A("s_cbranch_scc1 L_ld_C")
    assert sum(x[0] for x in pb if x != "d") == 28
    XGAT = opt.xgat
    def xg_hook():
        A(f"s_and_b32 s{sTMP3}, s{sBETA}, 1")
        A(f"s_lshl_b32 s{sTMP3}, s{sTMP3}, 10")
        xloads(8, XF + 2048)
        A(f"s_mov_b32 m0, {RA + 8192*(XGAT-4)}")
    run_plan(pb, [(4, b_seg1, True), (20, late_seg(sWO, 4096*1024*2), True)], NB0, hook=(XGAT, xg_hook))
    A("L_ld_C:")
    assert sum(x[0] for x in pc if x != "d") == 12 and pc[1] == "d" and pc[0][0] == 4
    def c_seg1():
        late_seg(sWO, 4096*1024*2)()
        A(f"s_mov_b32 s{sBLK}, 20")
    run_plan(pc, [(4, c_seg1, True)], NB0)
    A("L_ld_M:")
    def m_seg1():
        set_stride(256)
        A(f"s_mul_i32 s{sROT}, s{sROT}, {opt.kvrot*1024}")
        A(f"s_mov_b32 s{sIDX}, s{sROT}")
        A(f"s_lshl2_add_u32 s{sTMP}, s{sBB}, s{sG}")
        A(f"s_lshl4_add_u32 s{sTMP}, s{sTMP}, s{sSPL}")
        A(f"s_add_u32 s{sTMP}, s{sTMP}, 12")
        A(f"s_pack_ll_b32_b16 s{sSOFF}, s{sIDX}, s{sTMP}")
        A(f"s_mov_b64 s[{SRD}:{SRD+1}], s[{sK}:{sK+1}]\ns_mov_b32 s{SRD+2}, {8*4*4096*128*2}")
    def m_seg2():
        A(f"s_mov_b64 s[{SRD}:{SRD+1}], s[{sV}:{sV+1}]")
        A(f"s_mov_b32 s{sIDX}, s{sROT}")
        A(f"s_pack_lh_b32_b16 s{sSOFF}, s{sIDX}, s{sSOFF}")
    assert sum(x[0] for x in pm if x != "d") == 27
    run_plan(pm, [(4, m_seg1, "kv"), (12, m_seg2, "kv"), (20, late_seg(sWD, 3584*1024*2), 7)], NB0)
    A("L_ld_end:")
    if opt.nocomm: A("s_branch L_exit")
    def fbump():
        if opt.flag_delay: A(f"s_sleep {opt.flag_delay}")
        if opt.fsat:
            A("s_mov_b32 s6, 1")
            for r in range(opt.frep): A(f"s_atomic_add s6, s[4:5], {CS*r}")
        else:
            A(f"s_bfm_b64 exec, {opt.frep}, 0")
            A("global_atomic_add v5, v6, s[4:5] sc1")
            A("s_mov_b64 exec, -1")
    if opt.fearly:
        A(f"ds_read_b32 v11, v9 offset:{F_BA}")
        A(f"v_mov_b32 v10, s{sBLK}")
        A(f"s_waitcnt vmcnt({opt.fearly}) lgkmcnt(0)")
        A(f"v_readfirstlane_b32 s{sTMP}, v11")
        A(f"s_cmp_lt_u32 s{sTMP}, 8")
        A("s_cbranch_scc1 L_ld_late")
        A("s_mov_b32 s6, 1")
        for r in range(opt.frep): A(f"s_atomic_add s6, s[4:5], {CS*r}")
        A("s_waitcnt vmcnt(0)")
        A(f"ds_write_b32 v9, v10 offset:{F_PROG}")
        A("s_barrier")
        stamp(9)
        A("s_branch L_ld_fin")
        A("L_ld_late:")
        A("s_waitcnt vmcnt(0)")
        A(f"ds_write_b32 v9, v10 offset:{F_PROG}")
        stamp(9)
    if opt.fgate == 2 and not (opt.dbg & 1):
        lds_wait_ge(F_BA, opt.gok)
        fbump()
    A("s_barrier")
    if opt.fgate == 1 and not (opt.dbg & 1): fbump()
    A("L_ld_fin:")
    if opt.fgate and opt.fbar:
        A(f"s_cmp_lt_u32 s{sR}, 16")
        A("s_cbranch_scc1 L_exit")
        A("s_barrier")
    A("s_branch L_exit")

    A("L_cons:")
    vL16, vTR, vACT, vT, vPUB = 1, 2, 3, 4, 5
    vTMP, vTMP2, vTMP3 = 6, 7, 8
    vWA, vAA = 10, 11
    vW, vB, vACC, vACC2 = 12, 16, 20, 24
    vGA = 28
    vLS = 44
    vK = 52
    vQ = 84
    vRG, vRW, vRR, vOUT, vONE, vAFW, vFLG = 116, 117, 118, 119, 120, 121, 122
    vTP, vTC, vL8 = 123, 124, 125
    vSTW, vSTR = 126, 15
    vTA, vAX, vEN = 48, 49, 50
    NV = 128
    A("s_waitcnt lgkmcnt(0)")
    A(f"s_load_dword s{sT}, s[{sWS}:{sWS+1}], 0")
    decode2()
    stamp(1)
    A(f"s_sub_u32 s{sC}, s3, 1")
    sSC, sM3, sMN, sEM, sRNG = 58, 60, 61, 56, 57
    A(f"s_mov_b32 s{sM3}, 0x00030003")
    A(f"s_mov_b32 s{sMN}, 0xfffcfffc")
    A(f"s_mov_b32 s{sRNG}, {27 << 23:#x}")
    A(f"v_mov_b32 v{vAX}, 0")
    A(f"v_lshlrev_b32 v{vL8}, 3, v0")
    A(f"v_mov_b32 v9, {FL}")
    A(f"v_mov_b32 v{vONE}, 1")
    A(f"v_lshlrev_b32 v{vL16}, 4, v0")
    A(f"v_mul_u32_u24 v{vFLG}, {CS}, v0")
    A(f"v_lshrrev_b32 v{vTMP2}, 4, v0")
    A(f"v_bfe_u32 v{vTMP3}, v0, 2, 2")
    A(f"v_lshl_add_u32 v{vTR}, v{vTMP2}, 3, v{vTMP3}")
    A(f"v_lshlrev_b32 v{vTR}, 8, v{vTR}")
    A(f"v_and_b32 v{vACT}, 1, v{vTMP2}")
    A(f"v_lshl_or_b32 v{vTMP3}, v{vACT}, 2, v{vTMP3}")
    A(f"v_xor_b32 v{vTMP3}, s{sC}, v{vTMP3}")
    A(f"v_lshl_or_b32 v{vTR}, v{vTMP3}, 5, v{vTR}")
    A(f"v_and_b32 v{vTMP3}, 3, v0")
    A(f"v_lshl_or_b32 v{vTR}, v{vTMP3}, 3, v{vTR}")
    A(f"v_and_b32 v{vTMP3}, 7, v0")
    A(f"v_lshl_add_u32 v{vACT}, v{vTMP2}, 3, v{vTMP3}")
    A(f"v_lshlrev_b32 v{vACT}, 4, v{vACT}")
    A(f"v_lshrrev_b32 v{vAFW}, 5, v0")
    A(f"v_lshlrev_b32 v{vAFW}, 8, v{vAFW}")
    A(f"v_and_b32 v{vTMP2}, 2, v0")
    A(f"v_lshl_or_b32 v{vAFW}, v{vTMP2}, 6, v{vAFW}")
    A(f"v_and_b32 v{vTMP2}, 28, v0")
    A(f"v_lshl_or_b32 v{vAFW}, v{vTMP2}, 2, v{vAFW}")
    A(f"v_and_b32 v{vTMP2}, 1, v0")
    A(f"v_lshl_or_b32 v{vAFW}, v{vTMP2}, 3, v{vAFW}")
    A(f"s_lshl_b32 s{sTMP}, s{sC}, 9")
    A(f"s_add_u32 s{sTMP}, s{sTMP}, {AF}")
    A(f"v_add_u32 v{vAFW}, s{sTMP}, v{vAFW}")
    def afswz(v):
        A(f"v_lshrrev_b32 v{vTMP2}, 3, v{v}")
        A(f"v_and_b32 v{vTMP2}, 0x70, v{vTMP2}")
        A(f"v_xor_b32 v{v}, v{v}, v{vTMP2}")
    afswz(vAFW)
    A("s_waitcnt lgkmcnt(0)")
    A(f"s_add_u32 s{sT}, s{sT}, 0x11111111")
    A(f"s_mov_b32 s{sT+1}, s{sT}")
    A(f"v_mov_b32 v{vT}, s{sT}")
    def tagbits(dst, vsh):
        A(f"v_lshrrev_b32 v{dst}, v{vsh}, v{vT}")
        A(f"v_and_b32 v{dst}, 15, v{dst}")
        A(f"v_lshl_or_b32 v{dst}, v{dst}, 14, v{dst}")
        A(f"v_and_b32 v{dst}, s{sM3}, v{dst}")
    A(f"v_and_b32 v{vTMP}, 7, v0")
    A(f"v_lshlrev_b32 v{vTMP}, 2, v{vTMP}")
    tagbits(vTC, vTMP)
    A(f"v_lshrrev_b32 v{vTMP}, 2, v0")
    A(f"v_and_b32 v{vTMP}, 12, v{vTMP}")
    A(f"v_and_b32 v{vTMP2}, 1, v0")
    A(f"v_lshl_or_b32 v{vTMP}, v{vTMP2}, 4, v{vTMP}")
    tagbits(vTP, vTMP)

    def refresh_prog():
        A(f"ds_read_b32 v{vTMP}, v9 offset:{F_PROG}")
        A("s_waitcnt lgkmcnt(0)")
        A(f"v_readfirstlane_b32 s{sPROG}, v{vTMP}")
    def wait_prog(val_is_sgpr, val, sleep=0):
        l = g.lab("L_wp"); d = g.lab("L_wpd")
        v = f"s{val}" if val_is_sgpr else str(val)
        A(f"s_cmp_ge_u32 s{sPROG}, {v}")
        A(f"s_cbranch_scc1 {d}")
        A(f"{l}:")
        if sleep: A(f"s_sleep {sleep}")
        refresh_prog()
        A(f"s_cmp_ge_u32 s{sPROG}, {v}")
        A(f"s_cbranch_scc0 {l}")
        A(f"{d}:")
    def signal(off):
        A("s_mov_b64 exec, 1")
        A(f"ds_add_u32 v9, v{vONE} offset:{off}")
        A("s_mov_b64 exec, -1")
    def cwait(off, val, sleep=0):
        lds_wait_ge(off, val, vtmp=f"v{vTMP}", sleep=sleep)
    def cwait_rd(off, val, nrd, reads):
        l = g.lab("L_cw")
        A(f"{l}:")
        A(f"ds_read_b32 v{vTMP}, v9 offset:{off}")
        reads()
        A(f"s_waitcnt lgkmcnt({nrd})")
        A(f"v_readfirstlane_b32 s{sTMP}, v{vTMP}")
        A(f"s_cmp_ge_u32 s{sTMP}, {val}")
        A(f"s_cbranch_scc0 {l}")
    def fbits(x): return struct.unpack("<I", struct.pack("<f", x))[0]
    ADJ = 1.0
    LQ, LO_, LG, LF = [x + opt.sbias for x in (8, 12, 10, 20)]
    def setscale(lg):
        A(f"s_mov_b32 s{sSC}, {fbits(2.0**lg):#x}")
    def encode(sc=None, tp=vTP, ta=vTA):
        src = vACC
        d = g.lab("L_en")
        scs = f"s[{sSC}:{sSC+1}]" if sc is None else f"v[{sc}:{sc+1}]"
        A(f"v_pk_mul_f32 v[{src}:{src+1}], v[{src}:{src+1}], {scs} op_sel_hi:[1,0]")
        A(f"v_pk_mul_f32 v[{src+2}:{src+3}], v[{src+2}:{src+3}], {scs} op_sel_hi:[1,0]")
        A(f"v_max3_f32 v{vTMP}, |v{src}|, |v{src+1}|, |v{src+2}|")
        A(f"v_max_f32 v{vTMP}, |v{src+3}|, v{vTMP}")
        A(f"v_subrev_u32 v{vTMP2}, {115 << 23:#x}, v{vTMP}")
        A(f"v_cmp_le_u32 vcc, s{sRNG}, v{vTMP2}")
        r = g.lab("L_er")
        A(f"{r}:")
        A(f"v_cvt_pkrtz_f16_f32 v{vEN}, v{src}, v{src+1}")
        A(f"v_cvt_pkrtz_f16_f32 v{vEN+1}, v{src+2}, v{src+3}")
        A(f"v_add_u32 v{vEN}, 0x00020002, v{vEN}")
        A(f"v_add_u32 v{vEN+1}, 0x00020002, v{vEN+1}")
        A(f"v_and_or_b32 v{vEN}, v{vEN}, s{sMN}, v{vAX}")
        A(f"v_and_or_b32 v{vEN+1}, v{vEN+1}, s{sMN}, v{tp}")
        A(f"s_cbranch_vccz {d}")
        A(f"s_call_b64 s[6:7], L_encs")
        A(f"s_branch {r}")
        A(f"{d}:")
    def publish(src, base=sGA, sc=None):
        encode(sc)
        A("s_mov_b32 exec_lo, 0x00ff00ff\ns_mov_b32 exec_hi, 0x00ff00ff")
        if not (opt.dbg & 33): A(f"global_store_dwordx2 v{vPUB}, v[{vEN}:{vEN+1}], s[{base}:{base+1}] sc1")
    NREP = opt.nrep; HREP = max(1, NREP // 4)
    sNH = 9
    def bump(kind):
        if opt.dbg & 33: return
        if opt.satom:
            A(f"s_mov_b32 s8, 1")
            if kind == "h":
                e = g.lab("L_bh")
                for r in range(HREP): A(f"s_atomic_add s8, s[{sGB}:{sGB+1}], {CS*r}")
                A(f"s_cmp_eq_u32 s{sNH}, {HREP}")
                A(f"s_cbranch_scc1 {e}")
                for r in range(HREP, 2*HREP): A(f"s_atomic_add s8, s[{sGB}:{sGB+1}], {CS*r}")
                A(f"{e}:")
            else:
                for r in range(NREP): A(f"s_atomic_add s8, s[{sGB}:{sGB+1}], {CS*r}")
        else:
            if kind == "h": A(f"s_bfm_b64 exec, s{sNH}, 0")
            else: A(f"s_bfm_b64 exec, {NREP}, 0")
            A(f"global_atomic_add v{vFLG}, v{vONE}, s[{sGB}:{sGB+1}] sc1")
    def flag(cnt, nrep, last=7):
        d = g.lab("L_fl")
        A("s_mov_b64 exec, 1")
        A(f"ds_add_rtn_u32 v{vTMP}, v9, v{vONE} offset:{cnt}")
        A("s_waitcnt lgkmcnt(0)")
        A(f"v_readfirstlane_b32 s{sTMP}, v{vTMP}")
        A(f"s_cmp_lg_u32 s{sTMP}, {last}")
        A(f"s_cbranch_scc1 {d}")
        bump(nrep)
        A(f"{d}:")
        A("s_mov_b64 exec, -1")
    def staged(cnt, last, hi_off, kind):
        d = g.lab("L_sg")
        A(f"ds_write_b64 v{vSTW}, v[{vEN}:{vEN+1}]")
        A("s_mov_b64 exec, 1")
        A(f"ds_add_rtn_u32 v{vTMP}, v9, v{vONE} offset:{cnt}")
        A("s_mov_b64 exec, -1")
        A(f"ds_read_b128 v[{vGA}:{vGA+3}], v{vSTR}")
        A(f"ds_read_b128 v[{vGA+4}:{vGA+7}], v{vSTR} offset:1024")
        A(f"v_add_u32 v{vTMP2}, {hi_off}, v{vPUB}")
        A("s_waitcnt lgkmcnt(2)")
        A(f"v_readfirstlane_b32 s{sTMP}, v{vTMP}")
        A(f"s_cmp_lg_u32 s{sTMP}, {last}")
        A(f"s_cbranch_scc1 {d}")
        A("s_waitcnt lgkmcnt(0)")
        if not (opt.dbg & 1):
            A(f"global_store_dwordx4 v{vPUB}, v[{vGA}:{vGA+3}], s[{sGA}:{sGA+1}] sc1")
            A(f"global_store_dwordx4 v{vTMP2}, v[{vGA+4}:{vGA+7}], s[{sGA}:{sGA+1}] sc1")
        if kind: bump(kind)
        A("s_mov_b64 exec, -1")
        A("s_nop 0")
        A(f"{d}:")
        A("s_waitcnt lgkmcnt(0)")
    def flag_now(nrep):
        d = g.lab("L_fn")
        A(f"s_cmp_lg_u32 s{sC}, {opt.flagwave}")
        A(f"s_cbranch_scc1 {d}")
        bump(nrep)
        A("s_mov_b64 exec, -1")
        A(f"{d}:")
    def ws_addr(dst, base_const, soff):
        A(f"s_add_u32 s{soff}, s{soff}, {base_const}")
        A(f"s_add_u32 s{dst}, s{sWS}, s{soff}")
        A(f"s_addc_u32 s{dst+1}, s{sWS+1}, 0")
    def pub_voff(shift):
        A(f"v_and_b32 v{vTMP2}, 15, v0")
        A(f"v_lshrrev_b32 v{vTMP3}, 4, v0")
        A(f"v_lshlrev_b32 v{vTMP3}, 3, v{vTMP3}")
        A(f"v_lshl_or_b32 v{vPUB}, v{vTMP2}, {shift}, v{vTMP3}")
    def sample(base, offs, sleep=0, cntstamp=None):
        l = g.lab("L_sm"); d = g.lab("L_smd"); e = g.lab("L_sme")
        if opt.dbg & 7: return
        A(f"s_mov_b32 s{sCNT}, 0")
        if sleep: A(f"s_branch {e}")
        A(f"{l}:")
        if sleep:
            A(f"s_sleep {sleep}")
            A(f"{e}:")
        for i, o in enumerate(offs):
            A(f"s_load_dword s{sSM+i}, s[{base}:{base+1}], {o} glc")
        A(f"s_add_u32 s{sCNT}, s{sCNT}, 1")
        A(f"s_cmp_gt_u32 s{sCNT}, {opt.maxpoll}")
        A("s_waitcnt lgkmcnt(0)")
        A(f"s_cbranch_scc1 {d}")
        for i in range(len(offs)):
            A(f"s_xor_b32 s{sSM+i}, s{sSM+i}, s{sT}")
            if i: A(f"s_or_b32 s{sSM}, s{sSM}, s{sSM+i}")
        A(f"s_and_b32 s{sSM}, s{sSM}, 0xff")
        A(f"s_cbranch_scc1 {l}")
        A(f"{d}:")
        if cntstamp is not None: stampval(cntstamp, sCNT)
    def pollcnt(base, target, sleep, cntstamp=None):
        l = g.lab("L_pf"); d = g.lab("L_pfd"); e = g.lab("L_pfe")
        if opt.dbg & 7: return
        A(f"s_mov_b32 s{sCNT}, 0")
        if sleep: A(f"s_branch {e}")
        A(f"{l}:")
        if sleep:
            A(f"s_sleep {sleep}")
            A(f"{e}:")
        A(f"s_load_dword s8, s[{base}:{base+1}], 0 glc")
        A(f"s_add_u32 s{sCNT}, s{sCNT}, 1")
        A(f"s_cmp_gt_u32 s{sCNT}, {opt.maxhint}")
        A("s_waitcnt lgkmcnt(0)")
        A(f"s_cbranch_scc1 {d}")
        A(f"s_cmp_eq_u32 s8, s{target}")
        A(f"s_cbranch_scc0 {l}")
        A(f"{d}:")
        if cntstamp is not None: stampval(cntstamp, sCNT)
    def gather(nld=4, mid=None, cntstamp=None, sleep=0, work=None, kind='M', defer=False):
        l = g.lab("L_ga"); d = g.lab("L_gad"); c = g.lab("L_gac"); rt = g.lab("L_gar")
        assert nld in (1, 4)
        def issue():
            if opt.dbg & 2: return
            if opt.gprio: A(f"s_setprio {opt.gprio}")
            for i in range(nld):
                A(f"global_load_dwordx2 v[{vGA+2*i}:{vGA+2*i+1}], v{vL8}, s[{sGA}:{sGA+1}] offset:{512*i} sc1")
        if mid is not None or sleep:
            issue()
            if mid is not None: mid()
            A(f"s_mov_b32 s{sEM}, s{sM3}")
            A(f"s_mov_b32 s{sCNT}, 0")
            A(f"s_branch {c}")
            pad(kind)
        else:
            A(f"s_mov_b32 s{sEM}, s{sM3}")
            A(f"s_mov_b32 s{sCNT}, 0")
        A(f"{l}:")
        if sleep: A(f"s_sleep {sleep}")
        issue()
        A(f"{c}:")
        A(f"s_add_u32 s{sCNT}, s{sCNT}, 1")
        vC, vC0 = vTMP2, vTMP
        for i in range(nld):
            A(f"s_waitcnt vmcnt({nld-1-i})")
            A(f"v_xor_b32 v{vGA+2*i+1}, v{vTC}, v{vGA+2*i+1}")
            if i == 2:
                A(f"v_or3_b32 v{vC0}, v{vGA}, v{vGA+2}, v{vGA+4}")
                A(f"v_or3_b32 v{vC}, v{vGA+1}, v{vGA+3}, v{vGA+5}")
            if i == nld-1:
                if nld == 4:
                    A(f"v_or_b32 v{vC0}, v{vC0}, v{vGA+6}")
                    A(f"v_bitop3_b32 v{vC}, v{vC}, v{vGA+7}, s{sM3} bitop3:0xa8")
                else:
                    A(f"v_and_b32 v{vC}, s{sM3}, v{vGA+1}")
                A(f"v_and_or_b32 v{vC0}, v{vC0 if nld == 4 else vGA}, s{sEM}, v{vC}")
                A(f"v_cmp_ne_u32 vcc, 0, v{vC0}")
            if work is not None and (i < nld-1 or opt.specw): work(i)
        A(f"s_cbranch_vccz {d}")
        A(f"v_cmp_ne_u32 vcc, 0, v{vC}")
        A(f"s_cbranch_vccnz {rt}")
        A(f"s_mov_b32 s{sEM}, 0")
        if defer: A(f"s_branch {d}")
        else:
            A("s_call_b64 s[6:7], L_fixr")
            A(f"s_branch {c}")
        A(f"{rt}:")
        A(f"s_cmp_le_u32 s{sCNT}, {0 if (opt.dbg & 6) else opt.maxpoll}")
        A(f"s_cbranch_scc1 {l}")
        A(f"{d}:")
        if cntstamp is not None: stampval(cntstamp, sCNT)
        if work is not None and not opt.specw: work(nld-1)
    vS0, vS1, vSCA = vGA + 12, vGA + 8, vLS
    def acc(i, dst, first):
        for r in range(4):
            c2 = "0" if first else f"v{dst+r}"
            A(f"v_fma_mix_f32 v{dst+r}, v{vGA+2*i+(r>>1)}, v{vSCA+i}, {c2} op_sel:[{r&1},0,0] op_sel_hi:[1,0,0]")
    def setsca(lg):
        for i in range(4): A(f"v_mov_b32 v{vSCA+i}, {fbits(2.0**-lg):#x}")
    def wreads(k0, k1):
        for kb in range(k0, k1):
            o = 8192*kb
            A(f"ds_read_b64_tr_b16 v[{vK+4*kb}:{vK+4*kb+1}], v{vWA} offset:{o}")
            A(f"ds_read_b64_tr_b16 v[{vK+4*kb+2}:{vK+4*kb+3}], v{vWA} offset:{o+1024}")
    def mf(kb, first):
        c = "0" if first else f"v[{vACC}:{vACC+3}]"
        A(f"v_mfma_f32_16x16x32_bf16 v[{vACC}:{vACC+3}], v[{vK+4*kb}:{vK+4*kb+3}], v[{vQ+4*kb}:{vQ+4*kb+3}], {c}")
    vAB = vW
    def actreads(n, swz=False):
        for kb in range(n):
            A(f"ds_read_b128 v[{vQ+4*kb}:{vQ+4*kb+3}], v{vAB if (swz and kb & 1) else vAA} offset:{512*kb}")
    sFA, sRA, sPE = 12, 10, 14
    def late_setup(wbase, padd, pend):
        A(f"v_add_u32 v{vWA}, {wbase}, v{vTR}")
        A(f"v_add_u32 v{vAA}, {AF}, v{vACT}")
        afswz(vAA)
        A(f"v_xor_b32 v{vAB}, 64, v{vAA}")
        A(f"v_and_b32 v{vTMP2}, 4, v0")
        A(f"v_lshlrev_b32 v{vPUB}, 10, v{vTMP2}")
        A(f"v_and_b32 v{vTMP2}, 3, v0")
        A(f"v_lshl_or_b32 v{vPUB}, v{vTMP2}, 5, v{vPUB}")
        A(f"v_lshrrev_b32 v{vTMP2}, 4, v0")
        A(f"v_lshl_or_b32 v{vPUB}, v{vTMP2}, 3, v{vPUB}")
        A(f"s_lshl3_add_u32 s{sTMP}, s{sCB}, s{sC}")
        A(f"s_lshl_b32 s{sTMP}, s{sTMP}, 6")
        A(f"s_add_u32 s{sTMP}, s{sTMP}, s{sRBK}")
        A(f"s_lshl_b32 s{sTMP}, s{sTMP}, 7")
        ws_addr(sFA, WS_FP + 128*padd, sTMP)
        A(f"s_mov_b32 s{sPE}, {pend}")
        setscale(LF)
        A(f"v_mov_b32 v{vAX}, 0")
        A(f"s_mov_b32 s{sWDN}, 21")
        A(f"s_add_u32 s{sTMP}, s{sKB0}, s{sC}")
        A(f"s_lshl_b32 s{sTMP}, s{sTMP}, 11")
    sRET = 6
    def wcatch():
        d = g.lab("L_wc")
        A(f"s_cmp_lt_u32 s{sPROG}, s{sWDN}")
        A(f"s_cbranch_scc1 {d}")
        A(f"s_call_b64 s[{sRET}:{sRET+1}], L_wcatch")
        A(f"{d}:")
    def late_wait():
        l = g.lab("L_lw"); d = g.lab("L_lwd")
        A(f"{l}:")
        A(f"ds_read_b64 v[{vTMP}:{vTMP+1}], v9 offset:{F_PROG}")
        A("s_waitcnt lgkmcnt(0)")
        A(f"v_readfirstlane_b32 s{sTMP}, v{vTMP+1}")
        A(f"v_readfirstlane_b32 s{sPROG}, v{vTMP}")
        A(f"s_cmp_lg_u32 s{sTMP}, 0")
        A(f"s_cbranch_scc1 {d}")
        wcatch()
        A(f"s_branch {l}")
        A(f"{d}:")
    def late_mid():
        A(f"s_add_u32 s{sTMP2}, s{sPROG}, {opt.midahead}")
        A(f"s_min_u32 s{sTMP2}, s{sTMP2}, s{sPE}")
        wcatch()
        wait_prog(True, sTMP2)
        wcatch()
    vPG = 126
    def late_post_issue():
        if opt.lflow == 1: A(f"ds_read_b32 v{vPG}, v9 offset:{F_PROG}")
    def late_post():
        if opt.fgate == 2: signal(F_BA)
        if opt.lflow != 1: return
        A("s_waitcnt lgkmcnt(0)")
        A(f"v_readfirstlane_b32 s{sPROG}, v{vPG}")
        wcatch()

    if opt.cprio: A(f"s_setprio {opt.cprio}")
    signal(F_ERD)
    A(f"s_cmp_eq_u32 s3, 9")
    A("s_cbranch_scc1 L_poller")
    if opt.notif:
        A(f"s_cmp_eq_u32 s3, 10")
        A("s_cbranch_scc1 L_notif")
    if opt.nocomm:
        signal(F_FREE0); signal(F_FREE1)
        A("s_branch L_exit")
    def egloop(last, name, lead=None, nrep=0):
        A(f"L_eg_loop{name}:")
        A(f"ds_read_b128 v[{vB}:{vB+3}], v{vAA}")
        wait_prog(True, sCNT)
        A(f"ds_read_b64_tr_b16 v[{vW}:{vW+1}], v{vWA}")
        A(f"ds_read_b64_tr_b16 v[{vW+2}:{vW+3}], v{vWA} offset:1024")
        if lead is not None and lead >= 0:
            A(f"s_cmp_lg_u32 s{sCNT}, {last - lead}")
            A(f"s_cbranch_scc1 L_eg_nf{name}")
            flag_now(nrep)
            A(f"L_eg_nf{name}:")
        A(f"v_add_u32 v{vWA}, 8192, v{vWA}")
        A(f"v_add_u32 v{vAA}, 512, v{vAA}")
        A(f"s_add_u32 s{sCNT}, s{sCNT}, 1")
        A(f"s_cmp_le_u32 s{sCNT}, {last}")
        A("s_waitcnt lgkmcnt(0)")
        A(f"v_mfma_f32_16x16x32_bf16 v[{vACC}:{vACC+3}], v[{vW}:{vW+3}], v[{vB}:{vB+3}], v[{vACC}:{vACC+3}]")
        A(f"s_cbranch_scc1 L_eg_loop{name}")
    A(f"s_cmp_ge_u32 s{sC}, 4")
    A("s_cbranch_scc1 L_noq")
    A(f"v_and_b32 v{vTMP2}, 7, v0")
    A(f"v_lshlrev_b32 v{vSTW}, 8, v{vTMP2}")
    A(f"v_and_b32 v{vTMP2}, 8, v0")
    A(f"v_lshl_or_b32 v{vSTW}, v{vTMP2}, 2, v{vSTW}")
    A(f"v_lshrrev_b32 v{vTMP3}, 4, v0")
    A(f"v_lshl_or_b32 v{vSTW}, v{vTMP3}, 3, v{vSTW}")
    A(f"s_lshl_b32 s{sTMP}, s{sC}, 6")
    A(f"s_add_u32 s{sTMP}, s{sTMP}, {ST}")
    A(f"v_add_u32 v{vSTW}, s{sTMP}, v{vSTW}")
    A(f"v_add_u32 v{vSTR}, {ST}, v{vL16}")
    A(f"v_and_b32 v{vPUB}, 0xf0, v{vL16}")
    A(f"v_lshl_or_b32 v{vPUB}, v{vTMP3}, 16, v{vPUB}")
    A(f"v_lshlrev_b32 v{vTMP3}, 2, v{vTMP3}")
    A(f"v_lshl_or_b32 v{vTMP3}, v{vTMP2}, 1, v{vTMP3}")
    tagbits(vB, vTMP3)
    setscale(LQ)
    A(f"s_and_b32 s{sTMP3}, s{sU}, 7")
    A(f"s_lshl3_add_u32 s{sTMP}, s{sG}, s{sTMP3}")
    A(f"s_lshl3_add_u32 s{sTMP}, s{sTMP}, s{sKS}")
    A(f"s_lshl_b32 s{sTMP}, s{sTMP}, 8")
    ws_addr(sGA, WS_QP, sTMP)
    A(f"s_mul_i32 s{sTMP}, s{sG}, {32*CS}")
    ws_addr(sGB, WS_QC, sTMP)
    A(f"s_lshl_b32 s{sTMP}, s{sC}, 1")
    A(f"s_xor_b32 s{sTMP}, s{sTMP}, s{sC}")
    A(f"s_lshl_b32 s{sTMP}, s{sTMP}, 5")
    A(f"v_xor_b32 v{vWA}, s{sTMP}, v{vTR}")
    A(f"v_add_u32 v{vWA}, {RQ}, v{vWA}")
    A(f"v_xor_b32 v{vW}, 32, v{vWA}")
    A(f"v_add_u32 v{vAA}, {XF}, v{vACT}")
    A(f"v_cmp_eq_u32 s[4:5], 0, v{vTMP2}")
    cwait(F_ERD, NWAVES - 1, sleep=1)
    wait_prog(False, 4, sleep=1)
    if opt.qlead >= 0: flag_now("q")
    actreads(4)
    wreads(0, 4)
    for kb in range(4):
        A(f"s_waitcnt lgkmcnt({6 if kb == 0 else 6})")
        A(f"ds_read_b64_tr_b16 v[{vK+16+4*kb}:{vK+16+4*kb+1}], v{vW} offset:{8192*kb}")
        A(f"ds_read_b64_tr_b16 v[{vK+16+4*kb+2}:{vK+16+4*kb+3}], v{vW} offset:{8192*kb+1024}")
        mf(kb, kb == 0)
    A("s_mov_b64 exec, 3")
    A(f"ds_add_u32 v9, v{vONE} offset:{F_FREE0}")
    A("s_mov_b64 exec, -1")
    for kb in range(4):
        A(f"s_waitcnt lgkmcnt({7-2*kb})")
        c1 = "0" if kb == 0 else f"v[{vACC2}:{vACC2+3}]"
        A(f"v_mfma_f32_16x16x32_bf16 v[{vACC2}:{vACC2+3}], v[{vK+16+4*kb}:{vK+16+4*kb+3}], v[{vQ+4*kb}:{vQ+4*kb+3}], {c1}")
    A("s_nop 7")
    for r in range(4): A(f"v_cndmask_b32 v{vACC+r}, v{vACC2+r}, v{vACC+r}, s[4:5]")
    encode(None, vB, vB+1)
    staged(F_PUB0, 3, 4 << 16, "q" if opt.qhint else None)
    if opt.ackst:
        stamp(2); A("s_waitcnt vmcnt(0)"); stamp(5)
    A(f"v_mov_b32 v{vAX}, 0")
    A("L_noq:")
    if not opt.ackst: stamp(2)
    A(f"s_cmp_ge_u32 s{sR}, 16")
    A("s_cbranch_scc1 L_roleM")
    A(f"s_cmp_eq_u32 s{sROLE}, 2")
    A("s_cbranch_scc1 L_bc_late")
    pub_voff(5)
    setscale(LG)
    A(f"s_and_b32 s{sTMP}, s{sBETA}, -4")
    A(f"s_lshr_b32 s{sTMP2}, s{sC}, 1")
    A(f"s_add_u32 s{sTMP}, s{sTMP}, s{sTMP2}")
    A(f"s_and_b32 s{sTMP2}, s{sBETA}, 3")
    A(f"s_lshl2_add_u32 s{sTMP}, s{sTMP}, s{sTMP2}")
    A(f"s_and_b32 s{sTMP2}, s{sC}, 1")
    A(f"s_lshl1_add_u32 s{sTMP}, s{sTMP}, s{sTMP2}")
    A(f"s_lshl_b32 s{sTMP}, s{sTMP}, 8")
    ws_addr(sGA, WS_GP, sTMP)
    def hc_addr():
        A(f"s_and_b32 s{sTMP}, s{sBETA}, -4")
        A(f"s_or_b32 s{sTMP2}, s{sBETA}, 3")
        A(f"s_mul_i32 s{sTMP}, s{sTMP}, 147")
        A(f"s_mul_i32 s{sTMP2}, s{sTMP2}, 147")
        A(f"s_lshr_b32 s{sTMP}, s{sTMP}, 10")
        A(f"s_lshr_b32 s{sTMP2}, s{sTMP2}, 10")
        A(f"s_cmp_eq_u32 s{sTMP}, s{sTMP2}")
        A(f"s_cselect_b32 s{sNH}, {HREP}, {2*HREP}")
        A(f"s_mul_i32 s{sTMP}, s{sTMP}, {CS*HREP}")
        ws_addr(sGB, WS_HC, sTMP)
    if not opt.notif: hc_addr()
    for r in range(4): A(f"v_mov_b32 v{vACC+r}, 0")
    A(f"v_mov_b32 v{vWA}, v{vTR}")
    A(f"v_add_u32 v{vAA}, {XF + 2048}, v{vACT}")
    A(f"s_mov_b32 s{sCNT}, 5")
    wait_prog(False, opt.xgat + 1, sleep=1)
    egloop(12, "G1")
    signal(F_FREE1)
    stamp(3)
    egloop(20, "G2", opt.hlead, "h")
    A("s_nop 7")
    publish(vACC)
    if opt.hlead < 0 and not opt.notif: flag(F_PUB1, "h")
    else: A("s_mov_b64 exec, -1")
    stamp(6)
    if opt.ackst:
        A("s_waitcnt vmcnt(0)"); stamp(4)
    A("L_bc_late:")
    late_setup(RA, 0, 28)
    ws_addr(sGA, WS_OP, sTMP)
    A(f"s_lshl_b32 s{sTMP2}, s{sC}, 4")
    A(f"v_and_b32 v{vTMP3}, 32, v0")
    A(f"v_lshlrev_b32 v{vTMP3}, 2, v{vTMP3}")
    A(f"v_add3_u32 v{vTMP3}, v{vTMP3}, s{sTMP2}, v9")
    A(f"s_lshl_b32 s{sTMP3}, s{sLR}, 3")
    A(f"v_subrev_u32 v{vAFW}, s{sTMP3}, v0")
    A(f"v_and_b32 v{vAFW}, 62, v{vAFW}")
    A(f"v_lshlrev_b32 v{vAFW}, 6, v{vAFW}")
    A(f"v_and_b32 v{vTMP2}, 1, v0")
    A(f"v_lshl_or_b32 v{vAFW}, v{vTMP2}, 3, v{vAFW}")
    A(f"s_add_u32 s{sTMP2}, s{sTMP2}, {AF}")
    A(f"v_add_u32 v{vAFW}, s{sTMP2}, v{vAFW}")
    afswz(vAFW)
    late_wait()
    stamp(7)
    def owork(i):
        if i == 2: late_post_issue()
        if i == 3: late_post()
    gather(mid=late_mid, cntstamp=13, sleep=opt.gsleep, work=owork, kind='B', defer=True)
    if STAMP == 1: A("s_waitcnt lgkmcnt(0)")
    cwait_rd(F_WRDY, 1, 0, lambda: A(f"ds_read_b128 v[{vSCA}:{vSCA+3}], v{vTMP3} offset:{F_WT}"))
    stamp(8)
    A(f"s_cmp_lg_u32 s{sEM}, 0")
    A("s_cbranch_scc1 L_onofix")
    A("s_call_b64 s[6:7], L_fix")
    A("L_onofix:")
    for i in range(4): acc(i, vS0, i == 0)
    A("s_branch L_late")

    A("L_roleM:")
    vXr, vGWr = vK, vK + 8
    A(f"s_cmp_lt_u32 s{sC}, 4")
    A("s_cbranch_scc1 L_nogate")
    wait_prog(False, opt.ggate, sleep=1)
    A(f"s_and_b32 s{sTMP}, s{sR}, 1")
    A(f"s_lshl2_add_u32 s{sTMP}, s{sTMP}, s{sC}")
    A(f"s_sub_u32 s{sTMP3}, s{sTMP}, 4")
    A(f"s_lshl_b32 s{sTMP}, s{sTMP3}, 11")
    A(f"v_add_u32 v{vTMP3}, s{sTMP}, v{vL16}")
    for i in range(2):
        A(f"global_load_dwordx4 v[{vXr+4*i}:{vXr+4*i+3}], v{vTMP3}, s[{sX}:{sX+1}] offset:{1024*i}")
        A(f"global_load_dwordx4 v[{vGWr+4*i}:{vGWr+4*i+3}], v{vL16}, s[{sGW}:{sGW+1}] offset:{1024*i}")
    A(f"v_mov_b32 v{vACC2}, 0")
    A("s_waitcnt vmcnt(0)")
    for i in range(8):
        A(f"v_lshlrev_b32 v{vW}, 16, v{vXr+i}")
        A(f"v_and_b32 v{vW+1}, 0xffff0000, v{vXr+i}")
        A(f"v_lshlrev_b32 v{vW+2}, 16, v{vGWr+i}")
        A(f"v_and_b32 v{vW+3}, 0xffff0000, v{vGWr+i}")
        A(f"v_mul_f32 v{vW}, v{vW}, v{vW+2}")
        A(f"v_mul_f32 v{vW+1}, v{vW+1}, v{vW+3}")
        A(f"v_cvt_pk_bf16_f32 v{vW}, v{vW}, v{vW+1}")
        A(f"v_lshlrev_b32 v{vW+1}, 16, v{vW}")
        A(f"v_and_b32 v{vW}, 0xffff0000, v{vW}")
        A(f"v_add_f32 v{vACC2}, v{vACC2}, v{vW+1}")
        A(f"v_add_f32 v{vACC2}, v{vACC2}, v{vW}")
    for off in (0x041F, 0x081F, 0x101F, 0x201F, 0x401F):
        A(f"ds_swizzle_b32 v{vW}, v{vACC2} offset:{off:#x}")
        A("s_waitcnt lgkmcnt(0)")
        A(f"v_add_f32 v{vACC2}, v{vACC2}, v{vW}")
    A(f"v_mov_b32 v{vW}, v{vACC2}")
    A("s_nop 1")
    A(f"v_permlane32_swap_b32 v{vACC2}, v{vW}")
    A(f"v_add_f32 v{vACC2}, v{vACC2}, v{vW}")
    def rbf(v):
        A(f"v_cvt_pk_bf16_f32 v{v}, v{v}, v{v}")
        A(f"v_and_b32 v{v}, 0xffff0000, v{v}")
    rbf(vACC2)
    A(f"v_mul_f32 v{vACC2}, 0xbfb8aa3b, v{vACC2}")
    A(f"v_exp_f32 v{vACC2}, v{vACC2}")
    A("s_nop 0")
    A(f"v_add_f32 v{vACC2}, 1.0, v{vACC2}")
    A(f"v_rcp_f32 v{vACC2}, v{vACC2}")
    A("s_nop 0")
    rbf(vACC2)
    A(f"s_lshl_b32 s{sTMP}, s{sTMP3}, 2")
    A(f"v_add_u32 v{vTMP2}, s{sTMP}, v9")
    A("s_mov_b64 exec, 1")
    A(f"ds_write_b32 v{vTMP2}, v{vACC2} offset:{F_G}")
    A("s_mov_b64 exec, -1")
    A("L_nogate:")
    A(f"s_lshl2_add_u32 s{sTMP}, s{sBB}, s{sG}")
    A(f"s_lshl3_add_u32 s{sTMP}, s{sTMP}, s{sC}")
    A(f"s_lshl_b32 s{sTMP}, s{sTMP}, 11")
    ws_addr(sGA, WS_QP, sTMP)
    A(f"v_bfe_u32 v{vTMP2}, v0, 2, 2")
    A(f"v_and_b32 v{vTMP3}, 3, v0")
    A(f"v_lshl_add_u32 v{vTMP2}, v{vTMP2}, 3, v{vTMP3}")
    A(f"v_lshlrev_b32 v{vWA}, 8, v{vTMP2}")
    A(f"v_lshrrev_b32 v{vTMP2}, 5, v0")
    A(f"v_and_b32 v{vTMP3}, 7, v0")
    A(f"v_xor_b32 v{vTMP2}, v{vTMP2}, v{vTMP3}")
    A(f"v_lshl_or_b32 v{vWA}, v{vTMP2}, 5, v{vWA}")
    A(f"v_and_b32 v{vTMP2}, 16, v0")
    A(f"s_lshl_b32 s{sTMP}, s{sC}, 13")
    A(f"v_add3_u32 v{vWA}, v{vWA}, v{vTMP2}, s{sTMP}")
    vQA, vMX, vPA = vW, vW + 1, vW + 2
    A(f"v_and_b32 v{vQA}, 30, v0")
    A(f"v_lshlrev_b32 v{vQA}, 6, v{vQA}")
    A(f"v_and_b32 v{vTMP2}, 1, v0")
    A(f"v_lshl_or_b32 v{vQA}, v{vTMP2}, 3, v{vQA}")
    A(f"v_lshrrev_b32 v{vTMP2}, 5, v0")
    A(f"v_lshl_or_b32 v{vQA}, v{vTMP2}, 2, v{vQA}")
    A(f"s_lshl_b32 s{sTMP}, s{sC}, 4")
    A(f"s_add_u32 s{sTMP}, s{sTMP}, {QF}")
    A(f"v_add_u32 v{vQA}, s{sTMP}, v{vQA}")
    A(f"v_lshl_add_u32 v{vMX}, v{vTMP3}, 2, v9")
    A(f"s_lshl_b32 s{sTMP}, s{sC}, 9")
    A(f"s_add_u32 s{sTMP}, s{sTMP}, {PF}")
    A(f"v_add_u32 v{vPA}, s{sTMP}, v{vACT}")
    vOTP, vOTA = vRW, vRR
    A(f"v_lshrrev_b32 v{vTMP3}, 4, v0")
    A(f"v_and_b32 v{vTMP2}, 7, v0")
    A(f"v_lshlrev_b32 v{vSTW}, 8, v{vTMP2}")
    A(f"v_lshl_or_b32 v{vSTW}, v{vTMP3}, 3, v{vSTW}")
    A(f"s_lshl_b32 s{sTMP}, s{sC}, 5")
    A(f"s_add_u32 s{sTMP}, s{sTMP}, {ST}")
    A(f"v_add_u32 v{vSTW}, s{sTMP}, v{vSTW}")
    A(f"v_add_u32 v{vSTR}, {ST}, v{vL16}")
    A(f"v_and_b32 v{vPUB}, 0x1f0, v{vL16}")
    A(f"v_and_b32 v{vTMP2}, 32, v0")
    A(f"v_lshl_or_b32 v{vPUB}, v{vTMP2}, 9, v{vPUB}")
    A(f"s_and_b32 s{sTMP}, s{sC}, 1")
    A(f"s_lshl_b32 s{sTMP}, s{sTMP}, 4")
    A(f"v_lshl_or_b32 v{vTMP3}, v{vTMP3}, 2, s{sTMP}")
    tagbits(vOTP, vTMP3)
    if opt.qhint: cwait(F_QRDY, 1, sleep=1)
    else: wait_prog(False, opt.qgate, sleep=1)
    stamp(3)
    def kfrags():
        A(f"s_add_u32 s{sTMP2}, s{sC}, 5")
        wait_prog(True, sTMP2)
        for db in range(4):
            if db: A(f"v_xor_b32 v{vAA}, {64*db}, v{vWA}")
            a = vAA if db else vWA
            A(f"ds_read_b128 v[{vK+4*db}:{vK+4*db+3}], v{a}")
            A(f"ds_read_b128 v[{vK+16+4*db}:{vK+16+4*db+3}], v{a} offset:1024")
        signal(F_FREE1)
        A(f"v_add_u32 v{vAA}, {QF}, v{vACT}")
    setsca(LQ)
    def qwork(i): acc(i, vS0, i == 0)
    gather(nld=4, mid=kfrags, cntstamp=11, sleep=opt.qsleep, work=qwork)
    stamp(4)
    A("s_nop 1")
    A(f"v_permlane32_swap_b32 v{vS0}, v{vS0+2}")
    A(f"v_permlane32_swap_b32 v{vS0+1}, v{vS0+3}")
    A(f"v_add_f32 v{vS0}, v{vS0}, v{vS0+2}")
    A(f"v_add_f32 v{vS0+1}, v{vS0+1}, v{vS0+3}")
    A(f"v_cvt_pk_bf16_f32 v{vGA}, v{vS0}, v{vS0+1}")
    A(f"ds_write_b32 v{vQA}, v{vGA}")
    signal(F_BQ)
    A(f"s_lshl_b32 s{sTMP}, s{sG}, 5")
    A(f"s_add_u32 s{sTMP}, s{sTMP}, s{sBB}")
    A(f"s_lshl2_add_u32 s{sTMP}, s{sTMP}, s{sSPL}")
    A(f"s_lshl_b32 s{sTMP}, s{sTMP}, 9")
    ws_addr(sGA, WS_OP, sTMP)
    A(f"s_lshl2_add_u32 s{sTMP3}, s{sBB}, s{sSPL}")
    A(f"s_mul_i32 s{sTMP}, s{sG}, {32*CS}")
    ws_addr(sGB, WS_OC, sTMP)
    A(f"s_lshl_b32 s{sTMP}, s{sG}, 5")
    A(f"s_add_u32 s{sTMP}, s{sTMP}, s{sTMP3}")
    A(f"s_lshl_b32 s{sTMP}, s{sTMP}, 6")
    ws_addr(sFA, WS_LSE, sTMP)
    cbits = struct.unpack("<I", struct.pack("<f", math.log2(math.e) / math.sqrt(128.0)))[0]
    A(f"s_mov_b32 s{sTMP2}, {cbits:#x}")
    if STAMP == 1: A("s_waitcnt lgkmcnt(0)")
    if opt.spec: cwait_rd(F_BQ, 8, 4, lambda: actreads(4))
    else:
        cwait(F_BQ, 8); actreads(4)
    for db in range(4):
        A(f"s_waitcnt lgkmcnt({3-db})")
        c0 = "0" if db == 0 else f"v[{vACC}:{vACC+3}]"
        c1 = "0" if db == 0 else f"v[{vACC2}:{vACC2+3}]"
        A(f"v_mfma_f32_16x16x32_bf16 v[{vACC}:{vACC+3}], v[{vK+4*db}:{vK+4*db+3}], v[{vQ+4*db}:{vQ+4*db+3}], {c0}")
        A(f"v_mfma_f32_16x16x32_bf16 v[{vACC2}:{vACC2+3}], v[{vK+16+4*db}:{vK+16+4*db+3}], v[{vQ+4*db}:{vQ+4*db+3}], {c1}")
    A(f"v_add_u32 v{vAA}, {PF}, v{vACT}")
    A(f"v_add_u32 v{vWA}, {RB}, v{vTR}")
    vONES = vGA
    for r in range(4): A(f"v_mov_b32 v{vONES+r}, 0x3f803f80")
    A("s_nop 1")
    A(f"v_max3_f32 v{vTMP2}, v{vACC}, v{vACC+1}, v{vACC+2}")
    A(f"v_max3_f32 v{vTMP2}, v{vTMP2}, v{vACC+3}, v{vACC2}")
    A(f"v_max3_f32 v{vTMP2}, v{vTMP2}, v{vACC2+1}, v{vACC2+2}")
    A(f"v_max_f32 v{vTMP2}, v{vTMP2}, v{vACC2+3}")
    A("s_mov_b32 exec_lo, 0x00ff00ff\ns_mov_b32 exec_hi, 0x00ff00ff")
    A(f"ds_max_f32 v{vMX}, v{vTMP2} offset:{F_MAX}")
    signal(F_BM)
    vM = vLS
    cwait_rd(F_BM, 8, 1, lambda: A(f"ds_read_b32 v{vM}, v{vMX} offset:{F_MAX}"))
    if opt.olead >= 0 and opt.oearly:
        A(f"ds_read_b32 v{vTMP}, v9 offset:{F_PROG}")
    A("s_waitcnt lgkmcnt(0)")
    A(f"s_mov_b32 s{sWDN}, 0")
    if opt.olead >= 0 and opt.oearly:
        A(f"v_readfirstlane_b32 s{sPROG}, v{vTMP}")
        A(f"s_cmp_lt_u32 s{sPROG}, {20 - opt.olead}")
        A("s_cbranch_scc1 L_of_no1")
        flag_now("q")
        A(f"s_mov_b32 s{sWDN}, 1")
        A("L_of_no1:")
    A(f"v_mul_f32 v{vM}, s{sTMP2}, v{vM}")
    for r in range(8):
        A(f"v_fma_f32 v{vACC+r}, v{vACC+r}, s{sTMP2}, -v{vM}")
    for r in range(8):
        A(f"v_exp_f32 v{vACC+r}, v{vACC+r}")
    A("s_nop 0")
    for r in range(4):
        A(f"v_cvt_pk_bf16_f32 v{vB+r}, v{vACC+2*r}, v{vACC+2*r+1}")
    A(f"ds_write_b128 v{vPA}, v[{vB}:{vB+3}]")
    signal(F_BP)
    if opt.spec: cwait_rd(F_BP, 8, 8, lambda: actreads(8))
    else:
        cwait(F_BP, 8); actreads(8)
    A(f"ds_read_b32 v{vTMP}, v9 offset:{F_PROG}")
    for kb in range(8):
        A(f"s_waitcnt lgkmcnt({8-kb})")
        c1 = "0" if kb == 0 else f"v[{vACC2}:{vACC2+3}]"
        A(f"v_mfma_f32_16x16x32_bf16 v[{vACC2}:{vACC2+3}], v[{vONES}:{vONES+3}], v[{vQ+4*kb}:{vQ+4*kb+3}], {c1}")
    A("s_waitcnt lgkmcnt(0)")
    A(f"v_readfirstlane_b32 s{sPROG}, v{vTMP}")
    stamp(5)
    vRL = vLS + 2
    def lse_part():
        A(f"v_log_f32 v{vLS+1}, v{vACC2}")
        A(f"v_rcp_f32 v{vRL}, v{vACC2}")
        A("s_nop 0")
        A(f"v_mul_f32 v{vRL}, {fbits(2.0**LO_):#x}, v{vRL}")
        d = g.lab("L_nolse")
        A(f"s_cmp_lg_u32 s{sC}, 0")
        A(f"s_cbranch_scc1 {d}")
        A(f"v_add_f32 v{vM}, v{vM}, v{vLS+1}")
        A(f"v_mov_b32 v{vLS+1}, s{sT}")
        A(f"v_lshlrev_b32 v{vTMP2}, 3, v0")
        A("s_mov_b64 exec, 0xff")
        if not (opt.dbg & 1):
            A(f"global_store_dwordx2 v{vTMP2}, v[{vLS}:{vLS+1}], s[{sFA}:{sFA+1}] sc1")
            if opt.lcnt:
                A(f"s_bfm_b64 exec, {NREP}, 0")
                A(f"v_mov_b32 v{vTMP2}, 0x10000")
                A(f"global_atomic_add v{vFLG}, v{vTMP2}, s[{sGB}:{sGB+1}] sc1")
        A("s_mov_b64 exec, -1")
        A(f"{d}:")
    A(f"s_cmp_lt_u32 s{sPROG}, 20")
    A("s_cbranch_scc1 L_pv_slow")
    def oflag():
        if opt.olead < 0: return
        d = g.lab("L_of")
        A(f"s_cmp_lg_u32 s{sWDN}, 0")
        A(f"s_cbranch_scc1 {d}")
        flag_now("q")
        A(f"{d}:")
    wreads(0, 7)
    lse_part()
    oflag()
    for kb in range(7):
        A(f"s_waitcnt lgkmcnt({14-2*kb if kb else 12})")
        if kb == 0: wreads(7, 8)
        mf(kb, kb == 0)
    A("s_branch L_pv_last")
    pad("M")
    A("L_pv_slow:")
    A("s_nop 4")
    lse_part()
    for kb in range(8):
        wait_prog(False, 12 + kb + 1)
        wreads(kb, kb+1)
        if 12 + kb + 1 == 20 - opt.olead: oflag()
        if kb:
            A("s_waitcnt lgkmcnt(2)")
            mf(kb-1, kb == 1)
    A("L_pv_last:")
    A("s_waitcnt lgkmcnt(0)")
    mf(7, False)
    A("s_nop 7")
    encode(vRL, vOTP, vOTA)
    A("s_mov_b32 exec_lo, 0x00ff00ff\ns_mov_b32 exec_hi, 0x00ff00ff")
    staged(F_PUB1, 7, 2 << 14, "q" if (opt.olead < 0 and not opt.notif) else None)
    stamp(6)
    if opt.ackst:
        A("s_waitcnt vmcnt(0)"); stamp(3)
    A(f"s_and_b32 s{sTMP2}, s{sR}, 1")
    A(f"s_lshl_b32 s{sTMP2}, s{sTMP2}, 4")
    A(f"v_and_b32 v{vTMP2}, 12, v0")
    A(f"v_add3_u32 v{vTMP2}, v{vTMP2}, s{sTMP2}, v9")
    A(f"ds_read_b32 v{vRG}, v{vTMP2} offset:{F_G}")
    A(f"s_lshl4_add_u32 s{sTMP}, s{sXCD}, s{sR}")
    A(f"s_sub_u32 s{sTMP3}, s{sTMP}, 16")
    A(f"s_lshl3_add_u32 s{sTMP}, s{sTMP3}, s{sC}")
    A(f"s_lshl_b32 s{sTMP}, s{sTMP}, 9")
    ws_addr(sRA, WS_FP, sTMP)
    A(f"v_lshlrev_b32 v{vRR}, 2, v0")
    A(f"v_add_u32 v{vRR}, {RS}, v{vRR}")
    A(f"s_lshl_b32 s{sTMP}, s{sC}, 8")
    A(f"v_add_u32 v{vRW}, s{sTMP}, v{vRR}")
    A(f"v_and_b32 v{vOUT}, 12, v0")
    A(f"v_lshlrev_b32 v{vOUT}, 9, v{vOUT}")
    A(f"v_and_b32 v{vTMP2}, 3, v0")
    A(f"v_lshl_or_b32 v{vOUT}, v{vTMP2}, 3, v{vOUT}")
    A(f"v_lshrrev_b32 v{vTMP2}, 4, v0")
    A(f"v_lshl_or_b32 v{vOUT}, v{vTMP2}, 1, v{vOUT}")
    A(f"s_lshl_b32 s{sTMP2}, s{sTMP2}, 9")
    A(f"s_lshr_b32 s{sTMP3}, s{sTMP3}, 1")
    A(f"s_lshl_b32 s{sTMP3}, s{sTMP3}, 5")
    A(f"s_add_u32 s{sTMP2}, s{sTMP2}, s{sTMP3}")
    A(f"v_add_u32 v{vOUT}, s{sTMP2}, v{vOUT}")
    A("s_waitcnt lgkmcnt(0)")
    A(f"s_cmp_lt_u32 s{sC}, 4")
    A("s_cbranch_scc1 L_wg_done")
    A(f"v_sub_f32 v{vRG}, 1.0, v{vRG}")
    rbf(vRG)
    A("L_wg_done:")
    A(f"v_mul_f32 v{vRG}, {fbits(2.0**-LF):#x}, v{vRG}")
    setsca(LG)
    late_setup(RA, 16, 27)
    A(f"s_add_u32 s{sTMP}, s{sC}, s{sLR}")
    A(f"s_cmp_ge_u32 s{sTMP}, 7")
    A(f"s_cselect_b32 s{sTMP2}, 7, 0")
    A(f"s_sub_u32 s{sTMP}, s{sTMP}, s{sTMP2}")
    A(f"s_add_u32 s{sTMP}, s{sTMP}, s{sKB0}")
    A(f"s_lshl_b32 s{sTMP}, s{sTMP}, 11")
    ws_addr(sGA, WS_GP, sTMP)
    for r in range(4): A(f"v_mov_b32 v{vS0+r}, 0")
    late_wait()
    A(f"s_cmp_eq_u32 s{sC}, 7")
    A("s_cbranch_scc1 L_late")
    stamp(7)
    def rnd4(v):
        A(f"v_cvt_pk_bf16_f32 v{vB}, v{v}, v{v+1}")
        A(f"v_cvt_pk_bf16_f32 v{vB+1}, v{v+2}, v{v+3}")
        for h in range(2):
            A(f"v_lshlrev_b32 v{v+2*h}, 16, v{vB+h}")
            A(f"v_and_b32 v{v+2*h+1}, 0xffff0000, v{vB+h}")
    def hwork(i):
        if i == 2: late_post_issue()
        if i == 3: late_post()
        acc(i, vS0 if i < 2 else vS1, i in (0, 2))
        if i == 1:
            for r in range(4): A(f"v_max_f32 v{vS0+r}, 0, v{vS0+r}")
            if opt.hround: rnd4(vS0)
        if i == 3:
            if opt.hround: rnd4(vS1)
            for r in (0, 2): A(f"v_pk_mul_f32 v[{vS0+r}:{vS0+r+1}], v[{vS0+r}:{vS0+r+1}], v[{vS1+r}:{vS1+r+1}]")
    gather(mid=late_mid, cntstamp=13, sleep=opt.gsleep, work=hwork)
    stamp(8)

    if opt.touch: A("s_branch L_late")
    pad("A")
    A("L_late:")
    A(f"v_cvt_pk_bf16_f32 v{vGA}, v{vS0}, v{vS0+1}")
    A(f"v_cvt_pk_bf16_f32 v{vGA+1}, v{vS0+2}, v{vS0+3}")
    A(f"ds_write_b64 v{vAFW}, v[{vGA}:{vGA+1}]")
    if opt.lflow == 1:
        signal(F_BA)
        if opt.fine: stamp(3)
        A(f"s_cmp_eq_u32 s{sWDN}, 99")
        A("s_cbranch_scc1 L_late_bar")
        A("L_late_spin:")
        A(f"ds_read2_b32 v[{vTMP}:{vTMP+1}], v9 offset0:{F_PROG//4} offset1:{F_BA//4}")
        A("s_waitcnt lgkmcnt(0)")
        A(f"v_readfirstlane_b32 s{sPROG}, v{vTMP}")
        A(f"v_readfirstlane_b32 s{sTMP2}, v{vTMP+1}")
        wcatch()
        A(f"s_cmp_eq_u32 s{sWDN}, 99")
        A("s_cbranch_scc1 L_late_bar0")
        A(f"s_cmp_lt_u32 s{sWDN}, 27")
        A("s_cbranch_scc1 L_late_spin")
        A(f"s_cmp_lt_u32 s{sTMP2}, 8")
        A("s_cbranch_scc1 L_late_spin")
        actreads(8, True)
        for kb in range(6):
            A(f"s_waitcnt lgkmcnt({7-kb})")
            mf(kb, kb == 0)
        A("s_barrier")
        wreads(6, 8)
        A("s_waitcnt lgkmcnt(2)")
        mf(6, False)
        A("s_waitcnt lgkmcnt(0)")
        mf(7, False)
        A("s_branch L_late_done")
        pad("A")
        A("L_late_bar:")
        A("s_waitcnt lgkmcnt(0)")
        A("L_late_bar0:")
        A("s_barrier")
        if opt.fine: stamp(4)
        actreads(8, True)
        for kb in range(8):
            A(f"s_waitcnt lgkmcnt({7-kb})")
            mf(kb, kb == 0)
    else:
        if opt.fine: stamp(3)
        if opt.lflow == 3: signal(F_BA)
        A(f"s_cmp_ge_u32 s{sWDN}, {opt.wmin}")
        A(f"s_cbranch_scc1 {'L_late_w6' if opt.lflow == 3 else 'L_late_bar'}")
        wait_prog(False, opt.wmin - 1)
        wcatch()
        if opt.lflow == 3:
            A("L_late_w6:")
            A(f"s_cmp_eq_u32 s{sWDN}, 99")
            A("s_cbranch_scc1 L_late_bar")
            A("L_late_spin:")
            A(f"ds_read2_b32 v[{vTMP}:{vTMP+1}], v9 offset0:{F_PROG//4} offset1:{F_BA//4}")
            A("s_waitcnt lgkmcnt(0)")
            A(f"v_readfirstlane_b32 s{sPROG}, v{vTMP}")
            A(f"v_readfirstlane_b32 s{sTMP2}, v{vTMP+1}")
            A(f"s_cmp_ge_u32 s{sPROG}, s{sPE}")
            A("s_cbranch_scc1 L_late_bar")
            A(f"s_cmp_lt_u32 s{sTMP2}, 8")
            A("s_cbranch_scc1 L_late_spin")
            n0 = opt.wmin - 21
            actreads(8, True)
            for kb in range(n0):
                A(f"s_waitcnt lgkmcnt({7-kb})")
                mf(kb, kb == 0)
            A("s_barrier")
            wreads(n0, 8)
            for kb in range(n0, 8):
                A(f"s_waitcnt lgkmcnt({2*(7-kb)})")
                mf(kb, False)
            A("s_branch L_late_done")
        A("L_late_bar:")
        A(f"s_cmp_eq_u32 s{sWDN}, 99")
        A("s_waitcnt lgkmcnt(0)")
        A("s_barrier")
        A("s_cbranch_scc1 L_late_act")
        wreads(opt.wmin - 21, 8)
        A("L_late_act:")
        if opt.fine: stamp(4)
        actreads(8, True)
        for kb in range(8):
            A(f"s_waitcnt lgkmcnt({7-kb})")
            mf(kb, kb == 0)
    A("L_late_done:")
    if opt.fine: stamp(5)
    A("s_nop 7")
    publish(vACC, sFA)
    A("s_mov_b64 exec, -1")
    stamp(9)
    A(f"s_cmp_ge_u32 s{sR}, 16")
    A("s_cbranch_scc1 L_red")
    A("s_branch L_exit")
    pad("A")
    A("L_red:")
    A(f"s_mov_b64 s[{sGA}:{sGA+1}], s[{sRA}:{sRA+1}]")
    if opt.fgate and not opt.fbar: cwait(F_FRDY, 1)
    A(f"v_mov_b32 v{vSCA}, v{vRG}")
    if opt.fgate and opt.fbar: A("s_barrier")
    def fwork(i): acc(0, vS0, True)
    gather(nld=1, cntstamp=12, sleep=opt.fgsleep, work=fwork)
    if not opt.stq: stamp(2)
    A("s_nop 1")
    A(f"v_permlane32_swap_b32 v{vS0}, v{vS0+2}")
    A(f"v_permlane32_swap_b32 v{vS0+1}, v{vS0+3}")
    A(f"v_add_f32 v{vS0}, v{vS0}, v{vS0+2}")
    A(f"v_add_f32 v{vS0+1}, v{vS0+1}, v{vS0+3}")
    A("s_nop 1")
    A(f"v_permlane16_swap_b32 v{vS0}, v{vS0+1}")
    A(f"v_add_f32 v{vGA}, v{vS0}, v{vS0+1}")
    A(f"ds_write_b32 v{vRW}, v{vGA}")
    A("s_mov_b64 exec, 1")
    A(f"ds_add_rtn_u32 v{vTMP}, v9, v{vONE} offset:{F_RED}")
    A("s_mov_b64 exec, -1")
    for i in range(4):
        A(f"ds_read2st64_b32 v[{vGA+2*i}:{vGA+2*i+1}], v{vRR} offset0:{2*i} offset1:{2*i+1}")
    A("s_waitcnt lgkmcnt(4)")
    A(f"v_readfirstlane_b32 s{sTMP}, v{vTMP}")
    A(f"s_cmp_lg_u32 s{sTMP}, 7")
    A("s_cbranch_scc1 L_exit")
    A("s_waitcnt lgkmcnt(0)")
    A(f"v_pk_add_f32 v[{vGA}:{vGA+1}], v[{vGA}:{vGA+1}], v[{vGA+2}:{vGA+3}]")
    A(f"v_pk_add_f32 v[{vGA+4}:{vGA+5}], v[{vGA+4}:{vGA+5}], v[{vGA+6}:{vGA+7}]")
    A(f"v_pk_add_f32 v[{vGA}:{vGA+1}], v[{vGA}:{vGA+1}], v[{vGA+4}:{vGA+5}]")
    A(f"v_add_f32 v{vGA}, v{vGA}, v{vGA+1}")
    A(f"v_cvt_pk_bf16_f32 v{vGA}, v{vGA}, v{vGA}")
    A(f"global_store_short v{vOUT}, v{vGA}, s[{sOUT}:{sOUT+1}] {opt.outflags}")
    A(f"s_cmp_lg_u32 s2, 128")
    A("s_cbranch_scc1 L_noepoch")
    A("s_mov_b64 exec, 1")
    A(f"v_mov_b32 v{vTMP}, 0")
    A(f"global_store_dword v{vTMP}, v{vT}, s[{sWS}:{sWS+1}] sc1")
    A("s_mov_b64 exec, -1")
    A("L_noepoch:")
    if opt.fixdur:
        A(f"s_cmp_lg_u32 s2, {opt.fixwg}")
        A("s_cbranch_scc1 L_nofix")
        A("L_fixd:")
        A("s_memrealtime s[14:15]")
        A("s_waitcnt lgkmcnt(0)")
        A("s_sub_u32 s14, s14, s98")
        A(f"s_cmp_lt_u32 s14, {opt.fixdur}")
        A("s_cbranch_scc1 L_fixd")
        A("L_nofix:")
    if STAMP:
        A("s_waitcnt vmcnt(0)")
        stamp(1, True)
    A("s_branch L_exit")

    pad("A")
    A("L_wcatch:")
    for kb in range(8):
        nx = f"L_wcn{kb}"
        if kb < 7:
            A(f"s_cmp_gt_u32 s{sWDN}, {21+kb}")
            A(f"s_cbranch_scc1 {nx}")
        if kb:
            A(f"s_cmp_lt_u32 s{sPROG}, s{sWDN}")
            A("s_cbranch_scc1 L_wcret")
        wreads(kb, kb+1)
        if kb < 6: A(f"s_mov_b32 s{sWDN}, {22+kb}")
        elif kb == 6: A(f"s_mov_b32 s{sWDN}, s{sPE}")
        else: A(f"s_mov_b32 s{sWDN}, 99")
        if kb < 7: A(f"{nx}:")
    A("L_wcret:")
    A(f"s_setpc_b64 s[{sRET}:{sRET+1}]")

    A("L_encs:")
    A(f"v_lshrrev_b32 v{vTMP}, 23, v{vTMP}")
    A(f"v_subrev_u32 v{vTMP}, 126, v{vTMP}")
    A(f"v_ashrrev_i32 v{vTMP}, 4, v{vTMP}")
    A(f"v_med3_i32 v{vTMP}, v{vTMP}, -8, 7")
    A(f"v_cndmask_b32 v{vTMP}, 0, v{vTMP}, vcc")
    A(f"v_and_b32 v{vAX}, 15, v{vTMP}")
    A(f"v_lshl_or_b32 v{vAX}, v{vAX}, 14, v{vAX}")
    A(f"v_and_b32 v{vAX}, s{sM3}, v{vAX}")
    A(f"v_mul_i32_i24 v{vTMP}, -16, v{vTMP}")
    for r in range(4): A(f"v_ldexp_f32 v{vACC+r}, v{vACC+r}, v{vTMP}")
    A("s_mov_b64 vcc, 0")
    A("s_setpc_b64 s[6:7]")
    A("L_fixr:")
    for i in range(4): A(f"v_xor_b32 v{vGA+2*i+1}, v{vTC}, v{vGA+2*i+1}")
    A("L_fix:")
    for i in range(4):
        A(f"v_and_b32 v{vTMP}, 3, v{vGA+2*i}")
        A(f"v_bfe_i32 v{vTMP2}, v{vGA+2*i}, 16, 2")
        A(f"v_lshl_or_b32 v{vTMP}, v{vTMP2}, 2, v{vTMP}")
        A(f"v_lshlrev_b32 v{vTMP}, 4, v{vTMP}")
        A(f"v_ldexp_f32 v{vSCA+i}, v{vSCA+i}, v{vTMP}")
    A("s_setpc_b64 s[6:7]")

    if opt.notif:
        A("L_notif:")
        if opt.nocomm: A("s_branch L_exit")
        A(f"s_cmp_eq_u32 s{sROLE}, 2")
        A("s_cbranch_scc1 L_exit")
        A(f"s_cmp_ge_u32 s{sR}, 16")
        A("s_cbranch_scc1 L_notifM")
        hc_addr()
        wait_prog(False, opt.nprogh - 1, sleep=2)
        wait_prog(False, opt.nprogh)
        if opt.ndelay: A(f"s_sleep {opt.ndelay}")
        bump("h")
        A("s_branch L_exit")
        A("L_notifM:")
        A(f"s_mul_i32 s{sTMP}, s{sG}, {32*CS}")
        ws_addr(sGB, WS_OC, sTMP)
        cwait(F_BP, 8, sleep=2)
        if opt.pdelay: A(f"s_sleep {opt.pdelay}")
        wait_prog(False, opt.nprogo - 1, sleep=2)
        wait_prog(False, opt.nprogo)
        if opt.ndelay + opt.odelay: A(f"s_sleep {opt.ndelay + opt.odelay}")
        bump("q")
        A("s_branch L_exit")

    A("L_poller:")
    if opt.nocomm: A("s_branch L_exit")
    A(f"s_cmp_ge_u32 s{sR}, 16")
    A("s_cbranch_scc1 L_pollM")
    A(f"s_lshl3_add_u32 s{sTMP}, s{sRBK}, s{sCB}")
    A(f"s_and_b32 s{sTMP}, s{sTMP}, {NREP-1}")
    A(f"s_lshl_b32 s{sTMP2}, s{sG}, 5")
    A(f"s_add_u32 s{sTMP}, s{sTMP}, s{sTMP2}")
    A(f"s_mul_i32 s{sTMP}, s{sTMP}, {CS}")
    ws_addr(sGB, WS_OC, sTMP)
    A(f"s_load_dword s4, s[{sGB}:{sGB+1}], 0 glc")
    A(f"s_and_b32 s{sTMP}, s{sRBK}, 3")
    A(f"s_lshl_b32 s{sTMP}, s{sTMP}, 4")
    A(f"s_lshl_b32 s{sTMP2}, s{sG}, 11")
    A(f"s_add_u32 s{sTMP}, s{sTMP}, s{sTMP2}")
    ws_addr(sGA, WS_LSE, sTMP)
    A(f"v_and_b32 v{vTMP3}, 31, v0")
    A(f"v_lshlrev_b32 v{vTMP3}, 6, v{vTMP3}")
    A(f"v_lshrrev_b32 v{vTMP2}, 5, v0")
    A(f"v_lshl_or_b32 v{vTMP3}, v{vTMP2}, 3, v{vTMP3}")
    A("s_waitcnt lgkmcnt(0)")
    A(f"v_lshl_add_u32 v{vWA}, v0, 2, v9")
    A(f"s_cmp_eq_u32 s{sROLE}, 2")
    A(f"s_cselect_b32 s{sTMP2}, {opt.ogatec}, {opt.ogate}")
    A(f"s_add_u32 s5, s4, {0x200020 if opt.lcnt else 32}")
    for k, l in touch:
        if k in "AB": A(f"s_call_b64 s[6:7], {l}")
    wait_prog(True, sTMP2, sleep=2)
    stamp(2)
    if not (opt.dbg & 7):
        A(f"s_mov_b32 s{sCNT}, 0")
        if opt.psleep: A("s_branch L_pl1e")
        A("L_pl1:")
        if opt.psleep:
            A(f"s_sleep {opt.psleep}")
            A("L_pl1e:")
        A(f"s_load_dword s8, s[{sGB}:{sGB+1}], 0 glc")
        A(f"s_add_u32 s{sCNT}, s{sCNT}, 1")
        A(f"s_cmp_gt_u32 s{sCNT}, {opt.maxhint}")
        A("s_waitcnt lgkmcnt(0)")
        A("s_cbranch_scc1 L_pl1d")
        A("s_sub_u32 s9, s8, s4")
        A(f"s_cmp_lt_u32 s9, {0x200000 if opt.lcnt else opt.lthr}")
        A("s_cbranch_scc1 L_pl1")
        A("L_pl1d:")
        stampval(10, sCNT)
    stamp(3)
    A("s_mov_b32 s9, 0")
    A(f"s_mov_b32 s{sTMP3}, 0")
    A("L_lse:")
    if not (opt.dbg & 2): A(f"global_load_dwordx2 v[{vLS}:{vLS+1}], v{vTMP3}, s[{sGA}:{sGA+1}] sc1")
    if not (opt.dbg & 7):
        A("s_cmp_lg_u32 s9, 0")
        A("s_cbranch_scc1 L_lse_wait")
        A("L_pl2:")
        A("s_cmp_eq_u32 s8, s5")
        A("s_cbranch_scc1 L_pl_sig")
        A(f"s_cmp_gt_u32 s{sCNT}, {opt.maxhint}")
        A("s_cbranch_scc1 L_pl_sig")
        A("s_getreg_b32 s10, hwreg(HW_REG_IB_STS, 0, 4)")
        A("s_cmp_eq_u32 s10, 0")
        A("s_cbranch_scc1 L_lse_wait")
        A(f"s_load_dword s8, s[{sGB}:{sGB+1}], 0 glc")
        A(f"s_add_u32 s{sCNT}, s{sCNT}, 1")
        A("s_waitcnt lgkmcnt(0)")
        A("s_branch L_pl2")
        A("L_pl_sig:")
        signal(F_LRDY)
        A("s_mov_b32 s9, 1")
        stamp(5)
    A("L_lse_wait:")
    if not (opt.dbg & 7):
        A(f"s_load_dword s8, s[{sGB}:{sGB+1}], 0 glc")
    A(f"s_add_u32 s{sTMP3}, s{sTMP3}, 1")
    A("s_waitcnt vmcnt(0)")
    A(f"v_cmp_ne_u32 vcc, s{sT}, v{vLS+1}")
    A(f"s_cbranch_vccz L_lsed")
    A(f"s_cmp_le_u32 s{sTMP3}, {0 if (opt.dbg & 7) else opt.maxpoll}")
    A("s_waitcnt lgkmcnt(0)")
    A(f"s_cbranch_scc1 L_lse")
    A("L_lsed:")
    stampval(12, sTMP3)
    A(f"v_max_f32_dpp v{vTMP}, v{vLS}, v{vLS} quad_perm:[1,0,3,2] row_mask:0xf bank_mask:0xf")
    A("s_nop 1")
    A(f"v_max_f32_dpp v{vTMP}, v{vTMP}, v{vTMP} quad_perm:[2,3,0,1] row_mask:0xf bank_mask:0xf")
    A(f"v_sub_f32 v{vLS}, v{vLS}, v{vTMP}")
    A(f"v_exp_f32 v{vLS}, v{vLS}")
    A("s_nop 1")
    A(f"v_add_f32_dpp v{vTMP}, v{vLS}, v{vLS} quad_perm:[1,0,3,2] row_mask:0xf bank_mask:0xf")
    A("s_nop 1")
    A(f"v_add_f32_dpp v{vTMP}, v{vTMP}, v{vTMP} quad_perm:[2,3,0,1] row_mask:0xf bank_mask:0xf")
    A(f"v_rcp_f32 v{vTMP}, v{vTMP}")
    A("s_nop 0")
    A(f"v_mul_f32 v{vLS}, v{vLS}, v{vTMP}")
    A(f"v_mul_f32 v{vLS}, {fbits(2.0**-LO_):#x}, v{vLS}")
    A(f"ds_write_b32 v{vWA}, v{vLS} offset:{F_WT}")
    signal(F_WRDY)
    stamp(4)
    if not (opt.dbg & 7):
        A("s_cmp_lg_u32 s9, 0")
        A("s_cbranch_scc1 L_pl_fin")
        A("s_waitcnt lgkmcnt(0)")
        A("s_cmp_eq_u32 s8, s5")
        A("s_cbranch_scc1 L_pl_sig2")
    pollcnt(sGB, 5, opt.psleep, cntstamp=11)
    A("L_pl_sig2:")
    signal(F_LRDY)
    stamp(5)
    A("L_pl_fin:")
    A("s_barrier")
    A("s_branch L_exit")
    A("L_pollM:")
    A(f"s_lshl2_add_u32 s{sTMP}, s{sBB}, s{sSPL}")
    A(f"s_lshr_b32 s{sTMP}, s{sTMP}, {int(math.log2(32//NREP))}")
    A(f"s_lshl_b32 s{sTMP2}, s{sG}, 5")
    A(f"s_add_u32 s{sTMP}, s{sTMP}, s{sTMP2}")
    A(f"s_mul_i32 s{sTMP}, s{sTMP}, {CS}")
    ws_addr(sGB, WS_QC, sTMP)
    if opt.qhint: A(f"s_load_dword s4, s[{sGB}:{sGB+1}], 0 glc")
    A(f"s_mul_i32 s{sTMP}, s{sRBK}, {HREP}")
    A(f"s_and_b32 s{sTMP2}, s{sCB}, {HREP-1}")
    A(f"s_add_u32 s{sTMP}, s{sTMP}, s{sTMP2}")
    A(f"s_mul_i32 s{sTMP}, s{sTMP}, {CS}")
    ws_addr(sGA, WS_HC, sTMP)
    A(f"s_load_dword s5, s[{sGA}:{sGA+1}], 0 glc")
    if opt.fgate:
        A(f"s_and_b32 s{sTMP}, s{sR}, {opt.frep-1}")
        A(f"s_lshl4_add_u32 s{sTMP}, s{sXCD}, s{sTMP}")
        A(f"s_mul_i32 s{sTMP}, s{sTMP}, {CS}")
        ws_addr(10, WS_FC, sTMP)
        A(f"s_load_dword s6, s[10:11], 0 glc")
    A(f"s_bitcmp1_b32 s{sKB0}, 1")
    A(f"s_cselect_b32 s{sTMP}, 12, 8")
    A("s_waitcnt lgkmcnt(0)")
    if opt.fgate: A("s_add_u32 s6, s6, 32")
    A("s_add_u32 s4, s4, 64")
    A(f"s_add_u32 s5, s5, s{sTMP}")
    if opt.fgate: A("s_mov_b32 s9, s6")
    for k, l in touch:
        if k in "AM": A(f"s_call_b64 s[6:7], {l}")
    if opt.qhint:
        wait_prog(False, opt.qgate, sleep=2)
        stamp(2)
        pollcnt(sGB, 4, opt.psleep, cntstamp=10)
        signal(F_QRDY)
        stamp(3)
    wait_prog(False, opt.hgate, sleep=2)
    stamp(4)
    pollcnt(sGA, 5, opt.psleep, cntstamp=11)
    signal(F_LRDY)
    stamp(5)
    A("s_barrier")
    if opt.fgate:
        stamp(6)
        pollcnt(10, 9, 0, cntstamp=12)
        if opt.fbar: A("s_barrier")
        else: signal(F_FRDY)
        stamp(7)

    A("L_exit:")
    if STAMP:
        A("s_waitcnt lgkmcnt(0)")
        A(f"s_mul_i32 s{sTMP}, s2, {NWAVES}")
        A(f"s_add_u32 s{sTMP}, s{sTMP}, s3")
        A(f"s_lshl_b32 s{sTMP}, s{sTMP}, 6")
        A(f"s_add_u32 s{sTMP}, s{sTMP}, {WS_STAMP}")
        A(f"v_mov_b32 v1, s{sTMP}")
        A("s_mov_b64 exec, 1")
        for i in range(NST if STAMP == 1 else 10):
            A(f"v_mov_b32 v2, s{sST+2*i}")
            A(f"global_store_dword v1, v2, s[{sWS}:{sWS+1}] offset:{4*i}")
        A(f"v_mov_b32 v2, s{sROLE}")
        A(f"global_store_dword v1, v2, s[{sWS}:{sWS+1}] offset:60")
    A("L_end:")
    A("s_endpgm")

    body = "\n".join(g.o)
    PADTXT = f".p2align 12\n.fill {opt.pad//4}, 4, 0xbf810000\n" if opt.pad >= 0 else ""
    txt = HEADER
    txt += f"; @launch grid=(256,1,1) block=({64*NWAVES},1,1) lds={LDS_BYTES}\n"
    txt += f""".amdgcn_target "amdgcn-amd-amdhsa--gfx950"
.text
.globl {KNAME}
{PADTXT}.p2align 8
.type {KNAME},@function
{KNAME}:
{body}
.section .rodata,"a"
.p2align 6
.amdhsa_kernel {KNAME}
  .amdhsa_next_free_vgpr {NV}
  .amdhsa_next_free_sgpr 102
  .amdhsa_accum_offset {NV}
  .amdhsa_group_segment_fixed_size 0
  .amdhsa_kernarg_size 104
  .amdhsa_user_sgpr_count 2
  .amdhsa_user_sgpr_kernarg_segment_ptr 1
  .amdhsa_system_sgpr_workgroup_id_x 1
.end_amdhsa_kernel
"""
    return txt

def parse(argv):
    ap = argparse.ArgumentParser()
    ap.add_argument("--nt", default="nt")
    ap.add_argument("--pb", default="20:24,8:22")
    ap.add_argument("--pc", default="4:20,d,3:4,5:12")
    ap.add_argument("--pm", default="20:24,7:20")
    ap.add_argument("--nb0", type=int, default=3)
    ap.add_argument("--stamp", type=int, default=0)
    ap.add_argument("--stq", type=int, default=0)
    ap.add_argument("--fdelay", type=int, default=0)
    ap.add_argument("--qgate", type=int, default=9)
    ap.add_argument("--ogate", type=int, default=19)
    ap.add_argument("--ogatec", type=int, default=26)
    ap.add_argument("--hgate", type=int, default=19)
    ap.add_argument("--ggate", type=int, default=1)
    ap.add_argument("--maxpoll", type=int, default=100000)
    ap.add_argument("--psleep", type=int, default=0)
    ap.add_argument("--fsleep", type=int, default=2)
    ap.add_argument("--gsleep", type=int, default=0)
    ap.add_argument("--fgsleep", type=int, default=0)
    ap.add_argument("--sample", type=int, default=0)
    ap.add_argument("--outflags", default="sc1")
    ap.add_argument("--fixdur", type=int, default=0)
    ap.add_argument("--fixwg", type=int, default=128)
    ap.add_argument("--nocomm", type=int, default=0)
    ap.add_argument("--dbg", type=int, default=0)
    ap.add_argument("--cpf", type=int, default=2)
    ap.add_argument("--qlead", type=int, default=-1)
    ap.add_argument("--hlead", type=int, default=-1)
    ap.add_argument("--olead", type=int, default=-1)
    ap.add_argument("--oearly", type=int, default=0)
    ap.add_argument("--flagwave", type=int, default=1)
    ap.add_argument("--xgat", type=int, default=10)
    ap.add_argument("--nrep", type=int, default=8)
    ap.add_argument("--satom", type=int, default=1)
    ap.add_argument("--maxhint", type=int, default=20)
    ap.add_argument("--hround", type=int, default=0)
    ap.add_argument("--fgate", type=int, default=1)
    ap.add_argument("--frep", type=int, default=8)
    ap.add_argument("--flag_delay", type=int, default=1)
    ap.add_argument("--qhint", type=int, default=0)
    ap.add_argument("--qsleep", type=int, default=4)
    ap.add_argument("--lcnt", type=int, default=0)
    ap.add_argument("--lthr", type=int, default=16)
    ap.add_argument("--spec", type=int, default=0)
    ap.add_argument("--ackst", type=int, default=0)
    ap.add_argument("--cstride", type=int, default=4352)
    ap.add_argument("--midahead", type=int, default=1)
    ap.add_argument("--fine", type=int, default=0)
    ap.add_argument("--pad", type=lambda x: int(x, 0), default=0xd00)
    ap.add_argument("--touch", type=int, default=0)
    ap.add_argument("--sbias", type=int, default=0)
    ap.add_argument("--period", type=int, default=0)
    ap.add_argument("--toff", type=int, default=650)
    ap.add_argument("--qsync", type=int, default=0)
    ap.add_argument("--lprio", type=int, default=3)
    ap.add_argument("--cprio", type=int, default=0)
    ap.add_argument("--gprio", type=int, default=0)
    ap.add_argument("--kvmode", default="lin")
    ap.add_argument("--kvrot", type=int, default=4)
    ap.add_argument("--rotw", type=int, default=1)
    ap.add_argument("--lrot", type=int, default=3)
    ap.add_argument("--lflow", type=int, default=2)
    ap.add_argument("--wmin", type=int, default=27)
    ap.add_argument("--notif", type=int, default=1)
    ap.add_argument("--ndelay", type=int, default=0)
    ap.add_argument("--odelay", type=int, default=0)
    ap.add_argument("--pdelay", type=int, default=6)
    ap.add_argument("--nprogh", type=int, default=20)
    ap.add_argument("--nprogo", type=int, default=20)
    ap.add_argument("--gran", type=int, default=2)
    ap.add_argument("--barpos", type=int, default=1)
    ap.add_argument("--fsat", type=int, default=1)
    ap.add_argument("--gok", type=int, default=7)
    ap.add_argument("--fbar", type=int, default=1)
    ap.add_argument("--specw", type=int, default=1)
    ap.add_argument("--fearly", type=int, default=0)
    ap.add_argument("-o", default=None)
    return ap.parse_args(argv)

if __name__ == "__main__":
    opt = parse(sys.argv[1:])
    t = gen(opt)
    if opt.o: open(opt.o, "w").write(t)
    else: print(t)
```

```python
import sys, argparse, struct, math

KNAME = "gated_mix__sliding_block_cached__glu_gated_reglu__decode_kernel"
HEADER = open("gated_mix__sliding_block_cached__glu_gated_reglu__decode.s.ref").read().split("; Override launch")[0]

RA = 0
RB = 65536
XA = 131072
RQ = RB + 32768
XF = XA
QF = XA + 2048
PF = XA + 4096
RS = XA + 8192
ST = XA + 10240
AF = XA + 12288
FL = XA + 16384
F_PROG, F_LRDY, F_QRDY, F_WRDY, F_BQ, F_BM, F_BP, F_BA, F_RED, F_PUB0, F_PUB1, F_FREE0, F_FREE1, F_ERD, F_FRDY = [4*i for i in range(15)]
F_MAX = 64
F_G = 96
F_WT = 128
LDS_BYTES = FL + 128 + 256

WS_QP = 512 << 10
WS_FP = 1024 << 10
WS_OP = 1536 << 10
WS_GP = 1792 << 10
WS_LSE = 16 << 10
WS_QC = 64 << 10
WS_OC = 160 << 10
WS_HC = 256 << 10
WS_FC = 352 << 10
WS_STAMP = 8 << 20

class G:
    def __init__(self):
        self.o = []; self.nlab = 0
    def A(self, s):
        for line in s.split("\n"):
            self.o.append("    " + line.strip() if not line.strip().endswith(":") else line.strip())
    def lab(self, p="L"):
        self.nlab += 1
        return f"{p}_{self.nlab}"

def plan(s):
    out = []
    for t in s.split(","):
        if t == "d": out.append("d")
        else:
            a, b = t.split(":")
            out.append((int(a), tuple(int(x) for x in b.split("/")) if "/" in b else int(b)))
    return out

def gen(opt):
    g = G(); A = g.A
    CS = opt.cstride
    NWAVES = 11 if opt.notif else 10
    NT = opt.nt
    STAMP = opt.stamp
    sX, sK, sV, sWQ, sWO, sBX, sWG, sWU = [16+2*i for i in range(8)]
    sWD, sGW, sOUT, sDBG = 32, 34, 36, 38
    sWS = 40
    sXCD, sR, sROLE = 42, 43, 44
    sU, sBETA, sG, sSPL, sRBK, sCB, sBB = 45, 46, 47, 48, 49, 50, 51
    sKS, sKB0 = 100, 101
    sLR = 53
    sWDN = 52
    sT = 54
    sT0, sT1, sT2, sT3 = 54, 56, 57, 53
    sSEL0, sSEL1, sSEL2, sSEL3 = 58, 59, 60, 61
    sPROG, sC = 62, 63
    sTMP, sTMP2, sTMP3, sCNT = 64, 65, 66, 67
    sGA, sGB = 68, 70
    sROT = 15
    sSM = 4
    sST = 72
    NST = 14
    SRD = 8
    def stamp(idx, key=False):
        if STAMP == 1 or (STAMP and (key or idx == 0)): A(f"s_memrealtime s[{sST+2*idx}:{sST+2*idx+1}]")
    touch = []
    def pad(kind):
        if not opt.touch: return
        l = g.lab("L_tp"); touch.append((kind, l))
        A(f"{l}:")
        A("s_setpc_b64 s[6:7]")
    def stampval(idx, sreg):
        if STAMP == 1: A(f"s_mov_b32 s{sST+2*idx}, s{sreg}")
    pb, pc, pm = plan(opt.pb), plan(opt.pc), plan(opt.pm)
    NB0 = opt.nb0
    assert NB0 <= 3

    stamp(0)
    if opt.fixdur: A("s_memrealtime s[98:99]")
    A("s_load_dwordx16 s[16:31], s[0:1], 0")
    A("s_load_dwordx8 s[32:39], s[0:1], 64")
    A("s_load_dwordx2 s[40:41], s[0:1], 96")
    A(f"s_cmp_ge_u32 s2, 256")
    A("s_cbranch_scc1 L_end")
    A("v_lshrrev_b32 v1, 6, v0")
    A("v_and_b32 v0, 63, v0")
    A("v_readfirstlane_b32 s3, v1")
    A(f"s_and_b32 s{sXCD}, s2, 7")
    A(f"s_lshr_b32 s{sR}, s2, 3")
    A(f"s_lshr_b32 s{sG}, s{sXCD}, 1")
    A(f"s_and_b32 s{sTMP3}, s{sXCD}, 1")
    A(f"s_add_u32 s{sROT}, s{sR}, s{2 if opt.rotw else sXCD}")
    A(f"s_lshl_b32 s{sTMP}, s{sXCD}, 1")
    A(f"s_sub_u32 s{sTMP}, s{sR}, s{sTMP}")
    A(f"s_sub_u32 s{sTMP}, s{sTMP}, 4")
    A(f"s_bfe_u32 s{sTMP2}, s{sTMP}, 0x20002")
    A(f"s_and_b32 s{sTMP}, s{sTMP}, 3")
    A(f"s_lshl2_add_u32 s{sU}, s{sTMP}, s{sTMP2}")
    A(f"s_cmp_ge_u32 s{sR}, 16")
    A(f"s_cselect_b32 s{sU}, s{sR}, s{sU}")
    A(f"s_lshr_b32 s{sTMP}, s{sU}, 3")
    A(f"s_lshl2_add_u32 s{sKS}, s{sTMP3}, s{sTMP}")
    A("s_cmp_lg_u32 s3, 0")
    A("s_cbranch_scc1 L_notloader")
    sSOFF, sSTEP, sNB, sBLK = 4, 5, 6, 7
    sIDX, sWRAP, sBASE = 12, 13, 14
    sNOW, sDL = 56, 58
    TIMED = "/" in (opt.pb + opt.pm + opt.pc)
    if TIMED: A(f"s_memrealtime s[{sNOW}:{sNOW+1}]")
    A(f"s_setprio {opt.lprio}")
    A(f"v_mov_b32 v9, {FL}")
    A("v_mov_b32 v10, 0xff7fffff")
    A("v_cmp_gt_u32 vcc, 16, v0")
    A("v_lshl_add_u32 v11, v0, 2, v9")
    A("v_lshrrev_b32 v2, 4, v0")
    A("v_cndmask_b32 v10, v10, 0, vcc")
    A("ds_write_b32 v11, v10")
    A("v_bfe_u32 v3, v0, 1, 3")
    A("v_xor_b32 v3, v3, v2")
    A("v_lshlrev_b32 v3, 5, v3")
    A("v_and_b32 v4, 1, v0")
    A("v_lshl_or_b32 v3, v4, 4, v3")
    A("v_xor_b32 v4, 0x80, v3")
    A("v_lshl_add_u32 v5, v2, 13, v3")
    A("v_lshl_add_u32 v6, v2, 13, v4")
    A(f"s_mov_b32 s{SRD+3}, 0x20000")
    A(f"s_and_b32 s{sTMP}, s{sU}, 7")
    A(f"s_lshl3_add_u32 s{sTMP}, s{sG}, s{sTMP}")
    A(f"s_lshl_b32 s{sTMP}, s{sTMP}, 8")
    A(f"s_lshl_b32 s{sSOFF}, s{sKS}, 20")
    A(f"s_add_u32 s{sSOFF}, s{sSOFF}, s{sTMP}")
    A(f"s_mov_b32 s{SRD+2}, {1024*4096*2}")
    A(f"s_mov_b32 s{sNB}, {NB0}")
    A(f"s_mov_b32 s{sSTEP}, {4*8192}")
    A(f"s_mov_b32 m0, {RQ}")
    A(f"s_mov_b32 s{sBLK}, {NB0}")
    if opt.fine == 2: stamp(5)
    A("s_waitcnt lgkmcnt(0)")
    if opt.fine == 2: stamp(6)
    A(f"s_mov_b64 s[{SRD}:{SRD+1}], s[{sWQ}:{sWQ+1}]")
    if TIMED: A(f"s_mov_b32 s{sDL}, s{sNOW}")
    if opt.barpos == 0: A("s_barrier")
    if opt.fine == 2: stamp(7)
    def blk_body(win, rot):
        GR = opt.gran
        if win is not None:
            assert win % GR == 0
            pj = win % 8
            back = (win - pj) // 8
        for j in range(8):
            half, i = j >> 2, j & 3
            if win is not None and j % GR == 0:
                if j == pj:
                    A(f"s_sub_u32 s{sTMP}, s{sBLK}, {back}")
                    A(f"s_max_i32 s{sPROG}, s{sTMP}, s{sPROG}")
                    A(f"v_mov_b32 v10, s{sPROG}")
                A(f"s_waitcnt vmcnt({win})")
                if j == pj: A(f"ds_write_b32 v9, v10 offset:{F_PROG}")
            v = 5 if ((i >> 1) & 1) == 0 else 6
            A(f"buffer_load_dwordx4 v{v}, s[{SRD}:{SRD+3}], s{sSOFF} offen {NT} lds")
            A(f"s_add_u32 m0, m0, 1024")
            if rot == "kv":
                st = {"lin": 1024, "tr1": 8192 + (1024 if (half, i) == (1, 3) else 0),
                      "tr2": (1024 if i % 2 == 0 else 15360) + (2048 if (half, i) == (1, 3) else 0)}[opt.kvmode]
                A(f"s_add_u32 s{sIDX}, s{sIDX}, {st}")
                A(f"s_pack_lh_b32_b16 s{sSOFF}, s{sIDX}, s{sSOFF}")
            else:
                A(f"s_add_u32 s{sSOFF}, s{sSOFF}, s{sSTEP}")
        if rot == 7:
            A(f"s_add_u32 s{sIDX}, s{sIDX}, 1")
            A(f"s_cmp_eq_u32 s{sIDX}, 7")
            A(f"s_cselect_b32 s{sTMP}, {7*65536}, 0")
            A(f"s_sub_u32 s{sSOFF}, s{sSOFF}, s{sTMP}")
        if rot is True:
            A(f"s_add_u32 s{sIDX}, s{sIDX}, 1")
            A(f"s_and_b32 s{sIDX}, s{sIDX}, 7")
            A(f"s_cselect_b32 s{sTMP}, 0, s{sWRAP}")
            A(f"s_sub_u32 s{sSOFF}, s{sSOFF}, s{sTMP}")
    if opt.barpos == 1:
        blk_body(None, False)
        A("s_barrier")
        A(f"s_mov_b32 s{sNB}, {NB0-1}")
    A("L_top_loop:")
    blk_body(None, False)
    A(f"s_sub_u32 s{sNB}, s{sNB}, 1")
    A(f"s_cmp_lg_u32 s{sNB}, 0")
    A("s_cbranch_scc1 L_top_loop")
    if opt.barpos == 2: A("s_barrier")
    A("s_branch L_loader2")
    A("L_notloader:")
    if opt.stlb:
        A("s_cmp_eq_u32 s3, 10")
        A("s_cbranch_scc1 L_loader2")
    if opt.cpf:
        A(f"s_cmp_gt_u32 s3, {opt.cpf}")
        A("s_cbranch_scc1 L_cpf_done")
        if opt.cpfc:
            A(f"s_cmp_lg_u32 s{sR}, 14")
            A("s_cbranch_scc1 L_cpf_done")
        A("s_getpc_b64 s[4:5]")
        A("L_pc:")
        A(f"s_lshl_b32 s{sTMP}, s3, 13")
        A(f"s_sub_u32 s{sTMP}, s{sTMP}, 8192")
        A(f"v_lshl_add_u32 v1, v0, 7, s{sTMP}")
        A(f"v_cmp_gt_u32 vcc, L_end-L_pc, v1")
        A("s_and_saveexec_b64 s[6:7], vcc")
        A("s_cbranch_execz L_cpf_done2")
        A(f"global_load_dword v127, v1, s[4:5]")
        A("L_cpf_done2:")
        A("s_mov_b64 exec, -1")
        A("L_cpf_done:")
    A("s_barrier")
    A("s_branch L_cons")

    def decode2(keep=False):
        d = g.lab("L_d2"); m = g.lab("L_d2m")
        if STAMP:
            for i in range(1, NST):
                if not (opt.fine == 2 and keep and i in (5, 6, 7)): A(f"s_mov_b32 s{sST+2*i}, 0")
        A(f"s_mul_i32 s{sBETA}, s{sXCD}, 14")
        A(f"s_add_u32 s{sBETA}, s{sBETA}, s{sR}")
        A(f"s_mov_b32 s{sPROG}, 0")
        A(f"s_cmp_ge_u32 s{sR}, 16")
        A(f"s_cbranch_scc1 {m}")
        A(f"s_cmp_ge_u32 s{sR}, 14")
        A(f"s_cselect_b32 s{sROLE}, 2, 1")
        A(f"s_lshr_b32 s{sTMP}, s{sU}, 3")
        A(f"s_lshl1_add_u32 s{sRBK}, s{sXCD}, s{sTMP}")
        A(f"s_add_u32 s{sTMP}, s{sU}, 3")
        A(f"s_and_b32 s{sTMP}, s{sTMP}, 3")
        A(f"s_and_b32 s{sCB}, s{sU}, 4")
        A(f"s_or_b32 s{sCB}, s{sCB}, s{sTMP}")
        A(f"s_lshl_b32 s{sKB0}, s{sRBK}, 3")
        A(f"s_add_u32 s{sLR}, s{sR}, s{sXCD}")
        A(f"s_and_b32 s{sLR}, s{sLR}, {7 if opt.lrot & 1 else 0}")
        A(f"s_branch {d}")
        A(f"{m}:")
        A(f"s_mov_b32 s{sROLE}, 0")
        A(f"s_and_b32 s{sTMP}, s{sXCD}, 1")
        A(f"s_bfe_u32 s{sBB}, s{sR}, 0x20002")
        A(f"s_lshl2_add_u32 s{sBB}, s{sTMP}, s{sBB}")
        A(f"s_and_b32 s{sSPL}, s{sR}, 3")
        A(f"s_bfe_u32 s{sTMP}, s{sR}, 0x10003")
        A(f"s_lshl1_add_u32 s{sRBK}, s{sXCD}, s{sTMP}")
        A(f"s_mul_i32 s{sKB0}, s{sRBK}, 7")
        A(f"s_and_b32 s{sLR}, s{sR}, {7 if opt.lrot & 2 else 0}")
        A(f"s_cmp_eq_u32 s{sLR}, 7")
        A(f"s_cselect_b32 s{sLR}, 3, s{sLR}")
        A(f"s_add_u32 s{sCB}, s{sR}, 1")
        A(f"s_and_b32 s{sCB}, s{sCB}, 7")
        A(f"{d}:")

    A("L_loader2:")
    decode2(True)
    if opt.stlb:
        A("s_cmp_eq_u32 s3, 0")
        A("s_cbranch_scc1 L_loader3")
        A(f"v_mov_b32 v9, {FL}")
        if STAMP:
            for i in (5, 6, 7): A(f"s_mov_b32 s{sST+2*i}, 0")
        A("s_waitcnt lgkmcnt(0)")
        if opt.stlb & 4:
            A(f"s_lshl_b32 s{sTMP}, s2, 6")
            A(f"s_load_dword s8, s[{sX}:{sX+1}], s{sTMP}")
            A(f"s_lshl_b32 s{sTMP}, s{sR}, 6")
            A(f"s_load_dword s9, s[{sGW}:{sGW+1}], s{sTMP}")
        A(f"s_lshl_b32 s{sTMP}, s{sKB0}, 16")
        A(f"s_lshl_b32 s{sTMP2}, s{sCB}, 8")
        A(f"s_add_u32 s{sTMP}, s{sTMP}, s{sTMP2}")
        A(f"s_cmp_ge_u32 s{sR}, 16")
        A("s_cbranch_scc1 L_stM")
        A(f"s_load_dword s4, s[{sWO}:{sWO+1}], s{sTMP}")
        if opt.stlb & 2:
            A(f"s_cmp_eq_u32 s{sROLE}, 2")
            A("s_cbranch_scc1 L_stD")
            A(f"s_bitcmp0_b32 s{sBETA}, 1")
            A(f"s_cselect_b64 s[12:13], s[{sWG}:{sWG+1}], s[{sWU}:{sWU+1}]")
            A(f"s_and_b32 s{sTMP}, s{sBETA}, 1")
            A(f"s_mul_i32 s{sTMP}, s{sTMP}, {512*7168}")
            A(f"s_lshr_b32 s{sTMP2}, s{sBETA}, 2")
            A(f"s_lshl_b32 s{sTMP2}, s{sTMP2}, 8")
            A(f"s_add_u32 s{sTMP}, s{sTMP}, s{sTMP2}")
            for i in range(3):
                A(f"s_load_dword s{5+i}, s[12:13], s{sTMP}")
                A(f"s_add_u32 s{sTMP}, s{sTMP}, {255*7168}")
        A("s_branch L_stD")
        A("L_stM:")
        A(f"s_load_dword s4, s[{sWD}:{sWD+1}], s{sTMP}")
        A(f"s_lshl2_add_u32 s{sTMP}, s{sBB}, s{sG}")
        A(f"s_lshl4_add_u32 s{sTMP}, s{sTMP}, s{sSPL}")
        A(f"s_add_u32 s{sTMP}, s{sTMP}, 12")
        A(f"s_lshl_b32 s{sTMP}, s{sTMP}, 16")
        if opt.stlb & 2: A(f"s_load_dword s7, s[{sK}:{sK+1}], s{sTMP}")
        A(f"s_load_dword s5, s[{sV}:{sV+1}], s{sTMP}")
        A(f"s_lshl_b32 s{sTMP}, s{sR}, 9")
        A(f"s_lshl_b32 s{sTMP2}, s{sXCD}, 6")
        A(f"s_add_u32 s{sTMP}, s{sTMP}, s{sTMP2}")
        A(f"s_load_dword s6, s[{sOUT}:{sOUT+1}], s{sTMP} glc")
        A("L_stD:")
        pass
        A("s_barrier")
        A("s_waitcnt lgkmcnt(0)")
        A("s_branch L_notif")
        A("L_loader3:")
    stamp(1)
    def lds_wait_ge(off, val, vtmp="v11", vaddr="v9", sleep=0):
        l = g.lab("L_w")
        A(f"{l}:")
        if sleep: A(f"s_sleep {sleep}")
        A(f"ds_read_b32 {vtmp}, {vaddr} offset:{off}")
        A("s_waitcnt lgkmcnt(0)")
        A(f"v_readfirstlane_b32 s{sTMP}, {vtmp}")
        A(f"s_cmp_ge_u32 s{sTMP}, {val}")
        A(f"s_cbranch_scc0 {l}")
    def wmax(w): return max(w) if isinstance(w, tuple) else w
    def blk_loop(nblk, win, rot):
        l = g.lab("L_ld")
        if nblk > 1:
            A(f"s_mov_b32 s{sNB}, {nblk}")
            A(f"{l}:")
        if isinstance(win, tuple):
            hi = g.lab("L_hi"); j = g.lab("L_jn")
            A(f"s_memrealtime s[{sNOW}:{sNOW+1}]")
            A(f"s_mul_i32 s{sTMP2}, s{sBLK}, {opt.period}")
            A(f"s_add_u32 s{sTMP2}, s{sTMP2}, {opt.toff}")
            A("s_waitcnt lgkmcnt(0)")
            A(f"s_sub_u32 s{sTMP}, s{sNOW}, s{sDL}")
            A(f"s_cmp_gt_u32 s{sTMP}, s{sTMP2}")
            A(f"s_cbranch_scc1 {hi}")
            for k in range(3, win[0]//8, -1):
                A(f"s_sub_u32 s{sTMP}, s{sBLK}, {k}")
                A(f"s_max_i32 s{sPROG}, s{sTMP}, s{sPROG}")
                A(f"v_mov_b32 v10, s{sPROG}")
                A(f"s_waitcnt vmcnt({8*k})")
                A(f"ds_write_b32 v9, v10 offset:{F_PROG}")
            blk_body(win[0], False)
            A(f"s_branch {j}")
            A(f"{hi}:")
            blk_body(win[1], False)
            A(f"{j}:")
            assert not rot
        else:
            blk_body(win, rot)
        A(f"s_add_u32 s{sBLK}, s{sBLK}, 1")
        if nblk > 1:
            A(f"s_sub_u32 s{sNB}, s{sNB}, 1")
            A(f"s_cmp_lg_u32 s{sNB}, 0")
            A(f"s_cbranch_scc1 {l}")
    def drain(maxwin, kmin=0):
        for k in range((maxwin + 4 + 7)//8 - 1, kmin - 1, -1):
            A(f"s_sub_u32 s{sTMP}, s{sBLK}, {k}")
            A(f"s_max_i32 s{sPROG}, s{sTMP}, s{sPROG}")
            A(f"v_mov_b32 v10, s{sPROG}")
            A(f"s_waitcnt vmcnt({8*k})")
            A(f"ds_write_b32 v9, v10 offset:{F_PROG}")
    def set_stride(stride):
        A(f"s_mov_b32 s{sSTEP}, {4*stride}")
        if stride & (stride-1) == 0:
            sh = stride.bit_length()-1
            A(f"v_lshl_add_u32 v5, v2, {sh}, v3")
            A(f"v_lshl_add_u32 v6, v2, {sh}, v4")
        else:
            A(f"v_mul_u32_u24 v8, {stride}, v2")
            A("v_add_u32 v5, v8, v3")
            A("v_add_u32 v6, v8, v4")
        A(f"s_mov_b32 s{sWRAP}, {256*stride}")
    XSRD = 68
    def xloads(n, ldsbase):
        for j in range(4):
            A(f"s_add_u32 s{sTMP}, s{sROT}, {2*j}")
            A(f"s_and_b32 s{sTMP}, s{sTMP}, 7")
            A(f"s_lshl_b32 s{sTMP}, s{sTMP}, 6")
            A(f"s_add_u32 s{sTMP}, s{sTMP}, s{sTMP3}")
            for q in range(n//4):
                A(f"s_mov_b32 m0, {ldsbase + 4096*q + 1024*j - 512*q}")
                A("s_nop 0")
                A(f"buffer_load_dwordx4 v7, s[{XSRD}:{XSRD+3}], s{sTMP} offen offset:{512*q} lds")
    def run_plan(pl, segs, start, hook=None):
        blk = 0; lastwin = 0
        segmap = {x[0]: x for x in segs}
        rot = False
        items = []
        for it in pl:
            if it == "d": items.append(it); continue
            n, w = it
            while n:
                c = min(n, 4 - blk if blk < 4 else 8 - ((blk - 4) % 8))
                if blk < start: c = min(c, start - blk)
                if hook and blk < hook[0]: c = min(c, hook[0] - blk)
                if blk >= start: items.append((blk, c, w))
                blk += c; n -= c
            lastw = w
        lastwin = pl[0][1]
        for it in items:
            if it == "d":
                drain(max(wmax(lastwin), 8*start)); continue
            b0, c, w = it
            if b0 >= 4 and (b0 - 4) % 8 == 0:
                seg = (b0 - 4) // 8 + 1
                stamp(1 + seg)
                if seg >= 2: lds_wait_ge(F_FREE0 + 4*(seg-2), 8)
                if b0 in segmap:
                    segmap[b0][1](); rot = segmap[b0][2]
                elif rot:
                    A(f"s_add_u32 s{sSOFF}, s{sSOFF}, s{sWRAP}")
                A(f"s_mov_b32 m0, {RA if seg % 2 == 1 else RB}")
            if hook and b0 == hook[0]: hook[1]()
            blk_loop(c, w, rot)
            lastwin = w
        stamp(8)
        if opt.fgate:
            A(f"s_mul_i32 s{sTMP}, s{sCB}, {16*CS}")
            A(f"s_add_u32 s{sTMP}, s{sTMP}, {WS_FC}")
            A(f"s_add_u32 s4, s{sWS}, s{sTMP}")
            A(f"s_addc_u32 s5, s{sWS+1}, 0")
            A(f"v_mul_u32_u24 v5, {CS}, v0")
            A("v_mov_b32 v6, 1")
        drain(max(wmax(x[1]) for x in pl if x != "d"), 1 if opt.fearly else 0)
        if not opt.fearly: stamp(9)
        A("s_branch L_ld_end")
    def late_seg(ptr, nbytes):
        def f():
            set_stride(2048)
            A(f"s_mov_b64 s[{SRD}:{SRD+1}], s[{ptr}:{ptr+1}]\ns_mov_b32 s{SRD+2}, {nbytes}")
            A(f"s_mov_b32 s{sIDX}, s{sLR}")
            A(f"s_add_u32 s{sSOFF}, s{sKB0}, s{sLR}")
            A(f"s_lshl_b32 s{sSOFF}, s{sSOFF}, 16")
            A(f"s_lshl_b32 s{sTMP}, s{sCB}, 8")
            A(f"s_add_u32 s{sSOFF}, s{sSOFF}, s{sTMP}")
        return f
    A("v_and_b32 v7, 7, v0")
    A("v_lshlrev_b32 v7, 11, v7")
    A("v_lshrrev_b32 v8, 3, v0")
    A("v_lshl_add_u32 v7, v8, 4, v7")
    A(f"s_mov_b64 s[{XSRD}:{XSRD+1}], s[{sX}:{sX+1}]\ns_mov_b32 s{XSRD+2}, 16384\ns_mov_b32 s{XSRD+3}, 0x20000")
    A(f"s_lshl_b32 s{sTMP3}, s{sKS}, 8")
    A(f"s_mov_b32 m0, {XF}")
    A("s_nop 0")
    A(f"buffer_load_dwordx4 v7, s[{XSRD}:{XSRD+3}], s{sTMP3} offen lds")
    A(f"s_mov_b32 m0, {XF + 1024 - 128}")
    A("s_nop 0")
    A(f"buffer_load_dwordx4 v7, s[{XSRD}:{XSRD+3}], s{sTMP3} offen offset:128 lds")
    A(f"s_mov_b32 m0, {RQ + 8192*NB0}")
    A(f"s_cmp_ge_u32 s{sR}, 16")
    A("s_cbranch_scc1 L_ld_M")
    def b_seg1():
        A(f"s_and_b32 s{sROT}, s{sROT}, 6")
        A(f"s_mov_b32 s{sIDX}, s{sROT}")
        A(f"s_and_b32 s{sTMP2}, s{sBETA}, 1")
        set_stride(7168)
        A(f"s_mul_i32 s{sSOFF}, s{sTMP2}, {512*7168}")
        A(f"s_lshr_b32 s{sTMP}, s{sBETA}, 2")
        A(f"s_lshl_b32 s{sTMP}, s{sTMP}, 8")
        A(f"s_add_u32 s{sSOFF}, s{sSOFF}, s{sTMP}")
        A(f"s_mul_i32 s{sTMP}, s{sROT}, {32*7168}")
        A(f"s_add_u32 s{sSOFF}, s{sSOFF}, s{sTMP}")
        A(f"s_bitcmp0_b32 s{sBETA}, 1")
        A(f"s_cselect_b64 s[{SRD}:{SRD+1}], s[{sWG}:{sWG+1}], s[{sWU}:{sWU+1}]")
        A(f"s_mov_b32 s{SRD+2}, {1024*3584*2}")
    A(f"s_cmp_eq_u32 s{sROLE}, 2")
    A("s_cbranch_scc1 L_ld_C")
    assert sum(x[0] for x in pb if x != "d") == 28
    XGAT = opt.xgat
    def xg_hook():
        A(f"s_and_b32 s{sTMP3}, s{sBETA}, 1")
        A(f"s_lshl_b32 s{sTMP3}, s{sTMP3}, 10")
        xloads(8, XF + 2048)
        A(f"s_mov_b32 m0, {RA + 8192*(XGAT-4)}")
    run_plan(pb, [(4, b_seg1, True), (20, late_seg(sWO, 4096*1024*2), True)], NB0, hook=(XGAT, xg_hook))
    A("L_ld_C:")
    assert sum(x[0] for x in pc if x != "d") == 12 and pc[1] == "d" and pc[0][0] == 4
    def c_seg1():
        late_seg(sWO, 4096*1024*2)()
        A(f"s_mov_b32 s{sBLK}, 20")
    run_plan(pc, [(4, c_seg1, True)], NB0)
    A("L_ld_M:")
    def m_seg1():
        set_stride(256)
        A(f"s_mul_i32 s{sROT}, s{sROT}, {opt.kvrot*1024}")
        A(f"s_mov_b32 s{sIDX}, s{sROT}")
        A(f"s_lshl2_add_u32 s{sTMP}, s{sBB}, s{sG}")
        A(f"s_lshl4_add_u32 s{sTMP}, s{sTMP}, s{sSPL}")
        A(f"s_add_u32 s{sTMP}, s{sTMP}, 12")
        A(f"s_pack_ll_b32_b16 s{sSOFF}, s{sIDX}, s{sTMP}")
        A(f"s_mov_b64 s[{SRD}:{SRD+1}], s[{sK}:{sK+1}]\ns_mov_b32 s{SRD+2}, {8*4*4096*128*2}")
    def m_seg2():
        A(f"s_mov_b64 s[{SRD}:{SRD+1}], s[{sV}:{sV+1}]")
        A(f"s_mov_b32 s{sIDX}, s{sROT}")
        A(f"s_pack_lh_b32_b16 s{sSOFF}, s{sIDX}, s{sSOFF}")
    assert sum(x[0] for x in pm if x != "d") == 27
    run_plan(pm, [(4, m_seg1, "kv"), (12, m_seg2, "kv"), (20, late_seg(sWD, 3584*1024*2), 7)], NB0)
    A("L_ld_end:")
    if opt.nocomm: A("s_branch L_exit")
    def fbump():
        if opt.flag_delay: A(f"s_sleep {opt.flag_delay}")
        if opt.fsat:
            A("s_mov_b32 s6, 1")
            for r in range(opt.frep): A(f"s_atomic_add s6, s[4:5], {CS*r}")
        else:
            A(f"s_bfm_b64 exec, {opt.frep}, 0")
            A("global_atomic_add v5, v6, s[4:5] sc1")
            A("s_mov_b64 exec, -1")
    if opt.fearly:
        A(f"ds_read_b32 v11, v9 offset:{F_BA}")
        A(f"v_mov_b32 v10, s{sBLK}")
        A(f"s_waitcnt vmcnt({opt.fearly}) lgkmcnt(0)")
        A(f"v_readfirstlane_b32 s{sTMP}, v11")
        A(f"s_cmp_lt_u32 s{sTMP}, 8")
        A("s_cbranch_scc1 L_ld_late")
        A("s_mov_b32 s6, 1")
        for r in range(opt.frep): A(f"s_atomic_add s6, s[4:5], {CS*r}")
        A("s_waitcnt vmcnt(0)")
        A(f"ds_write_b32 v9, v10 offset:{F_PROG}")
        A("s_barrier")
        stamp(9)
        A("s_branch L_ld_fin")
        A("L_ld_late:")
        A("s_waitcnt vmcnt(0)")
        A(f"ds_write_b32 v9, v10 offset:{F_PROG}")
        stamp(9)
    if opt.fgate == 2 and not (opt.dbg & 1):
        lds_wait_ge(F_BA, opt.gok)
        fbump()
    A("s_barrier")
    if opt.fgate == 1 and not (opt.dbg & 1): fbump()
    A("L_ld_fin:")
    if opt.fgate and opt.fbar:
        A(f"s_cmp_lt_u32 s{sR}, 16")
        A("s_cbranch_scc1 L_exit")
        A("s_barrier")
    A("s_branch L_exit")

    A("L_cons:")
    vL16, vTR, vACT, vT, vPUB = 1, 2, 3, 4, 5
    vTMP, vTMP2, vTMP3 = 6, 7, 8
    vWA, vAA = 10, 11
    vW, vB, vACC, vACC2 = 12, 16, 20, 24
    vGA = 28
    vLS = 44
    vK = 52
    vQ = 84
    vRG, vRW, vRR, vOUT, vONE, vAFW, vFLG = 116, 117, 118, 119, 120, 121, 122
    vTP, vTC, vL8 = 123, 124, 125
    vSTW, vSTR = 126, 15
    vTA, vAX, vEN = 48, 49, 50
    NV = 128
    A("s_waitcnt lgkmcnt(0)")
    A(f"s_load_dword s{sT}, s[{sWS}:{sWS+1}], 0")
    decode2()
    stamp(1)
    A(f"v_mov_b32 v9, {FL}")
    if opt.notif:
        A(f"s_cmp_eq_u32 s3, 10")
        A("s_cbranch_scc1 L_notif")
    A(f"s_sub_u32 s{sC}, s3, 1")
    sSC, sM3, sMN, sEM, sRNG = 58, 60, 61, 56, 57
    A(f"s_mov_b32 s{sM3}, 0x00030003")
    A(f"s_mov_b32 s{sMN}, 0xfffcfffc")
    A(f"s_mov_b32 s{sRNG}, {27 << 23:#x}")
    A(f"v_mov_b32 v{vAX}, 0")
    A(f"v_lshlrev_b32 v{vL8}, 3, v0")
    A(f"v_mov_b32 v9, {FL}")
    A(f"v_mov_b32 v{vONE}, 1")
    A(f"v_lshlrev_b32 v{vL16}, 4, v0")
    A(f"v_mul_u32_u24 v{vFLG}, {CS}, v0")
    A(f"v_lshrrev_b32 v{vTMP2}, 4, v0")
    A(f"v_bfe_u32 v{vTMP3}, v0, 2, 2")
    A(f"v_lshl_add_u32 v{vTR}, v{vTMP2}, 3, v{vTMP3}")
    A(f"v_lshlrev_b32 v{vTR}, 8, v{vTR}")
    A(f"v_and_b32 v{vACT}, 1, v{vTMP2}")
    A(f"v_lshl_or_b32 v{vTMP3}, v{vACT}, 2, v{vTMP3}")
    A(f"v_xor_b32 v{vTMP3}, s{sC}, v{vTMP3}")
    A(f"v_lshl_or_b32 v{vTR}, v{vTMP3}, 5, v{vTR}")
    A(f"v_and_b32 v{vTMP3}, 3, v0")
    A(f"v_lshl_or_b32 v{vTR}, v{vTMP3}, 3, v{vTR}")
    A(f"v_and_b32 v{vTMP3}, 7, v0")
    A(f"v_lshl_add_u32 v{vACT}, v{vTMP2}, 3, v{vTMP3}")
    A(f"v_lshlrev_b32 v{vACT}, 4, v{vACT}")
    A(f"v_lshrrev_b32 v{vAFW}, 5, v0")
    A(f"v_lshlrev_b32 v{vAFW}, 8, v{vAFW}")
    A(f"v_and_b32 v{vTMP2}, 2, v0")
    A(f"v_lshl_or_b32 v{vAFW}, v{vTMP2}, 6, v{vAFW}")
    A(f"v_and_b32 v{vTMP2}, 28, v0")
    A(f"v_lshl_or_b32 v{vAFW}, v{vTMP2}, 2, v{vAFW}")
    A(f"v_and_b32 v{vTMP2}, 1, v0")
    A(f"v_lshl_or_b32 v{vAFW}, v{vTMP2}, 3, v{vAFW}")
    A(f"s_lshl_b32 s{sTMP}, s{sC}, 9")
    A(f"s_add_u32 s{sTMP}, s{sTMP}, {AF}")
    A(f"v_add_u32 v{vAFW}, s{sTMP}, v{vAFW}")
    def afswz(v):
        A(f"v_lshrrev_b32 v{vTMP2}, 3, v{v}")
        A(f"v_and_b32 v{vTMP2}, 0x70, v{vTMP2}")
        A(f"v_xor_b32 v{v}, v{v}, v{vTMP2}")
    afswz(vAFW)
    A("s_waitcnt lgkmcnt(0)")
    A(f"s_add_u32 s{sT}, s{sT}, 0x11111111")
    A(f"s_mov_b32 s{sT+1}, s{sT}")
    A(f"v_mov_b32 v{vT}, s{sT}")
    def tagbits(dst, vsh):
        A(f"v_lshrrev_b32 v{dst}, v{vsh}, v{vT}")
        A(f"v_and_b32 v{dst}, 15, v{dst}")
        A(f"v_lshl_or_b32 v{dst}, v{dst}, 14, v{dst}")
        A(f"v_and_b32 v{dst}, s{sM3}, v{dst}")
    A(f"v_and_b32 v{vTMP}, 7, v0")
    A(f"v_lshlrev_b32 v{vTMP}, 2, v{vTMP}")
    tagbits(vTC, vTMP)
    A(f"v_lshrrev_b32 v{vTMP}, 2, v0")
    A(f"v_and_b32 v{vTMP}, 12, v{vTMP}")
    A(f"v_and_b32 v{vTMP2}, 1, v0")
    A(f"v_lshl_or_b32 v{vTMP}, v{vTMP2}, 4, v{vTMP}")
    tagbits(vTP, vTMP)

    def refresh_prog():
        A(f"ds_read_b32 v{vTMP}, v9 offset:{F_PROG}")
        A("s_waitcnt lgkmcnt(0)")
        A(f"v_readfirstlane_b32 s{sPROG}, v{vTMP}")
    def wait_prog(val_is_sgpr, val, sleep=0):
        l = g.lab("L_wp"); d = g.lab("L_wpd")
        v = f"s{val}" if val_is_sgpr else str(val)
        A(f"s_cmp_ge_u32 s{sPROG}, {v}")
        A(f"s_cbranch_scc1 {d}")
        A(f"{l}:")
        if sleep: A(f"s_sleep {sleep}")
        refresh_prog()
        A(f"s_cmp_ge_u32 s{sPROG}, {v}")
        A(f"s_cbranch_scc0 {l}")
        A(f"{d}:")
    def signal(off):
        A("s_mov_b64 exec, 1")
        A(f"ds_add_u32 v9, v{vONE} offset:{off}")
        A("s_mov_b64 exec, -1")
    def cwait(off, val, sleep=0):
        lds_wait_ge(off, val, vtmp=f"v{vTMP}", sleep=sleep)
    def cwait_rd(off, val, nrd, reads):
        l = g.lab("L_cw")
        A(f"{l}:")
        A(f"ds_read_b32 v{vTMP}, v9 offset:{off}")
        reads()
        A(f"s_waitcnt lgkmcnt({nrd})")
        A(f"v_readfirstlane_b32 s{sTMP}, v{vTMP}")
        A(f"s_cmp_ge_u32 s{sTMP}, {val}")
        A(f"s_cbranch_scc0 {l}")
    def fbits(x): return struct.unpack("<I", struct.pack("<f", x))[0]
    ADJ = 1.0
    LQ, LO_, LG, LF = [x + opt.sbias for x in (8, 12, 10, 20)]
    def setscale(lg):
        A(f"s_mov_b32 s{sSC}, {fbits(2.0**lg):#x}")
    def encode(sc=None, tp=vTP, ta=vTA):
        src = vACC
        d = g.lab("L_en")
        scs = f"s[{sSC}:{sSC+1}]" if sc is None else f"v[{sc}:{sc+1}]"
        A(f"v_pk_mul_f32 v[{src}:{src+1}], v[{src}:{src+1}], {scs} op_sel_hi:[1,0]")
        A(f"v_pk_mul_f32 v[{src+2}:{src+3}], v[{src+2}:{src+3}], {scs} op_sel_hi:[1,0]")
        A(f"v_max3_f32 v{vTMP}, |v{src}|, |v{src+1}|, |v{src+2}|")
        A(f"v_max_f32 v{vTMP}, |v{src+3}|, v{vTMP}")
        A(f"v_subrev_u32 v{vTMP2}, {115 << 23:#x}, v{vTMP}")
        A(f"v_cmp_le_u32 vcc, s{sRNG}, v{vTMP2}")
        r = g.lab("L_er")
        A(f"{r}:")
        A(f"v_cvt_pkrtz_f16_f32 v{vEN}, v{src}, v{src+1}")
        A(f"v_cvt_pkrtz_f16_f32 v{vEN+1}, v{src+2}, v{src+3}")
        A(f"v_add_u32 v{vEN}, 0x00020002, v{vEN}")
        A(f"v_add_u32 v{vEN+1}, 0x00020002, v{vEN+1}")
        A(f"v_and_or_b32 v{vEN}, v{vEN}, s{sMN}, v{vAX}")
        A(f"v_and_or_b32 v{vEN+1}, v{vEN+1}, s{sMN}, v{tp}")
        A(f"s_cbranch_vccz {d}")
        A(f"s_call_b64 s[6:7], L_encs")
        A(f"s_branch {r}")
        A(f"{d}:")
    def publish(src, base=sGA, sc=None):
        encode(sc)
        A("s_mov_b32 exec_lo, 0x00ff00ff\ns_mov_b32 exec_hi, 0x00ff00ff")
        if not (opt.dbg & 33): A(f"global_store_dwordx2 v{vPUB}, v[{vEN}:{vEN+1}], s[{base}:{base+1}] sc1")
    NREP = opt.nrep; HREP = max(1, NREP // 4)
    sNH = 9
    def bump(kind):
        if opt.dbg & 33: return
        if opt.satom:
            A(f"s_mov_b32 s8, 1")
            if kind == "h":
                e = g.lab("L_bh")
                for r in range(HREP): A(f"s_atomic_add s8, s[{sGB}:{sGB+1}], {CS*r}")
                A(f"s_cmp_eq_u32 s{sNH}, {HREP}")
                A(f"s_cbranch_scc1 {e}")
                for r in range(HREP, 2*HREP): A(f"s_atomic_add s8, s[{sGB}:{sGB+1}], {CS*r}")
                A(f"{e}:")
            else:
                for r in range(NREP): A(f"s_atomic_add s8, s[{sGB}:{sGB+1}], {CS*r}")
        else:
            if kind == "h": A(f"s_bfm_b64 exec, s{sNH}, 0")
            else: A(f"s_bfm_b64 exec, {NREP}, 0")
            A(f"global_atomic_add v{vFLG}, v{vONE}, s[{sGB}:{sGB+1}] sc1")
    def flag(cnt, nrep, last=7):
        d = g.lab("L_fl")
        A("s_mov_b64 exec, 1")
        A(f"ds_add_rtn_u32 v{vTMP}, v9, v{vONE} offset:{cnt}")
        A("s_waitcnt lgkmcnt(0)")
        A(f"v_readfirstlane_b32 s{sTMP}, v{vTMP}")
        A(f"s_cmp_lg_u32 s{sTMP}, {last}")
        A(f"s_cbranch_scc1 {d}")
        bump(nrep)
        A(f"{d}:")
        A("s_mov_b64 exec, -1")
    def staged(cnt, last, hi_off, kind):
        d = g.lab("L_sg")
        A(f"ds_write_b64 v{vSTW}, v[{vEN}:{vEN+1}]")
        A("s_mov_b64 exec, 1")
        A(f"ds_add_rtn_u32 v{vTMP}, v9, v{vONE} offset:{cnt}")
        A("s_mov_b64 exec, -1")
        A(f"ds_read_b128 v[{vGA}:{vGA+3}], v{vSTR}")
        A(f"ds_read_b128 v[{vGA+4}:{vGA+7}], v{vSTR} offset:1024")
        A(f"v_add_u32 v{vTMP2}, {hi_off}, v{vPUB}")
        A("s_waitcnt lgkmcnt(2)")
        A(f"v_readfirstlane_b32 s{sTMP}, v{vTMP}")
        A(f"s_cmp_lg_u32 s{sTMP}, {last}")
        A(f"s_cbranch_scc1 {d}")
        A("s_waitcnt lgkmcnt(0)")
        if not (opt.dbg & 1):
            A(f"global_store_dwordx4 v{vPUB}, v[{vGA}:{vGA+3}], s[{sGA}:{sGA+1}] sc1")
            A(f"global_store_dwordx4 v{vTMP2}, v[{vGA+4}:{vGA+7}], s[{sGA}:{sGA+1}] sc1")
        if kind: bump(kind)
        A("s_mov_b64 exec, -1")
        A("s_nop 0")
        A(f"{d}:")
        A("s_waitcnt lgkmcnt(0)")
    def flag_now(nrep):
        d = g.lab("L_fn")
        A(f"s_cmp_lg_u32 s{sC}, {opt.flagwave}")
        A(f"s_cbranch_scc1 {d}")
        bump(nrep)
        A("s_mov_b64 exec, -1")
        A(f"{d}:")
    def ws_addr(dst, base_const, soff):
        A(f"s_add_u32 s{soff}, s{soff}, {base_const}")
        A(f"s_add_u32 s{dst}, s{sWS}, s{soff}")
        A(f"s_addc_u32 s{dst+1}, s{sWS+1}, 0")
    def pub_voff(shift):
        A(f"v_and_b32 v{vTMP2}, 15, v0")
        A(f"v_lshrrev_b32 v{vTMP3}, 4, v0")
        A(f"v_lshlrev_b32 v{vTMP3}, 3, v{vTMP3}")
        A(f"v_lshl_or_b32 v{vPUB}, v{vTMP2}, {shift}, v{vTMP3}")
    def sample(base, offs, sleep=0, cntstamp=None):
        l = g.lab("L_sm"); d = g.lab("L_smd"); e = g.lab("L_sme")
        if opt.dbg & 7: return
        A(f"s_mov_b32 s{sCNT}, 0")
        if sleep: A(f"s_branch {e}")
        A(f"{l}:")
        if sleep:
            A(f"s_sleep {sleep}")
            A(f"{e}:")
        for i, o in enumerate(offs):
            A(f"s_load_dword s{sSM+i}, s[{base}:{base+1}], {o} glc")
        A(f"s_add_u32 s{sCNT}, s{sCNT}, 1")
        A(f"s_cmp_gt_u32 s{sCNT}, {opt.maxpoll}")
        A("s_waitcnt lgkmcnt(0)")
        A(f"s_cbranch_scc1 {d}")
        for i in range(len(offs)):
            A(f"s_xor_b32 s{sSM+i}, s{sSM+i}, s{sT}")
            if i: A(f"s_or_b32 s{sSM}, s{sSM}, s{sSM+i}")
        A(f"s_and_b32 s{sSM}, s{sSM}, 0xff")
        A(f"s_cbranch_scc1 {l}")
        A(f"{d}:")
        if cntstamp is not None: stampval(cntstamp, sCNT)
    def pollcnt(base, target, sleep, cntstamp=None):
        l = g.lab("L_pf"); d = g.lab("L_pfd"); e = g.lab("L_pfe")
        if opt.dbg & 7: return
        A(f"s_mov_b32 s{sCNT}, 0")
        if sleep: A(f"s_branch {e}")
        A(f"{l}:")
        if sleep:
            A(f"s_sleep {sleep}")
            A(f"{e}:")
        A(f"s_load_dword s8, s[{base}:{base+1}], 0 glc")
        A(f"s_add_u32 s{sCNT}, s{sCNT}, 1")
        A(f"s_cmp_gt_u32 s{sCNT}, {opt.maxhint}")
        A("s_waitcnt lgkmcnt(0)")
        A(f"s_cbranch_scc1 {d}")
        A(f"s_cmp_eq_u32 s8, s{target}")
        A(f"s_cbranch_scc0 {l}")
        A(f"{d}:")
        if cntstamp is not None: stampval(cntstamp, sCNT)
    def gather(nld=4, mid=None, cntstamp=None, sleep=0, work=None, kind='M', defer=False):
        l = g.lab("L_ga"); d = g.lab("L_gad"); c = g.lab("L_gac"); rt = g.lab("L_gar")
        assert nld in (1, 4)
        def issue():
            if opt.dbg & 2: return
            if opt.gprio: A(f"s_setprio {opt.gprio}")
            for i in range(nld):
                A(f"global_load_dwordx2 v[{vGA+2*i}:{vGA+2*i+1}], v{vL8}, s[{sGA}:{sGA+1}] offset:{512*i} sc1")
        if mid is not None or sleep:
            issue()
            if mid is not None: mid()
            A(f"s_mov_b32 s{sEM}, s{sM3}")
            A(f"s_mov_b32 s{sCNT}, 0")
            A(f"s_branch {c}")
            pad(kind)
        else:
            A(f"s_mov_b32 s{sEM}, s{sM3}")
            A(f"s_mov_b32 s{sCNT}, 0")
        A(f"{l}:")
        if sleep: A(f"s_sleep {sleep}")
        issue()
        A(f"{c}:")
        A(f"s_add_u32 s{sCNT}, s{sCNT}, 1")
        vC, vC0 = vTMP2, vTMP
        for i in range(nld):
            A(f"s_waitcnt vmcnt({nld-1-i})")
            A(f"v_xor_b32 v{vGA+2*i+1}, v{vTC}, v{vGA+2*i+1}")
            if i == 2:
                A(f"v_or3_b32 v{vC0}, v{vGA}, v{vGA+2}, v{vGA+4}")
                A(f"v_or3_b32 v{vC}, v{vGA+1}, v{vGA+3}, v{vGA+5}")
            if i == nld-1:
                if nld == 4:
                    A(f"v_or_b32 v{vC0}, v{vC0}, v{vGA+6}")
                    A(f"v_bitop3_b32 v{vC}, v{vC}, v{vGA+7}, s{sM3} bitop3:0xa8")
                else:
                    A(f"v_and_b32 v{vC}, s{sM3}, v{vGA+1}")
                A(f"v_and_or_b32 v{vC0}, v{vC0 if nld == 4 else vGA}, s{sEM}, v{vC}")
                A(f"v_cmp_ne_u32 vcc, 0, v{vC0}")
            if work is not None and (i < nld-1 or opt.specw): work(i)
        A(f"s_cbranch_vccz {d}")
        A(f"v_cmp_ne_u32 vcc, 0, v{vC}")
        A(f"s_cbranch_vccnz {rt}")
        A(f"s_mov_b32 s{sEM}, 0")
        if defer: A(f"s_branch {d}")
        else:
            A("s_call_b64 s[6:7], L_fixr")
            A(f"s_branch {c}")
        A(f"{rt}:")
        A(f"s_cmp_le_u32 s{sCNT}, {0 if (opt.dbg & 6) else opt.maxpoll}")
        A(f"s_cbranch_scc1 {l}")
        A(f"{d}:")
        if cntstamp is not None: stampval(cntstamp, sCNT)
        if work is not None and not opt.specw: work(nld-1)
    vS0, vS1, vSCA = vGA + 12, vGA + 8, vLS
    def acc(i, dst, first):
        for r in range(4):
            c2 = "0" if first else f"v{dst+r}"
            A(f"v_fma_mix_f32 v{dst+r}, v{vGA+2*i+(r>>1)}, v{vSCA+i}, {c2} op_sel:[{r&1},0,0] op_sel_hi:[1,0,0]")
    def setsca(lg):
        for i in range(4): A(f"v_mov_b32 v{vSCA+i}, {fbits(2.0**-lg):#x}")
    def wreads(k0, k1):
        for kb in range(k0, k1):
            o = 8192*kb
            A(f"ds_read_b64_tr_b16 v[{vK+4*kb}:{vK+4*kb+1}], v{vWA} offset:{o}")
            A(f"ds_read_b64_tr_b16 v[{vK+4*kb+2}:{vK+4*kb+3}], v{vWA} offset:{o+1024}")
    def mf(kb, first):
        c = "0" if first else f"v[{vACC}:{vACC+3}]"
        A(f"v_mfma_f32_16x16x32_bf16 v[{vACC}:{vACC+3}], v[{vK+4*kb}:{vK+4*kb+3}], v[{vQ+4*kb}:{vQ+4*kb+3}], {c}")
    vAB = vW
    def actreads(n, swz=False):
        for kb in range(n):
            A(f"ds_read_b128 v[{vQ+4*kb}:{vQ+4*kb+3}], v{vAB if (swz and kb & 1) else vAA} offset:{512*kb}")
    sFA, sRA, sPE = 12, 10, 14
    def late_setup(wbase, padd, pend):
        A(f"v_add_u32 v{vWA}, {wbase}, v{vTR}")
        A(f"v_add_u32 v{vAA}, {AF}, v{vACT}")
        afswz(vAA)
        A(f"v_xor_b32 v{vAB}, 64, v{vAA}")
        A(f"v_and_b32 v{vTMP2}, 4, v0")
        A(f"v_lshlrev_b32 v{vPUB}, 10, v{vTMP2}")
        A(f"v_and_b32 v{vTMP2}, 3, v0")
        A(f"v_lshl_or_b32 v{vPUB}, v{vTMP2}, 5, v{vPUB}")
        A(f"v_lshrrev_b32 v{vTMP2}, 4, v0")
        A(f"v_lshl_or_b32 v{vPUB}, v{vTMP2}, 3, v{vPUB}")
        A(f"s_lshl3_add_u32 s{sTMP}, s{sCB}, s{sC}")
        A(f"s_lshl_b32 s{sTMP}, s{sTMP}, 6")
        A(f"s_add_u32 s{sTMP}, s{sTMP}, s{sRBK}")
        A(f"s_lshl_b32 s{sTMP}, s{sTMP}, 7")
        ws_addr(sFA, WS_FP + 128*padd, sTMP)
        A(f"s_mov_b32 s{sPE}, {pend}")
        setscale(LF)
        A(f"v_mov_b32 v{vAX}, 0")
        A(f"s_mov_b32 s{sWDN}, 21")
        A(f"s_add_u32 s{sTMP}, s{sKB0}, s{sC}")
        A(f"s_lshl_b32 s{sTMP}, s{sTMP}, 11")
    sRET = 6
    def wcatch():
        d = g.lab("L_wc")
        A(f"s_cmp_lt_u32 s{sPROG}, s{sWDN}")
        A(f"s_cbranch_scc1 {d}")
        A(f"s_call_b64 s[{sRET}:{sRET+1}], L_wcatch")
        A(f"{d}:")
    def late_wait():
        l = g.lab("L_lw"); d = g.lab("L_lwd")
        A(f"{l}:")
        A(f"ds_read_b64 v[{vTMP}:{vTMP+1}], v9 offset:{F_PROG}")
        A("s_waitcnt lgkmcnt(0)")
        A(f"v_readfirstlane_b32 s{sTMP}, v{vTMP+1}")
        A(f"v_readfirstlane_b32 s{sPROG}, v{vTMP}")
        A(f"s_cmp_lg_u32 s{sTMP}, 0")
        A(f"s_cbranch_scc1 {d}")
        wcatch()
        A(f"s_branch {l}")
        A(f"{d}:")
    def late_mid():
        A(f"s_add_u32 s{sTMP2}, s{sPROG}, {opt.midahead}")
        A(f"s_min_u32 s{sTMP2}, s{sTMP2}, s{sPE}")
        wcatch()
        wait_prog(True, sTMP2)
        wcatch()
    vPG = 126
    def late_post_issue():
        if opt.lflow == 1: A(f"ds_read_b32 v{vPG}, v9 offset:{F_PROG}")
    def late_post():
        if opt.fgate == 2: signal(F_BA)
        if opt.lflow != 1: return
        A("s_waitcnt lgkmcnt(0)")
        A(f"v_readfirstlane_b32 s{sPROG}, v{vPG}")
        wcatch()

    if opt.cprio: A(f"s_setprio {opt.cprio}")
    signal(F_ERD)
    A(f"s_cmp_eq_u32 s3, 9")
    A("s_cbranch_scc1 L_poller")
    if opt.nocomm:
        signal(F_FREE0); signal(F_FREE1)
        A("s_branch L_exit")
    def egloop(last, name, lead=None, nrep=0):
        A(f"L_eg_loop{name}:")
        A(f"ds_read_b128 v[{vB}:{vB+3}], v{vAA}")
        wait_prog(True, sCNT)
        A(f"ds_read_b64_tr_b16 v[{vW}:{vW+1}], v{vWA}")
        A(f"ds_read_b64_tr_b16 v[{vW+2}:{vW+3}], v{vWA} offset:1024")
        if lead is not None and lead >= 0:
            A(f"s_cmp_lg_u32 s{sCNT}, {last - lead}")
            A(f"s_cbranch_scc1 L_eg_nf{name}")
            flag_now(nrep)
            A(f"L_eg_nf{name}:")
        A(f"v_add_u32 v{vWA}, 8192, v{vWA}")
        A(f"v_add_u32 v{vAA}, 512, v{vAA}")
        A(f"s_add_u32 s{sCNT}, s{sCNT}, 1")
        A(f"s_cmp_le_u32 s{sCNT}, {last}")
        A("s_waitcnt lgkmcnt(0)")
        A(f"v_mfma_f32_16x16x32_bf16 v[{vACC}:{vACC+3}], v[{vW}:{vW+3}], v[{vB}:{vB+3}], v[{vACC}:{vACC+3}]")
        A(f"s_cbranch_scc1 L_eg_loop{name}")
    A(f"s_cmp_ge_u32 s{sC}, 4")
    A("s_cbranch_scc1 L_noq")
    A(f"v_and_b32 v{vTMP2}, 7, v0")
    A(f"v_lshlrev_b32 v{vSTW}, 8, v{vTMP2}")
    A(f"v_and_b32 v{vTMP2}, 8, v0")
    A(f"v_lshl_or_b32 v{vSTW}, v{vTMP2}, 2, v{vSTW}")
    A(f"v_lshrrev_b32 v{vTMP3}, 4, v0")
    A(f"v_lshl_or_b32 v{vSTW}, v{vTMP3}, 3, v{vSTW}")
    A(f"s_lshl_b32 s{sTMP}, s{sC}, 6")
    A(f"s_add_u32 s{sTMP}, s{sTMP}, {ST}")
    A(f"v_add_u32 v{vSTW}, s{sTMP}, v{vSTW}")
    A(f"v_add_u32 v{vSTR}, {ST}, v{vL16}")
    A(f"v_and_b32 v{vPUB}, 0xf0, v{vL16}")
    A(f"v_lshl_or_b32 v{vPUB}, v{vTMP3}, 16, v{vPUB}")
    A(f"v_lshlrev_b32 v{vTMP3}, 2, v{vTMP3}")
    A(f"v_lshl_or_b32 v{vTMP3}, v{vTMP2}, 1, v{vTMP3}")
    tagbits(vB, vTMP3)
    setscale(LQ)
    A(f"s_and_b32 s{sTMP3}, s{sU}, 7")
    A(f"s_lshl3_add_u32 s{sTMP}, s{sG}, s{sTMP3}")
    A(f"s_lshl3_add_u32 s{sTMP}, s{sTMP}, s{sKS}")
    A(f"s_lshl_b32 s{sTMP}, s{sTMP}, 8")
    ws_addr(sGA, WS_QP, sTMP)
    A(f"s_mul_i32 s{sTMP}, s{sG}, {32*CS}")
    ws_addr(sGB, WS_QC, sTMP)
    A(f"s_lshl_b32 s{sTMP}, s{sC}, 1")
    A(f"s_xor_b32 s{sTMP}, s{sTMP}, s{sC}")
    A(f"s_lshl_b32 s{sTMP}, s{sTMP}, 5")
    A(f"v_xor_b32 v{vWA}, s{sTMP}, v{vTR}")
    A(f"v_add_u32 v{vWA}, {RQ}, v{vWA}")
    A(f"v_xor_b32 v{vW}, 32, v{vWA}")
    A(f"v_add_u32 v{vAA}, {XF}, v{vACT}")
    A(f"v_cmp_eq_u32 s[4:5], 0, v{vTMP2}")
    cwait(F_ERD, 9, sleep=1)
    wait_prog(False, 4, sleep=1)
    if opt.qlead >= 0: flag_now("q")
    actreads(4)
    wreads(0, 4)
    for kb in range(4):
        A(f"s_waitcnt lgkmcnt({6 if kb == 0 else 6})")
        A(f"ds_read_b64_tr_b16 v[{vK+16+4*kb}:{vK+16+4*kb+1}], v{vW} offset:{8192*kb}")
        A(f"ds_read_b64_tr_b16 v[{vK+16+4*kb+2}:{vK+16+4*kb+3}], v{vW} offset:{8192*kb+1024}")
        mf(kb, kb == 0)
    A("s_mov_b64 exec, 3")
    A(f"ds_add_u32 v9, v{vONE} offset:{F_FREE0}")
    A("s_mov_b64 exec, -1")
    for kb in range(4):
        A(f"s_waitcnt lgkmcnt({7-2*kb})")
        c1 = "0" if kb == 0 else f"v[{vACC2}:{vACC2+3}]"
        A(f"v_mfma_f32_16x16x32_bf16 v[{vACC2}:{vACC2+3}], v[{vK+16+4*kb}:{vK+16+4*kb+3}], v[{vQ+4*kb}:{vQ+4*kb+3}], {c1}")
    A("s_nop 7")
    for r in range(4): A(f"v_cndmask_b32 v{vACC+r}, v{vACC2+r}, v{vACC+r}, s[4:5]")
    encode(None, vB, vB+1)
    staged(F_PUB0, 3, 4 << 16, "q" if opt.qhint else None)
    if opt.ackst:
        stamp(2); A("s_waitcnt vmcnt(0)"); stamp(5)
    A(f"v_mov_b32 v{vAX}, 0")
    A("L_noq:")
    if not opt.ackst: stamp(2)
    A(f"s_cmp_ge_u32 s{sR}, 16")
    A("s_cbranch_scc1 L_roleM")
    A(f"s_cmp_eq_u32 s{sROLE}, 2")
    A("s_cbranch_scc1 L_bc_late")
    pub_voff(5)
    setscale(LG)
    A(f"s_and_b32 s{sTMP}, s{sBETA}, -4")
    A(f"s_lshr_b32 s{sTMP2}, s{sC}, 1")
    A(f"s_add_u32 s{sTMP}, s{sTMP}, s{sTMP2}")
    A(f"s_and_b32 s{sTMP2}, s{sBETA}, 3")
    A(f"s_lshl2_add_u32 s{sTMP}, s{sTMP}, s{sTMP2}")
    A(f"s_and_b32 s{sTMP2}, s{sC}, 1")
    A(f"s_lshl1_add_u32 s{sTMP}, s{sTMP}, s{sTMP2}")
    A(f"s_lshl_b32 s{sTMP}, s{sTMP}, 8")
    ws_addr(sGA, WS_GP, sTMP)
    def hc_addr():
        A(f"s_and_b32 s{sTMP}, s{sBETA}, -4")
        A(f"s_or_b32 s{sTMP2}, s{sBETA}, 3")
        A(f"s_mul_i32 s{sTMP}, s{sTMP}, 147")
        A(f"s_mul_i32 s{sTMP2}, s{sTMP2}, 147")
        A(f"s_lshr_b32 s{sTMP}, s{sTMP}, 10")
        A(f"s_lshr_b32 s{sTMP2}, s{sTMP2}, 10")
        A(f"s_cmp_eq_u32 s{sTMP}, s{sTMP2}")
        A(f"s_cselect_b32 s{sNH}, {HREP}, {2*HREP}")
        A(f"s_mul_i32 s{sTMP}, s{sTMP}, {CS*HREP}")
        ws_addr(sGB, WS_HC, sTMP)
    if not opt.notif: hc_addr()
    for r in range(4): A(f"v_mov_b32 v{vACC+r}, 0")
    A(f"v_mov_b32 v{vWA}, v{vTR}")
    A(f"v_add_u32 v{vAA}, {XF + 2048}, v{vACT}")
    A(f"s_mov_b32 s{sCNT}, 5")
    wait_prog(False, opt.xgat + 1, sleep=1)
    egloop(12, "G1")
    signal(F_FREE1)
    stamp(3)
    egloop(20, "G2", opt.hlead, "h")
    A("s_nop 7")
    publish(vACC)
    if opt.hlead < 0 and not opt.notif: flag(F_PUB1, "h")
    else: A("s_mov_b64 exec, -1")
    stamp(6)
    if opt.ackst:
        A("s_waitcnt vmcnt(0)"); stamp(4)
    A("L_bc_late:")
    late_setup(RA, 0, 28)
    ws_addr(sGA, WS_OP, sTMP)
    A(f"s_lshl_b32 s{sTMP2}, s{sC}, 4")
    A(f"v_and_b32 v{vTMP3}, 32, v0")
    A(f"v_lshlrev_b32 v{vTMP3}, 2, v{vTMP3}")
    A(f"v_add3_u32 v{vTMP3}, v{vTMP3}, s{sTMP2}, v9")
    A(f"s_lshl_b32 s{sTMP3}, s{sLR}, 3")
    A(f"v_subrev_u32 v{vAFW}, s{sTMP3}, v0")
    A(f"v_and_b32 v{vAFW}, 62, v{vAFW}")
    A(f"v_lshlrev_b32 v{vAFW}, 6, v{vAFW}")
    A(f"v_and_b32 v{vTMP2}, 1, v0")
    A(f"v_lshl_or_b32 v{vAFW}, v{vTMP2}, 3, v{vAFW}")
    A(f"s_add_u32 s{sTMP2}, s{sTMP2}, {AF}")
    A(f"v_add_u32 v{vAFW}, s{sTMP2}, v{vAFW}")
    afswz(vAFW)
    late_wait()
    stamp(7)
    def owork(i):
        if i == 2: late_post_issue()
        if i == 3: late_post()
    gather(mid=late_mid, cntstamp=13, sleep=opt.gsleep, work=owork, kind='B', defer=True)
    if STAMP == 1: A("s_waitcnt lgkmcnt(0)")
    cwait_rd(F_WRDY, 1, 0, lambda: A(f"ds_read_b128 v[{vSCA}:{vSCA+3}], v{vTMP3} offset:{F_WT}"))
    stamp(8)
    A(f"s_cmp_lg_u32 s{sEM}, 0")
    A("s_cbranch_scc1 L_onofix")
    A("s_call_b64 s[6:7], L_fix")
    A("L_onofix:")
    for i in range(4): acc(i, vS0, i == 0)
    A("s_branch L_late")

    A("L_roleM:")
    vXr, vGWr = vK, vK + 8
    A(f"s_cmp_lt_u32 s{sC}, 4")
    A("s_cbranch_scc1 L_nogate")
    wait_prog(False, opt.ggate, sleep=1)
    A(f"s_and_b32 s{sTMP}, s{sR}, 1")
    A(f"s_lshl2_add_u32 s{sTMP}, s{sTMP}, s{sC}")
    A(f"s_sub_u32 s{sTMP3}, s{sTMP}, 4")
    A(f"s_lshl_b32 s{sTMP}, s{sTMP3}, 11")
    A(f"v_add_u32 v{vTMP3}, s{sTMP}, v{vL16}")
    for i in range(2):
        A(f"global_load_dwordx4 v[{vXr+4*i}:{vXr+4*i+3}], v{vTMP3}, s[{sX}:{sX+1}] offset:{1024*i}")
        A(f"global_load_dwordx4 v[{vGWr+4*i}:{vGWr+4*i+3}], v{vL16}, s[{sGW}:{sGW+1}] offset:{1024*i}")
    A(f"v_mov_b32 v{vACC2}, 0")
    A("s_waitcnt vmcnt(0)")
    for i in range(8):
        A(f"v_lshlrev_b32 v{vW}, 16, v{vXr+i}")
        A(f"v_and_b32 v{vW+1}, 0xffff0000, v{vXr+i}")
        A(f"v_lshlrev_b32 v{vW+2}, 16, v{vGWr+i}")
        A(f"v_and_b32 v{vW+3}, 0xffff0000, v{vGWr+i}")
        A(f"v_mul_f32 v{vW}, v{vW}, v{vW+2}")
        A(f"v_mul_f32 v{vW+1}, v{vW+1}, v{vW+3}")
        A(f"v_cvt_pk_bf16_f32 v{vW}, v{vW}, v{vW+1}")
        A(f"v_lshlrev_b32 v{vW+1}, 16, v{vW}")
        A(f"v_and_b32 v{vW}, 0xffff0000, v{vW}")
        A(f"v_add_f32 v{vACC2}, v{vACC2}, v{vW+1}")
        A(f"v_add_f32 v{vACC2}, v{vACC2}, v{vW}")
    for off in (0x041F, 0x081F, 0x101F, 0x201F, 0x401F):
        A(f"ds_swizzle_b32 v{vW}, v{vACC2} offset:{off:#x}")
        A("s_waitcnt lgkmcnt(0)")
        A(f"v_add_f32 v{vACC2}, v{vACC2}, v{vW}")
    A(f"v_mov_b32 v{vW}, v{vACC2}")
    A("s_nop 1")
    A(f"v_permlane32_swap_b32 v{vACC2}, v{vW}")
    A(f"v_add_f32 v{vACC2}, v{vACC2}, v{vW}")
    def rbf(v):
        A(f"v_cvt_pk_bf16_f32 v{v}, v{v}, v{v}")
        A(f"v_and_b32 v{v}, 0xffff0000, v{v}")
    rbf(vACC2)
    A(f"v_mul_f32 v{vACC2}, 0xbfb8aa3b, v{vACC2}")
    A(f"v_exp_f32 v{vACC2}, v{vACC2}")
    A("s_nop 0")
    A(f"v_add_f32 v{vACC2}, 1.0, v{vACC2}")
    A(f"v_rcp_f32 v{vACC2}, v{vACC2}")
    A("s_nop 0")
    rbf(vACC2)
    A(f"s_lshl_b32 s{sTMP}, s{sTMP3}, 2")
    A(f"v_add_u32 v{vTMP2}, s{sTMP}, v9")
    A("s_mov_b64 exec, 1")
    A(f"ds_write_b32 v{vTMP2}, v{vACC2} offset:{F_G}")
    A("s_mov_b64 exec, -1")
    A("L_nogate:")
    A(f"s_lshl2_add_u32 s{sTMP}, s{sBB}, s{sG}")
    A(f"s_lshl3_add_u32 s{sTMP}, s{sTMP}, s{sC}")
    A(f"s_lshl_b32 s{sTMP}, s{sTMP}, 11")
    ws_addr(sGA, WS_QP, sTMP)
    A(f"v_bfe_u32 v{vTMP2}, v0, 2, 2")
    A(f"v_and_b32 v{vTMP3}, 3, v0")
    A(f"v_lshl_add_u32 v{vTMP2}, v{vTMP2}, 3, v{vTMP3}")
    A(f"v_lshlrev_b32 v{vWA}, 8, v{vTMP2}")
    A(f"v_lshrrev_b32 v{vTMP2}, 5, v0")
    A(f"v_and_b32 v{vTMP3}, 7, v0")
    A(f"v_xor_b32 v{vTMP2}, v{vTMP2}, v{vTMP3}")
    A(f"v_lshl_or_b32 v{vWA}, v{vTMP2}, 5, v{vWA}")
    A(f"v_and_b32 v{vTMP2}, 16, v0")
    A(f"s_lshl_b32 s{sTMP}, s{sC}, 13")
    A(f"v_add3_u32 v{vWA}, v{vWA}, v{vTMP2}, s{sTMP}")
    vQA, vMX, vPA = vW, vW + 1, vW + 2
    A(f"v_and_b32 v{vQA}, 30, v0")
    A(f"v_lshlrev_b32 v{vQA}, 6, v{vQA}")
    A(f"v_and_b32 v{vTMP2}, 1, v0")
    A(f"v_lshl_or_b32 v{vQA}, v{vTMP2}, 3, v{vQA}")
    A(f"v_lshrrev_b32 v{vTMP2}, 5, v0")
    A(f"v_lshl_or_b32 v{vQA}, v{vTMP2}, 2, v{vQA}")
    A(f"s_lshl_b32 s{sTMP}, s{sC}, 4")
    A(f"s_add_u32 s{sTMP}, s{sTMP}, {QF}")
    A(f"v_add_u32 v{vQA}, s{sTMP}, v{vQA}")
    A(f"v_lshl_add_u32 v{vMX}, v{vTMP3}, 2, v9")
    A(f"s_lshl_b32 s{sTMP}, s{sC}, 9")
    A(f"s_add_u32 s{sTMP}, s{sTMP}, {PF}")
    A(f"v_add_u32 v{vPA}, s{sTMP}, v{vACT}")
    vOTP, vOTA = vRW, vRR
    A(f"v_lshrrev_b32 v{vTMP3}, 4, v0")
    A(f"v_and_b32 v{vTMP2}, 7, v0")
    A(f"v_lshlrev_b32 v{vSTW}, 8, v{vTMP2}")
    A(f"v_lshl_or_b32 v{vSTW}, v{vTMP3}, 3, v{vSTW}")
    A(f"s_lshl_b32 s{sTMP}, s{sC}, 5")
    A(f"s_add_u32 s{sTMP}, s{sTMP}, {ST}")
    A(f"v_add_u32 v{vSTW}, s{sTMP}, v{vSTW}")
    A(f"v_add_u32 v{vSTR}, {ST}, v{vL16}")
    A(f"v_and_b32 v{vPUB}, 0x1f0, v{vL16}")
    A(f"v_and_b32 v{vTMP2}, 32, v0")
    A(f"v_lshl_or_b32 v{vPUB}, v{vTMP2}, 9, v{vPUB}")
    A(f"s_and_b32 s{sTMP}, s{sC}, 1")
    A(f"s_lshl_b32 s{sTMP}, s{sTMP}, 4")
    A(f"v_lshl_or_b32 v{vTMP3}, v{vTMP3}, 2, s{sTMP}")
    tagbits(vOTP, vTMP3)
    if opt.qhint: cwait(F_QRDY, 1, sleep=1)
    else: wait_prog(False, opt.qgate, sleep=1)
    stamp(3)
    def kfrags():
        A(f"s_add_u32 s{sTMP2}, s{sC}, 5")
        wait_prog(True, sTMP2)
        for db in range(4):
            if db: A(f"v_xor_b32 v{vAA}, {64*db}, v{vWA}")
            a = vAA if db else vWA
            A(f"ds_read_b128 v[{vK+4*db}:{vK+4*db+3}], v{a}")
            A(f"ds_read_b128 v[{vK+16+4*db}:{vK+16+4*db+3}], v{a} offset:1024")
        signal(F_FREE1)
        A(f"v_add_u32 v{vAA}, {QF}, v{vACT}")
    setsca(LQ)
    def qwork(i): acc(i, vS0, i == 0)
    gather(nld=4, mid=kfrags, cntstamp=11, sleep=opt.qsleep, work=qwork)
    stamp(4)
    A("s_nop 1")
    A(f"v_permlane32_swap_b32 v{vS0}, v{vS0+2}")
    A(f"v_permlane32_swap_b32 v{vS0+1}, v{vS0+3}")
    A(f"v_add_f32 v{vS0}, v{vS0}, v{vS0+2}")
    A(f"v_add_f32 v{vS0+1}, v{vS0+1}, v{vS0+3}")
    A(f"v_cvt_pk_bf16_f32 v{vGA}, v{vS0}, v{vS0+1}")
    A(f"ds_write_b32 v{vQA}, v{vGA}")
    signal(F_BQ)
    A(f"s_lshl_b32 s{sTMP}, s{sG}, 5")
    A(f"s_add_u32 s{sTMP}, s{sTMP}, s{sBB}")
    A(f"s_lshl2_add_u32 s{sTMP}, s{sTMP}, s{sSPL}")
    A(f"s_lshl_b32 s{sTMP}, s{sTMP}, 9")
    ws_addr(sGA, WS_OP, sTMP)
    A(f"s_lshl2_add_u32 s{sTMP3}, s{sBB}, s{sSPL}")
    A(f"s_mul_i32 s{sTMP}, s{sG}, {32*CS}")
    ws_addr(sGB, WS_OC, sTMP)
    A(f"s_lshl_b32 s{sTMP}, s{sG}, 5")
    A(f"s_add_u32 s{sTMP}, s{sTMP}, s{sTMP3}")
    A(f"s_lshl_b32 s{sTMP}, s{sTMP}, 6")
    ws_addr(sFA, WS_LSE, sTMP)
    cbits = struct.unpack("<I", struct.pack("<f", math.log2(math.e) / math.sqrt(128.0)))[0]
    A(f"s_mov_b32 s{sTMP2}, {cbits:#x}")
    if STAMP == 1: A("s_waitcnt lgkmcnt(0)")
    if opt.spec: cwait_rd(F_BQ, 8, 4, lambda: actreads(4))
    else:
        cwait(F_BQ, 8); actreads(4)
    for db in range(4):
        A(f"s_waitcnt lgkmcnt({3-db})")
        c0 = "0" if db == 0 else f"v[{vACC}:{vACC+3}]"
        c1 = "0" if db == 0 else f"v[{vACC2}:{vACC2+3}]"
        A(f"v_mfma_f32_16x16x32_bf16 v[{vACC}:{vACC+3}], v[{vK+4*db}:{vK+4*db+3}], v[{vQ+4*db}:{vQ+4*db+3}], {c0}")
        A(f"v_mfma_f32_16x16x32_bf16 v[{vACC2}:{vACC2+3}], v[{vK+16+4*db}:{vK+16+4*db+3}], v[{vQ+4*db}:{vQ+4*db+3}], {c1}")
    A(f"v_add_u32 v{vAA}, {PF}, v{vACT}")
    A(f"v_add_u32 v{vWA}, {RB}, v{vTR}")
    vONES = vGA
    for r in range(4): A(f"v_mov_b32 v{vONES+r}, 0x3f803f80")
    A("s_nop 1")
    A(f"v_max3_f32 v{vTMP2}, v{vACC}, v{vACC+1}, v{vACC+2}")
    A(f"v_max3_f32 v{vTMP2}, v{vTMP2}, v{vACC+3}, v{vACC2}")
    A(f"v_max3_f32 v{vTMP2}, v{vTMP2}, v{vACC2+1}, v{vACC2+2}")
    A(f"v_max_f32 v{vTMP2}, v{vTMP2}, v{vACC2+3}")
    A("s_mov_b32 exec_lo, 0x00ff00ff\ns_mov_b32 exec_hi, 0x00ff00ff")
    A(f"ds_max_f32 v{vMX}, v{vTMP2} offset:{F_MAX}")
    signal(F_BM)
    vM = vLS
    cwait_rd(F_BM, 8, 1, lambda: A(f"ds_read_b32 v{vM}, v{vMX} offset:{F_MAX}"))
    if opt.olead >= 0 and opt.oearly:
        A(f"ds_read_b32 v{vTMP}, v9 offset:{F_PROG}")
    A("s_waitcnt lgkmcnt(0)")
    A(f"s_mov_b32 s{sWDN}, 0")
    if opt.olead >= 0 and opt.oearly:
        A(f"v_readfirstlane_b32 s{sPROG}, v{vTMP}")
        A(f"s_cmp_lt_u32 s{sPROG}, {20 - opt.olead}")
        A("s_cbranch_scc1 L_of_no1")
        flag_now("q")
        A(f"s_mov_b32 s{sWDN}, 1")
        A("L_of_no1:")
    A(f"v_mul_f32 v{vM}, s{sTMP2}, v{vM}")
    for r in range(8):
        A(f"v_fma_f32 v{vACC+r}, v{vACC+r}, s{sTMP2}, -v{vM}")
    for r in range(8):
        A(f"v_exp_f32 v{vACC+r}, v{vACC+r}")
    A("s_nop 0")
    for r in range(4):
        A(f"v_cvt_pk_bf16_f32 v{vB+r}, v{vACC+2*r}, v{vACC+2*r+1}")
    A(f"ds_write_b128 v{vPA}, v[{vB}:{vB+3}]")
    signal(F_BP)
    if opt.spec: cwait_rd(F_BP, 8, 8, lambda: actreads(8))
    else:
        cwait(F_BP, 8); actreads(8)
    A(f"ds_read_b32 v{vTMP}, v9 offset:{F_PROG}")
    for kb in range(8):
        A(f"s_waitcnt lgkmcnt({8-kb})")
        c1 = "0" if kb == 0 else f"v[{vACC2}:{vACC2+3}]"
        A(f"v_mfma_f32_16x16x32_bf16 v[{vACC2}:{vACC2+3}], v[{vONES}:{vONES+3}], v[{vQ+4*kb}:{vQ+4*kb+3}], {c1}")
    A("s_waitcnt lgkmcnt(0)")
    A(f"v_readfirstlane_b32 s{sPROG}, v{vTMP}")
    stamp(5)
    vRL = vLS + 2
    def lse_part():
        A(f"v_log_f32 v{vLS+1}, v{vACC2}")
        A(f"v_rcp_f32 v{vRL}, v{vACC2}")
        A("s_nop 0")
        A(f"v_mul_f32 v{vRL}, {fbits(2.0**LO_):#x}, v{vRL}")
        d = g.lab("L_nolse")
        A(f"s_cmp_lg_u32 s{sC}, 0")
        A(f"s_cbranch_scc1 {d}")
        A(f"v_add_f32 v{vM}, v{vM}, v{vLS+1}")
        A(f"v_mov_b32 v{vLS+1}, s{sT}")
        A(f"v_lshlrev_b32 v{vTMP2}, 3, v0")
        A("s_mov_b64 exec, 0xff")
        if not (opt.dbg & 1):
            A(f"global_store_dwordx2 v{vTMP2}, v[{vLS}:{vLS+1}], s[{sFA}:{sFA+1}] sc1")
            if opt.lcnt:
                A(f"s_bfm_b64 exec, {NREP}, 0")
                A(f"v_mov_b32 v{vTMP2}, 0x10000")
                A(f"global_atomic_add v{vFLG}, v{vTMP2}, s[{sGB}:{sGB+1}] sc1")
        A("s_mov_b64 exec, -1")
        A(f"{d}:")
    A(f"s_cmp_lt_u32 s{sPROG}, 20")
    A("s_cbranch_scc1 L_pv_slow")
    def oflag():
        if opt.olead < 0: return
        d = g.lab("L_of")
        A(f"s_cmp_lg_u32 s{sWDN}, 0")
        A(f"s_cbranch_scc1 {d}")
        flag_now("q")
        A(f"{d}:")
    wreads(0, 7)
    lse_part()
    oflag()
    for kb in range(7):
        A(f"s_waitcnt lgkmcnt({14-2*kb if kb else 12})")
        if kb == 0: wreads(7, 8)
        mf(kb, kb == 0)
    A("s_branch L_pv_last")
    pad("M")
    A("L_pv_slow:")
    A("s_nop 4")
    lse_part()
    for kb in range(8):
        wait_prog(False, 12 + kb + 1)
        wreads(kb, kb+1)
        if 12 + kb + 1 == 20 - opt.olead: oflag()
        if kb:
            A("s_waitcnt lgkmcnt(2)")
            mf(kb-1, kb == 1)
    A("L_pv_last:")
    A("s_waitcnt lgkmcnt(0)")
    mf(7, False)
    A("s_nop 7")
    encode(vRL, vOTP, vOTA)
    A("s_mov_b32 exec_lo, 0x00ff00ff\ns_mov_b32 exec_hi, 0x00ff00ff")
    staged(F_PUB1, 7, 2 << 14, "q" if (opt.olead < 0 and not opt.notif) else None)
    stamp(6)
    if opt.ackst:
        A("s_waitcnt vmcnt(0)"); stamp(3)
    A(f"s_and_b32 s{sTMP2}, s{sR}, 1")
    A(f"s_lshl_b32 s{sTMP2}, s{sTMP2}, 4")
    A(f"v_and_b32 v{vTMP2}, 12, v0")
    A(f"v_add3_u32 v{vTMP2}, v{vTMP2}, s{sTMP2}, v9")
    A(f"ds_read_b32 v{vRG}, v{vTMP2} offset:{F_G}")
    A(f"s_lshl4_add_u32 s{sTMP}, s{sXCD}, s{sR}")
    A(f"s_sub_u32 s{sTMP3}, s{sTMP}, 16")
    A(f"s_lshl3_add_u32 s{sTMP}, s{sTMP3}, s{sC}")
    A(f"s_lshl_b32 s{sTMP}, s{sTMP}, 9")
    ws_addr(sRA, WS_FP, sTMP)
    A(f"v_lshlrev_b32 v{vRR}, 2, v0")
    A(f"v_add_u32 v{vRR}, {RS}, v{vRR}")
    A(f"s_lshl_b32 s{sTMP}, s{sC}, 8")
    A(f"v_add_u32 v{vRW}, s{sTMP}, v{vRR}")
    A(f"v_and_b32 v{vOUT}, 12, v0")
    A(f"v_lshlrev_b32 v{vOUT}, 9, v{vOUT}")
    A(f"v_and_b32 v{vTMP2}, 3, v0")
    A(f"v_lshl_or_b32 v{vOUT}, v{vTMP2}, 3, v{vOUT}")
    A(f"v_lshrrev_b32 v{vTMP2}, 4, v0")
    A(f"v_lshl_or_b32 v{vOUT}, v{vTMP2}, 1, v{vOUT}")
    A(f"s_lshl_b32 s{sTMP2}, s{sTMP2}, 9")
    A(f"s_lshr_b32 s{sTMP3}, s{sTMP3}, 1")
    A(f"s_lshl_b32 s{sTMP3}, s{sTMP3}, 5")
    A(f"s_add_u32 s{sTMP2}, s{sTMP2}, s{sTMP3}")
    A(f"v_add_u32 v{vOUT}, s{sTMP2}, v{vOUT}")
    A("s_waitcnt lgkmcnt(0)")
    A(f"s_cmp_lt_u32 s{sC}, 4")
    A("s_cbranch_scc1 L_wg_done")
    A(f"v_sub_f32 v{vRG}, 1.0, v{vRG}")
    rbf(vRG)
    A("L_wg_done:")
    A(f"v_mul_f32 v{vRG}, {fbits(2.0**-LF):#x}, v{vRG}")
    setsca(LG)
    late_setup(RA, 16, 27)
    A(f"s_add_u32 s{sTMP}, s{sC}, s{sLR}")
    A(f"s_cmp_ge_u32 s{sTMP}, 7")
    A(f"s_cselect_b32 s{sTMP2}, 7, 0")
    A(f"s_sub_u32 s{sTMP}, s{sTMP}, s{sTMP2}")
    A(f"s_add_u32 s{sTMP}, s{sTMP}, s{sKB0}")
    A(f"s_lshl_b32 s{sTMP}, s{sTMP}, 11")
    ws_addr(sGA, WS_GP, sTMP)
    for r in range(4): A(f"v_mov_b32 v{vS0+r}, 0")
    late_wait()
    A(f"s_cmp_eq_u32 s{sC}, 7")
    A("s_cbranch_scc1 L_late")
    stamp(7)
    def rnd4(v):
        A(f"v_cvt_pk_bf16_f32 v{vB}, v{v}, v{v+1}")
        A(f"v_cvt_pk_bf16_f32 v{vB+1}, v{v+2}, v{v+3}")
        for h in range(2):
            A(f"v_lshlrev_b32 v{v+2*h}, 16, v{vB+h}")
            A(f"v_and_b32 v{v+2*h+1}, 0xffff0000, v{vB+h}")
    def hwork(i):
        if i == 2: late_post_issue()
        if i == 3: late_post()
        acc(i, vS0 if i < 2 else vS1, i in (0, 2))
        if i == 1:
            for r in range(4): A(f"v_max_f32 v{vS0+r}, 0, v{vS0+r}")
            if opt.hround: rnd4(vS0)
        if i == 3:
            if opt.hround: rnd4(vS1)
            for r in (0, 2): A(f"v_pk_mul_f32 v[{vS0+r}:{vS0+r+1}], v[{vS0+r}:{vS0+r+1}], v[{vS1+r}:{vS1+r+1}]")
    gather(mid=late_mid, cntstamp=13, sleep=opt.gsleep, work=hwork)
    stamp(8)

    if opt.touch: A("s_branch L_late")
    pad("A")
    A("L_late:")
    A(f"v_cvt_pk_bf16_f32 v{vGA}, v{vS0}, v{vS0+1}")
    A(f"v_cvt_pk_bf16_f32 v{vGA+1}, v{vS0+2}, v{vS0+3}")
    A(f"ds_write_b64 v{vAFW}, v[{vGA}:{vGA+1}]")
    if opt.lflow == 1:
        signal(F_BA)
        if opt.fine: stamp(3)
        A(f"s_cmp_eq_u32 s{sWDN}, 99")
        A("s_cbranch_scc1 L_late_bar")
        A("L_late_spin:")
        A(f"ds_read2_b32 v[{vTMP}:{vTMP+1}], v9 offset0:{F_PROG//4} offset1:{F_BA//4}")
        A("s_waitcnt lgkmcnt(0)")
        A(f"v_readfirstlane_b32 s{sPROG}, v{vTMP}")
        A(f"v_readfirstlane_b32 s{sTMP2}, v{vTMP+1}")
        wcatch()
        A(f"s_cmp_eq_u32 s{sWDN}, 99")
        A("s_cbranch_scc1 L_late_bar0")
        A(f"s_cmp_lt_u32 s{sWDN}, 27")
        A("s_cbranch_scc1 L_late_spin")
        A(f"s_cmp_lt_u32 s{sTMP2}, 8")
        A("s_cbranch_scc1 L_late_spin")
        actreads(8, True)
        for kb in range(6):
            A(f"s_waitcnt lgkmcnt({7-kb})")
            mf(kb, kb == 0)
        A("s_barrier")
        wreads(6, 8)
        A("s_waitcnt lgkmcnt(2)")
        mf(6, False)
        A("s_waitcnt lgkmcnt(0)")
        mf(7, False)
        A("s_branch L_late_done")
        pad("A")
        A("L_late_bar:")
        A("s_waitcnt lgkmcnt(0)")
        A("L_late_bar0:")
        A("s_barrier")
        if opt.fine: stamp(4)
        actreads(8, True)
        for kb in range(8):
            A(f"s_waitcnt lgkmcnt({7-kb})")
            mf(kb, kb == 0)
    else:
        if opt.fine: stamp(3)
        if opt.lflow == 3: signal(F_BA)
        A(f"s_cmp_ge_u32 s{sWDN}, {opt.wmin}")
        A(f"s_cbranch_scc1 {'L_late_w6' if opt.lflow == 3 else 'L_late_bar'}")
        wait_prog(False, opt.wmin - 1)
        wcatch()
        if opt.lflow == 3:
            A("L_late_w6:")
            A(f"s_cmp_eq_u32 s{sWDN}, 99")
            A("s_cbranch_scc1 L_late_bar")
            A("L_late_spin:")
            A(f"ds_read2_b32 v[{vTMP}:{vTMP+1}], v9 offset0:{F_PROG//4} offset1:{F_BA//4}")
            A("s_waitcnt lgkmcnt(0)")
            A(f"v_readfirstlane_b32 s{sPROG}, v{vTMP}")
            A(f"v_readfirstlane_b32 s{sTMP2}, v{vTMP+1}")
            A(f"s_cmp_ge_u32 s{sPROG}, s{sPE}")
            A("s_cbranch_scc1 L_late_bar")
            A(f"s_cmp_lt_u32 s{sTMP2}, 8")
            A("s_cbranch_scc1 L_late_spin")
            n0 = opt.wmin - 21
            actreads(8, True)
            for kb in range(n0):
                A(f"s_waitcnt lgkmcnt({7-kb})")
                mf(kb, kb == 0)
            A("s_barrier")
            wreads(n0, 8)
            for kb in range(n0, 8):
                A(f"s_waitcnt lgkmcnt({2*(7-kb)})")
                mf(kb, False)
            A("s_branch L_late_done")
        A("L_late_bar:")
        A(f"s_cmp_eq_u32 s{sWDN}, 99")
        A("s_waitcnt lgkmcnt(0)")
        A("s_barrier")
        A("s_cbranch_scc1 L_late_act")
        wreads(opt.wmin - 21, 8)
        A("L_late_act:")
        if opt.fine: stamp(4)
        actreads(8, True)
        for kb in range(8):
            A(f"s_waitcnt lgkmcnt({7-kb})")
            mf(kb, kb == 0)
    A("L_late_done:")
    if opt.fine: stamp(5)
    A("s_nop 7")
    publish(vACC, sFA)
    A("s_mov_b64 exec, -1")
    stamp(9)
    A(f"s_cmp_ge_u32 s{sR}, 16")
    A("s_cbranch_scc1 L_red")
    A("s_branch L_exit")
    pad("A")
    A("L_red:")
    A(f"s_mov_b64 s[{sGA}:{sGA+1}], s[{sRA}:{sRA+1}]")
    if opt.fgate and not opt.fbar: cwait(F_FRDY, 1)
    A(f"v_mov_b32 v{vSCA}, v{vRG}")
    if opt.fgate and opt.fbar: A("s_barrier")
    def fwork(i): acc(0, vS0, True)
    gather(nld=1, cntstamp=12, sleep=opt.fgsleep, work=fwork)
    if not opt.stq: stamp(2)
    A("s_nop 1")
    A(f"v_permlane32_swap_b32 v{vS0}, v{vS0+2}")
    A(f"v_permlane32_swap_b32 v{vS0+1}, v{vS0+3}")
    A(f"v_add_f32 v{vS0}, v{vS0}, v{vS0+2}")
    A(f"v_add_f32 v{vS0+1}, v{vS0+1}, v{vS0+3}")
    A("s_nop 1")
    A(f"v_permlane16_swap_b32 v{vS0}, v{vS0+1}")
    A(f"v_add_f32 v{vGA}, v{vS0}, v{vS0+1}")
    A(f"ds_write_b32 v{vRW}, v{vGA}")
    A("s_mov_b64 exec, 1")
    A(f"ds_add_rtn_u32 v{vTMP}, v9, v{vONE} offset:{F_RED}")
    A("s_mov_b64 exec, -1")
    for i in range(4):
        A(f"ds_read2st64_b32 v[{vGA+2*i}:{vGA+2*i+1}], v{vRR} offset0:{2*i} offset1:{2*i+1}")
    A("s_waitcnt lgkmcnt(4)")
    A(f"v_readfirstlane_b32 s{sTMP}, v{vTMP}")
    A(f"s_cmp_lg_u32 s{sTMP}, 7")
    A("s_cbranch_scc1 L_exit")
    A("s_waitcnt lgkmcnt(0)")
    A(f"v_pk_add_f32 v[{vGA}:{vGA+1}], v[{vGA}:{vGA+1}], v[{vGA+2}:{vGA+3}]")
    A(f"v_pk_add_f32 v[{vGA+4}:{vGA+5}], v[{vGA+4}:{vGA+5}], v[{vGA+6}:{vGA+7}]")
    A(f"v_pk_add_f32 v[{vGA}:{vGA+1}], v[{vGA}:{vGA+1}], v[{vGA+4}:{vGA+5}]")
    A(f"v_add_f32 v{vGA}, v{vGA}, v{vGA+1}")
    A(f"v_cvt_pk_bf16_f32 v{vGA}, v{vGA}, v{vGA}")
    A(f"global_store_short v{vOUT}, v{vGA}, s[{sOUT}:{sOUT+1}] {opt.outflags}")
    A(f"s_cmp_lg_u32 s2, 128")
    A("s_cbranch_scc1 L_noepoch")
    A("s_mov_b64 exec, 1")
    A(f"v_mov_b32 v{vTMP}, 0")
    A(f"global_store_dword v{vTMP}, v{vT}, s[{sWS}:{sWS+1}] sc1")
    A("s_mov_b64 exec, -1")
    A("L_noepoch:")
    if opt.fixdur:
        A(f"s_cmp_lg_u32 s2, {opt.fixwg}")
        A("s_cbranch_scc1 L_nofix")
        A("L_fixd:")
        A("s_memrealtime s[14:15]")
        A("s_waitcnt lgkmcnt(0)")
        A("s_sub_u32 s14, s14, s98")
        A(f"s_cmp_lt_u32 s14, {opt.fixdur}")
        A("s_cbranch_scc1 L_fixd")
        A("L_nofix:")
    if STAMP:
        A("s_waitcnt vmcnt(0)")
        stamp(1, True)
    A("s_branch L_exit")

    pad("A")
    A("L_wcatch:")
    for kb in range(8):
        nx = f"L_wcn{kb}"
        if kb < 7:
            A(f"s_cmp_gt_u32 s{sWDN}, {21+kb}")
            A(f"s_cbranch_scc1 {nx}")
        if kb:
            A(f"s_cmp_lt_u32 s{sPROG}, s{sWDN}")
            A("s_cbranch_scc1 L_wcret")
        wreads(kb, kb+1)
        if kb < 6: A(f"s_mov_b32 s{sWDN}, {22+kb}")
        elif kb == 6: A(f"s_mov_b32 s{sWDN}, s{sPE}")
        else: A(f"s_mov_b32 s{sWDN}, 99")
        if kb < 7: A(f"{nx}:")
    A("L_wcret:")
    A(f"s_setpc_b64 s[{sRET}:{sRET+1}]")

    A("L_encs:")
    A(f"v_lshrrev_b32 v{vTMP}, 23, v{vTMP}")
    A(f"v_subrev_u32 v{vTMP}, 126, v{vTMP}")
    A(f"v_ashrrev_i32 v{vTMP}, 4, v{vTMP}")
    A(f"v_med3_i32 v{vTMP}, v{vTMP}, -8, 7")
    A(f"v_cndmask_b32 v{vTMP}, 0, v{vTMP}, vcc")
    A(f"v_and_b32 v{vAX}, 15, v{vTMP}")
    A(f"v_lshl_or_b32 v{vAX}, v{vAX}, 14, v{vAX}")
    A(f"v_and_b32 v{vAX}, s{sM3}, v{vAX}")
    A(f"v_mul_i32_i24 v{vTMP}, -16, v{vTMP}")
    for r in range(4): A(f"v_ldexp_f32 v{vACC+r}, v{vACC+r}, v{vTMP}")
    A("s_mov_b64 vcc, 0")
    A("s_setpc_b64 s[6:7]")
    A("L_fixr:")
    for i in range(4): A(f"v_xor_b32 v{vGA+2*i+1}, v{vTC}, v{vGA+2*i+1}")
    A("L_fix:")
    for i in range(4):
        A(f"v_and_b32 v{vTMP}, 3, v{vGA+2*i}")
        A(f"v_bfe_i32 v{vTMP2}, v{vGA+2*i}, 16, 2")
        A(f"v_lshl_or_b32 v{vTMP}, v{vTMP2}, 2, v{vTMP}")
        A(f"v_lshlrev_b32 v{vTMP}, 4, v{vTMP}")
        A(f"v_ldexp_f32 v{vSCA+i}, v{vSCA+i}, v{vTMP}")
    A("s_setpc_b64 s[6:7]")

    if opt.notif:
        A("L_notif:")
        if opt.nocomm: A("s_branch L_exit")
        if opt.tlb:
            A("s_mov_b64 exec, 1")
            A(f"v_mov_b32 v{vGA}, 0")
            if opt.tlb & 1:
                A(f"global_load_dword v{vGA+1}, v{vGA}, s[{sOUT}:{sOUT+1}] sc1")
                A(f"global_load_dword v{vGA+2}, v{vGA}, s[{sWS}:{sWS+1}] offset:512 sc1")
            if opt.tlb & 2:
                A(f"s_lshl_b32 s{sTMP}, s{sKB0}, 16")
                A(f"v_mov_b32 v{vGA+8}, s{sTMP}")
                A(f"s_cmp_ge_u32 s{sR}, 16")
                A("s_cbranch_scc1 L_tlbM")
                A(f"global_load_dword v{vGA+3}, v{vGA+8}, s[{sWO}:{sWO+1}] nt")
                A(f"s_cmp_eq_u32 s{sROLE}, 2")
                A("s_cbranch_scc1 L_tlbD")
                A(f"s_bitcmp0_b32 s{sBETA}, 1")
                A(f"s_cselect_b64 s[4:5], s[{sWG}:{sWG+1}], s[{sWU}:{sWU+1}]")
                A(f"s_and_b32 s{sTMP}, s{sBETA}, 1")
                A(f"s_mul_i32 s{sTMP}, s{sTMP}, {512*7168}")
                A("s_mov_b64 exec, 7")
                A(f"v_mul_u32_u24 v{vGA+9}, {255*7168}, v0")
                A(f"v_add_u32 v{vGA+9}, s{sTMP}, v{vGA+9}")
                A(f"global_load_dword v{vGA+4}, v{vGA+9}, s[4:5] nt")
                A("s_branch L_tlbD")
                A("L_tlbM:")
                A(f"global_load_dword v{vGA+3}, v{vGA+8}, s[{sWD}:{sWD+1}] nt")
                A(f"s_lshl2_add_u32 s{sTMP}, s{sBB}, s{sG}")
                A(f"s_lshl_b32 s{sTMP}, s{sTMP}, 20")
                A(f"v_mov_b32 v{vGA+9}, s{sTMP}")
                A(f"global_load_dword v{vGA+4}, v{vGA+9}, s[{sV}:{sV+1}] nt")
                A("L_tlbD:")
            A("s_mov_b64 exec, -1")
        A(f"s_cmp_eq_u32 s{sROLE}, 2")
        A("s_cbranch_scc1 L_exit")
        A(f"s_cmp_ge_u32 s{sR}, 16")
        A("s_cbranch_scc1 L_notifM")
        hc_addr()
        wait_prog(False, opt.nprogh - 1, sleep=2)
        wait_prog(False, opt.nprogh)
        if opt.ndelay: A(f"s_sleep {opt.ndelay}")
        bump("h")
        A("s_branch L_exit")
        A("L_notifM:")
        A(f"s_mul_i32 s{sTMP}, s{sG}, {32*CS}")
        ws_addr(sGB, WS_OC, sTMP)
        cwait(F_BP, 8, sleep=2)
        if opt.pdelay: A(f"s_sleep {opt.pdelay}")
        wait_prog(False, opt.nprogo - 1, sleep=2)
        wait_prog(False, opt.nprogo)
        if opt.ndelay + opt.odelay: A(f"s_sleep {opt.ndelay + opt.odelay}")
        bump("q")
        A("s_branch L_exit")

    A("L_poller:")
    if opt.nocomm: A("s_branch L_exit")
    A(f"s_cmp_ge_u32 s{sR}, 16")
    A("s_cbranch_scc1 L_pollM")
    A(f"s_lshl3_add_u32 s{sTMP}, s{sRBK}, s{sCB}")
    A(f"s_and_b32 s{sTMP}, s{sTMP}, {NREP-1}")
    A(f"s_lshl_b32 s{sTMP2}, s{sG}, 5")
    A(f"s_add_u32 s{sTMP}, s{sTMP}, s{sTMP2}")
    A(f"s_mul_i32 s{sTMP}, s{sTMP}, {CS}")
    ws_addr(sGB, WS_OC, sTMP)
    A(f"s_load_dword s4, s[{sGB}:{sGB+1}], 0 glc")
    A(f"s_and_b32 s{sTMP}, s{sRBK}, 3")
    A(f"s_lshl_b32 s{sTMP}, s{sTMP}, 4")
    A(f"s_lshl_b32 s{sTMP2}, s{sG}, 11")
    A(f"s_add_u32 s{sTMP}, s{sTMP}, s{sTMP2}")
    ws_addr(sGA, WS_LSE, sTMP)
    A(f"v_and_b32 v{vTMP3}, 31, v0")
    A(f"v_lshlrev_b32 v{vTMP3}, 6, v{vTMP3}")
    A(f"v_lshrrev_b32 v{vTMP2}, 5, v0")
    A(f"v_lshl_or_b32 v{vTMP3}, v{vTMP2}, 3, v{vTMP3}")
    A("s_waitcnt lgkmcnt(0)")
    A(f"v_lshl_add_u32 v{vWA}, v0, 2, v9")
    A(f"s_cmp_eq_u32 s{sROLE}, 2")
    A(f"s_cselect_b32 s{sTMP2}, {opt.ogatec}, {opt.ogate}")
    A(f"s_add_u32 s5, s4, {0x200020 if opt.lcnt else 32}")
    for k, l in touch:
        if k in "AB": A(f"s_call_b64 s[6:7], {l}")
    wait_prog(True, sTMP2, sleep=2)
    stamp(2)
    if not (opt.dbg & 7):
        A(f"s_mov_b32 s{sCNT}, 0")
        if opt.psleep: A("s_branch L_pl1e")
        A("L_pl1:")
        if opt.psleep:
            A(f"s_sleep {opt.psleep}")
            A("L_pl1e:")
        A(f"s_load_dword s8, s[{sGB}:{sGB+1}], 0 glc")
        A(f"s_add_u32 s{sCNT}, s{sCNT}, 1")
        A(f"s_cmp_gt_u32 s{sCNT}, {opt.maxhint}")
        A("s_waitcnt lgkmcnt(0)")
        A("s_cbranch_scc1 L_pl1d")
        A("s_sub_u32 s9, s8, s4")
        A(f"s_cmp_lt_u32 s9, {0x200000 if opt.lcnt else opt.lthr}")
        A("s_cbranch_scc1 L_pl1")
        A("L_pl1d:")
        stampval(10, sCNT)
    stamp(3)
    A("s_mov_b32 s9, 0")
    A(f"s_mov_b32 s{sTMP3}, 0")
    A("L_lse:")
    if not (opt.dbg & 2): A(f"global_load_dwordx2 v[{vLS}:{vLS+1}], v{vTMP3}, s[{sGA}:{sGA+1}] sc1")
    if not (opt.dbg & 7):
        A("s_cmp_lg_u32 s9, 0")
        A("s_cbranch_scc1 L_lse_wait")
        A("L_pl2:")
        A("s_cmp_eq_u32 s8, s5")
        A("s_cbranch_scc1 L_pl_sig")
        A(f"s_cmp_gt_u32 s{sCNT}, {opt.maxhint}")
        A("s_cbranch_scc1 L_pl_sig")
        A("s_getreg_b32 s10, hwreg(HW_REG_IB_STS, 0, 4)")
        A("s_cmp_eq_u32 s10, 0")
        A("s_cbranch_scc1 L_lse_wait")
        A(f"s_load_dword s8, s[{sGB}:{sGB+1}], 0 glc")
        A(f"s_add_u32 s{sCNT}, s{sCNT}, 1")
        A("s_waitcnt lgkmcnt(0)")
        A("s_branch L_pl2")
        A("L_pl_sig:")
        signal(F_LRDY)
        A("s_mov_b32 s9, 1")
        stamp(5)
    A("L_lse_wait:")
    if not (opt.dbg & 7):
        A(f"s_load_dword s8, s[{sGB}:{sGB+1}], 0 glc")
    A(f"s_add_u32 s{sTMP3}, s{sTMP3}, 1")
    A("s_waitcnt vmcnt(0)")
    A(f"v_cmp_ne_u32 vcc, s{sT}, v{vLS+1}")
    A(f"s_cbranch_vccz L_lsed")
    A(f"s_cmp_le_u32 s{sTMP3}, {0 if (opt.dbg & 7) else opt.maxpoll}")
    A("s_waitcnt lgkmcnt(0)")
    A(f"s_cbranch_scc1 L_lse")
    A("L_lsed:")
    stampval(12, sTMP3)
    A(f"v_max_f32_dpp v{vTMP}, v{vLS}, v{vLS} quad_perm:[1,0,3,2] row_mask:0xf bank_mask:0xf")
    A("s_nop 1")
    A(f"v_max_f32_dpp v{vTMP}, v{vTMP}, v{vTMP} quad_perm:[2,3,0,1] row_mask:0xf bank_mask:0xf")
    A(f"v_sub_f32 v{vLS}, v{vLS}, v{vTMP}")
    A(f"v_exp_f32 v{vLS}, v{vLS}")
    A("s_nop 1")
    A(f"v_add_f32_dpp v{vTMP}, v{vLS}, v{vLS} quad_perm:[1,0,3,2] row_mask:0xf bank_mask:0xf")
    A("s_nop 1")
    A(f"v_add_f32_dpp v{vTMP}, v{vTMP}, v{vTMP} quad_perm:[2,3,0,1] row_mask:0xf bank_mask:0xf")
    A(f"v_rcp_f32 v{vTMP}, v{vTMP}")
    A("s_nop 0")
    A(f"v_mul_f32 v{vLS}, v{vLS}, v{vTMP}")
    A(f"v_mul_f32 v{vLS}, {fbits(2.0**-LO_):#x}, v{vLS}")
    A(f"ds_write_b32 v{vWA}, v{vLS} offset:{F_WT}")
    signal(F_WRDY)
    stamp(4)
    if not (opt.dbg & 7):
        A("s_cmp_lg_u32 s9, 0")
        A("s_cbranch_scc1 L_pl_fin")
        A("s_waitcnt lgkmcnt(0)")
        A("s_cmp_eq_u32 s8, s5")
        A("s_cbranch_scc1 L_pl_sig2")
    pollcnt(sGB, 5, opt.psleep, cntstamp=11)
    A("L_pl_sig2:")
    signal(F_LRDY)
    stamp(5)
    A("L_pl_fin:")
    A("s_barrier")
    A("s_branch L_exit")
    A("L_pollM:")
    A(f"s_lshl2_add_u32 s{sTMP}, s{sBB}, s{sSPL}")
    A(f"s_lshr_b32 s{sTMP}, s{sTMP}, {int(math.log2(32//NREP))}")
    A(f"s_lshl_b32 s{sTMP2}, s{sG}, 5")
    A(f"s_add_u32 s{sTMP}, s{sTMP}, s{sTMP2}")
    A(f"s_mul_i32 s{sTMP}, s{sTMP}, {CS}")
    ws_addr(sGB, WS_QC, sTMP)
    if opt.qhint: A(f"s_load_dword s4, s[{sGB}:{sGB+1}], 0 glc")
    A(f"s_mul_i32 s{sTMP}, s{sRBK}, {HREP}")
    A(f"s_and_b32 s{sTMP2}, s{sCB}, {HREP-1}")
    A(f"s_add_u32 s{sTMP}, s{sTMP}, s{sTMP2}")
    A(f"s_mul_i32 s{sTMP}, s{sTMP}, {CS}")
    ws_addr(sGA, WS_HC, sTMP)
    A(f"s_load_dword s5, s[{sGA}:{sGA+1}], 0 glc")
    if opt.fgate:
        A(f"s_and_b32 s{sTMP}, s{sR}, {opt.frep-1}")
        A(f"s_lshl4_add_u32 s{sTMP}, s{sXCD}, s{sTMP}")
        A(f"s_mul_i32 s{sTMP}, s{sTMP}, {CS}")
        ws_addr(10, WS_FC, sTMP)
        A(f"s_load_dword s6, s[10:11], 0 glc")
    A(f"s_bitcmp1_b32 s{sKB0}, 1")
    A(f"s_cselect_b32 s{sTMP}, 12, 8")
    A("s_waitcnt lgkmcnt(0)")
    if opt.fgate: A("s_add_u32 s6, s6, 32")
    A("s_add_u32 s4, s4, 64")
    A(f"s_add_u32 s5, s5, s{sTMP}")
    if opt.fgate: A("s_mov_b32 s9, s6")
    for k, l in touch:
        if k in "AM": A(f"s_call_b64 s[6:7], {l}")
    if opt.qhint:
        wait_prog(False, opt.qgate, sleep=2)
        stamp(2)
        pollcnt(sGB, 4, opt.psleep, cntstamp=10)
        signal(F_QRDY)
        stamp(3)
    wait_prog(False, opt.hgate, sleep=2)
    stamp(4)
    pollcnt(sGA, 5, opt.psleep, cntstamp=11)
    signal(F_LRDY)
    stamp(5)
    A("s_barrier")
    if opt.fgate:
        stamp(6)
        pollcnt(10, 9, 0, cntstamp=12)
        if opt.fbar: A("s_barrier")
        else: signal(F_FRDY)
        stamp(7)

    A("L_exit:")
    if STAMP:
        A("s_waitcnt lgkmcnt(0)")
        A(f"s_mul_i32 s{sTMP}, s2, {NWAVES}")
        A(f"s_add_u32 s{sTMP}, s{sTMP}, s3")
        A(f"s_lshl_b32 s{sTMP}, s{sTMP}, 6")
        A(f"s_add_u32 s{sTMP}, s{sTMP}, {WS_STAMP}")
        A(f"v_mov_b32 v1, s{sTMP}")
        A("s_mov_b64 exec, 1")
        for i in range(NST if STAMP == 1 else 10):
            A(f"v_mov_b32 v2, s{sST+2*i}")
            A(f"global_store_dword v1, v2, s[{sWS}:{sWS+1}] offset:{4*i}")
        A(f"v_mov_b32 v2, s{sROLE}")
        A(f"global_store_dword v1, v2, s[{sWS}:{sWS+1}] offset:60")
    A("L_end:")
    A("s_endpgm")

    body = "\n".join(g.o)
    PADTXT = f".p2align 12\n.fill {opt.pad//4}, 4, 0xbf810000\n" if opt.pad >= 0 else ""
    txt = HEADER
    txt += f"; @launch grid=(256,1,1) block=({64*NWAVES},1,1) lds={LDS_BYTES}\n"
    txt += f""".amdgcn_target "amdgcn-amd-amdhsa--gfx950"
.text
.globl {KNAME}
{PADTXT}.p2align 8
.type {KNAME},@function
{KNAME}:
{body}
.section .rodata,"a"
.p2align 6
.amdhsa_kernel {KNAME}
  .amdhsa_next_free_vgpr {NV}
  .amdhsa_next_free_sgpr 102
  .amdhsa_accum_offset {NV}
  .amdhsa_group_segment_fixed_size 0
  .amdhsa_kernarg_size 104
  .amdhsa_user_sgpr_count 2
  .amdhsa_user_sgpr_kernarg_segment_ptr 1
  .amdhsa_system_sgpr_workgroup_id_x 1
.end_amdhsa_kernel
"""
    return txt

def parse(argv):
    ap = argparse.ArgumentParser()
    ap.add_argument("--nt", default="nt")
    ap.add_argument("--pb", default="20:24,8:22")
    ap.add_argument("--pc", default="4:20,d,3:4,5:12")
    ap.add_argument("--pm", default="20:24,7:20")
    ap.add_argument("--nb0", type=int, default=3)
    ap.add_argument("--stamp", type=int, default=0)
    ap.add_argument("--stq", type=int, default=0)
    ap.add_argument("--fdelay", type=int, default=0)
    ap.add_argument("--qgate", type=int, default=9)
    ap.add_argument("--ogate", type=int, default=19)
    ap.add_argument("--ogatec", type=int, default=26)
    ap.add_argument("--hgate", type=int, default=19)
    ap.add_argument("--ggate", type=int, default=1)
    ap.add_argument("--maxpoll", type=int, default=100000)
    ap.add_argument("--psleep", type=int, default=0)
    ap.add_argument("--fsleep", type=int, default=2)
    ap.add_argument("--gsleep", type=int, default=0)
    ap.add_argument("--fgsleep", type=int, default=0)
    ap.add_argument("--sample", type=int, default=0)
    ap.add_argument("--outflags", default="sc1")
    ap.add_argument("--fixdur", type=int, default=0)
    ap.add_argument("--fixwg", type=int, default=128)
    ap.add_argument("--nocomm", type=int, default=0)
    ap.add_argument("--dbg", type=int, default=0)
    ap.add_argument("--cpf", type=int, default=2)
    ap.add_argument("--qlead", type=int, default=-1)
    ap.add_argument("--hlead", type=int, default=-1)
    ap.add_argument("--olead", type=int, default=-1)
    ap.add_argument("--oearly", type=int, default=0)
    ap.add_argument("--flagwave", type=int, default=1)
    ap.add_argument("--xgat", type=int, default=10)
    ap.add_argument("--nrep", type=int, default=8)
    ap.add_argument("--satom", type=int, default=1)
    ap.add_argument("--maxhint", type=int, default=20)
    ap.add_argument("--hround", type=int, default=0)
    ap.add_argument("--fgate", type=int, default=0)
    ap.add_argument("--frep", type=int, default=8)
    ap.add_argument("--flag_delay", type=int, default=1)
    ap.add_argument("--qhint", type=int, default=0)
    ap.add_argument("--qsleep", type=int, default=4)
    ap.add_argument("--lcnt", type=int, default=0)
    ap.add_argument("--lthr", type=int, default=16)
    ap.add_argument("--spec", type=int, default=0)
    ap.add_argument("--ackst", type=int, default=0)
    ap.add_argument("--cstride", type=int, default=640)
    ap.add_argument("--midahead", type=int, default=1)
    ap.add_argument("--fine", type=int, default=0)
    ap.add_argument("--pad", type=lambda x: int(x, 0), default=0xd00)
    ap.add_argument("--touch", type=int, default=0)
    ap.add_argument("--sbias", type=int, default=0)
    ap.add_argument("--period", type=int, default=0)
    ap.add_argument("--toff", type=int, default=650)
    ap.add_argument("--qsync", type=int, default=0)
    ap.add_argument("--lprio", type=int, default=3)
    ap.add_argument("--cprio", type=int, default=0)
    ap.add_argument("--gprio", type=int, default=0)
    ap.add_argument("--kvmode", default="lin")
    ap.add_argument("--kvrot", type=int, default=4)
    ap.add_argument("--rotw", type=int, default=1)
    ap.add_argument("--lrot", type=int, default=3)
    ap.add_argument("--lflow", type=int, default=2)
    ap.add_argument("--wmin", type=int, default=27)
    ap.add_argument("--notif", type=int, default=1)
    ap.add_argument("--ndelay", type=int, default=0)
    ap.add_argument("--odelay", type=int, default=0)
    ap.add_argument("--pdelay", type=int, default=6)
    ap.add_argument("--nprogh", type=int, default=20)
    ap.add_argument("--nprogo", type=int, default=20)
    ap.add_argument("--gran", type=int, default=2)
    ap.add_argument("--barpos", type=int, default=1)
    ap.add_argument("--fsat", type=int, default=1)
    ap.add_argument("--gok", type=int, default=7)
    ap.add_argument("--fbar", type=int, default=1)
    ap.add_argument("--specw", type=int, default=1)
    ap.add_argument("--fearly", type=int, default=0)
    ap.add_argument("--tlb", type=int, default=0)
    ap.add_argument("--cpfc", type=int, default=0)
    ap.add_argument("--stlb", type=int, default=0)
    ap.add_argument("-o", default=None)
    return ap.parse_args(argv)

if __name__ == "__main__":
    opt = parse(sys.argv[1:])
    t = gen(opt)
    if opt.o: open(opt.o, "w").write(t)
    else: print(t)
```

```python
import sys, argparse, struct, math

KNAME = "gated_mix__sliding_block_cached__glu_gated_reglu__decode_kernel"
HEADER = open("gated_mix__sliding_block_cached__glu_gated_reglu__decode.s.ref").read().split("; Override launch")[0]

RA = 0
RB = 65536
XA = 131072
RQ = RB + 32768
XF = XA
QF = XA + 2048
PF = XA + 4096
RS = XA + 8192
ST = XA + 10240
AF = XA + 12288
FL = XA + 16384
F_PROG, F_LRDY, F_QRDY, F_WRDY, F_BQ, F_BM, F_BP, F_BA, F_RED, F_PUB0, F_PUB1, F_FREE0, F_FREE1, F_ERD, F_FRDY = [4*i for i in range(15)]
F_MAX = 64
F_G = 96
F_WT = 128
LDS_BYTES = FL + 128 + 256

WS_QP = 512 << 10
WS_FP = 1024 << 10
WS_OP = 1536 << 10
WS_GP = 1792 << 10
WS_LSE = 16 << 10
WS_QC = 64 << 10
WS_OC = 160 << 10
WS_HC = 256 << 10
WS_FC = 352 << 10
WS_STAMP = 8 << 20

class G:
    def __init__(self):
        self.o = []; self.nlab = 0
    def A(self, s):
        for line in s.split("\n"):
            self.o.append("    " + line.strip() if not line.strip().endswith(":") else line.strip())
    def lab(self, p="L"):
        self.nlab += 1
        return f"{p}_{self.nlab}"

def plan(s):
    out = []
    for t in s.split(","):
        if t == "d": out.append("d")
        else:
            a, b = t.split(":")
            out.append((int(a), tuple(int(x) for x in b.split("/")) if "/" in b else int(b)))
    return out

def gen(opt):
    g = G(); A = g.A
    CS = opt.cstride
    NWAVES = 11 if opt.notif else 10
    NT = opt.nt
    STAMP = opt.stamp
    sX, sK, sV, sWQ, sWO, sBX, sWG, sWU = [16+2*i for i in range(8)]
    sWD, sGW, sOUT, sDBG = 32, 34, 36, 38
    sWS = 40
    sXCD, sR, sROLE = 42, 43, 44
    sU, sBETA, sG, sSPL, sRBK, sCB, sBB = 45, 46, 47, 48, 49, 50, 51
    sKS, sKB0 = 100, 101
    sLR = 53
    sWDN = 52
    sT = 54
    sT0, sT1, sT2, sT3 = 54, 56, 57, 53
    sSEL0, sSEL1, sSEL2, sSEL3 = 58, 59, 60, 61
    sPROG, sC = 62, 63
    sTMP, sTMP2, sTMP3, sCNT = 64, 65, 66, 67
    sGA, sGB = 68, 70
    sROT = 15
    sSM = 4
    sST = 72
    NST = 14
    SRD = 8
    def stamp(idx, key=False):
        if STAMP == 1 or (STAMP and (key or idx == 0)): A(f"s_memrealtime s[{sST+2*idx}:{sST+2*idx+1}]")
    touch = []
    def pad(kind):
        if not opt.touch: return
        l = g.lab("L_tp"); touch.append((kind, l))
        A(f"{l}:")
        A("s_setpc_b64 s[6:7]")
    def stampval(idx, sreg):
        if STAMP == 1: A(f"s_mov_b32 s{sST+2*idx}, s{sreg}")
    pb, pc, pm = plan(opt.pb), plan(opt.pc), plan(opt.pm)
    NB0 = opt.nb0
    assert NB0 <= 3

    stamp(0)
    if opt.fixdur: A("s_memrealtime s[98:99]")
    A("s_load_dwordx16 s[16:31], s[0:1], 0")
    A("s_load_dwordx8 s[32:39], s[0:1], 64")
    A("s_load_dwordx2 s[40:41], s[0:1], 96")
    A(f"s_cmp_ge_u32 s2, 256")
    A("s_cbranch_scc1 L_end")
    A("v_lshrrev_b32 v1, 6, v0")
    A("v_and_b32 v0, 63, v0")
    A("v_readfirstlane_b32 s3, v1")
    A(f"s_and_b32 s{sXCD}, s2, 7")
    A(f"s_lshr_b32 s{sR}, s2, 3")
    A(f"s_lshr_b32 s{sG}, s{sXCD}, 1")
    A(f"s_and_b32 s{sTMP3}, s{sXCD}, 1")
    A(f"s_add_u32 s{sROT}, s{sR}, s{2 if opt.rotw else sXCD}")
    A(f"s_lshl_b32 s{sTMP}, s{sXCD}, 1")
    A(f"s_sub_u32 s{sTMP}, s{sR}, s{sTMP}")
    A(f"s_sub_u32 s{sTMP}, s{sTMP}, 4")
    A(f"s_bfe_u32 s{sTMP2}, s{sTMP}, 0x20002")
    A(f"s_and_b32 s{sTMP}, s{sTMP}, 3")
    A(f"s_lshl2_add_u32 s{sU}, s{sTMP}, s{sTMP2}")
    A(f"s_cmp_ge_u32 s{sR}, 16")
    A(f"s_cselect_b32 s{sU}, s{sR}, s{sU}")
    A(f"s_lshr_b32 s{sTMP}, s{sU}, 3")
    A(f"s_lshl2_add_u32 s{sKS}, s{sTMP3}, s{sTMP}")
    A("s_cmp_lg_u32 s3, 0")
    A("s_cbranch_scc1 L_notloader")
    sSOFF, sSTEP, sNB, sBLK = 4, 5, 6, 7
    sIDX, sWRAP, sBASE = 12, 13, 14
    sNOW, sDL = 56, 58
    TIMED = "/" in (opt.pb + opt.pm + opt.pc)
    if TIMED: A(f"s_memrealtime s[{sNOW}:{sNOW+1}]")
    A(f"s_setprio {opt.lprio}")
    A(f"v_mov_b32 v9, {FL}")
    A("v_mov_b32 v10, 0xff7fffff")
    A("v_cmp_gt_u32 vcc, 16, v0")
    A("v_lshl_add_u32 v11, v0, 2, v9")
    A("v_lshrrev_b32 v2, 4, v0")
    A("v_cndmask_b32 v10, v10, 0, vcc")
    A("ds_write_b32 v11, v10")
    A("v_bfe_u32 v3, v0, 1, 3")
    A("v_xor_b32 v3, v3, v2")
    A("v_lshlrev_b32 v3, 5, v3")
    A("v_and_b32 v4, 1, v0")
    A("v_lshl_or_b32 v3, v4, 4, v3")
    A("v_xor_b32 v4, 0x80, v3")
    A("v_lshl_add_u32 v5, v2, 13, v3")
    A("v_lshl_add_u32 v6, v2, 13, v4")
    A(f"s_mov_b32 s{SRD+3}, 0x20000")
    A(f"s_and_b32 s{sTMP}, s{sU}, 7")
    A(f"s_lshl3_add_u32 s{sTMP}, s{sG}, s{sTMP}")
    A(f"s_lshl_b32 s{sTMP}, s{sTMP}, 8")
    A(f"s_lshl_b32 s{sSOFF}, s{sKS}, 20")
    A(f"s_add_u32 s{sSOFF}, s{sSOFF}, s{sTMP}")
    A(f"s_mov_b32 s{SRD+2}, {1024*4096*2}")
    A(f"s_mov_b32 s{sNB}, {NB0}")
    A(f"s_mov_b32 s{sSTEP}, {4*8192}")
    A(f"s_mov_b32 m0, {RQ}")
    A(f"s_mov_b32 s{sBLK}, {NB0}")
    if opt.fine == 2: stamp(5)
    A("s_waitcnt lgkmcnt(0)")
    if opt.fine == 2: stamp(6)
    A(f"s_mov_b64 s[{SRD}:{SRD+1}], s[{sWQ}:{sWQ+1}]")
    if TIMED: A(f"s_mov_b32 s{sDL}, s{sNOW}")
    if opt.barpos == 0: A("s_barrier")
    if opt.fine == 2: stamp(7)
    def blk_body(win, rot):
        GR = opt.gran
        if win is not None:
            assert win % GR == 0
            pj = win % 8
            back = (win - pj) // 8
        for j in range(8):
            half, i = j >> 2, j & 3
            if win is not None and j % GR == 0:
                if j == pj:
                    A(f"s_sub_u32 s{sTMP}, s{sBLK}, {back}")
                    A(f"s_max_i32 s{sPROG}, s{sTMP}, s{sPROG}")
                    A(f"v_mov_b32 v10, s{sPROG}")
                A(f"s_waitcnt vmcnt({win})")
                if j == pj: A(f"ds_write_b32 v9, v10 offset:{F_PROG}")
            v = 5 if ((i >> 1) & 1) == 0 else 6
            A(f"buffer_load_dwordx4 v{v}, s[{SRD}:{SRD+3}], s{sSOFF} offen {NT} lds")
            A(f"s_add_u32 m0, m0, 1024")
            if rot == "kv":
                st = {"lin": 1024, "tr1": 8192 + (1024 if (half, i) == (1, 3) else 0),
                      "tr2": (1024 if i % 2 == 0 else 15360) + (2048 if (half, i) == (1, 3) else 0)}[opt.kvmode]
                A(f"s_add_u32 s{sIDX}, s{sIDX}, {st}")
                A(f"s_pack_lh_b32_b16 s{sSOFF}, s{sIDX}, s{sSOFF}")
            else:
                A(f"s_add_u32 s{sSOFF}, s{sSOFF}, s{sSTEP}")
        if rot == 7:
            A(f"s_add_u32 s{sIDX}, s{sIDX}, 1")
            A(f"s_cmp_eq_u32 s{sIDX}, 7")
            A(f"s_cselect_b32 s{sTMP}, {7*65536}, 0")
            A(f"s_sub_u32 s{sSOFF}, s{sSOFF}, s{sTMP}")
        if rot is True:
            A(f"s_add_u32 s{sIDX}, s{sIDX}, 1")
            A(f"s_and_b32 s{sIDX}, s{sIDX}, 7")
            A(f"s_cselect_b32 s{sTMP}, 0, s{sWRAP}")
            A(f"s_sub_u32 s{sSOFF}, s{sSOFF}, s{sTMP}")
    if opt.barpos == 1:
        blk_body(None, False)
        A("s_barrier")
        A(f"s_mov_b32 s{sNB}, {NB0-1}")
    A("L_top_loop:")
    blk_body(None, False)
    A(f"s_sub_u32 s{sNB}, s{sNB}, 1")
    A(f"s_cmp_lg_u32 s{sNB}, 0")
    A("s_cbranch_scc1 L_top_loop")
    if opt.barpos == 2: A("s_barrier")
    A("s_branch L_loader2")
    A("L_notloader:")
    if opt.stlb:
        A("s_cmp_eq_u32 s3, 10")
        A("s_cbranch_scc1 L_loader2")
    if opt.cpf:
        A(f"s_cmp_gt_u32 s3, {opt.cpf}")
        A("s_cbranch_scc1 L_cpf_done")
        if opt.cpfc:
            A(f"s_cmp_lg_u32 s{sR}, 14")
            A("s_cbranch_scc1 L_cpf_done")
        A("s_getpc_b64 s[4:5]")
        A("L_pc:")
        A(f"s_lshl_b32 s{sTMP}, s3, 13")
        A(f"s_sub_u32 s{sTMP}, s{sTMP}, 8192")
        A(f"v_lshl_add_u32 v1, v0, 7, s{sTMP}")
        A(f"v_cmp_gt_u32 vcc, L_end-L_pc, v1")
        A("s_and_saveexec_b64 s[6:7], vcc")
        A("s_cbranch_execz L_cpf_done2")
        A(f"global_load_dword v127, v1, s[4:5]")
        A("L_cpf_done2:")
        A("s_mov_b64 exec, -1")
        A("L_cpf_done:")
    A("s_barrier")
    A("s_branch L_cons")

    def decode2(keep=False):
        d = g.lab("L_d2"); m = g.lab("L_d2m")
        if STAMP:
            for i in range(1, NST):
                if not (opt.fine == 2 and keep and i in (5, 6, 7)): A(f"s_mov_b32 s{sST+2*i}, 0")
        A(f"s_mul_i32 s{sBETA}, s{sXCD}, 14")
        A(f"s_add_u32 s{sBETA}, s{sBETA}, s{sR}")
        A(f"s_mov_b32 s{sPROG}, 0")
        A(f"s_cmp_ge_u32 s{sR}, 16")
        A(f"s_cbranch_scc1 {m}")
        A(f"s_cmp_ge_u32 s{sR}, 14")
        A(f"s_cselect_b32 s{sROLE}, 2, 1")
        A(f"s_lshr_b32 s{sTMP}, s{sU}, 3")
        A(f"s_lshl1_add_u32 s{sRBK}, s{sXCD}, s{sTMP}")
        A(f"s_add_u32 s{sTMP}, s{sU}, 3")
        A(f"s_and_b32 s{sTMP}, s{sTMP}, 3")
        A(f"s_and_b32 s{sCB}, s{sU}, 4")
        A(f"s_or_b32 s{sCB}, s{sCB}, s{sTMP}")
        A(f"s_lshl_b32 s{sKB0}, s{sRBK}, 3")
        A(f"s_add_u32 s{sLR}, s{sR}, s{sXCD}")
        A(f"s_and_b32 s{sLR}, s{sLR}, {7 if opt.lrot & 1 else 0}")
        A(f"s_branch {d}")
        A(f"{m}:")
        A(f"s_mov_b32 s{sROLE}, 0")
        A(f"s_and_b32 s{sTMP}, s{sXCD}, 1")
        A(f"s_bfe_u32 s{sBB}, s{sR}, 0x20002")
        A(f"s_lshl2_add_u32 s{sBB}, s{sTMP}, s{sBB}")
        A(f"s_and_b32 s{sSPL}, s{sR}, 3")
        A(f"s_bfe_u32 s{sTMP}, s{sR}, 0x10003")
        A(f"s_lshl1_add_u32 s{sRBK}, s{sXCD}, s{sTMP}")
        A(f"s_mul_i32 s{sKB0}, s{sRBK}, 7")
        A(f"s_and_b32 s{sLR}, s{sR}, {7 if opt.lrot & 2 else 0}")
        A(f"s_cmp_eq_u32 s{sLR}, 7")
        A(f"s_cselect_b32 s{sLR}, 3, s{sLR}")
        A(f"s_add_u32 s{sCB}, s{sR}, 1")
        A(f"s_and_b32 s{sCB}, s{sCB}, 7")
        A(f"{d}:")

    A("L_loader2:")
    decode2(True)
    if opt.stlb:
        A("s_cmp_eq_u32 s3, 0")
        A("s_cbranch_scc1 L_loader3")
        A(f"v_mov_b32 v9, {FL}")
        if STAMP:
            for i in (5, 6, 7): A(f"s_mov_b32 s{sST+2*i}, 0")
        A("s_waitcnt lgkmcnt(0)")
        if opt.stlb & 4:
            A(f"s_lshl_b32 s{sTMP}, s2, 6")
            A(f"s_load_dword s8, s[{sX}:{sX+1}], s{sTMP}")
            A(f"s_lshl_b32 s{sTMP}, s{sR}, 6")
            A(f"s_load_dword s9, s[{sGW}:{sGW+1}], s{sTMP}")
        A(f"s_lshl_b32 s{sTMP}, s{sKB0}, 16")
        A(f"s_lshl_b32 s{sTMP2}, s{sCB}, 8")
        A(f"s_add_u32 s{sTMP}, s{sTMP}, s{sTMP2}")
        A(f"s_cmp_ge_u32 s{sR}, 16")
        A("s_cbranch_scc1 L_stM")
        A(f"s_load_dword s4, s[{sWO}:{sWO+1}], s{sTMP}")
        if opt.stlb & 2:
            A(f"s_cmp_eq_u32 s{sROLE}, 2")
            A("s_cbranch_scc1 L_stD")
            A(f"s_bitcmp0_b32 s{sBETA}, 1")
            A(f"s_cselect_b64 s[12:13], s[{sWG}:{sWG+1}], s[{sWU}:{sWU+1}]")
            A(f"s_and_b32 s{sTMP}, s{sBETA}, 1")
            A(f"s_mul_i32 s{sTMP}, s{sTMP}, {512*7168}")
            A(f"s_lshr_b32 s{sTMP2}, s{sBETA}, 2")
            A(f"s_lshl_b32 s{sTMP2}, s{sTMP2}, 8")
            A(f"s_add_u32 s{sTMP}, s{sTMP}, s{sTMP2}")
            for i in range(3):
                A(f"s_load_dword s{5+i}, s[12:13], s{sTMP}")
                A(f"s_add_u32 s{sTMP}, s{sTMP}, {255*7168}")
        A("s_branch L_stD")
        A("L_stM:")
        A(f"s_load_dword s4, s[{sWD}:{sWD+1}], s{sTMP}")
        A(f"s_add_u32 s{sTMP}, s{sTMP}, {223*2048}")
        A(f"s_load_dword s10, s[{sWD}:{sWD+1}], s{sTMP}")
        A(f"s_lshl2_add_u32 s{sTMP}, s{sBB}, s{sG}")
        A(f"s_lshl4_add_u32 s{sTMP}, s{sTMP}, s{sSPL}")
        A(f"s_add_u32 s{sTMP}, s{sTMP}, 12")
        A(f"s_lshl_b32 s{sTMP}, s{sTMP}, 16")
        if opt.stlb & 2: A(f"s_load_dword s7, s[{sK}:{sK+1}], s{sTMP}")
        A(f"s_load_dword s5, s[{sV}:{sV+1}], s{sTMP}")
        A(f"s_lshl_b32 s{sTMP}, s{sR}, 9")
        A(f"s_lshl_b32 s{sTMP2}, s{sXCD}, 6")
        A(f"s_add_u32 s{sTMP}, s{sTMP}, s{sTMP2}")
        A(f"s_load_dword s6, s[{sOUT}:{sOUT+1}], s{sTMP} glc")
        A("L_stD:")
        pass
        A("s_barrier")
        A("s_waitcnt lgkmcnt(0)")
        A("s_branch L_notif")
        A("L_loader3:")
    stamp(1)
    def lds_wait_ge(off, val, vtmp="v11", vaddr="v9", sleep=0):
        l = g.lab("L_w")
        A(f"{l}:")
        if sleep: A(f"s_sleep {sleep}")
        A(f"ds_read_b32 {vtmp}, {vaddr} offset:{off}")
        A("s_waitcnt lgkmcnt(0)")
        A(f"v_readfirstlane_b32 s{sTMP}, {vtmp}")
        A(f"s_cmp_ge_u32 s{sTMP}, {val}")
        A(f"s_cbranch_scc0 {l}")
    def wmax(w): return max(w) if isinstance(w, tuple) else w
    def blk_loop(nblk, win, rot):
        l = g.lab("L_ld")
        if nblk > 1:
            A(f"s_mov_b32 s{sNB}, {nblk}")
            A(f"{l}:")
        if isinstance(win, tuple):
            hi = g.lab("L_hi"); j = g.lab("L_jn")
            A(f"s_memrealtime s[{sNOW}:{sNOW+1}]")
            A(f"s_mul_i32 s{sTMP2}, s{sBLK}, {opt.period}")
            A(f"s_add_u32 s{sTMP2}, s{sTMP2}, {opt.toff}")
            A("s_waitcnt lgkmcnt(0)")
            A(f"s_sub_u32 s{sTMP}, s{sNOW}, s{sDL}")
            A(f"s_cmp_gt_u32 s{sTMP}, s{sTMP2}")
            A(f"s_cbranch_scc1 {hi}")
            for k in range(3, win[0]//8, -1):
                A(f"s_sub_u32 s{sTMP}, s{sBLK}, {k}")
                A(f"s_max_i32 s{sPROG}, s{sTMP}, s{sPROG}")
                A(f"v_mov_b32 v10, s{sPROG}")
                A(f"s_waitcnt vmcnt({8*k})")
                A(f"ds_write_b32 v9, v10 offset:{F_PROG}")
            blk_body(win[0], False)
            A(f"s_branch {j}")
            A(f"{hi}:")
            blk_body(win[1], False)
            A(f"{j}:")
            assert not rot
        else:
            blk_body(win, rot)
        A(f"s_add_u32 s{sBLK}, s{sBLK}, 1")
        if nblk > 1:
            A(f"s_sub_u32 s{sNB}, s{sNB}, 1")
            A(f"s_cmp_lg_u32 s{sNB}, 0")
            A(f"s_cbranch_scc1 {l}")
    def drain(maxwin, kmin=0):
        for k in range((maxwin + 4 + 7)//8 - 1, kmin - 1, -1):
            A(f"s_sub_u32 s{sTMP}, s{sBLK}, {k}")
            A(f"s_max_i32 s{sPROG}, s{sTMP}, s{sPROG}")
            A(f"v_mov_b32 v10, s{sPROG}")
            A(f"s_waitcnt vmcnt({8*k})")
            A(f"ds_write_b32 v9, v10 offset:{F_PROG}")
    def set_stride(stride):
        A(f"s_mov_b32 s{sSTEP}, {4*stride}")
        if stride & (stride-1) == 0:
            sh = stride.bit_length()-1
            A(f"v_lshl_add_u32 v5, v2, {sh}, v3")
            A(f"v_lshl_add_u32 v6, v2, {sh}, v4")
        else:
            A(f"v_mul_u32_u24 v8, {stride}, v2")
            A("v_add_u32 v5, v8, v3")
            A("v_add_u32 v6, v8, v4")
        A(f"s_mov_b32 s{sWRAP}, {256*stride}")
    XSRD = 68
    def xloads(n, ldsbase):
        for j in range(4):
            A(f"s_add_u32 s{sTMP}, s{sROT}, {2*j}")
            A(f"s_and_b32 s{sTMP}, s{sTMP}, 7")
            A(f"s_lshl_b32 s{sTMP}, s{sTMP}, 6")
            A(f"s_add_u32 s{sTMP}, s{sTMP}, s{sTMP3}")
            for q in range(n//4):
                A(f"s_mov_b32 m0, {ldsbase + 4096*q + 1024*j - 512*q}")
                A("s_nop 0")
                A(f"buffer_load_dwordx4 v7, s[{XSRD}:{XSRD+3}], s{sTMP} offen offset:{512*q} lds")
    def run_plan(pl, segs, start, hook=None):
        blk = 0; lastwin = 0
        segmap = {x[0]: x for x in segs}
        rot = False
        items = []
        for it in pl:
            if it == "d": items.append(it); continue
            n, w = it
            while n:
                c = min(n, 4 - blk if blk < 4 else 8 - ((blk - 4) % 8))
                if blk < start: c = min(c, start - blk)
                if hook and blk < hook[0]: c = min(c, hook[0] - blk)
                if blk >= start: items.append((blk, c, w))
                blk += c; n -= c
            lastw = w
        lastwin = pl[0][1]
        for it in items:
            if it == "d":
                drain(max(wmax(lastwin), 8*start)); continue
            b0, c, w = it
            if b0 >= 4 and (b0 - 4) % 8 == 0:
                seg = (b0 - 4) // 8 + 1
                stamp(1 + seg)
                if seg >= 2: lds_wait_ge(F_FREE0 + 4*(seg-2), 8)
                if b0 in segmap:
                    segmap[b0][1](); rot = segmap[b0][2]
                elif rot:
                    A(f"s_add_u32 s{sSOFF}, s{sSOFF}, s{sWRAP}")
                A(f"s_mov_b32 m0, {RA if seg % 2 == 1 else RB}")
            if hook and b0 == hook[0]: hook[1]()
            blk_loop(c, w, rot)
            lastwin = w
        stamp(8)
        if opt.fgate:
            A(f"s_mul_i32 s{sTMP}, s{sCB}, {16*CS}")
            A(f"s_add_u32 s{sTMP}, s{sTMP}, {WS_FC}")
            A(f"s_add_u32 s4, s{sWS}, s{sTMP}")
            A(f"s_addc_u32 s5, s{sWS+1}, 0")
            A(f"v_mul_u32_u24 v5, {CS}, v0")
            A("v_mov_b32 v6, 1")
        drain(max(wmax(x[1]) for x in pl if x != "d"), 1 if opt.fearly else 0)
        if not opt.fearly: stamp(9)
        A("s_branch L_ld_end")
    def late_seg(ptr, nbytes):
        def f():
            set_stride(2048)
            A(f"s_mov_b64 s[{SRD}:{SRD+1}], s[{ptr}:{ptr+1}]\ns_mov_b32 s{SRD+2}, {nbytes}")
            A(f"s_mov_b32 s{sIDX}, s{sLR}")
            A(f"s_add_u32 s{sSOFF}, s{sKB0}, s{sLR}")
            A(f"s_lshl_b32 s{sSOFF}, s{sSOFF}, 16")
            A(f"s_lshl_b32 s{sTMP}, s{sCB}, 8")
            A(f"s_add_u32 s{sSOFF}, s{sSOFF}, s{sTMP}")
        return f
    A("v_and_b32 v7, 7, v0")
    A("v_lshlrev_b32 v7, 11, v7")
    A("v_lshrrev_b32 v8, 3, v0")
    A("v_lshl_add_u32 v7, v8, 4, v7")
    A(f"s_mov_b64 s[{XSRD}:{XSRD+1}], s[{sX}:{sX+1}]\ns_mov_b32 s{XSRD+2}, 16384\ns_mov_b32 s{XSRD+3}, 0x20000")
    A(f"s_lshl_b32 s{sTMP3}, s{sKS}, 8")
    A(f"s_mov_b32 m0, {XF}")
    A("s_nop 0")
    A(f"buffer_load_dwordx4 v7, s[{XSRD}:{XSRD+3}], s{sTMP3} offen lds")
    A(f"s_mov_b32 m0, {XF + 1024 - 128}")
    A("s_nop 0")
    A(f"buffer_load_dwordx4 v7, s[{XSRD}:{XSRD+3}], s{sTMP3} offen offset:128 lds")
    A(f"s_mov_b32 m0, {RQ + 8192*NB0}")
    A(f"s_cmp_ge_u32 s{sR}, 16")
    A("s_cbranch_scc1 L_ld_M")
    def b_seg1():
        A(f"s_and_b32 s{sROT}, s{sROT}, 6")
        A(f"s_mov_b32 s{sIDX}, s{sROT}")
        A(f"s_and_b32 s{sTMP2}, s{sBETA}, 1")
        set_stride(7168)
        A(f"s_mul_i32 s{sSOFF}, s{sTMP2}, {512*7168}")
        A(f"s_lshr_b32 s{sTMP}, s{sBETA}, 2")
        A(f"s_lshl_b32 s{sTMP}, s{sTMP}, 8")
        A(f"s_add_u32 s{sSOFF}, s{sSOFF}, s{sTMP}")
        A(f"s_mul_i32 s{sTMP}, s{sROT}, {32*7168}")
        A(f"s_add_u32 s{sSOFF}, s{sSOFF}, s{sTMP}")
        A(f"s_bitcmp0_b32 s{sBETA}, 1")
        A(f"s_cselect_b64 s[{SRD}:{SRD+1}], s[{sWG}:{sWG+1}], s[{sWU}:{sWU+1}]")
        A(f"s_mov_b32 s{SRD+2}, {1024*3584*2}")
    A(f"s_cmp_eq_u32 s{sROLE}, 2")
    A("s_cbranch_scc1 L_ld_C")
    assert sum(x[0] for x in pb if x != "d") == 28
    XGAT = opt.xgat
    def xg_hook():
        A(f"s_and_b32 s{sTMP3}, s{sBETA}, 1")
        A(f"s_lshl_b32 s{sTMP3}, s{sTMP3}, 10")
        xloads(8, XF + 2048)
        A(f"s_mov_b32 m0, {RA + 8192*(XGAT-4)}")
    run_plan(pb, [(4, b_seg1, True), (20, late_seg(sWO, 4096*1024*2), True)], NB0, hook=(XGAT, xg_hook))
    A("L_ld_C:")
    assert sum(x[0] for x in pc if x != "d") == 12 and pc[1] == "d" and pc[0][0] == 4
    def c_seg1():
        late_seg(sWO, 4096*1024*2)()
        A(f"s_mov_b32 s{sBLK}, 20")
    run_plan(pc, [(4, c_seg1, True)], NB0)
    A("L_ld_M:")
    def m_seg1():
        set_stride(256)
        A(f"s_mul_i32 s{sROT}, s{sROT}, {opt.kvrot*1024}")
        A(f"s_mov_b32 s{sIDX}, s{sROT}")
        A(f"s_lshl2_add_u32 s{sTMP}, s{sBB}, s{sG}")
        A(f"s_lshl4_add_u32 s{sTMP}, s{sTMP}, s{sSPL}")
        A(f"s_add_u32 s{sTMP}, s{sTMP}, 12")
        A(f"s_pack_ll_b32_b16 s{sSOFF}, s{sIDX}, s{sTMP}")
        A(f"s_mov_b64 s[{SRD}:{SRD+1}], s[{sK}:{sK+1}]\ns_mov_b32 s{SRD+2}, {8*4*4096*128*2}")
    def m_seg2():
        A(f"s_mov_b64 s[{SRD}:{SRD+1}], s[{sV}:{sV+1}]")
        A(f"s_mov_b32 s{sIDX}, s{sROT}")
        A(f"s_pack_lh_b32_b16 s{sSOFF}, s{sIDX}, s{sSOFF}")
    assert sum(x[0] for x in pm if x != "d") == 27
    run_plan(pm, [(4, m_seg1, "kv"), (12, m_seg2, "kv"), (20, late_seg(sWD, 3584*1024*2), 7)], NB0)
    A("L_ld_end:")
    if opt.nocomm: A("s_branch L_exit")
    def fbump():
        if opt.flag_delay: A(f"s_sleep {opt.flag_delay}")
        if opt.fsat:
            A("s_mov_b32 s6, 1")
            for r in range(opt.frep): A(f"s_atomic_add s6, s[4:5], {CS*r}")
        else:
            A(f"s_bfm_b64 exec, {opt.frep}, 0")
            A("global_atomic_add v5, v6, s[4:5] sc1")
            A("s_mov_b64 exec, -1")
    if opt.fearly:
        A(f"ds_read_b32 v11, v9 offset:{F_BA}")
        A(f"v_mov_b32 v10, s{sBLK}")
        A(f"s_waitcnt vmcnt({opt.fearly}) lgkmcnt(0)")
        A(f"v_readfirstlane_b32 s{sTMP}, v11")
        A(f"s_cmp_lt_u32 s{sTMP}, 8")
        A("s_cbranch_scc1 L_ld_late")
        A("s_mov_b32 s6, 1")
        for r in range(opt.frep): A(f"s_atomic_add s6, s[4:5], {CS*r}")
        A("s_waitcnt vmcnt(0)")
        A(f"ds_write_b32 v9, v10 offset:{F_PROG}")
        A("s_barrier")
        stamp(9)
        A("s_branch L_ld_fin")
        A("L_ld_late:")
        A("s_waitcnt vmcnt(0)")
        A(f"ds_write_b32 v9, v10 offset:{F_PROG}")
        stamp(9)
    if opt.fgate == 2 and not (opt.dbg & 1):
        lds_wait_ge(F_BA, opt.gok)
        fbump()
    A("s_barrier")
    if opt.fgate == 1 and not (opt.dbg & 1): fbump()
    A("L_ld_fin:")
    if opt.fgate and opt.fbar:
        A(f"s_cmp_lt_u32 s{sR}, 16")
        A("s_cbranch_scc1 L_exit")
        A("s_barrier")
    A("s_branch L_exit")

    A("L_cons:")
    vL16, vTR, vACT, vT, vPUB = 1, 2, 3, 4, 5
    vTMP, vTMP2, vTMP3 = 6, 7, 8
    vWA, vAA = 10, 11
    vW, vB, vACC, vACC2 = 12, 16, 20, 24
    vGA = 28
    vLS = 44
    vK = 52
    vQ = 84
    vRG, vRW, vRR, vOUT, vONE, vAFW, vFLG = 116, 117, 118, 119, 120, 121, 122
    vTP, vTC, vL8 = 123, 124, 125
    vSTW, vSTR = 126, 15
    vTA, vAX, vEN = 48, 49, 50
    NV = 128
    A("s_waitcnt lgkmcnt(0)")
    A(f"s_load_dword s{sT}, s[{sWS}:{sWS+1}], 0")
    decode2()
    stamp(1)
    A(f"v_mov_b32 v9, {FL}")
    if opt.notif:
        A(f"s_cmp_eq_u32 s3, 10")
        A("s_cbranch_scc1 L_notif")
    A(f"s_sub_u32 s{sC}, s3, 1")
    sSC, sM3, sMN, sEM, sRNG = 58, 60, 61, 56, 57
    A(f"s_mov_b32 s{sM3}, 0x00030003")
    A(f"s_mov_b32 s{sMN}, 0xfffcfffc")
    A(f"s_mov_b32 s{sRNG}, {27 << 23:#x}")
    A(f"v_mov_b32 v{vAX}, 0")
    A(f"v_lshlrev_b32 v{vL8}, 3, v0")
    A(f"v_mov_b32 v9, {FL}")
    A(f"v_mov_b32 v{vONE}, 1")
    A(f"v_lshlrev_b32 v{vL16}, 4, v0")
    A(f"v_mul_u32_u24 v{vFLG}, {CS}, v0")
    A(f"v_lshrrev_b32 v{vTMP2}, 4, v0")
    A(f"v_bfe_u32 v{vTMP3}, v0, 2, 2")
    A(f"v_lshl_add_u32 v{vTR}, v{vTMP2}, 3, v{vTMP3}")
    A(f"v_lshlrev_b32 v{vTR}, 8, v{vTR}")
    A(f"v_and_b32 v{vACT}, 1, v{vTMP2}")
    A(f"v_lshl_or_b32 v{vTMP3}, v{vACT}, 2, v{vTMP3}")
    A(f"v_xor_b32 v{vTMP3}, s{sC}, v{vTMP3}")
    A(f"v_lshl_or_b32 v{vTR}, v{vTMP3}, 5, v{vTR}")
    A(f"v_and_b32 v{vTMP3}, 3, v0")
    A(f"v_lshl_or_b32 v{vTR}, v{vTMP3}, 3, v{vTR}")
    A(f"v_and_b32 v{vTMP3}, 7, v0")
    A(f"v_lshl_add_u32 v{vACT}, v{vTMP2}, 3, v{vTMP3}")
    A(f"v_lshlrev_b32 v{vACT}, 4, v{vACT}")
    A(f"v_lshrrev_b32 v{vAFW}, 5, v0")
    A(f"v_lshlrev_b32 v{vAFW}, 8, v{vAFW}")
    A(f"v_and_b32 v{vTMP2}, 2, v0")
    A(f"v_lshl_or_b32 v{vAFW}, v{vTMP2}, 6, v{vAFW}")
    A(f"v_and_b32 v{vTMP2}, 28, v0")
    A(f"v_lshl_or_b32 v{vAFW}, v{vTMP2}, 2, v{vAFW}")
    A(f"v_and_b32 v{vTMP2}, 1, v0")
    A(f"v_lshl_or_b32 v{vAFW}, v{vTMP2}, 3, v{vAFW}")
    A(f"s_lshl_b32 s{sTMP}, s{sC}, 9")
    A(f"s_add_u32 s{sTMP}, s{sTMP}, {AF}")
    A(f"v_add_u32 v{vAFW}, s{sTMP}, v{vAFW}")
    def afswz(v):
        A(f"v_lshrrev_b32 v{vTMP2}, 3, v{v}")
        A(f"v_and_b32 v{vTMP2}, 0x70, v{vTMP2}")
        A(f"v_xor_b32 v{v}, v{v}, v{vTMP2}")
    afswz(vAFW)
    A("s_waitcnt lgkmcnt(0)")
    A(f"s_add_u32 s{sT}, s{sT}, 0x11111111")
    A(f"s_mov_b32 s{sT+1}, s{sT}")
    A(f"v_mov_b32 v{vT}, s{sT}")
    def tagbits(dst, vsh):
        A(f"v_lshrrev_b32 v{dst}, v{vsh}, v{vT}")
        A(f"v_and_b32 v{dst}, 15, v{dst}")
        A(f"v_lshl_or_b32 v{dst}, v{dst}, 14, v{dst}")
        A(f"v_and_b32 v{dst}, s{sM3}, v{dst}")
    A(f"v_and_b32 v{vTMP}, 7, v0")
    A(f"v_lshlrev_b32 v{vTMP}, 2, v{vTMP}")
    tagbits(vTC, vTMP)
    A(f"v_lshrrev_b32 v{vTMP}, 2, v0")
    A(f"v_and_b32 v{vTMP}, 12, v{vTMP}")
    A(f"v_and_b32 v{vTMP2}, 1, v0")
    A(f"v_lshl_or_b32 v{vTMP}, v{vTMP2}, 4, v{vTMP}")
    tagbits(vTP, vTMP)

    def refresh_prog():
        A(f"ds_read_b32 v{vTMP}, v9 offset:{F_PROG}")
        A("s_waitcnt lgkmcnt(0)")
        A(f"v_readfirstlane_b32 s{sPROG}, v{vTMP}")
    def wait_prog(val_is_sgpr, val, sleep=0):
        l = g.lab("L_wp"); d = g.lab("L_wpd")
        v = f"s{val}" if val_is_sgpr else str(val)
        A(f"s_cmp_ge_u32 s{sPROG}, {v}")
        A(f"s_cbranch_scc1 {d}")
        A(f"{l}:")
        if sleep: A(f"s_sleep {sleep}")
        refresh_prog()
        A(f"s_cmp_ge_u32 s{sPROG}, {v}")
        A(f"s_cbranch_scc0 {l}")
        A(f"{d}:")
    def signal(off):
        A("s_mov_b64 exec, 1")
        A(f"ds_add_u32 v9, v{vONE} offset:{off}")
        A("s_mov_b64 exec, -1")
    def cwait(off, val, sleep=0):
        lds_wait_ge(off, val, vtmp=f"v{vTMP}", sleep=sleep)
    def cwait_rd(off, val, nrd, reads):
        l = g.lab("L_cw")
        A(f"{l}:")
        A(f"ds_read_b32 v{vTMP}, v9 offset:{off}")
        reads()
        A(f"s_waitcnt lgkmcnt({nrd})")
        A(f"v_readfirstlane_b32 s{sTMP}, v{vTMP}")
        A(f"s_cmp_ge_u32 s{sTMP}, {val}")
        A(f"s_cbranch_scc0 {l}")
    def fbits(x): return struct.unpack("<I", struct.pack("<f", x))[0]
    ADJ = 1.0
    LQ, LO_, LG, LF = [x + opt.sbias for x in (8, 12, 10, 20)]
    def setscale(lg):
        A(f"s_mov_b32 s{sSC}, {fbits(2.0**lg):#x}")
    def encode(sc=None, tp=vTP, ta=vTA):
        src = vACC
        d = g.lab("L_en")
        scs = f"s[{sSC}:{sSC+1}]" if sc is None else f"v[{sc}:{sc+1}]"
        A(f"v_pk_mul_f32 v[{src}:{src+1}], v[{src}:{src+1}], {scs} op_sel_hi:[1,0]")
        A(f"v_pk_mul_f32 v[{src+2}:{src+3}], v[{src+2}:{src+3}], {scs} op_sel_hi:[1,0]")
        A(f"v_max3_f32 v{vTMP}, |v{src}|, |v{src+1}|, |v{src+2}|")
        A(f"v_max_f32 v{vTMP}, |v{src+3}|, v{vTMP}")
        A(f"v_subrev_u32 v{vTMP2}, {115 << 23:#x}, v{vTMP}")
        A(f"v_cmp_le_u32 vcc, s{sRNG}, v{vTMP2}")
        r = g.lab("L_er")
        A(f"{r}:")
        A(f"v_cvt_pkrtz_f16_f32 v{vEN}, v{src}, v{src+1}")
        A(f"v_cvt_pkrtz_f16_f32 v{vEN+1}, v{src+2}, v{src+3}")
        A(f"v_add_u32 v{vEN}, 0x00020002, v{vEN}")
        A(f"v_add_u32 v{vEN+1}, 0x00020002, v{vEN+1}")
        A(f"v_and_or_b32 v{vEN}, v{vEN}, s{sMN}, v{vAX}")
        A(f"v_and_or_b32 v{vEN+1}, v{vEN+1}, s{sMN}, v{tp}")
        A(f"s_cbranch_vccz {d}")
        A(f"s_call_b64 s[6:7], L_encs")
        A(f"s_branch {r}")
        A(f"{d}:")
    def publish(src, base=sGA, sc=None):
        encode(sc)
        A("s_mov_b32 exec_lo, 0x00ff00ff\ns_mov_b32 exec_hi, 0x00ff00ff")
        if not (opt.dbg & 33): A(f"global_store_dwordx2 v{vPUB}, v[{vEN}:{vEN+1}], s[{base}:{base+1}] sc1")
    NREP = opt.nrep; HREP = max(1, NREP // 4)
    sNH = 9
    def bump(kind):
        if opt.dbg & 33: return
        if opt.satom:
            A(f"s_mov_b32 s8, 1")
            if kind == "h":
                e = g.lab("L_bh")
                for r in range(HREP): A(f"s_atomic_add s8, s[{sGB}:{sGB+1}], {CS*r}")
                A(f"s_cmp_eq_u32 s{sNH}, {HREP}")
                A(f"s_cbranch_scc1 {e}")
                for r in range(HREP, 2*HREP): A(f"s_atomic_add s8, s[{sGB}:{sGB+1}], {CS*r}")
                A(f"{e}:")
            else:
                for r in range(NREP): A(f"s_atomic_add s8, s[{sGB}:{sGB+1}], {CS*r}")
        else:
            if kind == "h": A(f"s_bfm_b64 exec, s{sNH}, 0")
            else: A(f"s_bfm_b64 exec, {NREP}, 0")
            A(f"global_atomic_add v{vFLG}, v{vONE}, s[{sGB}:{sGB+1}] sc1")
    def flag(cnt, nrep, last=7):
        d = g.lab("L_fl")
        A("s_mov_b64 exec, 1")
        A(f"ds_add_rtn_u32 v{vTMP}, v9, v{vONE} offset:{cnt}")
        A("s_waitcnt lgkmcnt(0)")
        A(f"v_readfirstlane_b32 s{sTMP}, v{vTMP}")
        A(f"s_cmp_lg_u32 s{sTMP}, {last}")
        A(f"s_cbranch_scc1 {d}")
        bump(nrep)
        A(f"{d}:")
        A("s_mov_b64 exec, -1")
    def staged(cnt, last, hi_off, kind):
        d = g.lab("L_sg")
        A(f"ds_write_b64 v{vSTW}, v[{vEN}:{vEN+1}]")
        A("s_mov_b64 exec, 1")
        A(f"ds_add_rtn_u32 v{vTMP}, v9, v{vONE} offset:{cnt}")
        A("s_mov_b64 exec, -1")
        A(f"ds_read_b128 v[{vGA}:{vGA+3}], v{vSTR}")
        A(f"ds_read_b128 v[{vGA+4}:{vGA+7}], v{vSTR} offset:1024")
        A(f"v_add_u32 v{vTMP2}, {hi_off}, v{vPUB}")
        A("s_waitcnt lgkmcnt(2)")
        A(f"v_readfirstlane_b32 s{sTMP}, v{vTMP}")
        A(f"s_cmp_lg_u32 s{sTMP}, {last}")
        A(f"s_cbranch_scc1 {d}")
        A("s_waitcnt lgkmcnt(0)")
        if not (opt.dbg & 1):
            A(f"global_store_dwordx4 v{vPUB}, v[{vGA}:{vGA+3}], s[{sGA}:{sGA+1}] sc1")
            A(f"global_store_dwordx4 v{vTMP2}, v[{vGA+4}:{vGA+7}], s[{sGA}:{sGA+1}] sc1")
        if kind: bump(kind)
        A("s_mov_b64 exec, -1")
        A("s_nop 0")
        A(f"{d}:")
        A("s_waitcnt lgkmcnt(0)")
    def flag_now(nrep):
        d = g.lab("L_fn")
        A(f"s_cmp_lg_u32 s{sC}, {opt.flagwave}")
        A(f"s_cbranch_scc1 {d}")
        bump(nrep)
        A("s_mov_b64 exec, -1")
        A(f"{d}:")
    def ws_addr(dst, base_const, soff):
        A(f"s_add_u32 s{soff}, s{soff}, {base_const}")
        A(f"s_add_u32 s{dst}, s{sWS}, s{soff}")
        A(f"s_addc_u32 s{dst+1}, s{sWS+1}, 0")
    def pub_voff(shift):
        A(f"v_and_b32 v{vTMP2}, 15, v0")
        A(f"v_lshrrev_b32 v{vTMP3}, 4, v0")
        A(f"v_lshlrev_b32 v{vTMP3}, 3, v{vTMP3}")
        A(f"v_lshl_or_b32 v{vPUB}, v{vTMP2}, {shift}, v{vTMP3}")
    def sample(base, offs, sleep=0, cntstamp=None):
        l = g.lab("L_sm"); d = g.lab("L_smd"); e = g.lab("L_sme")
        if opt.dbg & 7: return
        A(f"s_mov_b32 s{sCNT}, 0")
        if sleep: A(f"s_branch {e}")
        A(f"{l}:")
        if sleep:
            A(f"s_sleep {sleep}")
            A(f"{e}:")
        for i, o in enumerate(offs):
            A(f"s_load_dword s{sSM+i}, s[{base}:{base+1}], {o} glc")
        A(f"s_add_u32 s{sCNT}, s{sCNT}, 1")
        A(f"s_cmp_gt_u32 s{sCNT}, {opt.maxpoll}")
        A("s_waitcnt lgkmcnt(0)")
        A(f"s_cbranch_scc1 {d}")
        for i in range(len(offs)):
            A(f"s_xor_b32 s{sSM+i}, s{sSM+i}, s{sT}")
            if i: A(f"s_or_b32 s{sSM}, s{sSM}, s{sSM+i}")
        A(f"s_and_b32 s{sSM}, s{sSM}, 0xff")
        A(f"s_cbranch_scc1 {l}")
        A(f"{d}:")
        if cntstamp is not None: stampval(cntstamp, sCNT)
    def pollcnt(base, target, sleep, cntstamp=None):
        l = g.lab("L_pf"); d = g.lab("L_pfd"); e = g.lab("L_pfe")
        if opt.dbg & 7: return
        A(f"s_mov_b32 s{sCNT}, 0")
        if sleep: A(f"s_branch {e}")
        A(f"{l}:")
        if sleep:
            A(f"s_sleep {sleep}")
            A(f"{e}:")
        A(f"s_load_dword s8, s[{base}:{base+1}], 0 glc")
        A(f"s_add_u32 s{sCNT}, s{sCNT}, 1")
        A(f"s_cmp_gt_u32 s{sCNT}, {opt.maxhint}")
        A("s_waitcnt lgkmcnt(0)")
        A(f"s_cbranch_scc1 {d}")
        A(f"s_cmp_eq_u32 s8, s{target}")
        A(f"s_cbranch_scc0 {l}")
        A(f"{d}:")
        if cntstamp is not None: stampval(cntstamp, sCNT)
    def gather(nld=4, mid=None, cntstamp=None, sleep=0, work=None, kind='M', defer=False):
        l = g.lab("L_ga"); d = g.lab("L_gad"); c = g.lab("L_gac"); rt = g.lab("L_gar")
        assert nld in (1, 4)
        def issue():
            if opt.dbg & 2: return
            if opt.gprio: A(f"s_setprio {opt.gprio}")
            for i in range(nld):
                A(f"global_load_dwordx2 v[{vGA+2*i}:{vGA+2*i+1}], v{vL8}, s[{sGA}:{sGA+1}] offset:{512*i} sc1")
        if mid is not None or sleep:
            issue()
            if mid is not None: mid()
            A(f"s_mov_b32 s{sEM}, s{sM3}")
            A(f"s_mov_b32 s{sCNT}, 0")
            A(f"s_branch {c}")
            pad(kind)
        else:
            A(f"s_mov_b32 s{sEM}, s{sM3}")
            A(f"s_mov_b32 s{sCNT}, 0")
        A(f"{l}:")
        if sleep: A(f"s_sleep {sleep}")
        issue()
        A(f"{c}:")
        A(f"s_add_u32 s{sCNT}, s{sCNT}, 1")
        vC, vC0 = vTMP2, vTMP
        for i in range(nld):
            A(f"s_waitcnt vmcnt({nld-1-i})")
            A(f"v_xor_b32 v{vGA+2*i+1}, v{vTC}, v{vGA+2*i+1}")
            if i == 2:
                A(f"v_or3_b32 v{vC0}, v{vGA}, v{vGA+2}, v{vGA+4}")
                A(f"v_or3_b32 v{vC}, v{vGA+1}, v{vGA+3}, v{vGA+5}")
            if i == nld-1:
                if nld == 4:
                    A(f"v_or_b32 v{vC0}, v{vC0}, v{vGA+6}")
                    A(f"v_bitop3_b32 v{vC}, v{vC}, v{vGA+7}, s{sM3} bitop3:0xa8")
                else:
                    A(f"v_and_b32 v{vC}, s{sM3}, v{vGA+1}")
                A(f"v_and_or_b32 v{vC0}, v{vC0 if nld == 4 else vGA}, s{sEM}, v{vC}")
                A(f"v_cmp_ne_u32 vcc, 0, v{vC0}")
            if work is not None and (i < nld-1 or opt.specw): work(i)
        A(f"s_cbranch_vccz {d}")
        A(f"v_cmp_ne_u32 vcc, 0, v{vC}")
        A(f"s_cbranch_vccnz {rt}")
        A(f"s_mov_b32 s{sEM}, 0")
        if defer: A(f"s_branch {d}")
        else:
            A("s_call_b64 s[6:7], L_fixr")
            A(f"s_branch {c}")
        A(f"{rt}:")
        A(f"s_cmp_le_u32 s{sCNT}, {0 if (opt.dbg & 6) else opt.maxpoll}")
        A(f"s_cbranch_scc1 {l}")
        A(f"{d}:")
        if cntstamp is not None: stampval(cntstamp, sCNT)
        if work is not None and not opt.specw: work(nld-1)
    vS0, vS1, vSCA = vGA + 12, vGA + 8, vLS
    def acc(i, dst, first):
        for r in range(4):
            c2 = "0" if first else f"v{dst+r}"
            A(f"v_fma_mix_f32 v{dst+r}, v{vGA+2*i+(r>>1)}, v{vSCA+i}, {c2} op_sel:[{r&1},0,0] op_sel_hi:[1,0,0]")
    def setsca(lg):
        for i in range(4): A(f"v_mov_b32 v{vSCA+i}, {fbits(2.0**-lg):#x}")
    def wreads(k0, k1):
        for kb in range(k0, k1):
            o = 8192*kb
            A(f"ds_read_b64_tr_b16 v[{vK+4*kb}:{vK+4*kb+1}], v{vWA} offset:{o}")
            A(f"ds_read_b64_tr_b16 v[{vK+4*kb+2}:{vK+4*kb+3}], v{vWA} offset:{o+1024}")
    def mf(kb, first):
        c = "0" if first else f"v[{vACC}:{vACC+3}]"
        A(f"v_mfma_f32_16x16x32_bf16 v[{vACC}:{vACC+3}], v[{vK+4*kb}:{vK+4*kb+3}], v[{vQ+4*kb}:{vQ+4*kb+3}], {c}")
    vAB = vW
    def actreads(n, swz=False):
        for kb in range(n):
            A(f"ds_read_b128 v[{vQ+4*kb}:{vQ+4*kb+3}], v{vAB if (swz and kb & 1) else vAA} offset:{512*kb}")
    sFA, sRA, sPE = 12, 10, 14
    def late_setup(wbase, padd, pend):
        A(f"v_add_u32 v{vWA}, {wbase}, v{vTR}")
        A(f"v_add_u32 v{vAA}, {AF}, v{vACT}")
        afswz(vAA)
        A(f"v_xor_b32 v{vAB}, 64, v{vAA}")
        A(f"v_and_b32 v{vTMP2}, 4, v0")
        A(f"v_lshlrev_b32 v{vPUB}, 10, v{vTMP2}")
        A(f"v_and_b32 v{vTMP2}, 3, v0")
        A(f"v_lshl_or_b32 v{vPUB}, v{vTMP2}, 5, v{vPUB}")
        A(f"v_lshrrev_b32 v{vTMP2}, 4, v0")
        A(f"v_lshl_or_b32 v{vPUB}, v{vTMP2}, 3, v{vPUB}")
        A(f"s_lshl3_add_u32 s{sTMP}, s{sCB}, s{sC}")
        A(f"s_lshl_b32 s{sTMP}, s{sTMP}, 6")
        A(f"s_add_u32 s{sTMP}, s{sTMP}, s{sRBK}")
        A(f"s_lshl_b32 s{sTMP}, s{sTMP}, 7")
        ws_addr(sFA, WS_FP + 128*padd, sTMP)
        A(f"s_mov_b32 s{sPE}, {pend}")
        setscale(LF)
        A(f"v_mov_b32 v{vAX}, 0")
        A(f"s_mov_b32 s{sWDN}, 21")
        A(f"s_add_u32 s{sTMP}, s{sKB0}, s{sC}")
        A(f"s_lshl_b32 s{sTMP}, s{sTMP}, 11")
    sRET = 6
    def wcatch():
        d = g.lab("L_wc")
        A(f"s_cmp_lt_u32 s{sPROG}, s{sWDN}")
        A(f"s_cbranch_scc1 {d}")
        A(f"s_call_b64 s[{sRET}:{sRET+1}], L_wcatch")
        A(f"{d}:")
    def late_wait():
        l = g.lab("L_lw"); d = g.lab("L_lwd")
        A(f"{l}:")
        A(f"ds_read_b64 v[{vTMP}:{vTMP+1}], v9 offset:{F_PROG}")
        A("s_waitcnt lgkmcnt(0)")
        A(f"v_readfirstlane_b32 s{sTMP}, v{vTMP+1}")
        A(f"v_readfirstlane_b32 s{sPROG}, v{vTMP}")
        A(f"s_cmp_lg_u32 s{sTMP}, 0")
        A(f"s_cbranch_scc1 {d}")
        wcatch()
        A(f"s_branch {l}")
        A(f"{d}:")
    def late_mid():
        A(f"s_add_u32 s{sTMP2}, s{sPROG}, {opt.midahead}")
        A(f"s_min_u32 s{sTMP2}, s{sTMP2}, s{sPE}")
        wcatch()
        wait_prog(True, sTMP2)
        wcatch()
    vPG = 126
    def late_post_issue():
        if opt.lflow == 1: A(f"ds_read_b32 v{vPG}, v9 offset:{F_PROG}")
    def late_post():
        if opt.fgate == 2: signal(F_BA)
        if opt.lflow != 1: return
        A("s_waitcnt lgkmcnt(0)")
        A(f"v_readfirstlane_b32 s{sPROG}, v{vPG}")
        wcatch()

    if opt.cprio: A(f"s_setprio {opt.cprio}")
    signal(F_ERD)
    A(f"s_cmp_eq_u32 s3, 9")
    A("s_cbranch_scc1 L_poller")
    if opt.nocomm:
        signal(F_FREE0); signal(F_FREE1)
        A("s_branch L_exit")
    def egloop(last, name, lead=None, nrep=0):
        A(f"L_eg_loop{name}:")
        A(f"ds_read_b128 v[{vB}:{vB+3}], v{vAA}")
        wait_prog(True, sCNT)
        A(f"ds_read_b64_tr_b16 v[{vW}:{vW+1}], v{vWA}")
        A(f"ds_read_b64_tr_b16 v[{vW+2}:{vW+3}], v{vWA} offset:1024")
        if lead is not None and lead >= 0:
            A(f"s_cmp_lg_u32 s{sCNT}, {last - lead}")
            A(f"s_cbranch_scc1 L_eg_nf{name}")
            flag_now(nrep)
            A(f"L_eg_nf{name}:")
        A(f"v_add_u32 v{vWA}, 8192, v{vWA}")
        A(f"v_add_u32 v{vAA}, 512, v{vAA}")
        A(f"s_add_u32 s{sCNT}, s{sCNT}, 1")
        A(f"s_cmp_le_u32 s{sCNT}, {last}")
        A("s_waitcnt lgkmcnt(0)")
        A(f"v_mfma_f32_16x16x32_bf16 v[{vACC}:{vACC+3}], v[{vW}:{vW+3}], v[{vB}:{vB+3}], v[{vACC}:{vACC+3}]")
        A(f"s_cbranch_scc1 L_eg_loop{name}")
    A(f"s_cmp_ge_u32 s{sC}, 4")
    A("s_cbranch_scc1 L_noq")
    A(f"v_and_b32 v{vTMP2}, 7, v0")
    A(f"v_lshlrev_b32 v{vSTW}, 8, v{vTMP2}")
    A(f"v_and_b32 v{vTMP2}, 8, v0")
    A(f"v_lshl_or_b32 v{vSTW}, v{vTMP2}, 2, v{vSTW}")
    A(f"v_lshrrev_b32 v{vTMP3}, 4, v0")
    A(f"v_lshl_or_b32 v{vSTW}, v{vTMP3}, 3, v{vSTW}")
    A(f"s_lshl_b32 s{sTMP}, s{sC}, 6")
    A(f"s_add_u32 s{sTMP}, s{sTMP}, {ST}")
    A(f"v_add_u32 v{vSTW}, s{sTMP}, v{vSTW}")
    A(f"v_add_u32 v{vSTR}, {ST}, v{vL16}")
    A(f"v_and_b32 v{vPUB}, 0xf0, v{vL16}")
    A(f"v_lshl_or_b32 v{vPUB}, v{vTMP3}, 16, v{vPUB}")
    A(f"v_lshlrev_b32 v{vTMP3}, 2, v{vTMP3}")
    A(f"v_lshl_or_b32 v{vTMP3}, v{vTMP2}, 1, v{vTMP3}")
    tagbits(vB, vTMP3)
    setscale(LQ)
    A(f"s_and_b32 s{sTMP3}, s{sU}, 7")
    A(f"s_lshl3_add_u32 s{sTMP}, s{sG}, s{sTMP3}")
    A(f"s_lshl3_add_u32 s{sTMP}, s{sTMP}, s{sKS}")
    A(f"s_lshl_b32 s{sTMP}, s{sTMP}, 8")
    ws_addr(sGA, WS_QP, sTMP)
    A(f"s_mul_i32 s{sTMP}, s{sG}, {32*CS}")
    ws_addr(sGB, WS_QC, sTMP)
    A(f"s_lshl_b32 s{sTMP}, s{sC}, 1")
    A(f"s_xor_b32 s{sTMP}, s{sTMP}, s{sC}")
    A(f"s_lshl_b32 s{sTMP}, s{sTMP}, 5")
    A(f"v_xor_b32 v{vWA}, s{sTMP}, v{vTR}")
    A(f"v_add_u32 v{vWA}, {RQ}, v{vWA}")
    A(f"v_xor_b32 v{vW}, 32, v{vWA}")
    A(f"v_add_u32 v{vAA}, {XF}, v{vACT}")
    A(f"v_cmp_eq_u32 s[4:5], 0, v{vTMP2}")
    cwait(F_ERD, 9, sleep=1)
    wait_prog(False, 4, sleep=1)
    if opt.qlead >= 0: flag_now("q")
    actreads(4)
    wreads(0, 4)
    for kb in range(4):
        A(f"s_waitcnt lgkmcnt({6 if kb == 0 else 6})")
        A(f"ds_read_b64_tr_b16 v[{vK+16+4*kb}:{vK+16+4*kb+1}], v{vW} offset:{8192*kb}")
        A(f"ds_read_b64_tr_b16 v[{vK+16+4*kb+2}:{vK+16+4*kb+3}], v{vW} offset:{8192*kb+1024}")
        mf(kb, kb == 0)
    A("s_mov_b64 exec, 3")
    A(f"ds_add_u32 v9, v{vONE} offset:{F_FREE0}")
    A("s_mov_b64 exec, -1")
    for kb in range(4):
        A(f"s_waitcnt lgkmcnt({7-2*kb})")
        c1 = "0" if kb == 0 else f"v[{vACC2}:{vACC2+3}]"
        A(f"v_mfma_f32_16x16x32_bf16 v[{vACC2}:{vACC2+3}], v[{vK+16+4*kb}:{vK+16+4*kb+3}], v[{vQ+4*kb}:{vQ+4*kb+3}], {c1}")
    A("s_nop 7")
    for r in range(4): A(f"v_cndmask_b32 v{vACC+r}, v{vACC2+r}, v{vACC+r}, s[4:5]")
    encode(None, vB, vB+1)
    staged(F_PUB0, 3, 4 << 16, "q" if opt.qhint else None)
    if opt.ackst:
        stamp(2); A("s_waitcnt vmcnt(0)"); stamp(5)
    A(f"v_mov_b32 v{vAX}, 0")
    A("L_noq:")
    if not opt.ackst: stamp(2)
    A(f"s_cmp_ge_u32 s{sR}, 16")
    A("s_cbranch_scc1 L_roleM")
    A(f"s_cmp_eq_u32 s{sROLE}, 2")
    A("s_cbranch_scc1 L_bc_late")
    pub_voff(5)
    setscale(LG)
    A(f"s_and_b32 s{sTMP}, s{sBETA}, -4")
    A(f"s_lshr_b32 s{sTMP2}, s{sC}, 1")
    A(f"s_add_u32 s{sTMP}, s{sTMP}, s{sTMP2}")
    A(f"s_and_b32 s{sTMP2}, s{sBETA}, 3")
    A(f"s_lshl2_add_u32 s{sTMP}, s{sTMP}, s{sTMP2}")
    A(f"s_and_b32 s{sTMP2}, s{sC}, 1")
    A(f"s_lshl1_add_u32 s{sTMP}, s{sTMP}, s{sTMP2}")
    A(f"s_lshl_b32 s{sTMP}, s{sTMP}, 8")
    ws_addr(sGA, WS_GP, sTMP)
    def hc_addr():
        A(f"s_and_b32 s{sTMP}, s{sBETA}, -4")
        A(f"s_or_b32 s{sTMP2}, s{sBETA}, 3")
        A(f"s_mul_i32 s{sTMP}, s{sTMP}, 147")
        A(f"s_mul_i32 s{sTMP2}, s{sTMP2}, 147")
        A(f"s_lshr_b32 s{sTMP}, s{sTMP}, 10")
        A(f"s_lshr_b32 s{sTMP2}, s{sTMP2}, 10")
        A(f"s_cmp_eq_u32 s{sTMP}, s{sTMP2}")
        A(f"s_cselect_b32 s{sNH}, {HREP}, {2*HREP}")
        A(f"s_mul_i32 s{sTMP}, s{sTMP}, {CS*HREP}")
        ws_addr(sGB, WS_HC, sTMP)
    if not opt.notif: hc_addr()
    for r in range(4): A(f"v_mov_b32 v{vACC+r}, 0")
    A(f"v_mov_b32 v{vWA}, v{vTR}")
    A(f"v_add_u32 v{vAA}, {XF + 2048}, v{vACT}")
    A(f"s_mov_b32 s{sCNT}, 5")
    wait_prog(False, opt.xgat + 1, sleep=1)
    egloop(12, "G1")
    signal(F_FREE1)
    stamp(3)
    egloop(20, "G2", opt.hlead, "h")
    A("s_nop 7")
    publish(vACC)
    if opt.hlead < 0 and not opt.notif: flag(F_PUB1, "h")
    else: A("s_mov_b64 exec, -1")
    stamp(6)
    if opt.ackst:
        A("s_waitcnt vmcnt(0)"); stamp(4)
    A("L_bc_late:")
    late_setup(RA, 0, 28)
    ws_addr(sGA, WS_OP, sTMP)
    A(f"s_lshl_b32 s{sTMP2}, s{sC}, 4")
    A(f"v_and_b32 v{vTMP3}, 32, v0")
    A(f"v_lshlrev_b32 v{vTMP3}, 2, v{vTMP3}")
    A(f"v_add3_u32 v{vTMP3}, v{vTMP3}, s{sTMP2}, v9")
    A(f"s_lshl_b32 s{sTMP3}, s{sLR}, 3")
    A(f"v_subrev_u32 v{vAFW}, s{sTMP3}, v0")
    A(f"v_and_b32 v{vAFW}, 62, v{vAFW}")
    A(f"v_lshlrev_b32 v{vAFW}, 6, v{vAFW}")
    A(f"v_and_b32 v{vTMP2}, 1, v0")
    A(f"v_lshl_or_b32 v{vAFW}, v{vTMP2}, 3, v{vAFW}")
    A(f"s_add_u32 s{sTMP2}, s{sTMP2}, {AF}")
    A(f"v_add_u32 v{vAFW}, s{sTMP2}, v{vAFW}")
    afswz(vAFW)
    late_wait()
    stamp(7)
    def owork(i):
        if i == 2: late_post_issue()
        if i == 3: late_post()
    gather(mid=late_mid, cntstamp=13, sleep=opt.gsleep, work=owork, kind='B', defer=True)
    if STAMP == 1: A("s_waitcnt lgkmcnt(0)")
    cwait_rd(F_WRDY, 1, 0, lambda: A(f"ds_read_b128 v[{vSCA}:{vSCA+3}], v{vTMP3} offset:{F_WT}"))
    stamp(8)
    A(f"s_cmp_lg_u32 s{sEM}, 0")
    A("s_cbranch_scc1 L_onofix")
    A("s_call_b64 s[6:7], L_fix")
    A("L_onofix:")
    for i in range(4): acc(i, vS0, i == 0)
    A("s_branch L_late")

    A("L_roleM:")
    vXr, vGWr = vK, vK + 8
    A(f"s_cmp_lt_u32 s{sC}, 4")
    A("s_cbranch_scc1 L_nogate")
    wait_prog(False, opt.ggate, sleep=1)
    A(f"s_and_b32 s{sTMP}, s{sR}, 1")
    A(f"s_lshl2_add_u32 s{sTMP}, s{sTMP}, s{sC}")
    A(f"s_sub_u32 s{sTMP3}, s{sTMP}, 4")
    A(f"s_lshl_b32 s{sTMP}, s{sTMP3}, 11")
    A(f"v_add_u32 v{vTMP3}, s{sTMP}, v{vL16}")
    for i in range(2):
        A(f"global_load_dwordx4 v[{vXr+4*i}:{vXr+4*i+3}], v{vTMP3}, s[{sX}:{sX+1}] offset:{1024*i}")
        A(f"global_load_dwordx4 v[{vGWr+4*i}:{vGWr+4*i+3}], v{vL16}, s[{sGW}:{sGW+1}] offset:{1024*i}")
    A(f"v_mov_b32 v{vACC2}, 0")
    A("s_waitcnt vmcnt(0)")
    for i in range(8):
        A(f"v_lshlrev_b32 v{vW}, 16, v{vXr+i}")
        A(f"v_and_b32 v{vW+1}, 0xffff0000, v{vXr+i}")
        A(f"v_lshlrev_b32 v{vW+2}, 16, v{vGWr+i}")
        A(f"v_and_b32 v{vW+3}, 0xffff0000, v{vGWr+i}")
        A(f"v_mul_f32 v{vW}, v{vW}, v{vW+2}")
        A(f"v_mul_f32 v{vW+1}, v{vW+1}, v{vW+3}")
        A(f"v_cvt_pk_bf16_f32 v{vW}, v{vW}, v{vW+1}")
        A(f"v_lshlrev_b32 v{vW+1}, 16, v{vW}")
        A(f"v_and_b32 v{vW}, 0xffff0000, v{vW}")
        A(f"v_add_f32 v{vACC2}, v{vACC2}, v{vW+1}")
        A(f"v_add_f32 v{vACC2}, v{vACC2}, v{vW}")
    for off in (0x041F, 0x081F, 0x101F, 0x201F, 0x401F):
        A(f"ds_swizzle_b32 v{vW}, v{vACC2} offset:{off:#x}")
        A("s_waitcnt lgkmcnt(0)")
        A(f"v_add_f32 v{vACC2}, v{vACC2}, v{vW}")
    A(f"v_mov_b32 v{vW}, v{vACC2}")
    A("s_nop 1")
    A(f"v_permlane32_swap_b32 v{vACC2}, v{vW}")
    A(f"v_add_f32 v{vACC2}, v{vACC2}, v{vW}")
    def rbf(v):
        A(f"v_cvt_pk_bf16_f32 v{v}, v{v}, v{v}")
        A(f"v_and_b32 v{v}, 0xffff0000, v{v}")
    rbf(vACC2)
    A(f"v_mul_f32 v{vACC2}, 0xbfb8aa3b, v{vACC2}")
    A(f"v_exp_f32 v{vACC2}, v{vACC2}")
    A("s_nop 0")
    A(f"v_add_f32 v{vACC2}, 1.0, v{vACC2}")
    A(f"v_rcp_f32 v{vACC2}, v{vACC2}")
    A("s_nop 0")
    rbf(vACC2)
    A(f"s_lshl_b32 s{sTMP}, s{sTMP3}, 2")
    A(f"v_add_u32 v{vTMP2}, s{sTMP}, v9")
    A("s_mov_b64 exec, 1")
    A(f"ds_write_b32 v{vTMP2}, v{vACC2} offset:{F_G}")
    A("s_mov_b64 exec, -1")
    A("L_nogate:")
    A(f"s_lshl2_add_u32 s{sTMP}, s{sBB}, s{sG}")
    A(f"s_lshl3_add_u32 s{sTMP}, s{sTMP}, s{sC}")
    A(f"s_lshl_b32 s{sTMP}, s{sTMP}, 11")
    ws_addr(sGA, WS_QP, sTMP)
    A(f"v_bfe_u32 v{vTMP2}, v0, 2, 2")
    A(f"v_and_b32 v{vTMP3}, 3, v0")
    A(f"v_lshl_add_u32 v{vTMP2}, v{vTMP2}, 3, v{vTMP3}")
    A(f"v_lshlrev_b32 v{vWA}, 8, v{vTMP2}")
    A(f"v_lshrrev_b32 v{vTMP2}, 5, v0")
    A(f"v_and_b32 v{vTMP3}, 7, v0")
    A(f"v_xor_b32 v{vTMP2}, v{vTMP2}, v{vTMP3}")
    A(f"v_lshl_or_b32 v{vWA}, v{vTMP2}, 5, v{vWA}")
    A(f"v_and_b32 v{vTMP2}, 16, v0")
    A(f"s_lshl_b32 s{sTMP}, s{sC}, 13")
    A(f"v_add3_u32 v{vWA}, v{vWA}, v{vTMP2}, s{sTMP}")
    vQA, vMX, vPA = vW, vW + 1, vW + 2
    A(f"v_and_b32 v{vQA}, 30, v0")
    A(f"v_lshlrev_b32 v{vQA}, 6, v{vQA}")
    A(f"v_and_b32 v{vTMP2}, 1, v0")
    A(f"v_lshl_or_b32 v{vQA}, v{vTMP2}, 3, v{vQA}")
    A(f"v_lshrrev_b32 v{vTMP2}, 5, v0")
    A(f"v_lshl_or_b32 v{vQA}, v{vTMP2}, 2, v{vQA}")
    A(f"s_lshl_b32 s{sTMP}, s{sC}, 4")
    A(f"s_add_u32 s{sTMP}, s{sTMP}, {QF}")
    A(f"v_add_u32 v{vQA}, s{sTMP}, v{vQA}")
    A(f"v_lshl_add_u32 v{vMX}, v{vTMP3}, 2, v9")
    A(f"s_lshl_b32 s{sTMP}, s{sC}, 9")
    A(f"s_add_u32 s{sTMP}, s{sTMP}, {PF}")
    A(f"v_add_u32 v{vPA}, s{sTMP}, v{vACT}")
    vOTP, vOTA = vRW, vRR
    A(f"v_lshrrev_b32 v{vTMP3}, 4, v0")
    A(f"v_and_b32 v{vTMP2}, 7, v0")
    A(f"v_lshlrev_b32 v{vSTW}, 8, v{vTMP2}")
    A(f"v_lshl_or_b32 v{vSTW}, v{vTMP3}, 3, v{vSTW}")
    A(f"s_lshl_b32 s{sTMP}, s{sC}, 5")
    A(f"s_add_u32 s{sTMP}, s{sTMP}, {ST}")
    A(f"v_add_u32 v{vSTW}, s{sTMP}, v{vSTW}")
    A(f"v_add_u32 v{vSTR}, {ST}, v{vL16}")
    A(f"v_and_b32 v{vPUB}, 0x1f0, v{vL16}")
    A(f"v_and_b32 v{vTMP2}, 32, v0")
    A(f"v_lshl_or_b32 v{vPUB}, v{vTMP2}, 9, v{vPUB}")
    A(f"s_and_b32 s{sTMP}, s{sC}, 1")
    A(f"s_lshl_b32 s{sTMP}, s{sTMP}, 4")
    A(f"v_lshl_or_b32 v{vTMP3}, v{vTMP3}, 2, s{sTMP}")
    tagbits(vOTP, vTMP3)
    if opt.qhint: cwait(F_QRDY, 1, sleep=1)
    else: wait_prog(False, opt.qgate, sleep=1)
    stamp(3)
    def kfrags():
        A(f"s_add_u32 s{sTMP2}, s{sC}, 5")
        wait_prog(True, sTMP2)
        for db in range(4):
            if db: A(f"v_xor_b32 v{vAA}, {64*db}, v{vWA}")
            a = vAA if db else vWA
            A(f"ds_read_b128 v[{vK+4*db}:{vK+4*db+3}], v{a}")
            A(f"ds_read_b128 v[{vK+16+4*db}:{vK+16+4*db+3}], v{a} offset:1024")
        signal(F_FREE1)
        A(f"v_add_u32 v{vAA}, {QF}, v{vACT}")
    setsca(LQ)
    def qwork(i): acc(i, vS0, i == 0)
    gather(nld=4, mid=kfrags, cntstamp=11, sleep=opt.qsleep, work=qwork)
    stamp(4)
    A("s_nop 1")
    A(f"v_permlane32_swap_b32 v{vS0}, v{vS0+2}")
    A(f"v_permlane32_swap_b32 v{vS0+1}, v{vS0+3}")
    A(f"v_add_f32 v{vS0}, v{vS0}, v{vS0+2}")
    A(f"v_add_f32 v{vS0+1}, v{vS0+1}, v{vS0+3}")
    A(f"v_cvt_pk_bf16_f32 v{vGA}, v{vS0}, v{vS0+1}")
    A(f"ds_write_b32 v{vQA}, v{vGA}")
    signal(F_BQ)
    A(f"s_lshl_b32 s{sTMP}, s{sG}, 5")
    A(f"s_add_u32 s{sTMP}, s{sTMP}, s{sBB}")
    A(f"s_lshl2_add_u32 s{sTMP}, s{sTMP}, s{sSPL}")
    A(f"s_lshl_b32 s{sTMP}, s{sTMP}, 9")
    ws_addr(sGA, WS_OP, sTMP)
    A(f"s_lshl2_add_u32 s{sTMP3}, s{sBB}, s{sSPL}")
    A(f"s_mul_i32 s{sTMP}, s{sG}, {32*CS}")
    ws_addr(sGB, WS_OC, sTMP)
    A(f"s_lshl_b32 s{sTMP}, s{sG}, 5")
    A(f"s_add_u32 s{sTMP}, s{sTMP}, s{sTMP3}")
    A(f"s_lshl_b32 s{sTMP}, s{sTMP}, 6")
    ws_addr(sFA, WS_LSE, sTMP)
    cbits = struct.unpack("<I", struct.pack("<f", math.log2(math.e) / math.sqrt(128.0)))[0]
    A(f"s_mov_b32 s{sTMP2}, {cbits:#x}")
    if STAMP == 1: A("s_waitcnt lgkmcnt(0)")
    if opt.spec: cwait_rd(F_BQ, 8, 4, lambda: actreads(4))
    else:
        cwait(F_BQ, 8); actreads(4)
    for db in range(4):
        A(f"s_waitcnt lgkmcnt({3-db})")
        c0 = "0" if db == 0 else f"v[{vACC}:{vACC+3}]"
        c1 = "0" if db == 0 else f"v[{vACC2}:{vACC2+3}]"
        A(f"v_mfma_f32_16x16x32_bf16 v[{vACC}:{vACC+3}], v[{vK+4*db}:{vK+4*db+3}], v[{vQ+4*db}:{vQ+4*db+3}], {c0}")
        A(f"v_mfma_f32_16x16x32_bf16 v[{vACC2}:{vACC2+3}], v[{vK+16+4*db}:{vK+16+4*db+3}], v[{vQ+4*db}:{vQ+4*db+3}], {c1}")
    A(f"v_add_u32 v{vAA}, {PF}, v{vACT}")
    A(f"v_add_u32 v{vWA}, {RB}, v{vTR}")
    vONES = vGA
    for r in range(4): A(f"v_mov_b32 v{vONES+r}, 0x3f803f80")
    A("s_nop 1")
    A(f"v_max3_f32 v{vTMP2}, v{vACC}, v{vACC+1}, v{vACC+2}")
    A(f"v_max3_f32 v{vTMP2}, v{vTMP2}, v{vACC+3}, v{vACC2}")
    A(f"v_max3_f32 v{vTMP2}, v{vTMP2}, v{vACC2+1}, v{vACC2+2}")
    A(f"v_max_f32 v{vTMP2}, v{vTMP2}, v{vACC2+3}")
    A("s_mov_b32 exec_lo, 0x00ff00ff\ns_mov_b32 exec_hi, 0x00ff00ff")
    A(f"ds_max_f32 v{vMX}, v{vTMP2} offset:{F_MAX}")
    signal(F_BM)
    vM = vLS
    cwait_rd(F_BM, 8, 1, lambda: A(f"ds_read_b32 v{vM}, v{vMX} offset:{F_MAX}"))
    if opt.olead >= 0 and opt.oearly:
        A(f"ds_read_b32 v{vTMP}, v9 offset:{F_PROG}")
    A("s_waitcnt lgkmcnt(0)")
    A(f"s_mov_b32 s{sWDN}, 0")
    if opt.olead >= 0 and opt.oearly:
        A(f"v_readfirstlane_b32 s{sPROG}, v{vTMP}")
        A(f"s_cmp_lt_u32 s{sPROG}, {20 - opt.olead}")
        A("s_cbranch_scc1 L_of_no1")
        flag_now("q")
        A(f"s_mov_b32 s{sWDN}, 1")
        A("L_of_no1:")
    A(f"v_mul_f32 v{vM}, s{sTMP2}, v{vM}")
    for r in range(8):
        A(f"v_fma_f32 v{vACC+r}, v{vACC+r}, s{sTMP2}, -v{vM}")
    for r in range(8):
        A(f"v_exp_f32 v{vACC+r}, v{vACC+r}")
    A("s_nop 0")
    for r in range(4):
        A(f"v_cvt_pk_bf16_f32 v{vB+r}, v{vACC+2*r}, v{vACC+2*r+1}")
    A(f"ds_write_b128 v{vPA}, v[{vB}:{vB+3}]")
    signal(F_BP)
    if opt.spec: cwait_rd(F_BP, 8, 8, lambda: actreads(8))
    else:
        cwait(F_BP, 8); actreads(8)
    A(f"ds_read_b32 v{vTMP}, v9 offset:{F_PROG}")
    for kb in range(8):
        A(f"s_waitcnt lgkmcnt({8-kb})")
        c1 = "0" if kb == 0 else f"v[{vACC2}:{vACC2+3}]"
        A(f"v_mfma_f32_16x16x32_bf16 v[{vACC2}:{vACC2+3}], v[{vONES}:{vONES+3}], v[{vQ+4*kb}:{vQ+4*kb+3}], {c1}")
    A("s_waitcnt lgkmcnt(0)")
    A(f"v_readfirstlane_b32 s{sPROG}, v{vTMP}")
    stamp(5)
    vRL = vLS + 2
    def lse_part():
        A(f"v_log_f32 v{vLS+1}, v{vACC2}")
        A(f"v_rcp_f32 v{vRL}, v{vACC2}")
        A("s_nop 0")
        A(f"v_mul_f32 v{vRL}, {fbits(2.0**LO_):#x}, v{vRL}")
        d = g.lab("L_nolse")
        A(f"s_cmp_lg_u32 s{sC}, 0")
        A(f"s_cbranch_scc1 {d}")
        A(f"v_add_f32 v{vM}, v{vM}, v{vLS+1}")
        A(f"v_mov_b32 v{vLS+1}, s{sT}")
        A(f"v_lshlrev_b32 v{vTMP2}, 3, v0")
        A("s_mov_b64 exec, 0xff")
        if not (opt.dbg & 1):
            A(f"global_store_dwordx2 v{vTMP2}, v[{vLS}:{vLS+1}], s[{sFA}:{sFA+1}] sc1")
            if opt.lcnt:
                A(f"s_bfm_b64 exec, {NREP}, 0")
                A(f"v_mov_b32 v{vTMP2}, 0x10000")
                A(f"global_atomic_add v{vFLG}, v{vTMP2}, s[{sGB}:{sGB+1}] sc1")
        A("s_mov_b64 exec, -1")
        A(f"{d}:")
    A(f"s_cmp_lt_u32 s{sPROG}, 20")
    A("s_cbranch_scc1 L_pv_slow")
    def oflag():
        if opt.olead < 0: return
        d = g.lab("L_of")
        A(f"s_cmp_lg_u32 s{sWDN}, 0")
        A(f"s_cbranch_scc1 {d}")
        flag_now("q")
        A(f"{d}:")
    wreads(0, 7)
    lse_part()
    oflag()
    for kb in range(7):
        A(f"s_waitcnt lgkmcnt({14-2*kb if kb else 12})")
        if kb == 0: wreads(7, 8)
        mf(kb, kb == 0)
    A("s_branch L_pv_last")
    pad("M")
    A("L_pv_slow:")
    A("s_nop 4")
    lse_part()
    for kb in range(8):
        wait_prog(False, 12 + kb + 1)
        wreads(kb, kb+1)
        if 12 + kb + 1 == 20 - opt.olead: oflag()
        if kb:
            A("s_waitcnt lgkmcnt(2)")
            mf(kb-1, kb == 1)
    A("L_pv_last:")
    A("s_waitcnt lgkmcnt(0)")
    mf(7, False)
    A("s_nop 7")
    encode(vRL, vOTP, vOTA)
    A("s_mov_b32 exec_lo, 0x00ff00ff\ns_mov_b32 exec_hi, 0x00ff00ff")
    staged(F_PUB1, 7, 2 << 14, "q" if (opt.olead < 0 and not opt.notif) else None)
    stamp(6)
    if opt.ackst:
        A("s_waitcnt vmcnt(0)"); stamp(3)
    A(f"s_and_b32 s{sTMP2}, s{sR}, 1")
    A(f"s_lshl_b32 s{sTMP2}, s{sTMP2}, 4")
    A(f"v_and_b32 v{vTMP2}, 12, v0")
    A(f"v_add3_u32 v{vTMP2}, v{vTMP2}, s{sTMP2}, v9")
    A(f"ds_read_b32 v{vRG}, v{vTMP2} offset:{F_G}")
    A(f"s_lshl4_add_u32 s{sTMP}, s{sXCD}, s{sR}")
    A(f"s_sub_u32 s{sTMP3}, s{sTMP}, 16")
    A(f"s_lshl3_add_u32 s{sTMP}, s{sTMP3}, s{sC}")
    A(f"s_lshl_b32 s{sTMP}, s{sTMP}, 9")
    ws_addr(sRA, WS_FP, sTMP)
    A(f"v_lshlrev_b32 v{vRR}, 2, v0")
    A(f"v_add_u32 v{vRR}, {RS}, v{vRR}")
    A(f"s_lshl_b32 s{sTMP}, s{sC}, 8")
    A(f"v_add_u32 v{vRW}, s{sTMP}, v{vRR}")
    A(f"v_and_b32 v{vOUT}, 12, v0")
    A(f"v_lshlrev_b32 v{vOUT}, 9, v{vOUT}")
    A(f"v_and_b32 v{vTMP2}, 3, v0")
    A(f"v_lshl_or_b32 v{vOUT}, v{vTMP2}, 3, v{vOUT}")
    A(f"v_lshrrev_b32 v{vTMP2}, 4, v0")
    A(f"v_lshl_or_b32 v{vOUT}, v{vTMP2}, 1, v{vOUT}")
    A(f"s_lshl_b32 s{sTMP2}, s{sTMP2}, 9")
    A(f"s_lshr_b32 s{sTMP3}, s{sTMP3}, 1")
    A(f"s_lshl_b32 s{sTMP3}, s{sTMP3}, 5")
    A(f"s_add_u32 s{sTMP2}, s{sTMP2}, s{sTMP3}")
    A(f"v_add_u32 v{vOUT}, s{sTMP2}, v{vOUT}")
    if opt.vtouch & 1:
        A(f"s_cmp_lg_u32 s{sC}, 7")
        A("s_cbranch_scc1 L_novt")
        A("s_mov_b64 exec, 1")
        A(f"global_load_ushort v127, v{vOUT}, s[{sOUT}:{sOUT+1}] sc1")
        A("s_mov_b64 exec, -1")
        A("L_novt:")
    A("s_waitcnt lgkmcnt(0)")
    A(f"s_cmp_lt_u32 s{sC}, 4")
    A("s_cbranch_scc1 L_wg_done")
    A(f"v_sub_f32 v{vRG}, 1.0, v{vRG}")
    rbf(vRG)
    A("L_wg_done:")
    A(f"v_mul_f32 v{vRG}, {fbits(2.0**-LF):#x}, v{vRG}")
    setsca(LG)
    late_setup(RA, 16, 27)
    A(f"s_add_u32 s{sTMP}, s{sC}, s{sLR}")
    A(f"s_cmp_ge_u32 s{sTMP}, 7")
    A(f"s_cselect_b32 s{sTMP2}, 7, 0")
    A(f"s_sub_u32 s{sTMP}, s{sTMP}, s{sTMP2}")
    A(f"s_add_u32 s{sTMP}, s{sTMP}, s{sKB0}")
    A(f"s_lshl_b32 s{sTMP}, s{sTMP}, 11")
    ws_addr(sGA, WS_GP, sTMP)
    for r in range(4): A(f"v_mov_b32 v{vS0+r}, 0")
    late_wait()
    A(f"s_cmp_eq_u32 s{sC}, 7")
    A("s_cbranch_scc1 L_late")
    stamp(7)
    def rnd4(v):
        A(f"v_cvt_pk_bf16_f32 v{vB}, v{v}, v{v+1}")
        A(f"v_cvt_pk_bf16_f32 v{vB+1}, v{v+2}, v{v+3}")
        for h in range(2):
            A(f"v_lshlrev_b32 v{v+2*h}, 16, v{vB+h}")
            A(f"v_and_b32 v{v+2*h+1}, 0xffff0000, v{vB+h}")
    def hwork(i):
        if i == 2: late_post_issue()
        if i == 3: late_post()
        acc(i, vS0 if i < 2 else vS1, i in (0, 2))
        if i == 1:
            for r in range(4): A(f"v_max_f32 v{vS0+r}, 0, v{vS0+r}")
            if opt.hround: rnd4(vS0)
        if i == 3:
            if opt.hround: rnd4(vS1)
            for r in (0, 2): A(f"v_pk_mul_f32 v[{vS0+r}:{vS0+r+1}], v[{vS0+r}:{vS0+r+1}], v[{vS1+r}:{vS1+r+1}]")
    gather(mid=late_mid, cntstamp=13, sleep=opt.gsleep, work=hwork)
    stamp(8)

    if opt.touch: A("s_branch L_late")
    pad("A")
    A("L_late:")
    A(f"v_cvt_pk_bf16_f32 v{vGA}, v{vS0}, v{vS0+1}")
    A(f"v_cvt_pk_bf16_f32 v{vGA+1}, v{vS0+2}, v{vS0+3}")
    A(f"ds_write_b64 v{vAFW}, v[{vGA}:{vGA+1}]")
    if opt.lflow == 1:
        signal(F_BA)
        if opt.fine: stamp(3)
        A(f"s_cmp_eq_u32 s{sWDN}, 99")
        A("s_cbranch_scc1 L_late_bar")
        A("L_late_spin:")
        A(f"ds_read2_b32 v[{vTMP}:{vTMP+1}], v9 offset0:{F_PROG//4} offset1:{F_BA//4}")
        A("s_waitcnt lgkmcnt(0)")
        A(f"v_readfirstlane_b32 s{sPROG}, v{vTMP}")
        A(f"v_readfirstlane_b32 s{sTMP2}, v{vTMP+1}")
        wcatch()
        A(f"s_cmp_eq_u32 s{sWDN}, 99")
        A("s_cbranch_scc1 L_late_bar0")
        A(f"s_cmp_lt_u32 s{sWDN}, 27")
        A("s_cbranch_scc1 L_late_spin")
        A(f"s_cmp_lt_u32 s{sTMP2}, 8")
        A("s_cbranch_scc1 L_late_spin")
        actreads(8, True)
        for kb in range(6):
            A(f"s_waitcnt lgkmcnt({7-kb})")
            mf(kb, kb == 0)
        A("s_barrier")
        wreads(6, 8)
        A("s_waitcnt lgkmcnt(2)")
        mf(6, False)
        A("s_waitcnt lgkmcnt(0)")
        mf(7, False)
        A("s_branch L_late_done")
        pad("A")
        A("L_late_bar:")
        A("s_waitcnt lgkmcnt(0)")
        A("L_late_bar0:")
        A("s_barrier")
        if opt.fine: stamp(4)
        actreads(8, True)
        for kb in range(8):
            A(f"s_waitcnt lgkmcnt({7-kb})")
            mf(kb, kb == 0)
    else:
        if opt.fine: stamp(3)
        if opt.lflow == 3: signal(F_BA)
        A(f"s_cmp_ge_u32 s{sWDN}, {opt.wmin}")
        A(f"s_cbranch_scc1 {'L_late_w6' if opt.lflow == 3 else 'L_late_bar'}")
        wait_prog(False, opt.wmin - 1)
        wcatch()
        if opt.lflow == 3:
            A("L_late_w6:")
            A(f"s_cmp_eq_u32 s{sWDN}, 99")
            A("s_cbranch_scc1 L_late_bar")
            A("L_late_spin:")
            A(f"ds_read2_b32 v[{vTMP}:{vTMP+1}], v9 offset0:{F_PROG//4} offset1:{F_BA//4}")
            A("s_waitcnt lgkmcnt(0)")
            A(f"v_readfirstlane_b32 s{sPROG}, v{vTMP}")
            A(f"v_readfirstlane_b32 s{sTMP2}, v{vTMP+1}")
            A(f"s_cmp_ge_u32 s{sPROG}, s{sPE}")
            A("s_cbranch_scc1 L_late_bar")
            A(f"s_cmp_lt_u32 s{sTMP2}, 8")
            A("s_cbranch_scc1 L_late_spin")
            n0 = opt.wmin - 21
            actreads(8, True)
            for kb in range(n0):
                A(f"s_waitcnt lgkmcnt({7-kb})")
                mf(kb, kb == 0)
            A("s_barrier")
            wreads(n0, 8)
            for kb in range(n0, 8):
                A(f"s_waitcnt lgkmcnt({2*(7-kb)})")
                mf(kb, False)
            A("s_branch L_late_done")
        A("L_late_bar:")
        A(f"s_cmp_eq_u32 s{sWDN}, 99")
        A("s_waitcnt lgkmcnt(0)")
        A("s_barrier")
        A("s_cbranch_scc1 L_late_act")
        wreads(opt.wmin - 21, 8)
        A("L_late_act:")
        if opt.fine: stamp(4)
        actreads(8, True)
        for kb in range(8):
            A(f"s_waitcnt lgkmcnt({7-kb})")
            mf(kb, kb == 0)
    A("L_late_done:")
    if opt.fine: stamp(5)
    A("s_nop 7")
    publish(vACC, sFA)
    A("s_mov_b64 exec, -1")
    stamp(9)
    A(f"s_cmp_ge_u32 s{sR}, 16")
    A("s_cbranch_scc1 L_red")
    A("s_branch L_exit")
    pad("A")
    A("L_red:")
    A(f"s_mov_b64 s[{sGA}:{sGA+1}], s[{sRA}:{sRA+1}]")
    if opt.fgate and not opt.fbar: cwait(F_FRDY, 1)
    A(f"v_mov_b32 v{vSCA}, v{vRG}")
    if opt.fgate and opt.fbar: A("s_barrier")
    def fwork(i): acc(0, vS0, True)
    gather(nld=1, cntstamp=12, sleep=opt.fgsleep, work=fwork)
    if not opt.stq: stamp(2)
    A("s_nop 1")
    A(f"v_permlane32_swap_b32 v{vS0}, v{vS0+2}")
    A(f"v_permlane32_swap_b32 v{vS0+1}, v{vS0+3}")
    A(f"v_add_f32 v{vS0}, v{vS0}, v{vS0+2}")
    A(f"v_add_f32 v{vS0+1}, v{vS0+1}, v{vS0+3}")
    A("s_nop 1")
    A(f"v_permlane16_swap_b32 v{vS0}, v{vS0+1}")
    A(f"v_add_f32 v{vGA}, v{vS0}, v{vS0+1}")
    A(f"ds_write_b32 v{vRW}, v{vGA}")
    A("s_mov_b64 exec, 1")
    A(f"ds_add_rtn_u32 v{vTMP}, v9, v{vONE} offset:{F_RED}")
    A("s_mov_b64 exec, -1")
    for i in range(4):
        A(f"ds_read2st64_b32 v[{vGA+2*i}:{vGA+2*i+1}], v{vRR} offset0:{2*i} offset1:{2*i+1}")
    A("s_waitcnt lgkmcnt(4)")
    A(f"v_readfirstlane_b32 s{sTMP}, v{vTMP}")
    A(f"s_cmp_lg_u32 s{sTMP}, 7")
    A("s_cbranch_scc1 L_exit")
    A("s_waitcnt lgkmcnt(0)")
    A(f"v_pk_add_f32 v[{vGA}:{vGA+1}], v[{vGA}:{vGA+1}], v[{vGA+2}:{vGA+3}]")
    A(f"v_pk_add_f32 v[{vGA+4}:{vGA+5}], v[{vGA+4}:{vGA+5}], v[{vGA+6}:{vGA+7}]")
    A(f"v_pk_add_f32 v[{vGA}:{vGA+1}], v[{vGA}:{vGA+1}], v[{vGA+4}:{vGA+5}]")
    A(f"v_add_f32 v{vGA}, v{vGA}, v{vGA+1}")
    A(f"v_cvt_pk_bf16_f32 v{vGA}, v{vGA}, v{vGA}")
    A(f"global_store_short v{vOUT}, v{vGA}, s[{sOUT}:{sOUT+1}] {opt.outflags}")
    A(f"s_cmp_lg_u32 s2, 128")
    A("s_cbranch_scc1 L_noepoch")
    A("s_mov_b64 exec, 1")
    A(f"v_mov_b32 v{vTMP}, 0")
    A(f"global_store_dword v{vTMP}, v{vT}, s[{sWS}:{sWS+1}] sc1")
    A("s_mov_b64 exec, -1")
    A("L_noepoch:")
    if opt.fixdur:
        A(f"s_cmp_lg_u32 s2, {opt.fixwg}")
        A("s_cbranch_scc1 L_nofix")
        A("L_fixd:")
        A("s_memrealtime s[14:15]")
        A("s_waitcnt lgkmcnt(0)")
        A("s_sub_u32 s14, s14, s98")
        A(f"s_cmp_lt_u32 s14, {opt.fixdur}")
        A("s_cbranch_scc1 L_fixd")
        A("L_nofix:")
    if STAMP:
        A("s_waitcnt vmcnt(0)")
        stamp(1, True)
    A("s_branch L_exit")

    pad("A")
    A("L_wcatch:")
    for kb in range(8):
        nx = f"L_wcn{kb}"
        if kb < 7:
            A(f"s_cmp_gt_u32 s{sWDN}, {21+kb}")
            A(f"s_cbranch_scc1 {nx}")
        if kb:
            A(f"s_cmp_lt_u32 s{sPROG}, s{sWDN}")
            A("s_cbranch_scc1 L_wcret")
        wreads(kb, kb+1)
        if kb < 6: A(f"s_mov_b32 s{sWDN}, {22+kb}")
        elif kb == 6: A(f"s_mov_b32 s{sWDN}, s{sPE}")
        else: A(f"s_mov_b32 s{sWDN}, 99")
        if kb < 7: A(f"{nx}:")
    A("L_wcret:")
    A(f"s_setpc_b64 s[{sRET}:{sRET+1}]")

    A("L_encs:")
    A(f"v_lshrrev_b32 v{vTMP}, 23, v{vTMP}")
    A(f"v_subrev_u32 v{vTMP}, 126, v{vTMP}")
    A(f"v_ashrrev_i32 v{vTMP}, 4, v{vTMP}")
    A(f"v_med3_i32 v{vTMP}, v{vTMP}, -8, 7")
    A(f"v_cndmask_b32 v{vTMP}, 0, v{vTMP}, vcc")
    A(f"v_and_b32 v{vAX}, 15, v{vTMP}")
    A(f"v_lshl_or_b32 v{vAX}, v{vAX}, 14, v{vAX}")
    A(f"v_and_b32 v{vAX}, s{sM3}, v{vAX}")
    A(f"v_mul_i32_i24 v{vTMP}, -16, v{vTMP}")
    for r in range(4): A(f"v_ldexp_f32 v{vACC+r}, v{vACC+r}, v{vTMP}")
    A("s_mov_b64 vcc, 0")
    A("s_setpc_b64 s[6:7]")
    A("L_fixr:")
    for i in range(4): A(f"v_xor_b32 v{vGA+2*i+1}, v{vTC}, v{vGA+2*i+1}")
    A("L_fix:")
    for i in range(4):
        A(f"v_and_b32 v{vTMP}, 3, v{vGA+2*i}")
        A(f"v_bfe_i32 v{vTMP2}, v{vGA+2*i}, 16, 2")
        A(f"v_lshl_or_b32 v{vTMP}, v{vTMP2}, 2, v{vTMP}")
        A(f"v_lshlrev_b32 v{vTMP}, 4, v{vTMP}")
        A(f"v_ldexp_f32 v{vSCA+i}, v{vSCA+i}, v{vTMP}")
    A("s_setpc_b64 s[6:7]")

    if opt.notif:
        A("L_notif:")
        if opt.nocomm: A("s_branch L_exit")
        if opt.tlb:
            A("s_mov_b64 exec, 1")
            A(f"v_mov_b32 v{vGA}, 0")
            if opt.tlb & 1:
                A(f"global_load_dword v{vGA+1}, v{vGA}, s[{sOUT}:{sOUT+1}] sc1")
                A(f"global_load_dword v{vGA+2}, v{vGA}, s[{sWS}:{sWS+1}] offset:512 sc1")
            if opt.tlb & 2:
                A(f"s_lshl_b32 s{sTMP}, s{sKB0}, 16")
                A(f"v_mov_b32 v{vGA+8}, s{sTMP}")
                A(f"s_cmp_ge_u32 s{sR}, 16")
                A("s_cbranch_scc1 L_tlbM")
                A(f"global_load_dword v{vGA+3}, v{vGA+8}, s[{sWO}:{sWO+1}] nt")
                A(f"s_cmp_eq_u32 s{sROLE}, 2")
                A("s_cbranch_scc1 L_tlbD")
                A(f"s_bitcmp0_b32 s{sBETA}, 1")
                A(f"s_cselect_b64 s[4:5], s[{sWG}:{sWG+1}], s[{sWU}:{sWU+1}]")
                A(f"s_and_b32 s{sTMP}, s{sBETA}, 1")
                A(f"s_mul_i32 s{sTMP}, s{sTMP}, {512*7168}")
                A("s_mov_b64 exec, 7")
                A(f"v_mul_u32_u24 v{vGA+9}, {255*7168}, v0")
                A(f"v_add_u32 v{vGA+9}, s{sTMP}, v{vGA+9}")
                A(f"global_load_dword v{vGA+4}, v{vGA+9}, s[4:5] nt")
                A("s_branch L_tlbD")
                A("L_tlbM:")
                A(f"global_load_dword v{vGA+3}, v{vGA+8}, s[{sWD}:{sWD+1}] nt")
                A(f"s_lshl2_add_u32 s{sTMP}, s{sBB}, s{sG}")
                A(f"s_lshl_b32 s{sTMP}, s{sTMP}, 20")
                A(f"v_mov_b32 v{vGA+9}, s{sTMP}")
                A(f"global_load_dword v{vGA+4}, v{vGA+9}, s[{sV}:{sV+1}] nt")
                A("L_tlbD:")
            A("s_mov_b64 exec, -1")
        A(f"s_cmp_eq_u32 s{sROLE}, 2")
        A("s_cbranch_scc1 L_exit")
        A(f"s_cmp_ge_u32 s{sR}, 16")
        A("s_cbranch_scc1 L_notifM")
        hc_addr()
        wait_prog(False, opt.nprogh - 1, sleep=2)
        wait_prog(False, opt.nprogh)
        if opt.ndelay: A(f"s_sleep {opt.ndelay}")
        bump("h")
        A("s_branch L_exit")
        A("L_notifM:")
        A(f"s_mul_i32 s{sTMP}, s{sG}, {32*CS}")
        ws_addr(sGB, WS_OC, sTMP)
        cwait(F_BP, 8, sleep=2)
        if opt.pdelay: A(f"s_sleep {opt.pdelay}")
        wait_prog(False, opt.nprogo - 1, sleep=2)
        wait_prog(False, opt.nprogo)
        if opt.ndelay + opt.odelay: A(f"s_sleep {opt.ndelay + opt.odelay}")
        bump("q")
        A("s_branch L_exit")

    A("L_poller:")
    if opt.nocomm: A("s_branch L_exit")
    A(f"s_cmp_ge_u32 s{sR}, 16")
    A("s_cbranch_scc1 L_pollM")
    A(f"s_lshl3_add_u32 s{sTMP}, s{sRBK}, s{sCB}")
    A(f"s_and_b32 s{sTMP}, s{sTMP}, {NREP-1}")
    A(f"s_lshl_b32 s{sTMP2}, s{sG}, 5")
    A(f"s_add_u32 s{sTMP}, s{sTMP}, s{sTMP2}")
    A(f"s_mul_i32 s{sTMP}, s{sTMP}, {CS}")
    ws_addr(sGB, WS_OC, sTMP)
    A(f"s_load_dword s4, s[{sGB}:{sGB+1}], 0 glc")
    A(f"s_and_b32 s{sTMP}, s{sRBK}, 3")
    A(f"s_lshl_b32 s{sTMP}, s{sTMP}, 4")
    A(f"s_lshl_b32 s{sTMP2}, s{sG}, 11")
    A(f"s_add_u32 s{sTMP}, s{sTMP}, s{sTMP2}")
    ws_addr(sGA, WS_LSE, sTMP)
    A(f"v_and_b32 v{vTMP3}, 31, v0")
    A(f"v_lshlrev_b32 v{vTMP3}, 6, v{vTMP3}")
    A(f"v_lshrrev_b32 v{vTMP2}, 5, v0")
    A(f"v_lshl_or_b32 v{vTMP3}, v{vTMP2}, 3, v{vTMP3}")
    A("s_waitcnt lgkmcnt(0)")
    A(f"v_lshl_add_u32 v{vWA}, v0, 2, v9")
    A(f"s_cmp_eq_u32 s{sROLE}, 2")
    A(f"s_cselect_b32 s{sTMP2}, {opt.ogatec}, {opt.ogate}")
    A(f"s_add_u32 s5, s4, {0x200020 if opt.lcnt else 32}")
    for k, l in touch:
        if k in "AB": A(f"s_call_b64 s[6:7], {l}")
    wait_prog(True, sTMP2, sleep=2)
    stamp(2)
    if not (opt.dbg & 7):
        A(f"s_mov_b32 s{sCNT}, 0")
        if opt.psleep: A("s_branch L_pl1e")
        A("L_pl1:")
        if opt.psleep:
            A(f"s_sleep {opt.psleep}")
            A("L_pl1e:")
        A(f"s_load_dword s8, s[{sGB}:{sGB+1}], 0 glc")
        A(f"s_add_u32 s{sCNT}, s{sCNT}, 1")
        A(f"s_cmp_gt_u32 s{sCNT}, {opt.maxhint}")
        A("s_waitcnt lgkmcnt(0)")
        A("s_cbranch_scc1 L_pl1d")
        A("s_sub_u32 s9, s8, s4")
        A(f"s_cmp_lt_u32 s9, {0x200000 if opt.lcnt else opt.lthr}")
        A("s_cbranch_scc1 L_pl1")
        A("L_pl1d:")
        stampval(10, sCNT)
    stamp(3)
    A("s_mov_b32 s9, 0")
    A(f"s_mov_b32 s{sTMP3}, 0")
    A("L_lse:")
    if not (opt.dbg & 2): A(f"global_load_dwordx2 v[{vLS}:{vLS+1}], v{vTMP3}, s[{sGA}:{sGA+1}] sc1")
    if not (opt.dbg & 7):
        A("s_cmp_lg_u32 s9, 0")
        A("s_cbranch_scc1 L_lse_wait")
        A("L_pl2:")
        A("s_cmp_eq_u32 s8, s5")
        A("s_cbranch_scc1 L_pl_sig")
        A(f"s_cmp_gt_u32 s{sCNT}, {opt.maxhint}")
        A("s_cbranch_scc1 L_pl_sig")
        A("s_getreg_b32 s10, hwreg(HW_REG_IB_STS, 0, 4)")
        A("s_cmp_eq_u32 s10, 0")
        A("s_cbranch_scc1 L_lse_wait")
        A(f"s_load_dword s8, s[{sGB}:{sGB+1}], 0 glc")
        A(f"s_add_u32 s{sCNT}, s{sCNT}, 1")
        A("s_waitcnt lgkmcnt(0)")
        A("s_branch L_pl2")
        A("L_pl_sig:")
        signal(F_LRDY)
        A("s_mov_b32 s9, 1")
        stamp(5)
    A("L_lse_wait:")
    if not (opt.dbg & 7):
        A(f"s_load_dword s8, s[{sGB}:{sGB+1}], 0 glc")
    A(f"s_add_u32 s{sTMP3}, s{sTMP3}, 1")
    A("s_waitcnt vmcnt(0)")
    A(f"v_cmp_ne_u32 vcc, s{sT}, v{vLS+1}")
    A(f"s_cbranch_vccz L_lsed")
    A(f"s_cmp_le_u32 s{sTMP3}, {0 if (opt.dbg & 7) else opt.maxpoll}")
    A("s_waitcnt lgkmcnt(0)")
    A(f"s_cbranch_scc1 L_lse")
    A("L_lsed:")
    stampval(12, sTMP3)
    A(f"v_max_f32_dpp v{vTMP}, v{vLS}, v{vLS} quad_perm:[1,0,3,2] row_mask:0xf bank_mask:0xf")
    A("s_nop 1")
    A(f"v_max_f32_dpp v{vTMP}, v{vTMP}, v{vTMP} quad_perm:[2,3,0,1] row_mask:0xf bank_mask:0xf")
    A(f"v_sub_f32 v{vLS}, v{vLS}, v{vTMP}")
    A(f"v_exp_f32 v{vLS}, v{vLS}")
    A("s_nop 1")
    A(f"v_add_f32_dpp v{vTMP}, v{vLS}, v{vLS} quad_perm:[1,0,3,2] row_mask:0xf bank_mask:0xf")
    A("s_nop 1")
    A(f"v_add_f32_dpp v{vTMP}, v{vTMP}, v{vTMP} quad_perm:[2,3,0,1] row_mask:0xf bank_mask:0xf")
    A(f"v_rcp_f32 v{vTMP}, v{vTMP}")
    A("s_nop 0")
    A(f"v_mul_f32 v{vLS}, v{vLS}, v{vTMP}")
    A(f"v_mul_f32 v{vLS}, {fbits(2.0**-LO_):#x}, v{vLS}")
    A(f"ds_write_b32 v{vWA}, v{vLS} offset:{F_WT}")
    signal(F_WRDY)
    stamp(4)
    if not (opt.dbg & 7):
        A("s_cmp_lg_u32 s9, 0")
        A("s_cbranch_scc1 L_pl_fin")
        A("s_waitcnt lgkmcnt(0)")
        A("s_cmp_eq_u32 s8, s5")
        A("s_cbranch_scc1 L_pl_sig2")
    pollcnt(sGB, 5, opt.psleep, cntstamp=11)
    A("L_pl_sig2:")
    signal(F_LRDY)
    stamp(5)
    A("L_pl_fin:")
    A("s_barrier")
    A("s_branch L_exit")
    A("L_pollM:")
    A(f"s_lshl2_add_u32 s{sTMP}, s{sBB}, s{sSPL}")
    A(f"s_lshr_b32 s{sTMP}, s{sTMP}, {int(math.log2(32//NREP))}")
    A(f"s_lshl_b32 s{sTMP2}, s{sG}, 5")
    A(f"s_add_u32 s{sTMP}, s{sTMP}, s{sTMP2}")
    A(f"s_mul_i32 s{sTMP}, s{sTMP}, {CS}")
    ws_addr(sGB, WS_QC, sTMP)
    if opt.qhint: A(f"s_load_dword s4, s[{sGB}:{sGB+1}], 0 glc")
    A(f"s_mul_i32 s{sTMP}, s{sRBK}, {HREP}")
    A(f"s_and_b32 s{sTMP2}, s{sCB}, {HREP-1}")
    A(f"s_add_u32 s{sTMP}, s{sTMP}, s{sTMP2}")
    A(f"s_mul_i32 s{sTMP}, s{sTMP}, {CS}")
    ws_addr(sGA, WS_HC, sTMP)
    A(f"s_load_dword s5, s[{sGA}:{sGA+1}], 0 glc")
    if opt.fgate:
        A(f"s_and_b32 s{sTMP}, s{sR}, {opt.frep-1}")
        A(f"s_lshl4_add_u32 s{sTMP}, s{sXCD}, s{sTMP}")
        A(f"s_mul_i32 s{sTMP}, s{sTMP}, {CS}")
        ws_addr(10, WS_FC, sTMP)
        A(f"s_load_dword s6, s[10:11], 0 glc")
    A(f"s_bitcmp1_b32 s{sKB0}, 1")
    A(f"s_cselect_b32 s{sTMP}, 12, 8")
    A("s_waitcnt lgkmcnt(0)")
    if opt.fgate: A("s_add_u32 s6, s6, 32")
    A("s_add_u32 s4, s4, 64")
    A(f"s_add_u32 s5, s5, s{sTMP}")
    if opt.fgate: A("s_mov_b32 s9, s6")
    for k, l in touch:
        if k in "AM": A(f"s_call_b64 s[6:7], {l}")
    if opt.qhint:
        wait_prog(False, opt.qgate, sleep=2)
        stamp(2)
        pollcnt(sGB, 4, opt.psleep, cntstamp=10)
        signal(F_QRDY)
        stamp(3)
    wait_prog(False, opt.hgate, sleep=2)
    stamp(4)
    pollcnt(sGA, 5, opt.psleep, cntstamp=11)
    signal(F_LRDY)
    stamp(5)
    A("s_barrier")
    if opt.fgate:
        stamp(6)
        pollcnt(10, 9, 0, cntstamp=12)
        if opt.fbar: A("s_barrier")
        else: signal(F_FRDY)
        stamp(7)

    A("L_exit:")
    if STAMP:
        A("s_waitcnt lgkmcnt(0)")
        A(f"s_mul_i32 s{sTMP}, s2, {NWAVES}")
        A(f"s_add_u32 s{sTMP}, s{sTMP}, s3")
        A(f"s_lshl_b32 s{sTMP}, s{sTMP}, 6")
        A(f"s_add_u32 s{sTMP}, s{sTMP}, {WS_STAMP}")
        A(f"v_mov_b32 v1, s{sTMP}")
        A("s_mov_b64 exec, 1")
        for i in range(NST if STAMP == 1 else 10):
            A(f"v_mov_b32 v2, s{sST+2*i}")
            A(f"global_store_dword v1, v2, s[{sWS}:{sWS+1}] offset:{4*i}")
        A(f"v_mov_b32 v2, s{sROLE}")
        A(f"global_store_dword v1, v2, s[{sWS}:{sWS+1}] offset:60")
    A("L_end:")
    A("s_endpgm")

    body = "\n".join(g.o)
    PADTXT = f".p2align 12\n.fill {opt.pad//4}, 4, 0xbf810000\n" if opt.pad >= 0 else ""
    txt = HEADER
    txt += f"; @launch grid=(256,1,1) block=({64*NWAVES},1,1) lds={LDS_BYTES}\n"
    txt += f""".amdgcn_target "amdgcn-amd-amdhsa--gfx950"
.text
.globl {KNAME}
{PADTXT}.p2align 8
.type {KNAME},@function
{KNAME}:
{body}
.section .rodata,"a"
.p2align 6
.amdhsa_kernel {KNAME}
  .amdhsa_next_free_vgpr {NV}
  .amdhsa_next_free_sgpr 102
  .amdhsa_accum_offset {NV}
  .amdhsa_group_segment_fixed_size 0
  .amdhsa_kernarg_size 104
  .amdhsa_user_sgpr_count 2
  .amdhsa_user_sgpr_kernarg_segment_ptr 1
  .amdhsa_system_sgpr_workgroup_id_x 1
.end_amdhsa_kernel
"""
    return txt

def parse(argv):
    ap = argparse.ArgumentParser()
    ap.add_argument("--nt", default="nt")
    ap.add_argument("--pb", default="20:24,8:22")
    ap.add_argument("--pc", default="4:20,d,3:4,5:12")
    ap.add_argument("--pm", default="20:24,7:20")
    ap.add_argument("--nb0", type=int, default=3)
    ap.add_argument("--stamp", type=int, default=0)
    ap.add_argument("--stq", type=int, default=0)
    ap.add_argument("--fdelay", type=int, default=0)
    ap.add_argument("--qgate", type=int, default=9)
    ap.add_argument("--ogate", type=int, default=19)
    ap.add_argument("--ogatec", type=int, default=26)
    ap.add_argument("--hgate", type=int, default=19)
    ap.add_argument("--ggate", type=int, default=1)
    ap.add_argument("--maxpoll", type=int, default=100000)
    ap.add_argument("--psleep", type=int, default=0)
    ap.add_argument("--fsleep", type=int, default=2)
    ap.add_argument("--gsleep", type=int, default=0)
    ap.add_argument("--fgsleep", type=int, default=0)
    ap.add_argument("--sample", type=int, default=0)
    ap.add_argument("--outflags", default="sc1")
    ap.add_argument("--fixdur", type=int, default=0)
    ap.add_argument("--fixwg", type=int, default=128)
    ap.add_argument("--nocomm", type=int, default=0)
    ap.add_argument("--dbg", type=int, default=0)
    ap.add_argument("--cpf", type=int, default=2)
    ap.add_argument("--qlead", type=int, default=-1)
    ap.add_argument("--hlead", type=int, default=-1)
    ap.add_argument("--olead", type=int, default=-1)
    ap.add_argument("--oearly", type=int, default=0)
    ap.add_argument("--flagwave", type=int, default=1)
    ap.add_argument("--xgat", type=int, default=10)
    ap.add_argument("--nrep", type=int, default=8)
    ap.add_argument("--satom", type=int, default=1)
    ap.add_argument("--maxhint", type=int, default=20)
    ap.add_argument("--hround", type=int, default=0)
    ap.add_argument("--fgate", type=int, default=0)
    ap.add_argument("--frep", type=int, default=8)
    ap.add_argument("--flag_delay", type=int, default=1)
    ap.add_argument("--qhint", type=int, default=0)
    ap.add_argument("--qsleep", type=int, default=4)
    ap.add_argument("--lcnt", type=int, default=0)
    ap.add_argument("--lthr", type=int, default=16)
    ap.add_argument("--spec", type=int, default=0)
    ap.add_argument("--ackst", type=int, default=0)
    ap.add_argument("--cstride", type=int, default=640)
    ap.add_argument("--midahead", type=int, default=1)
    ap.add_argument("--fine", type=int, default=0)
    ap.add_argument("--pad", type=lambda x: int(x, 0), default=0xd00)
    ap.add_argument("--touch", type=int, default=0)
    ap.add_argument("--sbias", type=int, default=0)
    ap.add_argument("--period", type=int, default=0)
    ap.add_argument("--toff", type=int, default=650)
    ap.add_argument("--qsync", type=int, default=0)
    ap.add_argument("--lprio", type=int, default=3)
    ap.add_argument("--cprio", type=int, default=0)
    ap.add_argument("--gprio", type=int, default=0)
    ap.add_argument("--kvmode", default="lin")
    ap.add_argument("--kvrot", type=int, default=4)
    ap.add_argument("--rotw", type=int, default=1)
    ap.add_argument("--lrot", type=int, default=3)
    ap.add_argument("--lflow", type=int, default=2)
    ap.add_argument("--wmin", type=int, default=27)
    ap.add_argument("--notif", type=int, default=1)
    ap.add_argument("--ndelay", type=int, default=0)
    ap.add_argument("--odelay", type=int, default=0)
    ap.add_argument("--pdelay", type=int, default=6)
    ap.add_argument("--nprogh", type=int, default=20)
    ap.add_argument("--nprogo", type=int, default=20)
    ap.add_argument("--gran", type=int, default=2)
    ap.add_argument("--barpos", type=int, default=1)
    ap.add_argument("--fsat", type=int, default=1)
    ap.add_argument("--gok", type=int, default=7)
    ap.add_argument("--fbar", type=int, default=1)
    ap.add_argument("--specw", type=int, default=1)
    ap.add_argument("--fearly", type=int, default=0)
    ap.add_argument("--tlb", type=int, default=0)
    ap.add_argument("--cpfc", type=int, default=0)
    ap.add_argument("--stlb", type=int, default=7)
    ap.add_argument("--vtouch", type=int, default=0)
    ap.add_argument("-o", default=None)
    return ap.parse_args(argv)

if __name__ == "__main__":
    opt = parse(sys.argv[1:])
    t = gen(opt)
    if opt.o: open(opt.o, "w").write(t)
    else: print(t)
```

```python
import sys, argparse, struct, math

KNAME = "gated_mix__sliding_block_cached__glu_gated_reglu__decode_kernel"
HEADER = open("gated_mix__sliding_block_cached__glu_gated_reglu__decode.s.ref").read().split("; Override launch")[0]

RA = 0
RB = 65536
XA = 131072
RQ = RB + 32768
XF = XA
QF = XA + 2048
PF = XA + 4096
RS = XA + 8192
ST = XA + 10240
AF = XA + 12288
FL = XA + 16384
F_PROG, F_LRDY, F_QRDY, F_WRDY, F_BQ, F_BM, F_BP, F_BA, F_RED, F_PUB0, F_PUB1, F_FREE0, F_FREE1, F_ERD, F_FRDY = [4*i for i in range(15)]
F_MAX = 64
F_G = 96
F_WT = 128
LDS_BYTES = FL + 128 + 256

WS_QP = 512 << 10
WS_FP = 1024 << 10
WS_OP = 1536 << 10
WS_GP = 1792 << 10
WS_LSE = 16 << 10
WS_QC = 64 << 10
WS_OC = 160 << 10
WS_HC = 256 << 10
WS_FC = 352 << 10
WS_STAMP = 8 << 20

class G:
    def __init__(self):
        self.o = []; self.nlab = 0
    def A(self, s):
        for line in s.split("\n"):
            self.o.append("    " + line.strip() if not line.strip().endswith(":") else line.strip())
    def lab(self, p="L"):
        self.nlab += 1
        return f"{p}_{self.nlab}"

def plan(s):
    out = []
    for t in s.split(","):
        if t == "d": out.append("d")
        else:
            a, b = t.split(":")
            out.append((int(a), tuple(int(x) for x in b.split("/")) if "/" in b else int(b)))
    return out

def gen(opt):
    g = G(); A = g.A
    CS = opt.cstride
    NWAVES = 11 if opt.notif else 10
    NT = opt.nt
    STAMP = opt.stamp
    sX, sK, sV, sWQ, sWO, sBX, sWG, sWU = [16+2*i for i in range(8)]
    sWD, sGW, sOUT, sDBG = 32, 34, 36, 38
    sWS = 40
    sXCD, sR, sROLE = 42, 43, 44
    sU, sBETA, sG, sSPL, sRBK, sCB, sBB = 45, 46, 47, 48, 49, 50, 51
    sKS, sKB0 = 100, 101
    sLR = 53
    sWDN = 52
    sT = 54
    sT0, sT1, sT2, sT3 = 54, 56, 57, 53
    sSEL0, sSEL1, sSEL2, sSEL3 = 58, 59, 60, 61
    sPROG, sC = 62, 63
    sTMP, sTMP2, sTMP3, sCNT = 64, 65, 66, 67
    sGA, sGB = 68, 70
    sROT = 15
    sSM = 4
    sST = 72
    NST = 14
    SRD = 8
    def stamp(idx, key=False):
        if opt.probe == idx and not key: A("s_memrealtime s[96:97]")
        if STAMP == 1 or (STAMP and (key or idx == 0)): A(f"s_memrealtime s[{sST+2*idx}:{sST+2*idx+1}]")
    touch = []
    def pad(kind):
        if not opt.touch: return
        l = g.lab("L_tp"); touch.append((kind, l))
        A(f"{l}:")
        A("s_setpc_b64 s[6:7]")
    def stampval(idx, sreg):
        if STAMP == 1: A(f"s_mov_b32 s{sST+2*idx}, s{sreg}")
    pb, pc, pm = plan(opt.pb), plan(opt.pc), plan(opt.pm)
    NB0 = opt.nb0
    assert NB0 <= 3

    stamp(0)
    if opt.fixdur: A("s_memrealtime s[98:99]")
    A("s_load_dwordx16 s[16:31], s[0:1], 0")
    A("s_load_dwordx8 s[32:39], s[0:1], 64")
    A("s_load_dwordx2 s[40:41], s[0:1], 96")
    A(f"s_cmp_ge_u32 s2, 256")
    A("s_cbranch_scc1 L_end")
    A("v_lshrrev_b32 v1, 6, v0")
    A("v_and_b32 v0, 63, v0")
    A("v_readfirstlane_b32 s3, v1")
    A(f"s_and_b32 s{sXCD}, s2, 7")
    A(f"s_lshr_b32 s{sR}, s2, 3")
    A(f"s_lshr_b32 s{sG}, s{sXCD}, 1")
    A(f"s_and_b32 s{sTMP3}, s{sXCD}, 1")
    A(f"s_add_u32 s{sROT}, s{sR}, s{2 if opt.rotw else sXCD}")
    A(f"s_lshl_b32 s{sTMP}, s{sXCD}, 1")
    A(f"s_sub_u32 s{sTMP}, s{sR}, s{sTMP}")
    A(f"s_sub_u32 s{sTMP}, s{sTMP}, 4")
    A(f"s_bfe_u32 s{sTMP2}, s{sTMP}, 0x20002")
    A(f"s_and_b32 s{sTMP}, s{sTMP}, 3")
    A(f"s_lshl2_add_u32 s{sU}, s{sTMP}, s{sTMP2}")
    A(f"s_cmp_ge_u32 s{sR}, 16")
    A(f"s_cselect_b32 s{sU}, s{sR}, s{sU}")
    A(f"s_lshr_b32 s{sTMP}, s{sU}, 3")
    A(f"s_lshl2_add_u32 s{sKS}, s{sTMP3}, s{sTMP}")
    A("s_cmp_lg_u32 s3, 0")
    A("s_cbranch_scc1 L_notloader")
    sSOFF, sSTEP, sNB, sBLK = 4, 5, 6, 7
    sIDX, sWRAP, sBASE = 12, 13, 14
    sNOW, sDL = 56, 58
    TIMED = "/" in (opt.pb + opt.pm + opt.pc)
    if TIMED: A(f"s_memrealtime s[{sNOW}:{sNOW+1}]")
    A(f"s_setprio {opt.lprio}")
    A(f"v_mov_b32 v9, {FL}")
    A("v_mov_b32 v10, 0xff7fffff")
    A("v_cmp_gt_u32 vcc, 16, v0")
    A("v_lshl_add_u32 v11, v0, 2, v9")
    A("v_lshrrev_b32 v2, 4, v0")
    A("v_cndmask_b32 v10, v10, 0, vcc")
    A("ds_write_b32 v11, v10")
    A("v_bfe_u32 v3, v0, 1, 3")
    A("v_xor_b32 v3, v3, v2")
    A("v_lshlrev_b32 v3, 5, v3")
    A("v_and_b32 v4, 1, v0")
    A("v_lshl_or_b32 v3, v4, 4, v3")
    A("v_xor_b32 v4, 0x80, v3")
    A("v_lshl_add_u32 v5, v2, 13, v3")
    A("v_lshl_add_u32 v6, v2, 13, v4")
    A(f"s_mov_b32 s{SRD+3}, 0x20000")
    A(f"s_and_b32 s{sTMP}, s{sU}, 7")
    A(f"s_lshl3_add_u32 s{sTMP}, s{sG}, s{sTMP}")
    A(f"s_lshl_b32 s{sTMP}, s{sTMP}, 8")
    A(f"s_lshl_b32 s{sSOFF}, s{sKS}, 20")
    A(f"s_add_u32 s{sSOFF}, s{sSOFF}, s{sTMP}")
    A(f"s_mov_b32 s{SRD+2}, {1024*4096*2}")
    A(f"s_mov_b32 s{sNB}, {NB0}")
    A(f"s_mov_b32 s{sSTEP}, {4*8192}")
    A(f"s_mov_b32 m0, {RQ}")
    A(f"s_mov_b32 s{sBLK}, {NB0}")
    if opt.fine == 2: stamp(5)
    A("s_waitcnt lgkmcnt(0)")
    if opt.fine == 2: stamp(6)
    A(f"s_mov_b64 s[{SRD}:{SRD+1}], s[{sWQ}:{sWQ+1}]")
    if TIMED: A(f"s_mov_b32 s{sDL}, s{sNOW}")
    if opt.barpos == 0: A("s_barrier")
    if opt.fine == 2: stamp(7)
    def blk_body(win, rot):
        GR = opt.gran
        if win is not None:
            assert win % GR == 0
            pj = win % 8
            back = (win - pj) // 8
        for j in range(8):
            half, i = j >> 2, j & 3
            if win is not None and j % GR == 0:
                if j == pj:
                    A(f"s_sub_u32 s{sTMP}, s{sBLK}, {back}")
                    A(f"s_max_i32 s{sPROG}, s{sTMP}, s{sPROG}")
                    A(f"v_mov_b32 v10, s{sPROG}")
                A(f"s_waitcnt vmcnt({win})")
                if j == pj: A(f"ds_write_b32 v9, v10 offset:{F_PROG}")
            v = 5 if ((i >> 1) & 1) == 0 else 6
            A(f"buffer_load_dwordx4 v{v}, s[{SRD}:{SRD+3}], s{sSOFF} offen {NT} lds")
            A(f"s_add_u32 m0, m0, 1024")
            if rot == "kv":
                st = {"lin": 1024, "tr1": 8192 + (1024 if (half, i) == (1, 3) else 0),
                      "tr2": (1024 if i % 2 == 0 else 15360) + (2048 if (half, i) == (1, 3) else 0)}[opt.kvmode]
                A(f"s_add_u32 s{sIDX}, s{sIDX}, {st}")
                A(f"s_pack_lh_b32_b16 s{sSOFF}, s{sIDX}, s{sSOFF}")
            else:
                A(f"s_add_u32 s{sSOFF}, s{sSOFF}, s{sSTEP}")
        if rot == 7:
            A(f"s_add_u32 s{sIDX}, s{sIDX}, 1")
            A(f"s_cmp_eq_u32 s{sIDX}, 7")
            A(f"s_cselect_b32 s{sTMP}, {7*65536}, 0")
            A(f"s_sub_u32 s{sSOFF}, s{sSOFF}, s{sTMP}")
        if rot is True:
            A(f"s_add_u32 s{sIDX}, s{sIDX}, 1")
            A(f"s_and_b32 s{sIDX}, s{sIDX}, 7")
            A(f"s_cselect_b32 s{sTMP}, 0, s{sWRAP}")
            A(f"s_sub_u32 s{sSOFF}, s{sSOFF}, s{sTMP}")
    if opt.barpos == 1:
        blk_body(None, False)
        A("s_barrier")
        A(f"s_mov_b32 s{sNB}, {NB0-1}")
    A("L_top_loop:")
    blk_body(None, False)
    A(f"s_sub_u32 s{sNB}, s{sNB}, 1")
    A(f"s_cmp_lg_u32 s{sNB}, 0")
    A("s_cbranch_scc1 L_top_loop")
    if opt.barpos == 2: A("s_barrier")
    A("s_branch L_loader2")
    A("L_notloader:")
    if opt.stlb:
        A("s_cmp_eq_u32 s3, 10")
        A("s_cbranch_scc1 L_loader2")
    if opt.cpf:
        A(f"s_cmp_gt_u32 s3, {opt.cpf}")
        A("s_cbranch_scc1 L_cpf_done")
        if opt.cpfc:
            A(f"s_cmp_lg_u32 s{sR}, 14")
            A("s_cbranch_scc1 L_cpf_done")
        A("s_getpc_b64 s[4:5]")
        A("L_pc:")
        A(f"s_lshl_b32 s{sTMP}, s3, 13")
        A(f"s_sub_u32 s{sTMP}, s{sTMP}, 8192")
        A(f"v_lshl_add_u32 v1, v0, 7, s{sTMP}")
        A(f"v_cmp_gt_u32 vcc, L_end-L_pc, v1")
        A("s_and_saveexec_b64 s[6:7], vcc")
        A("s_cbranch_execz L_cpf_done2")
        A(f"global_load_dword v127, v1, s[4:5]")
        A("L_cpf_done2:")
        A("s_mov_b64 exec, -1")
        A("L_cpf_done:")
    A("s_barrier")
    A("s_branch L_cons")

    def decode2(keep=False):
        d = g.lab("L_d2"); m = g.lab("L_d2m")
        if STAMP:
            for i in range(1, NST):
                if not (opt.fine == 2 and keep and i in (5, 6, 7)): A(f"s_mov_b32 s{sST+2*i}, 0")
        A(f"s_mul_i32 s{sBETA}, s{sXCD}, 14")
        A(f"s_add_u32 s{sBETA}, s{sBETA}, s{sR}")
        A(f"s_mov_b32 s{sPROG}, 0")
        A(f"s_cmp_ge_u32 s{sR}, 16")
        A(f"s_cbranch_scc1 {m}")
        A(f"s_cmp_ge_u32 s{sR}, 14")
        A(f"s_cselect_b32 s{sROLE}, 2, 1")
        A(f"s_lshr_b32 s{sTMP}, s{sU}, 3")
        A(f"s_lshl1_add_u32 s{sRBK}, s{sXCD}, s{sTMP}")
        A(f"s_add_u32 s{sTMP}, s{sU}, 3")
        A(f"s_and_b32 s{sTMP}, s{sTMP}, 3")
        A(f"s_and_b32 s{sCB}, s{sU}, 4")
        A(f"s_or_b32 s{sCB}, s{sCB}, s{sTMP}")
        A(f"s_lshl_b32 s{sKB0}, s{sRBK}, 3")
        A(f"s_add_u32 s{sLR}, s{sR}, s{sXCD}")
        A(f"s_and_b32 s{sLR}, s{sLR}, {7 if opt.lrot & 1 else 0}")
        A(f"s_branch {d}")
        A(f"{m}:")
        A(f"s_mov_b32 s{sROLE}, 0")
        A(f"s_and_b32 s{sTMP}, s{sXCD}, 1")
        A(f"s_bfe_u32 s{sBB}, s{sR}, 0x20002")
        A(f"s_lshl2_add_u32 s{sBB}, s{sTMP}, s{sBB}")
        A(f"s_and_b32 s{sSPL}, s{sR}, 3")
        A(f"s_bfe_u32 s{sTMP}, s{sR}, 0x10003")
        A(f"s_lshl1_add_u32 s{sRBK}, s{sXCD}, s{sTMP}")
        A(f"s_mul_i32 s{sKB0}, s{sRBK}, 7")
        A(f"s_and_b32 s{sLR}, s{sR}, {7 if opt.lrot & 2 else 0}")
        A(f"s_cmp_eq_u32 s{sLR}, 7")
        A(f"s_cselect_b32 s{sLR}, 3, s{sLR}")
        A(f"s_add_u32 s{sCB}, s{sR}, 1")
        A(f"s_and_b32 s{sCB}, s{sCB}, 7")
        A(f"{d}:")

    A("L_loader2:")
    decode2(True)
    if opt.stlb:
        A("s_cmp_eq_u32 s3, 0")
        A("s_cbranch_scc1 L_loader3")
        A(f"v_mov_b32 v9, {FL}")
        if STAMP:
            for i in (5, 6, 7): A(f"s_mov_b32 s{sST+2*i}, 0")
        A("s_waitcnt lgkmcnt(0)")
        if opt.stlb & 4:
            A(f"s_lshl_b32 s{sTMP}, s2, 6")
            A(f"s_load_dword s8, s[{sX}:{sX+1}], s{sTMP}")
            A(f"s_lshl_b32 s{sTMP}, s{sR}, 6")
            A(f"s_load_dword s9, s[{sGW}:{sGW+1}], s{sTMP}")
        A(f"s_lshl_b32 s{sTMP}, s{sKB0}, 16")
        A(f"s_lshl_b32 s{sTMP2}, s{sCB}, 8")
        A(f"s_add_u32 s{sTMP}, s{sTMP}, s{sTMP2}")
        A(f"s_cmp_ge_u32 s{sR}, 16")
        A("s_cbranch_scc1 L_stM")
        A(f"s_load_dword s4, s[{sWO}:{sWO+1}], s{sTMP}")
        if opt.stlb & 2:
            A(f"s_cmp_eq_u32 s{sROLE}, 2")
            A("s_cbranch_scc1 L_stD")
            A(f"s_bitcmp0_b32 s{sBETA}, 1")
            A(f"s_cselect_b64 s[12:13], s[{sWG}:{sWG+1}], s[{sWU}:{sWU+1}]")
            A(f"s_and_b32 s{sTMP}, s{sBETA}, 1")
            A(f"s_mul_i32 s{sTMP}, s{sTMP}, {512*7168}")
            A(f"s_lshr_b32 s{sTMP2}, s{sBETA}, 2")
            A(f"s_lshl_b32 s{sTMP2}, s{sTMP2}, 8")
            A(f"s_add_u32 s{sTMP}, s{sTMP}, s{sTMP2}")
            for i in range(3):
                A(f"s_load_dword s{5+i}, s[12:13], s{sTMP}")
                A(f"s_add_u32 s{sTMP}, s{sTMP}, {255*7168}")
        A("s_branch L_stD")
        A("L_stM:")
        A(f"s_load_dword s4, s[{sWD}:{sWD+1}], s{sTMP}")
        A(f"s_add_u32 s{sTMP}, s{sTMP}, {223*2048}")
        A(f"s_load_dword s10, s[{sWD}:{sWD+1}], s{sTMP}")
        A(f"s_lshl2_add_u32 s{sTMP}, s{sBB}, s{sG}")
        A(f"s_lshl4_add_u32 s{sTMP}, s{sTMP}, s{sSPL}")
        A(f"s_add_u32 s{sTMP}, s{sTMP}, 12")
        A(f"s_lshl_b32 s{sTMP}, s{sTMP}, 16")
        if opt.stlb & 2: A(f"s_load_dword s7, s[{sK}:{sK+1}], s{sTMP}")
        A(f"s_load_dword s5, s[{sV}:{sV+1}], s{sTMP}")
        A(f"s_lshl_b32 s{sTMP}, s{sR}, 9")
        A(f"s_lshl_b32 s{sTMP2}, s{sXCD}, 6")
        A(f"s_add_u32 s{sTMP}, s{sTMP}, s{sTMP2}")
        A(f"s_load_dword s6, s[{sOUT}:{sOUT+1}], s{sTMP} glc")
        A("L_stD:")
        pass
        A("s_barrier")
        A("s_waitcnt lgkmcnt(0)")
        A("s_branch L_notif")
        A("L_loader3:")
    stamp(1)
    def lds_wait_ge(off, val, vtmp="v11", vaddr="v9", sleep=0):
        l = g.lab("L_w")
        A(f"{l}:")
        if sleep: A(f"s_sleep {sleep}")
        A(f"ds_read_b32 {vtmp}, {vaddr} offset:{off}")
        A("s_waitcnt lgkmcnt(0)")
        A(f"v_readfirstlane_b32 s{sTMP}, {vtmp}")
        A(f"s_cmp_ge_u32 s{sTMP}, {val}")
        A(f"s_cbranch_scc0 {l}")
    def wmax(w): return max(w) if isinstance(w, tuple) else w
    def blk_loop(nblk, win, rot):
        l = g.lab("L_ld")
        if nblk > 1:
            A(f"s_mov_b32 s{sNB}, {nblk}")
            A(f"{l}:")
        if isinstance(win, tuple):
            hi = g.lab("L_hi"); j = g.lab("L_jn")
            A(f"s_memrealtime s[{sNOW}:{sNOW+1}]")
            A(f"s_mul_i32 s{sTMP2}, s{sBLK}, {opt.period}")
            A(f"s_add_u32 s{sTMP2}, s{sTMP2}, {opt.toff}")
            A("s_waitcnt lgkmcnt(0)")
            A(f"s_sub_u32 s{sTMP}, s{sNOW}, s{sDL}")
            A(f"s_cmp_gt_u32 s{sTMP}, s{sTMP2}")
            A(f"s_cbranch_scc1 {hi}")
            for k in range(3, win[0]//8, -1):
                A(f"s_sub_u32 s{sTMP}, s{sBLK}, {k}")
                A(f"s_max_i32 s{sPROG}, s{sTMP}, s{sPROG}")
                A(f"v_mov_b32 v10, s{sPROG}")
                A(f"s_waitcnt vmcnt({8*k})")
                A(f"ds_write_b32 v9, v10 offset:{F_PROG}")
            blk_body(win[0], False)
            A(f"s_branch {j}")
            A(f"{hi}:")
            blk_body(win[1], False)
            A(f"{j}:")
            assert not rot
        else:
            blk_body(win, rot)
        A(f"s_add_u32 s{sBLK}, s{sBLK}, 1")
        if nblk > 1:
            A(f"s_sub_u32 s{sNB}, s{sNB}, 1")
            A(f"s_cmp_lg_u32 s{sNB}, 0")
            A(f"s_cbranch_scc1 {l}")
    def drain(maxwin, kmin=0):
        for k in range((maxwin + 4 + 7)//8 - 1, kmin - 1, -1):
            A(f"s_sub_u32 s{sTMP}, s{sBLK}, {k}")
            A(f"s_max_i32 s{sPROG}, s{sTMP}, s{sPROG}")
            A(f"v_mov_b32 v10, s{sPROG}")
            A(f"s_waitcnt vmcnt({8*k})")
            A(f"ds_write_b32 v9, v10 offset:{F_PROG}")
    def set_stride(stride):
        A(f"s_mov_b32 s{sSTEP}, {4*stride}")
        if stride & (stride-1) == 0:
            sh = stride.bit_length()-1
            A(f"v_lshl_add_u32 v5, v2, {sh}, v3")
            A(f"v_lshl_add_u32 v6, v2, {sh}, v4")
        else:
            A(f"v_mul_u32_u24 v8, {stride}, v2")
            A("v_add_u32 v5, v8, v3")
            A("v_add_u32 v6, v8, v4")
        A(f"s_mov_b32 s{sWRAP}, {256*stride}")
    XSRD = 68
    def xloads(n, ldsbase):
        for j in range(4):
            A(f"s_add_u32 s{sTMP}, s{sROT}, {2*j}")
            A(f"s_and_b32 s{sTMP}, s{sTMP}, 7")
            A(f"s_lshl_b32 s{sTMP}, s{sTMP}, 6")
            A(f"s_add_u32 s{sTMP}, s{sTMP}, s{sTMP3}")
            for q in range(n//4):
                A(f"s_mov_b32 m0, {ldsbase + 4096*q + 1024*j - 512*q}")
                A("s_nop 0")
                A(f"buffer_load_dwordx4 v7, s[{XSRD}:{XSRD+3}], s{sTMP} offen offset:{512*q} lds")
    def run_plan(pl, segs, start, hook=None):
        blk = 0; lastwin = 0
        segmap = {x[0]: x for x in segs}
        rot = False
        items = []
        for it in pl:
            if it == "d": items.append(it); continue
            n, w = it
            while n:
                c = min(n, 4 - blk if blk < 4 else 8 - ((blk - 4) % 8))
                if blk < start: c = min(c, start - blk)
                if hook and blk < hook[0]: c = min(c, hook[0] - blk)
                if blk >= start: items.append((blk, c, w))
                blk += c; n -= c
            lastw = w
        lastwin = pl[0][1]
        for it in items:
            if it == "d":
                drain(max(wmax(lastwin), 8*start)); continue
            b0, c, w = it
            if b0 >= 4 and (b0 - 4) % 8 == 0:
                seg = (b0 - 4) // 8 + 1
                stamp(1 + seg)
                if seg >= 2: lds_wait_ge(F_FREE0 + 4*(seg-2), 8)
                if b0 in segmap:
                    segmap[b0][1](); rot = segmap[b0][2]
                elif rot:
                    A(f"s_add_u32 s{sSOFF}, s{sSOFF}, s{sWRAP}")
                A(f"s_mov_b32 m0, {RA if seg % 2 == 1 else RB}")
            if hook and b0 == hook[0]: hook[1]()
            blk_loop(c, w, rot)
            lastwin = w
        stamp(8)
        if opt.fgate:
            A(f"s_mul_i32 s{sTMP}, s{sCB}, {16*CS}")
            A(f"s_add_u32 s{sTMP}, s{sTMP}, {WS_FC}")
            A(f"s_add_u32 s4, s{sWS}, s{sTMP}")
            A(f"s_addc_u32 s5, s{sWS+1}, 0")
            A(f"v_mul_u32_u24 v5, {CS}, v0")
            A("v_mov_b32 v6, 1")
        drain(max(wmax(x[1]) for x in pl if x != "d"), 1 if opt.fearly else 0)
        if not opt.fearly: stamp(9)
        A("s_branch L_ld_end")
    def late_seg(ptr, nbytes):
        def f():
            set_stride(2048)
            A(f"s_mov_b64 s[{SRD}:{SRD+1}], s[{ptr}:{ptr+1}]\ns_mov_b32 s{SRD+2}, {nbytes}")
            A(f"s_mov_b32 s{sIDX}, s{sLR}")
            A(f"s_add_u32 s{sSOFF}, s{sKB0}, s{sLR}")
            A(f"s_lshl_b32 s{sSOFF}, s{sSOFF}, 16")
            A(f"s_lshl_b32 s{sTMP}, s{sCB}, 8")
            A(f"s_add_u32 s{sSOFF}, s{sSOFF}, s{sTMP}")
        return f
    A("v_and_b32 v7, 7, v0")
    A("v_lshlrev_b32 v7, 11, v7")
    A("v_lshrrev_b32 v8, 3, v0")
    A("v_lshl_add_u32 v7, v8, 4, v7")
    A(f"s_mov_b64 s[{XSRD}:{XSRD+1}], s[{sX}:{sX+1}]\ns_mov_b32 s{XSRD+2}, 16384\ns_mov_b32 s{XSRD+3}, 0x20000")
    A(f"s_lshl_b32 s{sTMP3}, s{sKS}, 8")
    A(f"s_mov_b32 m0, {XF}")
    A("s_nop 0")
    A(f"buffer_load_dwordx4 v7, s[{XSRD}:{XSRD+3}], s{sTMP3} offen lds")
    A(f"s_mov_b32 m0, {XF + 1024 - 128}")
    A("s_nop 0")
    A(f"buffer_load_dwordx4 v7, s[{XSRD}:{XSRD+3}], s{sTMP3} offen offset:128 lds")
    A(f"s_mov_b32 m0, {RQ + 8192*NB0}")
    A(f"s_cmp_ge_u32 s{sR}, 16")
    A("s_cbranch_scc1 L_ld_M")
    def b_seg1():
        A(f"s_and_b32 s{sROT}, s{sROT}, 6")
        A(f"s_mov_b32 s{sIDX}, s{sROT}")
        A(f"s_and_b32 s{sTMP2}, s{sBETA}, 1")
        set_stride(7168)
        A(f"s_mul_i32 s{sSOFF}, s{sTMP2}, {512*7168}")
        A(f"s_lshr_b32 s{sTMP}, s{sBETA}, 2")
        A(f"s_lshl_b32 s{sTMP}, s{sTMP}, 8")
        A(f"s_add_u32 s{sSOFF}, s{sSOFF}, s{sTMP}")
        A(f"s_mul_i32 s{sTMP}, s{sROT}, {32*7168}")
        A(f"s_add_u32 s{sSOFF}, s{sSOFF}, s{sTMP}")
        A(f"s_bitcmp0_b32 s{sBETA}, 1")
        A(f"s_cselect_b64 s[{SRD}:{SRD+1}], s[{sWG}:{sWG+1}], s[{sWU}:{sWU+1}]")
        A(f"s_mov_b32 s{SRD+2}, {1024*3584*2}")
    A(f"s_cmp_eq_u32 s{sROLE}, 2")
    A("s_cbranch_scc1 L_ld_C")
    assert sum(x[0] for x in pb if x != "d") == 28
    XGAT = opt.xgat
    def xg_hook():
        A(f"s_and_b32 s{sTMP3}, s{sBETA}, 1")
        A(f"s_lshl_b32 s{sTMP3}, s{sTMP3}, 10")
        xloads(8, XF + 2048)
        A(f"s_mov_b32 m0, {RA + 8192*(XGAT-4)}")
    run_plan(pb, [(4, b_seg1, True), (20, late_seg(sWO, 4096*1024*2), True)], NB0, hook=(XGAT, xg_hook))
    A("L_ld_C:")
    assert sum(x[0] for x in pc if x != "d") == 12 and pc[1] == "d" and pc[0][0] == 4
    def c_seg1():
        late_seg(sWO, 4096*1024*2)()
        A(f"s_mov_b32 s{sBLK}, 20")
    run_plan(pc, [(4, c_seg1, True)], NB0)
    A("L_ld_M:")
    def m_seg1():
        set_stride(256)
        A(f"s_mul_i32 s{sROT}, s{sROT}, {opt.kvrot*1024}")
        A(f"s_mov_b32 s{sIDX}, s{sROT}")
        A(f"s_lshl2_add_u32 s{sTMP}, s{sBB}, s{sG}")
        A(f"s_lshl4_add_u32 s{sTMP}, s{sTMP}, s{sSPL}")
        A(f"s_add_u32 s{sTMP}, s{sTMP}, 12")
        A(f"s_pack_ll_b32_b16 s{sSOFF}, s{sIDX}, s{sTMP}")
        A(f"s_mov_b64 s[{SRD}:{SRD+1}], s[{sK}:{sK+1}]\ns_mov_b32 s{SRD+2}, {8*4*4096*128*2}")
    def m_seg2():
        A(f"s_mov_b64 s[{SRD}:{SRD+1}], s[{sV}:{sV+1}]")
        A(f"s_mov_b32 s{sIDX}, s{sROT}")
        A(f"s_pack_lh_b32_b16 s{sSOFF}, s{sIDX}, s{sSOFF}")
    assert sum(x[0] for x in pm if x != "d") == 27
    run_plan(pm, [(4, m_seg1, "kv"), (12, m_seg2, "kv"), (20, late_seg(sWD, 3584*1024*2), 7)], NB0)
    A("L_ld_end:")
    if opt.nocomm: A("s_branch L_exit")
    def fbump():
        if opt.flag_delay: A(f"s_sleep {opt.flag_delay}")
        if opt.fsat:
            A("s_mov_b32 s6, 1")
            for r in range(opt.frep): A(f"s_atomic_add s6, s[4:5], {CS*r}")
        else:
            A(f"s_bfm_b64 exec, {opt.frep}, 0")
            A("global_atomic_add v5, v6, s[4:5] sc1")
            A("s_mov_b64 exec, -1")
    if opt.fearly:
        A(f"ds_read_b32 v11, v9 offset:{F_BA}")
        A(f"v_mov_b32 v10, s{sBLK}")
        A(f"s_waitcnt vmcnt({opt.fearly}) lgkmcnt(0)")
        A(f"v_readfirstlane_b32 s{sTMP}, v11")
        A(f"s_cmp_lt_u32 s{sTMP}, 8")
        A("s_cbranch_scc1 L_ld_late")
        A("s_mov_b32 s6, 1")
        for r in range(opt.frep): A(f"s_atomic_add s6, s[4:5], {CS*r}")
        A("s_waitcnt vmcnt(0)")
        A(f"ds_write_b32 v9, v10 offset:{F_PROG}")
        A("s_barrier")
        stamp(9)
        A("s_branch L_ld_fin")
        A("L_ld_late:")
        A("s_waitcnt vmcnt(0)")
        A(f"ds_write_b32 v9, v10 offset:{F_PROG}")
        stamp(9)
    if opt.fgate == 2 and not (opt.dbg & 1):
        lds_wait_ge(F_BA, opt.gok)
        fbump()
    A("s_barrier")
    if opt.fgate == 1 and not (opt.dbg & 1): fbump()
    A("L_ld_fin:")
    if opt.fgate and opt.fbar:
        A(f"s_cmp_lt_u32 s{sR}, 16")
        A("s_cbranch_scc1 L_exit")
        A("s_barrier")
    A("s_branch L_exit")

    A("L_cons:")
    vL16, vTR, vACT, vT, vPUB = 1, 2, 3, 4, 5
    vTMP, vTMP2, vTMP3 = 6, 7, 8
    vWA, vAA = 10, 11
    vW, vB, vACC, vACC2 = 12, 16, 20, 24
    vGA = 28
    vLS = 44
    vK = 52
    vQ = 84
    vRG, vRW, vRR, vOUT, vONE, vAFW, vFLG = 116, 117, 118, 119, 120, 121, 122
    vTP, vTC, vL8 = 123, 124, 125
    vSTW, vSTR = 126, 15
    vTA, vAX, vEN = 48, 49, 50
    NV = 128
    A("s_waitcnt lgkmcnt(0)")
    A(f"s_load_dword s{sT}, s[{sWS}:{sWS+1}], 0")
    decode2()
    stamp(1)
    A(f"v_mov_b32 v9, {FL}")
    if opt.notif:
        A(f"s_cmp_eq_u32 s3, 10")
        A("s_cbranch_scc1 L_notif")
    A(f"s_sub_u32 s{sC}, s3, 1")
    sSC, sM3, sMN, sEM, sRNG = 58, 60, 61, 56, 57
    A(f"s_mov_b32 s{sM3}, 0x00030003")
    A(f"s_mov_b32 s{sMN}, 0xfffcfffc")
    A(f"s_mov_b32 s{sRNG}, {27 << 23:#x}")
    A(f"v_mov_b32 v{vAX}, 0")
    A(f"v_lshlrev_b32 v{vL8}, 3, v0")
    A(f"v_mov_b32 v9, {FL}")
    A(f"v_mov_b32 v{vONE}, 1")
    A(f"v_lshlrev_b32 v{vL16}, 4, v0")
    A(f"v_mul_u32_u24 v{vFLG}, {CS}, v0")
    A(f"v_lshrrev_b32 v{vTMP2}, 4, v0")
    A(f"v_bfe_u32 v{vTMP3}, v0, 2, 2")
    A(f"v_lshl_add_u32 v{vTR}, v{vTMP2}, 3, v{vTMP3}")
    A(f"v_lshlrev_b32 v{vTR}, 8, v{vTR}")
    A(f"v_and_b32 v{vACT}, 1, v{vTMP2}")
    A(f"v_lshl_or_b32 v{vTMP3}, v{vACT}, 2, v{vTMP3}")
    A(f"v_xor_b32 v{vTMP3}, s{sC}, v{vTMP3}")
    A(f"v_lshl_or_b32 v{vTR}, v{vTMP3}, 5, v{vTR}")
    A(f"v_and_b32 v{vTMP3}, 3, v0")
    A(f"v_lshl_or_b32 v{vTR}, v{vTMP3}, 3, v{vTR}")
    A(f"v_and_b32 v{vTMP3}, 7, v0")
    A(f"v_lshl_add_u32 v{vACT}, v{vTMP2}, 3, v{vTMP3}")
    A(f"v_lshlrev_b32 v{vACT}, 4, v{vACT}")
    A(f"v_lshrrev_b32 v{vAFW}, 5, v0")
    A(f"v_lshlrev_b32 v{vAFW}, 8, v{vAFW}")
    A(f"v_and_b32 v{vTMP2}, 2, v0")
    A(f"v_lshl_or_b32 v{vAFW}, v{vTMP2}, 6, v{vAFW}")
    A(f"v_and_b32 v{vTMP2}, 28, v0")
    A(f"v_lshl_or_b32 v{vAFW}, v{vTMP2}, 2, v{vAFW}")
    A(f"v_and_b32 v{vTMP2}, 1, v0")
    A(f"v_lshl_or_b32 v{vAFW}, v{vTMP2}, 3, v{vAFW}")
    A(f"s_lshl_b32 s{sTMP}, s{sC}, 9")
    A(f"s_add_u32 s{sTMP}, s{sTMP}, {AF}")
    A(f"v_add_u32 v{vAFW}, s{sTMP}, v{vAFW}")
    def afswz(v):
        A(f"v_lshrrev_b32 v{vTMP2}, 3, v{v}")
        A(f"v_and_b32 v{vTMP2}, 0x70, v{vTMP2}")
        A(f"v_xor_b32 v{v}, v{v}, v{vTMP2}")
    afswz(vAFW)
    A("s_waitcnt lgkmcnt(0)")
    A(f"s_add_u32 s{sT}, s{sT}, 0x11111111")
    A(f"s_mov_b32 s{sT+1}, s{sT}")
    A(f"v_mov_b32 v{vT}, s{sT}")
    def tagbits(dst, vsh):
        A(f"v_lshrrev_b32 v{dst}, v{vsh}, v{vT}")
        A(f"v_and_b32 v{dst}, 15, v{dst}")
        A(f"v_lshl_or_b32 v{dst}, v{dst}, 14, v{dst}")
        A(f"v_and_b32 v{dst}, s{sM3}, v{dst}")
    A(f"v_and_b32 v{vTMP}, 7, v0")
    A(f"v_lshlrev_b32 v{vTMP}, 2, v{vTMP}")
    tagbits(vTC, vTMP)
    A(f"v_lshrrev_b32 v{vTMP}, 2, v0")
    A(f"v_and_b32 v{vTMP}, 12, v{vTMP}")
    A(f"v_and_b32 v{vTMP2}, 1, v0")
    A(f"v_lshl_or_b32 v{vTMP}, v{vTMP2}, 4, v{vTMP}")
    tagbits(vTP, vTMP)

    def refresh_prog():
        A(f"ds_read_b32 v{vTMP}, v9 offset:{F_PROG}")
        A("s_waitcnt lgkmcnt(0)")
        A(f"v_readfirstlane_b32 s{sPROG}, v{vTMP}")
    def wait_prog(val_is_sgpr, val, sleep=0):
        l = g.lab("L_wp"); d = g.lab("L_wpd")
        v = f"s{val}" if val_is_sgpr else str(val)
        A(f"s_cmp_ge_u32 s{sPROG}, {v}")
        A(f"s_cbranch_scc1 {d}")
        A(f"{l}:")
        if sleep: A(f"s_sleep {sleep}")
        refresh_prog()
        A(f"s_cmp_ge_u32 s{sPROG}, {v}")
        A(f"s_cbranch_scc0 {l}")
        A(f"{d}:")
    def signal(off):
        A("s_mov_b64 exec, 1")
        A(f"ds_add_u32 v9, v{vONE} offset:{off}")
        A("s_mov_b64 exec, -1")
    def cwait(off, val, sleep=0):
        lds_wait_ge(off, val, vtmp=f"v{vTMP}", sleep=sleep)
    def cwait_rd(off, val, nrd, reads):
        l = g.lab("L_cw")
        A(f"{l}:")
        A(f"ds_read_b32 v{vTMP}, v9 offset:{off}")
        reads()
        A(f"s_waitcnt lgkmcnt({nrd})")
        A(f"v_readfirstlane_b32 s{sTMP}, v{vTMP}")
        A(f"s_cmp_ge_u32 s{sTMP}, {val}")
        A(f"s_cbranch_scc0 {l}")
    def fbits(x): return struct.unpack("<I", struct.pack("<f", x))[0]
    ADJ = 1.0
    LQ, LO_, LG, LF = [x + opt.sbias for x in (8, 12, 10, 20)]
    def setscale(lg):
        A(f"s_mov_b32 s{sSC}, {fbits(2.0**lg):#x}")
    def encode(sc=None, tp=vTP, ta=vTA):
        src = vACC
        d = g.lab("L_en")
        scs = f"s[{sSC}:{sSC+1}]" if sc is None else f"v[{sc}:{sc+1}]"
        A(f"v_pk_mul_f32 v[{src}:{src+1}], v[{src}:{src+1}], {scs} op_sel_hi:[1,0]")
        A(f"v_pk_mul_f32 v[{src+2}:{src+3}], v[{src+2}:{src+3}], {scs} op_sel_hi:[1,0]")
        A(f"v_max3_f32 v{vTMP}, |v{src}|, |v{src+1}|, |v{src+2}|")
        A(f"v_max_f32 v{vTMP}, |v{src+3}|, v{vTMP}")
        A(f"v_subrev_u32 v{vTMP2}, {115 << 23:#x}, v{vTMP}")
        A(f"v_cmp_le_u32 vcc, s{sRNG}, v{vTMP2}")
        r = g.lab("L_er")
        A(f"{r}:")
        A(f"v_cvt_pkrtz_f16_f32 v{vEN}, v{src}, v{src+1}")
        A(f"v_cvt_pkrtz_f16_f32 v{vEN+1}, v{src+2}, v{src+3}")
        A(f"v_add_u32 v{vEN}, 0x00020002, v{vEN}")
        A(f"v_add_u32 v{vEN+1}, 0x00020002, v{vEN+1}")
        A(f"v_and_or_b32 v{vEN}, v{vEN}, s{sMN}, v{vAX}")
        A(f"v_and_or_b32 v{vEN+1}, v{vEN+1}, s{sMN}, v{tp}")
        A(f"s_cbranch_vccz {d}")
        A(f"s_call_b64 s[6:7], L_encs")
        A(f"s_branch {r}")
        A(f"{d}:")
    def publish(src, base=sGA, sc=None):
        encode(sc)
        A("s_mov_b32 exec_lo, 0x00ff00ff\ns_mov_b32 exec_hi, 0x00ff00ff")
        if not (opt.dbg & 33): A(f"global_store_dwordx2 v{vPUB}, v[{vEN}:{vEN+1}], s[{base}:{base+1}] sc1")
    NREP = opt.nrep; HREP = max(1, NREP // 4)
    sNH = 9
    def bump(kind):
        if opt.dbg & 33: return
        if opt.satom:
            A(f"s_mov_b32 s8, 1")
            if kind == "h":
                e = g.lab("L_bh")
                for r in range(HREP): A(f"s_atomic_add s8, s[{sGB}:{sGB+1}], {CS*r}")
                A(f"s_cmp_eq_u32 s{sNH}, {HREP}")
                A(f"s_cbranch_scc1 {e}")
                for r in range(HREP, 2*HREP): A(f"s_atomic_add s8, s[{sGB}:{sGB+1}], {CS*r}")
                A(f"{e}:")
            else:
                for r in range(NREP): A(f"s_atomic_add s8, s[{sGB}:{sGB+1}], {CS*r}")
        else:
            if kind == "h": A(f"s_bfm_b64 exec, s{sNH}, 0")
            else: A(f"s_bfm_b64 exec, {NREP}, 0")
            A(f"global_atomic_add v{vFLG}, v{vONE}, s[{sGB}:{sGB+1}] sc1")
    def flag(cnt, nrep, last=7):
        d = g.lab("L_fl")
        A("s_mov_b64 exec, 1")
        A(f"ds_add_rtn_u32 v{vTMP}, v9, v{vONE} offset:{cnt}")
        A("s_waitcnt lgkmcnt(0)")
        A(f"v_readfirstlane_b32 s{sTMP}, v{vTMP}")
        A(f"s_cmp_lg_u32 s{sTMP}, {last}")
        A(f"s_cbranch_scc1 {d}")
        bump(nrep)
        A(f"{d}:")
        A("s_mov_b64 exec, -1")
    def staged(cnt, last, hi_off, kind):
        d = g.lab("L_sg")
        A(f"ds_write_b64 v{vSTW}, v[{vEN}:{vEN+1}]")
        A("s_mov_b64 exec, 1")
        A(f"ds_add_rtn_u32 v{vTMP}, v9, v{vONE} offset:{cnt}")
        A("s_mov_b64 exec, -1")
        A(f"ds_read_b128 v[{vGA}:{vGA+3}], v{vSTR}")
        A(f"ds_read_b128 v[{vGA+4}:{vGA+7}], v{vSTR} offset:1024")
        A(f"v_add_u32 v{vTMP2}, {hi_off}, v{vPUB}")
        A("s_waitcnt lgkmcnt(2)")
        A(f"v_readfirstlane_b32 s{sTMP}, v{vTMP}")
        A(f"s_cmp_lg_u32 s{sTMP}, {last}")
        A(f"s_cbranch_scc1 {d}")
        A("s_waitcnt lgkmcnt(0)")
        if not (opt.dbg & 1):
            A(f"global_store_dwordx4 v{vPUB}, v[{vGA}:{vGA+3}], s[{sGA}:{sGA+1}] sc1")
            A(f"global_store_dwordx4 v{vTMP2}, v[{vGA+4}:{vGA+7}], s[{sGA}:{sGA+1}] sc1")
        if kind: bump(kind)
        A("s_mov_b64 exec, -1")
        A("s_nop 0")
        A(f"{d}:")
        A("s_waitcnt lgkmcnt(0)")
    def flag_now(nrep):
        d = g.lab("L_fn")
        A(f"s_cmp_lg_u32 s{sC}, {opt.flagwave}")
        A(f"s_cbranch_scc1 {d}")
        bump(nrep)
        A("s_mov_b64 exec, -1")
        A(f"{d}:")
    def ws_addr(dst, base_const, soff):
        A(f"s_add_u32 s{soff}, s{soff}, {base_const}")
        A(f"s_add_u32 s{dst}, s{sWS}, s{soff}")
        A(f"s_addc_u32 s{dst+1}, s{sWS+1}, 0")
    def pub_voff(shift):
        A(f"v_and_b32 v{vTMP2}, 15, v0")
        A(f"v_lshrrev_b32 v{vTMP3}, 4, v0")
        A(f"v_lshlrev_b32 v{vTMP3}, 3, v{vTMP3}")
        A(f"v_lshl_or_b32 v{vPUB}, v{vTMP2}, {shift}, v{vTMP3}")
    def sample(base, offs, sleep=0, cntstamp=None):
        l = g.lab("L_sm"); d = g.lab("L_smd"); e = g.lab("L_sme")
        if opt.dbg & 7: return
        A(f"s_mov_b32 s{sCNT}, 0")
        if sleep: A(f"s_branch {e}")
        A(f"{l}:")
        if sleep:
            A(f"s_sleep {sleep}")
            A(f"{e}:")
        for i, o in enumerate(offs):
            A(f"s_load_dword s{sSM+i}, s[{base}:{base+1}], {o} glc")
        A(f"s_add_u32 s{sCNT}, s{sCNT}, 1")
        A(f"s_cmp_gt_u32 s{sCNT}, {opt.maxpoll}")
        A("s_waitcnt lgkmcnt(0)")
        A(f"s_cbranch_scc1 {d}")
        for i in range(len(offs)):
            A(f"s_xor_b32 s{sSM+i}, s{sSM+i}, s{sT}")
            if i: A(f"s_or_b32 s{sSM}, s{sSM}, s{sSM+i}")
        A(f"s_and_b32 s{sSM}, s{sSM}, 0xff")
        A(f"s_cbranch_scc1 {l}")
        A(f"{d}:")
        if cntstamp is not None: stampval(cntstamp, sCNT)
    def pollcnt(base, target, sleep, cntstamp=None):
        l = g.lab("L_pf"); d = g.lab("L_pfd"); e = g.lab("L_pfe")
        if opt.dbg & 7: return
        A(f"s_mov_b32 s{sCNT}, 0")
        if sleep: A(f"s_branch {e}")
        A(f"{l}:")
        if sleep:
            A(f"s_sleep {sleep}")
            A(f"{e}:")
        A(f"s_load_dword s8, s[{base}:{base+1}], 0 glc")
        A(f"s_add_u32 s{sCNT}, s{sCNT}, 1")
        A(f"s_cmp_gt_u32 s{sCNT}, {opt.maxhint}")
        A("s_waitcnt lgkmcnt(0)")
        A(f"s_cbranch_scc1 {d}")
        A(f"s_cmp_eq_u32 s8, s{target}")
        A(f"s_cbranch_scc0 {l}")
        A(f"{d}:")
        if cntstamp is not None: stampval(cntstamp, sCNT)
    def gather(nld=4, mid=None, cntstamp=None, sleep=0, work=None, kind='M', defer=False):
        l = g.lab("L_ga"); d = g.lab("L_gad"); c = g.lab("L_gac"); rt = g.lab("L_gar")
        assert nld in (1, 4)
        def issue():
            if opt.dbg & 2: return
            if opt.gprio: A(f"s_setprio {opt.gprio}")
            for i in range(nld):
                A(f"global_load_dwordx2 v[{vGA+2*i}:{vGA+2*i+1}], v{vL8}, s[{sGA}:{sGA+1}] offset:{512*i} sc1")
        if mid is not None or sleep:
            issue()
            if mid is not None: mid()
            A(f"s_mov_b32 s{sEM}, s{sM3}")
            A(f"s_mov_b32 s{sCNT}, 0")
            A(f"s_branch {c}")
            pad(kind)
        else:
            A(f"s_mov_b32 s{sEM}, s{sM3}")
            A(f"s_mov_b32 s{sCNT}, 0")
        A(f"{l}:")
        if sleep: A(f"s_sleep {sleep}")
        issue()
        A(f"{c}:")
        A(f"s_add_u32 s{sCNT}, s{sCNT}, 1")
        vC, vC0 = vTMP2, vTMP
        for i in range(nld):
            A(f"s_waitcnt vmcnt({nld-1-i})")
            A(f"v_xor_b32 v{vGA+2*i+1}, v{vTC}, v{vGA+2*i+1}")
            if i == 2:
                A(f"v_or3_b32 v{vC0}, v{vGA}, v{vGA+2}, v{vGA+4}")
                A(f"v_or3_b32 v{vC}, v{vGA+1}, v{vGA+3}, v{vGA+5}")
            if i == nld-1:
                if nld == 4:
                    A(f"v_or_b32 v{vC0}, v{vC0}, v{vGA+6}")
                    A(f"v_bitop3_b32 v{vC}, v{vC}, v{vGA+7}, s{sM3} bitop3:0xa8")
                else:
                    A(f"v_and_b32 v{vC}, s{sM3}, v{vGA+1}")
                A(f"v_and_or_b32 v{vC0}, v{vC0 if nld == 4 else vGA}, s{sEM}, v{vC}")
                A(f"v_cmp_ne_u32 vcc, 0, v{vC0}")
            if work is not None and (i < nld-1 or opt.specw): work(i)
        A(f"s_cbranch_vccz {d}")
        A(f"v_cmp_ne_u32 vcc, 0, v{vC}")
        A(f"s_cbranch_vccnz {rt}")
        A(f"s_mov_b32 s{sEM}, 0")
        if defer: A(f"s_branch {d}")
        else:
            A("s_call_b64 s[6:7], L_fixr")
            A(f"s_branch {c}")
        A(f"{rt}:")
        A(f"s_cmp_le_u32 s{sCNT}, {0 if (opt.dbg & 6) else opt.maxpoll}")
        A(f"s_cbranch_scc1 {l}")
        A(f"{d}:")
        if cntstamp is not None: stampval(cntstamp, sCNT)
        if work is not None and not opt.specw: work(nld-1)
    vS0, vS1, vSCA = vGA + 12, vGA + 8, vLS
    def acc(i, dst, first):
        for r in range(4):
            c2 = "0" if first else f"v{dst+r}"
            A(f"v_fma_mix_f32 v{dst+r}, v{vGA+2*i+(r>>1)}, v{vSCA+i}, {c2} op_sel:[{r&1},0,0] op_sel_hi:[1,0,0]")
    def setsca(lg):
        for i in range(4): A(f"v_mov_b32 v{vSCA+i}, {fbits(2.0**-lg):#x}")
    def wreads(k0, k1):
        for kb in range(k0, k1):
            o = 8192*kb
            A(f"ds_read_b64_tr_b16 v[{vK+4*kb}:{vK+4*kb+1}], v{vWA} offset:{o}")
            A(f"ds_read_b64_tr_b16 v[{vK+4*kb+2}:{vK+4*kb+3}], v{vWA} offset:{o+1024}")
    def mf(kb, first):
        c = "0" if first else f"v[{vACC}:{vACC+3}]"
        A(f"v_mfma_f32_16x16x32_bf16 v[{vACC}:{vACC+3}], v[{vK+4*kb}:{vK+4*kb+3}], v[{vQ+4*kb}:{vQ+4*kb+3}], {c}")
    vAB = vW
    def actreads(n, swz=False):
        for kb in range(n):
            A(f"ds_read_b128 v[{vQ+4*kb}:{vQ+4*kb+3}], v{vAB if (swz and kb & 1) else vAA} offset:{512*kb}")
    sFA, sRA, sPE = 12, 10, 14
    def late_setup(wbase, padd, pend):
        A(f"v_add_u32 v{vWA}, {wbase}, v{vTR}")
        A(f"v_add_u32 v{vAA}, {AF}, v{vACT}")
        afswz(vAA)
        A(f"v_xor_b32 v{vAB}, 64, v{vAA}")
        A(f"v_and_b32 v{vTMP2}, 4, v0")
        A(f"v_lshlrev_b32 v{vPUB}, 10, v{vTMP2}")
        A(f"v_and_b32 v{vTMP2}, 3, v0")
        A(f"v_lshl_or_b32 v{vPUB}, v{vTMP2}, 5, v{vPUB}")
        A(f"v_lshrrev_b32 v{vTMP2}, 4, v0")
        A(f"v_lshl_or_b32 v{vPUB}, v{vTMP2}, 3, v{vPUB}")
        A(f"s_lshl3_add_u32 s{sTMP}, s{sCB}, s{sC}")
        A(f"s_lshl_b32 s{sTMP}, s{sTMP}, 6")
        A(f"s_add_u32 s{sTMP}, s{sTMP}, s{sRBK}")
        A(f"s_lshl_b32 s{sTMP}, s{sTMP}, 7")
        ws_addr(sFA, WS_FP + 128*padd, sTMP)
        A(f"s_mov_b32 s{sPE}, {pend}")
        setscale(LF)
        A(f"v_mov_b32 v{vAX}, 0")
        A(f"s_mov_b32 s{sWDN}, 21")
        A(f"s_add_u32 s{sTMP}, s{sKB0}, s{sC}")
        A(f"s_lshl_b32 s{sTMP}, s{sTMP}, 11")
    sRET = 6
    def wcatch():
        d = g.lab("L_wc")
        A(f"s_cmp_lt_u32 s{sPROG}, s{sWDN}")
        A(f"s_cbranch_scc1 {d}")
        A(f"s_call_b64 s[{sRET}:{sRET+1}], L_wcatch")
        A(f"{d}:")
    def late_wait():
        l = g.lab("L_lw"); d = g.lab("L_lwd")
        A(f"{l}:")
        A(f"ds_read_b64 v[{vTMP}:{vTMP+1}], v9 offset:{F_PROG}")
        A("s_waitcnt lgkmcnt(0)")
        A(f"v_readfirstlane_b32 s{sTMP}, v{vTMP+1}")
        A(f"v_readfirstlane_b32 s{sPROG}, v{vTMP}")
        A(f"s_cmp_lg_u32 s{sTMP}, 0")
        A(f"s_cbranch_scc1 {d}")
        wcatch()
        A(f"s_branch {l}")
        A(f"{d}:")
    def late_mid():
        A(f"s_add_u32 s{sTMP2}, s{sPROG}, {opt.midahead}")
        A(f"s_min_u32 s{sTMP2}, s{sTMP2}, s{sPE}")
        wcatch()
        wait_prog(True, sTMP2)
        wcatch()
    vPG = 126
    def late_post_issue():
        if opt.lflow == 1: A(f"ds_read_b32 v{vPG}, v9 offset:{F_PROG}")
    def late_post():
        if opt.fgate == 2: signal(F_BA)
        if opt.lflow != 1: return
        A("s_waitcnt lgkmcnt(0)")
        A(f"v_readfirstlane_b32 s{sPROG}, v{vPG}")
        wcatch()

    if opt.cprio: A(f"s_setprio {opt.cprio}")
    signal(F_ERD)
    A(f"s_cmp_eq_u32 s3, 9")
    A("s_cbranch_scc1 L_poller")
    if opt.nocomm:
        signal(F_FREE0); signal(F_FREE1)
        A("s_branch L_exit")
    def egloop(last, name, lead=None, nrep=0):
        A(f"L_eg_loop{name}:")
        A(f"ds_read_b128 v[{vB}:{vB+3}], v{vAA}")
        wait_prog(True, sCNT)
        A(f"ds_read_b64_tr_b16 v[{vW}:{vW+1}], v{vWA}")
        A(f"ds_read_b64_tr_b16 v[{vW+2}:{vW+3}], v{vWA} offset:1024")
        if lead is not None and lead >= 0:
            A(f"s_cmp_lg_u32 s{sCNT}, {last - lead}")
            A(f"s_cbranch_scc1 L_eg_nf{name}")
            flag_now(nrep)
            A(f"L_eg_nf{name}:")
        A(f"v_add_u32 v{vWA}, 8192, v{vWA}")
        A(f"v_add_u32 v{vAA}, 512, v{vAA}")
        A(f"s_add_u32 s{sCNT}, s{sCNT}, 1")
        A(f"s_cmp_le_u32 s{sCNT}, {last}")
        A("s_waitcnt lgkmcnt(0)")
        A(f"v_mfma_f32_16x16x32_bf16 v[{vACC}:{vACC+3}], v[{vW}:{vW+3}], v[{vB}:{vB+3}], v[{vACC}:{vACC+3}]")
        A(f"s_cbranch_scc1 L_eg_loop{name}")
    A(f"s_cmp_ge_u32 s{sC}, 4")
    A("s_cbranch_scc1 L_noq")
    A(f"v_and_b32 v{vTMP2}, 7, v0")
    A(f"v_lshlrev_b32 v{vSTW}, 8, v{vTMP2}")
    A(f"v_and_b32 v{vTMP2}, 8, v0")
    A(f"v_lshl_or_b32 v{vSTW}, v{vTMP2}, 2, v{vSTW}")
    A(f"v_lshrrev_b32 v{vTMP3}, 4, v0")
    A(f"v_lshl_or_b32 v{vSTW}, v{vTMP3}, 3, v{vSTW}")
    A(f"s_lshl_b32 s{sTMP}, s{sC}, 6")
    A(f"s_add_u32 s{sTMP}, s{sTMP}, {ST}")
    A(f"v_add_u32 v{vSTW}, s{sTMP}, v{vSTW}")
    A(f"v_add_u32 v{vSTR}, {ST}, v{vL16}")
    A(f"v_and_b32 v{vPUB}, 0xf0, v{vL16}")
    A(f"v_lshl_or_b32 v{vPUB}, v{vTMP3}, 16, v{vPUB}")
    A(f"v_lshlrev_b32 v{vTMP3}, 2, v{vTMP3}")
    A(f"v_lshl_or_b32 v{vTMP3}, v{vTMP2}, 1, v{vTMP3}")
    tagbits(vB, vTMP3)
    setscale(LQ)
    A(f"s_and_b32 s{sTMP3}, s{sU}, 7")
    A(f"s_lshl3_add_u32 s{sTMP}, s{sG}, s{sTMP3}")
    A(f"s_lshl3_add_u32 s{sTMP}, s{sTMP}, s{sKS}")
    A(f"s_lshl_b32 s{sTMP}, s{sTMP}, 8")
    ws_addr(sGA, WS_QP, sTMP)
    A(f"s_mul_i32 s{sTMP}, s{sG}, {32*CS}")
    ws_addr(sGB, WS_QC, sTMP)
    A(f"s_lshl_b32 s{sTMP}, s{sC}, 1")
    A(f"s_xor_b32 s{sTMP}, s{sTMP}, s{sC}")
    A(f"s_lshl_b32 s{sTMP}, s{sTMP}, 5")
    A(f"v_xor_b32 v{vWA}, s{sTMP}, v{vTR}")
    A(f"v_add_u32 v{vWA}, {RQ}, v{vWA}")
    A(f"v_xor_b32 v{vW}, 32, v{vWA}")
    A(f"v_add_u32 v{vAA}, {XF}, v{vACT}")
    A(f"v_cmp_eq_u32 s[4:5], 0, v{vTMP2}")
    cwait(F_ERD, 9, sleep=1)
    wait_prog(False, 4, sleep=1)
    if opt.qlead >= 0: flag_now("q")
    actreads(4)
    wreads(0, 4)
    for kb in range(4):
        A(f"s_waitcnt lgkmcnt({6 if kb == 0 else 6})")
        A(f"ds_read_b64_tr_b16 v[{vK+16+4*kb}:{vK+16+4*kb+1}], v{vW} offset:{8192*kb}")
        A(f"ds_read_b64_tr_b16 v[{vK+16+4*kb+2}:{vK+16+4*kb+3}], v{vW} offset:{8192*kb+1024}")
        mf(kb, kb == 0)
    A("s_mov_b64 exec, 3")
    A(f"ds_add_u32 v9, v{vONE} offset:{F_FREE0}")
    A("s_mov_b64 exec, -1")
    for kb in range(4):
        A(f"s_waitcnt lgkmcnt({7-2*kb})")
        c1 = "0" if kb == 0 else f"v[{vACC2}:{vACC2+3}]"
        A(f"v_mfma_f32_16x16x32_bf16 v[{vACC2}:{vACC2+3}], v[{vK+16+4*kb}:{vK+16+4*kb+3}], v[{vQ+4*kb}:{vQ+4*kb+3}], {c1}")
    A("s_nop 7")
    for r in range(4): A(f"v_cndmask_b32 v{vACC+r}, v{vACC2+r}, v{vACC+r}, s[4:5]")
    encode(None, vB, vB+1)
    staged(F_PUB0, 3, 4 << 16, "q" if opt.qhint else None)
    if opt.ackst:
        stamp(2); A("s_waitcnt vmcnt(0)"); stamp(5)
    A(f"v_mov_b32 v{vAX}, 0")
    A("L_noq:")
    if not opt.ackst: stamp(2)
    A(f"s_cmp_ge_u32 s{sR}, 16")
    A("s_cbranch_scc1 L_roleM")
    A(f"s_cmp_eq_u32 s{sROLE}, 2")
    A("s_cbranch_scc1 L_bc_late")
    pub_voff(5)
    setscale(LG)
    A(f"s_and_b32 s{sTMP}, s{sBETA}, -4")
    A(f"s_lshr_b32 s{sTMP2}, s{sC}, 1")
    A(f"s_add_u32 s{sTMP}, s{sTMP}, s{sTMP2}")
    A(f"s_and_b32 s{sTMP2}, s{sBETA}, 3")
    A(f"s_lshl2_add_u32 s{sTMP}, s{sTMP}, s{sTMP2}")
    A(f"s_and_b32 s{sTMP2}, s{sC}, 1")
    A(f"s_lshl1_add_u32 s{sTMP}, s{sTMP}, s{sTMP2}")
    A(f"s_lshl_b32 s{sTMP}, s{sTMP}, 8")
    ws_addr(sGA, WS_GP, sTMP)
    def hc_addr():
        A(f"s_and_b32 s{sTMP}, s{sBETA}, -4")
        A(f"s_or_b32 s{sTMP2}, s{sBETA}, 3")
        A(f"s_mul_i32 s{sTMP}, s{sTMP}, 147")
        A(f"s_mul_i32 s{sTMP2}, s{sTMP2}, 147")
        A(f"s_lshr_b32 s{sTMP}, s{sTMP}, 10")
        A(f"s_lshr_b32 s{sTMP2}, s{sTMP2}, 10")
        A(f"s_cmp_eq_u32 s{sTMP}, s{sTMP2}")
        A(f"s_cselect_b32 s{sNH}, {HREP}, {2*HREP}")
        A(f"s_mul_i32 s{sTMP}, s{sTMP}, {CS*HREP}")
        ws_addr(sGB, WS_HC, sTMP)
    if not opt.notif: hc_addr()
    for r in range(4): A(f"v_mov_b32 v{vACC+r}, 0")
    A(f"v_mov_b32 v{vWA}, v{vTR}")
    A(f"v_add_u32 v{vAA}, {XF + 2048}, v{vACT}")
    A(f"s_mov_b32 s{sCNT}, 5")
    wait_prog(False, opt.xgat + 1, sleep=1)
    egloop(12, "G1")
    signal(F_FREE1)
    stamp(3)
    egloop(20, "G2", opt.hlead, "h")
    A("s_nop 7")
    publish(vACC)
    if opt.hlead < 0 and not opt.notif: flag(F_PUB1, "h")
    else: A("s_mov_b64 exec, -1")
    stamp(6)
    if opt.ackst:
        A("s_waitcnt vmcnt(0)"); stamp(4)
    A("L_bc_late:")
    late_setup(RA, 0, 28)
    ws_addr(sGA, WS_OP, sTMP)
    A(f"s_lshl_b32 s{sTMP2}, s{sC}, 4")
    A(f"v_and_b32 v{vTMP3}, 32, v0")
    A(f"v_lshlrev_b32 v{vTMP3}, 2, v{vTMP3}")
    A(f"v_add3_u32 v{vTMP3}, v{vTMP3}, s{sTMP2}, v9")
    A(f"s_lshl_b32 s{sTMP3}, s{sLR}, 3")
    A(f"v_subrev_u32 v{vAFW}, s{sTMP3}, v0")
    A(f"v_and_b32 v{vAFW}, 62, v{vAFW}")
    A(f"v_lshlrev_b32 v{vAFW}, 6, v{vAFW}")
    A(f"v_and_b32 v{vTMP2}, 1, v0")
    A(f"v_lshl_or_b32 v{vAFW}, v{vTMP2}, 3, v{vAFW}")
    A(f"s_add_u32 s{sTMP2}, s{sTMP2}, {AF}")
    A(f"v_add_u32 v{vAFW}, s{sTMP2}, v{vAFW}")
    afswz(vAFW)
    late_wait()
    stamp(7)
    def owork(i):
        if i == 2: late_post_issue()
        if i == 3: late_post()
    gather(mid=late_mid, cntstamp=13, sleep=opt.gsleep, work=owork, kind='B', defer=True)
    if STAMP == 1: A("s_waitcnt lgkmcnt(0)")
    cwait_rd(F_WRDY, 1, 0, lambda: A(f"ds_read_b128 v[{vSCA}:{vSCA+3}], v{vTMP3} offset:{F_WT}"))
    stamp(8)
    A(f"s_cmp_lg_u32 s{sEM}, 0")
    A("s_cbranch_scc1 L_onofix")
    A("s_call_b64 s[6:7], L_fix")
    A("L_onofix:")
    for i in range(4): acc(i, vS0, i == 0)
    A("s_branch L_late")

    A("L_roleM:")
    vXr, vGWr = vK, vK + 8
    A(f"s_cmp_lt_u32 s{sC}, 4")
    A("s_cbranch_scc1 L_nogate")
    wait_prog(False, opt.ggate, sleep=1)
    A(f"s_and_b32 s{sTMP}, s{sR}, 1")
    A(f"s_lshl2_add_u32 s{sTMP}, s{sTMP}, s{sC}")
    A(f"s_sub_u32 s{sTMP3}, s{sTMP}, 4")
    A(f"s_lshl_b32 s{sTMP}, s{sTMP3}, 11")
    A(f"v_add_u32 v{vTMP3}, s{sTMP}, v{vL16}")
    for i in range(2):
        A(f"global_load_dwordx4 v[{vXr+4*i}:{vXr+4*i+3}], v{vTMP3}, s[{sX}:{sX+1}] offset:{1024*i}")
        A(f"global_load_dwordx4 v[{vGWr+4*i}:{vGWr+4*i+3}], v{vL16}, s[{sGW}:{sGW+1}] offset:{1024*i}")
    A(f"v_mov_b32 v{vACC2}, 0")
    A("s_waitcnt vmcnt(0)")
    for i in range(8):
        A(f"v_lshlrev_b32 v{vW}, 16, v{vXr+i}")
        A(f"v_and_b32 v{vW+1}, 0xffff0000, v{vXr+i}")
        A(f"v_lshlrev_b32 v{vW+2}, 16, v{vGWr+i}")
        A(f"v_and_b32 v{vW+3}, 0xffff0000, v{vGWr+i}")
        A(f"v_mul_f32 v{vW}, v{vW}, v{vW+2}")
        A(f"v_mul_f32 v{vW+1}, v{vW+1}, v{vW+3}")
        A(f"v_cvt_pk_bf16_f32 v{vW}, v{vW}, v{vW+1}")
        A(f"v_lshlrev_b32 v{vW+1}, 16, v{vW}")
        A(f"v_and_b32 v{vW}, 0xffff0000, v{vW}")
        A(f"v_add_f32 v{vACC2}, v{vACC2}, v{vW+1}")
        A(f"v_add_f32 v{vACC2}, v{vACC2}, v{vW}")
    for off in (0x041F, 0x081F, 0x101F, 0x201F, 0x401F):
        A(f"ds_swizzle_b32 v{vW}, v{vACC2} offset:{off:#x}")
        A("s_waitcnt lgkmcnt(0)")
        A(f"v_add_f32 v{vACC2}, v{vACC2}, v{vW}")
    A(f"v_mov_b32 v{vW}, v{vACC2}")
    A("s_nop 1")
    A(f"v_permlane32_swap_b32 v{vACC2}, v{vW}")
    A(f"v_add_f32 v{vACC2}, v{vACC2}, v{vW}")
    def rbf(v):
        A(f"v_cvt_pk_bf16_f32 v{v}, v{v}, v{v}")
        A(f"v_and_b32 v{v}, 0xffff0000, v{v}")
    rbf(vACC2)
    A(f"v_mul_f32 v{vACC2}, 0xbfb8aa3b, v{vACC2}")
    A(f"v_exp_f32 v{vACC2}, v{vACC2}")
    A("s_nop 0")
    A(f"v_add_f32 v{vACC2}, 1.0, v{vACC2}")
    A(f"v_rcp_f32 v{vACC2}, v{vACC2}")
    A("s_nop 0")
    rbf(vACC2)
    A(f"s_lshl_b32 s{sTMP}, s{sTMP3}, 2")
    A(f"v_add_u32 v{vTMP2}, s{sTMP}, v9")
    A("s_mov_b64 exec, 1")
    A(f"ds_write_b32 v{vTMP2}, v{vACC2} offset:{F_G}")
    A("s_mov_b64 exec, -1")
    A("L_nogate:")
    A(f"s_lshl2_add_u32 s{sTMP}, s{sBB}, s{sG}")
    A(f"s_lshl3_add_u32 s{sTMP}, s{sTMP}, s{sC}")
    A(f"s_lshl_b32 s{sTMP}, s{sTMP}, 11")
    ws_addr(sGA, WS_QP, sTMP)
    A(f"v_bfe_u32 v{vTMP2}, v0, 2, 2")
    A(f"v_and_b32 v{vTMP3}, 3, v0")
    A(f"v_lshl_add_u32 v{vTMP2}, v{vTMP2}, 3, v{vTMP3}")
    A(f"v_lshlrev_b32 v{vWA}, 8, v{vTMP2}")
    A(f"v_lshrrev_b32 v{vTMP2}, 5, v0")
    A(f"v_and_b32 v{vTMP3}, 7, v0")
    A(f"v_xor_b32 v{vTMP2}, v{vTMP2}, v{vTMP3}")
    A(f"v_lshl_or_b32 v{vWA}, v{vTMP2}, 5, v{vWA}")
    A(f"v_and_b32 v{vTMP2}, 16, v0")
    A(f"s_lshl_b32 s{sTMP}, s{sC}, 13")
    A(f"v_add3_u32 v{vWA}, v{vWA}, v{vTMP2}, s{sTMP}")
    vQA, vMX, vPA = vW, vW + 1, vW + 2
    A(f"v_and_b32 v{vQA}, 30, v0")
    A(f"v_lshlrev_b32 v{vQA}, 6, v{vQA}")
    A(f"v_and_b32 v{vTMP2}, 1, v0")
    A(f"v_lshl_or_b32 v{vQA}, v{vTMP2}, 3, v{vQA}")
    A(f"v_lshrrev_b32 v{vTMP2}, 5, v0")
    A(f"v_lshl_or_b32 v{vQA}, v{vTMP2}, 2, v{vQA}")
    A(f"s_lshl_b32 s{sTMP}, s{sC}, 4")
    A(f"s_add_u32 s{sTMP}, s{sTMP}, {QF}")
    A(f"v_add_u32 v{vQA}, s{sTMP}, v{vQA}")
    A(f"v_lshl_add_u32 v{vMX}, v{vTMP3}, 2, v9")
    A(f"s_lshl_b32 s{sTMP}, s{sC}, 9")
    A(f"s_add_u32 s{sTMP}, s{sTMP}, {PF}")
    A(f"v_add_u32 v{vPA}, s{sTMP}, v{vACT}")
    vOTP, vOTA = vRW, vRR
    A(f"v_lshrrev_b32 v{vTMP3}, 4, v0")
    A(f"v_and_b32 v{vTMP2}, 7, v0")
    A(f"v_lshlrev_b32 v{vSTW}, 8, v{vTMP2}")
    A(f"v_lshl_or_b32 v{vSTW}, v{vTMP3}, 3, v{vSTW}")
    A(f"s_lshl_b32 s{sTMP}, s{sC}, 5")
    A(f"s_add_u32 s{sTMP}, s{sTMP}, {ST}")
    A(f"v_add_u32 v{vSTW}, s{sTMP}, v{vSTW}")
    A(f"v_add_u32 v{vSTR}, {ST}, v{vL16}")
    A(f"v_and_b32 v{vPUB}, 0x1f0, v{vL16}")
    A(f"v_and_b32 v{vTMP2}, 32, v0")
    A(f"v_lshl_or_b32 v{vPUB}, v{vTMP2}, 9, v{vPUB}")
    A(f"s_and_b32 s{sTMP}, s{sC}, 1")
    A(f"s_lshl_b32 s{sTMP}, s{sTMP}, 4")
    A(f"v_lshl_or_b32 v{vTMP3}, v{vTMP3}, 2, s{sTMP}")
    tagbits(vOTP, vTMP3)
    if opt.qhint: cwait(F_QRDY, 1, sleep=1)
    else: wait_prog(False, opt.qgate, sleep=1)
    stamp(3)
    def kfrags():
        A(f"s_add_u32 s{sTMP2}, s{sC}, 5")
        wait_prog(True, sTMP2)
        for db in range(4):
            if db: A(f"v_xor_b32 v{vAA}, {64*db}, v{vWA}")
            a = vAA if db else vWA
            A(f"ds_read_b128 v[{vK+4*db}:{vK+4*db+3}], v{a}")
            A(f"ds_read_b128 v[{vK+16+4*db}:{vK+16+4*db+3}], v{a} offset:1024")
        signal(F_FREE1)
        A(f"v_add_u32 v{vAA}, {QF}, v{vACT}")
    setsca(LQ)
    def qwork(i): acc(i, vS0, i == 0)
    gather(nld=4, mid=kfrags, cntstamp=11, sleep=opt.qsleep, work=qwork)
    stamp(4)
    A("s_nop 1")
    A(f"v_permlane32_swap_b32 v{vS0}, v{vS0+2}")
    A(f"v_permlane32_swap_b32 v{vS0+1}, v{vS0+3}")
    A(f"v_add_f32 v{vS0}, v{vS0}, v{vS0+2}")
    A(f"v_add_f32 v{vS0+1}, v{vS0+1}, v{vS0+3}")
    A(f"v_cvt_pk_bf16_f32 v{vGA}, v{vS0}, v{vS0+1}")
    A(f"ds_write_b32 v{vQA}, v{vGA}")
    signal(F_BQ)
    A(f"s_lshl_b32 s{sTMP}, s{sG}, 5")
    A(f"s_add_u32 s{sTMP}, s{sTMP}, s{sBB}")
    A(f"s_lshl2_add_u32 s{sTMP}, s{sTMP}, s{sSPL}")
    A(f"s_lshl_b32 s{sTMP}, s{sTMP}, 9")
    ws_addr(sGA, WS_OP, sTMP)
    A(f"s_lshl2_add_u32 s{sTMP3}, s{sBB}, s{sSPL}")
    A(f"s_mul_i32 s{sTMP}, s{sG}, {32*CS}")
    ws_addr(sGB, WS_OC, sTMP)
    A(f"s_lshl_b32 s{sTMP}, s{sG}, 5")
    A(f"s_add_u32 s{sTMP}, s{sTMP}, s{sTMP3}")
    A(f"s_lshl_b32 s{sTMP}, s{sTMP}, 6")
    ws_addr(sFA, WS_LSE, sTMP)
    cbits = struct.unpack("<I", struct.pack("<f", math.log2(math.e) / math.sqrt(128.0)))[0]
    A(f"s_mov_b32 s{sTMP2}, {cbits:#x}")
    if STAMP == 1: A("s_waitcnt lgkmcnt(0)")
    if opt.spec: cwait_rd(F_BQ, 8, 4, lambda: actreads(4))
    else:
        cwait(F_BQ, 8); actreads(4)
    for db in range(4):
        A(f"s_waitcnt lgkmcnt({3-db})")
        c0 = "0" if db == 0 else f"v[{vACC}:{vACC+3}]"
        c1 = "0" if db == 0 else f"v[{vACC2}:{vACC2+3}]"
        A(f"v_mfma_f32_16x16x32_bf16 v[{vACC}:{vACC+3}], v[{vK+4*db}:{vK+4*db+3}], v[{vQ+4*db}:{vQ+4*db+3}], {c0}")
        A(f"v_mfma_f32_16x16x32_bf16 v[{vACC2}:{vACC2+3}], v[{vK+16+4*db}:{vK+16+4*db+3}], v[{vQ+4*db}:{vQ+4*db+3}], {c1}")
    A(f"v_add_u32 v{vAA}, {PF}, v{vACT}")
    A(f"v_add_u32 v{vWA}, {RB}, v{vTR}")
    vONES = vGA
    for r in range(4): A(f"v_mov_b32 v{vONES+r}, 0x3f803f80")
    A("s_nop 1")
    A(f"v_max3_f32 v{vTMP2}, v{vACC}, v{vACC+1}, v{vACC+2}")
    A(f"v_max3_f32 v{vTMP2}, v{vTMP2}, v{vACC+3}, v{vACC2}")
    A(f"v_max3_f32 v{vTMP2}, v{vTMP2}, v{vACC2+1}, v{vACC2+2}")
    A(f"v_max_f32 v{vTMP2}, v{vTMP2}, v{vACC2+3}")
    A("s_mov_b32 exec_lo, 0x00ff00ff\ns_mov_b32 exec_hi, 0x00ff00ff")
    A(f"ds_max_f32 v{vMX}, v{vTMP2} offset:{F_MAX}")
    signal(F_BM)
    vM = vLS
    cwait_rd(F_BM, 8, 1, lambda: A(f"ds_read_b32 v{vM}, v{vMX} offset:{F_MAX}"))
    if opt.olead >= 0 and opt.oearly:
        A(f"ds_read_b32 v{vTMP}, v9 offset:{F_PROG}")
    A("s_waitcnt lgkmcnt(0)")
    A(f"s_mov_b32 s{sWDN}, 0")
    if opt.olead >= 0 and opt.oearly:
        A(f"v_readfirstlane_b32 s{sPROG}, v{vTMP}")
        A(f"s_cmp_lt_u32 s{sPROG}, {20 - opt.olead}")
        A("s_cbranch_scc1 L_of_no1")
        flag_now("q")
        A(f"s_mov_b32 s{sWDN}, 1")
        A("L_of_no1:")
    A(f"v_mul_f32 v{vM}, s{sTMP2}, v{vM}")
    for r in range(8):
        A(f"v_fma_f32 v{vACC+r}, v{vACC+r}, s{sTMP2}, -v{vM}")
    for r in range(8):
        A(f"v_exp_f32 v{vACC+r}, v{vACC+r}")
    A("s_nop 0")
    for r in range(4):
        A(f"v_cvt_pk_bf16_f32 v{vB+r}, v{vACC+2*r}, v{vACC+2*r+1}")
    A(f"ds_write_b128 v{vPA}, v[{vB}:{vB+3}]")
    signal(F_BP)
    if opt.spec: cwait_rd(F_BP, 8, 8, lambda: actreads(8))
    else:
        cwait(F_BP, 8); actreads(8)
    A(f"ds_read_b32 v{vTMP}, v9 offset:{F_PROG}")
    for kb in range(8):
        A(f"s_waitcnt lgkmcnt({8-kb})")
        c1 = "0" if kb == 0 else f"v[{vACC2}:{vACC2+3}]"
        A(f"v_mfma_f32_16x16x32_bf16 v[{vACC2}:{vACC2+3}], v[{vONES}:{vONES+3}], v[{vQ+4*kb}:{vQ+4*kb+3}], {c1}")
    A("s_waitcnt lgkmcnt(0)")
    A(f"v_readfirstlane_b32 s{sPROG}, v{vTMP}")
    stamp(5)
    vRL = vLS + 2
    def lse_part():
        A(f"v_log_f32 v{vLS+1}, v{vACC2}")
        A(f"v_rcp_f32 v{vRL}, v{vACC2}")
        A("s_nop 0")
        A(f"v_mul_f32 v{vRL}, {fbits(2.0**LO_):#x}, v{vRL}")
        d = g.lab("L_nolse")
        A(f"s_cmp_lg_u32 s{sC}, 0")
        A(f"s_cbranch_scc1 {d}")
        A(f"v_add_f32 v{vM}, v{vM}, v{vLS+1}")
        A(f"v_mov_b32 v{vLS+1}, s{sT}")
        A(f"v_lshlrev_b32 v{vTMP2}, 3, v0")
        A("s_mov_b64 exec, 0xff")
        if not (opt.dbg & 1):
            A(f"global_store_dwordx2 v{vTMP2}, v[{vLS}:{vLS+1}], s[{sFA}:{sFA+1}] sc1")
            if opt.lcnt:
                A(f"s_bfm_b64 exec, {NREP}, 0")
                A(f"v_mov_b32 v{vTMP2}, 0x10000")
                A(f"global_atomic_add v{vFLG}, v{vTMP2}, s[{sGB}:{sGB+1}] sc1")
        A("s_mov_b64 exec, -1")
        A(f"{d}:")
    A(f"s_cmp_lt_u32 s{sPROG}, 20")
    A("s_cbranch_scc1 L_pv_slow")
    def oflag():
        if opt.olead < 0: return
        d = g.lab("L_of")
        A(f"s_cmp_lg_u32 s{sWDN}, 0")
        A(f"s_cbranch_scc1 {d}")
        flag_now("q")
        A(f"{d}:")
    wreads(0, 7)
    lse_part()
    oflag()
    for kb in range(7):
        A(f"s_waitcnt lgkmcnt({14-2*kb if kb else 12})")
        if kb == 0: wreads(7, 8)
        mf(kb, kb == 0)
    A("s_branch L_pv_last")
    pad("M")
    A("L_pv_slow:")
    A("s_nop 4")
    lse_part()
    for kb in range(8):
        wait_prog(False, 12 + kb + 1)
        wreads(kb, kb+1)
        if 12 + kb + 1 == 20 - opt.olead: oflag()
        if kb:
            A("s_waitcnt lgkmcnt(2)")
            mf(kb-1, kb == 1)
    A("L_pv_last:")
    A("s_waitcnt lgkmcnt(0)")
    mf(7, False)
    A("s_nop 7")
    encode(vRL, vOTP, vOTA)
    A("s_mov_b32 exec_lo, 0x00ff00ff\ns_mov_b32 exec_hi, 0x00ff00ff")
    staged(F_PUB1, 7, 2 << 14, "q" if (opt.olead < 0 and not opt.notif) else None)
    stamp(6)
    if opt.ackst:
        A("s_waitcnt vmcnt(0)"); stamp(3)
    A(f"s_and_b32 s{sTMP2}, s{sR}, 1")
    A(f"s_lshl_b32 s{sTMP2}, s{sTMP2}, 4")
    A(f"v_and_b32 v{vTMP2}, 12, v0")
    A(f"v_add3_u32 v{vTMP2}, v{vTMP2}, s{sTMP2}, v9")
    A(f"ds_read_b32 v{vRG}, v{vTMP2} offset:{F_G}")
    A(f"s_lshl4_add_u32 s{sTMP}, s{sXCD}, s{sR}")
    A(f"s_sub_u32 s{sTMP3}, s{sTMP}, 16")
    A(f"s_lshl3_add_u32 s{sTMP}, s{sTMP3}, s{sC}")
    A(f"s_lshl_b32 s{sTMP}, s{sTMP}, 9")
    ws_addr(sRA, WS_FP, sTMP)
    A(f"v_lshlrev_b32 v{vRR}, 2, v0")
    A(f"v_add_u32 v{vRR}, {RS}, v{vRR}")
    A(f"s_lshl_b32 s{sTMP}, s{sC}, 8")
    A(f"v_add_u32 v{vRW}, s{sTMP}, v{vRR}")
    A(f"v_and_b32 v{vOUT}, 12, v0")
    A(f"v_lshlrev_b32 v{vOUT}, 9, v{vOUT}")
    A(f"v_and_b32 v{vTMP2}, 3, v0")
    A(f"v_lshl_or_b32 v{vOUT}, v{vTMP2}, 3, v{vOUT}")
    A(f"v_lshrrev_b32 v{vTMP2}, 4, v0")
    A(f"v_lshl_or_b32 v{vOUT}, v{vTMP2}, 1, v{vOUT}")
    A(f"s_lshl_b32 s{sTMP2}, s{sTMP2}, 9")
    A(f"s_lshr_b32 s{sTMP3}, s{sTMP3}, 1")
    A(f"s_lshl_b32 s{sTMP3}, s{sTMP3}, 5")
    A(f"s_add_u32 s{sTMP2}, s{sTMP2}, s{sTMP3}")
    A(f"v_add_u32 v{vOUT}, s{sTMP2}, v{vOUT}")
    if opt.vtouch & 1:
        A(f"s_cmp_lg_u32 s{sC}, 7")
        A("s_cbranch_scc1 L_novt")
        A("s_mov_b64 exec, 1")
        A(f"global_load_ushort v127, v{vOUT}, s[{sOUT}:{sOUT+1}] sc1")
        A("s_mov_b64 exec, -1")
        A("L_novt:")
    A("s_waitcnt lgkmcnt(0)")
    A(f"s_cmp_lt_u32 s{sC}, 4")
    A("s_cbranch_scc1 L_wg_done")
    A(f"v_sub_f32 v{vRG}, 1.0, v{vRG}")
    rbf(vRG)
    A("L_wg_done:")
    A(f"v_mul_f32 v{vRG}, {fbits(2.0**-LF):#x}, v{vRG}")
    setsca(LG)
    late_setup(RA, 16, 27)
    A(f"s_add_u32 s{sTMP}, s{sC}, s{sLR}")
    A(f"s_cmp_ge_u32 s{sTMP}, 7")
    A(f"s_cselect_b32 s{sTMP2}, 7, 0")
    A(f"s_sub_u32 s{sTMP}, s{sTMP}, s{sTMP2}")
    A(f"s_add_u32 s{sTMP}, s{sTMP}, s{sKB0}")
    A(f"s_lshl_b32 s{sTMP}, s{sTMP}, 11")
    ws_addr(sGA, WS_GP, sTMP)
    for r in range(4): A(f"v_mov_b32 v{vS0+r}, 0")
    late_wait()
    A(f"s_cmp_eq_u32 s{sC}, 7")
    A("s_cbranch_scc1 L_late")
    stamp(7)
    def rnd4(v):
        A(f"v_cvt_pk_bf16_f32 v{vB}, v{v}, v{v+1}")
        A(f"v_cvt_pk_bf16_f32 v{vB+1}, v{v+2}, v{v+3}")
        for h in range(2):
            A(f"v_lshlrev_b32 v{v+2*h}, 16, v{vB+h}")
            A(f"v_and_b32 v{v+2*h+1}, 0xffff0000, v{vB+h}")
    def hwork(i):
        if i == 2: late_post_issue()
        if i == 3: late_post()
        acc(i, vS0 if i < 2 else vS1, i in (0, 2))
        if i == 1:
            for r in range(4): A(f"v_max_f32 v{vS0+r}, 0, v{vS0+r}")
            if opt.hround: rnd4(vS0)
        if i == 3:
            if opt.hround: rnd4(vS1)
            for r in (0, 2): A(f"v_pk_mul_f32 v[{vS0+r}:{vS0+r+1}], v[{vS0+r}:{vS0+r+1}], v[{vS1+r}:{vS1+r+1}]")
    gather(mid=late_mid, cntstamp=13, sleep=opt.gsleep, work=hwork)
    stamp(8)

    if opt.touch: A("s_branch L_late")
    pad("A")
    A("L_late:")
    A(f"v_cvt_pk_bf16_f32 v{vGA}, v{vS0}, v{vS0+1}")
    A(f"v_cvt_pk_bf16_f32 v{vGA+1}, v{vS0+2}, v{vS0+3}")
    A(f"ds_write_b64 v{vAFW}, v[{vGA}:{vGA+1}]")
    if opt.lflow == 1:
        signal(F_BA)
        if opt.fine: stamp(3)
        A(f"s_cmp_eq_u32 s{sWDN}, 99")
        A("s_cbranch_scc1 L_late_bar")
        A("L_late_spin:")
        A(f"ds_read2_b32 v[{vTMP}:{vTMP+1}], v9 offset0:{F_PROG//4} offset1:{F_BA//4}")
        A("s_waitcnt lgkmcnt(0)")
        A(f"v_readfirstlane_b32 s{sPROG}, v{vTMP}")
        A(f"v_readfirstlane_b32 s{sTMP2}, v{vTMP+1}")
        wcatch()
        A(f"s_cmp_eq_u32 s{sWDN}, 99")
        A("s_cbranch_scc1 L_late_bar0")
        A(f"s_cmp_lt_u32 s{sWDN}, 27")
        A("s_cbranch_scc1 L_late_spin")
        A(f"s_cmp_lt_u32 s{sTMP2}, 8")
        A("s_cbranch_scc1 L_late_spin")
        actreads(8, True)
        for kb in range(6):
            A(f"s_waitcnt lgkmcnt({7-kb})")
            mf(kb, kb == 0)
        A("s_barrier")
        wreads(6, 8)
        A("s_waitcnt lgkmcnt(2)")
        mf(6, False)
        A("s_waitcnt lgkmcnt(0)")
        mf(7, False)
        A("s_branch L_late_done")
        pad("A")
        A("L_late_bar:")
        A("s_waitcnt lgkmcnt(0)")
        A("L_late_bar0:")
        A("s_barrier")
        if opt.fine: stamp(4)
        actreads(8, True)
        for kb in range(8):
            A(f"s_waitcnt lgkmcnt({7-kb})")
            mf(kb, kb == 0)
    else:
        if opt.fine: stamp(3)
        if opt.lflow == 3: signal(F_BA)
        A(f"s_cmp_ge_u32 s{sWDN}, {opt.wmin}")
        A(f"s_cbranch_scc1 {'L_late_w6' if opt.lflow == 3 else 'L_late_bar'}")
        wait_prog(False, opt.wmin - 1)
        wcatch()
        if opt.lflow == 3:
            A("L_late_w6:")
            A(f"s_cmp_eq_u32 s{sWDN}, 99")
            A("s_cbranch_scc1 L_late_bar")
            A("L_late_spin:")
            A(f"ds_read2_b32 v[{vTMP}:{vTMP+1}], v9 offset0:{F_PROG//4} offset1:{F_BA//4}")
            A("s_waitcnt lgkmcnt(0)")
            A(f"v_readfirstlane_b32 s{sPROG}, v{vTMP}")
            A(f"v_readfirstlane_b32 s{sTMP2}, v{vTMP+1}")
            A(f"s_cmp_ge_u32 s{sPROG}, s{sPE}")
            A("s_cbranch_scc1 L_late_bar")
            A(f"s_cmp_lt_u32 s{sTMP2}, 8")
            A("s_cbranch_scc1 L_late_spin")
            n0 = opt.wmin - 21
            actreads(8, True)
            for kb in range(n0):
                A(f"s_waitcnt lgkmcnt({7-kb})")
                mf(kb, kb == 0)
            A("s_barrier")
            wreads(n0, 8)
            for kb in range(n0, 8):
                A(f"s_waitcnt lgkmcnt({2*(7-kb)})")
                mf(kb, False)
            A("s_branch L_late_done")
        A("L_late_bar:")
        A(f"s_cmp_eq_u32 s{sWDN}, 99")
        A("s_waitcnt lgkmcnt(0)")
        A("s_barrier")
        A("s_cbranch_scc1 L_late_act")
        wreads(opt.wmin - 21, 8)
        A("L_late_act:")
        if opt.fine: stamp(4)
        actreads(8, True)
        for kb in range(8):
            A(f"s_waitcnt lgkmcnt({7-kb})")
            mf(kb, kb == 0)
    A("L_late_done:")
    if opt.fine: stamp(5)
    A("s_nop 7")
    publish(vACC, sFA)
    A("s_mov_b64 exec, -1")
    stamp(9)
    A(f"s_cmp_ge_u32 s{sR}, 16")
    A("s_cbranch_scc1 L_red")
    A("s_branch L_exit")
    pad("A")
    A("L_red:")
    A(f"s_mov_b64 s[{sGA}:{sGA+1}], s[{sRA}:{sRA+1}]")
    if opt.fgate and not opt.fbar: cwait(F_FRDY, 1)
    A(f"v_mov_b32 v{vSCA}, v{vRG}")
    if opt.fgate and opt.fbar: A("s_barrier")
    def fwork(i): acc(0, vS0, True)
    gather(nld=1, cntstamp=12, sleep=opt.fgsleep, work=fwork)
    if not opt.stq: stamp(2)
    A("s_nop 1")
    A(f"v_permlane32_swap_b32 v{vS0}, v{vS0+2}")
    A(f"v_permlane32_swap_b32 v{vS0+1}, v{vS0+3}")
    A(f"v_add_f32 v{vS0}, v{vS0}, v{vS0+2}")
    A(f"v_add_f32 v{vS0+1}, v{vS0+1}, v{vS0+3}")
    A("s_nop 1")
    A(f"v_permlane16_swap_b32 v{vS0}, v{vS0+1}")
    A(f"v_add_f32 v{vGA}, v{vS0}, v{vS0+1}")
    A(f"ds_write_b32 v{vRW}, v{vGA}")
    A("s_mov_b64 exec, 1")
    A(f"ds_add_rtn_u32 v{vTMP}, v9, v{vONE} offset:{F_RED}")
    A("s_mov_b64 exec, -1")
    for i in range(4):
        A(f"ds_read2st64_b32 v[{vGA+2*i}:{vGA+2*i+1}], v{vRR} offset0:{2*i} offset1:{2*i+1}")
    A("s_waitcnt lgkmcnt(4)")
    A(f"v_readfirstlane_b32 s{sTMP}, v{vTMP}")
    A(f"s_cmp_lg_u32 s{sTMP}, 7")
    A("s_cbranch_scc1 L_exit")
    A("s_waitcnt lgkmcnt(0)")
    A(f"v_pk_add_f32 v[{vGA}:{vGA+1}], v[{vGA}:{vGA+1}], v[{vGA+2}:{vGA+3}]")
    A(f"v_pk_add_f32 v[{vGA+4}:{vGA+5}], v[{vGA+4}:{vGA+5}], v[{vGA+6}:{vGA+7}]")
    A(f"v_pk_add_f32 v[{vGA}:{vGA+1}], v[{vGA}:{vGA+1}], v[{vGA+4}:{vGA+5}]")
    A(f"v_add_f32 v{vGA}, v{vGA}, v{vGA+1}")
    A(f"v_cvt_pk_bf16_f32 v{vGA}, v{vGA}, v{vGA}")
    A(f"global_store_short v{vOUT}, v{vGA}, s[{sOUT}:{sOUT+1}] {opt.outflags}")
    A(f"s_cmp_lg_u32 s2, 128")
    A("s_cbranch_scc1 L_noepoch")
    A("s_mov_b64 exec, 1")
    A(f"v_mov_b32 v{vTMP}, 0")
    A(f"global_store_dword v{vTMP}, v{vT}, s[{sWS}:{sWS+1}] sc1")
    A("s_mov_b64 exec, -1")
    A("L_noepoch:")
    if opt.fixdur:
        A(f"s_cmp_lg_u32 s2, {opt.fixwg}")
        A("s_cbranch_scc1 L_nofix")
        if opt.probe == 20: A("s_memrealtime s[96:97]")
        A("s_waitcnt lgkmcnt(0)")
        A("s_sub_u32 s96, s96, s98")
        A(f"s_mul_i32 s96, s96, {4 if opt.probe >= 0 else 0}")
        A(f"s_add_u32 s96, s96, {opt.fixdur}")
        A("L_fixd:")
        A("s_memrealtime s[14:15]")
        A("s_waitcnt lgkmcnt(0)")
        A("s_sub_u32 s14, s14, s98")
        A(f"s_cmp_lt_u32 s14, s96")
        A("s_cbranch_scc1 L_fixd")
        A("L_nofix:")
    if STAMP:
        A("s_waitcnt vmcnt(0)")
        stamp(1, True)
    A("s_branch L_exit")

    pad("A")
    A("L_wcatch:")
    for kb in range(8):
        nx = f"L_wcn{kb}"
        if kb < 7:
            A(f"s_cmp_gt_u32 s{sWDN}, {21+kb}")
            A(f"s_cbranch_scc1 {nx}")
        if kb:
            A(f"s_cmp_lt_u32 s{sPROG}, s{sWDN}")
            A("s_cbranch_scc1 L_wcret")
        wreads(kb, kb+1)
        if kb < 6: A(f"s_mov_b32 s{sWDN}, {22+kb}")
        elif kb == 6: A(f"s_mov_b32 s{sWDN}, s{sPE}")
        else: A(f"s_mov_b32 s{sWDN}, 99")
        if kb < 7: A(f"{nx}:")
    A("L_wcret:")
    A(f"s_setpc_b64 s[{sRET}:{sRET+1}]")

    A("L_encs:")
    A(f"v_lshrrev_b32 v{vTMP}, 23, v{vTMP}")
    A(f"v_subrev_u32 v{vTMP}, 126, v{vTMP}")
    A(f"v_ashrrev_i32 v{vTMP}, 4, v{vTMP}")
    A(f"v_med3_i32 v{vTMP}, v{vTMP}, -8, 7")
    A(f"v_cndmask_b32 v{vTMP}, 0, v{vTMP}, vcc")
    A(f"v_and_b32 v{vAX}, 15, v{vTMP}")
    A(f"v_lshl_or_b32 v{vAX}, v{vAX}, 14, v{vAX}")
    A(f"v_and_b32 v{vAX}, s{sM3}, v{vAX}")
    A(f"v_mul_i32_i24 v{vTMP}, -16, v{vTMP}")
    for r in range(4): A(f"v_ldexp_f32 v{vACC+r}, v{vACC+r}, v{vTMP}")
    A("s_mov_b64 vcc, 0")
    A("s_setpc_b64 s[6:7]")
    A("L_fixr:")
    for i in range(4): A(f"v_xor_b32 v{vGA+2*i+1}, v{vTC}, v{vGA+2*i+1}")
    A("L_fix:")
    for i in range(4):
        A(f"v_and_b32 v{vTMP}, 3, v{vGA+2*i}")
        A(f"v_bfe_i32 v{vTMP2}, v{vGA+2*i}, 16, 2")
        A(f"v_lshl_or_b32 v{vTMP}, v{vTMP2}, 2, v{vTMP}")
        A(f"v_lshlrev_b32 v{vTMP}, 4, v{vTMP}")
        A(f"v_ldexp_f32 v{vSCA+i}, v{vSCA+i}, v{vTMP}")
    A("s_setpc_b64 s[6:7]")

    if opt.notif:
        A("L_notif:")
        if opt.nocomm: A("s_branch L_exit")
        if opt.tlb:
            A("s_mov_b64 exec, 1")
            A(f"v_mov_b32 v{vGA}, 0")
            if opt.tlb & 1:
                A(f"global_load_dword v{vGA+1}, v{vGA}, s[{sOUT}:{sOUT+1}] sc1")
                A(f"global_load_dword v{vGA+2}, v{vGA}, s[{sWS}:{sWS+1}] offset:512 sc1")
            if opt.tlb & 2:
                A(f"s_lshl_b32 s{sTMP}, s{sKB0}, 16")
                A(f"v_mov_b32 v{vGA+8}, s{sTMP}")
                A(f"s_cmp_ge_u32 s{sR}, 16")
                A("s_cbranch_scc1 L_tlbM")
                A(f"global_load_dword v{vGA+3}, v{vGA+8}, s[{sWO}:{sWO+1}] nt")
                A(f"s_cmp_eq_u32 s{sROLE}, 2")
                A("s_cbranch_scc1 L_tlbD")
                A(f"s_bitcmp0_b32 s{sBETA}, 1")
                A(f"s_cselect_b64 s[4:5], s[{sWG}:{sWG+1}], s[{sWU}:{sWU+1}]")
                A(f"s_and_b32 s{sTMP}, s{sBETA}, 1")
                A(f"s_mul_i32 s{sTMP}, s{sTMP}, {512*7168}")
                A("s_mov_b64 exec, 7")
                A(f"v_mul_u32_u24 v{vGA+9}, {255*7168}, v0")
                A(f"v_add_u32 v{vGA+9}, s{sTMP}, v{vGA+9}")
                A(f"global_load_dword v{vGA+4}, v{vGA+9}, s[4:5] nt")
                A("s_branch L_tlbD")
                A("L_tlbM:")
                A(f"global_load_dword v{vGA+3}, v{vGA+8}, s[{sWD}:{sWD+1}] nt")
                A(f"s_lshl2_add_u32 s{sTMP}, s{sBB}, s{sG}")
                A(f"s_lshl_b32 s{sTMP}, s{sTMP}, 20")
                A(f"v_mov_b32 v{vGA+9}, s{sTMP}")
                A(f"global_load_dword v{vGA+4}, v{vGA+9}, s[{sV}:{sV+1}] nt")
                A("L_tlbD:")
            A("s_mov_b64 exec, -1")
        A(f"s_cmp_eq_u32 s{sROLE}, 2")
        A("s_cbranch_scc1 L_exit")
        A(f"s_cmp_ge_u32 s{sR}, 16")
        A("s_cbranch_scc1 L_notifM")
        hc_addr()
        wait_prog(False, opt.nprogh - 1, sleep=2)
        wait_prog(False, opt.nprogh)
        if opt.ndelay: A(f"s_sleep {opt.ndelay}")
        bump("h")
        A("s_branch L_exit")
        A("L_notifM:")
        A(f"s_mul_i32 s{sTMP}, s{sG}, {32*CS}")
        ws_addr(sGB, WS_OC, sTMP)
        cwait(F_BP, 8, sleep=2)
        if opt.pdelay: A(f"s_sleep {opt.pdelay}")
        wait_prog(False, opt.nprogo - 1, sleep=2)
        wait_prog(False, opt.nprogo)
        if opt.ndelay + opt.odelay: A(f"s_sleep {opt.ndelay + opt.odelay}")
        bump("q")
        A("s_branch L_exit")

    A("L_poller:")
    if opt.nocomm: A("s_branch L_exit")
    A(f"s_cmp_ge_u32 s{sR}, 16")
    A("s_cbranch_scc1 L_pollM")
    A(f"s_lshl3_add_u32 s{sTMP}, s{sRBK}, s{sCB}")
    A(f"s_and_b32 s{sTMP}, s{sTMP}, {NREP-1}")
    A(f"s_lshl_b32 s{sTMP2}, s{sG}, 5")
    A(f"s_add_u32 s{sTMP}, s{sTMP}, s{sTMP2}")
    A(f"s_mul_i32 s{sTMP}, s{sTMP}, {CS}")
    ws_addr(sGB, WS_OC, sTMP)
    A(f"s_load_dword s4, s[{sGB}:{sGB+1}], 0 glc")
    A(f"s_and_b32 s{sTMP}, s{sRBK}, 3")
    A(f"s_lshl_b32 s{sTMP}, s{sTMP}, 4")
    A(f"s_lshl_b32 s{sTMP2}, s{sG}, 11")
    A(f"s_add_u32 s{sTMP}, s{sTMP}, s{sTMP2}")
    ws_addr(sGA, WS_LSE, sTMP)
    A(f"v_and_b32 v{vTMP3}, 31, v0")
    A(f"v_lshlrev_b32 v{vTMP3}, 6, v{vTMP3}")
    A(f"v_lshrrev_b32 v{vTMP2}, 5, v0")
    A(f"v_lshl_or_b32 v{vTMP3}, v{vTMP2}, 3, v{vTMP3}")
    A("s_waitcnt lgkmcnt(0)")
    A(f"v_lshl_add_u32 v{vWA}, v0, 2, v9")
    A(f"s_cmp_eq_u32 s{sROLE}, 2")
    A(f"s_cselect_b32 s{sTMP2}, {opt.ogatec}, {opt.ogate}")
    A(f"s_add_u32 s5, s4, {0x200020 if opt.lcnt else 32}")
    for k, l in touch:
        if k in "AB": A(f"s_call_b64 s[6:7], {l}")
    wait_prog(True, sTMP2, sleep=2)
    stamp(2)
    if not (opt.dbg & 7):
        A(f"s_mov_b32 s{sCNT}, 0")
        if opt.psleep: A("s_branch L_pl1e")
        A("L_pl1:")
        if opt.psleep:
            A(f"s_sleep {opt.psleep}")
            A("L_pl1e:")
        A(f"s_load_dword s8, s[{sGB}:{sGB+1}], 0 glc")
        A(f"s_add_u32 s{sCNT}, s{sCNT}, 1")
        A(f"s_cmp_gt_u32 s{sCNT}, {opt.maxhint}")
        A("s_waitcnt lgkmcnt(0)")
        A("s_cbranch_scc1 L_pl1d")
        A("s_sub_u32 s9, s8, s4")
        A(f"s_cmp_lt_u32 s9, {0x200000 if opt.lcnt else opt.lthr}")
        A("s_cbranch_scc1 L_pl1")
        A("L_pl1d:")
        stampval(10, sCNT)
    stamp(3)
    A("s_mov_b32 s9, 0")
    A(f"s_mov_b32 s{sTMP3}, 0")
    A("L_lse:")
    if not (opt.dbg & 2): A(f"global_load_dwordx2 v[{vLS}:{vLS+1}], v{vTMP3}, s[{sGA}:{sGA+1}] sc1")
    if not (opt.dbg & 7):
        A("s_cmp_lg_u32 s9, 0")
        A("s_cbranch_scc1 L_lse_wait")
        A("L_pl2:")
        A("s_cmp_eq_u32 s8, s5")
        A("s_cbranch_scc1 L_pl_sig")
        A(f"s_cmp_gt_u32 s{sCNT}, {opt.maxhint}")
        A("s_cbranch_scc1 L_pl_sig")
        A("s_getreg_b32 s10, hwreg(HW_REG_IB_STS, 0, 4)")
        A("s_cmp_eq_u32 s10, 0")
        A("s_cbranch_scc1 L_lse_wait")
        A(f"s_load_dword s8, s[{sGB}:{sGB+1}], 0 glc")
        A(f"s_add_u32 s{sCNT}, s{sCNT}, 1")
        A("s_waitcnt lgkmcnt(0)")
        A("s_branch L_pl2")
        A("L_pl_sig:")
        signal(F_LRDY)
        A("s_mov_b32 s9, 1")
        stamp(5)
    A("L_lse_wait:")
    if not (opt.dbg & 7):
        A(f"s_load_dword s8, s[{sGB}:{sGB+1}], 0 glc")
    A(f"s_add_u32 s{sTMP3}, s{sTMP3}, 1")
    A("s_waitcnt vmcnt(0)")
    A(f"v_cmp_ne_u32 vcc, s{sT}, v{vLS+1}")
    A(f"s_cbranch_vccz L_lsed")
    A(f"s_cmp_le_u32 s{sTMP3}, {0 if (opt.dbg & 7) else opt.maxpoll}")
    A("s_waitcnt lgkmcnt(0)")
    A(f"s_cbranch_scc1 L_lse")
    A("L_lsed:")
    stampval(12, sTMP3)
    A(f"v_max_f32_dpp v{vTMP}, v{vLS}, v{vLS} quad_perm:[1,0,3,2] row_mask:0xf bank_mask:0xf")
    A("s_nop 1")
    A(f"v_max_f32_dpp v{vTMP}, v{vTMP}, v{vTMP} quad_perm:[2,3,0,1] row_mask:0xf bank_mask:0xf")
    A(f"v_sub_f32 v{vLS}, v{vLS}, v{vTMP}")
    A(f"v_exp_f32 v{vLS}, v{vLS}")
    A("s_nop 1")
    A(f"v_add_f32_dpp v{vTMP}, v{vLS}, v{vLS} quad_perm:[1,0,3,2] row_mask:0xf bank_mask:0xf")
    A("s_nop 1")
    A(f"v_add_f32_dpp v{vTMP}, v{vTMP}, v{vTMP} quad_perm:[2,3,0,1] row_mask:0xf bank_mask:0xf")
    A(f"v_rcp_f32 v{vTMP}, v{vTMP}")
    A("s_nop 0")
    A(f"v_mul_f32 v{vLS}, v{vLS}, v{vTMP}")
    A(f"v_mul_f32 v{vLS}, {fbits(2.0**-LO_):#x}, v{vLS}")
    A(f"ds_write_b32 v{vWA}, v{vLS} offset:{F_WT}")
    signal(F_WRDY)
    stamp(4)
    if not (opt.dbg & 7):
        A("s_cmp_lg_u32 s9, 0")
        A("s_cbranch_scc1 L_pl_fin")
        A("s_waitcnt lgkmcnt(0)")
        A("s_cmp_eq_u32 s8, s5")
        A("s_cbranch_scc1 L_pl_sig2")
    pollcnt(sGB, 5, opt.psleep, cntstamp=11)
    A("L_pl_sig2:")
    signal(F_LRDY)
    stamp(5)
    A("L_pl_fin:")
    A("s_barrier")
    A("s_branch L_exit")
    A("L_pollM:")
    A(f"s_lshl2_add_u32 s{sTMP}, s{sBB}, s{sSPL}")
    A(f"s_lshr_b32 s{sTMP}, s{sTMP}, {int(math.log2(32//NREP))}")
    A(f"s_lshl_b32 s{sTMP2}, s{sG}, 5")
    A(f"s_add_u32 s{sTMP}, s{sTMP}, s{sTMP2}")
    A(f"s_mul_i32 s{sTMP}, s{sTMP}, {CS}")
    ws_addr(sGB, WS_QC, sTMP)
    if opt.qhint: A(f"s_load_dword s4, s[{sGB}:{sGB+1}], 0 glc")
    A(f"s_mul_i32 s{sTMP}, s{sRBK}, {HREP}")
    A(f"s_and_b32 s{sTMP2}, s{sCB}, {HREP-1}")
    A(f"s_add_u32 s{sTMP}, s{sTMP}, s{sTMP2}")
    A(f"s_mul_i32 s{sTMP}, s{sTMP}, {CS}")
    ws_addr(sGA, WS_HC, sTMP)
    A(f"s_load_dword s5, s[{sGA}:{sGA+1}], 0 glc")
    if opt.fgate:
        A(f"s_and_b32 s{sTMP}, s{sR}, {opt.frep-1}")
        A(f"s_lshl4_add_u32 s{sTMP}, s{sXCD}, s{sTMP}")
        A(f"s_mul_i32 s{sTMP}, s{sTMP}, {CS}")
        ws_addr(10, WS_FC, sTMP)
        A(f"s_load_dword s6, s[10:11], 0 glc")
    A(f"s_bitcmp1_b32 s{sKB0}, 1")
    A(f"s_cselect_b32 s{sTMP}, 12, 8")
    A("s_waitcnt lgkmcnt(0)")
    if opt.fgate: A("s_add_u32 s6, s6, 32")
    A("s_add_u32 s4, s4, 64")
    A(f"s_add_u32 s5, s5, s{sTMP}")
    if opt.fgate: A("s_mov_b32 s9, s6")
    for k, l in touch:
        if k in "AM": A(f"s_call_b64 s[6:7], {l}")
    if opt.qhint:
        wait_prog(False, opt.qgate, sleep=2)
        stamp(2)
        pollcnt(sGB, 4, opt.psleep, cntstamp=10)
        signal(F_QRDY)
        stamp(3)
    wait_prog(False, opt.hgate, sleep=2)
    stamp(4)
    pollcnt(sGA, 5, opt.psleep, cntstamp=11)
    signal(F_LRDY)
    stamp(5)
    A("s_barrier")
    if opt.fgate:
        stamp(6)
        pollcnt(10, 9, 0, cntstamp=12)
        if opt.fbar: A("s_barrier")
        else: signal(F_FRDY)
        stamp(7)

    A("L_exit:")
    if STAMP:
        A("s_waitcnt lgkmcnt(0)")
        A(f"s_mul_i32 s{sTMP}, s2, {NWAVES}")
        A(f"s_add_u32 s{sTMP}, s{sTMP}, s3")
        A(f"s_lshl_b32 s{sTMP}, s{sTMP}, 6")
        A(f"s_add_u32 s{sTMP}, s{sTMP}, {WS_STAMP}")
        A(f"v_mov_b32 v1, s{sTMP}")
        A("s_mov_b64 exec, 1")
        for i in range(NST if STAMP == 1 else 10):
            A(f"v_mov_b32 v2, s{sST+2*i}")
            A(f"global_store_dword v1, v2, s[{sWS}:{sWS+1}] offset:{4*i}")
        A(f"v_mov_b32 v2, s{sROLE}")
        A(f"global_store_dword v1, v2, s[{sWS}:{sWS+1}] offset:60")
    A("L_end:")
    A("s_endpgm")

    body = "\n".join(g.o)
    PADTXT = f".p2align 12\n.fill {opt.pad//4}, 4, 0xbf810000\n" if opt.pad >= 0 else ""
    txt = HEADER
    txt += f"; @launch grid=(256,1,1) block=({64*NWAVES},1,1) lds={LDS_BYTES}\n"
    txt += f""".amdgcn_target "amdgcn-amd-amdhsa--gfx950"
.text
.globl {KNAME}
{PADTXT}.p2align 8
.type {KNAME},@function
{KNAME}:
{body}
.section .rodata,"a"
.p2align 6
.amdhsa_kernel {KNAME}
  .amdhsa_next_free_vgpr {NV}
  .amdhsa_next_free_sgpr 102
  .amdhsa_accum_offset {NV}
  .amdhsa_group_segment_fixed_size 0
  .amdhsa_kernarg_size 104
  .amdhsa_user_sgpr_count 2
  .amdhsa_user_sgpr_kernarg_segment_ptr 1
  .amdhsa_system_sgpr_workgroup_id_x 1
.end_amdhsa_kernel
"""
    return txt

def parse(argv):
    ap = argparse.ArgumentParser()
    ap.add_argument("--nt", default="nt")
    ap.add_argument("--pb", default="20:24,8:22")
    ap.add_argument("--pc", default="4:20,d,3:4,5:12")
    ap.add_argument("--pm", default="20:24,7:20")
    ap.add_argument("--nb0", type=int, default=3)
    ap.add_argument("--stamp", type=int, default=0)
    ap.add_argument("--stq", type=int, default=0)
    ap.add_argument("--fdelay", type=int, default=0)
    ap.add_argument("--qgate", type=int, default=9)
    ap.add_argument("--ogate", type=int, default=19)
    ap.add_argument("--ogatec", type=int, default=26)
    ap.add_argument("--hgate", type=int, default=19)
    ap.add_argument("--ggate", type=int, default=1)
    ap.add_argument("--maxpoll", type=int, default=100000)
    ap.add_argument("--psleep", type=int, default=0)
    ap.add_argument("--fsleep", type=int, default=2)
    ap.add_argument("--gsleep", type=int, default=0)
    ap.add_argument("--fgsleep", type=int, default=0)
    ap.add_argument("--sample", type=int, default=0)
    ap.add_argument("--outflags", default="sc1")
    ap.add_argument("--fixdur", type=int, default=0)
    ap.add_argument("--fixwg", type=int, default=128)
    ap.add_argument("--nocomm", type=int, default=0)
    ap.add_argument("--dbg", type=int, default=0)
    ap.add_argument("--cpf", type=int, default=2)
    ap.add_argument("--qlead", type=int, default=-1)
    ap.add_argument("--hlead", type=int, default=-1)
    ap.add_argument("--olead", type=int, default=-1)
    ap.add_argument("--oearly", type=int, default=0)
    ap.add_argument("--flagwave", type=int, default=1)
    ap.add_argument("--xgat", type=int, default=10)
    ap.add_argument("--nrep", type=int, default=8)
    ap.add_argument("--satom", type=int, default=1)
    ap.add_argument("--maxhint", type=int, default=20)
    ap.add_argument("--hround", type=int, default=0)
    ap.add_argument("--fgate", type=int, default=0)
    ap.add_argument("--frep", type=int, default=8)
    ap.add_argument("--flag_delay", type=int, default=1)
    ap.add_argument("--qhint", type=int, default=0)
    ap.add_argument("--qsleep", type=int, default=4)
    ap.add_argument("--lcnt", type=int, default=0)
    ap.add_argument("--lthr", type=int, default=16)
    ap.add_argument("--spec", type=int, default=0)
    ap.add_argument("--ackst", type=int, default=0)
    ap.add_argument("--cstride", type=int, default=640)
    ap.add_argument("--midahead", type=int, default=1)
    ap.add_argument("--fine", type=int, default=0)
    ap.add_argument("--pad", type=lambda x: int(x, 0), default=0xd00)
    ap.add_argument("--touch", type=int, default=0)
    ap.add_argument("--sbias", type=int, default=0)
    ap.add_argument("--period", type=int, default=0)
    ap.add_argument("--toff", type=int, default=650)
    ap.add_argument("--qsync", type=int, default=0)
    ap.add_argument("--lprio", type=int, default=3)
    ap.add_argument("--cprio", type=int, default=0)
    ap.add_argument("--gprio", type=int, default=0)
    ap.add_argument("--kvmode", default="lin")
    ap.add_argument("--kvrot", type=int, default=4)
    ap.add_argument("--rotw", type=int, default=1)
    ap.add_argument("--lrot", type=int, default=3)
    ap.add_argument("--lflow", type=int, default=2)
    ap.add_argument("--wmin", type=int, default=27)
    ap.add_argument("--notif", type=int, default=1)
    ap.add_argument("--ndelay", type=int, default=0)
    ap.add_argument("--odelay", type=int, default=0)
    ap.add_argument("--pdelay", type=int, default=6)
    ap.add_argument("--nprogh", type=int, default=20)
    ap.add_argument("--nprogo", type=int, default=20)
    ap.add_argument("--gran", type=int, default=2)
    ap.add_argument("--barpos", type=int, default=1)
    ap.add_argument("--fsat", type=int, default=1)
    ap.add_argument("--gok", type=int, default=7)
    ap.add_argument("--fbar", type=int, default=1)
    ap.add_argument("--specw", type=int, default=1)
    ap.add_argument("--fearly", type=int, default=0)
    ap.add_argument("--tlb", type=int, default=0)
    ap.add_argument("--cpfc", type=int, default=0)
    ap.add_argument("--stlb", type=int, default=7)
    ap.add_argument("--vtouch", type=int, default=0)
    ap.add_argument("--probe", type=int, default=-1)
    ap.add_argument("-o", default=None)
    return ap.parse_args(argv)

if __name__ == "__main__":
    opt = parse(sys.argv[1:])
    t = gen(opt)
    if opt.o: open(opt.o, "w").write(t)
    else: print(t)
```

```python
import sys, argparse, struct, math

KNAME = "gated_mix__sliding_block_cached__glu_gated_reglu__decode_kernel"
HEADER = open("gated_mix__sliding_block_cached__glu_gated_reglu__decode.s.ref").read().split("; Override launch")[0]

RA = 0
RB = 65536
XA = 131072
RQ = RB + 32768
XF = XA
QF = XA + 2048
PF = XA + 4096
RS = XA + 8192
ST = XA + 10240
AF = XA + 12288
FL = XA + 16384
F_PROG, F_LRDY, F_QRDY, F_WRDY, F_BQ, F_BM, F_BP, F_BA, F_RED, F_PUB0, F_PUB1, F_FREE0, F_FREE1, F_ERD, F_FRDY = [4*i for i in range(15)]
F_MAX = 64
F_G = 96
F_WT = 128
LDS_BYTES = FL + 128 + 256

WS_QP = 512 << 10
WS_FP = 1024 << 10
WS_OP = 1536 << 10
WS_GP = 1792 << 10
WS_LSE = 16 << 10
WS_QC = 64 << 10
WS_OC = 160 << 10
WS_HC = 256 << 10
WS_FC = 352 << 10
WS_STAMP = 8 << 20

class G:
    def __init__(self):
        self.o = []; self.nlab = 0
    def A(self, s):
        for line in s.split("\n"):
            self.o.append("    " + line.strip() if not line.strip().endswith(":") else line.strip())
    def lab(self, p="L"):
        self.nlab += 1
        return f"{p}_{self.nlab}"

def plan(s):
    out = []
    for t in s.split(","):
        if t == "d": out.append("d")
        else:
            a, b = t.split(":")
            out.append((int(a), tuple(int(x) for x in b.split("/")) if "/" in b else int(b)))
    return out

def gen(opt):
    g = G(); A = g.A
    CS = opt.cstride
    NWAVES = 11 if opt.notif else 10
    POL = {k: ('nt' if c == 'n' else '') for k, c in zip(('q','k','v','g','o','d'), opt.pol)}
    cur = ['q']
    STAMP = opt.stamp
    sX, sK, sV, sWQ, sWO, sBX, sWG, sWU = [16+2*i for i in range(8)]
    sWD, sGW, sOUT, sDBG = 32, 34, 36, 38
    sWS = 40
    sXCD, sR, sROLE = 42, 43, 44
    sU, sBETA, sG, sSPL, sRBK, sCB, sBB = 45, 46, 47, 48, 49, 50, 51
    sKS, sKB0 = 100, 101
    sLR = 53
    sWDN = 52
    sT = 54
    sT0, sT1, sT2, sT3 = 54, 56, 57, 53
    sSEL0, sSEL1, sSEL2, sSEL3 = 58, 59, 60, 61
    sPROG, sC = 62, 63
    sTMP, sTMP2, sTMP3, sCNT = 64, 65, 66, 67
    sGA, sGB = 68, 70
    sROT = 15
    sSM = 4
    sST = 72
    NST = 14
    SRD = 8
    def stamp(idx, key=False):
        if opt.probe == idx and not key: A("s_memrealtime s[96:97]")
        if STAMP == 1 or (STAMP and (key or idx == 0)): A(f"s_memrealtime s[{sST+2*idx}:{sST+2*idx+1}]")
    touch = []
    def pad(kind):
        if not opt.touch: return
        l = g.lab("L_tp"); touch.append((kind, l))
        A(f"{l}:")
        A("s_setpc_b64 s[6:7]")
    def stampval(idx, sreg):
        if STAMP == 1: A(f"s_mov_b32 s{sST+2*idx}, s{sreg}")
    pb, pc, pm = plan(opt.pb), plan(opt.pc), plan(opt.pm)
    NB0 = opt.nb0
    assert NB0 <= 3

    stamp(0)
    if opt.fixdur: A("s_memrealtime s[98:99]")
    A("s_load_dwordx16 s[16:31], s[0:1], 0")
    A("s_load_dwordx8 s[32:39], s[0:1], 64")
    A("s_load_dwordx2 s[40:41], s[0:1], 96")
    A(f"s_cmp_ge_u32 s2, 256")
    A("s_cbranch_scc1 L_end")
    A("v_lshrrev_b32 v1, 6, v0")
    A("v_and_b32 v0, 63, v0")
    A("v_readfirstlane_b32 s3, v1")
    A(f"s_and_b32 s{sXCD}, s2, 7")
    A(f"s_lshr_b32 s{sR}, s2, 3")
    A(f"s_lshr_b32 s{sG}, s{sXCD}, 1")
    A(f"s_and_b32 s{sTMP3}, s{sXCD}, 1")
    A(f"s_add_u32 s{sROT}, s{sR}, s{2 if opt.rotw else sXCD}")
    A(f"s_lshl_b32 s{sTMP}, s{sXCD}, 1")
    A(f"s_sub_u32 s{sTMP}, s{sR}, s{sTMP}")
    A(f"s_sub_u32 s{sTMP}, s{sTMP}, 4")
    A(f"s_bfe_u32 s{sTMP2}, s{sTMP}, 0x20002")
    A(f"s_and_b32 s{sTMP}, s{sTMP}, 3")
    A(f"s_lshl2_add_u32 s{sU}, s{sTMP}, s{sTMP2}")
    A(f"s_cmp_ge_u32 s{sR}, 16")
    A(f"s_cselect_b32 s{sU}, s{sR}, s{sU}")
    A(f"s_lshr_b32 s{sTMP}, s{sU}, 3")
    A(f"s_lshl2_add_u32 s{sKS}, s{sTMP3}, s{sTMP}")
    A("s_cmp_lg_u32 s3, 0")
    A("s_cbranch_scc1 L_notloader")
    sSOFF, sSTEP, sNB, sBLK = 4, 5, 6, 7
    sIDX, sWRAP, sBASE = 12, 13, 14
    sNOW, sDL = 56, 58
    TIMED = "/" in (opt.pb + opt.pm + opt.pc)
    if TIMED: A(f"s_memrealtime s[{sNOW}:{sNOW+1}]")
    A(f"s_setprio {opt.lprio}")
    A(f"v_mov_b32 v9, {FL}")
    A("v_mov_b32 v10, 0xff7fffff")
    A("v_cmp_gt_u32 vcc, 16, v0")
    A("v_lshl_add_u32 v11, v0, 2, v9")
    A("v_lshrrev_b32 v2, 4, v0")
    A("v_cndmask_b32 v10, v10, 0, vcc")
    A("ds_write_b32 v11, v10")
    A("v_bfe_u32 v3, v0, 1, 3")
    A("v_xor_b32 v3, v3, v2")
    A("v_lshlrev_b32 v3, 5, v3")
    A("v_and_b32 v4, 1, v0")
    A("v_lshl_or_b32 v3, v4, 4, v3")
    A("v_xor_b32 v4, 0x80, v3")
    A("v_lshl_add_u32 v5, v2, 13, v3")
    A("v_lshl_add_u32 v6, v2, 13, v4")
    A(f"s_mov_b32 s{SRD+3}, 0x20000")
    A(f"s_and_b32 s{sTMP}, s{sU}, 7")
    A(f"s_lshl3_add_u32 s{sTMP}, s{sG}, s{sTMP}")
    A(f"s_lshl_b32 s{sTMP}, s{sTMP}, 8")
    A(f"s_lshl_b32 s{sSOFF}, s{sKS}, 20")
    A(f"s_add_u32 s{sSOFF}, s{sSOFF}, s{sTMP}")
    A(f"s_mov_b32 s{SRD+2}, {1024*4096*2}")
    A(f"s_mov_b32 s{sNB}, {NB0}")
    A(f"s_mov_b32 s{sSTEP}, {4*8192}")
    A(f"s_mov_b32 m0, {RQ}")
    A(f"s_mov_b32 s{sBLK}, {NB0}")
    if opt.fine == 2: stamp(5)
    A("s_waitcnt lgkmcnt(0)")
    if opt.fine == 2: stamp(6)
    A(f"s_mov_b64 s[{SRD}:{SRD+1}], s[{sWQ}:{sWQ+1}]")
    if TIMED: A(f"s_mov_b32 s{sDL}, s{sNOW}")
    if opt.barpos == 0: A("s_barrier")
    if opt.fine == 2: stamp(7)
    def blk_body(win, rot):
        GR = opt.gran
        if win is not None:
            assert win % GR == 0
            pj = win % 8
            back = (win - pj) // 8
        for j in range(8):
            half, i = j >> 2, j & 3
            if win is not None and j % GR == 0:
                if j == pj:
                    A(f"s_sub_u32 s{sTMP}, s{sBLK}, {back}")
                    A(f"s_max_i32 s{sPROG}, s{sTMP}, s{sPROG}")
                    A(f"v_mov_b32 v10, s{sPROG}")
                A(f"s_waitcnt vmcnt({win})")
                if j == pj: A(f"ds_write_b32 v9, v10 offset:{F_PROG}")
            v = 5 if ((i >> 1) & 1) == 0 else 6
            A(f"buffer_load_dwordx4 v{v}, s[{SRD}:{SRD+3}], s{sSOFF} offen {POL[cur[0]]} lds")
            A(f"s_add_u32 m0, m0, 1024")
            if rot == "kv":
                st = {"lin": 1024, "tr1": 8192 + (1024 if (half, i) == (1, 3) else 0),
                      "tr2": (1024 if i % 2 == 0 else 15360) + (2048 if (half, i) == (1, 3) else 0)}[opt.kvmode]
                A(f"s_add_u32 s{sIDX}, s{sIDX}, {st}")
                A(f"s_pack_lh_b32_b16 s{sSOFF}, s{sIDX}, s{sSOFF}")
            else:
                A(f"s_add_u32 s{sSOFF}, s{sSOFF}, s{sSTEP}")
        if rot == 7:
            A(f"s_add_u32 s{sIDX}, s{sIDX}, 1")
            A(f"s_cmp_eq_u32 s{sIDX}, 7")
            A(f"s_cselect_b32 s{sTMP}, {7*65536}, 0")
            A(f"s_sub_u32 s{sSOFF}, s{sSOFF}, s{sTMP}")
        if rot is True:
            A(f"s_add_u32 s{sIDX}, s{sIDX}, 1")
            A(f"s_and_b32 s{sIDX}, s{sIDX}, 7")
            A(f"s_cselect_b32 s{sTMP}, 0, s{sWRAP}")
            A(f"s_sub_u32 s{sSOFF}, s{sSOFF}, s{sTMP}")
    if opt.barpos == 1:
        blk_body(None, False)
        A("s_barrier")
        A(f"s_mov_b32 s{sNB}, {NB0-1}")
    A("L_top_loop:")
    blk_body(None, False)
    A(f"s_sub_u32 s{sNB}, s{sNB}, 1")
    A(f"s_cmp_lg_u32 s{sNB}, 0")
    A("s_cbranch_scc1 L_top_loop")
    if opt.barpos == 2: A("s_barrier")
    A("s_branch L_loader2")
    A("L_notloader:")
    if opt.stlb:
        A("s_cmp_eq_u32 s3, 10")
        A("s_cbranch_scc1 L_loader2")
    if opt.cpf:
        A(f"s_cmp_gt_u32 s3, {opt.cpf}")
        A("s_cbranch_scc1 L_cpf_done")
        if opt.cpfc:
            A(f"s_cmp_lg_u32 s{sR}, 14")
            A("s_cbranch_scc1 L_cpf_done")
        A("s_getpc_b64 s[4:5]")
        A("L_pc:")
        A(f"s_lshl_b32 s{sTMP}, s3, 13")
        A(f"s_sub_u32 s{sTMP}, s{sTMP}, 8192")
        A(f"v_lshl_add_u32 v1, v0, 7, s{sTMP}")
        A(f"v_cmp_gt_u32 vcc, L_end-L_pc, v1")
        A("s_and_saveexec_b64 s[6:7], vcc")
        A("s_cbranch_execz L_cpf_done2")
        A(f"global_load_dword v127, v1, s[4:5]")
        A("L_cpf_done2:")
        A("s_mov_b64 exec, -1")
        A("L_cpf_done:")
    A("s_barrier")
    A("s_branch L_cons")

    def decode2(keep=False):
        d = g.lab("L_d2"); m = g.lab("L_d2m")
        if STAMP:
            for i in range(1, NST):
                if not (opt.fine == 2 and keep and i in (5, 6, 7)): A(f"s_mov_b32 s{sST+2*i}, 0")
        A(f"s_mul_i32 s{sBETA}, s{sXCD}, 14")
        A(f"s_add_u32 s{sBETA}, s{sBETA}, s{sR}")
        A(f"s_mov_b32 s{sPROG}, 0")
        A(f"s_cmp_ge_u32 s{sR}, 16")
        A(f"s_cbranch_scc1 {m}")
        A(f"s_cmp_ge_u32 s{sR}, 14")
        A(f"s_cselect_b32 s{sROLE}, 2, 1")
        A(f"s_lshr_b32 s{sTMP}, s{sU}, 3")
        A(f"s_lshl1_add_u32 s{sRBK}, s{sXCD}, s{sTMP}")
        A(f"s_add_u32 s{sTMP}, s{sU}, 3")
        A(f"s_and_b32 s{sTMP}, s{sTMP}, 3")
        A(f"s_and_b32 s{sCB}, s{sU}, 4")
        A(f"s_or_b32 s{sCB}, s{sCB}, s{sTMP}")
        A(f"s_lshl_b32 s{sKB0}, s{sRBK}, 3")
        A(f"s_add_u32 s{sLR}, s{sR}, s{sXCD}")
        A(f"s_and_b32 s{sLR}, s{sLR}, {7 if opt.lrot & 1 else 0}")
        A(f"s_branch {d}")
        A(f"{m}:")
        A(f"s_mov_b32 s{sROLE}, 0")
        A(f"s_and_b32 s{sTMP}, s{sXCD}, 1")
        A(f"s_bfe_u32 s{sBB}, s{sR}, 0x20002")
        A(f"s_lshl2_add_u32 s{sBB}, s{sTMP}, s{sBB}")
        A(f"s_and_b32 s{sSPL}, s{sR}, 3")
        A(f"s_bfe_u32 s{sTMP}, s{sR}, 0x10003")
        A(f"s_lshl1_add_u32 s{sRBK}, s{sXCD}, s{sTMP}")
        A(f"s_mul_i32 s{sKB0}, s{sRBK}, 7")
        A(f"s_and_b32 s{sLR}, s{sR}, {7 if opt.lrot & 2 else 0}")
        A(f"s_cmp_eq_u32 s{sLR}, 7")
        A(f"s_cselect_b32 s{sLR}, 3, s{sLR}")
        A(f"s_add_u32 s{sCB}, s{sR}, 1")
        A(f"s_and_b32 s{sCB}, s{sCB}, 7")
        A(f"{d}:")

    A("L_loader2:")
    decode2(True)
    if opt.stlb:
        A("s_cmp_eq_u32 s3, 0")
        A("s_cbranch_scc1 L_loader3")
        A(f"v_mov_b32 v9, {FL}")
        if STAMP:
            for i in (5, 6, 7): A(f"s_mov_b32 s{sST+2*i}, 0")
        A("s_waitcnt lgkmcnt(0)")
        if opt.stlb & 4:
            A(f"s_lshl_b32 s{sTMP}, s2, 6")
            A(f"s_load_dword s8, s[{sX}:{sX+1}], s{sTMP}")
            A(f"s_lshl_b32 s{sTMP}, s{sR}, 6")
            A(f"s_load_dword s9, s[{sGW}:{sGW+1}], s{sTMP}")
        A(f"s_lshl_b32 s{sTMP}, s{sKB0}, 16")
        A(f"s_lshl_b32 s{sTMP2}, s{sCB}, 8")
        A(f"s_add_u32 s{sTMP}, s{sTMP}, s{sTMP2}")
        A(f"s_cmp_ge_u32 s{sR}, 16")
        A("s_cbranch_scc1 L_stM")
        A(f"s_load_dword s4, s[{sWO}:{sWO+1}], s{sTMP}")
        if opt.stlb & 2:
            A(f"s_cmp_eq_u32 s{sROLE}, 2")
            A("s_cbranch_scc1 L_stD")
            A(f"s_bitcmp0_b32 s{sBETA}, 1")
            A(f"s_cselect_b64 s[12:13], s[{sWG}:{sWG+1}], s[{sWU}:{sWU+1}]")
            A(f"s_and_b32 s{sTMP}, s{sBETA}, 1")
            A(f"s_mul_i32 s{sTMP}, s{sTMP}, {512*7168}")
            A(f"s_lshr_b32 s{sTMP2}, s{sBETA}, 2")
            A(f"s_lshl_b32 s{sTMP2}, s{sTMP2}, 8")
            A(f"s_add_u32 s{sTMP}, s{sTMP}, s{sTMP2}")
            for i in range(3):
                A(f"s_load_dword s{5+i}, s[12:13], s{sTMP}")
                A(f"s_add_u32 s{sTMP}, s{sTMP}, {255*7168}")
        A("s_branch L_stD")
        A("L_stM:")
        A(f"s_load_dword s4, s[{sWD}:{sWD+1}], s{sTMP}")
        A(f"s_add_u32 s{sTMP}, s{sTMP}, {223*2048}")
        A(f"s_load_dword s10, s[{sWD}:{sWD+1}], s{sTMP}")
        A(f"s_lshl2_add_u32 s{sTMP}, s{sBB}, s{sG}")
        A(f"s_lshl4_add_u32 s{sTMP}, s{sTMP}, s{sSPL}")
        A(f"s_add_u32 s{sTMP}, s{sTMP}, 12")
        A(f"s_lshl_b32 s{sTMP}, s{sTMP}, 16")
        if opt.stlb & 2: A(f"s_load_dword s7, s[{sK}:{sK+1}], s{sTMP}")
        A(f"s_load_dword s5, s[{sV}:{sV+1}], s{sTMP}")
        A(f"s_lshl_b32 s{sTMP}, s{sR}, 9")
        A(f"s_lshl_b32 s{sTMP2}, s{sXCD}, 6")
        A(f"s_add_u32 s{sTMP}, s{sTMP}, s{sTMP2}")
        A(f"s_load_dword s6, s[{sOUT}:{sOUT+1}], s{sTMP} glc")
        A("L_stD:")
        pass
        A("s_barrier")
        A("s_waitcnt lgkmcnt(0)")
        A("s_branch L_notif")
        A("L_loader3:")
    stamp(1)
    def lds_wait_ge(off, val, vtmp="v11", vaddr="v9", sleep=0):
        l = g.lab("L_w")
        A(f"{l}:")
        if sleep: A(f"s_sleep {sleep}")
        A(f"ds_read_b32 {vtmp}, {vaddr} offset:{off}")
        A("s_waitcnt lgkmcnt(0)")
        A(f"v_readfirstlane_b32 s{sTMP}, {vtmp}")
        A(f"s_cmp_ge_u32 s{sTMP}, {val}")
        A(f"s_cbranch_scc0 {l}")
    def wmax(w): return max(w) if isinstance(w, tuple) else w
    def blk_loop(nblk, win, rot):
        l = g.lab("L_ld")
        if nblk > 1:
            A(f"s_mov_b32 s{sNB}, {nblk}")
            A(f"{l}:")
        if isinstance(win, tuple):
            hi = g.lab("L_hi"); j = g.lab("L_jn")
            A(f"s_memrealtime s[{sNOW}:{sNOW+1}]")
            A(f"s_mul_i32 s{sTMP2}, s{sBLK}, {opt.period}")
            A(f"s_add_u32 s{sTMP2}, s{sTMP2}, {opt.toff}")
            A("s_waitcnt lgkmcnt(0)")
            A(f"s_sub_u32 s{sTMP}, s{sNOW}, s{sDL}")
            A(f"s_cmp_gt_u32 s{sTMP}, s{sTMP2}")
            A(f"s_cbranch_scc1 {hi}")
            for k in range(3, win[0]//8, -1):
                A(f"s_sub_u32 s{sTMP}, s{sBLK}, {k}")
                A(f"s_max_i32 s{sPROG}, s{sTMP}, s{sPROG}")
                A(f"v_mov_b32 v10, s{sPROG}")
                A(f"s_waitcnt vmcnt({8*k})")
                A(f"ds_write_b32 v9, v10 offset:{F_PROG}")
            blk_body(win[0], False)
            A(f"s_branch {j}")
            A(f"{hi}:")
            blk_body(win[1], False)
            A(f"{j}:")
            assert not rot
        else:
            blk_body(win, rot)
        A(f"s_add_u32 s{sBLK}, s{sBLK}, 1")
        if nblk > 1:
            A(f"s_sub_u32 s{sNB}, s{sNB}, 1")
            A(f"s_cmp_lg_u32 s{sNB}, 0")
            A(f"s_cbranch_scc1 {l}")
    def drain(maxwin, kmin=0):
        for k in range((maxwin + 4 + 7)//8 - 1, kmin - 1, -1):
            A(f"s_sub_u32 s{sTMP}, s{sBLK}, {k}")
            A(f"s_max_i32 s{sPROG}, s{sTMP}, s{sPROG}")
            A(f"v_mov_b32 v10, s{sPROG}")
            A(f"s_waitcnt vmcnt({8*k})")
            A(f"ds_write_b32 v9, v10 offset:{F_PROG}")
    def set_stride(stride):
        A(f"s_mov_b32 s{sSTEP}, {4*stride}")
        if stride & (stride-1) == 0:
            sh = stride.bit_length()-1
            A(f"v_lshl_add_u32 v5, v2, {sh}, v3")
            A(f"v_lshl_add_u32 v6, v2, {sh}, v4")
        else:
            A(f"v_mul_u32_u24 v8, {stride}, v2")
            A("v_add_u32 v5, v8, v3")
            A("v_add_u32 v6, v8, v4")
        A(f"s_mov_b32 s{sWRAP}, {256*stride}")
    XSRD = 68
    def xloads(n, ldsbase):
        for j in range(4):
            A(f"s_add_u32 s{sTMP}, s{sROT}, {2*j}")
            A(f"s_and_b32 s{sTMP}, s{sTMP}, 7")
            A(f"s_lshl_b32 s{sTMP}, s{sTMP}, 6")
            A(f"s_add_u32 s{sTMP}, s{sTMP}, s{sTMP3}")
            for q in range(n//4):
                A(f"s_mov_b32 m0, {ldsbase + 4096*q + 1024*j - 512*q}")
                A("s_nop 0")
                A(f"buffer_load_dwordx4 v7, s[{XSRD}:{XSRD+3}], s{sTMP} offen offset:{512*q} lds")
    def run_plan(pl, segs, start, hook=None):
        blk = 0; lastwin = 0
        segmap = {x[0]: x for x in segs}
        cur[0] = 'q'
        rot = False
        items = []
        for it in pl:
            if it == "d": items.append(it); continue
            n, w = it
            while n:
                c = min(n, 4 - blk if blk < 4 else 8 - ((blk - 4) % 8))
                if blk < start: c = min(c, start - blk)
                if hook and blk < hook[0]: c = min(c, hook[0] - blk)
                if blk >= start: items.append((blk, c, w))
                blk += c; n -= c
            lastw = w
        lastwin = pl[0][1]
        for it in items:
            if it == "d":
                drain(max(wmax(lastwin), 8*start)); continue
            b0, c, w = it
            if b0 >= 4 and (b0 - 4) % 8 == 0:
                seg = (b0 - 4) // 8 + 1
                stamp(1 + seg)
                if seg >= 2: lds_wait_ge(F_FREE0 + 4*(seg-2), 8)
                if b0 in segmap:
                    segmap[b0][1](); rot = segmap[b0][2]
                elif rot:
                    A(f"s_add_u32 s{sSOFF}, s{sSOFF}, s{sWRAP}")
                A(f"s_mov_b32 m0, {RA if seg % 2 == 1 else RB}")
            if hook and b0 == hook[0]: hook[1]()
            blk_loop(c, w, rot)
            lastwin = w
        stamp(8)
        if opt.fgate:
            A(f"s_mul_i32 s{sTMP}, s{sCB}, {16*CS}")
            A(f"s_add_u32 s{sTMP}, s{sTMP}, {WS_FC}")
            A(f"s_add_u32 s4, s{sWS}, s{sTMP}")
            A(f"s_addc_u32 s5, s{sWS+1}, 0")
            A(f"v_mul_u32_u24 v5, {CS}, v0")
            A("v_mov_b32 v6, 1")
        drain(max(wmax(x[1]) for x in pl if x != "d"), 1 if opt.fearly else 0)
        if not opt.fearly: stamp(9)
        A("s_branch L_ld_end")
    def late_seg(ptr, nbytes):
        def f():
            cur[0] = 'o' if ptr == sWO else 'd'
            set_stride(2048)
            A(f"s_mov_b64 s[{SRD}:{SRD+1}], s[{ptr}:{ptr+1}]\ns_mov_b32 s{SRD+2}, {nbytes}")
            A(f"s_mov_b32 s{sIDX}, s{sLR}")
            A(f"s_add_u32 s{sSOFF}, s{sKB0}, s{sLR}")
            A(f"s_lshl_b32 s{sSOFF}, s{sSOFF}, 16")
            A(f"s_lshl_b32 s{sTMP}, s{sCB}, 8")
            A(f"s_add_u32 s{sSOFF}, s{sSOFF}, s{sTMP}")
        return f
    A("v_and_b32 v7, 7, v0")
    A("v_lshlrev_b32 v7, 11, v7")
    A("v_lshrrev_b32 v8, 3, v0")
    A("v_lshl_add_u32 v7, v8, 4, v7")
    A(f"s_mov_b64 s[{XSRD}:{XSRD+1}], s[{sX}:{sX+1}]\ns_mov_b32 s{XSRD+2}, 16384\ns_mov_b32 s{XSRD+3}, 0x20000")
    A(f"s_lshl_b32 s{sTMP3}, s{sKS}, 8")
    A(f"s_mov_b32 m0, {XF}")
    A("s_nop 0")
    A(f"buffer_load_dwordx4 v7, s[{XSRD}:{XSRD+3}], s{sTMP3} offen lds")
    A(f"s_mov_b32 m0, {XF + 1024 - 128}")
    A("s_nop 0")
    A(f"buffer_load_dwordx4 v7, s[{XSRD}:{XSRD+3}], s{sTMP3} offen offset:128 lds")
    A(f"s_mov_b32 m0, {RQ + 8192*NB0}")
    A(f"s_cmp_ge_u32 s{sR}, 16")
    A("s_cbranch_scc1 L_ld_M")
    def b_seg1():
        cur[0] = 'g'
        A(f"s_and_b32 s{sROT}, s{sROT}, 6")
        A(f"s_mov_b32 s{sIDX}, s{sROT}")
        A(f"s_and_b32 s{sTMP2}, s{sBETA}, 1")
        set_stride(7168)
        A(f"s_mul_i32 s{sSOFF}, s{sTMP2}, {512*7168}")
        A(f"s_lshr_b32 s{sTMP}, s{sBETA}, 2")
        A(f"s_lshl_b32 s{sTMP}, s{sTMP}, 8")
        A(f"s_add_u32 s{sSOFF}, s{sSOFF}, s{sTMP}")
        A(f"s_mul_i32 s{sTMP}, s{sROT}, {32*7168}")
        A(f"s_add_u32 s{sSOFF}, s{sSOFF}, s{sTMP}")
        A(f"s_bitcmp0_b32 s{sBETA}, 1")
        A(f"s_cselect_b64 s[{SRD}:{SRD+1}], s[{sWG}:{sWG+1}], s[{sWU}:{sWU+1}]")
        A(f"s_mov_b32 s{SRD+2}, {1024*3584*2}")
    A(f"s_cmp_eq_u32 s{sROLE}, 2")
    A("s_cbranch_scc1 L_ld_C")
    assert sum(x[0] for x in pb if x != "d") == 28
    XGAT = opt.xgat
    def xg_hook():
        A(f"s_and_b32 s{sTMP3}, s{sBETA}, 1")
        A(f"s_lshl_b32 s{sTMP3}, s{sTMP3}, 10")
        xloads(8, XF + 2048)
        A(f"s_mov_b32 m0, {RA + 8192*(XGAT-4)}")
    run_plan(pb, [(4, b_seg1, True), (20, late_seg(sWO, 4096*1024*2), True)], NB0, hook=(XGAT, xg_hook))
    A("L_ld_C:")
    assert sum(x[0] for x in pc if x != "d") == 12 and pc[1] == "d" and pc[0][0] == 4
    def c_seg1():
        late_seg(sWO, 4096*1024*2)()
        A(f"s_mov_b32 s{sBLK}, 20")
    run_plan(pc, [(4, c_seg1, True)], NB0)
    A("L_ld_M:")
    def m_seg1():
        cur[0] = 'k'
        set_stride(256)
        A(f"s_mul_i32 s{sROT}, s{sROT}, {opt.kvrot*1024}")
        A(f"s_mov_b32 s{sIDX}, s{sROT}")
        A(f"s_lshl2_add_u32 s{sTMP}, s{sBB}, s{sG}")
        A(f"s_lshl4_add_u32 s{sTMP}, s{sTMP}, s{sSPL}")
        A(f"s_add_u32 s{sTMP}, s{sTMP}, 12")
        A(f"s_pack_ll_b32_b16 s{sSOFF}, s{sIDX}, s{sTMP}")
        A(f"s_mov_b64 s[{SRD}:{SRD+1}], s[{sK}:{sK+1}]\ns_mov_b32 s{SRD+2}, {8*4*4096*128*2}")
    def m_seg2():
        cur[0] = 'v'
        A(f"s_mov_b64 s[{SRD}:{SRD+1}], s[{sV}:{sV+1}]")
        A(f"s_mov_b32 s{sIDX}, s{sROT}")
        A(f"s_pack_lh_b32_b16 s{sSOFF}, s{sIDX}, s{sSOFF}")
    assert sum(x[0] for x in pm if x != "d") == 27
    run_plan(pm, [(4, m_seg1, "kv"), (12, m_seg2, "kv"), (20, late_seg(sWD, 3584*1024*2), 7)], NB0)
    A("L_ld_end:")
    if opt.nocomm: A("s_branch L_exit")
    def fbump():
        if opt.flag_delay: A(f"s_sleep {opt.flag_delay}")
        if opt.fsat:
            A("s_mov_b32 s6, 1")
            for r in range(opt.frep): A(f"s_atomic_add s6, s[4:5], {CS*r}")
        else:
            A(f"s_bfm_b64 exec, {opt.frep}, 0")
            A("global_atomic_add v5, v6, s[4:5] sc1")
            A("s_mov_b64 exec, -1")
    if opt.fearly:
        A(f"ds_read_b32 v11, v9 offset:{F_BA}")
        A(f"v_mov_b32 v10, s{sBLK}")
        A(f"s_waitcnt vmcnt({opt.fearly}) lgkmcnt(0)")
        A(f"v_readfirstlane_b32 s{sTMP}, v11")
        A(f"s_cmp_lt_u32 s{sTMP}, 8")
        A("s_cbranch_scc1 L_ld_late")
        A("s_mov_b32 s6, 1")
        for r in range(opt.frep): A(f"s_atomic_add s6, s[4:5], {CS*r}")
        A("s_waitcnt vmcnt(0)")
        A(f"ds_write_b32 v9, v10 offset:{F_PROG}")
        A("s_barrier")
        stamp(9)
        A("s_branch L_ld_fin")
        A("L_ld_late:")
        A("s_waitcnt vmcnt(0)")
        A(f"ds_write_b32 v9, v10 offset:{F_PROG}")
        stamp(9)
    if opt.fgate == 2 and not (opt.dbg & 1):
        lds_wait_ge(F_BA, opt.gok)
        fbump()
    A("s_barrier")
    if opt.fgate == 1 and not (opt.dbg & 1): fbump()
    A("L_ld_fin:")
    if opt.fgate and opt.fbar:
        A(f"s_cmp_lt_u32 s{sR}, 16")
        A("s_cbranch_scc1 L_exit")
        A("s_barrier")
    A("s_branch L_exit")

    A("L_cons:")
    vL16, vTR, vACT, vT, vPUB = 1, 2, 3, 4, 5
    vTMP, vTMP2, vTMP3 = 6, 7, 8
    vWA, vAA = 10, 11
    vW, vB, vACC, vACC2 = 12, 16, 20, 24
    vGA = 28
    vLS = 44
    vK = 52
    vQ = 84
    vRG, vRW, vRR, vOUT, vONE, vAFW, vFLG = 116, 117, 118, 119, 120, 121, 122
    vTP, vTC, vL8 = 123, 124, 125
    vSTW, vSTR = 126, 15
    vTA, vAX, vEN = 48, 49, 50
    NV = 128
    A("s_waitcnt lgkmcnt(0)")
    A(f"s_load_dword s{sT}, s[{sWS}:{sWS+1}], 0")
    decode2()
    stamp(1)
    A(f"v_mov_b32 v9, {FL}")
    if opt.notif:
        A(f"s_cmp_eq_u32 s3, 10")
        A("s_cbranch_scc1 L_notif")
    A(f"s_sub_u32 s{sC}, s3, 1")
    sSC, sM3, sMN, sEM, sRNG = 58, 60, 61, 56, 57
    A(f"s_mov_b32 s{sM3}, 0x00030003")
    A(f"s_mov_b32 s{sMN}, 0xfffcfffc")
    A(f"s_mov_b32 s{sRNG}, {27 << 23:#x}")
    A(f"v_mov_b32 v{vAX}, 0")
    A(f"v_lshlrev_b32 v{vL8}, 3, v0")
    A(f"v_mov_b32 v9, {FL}")
    A(f"v_mov_b32 v{vONE}, 1")
    A(f"v_lshlrev_b32 v{vL16}, 4, v0")
    A(f"v_mul_u32_u24 v{vFLG}, {CS}, v0")
    A(f"v_lshrrev_b32 v{vTMP2}, 4, v0")
    A(f"v_bfe_u32 v{vTMP3}, v0, 2, 2")
    A(f"v_lshl_add_u32 v{vTR}, v{vTMP2}, 3, v{vTMP3}")
    A(f"v_lshlrev_b32 v{vTR}, 8, v{vTR}")
    A(f"v_and_b32 v{vACT}, 1, v{vTMP2}")
    A(f"v_lshl_or_b32 v{vTMP3}, v{vACT}, 2, v{vTMP3}")
    A(f"v_xor_b32 v{vTMP3}, s{sC}, v{vTMP3}")
    A(f"v_lshl_or_b32 v{vTR}, v{vTMP3}, 5, v{vTR}")
    A(f"v_and_b32 v{vTMP3}, 3, v0")
    A(f"v_lshl_or_b32 v{vTR}, v{vTMP3}, 3, v{vTR}")
    A(f"v_and_b32 v{vTMP3}, 7, v0")
    A(f"v_lshl_add_u32 v{vACT}, v{vTMP2}, 3, v{vTMP3}")
    A(f"v_lshlrev_b32 v{vACT}, 4, v{vACT}")
    A(f"v_lshrrev_b32 v{vAFW}, 5, v0")
    A(f"v_lshlrev_b32 v{vAFW}, 8, v{vAFW}")
    A(f"v_and_b32 v{vTMP2}, 2, v0")
    A(f"v_lshl_or_b32 v{vAFW}, v{vTMP2}, 6, v{vAFW}")
    A(f"v_and_b32 v{vTMP2}, 28, v0")
    A(f"v_lshl_or_b32 v{vAFW}, v{vTMP2}, 2, v{vAFW}")
    A(f"v_and_b32 v{vTMP2}, 1, v0")
    A(f"v_lshl_or_b32 v{vAFW}, v{vTMP2}, 3, v{vAFW}")
    A(f"s_lshl_b32 s{sTMP}, s{sC}, 9")
    A(f"s_add_u32 s{sTMP}, s{sTMP}, {AF}")
    A(f"v_add_u32 v{vAFW}, s{sTMP}, v{vAFW}")
    def afswz(v):
        A(f"v_lshrrev_b32 v{vTMP2}, 3, v{v}")
        A(f"v_and_b32 v{vTMP2}, 0x70, v{vTMP2}")
        A(f"v_xor_b32 v{v}, v{v}, v{vTMP2}")
    afswz(vAFW)
    A("s_waitcnt lgkmcnt(0)")
    A(f"s_add_u32 s{sT}, s{sT}, 0x11111111")
    A(f"s_mov_b32 s{sT+1}, s{sT}")
    A(f"v_mov_b32 v{vT}, s{sT}")
    def tagbits(dst, vsh):
        A(f"v_lshrrev_b32 v{dst}, v{vsh}, v{vT}")
        A(f"v_and_b32 v{dst}, 15, v{dst}")
        A(f"v_lshl_or_b32 v{dst}, v{dst}, 14, v{dst}")
        A(f"v_and_b32 v{dst}, s{sM3}, v{dst}")
    A(f"v_and_b32 v{vTMP}, 7, v0")
    A(f"v_lshlrev_b32 v{vTMP}, 2, v{vTMP}")
    tagbits(vTC, vTMP)
    A(f"v_lshrrev_b32 v{vTMP}, 2, v0")
    A(f"v_and_b32 v{vTMP}, 12, v{vTMP}")
    A(f"v_and_b32 v{vTMP2}, 1, v0")
    A(f"v_lshl_or_b32 v{vTMP}, v{vTMP2}, 4, v{vTMP}")
    tagbits(vTP, vTMP)

    def refresh_prog():
        A(f"ds_read_b32 v{vTMP}, v9 offset:{F_PROG}")
        A("s_waitcnt lgkmcnt(0)")
        A(f"v_readfirstlane_b32 s{sPROG}, v{vTMP}")
    def wait_prog(val_is_sgpr, val, sleep=0):
        l = g.lab("L_wp"); d = g.lab("L_wpd")
        v = f"s{val}" if val_is_sgpr else str(val)
        A(f"s_cmp_ge_u32 s{sPROG}, {v}")
        A(f"s_cbranch_scc1 {d}")
        A(f"{l}:")
        if sleep: A(f"s_sleep {sleep}")
        refresh_prog()
        A(f"s_cmp_ge_u32 s{sPROG}, {v}")
        A(f"s_cbranch_scc0 {l}")
        A(f"{d}:")
    def signal(off):
        A("s_mov_b64 exec, 1")
        A(f"ds_add_u32 v9, v{vONE} offset:{off}")
        A("s_mov_b64 exec, -1")
    def cwait(off, val, sleep=0):
        lds_wait_ge(off, val, vtmp=f"v{vTMP}", sleep=sleep)
    def cwait_rd(off, val, nrd, reads):
        l = g.lab("L_cw")
        A(f"{l}:")
        A(f"ds_read_b32 v{vTMP}, v9 offset:{off}")
        reads()
        A(f"s_waitcnt lgkmcnt({nrd})")
        A(f"v_readfirstlane_b32 s{sTMP}, v{vTMP}")
        A(f"s_cmp_ge_u32 s{sTMP}, {val}")
        A(f"s_cbranch_scc0 {l}")
    def fbits(x): return struct.unpack("<I", struct.pack("<f", x))[0]
    ADJ = 1.0
    LQ, LO_, LG, LF = [x + opt.sbias for x in (8, 12, 10, 20)]
    def setscale(lg):
        A(f"s_mov_b32 s{sSC}, {fbits(2.0**lg):#x}")
    def encode(sc=None, tp=vTP, ta=vTA):
        src = vACC
        d = g.lab("L_en")
        scs = f"s[{sSC}:{sSC+1}]" if sc is None else f"v[{sc}:{sc+1}]"
        A(f"v_pk_mul_f32 v[{src}:{src+1}], v[{src}:{src+1}], {scs} op_sel_hi:[1,0]")
        A(f"v_pk_mul_f32 v[{src+2}:{src+3}], v[{src+2}:{src+3}], {scs} op_sel_hi:[1,0]")
        A(f"v_max3_f32 v{vTMP}, |v{src}|, |v{src+1}|, |v{src+2}|")
        A(f"v_max_f32 v{vTMP}, |v{src+3}|, v{vTMP}")
        A(f"v_subrev_u32 v{vTMP2}, {115 << 23:#x}, v{vTMP}")
        A(f"v_cmp_le_u32 vcc, s{sRNG}, v{vTMP2}")
        r = g.lab("L_er")
        A(f"{r}:")
        A(f"v_cvt_pkrtz_f16_f32 v{vEN}, v{src}, v{src+1}")
        A(f"v_cvt_pkrtz_f16_f32 v{vEN+1}, v{src+2}, v{src+3}")
        A(f"v_add_u32 v{vEN}, 0x00020002, v{vEN}")
        A(f"v_add_u32 v{vEN+1}, 0x00020002, v{vEN+1}")
        A(f"v_and_or_b32 v{vEN}, v{vEN}, s{sMN}, v{vAX}")
        A(f"v_and_or_b32 v{vEN+1}, v{vEN+1}, s{sMN}, v{tp}")
        A(f"s_cbranch_vccz {d}")
        A(f"s_call_b64 s[6:7], L_encs")
        A(f"s_branch {r}")
        A(f"{d}:")
    def publish(src, base=sGA, sc=None):
        encode(sc)
        A("s_mov_b32 exec_lo, 0x00ff00ff\ns_mov_b32 exec_hi, 0x00ff00ff")
        if not (opt.dbg & 33): A(f"global_store_dwordx2 v{vPUB}, v[{vEN}:{vEN+1}], s[{base}:{base+1}] sc1")
    NREP = opt.nrep; HREP = max(1, NREP // 4)
    sNH = 9
    def bump(kind):
        if opt.dbg & 33: return
        if opt.satom:
            A(f"s_mov_b32 s8, 1")
            if kind == "h":
                e = g.lab("L_bh")
                for r in range(HREP): A(f"s_atomic_add s8, s[{sGB}:{sGB+1}], {CS*r}")
                A(f"s_cmp_eq_u32 s{sNH}, {HREP}")
                A(f"s_cbranch_scc1 {e}")
                for r in range(HREP, 2*HREP): A(f"s_atomic_add s8, s[{sGB}:{sGB+1}], {CS*r}")
                A(f"{e}:")
            else:
                for r in range(NREP): A(f"s_atomic_add s8, s[{sGB}:{sGB+1}], {CS*r}")
        else:
            if kind == "h": A(f"s_bfm_b64 exec, s{sNH}, 0")
            else: A(f"s_bfm_b64 exec, {NREP}, 0")
            A(f"global_atomic_add v{vFLG}, v{vONE}, s[{sGB}:{sGB+1}] sc1")
    def flag(cnt, nrep, last=7):
        d = g.lab("L_fl")
        A("s_mov_b64 exec, 1")
        A(f"ds_add_rtn_u32 v{vTMP}, v9, v{vONE} offset:{cnt}")
        A("s_waitcnt lgkmcnt(0)")
        A(f"v_readfirstlane_b32 s{sTMP}, v{vTMP}")
        A(f"s_cmp_lg_u32 s{sTMP}, {last}")
        A(f"s_cbranch_scc1 {d}")
        bump(nrep)
        A(f"{d}:")
        A("s_mov_b64 exec, -1")
    def staged(cnt, last, hi_off, kind):
        d = g.lab("L_sg")
        A(f"ds_write_b64 v{vSTW}, v[{vEN}:{vEN+1}]")
        A("s_mov_b64 exec, 1")
        A(f"ds_add_rtn_u32 v{vTMP}, v9, v{vONE} offset:{cnt}")
        A("s_mov_b64 exec, -1")
        A(f"ds_read_b128 v[{vGA}:{vGA+3}], v{vSTR}")
        A(f"ds_read_b128 v[{vGA+4}:{vGA+7}], v{vSTR} offset:1024")
        A(f"v_add_u32 v{vTMP2}, {hi_off}, v{vPUB}")
        A("s_waitcnt lgkmcnt(2)")
        A(f"v_readfirstlane_b32 s{sTMP}, v{vTMP}")
        A(f"s_cmp_lg_u32 s{sTMP}, {last}")
        A(f"s_cbranch_scc1 {d}")
        A("s_waitcnt lgkmcnt(0)")
        if not (opt.dbg & 1):
            A(f"global_store_dwordx4 v{vPUB}, v[{vGA}:{vGA+3}], s[{sGA}:{sGA+1}] sc1")
            A(f"global_store_dwordx4 v{vTMP2}, v[{vGA+4}:{vGA+7}], s[{sGA}:{sGA+1}] sc1")
        if kind: bump(kind)
        A("s_mov_b64 exec, -1")
        A("s_nop 0")
        A(f"{d}:")
        A("s_waitcnt lgkmcnt(0)")
    def flag_now(nrep):
        d = g.lab("L_fn")
        A(f"s_cmp_lg_u32 s{sC}, {opt.flagwave}")
        A(f"s_cbranch_scc1 {d}")
        bump(nrep)
        A("s_mov_b64 exec, -1")
        A(f"{d}:")
    def ws_addr(dst, base_const, soff):
        A(f"s_add_u32 s{soff}, s{soff}, {base_const}")
        A(f"s_add_u32 s{dst}, s{sWS}, s{soff}")
        A(f"s_addc_u32 s{dst+1}, s{sWS+1}, 0")
    def pub_voff(shift):
        A(f"v_and_b32 v{vTMP2}, 15, v0")
        A(f"v_lshrrev_b32 v{vTMP3}, 4, v0")
        A(f"v_lshlrev_b32 v{vTMP3}, 3, v{vTMP3}")
        A(f"v_lshl_or_b32 v{vPUB}, v{vTMP2}, {shift}, v{vTMP3}")
    def sample(base, offs, sleep=0, cntstamp=None):
        l = g.lab("L_sm"); d = g.lab("L_smd"); e = g.lab("L_sme")
        if opt.dbg & 7: return
        A(f"s_mov_b32 s{sCNT}, 0")
        if sleep: A(f"s_branch {e}")
        A(f"{l}:")
        if sleep:
            A(f"s_sleep {sleep}")
            A(f"{e}:")
        for i, o in enumerate(offs):
            A(f"s_load_dword s{sSM+i}, s[{base}:{base+1}], {o} glc")
        A(f"s_add_u32 s{sCNT}, s{sCNT}, 1")
        A(f"s_cmp_gt_u32 s{sCNT}, {opt.maxpoll}")
        A("s_waitcnt lgkmcnt(0)")
        A(f"s_cbranch_scc1 {d}")
        for i in range(len(offs)):
            A(f"s_xor_b32 s{sSM+i}, s{sSM+i}, s{sT}")
            if i: A(f"s_or_b32 s{sSM}, s{sSM}, s{sSM+i}")
        A(f"s_and_b32 s{sSM}, s{sSM}, 0xff")
        A(f"s_cbranch_scc1 {l}")
        A(f"{d}:")
        if cntstamp is not None: stampval(cntstamp, sCNT)
    def pollcnt(base, target, sleep, cntstamp=None):
        l = g.lab("L_pf"); d = g.lab("L_pfd"); e = g.lab("L_pfe")
        if opt.dbg & 7: return
        A(f"s_mov_b32 s{sCNT}, 0")
        if sleep: A(f"s_branch {e}")
        A(f"{l}:")
        if sleep:
            A(f"s_sleep {sleep}")
            A(f"{e}:")
        A(f"s_load_dword s8, s[{base}:{base+1}], 0 glc")
        A(f"s_add_u32 s{sCNT}, s{sCNT}, 1")
        A(f"s_cmp_gt_u32 s{sCNT}, {opt.maxhint}")
        A("s_waitcnt lgkmcnt(0)")
        A(f"s_cbranch_scc1 {d}")
        A(f"s_cmp_eq_u32 s8, s{target}")
        A(f"s_cbranch_scc0 {l}")
        A(f"{d}:")
        if cntstamp is not None: stampval(cntstamp, sCNT)
    def gather(nld=4, mid=None, cntstamp=None, sleep=0, work=None, kind='M', defer=False):
        l = g.lab("L_ga"); d = g.lab("L_gad"); c = g.lab("L_gac"); rt = g.lab("L_gar")
        assert nld in (1, 4)
        def issue():
            if opt.dbg & 2: return
            if opt.gprio: A(f"s_setprio {opt.gprio}")
            for i in range(nld):
                A(f"global_load_dwordx2 v[{vGA+2*i}:{vGA+2*i+1}], v{vL8}, s[{sGA}:{sGA+1}] offset:{512*i} sc1")
        if mid is not None or sleep:
            issue()
            if mid is not None: mid()
            A(f"s_mov_b32 s{sEM}, s{sM3}")
            A(f"s_mov_b32 s{sCNT}, 0")
            A(f"s_branch {c}")
            pad(kind)
        else:
            A(f"s_mov_b32 s{sEM}, s{sM3}")
            A(f"s_mov_b32 s{sCNT}, 0")
        A(f"{l}:")
        if sleep: A(f"s_sleep {sleep}")
        issue()
        A(f"{c}:")
        A(f"s_add_u32 s{sCNT}, s{sCNT}, 1")
        vC, vC0 = vTMP2, vTMP
        for i in range(nld):
            A(f"s_waitcnt vmcnt({nld-1-i})")
            A(f"v_xor_b32 v{vGA+2*i+1}, v{vTC}, v{vGA+2*i+1}")
            if i == 2:
                A(f"v_or3_b32 v{vC0}, v{vGA}, v{vGA+2}, v{vGA+4}")
                A(f"v_or3_b32 v{vC}, v{vGA+1}, v{vGA+3}, v{vGA+5}")
            if i == nld-1:
                if nld == 4:
                    A(f"v_or_b32 v{vC0}, v{vC0}, v{vGA+6}")
                    A(f"v_bitop3_b32 v{vC}, v{vC}, v{vGA+7}, s{sM3} bitop3:0xa8")
                else:
                    A(f"v_and_b32 v{vC}, s{sM3}, v{vGA+1}")
                A(f"v_and_or_b32 v{vC0}, v{vC0 if nld == 4 else vGA}, s{sEM}, v{vC}")
                A(f"v_cmp_ne_u32 vcc, 0, v{vC0}")
            if work is not None and (i < nld-1 or opt.specw): work(i)
        A(f"s_cbranch_vccz {d}")
        A(f"v_cmp_ne_u32 vcc, 0, v{vC}")
        A(f"s_cbranch_vccnz {rt}")
        A(f"s_mov_b32 s{sEM}, 0")
        if defer: A(f"s_branch {d}")
        else:
            A("s_call_b64 s[6:7], L_fixr")
            A(f"s_branch {c}")
        A(f"{rt}:")
        A(f"s_cmp_le_u32 s{sCNT}, {0 if (opt.dbg & 6) else opt.maxpoll}")
        A(f"s_cbranch_scc1 {l}")
        A(f"{d}:")
        if cntstamp is not None: stampval(cntstamp, sCNT)
        if work is not None and not opt.specw: work(nld-1)
    vS0, vS1, vSCA = vGA + 12, vGA + 8, vLS
    def acc(i, dst, first):
        for r in range(4):
            c2 = "0" if first else f"v{dst+r}"
            A(f"v_fma_mix_f32 v{dst+r}, v{vGA+2*i+(r>>1)}, v{vSCA+i}, {c2} op_sel:[{r&1},0,0] op_sel_hi:[1,0,0]")
    def setsca(lg):
        for i in range(4): A(f"v_mov_b32 v{vSCA+i}, {fbits(2.0**-lg):#x}")
    def wreads(k0, k1):
        for kb in range(k0, k1):
            o = 8192*kb
            A(f"ds_read_b64_tr_b16 v[{vK+4*kb}:{vK+4*kb+1}], v{vWA} offset:{o}")
            A(f"ds_read_b64_tr_b16 v[{vK+4*kb+2}:{vK+4*kb+3}], v{vWA} offset:{o+1024}")
    def mf(kb, first):
        c = "0" if first else f"v[{vACC}:{vACC+3}]"
        A(f"v_mfma_f32_16x16x32_bf16 v[{vACC}:{vACC+3}], v[{vK+4*kb}:{vK+4*kb+3}], v[{vQ+4*kb}:{vQ+4*kb+3}], {c}")
    vAB = vW
    def actreads(n, swz=False):
        for kb in range(n):
            A(f"ds_read_b128 v[{vQ+4*kb}:{vQ+4*kb+3}], v{vAB if (swz and kb & 1) else vAA} offset:{512*kb}")
    sFA, sRA, sPE = 12, 10, 14
    def late_setup(wbase, padd, pend):
        A(f"v_add_u32 v{vWA}, {wbase}, v{vTR}")
        A(f"v_add_u32 v{vAA}, {AF}, v{vACT}")
        afswz(vAA)
        A(f"v_xor_b32 v{vAB}, 64, v{vAA}")
        A(f"v_and_b32 v{vTMP2}, 4, v0")
        A(f"v_lshlrev_b32 v{vPUB}, 10, v{vTMP2}")
        A(f"v_and_b32 v{vTMP2}, 3, v0")
        A(f"v_lshl_or_b32 v{vPUB}, v{vTMP2}, 5, v{vPUB}")
        A(f"v_lshrrev_b32 v{vTMP2}, 4, v0")
        A(f"v_lshl_or_b32 v{vPUB}, v{vTMP2}, 3, v{vPUB}")
        A(f"s_lshl3_add_u32 s{sTMP}, s{sCB}, s{sC}")
        A(f"s_lshl_b32 s{sTMP}, s{sTMP}, 6")
        A(f"s_add_u32 s{sTMP}, s{sTMP}, s{sRBK}")
        A(f"s_lshl_b32 s{sTMP}, s{sTMP}, 7")
        ws_addr(sFA, WS_FP + 128*padd, sTMP)
        A(f"s_mov_b32 s{sPE}, {pend}")
        setscale(LF)
        A(f"v_mov_b32 v{vAX}, 0")
        A(f"s_mov_b32 s{sWDN}, 21")
        A(f"s_add_u32 s{sTMP}, s{sKB0}, s{sC}")
        A(f"s_lshl_b32 s{sTMP}, s{sTMP}, 11")
    sRET = 6
    def wcatch():
        d = g.lab("L_wc")
        A(f"s_cmp_lt_u32 s{sPROG}, s{sWDN}")
        A(f"s_cbranch_scc1 {d}")
        A(f"s_call_b64 s[{sRET}:{sRET+1}], L_wcatch")
        A(f"{d}:")
    def late_wait():
        l = g.lab("L_lw"); d = g.lab("L_lwd")
        A(f"{l}:")
        A(f"ds_read_b64 v[{vTMP}:{vTMP+1}], v9 offset:{F_PROG}")
        A("s_waitcnt lgkmcnt(0)")
        A(f"v_readfirstlane_b32 s{sTMP}, v{vTMP+1}")
        A(f"v_readfirstlane_b32 s{sPROG}, v{vTMP}")
        A(f"s_cmp_lg_u32 s{sTMP}, 0")
        A(f"s_cbranch_scc1 {d}")
        wcatch()
        A(f"s_branch {l}")
        A(f"{d}:")
    def late_mid():
        A(f"s_add_u32 s{sTMP2}, s{sPROG}, {opt.midahead}")
        A(f"s_min_u32 s{sTMP2}, s{sTMP2}, s{sPE}")
        wcatch()
        wait_prog(True, sTMP2)
        wcatch()
    vPG = 126
    def late_post_issue():
        if opt.lflow == 1: A(f"ds_read_b32 v{vPG}, v9 offset:{F_PROG}")
    def late_post():
        if opt.fgate == 2: signal(F_BA)
        if opt.lflow != 1: return
        A("s_waitcnt lgkmcnt(0)")
        A(f"v_readfirstlane_b32 s{sPROG}, v{vPG}")
        wcatch()

    if opt.cprio: A(f"s_setprio {opt.cprio}")
    signal(F_ERD)
    A(f"s_cmp_eq_u32 s3, 9")
    A("s_cbranch_scc1 L_poller")
    if opt.nocomm:
        signal(F_FREE0); signal(F_FREE1)
        A("s_branch L_exit")
    def egloop(last, name, lead=None, nrep=0):
        A(f"L_eg_loop{name}:")
        A(f"ds_read_b128 v[{vB}:{vB+3}], v{vAA}")
        wait_prog(True, sCNT)
        A(f"ds_read_b64_tr_b16 v[{vW}:{vW+1}], v{vWA}")
        A(f"ds_read_b64_tr_b16 v[{vW+2}:{vW+3}], v{vWA} offset:1024")
        if lead is not None and lead >= 0:
            A(f"s_cmp_lg_u32 s{sCNT}, {last - lead}")
            A(f"s_cbranch_scc1 L_eg_nf{name}")
            flag_now(nrep)
            A(f"L_eg_nf{name}:")
        A(f"v_add_u32 v{vWA}, 8192, v{vWA}")
        A(f"v_add_u32 v{vAA}, 512, v{vAA}")
        A(f"s_add_u32 s{sCNT}, s{sCNT}, 1")
        A(f"s_cmp_le_u32 s{sCNT}, {last}")
        A("s_waitcnt lgkmcnt(0)")
        A(f"v_mfma_f32_16x16x32_bf16 v[{vACC}:{vACC+3}], v[{vW}:{vW+3}], v[{vB}:{vB+3}], v[{vACC}:{vACC+3}]")
        A(f"s_cbranch_scc1 L_eg_loop{name}")
    A(f"s_cmp_ge_u32 s{sC}, 4")
    A("s_cbranch_scc1 L_noq")
    A(f"v_and_b32 v{vTMP2}, 7, v0")
    A(f"v_lshlrev_b32 v{vSTW}, 8, v{vTMP2}")
    A(f"v_and_b32 v{vTMP2}, 8, v0")
    A(f"v_lshl_or_b32 v{vSTW}, v{vTMP2}, 2, v{vSTW}")
    A(f"v_lshrrev_b32 v{vTMP3}, 4, v0")
    A(f"v_lshl_or_b32 v{vSTW}, v{vTMP3}, 3, v{vSTW}")
    A(f"s_lshl_b32 s{sTMP}, s{sC}, 6")
    A(f"s_add_u32 s{sTMP}, s{sTMP}, {ST}")
    A(f"v_add_u32 v{vSTW}, s{sTMP}, v{vSTW}")
    A(f"v_add_u32 v{vSTR}, {ST}, v{vL16}")
    A(f"v_and_b32 v{vPUB}, 0xf0, v{vL16}")
    A(f"v_lshl_or_b32 v{vPUB}, v{vTMP3}, 16, v{vPUB}")
    A(f"v_lshlrev_b32 v{vTMP3}, 2, v{vTMP3}")
    A(f"v_lshl_or_b32 v{vTMP3}, v{vTMP2}, 1, v{vTMP3}")
    tagbits(vB, vTMP3)
    setscale(LQ)
    A(f"s_and_b32 s{sTMP3}, s{sU}, 7")
    A(f"s_lshl3_add_u32 s{sTMP}, s{sG}, s{sTMP3}")
    A(f"s_lshl3_add_u32 s{sTMP}, s{sTMP}, s{sKS}")
    A(f"s_lshl_b32 s{sTMP}, s{sTMP}, 8")
    ws_addr(sGA, WS_QP, sTMP)
    A(f"s_mul_i32 s{sTMP}, s{sG}, {32*CS}")
    ws_addr(sGB, WS_QC, sTMP)
    A(f"s_lshl_b32 s{sTMP}, s{sC}, 1")
    A(f"s_xor_b32 s{sTMP}, s{sTMP}, s{sC}")
    A(f"s_lshl_b32 s{sTMP}, s{sTMP}, 5")
    A(f"v_xor_b32 v{vWA}, s{sTMP}, v{vTR}")
    A(f"v_add_u32 v{vWA}, {RQ}, v{vWA}")
    A(f"v_xor_b32 v{vW}, 32, v{vWA}")
    A(f"v_add_u32 v{vAA}, {XF}, v{vACT}")
    A(f"v_cmp_eq_u32 s[4:5], 0, v{vTMP2}")
    cwait(F_ERD, 9, sleep=1)
    wait_prog(False, 4, sleep=1)
    if opt.qlead >= 0: flag_now("q")
    actreads(4)
    wreads(0, 4)
    for kb in range(4):
        A(f"s_waitcnt lgkmcnt({6 if kb == 0 else 6})")
        A(f"ds_read_b64_tr_b16 v[{vK+16+4*kb}:{vK+16+4*kb+1}], v{vW} offset:{8192*kb}")
        A(f"ds_read_b64_tr_b16 v[{vK+16+4*kb+2}:{vK+16+4*kb+3}], v{vW} offset:{8192*kb+1024}")
        mf(kb, kb == 0)
    A("s_mov_b64 exec, 3")
    A(f"ds_add_u32 v9, v{vONE} offset:{F_FREE0}")
    A("s_mov_b64 exec, -1")
    for kb in range(4):
        A(f"s_waitcnt lgkmcnt({7-2*kb})")
        c1 = "0" if kb == 0 else f"v[{vACC2}:{vACC2+3}]"
        A(f"v_mfma_f32_16x16x32_bf16 v[{vACC2}:{vACC2+3}], v[{vK+16+4*kb}:{vK+16+4*kb+3}], v[{vQ+4*kb}:{vQ+4*kb+3}], {c1}")
    A("s_nop 7")
    for r in range(4): A(f"v_cndmask_b32 v{vACC+r}, v{vACC2+r}, v{vACC+r}, s[4:5]")
    encode(None, vB, vB+1)
    staged(F_PUB0, 3, 4 << 16, "q" if opt.qhint else None)
    if opt.ackst:
        stamp(2); A("s_waitcnt vmcnt(0)"); stamp(5)
    A(f"v_mov_b32 v{vAX}, 0")
    A("L_noq:")
    if not opt.ackst: stamp(2)
    A(f"s_cmp_ge_u32 s{sR}, 16")
    A("s_cbranch_scc1 L_roleM")
    A(f"s_cmp_eq_u32 s{sROLE}, 2")
    A("s_cbranch_scc1 L_bc_late")
    pub_voff(5)
    setscale(LG)
    A(f"s_and_b32 s{sTMP}, s{sBETA}, -4")
    A(f"s_lshr_b32 s{sTMP2}, s{sC}, 1")
    A(f"s_add_u32 s{sTMP}, s{sTMP}, s{sTMP2}")
    A(f"s_and_b32 s{sTMP2}, s{sBETA}, 3")
    A(f"s_lshl2_add_u32 s{sTMP}, s{sTMP}, s{sTMP2}")
    A(f"s_and_b32 s{sTMP2}, s{sC}, 1")
    A(f"s_lshl1_add_u32 s{sTMP}, s{sTMP}, s{sTMP2}")
    A(f"s_lshl_b32 s{sTMP}, s{sTMP}, 8")
    ws_addr(sGA, WS_GP, sTMP)
    def hc_addr():
        A(f"s_and_b32 s{sTMP}, s{sBETA}, -4")
        A(f"s_or_b32 s{sTMP2}, s{sBETA}, 3")
        A(f"s_mul_i32 s{sTMP}, s{sTMP}, 147")
        A(f"s_mul_i32 s{sTMP2}, s{sTMP2}, 147")
        A(f"s_lshr_b32 s{sTMP}, s{sTMP}, 10")
        A(f"s_lshr_b32 s{sTMP2}, s{sTMP2}, 10")
        A(f"s_cmp_eq_u32 s{sTMP}, s{sTMP2}")
        A(f"s_cselect_b32 s{sNH}, {HREP}, {2*HREP}")
        A(f"s_mul_i32 s{sTMP}, s{sTMP}, {CS*HREP}")
        ws_addr(sGB, WS_HC, sTMP)
    if not opt.notif: hc_addr()
    for r in range(4): A(f"v_mov_b32 v{vACC+r}, 0")
    A(f"v_mov_b32 v{vWA}, v{vTR}")
    A(f"v_add_u32 v{vAA}, {XF + 2048}, v{vACT}")
    A(f"s_mov_b32 s{sCNT}, 5")
    wait_prog(False, opt.xgat + 1, sleep=1)
    egloop(12, "G1")
    signal(F_FREE1)
    stamp(3)
    egloop(20, "G2", opt.hlead, "h")
    A("s_nop 7")
    publish(vACC)
    if opt.hlead < 0 and not opt.notif: flag(F_PUB1, "h")
    else: A("s_mov_b64 exec, -1")
    stamp(6)
    if opt.ackst:
        A("s_waitcnt vmcnt(0)"); stamp(4)
    A("L_bc_late:")
    late_setup(RA, 0, 28)
    ws_addr(sGA, WS_OP, sTMP)
    A(f"s_lshl_b32 s{sTMP2}, s{sC}, 4")
    A(f"v_and_b32 v{vTMP3}, 32, v0")
    A(f"v_lshlrev_b32 v{vTMP3}, 2, v{vTMP3}")
    A(f"v_add3_u32 v{vTMP3}, v{vTMP3}, s{sTMP2}, v9")
    A(f"s_lshl_b32 s{sTMP3}, s{sLR}, 3")
    A(f"v_subrev_u32 v{vAFW}, s{sTMP3}, v0")
    A(f"v_and_b32 v{vAFW}, 62, v{vAFW}")
    A(f"v_lshlrev_b32 v{vAFW}, 6, v{vAFW}")
    A(f"v_and_b32 v{vTMP2}, 1, v0")
    A(f"v_lshl_or_b32 v{vAFW}, v{vTMP2}, 3, v{vAFW}")
    A(f"s_add_u32 s{sTMP2}, s{sTMP2}, {AF}")
    A(f"v_add_u32 v{vAFW}, s{sTMP2}, v{vAFW}")
    afswz(vAFW)
    late_wait()
    stamp(7)
    def owork(i):
        if i == 2: late_post_issue()
        if i == 3: late_post()
    gather(mid=late_mid, cntstamp=13, sleep=opt.gsleep, work=owork, kind='B', defer=True)
    if STAMP == 1: A("s_waitcnt lgkmcnt(0)")
    cwait_rd(F_WRDY, 1, 0, lambda: A(f"ds_read_b128 v[{vSCA}:{vSCA+3}], v{vTMP3} offset:{F_WT}"))
    stamp(8)
    A(f"s_cmp_lg_u32 s{sEM}, 0")
    A("s_cbranch_scc1 L_onofix")
    A("s_call_b64 s[6:7], L_fix")
    A("L_onofix:")
    for i in range(4): acc(i, vS0, i == 0)
    A("s_branch L_late")

    A("L_roleM:")
    vXr, vGWr = vK, vK + 8
    A(f"s_cmp_lt_u32 s{sC}, 4")
    A("s_cbranch_scc1 L_nogate")
    wait_prog(False, opt.ggate, sleep=1)
    A(f"s_and_b32 s{sTMP}, s{sR}, 1")
    A(f"s_lshl2_add_u32 s{sTMP}, s{sTMP}, s{sC}")
    A(f"s_sub_u32 s{sTMP3}, s{sTMP}, 4")
    A(f"s_lshl_b32 s{sTMP}, s{sTMP3}, 11")
    A(f"v_add_u32 v{vTMP3}, s{sTMP}, v{vL16}")
    for i in range(2):
        A(f"global_load_dwordx4 v[{vXr+4*i}:{vXr+4*i+3}], v{vTMP3}, s[{sX}:{sX+1}] offset:{1024*i}")
        A(f"global_load_dwordx4 v[{vGWr+4*i}:{vGWr+4*i+3}], v{vL16}, s[{sGW}:{sGW+1}] offset:{1024*i}")
    A(f"v_mov_b32 v{vACC2}, 0")
    A("s_waitcnt vmcnt(0)")
    for i in range(8):
        A(f"v_lshlrev_b32 v{vW}, 16, v{vXr+i}")
        A(f"v_and_b32 v{vW+1}, 0xffff0000, v{vXr+i}")
        A(f"v_lshlrev_b32 v{vW+2}, 16, v{vGWr+i}")
        A(f"v_and_b32 v{vW+3}, 0xffff0000, v{vGWr+i}")
        A(f"v_mul_f32 v{vW}, v{vW}, v{vW+2}")
        A(f"v_mul_f32 v{vW+1}, v{vW+1}, v{vW+3}")
        A(f"v_cvt_pk_bf16_f32 v{vW}, v{vW}, v{vW+1}")
        A(f"v_lshlrev_b32 v{vW+1}, 16, v{vW}")
        A(f"v_and_b32 v{vW}, 0xffff0000, v{vW}")
        A(f"v_add_f32 v{vACC2}, v{vACC2}, v{vW+1}")
        A(f"v_add_f32 v{vACC2}, v{vACC2}, v{vW}")
    for off in (0x041F, 0x081F, 0x101F, 0x201F, 0x401F):
        A(f"ds_swizzle_b32 v{vW}, v{vACC2} offset:{off:#x}")
        A("s_waitcnt lgkmcnt(0)")
        A(f"v_add_f32 v{vACC2}, v{vACC2}, v{vW}")
    A(f"v_mov_b32 v{vW}, v{vACC2}")
    A("s_nop 1")
    A(f"v_permlane32_swap_b32 v{vACC2}, v{vW}")
    A(f"v_add_f32 v{vACC2}, v{vACC2}, v{vW}")
    def rbf(v):
        A(f"v_cvt_pk_bf16_f32 v{v}, v{v}, v{v}")
        A(f"v_and_b32 v{v}, 0xffff0000, v{v}")
    rbf(vACC2)
    A(f"v_mul_f32 v{vACC2}, 0xbfb8aa3b, v{vACC2}")
    A(f"v_exp_f32 v{vACC2}, v{vACC2}")
    A("s_nop 0")
    A(f"v_add_f32 v{vACC2}, 1.0, v{vACC2}")
    A(f"v_rcp_f32 v{vACC2}, v{vACC2}")
    A("s_nop 0")
    rbf(vACC2)
    A(f"s_lshl_b32 s{sTMP}, s{sTMP3}, 2")
    A(f"v_add_u32 v{vTMP2}, s{sTMP}, v9")
    A("s_mov_b64 exec, 1")
    A(f"ds_write_b32 v{vTMP2}, v{vACC2} offset:{F_G}")
    A("s_mov_b64 exec, -1")
    A("L_nogate:")
    A(f"s_lshl2_add_u32 s{sTMP}, s{sBB}, s{sG}")
    A(f"s_lshl3_add_u32 s{sTMP}, s{sTMP}, s{sC}")
    A(f"s_lshl_b32 s{sTMP}, s{sTMP}, 11")
    ws_addr(sGA, WS_QP, sTMP)
    A(f"v_bfe_u32 v{vTMP2}, v0, 2, 2")
    A(f"v_and_b32 v{vTMP3}, 3, v0")
    A(f"v_lshl_add_u32 v{vTMP2}, v{vTMP2}, 3, v{vTMP3}")
    A(f"v_lshlrev_b32 v{vWA}, 8, v{vTMP2}")
    A(f"v_lshrrev_b32 v{vTMP2}, 5, v0")
    A(f"v_and_b32 v{vTMP3}, 7, v0")
    A(f"v_xor_b32 v{vTMP2}, v{vTMP2}, v{vTMP3}")
    A(f"v_lshl_or_b32 v{vWA}, v{vTMP2}, 5, v{vWA}")
    A(f"v_and_b32 v{vTMP2}, 16, v0")
    A(f"s_lshl_b32 s{sTMP}, s{sC}, 13")
    A(f"v_add3_u32 v{vWA}, v{vWA}, v{vTMP2}, s{sTMP}")
    vQA, vMX, vPA = vW, vW + 1, vW + 2
    A(f"v_and_b32 v{vQA}, 30, v0")
    A(f"v_lshlrev_b32 v{vQA}, 6, v{vQA}")
    A(f"v_and_b32 v{vTMP2}, 1, v0")
    A(f"v_lshl_or_b32 v{vQA}, v{vTMP2}, 3, v{vQA}")
    A(f"v_lshrrev_b32 v{vTMP2}, 5, v0")
    A(f"v_lshl_or_b32 v{vQA}, v{vTMP2}, 2, v{vQA}")
    A(f"s_lshl_b32 s{sTMP}, s{sC}, 4")
    A(f"s_add_u32 s{sTMP}, s{sTMP}, {QF}")
    A(f"v_add_u32 v{vQA}, s{sTMP}, v{vQA}")
    A(f"v_lshl_add_u32 v{vMX}, v{vTMP3}, 2, v9")
    A(f"s_lshl_b32 s{sTMP}, s{sC}, 9")
    A(f"s_add_u32 s{sTMP}, s{sTMP}, {PF}")
    A(f"v_add_u32 v{vPA}, s{sTMP}, v{vACT}")
    vOTP, vOTA = vRW, vRR
    A(f"v_lshrrev_b32 v{vTMP3}, 4, v0")
    A(f"v_and_b32 v{vTMP2}, 7, v0")
    A(f"v_lshlrev_b32 v{vSTW}, 8, v{vTMP2}")
    A(f"v_lshl_or_b32 v{vSTW}, v{vTMP3}, 3, v{vSTW}")
    A(f"s_lshl_b32 s{sTMP}, s{sC}, 5")
    A(f"s_add_u32 s{sTMP}, s{sTMP}, {ST}")
    A(f"v_add_u32 v{vSTW}, s{sTMP}, v{vSTW}")
    A(f"v_add_u32 v{vSTR}, {ST}, v{vL16}")
    A(f"v_and_b32 v{vPUB}, 0x1f0, v{vL16}")
    A(f"v_and_b32 v{vTMP2}, 32, v0")
    A(f"v_lshl_or_b32 v{vPUB}, v{vTMP2}, 9, v{vPUB}")
    A(f"s_and_b32 s{sTMP}, s{sC}, 1")
    A(f"s_lshl_b32 s{sTMP}, s{sTMP}, 4")
    A(f"v_lshl_or_b32 v{vTMP3}, v{vTMP3}, 2, s{sTMP}")
    tagbits(vOTP, vTMP3)
    if opt.qhint: cwait(F_QRDY, 1, sleep=1)
    else: wait_prog(False, opt.qgate, sleep=1)
    stamp(3)
    def kfrags():
        A(f"s_add_u32 s{sTMP2}, s{sC}, 5")
        wait_prog(True, sTMP2)
        for db in range(4):
            if db: A(f"v_xor_b32 v{vAA}, {64*db}, v{vWA}")
            a = vAA if db else vWA
            A(f"ds_read_b128 v[{vK+4*db}:{vK+4*db+3}], v{a}")
            A(f"ds_read_b128 v[{vK+16+4*db}:{vK+16+4*db+3}], v{a} offset:1024")
        signal(F_FREE1)
        A(f"v_add_u32 v{vAA}, {QF}, v{vACT}")
    setsca(LQ)
    def qwork(i): acc(i, vS0, i == 0)
    gather(nld=4, mid=kfrags, cntstamp=11, sleep=opt.qsleep, work=qwork)
    stamp(4)
    A("s_nop 1")
    A(f"v_permlane32_swap_b32 v{vS0}, v{vS0+2}")
    A(f"v_permlane32_swap_b32 v{vS0+1}, v{vS0+3}")
    A(f"v_add_f32 v{vS0}, v{vS0}, v{vS0+2}")
    A(f"v_add_f32 v{vS0+1}, v{vS0+1}, v{vS0+3}")
    A(f"v_cvt_pk_bf16_f32 v{vGA}, v{vS0}, v{vS0+1}")
    A(f"ds_write_b32 v{vQA}, v{vGA}")
    signal(F_BQ)
    A(f"s_lshl_b32 s{sTMP}, s{sG}, 5")
    A(f"s_add_u32 s{sTMP}, s{sTMP}, s{sBB}")
    A(f"s_lshl2_add_u32 s{sTMP}, s{sTMP}, s{sSPL}")
    A(f"s_lshl_b32 s{sTMP}, s{sTMP}, 9")
    ws_addr(sGA, WS_OP, sTMP)
    A(f"s_lshl2_add_u32 s{sTMP3}, s{sBB}, s{sSPL}")
    A(f"s_mul_i32 s{sTMP}, s{sG}, {32*CS}")
    ws_addr(sGB, WS_OC, sTMP)
    A(f"s_lshl_b32 s{sTMP}, s{sG}, 5")
    A(f"s_add_u32 s{sTMP}, s{sTMP}, s{sTMP3}")
    A(f"s_lshl_b32 s{sTMP}, s{sTMP}, 6")
    ws_addr(sFA, WS_LSE, sTMP)
    cbits = struct.unpack("<I", struct.pack("<f", math.log2(math.e) / math.sqrt(128.0)))[0]
    A(f"s_mov_b32 s{sTMP2}, {cbits:#x}")
    if STAMP == 1: A("s_waitcnt lgkmcnt(0)")
    if opt.spec: cwait_rd(F_BQ, 8, 4, lambda: actreads(4))
    else:
        cwait(F_BQ, 8); actreads(4)
    for db in range(4):
        A(f"s_waitcnt lgkmcnt({3-db})")
        c0 = "0" if db == 0 else f"v[{vACC}:{vACC+3}]"
        c1 = "0" if db == 0 else f"v[{vACC2}:{vACC2+3}]"
        A(f"v_mfma_f32_16x16x32_bf16 v[{vACC}:{vACC+3}], v[{vK+4*db}:{vK+4*db+3}], v[{vQ+4*db}:{vQ+4*db+3}], {c0}")
        A(f"v_mfma_f32_16x16x32_bf16 v[{vACC2}:{vACC2+3}], v[{vK+16+4*db}:{vK+16+4*db+3}], v[{vQ+4*db}:{vQ+4*db+3}], {c1}")
    A(f"v_add_u32 v{vAA}, {PF}, v{vACT}")
    A(f"v_add_u32 v{vWA}, {RB}, v{vTR}")
    vONES = vGA
    for r in range(4): A(f"v_mov_b32 v{vONES+r}, 0x3f803f80")
    A("s_nop 1")
    A(f"v_max3_f32 v{vTMP2}, v{vACC}, v{vACC+1}, v{vACC+2}")
    A(f"v_max3_f32 v{vTMP2}, v{vTMP2}, v{vACC+3}, v{vACC2}")
    A(f"v_max3_f32 v{vTMP2}, v{vTMP2}, v{vACC2+1}, v{vACC2+2}")
    A(f"v_max_f32 v{vTMP2}, v{vTMP2}, v{vACC2+3}")
    A("s_mov_b32 exec_lo, 0x00ff00ff\ns_mov_b32 exec_hi, 0x00ff00ff")
    A(f"ds_max_f32 v{vMX}, v{vTMP2} offset:{F_MAX}")
    signal(F_BM)
    vM = vLS
    cwait_rd(F_BM, 8, 1, lambda: A(f"ds_read_b32 v{vM}, v{vMX} offset:{F_MAX}"))
    if opt.olead >= 0 and opt.oearly:
        A(f"ds_read_b32 v{vTMP}, v9 offset:{F_PROG}")
    A("s_waitcnt lgkmcnt(0)")
    A(f"s_mov_b32 s{sWDN}, 0")
    if opt.olead >= 0 and opt.oearly:
        A(f"v_readfirstlane_b32 s{sPROG}, v{vTMP}")
        A(f"s_cmp_lt_u32 s{sPROG}, {20 - opt.olead}")
        A("s_cbranch_scc1 L_of_no1")
        flag_now("q")
        A(f"s_mov_b32 s{sWDN}, 1")
        A("L_of_no1:")
    A(f"v_mul_f32 v{vM}, s{sTMP2}, v{vM}")
    for r in range(8):
        A(f"v_fma_f32 v{vACC+r}, v{vACC+r}, s{sTMP2}, -v{vM}")
    for r in range(8):
        A(f"v_exp_f32 v{vACC+r}, v{vACC+r}")
    A("s_nop 0")
    for r in range(4):
        A(f"v_cvt_pk_bf16_f32 v{vB+r}, v{vACC+2*r}, v{vACC+2*r+1}")
    A(f"ds_write_b128 v{vPA}, v[{vB}:{vB+3}]")
    signal(F_BP)
    if opt.spec: cwait_rd(F_BP, 8, 8, lambda: actreads(8))
    else:
        cwait(F_BP, 8); actreads(8)
    A(f"ds_read_b32 v{vTMP}, v9 offset:{F_PROG}")
    for kb in range(8):
        A(f"s_waitcnt lgkmcnt({8-kb})")
        c1 = "0" if kb == 0 else f"v[{vACC2}:{vACC2+3}]"
        A(f"v_mfma_f32_16x16x32_bf16 v[{vACC2}:{vACC2+3}], v[{vONES}:{vONES+3}], v[{vQ+4*kb}:{vQ+4*kb+3}], {c1}")
    A("s_waitcnt lgkmcnt(0)")
    A(f"v_readfirstlane_b32 s{sPROG}, v{vTMP}")
    stamp(5)
    vRL = vLS + 2
    def lse_part():
        A(f"v_log_f32 v{vLS+1}, v{vACC2}")
        A(f"v_rcp_f32 v{vRL}, v{vACC2}")
        A("s_nop 0")
        A(f"v_mul_f32 v{vRL}, {fbits(2.0**LO_):#x}, v{vRL}")
        d = g.lab("L_nolse")
        A(f"s_cmp_lg_u32 s{sC}, 0")
        A(f"s_cbranch_scc1 {d}")
        A(f"v_add_f32 v{vM}, v{vM}, v{vLS+1}")
        A(f"v_mov_b32 v{vLS+1}, s{sT}")
        A(f"v_lshlrev_b32 v{vTMP2}, 3, v0")
        A("s_mov_b64 exec, 0xff")
        if not (opt.dbg & 1):
            A(f"global_store_dwordx2 v{vTMP2}, v[{vLS}:{vLS+1}], s[{sFA}:{sFA+1}] sc1")
            if opt.lcnt:
                A(f"s_bfm_b64 exec, {NREP}, 0")
                A(f"v_mov_b32 v{vTMP2}, 0x10000")
                A(f"global_atomic_add v{vFLG}, v{vTMP2}, s[{sGB}:{sGB+1}] sc1")
        A("s_mov_b64 exec, -1")
        A(f"{d}:")
    A(f"s_cmp_lt_u32 s{sPROG}, 20")
    A("s_cbranch_scc1 L_pv_slow")
    def oflag():
        if opt.olead < 0: return
        d = g.lab("L_of")
        A(f"s_cmp_lg_u32 s{sWDN}, 0")
        A(f"s_cbranch_scc1 {d}")
        flag_now("q")
        A(f"{d}:")
    wreads(0, 7)
    lse_part()
    oflag()
    for kb in range(7):
        A(f"s_waitcnt lgkmcnt({14-2*kb if kb else 12})")
        if kb == 0: wreads(7, 8)
        mf(kb, kb == 0)
    A("s_branch L_pv_last")
    pad("M")
    A("L_pv_slow:")
    A("s_nop 4")
    lse_part()
    for kb in range(8):
        wait_prog(False, 12 + kb + 1)
        wreads(kb, kb+1)
        if 12 + kb + 1 == 20 - opt.olead: oflag()
        if kb:
            A("s_waitcnt lgkmcnt(2)")
            mf(kb-1, kb == 1)
    A("L_pv_last:")
    A("s_waitcnt lgkmcnt(0)")
    mf(7, False)
    A("s_nop 7")
    encode(vRL, vOTP, vOTA)
    A("s_mov_b32 exec_lo, 0x00ff00ff\ns_mov_b32 exec_hi, 0x00ff00ff")
    staged(F_PUB1, 7, 2 << 14, "q" if (opt.olead < 0 and not opt.notif) else None)
    stamp(6)
    if opt.ackst:
        A("s_waitcnt vmcnt(0)"); stamp(3)
    A(f"s_and_b32 s{sTMP2}, s{sR}, 1")
    A(f"s_lshl_b32 s{sTMP2}, s{sTMP2}, 4")
    A(f"v_and_b32 v{vTMP2}, 12, v0")
    A(f"v_add3_u32 v{vTMP2}, v{vTMP2}, s{sTMP2}, v9")
    A(f"ds_read_b32 v{vRG}, v{vTMP2} offset:{F_G}")
    A(f"s_lshl4_add_u32 s{sTMP}, s{sXCD}, s{sR}")
    A(f"s_sub_u32 s{sTMP3}, s{sTMP}, 16")
    A(f"s_lshl3_add_u32 s{sTMP}, s{sTMP3}, s{sC}")
    A(f"s_lshl_b32 s{sTMP}, s{sTMP}, 9")
    ws_addr(sRA, WS_FP, sTMP)
    A(f"v_lshlrev_b32 v{vRR}, 2, v0")
    A(f"v_add_u32 v{vRR}, {RS}, v{vRR}")
    A(f"s_lshl_b32 s{sTMP}, s{sC}, 8")
    A(f"v_add_u32 v{vRW}, s{sTMP}, v{vRR}")
    A(f"v_and_b32 v{vOUT}, 12, v0")
    A(f"v_lshlrev_b32 v{vOUT}, 9, v{vOUT}")
    A(f"v_and_b32 v{vTMP2}, 3, v0")
    A(f"v_lshl_or_b32 v{vOUT}, v{vTMP2}, 3, v{vOUT}")
    A(f"v_lshrrev_b32 v{vTMP2}, 4, v0")
    A(f"v_lshl_or_b32 v{vOUT}, v{vTMP2}, 1, v{vOUT}")
    A(f"s_lshl_b32 s{sTMP2}, s{sTMP2}, 9")
    A(f"s_lshr_b32 s{sTMP3}, s{sTMP3}, 1")
    A(f"s_lshl_b32 s{sTMP3}, s{sTMP3}, 5")
    A(f"s_add_u32 s{sTMP2}, s{sTMP2}, s{sTMP3}")
    A(f"v_add_u32 v{vOUT}, s{sTMP2}, v{vOUT}")
    if opt.vtouch & 1:
        A(f"s_cmp_lg_u32 s{sC}, 7")
        A("s_cbranch_scc1 L_novt")
        A("s_mov_b64 exec, 1")
        A(f"global_load_ushort v127, v{vOUT}, s[{sOUT}:{sOUT+1}] sc1")
        A("s_mov_b64 exec, -1")
        A("L_novt:")
    A("s_waitcnt lgkmcnt(0)")
    A(f"s_cmp_lt_u32 s{sC}, 4")
    A("s_cbranch_scc1 L_wg_done")
    A(f"v_sub_f32 v{vRG}, 1.0, v{vRG}")
    rbf(vRG)
    A("L_wg_done:")
    A(f"v_mul_f32 v{vRG}, {fbits(2.0**-LF):#x}, v{vRG}")
    setsca(LG)
    late_setup(RA, 16, 27)
    A(f"s_add_u32 s{sTMP}, s{sC}, s{sLR}")
    A(f"s_cmp_ge_u32 s{sTMP}, 7")
    A(f"s_cselect_b32 s{sTMP2}, 7, 0")
    A(f"s_sub_u32 s{sTMP}, s{sTMP}, s{sTMP2}")
    A(f"s_add_u32 s{sTMP}, s{sTMP}, s{sKB0}")
    A(f"s_lshl_b32 s{sTMP}, s{sTMP}, 11")
    ws_addr(sGA, WS_GP, sTMP)
    for r in range(4): A(f"v_mov_b32 v{vS0+r}, 0")
    late_wait()
    A(f"s_cmp_eq_u32 s{sC}, 7")
    A("s_cbranch_scc1 L_late")
    stamp(7)
    def rnd4(v):
        A(f"v_cvt_pk_bf16_f32 v{vB}, v{v}, v{v+1}")
        A(f"v_cvt_pk_bf16_f32 v{vB+1}, v{v+2}, v{v+3}")
        for h in range(2):
            A(f"v_lshlrev_b32 v{v+2*h}, 16, v{vB+h}")
            A(f"v_and_b32 v{v+2*h+1}, 0xffff0000, v{vB+h}")
    def hwork(i):
        if i == 2: late_post_issue()
        if i == 3: late_post()
        acc(i, vS0 if i < 2 else vS1, i in (0, 2))
        if i == 1:
            for r in range(4): A(f"v_max_f32 v{vS0+r}, 0, v{vS0+r}")
            if opt.hround: rnd4(vS0)
        if i == 3:
            if opt.hround: rnd4(vS1)
            for r in (0, 2): A(f"v_pk_mul_f32 v[{vS0+r}:{vS0+r+1}], v[{vS0+r}:{vS0+r+1}], v[{vS1+r}:{vS1+r+1}]")
    gather(mid=late_mid, cntstamp=13, sleep=opt.gsleep, work=hwork)
    stamp(8)

    if opt.touch: A("s_branch L_late")
    pad("A")
    A("L_late:")
    A(f"v_cvt_pk_bf16_f32 v{vGA}, v{vS0}, v{vS0+1}")
    A(f"v_cvt_pk_bf16_f32 v{vGA+1}, v{vS0+2}, v{vS0+3}")
    A(f"ds_write_b64 v{vAFW}, v[{vGA}:{vGA+1}]")
    if opt.lflow == 1:
        signal(F_BA)
        if opt.fine: stamp(3)
        A(f"s_cmp_eq_u32 s{sWDN}, 99")
        A("s_cbranch_scc1 L_late_bar")
        A("L_late_spin:")
        A(f"ds_read2_b32 v[{vTMP}:{vTMP+1}], v9 offset0:{F_PROG//4} offset1:{F_BA//4}")
        A("s_waitcnt lgkmcnt(0)")
        A(f"v_readfirstlane_b32 s{sPROG}, v{vTMP}")
        A(f"v_readfirstlane_b32 s{sTMP2}, v{vTMP+1}")
        wcatch()
        A(f"s_cmp_eq_u32 s{sWDN}, 99")
        A("s_cbranch_scc1 L_late_bar0")
        A(f"s_cmp_lt_u32 s{sWDN}, 27")
        A("s_cbranch_scc1 L_late_spin")
        A(f"s_cmp_lt_u32 s{sTMP2}, 8")
        A("s_cbranch_scc1 L_late_spin")
        actreads(8, True)
        for kb in range(6):
            A(f"s_waitcnt lgkmcnt({7-kb})")
            mf(kb, kb == 0)
        A("s_barrier")
        wreads(6, 8)
        A("s_waitcnt lgkmcnt(2)")
        mf(6, False)
        A("s_waitcnt lgkmcnt(0)")
        mf(7, False)
        A("s_branch L_late_done")
        pad("A")
        A("L_late_bar:")
        A("s_waitcnt lgkmcnt(0)")
        A("L_late_bar0:")
        A("s_barrier")
        if opt.fine: stamp(4)
        actreads(8, True)
        for kb in range(8):
            A(f"s_waitcnt lgkmcnt({7-kb})")
            mf(kb, kb == 0)
    else:
        if opt.fine: stamp(3)
        if opt.lflow == 3: signal(F_BA)
        A(f"s_cmp_ge_u32 s{sWDN}, {opt.wmin}")
        A(f"s_cbranch_scc1 {'L_late_w6' if opt.lflow == 3 else 'L_late_bar'}")
        wait_prog(False, opt.wmin - 1)
        wcatch()
        if opt.lflow == 3:
            A("L_late_w6:")
            A(f"s_cmp_eq_u32 s{sWDN}, 99")
            A("s_cbranch_scc1 L_late_bar")
            A("L_late_spin:")
            A(f"ds_read2_b32 v[{vTMP}:{vTMP+1}], v9 offset0:{F_PROG//4} offset1:{F_BA//4}")
            A("s_waitcnt lgkmcnt(0)")
            A(f"v_readfirstlane_b32 s{sPROG}, v{vTMP}")
            A(f"v_readfirstlane_b32 s{sTMP2}, v{vTMP+1}")
            A(f"s_cmp_ge_u32 s{sPROG}, s{sPE}")
            A("s_cbranch_scc1 L_late_bar")
            A(f"s_cmp_lt_u32 s{sTMP2}, 8")
            A("s_cbranch_scc1 L_late_spin")
            n0 = opt.wmin - 21
            actreads(8, True)
            for kb in range(n0):
                A(f"s_waitcnt lgkmcnt({7-kb})")
                mf(kb, kb == 0)
            A("s_barrier")
            wreads(n0, 8)
            for kb in range(n0, 8):
                A(f"s_waitcnt lgkmcnt({2*(7-kb)})")
                mf(kb, False)
            A("s_branch L_late_done")
        A("L_late_bar:")
        A(f"s_cmp_eq_u32 s{sWDN}, 99")
        A("s_waitcnt lgkmcnt(0)")
        A("s_barrier")
        A("s_cbranch_scc1 L_late_act")
        wreads(opt.wmin - 21, 8)
        A("L_late_act:")
        if opt.fine: stamp(4)
        actreads(8, True)
        for kb in range(8):
            A(f"s_waitcnt lgkmcnt({7-kb})")
            mf(kb, kb == 0)
    A("L_late_done:")
    if opt.fine: stamp(5)
    A("s_nop 7")
    publish(vACC, sFA)
    A("s_mov_b64 exec, -1")
    stamp(9)
    A(f"s_cmp_ge_u32 s{sR}, 16")
    A("s_cbranch_scc1 L_red")
    if opt.fixdur:
        A(f"s_cmp_eq_u32 s{sC}, 0")
        A("s_cbranch_scc1 L_noepoch")
    A("s_branch L_exit")
    pad("A")
    A("L_red:")
    A(f"s_mov_b64 s[{sGA}:{sGA+1}], s[{sRA}:{sRA+1}]")
    if opt.fgate and not opt.fbar: cwait(F_FRDY, 1)
    A(f"v_mov_b32 v{vSCA}, v{vRG}")
    if opt.fgate and opt.fbar: A("s_barrier")
    def fwork(i): acc(0, vS0, True)
    gather(nld=1, cntstamp=12, sleep=opt.fgsleep, work=fwork)
    if not opt.stq: stamp(2)
    A("s_nop 1")
    A(f"v_permlane32_swap_b32 v{vS0}, v{vS0+2}")
    A(f"v_permlane32_swap_b32 v{vS0+1}, v{vS0+3}")
    A(f"v_add_f32 v{vS0}, v{vS0}, v{vS0+2}")
    A(f"v_add_f32 v{vS0+1}, v{vS0+1}, v{vS0+3}")
    A("s_nop 1")
    A(f"v_permlane16_swap_b32 v{vS0}, v{vS0+1}")
    A(f"v_add_f32 v{vGA}, v{vS0}, v{vS0+1}")
    A(f"ds_write_b32 v{vRW}, v{vGA}")
    A("s_mov_b64 exec, 1")
    A(f"ds_add_rtn_u32 v{vTMP}, v9, v{vONE} offset:{F_RED}")
    A("s_mov_b64 exec, -1")
    for i in range(4):
        A(f"ds_read2st64_b32 v[{vGA+2*i}:{vGA+2*i+1}], v{vRR} offset0:{2*i} offset1:{2*i+1}")
    A("s_waitcnt lgkmcnt(4)")
    A(f"v_readfirstlane_b32 s{sTMP}, v{vTMP}")
    A(f"s_cmp_lg_u32 s{sTMP}, 7")
    A("s_cbranch_scc1 L_exit")
    A("s_waitcnt lgkmcnt(0)")
    A(f"v_pk_add_f32 v[{vGA}:{vGA+1}], v[{vGA}:{vGA+1}], v[{vGA+2}:{vGA+3}]")
    A(f"v_pk_add_f32 v[{vGA+4}:{vGA+5}], v[{vGA+4}:{vGA+5}], v[{vGA+6}:{vGA+7}]")
    A(f"v_pk_add_f32 v[{vGA}:{vGA+1}], v[{vGA}:{vGA+1}], v[{vGA+4}:{vGA+5}]")
    A(f"v_add_f32 v{vGA}, v{vGA}, v{vGA+1}")
    A(f"v_cvt_pk_bf16_f32 v{vGA}, v{vGA}, v{vGA}")
    A(f"global_store_short v{vOUT}, v{vGA}, s[{sOUT}:{sOUT+1}] {opt.outflags}")
    A(f"s_cmp_lg_u32 s2, 128")
    A("s_cbranch_scc1 L_noepoch")
    A("s_mov_b64 exec, 1")
    A(f"v_mov_b32 v{vTMP}, 0")
    A(f"global_store_dword v{vTMP}, v{vT}, s[{sWS}:{sWS+1}] sc1")
    A("s_mov_b64 exec, -1")
    A("L_noepoch:")
    if opt.fixdur:
        A(f"s_cmp_lg_u32 s2, {opt.fixwg}")
        A("s_cbranch_scc1 L_nofix")
        if opt.probe == 20: A("s_memrealtime s[96:97]")
        A("s_waitcnt lgkmcnt(0)")
        A("s_sub_u32 s96, s96, s98")
        A("s_min_u32 s96, s96, 3000")
        A(f"s_mul_i32 s96, s96, {4 if opt.probe >= 0 else 0}")
        A(f"s_add_u32 s96, s96, {opt.fixdur}")
        A("L_fixd:")
        A("s_memrealtime s[14:15]")
        A("s_waitcnt lgkmcnt(0)")
        A("s_sub_u32 s14, s14, s98")
        A(f"s_cmp_lt_u32 s14, s96")
        A("s_cbranch_scc1 L_fixd")
        A("L_nofix:")
    if STAMP:
        A("s_waitcnt vmcnt(0)")
        stamp(1, True)
    A("s_branch L_exit")

    pad("A")
    A("L_wcatch:")
    for kb in range(8):
        nx = f"L_wcn{kb}"
        if kb < 7:
            A(f"s_cmp_gt_u32 s{sWDN}, {21+kb}")
            A(f"s_cbranch_scc1 {nx}")
        if kb:
            A(f"s_cmp_lt_u32 s{sPROG}, s{sWDN}")
            A("s_cbranch_scc1 L_wcret")
        wreads(kb, kb+1)
        if kb < 6: A(f"s_mov_b32 s{sWDN}, {22+kb}")
        elif kb == 6: A(f"s_mov_b32 s{sWDN}, s{sPE}")
        else: A(f"s_mov_b32 s{sWDN}, 99")
        if kb < 7: A(f"{nx}:")
    A("L_wcret:")
    A(f"s_setpc_b64 s[{sRET}:{sRET+1}]")

    A("L_encs:")
    A(f"v_lshrrev_b32 v{vTMP}, 23, v{vTMP}")
    A(f"v_subrev_u32 v{vTMP}, 126, v{vTMP}")
    A(f"v_ashrrev_i32 v{vTMP}, 4, v{vTMP}")
    A(f"v_med3_i32 v{vTMP}, v{vTMP}, -8, 7")
    A(f"v_cndmask_b32 v{vTMP}, 0, v{vTMP}, vcc")
    A(f"v_and_b32 v{vAX}, 15, v{vTMP}")
    A(f"v_lshl_or_b32 v{vAX}, v{vAX}, 14, v{vAX}")
    A(f"v_and_b32 v{vAX}, s{sM3}, v{vAX}")
    A(f"v_mul_i32_i24 v{vTMP}, -16, v{vTMP}")
    for r in range(4): A(f"v_ldexp_f32 v{vACC+r}, v{vACC+r}, v{vTMP}")
    A("s_mov_b64 vcc, 0")
    A("s_setpc_b64 s[6:7]")
    A("L_fixr:")
    for i in range(4): A(f"v_xor_b32 v{vGA+2*i+1}, v{vTC}, v{vGA+2*i+1}")
    A("L_fix:")
    for i in range(4):
        A(f"v_and_b32 v{vTMP}, 3, v{vGA+2*i}")
        A(f"v_bfe_i32 v{vTMP2}, v{vGA+2*i}, 16, 2")
        A(f"v_lshl_or_b32 v{vTMP}, v{vTMP2}, 2, v{vTMP}")
        A(f"v_lshlrev_b32 v{vTMP}, 4, v{vTMP}")
        A(f"v_ldexp_f32 v{vSCA+i}, v{vSCA+i}, v{vTMP}")
    A("s_setpc_b64 s[6:7]")

    if opt.notif:
        A("L_notif:")
        if opt.nocomm: A("s_branch L_exit")
        if opt.tlb:
            A("s_mov_b64 exec, 1")
            A(f"v_mov_b32 v{vGA}, 0")
            if opt.tlb & 1:
                A(f"global_load_dword v{vGA+1}, v{vGA}, s[{sOUT}:{sOUT+1}] sc1")
                A(f"global_load_dword v{vGA+2}, v{vGA}, s[{sWS}:{sWS+1}] offset:512 sc1")
            if opt.tlb & 2:
                A(f"s_lshl_b32 s{sTMP}, s{sKB0}, 16")
                A(f"v_mov_b32 v{vGA+8}, s{sTMP}")
                A(f"s_cmp_ge_u32 s{sR}, 16")
                A("s_cbranch_scc1 L_tlbM")
                A(f"global_load_dword v{vGA+3}, v{vGA+8}, s[{sWO}:{sWO+1}] nt")
                A(f"s_cmp_eq_u32 s{sROLE}, 2")
                A("s_cbranch_scc1 L_tlbD")
                A(f"s_bitcmp0_b32 s{sBETA}, 1")
                A(f"s_cselect_b64 s[4:5], s[{sWG}:{sWG+1}], s[{sWU}:{sWU+1}]")
                A(f"s_and_b32 s{sTMP}, s{sBETA}, 1")
                A(f"s_mul_i32 s{sTMP}, s{sTMP}, {512*7168}")
                A("s_mov_b64 exec, 7")
                A(f"v_mul_u32_u24 v{vGA+9}, {255*7168}, v0")
                A(f"v_add_u32 v{vGA+9}, s{sTMP}, v{vGA+9}")
                A(f"global_load_dword v{vGA+4}, v{vGA+9}, s[4:5] nt")
                A("s_branch L_tlbD")
                A("L_tlbM:")
                A(f"global_load_dword v{vGA+3}, v{vGA+8}, s[{sWD}:{sWD+1}] nt")
                A(f"s_lshl2_add_u32 s{sTMP}, s{sBB}, s{sG}")
                A(f"s_lshl_b32 s{sTMP}, s{sTMP}, 20")
                A(f"v_mov_b32 v{vGA+9}, s{sTMP}")
                A(f"global_load_dword v{vGA+4}, v{vGA+9}, s[{sV}:{sV+1}] nt")
                A("L_tlbD:")
            A("s_mov_b64 exec, -1")
        A(f"s_cmp_eq_u32 s{sROLE}, 2")
        A("s_cbranch_scc1 L_exit")
        A(f"s_cmp_ge_u32 s{sR}, 16")
        A("s_cbranch_scc1 L_notifM")
        hc_addr()
        wait_prog(False, opt.nprogh - 1, sleep=2)
        wait_prog(False, opt.nprogh)
        if opt.ndelay: A(f"s_sleep {opt.ndelay}")
        bump("h")
        A("s_branch L_exit")
        A("L_notifM:")
        A(f"s_mul_i32 s{sTMP}, s{sG}, {32*CS}")
        ws_addr(sGB, WS_OC, sTMP)
        cwait(F_BP, 8, sleep=2)
        if opt.pdelay: A(f"s_sleep {opt.pdelay}")
        wait_prog(False, opt.nprogo - 1, sleep=2)
        wait_prog(False, opt.nprogo)
        if opt.ndelay + opt.odelay: A(f"s_sleep {opt.ndelay + opt.odelay}")
        bump("q")
        A("s_branch L_exit")

    A("L_poller:")
    if opt.nocomm: A("s_branch L_exit")
    A(f"s_cmp_ge_u32 s{sR}, 16")
    A("s_cbranch_scc1 L_pollM")
    A(f"s_lshl3_add_u32 s{sTMP}, s{sRBK}, s{sCB}")
    A(f"s_and_b32 s{sTMP}, s{sTMP}, {NREP-1}")
    A(f"s_lshl_b32 s{sTMP2}, s{sG}, 5")
    A(f"s_add_u32 s{sTMP}, s{sTMP}, s{sTMP2}")
    A(f"s_mul_i32 s{sTMP}, s{sTMP}, {CS}")
    ws_addr(sGB, WS_OC, sTMP)
    A(f"s_load_dword s4, s[{sGB}:{sGB+1}], 0 glc")
    A(f"s_and_b32 s{sTMP}, s{sRBK}, 3")
    A(f"s_lshl_b32 s{sTMP}, s{sTMP}, 4")
    A(f"s_lshl_b32 s{sTMP2}, s{sG}, 11")
    A(f"s_add_u32 s{sTMP}, s{sTMP}, s{sTMP2}")
    ws_addr(sGA, WS_LSE, sTMP)
    A(f"v_and_b32 v{vTMP3}, 31, v0")
    A(f"v_lshlrev_b32 v{vTMP3}, 6, v{vTMP3}")
    A(f"v_lshrrev_b32 v{vTMP2}, 5, v0")
    A(f"v_lshl_or_b32 v{vTMP3}, v{vTMP2}, 3, v{vTMP3}")
    A("s_waitcnt lgkmcnt(0)")
    A(f"v_lshl_add_u32 v{vWA}, v0, 2, v9")
    A(f"s_cmp_eq_u32 s{sROLE}, 2")
    A(f"s_cselect_b32 s{sTMP2}, {opt.ogatec}, {opt.ogate}")
    A(f"s_add_u32 s5, s4, {0x200020 if opt.lcnt else 32}")
    for k, l in touch:
        if k in "AB": A(f"s_call_b64 s[6:7], {l}")
    wait_prog(True, sTMP2, sleep=2)
    stamp(2)
    if not (opt.dbg & 7):
        A(f"s_mov_b32 s{sCNT}, 0")
        if opt.psleep: A("s_branch L_pl1e")
        A("L_pl1:")
        if opt.psleep:
            A(f"s_sleep {opt.psleep}")
            A("L_pl1e:")
        A(f"s_load_dword s8, s[{sGB}:{sGB+1}], 0 glc")
        A(f"s_add_u32 s{sCNT}, s{sCNT}, 1")
        A(f"s_cmp_gt_u32 s{sCNT}, {opt.maxhint}")
        A("s_waitcnt lgkmcnt(0)")
        A("s_cbranch_scc1 L_pl1d")
        A("s_sub_u32 s9, s8, s4")
        A(f"s_cmp_lt_u32 s9, {0x200000 if opt.lcnt else opt.lthr}")
        A("s_cbranch_scc1 L_pl1")
        A("L_pl1d:")
        stampval(10, sCNT)
    stamp(3)
    A("s_mov_b32 s9, 0")
    A(f"s_mov_b32 s{sTMP3}, 0")
    A("L_lse:")
    if not (opt.dbg & 2): A(f"global_load_dwordx2 v[{vLS}:{vLS+1}], v{vTMP3}, s[{sGA}:{sGA+1}] sc1")
    if not (opt.dbg & 7):
        A("s_cmp_lg_u32 s9, 0")
        A("s_cbranch_scc1 L_lse_wait")
        A("L_pl2:")
        A("s_cmp_eq_u32 s8, s5")
        A("s_cbranch_scc1 L_pl_sig")
        A(f"s_cmp_gt_u32 s{sCNT}, {opt.maxhint}")
        A("s_cbranch_scc1 L_pl_sig")
        A("s_getreg_b32 s10, hwreg(HW_REG_IB_STS, 0, 4)")
        A("s_cmp_eq_u32 s10, 0")
        A("s_cbranch_scc1 L_lse_wait")
        A(f"s_load_dword s8, s[{sGB}:{sGB+1}], 0 glc")
        A(f"s_add_u32 s{sCNT}, s{sCNT}, 1")
        A("s_waitcnt lgkmcnt(0)")
        A("s_branch L_pl2")
        A("L_pl_sig:")
        signal(F_LRDY)
        A("s_mov_b32 s9, 1")
        stamp(5)
    A("L_lse_wait:")
    if not (opt.dbg & 7):
        A(f"s_load_dword s8, s[{sGB}:{sGB+1}], 0 glc")
    A(f"s_add_u32 s{sTMP3}, s{sTMP3}, 1")
    A("s_waitcnt vmcnt(0)")
    A(f"v_cmp_ne_u32 vcc, s{sT}, v{vLS+1}")
    A(f"s_cbranch_vccz L_lsed")
    A(f"s_cmp_le_u32 s{sTMP3}, {0 if (opt.dbg & 7) else opt.maxpoll}")
    A("s_waitcnt lgkmcnt(0)")
    A(f"s_cbranch_scc1 L_lse")
    A("L_lsed:")
    stampval(12, sTMP3)
    A(f"v_max_f32_dpp v{vTMP}, v{vLS}, v{vLS} quad_perm:[1,0,3,2] row_mask:0xf bank_mask:0xf")
    A("s_nop 1")
    A(f"v_max_f32_dpp v{vTMP}, v{vTMP}, v{vTMP} quad_perm:[2,3,0,1] row_mask:0xf bank_mask:0xf")
    A(f"v_sub_f32 v{vLS}, v{vLS}, v{vTMP}")
    A(f"v_exp_f32 v{vLS}, v{vLS}")
    A("s_nop 1")
    A(f"v_add_f32_dpp v{vTMP}, v{vLS}, v{vLS} quad_perm:[1,0,3,2] row_mask:0xf bank_mask:0xf")
    A("s_nop 1")
    A(f"v_add_f32_dpp v{vTMP}, v{vTMP}, v{vTMP} quad_perm:[2,3,0,1] row_mask:0xf bank_mask:0xf")
    A(f"v_rcp_f32 v{vTMP}, v{vTMP}")
    A("s_nop 0")
    A(f"v_mul_f32 v{vLS}, v{vLS}, v{vTMP}")
    A(f"v_mul_f32 v{vLS}, {fbits(2.0**-LO_):#x}, v{vLS}")
    A(f"ds_write_b32 v{vWA}, v{vLS} offset:{F_WT}")
    signal(F_WRDY)
    stamp(4)
    if not (opt.dbg & 7):
        A("s_cmp_lg_u32 s9, 0")
        A("s_cbranch_scc1 L_pl_fin")
        A("s_waitcnt lgkmcnt(0)")
        A("s_cmp_eq_u32 s8, s5")
        A("s_cbranch_scc1 L_pl_sig2")
    pollcnt(sGB, 5, opt.psleep, cntstamp=11)
    A("L_pl_sig2:")
    signal(F_LRDY)
    stamp(5)
    A("L_pl_fin:")
    A("s_barrier")
    A("s_branch L_exit")
    A("L_pollM:")
    A(f"s_lshl2_add_u32 s{sTMP}, s{sBB}, s{sSPL}")
    A(f"s_lshr_b32 s{sTMP}, s{sTMP}, {int(math.log2(32//NREP))}")
    A(f"s_lshl_b32 s{sTMP2}, s{sG}, 5")
    A(f"s_add_u32 s{sTMP}, s{sTMP}, s{sTMP2}")
    A(f"s_mul_i32 s{sTMP}, s{sTMP}, {CS}")
    ws_addr(sGB, WS_QC, sTMP)
    if opt.qhint: A(f"s_load_dword s4, s[{sGB}:{sGB+1}], 0 glc")
    A(f"s_mul_i32 s{sTMP}, s{sRBK}, {HREP}")
    A(f"s_and_b32 s{sTMP2}, s{sCB}, {HREP-1}")
    A(f"s_add_u32 s{sTMP}, s{sTMP}, s{sTMP2}")
    A(f"s_mul_i32 s{sTMP}, s{sTMP}, {CS}")
    ws_addr(sGA, WS_HC, sTMP)
    A(f"s_load_dword s5, s[{sGA}:{sGA+1}], 0 glc")
    if opt.fgate:
        A(f"s_and_b32 s{sTMP}, s{sR}, {opt.frep-1}")
        A(f"s_lshl4_add_u32 s{sTMP}, s{sXCD}, s{sTMP}")
        A(f"s_mul_i32 s{sTMP}, s{sTMP}, {CS}")
        ws_addr(10, WS_FC, sTMP)
        A(f"s_load_dword s6, s[10:11], 0 glc")
    A(f"s_bitcmp1_b32 s{sKB0}, 1")
    A(f"s_cselect_b32 s{sTMP}, 12, 8")
    A("s_waitcnt lgkmcnt(0)")
    if opt.fgate: A("s_add_u32 s6, s6, 32")
    A("s_add_u32 s4, s4, 64")
    A(f"s_add_u32 s5, s5, s{sTMP}")
    if opt.fgate: A("s_mov_b32 s9, s6")
    for k, l in touch:
        if k in "AM": A(f"s_call_b64 s[6:7], {l}")
    if opt.qhint:
        wait_prog(False, opt.qgate, sleep=2)
        stamp(2)
        pollcnt(sGB, 4, opt.psleep, cntstamp=10)
        signal(F_QRDY)
        stamp(3)
    wait_prog(False, opt.hgate, sleep=2)
    stamp(4)
    pollcnt(sGA, 5, opt.psleep, cntstamp=11)
    signal(F_LRDY)
    stamp(5)
    A("s_barrier")
    if opt.fgate:
        stamp(6)
        pollcnt(10, 9, 0, cntstamp=12)
        if opt.fbar: A("s_barrier")
        else: signal(F_FRDY)
        stamp(7)

    A("L_exit:")
    if STAMP:
        A("s_waitcnt lgkmcnt(0)")
        A(f"s_mul_i32 s{sTMP}, s2, {NWAVES}")
        A(f"s_add_u32 s{sTMP}, s{sTMP}, s3")
        A(f"s_lshl_b32 s{sTMP}, s{sTMP}, 6")
        A(f"s_add_u32 s{sTMP}, s{sTMP}, {WS_STAMP}")
        A(f"v_mov_b32 v1, s{sTMP}")
        A("s_mov_b64 exec, 1")
        for i in range(NST if STAMP == 1 else 10):
            A(f"v_mov_b32 v2, s{sST+2*i}")
            A(f"global_store_dword v1, v2, s[{sWS}:{sWS+1}] offset:{4*i}")
        A(f"v_mov_b32 v2, s{sROLE}")
        A(f"global_store_dword v1, v2, s[{sWS}:{sWS+1}] offset:60")
    A("L_end:")
    A("s_endpgm")

    body = "\n".join(g.o)
    PADTXT = f".p2align 12\n.fill {opt.pad//4}, 4, 0xbf810000\n" if opt.pad >= 0 else ""
    txt = HEADER
    txt += f"; @launch grid=(256,1,1) block=({64*NWAVES},1,1) lds={LDS_BYTES}\n"
    txt += f""".amdgcn_target "amdgcn-amd-amdhsa--gfx950"
.text
.globl {KNAME}
{PADTXT}.p2align 8
.type {KNAME},@function
{KNAME}:
{body}
.section .rodata,"a"
.p2align 6
.amdhsa_kernel {KNAME}
  .amdhsa_next_free_vgpr {NV}
  .amdhsa_next_free_sgpr 102
  .amdhsa_accum_offset {NV}
  .amdhsa_group_segment_fixed_size 0
  .amdhsa_kernarg_size 104
  .amdhsa_user_sgpr_count 2
  .amdhsa_user_sgpr_kernarg_segment_ptr 1
  .amdhsa_system_sgpr_workgroup_id_x 1
.end_amdhsa_kernel
"""
    return txt

def parse(argv):
    ap = argparse.ArgumentParser()
    ap.add_argument("--nt", default="nt")
    ap.add_argument("--pb", default="20:24,8:22")
    ap.add_argument("--pc", default="4:20,d,3:4,5:12")
    ap.add_argument("--pm", default="20:24,7:20")
    ap.add_argument("--nb0", type=int, default=3)
    ap.add_argument("--stamp", type=int, default=0)
    ap.add_argument("--stq", type=int, default=0)
    ap.add_argument("--fdelay", type=int, default=0)
    ap.add_argument("--qgate", type=int, default=9)
    ap.add_argument("--ogate", type=int, default=19)
    ap.add_argument("--ogatec", type=int, default=26)
    ap.add_argument("--hgate", type=int, default=19)
    ap.add_argument("--ggate", type=int, default=1)
    ap.add_argument("--maxpoll", type=int, default=100000)
    ap.add_argument("--psleep", type=int, default=0)
    ap.add_argument("--fsleep", type=int, default=2)
    ap.add_argument("--gsleep", type=int, default=0)
    ap.add_argument("--fgsleep", type=int, default=0)
    ap.add_argument("--sample", type=int, default=0)
    ap.add_argument("--outflags", default="sc1")
    ap.add_argument("--fixdur", type=int, default=0)
    ap.add_argument("--fixwg", type=int, default=128)
    ap.add_argument("--nocomm", type=int, default=0)
    ap.add_argument("--dbg", type=int, default=0)
    ap.add_argument("--cpf", type=int, default=2)
    ap.add_argument("--qlead", type=int, default=-1)
    ap.add_argument("--hlead", type=int, default=-1)
    ap.add_argument("--olead", type=int, default=-1)
    ap.add_argument("--oearly", type=int, default=0)
    ap.add_argument("--flagwave", type=int, default=1)
    ap.add_argument("--xgat", type=int, default=10)
    ap.add_argument("--nrep", type=int, default=8)
    ap.add_argument("--satom", type=int, default=1)
    ap.add_argument("--maxhint", type=int, default=20)
    ap.add_argument("--hround", type=int, default=0)
    ap.add_argument("--fgate", type=int, default=0)
    ap.add_argument("--frep", type=int, default=8)
    ap.add_argument("--flag_delay", type=int, default=1)
    ap.add_argument("--qhint", type=int, default=0)
    ap.add_argument("--qsleep", type=int, default=4)
    ap.add_argument("--lcnt", type=int, default=0)
    ap.add_argument("--lthr", type=int, default=16)
    ap.add_argument("--spec", type=int, default=0)
    ap.add_argument("--ackst", type=int, default=0)
    ap.add_argument("--cstride", type=int, default=640)
    ap.add_argument("--midahead", type=int, default=1)
    ap.add_argument("--fine", type=int, default=0)
    ap.add_argument("--pad", type=lambda x: int(x, 0), default=0xd00)
    ap.add_argument("--touch", type=int, default=0)
    ap.add_argument("--sbias", type=int, default=0)
    ap.add_argument("--period", type=int, default=0)
    ap.add_argument("--toff", type=int, default=650)
    ap.add_argument("--qsync", type=int, default=0)
    ap.add_argument("--lprio", type=int, default=3)
    ap.add_argument("--cprio", type=int, default=0)
    ap.add_argument("--gprio", type=int, default=0)
    ap.add_argument("--kvmode", default="lin")
    ap.add_argument("--kvrot", type=int, default=4)
    ap.add_argument("--rotw", type=int, default=1)
    ap.add_argument("--lrot", type=int, default=3)
    ap.add_argument("--lflow", type=int, default=2)
    ap.add_argument("--wmin", type=int, default=27)
    ap.add_argument("--notif", type=int, default=1)
    ap.add_argument("--ndelay", type=int, default=0)
    ap.add_argument("--odelay", type=int, default=0)
    ap.add_argument("--pdelay", type=int, default=6)
    ap.add_argument("--nprogh", type=int, default=20)
    ap.add_argument("--nprogo", type=int, default=20)
    ap.add_argument("--gran", type=int, default=2)
    ap.add_argument("--barpos", type=int, default=1)
    ap.add_argument("--fsat", type=int, default=1)
    ap.add_argument("--gok", type=int, default=7)
    ap.add_argument("--fbar", type=int, default=1)
    ap.add_argument("--specw", type=int, default=1)
    ap.add_argument("--fearly", type=int, default=0)
    ap.add_argument("--tlb", type=int, default=0)
    ap.add_argument("--cpfc", type=int, default=0)
    ap.add_argument("--stlb", type=int, default=7)
    ap.add_argument("--vtouch", type=int, default=0)
    ap.add_argument("--probe", type=int, default=-1)
    ap.add_argument("--pol", default="nnnnnn")
    ap.add_argument("-o", default=None)
    return ap.parse_args(argv)

if __name__ == "__main__":
    opt = parse(sys.argv[1:])
    t = gen(opt)
    if opt.o: open(opt.o, "w").write(t)
    else: print(t)
```

```python
import sys, argparse, struct, math

KNAME = "gated_mix__sliding_block_cached__glu_gated_reglu__decode_kernel"
HEADER = open("gated_mix__sliding_block_cached__glu_gated_reglu__decode.s.ref").read().split("; Override launch")[0]

RA = 0
RB = 65536
XA = 131072
RQ = RB + 32768
XF = XA
QF = XA + 2048
PF = XA + 4096
RS = XA + 8192
ST = XA + 10240
AF = XA + 12288
FL = XA + 16384
F_PROG, F_LRDY, F_QRDY, F_WRDY, F_BQ, F_BM, F_BP, F_BA, F_RED, F_PUB0, F_PUB1, F_FREE0, F_FREE1, F_ERD, F_FRDY = [4*i for i in range(15)]
F_MAX = 64
F_G = 96
F_WT = 128
LDS_BYTES = FL + 128 + 256

WS_QP = 512 << 10
WS_FP = 1024 << 10
WS_OP = 1536 << 10
WS_GP = 1792 << 10
WS_LSE = 16 << 10
WS_QC = 64 << 10
WS_OC = 160 << 10
WS_HC = 256 << 10
WS_FC = 352 << 10
WS_STAMP = 8 << 20

class G:
    def __init__(self):
        self.o = []; self.nlab = 0
    def A(self, s):
        for line in s.split("\n"):
            self.o.append("    " + line.strip() if not line.strip().endswith(":") else line.strip())
    def lab(self, p="L"):
        self.nlab += 1
        return f"{p}_{self.nlab}"

def plan(s):
    out = []
    for t in s.split(","):
        if t == "d": out.append("d")
        else:
            a, b = t.split(":")
            out.append((int(a), tuple(int(x) for x in b.split("/")) if "/" in b else int(b)))
    return out

def gen(opt):
    g = G(); A = g.A
    CS = opt.cstride
    NWAVES = 11 if opt.notif else 10
    POL = {k: ('nt' if c == 'n' else '') for k, c in zip(('q','k','v','g','o','d'), opt.pol)}
    cur = ['q']
    STAMP = opt.stamp
    sX, sK, sV, sWQ, sWO, sBX, sWG, sWU = [16+2*i for i in range(8)]
    sWD, sGW, sOUT, sDBG = 32, 34, 36, 38
    sWS = 40
    sXCD, sR, sROLE = 42, 43, 44
    sU, sBETA, sG, sSPL, sRBK, sCB, sBB = 45, 46, 47, 48, 49, 50, 51
    sKS, sKB0 = 100, 101
    sLR = 53
    sWDN = 52
    sT = 54
    sT0, sT1, sT2, sT3 = 54, 56, 57, 53
    sSEL0, sSEL1, sSEL2, sSEL3 = 58, 59, 60, 61
    sPROG, sC = 62, 63
    sTMP, sTMP2, sTMP3, sCNT = 64, 65, 66, 67
    sGA, sGB = 68, 70
    sROT = 15
    sSM = 4
    sST = 72
    NST = 14
    SRD = 8
    def stamp(idx, key=False):
        if opt.probe == idx and not key: A("s_memrealtime s[96:97]")
        if opt.probe0 == idx and not key: A("s_memrealtime s[94:95]")
        if STAMP == 1 or (STAMP and (key or idx == 0)): A(f"s_memrealtime s[{sST+2*idx}:{sST+2*idx+1}]")
    touch = []
    def pad(kind):
        if not opt.touch: return
        l = g.lab("L_tp"); touch.append((kind, l))
        A(f"{l}:")
        A("s_setpc_b64 s[6:7]")
    def stampval(idx, sreg):
        if STAMP == 1: A(f"s_mov_b32 s{sST+2*idx}, s{sreg}")
    pb, pc, pm = plan(opt.pb), plan(opt.pc), plan(opt.pm)
    NB0 = opt.nb0
    assert NB0 <= 3

    stamp(0)
    if opt.fixdur: A("s_memrealtime s[98:99]")
    A("s_load_dwordx16 s[16:31], s[0:1], 0")
    A("s_load_dwordx8 s[32:39], s[0:1], 64")
    A("s_load_dwordx2 s[40:41], s[0:1], 96")
    A(f"s_cmp_ge_u32 s2, 256")
    A("s_cbranch_scc1 L_end")
    A("v_lshrrev_b32 v1, 6, v0")
    A("v_and_b32 v0, 63, v0")
    A("v_readfirstlane_b32 s3, v1")
    A(f"s_and_b32 s{sXCD}, s2, 7")
    A(f"s_lshr_b32 s{sR}, s2, 3")
    A(f"s_lshr_b32 s{sG}, s{sXCD}, 1")
    A(f"s_and_b32 s{sTMP3}, s{sXCD}, 1")
    A(f"s_add_u32 s{sROT}, s{sR}, s{2 if opt.rotw else sXCD}")
    A(f"s_lshl_b32 s{sTMP}, s{sXCD}, 1")
    A(f"s_sub_u32 s{sTMP}, s{sR}, s{sTMP}")
    A(f"s_sub_u32 s{sTMP}, s{sTMP}, 4")
    A(f"s_bfe_u32 s{sTMP2}, s{sTMP}, 0x20002")
    A(f"s_and_b32 s{sTMP}, s{sTMP}, 3")
    A(f"s_lshl2_add_u32 s{sU}, s{sTMP}, s{sTMP2}")
    A(f"s_cmp_ge_u32 s{sR}, 16")
    A(f"s_cselect_b32 s{sU}, s{sR}, s{sU}")
    A(f"s_lshr_b32 s{sTMP}, s{sU}, 3")
    A(f"s_lshl2_add_u32 s{sKS}, s{sTMP3}, s{sTMP}")
    A("s_cmp_lg_u32 s3, 0")
    A("s_cbranch_scc1 L_notloader")
    sSOFF, sSTEP, sNB, sBLK = 4, 5, 6, 7
    sIDX, sWRAP, sBASE = 12, 13, 14
    sNOW, sDL = 56, 58
    TIMED = "/" in (opt.pb + opt.pm + opt.pc)
    if TIMED: A(f"s_memrealtime s[{sNOW}:{sNOW+1}]")
    A(f"s_setprio {opt.lprio}")
    A(f"v_mov_b32 v9, {FL}")
    A("v_mov_b32 v10, 0xff7fffff")
    A("v_cmp_gt_u32 vcc, 16, v0")
    A("v_lshl_add_u32 v11, v0, 2, v9")
    A("v_lshrrev_b32 v2, 4, v0")
    A("v_cndmask_b32 v10, v10, 0, vcc")
    A("ds_write_b32 v11, v10")
    A("v_bfe_u32 v3, v0, 1, 3")
    A("v_xor_b32 v3, v3, v2")
    A("v_lshlrev_b32 v3, 5, v3")
    A("v_and_b32 v4, 1, v0")
    A("v_lshl_or_b32 v3, v4, 4, v3")
    A("v_xor_b32 v4, 0x80, v3")
    A("v_lshl_add_u32 v5, v2, 13, v3")
    A("v_lshl_add_u32 v6, v2, 13, v4")
    A(f"s_mov_b32 s{SRD+3}, 0x20000")
    A(f"s_and_b32 s{sTMP}, s{sU}, 7")
    A(f"s_lshl3_add_u32 s{sTMP}, s{sG}, s{sTMP}")
    A(f"s_lshl_b32 s{sTMP}, s{sTMP}, 8")
    A(f"s_lshl_b32 s{sSOFF}, s{sKS}, 20")
    A(f"s_add_u32 s{sSOFF}, s{sSOFF}, s{sTMP}")
    A(f"s_mov_b32 s{SRD+2}, {1024*4096*2}")
    A(f"s_mov_b32 s{sNB}, {NB0}")
    A(f"s_mov_b32 s{sSTEP}, {4*8192}")
    A(f"s_mov_b32 m0, {RQ}")
    A(f"s_mov_b32 s{sBLK}, {NB0}")
    if opt.fine == 2: stamp(5)
    A("s_waitcnt lgkmcnt(0)")
    if opt.fine == 2: stamp(6)
    A(f"s_mov_b64 s[{SRD}:{SRD+1}], s[{sWQ}:{sWQ+1}]")
    if TIMED: A(f"s_mov_b32 s{sDL}, s{sNOW}")
    if opt.barpos == 0: A("s_barrier")
    if opt.fine == 2: stamp(7)
    def blk_body(win, rot):
        GR = opt.gran
        if win is not None:
            assert win % GR == 0
            pj = win % 8
            back = (win - pj) // 8
        for j in range(8):
            half, i = j >> 2, j & 3
            if win is not None and j % GR == 0:
                if j == pj:
                    A(f"s_sub_u32 s{sTMP}, s{sBLK}, {back}")
                    A(f"s_max_i32 s{sPROG}, s{sTMP}, s{sPROG}")
                    A(f"v_mov_b32 v10, s{sPROG}")
                A(f"s_waitcnt vmcnt({win})")
                if j == pj: A(f"ds_write_b32 v9, v10 offset:{F_PROG}")
            v = 5 if ((i >> 1) & 1) == 0 else 6
            A(f"buffer_load_dwordx4 v{v}, s[{SRD}:{SRD+3}], s{sSOFF} offen {POL[cur[0]]} lds")
            A(f"s_add_u32 m0, m0, 1024")
            if rot == "kv":
                st = {"lin": 1024, "tr1": 8192 + (1024 if (half, i) == (1, 3) else 0),
                      "tr2": (1024 if i % 2 == 0 else 15360) + (2048 if (half, i) == (1, 3) else 0)}[opt.kvmode]
                A(f"s_add_u32 s{sIDX}, s{sIDX}, {st}")
                A(f"s_pack_lh_b32_b16 s{sSOFF}, s{sIDX}, s{sSOFF}")
            else:
                A(f"s_add_u32 s{sSOFF}, s{sSOFF}, s{sSTEP}")
        if rot == 7:
            A(f"s_add_u32 s{sIDX}, s{sIDX}, 1")
            A(f"s_cmp_eq_u32 s{sIDX}, 7")
            A(f"s_cselect_b32 s{sTMP}, {7*65536}, 0")
            A(f"s_sub_u32 s{sSOFF}, s{sSOFF}, s{sTMP}")
        if rot is True:
            A(f"s_add_u32 s{sIDX}, s{sIDX}, 1")
            A(f"s_and_b32 s{sIDX}, s{sIDX}, 7")
            A(f"s_cselect_b32 s{sTMP}, 0, s{sWRAP}")
            A(f"s_sub_u32 s{sSOFF}, s{sSOFF}, s{sTMP}")
    if opt.barpos == 1:
        blk_body(None, False)
        A("s_barrier")
        A(f"s_mov_b32 s{sNB}, {NB0-1}")
    A("L_top_loop:")
    blk_body(None, False)
    A(f"s_sub_u32 s{sNB}, s{sNB}, 1")
    A(f"s_cmp_lg_u32 s{sNB}, 0")
    A("s_cbranch_scc1 L_top_loop")
    if opt.barpos == 2: A("s_barrier")
    A("s_branch L_loader2")
    A("L_notloader:")
    if opt.stlb:
        A("s_cmp_eq_u32 s3, 10")
        A("s_cbranch_scc1 L_loader2")
    if opt.cpf:
        A(f"s_cmp_gt_u32 s3, {opt.cpf}")
        A("s_cbranch_scc1 L_cpf_done")
        if opt.cpfc:
            A(f"s_cmp_lg_u32 s{sR}, 14")
            A("s_cbranch_scc1 L_cpf_done")
        A("s_getpc_b64 s[4:5]")
        A("L_pc:")
        A(f"s_lshl_b32 s{sTMP}, s3, 13")
        A(f"s_sub_u32 s{sTMP}, s{sTMP}, 8192")
        A(f"v_lshl_add_u32 v1, v0, 7, s{sTMP}")
        A(f"v_cmp_gt_u32 vcc, L_end-L_pc, v1")
        A("s_and_saveexec_b64 s[6:7], vcc")
        A("s_cbranch_execz L_cpf_done2")
        A(f"global_load_dword v127, v1, s[4:5]")
        A("L_cpf_done2:")
        A("s_mov_b64 exec, -1")
        A("L_cpf_done:")
    A("s_barrier")
    A("s_branch L_cons")

    def decode2(keep=False):
        d = g.lab("L_d2"); m = g.lab("L_d2m")
        if STAMP:
            for i in range(1, NST):
                if not (opt.fine == 2 and keep and i in (5, 6, 7)): A(f"s_mov_b32 s{sST+2*i}, 0")
        A(f"s_mul_i32 s{sBETA}, s{sXCD}, 14")
        A(f"s_add_u32 s{sBETA}, s{sBETA}, s{sR}")
        A(f"s_mov_b32 s{sPROG}, 0")
        A(f"s_cmp_ge_u32 s{sR}, 16")
        A(f"s_cbranch_scc1 {m}")
        A(f"s_cmp_ge_u32 s{sR}, 14")
        A(f"s_cselect_b32 s{sROLE}, 2, 1")
        A(f"s_lshr_b32 s{sTMP}, s{sU}, 3")
        A(f"s_lshl1_add_u32 s{sRBK}, s{sXCD}, s{sTMP}")
        A(f"s_add_u32 s{sTMP}, s{sU}, 3")
        A(f"s_and_b32 s{sTMP}, s{sTMP}, 3")
        A(f"s_and_b32 s{sCB}, s{sU}, 4")
        A(f"s_or_b32 s{sCB}, s{sCB}, s{sTMP}")
        A(f"s_lshl_b32 s{sKB0}, s{sRBK}, 3")
        A(f"s_add_u32 s{sLR}, s{sR}, s{sXCD}")
        A(f"s_and_b32 s{sLR}, s{sLR}, {7 if opt.lrot & 1 else 0}")
        A(f"s_branch {d}")
        A(f"{m}:")
        A(f"s_mov_b32 s{sROLE}, 0")
        A(f"s_and_b32 s{sTMP}, s{sXCD}, 1")
        A(f"s_bfe_u32 s{sBB}, s{sR}, 0x20002")
        A(f"s_lshl2_add_u32 s{sBB}, s{sTMP}, s{sBB}")
        A(f"s_and_b32 s{sSPL}, s{sR}, 3")
        A(f"s_bfe_u32 s{sTMP}, s{sR}, 0x10003")
        A(f"s_lshl1_add_u32 s{sRBK}, s{sXCD}, s{sTMP}")
        A(f"s_mul_i32 s{sKB0}, s{sRBK}, 7")
        A(f"s_and_b32 s{sLR}, s{sR}, {7 if opt.lrot & 2 else 0}")
        A(f"s_cmp_eq_u32 s{sLR}, 7")
        A(f"s_cselect_b32 s{sLR}, 3, s{sLR}")
        A(f"s_add_u32 s{sCB}, s{sR}, 1")
        A(f"s_and_b32 s{sCB}, s{sCB}, 7")
        A(f"{d}:")

    A("L_loader2:")
    decode2(True)
    if opt.stlb:
        A("s_cmp_eq_u32 s3, 0")
        A("s_cbranch_scc1 L_loader3")
        A(f"v_mov_b32 v9, {FL}")
        if STAMP:
            for i in (5, 6, 7): A(f"s_mov_b32 s{sST+2*i}, 0")
        A("s_waitcnt lgkmcnt(0)")
        if opt.stlb & 4:
            A(f"s_lshl_b32 s{sTMP}, s2, 6")
            A(f"s_load_dword s8, s[{sX}:{sX+1}], s{sTMP}")
            A(f"s_lshl_b32 s{sTMP}, s{sR}, 6")
            A(f"s_load_dword s9, s[{sGW}:{sGW+1}], s{sTMP}")
        A(f"s_lshl_b32 s{sTMP}, s{sKB0}, 16")
        A(f"s_lshl_b32 s{sTMP2}, s{sCB}, 8")
        A(f"s_add_u32 s{sTMP}, s{sTMP}, s{sTMP2}")
        A(f"s_cmp_ge_u32 s{sR}, 16")
        A("s_cbranch_scc1 L_stM")
        A(f"s_load_dword s4, s[{sWO}:{sWO+1}], s{sTMP}")
        if opt.stlb & 2:
            A(f"s_cmp_eq_u32 s{sROLE}, 2")
            A("s_cbranch_scc1 L_stD")
            A(f"s_bitcmp0_b32 s{sBETA}, 1")
            A(f"s_cselect_b64 s[12:13], s[{sWG}:{sWG+1}], s[{sWU}:{sWU+1}]")
            A(f"s_and_b32 s{sTMP}, s{sBETA}, 1")
            A(f"s_mul_i32 s{sTMP}, s{sTMP}, {512*7168}")
            A(f"s_lshr_b32 s{sTMP2}, s{sBETA}, 2")
            A(f"s_lshl_b32 s{sTMP2}, s{sTMP2}, 8")
            A(f"s_add_u32 s{sTMP}, s{sTMP}, s{sTMP2}")
            for i in range(3):
                A(f"s_load_dword s{5+i}, s[12:13], s{sTMP}")
                A(f"s_add_u32 s{sTMP}, s{sTMP}, {255*7168}")
        A("s_branch L_stD")
        A("L_stM:")
        A(f"s_load_dword s4, s[{sWD}:{sWD+1}], s{sTMP}")
        A(f"s_add_u32 s{sTMP}, s{sTMP}, {223*2048}")
        A(f"s_load_dword s10, s[{sWD}:{sWD+1}], s{sTMP}")
        A(f"s_lshl2_add_u32 s{sTMP}, s{sBB}, s{sG}")
        A(f"s_lshl4_add_u32 s{sTMP}, s{sTMP}, s{sSPL}")
        A(f"s_add_u32 s{sTMP}, s{sTMP}, 12")
        A(f"s_lshl_b32 s{sTMP}, s{sTMP}, 16")
        if opt.stlb & 2: A(f"s_load_dword s7, s[{sK}:{sK+1}], s{sTMP}")
        A(f"s_load_dword s5, s[{sV}:{sV+1}], s{sTMP}")
        A(f"s_lshl_b32 s{sTMP}, s{sR}, 9")
        A(f"s_lshl_b32 s{sTMP2}, s{sXCD}, 6")
        A(f"s_add_u32 s{sTMP}, s{sTMP}, s{sTMP2}")
        A(f"s_load_dword s6, s[{sOUT}:{sOUT+1}], s{sTMP} glc")
        A("L_stD:")
        pass
        A("s_barrier")
        A("s_waitcnt lgkmcnt(0)")
        A("s_branch L_notif")
        A("L_loader3:")
    stamp(1)
    def lds_wait_ge(off, val, vtmp="v11", vaddr="v9", sleep=0):
        l = g.lab("L_w")
        A(f"{l}:")
        if sleep: A(f"s_sleep {sleep}")
        A(f"ds_read_b32 {vtmp}, {vaddr} offset:{off}")
        A("s_waitcnt lgkmcnt(0)")
        A(f"v_readfirstlane_b32 s{sTMP}, {vtmp}")
        A(f"s_cmp_ge_u32 s{sTMP}, {val}")
        A(f"s_cbranch_scc0 {l}")
    def wmax(w): return max(w) if isinstance(w, tuple) else w
    def blk_loop(nblk, win, rot):
        l = g.lab("L_ld")
        if nblk > 1:
            A(f"s_mov_b32 s{sNB}, {nblk}")
            A(f"{l}:")
        if isinstance(win, tuple):
            hi = g.lab("L_hi"); j = g.lab("L_jn")
            A(f"s_memrealtime s[{sNOW}:{sNOW+1}]")
            A(f"s_mul_i32 s{sTMP2}, s{sBLK}, {opt.period}")
            A(f"s_add_u32 s{sTMP2}, s{sTMP2}, {opt.toff}")
            A("s_waitcnt lgkmcnt(0)")
            A(f"s_sub_u32 s{sTMP}, s{sNOW}, s{sDL}")
            A(f"s_cmp_gt_u32 s{sTMP}, s{sTMP2}")
            A(f"s_cbranch_scc1 {hi}")
            for k in range(3, win[0]//8, -1):
                A(f"s_sub_u32 s{sTMP}, s{sBLK}, {k}")
                A(f"s_max_i32 s{sPROG}, s{sTMP}, s{sPROG}")
                A(f"v_mov_b32 v10, s{sPROG}")
                A(f"s_waitcnt vmcnt({8*k})")
                A(f"ds_write_b32 v9, v10 offset:{F_PROG}")
            blk_body(win[0], False)
            A(f"s_branch {j}")
            A(f"{hi}:")
            blk_body(win[1], False)
            A(f"{j}:")
            assert not rot
        else:
            blk_body(win, rot)
        A(f"s_add_u32 s{sBLK}, s{sBLK}, 1")
        if nblk > 1:
            A(f"s_sub_u32 s{sNB}, s{sNB}, 1")
            A(f"s_cmp_lg_u32 s{sNB}, 0")
            A(f"s_cbranch_scc1 {l}")
    def drain(maxwin, kmin=0):
        for k in range((maxwin + 4 + 7)//8 - 1, kmin - 1, -1):
            A(f"s_sub_u32 s{sTMP}, s{sBLK}, {k}")
            A(f"s_max_i32 s{sPROG}, s{sTMP}, s{sPROG}")
            A(f"v_mov_b32 v10, s{sPROG}")
            A(f"s_waitcnt vmcnt({8*k})")
            A(f"ds_write_b32 v9, v10 offset:{F_PROG}")
    def set_stride(stride):
        A(f"s_mov_b32 s{sSTEP}, {4*stride}")
        if stride & (stride-1) == 0:
            sh = stride.bit_length()-1
            A(f"v_lshl_add_u32 v5, v2, {sh}, v3")
            A(f"v_lshl_add_u32 v6, v2, {sh}, v4")
        else:
            A(f"v_mul_u32_u24 v8, {stride}, v2")
            A("v_add_u32 v5, v8, v3")
            A("v_add_u32 v6, v8, v4")
        A(f"s_mov_b32 s{sWRAP}, {256*stride}")
    XSRD = 68
    def xloads(n, ldsbase):
        for j in range(4):
            A(f"s_add_u32 s{sTMP}, s{sROT}, {2*j}")
            A(f"s_and_b32 s{sTMP}, s{sTMP}, 7")
            A(f"s_lshl_b32 s{sTMP}, s{sTMP}, 6")
            A(f"s_add_u32 s{sTMP}, s{sTMP}, s{sTMP3}")
            for q in range(n//4):
                A(f"s_mov_b32 m0, {ldsbase + 4096*q + 1024*j - 512*q}")
                A("s_nop 0")
                A(f"buffer_load_dwordx4 v7, s[{XSRD}:{XSRD+3}], s{sTMP} offen offset:{512*q} lds")
    def run_plan(pl, segs, start, hook=None):
        blk = 0; lastwin = 0
        segmap = {x[0]: x for x in segs}
        cur[0] = 'q'
        rot = False
        items = []
        for it in pl:
            if it == "d": items.append(it); continue
            n, w = it
            while n:
                c = min(n, 4 - blk if blk < 4 else 8 - ((blk - 4) % 8))
                if blk < start: c = min(c, start - blk)
                if hook and blk < hook[0]: c = min(c, hook[0] - blk)
                if blk >= start: items.append((blk, c, w))
                blk += c; n -= c
            lastw = w
        lastwin = pl[0][1]
        for it in items:
            if it == "d":
                drain(max(wmax(lastwin), 8*start)); continue
            b0, c, w = it
            if b0 >= 4 and (b0 - 4) % 8 == 0:
                seg = (b0 - 4) // 8 + 1
                stamp(1 + seg)
                if seg >= 2: lds_wait_ge(F_FREE0 + 4*(seg-2), 8)
                if b0 in segmap:
                    segmap[b0][1](); rot = segmap[b0][2]
                elif rot:
                    A(f"s_add_u32 s{sSOFF}, s{sSOFF}, s{sWRAP}")
                A(f"s_mov_b32 m0, {RA if seg % 2 == 1 else RB}")
            if hook and b0 == hook[0]: hook[1]()
            blk_loop(c, w, rot)
            lastwin = w
        stamp(8)
        if opt.fgate:
            A(f"s_mul_i32 s{sTMP}, s{sCB}, {16*CS}")
            A(f"s_add_u32 s{sTMP}, s{sTMP}, {WS_FC}")
            A(f"s_add_u32 s4, s{sWS}, s{sTMP}")
            A(f"s_addc_u32 s5, s{sWS+1}, 0")
            A(f"v_mul_u32_u24 v5, {CS}, v0")
            A("v_mov_b32 v6, 1")
        drain(max(wmax(x[1]) for x in pl if x != "d"), 1 if opt.fearly else 0)
        if not opt.fearly: stamp(9)
        A("s_branch L_ld_end")
    def late_seg(ptr, nbytes):
        def f():
            cur[0] = 'o' if ptr == sWO else 'd'
            set_stride(2048)
            A(f"s_mov_b64 s[{SRD}:{SRD+1}], s[{ptr}:{ptr+1}]\ns_mov_b32 s{SRD+2}, {nbytes}")
            A(f"s_mov_b32 s{sIDX}, s{sLR}")
            A(f"s_add_u32 s{sSOFF}, s{sKB0}, s{sLR}")
            A(f"s_lshl_b32 s{sSOFF}, s{sSOFF}, 16")
            A(f"s_lshl_b32 s{sTMP}, s{sCB}, 8")
            A(f"s_add_u32 s{sSOFF}, s{sSOFF}, s{sTMP}")
        return f
    A("v_and_b32 v7, 7, v0")
    A("v_lshlrev_b32 v7, 11, v7")
    A("v_lshrrev_b32 v8, 3, v0")
    A("v_lshl_add_u32 v7, v8, 4, v7")
    A(f"s_mov_b64 s[{XSRD}:{XSRD+1}], s[{sX}:{sX+1}]\ns_mov_b32 s{XSRD+2}, 16384\ns_mov_b32 s{XSRD+3}, 0x20000")
    A(f"s_lshl_b32 s{sTMP3}, s{sKS}, 8")
    A(f"s_mov_b32 m0, {XF}")
    A("s_nop 0")
    A(f"buffer_load_dwordx4 v7, s[{XSRD}:{XSRD+3}], s{sTMP3} offen lds")
    A(f"s_mov_b32 m0, {XF + 1024 - 128}")
    A("s_nop 0")
    A(f"buffer_load_dwordx4 v7, s[{XSRD}:{XSRD+3}], s{sTMP3} offen offset:128 lds")
    A(f"s_mov_b32 m0, {RQ + 8192*NB0}")
    A(f"s_cmp_ge_u32 s{sR}, 16")
    A("s_cbranch_scc1 L_ld_M")
    def b_seg1():
        cur[0] = 'g'
        A(f"s_and_b32 s{sROT}, s{sROT}, 6")
        A(f"s_mov_b32 s{sIDX}, s{sROT}")
        A(f"s_and_b32 s{sTMP2}, s{sBETA}, 1")
        set_stride(7168)
        A(f"s_mul_i32 s{sSOFF}, s{sTMP2}, {512*7168}")
        A(f"s_lshr_b32 s{sTMP}, s{sBETA}, 2")
        A(f"s_lshl_b32 s{sTMP}, s{sTMP}, 8")
        A(f"s_add_u32 s{sSOFF}, s{sSOFF}, s{sTMP}")
        A(f"s_mul_i32 s{sTMP}, s{sROT}, {32*7168}")
        A(f"s_add_u32 s{sSOFF}, s{sSOFF}, s{sTMP}")
        A(f"s_bitcmp0_b32 s{sBETA}, 1")
        A(f"s_cselect_b64 s[{SRD}:{SRD+1}], s[{sWG}:{sWG+1}], s[{sWU}:{sWU+1}]")
        A(f"s_mov_b32 s{SRD+2}, {1024*3584*2}")
    A(f"s_cmp_eq_u32 s{sROLE}, 2")
    A("s_cbranch_scc1 L_ld_C")
    assert sum(x[0] for x in pb if x != "d") == 28
    XGAT = opt.xgat
    def xg_hook():
        A(f"s_and_b32 s{sTMP3}, s{sBETA}, 1")
        A(f"s_lshl_b32 s{sTMP3}, s{sTMP3}, 10")
        xloads(8, XF + 2048)
        A(f"s_mov_b32 m0, {RA + 8192*(XGAT-4)}")
    run_plan(pb, [(4, b_seg1, True), (20, late_seg(sWO, 4096*1024*2), True)], NB0, hook=(XGAT, xg_hook))
    A("L_ld_C:")
    assert sum(x[0] for x in pc if x != "d") == 12 and pc[1] == "d" and pc[0][0] == 4
    def c_seg1():
        late_seg(sWO, 4096*1024*2)()
        A(f"s_mov_b32 s{sBLK}, 20")
    run_plan(pc, [(4, c_seg1, True)], NB0)
    A("L_ld_M:")
    def m_seg1():
        cur[0] = 'k'
        set_stride(256)
        A(f"s_mul_i32 s{sROT}, s{sROT}, {opt.kvrot*1024}")
        A(f"s_mov_b32 s{sIDX}, s{sROT}")
        A(f"s_lshl2_add_u32 s{sTMP}, s{sBB}, s{sG}")
        A(f"s_lshl4_add_u32 s{sTMP}, s{sTMP}, s{sSPL}")
        A(f"s_add_u32 s{sTMP}, s{sTMP}, 12")
        A(f"s_pack_ll_b32_b16 s{sSOFF}, s{sIDX}, s{sTMP}")
        A(f"s_mov_b64 s[{SRD}:{SRD+1}], s[{sK}:{sK+1}]\ns_mov_b32 s{SRD+2}, {8*4*4096*128*2}")
    def m_seg2():
        cur[0] = 'v'
        A(f"s_mov_b64 s[{SRD}:{SRD+1}], s[{sV}:{sV+1}]")
        A(f"s_mov_b32 s{sIDX}, s{sROT}")
        A(f"s_pack_lh_b32_b16 s{sSOFF}, s{sIDX}, s{sSOFF}")
    assert sum(x[0] for x in pm if x != "d") == 27
    run_plan(pm, [(4, m_seg1, "kv"), (12, m_seg2, "kv"), (20, late_seg(sWD, 3584*1024*2), 7)], NB0)
    A("L_ld_end:")
    if opt.nocomm: A("s_branch L_exit")
    def fbump():
        if opt.flag_delay: A(f"s_sleep {opt.flag_delay}")
        if opt.fsat:
            A("s_mov_b32 s6, 1")
            for r in range(opt.frep): A(f"s_atomic_add s6, s[4:5], {CS*r}")
        else:
            A(f"s_bfm_b64 exec, {opt.frep}, 0")
            A("global_atomic_add v5, v6, s[4:5] sc1")
            A("s_mov_b64 exec, -1")
    if opt.fearly:
        A(f"ds_read_b32 v11, v9 offset:{F_BA}")
        A(f"v_mov_b32 v10, s{sBLK}")
        A(f"s_waitcnt vmcnt({opt.fearly}) lgkmcnt(0)")
        A(f"v_readfirstlane_b32 s{sTMP}, v11")
        A(f"s_cmp_lt_u32 s{sTMP}, 8")
        A("s_cbranch_scc1 L_ld_late")
        A("s_mov_b32 s6, 1")
        for r in range(opt.frep): A(f"s_atomic_add s6, s[4:5], {CS*r}")
        A("s_waitcnt vmcnt(0)")
        A(f"ds_write_b32 v9, v10 offset:{F_PROG}")
        A("s_barrier")
        stamp(9)
        A("s_branch L_ld_fin")
        A("L_ld_late:")
        A("s_waitcnt vmcnt(0)")
        A(f"ds_write_b32 v9, v10 offset:{F_PROG}")
        stamp(9)
    if opt.fgate == 2 and not (opt.dbg & 1):
        lds_wait_ge(F_BA, opt.gok)
        fbump()
    A("s_barrier")
    if opt.fgate == 1 and not (opt.dbg & 1): fbump()
    A("L_ld_fin:")
    if opt.fixdur and opt.lprobe: A("s_branch L_noepoch")
    if opt.fgate and opt.fbar:
        A(f"s_cmp_lt_u32 s{sR}, 16")
        A("s_cbranch_scc1 L_exit")
        A("s_barrier")
    A("s_branch L_exit")

    A("L_cons:")
    vL16, vTR, vACT, vT, vPUB = 1, 2, 3, 4, 5
    vTMP, vTMP2, vTMP3 = 6, 7, 8
    vWA, vAA = 10, 11
    vW, vB, vACC, vACC2 = 12, 16, 20, 24
    vGA = 28
    vLS = 44
    vK = 52
    vQ = 84
    vRG, vRW, vRR, vOUT, vONE, vAFW, vFLG = 116, 117, 118, 119, 120, 121, 122
    vTP, vTC, vL8 = 123, 124, 125
    vSTW, vSTR = 126, 15
    vTA, vAX, vEN = 48, 49, 50
    NV = 128
    A("s_waitcnt lgkmcnt(0)")
    A(f"s_load_dword s{sT}, s[{sWS}:{sWS+1}], 0")
    decode2()
    stamp(1)
    A(f"v_mov_b32 v9, {FL}")
    if opt.notif:
        A(f"s_cmp_eq_u32 s3, 10")
        A("s_cbranch_scc1 L_notif")
    A(f"s_sub_u32 s{sC}, s3, 1")
    sSC, sM3, sMN, sEM, sRNG = 58, 60, 61, 56, 57
    A(f"s_mov_b32 s{sM3}, 0x00030003")
    A(f"s_mov_b32 s{sMN}, 0xfffcfffc")
    A(f"s_mov_b32 s{sRNG}, {27 << 23:#x}")
    A(f"v_mov_b32 v{vAX}, 0")
    A(f"v_lshlrev_b32 v{vL8}, 3, v0")
    A(f"v_mov_b32 v9, {FL}")
    A(f"v_mov_b32 v{vONE}, 1")
    A(f"v_lshlrev_b32 v{vL16}, 4, v0")
    A(f"v_mul_u32_u24 v{vFLG}, {CS}, v0")
    A(f"v_lshrrev_b32 v{vTMP2}, 4, v0")
    A(f"v_bfe_u32 v{vTMP3}, v0, 2, 2")
    A(f"v_lshl_add_u32 v{vTR}, v{vTMP2}, 3, v{vTMP3}")
    A(f"v_lshlrev_b32 v{vTR}, 8, v{vTR}")
    A(f"v_and_b32 v{vACT}, 1, v{vTMP2}")
    A(f"v_lshl_or_b32 v{vTMP3}, v{vACT}, 2, v{vTMP3}")
    A(f"v_xor_b32 v{vTMP3}, s{sC}, v{vTMP3}")
    A(f"v_lshl_or_b32 v{vTR}, v{vTMP3}, 5, v{vTR}")
    A(f"v_and_b32 v{vTMP3}, 3, v0")
    A(f"v_lshl_or_b32 v{vTR}, v{vTMP3}, 3, v{vTR}")
    A(f"v_and_b32 v{vTMP3}, 7, v0")
    A(f"v_lshl_add_u32 v{vACT}, v{vTMP2}, 3, v{vTMP3}")
    A(f"v_lshlrev_b32 v{vACT}, 4, v{vACT}")
    A(f"v_lshrrev_b32 v{vAFW}, 5, v0")
    A(f"v_lshlrev_b32 v{vAFW}, 8, v{vAFW}")
    A(f"v_and_b32 v{vTMP2}, 2, v0")
    A(f"v_lshl_or_b32 v{vAFW}, v{vTMP2}, 6, v{vAFW}")
    A(f"v_and_b32 v{vTMP2}, 28, v0")
    A(f"v_lshl_or_b32 v{vAFW}, v{vTMP2}, 2, v{vAFW}")
    A(f"v_and_b32 v{vTMP2}, 1, v0")
    A(f"v_lshl_or_b32 v{vAFW}, v{vTMP2}, 3, v{vAFW}")
    A(f"s_lshl_b32 s{sTMP}, s{sC}, 9")
    A(f"s_add_u32 s{sTMP}, s{sTMP}, {AF}")
    A(f"v_add_u32 v{vAFW}, s{sTMP}, v{vAFW}")
    def afswz(v):
        A(f"v_lshrrev_b32 v{vTMP2}, 3, v{v}")
        A(f"v_and_b32 v{vTMP2}, 0x70, v{vTMP2}")
        A(f"v_xor_b32 v{v}, v{v}, v{vTMP2}")
    afswz(vAFW)
    A("s_waitcnt lgkmcnt(0)")
    A(f"s_add_u32 s{sT}, s{sT}, 0x11111111")
    A(f"s_mov_b32 s{sT+1}, s{sT}")
    A(f"v_mov_b32 v{vT}, s{sT}")
    def tagbits(dst, vsh):
        A(f"v_lshrrev_b32 v{dst}, v{vsh}, v{vT}")
        A(f"v_and_b32 v{dst}, 15, v{dst}")
        A(f"v_lshl_or_b32 v{dst}, v{dst}, 14, v{dst}")
        A(f"v_and_b32 v{dst}, s{sM3}, v{dst}")
    A(f"v_and_b32 v{vTMP}, 7, v0")
    A(f"v_lshlrev_b32 v{vTMP}, 2, v{vTMP}")
    tagbits(vTC, vTMP)
    A(f"v_lshrrev_b32 v{vTMP}, 2, v0")
    A(f"v_and_b32 v{vTMP}, 12, v{vTMP}")
    A(f"v_and_b32 v{vTMP2}, 1, v0")
    A(f"v_lshl_or_b32 v{vTMP}, v{vTMP2}, 4, v{vTMP}")
    tagbits(vTP, vTMP)

    def refresh_prog():
        A(f"ds_read_b32 v{vTMP}, v9 offset:{F_PROG}")
        A("s_waitcnt lgkmcnt(0)")
        A(f"v_readfirstlane_b32 s{sPROG}, v{vTMP}")
    def wait_prog(val_is_sgpr, val, sleep=0):
        l = g.lab("L_wp"); d = g.lab("L_wpd")
        v = f"s{val}" if val_is_sgpr else str(val)
        A(f"s_cmp_ge_u32 s{sPROG}, {v}")
        A(f"s_cbranch_scc1 {d}")
        A(f"{l}:")
        if sleep: A(f"s_sleep {sleep}")
        refresh_prog()
        A(f"s_cmp_ge_u32 s{sPROG}, {v}")
        A(f"s_cbranch_scc0 {l}")
        A(f"{d}:")
    def signal(off):
        A("s_mov_b64 exec, 1")
        A(f"ds_add_u32 v9, v{vONE} offset:{off}")
        A("s_mov_b64 exec, -1")
    def cwait(off, val, sleep=0):
        lds_wait_ge(off, val, vtmp=f"v{vTMP}", sleep=sleep)
    def cwait_rd(off, val, nrd, reads):
        l = g.lab("L_cw")
        A(f"{l}:")
        A(f"ds_read_b32 v{vTMP}, v9 offset:{off}")
        reads()
        A(f"s_waitcnt lgkmcnt({nrd})")
        A(f"v_readfirstlane_b32 s{sTMP}, v{vTMP}")
        A(f"s_cmp_ge_u32 s{sTMP}, {val}")
        A(f"s_cbranch_scc0 {l}")
    def fbits(x): return struct.unpack("<I", struct.pack("<f", x))[0]
    ADJ = 1.0
    LQ, LO_, LG, LF = [x + opt.sbias for x in (8, 12, 10, 20)]
    def setscale(lg):
        A(f"s_mov_b32 s{sSC}, {fbits(2.0**lg):#x}")
    def encode(sc=None, tp=vTP, ta=vTA):
        src = vACC
        d = g.lab("L_en")
        scs = f"s[{sSC}:{sSC+1}]" if sc is None else f"v[{sc}:{sc+1}]"
        A(f"v_pk_mul_f32 v[{src}:{src+1}], v[{src}:{src+1}], {scs} op_sel_hi:[1,0]")
        A(f"v_pk_mul_f32 v[{src+2}:{src+3}], v[{src+2}:{src+3}], {scs} op_sel_hi:[1,0]")
        A(f"v_max3_f32 v{vTMP}, |v{src}|, |v{src+1}|, |v{src+2}|")
        A(f"v_max_f32 v{vTMP}, |v{src+3}|, v{vTMP}")
        A(f"v_subrev_u32 v{vTMP2}, {115 << 23:#x}, v{vTMP}")
        A(f"v_cmp_le_u32 vcc, s{sRNG}, v{vTMP2}")
        r = g.lab("L_er")
        A(f"{r}:")
        A(f"v_cvt_pkrtz_f16_f32 v{vEN}, v{src}, v{src+1}")
        A(f"v_cvt_pkrtz_f16_f32 v{vEN+1}, v{src+2}, v{src+3}")
        A(f"v_add_u32 v{vEN}, 0x00020002, v{vEN}")
        A(f"v_add_u32 v{vEN+1}, 0x00020002, v{vEN+1}")
        A(f"v_and_or_b32 v{vEN}, v{vEN}, s{sMN}, v{vAX}")
        A(f"v_and_or_b32 v{vEN+1}, v{vEN+1}, s{sMN}, v{tp}")
        A(f"s_cbranch_vccz {d}")
        A(f"s_call_b64 s[6:7], L_encs")
        A(f"s_branch {r}")
        A(f"{d}:")
    def publish(src, base=sGA, sc=None):
        encode(sc)
        A("s_mov_b32 exec_lo, 0x00ff00ff\ns_mov_b32 exec_hi, 0x00ff00ff")
        if not (opt.dbg & 33): A(f"global_store_dwordx2 v{vPUB}, v[{vEN}:{vEN+1}], s[{base}:{base+1}] sc1")
    NREP = opt.nrep; HREP = max(1, NREP // 4)
    sNH = 9
    def bump(kind):
        if opt.dbg & 33: return
        if opt.satom:
            A(f"s_mov_b32 s8, 1")
            if kind == "h":
                e = g.lab("L_bh")
                for r in range(HREP): A(f"s_atomic_add s8, s[{sGB}:{sGB+1}], {CS*r}")
                A(f"s_cmp_eq_u32 s{sNH}, {HREP}")
                A(f"s_cbranch_scc1 {e}")
                for r in range(HREP, 2*HREP): A(f"s_atomic_add s8, s[{sGB}:{sGB+1}], {CS*r}")
                A(f"{e}:")
            else:
                for r in range(NREP): A(f"s_atomic_add s8, s[{sGB}:{sGB+1}], {CS*r}")
        else:
            if kind == "h": A(f"s_bfm_b64 exec, s{sNH}, 0")
            else: A(f"s_bfm_b64 exec, {NREP}, 0")
            A(f"global_atomic_add v{vFLG}, v{vONE}, s[{sGB}:{sGB+1}] sc1")
    def flag(cnt, nrep, last=7):
        d = g.lab("L_fl")
        A("s_mov_b64 exec, 1")
        A(f"ds_add_rtn_u32 v{vTMP}, v9, v{vONE} offset:{cnt}")
        A("s_waitcnt lgkmcnt(0)")
        A(f"v_readfirstlane_b32 s{sTMP}, v{vTMP}")
        A(f"s_cmp_lg_u32 s{sTMP}, {last}")
        A(f"s_cbranch_scc1 {d}")
        bump(nrep)
        A(f"{d}:")
        A("s_mov_b64 exec, -1")
    def staged(cnt, last, hi_off, kind):
        d = g.lab("L_sg")
        A(f"ds_write_b64 v{vSTW}, v[{vEN}:{vEN+1}]")
        A("s_mov_b64 exec, 1")
        A(f"ds_add_rtn_u32 v{vTMP}, v9, v{vONE} offset:{cnt}")
        A("s_mov_b64 exec, -1")
        A(f"ds_read_b128 v[{vGA}:{vGA+3}], v{vSTR}")
        A(f"ds_read_b128 v[{vGA+4}:{vGA+7}], v{vSTR} offset:1024")
        A(f"v_add_u32 v{vTMP2}, {hi_off}, v{vPUB}")
        A("s_waitcnt lgkmcnt(2)")
        A(f"v_readfirstlane_b32 s{sTMP}, v{vTMP}")
        A(f"s_cmp_lg_u32 s{sTMP}, {last}")
        A(f"s_cbranch_scc1 {d}")
        A("s_waitcnt lgkmcnt(0)")
        if not (opt.dbg & 1):
            A(f"global_store_dwordx4 v{vPUB}, v[{vGA}:{vGA+3}], s[{sGA}:{sGA+1}] sc1")
            A(f"global_store_dwordx4 v{vTMP2}, v[{vGA+4}:{vGA+7}], s[{sGA}:{sGA+1}] sc1")
        if kind: bump(kind)
        A("s_mov_b64 exec, -1")
        A("s_nop 0")
        A(f"{d}:")
        A("s_waitcnt lgkmcnt(0)")
    def flag_now(nrep):
        d = g.lab("L_fn")
        A(f"s_cmp_lg_u32 s{sC}, {opt.flagwave}")
        A(f"s_cbranch_scc1 {d}")
        bump(nrep)
        A("s_mov_b64 exec, -1")
        A(f"{d}:")
    def ws_addr(dst, base_const, soff):
        A(f"s_add_u32 s{soff}, s{soff}, {base_const}")
        A(f"s_add_u32 s{dst}, s{sWS}, s{soff}")
        A(f"s_addc_u32 s{dst+1}, s{sWS+1}, 0")
    def pub_voff(shift):
        A(f"v_and_b32 v{vTMP2}, 15, v0")
        A(f"v_lshrrev_b32 v{vTMP3}, 4, v0")
        A(f"v_lshlrev_b32 v{vTMP3}, 3, v{vTMP3}")
        A(f"v_lshl_or_b32 v{vPUB}, v{vTMP2}, {shift}, v{vTMP3}")
    def sample(base, offs, sleep=0, cntstamp=None):
        l = g.lab("L_sm"); d = g.lab("L_smd"); e = g.lab("L_sme")
        if opt.dbg & 7: return
        A(f"s_mov_b32 s{sCNT}, 0")
        if sleep: A(f"s_branch {e}")
        A(f"{l}:")
        if sleep:
            A(f"s_sleep {sleep}")
            A(f"{e}:")
        for i, o in enumerate(offs):
            A(f"s_load_dword s{sSM+i}, s[{base}:{base+1}], {o} glc")
        A(f"s_add_u32 s{sCNT}, s{sCNT}, 1")
        A(f"s_cmp_gt_u32 s{sCNT}, {opt.maxpoll}")
        A("s_waitcnt lgkmcnt(0)")
        A(f"s_cbranch_scc1 {d}")
        for i in range(len(offs)):
            A(f"s_xor_b32 s{sSM+i}, s{sSM+i}, s{sT}")
            if i: A(f"s_or_b32 s{sSM}, s{sSM}, s{sSM+i}")
        A(f"s_and_b32 s{sSM}, s{sSM}, 0xff")
        A(f"s_cbranch_scc1 {l}")
        A(f"{d}:")
        if cntstamp is not None: stampval(cntstamp, sCNT)
    def pollcnt(base, target, sleep, cntstamp=None):
        l = g.lab("L_pf"); d = g.lab("L_pfd"); e = g.lab("L_pfe")
        if opt.dbg & 7: return
        A(f"s_mov_b32 s{sCNT}, 0")
        if sleep: A(f"s_branch {e}")
        A(f"{l}:")
        if sleep:
            A(f"s_sleep {sleep}")
            A(f"{e}:")
        A(f"s_load_dword s8, s[{base}:{base+1}], 0 glc")
        A(f"s_add_u32 s{sCNT}, s{sCNT}, 1")
        A(f"s_cmp_gt_u32 s{sCNT}, {opt.maxhint}")
        A("s_waitcnt lgkmcnt(0)")
        A(f"s_cbranch_scc1 {d}")
        A(f"s_cmp_eq_u32 s8, s{target}")
        A(f"s_cbranch_scc0 {l}")
        A(f"{d}:")
        if cntstamp is not None: stampval(cntstamp, sCNT)
    def gather(nld=4, mid=None, cntstamp=None, sleep=0, work=None, kind='M', defer=False):
        l = g.lab("L_ga"); d = g.lab("L_gad"); c = g.lab("L_gac"); rt = g.lab("L_gar")
        assert nld in (1, 4)
        def issue():
            if opt.dbg & 2: return
            if opt.gprio: A(f"s_setprio {opt.gprio}")
            for i in range(nld):
                A(f"global_load_dwordx2 v[{vGA+2*i}:{vGA+2*i+1}], v{vL8}, s[{sGA}:{sGA+1}] offset:{512*i} sc1")
        if mid is not None or sleep:
            issue()
            if mid is not None: mid()
            A(f"s_mov_b32 s{sEM}, s{sM3}")
            A(f"s_mov_b32 s{sCNT}, 0")
            A(f"s_branch {c}")
            pad(kind)
        else:
            A(f"s_mov_b32 s{sEM}, s{sM3}")
            A(f"s_mov_b32 s{sCNT}, 0")
        A(f"{l}:")
        if sleep: A(f"s_sleep {sleep}")
        issue()
        A(f"{c}:")
        A(f"s_add_u32 s{sCNT}, s{sCNT}, 1")
        vC, vC0 = vTMP2, vTMP
        for i in range(nld):
            A(f"s_waitcnt vmcnt({nld-1-i})")
            A(f"v_xor_b32 v{vGA+2*i+1}, v{vTC}, v{vGA+2*i+1}")
            if i == 2:
                A(f"v_or3_b32 v{vC0}, v{vGA}, v{vGA+2}, v{vGA+4}")
                A(f"v_or3_b32 v{vC}, v{vGA+1}, v{vGA+3}, v{vGA+5}")
            if i == nld-1:
                if nld == 4:
                    A(f"v_or_b32 v{vC0}, v{vC0}, v{vGA+6}")
                    A(f"v_bitop3_b32 v{vC}, v{vC}, v{vGA+7}, s{sM3} bitop3:0xa8")
                else:
                    A(f"v_and_b32 v{vC}, s{sM3}, v{vGA+1}")
                A(f"v_and_or_b32 v{vC0}, v{vC0 if nld == 4 else vGA}, s{sEM}, v{vC}")
                A(f"v_cmp_ne_u32 vcc, 0, v{vC0}")
            if work is not None and (i < nld-1 or opt.specw): work(i)
        A(f"s_cbranch_vccz {d}")
        A(f"v_cmp_ne_u32 vcc, 0, v{vC}")
        A(f"s_cbranch_vccnz {rt}")
        A(f"s_mov_b32 s{sEM}, 0")
        if defer: A(f"s_branch {d}")
        else:
            A("s_call_b64 s[6:7], L_fixr")
            A(f"s_branch {c}")
        A(f"{rt}:")
        A(f"s_cmp_le_u32 s{sCNT}, {0 if (opt.dbg & 6) else opt.maxpoll}")
        A(f"s_cbranch_scc1 {l}")
        A(f"{d}:")
        if cntstamp is not None: stampval(cntstamp, sCNT)
        if work is not None and not opt.specw: work(nld-1)
    vS0, vS1, vSCA = vGA + 12, vGA + 8, vLS
    def acc(i, dst, first):
        for r in range(4):
            c2 = "0" if first else f"v{dst+r}"
            A(f"v_fma_mix_f32 v{dst+r}, v{vGA+2*i+(r>>1)}, v{vSCA+i}, {c2} op_sel:[{r&1},0,0] op_sel_hi:[1,0,0]")
    def setsca(lg):
        for i in range(4): A(f"v_mov_b32 v{vSCA+i}, {fbits(2.0**-lg):#x}")
    def wreads(k0, k1):
        for kb in range(k0, k1):
            o = 8192*kb
            A(f"ds_read_b64_tr_b16 v[{vK+4*kb}:{vK+4*kb+1}], v{vWA} offset:{o}")
            A(f"ds_read_b64_tr_b16 v[{vK+4*kb+2}:{vK+4*kb+3}], v{vWA} offset:{o+1024}")
    def mf(kb, first):
        c = "0" if first else f"v[{vACC}:{vACC+3}]"
        A(f"v_mfma_f32_16x16x32_bf16 v[{vACC}:{vACC+3}], v[{vK+4*kb}:{vK+4*kb+3}], v[{vQ+4*kb}:{vQ+4*kb+3}], {c}")
    vAB = vW
    def actreads(n, swz=False):
        for kb in range(n):
            A(f"ds_read_b128 v[{vQ+4*kb}:{vQ+4*kb+3}], v{vAB if (swz and kb & 1) else vAA} offset:{512*kb}")
    sFA, sRA, sPE = 12, 10, 14
    def late_setup(wbase, padd, pend):
        A(f"v_add_u32 v{vWA}, {wbase}, v{vTR}")
        A(f"v_add_u32 v{vAA}, {AF}, v{vACT}")
        afswz(vAA)
        A(f"v_xor_b32 v{vAB}, 64, v{vAA}")
        A(f"v_and_b32 v{vTMP2}, 4, v0")
        A(f"v_lshlrev_b32 v{vPUB}, 10, v{vTMP2}")
        A(f"v_and_b32 v{vTMP2}, 3, v0")
        A(f"v_lshl_or_b32 v{vPUB}, v{vTMP2}, 5, v{vPUB}")
        A(f"v_lshrrev_b32 v{vTMP2}, 4, v0")
        A(f"v_lshl_or_b32 v{vPUB}, v{vTMP2}, 3, v{vPUB}")
        A(f"s_lshl3_add_u32 s{sTMP}, s{sCB}, s{sC}")
        A(f"s_lshl_b32 s{sTMP}, s{sTMP}, 6")
        A(f"s_add_u32 s{sTMP}, s{sTMP}, s{sRBK}")
        A(f"s_lshl_b32 s{sTMP}, s{sTMP}, 7")
        ws_addr(sFA, WS_FP + 128*padd, sTMP)
        A(f"s_mov_b32 s{sPE}, {pend}")
        setscale(LF)
        A(f"v_mov_b32 v{vAX}, 0")
        A(f"s_mov_b32 s{sWDN}, 21")
        A(f"s_add_u32 s{sTMP}, s{sKB0}, s{sC}")
        A(f"s_lshl_b32 s{sTMP}, s{sTMP}, 11")
    sRET = 6
    def wcatch():
        d = g.lab("L_wc")
        A(f"s_cmp_lt_u32 s{sPROG}, s{sWDN}")
        A(f"s_cbranch_scc1 {d}")
        A(f"s_call_b64 s[{sRET}:{sRET+1}], L_wcatch")
        A(f"{d}:")
    def late_wait():
        l = g.lab("L_lw"); d = g.lab("L_lwd")
        A(f"{l}:")
        A(f"ds_read_b64 v[{vTMP}:{vTMP+1}], v9 offset:{F_PROG}")
        A("s_waitcnt lgkmcnt(0)")
        A(f"v_readfirstlane_b32 s{sTMP}, v{vTMP+1}")
        A(f"v_readfirstlane_b32 s{sPROG}, v{vTMP}")
        A(f"s_cmp_lg_u32 s{sTMP}, 0")
        A(f"s_cbranch_scc1 {d}")
        wcatch()
        A(f"s_branch {l}")
        A(f"{d}:")
    def late_mid():
        A(f"s_add_u32 s{sTMP2}, s{sPROG}, {opt.midahead}")
        A(f"s_min_u32 s{sTMP2}, s{sTMP2}, s{sPE}")
        wcatch()
        wait_prog(True, sTMP2)
        wcatch()
    vPG = 126
    def late_post_issue():
        if opt.lflow == 1: A(f"ds_read_b32 v{vPG}, v9 offset:{F_PROG}")
    def late_post():
        if opt.fgate == 2: signal(F_BA)
        if opt.lflow != 1: return
        A("s_waitcnt lgkmcnt(0)")
        A(f"v_readfirstlane_b32 s{sPROG}, v{vPG}")
        wcatch()

    if opt.cprio: A(f"s_setprio {opt.cprio}")
    signal(F_ERD)
    A(f"s_cmp_eq_u32 s3, 9")
    A("s_cbranch_scc1 L_poller")
    if opt.nocomm:
        signal(F_FREE0); signal(F_FREE1)
        A("s_branch L_exit")
    def egloop(last, name, lead=None, nrep=0):
        A(f"L_eg_loop{name}:")
        A(f"ds_read_b128 v[{vB}:{vB+3}], v{vAA}")
        wait_prog(True, sCNT)
        A(f"ds_read_b64_tr_b16 v[{vW}:{vW+1}], v{vWA}")
        A(f"ds_read_b64_tr_b16 v[{vW+2}:{vW+3}], v{vWA} offset:1024")
        if lead is not None and lead >= 0:
            A(f"s_cmp_lg_u32 s{sCNT}, {last - lead}")
            A(f"s_cbranch_scc1 L_eg_nf{name}")
            flag_now(nrep)
            A(f"L_eg_nf{name}:")
        A(f"v_add_u32 v{vWA}, 8192, v{vWA}")
        A(f"v_add_u32 v{vAA}, 512, v{vAA}")
        A(f"s_add_u32 s{sCNT}, s{sCNT}, 1")
        A(f"s_cmp_le_u32 s{sCNT}, {last}")
        A("s_waitcnt lgkmcnt(0)")
        A(f"v_mfma_f32_16x16x32_bf16 v[{vACC}:{vACC+3}], v[{vW}:{vW+3}], v[{vB}:{vB+3}], v[{vACC}:{vACC+3}]")
        A(f"s_cbranch_scc1 L_eg_loop{name}")
    A(f"s_cmp_ge_u32 s{sC}, 4")
    A("s_cbranch_scc1 L_noq")
    A(f"v_and_b32 v{vTMP2}, 7, v0")
    A(f"v_lshlrev_b32 v{vSTW}, 8, v{vTMP2}")
    A(f"v_and_b32 v{vTMP2}, 8, v0")
    A(f"v_lshl_or_b32 v{vSTW}, v{vTMP2}, 2, v{vSTW}")
    A(f"v_lshrrev_b32 v{vTMP3}, 4, v0")
    A(f"v_lshl_or_b32 v{vSTW}, v{vTMP3}, 3, v{vSTW}")
    A(f"s_lshl_b32 s{sTMP}, s{sC}, 6")
    A(f"s_add_u32 s{sTMP}, s{sTMP}, {ST}")
    A(f"v_add_u32 v{vSTW}, s{sTMP}, v{vSTW}")
    A(f"v_add_u32 v{vSTR}, {ST}, v{vL16}")
    A(f"v_and_b32 v{vPUB}, 0xf0, v{vL16}")
    A(f"v_lshl_or_b32 v{vPUB}, v{vTMP3}, 16, v{vPUB}")
    A(f"v_lshlrev_b32 v{vTMP3}, 2, v{vTMP3}")
    A(f"v_lshl_or_b32 v{vTMP3}, v{vTMP2}, 1, v{vTMP3}")
    tagbits(vB, vTMP3)
    setscale(LQ)
    A(f"s_and_b32 s{sTMP3}, s{sU}, 7")
    A(f"s_lshl3_add_u32 s{sTMP}, s{sG}, s{sTMP3}")
    A(f"s_lshl3_add_u32 s{sTMP}, s{sTMP}, s{sKS}")
    A(f"s_lshl_b32 s{sTMP}, s{sTMP}, 8")
    ws_addr(sGA, WS_QP, sTMP)
    A(f"s_mul_i32 s{sTMP}, s{sG}, {32*CS}")
    ws_addr(sGB, WS_QC, sTMP)
    A(f"s_lshl_b32 s{sTMP}, s{sC}, 1")
    A(f"s_xor_b32 s{sTMP}, s{sTMP}, s{sC}")
    A(f"s_lshl_b32 s{sTMP}, s{sTMP}, 5")
    A(f"v_xor_b32 v{vWA}, s{sTMP}, v{vTR}")
    A(f"v_add_u32 v{vWA}, {RQ}, v{vWA}")
    A(f"v_xor_b32 v{vW}, 32, v{vWA}")
    A(f"v_add_u32 v{vAA}, {XF}, v{vACT}")
    A(f"v_cmp_eq_u32 s[4:5], 0, v{vTMP2}")
    cwait(F_ERD, 9, sleep=1)
    wait_prog(False, 4, sleep=1)
    if opt.qlead >= 0: flag_now("q")
    actreads(4)
    wreads(0, 4)
    for kb in range(4):
        A(f"s_waitcnt lgkmcnt({6 if kb == 0 else 6})")
        A(f"ds_read_b64_tr_b16 v[{vK+16+4*kb}:{vK+16+4*kb+1}], v{vW} offset:{8192*kb}")
        A(f"ds_read_b64_tr_b16 v[{vK+16+4*kb+2}:{vK+16+4*kb+3}], v{vW} offset:{8192*kb+1024}")
        mf(kb, kb == 0)
    A("s_mov_b64 exec, 3")
    A(f"ds_add_u32 v9, v{vONE} offset:{F_FREE0}")
    A("s_mov_b64 exec, -1")
    for kb in range(4):
        A(f"s_waitcnt lgkmcnt({7-2*kb})")
        c1 = "0" if kb == 0 else f"v[{vACC2}:{vACC2+3}]"
        A(f"v_mfma_f32_16x16x32_bf16 v[{vACC2}:{vACC2+3}], v[{vK+16+4*kb}:{vK+16+4*kb+3}], v[{vQ+4*kb}:{vQ+4*kb+3}], {c1}")
    A("s_nop 7")
    for r in range(4): A(f"v_cndmask_b32 v{vACC+r}, v{vACC2+r}, v{vACC+r}, s[4:5]")
    encode(None, vB, vB+1)
    staged(F_PUB0, 3, 4 << 16, "q" if opt.qhint else None)
    if opt.ackst:
        stamp(2); A("s_waitcnt vmcnt(0)"); stamp(5)
    A(f"v_mov_b32 v{vAX}, 0")
    A("L_noq:")
    if not opt.ackst: stamp(2)
    A(f"s_cmp_ge_u32 s{sR}, 16")
    A("s_cbranch_scc1 L_roleM")
    A(f"s_cmp_eq_u32 s{sROLE}, 2")
    A("s_cbranch_scc1 L_bc_late")
    pub_voff(5)
    setscale(LG)
    A(f"s_and_b32 s{sTMP}, s{sBETA}, -4")
    A(f"s_lshr_b32 s{sTMP2}, s{sC}, 1")
    A(f"s_add_u32 s{sTMP}, s{sTMP}, s{sTMP2}")
    A(f"s_and_b32 s{sTMP2}, s{sBETA}, 3")
    A(f"s_lshl2_add_u32 s{sTMP}, s{sTMP}, s{sTMP2}")
    A(f"s_and_b32 s{sTMP2}, s{sC}, 1")
    A(f"s_lshl1_add_u32 s{sTMP}, s{sTMP}, s{sTMP2}")
    A(f"s_lshl_b32 s{sTMP}, s{sTMP}, 8")
    ws_addr(sGA, WS_GP, sTMP)
    def hc_addr():
        A(f"s_and_b32 s{sTMP}, s{sBETA}, -4")
        A(f"s_or_b32 s{sTMP2}, s{sBETA}, 3")
        A(f"s_mul_i32 s{sTMP}, s{sTMP}, 147")
        A(f"s_mul_i32 s{sTMP2}, s{sTMP2}, 147")
        A(f"s_lshr_b32 s{sTMP}, s{sTMP}, 10")
        A(f"s_lshr_b32 s{sTMP2}, s{sTMP2}, 10")
        A(f"s_cmp_eq_u32 s{sTMP}, s{sTMP2}")
        A(f"s_cselect_b32 s{sNH}, {HREP}, {2*HREP}")
        A(f"s_mul_i32 s{sTMP}, s{sTMP}, {CS*HREP}")
        ws_addr(sGB, WS_HC, sTMP)
    if not opt.notif: hc_addr()
    for r in range(4): A(f"v_mov_b32 v{vACC+r}, 0")
    A(f"v_mov_b32 v{vWA}, v{vTR}")
    A(f"v_add_u32 v{vAA}, {XF + 2048}, v{vACT}")
    A(f"s_mov_b32 s{sCNT}, 5")
    wait_prog(False, opt.xgat + 1, sleep=1)
    egloop(12, "G1")
    signal(F_FREE1)
    stamp(3)
    egloop(20, "G2", opt.hlead, "h")
    A("s_nop 7")
    publish(vACC)
    if opt.hlead < 0 and not opt.notif: flag(F_PUB1, "h")
    else: A("s_mov_b64 exec, -1")
    stamp(6)
    if opt.ackst:
        A("s_waitcnt vmcnt(0)"); stamp(4)
    A("L_bc_late:")
    late_setup(RA, 0, 28)
    ws_addr(sGA, WS_OP, sTMP)
    A(f"s_lshl_b32 s{sTMP2}, s{sC}, 4")
    A(f"v_and_b32 v{vTMP3}, 32, v0")
    A(f"v_lshlrev_b32 v{vTMP3}, 2, v{vTMP3}")
    A(f"v_add3_u32 v{vTMP3}, v{vTMP3}, s{sTMP2}, v9")
    A(f"s_lshl_b32 s{sTMP3}, s{sLR}, 3")
    A(f"v_subrev_u32 v{vAFW}, s{sTMP3}, v0")
    A(f"v_and_b32 v{vAFW}, 62, v{vAFW}")
    A(f"v_lshlrev_b32 v{vAFW}, 6, v{vAFW}")
    A(f"v_and_b32 v{vTMP2}, 1, v0")
    A(f"v_lshl_or_b32 v{vAFW}, v{vTMP2}, 3, v{vAFW}")
    A(f"s_add_u32 s{sTMP2}, s{sTMP2}, {AF}")
    A(f"v_add_u32 v{vAFW}, s{sTMP2}, v{vAFW}")
    afswz(vAFW)
    late_wait()
    stamp(7)
    def owork(i):
        if i == 2: late_post_issue()
        if i == 3: late_post()
    gather(mid=late_mid, cntstamp=13, sleep=opt.gsleep, work=owork, kind='B', defer=True)
    if STAMP == 1: A("s_waitcnt lgkmcnt(0)")
    cwait_rd(F_WRDY, 1, 0, lambda: A(f"ds_read_b128 v[{vSCA}:{vSCA+3}], v{vTMP3} offset:{F_WT}"))
    stamp(8)
    A(f"s_cmp_lg_u32 s{sEM}, 0")
    A("s_cbranch_scc1 L_onofix")
    A("s_call_b64 s[6:7], L_fix")
    A("L_onofix:")
    for i in range(4): acc(i, vS0, i == 0)
    A("s_branch L_late")

    A("L_roleM:")
    vXr, vGWr = vK, vK + 8
    A(f"s_cmp_lt_u32 s{sC}, 4")
    A("s_cbranch_scc1 L_nogate")
    wait_prog(False, opt.ggate, sleep=1)
    A(f"s_and_b32 s{sTMP}, s{sR}, 1")
    A(f"s_lshl2_add_u32 s{sTMP}, s{sTMP}, s{sC}")
    A(f"s_sub_u32 s{sTMP3}, s{sTMP}, 4")
    A(f"s_lshl_b32 s{sTMP}, s{sTMP3}, 11")
    A(f"v_add_u32 v{vTMP3}, s{sTMP}, v{vL16}")
    for i in range(2):
        A(f"global_load_dwordx4 v[{vXr+4*i}:{vXr+4*i+3}], v{vTMP3}, s[{sX}:{sX+1}] offset:{1024*i}")
        A(f"global_load_dwordx4 v[{vGWr+4*i}:{vGWr+4*i+3}], v{vL16}, s[{sGW}:{sGW+1}] offset:{1024*i}")
    A(f"v_mov_b32 v{vACC2}, 0")
    A("s_waitcnt vmcnt(0)")
    for i in range(8):
        A(f"v_lshlrev_b32 v{vW}, 16, v{vXr+i}")
        A(f"v_and_b32 v{vW+1}, 0xffff0000, v{vXr+i}")
        A(f"v_lshlrev_b32 v{vW+2}, 16, v{vGWr+i}")
        A(f"v_and_b32 v{vW+3}, 0xffff0000, v{vGWr+i}")
        A(f"v_mul_f32 v{vW}, v{vW}, v{vW+2}")
        A(f"v_mul_f32 v{vW+1}, v{vW+1}, v{vW+3}")
        A(f"v_cvt_pk_bf16_f32 v{vW}, v{vW}, v{vW+1}")
        A(f"v_lshlrev_b32 v{vW+1}, 16, v{vW}")
        A(f"v_and_b32 v{vW}, 0xffff0000, v{vW}")
        A(f"v_add_f32 v{vACC2}, v{vACC2}, v{vW+1}")
        A(f"v_add_f32 v{vACC2}, v{vACC2}, v{vW}")
    for off in (0x041F, 0x081F, 0x101F, 0x201F, 0x401F):
        A(f"ds_swizzle_b32 v{vW}, v{vACC2} offset:{off:#x}")
        A("s_waitcnt lgkmcnt(0)")
        A(f"v_add_f32 v{vACC2}, v{vACC2}, v{vW}")
    A(f"v_mov_b32 v{vW}, v{vACC2}")
    A("s_nop 1")
    A(f"v_permlane32_swap_b32 v{vACC2}, v{vW}")
    A(f"v_add_f32 v{vACC2}, v{vACC2}, v{vW}")
    def rbf(v):
        A(f"v_cvt_pk_bf16_f32 v{v}, v{v}, v{v}")
        A(f"v_and_b32 v{v}, 0xffff0000, v{v}")
    rbf(vACC2)
    A(f"v_mul_f32 v{vACC2}, 0xbfb8aa3b, v{vACC2}")
    A(f"v_exp_f32 v{vACC2}, v{vACC2}")
    A("s_nop 0")
    A(f"v_add_f32 v{vACC2}, 1.0, v{vACC2}")
    A(f"v_rcp_f32 v{vACC2}, v{vACC2}")
    A("s_nop 0")
    rbf(vACC2)
    A(f"s_lshl_b32 s{sTMP}, s{sTMP3}, 2")
    A(f"v_add_u32 v{vTMP2}, s{sTMP}, v9")
    A("s_mov_b64 exec, 1")
    A(f"ds_write_b32 v{vTMP2}, v{vACC2} offset:{F_G}")
    A("s_mov_b64 exec, -1")
    A("L_nogate:")
    A(f"s_lshl2_add_u32 s{sTMP}, s{sBB}, s{sG}")
    A(f"s_lshl3_add_u32 s{sTMP}, s{sTMP}, s{sC}")
    A(f"s_lshl_b32 s{sTMP}, s{sTMP}, 11")
    ws_addr(sGA, WS_QP, sTMP)
    A(f"v_bfe_u32 v{vTMP2}, v0, 2, 2")
    A(f"v_and_b32 v{vTMP3}, 3, v0")
    A(f"v_lshl_add_u32 v{vTMP2}, v{vTMP2}, 3, v{vTMP3}")
    A(f"v_lshlrev_b32 v{vWA}, 8, v{vTMP2}")
    A(f"v_lshrrev_b32 v{vTMP2}, 5, v0")
    A(f"v_and_b32 v{vTMP3}, 7, v0")
    A(f"v_xor_b32 v{vTMP2}, v{vTMP2}, v{vTMP3}")
    A(f"v_lshl_or_b32 v{vWA}, v{vTMP2}, 5, v{vWA}")
    A(f"v_and_b32 v{vTMP2}, 16, v0")
    A(f"s_lshl_b32 s{sTMP}, s{sC}, 13")
    A(f"v_add3_u32 v{vWA}, v{vWA}, v{vTMP2}, s{sTMP}")
    vQA, vMX, vPA = vW, vW + 1, vW + 2
    A(f"v_and_b32 v{vQA}, 30, v0")
    A(f"v_lshlrev_b32 v{vQA}, 6, v{vQA}")
    A(f"v_and_b32 v{vTMP2}, 1, v0")
    A(f"v_lshl_or_b32 v{vQA}, v{vTMP2}, 3, v{vQA}")
    A(f"v_lshrrev_b32 v{vTMP2}, 5, v0")
    A(f"v_lshl_or_b32 v{vQA}, v{vTMP2}, 2, v{vQA}")
    A(f"s_lshl_b32 s{sTMP}, s{sC}, 4")
    A(f"s_add_u32 s{sTMP}, s{sTMP}, {QF}")
    A(f"v_add_u32 v{vQA}, s{sTMP}, v{vQA}")
    A(f"v_lshl_add_u32 v{vMX}, v{vTMP3}, 2, v9")
    A(f"s_lshl_b32 s{sTMP}, s{sC}, 9")
    A(f"s_add_u32 s{sTMP}, s{sTMP}, {PF}")
    A(f"v_add_u32 v{vPA}, s{sTMP}, v{vACT}")
    vOTP, vOTA = vRW, vRR
    A(f"v_lshrrev_b32 v{vTMP3}, 4, v0")
    A(f"v_and_b32 v{vTMP2}, 7, v0")
    A(f"v_lshlrev_b32 v{vSTW}, 8, v{vTMP2}")
    A(f"v_lshl_or_b32 v{vSTW}, v{vTMP3}, 3, v{vSTW}")
    A(f"s_lshl_b32 s{sTMP}, s{sC}, 5")
    A(f"s_add_u32 s{sTMP}, s{sTMP}, {ST}")
    A(f"v_add_u32 v{vSTW}, s{sTMP}, v{vSTW}")
    A(f"v_add_u32 v{vSTR}, {ST}, v{vL16}")
    A(f"v_and_b32 v{vPUB}, 0x1f0, v{vL16}")
    A(f"v_and_b32 v{vTMP2}, 32, v0")
    A(f"v_lshl_or_b32 v{vPUB}, v{vTMP2}, 9, v{vPUB}")
    A(f"s_and_b32 s{sTMP}, s{sC}, 1")
    A(f"s_lshl_b32 s{sTMP}, s{sTMP}, 4")
    A(f"v_lshl_or_b32 v{vTMP3}, v{vTMP3}, 2, s{sTMP}")
    tagbits(vOTP, vTMP3)
    if opt.qhint: cwait(F_QRDY, 1, sleep=1)
    else: wait_prog(False, opt.qgate, sleep=1)
    stamp(3)
    def kfrags():
        A(f"s_add_u32 s{sTMP2}, s{sC}, 5")
        wait_prog(True, sTMP2)
        for db in range(4):
            if db: A(f"v_xor_b32 v{vAA}, {64*db}, v{vWA}")
            a = vAA if db else vWA
            A(f"ds_read_b128 v[{vK+4*db}:{vK+4*db+3}], v{a}")
            A(f"ds_read_b128 v[{vK+16+4*db}:{vK+16+4*db+3}], v{a} offset:1024")
        signal(F_FREE1)
        A(f"v_add_u32 v{vAA}, {QF}, v{vACT}")
    setsca(LQ)
    def qwork(i): acc(i, vS0, i == 0)
    gather(nld=4, mid=kfrags, cntstamp=11, sleep=opt.qsleep, work=qwork)
    stamp(4)
    A("s_nop 1")
    A(f"v_permlane32_swap_b32 v{vS0}, v{vS0+2}")
    A(f"v_permlane32_swap_b32 v{vS0+1}, v{vS0+3}")
    A(f"v_add_f32 v{vS0}, v{vS0}, v{vS0+2}")
    A(f"v_add_f32 v{vS0+1}, v{vS0+1}, v{vS0+3}")
    A(f"v_cvt_pk_bf16_f32 v{vGA}, v{vS0}, v{vS0+1}")
    A(f"ds_write_b32 v{vQA}, v{vGA}")
    signal(F_BQ)
    A(f"s_lshl_b32 s{sTMP}, s{sG}, 5")
    A(f"s_add_u32 s{sTMP}, s{sTMP}, s{sBB}")
    A(f"s_lshl2_add_u32 s{sTMP}, s{sTMP}, s{sSPL}")
    A(f"s_lshl_b32 s{sTMP}, s{sTMP}, 9")
    ws_addr(sGA, WS_OP, sTMP)
    A(f"s_lshl2_add_u32 s{sTMP3}, s{sBB}, s{sSPL}")
    A(f"s_mul_i32 s{sTMP}, s{sG}, {32*CS}")
    ws_addr(sGB, WS_OC, sTMP)
    A(f"s_lshl_b32 s{sTMP}, s{sG}, 5")
    A(f"s_add_u32 s{sTMP}, s{sTMP}, s{sTMP3}")
    A(f"s_lshl_b32 s{sTMP}, s{sTMP}, 6")
    ws_addr(sFA, WS_LSE, sTMP)
    cbits = struct.unpack("<I", struct.pack("<f", math.log2(math.e) / math.sqrt(128.0)))[0]
    A(f"s_mov_b32 s{sTMP2}, {cbits:#x}")
    if STAMP == 1: A("s_waitcnt lgkmcnt(0)")
    if opt.spec: cwait_rd(F_BQ, 8, 4, lambda: actreads(4))
    else:
        cwait(F_BQ, 8); actreads(4)
    for db in range(4):
        A(f"s_waitcnt lgkmcnt({3-db})")
        c0 = "0" if db == 0 else f"v[{vACC}:{vACC+3}]"
        c1 = "0" if db == 0 else f"v[{vACC2}:{vACC2+3}]"
        A(f"v_mfma_f32_16x16x32_bf16 v[{vACC}:{vACC+3}], v[{vK+4*db}:{vK+4*db+3}], v[{vQ+4*db}:{vQ+4*db+3}], {c0}")
        A(f"v_mfma_f32_16x16x32_bf16 v[{vACC2}:{vACC2+3}], v[{vK+16+4*db}:{vK+16+4*db+3}], v[{vQ+4*db}:{vQ+4*db+3}], {c1}")
    A(f"v_add_u32 v{vAA}, {PF}, v{vACT}")
    A(f"v_add_u32 v{vWA}, {RB}, v{vTR}")
    vONES = vGA
    for r in range(4): A(f"v_mov_b32 v{vONES+r}, 0x3f803f80")
    A("s_nop 1")
    A(f"v_max3_f32 v{vTMP2}, v{vACC}, v{vACC+1}, v{vACC+2}")
    A(f"v_max3_f32 v{vTMP2}, v{vTMP2}, v{vACC+3}, v{vACC2}")
    A(f"v_max3_f32 v{vTMP2}, v{vTMP2}, v{vACC2+1}, v{vACC2+2}")
    A(f"v_max_f32 v{vTMP2}, v{vTMP2}, v{vACC2+3}")
    A("s_mov_b32 exec_lo, 0x00ff00ff\ns_mov_b32 exec_hi, 0x00ff00ff")
    A(f"ds_max_f32 v{vMX}, v{vTMP2} offset:{F_MAX}")
    signal(F_BM)
    vM = vLS
    cwait_rd(F_BM, 8, 1, lambda: A(f"ds_read_b32 v{vM}, v{vMX} offset:{F_MAX}"))
    if opt.olead >= 0 and opt.oearly:
        A(f"ds_read_b32 v{vTMP}, v9 offset:{F_PROG}")
    A("s_waitcnt lgkmcnt(0)")
    A(f"s_mov_b32 s{sWDN}, 0")
    if opt.olead >= 0 and opt.oearly:
        A(f"v_readfirstlane_b32 s{sPROG}, v{vTMP}")
        A(f"s_cmp_lt_u32 s{sPROG}, {20 - opt.olead}")
        A("s_cbranch_scc1 L_of_no1")
        flag_now("q")
        A(f"s_mov_b32 s{sWDN}, 1")
        A("L_of_no1:")
    A(f"v_mul_f32 v{vM}, s{sTMP2}, v{vM}")
    for r in range(8):
        A(f"v_fma_f32 v{vACC+r}, v{vACC+r}, s{sTMP2}, -v{vM}")
    for r in range(8):
        A(f"v_exp_f32 v{vACC+r}, v{vACC+r}")
    A("s_nop 0")
    for r in range(4):
        A(f"v_cvt_pk_bf16_f32 v{vB+r}, v{vACC+2*r}, v{vACC+2*r+1}")
    A(f"ds_write_b128 v{vPA}, v[{vB}:{vB+3}]")
    signal(F_BP)
    if opt.spec: cwait_rd(F_BP, 8, 8, lambda: actreads(8))
    else:
        cwait(F_BP, 8); actreads(8)
    A(f"ds_read_b32 v{vTMP}, v9 offset:{F_PROG}")
    for kb in range(8):
        A(f"s_waitcnt lgkmcnt({8-kb})")
        c1 = "0" if kb == 0 else f"v[{vACC2}:{vACC2+3}]"
        A(f"v_mfma_f32_16x16x32_bf16 v[{vACC2}:{vACC2+3}], v[{vONES}:{vONES+3}], v[{vQ+4*kb}:{vQ+4*kb+3}], {c1}")
    A("s_waitcnt lgkmcnt(0)")
    A(f"v_readfirstlane_b32 s{sPROG}, v{vTMP}")
    stamp(5)
    vRL = vLS + 2
    def lse_part():
        A(f"v_log_f32 v{vLS+1}, v{vACC2}")
        A(f"v_rcp_f32 v{vRL}, v{vACC2}")
        A("s_nop 0")
        A(f"v_mul_f32 v{vRL}, {fbits(2.0**LO_):#x}, v{vRL}")
        d = g.lab("L_nolse")
        A(f"s_cmp_lg_u32 s{sC}, 0")
        A(f"s_cbranch_scc1 {d}")
        A(f"v_add_f32 v{vM}, v{vM}, v{vLS+1}")
        A(f"v_mov_b32 v{vLS+1}, s{sT}")
        A(f"v_lshlrev_b32 v{vTMP2}, 3, v0")
        A("s_mov_b64 exec, 0xff")
        if not (opt.dbg & 1):
            A(f"global_store_dwordx2 v{vTMP2}, v[{vLS}:{vLS+1}], s[{sFA}:{sFA+1}] sc1")
            if opt.lcnt:
                A(f"s_bfm_b64 exec, {NREP}, 0")
                A(f"v_mov_b32 v{vTMP2}, 0x10000")
                A(f"global_atomic_add v{vFLG}, v{vTMP2}, s[{sGB}:{sGB+1}] sc1")
        A("s_mov_b64 exec, -1")
        A(f"{d}:")
    A(f"s_cmp_lt_u32 s{sPROG}, 20")
    A("s_cbranch_scc1 L_pv_slow")
    def oflag():
        if opt.olead < 0: return
        d = g.lab("L_of")
        A(f"s_cmp_lg_u32 s{sWDN}, 0")
        A(f"s_cbranch_scc1 {d}")
        flag_now("q")
        A(f"{d}:")
    wreads(0, 7)
    lse_part()
    oflag()
    for kb in range(7):
        A(f"s_waitcnt lgkmcnt({14-2*kb if kb else 12})")
        if kb == 0: wreads(7, 8)
        mf(kb, kb == 0)
    A("s_branch L_pv_last")
    pad("M")
    A("L_pv_slow:")
    A("s_nop 4")
    lse_part()
    for kb in range(8):
        wait_prog(False, 12 + kb + 1)
        wreads(kb, kb+1)
        if 12 + kb + 1 == 20 - opt.olead: oflag()
        if kb:
            A("s_waitcnt lgkmcnt(2)")
            mf(kb-1, kb == 1)
    A("L_pv_last:")
    A("s_waitcnt lgkmcnt(0)")
    mf(7, False)
    A("s_nop 7")
    encode(vRL, vOTP, vOTA)
    A("s_mov_b32 exec_lo, 0x00ff00ff\ns_mov_b32 exec_hi, 0x00ff00ff")
    staged(F_PUB1, 7, 2 << 14, "q" if (opt.olead < 0 and not opt.notif) else None)
    stamp(6)
    if opt.ackst:
        A("s_waitcnt vmcnt(0)"); stamp(3)
    A(f"s_and_b32 s{sTMP2}, s{sR}, 1")
    A(f"s_lshl_b32 s{sTMP2}, s{sTMP2}, 4")
    A(f"v_and_b32 v{vTMP2}, 12, v0")
    A(f"v_add3_u32 v{vTMP2}, v{vTMP2}, s{sTMP2}, v9")
    A(f"ds_read_b32 v{vRG}, v{vTMP2} offset:{F_G}")
    A(f"s_lshl4_add_u32 s{sTMP}, s{sXCD}, s{sR}")
    A(f"s_sub_u32 s{sTMP3}, s{sTMP}, 16")
    A(f"s_lshl3_add_u32 s{sTMP}, s{sTMP3}, s{sC}")
    A(f"s_lshl_b32 s{sTMP}, s{sTMP}, 9")
    ws_addr(sRA, WS_FP, sTMP)
    A(f"v_lshlrev_b32 v{vRR}, 2, v0")
    A(f"v_add_u32 v{vRR}, {RS}, v{vRR}")
    A(f"s_lshl_b32 s{sTMP}, s{sC}, 8")
    A(f"v_add_u32 v{vRW}, s{sTMP}, v{vRR}")
    A(f"v_and_b32 v{vOUT}, 12, v0")
    A(f"v_lshlrev_b32 v{vOUT}, 9, v{vOUT}")
    A(f"v_and_b32 v{vTMP2}, 3, v0")
    A(f"v_lshl_or_b32 v{vOUT}, v{vTMP2}, 3, v{vOUT}")
    A(f"v_lshrrev_b32 v{vTMP2}, 4, v0")
    A(f"v_lshl_or_b32 v{vOUT}, v{vTMP2}, 1, v{vOUT}")
    A(f"s_lshl_b32 s{sTMP2}, s{sTMP2}, 9")
    A(f"s_lshr_b32 s{sTMP3}, s{sTMP3}, 1")
    A(f"s_lshl_b32 s{sTMP3}, s{sTMP3}, 5")
    A(f"s_add_u32 s{sTMP2}, s{sTMP2}, s{sTMP3}")
    A(f"v_add_u32 v{vOUT}, s{sTMP2}, v{vOUT}")
    if opt.vtouch & 1:
        A(f"s_cmp_lg_u32 s{sC}, 7")
        A("s_cbranch_scc1 L_novt")
        A("s_mov_b64 exec, 1")
        A(f"global_load_ushort v127, v{vOUT}, s[{sOUT}:{sOUT+1}] sc1")
        A("s_mov_b64 exec, -1")
        A("L_novt:")
    A("s_waitcnt lgkmcnt(0)")
    A(f"s_cmp_lt_u32 s{sC}, 4")
    A("s_cbranch_scc1 L_wg_done")
    A(f"v_sub_f32 v{vRG}, 1.0, v{vRG}")
    rbf(vRG)
    A("L_wg_done:")
    A(f"v_mul_f32 v{vRG}, {fbits(2.0**-LF):#x}, v{vRG}")
    setsca(LG)
    late_setup(RA, 16, 27)
    A(f"s_add_u32 s{sTMP}, s{sC}, s{sLR}")
    A(f"s_cmp_ge_u32 s{sTMP}, 7")
    A(f"s_cselect_b32 s{sTMP2}, 7, 0")
    A(f"s_sub_u32 s{sTMP}, s{sTMP}, s{sTMP2}")
    A(f"s_add_u32 s{sTMP}, s{sTMP}, s{sKB0}")
    A(f"s_lshl_b32 s{sTMP}, s{sTMP}, 11")
    ws_addr(sGA, WS_GP, sTMP)
    for r in range(4): A(f"v_mov_b32 v{vS0+r}, 0")
    late_wait()
    A(f"s_cmp_eq_u32 s{sC}, 7")
    A("s_cbranch_scc1 L_late")
    stamp(7)
    def rnd4(v):
        A(f"v_cvt_pk_bf16_f32 v{vB}, v{v}, v{v+1}")
        A(f"v_cvt_pk_bf16_f32 v{vB+1}, v{v+2}, v{v+3}")
        for h in range(2):
            A(f"v_lshlrev_b32 v{v+2*h}, 16, v{vB+h}")
            A(f"v_and_b32 v{v+2*h+1}, 0xffff0000, v{vB+h}")
    def hwork(i):
        if i == 2: late_post_issue()
        if i == 3: late_post()
        acc(i, vS0 if i < 2 else vS1, i in (0, 2))
        if i == 1:
            for r in range(4): A(f"v_max_f32 v{vS0+r}, 0, v{vS0+r}")
            if opt.hround: rnd4(vS0)
        if i == 3:
            if opt.hround: rnd4(vS1)
            for r in (0, 2): A(f"v_pk_mul_f32 v[{vS0+r}:{vS0+r+1}], v[{vS0+r}:{vS0+r+1}], v[{vS1+r}:{vS1+r+1}]")
    gather(mid=late_mid, cntstamp=13, sleep=opt.gsleep, work=hwork)
    stamp(8)

    if opt.touch: A("s_branch L_late")
    pad("A")
    A("L_late:")
    A(f"v_cvt_pk_bf16_f32 v{vGA}, v{vS0}, v{vS0+1}")
    A(f"v_cvt_pk_bf16_f32 v{vGA+1}, v{vS0+2}, v{vS0+3}")
    A(f"ds_write_b64 v{vAFW}, v[{vGA}:{vGA+1}]")
    if opt.lflow == 1:
        signal(F_BA)
        if opt.fine: stamp(3)
        A(f"s_cmp_eq_u32 s{sWDN}, 99")
        A("s_cbranch_scc1 L_late_bar")
        A("L_late_spin:")
        A(f"ds_read2_b32 v[{vTMP}:{vTMP+1}], v9 offset0:{F_PROG//4} offset1:{F_BA//4}")
        A("s_waitcnt lgkmcnt(0)")
        A(f"v_readfirstlane_b32 s{sPROG}, v{vTMP}")
        A(f"v_readfirstlane_b32 s{sTMP2}, v{vTMP+1}")
        wcatch()
        A(f"s_cmp_eq_u32 s{sWDN}, 99")
        A("s_cbranch_scc1 L_late_bar0")
        A(f"s_cmp_lt_u32 s{sWDN}, 27")
        A("s_cbranch_scc1 L_late_spin")
        A(f"s_cmp_lt_u32 s{sTMP2}, 8")
        A("s_cbranch_scc1 L_late_spin")
        actreads(8, True)
        for kb in range(6):
            A(f"s_waitcnt lgkmcnt({7-kb})")
            mf(kb, kb == 0)
        A("s_barrier")
        wreads(6, 8)
        A("s_waitcnt lgkmcnt(2)")
        mf(6, False)
        A("s_waitcnt lgkmcnt(0)")
        mf(7, False)
        A("s_branch L_late_done")
        pad("A")
        A("L_late_bar:")
        A("s_waitcnt lgkmcnt(0)")
        A("L_late_bar0:")
        A("s_barrier")
        if opt.fine: stamp(4)
        actreads(8, True)
        for kb in range(8):
            A(f"s_waitcnt lgkmcnt({7-kb})")
            mf(kb, kb == 0)
    else:
        if opt.fine: stamp(3)
        if opt.lflow == 3: signal(F_BA)
        A(f"s_cmp_ge_u32 s{sWDN}, {opt.wmin}")
        A(f"s_cbranch_scc1 {'L_late_w6' if opt.lflow == 3 else 'L_late_bar'}")
        wait_prog(False, opt.wmin - 1)
        wcatch()
        if opt.lflow == 3:
            A("L_late_w6:")
            A(f"s_cmp_eq_u32 s{sWDN}, 99")
            A("s_cbranch_scc1 L_late_bar")
            A("L_late_spin:")
            A(f"ds_read2_b32 v[{vTMP}:{vTMP+1}], v9 offset0:{F_PROG//4} offset1:{F_BA//4}")
            A("s_waitcnt lgkmcnt(0)")
            A(f"v_readfirstlane_b32 s{sPROG}, v{vTMP}")
            A(f"v_readfirstlane_b32 s{sTMP2}, v{vTMP+1}")
            A(f"s_cmp_ge_u32 s{sPROG}, s{sPE}")
            A("s_cbranch_scc1 L_late_bar")
            A(f"s_cmp_lt_u32 s{sTMP2}, 8")
            A("s_cbranch_scc1 L_late_spin")
            n0 = opt.wmin - 21
            actreads(8, True)
            for kb in range(n0):
                A(f"s_waitcnt lgkmcnt({7-kb})")
                mf(kb, kb == 0)
            A("s_barrier")
            wreads(n0, 8)
            for kb in range(n0, 8):
                A(f"s_waitcnt lgkmcnt({2*(7-kb)})")
                mf(kb, False)
            A("s_branch L_late_done")
        A("L_late_bar:")
        A(f"s_cmp_eq_u32 s{sWDN}, 99")
        A("s_waitcnt lgkmcnt(0)")
        A("s_barrier")
        A("s_cbranch_scc1 L_late_act")
        wreads(opt.wmin - 21, 8)
        A("L_late_act:")
        if opt.fine: stamp(4)
        actreads(8, True)
        for kb in range(8):
            A(f"s_waitcnt lgkmcnt({7-kb})")
            mf(kb, kb == 0)
    A("L_late_done:")
    if opt.fine: stamp(5)
    A("s_nop 7")
    publish(vACC, sFA)
    A("s_mov_b64 exec, -1")
    stamp(9)
    A(f"s_cmp_ge_u32 s{sR}, 16")
    A("s_cbranch_scc1 L_red")
    if opt.fixdur:
        A(f"s_cmp_eq_u32 s{sC}, 0")
        A("s_cbranch_scc1 L_noepoch")
    A("s_branch L_exit")
    pad("A")
    A("L_red:")
    A(f"s_mov_b64 s[{sGA}:{sGA+1}], s[{sRA}:{sRA+1}]")
    if opt.fgate and not opt.fbar: cwait(F_FRDY, 1)
    A(f"v_mov_b32 v{vSCA}, v{vRG}")
    if opt.fgate and opt.fbar: A("s_barrier")
    def fwork(i): acc(0, vS0, True)
    gather(nld=1, cntstamp=12, sleep=opt.fgsleep, work=fwork)
    if not opt.stq: stamp(2)
    A("s_nop 1")
    A(f"v_permlane32_swap_b32 v{vS0}, v{vS0+2}")
    A(f"v_permlane32_swap_b32 v{vS0+1}, v{vS0+3}")
    A(f"v_add_f32 v{vS0}, v{vS0}, v{vS0+2}")
    A(f"v_add_f32 v{vS0+1}, v{vS0+1}, v{vS0+3}")
    A("s_nop 1")
    A(f"v_permlane16_swap_b32 v{vS0}, v{vS0+1}")
    A(f"v_add_f32 v{vGA}, v{vS0}, v{vS0+1}")
    A(f"ds_write_b32 v{vRW}, v{vGA}")
    A("s_mov_b64 exec, 1")
    A(f"ds_add_rtn_u32 v{vTMP}, v9, v{vONE} offset:{F_RED}")
    A("s_mov_b64 exec, -1")
    for i in range(4):
        A(f"ds_read2st64_b32 v[{vGA+2*i}:{vGA+2*i+1}], v{vRR} offset0:{2*i} offset1:{2*i+1}")
    A("s_waitcnt lgkmcnt(4)")
    A(f"v_readfirstlane_b32 s{sTMP}, v{vTMP}")
    A(f"s_cmp_lg_u32 s{sTMP}, 7")
    A("s_cbranch_scc1 L_exit")
    A("s_waitcnt lgkmcnt(0)")
    A(f"v_pk_add_f32 v[{vGA}:{vGA+1}], v[{vGA}:{vGA+1}], v[{vGA+2}:{vGA+3}]")
    A(f"v_pk_add_f32 v[{vGA+4}:{vGA+5}], v[{vGA+4}:{vGA+5}], v[{vGA+6}:{vGA+7}]")
    A(f"v_pk_add_f32 v[{vGA}:{vGA+1}], v[{vGA}:{vGA+1}], v[{vGA+4}:{vGA+5}]")
    A(f"v_add_f32 v{vGA}, v{vGA}, v{vGA+1}")
    A(f"v_cvt_pk_bf16_f32 v{vGA}, v{vGA}, v{vGA}")
    A(f"global_store_short v{vOUT}, v{vGA}, s[{sOUT}:{sOUT+1}] {opt.outflags}")
    A(f"s_cmp_lg_u32 s2, 128")
    A("s_cbranch_scc1 L_noepoch")
    A("s_mov_b64 exec, 1")
    A(f"v_mov_b32 v{vTMP}, 0")
    A(f"global_store_dword v{vTMP}, v{vT}, s[{sWS}:{sWS+1}] sc1")
    A("s_mov_b64 exec, -1")
    A("L_noepoch:")
    if opt.fixdur:
        A(f"s_cmp_lg_u32 s2, {opt.fixwg}")
        A("s_cbranch_scc1 L_nofix")
        if opt.lprobe:
            A("s_cmp_lg_u32 s3, 0")
            A("s_cbranch_scc1 L_nofix")
        if opt.probe == 20: A("s_memrealtime s[96:97]")
        A("s_waitcnt lgkmcnt(0)")
        A(f"s_sub_u32 s96, s96, s{94 if opt.probe0 >= 0 else 98}")
        A("s_min_u32 s96, s96, 3000")
        A(f"s_mul_i32 s96, s96, {opt.amp if opt.probe >= 0 else 0}")
        A(f"s_add_u32 s96, s96, {opt.fixdur}")
        A("L_fixd:")
        A("s_memrealtime s[14:15]")
        A("s_waitcnt lgkmcnt(0)")
        A("s_sub_u32 s14, s14, s98")
        A(f"s_cmp_lt_u32 s14, s96")
        A("s_cbranch_scc1 L_fixd")
        A("L_nofix:")
    if STAMP:
        A("s_waitcnt vmcnt(0)")
        stamp(1, True)
    A("s_branch L_exit")

    pad("A")
    A("L_wcatch:")
    for kb in range(8):
        nx = f"L_wcn{kb}"
        if kb < 7:
            A(f"s_cmp_gt_u32 s{sWDN}, {21+kb}")
            A(f"s_cbranch_scc1 {nx}")
        if kb:
            A(f"s_cmp_lt_u32 s{sPROG}, s{sWDN}")
            A("s_cbranch_scc1 L_wcret")
        wreads(kb, kb+1)
        if kb < 6: A(f"s_mov_b32 s{sWDN}, {22+kb}")
        elif kb == 6: A(f"s_mov_b32 s{sWDN}, s{sPE}")
        else: A(f"s_mov_b32 s{sWDN}, 99")
        if kb < 7: A(f"{nx}:")
    A("L_wcret:")
    A(f"s_setpc_b64 s[{sRET}:{sRET+1}]")

    A("L_encs:")
    A(f"v_lshrrev_b32 v{vTMP}, 23, v{vTMP}")
    A(f"v_subrev_u32 v{vTMP}, 126, v{vTMP}")
    A(f"v_ashrrev_i32 v{vTMP}, 4, v{vTMP}")
    A(f"v_med3_i32 v{vTMP}, v{vTMP}, -8, 7")
    A(f"v_cndmask_b32 v{vTMP}, 0, v{vTMP}, vcc")
    A(f"v_and_b32 v{vAX}, 15, v{vTMP}")
    A(f"v_lshl_or_b32 v{vAX}, v{vAX}, 14, v{vAX}")
    A(f"v_and_b32 v{vAX}, s{sM3}, v{vAX}")
    A(f"v_mul_i32_i24 v{vTMP}, -16, v{vTMP}")
    for r in range(4): A(f"v_ldexp_f32 v{vACC+r}, v{vACC+r}, v{vTMP}")
    A("s_mov_b64 vcc, 0")
    A("s_setpc_b64 s[6:7]")
    A("L_fixr:")
    for i in range(4): A(f"v_xor_b32 v{vGA+2*i+1}, v{vTC}, v{vGA+2*i+1}")
    A("L_fix:")
    for i in range(4):
        A(f"v_and_b32 v{vTMP}, 3, v{vGA+2*i}")
        A(f"v_bfe_i32 v{vTMP2}, v{vGA+2*i}, 16, 2")
        A(f"v_lshl_or_b32 v{vTMP}, v{vTMP2}, 2, v{vTMP}")
        A(f"v_lshlrev_b32 v{vTMP}, 4, v{vTMP}")
        A(f"v_ldexp_f32 v{vSCA+i}, v{vSCA+i}, v{vTMP}")
    A("s_setpc_b64 s[6:7]")

    if opt.notif:
        A("L_notif:")
        if opt.nocomm: A("s_branch L_exit")
        if opt.tlb:
            A("s_mov_b64 exec, 1")
            A(f"v_mov_b32 v{vGA}, 0")
            if opt.tlb & 1:
                A(f"global_load_dword v{vGA+1}, v{vGA}, s[{sOUT}:{sOUT+1}] sc1")
                A(f"global_load_dword v{vGA+2}, v{vGA}, s[{sWS}:{sWS+1}] offset:512 sc1")
            if opt.tlb & 2:
                A(f"s_lshl_b32 s{sTMP}, s{sKB0}, 16")
                A(f"v_mov_b32 v{vGA+8}, s{sTMP}")
                A(f"s_cmp_ge_u32 s{sR}, 16")
                A("s_cbranch_scc1 L_tlbM")
                A(f"global_load_dword v{vGA+3}, v{vGA+8}, s[{sWO}:{sWO+1}] nt")
                A(f"s_cmp_eq_u32 s{sROLE}, 2")
                A("s_cbranch_scc1 L_tlbD")
                A(f"s_bitcmp0_b32 s{sBETA}, 1")
                A(f"s_cselect_b64 s[4:5], s[{sWG}:{sWG+1}], s[{sWU}:{sWU+1}]")
                A(f"s_and_b32 s{sTMP}, s{sBETA}, 1")
                A(f"s_mul_i32 s{sTMP}, s{sTMP}, {512*7168}")
                A("s_mov_b64 exec, 7")
                A(f"v_mul_u32_u24 v{vGA+9}, {255*7168}, v0")
                A(f"v_add_u32 v{vGA+9}, s{sTMP}, v{vGA+9}")
                A(f"global_load_dword v{vGA+4}, v{vGA+9}, s[4:5] nt")
                A("s_branch L_tlbD")
                A("L_tlbM:")
                A(f"global_load_dword v{vGA+3}, v{vGA+8}, s[{sWD}:{sWD+1}] nt")
                A(f"s_lshl2_add_u32 s{sTMP}, s{sBB}, s{sG}")
                A(f"s_lshl_b32 s{sTMP}, s{sTMP}, 20")
                A(f"v_mov_b32 v{vGA+9}, s{sTMP}")
                A(f"global_load_dword v{vGA+4}, v{vGA+9}, s[{sV}:{sV+1}] nt")
                A("L_tlbD:")
            A("s_mov_b64 exec, -1")
        A(f"s_cmp_eq_u32 s{sROLE}, 2")
        A("s_cbranch_scc1 L_exit")
        A(f"s_cmp_ge_u32 s{sR}, 16")
        A("s_cbranch_scc1 L_notifM")
        hc_addr()
        wait_prog(False, opt.nprogh - 1, sleep=2)
        wait_prog(False, opt.nprogh)
        if opt.ndelay: A(f"s_sleep {opt.ndelay}")
        bump("h")
        A("s_branch L_exit")
        A("L_notifM:")
        A(f"s_mul_i32 s{sTMP}, s{sG}, {32*CS}")
        ws_addr(sGB, WS_OC, sTMP)
        cwait(F_BP, 8, sleep=2)
        if opt.pdelay: A(f"s_sleep {opt.pdelay}")
        wait_prog(False, opt.nprogo - 1, sleep=2)
        wait_prog(False, opt.nprogo)
        if opt.ndelay + opt.odelay: A(f"s_sleep {opt.ndelay + opt.odelay}")
        bump("q")
        A("s_branch L_exit")

    A("L_poller:")
    if opt.nocomm: A("s_branch L_exit")
    A(f"s_cmp_ge_u32 s{sR}, 16")
    A("s_cbranch_scc1 L_pollM")
    A(f"s_lshl3_add_u32 s{sTMP}, s{sRBK}, s{sCB}")
    A(f"s_and_b32 s{sTMP}, s{sTMP}, {NREP-1}")
    A(f"s_lshl_b32 s{sTMP2}, s{sG}, 5")
    A(f"s_add_u32 s{sTMP}, s{sTMP}, s{sTMP2}")
    A(f"s_mul_i32 s{sTMP}, s{sTMP}, {CS}")
    ws_addr(sGB, WS_OC, sTMP)
    A(f"s_load_dword s4, s[{sGB}:{sGB+1}], 0 glc")
    A(f"s_and_b32 s{sTMP}, s{sRBK}, 3")
    A(f"s_lshl_b32 s{sTMP}, s{sTMP}, 4")
    A(f"s_lshl_b32 s{sTMP2}, s{sG}, 11")
    A(f"s_add_u32 s{sTMP}, s{sTMP}, s{sTMP2}")
    ws_addr(sGA, WS_LSE, sTMP)
    A(f"v_and_b32 v{vTMP3}, 31, v0")
    A(f"v_lshlrev_b32 v{vTMP3}, 6, v{vTMP3}")
    A(f"v_lshrrev_b32 v{vTMP2}, 5, v0")
    A(f"v_lshl_or_b32 v{vTMP3}, v{vTMP2}, 3, v{vTMP3}")
    A("s_waitcnt lgkmcnt(0)")
    A(f"v_lshl_add_u32 v{vWA}, v0, 2, v9")
    A(f"s_cmp_eq_u32 s{sROLE}, 2")
    A(f"s_cselect_b32 s{sTMP2}, {opt.ogatec}, {opt.ogate}")
    A(f"s_add_u32 s5, s4, {0x200020 if opt.lcnt else 32}")
    for k, l in touch:
        if k in "AB": A(f"s_call_b64 s[6:7], {l}")
    wait_prog(True, sTMP2, sleep=2)
    stamp(2)
    if not (opt.dbg & 7):
        A(f"s_mov_b32 s{sCNT}, 0")
        if opt.psleep: A("s_branch L_pl1e")
        A("L_pl1:")
        if opt.psleep:
            A(f"s_sleep {opt.psleep}")
            A("L_pl1e:")
        A(f"s_load_dword s8, s[{sGB}:{sGB+1}], 0 glc")
        A(f"s_add_u32 s{sCNT}, s{sCNT}, 1")
        A(f"s_cmp_gt_u32 s{sCNT}, {opt.maxhint}")
        A("s_waitcnt lgkmcnt(0)")
        A("s_cbranch_scc1 L_pl1d")
        A("s_sub_u32 s9, s8, s4")
        A(f"s_cmp_lt_u32 s9, {0x200000 if opt.lcnt else opt.lthr}")
        A("s_cbranch_scc1 L_pl1")
        A("L_pl1d:")
        stampval(10, sCNT)
    stamp(3)
    A("s_mov_b32 s9, 0")
    A(f"s_mov_b32 s{sTMP3}, 0")
    A("L_lse:")
    if not (opt.dbg & 2): A(f"global_load_dwordx2 v[{vLS}:{vLS+1}], v{vTMP3}, s[{sGA}:{sGA+1}] sc1")
    if not (opt.dbg & 7):
        A("s_cmp_lg_u32 s9, 0")
        A("s_cbranch_scc1 L_lse_wait")
        A("L_pl2:")
        A("s_cmp_eq_u32 s8, s5")
        A("s_cbranch_scc1 L_pl_sig")
        A(f"s_cmp_gt_u32 s{sCNT}, {opt.maxhint}")
        A("s_cbranch_scc1 L_pl_sig")
        A("s_getreg_b32 s10, hwreg(HW_REG_IB_STS, 0, 4)")
        A("s_cmp_eq_u32 s10, 0")
        A("s_cbranch_scc1 L_lse_wait")
        A(f"s_load_dword s8, s[{sGB}:{sGB+1}], 0 glc")
        A(f"s_add_u32 s{sCNT}, s{sCNT}, 1")
        A("s_waitcnt lgkmcnt(0)")
        A("s_branch L_pl2")
        A("L_pl_sig:")
        signal(F_LRDY)
        A("s_mov_b32 s9, 1")
        stamp(5)
    A("L_lse_wait:")
    if not (opt.dbg & 7):
        A(f"s_load_dword s8, s[{sGB}:{sGB+1}], 0 glc")
    A(f"s_add_u32 s{sTMP3}, s{sTMP3}, 1")
    A("s_waitcnt vmcnt(0)")
    A(f"v_cmp_ne_u32 vcc, s{sT}, v{vLS+1}")
    A(f"s_cbranch_vccz L_lsed")
    A(f"s_cmp_le_u32 s{sTMP3}, {0 if (opt.dbg & 7) else opt.maxpoll}")
    A("s_waitcnt lgkmcnt(0)")
    A(f"s_cbranch_scc1 L_lse")
    A("L_lsed:")
    stampval(12, sTMP3)
    A(f"v_max_f32_dpp v{vTMP}, v{vLS}, v{vLS} quad_perm:[1,0,3,2] row_mask:0xf bank_mask:0xf")
    A("s_nop 1")
    A(f"v_max_f32_dpp v{vTMP}, v{vTMP}, v{vTMP} quad_perm:[2,3,0,1] row_mask:0xf bank_mask:0xf")
    A(f"v_sub_f32 v{vLS}, v{vLS}, v{vTMP}")
    A(f"v_exp_f32 v{vLS}, v{vLS}")
    A("s_nop 1")
    A(f"v_add_f32_dpp v{vTMP}, v{vLS}, v{vLS} quad_perm:[1,0,3,2] row_mask:0xf bank_mask:0xf")
    A("s_nop 1")
    A(f"v_add_f32_dpp v{vTMP}, v{vTMP}, v{vTMP} quad_perm:[2,3,0,1] row_mask:0xf bank_mask:0xf")
    A(f"v_rcp_f32 v{vTMP}, v{vTMP}")
    A("s_nop 0")
    A(f"v_mul_f32 v{vLS}, v{vLS}, v{vTMP}")
    A(f"v_mul_f32 v{vLS}, {fbits(2.0**-LO_):#x}, v{vLS}")
    A(f"ds_write_b32 v{vWA}, v{vLS} offset:{F_WT}")
    signal(F_WRDY)
    stamp(4)
    if not (opt.dbg & 7):
        A("s_cmp_lg_u32 s9, 0")
        A("s_cbranch_scc1 L_pl_fin")
        A("s_waitcnt lgkmcnt(0)")
        A("s_cmp_eq_u32 s8, s5")
        A("s_cbranch_scc1 L_pl_sig2")
    pollcnt(sGB, 5, opt.psleep, cntstamp=11)
    A("L_pl_sig2:")
    signal(F_LRDY)
    stamp(5)
    A("L_pl_fin:")
    A("s_barrier")
    A("s_branch L_exit")
    A("L_pollM:")
    A(f"s_lshl2_add_u32 s{sTMP}, s{sBB}, s{sSPL}")
    A(f"s_lshr_b32 s{sTMP}, s{sTMP}, {int(math.log2(32//NREP))}")
    A(f"s_lshl_b32 s{sTMP2}, s{sG}, 5")
    A(f"s_add_u32 s{sTMP}, s{sTMP}, s{sTMP2}")
    A(f"s_mul_i32 s{sTMP}, s{sTMP}, {CS}")
    ws_addr(sGB, WS_QC, sTMP)
    if opt.qhint: A(f"s_load_dword s4, s[{sGB}:{sGB+1}], 0 glc")
    A(f"s_mul_i32 s{sTMP}, s{sRBK}, {HREP}")
    A(f"s_and_b32 s{sTMP2}, s{sCB}, {HREP-1}")
    A(f"s_add_u32 s{sTMP}, s{sTMP}, s{sTMP2}")
    A(f"s_mul_i32 s{sTMP}, s{sTMP}, {CS}")
    ws_addr(sGA, WS_HC, sTMP)
    A(f"s_load_dword s5, s[{sGA}:{sGA+1}], 0 glc")
    if opt.fgate:
        A(f"s_and_b32 s{sTMP}, s{sR}, {opt.frep-1}")
        A(f"s_lshl4_add_u32 s{sTMP}, s{sXCD}, s{sTMP}")
        A(f"s_mul_i32 s{sTMP}, s{sTMP}, {CS}")
        ws_addr(10, WS_FC, sTMP)
        A(f"s_load_dword s6, s[10:11], 0 glc")
    A(f"s_bitcmp1_b32 s{sKB0}, 1")
    A(f"s_cselect_b32 s{sTMP}, 12, 8")
    A("s_waitcnt lgkmcnt(0)")
    if opt.fgate: A("s_add_u32 s6, s6, 32")
    A("s_add_u32 s4, s4, 64")
    A(f"s_add_u32 s5, s5, s{sTMP}")
    if opt.fgate: A("s_mov_b32 s9, s6")
    for k, l in touch:
        if k in "AM": A(f"s_call_b64 s[6:7], {l}")
    if opt.qhint:
        wait_prog(False, opt.qgate, sleep=2)
        stamp(2)
        pollcnt(sGB, 4, opt.psleep, cntstamp=10)
        signal(F_QRDY)
        stamp(3)
    wait_prog(False, opt.hgate, sleep=2)
    stamp(4)
    pollcnt(sGA, 5, opt.psleep, cntstamp=11)
    signal(F_LRDY)
    stamp(5)
    A("s_barrier")
    if opt.fgate:
        stamp(6)
        pollcnt(10, 9, 0, cntstamp=12)
        if opt.fbar: A("s_barrier")
        else: signal(F_FRDY)
        stamp(7)

    A("L_exit:")
    if STAMP:
        A("s_waitcnt lgkmcnt(0)")
        A(f"s_mul_i32 s{sTMP}, s2, {NWAVES}")
        A(f"s_add_u32 s{sTMP}, s{sTMP}, s3")
        A(f"s_lshl_b32 s{sTMP}, s{sTMP}, 6")
        A(f"s_add_u32 s{sTMP}, s{sTMP}, {WS_STAMP}")
        A(f"v_mov_b32 v1, s{sTMP}")
        A("s_mov_b64 exec, 1")
        for i in range(NST if STAMP == 1 else 10):
            A(f"v_mov_b32 v2, s{sST+2*i}")
            A(f"global_store_dword v1, v2, s[{sWS}:{sWS+1}] offset:{4*i}")
        A(f"v_mov_b32 v2, s{sROLE}")
        A(f"global_store_dword v1, v2, s[{sWS}:{sWS+1}] offset:60")
    A("L_end:")
    A("s_endpgm")

    body = "\n".join(g.o)
    PADTXT = f".p2align 12\n.fill {opt.pad//4}, 4, 0xbf810000\n" if opt.pad >= 0 else ""
    txt = HEADER
    txt += f"; @launch grid=(256,1,1) block=({64*NWAVES},1,1) lds={LDS_BYTES}\n"
    txt += f""".amdgcn_target "amdgcn-amd-amdhsa--gfx950"
.text
.globl {KNAME}
{PADTXT}.p2align 8
.type {KNAME},@function
{KNAME}:
{body}
.section .rodata,"a"
.p2align 6
.amdhsa_kernel {KNAME}
  .amdhsa_next_free_vgpr {NV}
  .amdhsa_next_free_sgpr 102
  .amdhsa_accum_offset {NV}
  .amdhsa_group_segment_fixed_size 0
  .amdhsa_kernarg_size 104
  .amdhsa_user_sgpr_count 2
  .amdhsa_user_sgpr_kernarg_segment_ptr 1
  .amdhsa_system_sgpr_workgroup_id_x 1
.end_amdhsa_kernel
"""
    return txt

def parse(argv):
    ap = argparse.ArgumentParser()
    ap.add_argument("--nt", default="nt")
    ap.add_argument("--pb", default="20:24,8:22")
    ap.add_argument("--pc", default="4:20,d,3:4,5:12")
    ap.add_argument("--pm", default="20:24,7:20")
    ap.add_argument("--nb0", type=int, default=3)
    ap.add_argument("--stamp", type=int, default=0)
    ap.add_argument("--stq", type=int, default=0)
    ap.add_argument("--fdelay", type=int, default=0)
    ap.add_argument("--qgate", type=int, default=9)
    ap.add_argument("--ogate", type=int, default=19)
    ap.add_argument("--ogatec", type=int, default=26)
    ap.add_argument("--hgate", type=int, default=19)
    ap.add_argument("--ggate", type=int, default=1)
    ap.add_argument("--maxpoll", type=int, default=100000)
    ap.add_argument("--psleep", type=int, default=0)
    ap.add_argument("--fsleep", type=int, default=2)
    ap.add_argument("--gsleep", type=int, default=0)
    ap.add_argument("--fgsleep", type=int, default=0)
    ap.add_argument("--sample", type=int, default=0)
    ap.add_argument("--outflags", default="sc1")
    ap.add_argument("--fixdur", type=int, default=0)
    ap.add_argument("--fixwg", type=int, default=128)
    ap.add_argument("--nocomm", type=int, default=0)
    ap.add_argument("--dbg", type=int, default=0)
    ap.add_argument("--cpf", type=int, default=2)
    ap.add_argument("--qlead", type=int, default=-1)
    ap.add_argument("--hlead", type=int, default=-1)
    ap.add_argument("--olead", type=int, default=-1)
    ap.add_argument("--oearly", type=int, default=0)
    ap.add_argument("--flagwave", type=int, default=1)
    ap.add_argument("--xgat", type=int, default=10)
    ap.add_argument("--nrep", type=int, default=8)
    ap.add_argument("--satom", type=int, default=1)
    ap.add_argument("--maxhint", type=int, default=20)
    ap.add_argument("--hround", type=int, default=0)
    ap.add_argument("--fgate", type=int, default=0)
    ap.add_argument("--frep", type=int, default=8)
    ap.add_argument("--flag_delay", type=int, default=1)
    ap.add_argument("--qhint", type=int, default=0)
    ap.add_argument("--qsleep", type=int, default=4)
    ap.add_argument("--lcnt", type=int, default=0)
    ap.add_argument("--lthr", type=int, default=16)
    ap.add_argument("--spec", type=int, default=0)
    ap.add_argument("--ackst", type=int, default=0)
    ap.add_argument("--cstride", type=int, default=640)
    ap.add_argument("--midahead", type=int, default=1)
    ap.add_argument("--fine", type=int, default=0)
    ap.add_argument("--pad", type=lambda x: int(x, 0), default=0xd00)
    ap.add_argument("--touch", type=int, default=0)
    ap.add_argument("--sbias", type=int, default=0)
    ap.add_argument("--period", type=int, default=0)
    ap.add_argument("--toff", type=int, default=650)
    ap.add_argument("--qsync", type=int, default=0)
    ap.add_argument("--lprio", type=int, default=3)
    ap.add_argument("--cprio", type=int, default=0)
    ap.add_argument("--gprio", type=int, default=0)
    ap.add_argument("--kvmode", default="lin")
    ap.add_argument("--kvrot", type=int, default=4)
    ap.add_argument("--rotw", type=int, default=1)
    ap.add_argument("--lrot", type=int, default=3)
    ap.add_argument("--lflow", type=int, default=2)
    ap.add_argument("--wmin", type=int, default=27)
    ap.add_argument("--notif", type=int, default=1)
    ap.add_argument("--ndelay", type=int, default=0)
    ap.add_argument("--odelay", type=int, default=0)
    ap.add_argument("--pdelay", type=int, default=6)
    ap.add_argument("--nprogh", type=int, default=20)
    ap.add_argument("--nprogo", type=int, default=20)
    ap.add_argument("--gran", type=int, default=2)
    ap.add_argument("--barpos", type=int, default=1)
    ap.add_argument("--fsat", type=int, default=1)
    ap.add_argument("--gok", type=int, default=7)
    ap.add_argument("--fbar", type=int, default=1)
    ap.add_argument("--specw", type=int, default=1)
    ap.add_argument("--fearly", type=int, default=0)
    ap.add_argument("--tlb", type=int, default=0)
    ap.add_argument("--cpfc", type=int, default=0)
    ap.add_argument("--stlb", type=int, default=7)
    ap.add_argument("--vtouch", type=int, default=0)
    ap.add_argument("--probe", type=int, default=-1)
    ap.add_argument("--pol", default="nnnnnn")
    ap.add_argument("--probe0", type=int, default=-1)
    ap.add_argument("--lprobe", type=int, default=0)
    ap.add_argument("--amp", type=int, default=4)
    ap.add_argument("-o", default=None)
    return ap.parse_args(argv)

if __name__ == "__main__":
    opt = parse(sys.argv[1:])
    t = gen(opt)
    if opt.o: open(opt.o, "w").write(t)
    else: print(t)
```

```python
import sys, argparse, struct, math

KNAME = "gated_mix__sliding_block_cached__glu_gated_reglu__decode_kernel"
HEADER = open("gated_mix__sliding_block_cached__glu_gated_reglu__decode.s.ref").read().split("; Override launch")[0]

RA = 0
RB = 65536
XA = 131072
RQ = RB + 32768
XF = XA
QF = XA + 2048
PF = XA + 4096
RS = XA + 8192
ST = XA + 10240
AF = XA + 12288
FL = XA + 16384
F_PROG, F_LRDY, F_QRDY, F_WRDY, F_BQ, F_BM, F_BP, F_BA, F_RED, F_PUB0, F_PUB1, F_FREE0, F_FREE1, F_ERD, F_FRDY = [4*i for i in range(15)]
F_MAX = 64
F_G = 96
F_WT = 128
LDS_BYTES = FL + 128 + 256

WS_QP = 512 << 10
WS_FP = 1024 << 10
WS_OP = 1536 << 10
WS_GP = 1792 << 10
WS_LSE = 16 << 10
WS_QC = 64 << 10
WS_OC = 160 << 10
WS_HC = 256 << 10
WS_FC = 352 << 10
WS_STAMP = 8 << 20

class G:
    def __init__(self):
        self.o = []; self.nlab = 0
    def A(self, s):
        for line in s.split("\n"):
            self.o.append("    " + line.strip() if not line.strip().endswith(":") else line.strip())
    def lab(self, p="L"):
        self.nlab += 1
        return f"{p}_{self.nlab}"

def plan(s):
    out = []
    for t in s.split(","):
        if t == "d": out.append("d")
        else:
            a, b = t.split(":")
            out.append((int(a), tuple(int(x) for x in b.split("/")) if "/" in b else int(b)))
    return out

def gen(opt):
    g = G(); A = g.A
    CS = opt.cstride
    NWAVES = 11 if opt.notif else 10
    POL = {k: ('nt' if c == 'n' else '') for k, c in zip(('q','k','v','g','o','d'), opt.pol)}
    cur = ['q']
    STAMP = opt.stamp
    sX, sK, sV, sWQ, sWO, sBX, sWG, sWU = [16+2*i for i in range(8)]
    sWD, sGW, sOUT, sDBG = 32, 34, 36, 38
    sWS = 40
    sXCD, sR, sROLE = 42, 43, 44
    sU, sBETA, sG, sSPL, sRBK, sCB, sBB = 45, 46, 47, 48, 49, 50, 51
    sKS, sKB0 = 100, 101
    sLR = 53
    sWDN = 52
    sT = 54
    sT0, sT1, sT2, sT3 = 54, 56, 57, 53
    sSEL0, sSEL1, sSEL2, sSEL3 = 58, 59, 60, 61
    sPROG, sC = 62, 63
    sTMP, sTMP2, sTMP3, sCNT = 64, 65, 66, 67
    sGA, sGB = 68, 70
    sROT = 15
    sSM = 4
    sST = 72
    NST = 14
    SRD = 8
    def stamp(idx, key=False):
        if opt.probe == idx and not key: A("s_memrealtime s[96:97]")
        if opt.probe0 == idx and not key: A("s_memrealtime s[94:95]")
        if STAMP == 1 or (STAMP and (key or idx == 0)): A(f"s_memrealtime s[{sST+2*idx}:{sST+2*idx+1}]")
    touch = []
    def pad(kind):
        if not opt.touch: return
        l = g.lab("L_tp"); touch.append((kind, l))
        A(f"{l}:")
        A("s_setpc_b64 s[6:7]")
    def stampval(idx, sreg):
        if STAMP == 1: A(f"s_mov_b32 s{sST+2*idx}, s{sreg}")
    pb, pc, pm = plan(opt.pb), plan(opt.pc), plan(opt.pm)
    NB0 = opt.nb0
    assert NB0 <= 3

    stamp(0)
    if opt.fixdur: A("s_memrealtime s[98:99]")
    A("s_load_dwordx16 s[16:31], s[0:1], 0")
    A("s_load_dwordx8 s[32:39], s[0:1], 64")
    A("s_load_dwordx2 s[40:41], s[0:1], 96")
    A(f"s_cmp_ge_u32 s2, 256")
    A("s_cbranch_scc1 L_end")
    A("v_lshrrev_b32 v1, 6, v0")
    A("v_and_b32 v0, 63, v0")
    A("v_readfirstlane_b32 s3, v1")
    A(f"s_and_b32 s{sXCD}, s2, 7")
    A(f"s_lshr_b32 s{sR}, s2, 3")
    A(f"s_lshr_b32 s{sG}, s{sXCD}, 1")
    A(f"s_and_b32 s{sTMP3}, s{sXCD}, 1")
    A(f"s_add_u32 s{sROT}, s{sR}, s{2 if opt.rotw else sXCD}")
    A(f"s_lshl_b32 s{sTMP}, s{sXCD}, 1")
    A(f"s_sub_u32 s{sTMP}, s{sR}, s{sTMP}")
    A(f"s_sub_u32 s{sTMP}, s{sTMP}, 4")
    A(f"s_bfe_u32 s{sTMP2}, s{sTMP}, 0x20002")
    A(f"s_and_b32 s{sTMP}, s{sTMP}, 3")
    A(f"s_lshl2_add_u32 s{sU}, s{sTMP}, s{sTMP2}")
    A(f"s_cmp_ge_u32 s{sR}, 16")
    A(f"s_cselect_b32 s{sU}, s{sR}, s{sU}")
    A(f"s_lshr_b32 s{sTMP}, s{sU}, 3")
    A(f"s_lshl2_add_u32 s{sKS}, s{sTMP3}, s{sTMP}")
    A("s_cmp_lg_u32 s3, 0")
    A("s_cbranch_scc1 L_notloader")
    sSOFF, sSTEP, sNB, sBLK = 4, 5, 6, 7
    sIDX, sWRAP, sBASE = 12, 13, 14
    sNOW, sDL = 56, 58
    TIMED = "/" in (opt.pb + opt.pm + opt.pc)
    if TIMED: A(f"s_memrealtime s[{sNOW}:{sNOW+1}]")
    A(f"s_setprio {opt.lprio}")
    A(f"v_mov_b32 v9, {FL}")
    A("v_mov_b32 v10, 0xff7fffff")
    A("v_cmp_gt_u32 vcc, 16, v0")
    A("v_lshl_add_u32 v11, v0, 2, v9")
    A("v_lshrrev_b32 v2, 4, v0")
    A("v_cndmask_b32 v10, v10, 0, vcc")
    A("ds_write_b32 v11, v10")
    A("v_bfe_u32 v3, v0, 1, 3")
    A("v_xor_b32 v3, v3, v2")
    A("v_lshlrev_b32 v3, 5, v3")
    A("v_and_b32 v4, 1, v0")
    A("v_lshl_or_b32 v3, v4, 4, v3")
    A("v_xor_b32 v4, 0x80, v3")
    A("v_lshl_add_u32 v5, v2, 13, v3")
    A("v_lshl_add_u32 v6, v2, 13, v4")
    A(f"s_mov_b32 s{SRD+3}, 0x20000")
    A(f"s_and_b32 s{sTMP}, s{sU}, 7")
    A(f"s_lshl3_add_u32 s{sTMP}, s{sG}, s{sTMP}")
    A(f"s_lshl_b32 s{sTMP}, s{sTMP}, 8")
    A(f"s_lshl_b32 s{sSOFF}, s{sKS}, 20")
    A(f"s_add_u32 s{sSOFF}, s{sSOFF}, s{sTMP}")
    A(f"s_mov_b32 s{SRD+2}, {1024*4096*2}")
    A(f"s_mov_b32 s{sNB}, {NB0}")
    A(f"s_mov_b32 s{sSTEP}, {4*8192}")
    A(f"s_mov_b32 m0, {RQ}")
    A(f"s_mov_b32 s{sBLK}, {NB0}")
    if opt.fine == 2: stamp(5)
    A("s_waitcnt lgkmcnt(0)")
    if opt.fine == 2: stamp(6)
    A(f"s_mov_b64 s[{SRD}:{SRD+1}], s[{sWQ}:{sWQ+1}]")
    if TIMED: A(f"s_mov_b32 s{sDL}, s{sNOW}")
    if opt.barpos == 0: A("s_barrier")
    if opt.fine == 2: stamp(7)
    def blk_body(win, rot):
        GR = opt.gran
        if win is not None:
            assert win % GR == 0
            pj = win % 8
            back = (win - pj) // 8
        for j in range(8):
            half, i = j >> 2, j & 3
            if win is not None and j % GR == 0:
                if j == pj:
                    A(f"s_sub_u32 s{sTMP}, s{sBLK}, {back}")
                    A(f"s_max_i32 s{sPROG}, s{sTMP}, s{sPROG}")
                    A(f"v_mov_b32 v10, s{sPROG}")
                A(f"s_waitcnt vmcnt({win})")
                if j == pj: A(f"ds_write_b32 v9, v10 offset:{F_PROG}")
            v = 5 if ((i >> 1) & 1) == 0 else 6
            A(f"buffer_load_dwordx4 v{v}, s[{SRD}:{SRD+3}], s{sSOFF} offen {POL[cur[0]]} lds")
            A(f"s_add_u32 m0, m0, 1024")
            if rot == "kv":
                st = {"lin": 1024, "tr1": 8192 + (1024 if (half, i) == (1, 3) else 0),
                      "tr2": (1024 if i % 2 == 0 else 15360) + (2048 if (half, i) == (1, 3) else 0)}[opt.kvmode]
                A(f"s_add_u32 s{sIDX}, s{sIDX}, {st}")
                A(f"s_pack_lh_b32_b16 s{sSOFF}, s{sIDX}, s{sSOFF}")
            else:
                A(f"s_add_u32 s{sSOFF}, s{sSOFF}, s{sSTEP}")
        if rot == 7:
            A(f"s_add_u32 s{sIDX}, s{sIDX}, 1")
            A(f"s_cmp_eq_u32 s{sIDX}, 7")
            A(f"s_cselect_b32 s{sTMP}, {7*65536}, 0")
            A(f"s_sub_u32 s{sSOFF}, s{sSOFF}, s{sTMP}")
        if rot is True:
            A(f"s_add_u32 s{sIDX}, s{sIDX}, 1")
            A(f"s_and_b32 s{sIDX}, s{sIDX}, 7")
            A(f"s_cselect_b32 s{sTMP}, 0, s{sWRAP}")
            A(f"s_sub_u32 s{sSOFF}, s{sSOFF}, s{sTMP}")
    if opt.barpos == 1:
        blk_body(None, False)
        A("s_barrier")
        A(f"s_mov_b32 s{sNB}, {NB0-1}")
    A("L_top_loop:")
    blk_body(None, False)
    A(f"s_sub_u32 s{sNB}, s{sNB}, 1")
    A(f"s_cmp_lg_u32 s{sNB}, 0")
    A("s_cbranch_scc1 L_top_loop")
    if opt.barpos == 2: A("s_barrier")
    A("s_branch L_loader2")
    A("L_notloader:")
    if opt.stlb:
        A("s_cmp_eq_u32 s3, 10")
        A("s_cbranch_scc1 L_loader2")
    if opt.cpf:
        A(f"s_cmp_gt_u32 s3, {opt.cpf}")
        A("s_cbranch_scc1 L_cpf_done")
        if opt.cpfc:
            A(f"s_cmp_lg_u32 s{sR}, 14")
            A("s_cbranch_scc1 L_cpf_done")
        A("s_getpc_b64 s[4:5]")
        A("L_pc:")
        A(f"s_lshl_b32 s{sTMP}, s3, 13")
        A(f"s_sub_u32 s{sTMP}, s{sTMP}, 8192")
        A(f"v_lshl_add_u32 v1, v0, 7, s{sTMP}")
        A(f"v_cmp_gt_u32 vcc, L_end-L_pc, v1")
        A("s_and_saveexec_b64 s[6:7], vcc")
        A("s_cbranch_execz L_cpf_done2")
        A(f"global_load_dword v127, v1, s[4:5]")
        A("L_cpf_done2:")
        A("s_mov_b64 exec, -1")
        A("L_cpf_done:")
    A("s_barrier")
    A("s_branch L_cons")

    def decode2(keep=False):
        d = g.lab("L_d2"); m = g.lab("L_d2m")
        if STAMP:
            for i in range(1, NST):
                if not (opt.fine == 2 and keep and i in (5, 6, 7)): A(f"s_mov_b32 s{sST+2*i}, 0")
        A(f"s_mul_i32 s{sBETA}, s{sXCD}, 14")
        A(f"s_add_u32 s{sBETA}, s{sBETA}, s{sR}")
        A(f"s_mov_b32 s{sPROG}, 0")
        A(f"s_cmp_ge_u32 s{sR}, 16")
        A(f"s_cbranch_scc1 {m}")
        A(f"s_cmp_ge_u32 s{sR}, 14")
        A(f"s_cselect_b32 s{sROLE}, 2, 1")
        A(f"s_lshr_b32 s{sTMP}, s{sU}, 3")
        A(f"s_lshl1_add_u32 s{sRBK}, s{sXCD}, s{sTMP}")
        A(f"s_add_u32 s{sTMP}, s{sU}, 3")
        A(f"s_and_b32 s{sTMP}, s{sTMP}, 3")
        A(f"s_and_b32 s{sCB}, s{sU}, 4")
        A(f"s_or_b32 s{sCB}, s{sCB}, s{sTMP}")
        A(f"s_lshl_b32 s{sKB0}, s{sRBK}, 3")
        A(f"s_add_u32 s{sLR}, s{sR}, s{sXCD}")
        A(f"s_and_b32 s{sLR}, s{sLR}, {7 if opt.lrot & 1 else 0}")
        A(f"s_branch {d}")
        A(f"{m}:")
        A(f"s_mov_b32 s{sROLE}, 0")
        A(f"s_and_b32 s{sTMP}, s{sXCD}, 1")
        A(f"s_bfe_u32 s{sBB}, s{sR}, 0x20002")
        A(f"s_lshl2_add_u32 s{sBB}, s{sTMP}, s{sBB}")
        A(f"s_and_b32 s{sSPL}, s{sR}, 3")
        A(f"s_bfe_u32 s{sTMP}, s{sR}, 0x10003")
        A(f"s_lshl1_add_u32 s{sRBK}, s{sXCD}, s{sTMP}")
        A(f"s_mul_i32 s{sKB0}, s{sRBK}, 7")
        A(f"s_and_b32 s{sLR}, s{sR}, {7 if opt.lrot & 2 else 0}")
        A(f"s_cmp_eq_u32 s{sLR}, 7")
        A(f"s_cselect_b32 s{sLR}, 3, s{sLR}")
        A(f"s_add_u32 s{sCB}, s{sR}, 1")
        A(f"s_and_b32 s{sCB}, s{sCB}, 7")
        A(f"{d}:")

    A("L_loader2:")
    decode2(True)
    if opt.stlb:
        A("s_cmp_eq_u32 s3, 0")
        A("s_cbranch_scc1 L_loader3")
        A(f"v_mov_b32 v9, {FL}")
        if STAMP:
            for i in (5, 6, 7): A(f"s_mov_b32 s{sST+2*i}, 0")
        if opt.tbar: A("s_barrier")
        A("s_waitcnt lgkmcnt(0)")
        if opt.stlb & 4:
            A(f"s_lshl_b32 s{sTMP}, s2, 6")
            A(f"s_load_dword s8, s[{sX}:{sX+1}], s{sTMP}")
            A(f"s_lshl_b32 s{sTMP}, s{sR}, 6")
            A(f"s_load_dword s9, s[{sGW}:{sGW+1}], s{sTMP}")
        A(f"s_lshl_b32 s{sTMP}, s{sKB0}, 16")
        A(f"s_lshl_b32 s{sTMP2}, s{sCB}, 8")
        A(f"s_add_u32 s{sTMP}, s{sTMP}, s{sTMP2}")
        A(f"s_cmp_ge_u32 s{sR}, 16")
        A("s_cbranch_scc1 L_stM")
        A(f"s_load_dword s4, s[{sWO}:{sWO+1}], s{sTMP}")
        if opt.stlb & 2:
            A(f"s_cmp_eq_u32 s{sROLE}, 2")
            A("s_cbranch_scc1 L_stD")
            A(f"s_bitcmp0_b32 s{sBETA}, 1")
            A(f"s_cselect_b64 s[12:13], s[{sWG}:{sWG+1}], s[{sWU}:{sWU+1}]")
            A(f"s_and_b32 s{sTMP}, s{sBETA}, 1")
            A(f"s_mul_i32 s{sTMP}, s{sTMP}, {512*7168}")
            A(f"s_lshr_b32 s{sTMP2}, s{sBETA}, 2")
            A(f"s_lshl_b32 s{sTMP2}, s{sTMP2}, 8")
            A(f"s_add_u32 s{sTMP}, s{sTMP}, s{sTMP2}")
            for i in range(3):
                A(f"s_load_dword s{5+i}, s[12:13], s{sTMP}")
                A(f"s_add_u32 s{sTMP}, s{sTMP}, {255*7168}")
        A("s_branch L_stD")
        A("L_stM:")
        A(f"s_lshl2_add_u32 s{sTMP2}, s{sBB}, s{sG}")
        A(f"s_lshl4_add_u32 s{sTMP2}, s{sTMP2}, s{sSPL}")
        A(f"s_add_u32 s{sTMP2}, s{sTMP2}, 12")
        A(f"s_lshl_b32 s{sTMP2}, s{sTMP2}, 16")
        A(f"s_load_dword s7, s[{sK}:{sK+1}], s{sTMP2}")
        for i in range(opt.vden):
            A(f"s_load_dword s5, s[{sV}:{sV+1}], s{sTMP2}")
            if i < opt.vden - 1: A(f"s_add_u32 s{sTMP2}, s{sTMP2}, {65536//opt.vden}")
        A(f"s_load_dword s4, s[{sWD}:{sWD+1}], s{sTMP}")
        A(f"s_add_u32 s{sTMP}, s{sTMP}, {223*2048}")
        A(f"s_load_dword s10, s[{sWD}:{sWD+1}], s{sTMP}")
        A(f"s_lshl_b32 s{sTMP}, s{sR}, 9")
        A(f"s_lshl_b32 s{sTMP2}, s{sXCD}, 6")
        A(f"s_add_u32 s{sTMP}, s{sTMP}, s{sTMP2}")
        A(f"s_load_dword s6, s[{sOUT}:{sOUT+1}], s{sTMP} glc")
        A("L_stD:")
        pass
        if not opt.tbar: A("s_barrier")
        A("s_waitcnt lgkmcnt(0)")
        A("s_branch L_notif")
        A("L_loader3:")
    stamp(1)
    def lds_wait_ge(off, val, vtmp="v11", vaddr="v9", sleep=0):
        l = g.lab("L_w")
        A(f"{l}:")
        if sleep: A(f"s_sleep {sleep}")
        A(f"ds_read_b32 {vtmp}, {vaddr} offset:{off}")
        A("s_waitcnt lgkmcnt(0)")
        A(f"v_readfirstlane_b32 s{sTMP}, {vtmp}")
        A(f"s_cmp_ge_u32 s{sTMP}, {val}")
        A(f"s_cbranch_scc0 {l}")
    def wmax(w): return max(w) if isinstance(w, tuple) else w
    def blk_loop(nblk, win, rot):
        l = g.lab("L_ld")
        if nblk > 1:
            A(f"s_mov_b32 s{sNB}, {nblk}")
            A(f"{l}:")
        if isinstance(win, tuple):
            hi = g.lab("L_hi"); j = g.lab("L_jn")
            A(f"s_memrealtime s[{sNOW}:{sNOW+1}]")
            A(f"s_mul_i32 s{sTMP2}, s{sBLK}, {opt.period}")
            A(f"s_add_u32 s{sTMP2}, s{sTMP2}, {opt.toff}")
            A("s_waitcnt lgkmcnt(0)")
            A(f"s_sub_u32 s{sTMP}, s{sNOW}, s{sDL}")
            A(f"s_cmp_gt_u32 s{sTMP}, s{sTMP2}")
            A(f"s_cbranch_scc1 {hi}")
            for k in range(3, win[0]//8, -1):
                A(f"s_sub_u32 s{sTMP}, s{sBLK}, {k}")
                A(f"s_max_i32 s{sPROG}, s{sTMP}, s{sPROG}")
                A(f"v_mov_b32 v10, s{sPROG}")
                A(f"s_waitcnt vmcnt({8*k})")
                A(f"ds_write_b32 v9, v10 offset:{F_PROG}")
            blk_body(win[0], False)
            A(f"s_branch {j}")
            A(f"{hi}:")
            blk_body(win[1], False)
            A(f"{j}:")
            assert not rot
        else:
            blk_body(win, rot)
        A(f"s_add_u32 s{sBLK}, s{sBLK}, 1")
        if nblk > 1:
            A(f"s_sub_u32 s{sNB}, s{sNB}, 1")
            A(f"s_cmp_lg_u32 s{sNB}, 0")
            A(f"s_cbranch_scc1 {l}")
    def drain(maxwin, kmin=0):
        for k in range((maxwin + 4 + 7)//8 - 1, kmin - 1, -1):
            A(f"s_sub_u32 s{sTMP}, s{sBLK}, {k}")
            A(f"s_max_i32 s{sPROG}, s{sTMP}, s{sPROG}")
            A(f"v_mov_b32 v10, s{sPROG}")
            A(f"s_waitcnt vmcnt({8*k})")
            A(f"ds_write_b32 v9, v10 offset:{F_PROG}")
    def set_stride(stride):
        A(f"s_mov_b32 s{sSTEP}, {4*stride}")
        if stride & (stride-1) == 0:
            sh = stride.bit_length()-1
            A(f"v_lshl_add_u32 v5, v2, {sh}, v3")
            A(f"v_lshl_add_u32 v6, v2, {sh}, v4")
        else:
            A(f"v_mul_u32_u24 v8, {stride}, v2")
            A("v_add_u32 v5, v8, v3")
            A("v_add_u32 v6, v8, v4")
        A(f"s_mov_b32 s{sWRAP}, {256*stride}")
    XSRD = 68
    def xloads(n, ldsbase):
        for j in range(4):
            A(f"s_add_u32 s{sTMP}, s{sROT}, {2*j}")
            A(f"s_and_b32 s{sTMP}, s{sTMP}, 7")
            A(f"s_lshl_b32 s{sTMP}, s{sTMP}, 6")
            A(f"s_add_u32 s{sTMP}, s{sTMP}, s{sTMP3}")
            for q in range(n//4):
                A(f"s_mov_b32 m0, {ldsbase + 4096*q + 1024*j - 512*q}")
                A("s_nop 0")
                A(f"buffer_load_dwordx4 v7, s[{XSRD}:{XSRD+3}], s{sTMP} offen offset:{512*q} lds")
    def run_plan(pl, segs, start, hook=None):
        blk = 0; lastwin = 0
        segmap = {x[0]: x for x in segs}
        cur[0] = 'q'
        rot = False
        items = []
        for it in pl:
            if it == "d": items.append(it); continue
            n, w = it
            while n:
                c = min(n, 4 - blk if blk < 4 else 8 - ((blk - 4) % 8))
                if blk < start: c = min(c, start - blk)
                if hook and blk < hook[0]: c = min(c, hook[0] - blk)
                if blk >= start: items.append((blk, c, w))
                blk += c; n -= c
            lastw = w
        lastwin = pl[0][1]
        for it in items:
            if it == "d":
                drain(max(wmax(lastwin), 8*start)); continue
            b0, c, w = it
            if b0 >= 4 and (b0 - 4) % 8 == 0:
                seg = (b0 - 4) // 8 + 1
                stamp(1 + seg)
                if seg >= 2: lds_wait_ge(F_FREE0 + 4*(seg-2), 8)
                if b0 in segmap:
                    segmap[b0][1](); rot = segmap[b0][2]
                elif rot:
                    A(f"s_add_u32 s{sSOFF}, s{sSOFF}, s{sWRAP}")
                A(f"s_mov_b32 m0, {RA if seg % 2 == 1 else RB}")
            if hook and b0 == hook[0]: hook[1]()
            blk_loop(c, w, rot)
            lastwin = w
        stamp(8)
        if opt.fgate:
            A(f"s_mul_i32 s{sTMP}, s{sCB}, {16*CS}")
            A(f"s_add_u32 s{sTMP}, s{sTMP}, {WS_FC}")
            A(f"s_add_u32 s4, s{sWS}, s{sTMP}")
            A(f"s_addc_u32 s5, s{sWS+1}, 0")
            A(f"v_mul_u32_u24 v5, {CS}, v0")
            A("v_mov_b32 v6, 1")
        drain(max(wmax(x[1]) for x in pl if x != "d"), 1 if opt.fearly else 0)
        if not opt.fearly: stamp(9)
        A("s_branch L_ld_end")
    def late_seg(ptr, nbytes):
        def f():
            cur[0] = 'o' if ptr == sWO else 'd'
            set_stride(2048)
            A(f"s_mov_b64 s[{SRD}:{SRD+1}], s[{ptr}:{ptr+1}]\ns_mov_b32 s{SRD+2}, {nbytes}")
            A(f"s_mov_b32 s{sIDX}, s{sLR}")
            A(f"s_add_u32 s{sSOFF}, s{sKB0}, s{sLR}")
            A(f"s_lshl_b32 s{sSOFF}, s{sSOFF}, 16")
            A(f"s_lshl_b32 s{sTMP}, s{sCB}, 8")
            A(f"s_add_u32 s{sSOFF}, s{sSOFF}, s{sTMP}")
        return f
    A("v_and_b32 v7, 7, v0")
    A("v_lshlrev_b32 v7, 11, v7")
    A("v_lshrrev_b32 v8, 3, v0")
    A("v_lshl_add_u32 v7, v8, 4, v7")
    A(f"s_mov_b64 s[{XSRD}:{XSRD+1}], s[{sX}:{sX+1}]\ns_mov_b32 s{XSRD+2}, 16384\ns_mov_b32 s{XSRD+3}, 0x20000")
    A(f"s_lshl_b32 s{sTMP3}, s{sKS}, 8")
    A(f"s_mov_b32 m0, {XF}")
    A("s_nop 0")
    A(f"buffer_load_dwordx4 v7, s[{XSRD}:{XSRD+3}], s{sTMP3} offen lds")
    A(f"s_mov_b32 m0, {XF + 1024 - 128}")
    A("s_nop 0")
    A(f"buffer_load_dwordx4 v7, s[{XSRD}:{XSRD+3}], s{sTMP3} offen offset:128 lds")
    A(f"s_mov_b32 m0, {RQ + 8192*NB0}")
    A(f"s_cmp_ge_u32 s{sR}, 16")
    A("s_cbranch_scc1 L_ld_M")
    def b_seg1():
        cur[0] = 'g'
        A(f"s_and_b32 s{sROT}, s{sROT}, 6")
        A(f"s_mov_b32 s{sIDX}, s{sROT}")
        A(f"s_and_b32 s{sTMP2}, s{sBETA}, 1")
        set_stride(7168)
        A(f"s_mul_i32 s{sSOFF}, s{sTMP2}, {512*7168}")
        A(f"s_lshr_b32 s{sTMP}, s{sBETA}, 2")
        A(f"s_lshl_b32 s{sTMP}, s{sTMP}, 8")
        A(f"s_add_u32 s{sSOFF}, s{sSOFF}, s{sTMP}")
        A(f"s_mul_i32 s{sTMP}, s{sROT}, {32*7168}")
        A(f"s_add_u32 s{sSOFF}, s{sSOFF}, s{sTMP}")
        A(f"s_bitcmp0_b32 s{sBETA}, 1")
        A(f"s_cselect_b64 s[{SRD}:{SRD+1}], s[{sWG}:{sWG+1}], s[{sWU}:{sWU+1}]")
        A(f"s_mov_b32 s{SRD+2}, {1024*3584*2}")
    A(f"s_cmp_eq_u32 s{sROLE}, 2")
    A("s_cbranch_scc1 L_ld_C")
    assert sum(x[0] for x in pb if x != "d") == 28
    XGAT = opt.xgat
    def xg_hook():
        A(f"s_and_b32 s{sTMP3}, s{sBETA}, 1")
        A(f"s_lshl_b32 s{sTMP3}, s{sTMP3}, 10")
        xloads(8, XF + 2048)
        A(f"s_mov_b32 m0, {RA + 8192*(XGAT-4)}")
    run_plan(pb, [(4, b_seg1, True), (20, late_seg(sWO, 4096*1024*2), True)], NB0, hook=(XGAT, xg_hook))
    A("L_ld_C:")
    assert sum(x[0] for x in pc if x != "d") == 12 and pc[1] == "d" and pc[0][0] == 4
    def c_seg1():
        late_seg(sWO, 4096*1024*2)()
        A(f"s_mov_b32 s{sBLK}, 20")
    run_plan(pc, [(4, c_seg1, True)], NB0)
    A("L_ld_M:")
    def m_seg1():
        cur[0] = 'k'
        set_stride(256)
        A(f"s_mul_i32 s{sROT}, s{sROT}, {opt.kvrot*1024}")
        A(f"s_mov_b32 s{sIDX}, s{sROT}")
        A(f"s_lshl2_add_u32 s{sTMP}, s{sBB}, s{sG}")
        A(f"s_lshl4_add_u32 s{sTMP}, s{sTMP}, s{sSPL}")
        A(f"s_add_u32 s{sTMP}, s{sTMP}, 12")
        A(f"s_pack_ll_b32_b16 s{sSOFF}, s{sIDX}, s{sTMP}")
        A(f"s_mov_b64 s[{SRD}:{SRD+1}], s[{sK}:{sK+1}]\ns_mov_b32 s{SRD+2}, {8*4*4096*128*2}")
    def m_seg2():
        cur[0] = 'v'
        A(f"s_mov_b64 s[{SRD}:{SRD+1}], s[{sV}:{sV+1}]")
        A(f"s_mov_b32 s{sIDX}, s{sROT}")
        A(f"s_pack_lh_b32_b16 s{sSOFF}, s{sIDX}, s{sSOFF}")
    assert sum(x[0] for x in pm if x != "d") == 27
    run_plan(pm, [(4, m_seg1, "kv"), (12, m_seg2, "kv"), (20, late_seg(sWD, 3584*1024*2), 7)], NB0)
    A("L_ld_end:")
    if opt.nocomm: A("s_branch L_exit")
    def fbump():
        if opt.flag_delay: A(f"s_sleep {opt.flag_delay}")
        if opt.fsat:
            A("s_mov_b32 s6, 1")
            for r in range(opt.frep): A(f"s_atomic_add s6, s[4:5], {CS*r}")
        else:
            A(f"s_bfm_b64 exec, {opt.frep}, 0")
            A("global_atomic_add v5, v6, s[4:5] sc1")
            A("s_mov_b64 exec, -1")
    if opt.fearly:
        A(f"ds_read_b32 v11, v9 offset:{F_BA}")
        A(f"v_mov_b32 v10, s{sBLK}")
        A(f"s_waitcnt vmcnt({opt.fearly}) lgkmcnt(0)")
        A(f"v_readfirstlane_b32 s{sTMP}, v11")
        A(f"s_cmp_lt_u32 s{sTMP}, 8")
        A("s_cbranch_scc1 L_ld_late")
        A("s_mov_b32 s6, 1")
        for r in range(opt.frep): A(f"s_atomic_add s6, s[4:5], {CS*r}")
        A("s_waitcnt vmcnt(0)")
        A(f"ds_write_b32 v9, v10 offset:{F_PROG}")
        A("s_barrier")
        stamp(9)
        A("s_branch L_ld_fin")
        A("L_ld_late:")
        A("s_waitcnt vmcnt(0)")
        A(f"ds_write_b32 v9, v10 offset:{F_PROG}")
        stamp(9)
    if opt.fgate == 2 and not (opt.dbg & 1):
        lds_wait_ge(F_BA, opt.gok)
        fbump()
    A("s_barrier")
    if opt.fgate == 1 and not (opt.dbg & 1): fbump()
    A("L_ld_fin:")
    if opt.fixdur and opt.lprobe: A("s_branch L_noepoch")
    if opt.fgate and opt.fbar:
        A(f"s_cmp_lt_u32 s{sR}, 16")
        A("s_cbranch_scc1 L_exit")
        A("s_barrier")
    A("s_branch L_exit")

    A("L_cons:")
    vL16, vTR, vACT, vT, vPUB = 1, 2, 3, 4, 5
    vTMP, vTMP2, vTMP3 = 6, 7, 8
    vWA, vAA = 10, 11
    vW, vB, vACC, vACC2 = 12, 16, 20, 24
    vGA = 28
    vLS = 44
    vK = 52
    vQ = 84
    vRG, vRW, vRR, vOUT, vONE, vAFW, vFLG = 116, 117, 118, 119, 120, 121, 122
    vTP, vTC, vL8 = 123, 124, 125
    vSTW, vSTR = 126, 15
    vTA, vAX, vEN = 48, 49, 50
    NV = 128
    A("s_waitcnt lgkmcnt(0)")
    A(f"s_load_dword s{sT}, s[{sWS}:{sWS+1}], 0")
    decode2()
    stamp(1)
    A(f"v_mov_b32 v9, {FL}")
    if opt.notif:
        A(f"s_cmp_eq_u32 s3, 10")
        A("s_cbranch_scc1 L_notif")
    A(f"s_sub_u32 s{sC}, s3, 1")
    sSC, sM3, sMN, sEM, sRNG = 58, 60, 61, 56, 57
    A(f"s_mov_b32 s{sM3}, 0x00030003")
    A(f"s_mov_b32 s{sMN}, 0xfffcfffc")
    A(f"s_mov_b32 s{sRNG}, {27 << 23:#x}")
    A(f"v_mov_b32 v{vAX}, 0")
    A(f"v_lshlrev_b32 v{vL8}, 3, v0")
    A(f"v_mov_b32 v9, {FL}")
    A(f"v_mov_b32 v{vONE}, 1")
    A(f"v_lshlrev_b32 v{vL16}, 4, v0")
    A(f"v_mul_u32_u24 v{vFLG}, {CS}, v0")
    A(f"v_lshrrev_b32 v{vTMP2}, 4, v0")
    A(f"v_bfe_u32 v{vTMP3}, v0, 2, 2")
    A(f"v_lshl_add_u32 v{vTR}, v{vTMP2}, 3, v{vTMP3}")
    A(f"v_lshlrev_b32 v{vTR}, 8, v{vTR}")
    A(f"v_and_b32 v{vACT}, 1, v{vTMP2}")
    A(f"v_lshl_or_b32 v{vTMP3}, v{vACT}, 2, v{vTMP3}")
    A(f"v_xor_b32 v{vTMP3}, s{sC}, v{vTMP3}")
    A(f"v_lshl_or_b32 v{vTR}, v{vTMP3}, 5, v{vTR}")
    A(f"v_and_b32 v{vTMP3}, 3, v0")
    A(f"v_lshl_or_b32 v{vTR}, v{vTMP3}, 3, v{vTR}")
    A(f"v_and_b32 v{vTMP3}, 7, v0")
    A(f"v_lshl_add_u32 v{vACT}, v{vTMP2}, 3, v{vTMP3}")
    A(f"v_lshlrev_b32 v{vACT}, 4, v{vACT}")
    A(f"v_lshrrev_b32 v{vAFW}, 5, v0")
    A(f"v_lshlrev_b32 v{vAFW}, 8, v{vAFW}")
    A(f"v_and_b32 v{vTMP2}, 2, v0")
    A(f"v_lshl_or_b32 v{vAFW}, v{vTMP2}, 6, v{vAFW}")
    A(f"v_and_b32 v{vTMP2}, 28, v0")
    A(f"v_lshl_or_b32 v{vAFW}, v{vTMP2}, 2, v{vAFW}")
    A(f"v_and_b32 v{vTMP2}, 1, v0")
    A(f"v_lshl_or_b32 v{vAFW}, v{vTMP2}, 3, v{vAFW}")
    A(f"s_lshl_b32 s{sTMP}, s{sC}, 9")
    A(f"s_add_u32 s{sTMP}, s{sTMP}, {AF}")
    A(f"v_add_u32 v{vAFW}, s{sTMP}, v{vAFW}")
    def afswz(v):
        A(f"v_lshrrev_b32 v{vTMP2}, 3, v{v}")
        A(f"v_and_b32 v{vTMP2}, 0x70, v{vTMP2}")
        A(f"v_xor_b32 v{v}, v{v}, v{vTMP2}")
    afswz(vAFW)
    A("s_waitcnt lgkmcnt(0)")
    A(f"s_add_u32 s{sT}, s{sT}, 0x11111111")
    A(f"s_mov_b32 s{sT+1}, s{sT}")
    A(f"v_mov_b32 v{vT}, s{sT}")
    def tagbits(dst, vsh):
        A(f"v_lshrrev_b32 v{dst}, v{vsh}, v{vT}")
        A(f"v_and_b32 v{dst}, 15, v{dst}")
        A(f"v_lshl_or_b32 v{dst}, v{dst}, 14, v{dst}")
        A(f"v_and_b32 v{dst}, s{sM3}, v{dst}")
    A(f"v_and_b32 v{vTMP}, 7, v0")
    A(f"v_lshlrev_b32 v{vTMP}, 2, v{vTMP}")
    tagbits(vTC, vTMP)
    A(f"v_lshrrev_b32 v{vTMP}, 2, v0")
    A(f"v_and_b32 v{vTMP}, 12, v{vTMP}")
    A(f"v_and_b32 v{vTMP2}, 1, v0")
    A(f"v_lshl_or_b32 v{vTMP}, v{vTMP2}, 4, v{vTMP}")
    tagbits(vTP, vTMP)

    def refresh_prog():
        A(f"ds_read_b32 v{vTMP}, v9 offset:{F_PROG}")
        A("s_waitcnt lgkmcnt(0)")
        A(f"v_readfirstlane_b32 s{sPROG}, v{vTMP}")
    def wait_prog(val_is_sgpr, val, sleep=0):
        l = g.lab("L_wp"); d = g.lab("L_wpd")
        v = f"s{val}" if val_is_sgpr else str(val)
        A(f"s_cmp_ge_u32 s{sPROG}, {v}")
        A(f"s_cbranch_scc1 {d}")
        A(f"{l}:")
        if sleep: A(f"s_sleep {sleep}")
        refresh_prog()
        A(f"s_cmp_ge_u32 s{sPROG}, {v}")
        A(f"s_cbranch_scc0 {l}")
        A(f"{d}:")
    def signal(off):
        A("s_mov_b64 exec, 1")
        A(f"ds_add_u32 v9, v{vONE} offset:{off}")
        A("s_mov_b64 exec, -1")
    def cwait(off, val, sleep=0):
        lds_wait_ge(off, val, vtmp=f"v{vTMP}", sleep=sleep)
    def cwait_rd(off, val, nrd, reads):
        l = g.lab("L_cw")
        A(f"{l}:")
        A(f"ds_read_b32 v{vTMP}, v9 offset:{off}")
        reads()
        A(f"s_waitcnt lgkmcnt({nrd})")
        A(f"v_readfirstlane_b32 s{sTMP}, v{vTMP}")
        A(f"s_cmp_ge_u32 s{sTMP}, {val}")
        A(f"s_cbranch_scc0 {l}")
    def fbits(x): return struct.unpack("<I", struct.pack("<f", x))[0]
    ADJ = 1.0
    LQ, LO_, LG, LF = [x + opt.sbias for x in (8, 12, 10, 20)]
    def setscale(lg):
        A(f"s_mov_b32 s{sSC}, {fbits(2.0**lg):#x}")
    def encode(sc=None, tp=vTP, ta=vTA):
        src = vACC
        d = g.lab("L_en")
        scs = f"s[{sSC}:{sSC+1}]" if sc is None else f"v[{sc}:{sc+1}]"
        A(f"v_pk_mul_f32 v[{src}:{src+1}], v[{src}:{src+1}], {scs} op_sel_hi:[1,0]")
        A(f"v_pk_mul_f32 v[{src+2}:{src+3}], v[{src+2}:{src+3}], {scs} op_sel_hi:[1,0]")
        A(f"v_max3_f32 v{vTMP}, |v{src}|, |v{src+1}|, |v{src+2}|")
        A(f"v_max_f32 v{vTMP}, |v{src+3}|, v{vTMP}")
        A(f"v_subrev_u32 v{vTMP2}, {115 << 23:#x}, v{vTMP}")
        A(f"v_cmp_le_u32 vcc, s{sRNG}, v{vTMP2}")
        r = g.lab("L_er")
        A(f"{r}:")
        A(f"v_cvt_pkrtz_f16_f32 v{vEN}, v{src}, v{src+1}")
        A(f"v_cvt_pkrtz_f16_f32 v{vEN+1}, v{src+2}, v{src+3}")
        A(f"v_add_u32 v{vEN}, 0x00020002, v{vEN}")
        A(f"v_add_u32 v{vEN+1}, 0x00020002, v{vEN+1}")
        A(f"v_and_or_b32 v{vEN}, v{vEN}, s{sMN}, v{vAX}")
        A(f"v_and_or_b32 v{vEN+1}, v{vEN+1}, s{sMN}, v{tp}")
        A(f"s_cbranch_vccz {d}")
        A(f"s_call_b64 s[6:7], L_encs")
        A(f"s_branch {r}")
        A(f"{d}:")
    def publish(src, base=sGA, sc=None):
        encode(sc)
        A("s_mov_b32 exec_lo, 0x00ff00ff\ns_mov_b32 exec_hi, 0x00ff00ff")
        if not (opt.dbg & 33): A(f"global_store_dwordx2 v{vPUB}, v[{vEN}:{vEN+1}], s[{base}:{base+1}] sc1")
    NREP = opt.nrep; HREP = max(1, NREP // 4)
    sNH = 9
    def bump(kind):
        if opt.dbg & 33: return
        if opt.satom:
            A(f"s_mov_b32 s8, 1")
            if kind == "h":
                e = g.lab("L_bh")
                for r in range(HREP): A(f"s_atomic_add s8, s[{sGB}:{sGB+1}], {CS*r}")
                A(f"s_cmp_eq_u32 s{sNH}, {HREP}")
                A(f"s_cbranch_scc1 {e}")
                for r in range(HREP, 2*HREP): A(f"s_atomic_add s8, s[{sGB}:{sGB+1}], {CS*r}")
                A(f"{e}:")
            else:
                for r in range(NREP): A(f"s_atomic_add s8, s[{sGB}:{sGB+1}], {CS*r}")
        else:
            if kind == "h": A(f"s_bfm_b64 exec, s{sNH}, 0")
            else: A(f"s_bfm_b64 exec, {NREP}, 0")
            A(f"global_atomic_add v{vFLG}, v{vONE}, s[{sGB}:{sGB+1}] sc1")
    def flag(cnt, nrep, last=7):
        d = g.lab("L_fl")
        A("s_mov_b64 exec, 1")
        A(f"ds_add_rtn_u32 v{vTMP}, v9, v{vONE} offset:{cnt}")
        A("s_waitcnt lgkmcnt(0)")
        A(f"v_readfirstlane_b32 s{sTMP}, v{vTMP}")
        A(f"s_cmp_lg_u32 s{sTMP}, {last}")
        A(f"s_cbranch_scc1 {d}")
        bump(nrep)
        A(f"{d}:")
        A("s_mov_b64 exec, -1")
    def staged(cnt, last, hi_off, kind):
        d = g.lab("L_sg")
        A(f"ds_write_b64 v{vSTW}, v[{vEN}:{vEN+1}]")
        A("s_mov_b64 exec, 1")
        A(f"ds_add_rtn_u32 v{vTMP}, v9, v{vONE} offset:{cnt}")
        A("s_mov_b64 exec, -1")
        A(f"ds_read_b128 v[{vGA}:{vGA+3}], v{vSTR}")
        A(f"ds_read_b128 v[{vGA+4}:{vGA+7}], v{vSTR} offset:1024")
        A(f"v_add_u32 v{vTMP2}, {hi_off}, v{vPUB}")
        A("s_waitcnt lgkmcnt(2)")
        A(f"v_readfirstlane_b32 s{sTMP}, v{vTMP}")
        A(f"s_cmp_lg_u32 s{sTMP}, {last}")
        A(f"s_cbranch_scc1 {d}")
        A("s_waitcnt lgkmcnt(0)")
        if not (opt.dbg & 1):
            A(f"global_store_dwordx4 v{vPUB}, v[{vGA}:{vGA+3}], s[{sGA}:{sGA+1}] sc1")
            A(f"global_store_dwordx4 v{vTMP2}, v[{vGA+4}:{vGA+7}], s[{sGA}:{sGA+1}] sc1")
        if kind: bump(kind)
        A("s_mov_b64 exec, -1")
        A("s_nop 0")
        A(f"{d}:")
        A("s_waitcnt lgkmcnt(0)")
    def flag_now(nrep):
        d = g.lab("L_fn")
        A(f"s_cmp_lg_u32 s{sC}, {opt.flagwave}")
        A(f"s_cbranch_scc1 {d}")
        bump(nrep)
        A("s_mov_b64 exec, -1")
        A(f"{d}:")
    def ws_addr(dst, base_const, soff):
        A(f"s_add_u32 s{soff}, s{soff}, {base_const}")
        A(f"s_add_u32 s{dst}, s{sWS}, s{soff}")
        A(f"s_addc_u32 s{dst+1}, s{sWS+1}, 0")
    def pub_voff(shift):
        A(f"v_and_b32 v{vTMP2}, 15, v0")
        A(f"v_lshrrev_b32 v{vTMP3}, 4, v0")
        A(f"v_lshlrev_b32 v{vTMP3}, 3, v{vTMP3}")
        A(f"v_lshl_or_b32 v{vPUB}, v{vTMP2}, {shift}, v{vTMP3}")
    def sample(base, offs, sleep=0, cntstamp=None):
        l = g.lab("L_sm"); d = g.lab("L_smd"); e = g.lab("L_sme")
        if opt.dbg & 7: return
        A(f"s_mov_b32 s{sCNT}, 0")
        if sleep: A(f"s_branch {e}")
        A(f"{l}:")
        if sleep:
            A(f"s_sleep {sleep}")
            A(f"{e}:")
        for i, o in enumerate(offs):
            A(f"s_load_dword s{sSM+i}, s[{base}:{base+1}], {o} glc")
        A(f"s_add_u32 s{sCNT}, s{sCNT}, 1")
        A(f"s_cmp_gt_u32 s{sCNT}, {opt.maxpoll}")
        A("s_waitcnt lgkmcnt(0)")
        A(f"s_cbranch_scc1 {d}")
        for i in range(len(offs)):
            A(f"s_xor_b32 s{sSM+i}, s{sSM+i}, s{sT}")
            if i: A(f"s_or_b32 s{sSM}, s{sSM}, s{sSM+i}")
        A(f"s_and_b32 s{sSM}, s{sSM}, 0xff")
        A(f"s_cbranch_scc1 {l}")
        A(f"{d}:")
        if cntstamp is not None: stampval(cntstamp, sCNT)
    def pollcnt(base, target, sleep, cntstamp=None):
        l = g.lab("L_pf"); d = g.lab("L_pfd"); e = g.lab("L_pfe")
        if opt.dbg & 7: return
        A(f"s_mov_b32 s{sCNT}, 0")
        if sleep: A(f"s_branch {e}")
        A(f"{l}:")
        if sleep:
            A(f"s_sleep {sleep}")
            A(f"{e}:")
        A(f"s_load_dword s8, s[{base}:{base+1}], 0 glc")
        A(f"s_add_u32 s{sCNT}, s{sCNT}, 1")
        A(f"s_cmp_gt_u32 s{sCNT}, {opt.maxhint}")
        A("s_waitcnt lgkmcnt(0)")
        A(f"s_cbranch_scc1 {d}")
        A(f"s_cmp_eq_u32 s8, s{target}")
        A(f"s_cbranch_scc0 {l}")
        A(f"{d}:")
        if cntstamp is not None: stampval(cntstamp, sCNT)
    def gather(nld=4, mid=None, cntstamp=None, sleep=0, work=None, kind='M', defer=False):
        l = g.lab("L_ga"); d = g.lab("L_gad"); c = g.lab("L_gac"); rt = g.lab("L_gar")
        assert nld in (1, 4)
        def issue():
            if opt.dbg & 2: return
            if opt.gprio: A(f"s_setprio {opt.gprio}")
            for i in range(nld):
                A(f"global_load_dwordx2 v[{vGA+2*i}:{vGA+2*i+1}], v{vL8}, s[{sGA}:{sGA+1}] offset:{512*i} sc1")
        if mid is not None or sleep:
            issue()
            if mid is not None: mid()
            A(f"s_mov_b32 s{sEM}, s{sM3}")
            A(f"s_mov_b32 s{sCNT}, 0")
            A(f"s_branch {c}")
            pad(kind)
        else:
            A(f"s_mov_b32 s{sEM}, s{sM3}")
            A(f"s_mov_b32 s{sCNT}, 0")
        A(f"{l}:")
        if sleep: A(f"s_sleep {sleep}")
        issue()
        A(f"{c}:")
        A(f"s_add_u32 s{sCNT}, s{sCNT}, 1")
        vC, vC0 = vTMP2, vTMP
        for i in range(nld):
            A(f"s_waitcnt vmcnt({nld-1-i})")
            A(f"v_xor_b32 v{vGA+2*i+1}, v{vTC}, v{vGA+2*i+1}")
            if i == 2:
                A(f"v_or3_b32 v{vC0}, v{vGA}, v{vGA+2}, v{vGA+4}")
                A(f"v_or3_b32 v{vC}, v{vGA+1}, v{vGA+3}, v{vGA+5}")
            if i == nld-1:
                if nld == 4:
                    A(f"v_or_b32 v{vC0}, v{vC0}, v{vGA+6}")
                    A(f"v_bitop3_b32 v{vC}, v{vC}, v{vGA+7}, s{sM3} bitop3:0xa8")
                else:
                    A(f"v_and_b32 v{vC}, s{sM3}, v{vGA+1}")
                A(f"v_and_or_b32 v{vC0}, v{vC0 if nld == 4 else vGA}, s{sEM}, v{vC}")
                A(f"v_cmp_ne_u32 vcc, 0, v{vC0}")
            if work is not None and (i < nld-1 or opt.specw): work(i)
        A(f"s_cbranch_vccz {d}")
        A(f"v_cmp_ne_u32 vcc, 0, v{vC}")
        A(f"s_cbranch_vccnz {rt}")
        A(f"s_mov_b32 s{sEM}, 0")
        if defer: A(f"s_branch {d}")
        else:
            A("s_call_b64 s[6:7], L_fixr")
            A(f"s_branch {c}")
        A(f"{rt}:")
        A(f"s_cmp_le_u32 s{sCNT}, {0 if (opt.dbg & 6) else opt.maxpoll}")
        A(f"s_cbranch_scc1 {l}")
        A(f"{d}:")
        if cntstamp is not None: stampval(cntstamp, sCNT)
        if work is not None and not opt.specw: work(nld-1)
    vS0, vS1, vSCA = vGA + 12, vGA + 8, vLS
    def acc(i, dst, first):
        for r in range(4):
            c2 = "0" if first else f"v{dst+r}"
            A(f"v_fma_mix_f32 v{dst+r}, v{vGA+2*i+(r>>1)}, v{vSCA+i}, {c2} op_sel:[{r&1},0,0] op_sel_hi:[1,0,0]")
    def setsca(lg):
        for i in range(4): A(f"v_mov_b32 v{vSCA+i}, {fbits(2.0**-lg):#x}")
    def wreads(k0, k1):
        for kb in range(k0, k1):
            o = 8192*kb
            A(f"ds_read_b64_tr_b16 v[{vK+4*kb}:{vK+4*kb+1}], v{vWA} offset:{o}")
            A(f"ds_read_b64_tr_b16 v[{vK+4*kb+2}:{vK+4*kb+3}], v{vWA} offset:{o+1024}")
    def mf(kb, first):
        c = "0" if first else f"v[{vACC}:{vACC+3}]"
        A(f"v_mfma_f32_16x16x32_bf16 v[{vACC}:{vACC+3}], v[{vK+4*kb}:{vK+4*kb+3}], v[{vQ+4*kb}:{vQ+4*kb+3}], {c}")
    vAB = vW
    def actreads(n, swz=False):
        for kb in range(n):
            A(f"ds_read_b128 v[{vQ+4*kb}:{vQ+4*kb+3}], v{vAB if (swz and kb & 1) else vAA} offset:{512*kb}")
    sFA, sRA, sPE = 12, 10, 14
    def late_setup(wbase, padd, pend):
        A(f"v_add_u32 v{vWA}, {wbase}, v{vTR}")
        A(f"v_add_u32 v{vAA}, {AF}, v{vACT}")
        afswz(vAA)
        A(f"v_xor_b32 v{vAB}, 64, v{vAA}")
        A(f"v_and_b32 v{vTMP2}, 4, v0")
        A(f"v_lshlrev_b32 v{vPUB}, 10, v{vTMP2}")
        A(f"v_and_b32 v{vTMP2}, 3, v0")
        A(f"v_lshl_or_b32 v{vPUB}, v{vTMP2}, 5, v{vPUB}")
        A(f"v_lshrrev_b32 v{vTMP2}, 4, v0")
        A(f"v_lshl_or_b32 v{vPUB}, v{vTMP2}, 3, v{vPUB}")
        A(f"s_lshl3_add_u32 s{sTMP}, s{sCB}, s{sC}")
        A(f"s_lshl_b32 s{sTMP}, s{sTMP}, 6")
        A(f"s_add_u32 s{sTMP}, s{sTMP}, s{sRBK}")
        A(f"s_lshl_b32 s{sTMP}, s{sTMP}, 7")
        ws_addr(sFA, WS_FP + 128*padd, sTMP)
        A(f"s_mov_b32 s{sPE}, {pend}")
        setscale(LF)
        A(f"v_mov_b32 v{vAX}, 0")
        A(f"s_mov_b32 s{sWDN}, 21")
        A(f"s_add_u32 s{sTMP}, s{sKB0}, s{sC}")
        A(f"s_lshl_b32 s{sTMP}, s{sTMP}, 11")
    sRET = 6
    def wcatch():
        d = g.lab("L_wc")
        A(f"s_cmp_lt_u32 s{sPROG}, s{sWDN}")
        A(f"s_cbranch_scc1 {d}")
        A(f"s_call_b64 s[{sRET}:{sRET+1}], L_wcatch")
        A(f"{d}:")
    def late_wait():
        l = g.lab("L_lw"); d = g.lab("L_lwd")
        A(f"{l}:")
        A(f"ds_read_b64 v[{vTMP}:{vTMP+1}], v9 offset:{F_PROG}")
        A("s_waitcnt lgkmcnt(0)")
        A(f"v_readfirstlane_b32 s{sTMP}, v{vTMP+1}")
        A(f"v_readfirstlane_b32 s{sPROG}, v{vTMP}")
        A(f"s_cmp_lg_u32 s{sTMP}, 0")
        A(f"s_cbranch_scc1 {d}")
        wcatch()
        A(f"s_branch {l}")
        A(f"{d}:")
    def late_mid():
        A(f"s_add_u32 s{sTMP2}, s{sPROG}, {opt.midahead}")
        A(f"s_min_u32 s{sTMP2}, s{sTMP2}, s{sPE}")
        wcatch()
        wait_prog(True, sTMP2)
        wcatch()
    vPG = 126
    def late_post_issue():
        if opt.lflow == 1: A(f"ds_read_b32 v{vPG}, v9 offset:{F_PROG}")
    def late_post():
        if opt.fgate == 2: signal(F_BA)
        if opt.lflow != 1: return
        A("s_waitcnt lgkmcnt(0)")
        A(f"v_readfirstlane_b32 s{sPROG}, v{vPG}")
        wcatch()

    if opt.cprio: A(f"s_setprio {opt.cprio}")
    signal(F_ERD)
    A(f"s_cmp_eq_u32 s3, 9")
    A("s_cbranch_scc1 L_poller")
    if opt.nocomm:
        signal(F_FREE0); signal(F_FREE1)
        A("s_branch L_exit")
    def egloop(last, name, lead=None, nrep=0):
        A(f"L_eg_loop{name}:")
        A(f"ds_read_b128 v[{vB}:{vB+3}], v{vAA}")
        wait_prog(True, sCNT)
        A(f"ds_read_b64_tr_b16 v[{vW}:{vW+1}], v{vWA}")
        A(f"ds_read_b64_tr_b16 v[{vW+2}:{vW+3}], v{vWA} offset:1024")
        if lead is not None and lead >= 0:
            A(f"s_cmp_lg_u32 s{sCNT}, {last - lead}")
            A(f"s_cbranch_scc1 L_eg_nf{name}")
            flag_now(nrep)
            A(f"L_eg_nf{name}:")
        A(f"v_add_u32 v{vWA}, 8192, v{vWA}")
        A(f"v_add_u32 v{vAA}, 512, v{vAA}")
        A(f"s_add_u32 s{sCNT}, s{sCNT}, 1")
        A(f"s_cmp_le_u32 s{sCNT}, {last}")
        A("s_waitcnt lgkmcnt(0)")
        A(f"v_mfma_f32_16x16x32_bf16 v[{vACC}:{vACC+3}], v[{vW}:{vW+3}], v[{vB}:{vB+3}], v[{vACC}:{vACC+3}]")
        A(f"s_cbranch_scc1 L_eg_loop{name}")
    A(f"s_cmp_ge_u32 s{sC}, 4")
    A("s_cbranch_scc1 L_noq")
    A(f"v_and_b32 v{vTMP2}, 7, v0")
    A(f"v_lshlrev_b32 v{vSTW}, 8, v{vTMP2}")
    A(f"v_and_b32 v{vTMP2}, 8, v0")
    A(f"v_lshl_or_b32 v{vSTW}, v{vTMP2}, 2, v{vSTW}")
    A(f"v_lshrrev_b32 v{vTMP3}, 4, v0")
    A(f"v_lshl_or_b32 v{vSTW}, v{vTMP3}, 3, v{vSTW}")
    A(f"s_lshl_b32 s{sTMP}, s{sC}, 6")
    A(f"s_add_u32 s{sTMP}, s{sTMP}, {ST}")
    A(f"v_add_u32 v{vSTW}, s{sTMP}, v{vSTW}")
    A(f"v_add_u32 v{vSTR}, {ST}, v{vL16}")
    A(f"v_and_b32 v{vPUB}, 0xf0, v{vL16}")
    A(f"v_lshl_or_b32 v{vPUB}, v{vTMP3}, 16, v{vPUB}")
    A(f"v_lshlrev_b32 v{vTMP3}, 2, v{vTMP3}")
    A(f"v_lshl_or_b32 v{vTMP3}, v{vTMP2}, 1, v{vTMP3}")
    tagbits(vB, vTMP3)
    setscale(LQ)
    A(f"s_and_b32 s{sTMP3}, s{sU}, 7")
    A(f"s_lshl3_add_u32 s{sTMP}, s{sG}, s{sTMP3}")
    A(f"s_lshl3_add_u32 s{sTMP}, s{sTMP}, s{sKS}")
    A(f"s_lshl_b32 s{sTMP}, s{sTMP}, 8")
    ws_addr(sGA, WS_QP, sTMP)
    A(f"s_mul_i32 s{sTMP}, s{sG}, {32*CS}")
    ws_addr(sGB, WS_QC, sTMP)
    A(f"s_lshl_b32 s{sTMP}, s{sC}, 1")
    A(f"s_xor_b32 s{sTMP}, s{sTMP}, s{sC}")
    A(f"s_lshl_b32 s{sTMP}, s{sTMP}, 5")
    A(f"v_xor_b32 v{vWA}, s{sTMP}, v{vTR}")
    A(f"v_add_u32 v{vWA}, {RQ}, v{vWA}")
    A(f"v_xor_b32 v{vW}, 32, v{vWA}")
    A(f"v_add_u32 v{vAA}, {XF}, v{vACT}")
    A(f"v_cmp_eq_u32 s[4:5], 0, v{vTMP2}")
    cwait(F_ERD, 9, sleep=1)
    wait_prog(False, 4, sleep=1)
    if opt.qlead >= 0: flag_now("q")
    actreads(4)
    wreads(0, 4)
    for kb in range(4):
        A(f"s_waitcnt lgkmcnt({6 if kb == 0 else 6})")
        A(f"ds_read_b64_tr_b16 v[{vK+16+4*kb}:{vK+16+4*kb+1}], v{vW} offset:{8192*kb}")
        A(f"ds_read_b64_tr_b16 v[{vK+16+4*kb+2}:{vK+16+4*kb+3}], v{vW} offset:{8192*kb+1024}")
        mf(kb, kb == 0)
    A("s_mov_b64 exec, 3")
    A(f"ds_add_u32 v9, v{vONE} offset:{F_FREE0}")
    A("s_mov_b64 exec, -1")
    for kb in range(4):
        A(f"s_waitcnt lgkmcnt({7-2*kb})")
        c1 = "0" if kb == 0 else f"v[{vACC2}:{vACC2+3}]"
        A(f"v_mfma_f32_16x16x32_bf16 v[{vACC2}:{vACC2+3}], v[{vK+16+4*kb}:{vK+16+4*kb+3}], v[{vQ+4*kb}:{vQ+4*kb+3}], {c1}")
    A("s_nop 7")
    for r in range(4): A(f"v_cndmask_b32 v{vACC+r}, v{vACC2+r}, v{vACC+r}, s[4:5]")
    encode(None, vB, vB+1)
    staged(F_PUB0, 3, 4 << 16, "q" if opt.qhint else None)
    if opt.ackst:
        stamp(2); A("s_waitcnt vmcnt(0)"); stamp(5)
    A(f"v_mov_b32 v{vAX}, 0")
    A("L_noq:")
    if not opt.ackst: stamp(2)
    A(f"s_cmp_ge_u32 s{sR}, 16")
    A("s_cbranch_scc1 L_roleM")
    A(f"s_cmp_eq_u32 s{sROLE}, 2")
    A("s_cbranch_scc1 L_bc_late")
    pub_voff(5)
    setscale(LG)
    A(f"s_and_b32 s{sTMP}, s{sBETA}, -4")
    A(f"s_lshr_b32 s{sTMP2}, s{sC}, 1")
    A(f"s_add_u32 s{sTMP}, s{sTMP}, s{sTMP2}")
    A(f"s_and_b32 s{sTMP2}, s{sBETA}, 3")
    A(f"s_lshl2_add_u32 s{sTMP}, s{sTMP}, s{sTMP2}")
    A(f"s_and_b32 s{sTMP2}, s{sC}, 1")
    A(f"s_lshl1_add_u32 s{sTMP}, s{sTMP}, s{sTMP2}")
    A(f"s_lshl_b32 s{sTMP}, s{sTMP}, 8")
    ws_addr(sGA, WS_GP, sTMP)
    def hc_addr():
        A(f"s_and_b32 s{sTMP}, s{sBETA}, -4")
        A(f"s_or_b32 s{sTMP2}, s{sBETA}, 3")
        A(f"s_mul_i32 s{sTMP}, s{sTMP}, 147")
        A(f"s_mul_i32 s{sTMP2}, s{sTMP2}, 147")
        A(f"s_lshr_b32 s{sTMP}, s{sTMP}, 10")
        A(f"s_lshr_b32 s{sTMP2}, s{sTMP2}, 10")
        A(f"s_cmp_eq_u32 s{sTMP}, s{sTMP2}")
        A(f"s_cselect_b32 s{sNH}, {HREP}, {2*HREP}")
        A(f"s_mul_i32 s{sTMP}, s{sTMP}, {CS*HREP}")
        ws_addr(sGB, WS_HC, sTMP)
    if not opt.notif: hc_addr()
    for r in range(4): A(f"v_mov_b32 v{vACC+r}, 0")
    A(f"v_mov_b32 v{vWA}, v{vTR}")
    A(f"v_add_u32 v{vAA}, {XF + 2048}, v{vACT}")
    A(f"s_mov_b32 s{sCNT}, 5")
    wait_prog(False, opt.xgat + 1, sleep=1)
    egloop(12, "G1")
    signal(F_FREE1)
    stamp(3)
    egloop(20, "G2", opt.hlead, "h")
    A("s_nop 7")
    publish(vACC)
    if opt.hlead < 0 and not opt.notif: flag(F_PUB1, "h")
    else: A("s_mov_b64 exec, -1")
    stamp(6)
    if opt.ackst:
        A("s_waitcnt vmcnt(0)"); stamp(4)
    A("L_bc_late:")
    late_setup(RA, 0, 28)
    ws_addr(sGA, WS_OP, sTMP)
    A(f"s_lshl_b32 s{sTMP2}, s{sC}, 4")
    A(f"v_and_b32 v{vTMP3}, 32, v0")
    A(f"v_lshlrev_b32 v{vTMP3}, 2, v{vTMP3}")
    A(f"v_add3_u32 v{vTMP3}, v{vTMP3}, s{sTMP2}, v9")
    A(f"s_lshl_b32 s{sTMP3}, s{sLR}, 3")
    A(f"v_subrev_u32 v{vAFW}, s{sTMP3}, v0")
    A(f"v_and_b32 v{vAFW}, 62, v{vAFW}")
    A(f"v_lshlrev_b32 v{vAFW}, 6, v{vAFW}")
    A(f"v_and_b32 v{vTMP2}, 1, v0")
    A(f"v_lshl_or_b32 v{vAFW}, v{vTMP2}, 3, v{vAFW}")
    A(f"s_add_u32 s{sTMP2}, s{sTMP2}, {AF}")
    A(f"v_add_u32 v{vAFW}, s{sTMP2}, v{vAFW}")
    afswz(vAFW)
    late_wait()
    stamp(7)
    def owork(i):
        if i == 2: late_post_issue()
        if i == 3: late_post()
    gather(mid=late_mid, cntstamp=13, sleep=opt.gsleep, work=owork, kind='B', defer=True)
    if STAMP == 1: A("s_waitcnt lgkmcnt(0)")
    cwait_rd(F_WRDY, 1, 0, lambda: A(f"ds_read_b128 v[{vSCA}:{vSCA+3}], v{vTMP3} offset:{F_WT}"))
    stamp(8)
    A(f"s_cmp_lg_u32 s{sEM}, 0")
    A("s_cbranch_scc1 L_onofix")
    A("s_call_b64 s[6:7], L_fix")
    A("L_onofix:")
    for i in range(4): acc(i, vS0, i == 0)
    A("s_branch L_late")

    A("L_roleM:")
    vXr, vGWr = vK, vK + 8
    A(f"s_cmp_lt_u32 s{sC}, 4")
    A("s_cbranch_scc1 L_nogate")
    wait_prog(False, opt.ggate, sleep=1)
    A(f"s_and_b32 s{sTMP}, s{sR}, 1")
    A(f"s_lshl2_add_u32 s{sTMP}, s{sTMP}, s{sC}")
    A(f"s_sub_u32 s{sTMP3}, s{sTMP}, 4")
    A(f"s_lshl_b32 s{sTMP}, s{sTMP3}, 11")
    A(f"v_add_u32 v{vTMP3}, s{sTMP}, v{vL16}")
    for i in range(2):
        A(f"global_load_dwordx4 v[{vXr+4*i}:{vXr+4*i+3}], v{vTMP3}, s[{sX}:{sX+1}] offset:{1024*i}")
        A(f"global_load_dwordx4 v[{vGWr+4*i}:{vGWr+4*i+3}], v{vL16}, s[{sGW}:{sGW+1}] offset:{1024*i}")
    A(f"v_mov_b32 v{vACC2}, 0")
    A("s_waitcnt vmcnt(0)")
    for i in range(8):
        A(f"v_lshlrev_b32 v{vW}, 16, v{vXr+i}")
        A(f"v_and_b32 v{vW+1}, 0xffff0000, v{vXr+i}")
        A(f"v_lshlrev_b32 v{vW+2}, 16, v{vGWr+i}")
        A(f"v_and_b32 v{vW+3}, 0xffff0000, v{vGWr+i}")
        A(f"v_mul_f32 v{vW}, v{vW}, v{vW+2}")
        A(f"v_mul_f32 v{vW+1}, v{vW+1}, v{vW+3}")
        A(f"v_cvt_pk_bf16_f32 v{vW}, v{vW}, v{vW+1}")
        A(f"v_lshlrev_b32 v{vW+1}, 16, v{vW}")
        A(f"v_and_b32 v{vW}, 0xffff0000, v{vW}")
        A(f"v_add_f32 v{vACC2}, v{vACC2}, v{vW+1}")
        A(f"v_add_f32 v{vACC2}, v{vACC2}, v{vW}")
    for off in (0x041F, 0x081F, 0x101F, 0x201F, 0x401F):
        A(f"ds_swizzle_b32 v{vW}, v{vACC2} offset:{off:#x}")
        A("s_waitcnt lgkmcnt(0)")
        A(f"v_add_f32 v{vACC2}, v{vACC2}, v{vW}")
    A(f"v_mov_b32 v{vW}, v{vACC2}")
    A("s_nop 1")
    A(f"v_permlane32_swap_b32 v{vACC2}, v{vW}")
    A(f"v_add_f32 v{vACC2}, v{vACC2}, v{vW}")
    def rbf(v):
        A(f"v_cvt_pk_bf16_f32 v{v}, v{v}, v{v}")
        A(f"v_and_b32 v{v}, 0xffff0000, v{v}")
    rbf(vACC2)
    A(f"v_mul_f32 v{vACC2}, 0xbfb8aa3b, v{vACC2}")
    A(f"v_exp_f32 v{vACC2}, v{vACC2}")
    A("s_nop 0")
    A(f"v_add_f32 v{vACC2}, 1.0, v{vACC2}")
    A(f"v_rcp_f32 v{vACC2}, v{vACC2}")
    A("s_nop 0")
    rbf(vACC2)
    A(f"s_lshl_b32 s{sTMP}, s{sTMP3}, 2")
    A(f"v_add_u32 v{vTMP2}, s{sTMP}, v9")
    A("s_mov_b64 exec, 1")
    A(f"ds_write_b32 v{vTMP2}, v{vACC2} offset:{F_G}")
    A("s_mov_b64 exec, -1")
    A("L_nogate:")
    A(f"s_lshl2_add_u32 s{sTMP}, s{sBB}, s{sG}")
    A(f"s_lshl3_add_u32 s{sTMP}, s{sTMP}, s{sC}")
    A(f"s_lshl_b32 s{sTMP}, s{sTMP}, 11")
    ws_addr(sGA, WS_QP, sTMP)
    A(f"v_bfe_u32 v{vTMP2}, v0, 2, 2")
    A(f"v_and_b32 v{vTMP3}, 3, v0")
    A(f"v_lshl_add_u32 v{vTMP2}, v{vTMP2}, 3, v{vTMP3}")
    A(f"v_lshlrev_b32 v{vWA}, 8, v{vTMP2}")
    A(f"v_lshrrev_b32 v{vTMP2}, 5, v0")
    A(f"v_and_b32 v{vTMP3}, 7, v0")
    A(f"v_xor_b32 v{vTMP2}, v{vTMP2}, v{vTMP3}")
    A(f"v_lshl_or_b32 v{vWA}, v{vTMP2}, 5, v{vWA}")
    A(f"v_and_b32 v{vTMP2}, 16, v0")
    A(f"s_lshl_b32 s{sTMP}, s{sC}, 13")
    A(f"v_add3_u32 v{vWA}, v{vWA}, v{vTMP2}, s{sTMP}")
    vQA, vMX, vPA = vW, vW + 1, vW + 2
    A(f"v_and_b32 v{vQA}, 30, v0")
    A(f"v_lshlrev_b32 v{vQA}, 6, v{vQA}")
    A(f"v_and_b32 v{vTMP2}, 1, v0")
    A(f"v_lshl_or_b32 v{vQA}, v{vTMP2}, 3, v{vQA}")
    A(f"v_lshrrev_b32 v{vTMP2}, 5, v0")
    A(f"v_lshl_or_b32 v{vQA}, v{vTMP2}, 2, v{vQA}")
    A(f"s_lshl_b32 s{sTMP}, s{sC}, 4")
    A(f"s_add_u32 s{sTMP}, s{sTMP}, {QF}")
    A(f"v_add_u32 v{vQA}, s{sTMP}, v{vQA}")
    A(f"v_lshl_add_u32 v{vMX}, v{vTMP3}, 2, v9")
    A(f"s_lshl_b32 s{sTMP}, s{sC}, 9")
    A(f"s_add_u32 s{sTMP}, s{sTMP}, {PF}")
    A(f"v_add_u32 v{vPA}, s{sTMP}, v{vACT}")
    vOTP, vOTA = vRW, vRR
    A(f"v_lshrrev_b32 v{vTMP3}, 4, v0")
    A(f"v_and_b32 v{vTMP2}, 7, v0")
    A(f"v_lshlrev_b32 v{vSTW}, 8, v{vTMP2}")
    A(f"v_lshl_or_b32 v{vSTW}, v{vTMP3}, 3, v{vSTW}")
    A(f"s_lshl_b32 s{sTMP}, s{sC}, 5")
    A(f"s_add_u32 s{sTMP}, s{sTMP}, {ST}")
    A(f"v_add_u32 v{vSTW}, s{sTMP}, v{vSTW}")
    A(f"v_add_u32 v{vSTR}, {ST}, v{vL16}")
    A(f"v_and_b32 v{vPUB}, 0x1f0, v{vL16}")
    A(f"v_and_b32 v{vTMP2}, 32, v0")
    A(f"v_lshl_or_b32 v{vPUB}, v{vTMP2}, 9, v{vPUB}")
    A(f"s_and_b32 s{sTMP}, s{sC}, 1")
    A(f"s_lshl_b32 s{sTMP}, s{sTMP}, 4")
    A(f"v_lshl_or_b32 v{vTMP3}, v{vTMP3}, 2, s{sTMP}")
    tagbits(vOTP, vTMP3)
    if opt.qhint: cwait(F_QRDY, 1, sleep=1)
    else: wait_prog(False, opt.qgate, sleep=1)
    stamp(3)
    def kfrags():
        A(f"s_add_u32 s{sTMP2}, s{sC}, 5")
        wait_prog(True, sTMP2)
        for db in range(4):
            if db: A(f"v_xor_b32 v{vAA}, {64*db}, v{vWA}")
            a = vAA if db else vWA
            A(f"ds_read_b128 v[{vK+4*db}:{vK+4*db+3}], v{a}")
            A(f"ds_read_b128 v[{vK+16+4*db}:{vK+16+4*db+3}], v{a} offset:1024")
        signal(F_FREE1)
        A(f"v_add_u32 v{vAA}, {QF}, v{vACT}")
    setsca(LQ)
    def qwork(i): acc(i, vS0, i == 0)
    gather(nld=4, mid=kfrags, cntstamp=11, sleep=opt.qsleep, work=qwork)
    stamp(4)
    A("s_nop 1")
    A(f"v_permlane32_swap_b32 v{vS0}, v{vS0+2}")
    A(f"v_permlane32_swap_b32 v{vS0+1}, v{vS0+3}")
    A(f"v_add_f32 v{vS0}, v{vS0}, v{vS0+2}")
    A(f"v_add_f32 v{vS0+1}, v{vS0+1}, v{vS0+3}")
    A(f"v_cvt_pk_bf16_f32 v{vGA}, v{vS0}, v{vS0+1}")
    A(f"ds_write_b32 v{vQA}, v{vGA}")
    signal(F_BQ)
    A(f"s_lshl_b32 s{sTMP}, s{sG}, 5")
    A(f"s_add_u32 s{sTMP}, s{sTMP}, s{sBB}")
    A(f"s_lshl2_add_u32 s{sTMP}, s{sTMP}, s{sSPL}")
    A(f"s_lshl_b32 s{sTMP}, s{sTMP}, 9")
    ws_addr(sGA, WS_OP, sTMP)
    A(f"s_lshl2_add_u32 s{sTMP3}, s{sBB}, s{sSPL}")
    A(f"s_mul_i32 s{sTMP}, s{sG}, {32*CS}")
    ws_addr(sGB, WS_OC, sTMP)
    A(f"s_lshl_b32 s{sTMP}, s{sG}, 5")
    A(f"s_add_u32 s{sTMP}, s{sTMP}, s{sTMP3}")
    A(f"s_lshl_b32 s{sTMP}, s{sTMP}, 6")
    ws_addr(sFA, WS_LSE, sTMP)
    cbits = struct.unpack("<I", struct.pack("<f", math.log2(math.e) / math.sqrt(128.0)))[0]
    A(f"s_mov_b32 s{sTMP2}, {cbits:#x}")
    if STAMP == 1: A("s_waitcnt lgkmcnt(0)")
    if opt.spec: cwait_rd(F_BQ, 8, 4, lambda: actreads(4))
    else:
        cwait(F_BQ, 8); actreads(4)
    for db in range(4):
        A(f"s_waitcnt lgkmcnt({3-db})")
        c0 = "0" if db == 0 else f"v[{vACC}:{vACC+3}]"
        c1 = "0" if db == 0 else f"v[{vACC2}:{vACC2+3}]"
        A(f"v_mfma_f32_16x16x32_bf16 v[{vACC}:{vACC+3}], v[{vK+4*db}:{vK+4*db+3}], v[{vQ+4*db}:{vQ+4*db+3}], {c0}")
        A(f"v_mfma_f32_16x16x32_bf16 v[{vACC2}:{vACC2+3}], v[{vK+16+4*db}:{vK+16+4*db+3}], v[{vQ+4*db}:{vQ+4*db+3}], {c1}")
    A(f"v_add_u32 v{vAA}, {PF}, v{vACT}")
    A(f"v_add_u32 v{vWA}, {RB}, v{vTR}")
    vONES = vGA
    for r in range(4): A(f"v_mov_b32 v{vONES+r}, 0x3f803f80")
    A("s_nop 1")
    A(f"v_max3_f32 v{vTMP2}, v{vACC}, v{vACC+1}, v{vACC+2}")
    A(f"v_max3_f32 v{vTMP2}, v{vTMP2}, v{vACC+3}, v{vACC2}")
    A(f"v_max3_f32 v{vTMP2}, v{vTMP2}, v{vACC2+1}, v{vACC2+2}")
    A(f"v_max_f32 v{vTMP2}, v{vTMP2}, v{vACC2+3}")
    A("s_mov_b32 exec_lo, 0x00ff00ff\ns_mov_b32 exec_hi, 0x00ff00ff")
    A(f"ds_max_f32 v{vMX}, v{vTMP2} offset:{F_MAX}")
    signal(F_BM)
    vM = vLS
    cwait_rd(F_BM, 8, 1, lambda: A(f"ds_read_b32 v{vM}, v{vMX} offset:{F_MAX}"))
    if opt.olead >= 0 and opt.oearly:
        A(f"ds_read_b32 v{vTMP}, v9 offset:{F_PROG}")
    A("s_waitcnt lgkmcnt(0)")
    A(f"s_mov_b32 s{sWDN}, 0")
    if opt.olead >= 0 and opt.oearly:
        A(f"v_readfirstlane_b32 s{sPROG}, v{vTMP}")
        A(f"s_cmp_lt_u32 s{sPROG}, {20 - opt.olead}")
        A("s_cbranch_scc1 L_of_no1")
        flag_now("q")
        A(f"s_mov_b32 s{sWDN}, 1")
        A("L_of_no1:")
    A(f"v_mul_f32 v{vM}, s{sTMP2}, v{vM}")
    for r in range(8):
        A(f"v_fma_f32 v{vACC+r}, v{vACC+r}, s{sTMP2}, -v{vM}")
    for r in range(8):
        A(f"v_exp_f32 v{vACC+r}, v{vACC+r}")
    A("s_nop 0")
    for r in range(4):
        A(f"v_cvt_pk_bf16_f32 v{vB+r}, v{vACC+2*r}, v{vACC+2*r+1}")
    A(f"ds_write_b128 v{vPA}, v[{vB}:{vB+3}]")
    signal(F_BP)
    if opt.spec: cwait_rd(F_BP, 8, 8, lambda: actreads(8))
    else:
        cwait(F_BP, 8); actreads(8)
    A(f"ds_read_b32 v{vTMP}, v9 offset:{F_PROG}")
    for kb in range(8):
        A(f"s_waitcnt lgkmcnt({8-kb})")
        c1 = "0" if kb == 0 else f"v[{vACC2}:{vACC2+3}]"
        A(f"v_mfma_f32_16x16x32_bf16 v[{vACC2}:{vACC2+3}], v[{vONES}:{vONES+3}], v[{vQ+4*kb}:{vQ+4*kb+3}], {c1}")
    A("s_waitcnt lgkmcnt(0)")
    A(f"v_readfirstlane_b32 s{sPROG}, v{vTMP}")
    stamp(5)
    vRL = vLS + 2
    def lse_part():
        A(f"v_log_f32 v{vLS+1}, v{vACC2}")
        A(f"v_rcp_f32 v{vRL}, v{vACC2}")
        A("s_nop 0")
        A(f"v_mul_f32 v{vRL}, {fbits(2.0**LO_):#x}, v{vRL}")
        d = g.lab("L_nolse")
        A(f"s_cmp_lg_u32 s{sC}, 0")
        A(f"s_cbranch_scc1 {d}")
        A(f"v_add_f32 v{vM}, v{vM}, v{vLS+1}")
        A(f"v_mov_b32 v{vLS+1}, s{sT}")
        A(f"v_lshlrev_b32 v{vTMP2}, 3, v0")
        A("s_mov_b64 exec, 0xff")
        if not (opt.dbg & 1):
            A(f"global_store_dwordx2 v{vTMP2}, v[{vLS}:{vLS+1}], s[{sFA}:{sFA+1}] sc1")
            if opt.lcnt:
                A(f"s_bfm_b64 exec, {NREP}, 0")
                A(f"v_mov_b32 v{vTMP2}, 0x10000")
                A(f"global_atomic_add v{vFLG}, v{vTMP2}, s[{sGB}:{sGB+1}] sc1")
        A("s_mov_b64 exec, -1")
        A(f"{d}:")
    A(f"s_cmp_lt_u32 s{sPROG}, 20")
    A("s_cbranch_scc1 L_pv_slow")
    def oflag():
        if opt.olead < 0: return
        d = g.lab("L_of")
        A(f"s_cmp_lg_u32 s{sWDN}, 0")
        A(f"s_cbranch_scc1 {d}")
        flag_now("q")
        A(f"{d}:")
    wreads(0, 7)
    lse_part()
    oflag()
    for kb in range(7):
        A(f"s_waitcnt lgkmcnt({14-2*kb if kb else 12})")
        if kb == 0: wreads(7, 8)
        mf(kb, kb == 0)
    A("s_branch L_pv_last")
    pad("M")
    A("L_pv_slow:")
    A("s_nop 4")
    lse_part()
    for kb in range(8):
        wait_prog(False, 12 + kb + 1)
        wreads(kb, kb+1)
        if 12 + kb + 1 == 20 - opt.olead: oflag()
        if kb:
            A("s_waitcnt lgkmcnt(2)")
            mf(kb-1, kb == 1)
    A("L_pv_last:")
    A("s_waitcnt lgkmcnt(0)")
    mf(7, False)
    A("s_nop 7")
    encode(vRL, vOTP, vOTA)
    A("s_mov_b32 exec_lo, 0x00ff00ff\ns_mov_b32 exec_hi, 0x00ff00ff")
    staged(F_PUB1, 7, 2 << 14, "q" if (opt.olead < 0 and not opt.notif) else None)
    stamp(6)
    if opt.ackst:
        A("s_waitcnt vmcnt(0)"); stamp(3)
    A(f"s_and_b32 s{sTMP2}, s{sR}, 1")
    A(f"s_lshl_b32 s{sTMP2}, s{sTMP2}, 4")
    A(f"v_and_b32 v{vTMP2}, 12, v0")
    A(f"v_add3_u32 v{vTMP2}, v{vTMP2}, s{sTMP2}, v9")
    A(f"ds_read_b32 v{vRG}, v{vTMP2} offset:{F_G}")
    A(f"s_lshl4_add_u32 s{sTMP}, s{sXCD}, s{sR}")
    A(f"s_sub_u32 s{sTMP3}, s{sTMP}, 16")
    A(f"s_lshl3_add_u32 s{sTMP}, s{sTMP3}, s{sC}")
    A(f"s_lshl_b32 s{sTMP}, s{sTMP}, 9")
    ws_addr(sRA, WS_FP, sTMP)
    A(f"v_lshlrev_b32 v{vRR}, 2, v0")
    A(f"v_add_u32 v{vRR}, {RS}, v{vRR}")
    A(f"s_lshl_b32 s{sTMP}, s{sC}, 8")
    A(f"v_add_u32 v{vRW}, s{sTMP}, v{vRR}")
    A(f"v_and_b32 v{vOUT}, 12, v0")
    A(f"v_lshlrev_b32 v{vOUT}, 9, v{vOUT}")
    A(f"v_and_b32 v{vTMP2}, 3, v0")
    A(f"v_lshl_or_b32 v{vOUT}, v{vTMP2}, 3, v{vOUT}")
    A(f"v_lshrrev_b32 v{vTMP2}, 4, v0")
    A(f"v_lshl_or_b32 v{vOUT}, v{vTMP2}, 1, v{vOUT}")
    A(f"s_lshl_b32 s{sTMP2}, s{sTMP2}, 9")
    A(f"s_lshr_b32 s{sTMP3}, s{sTMP3}, 1")
    A(f"s_lshl_b32 s{sTMP3}, s{sTMP3}, 5")
    A(f"s_add_u32 s{sTMP2}, s{sTMP2}, s{sTMP3}")
    A(f"v_add_u32 v{vOUT}, s{sTMP2}, v{vOUT}")
    if opt.vtouch & 1:
        A(f"s_cmp_lg_u32 s{sC}, 7")
        A("s_cbranch_scc1 L_novt")
        A("s_mov_b64 exec, 1")
        A(f"global_load_ushort v127, v{vOUT}, s[{sOUT}:{sOUT+1}] sc1")
        A("s_mov_b64 exec, -1")
        A("L_novt:")
    A("s_waitcnt lgkmcnt(0)")
    A(f"s_cmp_lt_u32 s{sC}, 4")
    A("s_cbranch_scc1 L_wg_done")
    A(f"v_sub_f32 v{vRG}, 1.0, v{vRG}")
    rbf(vRG)
    A("L_wg_done:")
    A(f"v_mul_f32 v{vRG}, {fbits(2.0**-LF):#x}, v{vRG}")
    setsca(LG)
    late_setup(RA, 16, 27)
    A(f"s_add_u32 s{sTMP}, s{sC}, s{sLR}")
    A(f"s_cmp_ge_u32 s{sTMP}, 7")
    A(f"s_cselect_b32 s{sTMP2}, 7, 0")
    A(f"s_sub_u32 s{sTMP}, s{sTMP}, s{sTMP2}")
    A(f"s_add_u32 s{sTMP}, s{sTMP}, s{sKB0}")
    A(f"s_lshl_b32 s{sTMP}, s{sTMP}, 11")
    ws_addr(sGA, WS_GP, sTMP)
    for r in range(4): A(f"v_mov_b32 v{vS0+r}, 0")
    late_wait()
    A(f"s_cmp_eq_u32 s{sC}, 7")
    A("s_cbranch_scc1 L_late")
    stamp(7)
    def rnd4(v):
        A(f"v_cvt_pk_bf16_f32 v{vB}, v{v}, v{v+1}")
        A(f"v_cvt_pk_bf16_f32 v{vB+1}, v{v+2}, v{v+3}")
        for h in range(2):
            A(f"v_lshlrev_b32 v{v+2*h}, 16, v{vB+h}")
            A(f"v_and_b32 v{v+2*h+1}, 0xffff0000, v{vB+h}")
    def hwork(i):
        if i == 2: late_post_issue()
        if i == 3: late_post()
        acc(i, vS0 if i < 2 else vS1, i in (0, 2))
        if i == 1:
            for r in range(4): A(f"v_max_f32 v{vS0+r}, 0, v{vS0+r}")
            if opt.hround: rnd4(vS0)
        if i == 3:
            if opt.hround: rnd4(vS1)
            for r in (0, 2): A(f"v_pk_mul_f32 v[{vS0+r}:{vS0+r+1}], v[{vS0+r}:{vS0+r+1}], v[{vS1+r}:{vS1+r+1}]")
    gather(mid=late_mid, cntstamp=13, sleep=opt.gsleep, work=hwork)
    stamp(8)

    if opt.touch: A("s_branch L_late")
    pad("A")
    A("L_late:")
    A(f"v_cvt_pk_bf16_f32 v{vGA}, v{vS0}, v{vS0+1}")
    A(f"v_cvt_pk_bf16_f32 v{vGA+1}, v{vS0+2}, v{vS0+3}")
    A(f"ds_write_b64 v{vAFW}, v[{vGA}:{vGA+1}]")
    if opt.lflow == 1:
        signal(F_BA)
        if opt.fine: stamp(3)
        A(f"s_cmp_eq_u32 s{sWDN}, 99")
        A("s_cbranch_scc1 L_late_bar")
        A("L_late_spin:")
        A(f"ds_read2_b32 v[{vTMP}:{vTMP+1}], v9 offset0:{F_PROG//4} offset1:{F_BA//4}")
        A("s_waitcnt lgkmcnt(0)")
        A(f"v_readfirstlane_b32 s{sPROG}, v{vTMP}")
        A(f"v_readfirstlane_b32 s{sTMP2}, v{vTMP+1}")
        wcatch()
        A(f"s_cmp_eq_u32 s{sWDN}, 99")
        A("s_cbranch_scc1 L_late_bar0")
        A(f"s_cmp_lt_u32 s{sWDN}, 27")
        A("s_cbranch_scc1 L_late_spin")
        A(f"s_cmp_lt_u32 s{sTMP2}, 8")
        A("s_cbranch_scc1 L_late_spin")
        actreads(8, True)
        for kb in range(6):
            A(f"s_waitcnt lgkmcnt({7-kb})")
            mf(kb, kb == 0)
        A("s_barrier")
        wreads(6, 8)
        A("s_waitcnt lgkmcnt(2)")
        mf(6, False)
        A("s_waitcnt lgkmcnt(0)")
        mf(7, False)
        A("s_branch L_late_done")
        pad("A")
        A("L_late_bar:")
        A("s_waitcnt lgkmcnt(0)")
        A("L_late_bar0:")
        A("s_barrier")
        if opt.fine: stamp(4)
        actreads(8, True)
        for kb in range(8):
            A(f"s_waitcnt lgkmcnt({7-kb})")
            mf(kb, kb == 0)
    else:
        if opt.fine: stamp(3)
        if opt.lflow == 3: signal(F_BA)
        A(f"s_cmp_ge_u32 s{sWDN}, {opt.wmin}")
        A(f"s_cbranch_scc1 {'L_late_w6' if opt.lflow == 3 else 'L_late_bar'}")
        wait_prog(False, opt.wmin - 1)
        wcatch()
        if opt.lflow == 3:
            A("L_late_w6:")
            A(f"s_cmp_eq_u32 s{sWDN}, 99")
            A("s_cbranch_scc1 L_late_bar")
            A("L_late_spin:")
            A(f"ds_read2_b32 v[{vTMP}:{vTMP+1}], v9 offset0:{F_PROG//4} offset1:{F_BA//4}")
            A("s_waitcnt lgkmcnt(0)")
            A(f"v_readfirstlane_b32 s{sPROG}, v{vTMP}")
            A(f"v_readfirstlane_b32 s{sTMP2}, v{vTMP+1}")
            A(f"s_cmp_ge_u32 s{sPROG}, s{sPE}")
            A("s_cbranch_scc1 L_late_bar")
            A(f"s_cmp_lt_u32 s{sTMP2}, 8")
            A("s_cbranch_scc1 L_late_spin")
            n0 = opt.wmin - 21
            actreads(8, True)
            for kb in range(n0):
                A(f"s_waitcnt lgkmcnt({7-kb})")
                mf(kb, kb == 0)
            A("s_barrier")
            wreads(n0, 8)
            for kb in range(n0, 8):
                A(f"s_waitcnt lgkmcnt({2*(7-kb)})")
                mf(kb, False)
            A("s_branch L_late_done")
        A("L_late_bar:")
        A(f"s_cmp_eq_u32 s{sWDN}, 99")
        A("s_waitcnt lgkmcnt(0)")
        A("s_barrier")
        A("s_cbranch_scc1 L_late_act")
        wreads(opt.wmin - 21, 8)
        A("L_late_act:")
        if opt.fine: stamp(4)
        actreads(8, True)
        for kb in range(8):
            A(f"s_waitcnt lgkmcnt({7-kb})")
            mf(kb, kb == 0)
    A("L_late_done:")
    if opt.fine: stamp(5)
    A("s_nop 7")
    publish(vACC, sFA)
    A("s_mov_b64 exec, -1")
    stamp(9)
    A(f"s_cmp_ge_u32 s{sR}, 16")
    A("s_cbranch_scc1 L_red")
    if opt.fixdur:
        A(f"s_cmp_eq_u32 s{sC}, 0")
        A("s_cbranch_scc1 L_noepoch")
    A("s_branch L_exit")
    pad("A")
    A("L_red:")
    A(f"s_mov_b64 s[{sGA}:{sGA+1}], s[{sRA}:{sRA+1}]")
    if opt.fgate and not opt.fbar: cwait(F_FRDY, 1)
    A(f"v_mov_b32 v{vSCA}, v{vRG}")
    if opt.fgate and opt.fbar: A("s_barrier")
    def fwork(i): acc(0, vS0, True)
    gather(nld=1, cntstamp=12, sleep=opt.fgsleep, work=fwork)
    if not opt.stq: stamp(2)
    A("s_nop 1")
    A(f"v_permlane32_swap_b32 v{vS0}, v{vS0+2}")
    A(f"v_permlane32_swap_b32 v{vS0+1}, v{vS0+3}")
    A(f"v_add_f32 v{vS0}, v{vS0}, v{vS0+2}")
    A(f"v_add_f32 v{vS0+1}, v{vS0+1}, v{vS0+3}")
    A("s_nop 1")
    A(f"v_permlane16_swap_b32 v{vS0}, v{vS0+1}")
    A(f"v_add_f32 v{vGA}, v{vS0}, v{vS0+1}")
    A(f"ds_write_b32 v{vRW}, v{vGA}")
    A("s_mov_b64 exec, 1")
    A(f"ds_add_rtn_u32 v{vTMP}, v9, v{vONE} offset:{F_RED}")
    A("s_mov_b64 exec, -1")
    for i in range(4):
        A(f"ds_read2st64_b32 v[{vGA+2*i}:{vGA+2*i+1}], v{vRR} offset0:{2*i} offset1:{2*i+1}")
    A("s_waitcnt lgkmcnt(4)")
    A(f"v_readfirstlane_b32 s{sTMP}, v{vTMP}")
    A(f"s_cmp_lg_u32 s{sTMP}, 7")
    A("s_cbranch_scc1 L_exit")
    A("s_waitcnt lgkmcnt(0)")
    A(f"v_pk_add_f32 v[{vGA}:{vGA+1}], v[{vGA}:{vGA+1}], v[{vGA+2}:{vGA+3}]")
    A(f"v_pk_add_f32 v[{vGA+4}:{vGA+5}], v[{vGA+4}:{vGA+5}], v[{vGA+6}:{vGA+7}]")
    A(f"v_pk_add_f32 v[{vGA}:{vGA+1}], v[{vGA}:{vGA+1}], v[{vGA+4}:{vGA+5}]")
    A(f"v_add_f32 v{vGA}, v{vGA}, v{vGA+1}")
    A(f"v_cvt_pk_bf16_f32 v{vGA}, v{vGA}, v{vGA}")
    A(f"global_store_short v{vOUT}, v{vGA}, s[{sOUT}:{sOUT+1}] {opt.outflags}")
    A(f"s_cmp_lg_u32 s2, 128")
    A("s_cbranch_scc1 L_noepoch")
    A("s_mov_b64 exec, 1")
    A(f"v_mov_b32 v{vTMP}, 0")
    A(f"global_store_dword v{vTMP}, v{vT}, s[{sWS}:{sWS+1}] sc1")
    A("s_mov_b64 exec, -1")
    A("L_noepoch:")
    if opt.fixdur:
        A(f"s_cmp_lg_u32 s2, {opt.fixwg}")
        A("s_cbranch_scc1 L_nofix")
        if opt.lprobe:
            A("s_cmp_lg_u32 s3, 0")
            A("s_cbranch_scc1 L_nofix")
        if opt.probe == 20: A("s_memrealtime s[96:97]")
        A("s_waitcnt lgkmcnt(0)")
        A(f"s_sub_u32 s96, s96, s{94 if opt.probe0 >= 0 else 98}")
        A("s_min_u32 s96, s96, 3000")
        A(f"s_mul_i32 s96, s96, {opt.amp if opt.probe >= 0 else 0}")
        A(f"s_add_u32 s96, s96, {opt.fixdur}")
        A("L_fixd:")
        A("s_memrealtime s[14:15]")
        A("s_waitcnt lgkmcnt(0)")
        A("s_sub_u32 s14, s14, s98")
        A(f"s_cmp_lt_u32 s14, s96")
        A("s_cbranch_scc1 L_fixd")
        A("L_nofix:")
    if STAMP:
        A("s_waitcnt vmcnt(0)")
        stamp(1, True)
    A("s_branch L_exit")

    pad("A")
    A("L_wcatch:")
    for kb in range(8):
        nx = f"L_wcn{kb}"
        if kb < 7:
            A(f"s_cmp_gt_u32 s{sWDN}, {21+kb}")
            A(f"s_cbranch_scc1 {nx}")
        if kb:
            A(f"s_cmp_lt_u32 s{sPROG}, s{sWDN}")
            A("s_cbranch_scc1 L_wcret")
        wreads(kb, kb+1)
        if kb < 6: A(f"s_mov_b32 s{sWDN}, {22+kb}")
        elif kb == 6: A(f"s_mov_b32 s{sWDN}, s{sPE}")
        else: A(f"s_mov_b32 s{sWDN}, 99")
        if kb < 7: A(f"{nx}:")
    A("L_wcret:")
    A(f"s_setpc_b64 s[{sRET}:{sRET+1}]")

    A("L_encs:")
    A(f"v_lshrrev_b32 v{vTMP}, 23, v{vTMP}")
    A(f"v_subrev_u32 v{vTMP}, 126, v{vTMP}")
    A(f"v_ashrrev_i32 v{vTMP}, 4, v{vTMP}")
    A(f"v_med3_i32 v{vTMP}, v{vTMP}, -8, 7")
    A(f"v_cndmask_b32 v{vTMP}, 0, v{vTMP}, vcc")
    A(f"v_and_b32 v{vAX}, 15, v{vTMP}")
    A(f"v_lshl_or_b32 v{vAX}, v{vAX}, 14, v{vAX}")
    A(f"v_and_b32 v{vAX}, s{sM3}, v{vAX}")
    A(f"v_mul_i32_i24 v{vTMP}, -16, v{vTMP}")
    for r in range(4): A(f"v_ldexp_f32 v{vACC+r}, v{vACC+r}, v{vTMP}")
    A("s_mov_b64 vcc, 0")
    A("s_setpc_b64 s[6:7]")
    A("L_fixr:")
    for i in range(4): A(f"v_xor_b32 v{vGA+2*i+1}, v{vTC}, v{vGA+2*i+1}")
    A("L_fix:")
    for i in range(4):
        A(f"v_and_b32 v{vTMP}, 3, v{vGA+2*i}")
        A(f"v_bfe_i32 v{vTMP2}, v{vGA+2*i}, 16, 2")
        A(f"v_lshl_or_b32 v{vTMP}, v{vTMP2}, 2, v{vTMP}")
        A(f"v_lshlrev_b32 v{vTMP}, 4, v{vTMP}")
        A(f"v_ldexp_f32 v{vSCA+i}, v{vSCA+i}, v{vTMP}")
    A("s_setpc_b64 s[6:7]")

    if opt.notif:
        A("L_notif:")
        if opt.nocomm: A("s_branch L_exit")
        if opt.tlb:
            A("s_mov_b64 exec, 1")
            A(f"v_mov_b32 v{vGA}, 0")
            if opt.tlb & 1:
                A(f"global_load_dword v{vGA+1}, v{vGA}, s[{sOUT}:{sOUT+1}] sc1")
                A(f"global_load_dword v{vGA+2}, v{vGA}, s[{sWS}:{sWS+1}] offset:512 sc1")
            if opt.tlb & 2:
                A(f"s_lshl_b32 s{sTMP}, s{sKB0}, 16")
                A(f"v_mov_b32 v{vGA+8}, s{sTMP}")
                A(f"s_cmp_ge_u32 s{sR}, 16")
                A("s_cbranch_scc1 L_tlbM")
                A(f"global_load_dword v{vGA+3}, v{vGA+8}, s[{sWO}:{sWO+1}] nt")
                A(f"s_cmp_eq_u32 s{sROLE}, 2")
                A("s_cbranch_scc1 L_tlbD")
                A(f"s_bitcmp0_b32 s{sBETA}, 1")
                A(f"s_cselect_b64 s[4:5], s[{sWG}:{sWG+1}], s[{sWU}:{sWU+1}]")
                A(f"s_and_b32 s{sTMP}, s{sBETA}, 1")
                A(f"s_mul_i32 s{sTMP}, s{sTMP}, {512*7168}")
                A("s_mov_b64 exec, 7")
                A(f"v_mul_u32_u24 v{vGA+9}, {255*7168}, v0")
                A(f"v_add_u32 v{vGA+9}, s{sTMP}, v{vGA+9}")
                A(f"global_load_dword v{vGA+4}, v{vGA+9}, s[4:5] nt")
                A("s_branch L_tlbD")
                A("L_tlbM:")
                A(f"global_load_dword v{vGA+3}, v{vGA+8}, s[{sWD}:{sWD+1}] nt")
                A(f"s_lshl2_add_u32 s{sTMP}, s{sBB}, s{sG}")
                A(f"s_lshl_b32 s{sTMP}, s{sTMP}, 20")
                A(f"v_mov_b32 v{vGA+9}, s{sTMP}")
                A(f"global_load_dword v{vGA+4}, v{vGA+9}, s[{sV}:{sV+1}] nt")
                A("L_tlbD:")
            A("s_mov_b64 exec, -1")
        A(f"s_cmp_eq_u32 s{sROLE}, 2")
        A("s_cbranch_scc1 L_exit")
        A(f"s_cmp_ge_u32 s{sR}, 16")
        A("s_cbranch_scc1 L_notifM")
        hc_addr()
        wait_prog(False, opt.nprogh - 1, sleep=2)
        wait_prog(False, opt.nprogh)
        if opt.ndelay: A(f"s_sleep {opt.ndelay}")
        bump("h")
        A("s_branch L_exit")
        A("L_notifM:")
        A(f"s_mul_i32 s{sTMP}, s{sG}, {32*CS}")
        ws_addr(sGB, WS_OC, sTMP)
        cwait(F_BP, 8, sleep=2)
        if opt.pdelay: A(f"s_sleep {opt.pdelay}")
        wait_prog(False, opt.nprogo - 1, sleep=2)
        wait_prog(False, opt.nprogo)
        if opt.ndelay + opt.odelay: A(f"s_sleep {opt.ndelay + opt.odelay}")
        bump("q")
        A("s_branch L_exit")

    A("L_poller:")
    if opt.nocomm: A("s_branch L_exit")
    A(f"s_cmp_ge_u32 s{sR}, 16")
    A("s_cbranch_scc1 L_pollM")
    A(f"s_lshl3_add_u32 s{sTMP}, s{sRBK}, s{sCB}")
    A(f"s_and_b32 s{sTMP}, s{sTMP}, {NREP-1}")
    A(f"s_lshl_b32 s{sTMP2}, s{sG}, 5")
    A(f"s_add_u32 s{sTMP}, s{sTMP}, s{sTMP2}")
    A(f"s_mul_i32 s{sTMP}, s{sTMP}, {CS}")
    ws_addr(sGB, WS_OC, sTMP)
    A(f"s_load_dword s4, s[{sGB}:{sGB+1}], 0 glc")
    A(f"s_and_b32 s{sTMP}, s{sRBK}, 3")
    A(f"s_lshl_b32 s{sTMP}, s{sTMP}, 4")
    A(f"s_lshl_b32 s{sTMP2}, s{sG}, 11")
    A(f"s_add_u32 s{sTMP}, s{sTMP}, s{sTMP2}")
    ws_addr(sGA, WS_LSE, sTMP)
    A(f"v_and_b32 v{vTMP3}, 31, v0")
    A(f"v_lshlrev_b32 v{vTMP3}, 6, v{vTMP3}")
    A(f"v_lshrrev_b32 v{vTMP2}, 5, v0")
    A(f"v_lshl_or_b32 v{vTMP3}, v{vTMP2}, 3, v{vTMP3}")
    A("s_waitcnt lgkmcnt(0)")
    A(f"v_lshl_add_u32 v{vWA}, v0, 2, v9")
    A(f"s_cmp_eq_u32 s{sROLE}, 2")
    A(f"s_cselect_b32 s{sTMP2}, {opt.ogatec}, {opt.ogate}")
    A(f"s_add_u32 s5, s4, {0x200020 if opt.lcnt else 32}")
    for k, l in touch:
        if k in "AB": A(f"s_call_b64 s[6:7], {l}")
    wait_prog(True, sTMP2, sleep=2)
    stamp(2)
    if not (opt.dbg & 7):
        A(f"s_mov_b32 s{sCNT}, 0")
        if opt.psleep: A("s_branch L_pl1e")
        A("L_pl1:")
        if opt.psleep:
            A(f"s_sleep {opt.psleep}")
            A("L_pl1e:")
        A(f"s_load_dword s8, s[{sGB}:{sGB+1}], 0 glc")
        A(f"s_add_u32 s{sCNT}, s{sCNT}, 1")
        A(f"s_cmp_gt_u32 s{sCNT}, {opt.maxhint}")
        A("s_waitcnt lgkmcnt(0)")
        A("s_cbranch_scc1 L_pl1d")
        A("s_sub_u32 s9, s8, s4")
        A(f"s_cmp_lt_u32 s9, {0x200000 if opt.lcnt else opt.lthr}")
        A("s_cbranch_scc1 L_pl1")
        A("L_pl1d:")
        stampval(10, sCNT)
    stamp(3)
    A("s_mov_b32 s9, 0")
    A(f"s_mov_b32 s{sTMP3}, 0")
    A("L_lse:")
    if not (opt.dbg & 2): A(f"global_load_dwordx2 v[{vLS}:{vLS+1}], v{vTMP3}, s[{sGA}:{sGA+1}] sc1")
    if not (opt.dbg & 7):
        A("s_cmp_lg_u32 s9, 0")
        A("s_cbranch_scc1 L_lse_wait")
        A("L_pl2:")
        A("s_cmp_eq_u32 s8, s5")
        A("s_cbranch_scc1 L_pl_sig")
        A(f"s_cmp_gt_u32 s{sCNT}, {opt.maxhint}")
        A("s_cbranch_scc1 L_pl_sig")
        A("s_getreg_b32 s10, hwreg(HW_REG_IB_STS, 0, 4)")
        A("s_cmp_eq_u32 s10, 0")
        A("s_cbranch_scc1 L_lse_wait")
        A(f"s_load_dword s8, s[{sGB}:{sGB+1}], 0 glc")
        A(f"s_add_u32 s{sCNT}, s{sCNT}, 1")
        A("s_waitcnt lgkmcnt(0)")
        A("s_branch L_pl2")
        A("L_pl_sig:")
        signal(F_LRDY)
        A("s_mov_b32 s9, 1")
        stamp(5)
    A("L_lse_wait:")
    if not (opt.dbg & 7):
        A(f"s_load_dword s8, s[{sGB}:{sGB+1}], 0 glc")
    A(f"s_add_u32 s{sTMP3}, s{sTMP3}, 1")
    A("s_waitcnt vmcnt(0)")
    A(f"v_cmp_ne_u32 vcc, s{sT}, v{vLS+1}")
    A(f"s_cbranch_vccz L_lsed")
    A(f"s_cmp_le_u32 s{sTMP3}, {0 if (opt.dbg & 7) else opt.maxpoll}")
    A("s_waitcnt lgkmcnt(0)")
    A(f"s_cbranch_scc1 L_lse")
    A("L_lsed:")
    stampval(12, sTMP3)
    A(f"v_max_f32_dpp v{vTMP}, v{vLS}, v{vLS} quad_perm:[1,0,3,2] row_mask:0xf bank_mask:0xf")
    A("s_nop 1")
    A(f"v_max_f32_dpp v{vTMP}, v{vTMP}, v{vTMP} quad_perm:[2,3,0,1] row_mask:0xf bank_mask:0xf")
    A(f"v_sub_f32 v{vLS}, v{vLS}, v{vTMP}")
    A(f"v_exp_f32 v{vLS}, v{vLS}")
    A("s_nop 1")
    A(f"v_add_f32_dpp v{vTMP}, v{vLS}, v{vLS} quad_perm:[1,0,3,2] row_mask:0xf bank_mask:0xf")
    A("s_nop 1")
    A(f"v_add_f32_dpp v{vTMP}, v{vTMP}, v{vTMP} quad_perm:[2,3,0,1] row_mask:0xf bank_mask:0xf")
    A(f"v_rcp_f32 v{vTMP}, v{vTMP}")
    A("s_nop 0")
    A(f"v_mul_f32 v{vLS}, v{vLS}, v{vTMP}")
    A(f"v_mul_f32 v{vLS}, {fbits(2.0**-LO_):#x}, v{vLS}")
    A(f"ds_write_b32 v{vWA}, v{vLS} offset:{F_WT}")
    signal(F_WRDY)
    stamp(4)
    if not (opt.dbg & 7):
        A("s_cmp_lg_u32 s9, 0")
        A("s_cbranch_scc1 L_pl_fin")
        A("s_waitcnt lgkmcnt(0)")
        A("s_cmp_eq_u32 s8, s5")
        A("s_cbranch_scc1 L_pl_sig2")
    pollcnt(sGB, 5, opt.psleep, cntstamp=11)
    A("L_pl_sig2:")
    signal(F_LRDY)
    stamp(5)
    A("L_pl_fin:")
    A("s_barrier")
    A("s_branch L_exit")
    A("L_pollM:")
    A(f"s_lshl2_add_u32 s{sTMP}, s{sBB}, s{sSPL}")
    A(f"s_lshr_b32 s{sTMP}, s{sTMP}, {int(math.log2(32//NREP))}")
    A(f"s_lshl_b32 s{sTMP2}, s{sG}, 5")
    A(f"s_add_u32 s{sTMP}, s{sTMP}, s{sTMP2}")
    A(f"s_mul_i32 s{sTMP}, s{sTMP}, {CS}")
    ws_addr(sGB, WS_QC, sTMP)
    if opt.qhint: A(f"s_load_dword s4, s[{sGB}:{sGB+1}], 0 glc")
    A(f"s_mul_i32 s{sTMP}, s{sRBK}, {HREP}")
    A(f"s_and_b32 s{sTMP2}, s{sCB}, {HREP-1}")
    A(f"s_add_u32 s{sTMP}, s{sTMP}, s{sTMP2}")
    A(f"s_mul_i32 s{sTMP}, s{sTMP}, {CS}")
    ws_addr(sGA, WS_HC, sTMP)
    A(f"s_load_dword s5, s[{sGA}:{sGA+1}], 0 glc")
    if opt.fgate:
        A(f"s_and_b32 s{sTMP}, s{sR}, {opt.frep-1}")
        A(f"s_lshl4_add_u32 s{sTMP}, s{sXCD}, s{sTMP}")
        A(f"s_mul_i32 s{sTMP}, s{sTMP}, {CS}")
        ws_addr(10, WS_FC, sTMP)
        A(f"s_load_dword s6, s[10:11], 0 glc")
    A(f"s_bitcmp1_b32 s{sKB0}, 1")
    A(f"s_cselect_b32 s{sTMP}, 12, 8")
    A("s_waitcnt lgkmcnt(0)")
    if opt.fgate: A("s_add_u32 s6, s6, 32")
    A("s_add_u32 s4, s4, 64")
    A(f"s_add_u32 s5, s5, s{sTMP}")
    if opt.fgate: A("s_mov_b32 s9, s6")
    for k, l in touch:
        if k in "AM": A(f"s_call_b64 s[6:7], {l}")
    if opt.qhint:
        wait_prog(False, opt.qgate, sleep=2)
        stamp(2)
        pollcnt(sGB, 4, opt.psleep, cntstamp=10)
        signal(F_QRDY)
        stamp(3)
    wait_prog(False, opt.hgate, sleep=2)
    stamp(4)
    pollcnt(sGA, 5, opt.psleep, cntstamp=11)
    signal(F_LRDY)
    stamp(5)
    A("s_barrier")
    if opt.fgate:
        stamp(6)
        pollcnt(10, 9, 0, cntstamp=12)
        if opt.fbar: A("s_barrier")
        else: signal(F_FRDY)
        stamp(7)

    A("L_exit:")
    if STAMP:
        A("s_waitcnt lgkmcnt(0)")
        A(f"s_mul_i32 s{sTMP}, s2, {NWAVES}")
        A(f"s_add_u32 s{sTMP}, s{sTMP}, s3")
        A(f"s_lshl_b32 s{sTMP}, s{sTMP}, 6")
        A(f"s_add_u32 s{sTMP}, s{sTMP}, {WS_STAMP}")
        A(f"v_mov_b32 v1, s{sTMP}")
        A("s_mov_b64 exec, 1")
        for i in range(NST if STAMP == 1 else 10):
            A(f"v_mov_b32 v2, s{sST+2*i}")
            A(f"global_store_dword v1, v2, s[{sWS}:{sWS+1}] offset:{4*i}")
        A(f"v_mov_b32 v2, s{sROLE}")
        A(f"global_store_dword v1, v2, s[{sWS}:{sWS+1}] offset:60")
    A("L_end:")
    A("s_endpgm")

    body = "\n".join(g.o)
    PADTXT = f".p2align 12\n.fill {opt.pad//4}, 4, 0xbf810000\n" if opt.pad >= 0 else ""
    txt = HEADER
    txt += f"; @launch grid=(256,1,1) block=({64*NWAVES},1,1) lds={LDS_BYTES}\n"
    txt += f""".amdgcn_target "amdgcn-amd-amdhsa--gfx950"
.text
.globl {KNAME}
{PADTXT}.p2align 8
.type {KNAME},@function
{KNAME}:
{body}
.section .rodata,"a"
.p2align 6
.amdhsa_kernel {KNAME}
  .amdhsa_next_free_vgpr {NV}
  .amdhsa_next_free_sgpr 102
  .amdhsa_accum_offset {NV}
  .amdhsa_group_segment_fixed_size 0
  .amdhsa_kernarg_size 104
  .amdhsa_user_sgpr_count 2
  .amdhsa_user_sgpr_kernarg_segment_ptr 1
  .amdhsa_system_sgpr_workgroup_id_x 1
.end_amdhsa_kernel
"""
    return txt

def parse(argv):
    ap = argparse.ArgumentParser()
    ap.add_argument("--nt", default="nt")
    ap.add_argument("--pb", default="20:24,8:22")
    ap.add_argument("--pc", default="4:20,d,3:4,5:12")
    ap.add_argument("--pm", default="20:24,7:20")
    ap.add_argument("--nb0", type=int, default=3)
    ap.add_argument("--stamp", type=int, default=0)
    ap.add_argument("--stq", type=int, default=0)
    ap.add_argument("--fdelay", type=int, default=0)
    ap.add_argument("--qgate", type=int, default=9)
    ap.add_argument("--ogate", type=int, default=19)
    ap.add_argument("--ogatec", type=int, default=26)
    ap.add_argument("--hgate", type=int, default=19)
    ap.add_argument("--ggate", type=int, default=1)
    ap.add_argument("--maxpoll", type=int, default=100000)
    ap.add_argument("--psleep", type=int, default=0)
    ap.add_argument("--fsleep", type=int, default=2)
    ap.add_argument("--gsleep", type=int, default=0)
    ap.add_argument("--fgsleep", type=int, default=0)
    ap.add_argument("--sample", type=int, default=0)
    ap.add_argument("--outflags", default="sc1")
    ap.add_argument("--fixdur", type=int, default=0)
    ap.add_argument("--fixwg", type=int, default=128)
    ap.add_argument("--nocomm", type=int, default=0)
    ap.add_argument("--dbg", type=int, default=0)
    ap.add_argument("--cpf", type=int, default=2)
    ap.add_argument("--qlead", type=int, default=-1)
    ap.add_argument("--hlead", type=int, default=-1)
    ap.add_argument("--olead", type=int, default=-1)
    ap.add_argument("--oearly", type=int, default=0)
    ap.add_argument("--flagwave", type=int, default=1)
    ap.add_argument("--xgat", type=int, default=10)
    ap.add_argument("--nrep", type=int, default=8)
    ap.add_argument("--satom", type=int, default=1)
    ap.add_argument("--maxhint", type=int, default=20)
    ap.add_argument("--hround", type=int, default=0)
    ap.add_argument("--fgate", type=int, default=0)
    ap.add_argument("--frep", type=int, default=8)
    ap.add_argument("--flag_delay", type=int, default=1)
    ap.add_argument("--qhint", type=int, default=0)
    ap.add_argument("--qsleep", type=int, default=4)
    ap.add_argument("--lcnt", type=int, default=0)
    ap.add_argument("--lthr", type=int, default=16)
    ap.add_argument("--spec", type=int, default=0)
    ap.add_argument("--ackst", type=int, default=0)
    ap.add_argument("--cstride", type=int, default=640)
    ap.add_argument("--midahead", type=int, default=1)
    ap.add_argument("--fine", type=int, default=0)
    ap.add_argument("--pad", type=lambda x: int(x, 0), default=0xd00)
    ap.add_argument("--touch", type=int, default=0)
    ap.add_argument("--sbias", type=int, default=0)
    ap.add_argument("--period", type=int, default=0)
    ap.add_argument("--toff", type=int, default=650)
    ap.add_argument("--qsync", type=int, default=0)
    ap.add_argument("--lprio", type=int, default=3)
    ap.add_argument("--cprio", type=int, default=0)
    ap.add_argument("--gprio", type=int, default=0)
    ap.add_argument("--kvmode", default="tr1")
    ap.add_argument("--kvrot", type=int, default=9)
    ap.add_argument("--rotw", type=int, default=1)
    ap.add_argument("--lrot", type=int, default=3)
    ap.add_argument("--lflow", type=int, default=2)
    ap.add_argument("--wmin", type=int, default=27)
    ap.add_argument("--notif", type=int, default=1)
    ap.add_argument("--ndelay", type=int, default=0)
    ap.add_argument("--odelay", type=int, default=0)
    ap.add_argument("--pdelay", type=int, default=6)
    ap.add_argument("--nprogh", type=int, default=20)
    ap.add_argument("--nprogo", type=int, default=20)
    ap.add_argument("--gran", type=int, default=2)
    ap.add_argument("--barpos", type=int, default=1)
    ap.add_argument("--fsat", type=int, default=1)
    ap.add_argument("--gok", type=int, default=7)
    ap.add_argument("--fbar", type=int, default=1)
    ap.add_argument("--specw", type=int, default=1)
    ap.add_argument("--fearly", type=int, default=0)
    ap.add_argument("--tlb", type=int, default=0)
    ap.add_argument("--cpfc", type=int, default=1)
    ap.add_argument("--stlb", type=int, default=7)
    ap.add_argument("--vtouch", type=int, default=0)
    ap.add_argument("--probe", type=int, default=-1)
    ap.add_argument("--pol", default="nnnnnn")
    ap.add_argument("--probe0", type=int, default=-1)
    ap.add_argument("--lprobe", type=int, default=0)
    ap.add_argument("--amp", type=int, default=4)
    ap.add_argument("--tbar", type=int, default=1)
    ap.add_argument("--vden", type=int, default=1)
    ap.add_argument("-o", default=None)
    return ap.parse_args(argv)

if __name__ == "__main__":
    opt = parse(sys.argv[1:])
    t = gen(opt)
    if opt.o: open(opt.o, "w").write(t)
    else: print(t)
```

```python
import sys, argparse, struct, math

KNAME = "gated_mix__sliding_block_cached__glu_gated_reglu__decode_kernel"
HEADER = open("gated_mix__sliding_block_cached__glu_gated_reglu__decode.s.ref").read().split("; Override launch")[0]

RA = 0
RB = 65536
XA = 131072
RQ = RB + 32768
XF = XA
QF = XA + 2048
PF = XA + 4096
RS = XA + 8192
ST = XA + 10240
AF = XA + 12288
FL = XA + 16384
F_PROG, F_LRDY, F_QRDY, F_WRDY, F_BQ, F_BM, F_BP, F_BA, F_RED, F_PUB0, F_PUB1, F_FREE0, F_FREE1, F_ERD, F_FRDY = [4*i for i in range(15)]
F_MAX = 64
F_G = 96
F_WT = 128
LDS_BYTES = FL + 128 + 256

WS_QP = 512 << 10
WS_FP = 1024 << 10
WS_OP = 1536 << 10
WS_GP = 1792 << 10
WS_LSE = 16 << 10
WS_GL = 32 << 10
WS_QC = 64 << 10
WS_OC = 160 << 10
WS_HC = 256 << 10
WS_FC = 352 << 10
WS_STAMP = 8 << 20

class G:
    def __init__(self):
        self.o = []; self.nlab = 0
    def A(self, s):
        for line in s.split("\n"):
            self.o.append("    " + line.strip() if not line.strip().endswith(":") else line.strip())
    def lab(self, p="L"):
        self.nlab += 1
        return f"{p}_{self.nlab}"

def plan(s):
    out = []
    for t in s.split(","):
        if t == "d": out.append("d")
        else:
            a, b = t.split(":")
            if "|" in b: out.append((int(a), [int(x) for x in b.split("|")]))
            else: out.append((int(a), tuple(int(x) for x in b.split("/")) if "/" in b else int(b)))
    return out

def gen(opt):
    g = G(); A = g.A
    CS = opt.cstride
    KIB = [int(x) for x in opt.kvib]; KSB = [int(x) for x in opt.kvsb]
    assert KIB[4] == KIB[3] + 1 and KIB[5] == KIB[3] + 2 and KSB[1] == KSB[0] + 1 and sorted(KIB + KSB) == list(range(8))
    NWAVES = 11 if opt.notif else 10
    POL = {k: ('nt' if c == 'n' else '') for k, c in zip(('q','k','v','g','o','d'), opt.pol)}
    cur = ['q']
    STAMP = opt.stamp
    sX, sK, sV, sWQ, sWO, sBX, sWG, sWU = [16+2*i for i in range(8)]
    sWD, sGW, sOUT, sDBG = 32, 34, 36, 38
    sWS = 40
    sXCD, sR, sROLE = 42, 43, 44
    sU, sBETA, sG, sSPL, sRBK, sCB, sBB = 45, 46, 47, 48, 49, 50, 51
    sKS, sKB0 = 100, 101
    sLR = 53
    sWDN = 52
    sT = 54
    sT0, sT1, sT2, sT3 = 54, 56, 57, 53
    sSEL0, sSEL1, sSEL2, sSEL3 = 58, 59, 60, 61
    sPROG, sC = 62, 63
    sTMP, sTMP2, sTMP3, sCNT = 64, 65, 66, 67
    sGA, sGB = 68, 70
    sROT = 15
    sSM = 4
    sST = 72
    NST = 14
    SRD = 8
    def stamp(idx, key=False):
        if opt.probe == idx and not key: A("s_memrealtime s[96:97]")
        if opt.probe0 == idx and not key: A("s_memrealtime s[94:95]")
        if STAMP == 1 or (STAMP and (key or idx == 0)): A(f"s_memrealtime s[{sST+2*idx}:{sST+2*idx+1}]")
    touch = []
    def pad(kind):
        if not opt.touch: return
        l = g.lab("L_tp"); touch.append((kind, l))
        A(f"{l}:")
        A("s_setpc_b64 s[6:7]")
    def stampval(idx, sreg):
        if STAMP == 1: A(f"s_mov_b32 s{sST+2*idx}, s{sreg}")
    pb, pc, pm = plan(opt.pb), plan(opt.pc), plan(opt.pm)
    NB0 = opt.nb0
    assert NB0 <= 3

    stamp(0)
    if opt.fixdur: A("s_memrealtime s[98:99]")
    A("s_load_dwordx16 s[16:31], s[0:1], 0")
    A("s_load_dwordx8 s[32:39], s[0:1], 64")
    A("s_load_dwordx2 s[40:41], s[0:1], 96")
    A(f"s_cmp_ge_u32 s2, 256")
    A("s_cbranch_scc1 L_end")
    A("v_lshrrev_b32 v1, 6, v0")
    A("v_and_b32 v0, 63, v0")
    A("v_readfirstlane_b32 s3, v1")
    A(f"s_and_b32 s{sXCD}, s2, 7")
    A(f"s_lshr_b32 s{sR}, s2, 3")
    A(f"s_lshr_b32 s{sG}, s{sXCD}, 1")
    A(f"s_and_b32 s{sTMP3}, s{sXCD}, 1")
    A(f"s_add_u32 s{sROT}, s{sR}, s{2 if opt.rotw else sXCD}")
    A(f"s_lshl_b32 s{sTMP}, s{sXCD}, 1")
    A(f"s_sub_u32 s{sTMP}, s{sR}, s{sTMP}")
    A(f"s_sub_u32 s{sTMP}, s{sTMP}, 4")
    A(f"s_bfe_u32 s{sTMP2}, s{sTMP}, 0x20002")
    A(f"s_and_b32 s{sTMP}, s{sTMP}, 3")
    A(f"s_lshl2_add_u32 s{sU}, s{sTMP}, s{sTMP2}")
    A(f"s_cmp_ge_u32 s{sR}, 16")
    A(f"s_cselect_b32 s{sU}, s{sR}, s{sU}")
    A(f"s_lshr_b32 s{sTMP}, s{sU}, 3")
    A(f"s_lshl2_add_u32 s{sKS}, s{sTMP3}, s{sTMP}")
    A("s_cmp_lg_u32 s3, 0")
    A("s_cbranch_scc1 L_notloader")
    sSOFF, sSTEP, sNB, sBLK = 4, 5, 6, 7
    sIDX, sWRAP, sBASE = 12, 13, 14
    sNOW, sDL = 56, 58
    TIMED = "/" in (opt.pb + opt.pm + opt.pc)
    if TIMED: A(f"s_memrealtime s[{sNOW}:{sNOW+1}]")
    A(f"s_setprio {opt.lprio}")
    A(f"v_mov_b32 v9, {FL}")
    A("v_mov_b32 v10, 0xff7fffff")
    A("v_cmp_gt_u32 vcc, 16, v0")
    A("v_lshl_add_u32 v11, v0, 2, v9")
    A("v_lshrrev_b32 v2, 4, v0")
    A("v_cndmask_b32 v10, v10, 0, vcc")
    A("ds_write_b32 v11, v10")
    A("v_bfe_u32 v3, v0, 1, 3")
    A("v_xor_b32 v3, v3, v2")
    A("v_lshlrev_b32 v3, 5, v3")
    A("v_and_b32 v4, 1, v0")
    A("v_lshl_or_b32 v3, v4, 4, v3")
    A("v_xor_b32 v4, 0x80, v3")
    A("v_lshl_add_u32 v5, v2, 13, v3")
    A("v_lshl_add_u32 v6, v2, 13, v4")
    A(f"s_mov_b32 s{SRD+3}, 0x20000")
    A(f"s_and_b32 s{sTMP}, s{sU}, 7")
    A(f"s_lshl3_add_u32 s{sTMP}, s{sG}, s{sTMP}")
    A(f"s_lshl_b32 s{sTMP}, s{sTMP}, 8")
    A(f"s_lshl_b32 s{sSOFF}, s{sKS}, 20")
    A(f"s_add_u32 s{sSOFF}, s{sSOFF}, s{sTMP}")
    A(f"s_mov_b32 s{SRD+2}, {1024*4096*2}")
    A(f"s_mov_b32 s{sNB}, {NB0}")
    A(f"s_mov_b32 s{sSTEP}, {4*8192}")
    if opt.qrot:
        A(f"s_mov_b32 s{sBASE}, s{sSOFF}")
        A(f"s_and_b32 s{sTMP}, s{sROT}, 7")
        A(f"s_lshl_b32 s{sTMP2}, s{sTMP}, 17")
        A(f"s_add_u32 s{sSOFF}, s{sSOFF}, s{sTMP2}")
        A(f"s_lshl_b32 s{sTMP}, s{sTMP}, 12")
        A(f"s_add_u32 m0, s{sTMP}, {RQ}")
    else:
        A(f"s_mov_b32 m0, {RQ}")
    A(f"s_mov_b32 s{sBLK}, {NB0}")
    if opt.fine == 2: stamp(5)
    A("s_waitcnt lgkmcnt(0)")
    if opt.fine == 2: stamp(6)
    A(f"s_mov_b64 s[{SRD}:{SRD+1}], s[{sWQ}:{sWQ+1}]")
    if TIMED: A(f"s_mov_b32 s{sDL}, s{sNOW}")
    if opt.barpos == 0: A("s_barrier")
    if opt.fine == 2: stamp(7)
    def blk_body(win, rot):
        GR = opt.gran
        if win is not None:
            assert win % GR == 0
            pj = win % 8
            back = (win - pj) // 8
        for j in range(8):
            half, i = j >> 2, j & 3
            if win is not None and j % GR == 0:
                if j == pj:
                    A(f"s_sub_u32 s{sTMP}, s{sBLK}, {back}")
                    A(f"s_max_i32 s{sPROG}, s{sTMP}, s{sPROG}")
                    A(f"v_mov_b32 v10, s{sPROG}")
                A(f"s_waitcnt vmcnt({win})")
                if j == pj: A(f"ds_write_b32 v9, v10 offset:{F_PROG}")
            v = 5 if ((i >> 1) & 1) == 0 else 6
            if rot == "kv" and opt.kvmode == "row":
                if j == 0: A(f"s_xor_b32 s{sWRAP}, s{sBASE}, s{sIDX}")
                cj = sum(((j >> k) & 1) << (KIB[k] + 10) for k in range(3))
                A(f"s_xor_b32 s{sSOFF}, s{sWRAP}, {cj}")
            A(f"buffer_load_dwordx4 v{v}, s[{SRD}:{SRD+3}], s{sSOFF} offen {POL[cur[0]]} lds")
            A(f"s_add_u32 m0, m0, 1024")
            if rot == "kv" and opt.kvmode == "row":
                if j == 7: A(f"s_add_u32 s{sIDX}, s{sIDX}, {1 << (KIB[3] + 10)}")
            elif rot == "kv":
                st = {"lin": 1024, "tr1": 8192 + (1024 if (half, i) == (1, 3) else 0),
                      "tr2": (1024 if i % 2 == 0 else 15360) + (2048 if (half, i) == (1, 3) else 0)}[opt.kvmode]
                A(f"s_add_u32 s{sIDX}, s{sIDX}, {st}")
                A(f"s_pack_lh_b32_b16 s{sSOFF}, s{sIDX}, s{sSOFF}")
            else:
                A(f"s_add_u32 s{sSOFF}, s{sSOFF}, s{sSTEP}")
            if rot == "q" and i == 3:
                A(f"s_cmp_eq_u32 m0, {RQ + 32768}")
                A(f"s_cselect_b32 m0, {RQ}, m0")
                A(f"s_cselect_b32 s{sSOFF}, s{sBASE}, s{sSOFF}")
        if rot == 7:
            A(f"s_add_u32 s{sIDX}, s{sIDX}, 1")
            A(f"s_cmp_eq_u32 s{sIDX}, 7")
            A(f"s_cselect_b32 s{sTMP}, {7*65536}, 0")
            A(f"s_sub_u32 s{sSOFF}, s{sSOFF}, s{sTMP}")
        if rot is True:
            A(f"s_add_u32 s{sIDX}, s{sIDX}, 1")
            A(f"s_and_b32 s{sIDX}, s{sIDX}, 7")
            A(f"s_cselect_b32 s{sTMP}, 0, s{sWRAP}")
            A(f"s_sub_u32 s{sSOFF}, s{sSOFF}, s{sTMP}")
    if opt.barpos == 1:
        blk_body(None, "q" if opt.qrot else False)
        A("s_barrier")
        A(f"s_mov_b32 s{sNB}, {NB0-1}")
    A("L_top_loop:")
    blk_body(None, "q" if opt.qrot else False)
    A(f"s_sub_u32 s{sNB}, s{sNB}, 1")
    A(f"s_cmp_lg_u32 s{sNB}, 0")
    A("s_cbranch_scc1 L_top_loop")
    if opt.barpos == 2: A("s_barrier")
    A("s_branch L_loader2")
    A("L_notloader:")
    if opt.stlb:
        A("s_cmp_eq_u32 s3, 10")
        A("s_cbranch_scc1 L_loader2")
    if opt.cpf:
        A(f"s_cmp_gt_u32 s3, {opt.cpf}")
        A("s_cbranch_scc1 L_cpf_done")
        if opt.cpfc:
            A(f"s_cmp_lg_u32 s{sR}, 14")
            A("s_cbranch_scc1 L_cpf_done")
        A("s_getpc_b64 s[4:5]")
        A("L_pc:")
        A(f"s_lshl_b32 s{sTMP}, s3, 13")
        A(f"s_sub_u32 s{sTMP}, s{sTMP}, 8192")
        A(f"v_lshl_add_u32 v1, v0, 7, s{sTMP}")
        A(f"v_cmp_gt_u32 vcc, L_end-L_pc, v1")
        A("s_and_saveexec_b64 s[6:7], vcc")
        A("s_cbranch_execz L_cpf_done2")
        A(f"global_load_dword v127, v1, s[4:5]")
        A("L_cpf_done2:")
        A("s_mov_b64 exec, -1")
        A("L_cpf_done:")
    A("s_barrier")
    A("s_branch L_cons")

    def decode2(keep=False):
        d = g.lab("L_d2"); m = g.lab("L_d2m")
        if STAMP:
            for i in range(1, NST):
                if not (opt.fine == 2 and keep and i in (5, 6, 7)): A(f"s_mov_b32 s{sST+2*i}, 0")
        A(f"s_mul_i32 s{sBETA}, s{sXCD}, 14")
        A(f"s_add_u32 s{sBETA}, s{sBETA}, s{sR}")
        A(f"s_mov_b32 s{sPROG}, 0")
        A(f"s_cmp_ge_u32 s{sR}, 16")
        A(f"s_cbranch_scc1 {m}")
        A(f"s_cmp_ge_u32 s{sR}, 14")
        A(f"s_cselect_b32 s{sROLE}, 2, 1")
        if opt.womap:
            A(f"s_sub_u32 s{sTMP}, s{sXCD}, 3")
            A(f"s_cmp_lt_u32 s{sTMP}, 2")
            A(f"s_cselect_b32 s{sTMP}, 2, 0")
            A(f"s_sub_u32 s{sTMP}, s{sR}, s{sTMP}")
            A(f"s_bfe_u32 s{sCB}, s{sTMP}, 0x10001")
            A(f"s_lshl1_add_u32 s{sRBK}, s{sXCD}, s{sCB}")
            A(f"s_and_b32 s{sCB}, s{sTMP}, 1")
            A(f"s_add_u32 s{sTMP}, s{sTMP}, 8")
            A(f"s_bfe_u32 s{sTMP}, s{sTMP}, 0x20002")
            A(f"s_lshl2_add_u32 s{sCB}, s{sCB}, s{sTMP}")
        else:
            A(f"s_lshr_b32 s{sTMP}, s{sU}, 3")
            A(f"s_lshl1_add_u32 s{sRBK}, s{sXCD}, s{sTMP}")
            A(f"s_add_u32 s{sTMP}, s{sU}, 3")
            A(f"s_and_b32 s{sTMP}, s{sTMP}, 3")
            A(f"s_and_b32 s{sCB}, s{sU}, 4")
            A(f"s_or_b32 s{sCB}, s{sCB}, s{sTMP}")
        A(f"s_lshl_b32 s{sKB0}, s{sRBK}, 3")
        A(f"s_add_u32 s{sLR}, s{sR}, s{sXCD}")
        A(f"s_and_b32 s{sLR}, s{sLR}, {7 if opt.lrot & 1 else 0}")
        A(f"s_branch {d}")
        A(f"{m}:")
        A(f"s_mov_b32 s{sROLE}, 0")
        A(f"s_and_b32 s{sTMP}, s{sXCD}, 1")
        A(f"s_bfe_u32 s{sBB}, s{sR}, 0x20002")
        A(f"s_lshl2_add_u32 s{sBB}, s{sTMP}, s{sBB}")
        A(f"s_and_b32 s{sSPL}, s{sR}, 3")
        A(f"s_bfe_u32 s{sTMP}, s{sR}, 0x10003")
        A(f"s_lshl1_add_u32 s{sRBK}, s{sXCD}, s{sTMP}")
        A(f"s_mul_i32 s{sKB0}, s{sRBK}, 7")
        A(f"s_and_b32 s{sLR}, s{sR}, {7 if opt.lrot & 2 else 0}")
        A(f"s_cmp_eq_u32 s{sLR}, 7")
        A(f"s_cselect_b32 s{sLR}, 3, s{sLR}")
        A(f"s_add_u32 s{sCB}, s{sR}, 1")
        A(f"s_and_b32 s{sCB}, s{sCB}, 7")
        A(f"{d}:")

    A("L_loader2:")
    decode2(True)
    if opt.stlb:
        A("s_cmp_eq_u32 s3, 0")
        A("s_cbranch_scc1 L_loader3")
        A(f"v_mov_b32 v9, {FL}")
        if STAMP:
            for i in (5, 6, 7): A(f"s_mov_b32 s{sST+2*i}, 0")
        if opt.tbar: A("s_barrier")
        if opt.tsleep: A(f"s_sleep {opt.tsleep}")
        A("s_waitcnt lgkmcnt(0)")
        if opt.stlb & 4:
            A(f"s_lshl_b32 s{sTMP}, s2, 6")
            A(f"s_load_dword s8, s[{sX}:{sX+1}], s{sTMP}")
            A(f"s_lshl_b32 s{sTMP}, s{sR}, 6")
            A(f"s_load_dword s9, s[{sGW}:{sGW+1}], s{sTMP}")
        A(f"s_lshl_b32 s{sTMP}, s{sKB0}, 16")
        A(f"s_lshl_b32 s{sTMP2}, s{sCB}, 8")
        A(f"s_add_u32 s{sTMP}, s{sTMP}, s{sTMP2}")
        A(f"s_cmp_ge_u32 s{sR}, 16")
        A("s_cbranch_scc1 L_stM")
        A(f"s_load_dword s4, s[{sWO}:{sWO+1}], s{sTMP}")
        if opt.stlb & 2:
            A(f"s_cmp_eq_u32 s{sROLE}, 2")
            A("s_cbranch_scc1 L_stD")
            A(f"s_bitcmp0_b32 s{sBETA}, 1")
            A(f"s_cselect_b64 s[12:13], s[{sWG}:{sWG+1}], s[{sWU}:{sWU+1}]")
            A(f"s_and_b32 s{sTMP}, s{sBETA}, 1")
            A(f"s_mul_i32 s{sTMP}, s{sTMP}, {512*7168}")
            A(f"s_lshr_b32 s{sTMP2}, s{sBETA}, 2")
            A(f"s_lshl_b32 s{sTMP2}, s{sTMP2}, 8")
            A(f"s_add_u32 s{sTMP}, s{sTMP}, s{sTMP2}")
            for i in range(3):
                A(f"s_load_dword s{5+i}, s[12:13], s{sTMP}")
                A(f"s_add_u32 s{sTMP}, s{sTMP}, {255*7168}")
        A("s_branch L_stD")
        A("L_stM:")
        A(f"s_lshl2_add_u32 s{sTMP2}, s{sBB}, s{sG}")
        A(f"s_lshl4_add_u32 s{sTMP2}, s{sTMP2}, s{sSPL}")
        A(f"s_add_u32 s{sTMP2}, s{sTMP2}, 12")
        A(f"s_lshl_b32 s{sTMP2}, s{sTMP2}, 16")
        A(f"s_load_dword s7, s[{sK}:{sK+1}], s{sTMP2}")
        for i in range(opt.vden):
            A(f"s_load_dword s5, s[{sV}:{sV+1}], s{sTMP2}")
            if i < opt.vden - 1: A(f"s_add_u32 s{sTMP2}, s{sTMP2}, {65536//opt.vden}")
        A(f"s_load_dword s4, s[{sWD}:{sWD+1}], s{sTMP}")
        A(f"s_add_u32 s{sTMP}, s{sTMP}, {223*2048}")
        A(f"s_load_dword s10, s[{sWD}:{sWD+1}], s{sTMP}")
        A(f"s_lshl_b32 s{sTMP}, s{sR}, 9")
        A(f"s_lshl_b32 s{sTMP2}, s{sXCD}, 6")
        A(f"s_add_u32 s{sTMP}, s{sTMP}, s{sTMP2}")
        A(f"s_load_dword s6, s[{sOUT}:{sOUT+1}], s{sTMP} glc")
        A("L_stD:")
        pass
        if not opt.tbar: A("s_barrier")
        A("s_waitcnt lgkmcnt(0)")
        A("s_branch L_notif")
        A("L_loader3:")
    stamp(1)
    def lds_wait_ge(off, val, vtmp="v11", vaddr="v9", sleep=0):
        l = g.lab("L_w")
        A(f"{l}:")
        if sleep: A(f"s_sleep {sleep}")
        A(f"ds_read_b32 {vtmp}, {vaddr} offset:{off}")
        A("s_waitcnt lgkmcnt(0)")
        A(f"v_readfirstlane_b32 s{sTMP}, {vtmp}")
        A(f"s_cmp_ge_u32 s{sTMP}, {val}")
        A(f"s_cbranch_scc0 {l}")
    def wmax(w): return max(w) if isinstance(w, (tuple, list)) else w
    def blk_loop(nblk, win, rot):
        l = g.lab("L_ld")
        if nblk > 1:
            A(f"s_mov_b32 s{sNB}, {nblk}")
            A(f"{l}:")
        if isinstance(win, tuple):
            hi = g.lab("L_hi"); j = g.lab("L_jn")
            A(f"s_memrealtime s[{sNOW}:{sNOW+1}]")
            A(f"s_mul_i32 s{sTMP2}, s{sBLK}, {opt.period}")
            A(f"s_add_u32 s{sTMP2}, s{sTMP2}, {opt.toff}")
            A("s_waitcnt lgkmcnt(0)")
            A(f"s_sub_u32 s{sTMP}, s{sNOW}, s{sDL}")
            A(f"s_cmp_gt_u32 s{sTMP}, s{sTMP2}")
            A(f"s_cbranch_scc1 {hi}")
            for k in range(3, win[0]//8, -1):
                A(f"s_sub_u32 s{sTMP}, s{sBLK}, {k}")
                A(f"s_max_i32 s{sPROG}, s{sTMP}, s{sPROG}")
                A(f"v_mov_b32 v10, s{sPROG}")
                A(f"s_waitcnt vmcnt({8*k})")
                A(f"ds_write_b32 v9, v10 offset:{F_PROG}")
            blk_body(win[0], False)
            A(f"s_branch {j}")
            A(f"{hi}:")
            blk_body(win[1], False)
            A(f"{j}:")
            assert not rot
        else:
            blk_body(win, rot)
        A(f"s_add_u32 s{sBLK}, s{sBLK}, 1")
        if nblk > 1:
            A(f"s_sub_u32 s{sNB}, s{sNB}, 1")
            A(f"s_cmp_lg_u32 s{sNB}, 0")
            A(f"s_cbranch_scc1 {l}")
    def drain(maxwin, kmin=0):
        for k in range((maxwin + 4 + 7)//8 - 1, kmin - 1, -1):
            A(f"s_sub_u32 s{sTMP}, s{sBLK}, {k}")
            A(f"s_max_i32 s{sPROG}, s{sTMP}, s{sPROG}")
            A(f"v_mov_b32 v10, s{sPROG}")
            A(f"s_waitcnt vmcnt({8*k})")
            A(f"ds_write_b32 v9, v10 offset:{F_PROG}")
    def set_stride(stride):
        A(f"s_mov_b32 s{sSTEP}, {4*stride}")
        if stride & (stride-1) == 0:
            sh = stride.bit_length()-1
            A(f"v_lshl_add_u32 v5, v2, {sh}, v3")
            A(f"v_lshl_add_u32 v6, v2, {sh}, v4")
        else:
            A(f"v_mul_u32_u24 v8, {stride}, v2")
            A("v_add_u32 v5, v8, v3")
            A("v_add_u32 v6, v8, v4")
        A(f"s_mov_b32 s{sWRAP}, {256*stride}")
    XSRD = 68
    def xloads(n, ldsbase):
        for j in range(4):
            A(f"s_add_u32 s{sTMP}, s{sROT}, {2*j}")
            A(f"s_and_b32 s{sTMP}, s{sTMP}, 7")
            A(f"s_lshl_b32 s{sTMP}, s{sTMP}, 6")
            A(f"s_add_u32 s{sTMP}, s{sTMP}, s{sTMP3}")
            for q in range(n//4):
                A(f"s_mov_b32 m0, {ldsbase + 4096*q + 1024*j - 512*q}")
                A("s_nop 0")
                A(f"buffer_load_dwordx4 v7, s[{XSRD}:{XSRD+3}], s{sTMP} offen offset:{512*q} lds")
    def run_plan(pl, segs, start, hook=None):
        blk = 0; lastwin = 0
        segmap = {x[0]: x for x in segs}
        cur[0] = 'q'
        rot = 'q' if opt.qrot else False
        items = []
        for it in pl:
            if it == "d": items.append(it); continue
            n, w = it
            while n:
                c = min(n, 4 - blk if blk < 4 else 8 - ((blk - 4) % 8))
                if blk < start: c = min(c, start - blk)
                if hook and blk < hook[0]: c = min(c, hook[0] - blk)
                if blk >= start: items.append((blk, c, w))
                blk += c; n -= c
            lastw = w
        lastwin = pl[0][1]
        for it in items:
            if it == "d":
                drain(max(wmax(lastwin), 8*start)); continue
            b0, c, w = it
            if b0 >= 4 and (b0 - 4) % 8 == 0:
                seg = (b0 - 4) // 8 + 1
                stamp(1 + seg)
                if seg >= 2: lds_wait_ge(F_FREE0 + 4*(seg-2), 8)
                if b0 in segmap:
                    segmap[b0][1](); rot = segmap[b0][2]
                elif rot:
                    A(f"s_add_u32 s{sSOFF}, s{sSOFF}, s{sWRAP}")
                A(f"s_mov_b32 m0, {RA if seg % 2 == 1 else RB}")
            if hook and b0 == hook[0]: hook[1]()
            if isinstance(w, list):
                hi = g.lab("L_ch"); j = g.lab("L_cj")
                if b0 >= 20:
                    A(f"s_bfe_u32 s{sTMP}, s{sBETA}, 0x20002")
                else:
                    A(f"s_and_b32 s{sTMP}, s{sCB}, 3")
                A(f"s_cmp_eq_u32 s{sTMP}, 1")
                A(f"s_cbranch_scc1 {hi}")
                blk_loop(c, w[0], rot)
                A(f"s_branch {j}")
                A(f"{hi}:")
                blk_loop(c, w[1], rot)
                A(f"{j}:")
            else:
                blk_loop(c, w, rot)
            lastwin = w
        stamp(8)
        if opt.fgate:
            A(f"s_mul_i32 s{sTMP}, s{sCB}, {16*CS}")
            A(f"s_add_u32 s{sTMP}, s{sTMP}, {WS_FC}")
            A(f"s_add_u32 s4, s{sWS}, s{sTMP}")
            A(f"s_addc_u32 s5, s{sWS+1}, 0")
            A(f"v_mul_u32_u24 v5, {CS}, v0")
            A("v_mov_b32 v6, 1")
        drain(max(wmax(x[1]) for x in pl if x != "d"), 1 if opt.fearly else 0)
        if not opt.fearly: stamp(9)
        A("s_branch L_ld_end")
    def late_seg(ptr, nbytes):
        def f():
            cur[0] = 'o' if ptr == sWO else 'd'
            set_stride(2048)
            A(f"s_mov_b64 s[{SRD}:{SRD+1}], s[{ptr}:{ptr+1}]\ns_mov_b32 s{SRD+2}, {nbytes}")
            A(f"s_mov_b32 s{sIDX}, s{sLR}")
            A(f"s_add_u32 s{sSOFF}, s{sKB0}, s{sLR}")
            A(f"s_lshl_b32 s{sSOFF}, s{sSOFF}, 16")
            A(f"s_lshl_b32 s{sTMP}, s{sCB}, 8")
            A(f"s_add_u32 s{sSOFF}, s{sSOFF}, s{sTMP}")
        return f
    A("v_and_b32 v7, 7, v0")
    A("v_lshlrev_b32 v7, 11, v7")
    A("v_lshrrev_b32 v8, 3, v0")
    A("v_lshl_add_u32 v7, v8, 4, v7")
    A(f"s_mov_b64 s[{XSRD}:{XSRD+1}], s[{sX}:{sX+1}]\ns_mov_b32 s{XSRD+2}, 16384\ns_mov_b32 s{XSRD+3}, 0x20000")
    A(f"s_lshl_b32 s{sTMP3}, s{sKS}, 8")
    A(f"s_mov_b32 s{sIDX}, m0")
    A(f"s_mov_b32 m0, {XF}")
    A("s_nop 0")
    A(f"buffer_load_dwordx4 v7, s[{XSRD}:{XSRD+3}], s{sTMP3} offen lds")
    A(f"s_mov_b32 m0, {XF + 1024 - 128}")
    A("s_nop 0")
    A(f"buffer_load_dwordx4 v7, s[{XSRD}:{XSRD+3}], s{sTMP3} offen offset:128 lds")
    A(f"s_mov_b32 m0, s{sIDX}")
    A(f"s_cmp_ge_u32 s{sR}, 16")
    A("s_cbranch_scc1 L_ld_M")
    def b_seg1():
        cur[0] = 'g'
        A(f"s_and_b32 s{sROT}, s{sROT}, 6")
        A(f"s_mov_b32 s{sIDX}, s{sROT}")
        A(f"s_and_b32 s{sTMP2}, s{sBETA}, 1")
        set_stride(7168)
        A(f"s_mul_i32 s{sSOFF}, s{sTMP2}, {512*7168}")
        A(f"s_lshr_b32 s{sTMP}, s{sBETA}, 2")
        A(f"s_lshl_b32 s{sTMP}, s{sTMP}, 8")
        A(f"s_add_u32 s{sSOFF}, s{sSOFF}, s{sTMP}")
        A(f"s_mul_i32 s{sTMP}, s{sROT}, {32*7168}")
        A(f"s_add_u32 s{sSOFF}, s{sSOFF}, s{sTMP}")
        A(f"s_bitcmp0_b32 s{sBETA}, 1")
        A(f"s_cselect_b64 s[{SRD}:{SRD+1}], s[{sWG}:{sWG+1}], s[{sWU}:{sWU+1}]")
        A(f"s_mov_b32 s{SRD+2}, {1024*3584*2}")
    A(f"s_cmp_eq_u32 s{sROLE}, 2")
    A("s_cbranch_scc1 L_ld_C")
    assert sum(x[0] for x in pb if x != "d") == 28
    XGAT = opt.xgat
    def xg_hook():
        A(f"s_and_b32 s{sTMP3}, s{sBETA}, 1")
        A(f"s_lshl_b32 s{sTMP3}, s{sTMP3}, 10")
        xloads(8, XF + 2048)
        A(f"s_mov_b32 m0, {RA + 8192*(XGAT-4)}")
    run_plan(pb, [(4, b_seg1, True), (20, late_seg(sWO, 4096*1024*2), True)], NB0, hook=(XGAT, xg_hook))
    A("L_ld_C:")
    assert sum(x[0] for x in pc if x != "d") == 12 and pc[1] == "d" and pc[0][0] == 4
    def c_seg1():
        late_seg(sWO, 4096*1024*2)()
        A(f"s_mov_b32 s{sBLK}, 20")
    run_plan(pc, [(4, c_seg1, True)], NB0)
    A("L_ld_M:")
    def m_seg1():
        cur[0] = 'k'
        if opt.kvmode == "row":
            set_stride(256)
            A(f"s_lshl2_add_u32 s{sTMP}, s{sBB}, s{sG}")
            A(f"s_mul_i32 s{sROT}, s{sTMP}, {opt.kvrot}")
            A(f"s_mul_i32 s{sTMP2}, s{sSPL}, {opt.kvrots}")
            A(f"s_add_u32 s{sROT}, s{sROT}, s{sTMP2}")
            A(f"s_lshl_b32 s{sBASE}, s{sTMP}, 20")
            A(f"s_lshl_b32 s{sTMP2}, s{sSPL}, {KSB[0] + 10}")
            A(f"s_add_u32 s{sBASE}, s{sBASE}, s{sTMP2}")
            A(f"s_add_u32 s{sBASE}, s{sBASE}, {768 << 10}")
            for k in range(3):
                A(f"s_bfe_u32 s{sTMP2}, s{sROT}, {(1 << 16) | k}")
                A(f"s_lshl_b32 s{sTMP2}, s{sTMP2}, {KIB[k] + 10}")
                A(f"s_add_u32 s{sBASE}, s{sBASE}, s{sTMP2}")
            A(f"s_bfe_u32 s{sTMP2}, s{sROT}, {(3 << 16) | 3}")
            A(f"s_lshl_b32 s{sTMP2}, s{sTMP2}, {KIB[3] + 10}")
            A(f"s_add_u32 s{sBASE}, s{sBASE}, s{sTMP2}")
            A(f"s_mov_b32 s{sIDX}, 0")
            A(f"s_mov_b64 s[{SRD}:{SRD+1}], s[{sK}:{sK+1}]\ns_mov_b32 s{SRD+2}, {8*4*4096*128*2}")
            return
        set_stride(256)
        A(f"s_mul_i32 s{sROT}, s{sROT}, {opt.kvrot*1024}")
        A(f"s_mov_b32 s{sIDX}, s{sROT}")
        A(f"s_lshl2_add_u32 s{sTMP}, s{sBB}, s{sG}")
        A(f"s_lshl4_add_u32 s{sTMP}, s{sTMP}, s{sSPL}")
        A(f"s_add_u32 s{sTMP}, s{sTMP}, 12")
        A(f"s_pack_ll_b32_b16 s{sSOFF}, s{sIDX}, s{sTMP}")
        A(f"s_mov_b64 s[{SRD}:{SRD+1}], s[{sK}:{sK+1}]\ns_mov_b32 s{SRD+2}, {8*4*4096*128*2}")
    def m_seg2():
        cur[0] = 'v'
        A(f"s_mov_b64 s[{SRD}:{SRD+1}], s[{sV}:{sV+1}]")
        if opt.kvmode == "row":
            A(f"s_mov_b32 s{sIDX}, 0")
            return
        A(f"s_mov_b32 s{sIDX}, s{sROT}")
        A(f"s_pack_lh_b32_b16 s{sSOFF}, s{sIDX}, s{sSOFF}")
    assert sum(x[0] for x in pm if x != "d") == 27
    run_plan(pm, [(4, m_seg1, "kv"), (12, m_seg2, "kv"), (20, late_seg(sWD, 3584*1024*2), 7)], NB0)
    A("L_ld_end:")
    if opt.nocomm: A("s_branch L_exit")
    def fbump():
        if opt.flag_delay: A(f"s_sleep {opt.flag_delay}")
        if opt.fsat:
            A("s_mov_b32 s6, 1")
            for r in range(opt.frep): A(f"s_atomic_add s6, s[4:5], {CS*r}")
        else:
            A(f"s_bfm_b64 exec, {opt.frep}, 0")
            A("global_atomic_add v5, v6, s[4:5] sc1")
            A("s_mov_b64 exec, -1")
    if opt.fearly:
        A(f"ds_read_b32 v11, v9 offset:{F_BA}")
        A(f"v_mov_b32 v10, s{sBLK}")
        A(f"s_waitcnt vmcnt({opt.fearly}) lgkmcnt(0)")
        A(f"v_readfirstlane_b32 s{sTMP}, v11")
        A(f"s_cmp_lt_u32 s{sTMP}, 8")
        A("s_cbranch_scc1 L_ld_late")
        A("s_mov_b32 s6, 1")
        for r in range(opt.frep): A(f"s_atomic_add s6, s[4:5], {CS*r}")
        A("s_waitcnt vmcnt(0)")
        A(f"ds_write_b32 v9, v10 offset:{F_PROG}")
        A("s_barrier")
        stamp(9)
        A("s_branch L_ld_fin")
        A("L_ld_late:")
        A("s_waitcnt vmcnt(0)")
        A(f"ds_write_b32 v9, v10 offset:{F_PROG}")
        stamp(9)
    if opt.fgate == 2 and not (opt.dbg & 1):
        lds_wait_ge(F_BA, opt.gok)
        fbump()
    A("s_barrier")
    if opt.fgate == 1 and not (opt.dbg & 1): fbump()
    A("L_ld_fin:")
    if opt.fixdur and opt.lprobe: A("s_branch L_noepoch")
    if opt.fgate and opt.fbar:
        A(f"s_cmp_lt_u32 s{sR}, 16")
        A("s_cbranch_scc1 L_exit")
        A("s_barrier")
    A("s_branch L_exit")

    A("L_cons:")
    vL16, vTR, vACT, vT, vPUB = 1, 2, 3, 4, 5
    vTMP, vTMP2, vTMP3 = 6, 7, 8
    vWA, vAA = 10, 11
    vW, vB, vACC, vACC2 = 12, 16, 20, 24
    vGA = 28
    vLS = 44
    vK = 52
    vQ = 84
    vRG, vRW, vRR, vOUT, vONE, vAFW, vFLG = 116, 117, 118, 119, 120, 121, 122
    vTP, vTC, vL8 = 123, 124, 125
    vSTW, vSTR = 126, 15
    vTA, vAX, vEN = 48, 49, 50
    NV = 128
    A("s_waitcnt lgkmcnt(0)")
    A(f"s_load_dword s{sT}, s[{sWS}:{sWS+1}], 0")
    decode2()
    stamp(1)
    A(f"v_mov_b32 v9, {FL}")
    if opt.notif:
        A(f"s_cmp_eq_u32 s3, 10")
        A("s_cbranch_scc1 L_notif")
    A(f"s_sub_u32 s{sC}, s3, 1")
    sSC, sM3, sMN, sEM, sRNG = 58, 60, 61, 56, 57
    A(f"s_mov_b32 s{sM3}, 0x00030003")
    A(f"s_mov_b32 s{sMN}, 0xfffcfffc")
    A(f"s_mov_b32 s{sRNG}, {27 << 23:#x}")
    A(f"v_mov_b32 v{vAX}, 0")
    A(f"v_lshlrev_b32 v{vL8}, 3, v0")
    A(f"v_mov_b32 v9, {FL}")
    A(f"v_mov_b32 v{vONE}, 1")
    A(f"v_lshlrev_b32 v{vL16}, 4, v0")
    A(f"v_mul_u32_u24 v{vFLG}, {CS}, v0")
    A(f"v_lshrrev_b32 v{vTMP2}, 4, v0")
    A(f"v_bfe_u32 v{vTMP3}, v0, 2, 2")
    A(f"v_lshl_add_u32 v{vTR}, v{vTMP2}, 3, v{vTMP3}")
    A(f"v_lshlrev_b32 v{vTR}, 8, v{vTR}")
    A(f"v_and_b32 v{vACT}, 1, v{vTMP2}")
    A(f"v_lshl_or_b32 v{vTMP3}, v{vACT}, 2, v{vTMP3}")
    A(f"v_xor_b32 v{vTMP3}, s{sC}, v{vTMP3}")
    A(f"v_lshl_or_b32 v{vTR}, v{vTMP3}, 5, v{vTR}")
    A(f"v_and_b32 v{vTMP3}, 3, v0")
    A(f"v_lshl_or_b32 v{vTR}, v{vTMP3}, 3, v{vTR}")
    A(f"v_and_b32 v{vTMP3}, 7, v0")
    A(f"v_lshl_add_u32 v{vACT}, v{vTMP2}, 3, v{vTMP3}")
    A(f"v_lshlrev_b32 v{vACT}, 4, v{vACT}")
    A(f"v_lshrrev_b32 v{vAFW}, 5, v0")
    A(f"v_lshlrev_b32 v{vAFW}, 8, v{vAFW}")
    A(f"v_and_b32 v{vTMP2}, 2, v0")
    A(f"v_lshl_or_b32 v{vAFW}, v{vTMP2}, 6, v{vAFW}")
    A(f"v_and_b32 v{vTMP2}, 28, v0")
    A(f"v_lshl_or_b32 v{vAFW}, v{vTMP2}, 2, v{vAFW}")
    A(f"v_and_b32 v{vTMP2}, 1, v0")
    A(f"v_lshl_or_b32 v{vAFW}, v{vTMP2}, 3, v{vAFW}")
    A(f"s_lshl_b32 s{sTMP}, s{sC}, 9")
    A(f"s_add_u32 s{sTMP}, s{sTMP}, {AF}")
    A(f"v_add_u32 v{vAFW}, s{sTMP}, v{vAFW}")
    def afswz(v):
        A(f"v_lshrrev_b32 v{vTMP2}, 3, v{v}")
        A(f"v_and_b32 v{vTMP2}, 0x70, v{vTMP2}")
        A(f"v_xor_b32 v{v}, v{v}, v{vTMP2}")
    afswz(vAFW)
    A("s_waitcnt lgkmcnt(0)")
    A(f"s_add_u32 s{sT}, s{sT}, 0x11111111")
    A(f"s_mov_b32 s{sT+1}, s{sT}")
    A(f"v_mov_b32 v{vT}, s{sT}")
    def tagbits(dst, vsh):
        A(f"v_lshrrev_b32 v{dst}, v{vsh}, v{vT}")
        A(f"v_and_b32 v{dst}, 15, v{dst}")
        A(f"v_lshl_or_b32 v{dst}, v{dst}, 14, v{dst}")
        A(f"v_and_b32 v{dst}, s{sM3}, v{dst}")
    A(f"v_and_b32 v{vTMP}, 7, v0")
    A(f"v_lshlrev_b32 v{vTMP}, 2, v{vTMP}")
    tagbits(vTC, vTMP)
    A(f"v_lshrrev_b32 v{vTMP}, 2, v0")
    A(f"v_and_b32 v{vTMP}, 12, v{vTMP}")
    A(f"v_and_b32 v{vTMP2}, 1, v0")
    A(f"v_lshl_or_b32 v{vTMP}, v{vTMP2}, 4, v{vTMP}")
    tagbits(vTP, vTMP)

    def refresh_prog():
        A(f"ds_read_b32 v{vTMP}, v9 offset:{F_PROG}")
        A("s_waitcnt lgkmcnt(0)")
        A(f"v_readfirstlane_b32 s{sPROG}, v{vTMP}")
    def wait_prog(val_is_sgpr, val, sleep=0):
        l = g.lab("L_wp"); d = g.lab("L_wpd")
        v = f"s{val}" if val_is_sgpr else str(val)
        A(f"s_cmp_ge_u32 s{sPROG}, {v}")
        A(f"s_cbranch_scc1 {d}")
        A(f"{l}:")
        if sleep: A(f"s_sleep {sleep}")
        refresh_prog()
        A(f"s_cmp_ge_u32 s{sPROG}, {v}")
        A(f"s_cbranch_scc0 {l}")
        A(f"{d}:")
    def signal(off):
        A("s_mov_b64 exec, 1")
        A(f"ds_add_u32 v9, v{vONE} offset:{off}")
        A("s_mov_b64 exec, -1")
    def cwait(off, val, sleep=0):
        lds_wait_ge(off, val, vtmp=f"v{vTMP}", sleep=sleep)
    def cwait_rd(off, val, nrd, reads):
        l = g.lab("L_cw")
        A(f"{l}:")
        A(f"ds_read_b32 v{vTMP}, v9 offset:{off}")
        reads()
        A(f"s_waitcnt lgkmcnt({nrd})")
        A(f"v_readfirstlane_b32 s{sTMP}, v{vTMP}")
        A(f"s_cmp_ge_u32 s{sTMP}, {val}")
        A(f"s_cbranch_scc0 {l}")
    def fbits(x): return struct.unpack("<I", struct.pack("<f", x))[0]
    ADJ = 1.0
    LQ, LO_, LG, LF = [x + opt.sbias for x in (8, 12, 10, 20)]
    def setscale(lg):
        A(f"s_mov_b32 s{sSC}, {fbits(2.0**lg):#x}")
    def encode(sc=None, tp=vTP, ta=vTA):
        src = vACC
        d = g.lab("L_en")
        scs = f"s[{sSC}:{sSC+1}]" if sc is None else f"v[{sc}:{sc+1}]"
        A(f"v_pk_mul_f32 v[{src}:{src+1}], v[{src}:{src+1}], {scs} op_sel_hi:[1,0]")
        A(f"v_pk_mul_f32 v[{src+2}:{src+3}], v[{src+2}:{src+3}], {scs} op_sel_hi:[1,0]")
        A(f"v_max3_f32 v{vTMP}, |v{src}|, |v{src+1}|, |v{src+2}|")
        A(f"v_max_f32 v{vTMP}, |v{src+3}|, v{vTMP}")
        A(f"v_subrev_u32 v{vTMP2}, {115 << 23:#x}, v{vTMP}")
        A(f"v_cmp_le_u32 vcc, s{sRNG}, v{vTMP2}")
        r = g.lab("L_er")
        A(f"{r}:")
        A(f"v_cvt_pkrtz_f16_f32 v{vEN}, v{src}, v{src+1}")
        A(f"v_cvt_pkrtz_f16_f32 v{vEN+1}, v{src+2}, v{src+3}")
        A(f"v_add_u32 v{vEN}, 0x00020002, v{vEN}")
        A(f"v_add_u32 v{vEN+1}, 0x00020002, v{vEN+1}")
        A(f"v_and_or_b32 v{vEN}, v{vEN}, s{sMN}, v{vAX}")
        A(f"v_and_or_b32 v{vEN+1}, v{vEN+1}, s{sMN}, v{tp}")
        A(f"s_cbranch_vccz {d}")
        A(f"s_call_b64 s[6:7], L_encs")
        A(f"s_branch {r}")
        A(f"{d}:")
    def publish(src, base=sGA, sc=None):
        encode(sc)
        A("s_mov_b32 exec_lo, 0x00ff00ff\ns_mov_b32 exec_hi, 0x00ff00ff")
        if not (opt.dbg & (33 | (2048 if base == sGA else 0))): A(f"global_store_dwordx2 v{vPUB}, v[{vEN}:{vEN+1}], s[{base}:{base+1}] sc1")
    NREP = opt.nrep; HREP = max(1, NREP // 4)
    sNH = 9
    def bump(kind):
        if opt.dbg & (33 | 1024): return
        if opt.satom:
            A(f"s_mov_b32 s8, 1")
            if kind == "h":
                e = g.lab("L_bh")
                for r in range(HREP): A(f"s_atomic_add s8, s[{sGB}:{sGB+1}], {CS*r}")
                A(f"s_cmp_eq_u32 s{sNH}, {HREP}")
                A(f"s_cbranch_scc1 {e}")
                for r in range(HREP, 2*HREP): A(f"s_atomic_add s8, s[{sGB}:{sGB+1}], {CS*r}")
                A(f"{e}:")
            else:
                for r in range(NREP): A(f"s_atomic_add s8, s[{sGB}:{sGB+1}], {CS*r}")
        else:
            if kind == "h": A(f"s_bfm_b64 exec, s{sNH}, 0")
            else: A(f"s_bfm_b64 exec, {NREP}, 0")
            A(f"global_atomic_add v{vFLG}, v{vONE}, s[{sGB}:{sGB+1}] sc1")
    def flag(cnt, nrep, last=7):
        d = g.lab("L_fl")
        A("s_mov_b64 exec, 1")
        A(f"ds_add_rtn_u32 v{vTMP}, v9, v{vONE} offset:{cnt}")
        A("s_waitcnt lgkmcnt(0)")
        A(f"v_readfirstlane_b32 s{sTMP}, v{vTMP}")
        A(f"s_cmp_lg_u32 s{sTMP}, {last}")
        A(f"s_cbranch_scc1 {d}")
        bump(nrep)
        A(f"{d}:")
        A("s_mov_b64 exec, -1")
    def staged(cnt, last, hi_off, kind):
        d = g.lab("L_sg")
        A(f"ds_write_b64 v{vSTW}, v[{vEN}:{vEN+1}]")
        A("s_mov_b64 exec, 1")
        A(f"ds_add_rtn_u32 v{vTMP}, v9, v{vONE} offset:{cnt}")
        A("s_mov_b64 exec, -1")
        A(f"ds_read_b128 v[{vGA}:{vGA+3}], v{vSTR}")
        A(f"ds_read_b128 v[{vGA+4}:{vGA+7}], v{vSTR} offset:1024")
        A(f"v_add_u32 v{vTMP2}, {hi_off}, v{vPUB}")
        A("s_waitcnt lgkmcnt(2)")
        A(f"v_readfirstlane_b32 s{sTMP}, v{vTMP}")
        A(f"s_cmp_lg_u32 s{sTMP}, {last}")
        A(f"s_cbranch_scc1 {d}")
        A("s_waitcnt lgkmcnt(0)")
        if not (opt.dbg & (1 | (256 if last == 3 else 512))):
            A(f"global_store_dwordx4 v{vPUB}, v[{vGA}:{vGA+3}], s[{sGA}:{sGA+1}] sc1")
            A(f"global_store_dwordx4 v{vTMP2}, v[{vGA+4}:{vGA+7}], s[{sGA}:{sGA+1}] sc1")
        if kind: bump(kind)
        A("s_mov_b64 exec, -1")
        A("s_nop 0")
        A(f"{d}:")
        A("s_waitcnt lgkmcnt(0)")
    def flag_now(nrep):
        d = g.lab("L_fn")
        A(f"s_cmp_lg_u32 s{sC}, {opt.flagwave}")
        A(f"s_cbranch_scc1 {d}")
        bump(nrep)
        A("s_mov_b64 exec, -1")
        A(f"{d}:")
    def ws_addr(dst, base_const, soff):
        A(f"s_add_u32 s{soff}, s{soff}, {base_const}")
        A(f"s_add_u32 s{dst}, s{sWS}, s{soff}")
        A(f"s_addc_u32 s{dst+1}, s{sWS+1}, 0")
    def pub_voff(shift):
        A(f"v_and_b32 v{vTMP2}, 15, v0")
        A(f"v_lshrrev_b32 v{vTMP3}, 4, v0")
        A(f"v_lshlrev_b32 v{vTMP3}, 3, v{vTMP3}")
        A(f"v_lshl_or_b32 v{vPUB}, v{vTMP2}, {shift}, v{vTMP3}")
    def sample(base, offs, sleep=0, cntstamp=None):
        l = g.lab("L_sm"); d = g.lab("L_smd"); e = g.lab("L_sme")
        if opt.dbg & 7: return
        A(f"s_mov_b32 s{sCNT}, 0")
        if sleep: A(f"s_branch {e}")
        A(f"{l}:")
        if sleep:
            A(f"s_sleep {sleep}")
            A(f"{e}:")
        for i, o in enumerate(offs):
            A(f"s_load_dword s{sSM+i}, s[{base}:{base+1}], {o} glc")
        A(f"s_add_u32 s{sCNT}, s{sCNT}, 1")
        A(f"s_cmp_gt_u32 s{sCNT}, {opt.maxpoll}")
        A("s_waitcnt lgkmcnt(0)")
        A(f"s_cbranch_scc1 {d}")
        for i in range(len(offs)):
            A(f"s_xor_b32 s{sSM+i}, s{sSM+i}, s{sT}")
            if i: A(f"s_or_b32 s{sSM}, s{sSM}, s{sSM+i}")
        A(f"s_and_b32 s{sSM}, s{sSM}, 0xff")
        A(f"s_cbranch_scc1 {l}")
        A(f"{d}:")
        if cntstamp is not None: stampval(cntstamp, sCNT)
    def pollcnt(base, target, sleep, cntstamp=None):
        l = g.lab("L_pf"); d = g.lab("L_pfd"); e = g.lab("L_pfe")
        if opt.dbg & 7: return
        A(f"s_mov_b32 s{sCNT}, 0")
        if sleep: A(f"s_branch {e}")
        A(f"{l}:")
        if sleep:
            A(f"s_sleep {sleep}")
            A(f"{e}:")
        A(f"s_load_dword s8, s[{base}:{base+1}], 0 glc")
        A(f"s_add_u32 s{sCNT}, s{sCNT}, 1")
        A(f"s_cmp_gt_u32 s{sCNT}, {opt.maxhint}")
        A("s_waitcnt lgkmcnt(0)")
        A(f"s_cbranch_scc1 {d}")
        A(f"s_cmp_eq_u32 s8, s{target}")
        A(f"s_cbranch_scc0 {l}")
        A(f"{d}:")
        if cntstamp is not None: stampval(cntstamp, sCNT)
    kfr = [None]
    def gather(nld=4, mid=None, cntstamp=None, sleep=0, work=None, kind='M', defer=False):
        l = g.lab("L_ga"); d = g.lab("L_gad"); c = g.lab("L_gac"); rt = g.lab("L_gar")
        assert nld in (1, 4)
        def issue():
            if opt.dbg & 2: return
            if opt.gprio: A(f"s_setprio {opt.gprio}")
            if opt.x4dbg and nld == 4:
                nn = 2
                if opt.x4dbg == 2 and mid is not kfr[0]: nn = 1
                if opt.x4dbg == 3: nn = 1
                if opt.x4dbg == 4 and mid is not kfr[0]: nn = 0
                if opt.x4dbg == 5: nn = 0
                for i in range(nn): A(f"global_load_dwordx4 v[{vGA+4*i}:{vGA+4*i+3}], v{vL16}, s[{sGA}:{sGA+1}] offset:{1024*i} sc1")
                return
            for i in range(nld):
                A(f"global_load_dwordx2 v[{vGA+2*i}:{vGA+2*i+1}], v{vL8}, s[{sGA}:{sGA+1}] offset:{512*i} sc1")
        if mid is not None or sleep:
            issue()
            if mid is not None: mid()
            A(f"s_mov_b32 s{sEM}, s{sM3}")
            A(f"s_mov_b32 s{sCNT}, 0")
            A(f"s_branch {c}")
            pad(kind)
        else:
            A(f"s_mov_b32 s{sEM}, s{sM3}")
            A(f"s_mov_b32 s{sCNT}, 0")
        A(f"{l}:")
        if sleep: A(f"s_sleep {sleep}")
        issue()
        A(f"{c}:")
        A(f"s_add_u32 s{sCNT}, s{sCNT}, 1")
        vC, vC0 = vTMP2, vTMP
        for i in range(nld):
            A(f"s_waitcnt vmcnt({((1 - i//2) if opt.x4dbg == 1 else 0) if (opt.x4dbg and nld == 4) else nld-1-i})")
            A(f"v_xor_b32 v{vGA+2*i+1}, v{vTC}, v{vGA+2*i+1}")
            if i == 2:
                A(f"v_or3_b32 v{vC0}, v{vGA}, v{vGA+2}, v{vGA+4}")
                A(f"v_or3_b32 v{vC}, v{vGA+1}, v{vGA+3}, v{vGA+5}")
            if i == nld-1:
                if nld == 4:
                    A(f"v_or_b32 v{vC0}, v{vC0}, v{vGA+6}")
                    A(f"v_bitop3_b32 v{vC}, v{vC}, v{vGA+7}, s{sM3} bitop3:0xa8")
                else:
                    A(f"v_and_b32 v{vC}, s{sM3}, v{vGA+1}")
                A(f"v_and_or_b32 v{vC0}, v{vC0 if nld == 4 else vGA}, s{sEM}, v{vC}")
                A(f"v_cmp_ne_u32 vcc, 0, v{vC0}")
            if work is not None and (i < nld-1 or opt.specw): work(i)
        A(f"s_cbranch_vccz {d}")
        A(f"v_cmp_ne_u32 vcc, 0, v{vC}")
        A(f"s_cbranch_vccnz {rt}")
        A(f"s_mov_b32 s{sEM}, 0")
        if defer: A(f"s_branch {d}")
        else:
            A("s_call_b64 s[6:7], L_fixr")
            A(f"s_branch {c}")
        A(f"{rt}:")
        A(f"s_cmp_le_u32 s{sCNT}, {0 if ((opt.dbg & 6) or (opt.noretry and nld == 4)) else opt.maxpoll}")
        A(f"s_cbranch_scc1 {l}")
        A(f"{d}:")
        if cntstamp is not None: stampval(cntstamp, sCNT)
        if work is not None and not opt.specw: work(nld-1)
    vS0, vS1, vSCA = vGA + 12, vGA + 8, vLS
    def acc(i, dst, first):
        for r in range(4):
            c2 = "0" if first else f"v{dst+r}"
            A(f"v_fma_mix_f32 v{dst+r}, v{vGA+2*i+(r>>1)}, v{vSCA+i}, {c2} op_sel:[{r&1},0,0] op_sel_hi:[1,0,0]")
    def setsca(lg):
        for i in range(4): A(f"v_mov_b32 v{vSCA+i}, {fbits(2.0**-lg):#x}")
    def wreads(k0, k1):
        for kb in range(k0, k1):
            o = 8192*kb
            A(f"ds_read_b64_tr_b16 v[{vK+4*kb}:{vK+4*kb+1}], v{vWA} offset:{o}")
            A(f"ds_read_b64_tr_b16 v[{vK+4*kb+2}:{vK+4*kb+3}], v{vWA} offset:{o+1024}")
    def mf(kb, first):
        c = "0" if first else f"v[{vACC}:{vACC+3}]"
        A(f"v_mfma_f32_16x16x32_bf16 v[{vACC}:{vACC+3}], v[{vK+4*kb}:{vK+4*kb+3}], v[{vQ+4*kb}:{vQ+4*kb+3}], {c}")
    vAB = vW
    def actreads(n, swz=False):
        for kb in range(n):
            A(f"ds_read_b128 v[{vQ+4*kb}:{vQ+4*kb+3}], v{vAB if (swz and kb & 1) else vAA} offset:{512*kb}")
    sFA, sRA, sPE = 12, 10, 14
    def late_setup(wbase, padd, pend):
        A(f"v_add_u32 v{vWA}, {wbase}, v{vTR}")
        A(f"v_add_u32 v{vAA}, {AF}, v{vACT}")
        afswz(vAA)
        A(f"v_xor_b32 v{vAB}, 64, v{vAA}")
        A(f"v_and_b32 v{vTMP2}, 4, v0")
        A(f"v_lshlrev_b32 v{vPUB}, 10, v{vTMP2}")
        A(f"v_and_b32 v{vTMP2}, 3, v0")
        A(f"v_lshl_or_b32 v{vPUB}, v{vTMP2}, 5, v{vPUB}")
        A(f"v_lshrrev_b32 v{vTMP2}, 4, v0")
        A(f"v_lshl_or_b32 v{vPUB}, v{vTMP2}, 3, v{vPUB}")
        A(f"s_lshl3_add_u32 s{sTMP}, s{sCB}, s{sC}")
        A(f"s_lshl_b32 s{sTMP}, s{sTMP}, 6")
        A(f"s_add_u32 s{sTMP}, s{sTMP}, s{sRBK}")
        A(f"s_lshl_b32 s{sTMP}, s{sTMP}, 7")
        ws_addr(sFA, WS_FP + 128*padd, sTMP)
        A(f"s_mov_b32 s{sPE}, {pend}")
        setscale(LF)
        A(f"v_mov_b32 v{vAX}, 0")
        A(f"s_mov_b32 s{sWDN}, 21")
        A(f"s_add_u32 s{sTMP}, s{sKB0}, s{sC}")
        A(f"s_lshl_b32 s{sTMP}, s{sTMP}, 11")
    sRET = 6
    def wcatch():
        d = g.lab("L_wc")
        A(f"s_cmp_lt_u32 s{sPROG}, s{sWDN}")
        A(f"s_cbranch_scc1 {d}")
        A(f"s_call_b64 s[{sRET}:{sRET+1}], L_wcatch")
        A(f"{d}:")
    def late_wait():
        l = g.lab("L_lw"); d = g.lab("L_lwd")
        A(f"{l}:")
        A(f"ds_read_b64 v[{vTMP}:{vTMP+1}], v9 offset:{F_PROG}")
        A("s_waitcnt lgkmcnt(0)")
        A(f"v_readfirstlane_b32 s{sTMP}, v{vTMP+1}")
        A(f"v_readfirstlane_b32 s{sPROG}, v{vTMP}")
        A(f"s_cmp_lg_u32 s{sTMP}, 0")
        A(f"s_cbranch_scc1 {d}")
        wcatch()
        A(f"s_branch {l}")
        A(f"{d}:")
    def late_mid():
        A(f"s_add_u32 s{sTMP2}, s{sPROG}, {opt.midahead}")
        A(f"s_min_u32 s{sTMP2}, s{sTMP2}, s{sPE}")
        wcatch()
        wait_prog(True, sTMP2)
        wcatch()
    vPG = 126
    def late_post_issue():
        if opt.lflow == 1: A(f"ds_read_b32 v{vPG}, v9 offset:{F_PROG}")
    def late_post():
        if opt.fgate == 2: signal(F_BA)
        if opt.lflow != 1: return
        A("s_waitcnt lgkmcnt(0)")
        A(f"v_readfirstlane_b32 s{sPROG}, v{vPG}")
        wcatch()

    if opt.cprio: A(f"s_setprio {opt.cprio}")
    signal(F_ERD)
    A(f"s_cmp_eq_u32 s3, 9")
    A("s_cbranch_scc1 L_poller")
    if opt.nocomm:
        signal(F_FREE0); signal(F_FREE1)
        A("s_branch L_exit")
    def egloop(last, name, lead=None, nrep=0):
        A(f"L_eg_loop{name}:")
        A(f"ds_read_b128 v[{vB}:{vB+3}], v{vAA}")
        wait_prog(True, sCNT)
        A(f"ds_read_b64_tr_b16 v[{vW}:{vW+1}], v{vWA}")
        A(f"ds_read_b64_tr_b16 v[{vW+2}:{vW+3}], v{vWA} offset:1024")
        if lead is not None and lead >= 0:
            A(f"s_cmp_lg_u32 s{sCNT}, {last - lead}")
            A(f"s_cbranch_scc1 L_eg_nf{name}")
            flag_now(nrep)
            A(f"L_eg_nf{name}:")
        A(f"v_add_u32 v{vWA}, 8192, v{vWA}")
        A(f"v_add_u32 v{vAA}, 512, v{vAA}")
        A(f"s_add_u32 s{sCNT}, s{sCNT}, 1")
        A(f"s_cmp_le_u32 s{sCNT}, {last}")
        A("s_waitcnt lgkmcnt(0)")
        A(f"v_mfma_f32_16x16x32_bf16 v[{vACC}:{vACC+3}], v[{vW}:{vW+3}], v[{vB}:{vB+3}], v[{vACC}:{vACC+3}]")
        A(f"s_cbranch_scc1 L_eg_loop{name}")
    A(f"s_cmp_ge_u32 s{sC}, 4")
    A("s_cbranch_scc1 L_noq")
    A(f"v_and_b32 v{vTMP2}, 7, v0")
    A(f"v_lshlrev_b32 v{vSTW}, 8, v{vTMP2}")
    A(f"v_and_b32 v{vTMP2}, 8, v0")
    A(f"v_lshl_or_b32 v{vSTW}, v{vTMP2}, 2, v{vSTW}")
    A(f"v_lshrrev_b32 v{vTMP3}, 4, v0")
    A(f"v_lshl_or_b32 v{vSTW}, v{vTMP3}, 3, v{vSTW}")
    A(f"s_lshl_b32 s{sTMP}, s{sC}, 6")
    A(f"s_add_u32 s{sTMP}, s{sTMP}, {ST}")
    A(f"v_add_u32 v{vSTW}, s{sTMP}, v{vSTW}")
    A(f"v_add_u32 v{vSTR}, {ST}, v{vL16}")
    A(f"v_and_b32 v{vPUB}, 0xf0, v{vL16}")
    A(f"v_lshl_or_b32 v{vPUB}, v{vTMP3}, 16, v{vPUB}")
    A(f"v_lshlrev_b32 v{vTMP3}, 2, v{vTMP3}")
    A(f"v_lshl_or_b32 v{vTMP3}, v{vTMP2}, 1, v{vTMP3}")
    tagbits(vB, vTMP3)
    setscale(LQ)
    A(f"s_and_b32 s{sTMP3}, s{sU}, 7")
    A(f"s_lshl3_add_u32 s{sTMP}, s{sG}, s{sTMP3}")
    A(f"s_lshl3_add_u32 s{sTMP}, s{sTMP}, s{sKS}")
    A(f"s_lshl_b32 s{sTMP}, s{sTMP}, 8")
    ws_addr(sGA, WS_QP, sTMP)
    A(f"s_mul_i32 s{sTMP}, s{sG}, {32*CS}")
    ws_addr(sGB, WS_QC, sTMP)
    A(f"s_lshl_b32 s{sTMP}, s{sC}, 1")
    A(f"s_xor_b32 s{sTMP}, s{sTMP}, s{sC}")
    A(f"s_lshl_b32 s{sTMP}, s{sTMP}, 5")
    A(f"v_xor_b32 v{vWA}, s{sTMP}, v{vTR}")
    A(f"v_add_u32 v{vWA}, {RQ}, v{vWA}")
    A(f"v_xor_b32 v{vW}, 32, v{vWA}")
    A(f"v_add_u32 v{vAA}, {XF}, v{vACT}")
    A(f"v_cmp_eq_u32 s[4:5], 0, v{vTMP2}")
    cwait(F_ERD, 9, sleep=1)
    wait_prog(False, 4, sleep=1)
    if opt.qlead >= 0: flag_now("q")
    actreads(4)
    wreads(0, 4)
    for kb in range(4):
        A(f"s_waitcnt lgkmcnt({6 if kb == 0 else 6})")
        A(f"ds_read_b64_tr_b16 v[{vK+16+4*kb}:{vK+16+4*kb+1}], v{vW} offset:{8192*kb}")
        A(f"ds_read_b64_tr_b16 v[{vK+16+4*kb+2}:{vK+16+4*kb+3}], v{vW} offset:{8192*kb+1024}")
        mf(kb, kb == 0)
    A("s_mov_b64 exec, 3")
    A(f"ds_add_u32 v9, v{vONE} offset:{F_FREE0}")
    A("s_mov_b64 exec, -1")
    for kb in range(4):
        A(f"s_waitcnt lgkmcnt({7-2*kb})")
        c1 = "0" if kb == 0 else f"v[{vACC2}:{vACC2+3}]"
        A(f"v_mfma_f32_16x16x32_bf16 v[{vACC2}:{vACC2+3}], v[{vK+16+4*kb}:{vK+16+4*kb+3}], v[{vQ+4*kb}:{vQ+4*kb+3}], {c1}")
    A("s_nop 7")
    for r in range(4): A(f"v_cndmask_b32 v{vACC+r}, v{vACC2+r}, v{vACC+r}, s[4:5]")
    encode(None, vB, vB+1)
    staged(F_PUB0, 3, 4 << 16, "q" if opt.qhint else None)
    if opt.ackst:
        stamp(2); A("s_waitcnt vmcnt(0)"); stamp(5)
    A(f"v_mov_b32 v{vAX}, 0")
    A("L_noq:")
    if not opt.ackst: stamp(2)
    A(f"s_cmp_ge_u32 s{sR}, 16")
    A("s_cbranch_scc1 L_roleM")
    def rbf(v):
        A(f"v_cvt_pk_bf16_f32 v{v}, v{v}, v{v}")
        A(f"v_and_b32 v{v}, 0xffff0000, v{v}")
    A(f"s_cmp_eq_u32 s{sROLE}, 2")
    A("s_cbranch_scc1 L_gate")
    pub_voff(5)
    setscale(LG)
    A(f"s_and_b32 s{sTMP}, s{sBETA}, -4")
    A(f"s_lshr_b32 s{sTMP2}, s{sC}, 1")
    A(f"s_add_u32 s{sTMP}, s{sTMP}, s{sTMP2}")
    A(f"s_and_b32 s{sTMP2}, s{sBETA}, 3")
    A(f"s_lshl2_add_u32 s{sTMP}, s{sTMP}, s{sTMP2}")
    A(f"s_and_b32 s{sTMP2}, s{sC}, 1")
    A(f"s_lshl1_add_u32 s{sTMP}, s{sTMP}, s{sTMP2}")
    A(f"s_lshl_b32 s{sTMP}, s{sTMP}, 8")
    ws_addr(sGA, WS_GP, sTMP)
    def hc_addr():
        A(f"s_and_b32 s{sTMP}, s{sBETA}, -4")
        A(f"s_or_b32 s{sTMP2}, s{sBETA}, 3")
        A(f"s_mul_i32 s{sTMP}, s{sTMP}, 147")
        A(f"s_mul_i32 s{sTMP2}, s{sTMP2}, 147")
        A(f"s_lshr_b32 s{sTMP}, s{sTMP}, 10")
        A(f"s_lshr_b32 s{sTMP2}, s{sTMP2}, 10")
        A(f"s_cmp_eq_u32 s{sTMP}, s{sTMP2}")
        A(f"s_cselect_b32 s{sNH}, {HREP}, {2*HREP}")
        A(f"s_mul_i32 s{sTMP}, s{sTMP}, {CS*HREP}")
        ws_addr(sGB, WS_HC, sTMP)
    if not opt.notif: hc_addr()
    for r in range(4): A(f"v_mov_b32 v{vACC+r}, 0")
    A(f"v_mov_b32 v{vWA}, v{vTR}")
    A(f"v_add_u32 v{vAA}, {XF + 2048}, v{vACT}")
    A(f"s_mov_b32 s{sCNT}, 5")
    wait_prog(False, opt.xgat + 1, sleep=1)
    egloop(12, "G1")
    signal(F_FREE1)
    stamp(3)
    egloop(20, "G2", opt.hlead, "h")
    A("s_nop 7")
    publish(vACC)
    if opt.hlead < 0 and not opt.notif: flag(F_PUB1, "h")
    else: A("s_mov_b64 exec, -1")
    stamp(6)
    if opt.ackst:
        A("s_waitcnt vmcnt(0)"); stamp(4)
    A("L_bc_late:")
    late_setup(RA, 0, 28)
    ws_addr(sGA, WS_OP, sTMP)
    A(f"s_lshl_b32 s{sTMP2}, s{sC}, 4")
    A(f"v_and_b32 v{vTMP3}, 32, v0")
    A(f"v_lshlrev_b32 v{vTMP3}, 2, v{vTMP3}")
    A(f"v_add3_u32 v{vTMP3}, v{vTMP3}, s{sTMP2}, v9")
    A(f"s_lshl_b32 s{sTMP3}, s{sLR}, 3")
    A(f"v_subrev_u32 v{vAFW}, s{sTMP3}, v0")
    A(f"v_and_b32 v{vAFW}, 62, v{vAFW}")
    A(f"v_lshlrev_b32 v{vAFW}, 6, v{vAFW}")
    A(f"v_and_b32 v{vTMP2}, 1, v0")
    A(f"v_lshl_or_b32 v{vAFW}, v{vTMP2}, 3, v{vAFW}")
    A(f"s_add_u32 s{sTMP2}, s{sTMP2}, {AF}")
    A(f"v_add_u32 v{vAFW}, s{sTMP2}, v{vAFW}")
    afswz(vAFW)
    late_wait()
    stamp(7)
    def owork(i):
        if i == 2: late_post_issue()
        if i == 3: late_post()
    gather(mid=late_mid, cntstamp=13, sleep=opt.gsleep, work=owork, kind='B', defer=True)
    if STAMP == 1: A("s_waitcnt lgkmcnt(0)")
    cwait_rd(F_WRDY, 1, 0, lambda: A(f"ds_read_b128 v[{vSCA}:{vSCA+3}], v{vTMP3} offset:{F_WT}"))
    stamp(8)
    A(f"s_cmp_lg_u32 s{sEM}, 0")
    A("s_cbranch_scc1 L_onofix")
    A("s_call_b64 s[6:7], L_fix")
    A("L_onofix:")
    for i in range(4): acc(i, vS0, i == 0)
    A("s_branch L_late")

    A("L_roleM:")
    A(f"s_lshl2_add_u32 s{sTMP}, s{sBB}, s{sG}")
    A(f"s_lshl3_add_u32 s{sTMP}, s{sTMP}, s{sC}")
    A(f"s_lshl_b32 s{sTMP}, s{sTMP}, 11")
    ws_addr(sGA, WS_QP, sTMP)
    A(f"v_bfe_u32 v{vTMP2}, v0, 2, 2")
    A(f"v_and_b32 v{vTMP3}, 3, v0")
    A(f"v_lshl_add_u32 v{vTMP2}, v{vTMP2}, 3, v{vTMP3}")
    A(f"v_lshlrev_b32 v{vWA}, 8, v{vTMP2}")
    A(f"v_lshrrev_b32 v{vTMP2}, 5, v0")
    A(f"v_and_b32 v{vTMP3}, 7, v0")
    A(f"v_xor_b32 v{vTMP2}, v{vTMP2}, v{vTMP3}")
    A(f"v_lshl_or_b32 v{vWA}, v{vTMP2}, 5, v{vWA}")
    A(f"v_and_b32 v{vTMP2}, 16, v0")
    A(f"s_lshl_b32 s{sTMP}, s{sC}, 13")
    A(f"v_add3_u32 v{vWA}, v{vWA}, v{vTMP2}, s{sTMP}")
    vQA, vMX, vPA = vW, vW + 1, vW + 2
    A(f"v_and_b32 v{vQA}, 30, v0")
    A(f"v_lshlrev_b32 v{vQA}, 6, v{vQA}")
    A(f"v_and_b32 v{vTMP2}, 1, v0")
    A(f"v_lshl_or_b32 v{vQA}, v{vTMP2}, 3, v{vQA}")
    A(f"v_lshrrev_b32 v{vTMP2}, 5, v0")
    A(f"v_lshl_or_b32 v{vQA}, v{vTMP2}, 2, v{vQA}")
    A(f"s_lshl_b32 s{sTMP}, s{sC}, 4")
    A(f"s_add_u32 s{sTMP}, s{sTMP}, {QF}")
    A(f"v_add_u32 v{vQA}, s{sTMP}, v{vQA}")
    A(f"v_lshl_add_u32 v{vMX}, v{vTMP3}, 2, v9")
    A(f"s_lshl_b32 s{sTMP}, s{sC}, 9")
    A(f"s_add_u32 s{sTMP}, s{sTMP}, {PF}")
    A(f"v_add_u32 v{vPA}, s{sTMP}, v{vACT}")
    vOTP, vOTA = vRW, vRR
    A(f"v_lshrrev_b32 v{vTMP3}, 4, v0")
    A(f"v_and_b32 v{vTMP2}, 7, v0")
    A(f"v_lshlrev_b32 v{vSTW}, 8, v{vTMP2}")
    A(f"v_lshl_or_b32 v{vSTW}, v{vTMP3}, 3, v{vSTW}")
    A(f"s_lshl_b32 s{sTMP}, s{sC}, 5")
    A(f"s_add_u32 s{sTMP}, s{sTMP}, {ST}")
    A(f"v_add_u32 v{vSTW}, s{sTMP}, v{vSTW}")
    A(f"v_add_u32 v{vSTR}, {ST}, v{vL16}")
    A(f"v_and_b32 v{vPUB}, 0x1f0, v{vL16}")
    A(f"v_and_b32 v{vTMP2}, 32, v0")
    A(f"v_lshl_or_b32 v{vPUB}, v{vTMP2}, 9, v{vPUB}")
    A(f"s_and_b32 s{sTMP}, s{sC}, 1")
    A(f"s_lshl_b32 s{sTMP}, s{sTMP}, 4")
    A(f"v_lshl_or_b32 v{vTMP3}, v{vTMP3}, 2, s{sTMP}")
    tagbits(vOTP, vTMP3)
    if opt.qhint: cwait(F_QRDY, 1, sleep=1)
    else: wait_prog(False, opt.qgate, sleep=1)
    stamp(3)
    def kfrags():
        A(f"s_add_u32 s{sTMP2}, s{sC}, 5")
        wait_prog(True, sTMP2)
        for db in range(4):
            if db: A(f"v_xor_b32 v{vAA}, {64*db}, v{vWA}")
            a = vAA if db else vWA
            A(f"ds_read_b128 v[{vK+4*db}:{vK+4*db+3}], v{a}")
            A(f"ds_read_b128 v[{vK+16+4*db}:{vK+16+4*db+3}], v{a} offset:1024")
        signal(F_FREE1)
        A(f"v_add_u32 v{vAA}, {QF}, v{vACT}")
    kfr[0] = kfrags
    setsca(LQ)
    def qwork(i): acc(i, vS0, i == 0)
    gather(nld=4, mid=kfrags, cntstamp=11, sleep=opt.qsleep, work=qwork)
    stamp(4)
    A("s_nop 1")
    A(f"v_permlane32_swap_b32 v{vS0}, v{vS0+2}")
    A(f"v_permlane32_swap_b32 v{vS0+1}, v{vS0+3}")
    A(f"v_add_f32 v{vS0}, v{vS0}, v{vS0+2}")
    A(f"v_add_f32 v{vS0+1}, v{vS0+1}, v{vS0+3}")
    A(f"v_cvt_pk_bf16_f32 v{vGA}, v{vS0}, v{vS0+1}")
    A(f"ds_write_b32 v{vQA}, v{vGA}")
    signal(F_BQ)
    A(f"s_lshl_b32 s{sTMP}, s{sG}, 5")
    A(f"s_add_u32 s{sTMP}, s{sTMP}, s{sBB}")
    A(f"s_lshl2_add_u32 s{sTMP}, s{sTMP}, s{sSPL}")
    A(f"s_lshl_b32 s{sTMP}, s{sTMP}, 9")
    ws_addr(sGA, WS_OP, sTMP)
    A(f"s_lshl2_add_u32 s{sTMP3}, s{sBB}, s{sSPL}")
    A(f"s_mul_i32 s{sTMP}, s{sG}, {32*CS}")
    ws_addr(sGB, WS_OC, sTMP)
    A(f"s_lshl_b32 s{sTMP}, s{sG}, 5")
    A(f"s_add_u32 s{sTMP}, s{sTMP}, s{sTMP3}")
    A(f"s_lshl_b32 s{sTMP}, s{sTMP}, 6")
    ws_addr(sFA, WS_LSE, sTMP)
    cbits = struct.unpack("<I", struct.pack("<f", math.log2(math.e) / math.sqrt(128.0)))[0]
    A(f"s_mov_b32 s{sTMP2}, {cbits:#x}")
    if STAMP == 1: A("s_waitcnt lgkmcnt(0)")
    if opt.spec: cwait_rd(F_BQ, 8, 4, lambda: actreads(4))
    else:
        cwait(F_BQ, 8); actreads(4)
    for db in range(4):
        A(f"s_waitcnt lgkmcnt({3-db})")
        c0 = "0" if db == 0 else f"v[{vACC}:{vACC+3}]"
        c1 = "0" if db == 0 else f"v[{vACC2}:{vACC2+3}]"
        A(f"v_mfma_f32_16x16x32_bf16 v[{vACC}:{vACC+3}], v[{vK+4*db}:{vK+4*db+3}], v[{vQ+4*db}:{vQ+4*db+3}], {c0}")
        A(f"v_mfma_f32_16x16x32_bf16 v[{vACC2}:{vACC2+3}], v[{vK+16+4*db}:{vK+16+4*db+3}], v[{vQ+4*db}:{vQ+4*db+3}], {c1}")
    A(f"v_add_u32 v{vAA}, {PF}, v{vACT}")
    A(f"v_add_u32 v{vWA}, {RB}, v{vTR}")
    vONES = vGA
    for r in range(4): A(f"v_mov_b32 v{vONES+r}, 0x3f803f80")
    A("s_nop 1")
    A(f"v_max3_f32 v{vTMP2}, v{vACC}, v{vACC+1}, v{vACC+2}")
    A(f"v_max3_f32 v{vTMP2}, v{vTMP2}, v{vACC+3}, v{vACC2}")
    A(f"v_max3_f32 v{vTMP2}, v{vTMP2}, v{vACC2+1}, v{vACC2+2}")
    A(f"v_max_f32 v{vTMP2}, v{vTMP2}, v{vACC2+3}")
    A("s_mov_b32 exec_lo, 0x00ff00ff\ns_mov_b32 exec_hi, 0x00ff00ff")
    A(f"ds_max_f32 v{vMX}, v{vTMP2} offset:{F_MAX}")
    signal(F_BM)
    vM = vLS
    cwait_rd(F_BM, 8, 1, lambda: A(f"ds_read_b32 v{vM}, v{vMX} offset:{F_MAX}"))
    if opt.olead >= 0 and opt.oearly:
        A(f"ds_read_b32 v{vTMP}, v9 offset:{F_PROG}")
    A("s_waitcnt lgkmcnt(0)")
    A(f"s_mov_b32 s{sWDN}, 0")
    if opt.olead >= 0 and opt.oearly:
        A(f"v_readfirstlane_b32 s{sPROG}, v{vTMP}")
        A(f"s_cmp_lt_u32 s{sPROG}, {20 - opt.olead}")
        A("s_cbranch_scc1 L_of_no1")
        flag_now("q")
        A(f"s_mov_b32 s{sWDN}, 1")
        A("L_of_no1:")
    A(f"v_mul_f32 v{vM}, s{sTMP2}, v{vM}")
    for r in range(8):
        A(f"v_fma_f32 v{vACC+r}, v{vACC+r}, s{sTMP2}, -v{vM}")
    for r in range(8):
        A(f"v_exp_f32 v{vACC+r}, v{vACC+r}")
    A("s_nop 0")
    for r in range(4):
        A(f"v_cvt_pk_bf16_f32 v{vB+r}, v{vACC+2*r}, v{vACC+2*r+1}")
    A(f"ds_write_b128 v{vPA}, v[{vB}:{vB+3}]")
    signal(F_BP)
    if opt.spec: cwait_rd(F_BP, 8, 8, lambda: actreads(8))
    else:
        cwait(F_BP, 8); actreads(8)
    A(f"ds_read_b32 v{vTMP}, v9 offset:{F_PROG}")
    for kb in range(8):
        A(f"s_waitcnt lgkmcnt({8-kb})")
        c1 = "0" if kb == 0 else f"v[{vACC2}:{vACC2+3}]"
        A(f"v_mfma_f32_16x16x32_bf16 v[{vACC2}:{vACC2+3}], v[{vONES}:{vONES+3}], v[{vQ+4*kb}:{vQ+4*kb+3}], {c1}")
    A("s_waitcnt lgkmcnt(0)")
    A(f"v_readfirstlane_b32 s{sPROG}, v{vTMP}")
    stamp(5)
    vRL = vLS + 2
    def lse_part():
        A(f"v_log_f32 v{vLS+1}, v{vACC2}")
        A(f"v_rcp_f32 v{vRL}, v{vACC2}")
        A("s_nop 0")
        A(f"v_mul_f32 v{vRL}, {fbits(2.0**LO_):#x}, v{vRL}")
        d = g.lab("L_nolse")
        A(f"s_cmp_lg_u32 s{sC}, 0")
        A(f"s_cbranch_scc1 {d}")
        A(f"v_add_f32 v{vM}, v{vM}, v{vLS+1}")
        A(f"v_mov_b32 v{vLS+1}, s{sT}")
        A(f"v_lshlrev_b32 v{vTMP2}, 3, v0")
        A("s_mov_b64 exec, 0xff")
        if not (opt.dbg & 1):
            A(f"global_store_dwordx2 v{vTMP2}, v[{vLS}:{vLS+1}], s[{sFA}:{sFA+1}] sc1")
            if opt.lcnt:
                A(f"s_bfm_b64 exec, {NREP}, 0")
                A(f"v_mov_b32 v{vTMP2}, 0x10000")
                A(f"global_atomic_add v{vFLG}, v{vTMP2}, s[{sGB}:{sGB+1}] sc1")
        A("s_mov_b64 exec, -1")
        A(f"{d}:")
    A(f"s_cmp_lt_u32 s{sPROG}, 20")
    A("s_cbranch_scc1 L_pv_slow")
    def oflag():
        if opt.olead < 0: return
        d = g.lab("L_of")
        A(f"s_cmp_lg_u32 s{sWDN}, 0")
        A(f"s_cbranch_scc1 {d}")
        flag_now("q")
        A(f"{d}:")
    wreads(0, 7)
    lse_part()
    oflag()
    for kb in range(7):
        A(f"s_waitcnt lgkmcnt({14-2*kb if kb else 12})")
        if kb == 0: wreads(7, 8)
        mf(kb, kb == 0)
    A("s_branch L_pv_last")
    pad("M")
    A("L_pv_slow:")
    A("s_nop 4")
    lse_part()
    for kb in range(8):
        wait_prog(False, 12 + kb + 1)
        wreads(kb, kb+1)
        if 12 + kb + 1 == 20 - opt.olead: oflag()
        if kb:
            A("s_waitcnt lgkmcnt(2)")
            mf(kb-1, kb == 1)
    A("L_pv_last:")
    A("s_waitcnt lgkmcnt(0)")
    mf(7, False)
    A("s_nop 7")
    encode(vRL, vOTP, vOTA)
    A("s_mov_b32 exec_lo, 0x00ff00ff\ns_mov_b32 exec_hi, 0x00ff00ff")
    staged(F_PUB1, 7, 2 << 14, "q" if (opt.olead < 0 and not opt.notif) else None)
    stamp(6)
    if opt.ackst:
        A("s_waitcnt vmcnt(0)"); stamp(3)
    A(f"s_and_b32 s{sTMP2}, s{sXCD if opt.rmap else sR}, 1")
    A(f"s_lshl_b32 s{sTMP2}, s{sTMP2}, 4")
    A(f"v_and_b32 v{vTMP2}, 12, v0")
    A(f"v_add_u32 v{vTMP2}, v{vTMP2}, v9")
    cwait_rd(F_QRDY, 1, 0, lambda: A(f"ds_read_b32 v{vRG}, v{vTMP2} offset:{F_G}"))
    if opt.rmap:
        assert not opt.fgate
        A(f"s_sub_u32 s{sTMP3}, s2, 128")
    else:
        A(f"s_lshl4_add_u32 s{sTMP}, s{sXCD}, s{sR}")
        A(f"s_sub_u32 s{sTMP3}, s{sTMP}, 16")
    A(f"s_lshl3_add_u32 s{sTMP}, s{sTMP3}, s{sC}")
    A(f"s_lshl_b32 s{sTMP}, s{sTMP}, 9")
    ws_addr(sRA, WS_FP, sTMP)
    A(f"v_lshlrev_b32 v{vRR}, 2, v0")
    A(f"v_add_u32 v{vRR}, {RS}, v{vRR}")
    A(f"s_lshl_b32 s{sTMP}, s{sC}, 8")
    A(f"v_add_u32 v{vRW}, s{sTMP}, v{vRR}")
    A(f"v_and_b32 v{vOUT}, 12, v0")
    A(f"v_lshlrev_b32 v{vOUT}, 9, v{vOUT}")
    A(f"v_and_b32 v{vTMP2}, 3, v0")
    A(f"v_lshl_or_b32 v{vOUT}, v{vTMP2}, 3, v{vOUT}")
    A(f"v_lshrrev_b32 v{vTMP2}, 4, v0")
    A(f"v_lshl_or_b32 v{vOUT}, v{vTMP2}, 1, v{vOUT}")
    A(f"s_lshl_b32 s{sTMP2}, s{sTMP2}, 9")
    A(f"s_lshr_b32 s{sTMP3}, s{sTMP3}, 1")
    A(f"s_lshl_b32 s{sTMP3}, s{sTMP3}, 5")
    A(f"s_add_u32 s{sTMP2}, s{sTMP2}, s{sTMP3}")
    A(f"v_add_u32 v{vOUT}, s{sTMP2}, v{vOUT}")
    if opt.vtouch & 1:
        A(f"s_cmp_lg_u32 s{sC}, 7")
        A("s_cbranch_scc1 L_novt")
        A("s_mov_b64 exec, 1")
        A(f"global_load_ushort v127, v{vOUT}, s[{sOUT}:{sOUT+1}] sc1")
        A("s_mov_b64 exec, -1")
        A("L_novt:")
    A("s_waitcnt lgkmcnt(0)")
    A(f"s_cmp_lt_u32 s{sC}, 4")
    A("s_cbranch_scc1 L_wg_done")
    A(f"v_sub_f32 v{vRG}, 1.0, v{vRG}")
    rbf(vRG)
    A("L_wg_done:")
    A(f"v_mul_f32 v{vRG}, {fbits(2.0**-LF):#x}, v{vRG}")
    setsca(LG)
    late_setup(RA, 16, 27)
    A(f"s_add_u32 s{sTMP}, s{sC}, s{sLR}")
    A(f"s_cmp_ge_u32 s{sTMP}, 7")
    A(f"s_cselect_b32 s{sTMP2}, 7, 0")
    A(f"s_sub_u32 s{sTMP}, s{sTMP}, s{sTMP2}")
    A(f"s_add_u32 s{sTMP}, s{sTMP}, s{sKB0}")
    A(f"s_lshl_b32 s{sTMP}, s{sTMP}, 11")
    ws_addr(sGA, WS_GP, sTMP)
    for r in range(4): A(f"v_mov_b32 v{vS0+r}, 0")
    late_wait()
    A(f"s_cmp_eq_u32 s{sC}, 7")
    A("s_cbranch_scc1 L_late")
    stamp(7)
    def rnd4(v):
        A(f"v_cvt_pk_bf16_f32 v{vB}, v{v}, v{v+1}")
        A(f"v_cvt_pk_bf16_f32 v{vB+1}, v{v+2}, v{v+3}")
        for h in range(2):
            A(f"v_lshlrev_b32 v{v+2*h}, 16, v{vB+h}")
            A(f"v_and_b32 v{v+2*h+1}, 0xffff0000, v{vB+h}")
    def hwork(i):
        if i == 2: late_post_issue()
        if i == 3: late_post()
        acc(i, vS0 if i < 2 else vS1, i in (0, 2))
        if i == 1:
            for r in range(4): A(f"v_max_f32 v{vS0+r}, 0, v{vS0+r}")
            if opt.hround: rnd4(vS0)
        if i == 3:
            if opt.hround: rnd4(vS1)
            for r in (0, 2): A(f"v_pk_mul_f32 v[{vS0+r}:{vS0+r+1}], v[{vS0+r}:{vS0+r+1}], v[{vS1+r}:{vS1+r+1}]")
    gather(mid=late_mid, cntstamp=13, sleep=opt.gsleep, work=hwork)
    stamp(8)

    if opt.touch: A("s_branch L_late")
    pad("A")
    A("L_late:")
    A(f"v_cvt_pk_bf16_f32 v{vGA}, v{vS0}, v{vS0+1}")
    A(f"v_cvt_pk_bf16_f32 v{vGA+1}, v{vS0+2}, v{vS0+3}")
    A(f"ds_write_b64 v{vAFW}, v[{vGA}:{vGA+1}]")
    if opt.lflow == 1:
        signal(F_BA)
        if opt.fine: stamp(3)
        A(f"s_cmp_eq_u32 s{sWDN}, 99")
        A("s_cbranch_scc1 L_late_bar")
        A("L_late_spin:")
        A(f"ds_read2_b32 v[{vTMP}:{vTMP+1}], v9 offset0:{F_PROG//4} offset1:{F_BA//4}")
        A("s_waitcnt lgkmcnt(0)")
        A(f"v_readfirstlane_b32 s{sPROG}, v{vTMP}")
        A(f"v_readfirstlane_b32 s{sTMP2}, v{vTMP+1}")
        wcatch()
        A(f"s_cmp_eq_u32 s{sWDN}, 99")
        A("s_cbranch_scc1 L_late_bar0")
        A(f"s_cmp_lt_u32 s{sWDN}, 27")
        A("s_cbranch_scc1 L_late_spin")
        A(f"s_cmp_lt_u32 s{sTMP2}, 8")
        A("s_cbranch_scc1 L_late_spin")
        actreads(8, True)
        for kb in range(6):
            A(f"s_waitcnt lgkmcnt({7-kb})")
            mf(kb, kb == 0)
        A("s_barrier")
        wreads(6, 8)
        A("s_waitcnt lgkmcnt(2)")
        mf(6, False)
        A("s_waitcnt lgkmcnt(0)")
        mf(7, False)
        A("s_branch L_late_done")
        pad("A")
        A("L_late_bar:")
        A("s_waitcnt lgkmcnt(0)")
        A("L_late_bar0:")
        A("s_barrier")
        if opt.fine: stamp(4)
        actreads(8, True)
        for kb in range(8):
            A(f"s_waitcnt lgkmcnt({7-kb})")
            mf(kb, kb == 0)
    else:
        if opt.fine: stamp(3)
        if opt.lflow == 3: signal(F_BA)
        A(f"s_cmp_ge_u32 s{sWDN}, {opt.wmin}")
        A(f"s_cbranch_scc1 {'L_late_w6' if opt.lflow == 3 else 'L_late_bar'}")
        wait_prog(False, opt.wmin - 1)
        wcatch()
        if opt.lflow == 3:
            A("L_late_w6:")
            A(f"s_cmp_eq_u32 s{sWDN}, 99")
            A("s_cbranch_scc1 L_late_bar")
            A("L_late_spin:")
            A(f"ds_read2_b32 v[{vTMP}:{vTMP+1}], v9 offset0:{F_PROG//4} offset1:{F_BA//4}")
            A("s_waitcnt lgkmcnt(0)")
            A(f"v_readfirstlane_b32 s{sPROG}, v{vTMP}")
            A(f"v_readfirstlane_b32 s{sTMP2}, v{vTMP+1}")
            A(f"s_cmp_ge_u32 s{sPROG}, s{sPE}")
            A("s_cbranch_scc1 L_late_bar")
            A(f"s_cmp_lt_u32 s{sTMP2}, 8")
            A("s_cbranch_scc1 L_late_spin")
            n0 = opt.wmin - 21
            actreads(8, True)
            for kb in range(n0):
                A(f"s_waitcnt lgkmcnt({7-kb})")
                mf(kb, kb == 0)
            A("s_barrier")
            wreads(n0, 8)
            for kb in range(n0, 8):
                A(f"s_waitcnt lgkmcnt({2*(7-kb)})")
                mf(kb, False)
            A("s_branch L_late_done")
        A("L_late_bar:")
        A(f"s_cmp_eq_u32 s{sWDN}, 99")
        A("s_waitcnt lgkmcnt(0)")
        A("s_barrier")
        A("s_cbranch_scc1 L_late_act")
        wreads(opt.wmin - 21, 8)
        A("L_late_act:")
        if opt.fine: stamp(4)
        actreads(8, True)
        for kb in range(8):
            A(f"s_waitcnt lgkmcnt({7-kb})")
            mf(kb, kb == 0)
    A("L_late_done:")
    if opt.fine: stamp(5)
    A("s_nop 7")
    publish(vACC, sFA)
    A("s_mov_b64 exec, -1")
    stamp(9)
    A(f"s_cmp_ge_u32 s{sR}, 16")
    A("s_cbranch_scc1 L_red")
    if opt.fixdur:
        A(f"s_cmp_eq_u32 s{sC}, 0")
        A("s_cbranch_scc1 L_noepoch")
    A("s_branch L_exit")
    pad("A")
    A("L_red:")
    A(f"s_mov_b64 s[{sGA}:{sGA+1}], s[{sRA}:{sRA+1}]")
    if opt.fgate and not opt.fbar: cwait(F_FRDY, 1)
    A(f"v_mov_b32 v{vSCA}, v{vRG}")
    if opt.fgate and opt.fbar: A("s_barrier")
    def fwork(i): acc(0, vS0, True)
    gather(nld=1, cntstamp=12, sleep=opt.fgsleep, work=fwork)
    if not opt.stq: stamp(2)
    A("s_nop 1")
    A(f"v_permlane32_swap_b32 v{vS0}, v{vS0+2}")
    A(f"v_permlane32_swap_b32 v{vS0+1}, v{vS0+3}")
    A(f"v_add_f32 v{vS0}, v{vS0}, v{vS0+2}")
    A(f"v_add_f32 v{vS0+1}, v{vS0+1}, v{vS0+3}")
    A("s_nop 1")
    A(f"v_permlane16_swap_b32 v{vS0}, v{vS0+1}")
    A(f"v_add_f32 v{vGA}, v{vS0}, v{vS0+1}")
    A(f"ds_write_b32 v{vRW}, v{vGA}")
    A("s_mov_b64 exec, 1")
    A(f"ds_add_rtn_u32 v{vTMP}, v9, v{vONE} offset:{F_RED}")
    A("s_mov_b64 exec, -1")
    for i in range(4):
        A(f"ds_read2st64_b32 v[{vGA+2*i}:{vGA+2*i+1}], v{vRR} offset0:{2*i} offset1:{2*i+1}")
    A("s_waitcnt lgkmcnt(4)")
    A(f"v_readfirstlane_b32 s{sTMP}, v{vTMP}")
    A(f"s_cmp_lg_u32 s{sTMP}, 7")
    A("s_cbranch_scc1 L_exit")
    A("s_waitcnt lgkmcnt(0)")
    A(f"v_pk_add_f32 v[{vGA}:{vGA+1}], v[{vGA}:{vGA+1}], v[{vGA+2}:{vGA+3}]")
    A(f"v_pk_add_f32 v[{vGA+4}:{vGA+5}], v[{vGA+4}:{vGA+5}], v[{vGA+6}:{vGA+7}]")
    A(f"v_pk_add_f32 v[{vGA}:{vGA+1}], v[{vGA}:{vGA+1}], v[{vGA+4}:{vGA+5}]")
    A(f"v_add_f32 v{vGA}, v{vGA}, v{vGA+1}")
    A(f"v_cvt_pk_bf16_f32 v{vGA}, v{vGA}, v{vGA}")
    A(f"global_store_short v{vOUT}, v{vGA}, s[{sOUT}:{sOUT+1}] {opt.outflags}")
    A(f"s_cmp_lg_u32 s2, 128")
    A("s_cbranch_scc1 L_noepoch")
    A("s_mov_b64 exec, 1")
    A(f"v_mov_b32 v{vTMP}, 0")
    A(f"global_store_dword v{vTMP}, v{vT}, s[{sWS}:{sWS+1}] sc1")
    A("s_mov_b64 exec, -1")
    A("L_noepoch:")
    if opt.fixdur:
        A(f"s_cmp_lg_u32 s2, {opt.fixwg}")
        A("s_cbranch_scc1 L_nofix")
        if opt.lprobe:
            A("s_cmp_lg_u32 s3, 0")
            A("s_cbranch_scc1 L_nofix")
        if opt.probe == 20: A("s_memrealtime s[96:97]")
        A("s_waitcnt lgkmcnt(0)")
        A(f"s_sub_u32 s96, s96, s{94 if opt.probe0 >= 0 else 98}")
        A("s_min_u32 s96, s96, 3000")
        A(f"s_mul_i32 s96, s96, {opt.amp if opt.probe >= 0 else 0}")
        A(f"s_add_u32 s96, s96, {opt.fixdur}")
        A("L_fixd:")
        A("s_memrealtime s[14:15]")
        A("s_waitcnt lgkmcnt(0)")
        A("s_sub_u32 s14, s14, s98")
        A(f"s_cmp_lt_u32 s14, s96")
        A("s_cbranch_scc1 L_fixd")
        A("L_nofix:")
    if STAMP:
        A("s_waitcnt vmcnt(0)")
        stamp(1, True)
    A("s_branch L_exit")

    pad("A")
    A("L_wcatch:")
    for kb in range(8):
        nx = f"L_wcn{kb}"
        if kb < 7:
            A(f"s_cmp_gt_u32 s{sWDN}, {21+kb}")
            A(f"s_cbranch_scc1 {nx}")
        if kb:
            A(f"s_cmp_lt_u32 s{sPROG}, s{sWDN}")
            A("s_cbranch_scc1 L_wcret")
        wreads(kb, kb+1)
        if kb < 6: A(f"s_mov_b32 s{sWDN}, {22+kb}")
        elif kb == 6: A(f"s_mov_b32 s{sWDN}, s{sPE}")
        else: A(f"s_mov_b32 s{sWDN}, 99")
        if kb < 7: A(f"{nx}:")
    A("L_wcret:")
    A(f"s_setpc_b64 s[{sRET}:{sRET+1}]")

    A("L_gate:")
    vXr, vGWr = vK, vK + 8
    A(f"s_cmp_lt_u32 s{sC}, 4")
    A("s_cbranch_scc1 L_bc_late")
    wait_prog(False, 4, sleep=1)
    A(f"s_and_b32 s{sTMP}, s{sR}, 1")
    A(f"s_lshl2_add_u32 s{sTMP}, s{sTMP}, s{sC}")
    A(f"s_sub_u32 s{sTMP3}, s{sTMP}, 4")
    A(f"s_lshl_b32 s{sTMP}, s{sTMP3}, 11")
    A(f"v_add_u32 v{vTMP3}, s{sTMP}, v{vL16}")
    for i in range(2):
        A(f"global_load_dwordx4 v[{vXr+4*i}:{vXr+4*i+3}], v{vTMP3}, s[{sX}:{sX+1}] offset:{1024*i}")
        A(f"global_load_dwordx4 v[{vGWr+4*i}:{vGWr+4*i+3}], v{vL16}, s[{sGW}:{sGW+1}] offset:{1024*i}")
    A(f"v_mov_b32 v{vACC2}, 0")
    A("s_waitcnt vmcnt(0)")
    for i in range(8):
        A(f"v_lshlrev_b32 v{vW}, 16, v{vXr+i}")
        A(f"v_and_b32 v{vW+1}, 0xffff0000, v{vXr+i}")
        A(f"v_lshlrev_b32 v{vW+2}, 16, v{vGWr+i}")
        A(f"v_and_b32 v{vW+3}, 0xffff0000, v{vGWr+i}")
        A(f"v_mul_f32 v{vW}, v{vW}, v{vW+2}")
        A(f"v_mul_f32 v{vW+1}, v{vW+1}, v{vW+3}")
        A(f"v_cvt_pk_bf16_f32 v{vW}, v{vW}, v{vW+1}")
        A(f"v_lshlrev_b32 v{vW+1}, 16, v{vW}")
        A(f"v_and_b32 v{vW}, 0xffff0000, v{vW}")
        A(f"v_add_f32 v{vACC2}, v{vACC2}, v{vW+1}")
        A(f"v_add_f32 v{vACC2}, v{vACC2}, v{vW}")
    for off in (0x041F, 0x081F, 0x101F, 0x201F, 0x401F):
        A(f"ds_swizzle_b32 v{vW}, v{vACC2} offset:{off:#x}")
        A("s_waitcnt lgkmcnt(0)")
        A(f"v_add_f32 v{vACC2}, v{vACC2}, v{vW}")
    A(f"v_mov_b32 v{vW}, v{vACC2}")
    A("s_nop 1")
    A(f"v_permlane32_swap_b32 v{vACC2}, v{vW}")
    A(f"v_add_f32 v{vACC2}, v{vACC2}, v{vW}")
    rbf(vACC2)
    A(f"v_mul_f32 v{vACC2}, 0xbfb8aa3b, v{vACC2}")
    A(f"v_exp_f32 v{vACC2}, v{vACC2}")
    A("s_nop 0")
    A(f"v_add_f32 v{vACC2}, 1.0, v{vACC2}")
    A(f"v_rcp_f32 v{vACC2}, v{vACC2}")
    A("s_nop 0")
    rbf(vACC2)
    A(f"s_and_b32 s{sTMP}, s{sR}, 1")
    A(f"s_lshl1_add_u32 s{sTMP}, s{sXCD}, s{sTMP}")
    A(f"s_lshl4_add_u32 s{sTMP}, s{sTMP}, s{sC}")
    A(f"s_lshl_b32 s{sTMP}, s{sTMP}, 3")
    A(f"s_add_u32 s{sTMP}, s{sTMP}, {WS_GL - 32}")
    A(f"v_mov_b32 v{vTMP2}, s{sTMP}")
    A(f"v_mov_b32 v{vACC2+1}, s{sT}")
    A("s_mov_b64 exec, 1")
    if not (opt.dbg & 1): A(f"global_store_dwordx2 v{vTMP2}, v[{vACC2}:{vACC2+1}], s[{sWS}:{sWS+1}] sc1")
    A("s_mov_b64 exec, -1")
    A("s_branch L_bc_late")

    A("L_encs:")
    A(f"v_lshrrev_b32 v{vTMP}, 23, v{vTMP}")
    A(f"v_subrev_u32 v{vTMP}, 126, v{vTMP}")
    A(f"v_ashrrev_i32 v{vTMP}, 4, v{vTMP}")
    A(f"v_med3_i32 v{vTMP}, v{vTMP}, -8, 7")
    A(f"v_cndmask_b32 v{vTMP}, 0, v{vTMP}, vcc")
    A(f"v_and_b32 v{vAX}, 15, v{vTMP}")
    A(f"v_lshl_or_b32 v{vAX}, v{vAX}, 14, v{vAX}")
    A(f"v_and_b32 v{vAX}, s{sM3}, v{vAX}")
    A(f"v_mul_i32_i24 v{vTMP}, -16, v{vTMP}")
    for r in range(4): A(f"v_ldexp_f32 v{vACC+r}, v{vACC+r}, v{vTMP}")
    A("s_mov_b64 vcc, 0")
    A("s_setpc_b64 s[6:7]")
    A("L_fixr:")
    for i in range(4): A(f"v_xor_b32 v{vGA+2*i+1}, v{vTC}, v{vGA+2*i+1}")
    A("L_fix:")
    for i in range(4):
        A(f"v_and_b32 v{vTMP}, 3, v{vGA+2*i}")
        A(f"v_bfe_i32 v{vTMP2}, v{vGA+2*i}, 16, 2")
        A(f"v_lshl_or_b32 v{vTMP}, v{vTMP2}, 2, v{vTMP}")
        A(f"v_lshlrev_b32 v{vTMP}, 4, v{vTMP}")
        A(f"v_ldexp_f32 v{vSCA+i}, v{vSCA+i}, v{vTMP}")
    A("s_setpc_b64 s[6:7]")

    if opt.notif:
        A("L_notif:")
        if opt.nocomm: A("s_branch L_exit")
        if opt.tlb:
            A("s_mov_b64 exec, 1")
            A(f"v_mov_b32 v{vGA}, 0")
            if opt.tlb & 1:
                A(f"global_load_dword v{vGA+1}, v{vGA}, s[{sOUT}:{sOUT+1}] sc1")
                A(f"global_load_dword v{vGA+2}, v{vGA}, s[{sWS}:{sWS+1}] offset:512 sc1")
            if opt.tlb & 2:
                A(f"s_lshl_b32 s{sTMP}, s{sKB0}, 16")
                A(f"v_mov_b32 v{vGA+8}, s{sTMP}")
                A(f"s_cmp_ge_u32 s{sR}, 16")
                A("s_cbranch_scc1 L_tlbM")
                A(f"global_load_dword v{vGA+3}, v{vGA+8}, s[{sWO}:{sWO+1}] nt")
                A(f"s_cmp_eq_u32 s{sROLE}, 2")
                A("s_cbranch_scc1 L_tlbD")
                A(f"s_bitcmp0_b32 s{sBETA}, 1")
                A(f"s_cselect_b64 s[4:5], s[{sWG}:{sWG+1}], s[{sWU}:{sWU+1}]")
                A(f"s_and_b32 s{sTMP}, s{sBETA}, 1")
                A(f"s_mul_i32 s{sTMP}, s{sTMP}, {512*7168}")
                A("s_mov_b64 exec, 7")
                A(f"v_mul_u32_u24 v{vGA+9}, {255*7168}, v0")
                A(f"v_add_u32 v{vGA+9}, s{sTMP}, v{vGA+9}")
                A(f"global_load_dword v{vGA+4}, v{vGA+9}, s[4:5] nt")
                A("s_branch L_tlbD")
                A("L_tlbM:")
                A(f"global_load_dword v{vGA+3}, v{vGA+8}, s[{sWD}:{sWD+1}] nt")
                A(f"s_lshl2_add_u32 s{sTMP}, s{sBB}, s{sG}")
                A(f"s_lshl_b32 s{sTMP}, s{sTMP}, 20")
                A(f"v_mov_b32 v{vGA+9}, s{sTMP}")
                A(f"global_load_dword v{vGA+4}, v{vGA+9}, s[{sV}:{sV+1}] nt")
                A("L_tlbD:")
            A("s_mov_b64 exec, -1")
        A(f"s_cmp_eq_u32 s{sROLE}, 2")
        A("s_cbranch_scc1 L_exit")
        A(f"s_cmp_ge_u32 s{sR}, 16")
        A("s_cbranch_scc1 L_notifM")
        hc_addr()
        wait_prog(False, opt.nprogh - 1, sleep=2)
        wait_prog(False, opt.nprogh)
        if opt.ndelay: A(f"s_sleep {opt.ndelay}")
        bump("h")
        A("s_branch L_exit")
        A("L_notifM:")
        A(f"s_mul_i32 s{sTMP}, s{sG}, {32*CS}")
        ws_addr(sGB, WS_OC, sTMP)
        cwait(F_BP, 8, sleep=2)
        if opt.pdelay: A(f"s_sleep {opt.pdelay}")
        wait_prog(False, opt.nprogo - 1, sleep=2)
        wait_prog(False, opt.nprogo)
        if opt.ndelay + opt.odelay: A(f"s_sleep {opt.ndelay + opt.odelay}")
        bump("q")
        A("s_branch L_exit")

    A("L_poller:")
    if opt.nocomm: A("s_branch L_exit")
    A(f"s_cmp_ge_u32 s{sR}, 16")
    A("s_cbranch_scc1 L_pollM")
    A(f"s_lshl3_add_u32 s{sTMP}, s{sRBK}, s{sCB}")
    A(f"s_and_b32 s{sTMP}, s{sTMP}, {NREP-1}")
    A(f"s_lshl_b32 s{sTMP2}, s{sG}, 5")
    A(f"s_add_u32 s{sTMP}, s{sTMP}, s{sTMP2}")
    A(f"s_mul_i32 s{sTMP}, s{sTMP}, {CS}")
    ws_addr(sGB, WS_OC, sTMP)
    A(f"s_load_dword s4, s[{sGB}:{sGB+1}], 0 glc")
    A(f"s_and_b32 s{sTMP}, s{sRBK}, 3")
    A(f"s_lshl_b32 s{sTMP}, s{sTMP}, 4")
    A(f"s_lshl_b32 s{sTMP2}, s{sG}, 11")
    A(f"s_add_u32 s{sTMP}, s{sTMP}, s{sTMP2}")
    ws_addr(sGA, WS_LSE, sTMP)
    A(f"v_and_b32 v{vTMP3}, 31, v0")
    A(f"v_lshlrev_b32 v{vTMP3}, 6, v{vTMP3}")
    A(f"v_lshrrev_b32 v{vTMP2}, 5, v0")
    A(f"v_lshl_or_b32 v{vTMP3}, v{vTMP2}, 3, v{vTMP3}")
    A("s_waitcnt lgkmcnt(0)")
    A(f"v_lshl_add_u32 v{vWA}, v0, 2, v9")
    A(f"s_cmp_eq_u32 s{sROLE}, 2")
    A(f"s_cselect_b32 s{sTMP2}, {opt.ogatec}, {opt.ogate}")
    A(f"s_add_u32 s5, s4, {0x200020 if opt.lcnt else 32}")
    for k, l in touch:
        if k in "AB": A(f"s_call_b64 s[6:7], {l}")
    wait_prog(True, sTMP2, sleep=2)
    stamp(2)
    if not (opt.dbg & 7):
        A(f"s_mov_b32 s{sCNT}, 0")
        if opt.psleep: A("s_branch L_pl1e")
        A("L_pl1:")
        if opt.psleep:
            A(f"s_sleep {opt.psleep}")
            A("L_pl1e:")
        A(f"s_load_dword s8, s[{sGB}:{sGB+1}], 0 glc")
        A(f"s_add_u32 s{sCNT}, s{sCNT}, 1")
        A(f"s_cmp_gt_u32 s{sCNT}, {opt.maxhint}")
        A("s_waitcnt lgkmcnt(0)")
        A("s_cbranch_scc1 L_pl1d")
        A("s_sub_u32 s9, s8, s4")
        A(f"s_cmp_lt_u32 s9, {0x200000 if opt.lcnt else opt.lthr}")
        A("s_cbranch_scc1 L_pl1")
        A("L_pl1d:")
        stampval(10, sCNT)
    stamp(3)
    A("s_mov_b32 s9, 0")
    A(f"s_mov_b32 s{sTMP3}, 0")
    A("L_lse:")
    if not (opt.dbg & 2): A(f"global_load_dwordx2 v[{vLS}:{vLS+1}], v{vTMP3}, s[{sGA}:{sGA+1}] sc1")
    if not (opt.dbg & 7):
        A("s_cmp_lg_u32 s9, 0")
        A("s_cbranch_scc1 L_lse_wait")
        A("L_pl2:")
        A("s_cmp_eq_u32 s8, s5")
        A("s_cbranch_scc1 L_pl_sig")
        A(f"s_cmp_gt_u32 s{sCNT}, {opt.maxhint}")
        A("s_cbranch_scc1 L_pl_sig")
        A("s_getreg_b32 s10, hwreg(HW_REG_IB_STS, 0, 4)")
        A("s_cmp_eq_u32 s10, 0")
        A("s_cbranch_scc1 L_lse_wait")
        A(f"s_load_dword s8, s[{sGB}:{sGB+1}], 0 glc")
        A(f"s_add_u32 s{sCNT}, s{sCNT}, 1")
        A("s_waitcnt lgkmcnt(0)")
        A("s_branch L_pl2")
        A("L_pl_sig:")
        signal(F_LRDY)
        A("s_mov_b32 s9, 1")
        stamp(5)
    A("L_lse_wait:")
    if not (opt.dbg & 7):
        A(f"s_load_dword s8, s[{sGB}:{sGB+1}], 0 glc")
    A(f"s_add_u32 s{sTMP3}, s{sTMP3}, 1")
    A("s_waitcnt vmcnt(0)")
    A(f"v_cmp_ne_u32 vcc, s{sT}, v{vLS+1}")
    A(f"s_cbranch_vccz L_lsed")
    A(f"s_cmp_le_u32 s{sTMP3}, {0 if (opt.dbg & 7) else opt.maxpoll}")
    A("s_waitcnt lgkmcnt(0)")
    A(f"s_cbranch_scc1 L_lse")
    A("L_lsed:")
    stampval(12, sTMP3)
    A(f"v_max_f32_dpp v{vTMP}, v{vLS}, v{vLS} quad_perm:[1,0,3,2] row_mask:0xf bank_mask:0xf")
    A("s_nop 1")
    A(f"v_max_f32_dpp v{vTMP}, v{vTMP}, v{vTMP} quad_perm:[2,3,0,1] row_mask:0xf bank_mask:0xf")
    A(f"v_sub_f32 v{vLS}, v{vLS}, v{vTMP}")
    A(f"v_exp_f32 v{vLS}, v{vLS}")
    A("s_nop 1")
    A(f"v_add_f32_dpp v{vTMP}, v{vLS}, v{vLS} quad_perm:[1,0,3,2] row_mask:0xf bank_mask:0xf")
    A("s_nop 1")
    A(f"v_add_f32_dpp v{vTMP}, v{vTMP}, v{vTMP} quad_perm:[2,3,0,1] row_mask:0xf bank_mask:0xf")
    A(f"v_rcp_f32 v{vTMP}, v{vTMP}")
    A("s_nop 0")
    A(f"v_mul_f32 v{vLS}, v{vLS}, v{vTMP}")
    A(f"v_mul_f32 v{vLS}, {fbits(2.0**-LO_):#x}, v{vLS}")
    A(f"ds_write_b32 v{vWA}, v{vLS} offset:{F_WT}")
    signal(F_WRDY)
    stamp(4)
    if not (opt.dbg & 7):
        A("s_cmp_lg_u32 s9, 0")
        A("s_cbranch_scc1 L_pl_fin")
        A("s_waitcnt lgkmcnt(0)")
        A("s_cmp_eq_u32 s8, s5")
        A("s_cbranch_scc1 L_pl_sig2")
    pollcnt(sGB, 5, opt.psleep, cntstamp=11)
    A("L_pl_sig2:")
    signal(F_LRDY)
    stamp(5)
    A("L_pl_fin:")
    A("s_barrier")
    A("s_branch L_exit")
    A("L_pollM:")
    A(f"s_lshl2_add_u32 s{sTMP}, s{sBB}, s{sSPL}")
    A(f"s_lshr_b32 s{sTMP}, s{sTMP}, {int(math.log2(32//NREP))}")
    A(f"s_lshl_b32 s{sTMP2}, s{sG}, 5")
    A(f"s_add_u32 s{sTMP}, s{sTMP}, s{sTMP2}")
    A(f"s_mul_i32 s{sTMP}, s{sTMP}, {CS}")
    ws_addr(sGB, WS_QC, sTMP)
    if opt.qhint: A(f"s_load_dword s4, s[{sGB}:{sGB+1}], 0 glc")
    A(f"s_mul_i32 s{sTMP}, s{sRBK}, {HREP}")
    A(f"s_and_b32 s{sTMP2}, s{sCB}, {HREP-1}")
    A(f"s_add_u32 s{sTMP}, s{sTMP}, s{sTMP2}")
    A(f"s_mul_i32 s{sTMP}, s{sTMP}, {CS}")
    ws_addr(sGA, WS_HC, sTMP)
    A(f"s_load_dword s5, s[{sGA}:{sGA+1}], 0 glc")
    if opt.fgate:
        A(f"s_and_b32 s{sTMP}, s{sR}, {opt.frep-1}")
        A(f"s_lshl4_add_u32 s{sTMP}, s{sXCD}, s{sTMP}")
        A(f"s_mul_i32 s{sTMP}, s{sTMP}, {CS}")
        ws_addr(10, WS_FC, sTMP)
        A(f"s_load_dword s6, s[10:11], 0 glc")
    A(f"s_bitcmp1_b32 s{sKB0}, 1")
    A(f"s_cselect_b32 s{sTMP}, 12, 8")
    A("s_waitcnt lgkmcnt(0)")
    if opt.fgate: A("s_add_u32 s6, s6, 32")
    A("s_add_u32 s4, s4, 64")
    A(f"s_add_u32 s5, s5, s{sTMP}")
    if opt.fgate: A("s_mov_b32 s9, s6")
    for k, l in touch:
        if k in "AM": A(f"s_call_b64 s[6:7], {l}")
    if opt.qhint:
        wait_prog(False, opt.qgate, sleep=2)
        stamp(2)
        pollcnt(sGB, 4, opt.psleep, cntstamp=10)
        signal(F_QRDY)
        stamp(3)
    assert not opt.qhint
    if opt.rmap:
        A(f"s_and_b32 s{sTMP}, s{sR}, 1")
        A(f"s_xor_b32 s{sTMP2}, s{sXCD}, s{sTMP}")
        A(f"s_and_b32 s{sTMP}, s{sXCD}, 1")
        A(f"s_lshl1_add_u32 s{sTMP}, s{sTMP2}, s{sTMP}")
    else:
        A(f"s_and_b32 s{sTMP}, s{sR}, 1")
        A(f"s_lshl1_add_u32 s{sTMP}, s{sXCD}, s{sTMP}")
    A(f"s_lshl_b32 s{sTMP}, s{sTMP}, 7")
    ws_addr(sGB, WS_GL, sTMP)
    wait_prog(False, opt.ggate, sleep=2)
    A(f"s_mov_b32 s{sCNT}, 0")
    A("L_gp:")
    A(f"s_load_dwordx8 s[16:23], s[{sGB}:{sGB+1}], 0 glc")
    A(f"s_add_u32 s{sCNT}, s{sCNT}, 1")
    A(f"s_cmp_gt_u32 s{sCNT}, {0 if (opt.dbg & 7) else opt.maxpoll}")
    A("s_waitcnt lgkmcnt(0)")
    A("s_cbranch_scc1 L_gpd")
    for i in range(4):
        A(f"s_cmp_eq_u32 s{17+2*i}, s{sT}")
        A("s_cbranch_scc0 L_gp")
    A("L_gpd:")
    for i in range(4): A(f"v_mov_b32 v{vGA+i}, s{16+2*i}")
    A("s_mov_b64 exec, 1")
    A(f"ds_write_b128 v9, v[{vGA}:{vGA+3}] offset:{F_G}")
    signal(F_QRDY)
    stamp(3)
    wait_prog(False, opt.hgate, sleep=2)
    stamp(4)
    pollcnt(sGA, 5, opt.psleep, cntstamp=11)
    signal(F_LRDY)
    stamp(5)
    A("s_barrier")
    if opt.fgate:
        stamp(6)
        pollcnt(10, 9, 0, cntstamp=12)
        if opt.fbar: A("s_barrier")
        else: signal(F_FRDY)
        stamp(7)

    A("L_exit:")
    if STAMP:
        A("s_waitcnt lgkmcnt(0)")
        A(f"s_mul_i32 s{sTMP}, s2, {NWAVES}")
        A(f"s_add_u32 s{sTMP}, s{sTMP}, s3")
        A(f"s_lshl_b32 s{sTMP}, s{sTMP}, 6")
        A(f"s_add_u32 s{sTMP}, s{sTMP}, {WS_STAMP}")
        A(f"v_mov_b32 v1, s{sTMP}")
        A("s_mov_b64 exec, 1")
        for i in range(NST if STAMP == 1 else 10):
            A(f"v_mov_b32 v2, s{sST+2*i}")
            A(f"global_store_dword v1, v2, s[{sWS}:{sWS+1}] offset:{4*i}")
        A(f"v_mov_b32 v2, s{sROLE}")
        A(f"global_store_dword v1, v2, s[{sWS}:{sWS+1}] offset:60")
    A("L_end:")
    A("s_endpgm")

    body = "\n".join(g.o)
    PADTXT = f".p2align 12\n.fill {opt.pad//4}, 4, 0xbf810000\n" if opt.pad >= 0 else ""
    txt = HEADER
    txt += f"; @launch grid=(256,1,1) block=({64*NWAVES},1,1) lds={LDS_BYTES}\n"
    txt += f""".amdgcn_target "amdgcn-amd-amdhsa--gfx950"
.text
.globl {KNAME}
{PADTXT}.p2align 8
.type {KNAME},@function
{KNAME}:
{body}
.section .rodata,"a"
.p2align 6
.amdhsa_kernel {KNAME}
  .amdhsa_next_free_vgpr {NV}
  .amdhsa_next_free_sgpr 102
  .amdhsa_accum_offset {NV}
  .amdhsa_group_segment_fixed_size 0
  .amdhsa_kernarg_size 104
  .amdhsa_user_sgpr_count 2
  .amdhsa_user_sgpr_kernarg_segment_ptr 1
  .amdhsa_system_sgpr_workgroup_id_x 1
.end_amdhsa_kernel
"""
    return txt

def parse(argv):
    ap = argparse.ArgumentParser()
    ap.add_argument("--nt", default="nt")
    ap.add_argument("--pb", default="20:24,8:22")
    ap.add_argument("--pc", default="4:20,d,3:4,5:12")
    ap.add_argument("--pm", default="20:24,7:20")
    ap.add_argument("--nb0", type=int, default=3)
    ap.add_argument("--stamp", type=int, default=0)
    ap.add_argument("--stq", type=int, default=0)
    ap.add_argument("--fdelay", type=int, default=0)
    ap.add_argument("--qgate", type=int, default=9)
    ap.add_argument("--ogate", type=int, default=19)
    ap.add_argument("--ogatec", type=int, default=26)
    ap.add_argument("--hgate", type=int, default=19)
    ap.add_argument("--ggate", type=int, default=13)
    ap.add_argument("--maxpoll", type=int, default=100000)
    ap.add_argument("--psleep", type=int, default=0)
    ap.add_argument("--fsleep", type=int, default=2)
    ap.add_argument("--gsleep", type=int, default=0)
    ap.add_argument("--fgsleep", type=int, default=0)
    ap.add_argument("--sample", type=int, default=0)
    ap.add_argument("--outflags", default="sc1")
    ap.add_argument("--fixdur", type=int, default=0)
    ap.add_argument("--fixwg", type=int, default=128)
    ap.add_argument("--nocomm", type=int, default=0)
    ap.add_argument("--dbg", type=int, default=0)
    ap.add_argument("--cpf", type=int, default=2)
    ap.add_argument("--qlead", type=int, default=-1)
    ap.add_argument("--hlead", type=int, default=-1)
    ap.add_argument("--olead", type=int, default=-1)
    ap.add_argument("--oearly", type=int, default=0)
    ap.add_argument("--flagwave", type=int, default=1)
    ap.add_argument("--xgat", type=int, default=10)
    ap.add_argument("--nrep", type=int, default=8)
    ap.add_argument("--satom", type=int, default=1)
    ap.add_argument("--maxhint", type=int, default=20)
    ap.add_argument("--hround", type=int, default=0)
    ap.add_argument("--fgate", type=int, default=0)
    ap.add_argument("--frep", type=int, default=8)
    ap.add_argument("--flag_delay", type=int, default=1)
    ap.add_argument("--qhint", type=int, default=0)
    ap.add_argument("--qsleep", type=int, default=4)
    ap.add_argument("--lcnt", type=int, default=0)
    ap.add_argument("--lthr", type=int, default=16)
    ap.add_argument("--spec", type=int, default=0)
    ap.add_argument("--ackst", type=int, default=0)
    ap.add_argument("--cstride", type=int, default=640)
    ap.add_argument("--midahead", type=int, default=1)
    ap.add_argument("--fine", type=int, default=0)
    ap.add_argument("--pad", type=lambda x: int(x, 0), default=0xd00)
    ap.add_argument("--touch", type=int, default=0)
    ap.add_argument("--sbias", type=int, default=0)
    ap.add_argument("--period", type=int, default=0)
    ap.add_argument("--toff", type=int, default=650)
    ap.add_argument("--qsync", type=int, default=0)
    ap.add_argument("--lprio", type=int, default=3)
    ap.add_argument("--cprio", type=int, default=0)
    ap.add_argument("--gprio", type=int, default=0)
    ap.add_argument("--kvmode", default="tr1")
    ap.add_argument("--kvrot", type=int, default=9)
    ap.add_argument("--rotw", type=int, default=1)
    ap.add_argument("--lrot", type=int, default=3)
    ap.add_argument("--lflow", type=int, default=2)
    ap.add_argument("--wmin", type=int, default=27)
    ap.add_argument("--notif", type=int, default=1)
    ap.add_argument("--ndelay", type=int, default=0)
    ap.add_argument("--odelay", type=int, default=0)
    ap.add_argument("--pdelay", type=int, default=6)
    ap.add_argument("--nprogh", type=int, default=20)
    ap.add_argument("--nprogo", type=int, default=20)
    ap.add_argument("--gran", type=int, default=2)
    ap.add_argument("--barpos", type=int, default=1)
    ap.add_argument("--fsat", type=int, default=1)
    ap.add_argument("--gok", type=int, default=7)
    ap.add_argument("--fbar", type=int, default=1)
    ap.add_argument("--specw", type=int, default=1)
    ap.add_argument("--fearly", type=int, default=0)
    ap.add_argument("--tlb", type=int, default=0)
    ap.add_argument("--cpfc", type=int, default=1)
    ap.add_argument("--stlb", type=int, default=7)
    ap.add_argument("--vtouch", type=int, default=0)
    ap.add_argument("--probe", type=int, default=-1)
    ap.add_argument("--pol", default="nnnnnn")
    ap.add_argument("--probe0", type=int, default=-1)
    ap.add_argument("--lprobe", type=int, default=0)
    ap.add_argument("--amp", type=int, default=4)
    ap.add_argument("--tbar", type=int, default=1)
    ap.add_argument("--vden", type=int, default=1)
    ap.add_argument("--tsleep", type=int, default=0)
    ap.add_argument("--qrot", type=int, default=1)
    ap.add_argument("--rmap", type=int, default=0)
    ap.add_argument("--x4dbg", type=int, default=0)
    ap.add_argument("--noretry", type=int, default=0)
    ap.add_argument("--womap", type=int, default=1)
    ap.add_argument("--kvib", default="670123")
    ap.add_argument("--kvsb", default="45")
    ap.add_argument("--kvrots", type=int, default=21)
    ap.add_argument("-o", default=None)
    return ap.parse_args(argv)

if __name__ == "__main__":
    opt = parse(sys.argv[1:])
    t = gen(opt)
    if opt.o: open(opt.o, "w").write(t)
    else: print(t)
```

```python
import sys, argparse, struct, math

KNAME = "gated_mix__sliding_block_cached__glu_gated_reglu__decode_kernel"
HEADER = open("gated_mix__sliding_block_cached__glu_gated_reglu__decode.s.ref").read().split("; Override launch")[0]

RA = 0
RB = 65536
XA = 131072
RQ = RB + 32768
XF = XA
QF = XA + 2048
PF = XA + 4096
RS = XA + 8192
ST = XA + 10240
AF = XA + 12288
FL = XA + 16384
F_PROG, F_LRDY, F_QRDY, F_WRDY, F_BQ, F_BM, F_BP, F_BA, F_RED, F_PUB0, F_PUB1, F_FREE0, F_FREE1, F_ERD, F_FRDY = [4*i for i in range(15)]
F_MAX = 64
F_G = 96
F_WT = 128
LDS_BYTES = FL + 128 + 256

WS_QP = 512 << 10
WS_FP = 1024 << 10
WS_OP = 1536 << 10
WS_GP = 1792 << 10
WS_LSE = 16 << 10
WS_GL = 32 << 10
WS_QC = 64 << 10
WS_OC = 160 << 10
WS_HC = 256 << 10
WS_FC = 352 << 10
WS_STAMP = 8 << 20

class G:
    def __init__(self):
        self.o = []; self.nlab = 0
    def A(self, s):
        for line in s.split("\n"):
            self.o.append("    " + line.strip() if not line.strip().endswith(":") else line.strip())
    def C(self, s):
        for line in s.strip("\n").split("\n"): self.o.append("    ; " + line)
    def lab(self, p="L"):
        self.nlab += 1
        return f"{p}_{self.nlab}"

def plan(s):
    out = []
    for t in s.split(","):
        if t == "d": out.append("d")
        else:
            a, b = t.split(":")
            if "|" in b: out.append((int(a), [int(x) for x in b.split("|")]))
            else: out.append((int(a), tuple(int(x) for x in b.split("/")) if "/" in b else int(b)))
    return out

def gen(opt):
    g = G(); A = g.A; C = g.C
    CS = opt.cstride
    KIB = [int(x) for x in opt.kvib]; KSB = [int(x) for x in opt.kvsb]
    assert KIB[4] == KIB[3] + 1 and KIB[5] == KIB[3] + 2 and KSB[1] == KSB[0] + 1 and sorted(KIB + KSB) == list(range(8))
    NWAVES = 11 if opt.notif else 10
    POL = {k: ('nt' if c == 'n' else '') for k, c in zip(('q','k','v','g','o','d'), opt.pol)}
    cur = ['q']
    STAMP = opt.stamp
    sX, sK, sV, sWQ, sWO, sBX, sWG, sWU = [16+2*i for i in range(8)]
    sWD, sGW, sOUT, sDBG = 32, 34, 36, 38
    sWS = 40
    sXCD, sR, sROLE = 42, 43, 44
    sU, sBETA, sG, sSPL, sRBK, sCB, sBB = 45, 46, 47, 48, 49, 50, 51
    sKS, sKB0 = 100, 101
    sLR = 53
    sWDN = 52
    sT = 54
    sT0, sT1, sT2, sT3 = 54, 56, 57, 53
    sSEL0, sSEL1, sSEL2, sSEL3 = 58, 59, 60, 61
    sPROG, sC = 62, 63
    sTMP, sTMP2, sTMP3, sCNT = 64, 65, 66, 67
    sGA, sGB = 68, 70
    sROT = 15
    sSM = 4
    sST = 72
    NST = 14
    SRD = 8
    def stamp(idx, key=False):
        if opt.probe == idx and not key: A("s_memrealtime s[96:97]")
        if opt.probe0 == idx and not key: A("s_memrealtime s[94:95]")
        if STAMP == 1 or (STAMP and (key or idx == 0)): A(f"s_memrealtime s[{sST+2*idx}:{sST+2*idx+1}]")
    touch = []
    def pad(kind):
        if not opt.touch: return
        l = g.lab("L_tp"); touch.append((kind, l))
        A(f"{l}:")
        A("s_setpc_b64 s[6:7]")
    def stampval(idx, sreg):
        if STAMP == 1: A(f"s_mov_b32 s{sST+2*idx}, s{sreg}")
    pb, pc, pm = plan(opt.pb), plan(opt.pc), plan(opt.pm)
    NB0 = opt.nb0
    assert NB0 <= 3

    C('entry: kernel arguments, workgroup role (x = id & 7, r = id >> 3), wave id')
    stamp(0)
    if opt.fixdur: A("s_memrealtime s[98:99]")
    A("s_load_dwordx16 s[16:31], s[0:1], 0")
    A("s_load_dwordx8 s[32:39], s[0:1], 64")
    A("s_load_dwordx2 s[40:41], s[0:1], 96")
    A(f"s_cmp_ge_u32 s2, 256")
    A("s_cbranch_scc1 L_end")
    A("v_lshrrev_b32 v1, 6, v0")
    A("v_and_b32 v0, 63, v0")
    A("v_readfirstlane_b32 s3, v1")
    A(f"s_and_b32 s{sXCD}, s2, 7")
    A(f"s_lshr_b32 s{sR}, s2, 3")
    A(f"s_lshr_b32 s{sG}, s{sXCD}, 1")
    A(f"s_and_b32 s{sTMP3}, s{sXCD}, 1")
    A(f"s_add_u32 s{sROT}, s{sR}, s{2 if opt.rotw else sXCD}")
    A(f"s_lshl_b32 s{sTMP}, s{sXCD}, 1")
    A(f"s_sub_u32 s{sTMP}, s{sR}, s{sTMP}")
    A(f"s_sub_u32 s{sTMP}, s{sTMP}, 4")
    A(f"s_bfe_u32 s{sTMP2}, s{sTMP}, 0x20002")
    A(f"s_and_b32 s{sTMP}, s{sTMP}, 3")
    A(f"s_lshl2_add_u32 s{sU}, s{sTMP}, s{sTMP2}")
    A(f"s_cmp_ge_u32 s{sR}, 16")
    A(f"s_cselect_b32 s{sU}, s{sR}, s{sU}")
    A(f"s_lshr_b32 s{sTMP}, s{sU}, 3")
    A(f"s_lshl2_add_u32 s{sKS}, s{sTMP3}, s{sTMP}")
    A("s_cmp_lg_u32 s3, 0")
    A("s_cbranch_scc1 L_notloader")
    C('wave 0 = loader: clears the LDS flags and starts the LDS-DMA stream with the wq tile')
    sSOFF, sSTEP, sNB, sBLK = 4, 5, 6, 7
    sIDX, sWRAP, sBASE = 12, 13, 14
    sNOW, sDL = 56, 58
    TIMED = "/" in (opt.pb + opt.pm + opt.pc)
    if TIMED: A(f"s_memrealtime s[{sNOW}:{sNOW+1}]")
    A(f"s_setprio {opt.lprio}")
    A(f"v_mov_b32 v9, {FL}")
    A("v_mov_b32 v10, 0xff7fffff")
    A("v_cmp_gt_u32 vcc, 16, v0")
    A("v_lshl_add_u32 v11, v0, 2, v9")
    A("v_lshrrev_b32 v2, 4, v0")
    A("v_cndmask_b32 v10, v10, 0, vcc")
    A("ds_write_b32 v11, v10")
    A("v_bfe_u32 v3, v0, 1, 3")
    A("v_xor_b32 v3, v3, v2")
    A("v_lshlrev_b32 v3, 5, v3")
    A("v_and_b32 v4, 1, v0")
    A("v_lshl_or_b32 v3, v4, 4, v3")
    A("v_xor_b32 v4, 0x80, v3")
    A("v_lshl_add_u32 v5, v2, 13, v3")
    A("v_lshl_add_u32 v6, v2, 13, v4")
    A(f"s_mov_b32 s{SRD+3}, 0x20000")
    A(f"s_and_b32 s{sTMP}, s{sU}, 7")
    A(f"s_lshl3_add_u32 s{sTMP}, s{sG}, s{sTMP}")
    A(f"s_lshl_b32 s{sTMP}, s{sTMP}, 8")
    A(f"s_lshl_b32 s{sSOFF}, s{sKS}, 20")
    A(f"s_add_u32 s{sSOFF}, s{sSOFF}, s{sTMP}")
    A(f"s_mov_b32 s{SRD+2}, {1024*4096*2}")
    A(f"s_mov_b32 s{sNB}, {NB0}")
    A(f"s_mov_b32 s{sSTEP}, {4*8192}")
    if opt.qrot:
        A(f"s_mov_b32 s{sBASE}, s{sSOFF}")
        A(f"s_and_b32 s{sTMP}, s{sROT}, 7")
        A(f"s_lshl_b32 s{sTMP2}, s{sTMP}, 17")
        A(f"s_add_u32 s{sSOFF}, s{sSOFF}, s{sTMP2}")
        A(f"s_lshl_b32 s{sTMP}, s{sTMP}, 12")
        A(f"s_add_u32 m0, s{sTMP}, {RQ}")
    else:
        A(f"s_mov_b32 m0, {RQ}")
    A(f"s_mov_b32 s{sBLK}, {NB0}")
    if opt.fine == 2: stamp(5)
    A("s_waitcnt lgkmcnt(0)")
    if opt.fine == 2: stamp(6)
    A(f"s_mov_b64 s[{SRD}:{SRD+1}], s[{sWQ}:{sWQ+1}]")
    if TIMED: A(f"s_mov_b32 s{sDL}, s{sNOW}")
    if opt.barpos == 0: A("s_barrier")
    if opt.fine == 2: stamp(7)
    def blk_body(win, rot):
        GR = opt.gran
        if win is not None:
            assert win % GR == 0
            pj = win % 8
            back = (win - pj) // 8
        for j in range(8):
            half, i = j >> 2, j & 3
            if win is not None and j % GR == 0:
                if j == pj:
                    A(f"s_sub_u32 s{sTMP}, s{sBLK}, {back}")
                    A(f"s_max_i32 s{sPROG}, s{sTMP}, s{sPROG}")
                    A(f"v_mov_b32 v10, s{sPROG}")
                A(f"s_waitcnt vmcnt({win})")
                if j == pj: A(f"ds_write_b32 v9, v10 offset:{F_PROG}")
            v = 5 if ((i >> 1) & 1) == 0 else 6
            if rot == "kv" and opt.kvmode == "row":
                if j == 0: A(f"s_xor_b32 s{sWRAP}, s{sBASE}, s{sIDX}")
                cj = sum(((j >> k) & 1) << (KIB[k] + 10) for k in range(3))
                A(f"s_xor_b32 s{sSOFF}, s{sWRAP}, {cj}")
            A(f"buffer_load_dwordx4 v{v}, s[{SRD}:{SRD+3}], s{sSOFF} offen {POL[cur[0]]} lds")
            A(f"s_add_u32 m0, m0, 1024")
            if rot == "kv" and opt.kvmode == "row":
                if j == 7: A(f"s_add_u32 s{sIDX}, s{sIDX}, {1 << (KIB[3] + 10)}")
            elif rot == "kv":
                st = {"lin": 1024, "tr1": 8192 + (1024 if (half, i) == (1, 3) else 0),
                      "tr2": (1024 if i % 2 == 0 else 15360) + (2048 if (half, i) == (1, 3) else 0)}[opt.kvmode]
                A(f"s_add_u32 s{sIDX}, s{sIDX}, {st}")
                A(f"s_pack_lh_b32_b16 s{sSOFF}, s{sIDX}, s{sSOFF}")
            else:
                A(f"s_add_u32 s{sSOFF}, s{sSOFF}, s{sSTEP}")
            if rot == "q" and i == 3:
                A(f"s_cmp_eq_u32 m0, {RQ + 32768}")
                A(f"s_cselect_b32 m0, {RQ}, m0")
                A(f"s_cselect_b32 s{sSOFF}, s{sBASE}, s{sSOFF}")
        if rot == 7:
            A(f"s_add_u32 s{sIDX}, s{sIDX}, 1")
            A(f"s_cmp_eq_u32 s{sIDX}, 7")
            A(f"s_cselect_b32 s{sTMP}, {7*65536}, 0")
            A(f"s_sub_u32 s{sSOFF}, s{sSOFF}, s{sTMP}")
        if rot is True:
            A(f"s_add_u32 s{sIDX}, s{sIDX}, 1")
            A(f"s_and_b32 s{sIDX}, s{sIDX}, 7")
            A(f"s_cselect_b32 s{sTMP}, 0, s{sWRAP}")
            A(f"s_sub_u32 s{sSOFF}, s{sSOFF}, s{sTMP}")
    if opt.barpos == 1:
        blk_body(None, "q" if opt.qrot else False)
        A("s_barrier")
        A(f"s_mov_b32 s{sNB}, {NB0-1}")
    A("L_top_loop:")
    blk_body(None, "q" if opt.qrot else False)
    A(f"s_sub_u32 s{sNB}, s{sNB}, 1")
    A(f"s_cmp_lg_u32 s{sNB}, 0")
    A("s_cbranch_scc1 L_top_loop")
    if opt.barpos == 2: A("s_barrier")
    A("s_branch L_loader2")
    C('other waves: one workgroup per x pulls the code into L2, then everybody meets the loader')
    A("L_notloader:")
    if opt.stlb:
        A("s_cmp_eq_u32 s3, 10")
        A("s_cbranch_scc1 L_loader2")
    if opt.cpf:
        A(f"s_cmp_gt_u32 s3, {opt.cpf}")
        A("s_cbranch_scc1 L_cpf_done")
        if opt.cpfc:
            A(f"s_cmp_lg_u32 s{sR}, 14")
            A("s_cbranch_scc1 L_cpf_done")
        A("s_getpc_b64 s[4:5]")
        A("L_pc:")
        A(f"s_lshl_b32 s{sTMP}, s3, 13")
        A(f"s_sub_u32 s{sTMP}, s{sTMP}, 8192")
        A(f"v_lshl_add_u32 v1, v0, 7, s{sTMP}")
        A(f"v_cmp_gt_u32 vcc, L_end-L_pc, v1")
        A("s_and_saveexec_b64 s[6:7], vcc")
        A("s_cbranch_execz L_cpf_done2")
        A(f"global_load_dword v127, v1, s[4:5]")
        A("L_cpf_done2:")
        A("s_mov_b64 exec, -1")
        A("L_cpf_done:")
    A("s_barrier")
    A("s_branch L_cons")

    def decode2(keep=False):
        d = g.lab("L_d2"); m = g.lab("L_d2m")
        if STAMP:
            for i in range(1, NST):
                if not (opt.fine == 2 and keep and i in (5, 6, 7)): A(f"s_mov_b32 s{sST+2*i}, 0")
        A(f"s_mul_i32 s{sBETA}, s{sXCD}, 14")
        A(f"s_add_u32 s{sBETA}, s{sBETA}, s{sR}")
        A(f"s_mov_b32 s{sPROG}, 0")
        A(f"s_cmp_ge_u32 s{sR}, 16")
        A(f"s_cbranch_scc1 {m}")
        A(f"s_cmp_ge_u32 s{sR}, 14")
        A(f"s_cselect_b32 s{sROLE}, 2, 1")
        if opt.womap:
            A(f"s_sub_u32 s{sTMP}, s{sXCD}, 3")
            A(f"s_cmp_lt_u32 s{sTMP}, 2")
            A(f"s_cselect_b32 s{sTMP}, 2, 0")
            A(f"s_sub_u32 s{sTMP}, s{sR}, s{sTMP}")
            A(f"s_bfe_u32 s{sCB}, s{sTMP}, 0x10001")
            A(f"s_lshl1_add_u32 s{sRBK}, s{sXCD}, s{sCB}")
            A(f"s_and_b32 s{sCB}, s{sTMP}, 1")
            A(f"s_add_u32 s{sTMP}, s{sTMP}, 8")
            A(f"s_bfe_u32 s{sTMP}, s{sTMP}, 0x20002")
            A(f"s_lshl2_add_u32 s{sCB}, s{sCB}, s{sTMP}")
        else:
            A(f"s_lshr_b32 s{sTMP}, s{sU}, 3")
            A(f"s_lshl1_add_u32 s{sRBK}, s{sXCD}, s{sTMP}")
            A(f"s_add_u32 s{sTMP}, s{sU}, 3")
            A(f"s_and_b32 s{sTMP}, s{sTMP}, 3")
            A(f"s_and_b32 s{sCB}, s{sU}, 4")
            A(f"s_or_b32 s{sCB}, s{sCB}, s{sTMP}")
        A(f"s_lshl_b32 s{sKB0}, s{sRBK}, 3")
        A(f"s_add_u32 s{sLR}, s{sR}, s{sXCD}")
        A(f"s_and_b32 s{sLR}, s{sLR}, {7 if opt.lrot & 1 else 0}")
        A(f"s_branch {d}")
        A(f"{m}:")
        A(f"s_mov_b32 s{sROLE}, 0")
        A(f"s_and_b32 s{sTMP}, s{sXCD}, 1")
        A(f"s_bfe_u32 s{sBB}, s{sR}, 0x20002")
        A(f"s_lshl2_add_u32 s{sBB}, s{sTMP}, s{sBB}")
        A(f"s_and_b32 s{sSPL}, s{sR}, 3")
        A(f"s_bfe_u32 s{sTMP}, s{sR}, 0x10003")
        A(f"s_lshl1_add_u32 s{sRBK}, s{sXCD}, s{sTMP}")
        A(f"s_mul_i32 s{sKB0}, s{sRBK}, 7")
        A(f"s_and_b32 s{sLR}, s{sR}, {7 if opt.lrot & 2 else 0}")
        A(f"s_cmp_eq_u32 s{sLR}, 7")
        A(f"s_cselect_b32 s{sLR}, 3, s{sLR}")
        A(f"s_add_u32 s{sCB}, s{sR}, 1")
        A(f"s_and_b32 s{sCB}, s{sCB}, 7")
        A(f"{d}:")

    C('loader continuation (wave 10 shares the role decode)')
    A("L_loader2:")
    decode2(True)
    if opt.stlb:
        A("s_cmp_eq_u32 s3, 0")
        A("s_cbranch_scc1 L_loader3")
        A(f"v_mov_b32 v9, {FL}")
        if STAMP:
            for i in (5, 6, 7): A(f"s_mov_b32 s{sST+2*i}, 0")
        if opt.tbar: A("s_barrier")
        if opt.tsleep: A(f"s_sleep {opt.tsleep}")
        A("s_waitcnt lgkmcnt(0)")
        if opt.stlb & 4:
            A(f"s_lshl_b32 s{sTMP}, s2, 6")
            A(f"s_load_dword s8, s[{sX}:{sX+1}], s{sTMP}")
            A(f"s_lshl_b32 s{sTMP}, s{sR}, 6")
            A(f"s_load_dword s9, s[{sGW}:{sGW+1}], s{sTMP}")
        A(f"s_lshl_b32 s{sTMP}, s{sKB0}, 16")
        A(f"s_lshl_b32 s{sTMP2}, s{sCB}, 8")
        A(f"s_add_u32 s{sTMP}, s{sTMP}, s{sTMP2}")
        A(f"s_cmp_ge_u32 s{sR}, 16")
        A("s_cbranch_scc1 L_stM")
        A(f"s_load_dword s4, s[{sWO}:{sWO+1}], s{sTMP}")
        if opt.stlb & 2:
            A(f"s_cmp_eq_u32 s{sROLE}, 2")
            A("s_cbranch_scc1 L_stD")
            A(f"s_bitcmp0_b32 s{sBETA}, 1")
            A(f"s_cselect_b64 s[12:13], s[{sWG}:{sWG+1}], s[{sWU}:{sWU+1}]")
            A(f"s_and_b32 s{sTMP}, s{sBETA}, 1")
            A(f"s_mul_i32 s{sTMP}, s{sTMP}, {512*7168}")
            A(f"s_lshr_b32 s{sTMP2}, s{sBETA}, 2")
            A(f"s_lshl_b32 s{sTMP2}, s{sTMP2}, 8")
            A(f"s_add_u32 s{sTMP}, s{sTMP}, s{sTMP2}")
            for i in range(3):
                A(f"s_load_dword s{5+i}, s[12:13], s{sTMP}")
                A(f"s_add_u32 s{sTMP}, s{sTMP}, {255*7168}")
        A("s_branch L_stD")
        A("L_stM:")
        A(f"s_lshl2_add_u32 s{sTMP2}, s{sBB}, s{sG}")
        A(f"s_lshl4_add_u32 s{sTMP2}, s{sTMP2}, s{sSPL}")
        A(f"s_add_u32 s{sTMP2}, s{sTMP2}, 12")
        A(f"s_lshl_b32 s{sTMP2}, s{sTMP2}, 16")
        A(f"s_load_dword s7, s[{sK}:{sK+1}], s{sTMP2}")
        for i in range(opt.vden):
            A(f"s_load_dword s5, s[{sV}:{sV+1}], s{sTMP2}")
            if i < opt.vden - 1: A(f"s_add_u32 s{sTMP2}, s{sTMP2}, {65536//opt.vden}")
        A(f"s_load_dword s4, s[{sWD}:{sWD+1}], s{sTMP}")
        A(f"s_add_u32 s{sTMP}, s{sTMP}, {223*2048}")
        A(f"s_load_dword s10, s[{sWD}:{sWD+1}], s{sTMP}")
        A(f"s_lshl_b32 s{sTMP}, s{sR}, 9")
        A(f"s_lshl_b32 s{sTMP2}, s{sXCD}, 6")
        A(f"s_add_u32 s{sTMP}, s{sTMP}, s{sTMP2}")
        A(f"s_load_dword s6, s[{sOUT}:{sOUT+1}], s{sTMP} glc")
        A("L_stD:")
        pass
        if not opt.tbar: A("s_barrier")
        A("s_waitcnt lgkmcnt(0)")
        A("s_branch L_notif")
        A("L_loader3:")
    stamp(1)
    def lds_wait_ge(off, val, vtmp="v11", vaddr="v9", sleep=0):
        l = g.lab("L_w")
        A(f"{l}:")
        if sleep: A(f"s_sleep {sleep}")
        A(f"ds_read_b32 {vtmp}, {vaddr} offset:{off}")
        A("s_waitcnt lgkmcnt(0)")
        A(f"v_readfirstlane_b32 s{sTMP}, {vtmp}")
        A(f"s_cmp_ge_u32 s{sTMP}, {val}")
        A(f"s_cbranch_scc0 {l}")
    def wmax(w): return max(w) if isinstance(w, (tuple, list)) else w
    def blk_loop(nblk, win, rot):
        l = g.lab("L_ld")
        if nblk > 1:
            A(f"s_mov_b32 s{sNB}, {nblk}")
            A(f"{l}:")
        if isinstance(win, tuple):
            hi = g.lab("L_hi"); j = g.lab("L_jn")
            A(f"s_memrealtime s[{sNOW}:{sNOW+1}]")
            A(f"s_mul_i32 s{sTMP2}, s{sBLK}, {opt.period}")
            A(f"s_add_u32 s{sTMP2}, s{sTMP2}, {opt.toff}")
            A("s_waitcnt lgkmcnt(0)")
            A(f"s_sub_u32 s{sTMP}, s{sNOW}, s{sDL}")
            A(f"s_cmp_gt_u32 s{sTMP}, s{sTMP2}")
            A(f"s_cbranch_scc1 {hi}")
            for k in range(3, win[0]//8, -1):
                A(f"s_sub_u32 s{sTMP}, s{sBLK}, {k}")
                A(f"s_max_i32 s{sPROG}, s{sTMP}, s{sPROG}")
                A(f"v_mov_b32 v10, s{sPROG}")
                A(f"s_waitcnt vmcnt({8*k})")
                A(f"ds_write_b32 v9, v10 offset:{F_PROG}")
            blk_body(win[0], False)
            A(f"s_branch {j}")
            A(f"{hi}:")
            blk_body(win[1], False)
            A(f"{j}:")
            assert not rot
        else:
            blk_body(win, rot)
        A(f"s_add_u32 s{sBLK}, s{sBLK}, 1")
        if nblk > 1:
            A(f"s_sub_u32 s{sNB}, s{sNB}, 1")
            A(f"s_cmp_lg_u32 s{sNB}, 0")
            A(f"s_cbranch_scc1 {l}")
    def drain(maxwin, kmin=0):
        for k in range((maxwin + 4 + 7)//8 - 1, kmin - 1, -1):
            A(f"s_sub_u32 s{sTMP}, s{sBLK}, {k}")
            A(f"s_max_i32 s{sPROG}, s{sTMP}, s{sPROG}")
            A(f"v_mov_b32 v10, s{sPROG}")
            A(f"s_waitcnt vmcnt({8*k})")
            A(f"ds_write_b32 v9, v10 offset:{F_PROG}")
    def set_stride(stride):
        A(f"s_mov_b32 s{sSTEP}, {4*stride}")
        if stride & (stride-1) == 0:
            sh = stride.bit_length()-1
            A(f"v_lshl_add_u32 v5, v2, {sh}, v3")
            A(f"v_lshl_add_u32 v6, v2, {sh}, v4")
        else:
            A(f"v_mul_u32_u24 v8, {stride}, v2")
            A("v_add_u32 v5, v8, v3")
            A("v_add_u32 v6, v8, v4")
        A(f"s_mov_b32 s{sWRAP}, {256*stride}")
    XSRD = 68
    def xloads(n, ldsbase):
        for j in range(4):
            A(f"s_add_u32 s{sTMP}, s{sROT}, {2*j}")
            A(f"s_and_b32 s{sTMP}, s{sTMP}, 7")
            A(f"s_lshl_b32 s{sTMP}, s{sTMP}, 6")
            A(f"s_add_u32 s{sTMP}, s{sTMP}, s{sTMP3}")
            for q in range(n//4):
                A(f"s_mov_b32 m0, {ldsbase + 4096*q + 1024*j - 512*q}")
                A("s_nop 0")
                A(f"buffer_load_dwordx4 v7, s[{XSRD}:{XSRD+3}], s{sTMP} offen offset:{512*q} lds")
    def run_plan(pl, segs, start, hook=None):
        blk = 0; lastwin = 0
        segmap = {x[0]: x for x in segs}
        cur[0] = 'q'
        rot = 'q' if opt.qrot else False
        items = []
        for it in pl:
            if it == "d": items.append(it); continue
            n, w = it
            while n:
                c = min(n, 4 - blk if blk < 4 else 8 - ((blk - 4) % 8))
                if blk < start: c = min(c, start - blk)
                if hook and blk < hook[0]: c = min(c, hook[0] - blk)
                if blk >= start: items.append((blk, c, w))
                blk += c; n -= c
            lastw = w
        lastwin = pl[0][1]
        for it in items:
            if it == "d":
                drain(max(wmax(lastwin), 8*start)); continue
            b0, c, w = it
            if b0 >= 4 and (b0 - 4) % 8 == 0:
                seg = (b0 - 4) // 8 + 1
                stamp(1 + seg)
                if seg >= 2: lds_wait_ge(F_FREE0 + 4*(seg-2), 8)
                if b0 in segmap:
                    segmap[b0][1](); rot = segmap[b0][2]
                elif rot:
                    A(f"s_add_u32 s{sSOFF}, s{sSOFF}, s{sWRAP}")
                A(f"s_mov_b32 m0, {RA if seg % 2 == 1 else RB}")
            if hook and b0 == hook[0]: hook[1]()
            if isinstance(w, list):
                hi = g.lab("L_ch"); j = g.lab("L_cj")
                if b0 >= 20:
                    A(f"s_bfe_u32 s{sTMP}, s{sBETA}, 0x20002")
                else:
                    A(f"s_and_b32 s{sTMP}, s{sCB}, 3")
                A(f"s_cmp_eq_u32 s{sTMP}, 1")
                A(f"s_cbranch_scc1 {hi}")
                blk_loop(c, w[0], rot)
                A(f"s_branch {j}")
                A(f"{hi}:")
                blk_loop(c, w[1], rot)
                A(f"{j}:")
            else:
                blk_loop(c, w, rot)
            lastwin = w
        stamp(8)
        if opt.fgate:
            A(f"s_mul_i32 s{sTMP}, s{sCB}, {16*CS}")
            A(f"s_add_u32 s{sTMP}, s{sTMP}, {WS_FC}")
            A(f"s_add_u32 s4, s{sWS}, s{sTMP}")
            A(f"s_addc_u32 s5, s{sWS+1}, 0")
            A(f"v_mul_u32_u24 v5, {CS}, v0")
            A("v_mov_b32 v6, 1")
        drain(max(wmax(x[1]) for x in pl if x != "d"), 1 if opt.fearly else 0)
        if not opt.fearly: stamp(9)
        A("s_branch L_ld_end")
    def late_seg(ptr, nbytes):
        def f():
            cur[0] = 'o' if ptr == sWO else 'd'
            set_stride(2048)
            A(f"s_mov_b64 s[{SRD}:{SRD+1}], s[{ptr}:{ptr+1}]\ns_mov_b32 s{SRD+2}, {nbytes}")
            A(f"s_mov_b32 s{sIDX}, s{sLR}")
            A(f"s_add_u32 s{sSOFF}, s{sKB0}, s{sLR}")
            A(f"s_lshl_b32 s{sSOFF}, s{sSOFF}, 16")
            A(f"s_lshl_b32 s{sTMP}, s{sCB}, 8")
            A(f"s_add_u32 s{sSOFF}, s{sSOFF}, s{sTMP}")
        return f
    C('x fragments of the wq tile, then the per-role stream. PROG in LDS = number of 8 KiB blocks landed')
    A("v_and_b32 v7, 7, v0")
    A("v_lshlrev_b32 v7, 11, v7")
    A("v_lshrrev_b32 v8, 3, v0")
    A("v_lshl_add_u32 v7, v8, 4, v7")
    A(f"s_mov_b64 s[{XSRD}:{XSRD+1}], s[{sX}:{sX+1}]\ns_mov_b32 s{XSRD+2}, 16384\ns_mov_b32 s{XSRD+3}, 0x20000")
    A(f"s_lshl_b32 s{sTMP3}, s{sKS}, 8")
    A(f"s_mov_b32 s{sIDX}, m0")
    A(f"s_mov_b32 m0, {XF}")
    A("s_nop 0")
    A(f"buffer_load_dwordx4 v7, s[{XSRD}:{XSRD+3}], s{sTMP3} offen lds")
    A(f"s_mov_b32 m0, {XF + 1024 - 128}")
    A("s_nop 0")
    A(f"buffer_load_dwordx4 v7, s[{XSRD}:{XSRD+3}], s{sTMP3} offen offset:128 lds")
    A(f"s_mov_b32 m0, s{sIDX}")
    A(f"s_cmp_ge_u32 s{sR}, 16")
    A("s_cbranch_scc1 L_ld_M")
    def b_seg1():
        cur[0] = 'g'
        A(f"s_and_b32 s{sROT}, s{sROT}, 6")
        A(f"s_mov_b32 s{sIDX}, s{sROT}")
        A(f"s_and_b32 s{sTMP2}, s{sBETA}, 1")
        set_stride(7168)
        A(f"s_mul_i32 s{sSOFF}, s{sTMP2}, {512*7168}")
        A(f"s_lshr_b32 s{sTMP}, s{sBETA}, 2")
        A(f"s_lshl_b32 s{sTMP}, s{sTMP}, 8")
        A(f"s_add_u32 s{sSOFF}, s{sSOFF}, s{sTMP}")
        A(f"s_mul_i32 s{sTMP}, s{sROT}, {32*7168}")
        A(f"s_add_u32 s{sSOFF}, s{sSOFF}, s{sTMP}")
        A(f"s_bitcmp0_b32 s{sBETA}, 1")
        A(f"s_cselect_b64 s[{SRD}:{SRD+1}], s[{sWG}:{sWG+1}], s[{sWU}:{sWU+1}]")
        A(f"s_mov_b32 s{SRD+2}, {1024*3584*2}")
    A(f"s_cmp_eq_u32 s{sROLE}, 2")
    A("s_cbranch_scc1 L_ld_C")
    assert sum(x[0] for x in pb if x != "d") == 28
    XGAT = opt.xgat
    def xg_hook():
        A(f"s_and_b32 s{sTMP3}, s{sBETA}, 1")
        A(f"s_lshl_b32 s{sTMP3}, s{sTMP3}, 10")
        xloads(8, XF + 2048)
        A(f"s_mov_b32 m0, {RA + 8192*(XGAT-4)}")
    run_plan(pb, [(4, b_seg1, True), (20, late_seg(sWO, 4096*1024*2), True)], NB0, hook=(XGAT, xg_hook))
    C('role C stream: wq, wo')
    A("L_ld_C:")
    assert sum(x[0] for x in pc if x != "d") == 12 and pc[1] == "d" and pc[0][0] == 4
    def c_seg1():
        late_seg(sWO, 4096*1024*2)()
        A(f"s_mov_b32 s{sBLK}, 20")
    run_plan(pc, [(4, c_seg1, True)], NB0)
    C('role M stream: wq, K, V, W_down')
    A("L_ld_M:")
    def m_seg1():
        cur[0] = 'k'
        if opt.kvmode == "row":
            set_stride(256)
            A(f"s_lshl2_add_u32 s{sTMP}, s{sBB}, s{sG}")
            A(f"s_mul_i32 s{sROT}, s{sTMP}, {opt.kvrot}")
            A(f"s_mul_i32 s{sTMP2}, s{sSPL}, {opt.kvrots}")
            A(f"s_add_u32 s{sROT}, s{sROT}, s{sTMP2}")
            A(f"s_lshl_b32 s{sBASE}, s{sTMP}, 20")
            A(f"s_lshl_b32 s{sTMP2}, s{sSPL}, {KSB[0] + 10}")
            A(f"s_add_u32 s{sBASE}, s{sBASE}, s{sTMP2}")
            A(f"s_add_u32 s{sBASE}, s{sBASE}, {768 << 10}")
            for k in range(3):
                A(f"s_bfe_u32 s{sTMP2}, s{sROT}, {(1 << 16) | k}")
                A(f"s_lshl_b32 s{sTMP2}, s{sTMP2}, {KIB[k] + 10}")
                A(f"s_add_u32 s{sBASE}, s{sBASE}, s{sTMP2}")
            A(f"s_bfe_u32 s{sTMP2}, s{sROT}, {(3 << 16) | 3}")
            A(f"s_lshl_b32 s{sTMP2}, s{sTMP2}, {KIB[3] + 10}")
            A(f"s_add_u32 s{sBASE}, s{sBASE}, s{sTMP2}")
            A(f"s_mov_b32 s{sIDX}, 0")
            A(f"s_mov_b64 s[{SRD}:{SRD+1}], s[{sK}:{sK+1}]\ns_mov_b32 s{SRD+2}, {8*4*4096*128*2}")
            return
        set_stride(256)
        A(f"s_mul_i32 s{sROT}, s{sROT}, {opt.kvrot*1024}")
        A(f"s_mov_b32 s{sIDX}, s{sROT}")
        A(f"s_lshl2_add_u32 s{sTMP}, s{sBB}, s{sG}")
        A(f"s_lshl4_add_u32 s{sTMP}, s{sTMP}, s{sSPL}")
        A(f"s_add_u32 s{sTMP}, s{sTMP}, 12")
        A(f"s_pack_ll_b32_b16 s{sSOFF}, s{sIDX}, s{sTMP}")
        A(f"s_mov_b64 s[{SRD}:{SRD+1}], s[{sK}:{sK+1}]\ns_mov_b32 s{SRD+2}, {8*4*4096*128*2}")
    def m_seg2():
        cur[0] = 'v'
        A(f"s_mov_b64 s[{SRD}:{SRD+1}], s[{sV}:{sV+1}]")
        if opt.kvmode == "row":
            A(f"s_mov_b32 s{sIDX}, 0")
            return
        A(f"s_mov_b32 s{sIDX}, s{sROT}")
        A(f"s_pack_lh_b32_b16 s{sSOFF}, s{sIDX}, s{sSOFF}")
    assert sum(x[0] for x in pm if x != "d") == 27
    run_plan(pm, [(4, m_seg1, "kv"), (12, m_seg2, "kv"), (20, late_seg(sWD, 3584*1024*2), 7)], NB0)
    A("L_ld_end:")
    if opt.nocomm: A("s_branch L_exit")
    def fbump():
        if opt.flag_delay: A(f"s_sleep {opt.flag_delay}")
        if opt.fsat:
            A("s_mov_b32 s6, 1")
            for r in range(opt.frep): A(f"s_atomic_add s6, s[4:5], {CS*r}")
        else:
            A(f"s_bfm_b64 exec, {opt.frep}, 0")
            A("global_atomic_add v5, v6, s[4:5] sc1")
            A("s_mov_b64 exec, -1")
    if opt.fearly:
        A(f"ds_read_b32 v11, v9 offset:{F_BA}")
        A(f"v_mov_b32 v10, s{sBLK}")
        A(f"s_waitcnt vmcnt({opt.fearly}) lgkmcnt(0)")
        A(f"v_readfirstlane_b32 s{sTMP}, v11")
        A(f"s_cmp_lt_u32 s{sTMP}, 8")
        A("s_cbranch_scc1 L_ld_late")
        A("s_mov_b32 s6, 1")
        for r in range(opt.frep): A(f"s_atomic_add s6, s[4:5], {CS*r}")
        A("s_waitcnt vmcnt(0)")
        A(f"ds_write_b32 v9, v10 offset:{F_PROG}")
        A("s_barrier")
        stamp(9)
        A("s_branch L_ld_fin")
        A("L_ld_late:")
        A("s_waitcnt vmcnt(0)")
        A(f"ds_write_b32 v9, v10 offset:{F_PROG}")
        stamp(9)
    if opt.fgate == 2 and not (opt.dbg & 1):
        lds_wait_ge(F_BA, opt.gok)
        fbump()
    A("s_barrier")
    if opt.fgate == 1 and not (opt.dbg & 1): fbump()
    A("L_ld_fin:")
    if opt.fixdur and opt.lprobe: A("s_branch L_noepoch")
    if opt.fgate and opt.fbar:
        A(f"s_cmp_lt_u32 s{sR}, 16")
        A("s_cbranch_scc1 L_exit")
        A("s_barrier")
    A("s_branch L_exit")

    C('waves 1..8 = compute waves, wave 9 = poller. Launch tag T = epoch word + 0x11111111')
    A("L_cons:")
    vL16, vTR, vACT, vT, vPUB = 1, 2, 3, 4, 5
    vTMP, vTMP2, vTMP3 = 6, 7, 8
    vWA, vAA = 10, 11
    vW, vB, vACC, vACC2 = 12, 16, 20, 24
    vGA = 28
    vLS = 44
    vK = 52
    vQ = 84
    vRG, vRW, vRR, vOUT, vONE, vAFW, vFLG = 116, 117, 118, 119, 120, 121, 122
    vTP, vTC, vL8 = 123, 124, 125
    vSTW, vSTR = 126, 15
    vTA, vAX, vEN = 48, 49, 50
    NV = 128
    A("s_waitcnt lgkmcnt(0)")
    A(f"s_load_dword s{sT}, s[{sWS}:{sWS+1}], 0")
    decode2()
    stamp(1)
    A(f"v_mov_b32 v9, {FL}")
    if opt.notif:
        A(f"s_cmp_eq_u32 s3, 10")
        A("s_cbranch_scc1 L_notif")
    A(f"s_sub_u32 s{sC}, s3, 1")
    sSC, sM3, sMN, sEM, sRNG = 58, 60, 61, 56, 57
    A(f"s_mov_b32 s{sM3}, 0x00030003")
    A(f"s_mov_b32 s{sMN}, 0xfffcfffc")
    A(f"s_mov_b32 s{sRNG}, {27 << 23:#x}")
    A(f"v_mov_b32 v{vAX}, 0")
    A(f"v_lshlrev_b32 v{vL8}, 3, v0")
    A(f"v_mov_b32 v9, {FL}")
    A(f"v_mov_b32 v{vONE}, 1")
    A(f"v_lshlrev_b32 v{vL16}, 4, v0")
    A(f"v_mul_u32_u24 v{vFLG}, {CS}, v0")
    A(f"v_lshrrev_b32 v{vTMP2}, 4, v0")
    A(f"v_bfe_u32 v{vTMP3}, v0, 2, 2")
    A(f"v_lshl_add_u32 v{vTR}, v{vTMP2}, 3, v{vTMP3}")
    A(f"v_lshlrev_b32 v{vTR}, 8, v{vTR}")
    A(f"v_and_b32 v{vACT}, 1, v{vTMP2}")
    A(f"v_lshl_or_b32 v{vTMP3}, v{vACT}, 2, v{vTMP3}")
    A(f"v_xor_b32 v{vTMP3}, s{sC}, v{vTMP3}")
    A(f"v_lshl_or_b32 v{vTR}, v{vTMP3}, 5, v{vTR}")
    A(f"v_and_b32 v{vTMP3}, 3, v0")
    A(f"v_lshl_or_b32 v{vTR}, v{vTMP3}, 3, v{vTR}")
    A(f"v_and_b32 v{vTMP3}, 7, v0")
    A(f"v_lshl_add_u32 v{vACT}, v{vTMP2}, 3, v{vTMP3}")
    A(f"v_lshlrev_b32 v{vACT}, 4, v{vACT}")
    A(f"v_lshrrev_b32 v{vAFW}, 5, v0")
    A(f"v_lshlrev_b32 v{vAFW}, 8, v{vAFW}")
    A(f"v_and_b32 v{vTMP2}, 2, v0")
    A(f"v_lshl_or_b32 v{vAFW}, v{vTMP2}, 6, v{vAFW}")
    A(f"v_and_b32 v{vTMP2}, 28, v0")
    A(f"v_lshl_or_b32 v{vAFW}, v{vTMP2}, 2, v{vAFW}")
    A(f"v_and_b32 v{vTMP2}, 1, v0")
    A(f"v_lshl_or_b32 v{vAFW}, v{vTMP2}, 3, v{vAFW}")
    A(f"s_lshl_b32 s{sTMP}, s{sC}, 9")
    A(f"s_add_u32 s{sTMP}, s{sTMP}, {AF}")
    A(f"v_add_u32 v{vAFW}, s{sTMP}, v{vAFW}")
    def afswz(v):
        A(f"v_lshrrev_b32 v{vTMP2}, 3, v{v}")
        A(f"v_and_b32 v{vTMP2}, 0x70, v{vTMP2}")
        A(f"v_xor_b32 v{v}, v{v}, v{vTMP2}")
    afswz(vAFW)
    A("s_waitcnt lgkmcnt(0)")
    A(f"s_add_u32 s{sT}, s{sT}, 0x11111111")
    A(f"s_mov_b32 s{sT+1}, s{sT}")
    A(f"v_mov_b32 v{vT}, s{sT}")
    def tagbits(dst, vsh):
        A(f"v_lshrrev_b32 v{dst}, v{vsh}, v{vT}")
        A(f"v_and_b32 v{dst}, 15, v{dst}")
        A(f"v_lshl_or_b32 v{dst}, v{dst}, 14, v{dst}")
        A(f"v_and_b32 v{dst}, s{sM3}, v{dst}")
    A(f"v_and_b32 v{vTMP}, 7, v0")
    A(f"v_lshlrev_b32 v{vTMP}, 2, v{vTMP}")
    tagbits(vTC, vTMP)
    A(f"v_lshrrev_b32 v{vTMP}, 2, v0")
    A(f"v_and_b32 v{vTMP}, 12, v{vTMP}")
    A(f"v_and_b32 v{vTMP2}, 1, v0")
    A(f"v_lshl_or_b32 v{vTMP}, v{vTMP2}, 4, v{vTMP}")
    tagbits(vTP, vTMP)

    def refresh_prog():
        A(f"ds_read_b32 v{vTMP}, v9 offset:{F_PROG}")
        A("s_waitcnt lgkmcnt(0)")
        A(f"v_readfirstlane_b32 s{sPROG}, v{vTMP}")
    def wait_prog(val_is_sgpr, val, sleep=0):
        l = g.lab("L_wp"); d = g.lab("L_wpd")
        v = f"s{val}" if val_is_sgpr else str(val)
        A(f"s_cmp_ge_u32 s{sPROG}, {v}")
        A(f"s_cbranch_scc1 {d}")
        A(f"{l}:")
        if sleep: A(f"s_sleep {sleep}")
        refresh_prog()
        A(f"s_cmp_ge_u32 s{sPROG}, {v}")
        A(f"s_cbranch_scc0 {l}")
        A(f"{d}:")
    def signal(off):
        A("s_mov_b64 exec, 1")
        A(f"ds_add_u32 v9, v{vONE} offset:{off}")
        A("s_mov_b64 exec, -1")
    def cwait(off, val, sleep=0):
        lds_wait_ge(off, val, vtmp=f"v{vTMP}", sleep=sleep)
    def cwait_rd(off, val, nrd, reads):
        l = g.lab("L_cw")
        A(f"{l}:")
        A(f"ds_read_b32 v{vTMP}, v9 offset:{off}")
        reads()
        A(f"s_waitcnt lgkmcnt({nrd})")
        A(f"v_readfirstlane_b32 s{sTMP}, v{vTMP}")
        A(f"s_cmp_ge_u32 s{sTMP}, {val}")
        A(f"s_cbranch_scc0 {l}")
    def fbits(x): return struct.unpack("<I", struct.pack("<f", x))[0]
    ADJ = 1.0
    LQ, LO_, LG, LF = [x + opt.sbias for x in (8, 12, 10, 20)]
    def setscale(lg):
        A(f"s_mov_b32 s{sSC}, {fbits(2.0**lg):#x}")
    def encode(sc=None, tp=vTP, ta=vTA):
        src = vACC
        d = g.lab("L_en")
        scs = f"s[{sSC}:{sSC+1}]" if sc is None else f"v[{sc}:{sc+1}]"
        A(f"v_pk_mul_f32 v[{src}:{src+1}], v[{src}:{src+1}], {scs} op_sel_hi:[1,0]")
        A(f"v_pk_mul_f32 v[{src+2}:{src+3}], v[{src+2}:{src+3}], {scs} op_sel_hi:[1,0]")
        A(f"v_max3_f32 v{vTMP}, |v{src}|, |v{src+1}|, |v{src+2}|")
        A(f"v_max_f32 v{vTMP}, |v{src+3}|, v{vTMP}")
        A(f"v_subrev_u32 v{vTMP2}, {115 << 23:#x}, v{vTMP}")
        A(f"v_cmp_le_u32 vcc, s{sRNG}, v{vTMP2}")
        r = g.lab("L_er")
        A(f"{r}:")
        A(f"v_cvt_pkrtz_f16_f32 v{vEN}, v{src}, v{src+1}")
        A(f"v_cvt_pkrtz_f16_f32 v{vEN+1}, v{src+2}, v{src+3}")
        A(f"v_add_u32 v{vEN}, 0x00020002, v{vEN}")
        A(f"v_add_u32 v{vEN+1}, 0x00020002, v{vEN+1}")
        A(f"v_and_or_b32 v{vEN}, v{vEN}, s{sMN}, v{vAX}")
        A(f"v_and_or_b32 v{vEN+1}, v{vEN+1}, s{sMN}, v{tp}")
        A(f"s_cbranch_vccz {d}")
        A(f"s_call_b64 s[6:7], L_encs")
        A(f"s_branch {r}")
        A(f"{d}:")
    def publish(src, base=sGA, sc=None):
        encode(sc)
        A("s_mov_b32 exec_lo, 0x00ff00ff\ns_mov_b32 exec_hi, 0x00ff00ff")
        if not (opt.dbg & (33 | (2048 if base == sGA else 0))): A(f"global_store_dwordx2 v{vPUB}, v[{vEN}:{vEN+1}], s[{base}:{base+1}] sc1")
    NREP = opt.nrep; HREP = max(1, NREP // 4)
    sNH = 9
    def bump(kind):
        if opt.dbg & (33 | 1024): return
        if opt.satom:
            A(f"s_mov_b32 s8, 1")
            if kind == "h":
                e = g.lab("L_bh")
                for r in range(HREP): A(f"s_atomic_add s8, s[{sGB}:{sGB+1}], {CS*r}")
                A(f"s_cmp_eq_u32 s{sNH}, {HREP}")
                A(f"s_cbranch_scc1 {e}")
                for r in range(HREP, 2*HREP): A(f"s_atomic_add s8, s[{sGB}:{sGB+1}], {CS*r}")
                A(f"{e}:")
            else:
                for r in range(NREP): A(f"s_atomic_add s8, s[{sGB}:{sGB+1}], {CS*r}")
        else:
            if kind == "h": A(f"s_bfm_b64 exec, s{sNH}, 0")
            else: A(f"s_bfm_b64 exec, {NREP}, 0")
            A(f"global_atomic_add v{vFLG}, v{vONE}, s[{sGB}:{sGB+1}] sc1")
    def flag(cnt, nrep, last=7):
        d = g.lab("L_fl")
        A("s_mov_b64 exec, 1")
        A(f"ds_add_rtn_u32 v{vTMP}, v9, v{vONE} offset:{cnt}")
        A("s_waitcnt lgkmcnt(0)")
        A(f"v_readfirstlane_b32 s{sTMP}, v{vTMP}")
        A(f"s_cmp_lg_u32 s{sTMP}, {last}")
        A(f"s_cbranch_scc1 {d}")
        bump(nrep)
        A(f"{d}:")
        A("s_mov_b64 exec, -1")
    def staged(cnt, last, hi_off, kind):
        d = g.lab("L_sg")
        A(f"ds_write_b64 v{vSTW}, v[{vEN}:{vEN+1}]")
        A("s_mov_b64 exec, 1")
        A(f"ds_add_rtn_u32 v{vTMP}, v9, v{vONE} offset:{cnt}")
        A("s_mov_b64 exec, -1")
        A(f"ds_read_b128 v[{vGA}:{vGA+3}], v{vSTR}")
        A(f"ds_read_b128 v[{vGA+4}:{vGA+7}], v{vSTR} offset:1024")
        A(f"v_add_u32 v{vTMP2}, {hi_off}, v{vPUB}")
        A("s_waitcnt lgkmcnt(2)")
        A(f"v_readfirstlane_b32 s{sTMP}, v{vTMP}")
        A(f"s_cmp_lg_u32 s{sTMP}, {last}")
        A(f"s_cbranch_scc1 {d}")
        A("s_waitcnt lgkmcnt(0)")
        if not (opt.dbg & (1 | (256 if last == 3 else 512))):
            A(f"global_store_dwordx4 v{vPUB}, v[{vGA}:{vGA+3}], s[{sGA}:{sGA+1}] sc1")
            A(f"global_store_dwordx4 v{vTMP2}, v[{vGA+4}:{vGA+7}], s[{sGA}:{sGA+1}] sc1")
        if kind: bump(kind)
        A("s_mov_b64 exec, -1")
        A("s_nop 0")
        A(f"{d}:")
        A("s_waitcnt lgkmcnt(0)")
    def flag_now(nrep):
        d = g.lab("L_fn")
        A(f"s_cmp_lg_u32 s{sC}, {opt.flagwave}")
        A(f"s_cbranch_scc1 {d}")
        bump(nrep)
        A("s_mov_b64 exec, -1")
        A(f"{d}:")
    def ws_addr(dst, base_const, soff):
        A(f"s_add_u32 s{soff}, s{soff}, {base_const}")
        A(f"s_add_u32 s{dst}, s{sWS}, s{soff}")
        A(f"s_addc_u32 s{dst+1}, s{sWS+1}, 0")
    def pub_voff(shift):
        A(f"v_and_b32 v{vTMP2}, 15, v0")
        A(f"v_lshrrev_b32 v{vTMP3}, 4, v0")
        A(f"v_lshlrev_b32 v{vTMP3}, 3, v{vTMP3}")
        A(f"v_lshl_or_b32 v{vPUB}, v{vTMP2}, {shift}, v{vTMP3}")
    def sample(base, offs, sleep=0, cntstamp=None):
        l = g.lab("L_sm"); d = g.lab("L_smd"); e = g.lab("L_sme")
        if opt.dbg & 7: return
        A(f"s_mov_b32 s{sCNT}, 0")
        if sleep: A(f"s_branch {e}")
        A(f"{l}:")
        if sleep:
            A(f"s_sleep {sleep}")
            A(f"{e}:")
        for i, o in enumerate(offs):
            A(f"s_load_dword s{sSM+i}, s[{base}:{base+1}], {o} glc")
        A(f"s_add_u32 s{sCNT}, s{sCNT}, 1")
        A(f"s_cmp_gt_u32 s{sCNT}, {opt.maxpoll}")
        A("s_waitcnt lgkmcnt(0)")
        A(f"s_cbranch_scc1 {d}")
        for i in range(len(offs)):
            A(f"s_xor_b32 s{sSM+i}, s{sSM+i}, s{sT}")
            if i: A(f"s_or_b32 s{sSM}, s{sSM}, s{sSM+i}")
        A(f"s_and_b32 s{sSM}, s{sSM}, 0xff")
        A(f"s_cbranch_scc1 {l}")
        A(f"{d}:")
        if cntstamp is not None: stampval(cntstamp, sCNT)
    def pollcnt(base, target, sleep, cntstamp=None):
        l = g.lab("L_pf"); d = g.lab("L_pfd"); e = g.lab("L_pfe")
        if opt.dbg & 7: return
        A(f"s_mov_b32 s{sCNT}, 0")
        if sleep: A(f"s_branch {e}")
        A(f"{l}:")
        if sleep:
            A(f"s_sleep {sleep}")
            A(f"{e}:")
        A(f"s_load_dword s8, s[{base}:{base+1}], 0 glc")
        A(f"s_add_u32 s{sCNT}, s{sCNT}, 1")
        A(f"s_cmp_gt_u32 s{sCNT}, {opt.maxhint}")
        A("s_waitcnt lgkmcnt(0)")
        A(f"s_cbranch_scc1 {d}")
        A(f"s_cmp_eq_u32 s8, s{target}")
        A(f"s_cbranch_scc0 {l}")
        A(f"{d}:")
        if cntstamp is not None: stampval(cntstamp, sCNT)
    kfr = [None]
    def gather(nld=4, mid=None, cntstamp=None, sleep=0, work=None, kind='M', defer=False):
        l = g.lab("L_ga"); d = g.lab("L_gad"); c = g.lab("L_gac"); rt = g.lab("L_gar")
        assert nld in (1, 4)
        def issue():
            if opt.dbg & 2: return
            if opt.gprio: A(f"s_setprio {opt.gprio}")
            if opt.x4dbg and nld == 4:
                nn = 2
                if opt.x4dbg == 2 and mid is not kfr[0]: nn = 1
                if opt.x4dbg == 3: nn = 1
                if opt.x4dbg == 4 and mid is not kfr[0]: nn = 0
                if opt.x4dbg == 5: nn = 0
                for i in range(nn): A(f"global_load_dwordx4 v[{vGA+4*i}:{vGA+4*i+3}], v{vL16}, s[{sGA}:{sGA+1}] offset:{1024*i} sc1")
                return
            for i in range(nld):
                A(f"global_load_dwordx2 v[{vGA+2*i}:{vGA+2*i+1}], v{vL8}, s[{sGA}:{sGA+1}] offset:{512*i} sc1")
        if mid is not None or sleep:
            issue()
            if mid is not None: mid()
            A(f"s_mov_b32 s{sEM}, s{sM3}")
            A(f"s_mov_b32 s{sCNT}, 0")
            A(f"s_branch {c}")
            pad(kind)
        else:
            A(f"s_mov_b32 s{sEM}, s{sM3}")
            A(f"s_mov_b32 s{sCNT}, 0")
        A(f"{l}:")
        if sleep: A(f"s_sleep {sleep}")
        issue()
        A(f"{c}:")
        A(f"s_add_u32 s{sCNT}, s{sCNT}, 1")
        vC, vC0 = vTMP2, vTMP
        for i in range(nld):
            A(f"s_waitcnt vmcnt({((1 - i//2) if opt.x4dbg == 1 else 0) if (opt.x4dbg and nld == 4) else nld-1-i})")
            A(f"v_xor_b32 v{vGA+2*i+1}, v{vTC}, v{vGA+2*i+1}")
            if i == 2:
                A(f"v_or3_b32 v{vC0}, v{vGA}, v{vGA+2}, v{vGA+4}")
                A(f"v_or3_b32 v{vC}, v{vGA+1}, v{vGA+3}, v{vGA+5}")
            if i == nld-1:
                if nld == 4:
                    A(f"v_or_b32 v{vC0}, v{vC0}, v{vGA+6}")
                    A(f"v_bitop3_b32 v{vC}, v{vC}, v{vGA+7}, s{sM3} bitop3:0xa8")
                else:
                    A(f"v_and_b32 v{vC}, s{sM3}, v{vGA+1}")
                A(f"v_and_or_b32 v{vC0}, v{vC0 if nld == 4 else vGA}, s{sEM}, v{vC}")
                A(f"v_cmp_ne_u32 vcc, 0, v{vC0}")
            if work is not None and (i < nld-1 or opt.specw): work(i)
        A(f"s_cbranch_vccz {d}")
        A(f"v_cmp_ne_u32 vcc, 0, v{vC}")
        A(f"s_cbranch_vccnz {rt}")
        A(f"s_mov_b32 s{sEM}, 0")
        if defer: A(f"s_branch {d}")
        else:
            A("s_call_b64 s[6:7], L_fixr")
            A(f"s_branch {c}")
        A(f"{rt}:")
        A(f"s_cmp_le_u32 s{sCNT}, {0 if ((opt.dbg & 6) or (opt.noretry and nld == 4)) else opt.maxpoll}")
        A(f"s_cbranch_scc1 {l}")
        A(f"{d}:")
        if cntstamp is not None: stampval(cntstamp, sCNT)
        if work is not None and not opt.specw: work(nld-1)
    vS0, vS1, vSCA = vGA + 12, vGA + 8, vLS
    def acc(i, dst, first):
        for r in range(4):
            c2 = "0" if first else f"v{dst+r}"
            A(f"v_fma_mix_f32 v{dst+r}, v{vGA+2*i+(r>>1)}, v{vSCA+i}, {c2} op_sel:[{r&1},0,0] op_sel_hi:[1,0,0]")
    def setsca(lg):
        for i in range(4): A(f"v_mov_b32 v{vSCA+i}, {fbits(2.0**-lg):#x}")
    def wreads(k0, k1):
        for kb in range(k0, k1):
            o = 8192*kb
            A(f"ds_read_b64_tr_b16 v[{vK+4*kb}:{vK+4*kb+1}], v{vWA} offset:{o}")
            A(f"ds_read_b64_tr_b16 v[{vK+4*kb+2}:{vK+4*kb+3}], v{vWA} offset:{o+1024}")
    def mf(kb, first):
        c = "0" if first else f"v[{vACC}:{vACC+3}]"
        A(f"v_mfma_f32_16x16x32_bf16 v[{vACC}:{vACC+3}], v[{vK+4*kb}:{vK+4*kb+3}], v[{vQ+4*kb}:{vQ+4*kb+3}], {c}")
    vAB = vW
    def actreads(n, swz=False):
        for kb in range(n):
            A(f"ds_read_b128 v[{vQ+4*kb}:{vQ+4*kb+3}], v{vAB if (swz and kb & 1) else vAA} offset:{512*kb}")
    sFA, sRA, sPE = 12, 10, 14
    def late_setup(wbase, padd, pend):
        A(f"v_add_u32 v{vWA}, {wbase}, v{vTR}")
        A(f"v_add_u32 v{vAA}, {AF}, v{vACT}")
        afswz(vAA)
        A(f"v_xor_b32 v{vAB}, 64, v{vAA}")
        A(f"v_and_b32 v{vTMP2}, 4, v0")
        A(f"v_lshlrev_b32 v{vPUB}, 10, v{vTMP2}")
        A(f"v_and_b32 v{vTMP2}, 3, v0")
        A(f"v_lshl_or_b32 v{vPUB}, v{vTMP2}, 5, v{vPUB}")
        A(f"v_lshrrev_b32 v{vTMP2}, 4, v0")
        A(f"v_lshl_or_b32 v{vPUB}, v{vTMP2}, 3, v{vPUB}")
        A(f"s_lshl3_add_u32 s{sTMP}, s{sCB}, s{sC}")
        A(f"s_lshl_b32 s{sTMP}, s{sTMP}, 6")
        A(f"s_add_u32 s{sTMP}, s{sTMP}, s{sRBK}")
        A(f"s_lshl_b32 s{sTMP}, s{sTMP}, 7")
        ws_addr(sFA, WS_FP + 128*padd, sTMP)
        A(f"s_mov_b32 s{sPE}, {pend}")
        setscale(LF)
        A(f"v_mov_b32 v{vAX}, 0")
        A(f"s_mov_b32 s{sWDN}, 21")
        A(f"s_add_u32 s{sTMP}, s{sKB0}, s{sC}")
        A(f"s_lshl_b32 s{sTMP}, s{sTMP}, 11")
    sRET = 6
    def wcatch():
        d = g.lab("L_wc")
        A(f"s_cmp_lt_u32 s{sPROG}, s{sWDN}")
        A(f"s_cbranch_scc1 {d}")
        A(f"s_call_b64 s[{sRET}:{sRET+1}], L_wcatch")
        A(f"{d}:")
    def late_wait():
        l = g.lab("L_lw"); d = g.lab("L_lwd")
        A(f"{l}:")
        A(f"ds_read_b64 v[{vTMP}:{vTMP+1}], v9 offset:{F_PROG}")
        A("s_waitcnt lgkmcnt(0)")
        A(f"v_readfirstlane_b32 s{sTMP}, v{vTMP+1}")
        A(f"v_readfirstlane_b32 s{sPROG}, v{vTMP}")
        A(f"s_cmp_lg_u32 s{sTMP}, 0")
        A(f"s_cbranch_scc1 {d}")
        wcatch()
        A(f"s_branch {l}")
        A(f"{d}:")
    def late_mid():
        A(f"s_add_u32 s{sTMP2}, s{sPROG}, {opt.midahead}")
        A(f"s_min_u32 s{sTMP2}, s{sTMP2}, s{sPE}")
        wcatch()
        wait_prog(True, sTMP2)
        wcatch()
    vPG = 126
    def late_post_issue():
        if opt.lflow == 1: A(f"ds_read_b32 v{vPG}, v9 offset:{F_PROG}")
    def late_post():
        if opt.fgate == 2: signal(F_BA)
        if opt.lflow != 1: return
        A("s_waitcnt lgkmcnt(0)")
        A(f"v_readfirstlane_b32 s{sPROG}, v{vPG}")
        wcatch()

    if opt.cprio: A(f"s_setprio {opt.cprio}")
    signal(F_ERD)
    A(f"s_cmp_eq_u32 s3, 9")
    A("s_cbranch_scc1 L_poller")
    if opt.nocomm:
        signal(F_FREE0); signal(F_FREE1)
        A("s_branch L_exit")
    def egloop(last, name, lead=None, nrep=0):
        A(f"L_eg_loop{name}:")
        A(f"ds_read_b128 v[{vB}:{vB+3}], v{vAA}")
        wait_prog(True, sCNT)
        A(f"ds_read_b64_tr_b16 v[{vW}:{vW+1}], v{vWA}")
        A(f"ds_read_b64_tr_b16 v[{vW+2}:{vW+3}], v{vWA} offset:1024")
        if lead is not None and lead >= 0:
            A(f"s_cmp_lg_u32 s{sCNT}, {last - lead}")
            A(f"s_cbranch_scc1 L_eg_nf{name}")
            flag_now(nrep)
            A(f"L_eg_nf{name}:")
        A(f"v_add_u32 v{vWA}, 8192, v{vWA}")
        A(f"v_add_u32 v{vAA}, 512, v{vAA}")
        A(f"s_add_u32 s{sCNT}, s{sCNT}, 1")
        A(f"s_cmp_le_u32 s{sCNT}, {last}")
        A("s_waitcnt lgkmcnt(0)")
        A(f"v_mfma_f32_16x16x32_bf16 v[{vACC}:{vACC+3}], v[{vW}:{vW+3}], v[{vB}:{vB+3}], v[{vACC}:{vACC+3}]")
        A(f"s_cbranch_scc1 L_eg_loop{name}")
    C('q partial = x[:, 128 rows] @ wq tile (four waves, two 16-column slices each)')
    A(f"s_cmp_ge_u32 s{sC}, 4")
    A("s_cbranch_scc1 L_noq")
    A(f"v_and_b32 v{vTMP2}, 7, v0")
    A(f"v_lshlrev_b32 v{vSTW}, 8, v{vTMP2}")
    A(f"v_and_b32 v{vTMP2}, 8, v0")
    A(f"v_lshl_or_b32 v{vSTW}, v{vTMP2}, 2, v{vSTW}")
    A(f"v_lshrrev_b32 v{vTMP3}, 4, v0")
    A(f"v_lshl_or_b32 v{vSTW}, v{vTMP3}, 3, v{vSTW}")
    A(f"s_lshl_b32 s{sTMP}, s{sC}, 6")
    A(f"s_add_u32 s{sTMP}, s{sTMP}, {ST}")
    A(f"v_add_u32 v{vSTW}, s{sTMP}, v{vSTW}")
    A(f"v_add_u32 v{vSTR}, {ST}, v{vL16}")
    A(f"v_and_b32 v{vPUB}, 0xf0, v{vL16}")
    A(f"v_lshl_or_b32 v{vPUB}, v{vTMP3}, 16, v{vPUB}")
    A(f"v_lshlrev_b32 v{vTMP3}, 2, v{vTMP3}")
    A(f"v_lshl_or_b32 v{vTMP3}, v{vTMP2}, 1, v{vTMP3}")
    tagbits(vB, vTMP3)
    setscale(LQ)
    A(f"s_and_b32 s{sTMP3}, s{sU}, 7")
    A(f"s_lshl3_add_u32 s{sTMP}, s{sG}, s{sTMP3}")
    A(f"s_lshl3_add_u32 s{sTMP}, s{sTMP}, s{sKS}")
    A(f"s_lshl_b32 s{sTMP}, s{sTMP}, 8")
    ws_addr(sGA, WS_QP, sTMP)
    A(f"s_mul_i32 s{sTMP}, s{sG}, {32*CS}")
    ws_addr(sGB, WS_QC, sTMP)
    A(f"s_lshl_b32 s{sTMP}, s{sC}, 1")
    A(f"s_xor_b32 s{sTMP}, s{sTMP}, s{sC}")
    A(f"s_lshl_b32 s{sTMP}, s{sTMP}, 5")
    A(f"v_xor_b32 v{vWA}, s{sTMP}, v{vTR}")
    A(f"v_add_u32 v{vWA}, {RQ}, v{vWA}")
    A(f"v_xor_b32 v{vW}, 32, v{vWA}")
    A(f"v_add_u32 v{vAA}, {XF}, v{vACT}")
    A(f"v_cmp_eq_u32 s[4:5], 0, v{vTMP2}")
    cwait(F_ERD, 9, sleep=1)
    wait_prog(False, 4, sleep=1)
    if opt.qlead >= 0: flag_now("q")
    actreads(4)
    wreads(0, 4)
    for kb in range(4):
        A(f"s_waitcnt lgkmcnt({6 if kb == 0 else 6})")
        A(f"ds_read_b64_tr_b16 v[{vK+16+4*kb}:{vK+16+4*kb+1}], v{vW} offset:{8192*kb}")
        A(f"ds_read_b64_tr_b16 v[{vK+16+4*kb+2}:{vK+16+4*kb+3}], v{vW} offset:{8192*kb+1024}")
        mf(kb, kb == 0)
    A("s_mov_b64 exec, 3")
    A(f"ds_add_u32 v9, v{vONE} offset:{F_FREE0}")
    A("s_mov_b64 exec, -1")
    for kb in range(4):
        A(f"s_waitcnt lgkmcnt({7-2*kb})")
        c1 = "0" if kb == 0 else f"v[{vACC2}:{vACC2+3}]"
        A(f"v_mfma_f32_16x16x32_bf16 v[{vACC2}:{vACC2+3}], v[{vK+16+4*kb}:{vK+16+4*kb+3}], v[{vQ+4*kb}:{vQ+4*kb+3}], {c1}")
    A("s_nop 7")
    for r in range(4): A(f"v_cndmask_b32 v{vACC+r}, v{vACC2+r}, v{vACC+r}, s[4:5]")
    encode(None, vB, vB+1)
    staged(F_PUB0, 3, 4 << 16, "q" if opt.qhint else None)
    if opt.ackst:
        stamp(2); A("s_waitcnt vmcnt(0)"); stamp(5)
    A(f"v_mov_b32 v{vAX}, 0")
    A("L_noq:")
    if not opt.ackst: stamp(2)
    A(f"s_cmp_ge_u32 s{sR}, 16")
    A("s_cbranch_scc1 L_roleM")
    def rbf(v):
        A(f"v_cvt_pk_bf16_f32 v{v}, v{v}, v{v}")
        A(f"v_and_b32 v{v}, 0xffff0000, v{v}")
    A(f"s_cmp_eq_u32 s{sROLE}, 2")
    A("s_cbranch_scc1 L_gate")
    C('role B: gate or up partial over 512 rows')
    pub_voff(5)
    setscale(LG)
    A(f"s_and_b32 s{sTMP}, s{sBETA}, -4")
    A(f"s_lshr_b32 s{sTMP2}, s{sC}, 1")
    A(f"s_add_u32 s{sTMP}, s{sTMP}, s{sTMP2}")
    A(f"s_and_b32 s{sTMP2}, s{sBETA}, 3")
    A(f"s_lshl2_add_u32 s{sTMP}, s{sTMP}, s{sTMP2}")
    A(f"s_and_b32 s{sTMP2}, s{sC}, 1")
    A(f"s_lshl1_add_u32 s{sTMP}, s{sTMP}, s{sTMP2}")
    A(f"s_lshl_b32 s{sTMP}, s{sTMP}, 8")
    ws_addr(sGA, WS_GP, sTMP)
    def hc_addr():
        A(f"s_and_b32 s{sTMP}, s{sBETA}, -4")
        A(f"s_or_b32 s{sTMP2}, s{sBETA}, 3")
        A(f"s_mul_i32 s{sTMP}, s{sTMP}, 147")
        A(f"s_mul_i32 s{sTMP2}, s{sTMP2}, 147")
        A(f"s_lshr_b32 s{sTMP}, s{sTMP}, 10")
        A(f"s_lshr_b32 s{sTMP2}, s{sTMP2}, 10")
        A(f"s_cmp_eq_u32 s{sTMP}, s{sTMP2}")
        A(f"s_cselect_b32 s{sNH}, {HREP}, {2*HREP}")
        A(f"s_mul_i32 s{sTMP}, s{sTMP}, {CS*HREP}")
        ws_addr(sGB, WS_HC, sTMP)
    if not opt.notif: hc_addr()
    for r in range(4): A(f"v_mov_b32 v{vACC+r}, 0")
    A(f"v_mov_b32 v{vWA}, v{vTR}")
    A(f"v_add_u32 v{vAA}, {XF + 2048}, v{vACT}")
    A(f"s_mov_b32 s{sCNT}, 5")
    wait_prog(False, opt.xgat + 1, sleep=1)
    egloop(12, "G1")
    signal(F_FREE1)
    stamp(3)
    egloop(20, "G2", opt.hlead, "h")
    A("s_nop 7")
    publish(vACC)
    if opt.hlead < 0 and not opt.notif: flag(F_PUB1, "h")
    else: A("s_mov_b64 exec, -1")
    stamp(6)
    if opt.ackst:
        A("s_waitcnt vmcnt(0)"); stamp(4)
    C('roles B and C: gather the four attention partials, combine them with the softmax weights')
    A("L_bc_late:")
    late_setup(RA, 0, 28)
    ws_addr(sGA, WS_OP, sTMP)
    A(f"s_lshl_b32 s{sTMP2}, s{sC}, 4")
    A(f"v_and_b32 v{vTMP3}, 32, v0")
    A(f"v_lshlrev_b32 v{vTMP3}, 2, v{vTMP3}")
    A(f"v_add3_u32 v{vTMP3}, v{vTMP3}, s{sTMP2}, v9")
    A(f"s_lshl_b32 s{sTMP3}, s{sLR}, 3")
    A(f"v_subrev_u32 v{vAFW}, s{sTMP3}, v0")
    A(f"v_and_b32 v{vAFW}, 62, v{vAFW}")
    A(f"v_lshlrev_b32 v{vAFW}, 6, v{vAFW}")
    A(f"v_and_b32 v{vTMP2}, 1, v0")
    A(f"v_lshl_or_b32 v{vAFW}, v{vTMP2}, 3, v{vAFW}")
    A(f"s_add_u32 s{sTMP2}, s{sTMP2}, {AF}")
    A(f"v_add_u32 v{vAFW}, s{sTMP2}, v{vAFW}")
    afswz(vAFW)
    late_wait()
    stamp(7)
    def owork(i):
        if i == 2: late_post_issue()
        if i == 3: late_post()
    gather(mid=late_mid, cntstamp=13, sleep=opt.gsleep, work=owork, kind='B', defer=True)
    if STAMP == 1: A("s_waitcnt lgkmcnt(0)")
    cwait_rd(F_WRDY, 1, 0, lambda: A(f"ds_read_b128 v[{vSCA}:{vSCA+3}], v{vTMP3} offset:{F_WT}"))
    stamp(8)
    A(f"s_cmp_lg_u32 s{sEM}, 0")
    A("s_cbranch_scc1 L_onofix")
    A("s_call_b64 s[6:7], L_fix")
    A("L_onofix:")
    for i in range(4): acc(i, vS0, i == 0)
    A("s_branch L_late")

    C('role M: sum the q partials, scores, true max over the 256 keys, P, P @ V')
    A("L_roleM:")
    A(f"s_lshl2_add_u32 s{sTMP}, s{sBB}, s{sG}")
    A(f"s_lshl3_add_u32 s{sTMP}, s{sTMP}, s{sC}")
    A(f"s_lshl_b32 s{sTMP}, s{sTMP}, 11")
    ws_addr(sGA, WS_QP, sTMP)
    A(f"v_bfe_u32 v{vTMP2}, v0, 2, 2")
    A(f"v_and_b32 v{vTMP3}, 3, v0")
    A(f"v_lshl_add_u32 v{vTMP2}, v{vTMP2}, 3, v{vTMP3}")
    A(f"v_lshlrev_b32 v{vWA}, 8, v{vTMP2}")
    A(f"v_lshrrev_b32 v{vTMP2}, 5, v0")
    A(f"v_and_b32 v{vTMP3}, 7, v0")
    A(f"v_xor_b32 v{vTMP2}, v{vTMP2}, v{vTMP3}")
    A(f"v_lshl_or_b32 v{vWA}, v{vTMP2}, 5, v{vWA}")
    A(f"v_and_b32 v{vTMP2}, 16, v0")
    A(f"s_lshl_b32 s{sTMP}, s{sC}, 13")
    A(f"v_add3_u32 v{vWA}, v{vWA}, v{vTMP2}, s{sTMP}")
    vQA, vMX, vPA = vW, vW + 1, vW + 2
    A(f"v_and_b32 v{vQA}, 30, v0")
    A(f"v_lshlrev_b32 v{vQA}, 6, v{vQA}")
    A(f"v_and_b32 v{vTMP2}, 1, v0")
    A(f"v_lshl_or_b32 v{vQA}, v{vTMP2}, 3, v{vQA}")
    A(f"v_lshrrev_b32 v{vTMP2}, 5, v0")
    A(f"v_lshl_or_b32 v{vQA}, v{vTMP2}, 2, v{vQA}")
    A(f"s_lshl_b32 s{sTMP}, s{sC}, 4")
    A(f"s_add_u32 s{sTMP}, s{sTMP}, {QF}")
    A(f"v_add_u32 v{vQA}, s{sTMP}, v{vQA}")
    A(f"v_lshl_add_u32 v{vMX}, v{vTMP3}, 2, v9")
    A(f"s_lshl_b32 s{sTMP}, s{sC}, 9")
    A(f"s_add_u32 s{sTMP}, s{sTMP}, {PF}")
    A(f"v_add_u32 v{vPA}, s{sTMP}, v{vACT}")
    vOTP, vOTA = vRW, vRR
    A(f"v_lshrrev_b32 v{vTMP3}, 4, v0")
    A(f"v_and_b32 v{vTMP2}, 7, v0")
    A(f"v_lshlrev_b32 v{vSTW}, 8, v{vTMP2}")
    A(f"v_lshl_or_b32 v{vSTW}, v{vTMP3}, 3, v{vSTW}")
    A(f"s_lshl_b32 s{sTMP}, s{sC}, 5")
    A(f"s_add_u32 s{sTMP}, s{sTMP}, {ST}")
    A(f"v_add_u32 v{vSTW}, s{sTMP}, v{vSTW}")
    A(f"v_add_u32 v{vSTR}, {ST}, v{vL16}")
    A(f"v_and_b32 v{vPUB}, 0x1f0, v{vL16}")
    A(f"v_and_b32 v{vTMP2}, 32, v0")
    A(f"v_lshl_or_b32 v{vPUB}, v{vTMP2}, 9, v{vPUB}")
    A(f"s_and_b32 s{sTMP}, s{sC}, 1")
    A(f"s_lshl_b32 s{sTMP}, s{sTMP}, 4")
    A(f"v_lshl_or_b32 v{vTMP3}, v{vTMP3}, 2, s{sTMP}")
    tagbits(vOTP, vTMP3)
    if opt.qhint: cwait(F_QRDY, 1, sleep=1)
    else: wait_prog(False, opt.qgate, sleep=1)
    stamp(3)
    def kfrags():
        A(f"s_add_u32 s{sTMP2}, s{sC}, 5")
        wait_prog(True, sTMP2)
        for db in range(4):
            if db: A(f"v_xor_b32 v{vAA}, {64*db}, v{vWA}")
            a = vAA if db else vWA
            A(f"ds_read_b128 v[{vK+4*db}:{vK+4*db+3}], v{a}")
            A(f"ds_read_b128 v[{vK+16+4*db}:{vK+16+4*db+3}], v{a} offset:1024")
        signal(F_FREE1)
        A(f"v_add_u32 v{vAA}, {QF}, v{vACT}")
    kfr[0] = kfrags
    setsca(LQ)
    def qwork(i): acc(i, vS0, i == 0)
    gather(nld=4, mid=kfrags, cntstamp=11, sleep=opt.qsleep, work=qwork)
    stamp(4)
    A("s_nop 1")
    A(f"v_permlane32_swap_b32 v{vS0}, v{vS0+2}")
    A(f"v_permlane32_swap_b32 v{vS0+1}, v{vS0+3}")
    A(f"v_add_f32 v{vS0}, v{vS0}, v{vS0+2}")
    A(f"v_add_f32 v{vS0+1}, v{vS0+1}, v{vS0+3}")
    A(f"v_cvt_pk_bf16_f32 v{vGA}, v{vS0}, v{vS0+1}")
    A(f"ds_write_b32 v{vQA}, v{vGA}")
    signal(F_BQ)
    A(f"s_lshl_b32 s{sTMP}, s{sG}, 5")
    A(f"s_add_u32 s{sTMP}, s{sTMP}, s{sBB}")
    A(f"s_lshl2_add_u32 s{sTMP}, s{sTMP}, s{sSPL}")
    A(f"s_lshl_b32 s{sTMP}, s{sTMP}, 9")
    ws_addr(sGA, WS_OP, sTMP)
    A(f"s_lshl2_add_u32 s{sTMP3}, s{sBB}, s{sSPL}")
    A(f"s_mul_i32 s{sTMP}, s{sG}, {32*CS}")
    ws_addr(sGB, WS_OC, sTMP)
    A(f"s_lshl_b32 s{sTMP}, s{sG}, 5")
    A(f"s_add_u32 s{sTMP}, s{sTMP}, s{sTMP3}")
    A(f"s_lshl_b32 s{sTMP}, s{sTMP}, 6")
    ws_addr(sFA, WS_LSE, sTMP)
    cbits = struct.unpack("<I", struct.pack("<f", math.log2(math.e) / math.sqrt(128.0)))[0]
    A(f"s_mov_b32 s{sTMP2}, {cbits:#x}")
    if STAMP == 1: A("s_waitcnt lgkmcnt(0)")
    if opt.spec: cwait_rd(F_BQ, 8, 4, lambda: actreads(4))
    else:
        cwait(F_BQ, 8); actreads(4)
    for db in range(4):
        A(f"s_waitcnt lgkmcnt({3-db})")
        c0 = "0" if db == 0 else f"v[{vACC}:{vACC+3}]"
        c1 = "0" if db == 0 else f"v[{vACC2}:{vACC2+3}]"
        A(f"v_mfma_f32_16x16x32_bf16 v[{vACC}:{vACC+3}], v[{vK+4*db}:{vK+4*db+3}], v[{vQ+4*db}:{vQ+4*db+3}], {c0}")
        A(f"v_mfma_f32_16x16x32_bf16 v[{vACC2}:{vACC2+3}], v[{vK+16+4*db}:{vK+16+4*db+3}], v[{vQ+4*db}:{vQ+4*db+3}], {c1}")
    A(f"v_add_u32 v{vAA}, {PF}, v{vACT}")
    A(f"v_add_u32 v{vWA}, {RB}, v{vTR}")
    vONES = vGA
    for r in range(4): A(f"v_mov_b32 v{vONES+r}, 0x3f803f80")
    A("s_nop 1")
    A(f"v_max3_f32 v{vTMP2}, v{vACC}, v{vACC+1}, v{vACC+2}")
    A(f"v_max3_f32 v{vTMP2}, v{vTMP2}, v{vACC+3}, v{vACC2}")
    A(f"v_max3_f32 v{vTMP2}, v{vTMP2}, v{vACC2+1}, v{vACC2+2}")
    A(f"v_max_f32 v{vTMP2}, v{vTMP2}, v{vACC2+3}")
    A("s_mov_b32 exec_lo, 0x00ff00ff\ns_mov_b32 exec_hi, 0x00ff00ff")
    A(f"ds_max_f32 v{vMX}, v{vTMP2} offset:{F_MAX}")
    signal(F_BM)
    vM = vLS
    cwait_rd(F_BM, 8, 1, lambda: A(f"ds_read_b32 v{vM}, v{vMX} offset:{F_MAX}"))
    if opt.olead >= 0 and opt.oearly:
        A(f"ds_read_b32 v{vTMP}, v9 offset:{F_PROG}")
    A("s_waitcnt lgkmcnt(0)")
    A(f"s_mov_b32 s{sWDN}, 0")
    if opt.olead >= 0 and opt.oearly:
        A(f"v_readfirstlane_b32 s{sPROG}, v{vTMP}")
        A(f"s_cmp_lt_u32 s{sPROG}, {20 - opt.olead}")
        A("s_cbranch_scc1 L_of_no1")
        flag_now("q")
        A(f"s_mov_b32 s{sWDN}, 1")
        A("L_of_no1:")
    A(f"v_mul_f32 v{vM}, s{sTMP2}, v{vM}")
    for r in range(8):
        A(f"v_fma_f32 v{vACC+r}, v{vACC+r}, s{sTMP2}, -v{vM}")
    for r in range(8):
        A(f"v_exp_f32 v{vACC+r}, v{vACC+r}")
    A("s_nop 0")
    for r in range(4):
        A(f"v_cvt_pk_bf16_f32 v{vB+r}, v{vACC+2*r}, v{vACC+2*r+1}")
    A(f"ds_write_b128 v{vPA}, v[{vB}:{vB+3}]")
    signal(F_BP)
    if opt.spec: cwait_rd(F_BP, 8, 8, lambda: actreads(8))
    else:
        cwait(F_BP, 8); actreads(8)
    A(f"ds_read_b32 v{vTMP}, v9 offset:{F_PROG}")
    for kb in range(8):
        A(f"s_waitcnt lgkmcnt({8-kb})")
        c1 = "0" if kb == 0 else f"v[{vACC2}:{vACC2+3}]"
        A(f"v_mfma_f32_16x16x32_bf16 v[{vACC2}:{vACC2+3}], v[{vONES}:{vONES+3}], v[{vQ+4*kb}:{vQ+4*kb+3}], {c1}")
    A("s_waitcnt lgkmcnt(0)")
    A(f"v_readfirstlane_b32 s{sPROG}, v{vTMP}")
    stamp(5)
    vRL = vLS + 2
    def lse_part():
        A(f"v_log_f32 v{vLS+1}, v{vACC2}")
        A(f"v_rcp_f32 v{vRL}, v{vACC2}")
        A("s_nop 0")
        A(f"v_mul_f32 v{vRL}, {fbits(2.0**LO_):#x}, v{vRL}")
        d = g.lab("L_nolse")
        A(f"s_cmp_lg_u32 s{sC}, 0")
        A(f"s_cbranch_scc1 {d}")
        A(f"v_add_f32 v{vM}, v{vM}, v{vLS+1}")
        A(f"v_mov_b32 v{vLS+1}, s{sT}")
        A(f"v_lshlrev_b32 v{vTMP2}, 3, v0")
        A("s_mov_b64 exec, 0xff")
        if not (opt.dbg & 1):
            A(f"global_store_dwordx2 v{vTMP2}, v[{vLS}:{vLS+1}], s[{sFA}:{sFA+1}] sc1")
            if opt.lcnt:
                A(f"s_bfm_b64 exec, {NREP}, 0")
                A(f"v_mov_b32 v{vTMP2}, 0x10000")
                A(f"global_atomic_add v{vFLG}, v{vTMP2}, s[{sGB}:{sGB+1}] sc1")
        A("s_mov_b64 exec, -1")
        A(f"{d}:")
    A(f"s_cmp_lt_u32 s{sPROG}, 20")
    A("s_cbranch_scc1 L_pv_slow")
    def oflag():
        if opt.olead < 0: return
        d = g.lab("L_of")
        A(f"s_cmp_lg_u32 s{sWDN}, 0")
        A(f"s_cbranch_scc1 {d}")
        flag_now("q")
        A(f"{d}:")
    wreads(0, 7)
    lse_part()
    oflag()
    for kb in range(7):
        A(f"s_waitcnt lgkmcnt({14-2*kb if kb else 12})")
        if kb == 0: wreads(7, 8)
        mf(kb, kb == 0)
    A("s_branch L_pv_last")
    pad("M")
    A("L_pv_slow:")
    A("s_nop 4")
    lse_part()
    for kb in range(8):
        wait_prog(False, 12 + kb + 1)
        wreads(kb, kb+1)
        if 12 + kb + 1 == 20 - opt.olead: oflag()
        if kb:
            A("s_waitcnt lgkmcnt(2)")
            mf(kb-1, kb == 1)
    A("L_pv_last:")
    A("s_waitcnt lgkmcnt(0)")
    mf(7, False)
    A("s_nop 7")
    encode(vRL, vOTP, vOTA)
    A("s_mov_b32 exec_lo, 0x00ff00ff\ns_mov_b32 exec_hi, 0x00ff00ff")
    staged(F_PUB1, 7, 2 << 14, "q" if (opt.olead < 0 and not opt.notif) else None)
    stamp(6)
    if opt.ackst:
        A("s_waitcnt vmcnt(0)"); stamp(3)
    C('role M: set-up of the final reduction and of the W_down tile; h = relu(gate) * up')
    A(f"s_and_b32 s{sTMP2}, s{sXCD if opt.rmap else sR}, 1")
    A(f"s_lshl_b32 s{sTMP2}, s{sTMP2}, 4")
    A(f"v_and_b32 v{vTMP2}, 12, v0")
    A(f"v_add_u32 v{vTMP2}, v{vTMP2}, v9")
    cwait_rd(F_QRDY, 1, 0, lambda: A(f"ds_read_b32 v{vRG}, v{vTMP2} offset:{F_G}"))
    if opt.rmap:
        assert not opt.fgate
        A(f"s_sub_u32 s{sTMP3}, s2, 128")
    else:
        A(f"s_lshl4_add_u32 s{sTMP}, s{sXCD}, s{sR}")
        A(f"s_sub_u32 s{sTMP3}, s{sTMP}, 16")
    A(f"s_lshl3_add_u32 s{sTMP}, s{sTMP3}, s{sC}")
    A(f"s_lshl_b32 s{sTMP}, s{sTMP}, 9")
    ws_addr(sRA, WS_FP, sTMP)
    A(f"v_lshlrev_b32 v{vRR}, 2, v0")
    A(f"v_add_u32 v{vRR}, {RS}, v{vRR}")
    A(f"s_lshl_b32 s{sTMP}, s{sC}, 8")
    A(f"v_add_u32 v{vRW}, s{sTMP}, v{vRR}")
    A(f"v_and_b32 v{vOUT}, 12, v0")
    A(f"v_lshlrev_b32 v{vOUT}, 9, v{vOUT}")
    A(f"v_and_b32 v{vTMP2}, 3, v0")
    A(f"v_lshl_or_b32 v{vOUT}, v{vTMP2}, 3, v{vOUT}")
    A(f"v_lshrrev_b32 v{vTMP2}, 4, v0")
    A(f"v_lshl_or_b32 v{vOUT}, v{vTMP2}, 1, v{vOUT}")
    A(f"s_lshl_b32 s{sTMP2}, s{sTMP2}, 9")
    A(f"s_lshr_b32 s{sTMP3}, s{sTMP3}, 1")
    A(f"s_lshl_b32 s{sTMP3}, s{sTMP3}, 5")
    A(f"s_add_u32 s{sTMP2}, s{sTMP2}, s{sTMP3}")
    A(f"v_add_u32 v{vOUT}, s{sTMP2}, v{vOUT}")
    if opt.vtouch & 1:
        A(f"s_cmp_lg_u32 s{sC}, 7")
        A("s_cbranch_scc1 L_novt")
        A("s_mov_b64 exec, 1")
        A(f"global_load_ushort v127, v{vOUT}, s[{sOUT}:{sOUT+1}] sc1")
        A("s_mov_b64 exec, -1")
        A("L_novt:")
    A("s_waitcnt lgkmcnt(0)")
    A(f"s_cmp_lt_u32 s{sC}, 4")
    A("s_cbranch_scc1 L_wg_done")
    A(f"v_sub_f32 v{vRG}, 1.0, v{vRG}")
    rbf(vRG)
    A("L_wg_done:")
    A(f"v_mul_f32 v{vRG}, {fbits(2.0**-LF):#x}, v{vRG}")
    setsca(LG)
    late_setup(RA, 16, 27)
    A(f"s_add_u32 s{sTMP}, s{sC}, s{sLR}")
    A(f"s_cmp_ge_u32 s{sTMP}, 7")
    A(f"s_cselect_b32 s{sTMP2}, 7, 0")
    A(f"s_sub_u32 s{sTMP}, s{sTMP}, s{sTMP2}")
    A(f"s_add_u32 s{sTMP}, s{sTMP}, s{sKB0}")
    A(f"s_lshl_b32 s{sTMP}, s{sTMP}, 11")
    ws_addr(sGA, WS_GP, sTMP)
    for r in range(4): A(f"v_mov_b32 v{vS0+r}, 0")
    late_wait()
    A(f"s_cmp_eq_u32 s{sC}, 7")
    A("s_cbranch_scc1 L_late")
    stamp(7)
    def rnd4(v):
        A(f"v_cvt_pk_bf16_f32 v{vB}, v{v}, v{v+1}")
        A(f"v_cvt_pk_bf16_f32 v{vB+1}, v{v+2}, v{v+3}")
        for h in range(2):
            A(f"v_lshlrev_b32 v{v+2*h}, 16, v{vB+h}")
            A(f"v_and_b32 v{v+2*h+1}, 0xffff0000, v{vB+h}")
    def hwork(i):
        if i == 2: late_post_issue()
        if i == 3: late_post()
        acc(i, vS0 if i < 2 else vS1, i in (0, 2))
        if i == 1:
            for r in range(4): A(f"v_max_f32 v{vS0+r}, 0, v{vS0+r}")
            if opt.hround: rnd4(vS0)
        if i == 3:
            if opt.hround: rnd4(vS1)
            for r in (0, 2): A(f"v_pk_mul_f32 v[{vS0+r}:{vS0+r+1}], v[{vS0+r}:{vS0+r+1}], v[{vS1+r}:{vS1+r+1}]")
    gather(mid=late_mid, cntstamp=13, sleep=opt.gsleep, work=hwork)
    stamp(8)

    C('late GEMV against the wo / W_down tile, partial result out')
    if opt.touch: A("s_branch L_late")
    pad("A")
    A("L_late:")
    A(f"v_cvt_pk_bf16_f32 v{vGA}, v{vS0}, v{vS0+1}")
    A(f"v_cvt_pk_bf16_f32 v{vGA+1}, v{vS0+2}, v{vS0+3}")
    A(f"ds_write_b64 v{vAFW}, v[{vGA}:{vGA+1}]")
    if opt.lflow == 1:
        signal(F_BA)
        if opt.fine: stamp(3)
        A(f"s_cmp_eq_u32 s{sWDN}, 99")
        A("s_cbranch_scc1 L_late_bar")
        A("L_late_spin:")
        A(f"ds_read2_b32 v[{vTMP}:{vTMP+1}], v9 offset0:{F_PROG//4} offset1:{F_BA//4}")
        A("s_waitcnt lgkmcnt(0)")
        A(f"v_readfirstlane_b32 s{sPROG}, v{vTMP}")
        A(f"v_readfirstlane_b32 s{sTMP2}, v{vTMP+1}")
        wcatch()
        A(f"s_cmp_eq_u32 s{sWDN}, 99")
        A("s_cbranch_scc1 L_late_bar0")
        A(f"s_cmp_lt_u32 s{sWDN}, 27")
        A("s_cbranch_scc1 L_late_spin")
        A(f"s_cmp_lt_u32 s{sTMP2}, 8")
        A("s_cbranch_scc1 L_late_spin")
        actreads(8, True)
        for kb in range(6):
            A(f"s_waitcnt lgkmcnt({7-kb})")
            mf(kb, kb == 0)
        A("s_barrier")
        wreads(6, 8)
        A("s_waitcnt lgkmcnt(2)")
        mf(6, False)
        A("s_waitcnt lgkmcnt(0)")
        mf(7, False)
        A("s_branch L_late_done")
        pad("A")
        A("L_late_bar:")
        A("s_waitcnt lgkmcnt(0)")
        A("L_late_bar0:")
        A("s_barrier")
        if opt.fine: stamp(4)
        actreads(8, True)
        for kb in range(8):
            A(f"s_waitcnt lgkmcnt({7-kb})")
            mf(kb, kb == 0)
    else:
        if opt.fine: stamp(3)
        if opt.lflow == 3: signal(F_BA)
        A(f"s_cmp_ge_u32 s{sWDN}, {opt.wmin}")
        A(f"s_cbranch_scc1 {'L_late_w6' if opt.lflow == 3 else 'L_late_bar'}")
        wait_prog(False, opt.wmin - 1)
        wcatch()
        if opt.lflow == 3:
            A("L_late_w6:")
            A(f"s_cmp_eq_u32 s{sWDN}, 99")
            A("s_cbranch_scc1 L_late_bar")
            A("L_late_spin:")
            A(f"ds_read2_b32 v[{vTMP}:{vTMP+1}], v9 offset0:{F_PROG//4} offset1:{F_BA//4}")
            A("s_waitcnt lgkmcnt(0)")
            A(f"v_readfirstlane_b32 s{sPROG}, v{vTMP}")
            A(f"v_readfirstlane_b32 s{sTMP2}, v{vTMP+1}")
            A(f"s_cmp_ge_u32 s{sPROG}, s{sPE}")
            A("s_cbranch_scc1 L_late_bar")
            A(f"s_cmp_lt_u32 s{sTMP2}, 8")
            A("s_cbranch_scc1 L_late_spin")
            n0 = opt.wmin - 21
            actreads(8, True)
            for kb in range(n0):
                A(f"s_waitcnt lgkmcnt({7-kb})")
                mf(kb, kb == 0)
            A("s_barrier")
            wreads(n0, 8)
            for kb in range(n0, 8):
                A(f"s_waitcnt lgkmcnt({2*(7-kb)})")
                mf(kb, False)
            A("s_branch L_late_done")
        A("L_late_bar:")
        A(f"s_cmp_eq_u32 s{sWDN}, 99")
        A("s_waitcnt lgkmcnt(0)")
        A("s_barrier")
        A("s_cbranch_scc1 L_late_act")
        wreads(opt.wmin - 21, 8)
        A("L_late_act:")
        if opt.fine: stamp(4)
        actreads(8, True)
        for kb in range(8):
            A(f"s_waitcnt lgkmcnt({7-kb})")
            mf(kb, kb == 0)
    A("L_late_done:")
    if opt.fine: stamp(5)
    A("s_nop 7")
    publish(vACC, sFA)
    A("s_mov_b64 exec, -1")
    stamp(9)
    A(f"s_cmp_ge_u32 s{sR}, 16")
    A("s_cbranch_scc1 L_red")
    if opt.fixdur:
        A(f"s_cmp_eq_u32 s{sC}, 0")
        A("s_cbranch_scc1 L_noepoch")
    A("s_branch L_exit")
    pad("A")
    C('final reduction: out = g * sum(a partials) + (1 - g) * sum(b partials)')
    A("L_red:")
    A(f"s_mov_b64 s[{sGA}:{sGA+1}], s[{sRA}:{sRA+1}]")
    if opt.fgate and not opt.fbar: cwait(F_FRDY, 1)
    A(f"v_mov_b32 v{vSCA}, v{vRG}")
    if opt.fgate and opt.fbar: A("s_barrier")
    def fwork(i): acc(0, vS0, True)
    gather(nld=1, cntstamp=12, sleep=opt.fgsleep, work=fwork)
    if not opt.stq: stamp(2)
    A("s_nop 1")
    A(f"v_permlane32_swap_b32 v{vS0}, v{vS0+2}")
    A(f"v_permlane32_swap_b32 v{vS0+1}, v{vS0+3}")
    A(f"v_add_f32 v{vS0}, v{vS0}, v{vS0+2}")
    A(f"v_add_f32 v{vS0+1}, v{vS0+1}, v{vS0+3}")
    A("s_nop 1")
    A(f"v_permlane16_swap_b32 v{vS0}, v{vS0+1}")
    A(f"v_add_f32 v{vGA}, v{vS0}, v{vS0+1}")
    A(f"ds_write_b32 v{vRW}, v{vGA}")
    A("s_mov_b64 exec, 1")
    A(f"ds_add_rtn_u32 v{vTMP}, v9, v{vONE} offset:{F_RED}")
    A("s_mov_b64 exec, -1")
    for i in range(4):
        A(f"ds_read2st64_b32 v[{vGA+2*i}:{vGA+2*i+1}], v{vRR} offset0:{2*i} offset1:{2*i+1}")
    A("s_waitcnt lgkmcnt(4)")
    A(f"v_readfirstlane_b32 s{sTMP}, v{vTMP}")
    A(f"s_cmp_lg_u32 s{sTMP}, 7")
    A("s_cbranch_scc1 L_exit")
    A("s_waitcnt lgkmcnt(0)")
    A(f"v_pk_add_f32 v[{vGA}:{vGA+1}], v[{vGA}:{vGA+1}], v[{vGA+2}:{vGA+3}]")
    A(f"v_pk_add_f32 v[{vGA+4}:{vGA+5}], v[{vGA+4}:{vGA+5}], v[{vGA+6}:{vGA+7}]")
    A(f"v_pk_add_f32 v[{vGA}:{vGA+1}], v[{vGA}:{vGA+1}], v[{vGA+4}:{vGA+5}]")
    A(f"v_add_f32 v{vGA}, v{vGA}, v{vGA+1}")
    A(f"v_cvt_pk_bf16_f32 v{vGA}, v{vGA}, v{vGA}")
    A(f"global_store_short v{vOUT}, v{vGA}, s[{sOUT}:{sOUT+1}] {opt.outflags}")
    A(f"s_cmp_lg_u32 s2, 128")
    A("s_cbranch_scc1 L_noepoch")
    A("s_mov_b64 exec, 1")
    A(f"v_mov_b32 v{vTMP}, 0")
    A(f"global_store_dword v{vTMP}, v{vT}, s[{sWS}:{sWS+1}] sc1")
    A("s_mov_b64 exec, -1")
    A("L_noepoch:")
    if opt.fixdur:
        A(f"s_cmp_lg_u32 s2, {opt.fixwg}")
        A("s_cbranch_scc1 L_nofix")
        if opt.lprobe:
            A("s_cmp_lg_u32 s3, 0")
            A("s_cbranch_scc1 L_nofix")
        if opt.probe == 20: A("s_memrealtime s[96:97]")
        A("s_waitcnt lgkmcnt(0)")
        A(f"s_sub_u32 s96, s96, s{94 if opt.probe0 >= 0 else 98}")
        A("s_min_u32 s96, s96, 3000")
        A(f"s_mul_i32 s96, s96, {opt.amp if opt.probe >= 0 else 0}")
        A(f"s_add_u32 s96, s96, {opt.fixdur}")
        A("L_fixd:")
        A("s_memrealtime s[14:15]")
        A("s_waitcnt lgkmcnt(0)")
        A("s_sub_u32 s14, s14, s98")
        A(f"s_cmp_lt_u32 s14, s96")
        A("s_cbranch_scc1 L_fixd")
        A("L_nofix:")
    if STAMP:
        A("s_waitcnt vmcnt(0)")
        stamp(1, True)
    A("s_branch L_exit")

    pad("A")
    C('subroutine: transposing LDS reads of the late tile blocks that have landed')
    A("L_wcatch:")
    for kb in range(8):
        nx = f"L_wcn{kb}"
        if kb < 7:
            A(f"s_cmp_gt_u32 s{sWDN}, {21+kb}")
            A(f"s_cbranch_scc1 {nx}")
        if kb:
            A(f"s_cmp_lt_u32 s{sPROG}, s{sWDN}")
            A("s_cbranch_scc1 L_wcret")
        wreads(kb, kb+1)
        if kb < 6: A(f"s_mov_b32 s{sWDN}, {22+kb}")
        elif kb == 6: A(f"s_mov_b32 s{sWDN}, s{sPE}")
        else: A(f"s_mov_b32 s{sWDN}, 99")
        if kb < 7: A(f"{nx}:")
    A("L_wcret:")
    A(f"s_setpc_b64 s[{sRET}:{sRET+1}]")

    C('role C: g = sigmoid(x . gate_w) for four batch rows')
    A("L_gate:")
    vXr, vGWr = vK, vK + 8
    A(f"s_cmp_lt_u32 s{sC}, 4")
    A("s_cbranch_scc1 L_bc_late")
    wait_prog(False, 4, sleep=1)
    A(f"s_and_b32 s{sTMP}, s{sR}, 1")
    A(f"s_lshl2_add_u32 s{sTMP}, s{sTMP}, s{sC}")
    A(f"s_sub_u32 s{sTMP3}, s{sTMP}, 4")
    A(f"s_lshl_b32 s{sTMP}, s{sTMP3}, 11")
    A(f"v_add_u32 v{vTMP3}, s{sTMP}, v{vL16}")
    for i in range(2):
        A(f"global_load_dwordx4 v[{vXr+4*i}:{vXr+4*i+3}], v{vTMP3}, s[{sX}:{sX+1}] offset:{1024*i}")
        A(f"global_load_dwordx4 v[{vGWr+4*i}:{vGWr+4*i+3}], v{vL16}, s[{sGW}:{sGW+1}] offset:{1024*i}")
    A(f"v_mov_b32 v{vACC2}, 0")
    A("s_waitcnt vmcnt(0)")
    for i in range(8):
        A(f"v_lshlrev_b32 v{vW}, 16, v{vXr+i}")
        A(f"v_and_b32 v{vW+1}, 0xffff0000, v{vXr+i}")
        A(f"v_lshlrev_b32 v{vW+2}, 16, v{vGWr+i}")
        A(f"v_and_b32 v{vW+3}, 0xffff0000, v{vGWr+i}")
        A(f"v_mul_f32 v{vW}, v{vW}, v{vW+2}")
        A(f"v_mul_f32 v{vW+1}, v{vW+1}, v{vW+3}")
        A(f"v_cvt_pk_bf16_f32 v{vW}, v{vW}, v{vW+1}")
        A(f"v_lshlrev_b32 v{vW+1}, 16, v{vW}")
        A(f"v_and_b32 v{vW}, 0xffff0000, v{vW}")
        A(f"v_add_f32 v{vACC2}, v{vACC2}, v{vW+1}")
        A(f"v_add_f32 v{vACC2}, v{vACC2}, v{vW}")
    for off in (0x041F, 0x081F, 0x101F, 0x201F, 0x401F):
        A(f"ds_swizzle_b32 v{vW}, v{vACC2} offset:{off:#x}")
        A("s_waitcnt lgkmcnt(0)")
        A(f"v_add_f32 v{vACC2}, v{vACC2}, v{vW}")
    A(f"v_mov_b32 v{vW}, v{vACC2}")
    A("s_nop 1")
    A(f"v_permlane32_swap_b32 v{vACC2}, v{vW}")
    A(f"v_add_f32 v{vACC2}, v{vACC2}, v{vW}")
    rbf(vACC2)
    A(f"v_mul_f32 v{vACC2}, 0xbfb8aa3b, v{vACC2}")
    A(f"v_exp_f32 v{vACC2}, v{vACC2}")
    A("s_nop 0")
    A(f"v_add_f32 v{vACC2}, 1.0, v{vACC2}")
    A(f"v_rcp_f32 v{vACC2}, v{vACC2}")
    A("s_nop 0")
    rbf(vACC2)
    A(f"s_and_b32 s{sTMP}, s{sR}, 1")
    A(f"s_lshl1_add_u32 s{sTMP}, s{sXCD}, s{sTMP}")
    A(f"s_lshl4_add_u32 s{sTMP}, s{sTMP}, s{sC}")
    A(f"s_lshl_b32 s{sTMP}, s{sTMP}, 3")
    A(f"s_add_u32 s{sTMP}, s{sTMP}, {WS_GL - 32}")
    A(f"v_mov_b32 v{vTMP2}, s{sTMP}")
    A(f"v_mov_b32 v{vACC2+1}, s{sT}")
    A("s_mov_b64 exec, 1")
    if not (opt.dbg & 1): A(f"global_store_dwordx2 v{vTMP2}, v[{vACC2}:{vACC2+1}], s[{sWS}:{sWS+1}] sc1")
    A("s_mov_b64 exec, -1")
    A("s_branch L_bc_late")

    C('hand-off format: 4 x f16 per 8 bytes, low two bits = exponent code / tag. Rare paths for other magnitudes')
    A("L_encs:")
    A(f"v_lshrrev_b32 v{vTMP}, 23, v{vTMP}")
    A(f"v_subrev_u32 v{vTMP}, 126, v{vTMP}")
    A(f"v_ashrrev_i32 v{vTMP}, 4, v{vTMP}")
    A(f"v_med3_i32 v{vTMP}, v{vTMP}, -8, 7")
    A(f"v_cndmask_b32 v{vTMP}, 0, v{vTMP}, vcc")
    A(f"v_and_b32 v{vAX}, 15, v{vTMP}")
    A(f"v_lshl_or_b32 v{vAX}, v{vAX}, 14, v{vAX}")
    A(f"v_and_b32 v{vAX}, s{sM3}, v{vAX}")
    A(f"v_mul_i32_i24 v{vTMP}, -16, v{vTMP}")
    for r in range(4): A(f"v_ldexp_f32 v{vACC+r}, v{vACC+r}, v{vTMP}")
    A("s_mov_b64 vcc, 0")
    A("s_setpc_b64 s[6:7]")
    A("L_fixr:")
    for i in range(4): A(f"v_xor_b32 v{vGA+2*i+1}, v{vTC}, v{vGA+2*i+1}")
    A("L_fix:")
    for i in range(4):
        A(f"v_and_b32 v{vTMP}, 3, v{vGA+2*i}")
        A(f"v_bfe_i32 v{vTMP2}, v{vGA+2*i}, 16, 2")
        A(f"v_lshl_or_b32 v{vTMP}, v{vTMP2}, 2, v{vTMP}")
        A(f"v_lshlrev_b32 v{vTMP}, 4, v{vTMP}")
        A(f"v_ldexp_f32 v{vSCA+i}, v{vSCA+i}, v{vTMP}")
    A("s_setpc_b64 s[6:7]")

    if opt.notif:
        C('wave 10: bumps the ready counters (hints only, the tags decide) once the last early block has landed')
        A("L_notif:")
        if opt.nocomm: A("s_branch L_exit")
        if opt.tlb:
            A("s_mov_b64 exec, 1")
            A(f"v_mov_b32 v{vGA}, 0")
            if opt.tlb & 1:
                A(f"global_load_dword v{vGA+1}, v{vGA}, s[{sOUT}:{sOUT+1}] sc1")
                A(f"global_load_dword v{vGA+2}, v{vGA}, s[{sWS}:{sWS+1}] offset:512 sc1")
            if opt.tlb & 2:
                A(f"s_lshl_b32 s{sTMP}, s{sKB0}, 16")
                A(f"v_mov_b32 v{vGA+8}, s{sTMP}")
                A(f"s_cmp_ge_u32 s{sR}, 16")
                A("s_cbranch_scc1 L_tlbM")
                A(f"global_load_dword v{vGA+3}, v{vGA+8}, s[{sWO}:{sWO+1}] nt")
                A(f"s_cmp_eq_u32 s{sROLE}, 2")
                A("s_cbranch_scc1 L_tlbD")
                A(f"s_bitcmp0_b32 s{sBETA}, 1")
                A(f"s_cselect_b64 s[4:5], s[{sWG}:{sWG+1}], s[{sWU}:{sWU+1}]")
                A(f"s_and_b32 s{sTMP}, s{sBETA}, 1")
                A(f"s_mul_i32 s{sTMP}, s{sTMP}, {512*7168}")
                A("s_mov_b64 exec, 7")
                A(f"v_mul_u32_u24 v{vGA+9}, {255*7168}, v0")
                A(f"v_add_u32 v{vGA+9}, s{sTMP}, v{vGA+9}")
                A(f"global_load_dword v{vGA+4}, v{vGA+9}, s[4:5] nt")
                A("s_branch L_tlbD")
                A("L_tlbM:")
                A(f"global_load_dword v{vGA+3}, v{vGA+8}, s[{sWD}:{sWD+1}] nt")
                A(f"s_lshl2_add_u32 s{sTMP}, s{sBB}, s{sG}")
                A(f"s_lshl_b32 s{sTMP}, s{sTMP}, 20")
                A(f"v_mov_b32 v{vGA+9}, s{sTMP}")
                A(f"global_load_dword v{vGA+4}, v{vGA+9}, s[{sV}:{sV+1}] nt")
                A("L_tlbD:")
            A("s_mov_b64 exec, -1")
        A(f"s_cmp_eq_u32 s{sROLE}, 2")
        A("s_cbranch_scc1 L_exit")
        A(f"s_cmp_ge_u32 s{sR}, 16")
        A("s_cbranch_scc1 L_notifM")
        hc_addr()
        wait_prog(False, opt.nprogh - 1, sleep=2)
        wait_prog(False, opt.nprogh)
        if opt.ndelay: A(f"s_sleep {opt.ndelay}")
        bump("h")
        A("s_branch L_exit")
        A("L_notifM:")
        A(f"s_mul_i32 s{sTMP}, s{sG}, {32*CS}")
        ws_addr(sGB, WS_OC, sTMP)
        cwait(F_BP, 8, sleep=2)
        refresh_prog()
        A(f"s_cmp_lt_u32 s{sPROG}, {opt.nprogo}")
        A("s_cbranch_scc1 L_notifV")
        cwait(F_PUB1, 1)
        A("L_notifV:")
        wait_prog(False, opt.nprogo - 1, sleep=2)
        wait_prog(False, opt.nprogo)
        if opt.ndelay + opt.odelay: A(f"s_sleep {opt.ndelay + opt.odelay}")
        bump("q")
        A("s_branch L_exit")

    C('wave 9: watches the ready counters through the scalar path, softmax weights of the four key splits')
    A("L_poller:")
    if opt.nocomm: A("s_branch L_exit")
    A(f"s_cmp_ge_u32 s{sR}, 16")
    A("s_cbranch_scc1 L_pollM")
    A(f"s_lshl3_add_u32 s{sTMP}, s{sRBK}, s{sCB}")
    A(f"s_and_b32 s{sTMP}, s{sTMP}, {NREP-1}")
    A(f"s_lshl_b32 s{sTMP2}, s{sG}, 5")
    A(f"s_add_u32 s{sTMP}, s{sTMP}, s{sTMP2}")
    A(f"s_mul_i32 s{sTMP}, s{sTMP}, {CS}")
    ws_addr(sGB, WS_OC, sTMP)
    A(f"s_load_dword s4, s[{sGB}:{sGB+1}], 0 glc")
    A(f"s_and_b32 s{sTMP}, s{sRBK}, 3")
    A(f"s_lshl_b32 s{sTMP}, s{sTMP}, 4")
    A(f"s_lshl_b32 s{sTMP2}, s{sG}, 11")
    A(f"s_add_u32 s{sTMP}, s{sTMP}, s{sTMP2}")
    ws_addr(sGA, WS_LSE, sTMP)
    A(f"v_and_b32 v{vTMP3}, 31, v0")
    A(f"v_lshlrev_b32 v{vTMP3}, 6, v{vTMP3}")
    A(f"v_lshrrev_b32 v{vTMP2}, 5, v0")
    A(f"v_lshl_or_b32 v{vTMP3}, v{vTMP2}, 3, v{vTMP3}")
    A("s_waitcnt lgkmcnt(0)")
    A(f"v_lshl_add_u32 v{vWA}, v0, 2, v9")
    A(f"s_cmp_eq_u32 s{sROLE}, 2")
    A(f"s_cselect_b32 s{sTMP2}, {opt.ogatec}, {opt.ogate}")
    A(f"s_add_u32 s5, s4, {0x200020 if opt.lcnt else 32}")
    for k, l in touch:
        if k in "AB": A(f"s_call_b64 s[6:7], {l}")
    wait_prog(True, sTMP2, sleep=2)
    stamp(2)
    if not (opt.dbg & 7):
        A(f"s_mov_b32 s{sCNT}, 0")
        if opt.psleep: A("s_branch L_pl1e")
        A("L_pl1:")
        if opt.psleep:
            A(f"s_sleep {opt.psleep}")
            A("L_pl1e:")
        A(f"s_load_dword s8, s[{sGB}:{sGB+1}], 0 glc")
        A(f"s_add_u32 s{sCNT}, s{sCNT}, 1")
        A(f"s_cmp_gt_u32 s{sCNT}, {opt.maxhint}")
        A("s_waitcnt lgkmcnt(0)")
        A("s_cbranch_scc1 L_pl1d")
        A("s_sub_u32 s9, s8, s4")
        A(f"s_cmp_lt_u32 s9, {0x200000 if opt.lcnt else opt.lthr}")
        A("s_cbranch_scc1 L_pl1")
        A("L_pl1d:")
        stampval(10, sCNT)
    stamp(3)
    A("s_mov_b32 s9, 0")
    A(f"s_mov_b32 s{sTMP3}, 0")
    A("L_lse:")
    if not (opt.dbg & 2): A(f"global_load_dwordx2 v[{vLS}:{vLS+1}], v{vTMP3}, s[{sGA}:{sGA+1}] sc1")
    if not (opt.dbg & 7):
        A("s_cmp_lg_u32 s9, 0")
        A("s_cbranch_scc1 L_lse_wait")
        A("L_pl2:")
        A("s_cmp_eq_u32 s8, s5")
        A("s_cbranch_scc1 L_pl_sig")
        A(f"s_cmp_gt_u32 s{sCNT}, {opt.maxhint}")
        A("s_cbranch_scc1 L_pl_sig")
        A("s_getreg_b32 s10, hwreg(HW_REG_IB_STS, 0, 4)")
        A("s_cmp_eq_u32 s10, 0")
        A("s_cbranch_scc1 L_lse_wait")
        A(f"s_load_dword s8, s[{sGB}:{sGB+1}], 0 glc")
        A(f"s_add_u32 s{sCNT}, s{sCNT}, 1")
        A("s_waitcnt lgkmcnt(0)")
        A("s_branch L_pl2")
        A("L_pl_sig:")
        signal(F_LRDY)
        A("s_mov_b32 s9, 1")
        stamp(5)
    A("L_lse_wait:")
    if not (opt.dbg & 7):
        A(f"s_load_dword s8, s[{sGB}:{sGB+1}], 0 glc")
    A(f"s_add_u32 s{sTMP3}, s{sTMP3}, 1")
    A("s_waitcnt vmcnt(0)")
    A(f"v_cmp_ne_u32 vcc, s{sT}, v{vLS+1}")
    A(f"s_cbranch_vccz L_lsed")
    A(f"s_cmp_le_u32 s{sTMP3}, {0 if (opt.dbg & 7) else opt.maxpoll}")
    A("s_waitcnt lgkmcnt(0)")
    A(f"s_cbranch_scc1 L_lse")
    A("L_lsed:")
    stampval(12, sTMP3)
    A(f"v_max_f32_dpp v{vTMP}, v{vLS}, v{vLS} quad_perm:[1,0,3,2] row_mask:0xf bank_mask:0xf")
    A("s_nop 1")
    A(f"v_max_f32_dpp v{vTMP}, v{vTMP}, v{vTMP} quad_perm:[2,3,0,1] row_mask:0xf bank_mask:0xf")
    A(f"v_sub_f32 v{vLS}, v{vLS}, v{vTMP}")
    A(f"v_exp_f32 v{vLS}, v{vLS}")
    A("s_nop 1")
    A(f"v_add_f32_dpp v{vTMP}, v{vLS}, v{vLS} quad_perm:[1,0,3,2] row_mask:0xf bank_mask:0xf")
    A("s_nop 1")
    A(f"v_add_f32_dpp v{vTMP}, v{vTMP}, v{vTMP} quad_perm:[2,3,0,1] row_mask:0xf bank_mask:0xf")
    A(f"v_rcp_f32 v{vTMP}, v{vTMP}")
    A("s_nop 0")
    A(f"v_mul_f32 v{vLS}, v{vLS}, v{vTMP}")
    A(f"v_mul_f32 v{vLS}, {fbits(2.0**-LO_):#x}, v{vLS}")
    A(f"ds_write_b32 v{vWA}, v{vLS} offset:{F_WT}")
    signal(F_WRDY)
    stamp(4)
    if not (opt.dbg & 7):
        A("s_cmp_lg_u32 s9, 0")
        A("s_cbranch_scc1 L_pl_fin")
        A("s_waitcnt lgkmcnt(0)")
        A("s_cmp_eq_u32 s8, s5")
        A("s_cbranch_scc1 L_pl_sig2")
    pollcnt(sGB, 5, opt.psleep, cntstamp=11)
    A("L_pl_sig2:")
    signal(F_LRDY)
    stamp(5)
    A("L_pl_fin:")
    A("s_barrier")
    A("s_branch L_exit")
    A("L_pollM:")
    A(f"s_lshl2_add_u32 s{sTMP}, s{sBB}, s{sSPL}")
    A(f"s_lshr_b32 s{sTMP}, s{sTMP}, {int(math.log2(32//NREP))}")
    A(f"s_lshl_b32 s{sTMP2}, s{sG}, 5")
    A(f"s_add_u32 s{sTMP}, s{sTMP}, s{sTMP2}")
    A(f"s_mul_i32 s{sTMP}, s{sTMP}, {CS}")
    ws_addr(sGB, WS_QC, sTMP)
    if opt.qhint: A(f"s_load_dword s4, s[{sGB}:{sGB+1}], 0 glc")
    A(f"s_mul_i32 s{sTMP}, s{sRBK}, {HREP}")
    A(f"s_and_b32 s{sTMP2}, s{sCB}, {HREP-1}")
    A(f"s_add_u32 s{sTMP}, s{sTMP}, s{sTMP2}")
    A(f"s_mul_i32 s{sTMP}, s{sTMP}, {CS}")
    ws_addr(sGA, WS_HC, sTMP)
    A(f"s_load_dword s5, s[{sGA}:{sGA+1}], 0 glc")
    if opt.fgate:
        A(f"s_and_b32 s{sTMP}, s{sR}, {opt.frep-1}")
        A(f"s_lshl4_add_u32 s{sTMP}, s{sXCD}, s{sTMP}")
        A(f"s_mul_i32 s{sTMP}, s{sTMP}, {CS}")
        ws_addr(10, WS_FC, sTMP)
        A(f"s_load_dword s6, s[10:11], 0 glc")
    A(f"s_bitcmp1_b32 s{sKB0}, 1")
    A(f"s_cselect_b32 s{sTMP}, 12, 8")
    A("s_waitcnt lgkmcnt(0)")
    if opt.fgate: A("s_add_u32 s6, s6, 32")
    A("s_add_u32 s4, s4, 64")
    A(f"s_add_u32 s5, s5, s{sTMP}")
    if opt.fgate: A("s_mov_b32 s9, s6")
    for k, l in touch:
        if k in "AM": A(f"s_call_b64 s[6:7], {l}")
    if opt.qhint:
        wait_prog(False, opt.qgate, sleep=2)
        stamp(2)
        pollcnt(sGB, 4, opt.psleep, cntstamp=10)
        signal(F_QRDY)
        stamp(3)
    assert not opt.qhint
    if opt.rmap:
        A(f"s_and_b32 s{sTMP}, s{sR}, 1")
        A(f"s_xor_b32 s{sTMP2}, s{sXCD}, s{sTMP}")
        A(f"s_and_b32 s{sTMP}, s{sXCD}, 1")
        A(f"s_lshl1_add_u32 s{sTMP}, s{sTMP2}, s{sTMP}")
    else:
        A(f"s_and_b32 s{sTMP}, s{sR}, 1")
        A(f"s_lshl1_add_u32 s{sTMP}, s{sXCD}, s{sTMP}")
    A(f"s_lshl_b32 s{sTMP}, s{sTMP}, 7")
    ws_addr(sGB, WS_GL, sTMP)
    wait_prog(False, opt.ggate, sleep=2)
    A(f"s_mov_b32 s{sCNT}, 0")
    A("L_gp:")
    A(f"s_load_dwordx8 s[16:23], s[{sGB}:{sGB+1}], 0 glc")
    A(f"s_add_u32 s{sCNT}, s{sCNT}, 1")
    A(f"s_cmp_gt_u32 s{sCNT}, {0 if (opt.dbg & 7) else opt.maxpoll}")
    A("s_waitcnt lgkmcnt(0)")
    A("s_cbranch_scc1 L_gpd")
    for i in range(4):
        A(f"s_cmp_eq_u32 s{17+2*i}, s{sT}")
        A("s_cbranch_scc0 L_gp")
    A("L_gpd:")
    for i in range(4): A(f"v_mov_b32 v{vGA+i}, s{16+2*i}")
    A("s_mov_b64 exec, 1")
    A(f"ds_write_b128 v9, v[{vGA}:{vGA+3}] offset:{F_G}")
    signal(F_QRDY)
    stamp(3)
    wait_prog(False, opt.hgate, sleep=2)
    stamp(4)
    pollcnt(sGA, 5, opt.psleep, cntstamp=11)
    signal(F_LRDY)
    stamp(5)
    A("s_barrier")
    if opt.fgate:
        stamp(6)
        pollcnt(10, 9, 0, cntstamp=12)
        if opt.fbar: A("s_barrier")
        else: signal(F_FRDY)
        stamp(7)

    A("L_exit:")
    if STAMP:
        A("s_waitcnt lgkmcnt(0)")
        A(f"s_mul_i32 s{sTMP}, s2, {NWAVES}")
        A(f"s_add_u32 s{sTMP}, s{sTMP}, s3")
        A(f"s_lshl_b32 s{sTMP}, s{sTMP}, 6")
        A(f"s_add_u32 s{sTMP}, s{sTMP}, {WS_STAMP}")
        A(f"v_mov_b32 v1, s{sTMP}")
        A("s_mov_b64 exec, 1")
        for i in range(NST if STAMP == 1 else 10):
            A(f"v_mov_b32 v2, s{sST+2*i}")
            A(f"global_store_dword v1, v2, s[{sWS}:{sWS+1}] offset:{4*i}")
        A(f"v_mov_b32 v2, s{sROLE}")
        A(f"global_store_dword v1, v2, s[{sWS}:{sWS+1}] offset:60")
    A("L_end:")
    A("s_endpgm")

    body = "\n".join(g.o)
    PADTXT = f".p2align 12\n.fill {opt.pad//4}, 4, 0xbf810000\n" if opt.pad >= 0 else ""
    txt = HEADER
    txt += f"; @launch grid=(256,1,1) block=({64*NWAVES},1,1) lds={LDS_BYTES}\n"
    txt += """; One persistent launch, one workgroup per CU; every weight / K / V byte is streamed once into LDS.
;   role M (128 wgs): wq tile, 256 keys of one (batch, kv head), W_down tile, final reduction
"""
    txt += f""".amdgcn_target "amdgcn-amd-amdhsa--gfx950"
.text
.globl {KNAME}
{PADTXT}.p2align 8
.type {KNAME},@function
{KNAME}:
{body}
.section .rodata,"a"
.p2align 6
.amdhsa_kernel {KNAME}
  .amdhsa_next_free_vgpr {NV}
  .amdhsa_next_free_sgpr 102
  .amdhsa_accum_offset {NV}
  .amdhsa_group_segment_fixed_size 0
  .amdhsa_kernarg_size 104
  .amdhsa_user_sgpr_count 2
  .amdhsa_user_sgpr_kernarg_segment_ptr 1
  .amdhsa_system_sgpr_workgroup_id_x 1
.end_amdhsa_kernel
"""
    return txt

def parse(argv):
    ap = argparse.ArgumentParser()
    ap.add_argument("--nt", default="nt")
    ap.add_argument("--pb", default="20:24,8:22")
    ap.add_argument("--pc", default="4:20,d,3:4,5:12")
    ap.add_argument("--pm", default="20:24,7:20")
    ap.add_argument("--nb0", type=int, default=3)
    ap.add_argument("--stamp", type=int, default=0)
    ap.add_argument("--stq", type=int, default=0)
    ap.add_argument("--fdelay", type=int, default=0)
    ap.add_argument("--qgate", type=int, default=9)
    ap.add_argument("--ogate", type=int, default=19)
    ap.add_argument("--ogatec", type=int, default=26)
    ap.add_argument("--hgate", type=int, default=19)
    ap.add_argument("--ggate", type=int, default=13)
    ap.add_argument("--maxpoll", type=int, default=100000)
    ap.add_argument("--psleep", type=int, default=0)
    ap.add_argument("--fsleep", type=int, default=2)
    ap.add_argument("--gsleep", type=int, default=0)
    ap.add_argument("--fgsleep", type=int, default=0)
    ap.add_argument("--sample", type=int, default=0)
    ap.add_argument("--outflags", default="sc1")
    ap.add_argument("--fixdur", type=int, default=0)
    ap.add_argument("--fixwg", type=int, default=128)
    ap.add_argument("--nocomm", type=int, default=0)
    ap.add_argument("--dbg", type=int, default=0)
    ap.add_argument("--cpf", type=int, default=2)
    ap.add_argument("--qlead", type=int, default=-1)
    ap.add_argument("--hlead", type=int, default=-1)
    ap.add_argument("--olead", type=int, default=-1)
    ap.add_argument("--oearly", type=int, default=0)
    ap.add_argument("--flagwave", type=int, default=1)
    ap.add_argument("--xgat", type=int, default=10)
    ap.add_argument("--nrep", type=int, default=8)
    ap.add_argument("--satom", type=int, default=1)
    ap.add_argument("--maxhint", type=int, default=20)
    ap.add_argument("--hround", type=int, default=0)
    ap.add_argument("--fgate", type=int, default=0)
    ap.add_argument("--frep", type=int, default=8)
    ap.add_argument("--flag_delay", type=int, default=1)
    ap.add_argument("--qhint", type=int, default=0)
    ap.add_argument("--qsleep", type=int, default=4)
    ap.add_argument("--lcnt", type=int, default=0)
    ap.add_argument("--lthr", type=int, default=16)
    ap.add_argument("--spec", type=int, default=0)
    ap.add_argument("--ackst", type=int, default=0)
    ap.add_argument("--cstride", type=int, default=640)
    ap.add_argument("--midahead", type=int, default=1)
    ap.add_argument("--fine", type=int, default=0)
    ap.add_argument("--pad", type=lambda x: int(x, 0), default=0xd00)
    ap.add_argument("--touch", type=int, default=0)
    ap.add_argument("--sbias", type=int, default=0)
    ap.add_argument("--period", type=int, default=0)
    ap.add_argument("--toff", type=int, default=650)
    ap.add_argument("--qsync", type=int, default=0)
    ap.add_argument("--lprio", type=int, default=3)
    ap.add_argument("--cprio", type=int, default=0)
    ap.add_argument("--gprio", type=int, default=0)
    ap.add_argument("--kvmode", default="row")
    ap.add_argument("--kvrot", type=int, default=9)
    ap.add_argument("--rotw", type=int, default=1)
    ap.add_argument("--lrot", type=int, default=3)
    ap.add_argument("--lflow", type=int, default=2)
    ap.add_argument("--wmin", type=int, default=27)
    ap.add_argument("--notif", type=int, default=1)
    ap.add_argument("--ndelay", type=int, default=0)
    ap.add_argument("--odelay", type=int, default=0)
    ap.add_argument("--pdelay", type=int, default=6)
    ap.add_argument("--nprogh", type=int, default=20)
    ap.add_argument("--nprogo", type=int, default=20)
    ap.add_argument("--gran", type=int, default=2)
    ap.add_argument("--barpos", type=int, default=1)
    ap.add_argument("--fsat", type=int, default=1)
    ap.add_argument("--gok", type=int, default=7)
    ap.add_argument("--fbar", type=int, default=1)
    ap.add_argument("--specw", type=int, default=1)
    ap.add_argument("--fearly", type=int, default=0)
    ap.add_argument("--tlb", type=int, default=0)
    ap.add_argument("--cpfc", type=int, default=1)
    ap.add_argument("--stlb", type=int, default=7)
    ap.add_argument("--vtouch", type=int, default=0)
    ap.add_argument("--probe", type=int, default=-1)
    ap.add_argument("--pol", default="nnnnnn")
    ap.add_argument("--probe0", type=int, default=-1)
    ap.add_argument("--lprobe", type=int, default=0)
    ap.add_argument("--amp", type=int, default=4)
    ap.add_argument("--tbar", type=int, default=1)
    ap.add_argument("--vden", type=int, default=1)
    ap.add_argument("--tsleep", type=int, default=0)
    ap.add_argument("--qrot", type=int, default=1)
    ap.add_argument("--rmap", type=int, default=0)
    ap.add_argument("--x4dbg", type=int, default=0)
    ap.add_argument("--noretry", type=int, default=0)
    ap.add_argument("--womap", type=int, default=1)
    ap.add_argument("--kvib", default="567234")
    ap.add_argument("--kvsb", default="01")
    ap.add_argument("--kvrots", type=int, default=21)
    ap.add_argument("-o", default=None)
    return ap.parse_args(argv)

if __name__ == "__main__":
    opt = parse(sys.argv[1:])
    t = gen(opt)
    if opt.o: open(opt.o, "w").write(t)
    else: print(t)
```

```python
import sys, argparse, struct, math

KNAME = "gated_mix__sliding_block_cached__glu_gated_reglu__decode_kernel"
HEADER = open("gated_mix__sliding_block_cached__glu_gated_reglu__decode.s.ref").read().split("; Override launch")[0]

RA = 0
RB = 65536
XA = 131072
RQ = RB + 32768
XF = XA
QF = XA + 2048
PF = XA + 4096
RS = XA + 8192
ST = XA + 10240
AF = XA + 12288
FL = XA + 16384
F_PROG, F_LRDY, F_QRDY, F_WRDY, F_BQ, F_BM, F_BP, F_BA, F_RED, F_PUB0, F_PUB1, F_FREE0, F_FREE1, F_ERD, F_FRDY = [4*i for i in range(15)]
F_MAX = 64
F_G = 96
F_WT = 128
LDS_BYTES = FL + 128 + 256

WS_QP = 512 << 10
WS_FP = 1024 << 10
WS_OP = 1536 << 10
WS_GP = 1792 << 10
WS_LSE = 16 << 10
WS_GL = 32 << 10
WS_QC = 64 << 10
WS_OC = 160 << 10
WS_HC = 256 << 10
WS_FC = 352 << 10
WS_STAMP = 8 << 20

class G:
    def __init__(self):
        self.o = []; self.nlab = 0
    def A(self, s):
        for line in s.split("\n"):
            self.o.append("    " + line.strip() if not line.strip().endswith(":") else line.strip())
    def C(self, s):
        for line in s.strip("\n").split("\n"): self.o.append("    ; " + line)
    def lab(self, p="L"):
        self.nlab += 1
        return f"{p}_{self.nlab}"

def plan(s):
    out = []
    for t in s.split(","):
        if t == "d": out.append("d")
        else:
            a, b = t.split(":")
            if "|" in b: out.append((int(a), [int(x) for x in b.split("|")]))
            else: out.append((int(a), tuple(int(x) for x in b.split("/")) if "/" in b else int(b)))
    return out

def gen(opt):
    g = G(); A = g.A; C = g.C
    CS = opt.cstride
    KIB = [int(x) for x in opt.kvib]; KSB = [int(x) for x in opt.kvsb]
    assert KIB[4] == KIB[3] + 1 and KIB[5] == KIB[3] + 2 and KSB[1] == KSB[0] + 1 and sorted(KIB + KSB) == list(range(8))
    NWAVES = 11 if opt.notif else 10
    POL = {k: ('nt' if c == 'n' else '') for k, c in zip(('q','k','v','g','o','d'), opt.pol)}
    cur = ['q']
    STAMP = opt.stamp
    sX, sK, sV, sWQ, sWO, sBX, sWG, sWU = [16+2*i for i in range(8)]
    sWD, sGW, sOUT, sDBG = 32, 34, 36, 38
    sWS = 40
    sXCD, sR, sROLE = 42, 43, 44
    sU, sBETA, sG, sSPL, sRBK, sCB, sBB = 45, 46, 47, 48, 49, 50, 51
    sKS, sKB0 = 100, 101
    sLR = 53
    sWDN = 52
    sT = 54
    sT0, sT1, sT2, sT3 = 54, 56, 57, 53
    sSEL0, sSEL1, sSEL2, sSEL3 = 58, 59, 60, 61
    sPROG, sC = 62, 63
    sTMP, sTMP2, sTMP3, sCNT = 64, 65, 66, 67
    sGA, sGB = 68, 70
    sROT = 15
    sSM = 4
    sST = 72
    NST = 14
    SRD = 8
    def stamp(idx, key=False):
        if opt.probe == idx and not key: A("s_memrealtime s[96:97]")
        if opt.probe0 == idx and not key: A("s_memrealtime s[94:95]")
        if STAMP == 1 or (STAMP and (key or idx == 0)): A(f"s_memrealtime s[{sST+2*idx}:{sST+2*idx+1}]")
    touch = []
    def pad(kind):
        if not opt.touch: return
        l = g.lab("L_tp"); touch.append((kind, l))
        A(f"{l}:")
        A("s_setpc_b64 s[6:7]")
    def stampval(idx, sreg):
        if STAMP == 1: A(f"s_mov_b32 s{sST+2*idx}, s{sreg}")
    pb, pc, pm = plan(opt.pb), plan(opt.pc), plan(opt.pm)
    NB0 = opt.nb0
    assert NB0 <= 3

    C('entry: kernel arguments, workgroup role (x = id & 7, r = id >> 3), wave id')
    stamp(0)
    if opt.fixdur: A("s_memrealtime s[98:99]")
    A("s_load_dwordx16 s[16:31], s[0:1], 0")
    A("s_load_dwordx8 s[32:39], s[0:1], 64")
    A("s_load_dwordx2 s[40:41], s[0:1], 96")
    A(f"s_cmp_ge_u32 s2, 256")
    A("s_cbranch_scc1 L_end")
    A("v_lshrrev_b32 v1, 6, v0")
    A("v_and_b32 v0, 63, v0")
    A("v_readfirstlane_b32 s3, v1")
    A(f"s_and_b32 s{sXCD}, s2, 7")
    A(f"s_lshr_b32 s{sR}, s2, 3")
    A(f"s_lshr_b32 s{sG}, s{sXCD}, 1")
    A(f"s_and_b32 s{sTMP3}, s{sXCD}, 1")
    A(f"s_add_u32 s{sROT}, s{sR}, s{2 if opt.rotw else sXCD}")
    A(f"s_lshl_b32 s{sTMP}, s{sXCD}, 1")
    A(f"s_sub_u32 s{sTMP}, s{sR}, s{sTMP}")
    A(f"s_sub_u32 s{sTMP}, s{sTMP}, 4")
    A(f"s_bfe_u32 s{sTMP2}, s{sTMP}, 0x20002")
    A(f"s_and_b32 s{sTMP}, s{sTMP}, 3")
    A(f"s_lshl2_add_u32 s{sU}, s{sTMP}, s{sTMP2}")
    A(f"s_cmp_ge_u32 s{sR}, 16")
    A(f"s_cselect_b32 s{sU}, s{sR}, s{sU}")
    A(f"s_lshr_b32 s{sTMP}, s{sU}, 3")
    A(f"s_lshl2_add_u32 s{sKS}, s{sTMP3}, s{sTMP}")
    A("s_cmp_lg_u32 s3, 0")
    A("s_cbranch_scc1 L_notloader")
    C('wave 0 = loader: clears the LDS flags and starts the LDS-DMA stream with the wq tile')
    sSOFF, sSTEP, sNB, sBLK = 4, 5, 6, 7
    sIDX, sWRAP, sBASE = 12, 13, 14
    sNOW, sDL = 56, 58
    TIMED = "/" in (opt.pb + opt.pm + opt.pc)
    if TIMED: A(f"s_memrealtime s[{sNOW}:{sNOW+1}]")
    A(f"s_setprio {opt.lprio}")
    A(f"v_mov_b32 v9, {FL}")
    A("v_mov_b32 v10, 0xff7fffff")
    A("v_cmp_gt_u32 vcc, 16, v0")
    A("v_lshl_add_u32 v11, v0, 2, v9")
    A("v_lshrrev_b32 v2, 4, v0")
    A("v_cndmask_b32 v10, v10, 0, vcc")
    A("ds_write_b32 v11, v10")
    A("v_bfe_u32 v3, v0, 1, 3")
    A("v_xor_b32 v3, v3, v2")
    A("v_lshlrev_b32 v3, 5, v3")
    A("v_and_b32 v4, 1, v0")
    A("v_lshl_or_b32 v3, v4, 4, v3")
    A("v_xor_b32 v4, 0x80, v3")
    A("v_lshl_add_u32 v5, v2, 13, v3")
    A("v_lshl_add_u32 v6, v2, 13, v4")
    A(f"s_mov_b32 s{SRD+3}, 0x20000")
    A(f"s_and_b32 s{sTMP}, s{sU}, 7")
    A(f"s_lshl3_add_u32 s{sTMP}, s{sG}, s{sTMP}")
    A(f"s_lshl_b32 s{sTMP}, s{sTMP}, 8")
    A(f"s_lshl_b32 s{sSOFF}, s{sKS}, 20")
    A(f"s_add_u32 s{sSOFF}, s{sSOFF}, s{sTMP}")
    A(f"s_mov_b32 s{SRD+2}, {1024*4096*2}")
    A(f"s_mov_b32 s{sNB}, {NB0}")
    A(f"s_mov_b32 s{sSTEP}, {4*8192}")
    if opt.qrot:
        A(f"s_mov_b32 s{sBASE}, s{sSOFF}")
        A(f"s_and_b32 s{sTMP}, s{sROT}, 7")
        A(f"s_lshl_b32 s{sTMP2}, s{sTMP}, 17")
        A(f"s_add_u32 s{sSOFF}, s{sSOFF}, s{sTMP2}")
        A(f"s_lshl_b32 s{sTMP}, s{sTMP}, 12")
        A(f"s_add_u32 m0, s{sTMP}, {RQ}")
    else:
        A(f"s_mov_b32 m0, {RQ}")
    A(f"s_mov_b32 s{sBLK}, {NB0}")
    if opt.fine == 2: stamp(5)
    A("s_waitcnt lgkmcnt(0)")
    if opt.fine == 2: stamp(6)
    A(f"s_mov_b64 s[{SRD}:{SRD+1}], s[{sWQ}:{sWQ+1}]")
    if TIMED: A(f"s_mov_b32 s{sDL}, s{sNOW}")
    if opt.barpos == 0: A("s_barrier")
    if opt.fine == 2: stamp(7)
    def blk_body(win, rot):
        GR = opt.gran
        if win is not None:
            assert win % GR == 0
            pj = win % 8
            back = (win - pj) // 8
        for j in range(8):
            half, i = j >> 2, j & 3
            if win is not None and j % GR == 0:
                if j == pj:
                    A(f"s_sub_u32 s{sTMP}, s{sBLK}, {back}")
                    A(f"s_max_i32 s{sPROG}, s{sTMP}, s{sPROG}")
                    A(f"v_mov_b32 v10, s{sPROG}")
                A(f"s_waitcnt vmcnt({win})")
                if j == pj: A(f"ds_write_b32 v9, v10 offset:{F_PROG}")
            v = 5 if ((i >> 1) & 1) == 0 else 6
            if rot == "kv" and opt.kvmode == "row":
                if j == 0: A(f"s_xor_b32 s{sWRAP}, s{sBASE}, s{sIDX}")
                cj = sum(((j >> k) & 1) << (KIB[k] + 10) for k in range(3))
                A(f"s_xor_b32 s{sSOFF}, s{sWRAP}, {cj}")
            A(f"buffer_load_dwordx4 v{v}, s[{SRD}:{SRD+3}], s{sSOFF} offen {POL[cur[0]]} lds")
            A(f"s_add_u32 m0, m0, 1024")
            if rot == "kv" and opt.kvmode == "row":
                if j == 7: A(f"s_add_u32 s{sIDX}, s{sIDX}, {1 << (KIB[3] + 10)}")
            elif rot == "kv":
                st = {"lin": 1024, "tr1": 8192 + (1024 if (half, i) == (1, 3) else 0),
                      "tr2": (1024 if i % 2 == 0 else 15360) + (2048 if (half, i) == (1, 3) else 0)}[opt.kvmode]
                A(f"s_add_u32 s{sIDX}, s{sIDX}, {st}")
                A(f"s_pack_lh_b32_b16 s{sSOFF}, s{sIDX}, s{sSOFF}")
            else:
                A(f"s_add_u32 s{sSOFF}, s{sSOFF}, s{sSTEP}")
            if rot == "q" and i == 3:
                A(f"s_cmp_eq_u32 m0, {RQ + 32768}")
                A(f"s_cselect_b32 m0, {RQ}, m0")
                A(f"s_cselect_b32 s{sSOFF}, s{sBASE}, s{sSOFF}")
        if rot == 7:
            A(f"s_add_u32 s{sIDX}, s{sIDX}, 1")
            A(f"s_cmp_eq_u32 s{sIDX}, 7")
            A(f"s_cselect_b32 s{sTMP}, {7*65536}, 0")
            A(f"s_sub_u32 s{sSOFF}, s{sSOFF}, s{sTMP}")
        if rot is True:
            A(f"s_add_u32 s{sIDX}, s{sIDX}, 1")
            A(f"s_and_b32 s{sIDX}, s{sIDX}, 7")
            A(f"s_cselect_b32 s{sTMP}, 0, s{sWRAP}")
            A(f"s_sub_u32 s{sSOFF}, s{sSOFF}, s{sTMP}")
    if opt.barpos == 1:
        blk_body(None, "q" if opt.qrot else False)
        A("s_barrier")
        A(f"s_mov_b32 s{sNB}, {NB0-1}")
    A("L_top_loop:")
    blk_body(None, "q" if opt.qrot else False)
    A(f"s_sub_u32 s{sNB}, s{sNB}, 1")
    A(f"s_cmp_lg_u32 s{sNB}, 0")
    A("s_cbranch_scc1 L_top_loop")
    if opt.barpos == 2: A("s_barrier")
    A("s_branch L_loader2")
    C('other waves: one workgroup per x pulls the code into L2, then everybody meets the loader')
    A("L_notloader:")
    if opt.stlb:
        A("s_cmp_eq_u32 s3, 10")
        A("s_cbranch_scc1 L_loader2")
    if opt.cpf:
        A(f"s_cmp_gt_u32 s3, {opt.cpf}")
        A("s_cbranch_scc1 L_cpf_done")
        if opt.cpfc:
            A(f"s_cmp_lg_u32 s{sR}, 14")
            A("s_cbranch_scc1 L_cpf_done")
        A("s_getpc_b64 s[4:5]")
        A("L_pc:")
        A(f"s_lshl_b32 s{sTMP}, s3, 13")
        A(f"s_sub_u32 s{sTMP}, s{sTMP}, 8192")
        A(f"v_lshl_add_u32 v1, v0, 7, s{sTMP}")
        A(f"v_cmp_gt_u32 vcc, L_end-L_pc, v1")
        A("s_and_saveexec_b64 s[6:7], vcc")
        A("s_cbranch_execz L_cpf_done2")
        A(f"global_load_dword v127, v1, s[4:5]")
        A("L_cpf_done2:")
        A("s_mov_b64 exec, -1")
        A("L_cpf_done:")
    A("s_barrier")
    A("s_branch L_cons")

    def decode2(keep=False):
        d = g.lab("L_d2"); m = g.lab("L_d2m")
        if STAMP:
            for i in range(1, NST):
                if not (opt.fine == 2 and keep and i in (5, 6, 7)): A(f"s_mov_b32 s{sST+2*i}, 0")
        A(f"s_mul_i32 s{sBETA}, s{sXCD}, 14")
        A(f"s_add_u32 s{sBETA}, s{sBETA}, s{sR}")
        A(f"s_mov_b32 s{sPROG}, 0")
        A(f"s_cmp_ge_u32 s{sR}, 16")
        A(f"s_cbranch_scc1 {m}")
        A(f"s_cmp_ge_u32 s{sR}, 14")
        A(f"s_cselect_b32 s{sROLE}, 2, 1")
        if opt.womap:
            A(f"s_sub_u32 s{sTMP}, s{sXCD}, 3")
            A(f"s_cmp_lt_u32 s{sTMP}, 2")
            A(f"s_cselect_b32 s{sTMP}, 2, 0")
            A(f"s_sub_u32 s{sTMP}, s{sR}, s{sTMP}")
            A(f"s_bfe_u32 s{sCB}, s{sTMP}, 0x10001")
            A(f"s_lshl1_add_u32 s{sRBK}, s{sXCD}, s{sCB}")
            A(f"s_and_b32 s{sCB}, s{sTMP}, 1")
            A(f"s_add_u32 s{sTMP}, s{sTMP}, 8")
            A(f"s_bfe_u32 s{sTMP}, s{sTMP}, 0x20002")
            A(f"s_lshl2_add_u32 s{sCB}, s{sCB}, s{sTMP}")
        else:
            A(f"s_lshr_b32 s{sTMP}, s{sU}, 3")
            A(f"s_lshl1_add_u32 s{sRBK}, s{sXCD}, s{sTMP}")
            A(f"s_add_u32 s{sTMP}, s{sU}, 3")
            A(f"s_and_b32 s{sTMP}, s{sTMP}, 3")
            A(f"s_and_b32 s{sCB}, s{sU}, 4")
            A(f"s_or_b32 s{sCB}, s{sCB}, s{sTMP}")
        A(f"s_lshl_b32 s{sKB0}, s{sRBK}, 3")
        if opt.lrot & 4:
            A(f"s_mul_i32 s{sLR}, s{sRBK}, 3")
            A(f"s_and_b32 s{sLR}, s{sLR}, 7")
        else:
            A(f"s_add_u32 s{sLR}, s{sR}, s{sXCD}")
            A(f"s_and_b32 s{sLR}, s{sLR}, {7 if opt.lrot & 1 else 0}")
        A(f"s_branch {d}")
        A(f"{m}:")
        A(f"s_mov_b32 s{sROLE}, 0")
        A(f"s_and_b32 s{sTMP}, s{sXCD}, 1")
        A(f"s_bfe_u32 s{sBB}, s{sR}, 0x20002")
        A(f"s_lshl2_add_u32 s{sBB}, s{sTMP}, s{sBB}")
        A(f"s_and_b32 s{sSPL}, s{sR}, 3")
        A(f"s_bfe_u32 s{sTMP}, s{sR}, 0x10003")
        A(f"s_lshl1_add_u32 s{sRBK}, s{sXCD}, s{sTMP}")
        A(f"s_mul_i32 s{sKB0}, s{sRBK}, 7")
        A(f"s_and_b32 s{sLR}, s{sR}, {7 if opt.lrot & 2 else 0}")
        A(f"s_cmp_eq_u32 s{sLR}, 7")
        A(f"s_cselect_b32 s{sLR}, 3, s{sLR}")
        A(f"s_add_u32 s{sCB}, s{sR}, 1")
        A(f"s_and_b32 s{sCB}, s{sCB}, 7")
        A(f"{d}:")

    C('loader continuation (wave 10 shares the role decode)')
    A("L_loader2:")
    decode2(True)
    if opt.stlb:
        A("s_cmp_eq_u32 s3, 0")
        A("s_cbranch_scc1 L_loader3")
        A(f"v_mov_b32 v9, {FL}")
        if STAMP:
            for i in (5, 6, 7): A(f"s_mov_b32 s{sST+2*i}, 0")
        if opt.tbar: A("s_barrier")
        if opt.tsleep: A(f"s_sleep {opt.tsleep}")
        A("s_waitcnt lgkmcnt(0)")
        if opt.stlb & 4:
            A(f"s_lshl_b32 s{sTMP}, s2, 6")
            A(f"s_load_dword s8, s[{sX}:{sX+1}], s{sTMP}")
            A(f"s_lshl_b32 s{sTMP}, s{sR}, 6")
            A(f"s_load_dword s9, s[{sGW}:{sGW+1}], s{sTMP}")
        A(f"s_lshl_b32 s{sTMP}, s{sKB0}, 16")
        A(f"s_lshl_b32 s{sTMP2}, s{sCB}, 8")
        A(f"s_add_u32 s{sTMP}, s{sTMP}, s{sTMP2}")
        A(f"s_cmp_ge_u32 s{sR}, 16")
        A("s_cbranch_scc1 L_stM")
        A(f"s_load_dword s4, s[{sWO}:{sWO+1}], s{sTMP}")
        if opt.stlb & 2:
            A(f"s_cmp_eq_u32 s{sROLE}, 2")
            A("s_cbranch_scc1 L_stD")
            A(f"s_bitcmp0_b32 s{sBETA}, 1")
            A(f"s_cselect_b64 s[12:13], s[{sWG}:{sWG+1}], s[{sWU}:{sWU+1}]")
            A(f"s_and_b32 s{sTMP}, s{sBETA}, 1")
            A(f"s_mul_i32 s{sTMP}, s{sTMP}, {512*7168}")
            A(f"s_lshr_b32 s{sTMP2}, s{sBETA}, 2")
            A(f"s_lshl_b32 s{sTMP2}, s{sTMP2}, 8")
            A(f"s_add_u32 s{sTMP}, s{sTMP}, s{sTMP2}")
            for i in range(3):
                A(f"s_load_dword s{5+i}, s[12:13], s{sTMP}")
                A(f"s_add_u32 s{sTMP}, s{sTMP}, {255*7168}")
        A("s_branch L_stD")
        A("L_stM:")
        A(f"s_lshl2_add_u32 s{sTMP2}, s{sBB}, s{sG}")
        A(f"s_lshl4_add_u32 s{sTMP2}, s{sTMP2}, s{sSPL}")
        A(f"s_add_u32 s{sTMP2}, s{sTMP2}, 12")
        A(f"s_lshl_b32 s{sTMP2}, s{sTMP2}, 16")
        A(f"s_load_dword s7, s[{sK}:{sK+1}], s{sTMP2}")
        for i in range(opt.vden):
            A(f"s_load_dword s5, s[{sV}:{sV+1}], s{sTMP2}")
            if i < opt.vden - 1: A(f"s_add_u32 s{sTMP2}, s{sTMP2}, {65536//opt.vden}")
        A(f"s_load_dword s4, s[{sWD}:{sWD+1}], s{sTMP}")
        A(f"s_add_u32 s{sTMP}, s{sTMP}, {223*2048}")
        A(f"s_load_dword s10, s[{sWD}:{sWD+1}], s{sTMP}")
        A(f"s_lshl_b32 s{sTMP}, s{sR}, 9")
        A(f"s_lshl_b32 s{sTMP2}, s{sXCD}, 6")
        A(f"s_add_u32 s{sTMP}, s{sTMP}, s{sTMP2}")
        A(f"s_load_dword s6, s[{sOUT}:{sOUT+1}], s{sTMP} glc")
        A("L_stD:")
        pass
        if not opt.tbar: A("s_barrier")
        A("s_waitcnt lgkmcnt(0)")
        A("s_branch L_notif")
        A("L_loader3:")
    stamp(1)
    def lds_wait_ge(off, val, vtmp="v11", vaddr="v9", sleep=0):
        l = g.lab("L_w")
        A(f"{l}:")
        if sleep: A(f"s_sleep {sleep}")
        A(f"ds_read_b32 {vtmp}, {vaddr} offset:{off}")
        A("s_waitcnt lgkmcnt(0)")
        A(f"v_readfirstlane_b32 s{sTMP}, {vtmp}")
        A(f"s_cmp_ge_u32 s{sTMP}, {val}")
        A(f"s_cbranch_scc0 {l}")
    def wmax(w): return max(w) if isinstance(w, (tuple, list)) else w
    def blk_loop(nblk, win, rot):
        l = g.lab("L_ld")
        if nblk > 1:
            A(f"s_mov_b32 s{sNB}, {nblk}")
            A(f"{l}:")
        if isinstance(win, tuple):
            hi = g.lab("L_hi"); j = g.lab("L_jn")
            A(f"s_memrealtime s[{sNOW}:{sNOW+1}]")
            A(f"s_mul_i32 s{sTMP2}, s{sBLK}, {opt.period}")
            A(f"s_add_u32 s{sTMP2}, s{sTMP2}, {opt.toff}")
            A("s_waitcnt lgkmcnt(0)")
            A(f"s_sub_u32 s{sTMP}, s{sNOW}, s{sDL}")
            A(f"s_cmp_gt_u32 s{sTMP}, s{sTMP2}")
            A(f"s_cbranch_scc1 {hi}")
            for k in range(3, win[0]//8, -1):
                A(f"s_sub_u32 s{sTMP}, s{sBLK}, {k}")
                A(f"s_max_i32 s{sPROG}, s{sTMP}, s{sPROG}")
                A(f"v_mov_b32 v10, s{sPROG}")
                A(f"s_waitcnt vmcnt({8*k})")
                A(f"ds_write_b32 v9, v10 offset:{F_PROG}")
            blk_body(win[0], False)
            A(f"s_branch {j}")
            A(f"{hi}:")
            blk_body(win[1], False)
            A(f"{j}:")
            assert not rot
        else:
            blk_body(win, rot)
        A(f"s_add_u32 s{sBLK}, s{sBLK}, 1")
        if nblk > 1:
            A(f"s_sub_u32 s{sNB}, s{sNB}, 1")
            A(f"s_cmp_lg_u32 s{sNB}, 0")
            A(f"s_cbranch_scc1 {l}")
    def drain(maxwin, kmin=0):
        for k in range((maxwin + 4 + 7)//8 - 1, kmin - 1, -1):
            A(f"s_sub_u32 s{sTMP}, s{sBLK}, {k}")
            A(f"s_max_i32 s{sPROG}, s{sTMP}, s{sPROG}")
            A(f"v_mov_b32 v10, s{sPROG}")
            A(f"s_waitcnt vmcnt({8*k})")
            A(f"ds_write_b32 v9, v10 offset:{F_PROG}")
    def set_stride(stride):
        A(f"s_mov_b32 s{sSTEP}, {4*stride}")
        if stride & (stride-1) == 0:
            sh = stride.bit_length()-1
            A(f"v_lshl_add_u32 v5, v2, {sh}, v3")
            A(f"v_lshl_add_u32 v6, v2, {sh}, v4")
        else:
            A(f"v_mul_u32_u24 v8, {stride}, v2")
            A("v_add_u32 v5, v8, v3")
            A("v_add_u32 v6, v8, v4")
        A(f"s_mov_b32 s{sWRAP}, {256*stride}")
    XSRD = 68
    def xloads(n, ldsbase):
        for j in range(4):
            A(f"s_add_u32 s{sTMP}, s{sROT}, {2*j}")
            A(f"s_and_b32 s{sTMP}, s{sTMP}, 7")
            A(f"s_lshl_b32 s{sTMP}, s{sTMP}, 6")
            A(f"s_add_u32 s{sTMP}, s{sTMP}, s{sTMP3}")
            for q in range(n//4):
                A(f"s_mov_b32 m0, {ldsbase + 4096*q + 1024*j - 512*q}")
                A("s_nop 0")
                A(f"buffer_load_dwordx4 v7, s[{XSRD}:{XSRD+3}], s{sTMP} offen offset:{512*q} lds")
    def run_plan(pl, segs, start, hook=None):
        blk = 0; lastwin = 0
        segmap = {x[0]: x for x in segs}
        cur[0] = 'q'
        rot = 'q' if opt.qrot else False
        items = []
        for it in pl:
            if it == "d": items.append(it); continue
            n, w = it
            while n:
                c = min(n, 4 - blk if blk < 4 else 8 - ((blk - 4) % 8))
                if blk < start: c = min(c, start - blk)
                if hook and blk < hook[0]: c = min(c, hook[0] - blk)
                if blk >= start: items.append((blk, c, w))
                blk += c; n -= c
            lastw = w
        lastwin = pl[0][1]
        for it in items:
            if it == "d":
                drain(max(wmax(lastwin), 8*start)); continue
            b0, c, w = it
            if b0 >= 4 and (b0 - 4) % 8 == 0:
                seg = (b0 - 4) // 8 + 1
                stamp(1 + seg)
                if seg >= 2: lds_wait_ge(F_FREE0 + 4*(seg-2), 8)
                if b0 in segmap:
                    segmap[b0][1](); rot = segmap[b0][2]
                elif rot:
                    A(f"s_add_u32 s{sSOFF}, s{sSOFF}, s{sWRAP}")
                A(f"s_mov_b32 m0, {RA if seg % 2 == 1 else RB}")
            if hook and b0 == hook[0]: hook[1]()
            if isinstance(w, list):
                hi = g.lab("L_ch"); j = g.lab("L_cj")
                if b0 >= 20:
                    A(f"s_bfe_u32 s{sTMP}, s{sBETA}, 0x20002")
                else:
                    A(f"s_and_b32 s{sTMP}, s{sCB}, 3")
                A(f"s_cmp_eq_u32 s{sTMP}, 1")
                A(f"s_cbranch_scc1 {hi}")
                blk_loop(c, w[0], rot)
                A(f"s_branch {j}")
                A(f"{hi}:")
                blk_loop(c, w[1], rot)
                A(f"{j}:")
            else:
                blk_loop(c, w, rot)
            lastwin = w
        stamp(8)
        if opt.fgate:
            A(f"s_mul_i32 s{sTMP}, s{sCB}, {16*CS}")
            A(f"s_add_u32 s{sTMP}, s{sTMP}, {WS_FC}")
            A(f"s_add_u32 s4, s{sWS}, s{sTMP}")
            A(f"s_addc_u32 s5, s{sWS+1}, 0")
            A(f"v_mul_u32_u24 v5, {CS}, v0")
            A("v_mov_b32 v6, 1")
        drain(max(wmax(x[1]) for x in pl if x != "d"), 1 if opt.fearly else 0)
        if not opt.fearly: stamp(9)
        A("s_branch L_ld_end")
    def late_seg(ptr, nbytes):
        def f():
            cur[0] = 'o' if ptr == sWO else 'd'
            set_stride(2048)
            A(f"s_mov_b64 s[{SRD}:{SRD+1}], s[{ptr}:{ptr+1}]\ns_mov_b32 s{SRD+2}, {nbytes}")
            A(f"s_mov_b32 s{sIDX}, s{sLR}")
            A(f"s_add_u32 s{sSOFF}, s{sKB0}, s{sLR}")
            A(f"s_lshl_b32 s{sSOFF}, s{sSOFF}, 16")
            A(f"s_lshl_b32 s{sTMP}, s{sCB}, 8")
            A(f"s_add_u32 s{sSOFF}, s{sSOFF}, s{sTMP}")
        return f
    C('x fragments of the wq tile, then the per-role stream. PROG in LDS = number of 8 KiB blocks landed')
    A("v_and_b32 v7, 7, v0")
    A("v_lshlrev_b32 v7, 11, v7")
    A("v_lshrrev_b32 v8, 3, v0")
    A("v_lshl_add_u32 v7, v8, 4, v7")
    A(f"s_mov_b64 s[{XSRD}:{XSRD+1}], s[{sX}:{sX+1}]\ns_mov_b32 s{XSRD+2}, 16384\ns_mov_b32 s{XSRD+3}, 0x20000")
    A(f"s_lshl_b32 s{sTMP3}, s{sKS}, 8")
    A(f"s_mov_b32 s{sIDX}, m0")
    A(f"s_mov_b32 m0, {XF}")
    A("s_nop 0")
    A(f"buffer_load_dwordx4 v7, s[{XSRD}:{XSRD+3}], s{sTMP3} offen lds")
    A(f"s_mov_b32 m0, {XF + 1024 - 128}")
    A("s_nop 0")
    A(f"buffer_load_dwordx4 v7, s[{XSRD}:{XSRD+3}], s{sTMP3} offen offset:128 lds")
    A(f"s_mov_b32 m0, s{sIDX}")
    A(f"s_cmp_ge_u32 s{sR}, 16")
    A("s_cbranch_scc1 L_ld_M")
    def b_seg1():
        cur[0] = 'g'
        A(f"s_and_b32 s{sROT}, s{sROT}, 6")
        A(f"s_mov_b32 s{sIDX}, s{sROT}")
        A(f"s_and_b32 s{sTMP2}, s{sBETA}, 1")
        set_stride(7168)
        A(f"s_mul_i32 s{sSOFF}, s{sTMP2}, {512*7168}")
        A(f"s_lshr_b32 s{sTMP}, s{sBETA}, 2")
        A(f"s_lshl_b32 s{sTMP}, s{sTMP}, 8")
        A(f"s_add_u32 s{sSOFF}, s{sSOFF}, s{sTMP}")
        A(f"s_mul_i32 s{sTMP}, s{sROT}, {32*7168}")
        A(f"s_add_u32 s{sSOFF}, s{sSOFF}, s{sTMP}")
        A(f"s_bitcmp0_b32 s{sBETA}, 1")
        A(f"s_cselect_b64 s[{SRD}:{SRD+1}], s[{sWG}:{sWG+1}], s[{sWU}:{sWU+1}]")
        A(f"s_mov_b32 s{SRD+2}, {1024*3584*2}")
    A(f"s_cmp_eq_u32 s{sROLE}, 2")
    A("s_cbranch_scc1 L_ld_C")
    assert sum(x[0] for x in pb if x != "d") == 28
    XGAT = opt.xgat
    def xg_hook():
        A(f"s_and_b32 s{sTMP3}, s{sBETA}, 1")
        A(f"s_lshl_b32 s{sTMP3}, s{sTMP3}, 10")
        xloads(8, XF + 2048)
        A(f"s_mov_b32 m0, {RA + 8192*(XGAT-4)}")
    run_plan(pb, [(4, b_seg1, True), (20, late_seg(sWO, 4096*1024*2), True)], NB0, hook=(XGAT, xg_hook))
    C('role C stream: wq, wo')
    A("L_ld_C:")
    assert sum(x[0] for x in pc if x != "d") == 12 and pc[1] == "d" and pc[0][0] == 4
    def c_seg1():
        if opt.pfg:
            C("gate / up tiles on the slow column position lag: pull their last rows into L2 (speed only)")
            lp = g.lab("L_pgl"); nx = g.lab("L_pgn"); il = g.lab("L_pgi")
            set_stride(7168)
            A(f"s_bitcmp0_b32 s{sR}, 0")
            A(f"s_cselect_b64 s[{SRD}:{SRD+1}], s[{sWG}:{sWG+1}], s[{sWU}:{sWU+1}]")
            A(f"s_mov_b32 s{SRD+2}, {1024*3584*2}")
            A(f"s_and_b32 s{sTMP3}, s{sR}, 1")
            A(f"s_add_u32 s{sTMP3}, s{sTMP3}, 2")
            A(f"s_mov_b32 s{sIDX}, 0")
            A(f"s_mov_b32 m0, {RB}")
            A(f"{lp}:")
            A(f"s_mul_i32 s{sTMP2}, s{sXCD}, 14")
            A(f"s_add_u32 s{sTMP2}, s{sTMP2}, s{sIDX}")
            A(f"s_bfe_u32 s{sTMP}, s{sTMP2}, 0x30001")
            A(f"s_cmp_lg_u32 s{sTMP}, s{sTMP3}")
            A(f"s_cbranch_scc1 {nx}")
            A(f"s_add_u32 s{sTMP}, s{sIDX}, s{sXCD}")
            A(f"s_add_u32 s{sTMP}, s{sTMP}, 6")
            A(f"s_and_b32 s{sTMP}, s{sTMP}, 6")
            A(f"s_add_u32 s{sTMP}, s{sTMP}, 10")
            A(f"s_and_b32 s{sNB}, s{sTMP2}, 1")
            A(f"s_lshl4_add_u32 s{sTMP}, s{sNB}, s{sTMP}")
            A(f"s_mul_i32 s{sSOFF}, s{sTMP}, {32*7168}")
            A(f"s_lshr_b32 s{sTMP2}, s{sTMP2}, 2")
            A(f"s_lshl_b32 s{sTMP2}, s{sTMP2}, 8")
            A(f"s_add_u32 s{sSOFF}, s{sSOFF}, s{sTMP2}")
            A(f"s_mov_b32 s{sNB}, {opt.pfg}")
            A(f"{il}:")
            A(f"s_sub_u32 s{sSOFF}, s{sSOFF}, s{sSTEP}")
            A(f"s_waitcnt vmcnt({opt.pfw})")
            A(f"buffer_load_dwordx4 v5, s[{SRD}:{SRD+3}], s{sSOFF} offen {opt.pfpol} lds")
            A(f"s_sub_u32 s{sNB}, s{sNB}, 1")
            A(f"s_cmp_lg_u32 s{sNB}, 0")
            A(f"s_cbranch_scc1 {il}")
            A(f"{nx}:")
            A(f"s_add_u32 s{sIDX}, s{sIDX}, 1")
            A(f"s_cmp_lt_u32 s{sIDX}, 14")
            A(f"s_cbranch_scc1 {lp}")
        if opt.pfo or opt.pfd:
            assert opt.lrot == 4
            C("the two C workgroups of an x pull the rows their neighbours stream last into L2 (speed only)")
            A("v_lshlrev_b32 v8, 4, v0")
            for j in range(2):
                lp = g.lab("L_pfl"); wd = g.lab("L_pfw"); go = g.lab("L_pfg"); sk = g.lab("L_pfs")
                A(f"s_lshl1_add_u32 s{sTMP2}, s{sXCD}, {j}")
                A(f"s_bitcmp1_b32 s{sR}, 0")
                A(f"s_cbranch_scc1 {wd}")
                A(f"s_mul_i32 s{sTMP}, s{sTMP2}, 3")
                A(f"s_add_u32 s{sTMP}, s{sTMP}, 7")
                A(f"s_and_b32 s{sTMP}, s{sTMP}, 7")
                A(f"s_lshl3_add_u32 s{sTMP}, s{sTMP2}, s{sTMP}")
                A(f"s_mov_b64 s[{SRD}:{SRD+1}], s[{sWO}:{sWO+1}]\ns_mov_b32 s{SRD+2}, {4096*1024*2}")
                A(f"s_mov_b32 s{sNB}, {opt.pfo}")
                A(f"s_branch {go}")
                A(f"{wd}:")
                A(f"s_mul_i32 s{sTMP}, s{sTMP2}, 7")
                A(f"s_add_u32 s{sTMP}, s{sTMP}, 6")
                A(f"s_mov_b64 s[{SRD}:{SRD+1}], s[{sWD}:{sWD+1}]\ns_mov_b32 s{SRD+2}, {3584*1024*2}")
                A(f"s_mov_b32 s{sNB}, {opt.pfd}")
                A(f"{go}:")
                A(f"s_cmp_eq_u32 s{sNB}, 0")
                A(f"s_cbranch_scc1 {sk}")
                A(f"s_add_u32 s{sTMP}, s{sTMP}, 1")
                A(f"s_lshl_b32 s{sSOFF}, s{sTMP}, 16")
                A(f"s_mov_b32 m0, {RB}")
                A(f"{lp}:")
                A(f"s_sub_u32 s{sSOFF}, s{sSOFF}, 2048")
                A(f"s_waitcnt vmcnt({opt.pfw})")
                A(f"buffer_load_dwordx4 v8, s[{SRD}:{SRD+3}], s{sSOFF} offen {opt.pfpol} lds")
                A(f"buffer_load_dwordx4 v8, s[{SRD}:{SRD+3}], s{sSOFF} offen offset:1024 {opt.pfpol} lds")
                A(f"s_sub_u32 s{sNB}, s{sNB}, 1")
                A(f"s_cmp_lg_u32 s{sNB}, 0")
                A(f"s_cbranch_scc1 {lp}")
                A(f"{sk}:")
        late_seg(sWO, 4096*1024*2)()
        A(f"s_mov_b32 s{sBLK}, 20")
    run_plan(pc, [(4, c_seg1, True)], NB0)
    C('role M stream: wq, K, V, W_down')
    A("L_ld_M:")
    def m_seg1():
        cur[0] = 'k'
        if opt.kvmode == "row":
            set_stride(256)
            A(f"s_lshl2_add_u32 s{sTMP}, s{sBB}, s{sG}")
            A(f"s_mul_i32 s{sROT}, s{sTMP}, {opt.kvrot}")
            A(f"s_mul_i32 s{sTMP2}, s{sSPL}, {opt.kvrots}")
            A(f"s_add_u32 s{sROT}, s{sROT}, s{sTMP2}")
            A(f"s_lshl_b32 s{sBASE}, s{sTMP}, 20")
            A(f"s_lshl_b32 s{sTMP2}, s{sSPL}, {KSB[0] + 10}")
            A(f"s_add_u32 s{sBASE}, s{sBASE}, s{sTMP2}")
            A(f"s_add_u32 s{sBASE}, s{sBASE}, {768 << 10}")
            for k in range(3):
                A(f"s_bfe_u32 s{sTMP2}, s{sROT}, {(1 << 16) | k}")
                A(f"s_lshl_b32 s{sTMP2}, s{sTMP2}, {KIB[k] + 10}")
                A(f"s_add_u32 s{sBASE}, s{sBASE}, s{sTMP2}")
            A(f"s_bfe_u32 s{sTMP2}, s{sROT}, {(3 << 16) | 3}")
            A(f"s_lshl_b32 s{sTMP2}, s{sTMP2}, {KIB[3] + 10}")
            A(f"s_add_u32 s{sBASE}, s{sBASE}, s{sTMP2}")
            A(f"s_mov_b32 s{sIDX}, 0")
            A(f"s_mov_b64 s[{SRD}:{SRD+1}], s[{sK}:{sK+1}]\ns_mov_b32 s{SRD+2}, {8*4*4096*128*2}")
            return
        set_stride(256)
        A(f"s_mul_i32 s{sROT}, s{sROT}, {opt.kvrot*1024}")
        A(f"s_mov_b32 s{sIDX}, s{sROT}")
        A(f"s_lshl2_add_u32 s{sTMP}, s{sBB}, s{sG}")
        A(f"s_lshl4_add_u32 s{sTMP}, s{sTMP}, s{sSPL}")
        A(f"s_add_u32 s{sTMP}, s{sTMP}, 12")
        A(f"s_pack_ll_b32_b16 s{sSOFF}, s{sIDX}, s{sTMP}")
        A(f"s_mov_b64 s[{SRD}:{SRD+1}], s[{sK}:{sK+1}]\ns_mov_b32 s{SRD+2}, {8*4*4096*128*2}")
    def m_seg2():
        cur[0] = 'v'
        A(f"s_mov_b64 s[{SRD}:{SRD+1}], s[{sV}:{sV+1}]")
        if opt.kvmode == "row":
            A(f"s_mov_b32 s{sIDX}, 0")
            return
        A(f"s_mov_b32 s{sIDX}, s{sROT}")
        A(f"s_pack_lh_b32_b16 s{sSOFF}, s{sIDX}, s{sSOFF}")
    assert sum(x[0] for x in pm if x != "d") == 27
    run_plan(pm, [(4, m_seg1, "kv"), (12, m_seg2, "kv"), (20, late_seg(sWD, 3584*1024*2), 7)], NB0)
    A("L_ld_end:")
    if opt.nocomm: A("s_branch L_exit")
    def fbump():
        if opt.flag_delay: A(f"s_sleep {opt.flag_delay}")
        if opt.fsat:
            A("s_mov_b32 s6, 1")
            for r in range(opt.frep): A(f"s_atomic_add s6, s[4:5], {CS*r}")
        else:
            A(f"s_bfm_b64 exec, {opt.frep}, 0")
            A("global_atomic_add v5, v6, s[4:5] sc1")
            A("s_mov_b64 exec, -1")
    if opt.fearly:
        A(f"ds_read_b32 v11, v9 offset:{F_BA}")
        A(f"v_mov_b32 v10, s{sBLK}")
        A(f"s_waitcnt vmcnt({opt.fearly}) lgkmcnt(0)")
        A(f"v_readfirstlane_b32 s{sTMP}, v11")
        A(f"s_cmp_lt_u32 s{sTMP}, 8")
        A("s_cbranch_scc1 L_ld_late")
        A("s_mov_b32 s6, 1")
        for r in range(opt.frep): A(f"s_atomic_add s6, s[4:5], {CS*r}")
        A("s_waitcnt vmcnt(0)")
        A(f"ds_write_b32 v9, v10 offset:{F_PROG}")
        A("s_barrier")
        stamp(9)
        A("s_branch L_ld_fin")
        A("L_ld_late:")
        A("s_waitcnt vmcnt(0)")
        A(f"ds_write_b32 v9, v10 offset:{F_PROG}")
        stamp(9)
    if opt.fgate == 2 and not (opt.dbg & 1):
        lds_wait_ge(F_BA, opt.gok)
        fbump()
    A("s_barrier")
    if opt.fgate == 1 and not (opt.dbg & 1): fbump()
    A("L_ld_fin:")
    if opt.fixdur and opt.lprobe: A("s_branch L_noepoch")
    if opt.fgate and opt.fbar:
        A(f"s_cmp_lt_u32 s{sR}, 16")
        A("s_cbranch_scc1 L_exit")
        A("s_barrier")
    A("s_branch L_exit")

    C('waves 1..8 = compute waves, wave 9 = poller. Launch tag T = epoch word + 0x11111111')
    A("L_cons:")
    vL16, vTR, vACT, vT, vPUB = 1, 2, 3, 4, 5
    vTMP, vTMP2, vTMP3 = 6, 7, 8
    vWA, vAA = 10, 11
    vW, vB, vACC, vACC2 = 12, 16, 20, 24
    vGA = 28
    vLS = 44
    vK = 52
    vQ = 84
    vRG, vRW, vRR, vOUT, vONE, vAFW, vFLG = 116, 117, 118, 119, 120, 121, 122
    vTP, vTC, vL8 = 123, 124, 125
    vSTW, vSTR = 126, 15
    vTA, vAX, vEN = 48, 49, 50
    NV = 128
    A("s_waitcnt lgkmcnt(0)")
    A(f"s_load_dword s{sT}, s[{sWS}:{sWS+1}], 0")
    decode2()
    stamp(1)
    A(f"v_mov_b32 v9, {FL}")
    if opt.notif:
        A(f"s_cmp_eq_u32 s3, 10")
        A("s_cbranch_scc1 L_notif")
    A(f"s_sub_u32 s{sC}, s3, 1")
    sSC, sM3, sMN, sEM, sRNG = 58, 60, 61, 56, 57
    A(f"s_mov_b32 s{sM3}, 0x00030003")
    A(f"s_mov_b32 s{sMN}, 0xfffcfffc")
    A(f"s_mov_b32 s{sRNG}, {27 << 23:#x}")
    A(f"v_mov_b32 v{vAX}, 0")
    A(f"v_lshlrev_b32 v{vL8}, 3, v0")
    A(f"v_mov_b32 v9, {FL}")
    A(f"v_mov_b32 v{vONE}, 1")
    A(f"v_lshlrev_b32 v{vL16}, 4, v0")
    A(f"v_mul_u32_u24 v{vFLG}, {CS}, v0")
    A(f"v_lshrrev_b32 v{vTMP2}, 4, v0")
    A(f"v_bfe_u32 v{vTMP3}, v0, 2, 2")
    A(f"v_lshl_add_u32 v{vTR}, v{vTMP2}, 3, v{vTMP3}")
    A(f"v_lshlrev_b32 v{vTR}, 8, v{vTR}")
    A(f"v_and_b32 v{vACT}, 1, v{vTMP2}")
    A(f"v_lshl_or_b32 v{vTMP3}, v{vACT}, 2, v{vTMP3}")
    A(f"v_xor_b32 v{vTMP3}, s{sC}, v{vTMP3}")
    A(f"v_lshl_or_b32 v{vTR}, v{vTMP3}, 5, v{vTR}")
    A(f"v_and_b32 v{vTMP3}, 3, v0")
    A(f"v_lshl_or_b32 v{vTR}, v{vTMP3}, 3, v{vTR}")
    A(f"v_and_b32 v{vTMP3}, 7, v0")
    A(f"v_lshl_add_u32 v{vACT}, v{vTMP2}, 3, v{vTMP3}")
    A(f"v_lshlrev_b32 v{vACT}, 4, v{vACT}")
    A(f"v_lshrrev_b32 v{vAFW}, 5, v0")
    A(f"v_lshlrev_b32 v{vAFW}, 8, v{vAFW}")
    A(f"v_and_b32 v{vTMP2}, 2, v0")
    A(f"v_lshl_or_b32 v{vAFW}, v{vTMP2}, 6, v{vAFW}")
    A(f"v_and_b32 v{vTMP2}, 28, v0")
    A(f"v_lshl_or_b32 v{vAFW}, v{vTMP2}, 2, v{vAFW}")
    A(f"v_and_b32 v{vTMP2}, 1, v0")
    A(f"v_lshl_or_b32 v{vAFW}, v{vTMP2}, 3, v{vAFW}")
    A(f"s_lshl_b32 s{sTMP}, s{sC}, 9")
    A(f"s_add_u32 s{sTMP}, s{sTMP}, {AF}")
    A(f"v_add_u32 v{vAFW}, s{sTMP}, v{vAFW}")
    def afswz(v):
        A(f"v_lshrrev_b32 v{vTMP2}, 3, v{v}")
        A(f"v_and_b32 v{vTMP2}, 0x70, v{vTMP2}")
        A(f"v_xor_b32 v{v}, v{v}, v{vTMP2}")
    afswz(vAFW)
    A("s_waitcnt lgkmcnt(0)")
    A(f"s_add_u32 s{sT}, s{sT}, 0x11111111")
    A(f"s_mov_b32 s{sT+1}, s{sT}")
    A(f"v_mov_b32 v{vT}, s{sT}")
    def tagbits(dst, vsh):
        A(f"v_lshrrev_b32 v{dst}, v{vsh}, v{vT}")
        A(f"v_and_b32 v{dst}, 15, v{dst}")
        A(f"v_lshl_or_b32 v{dst}, v{dst}, 14, v{dst}")
        A(f"v_and_b32 v{dst}, s{sM3}, v{dst}")
    A(f"v_and_b32 v{vTMP}, 7, v0")
    A(f"v_lshlrev_b32 v{vTMP}, 2, v{vTMP}")
    tagbits(vTC, vTMP)
    A(f"v_lshrrev_b32 v{vTMP}, 2, v0")
    A(f"v_and_b32 v{vTMP}, 12, v{vTMP}")
    A(f"v_and_b32 v{vTMP2}, 1, v0")
    A(f"v_lshl_or_b32 v{vTMP}, v{vTMP2}, 4, v{vTMP}")
    tagbits(vTP, vTMP)

    def refresh_prog():
        A(f"ds_read_b32 v{vTMP}, v9 offset:{F_PROG}")
        A("s_waitcnt lgkmcnt(0)")
        A(f"v_readfirstlane_b32 s{sPROG}, v{vTMP}")
    def wait_prog(val_is_sgpr, val, sleep=0):
        l = g.lab("L_wp"); d = g.lab("L_wpd")
        v = f"s{val}" if val_is_sgpr else str(val)
        A(f"s_cmp_ge_u32 s{sPROG}, {v}")
        A(f"s_cbranch_scc1 {d}")
        A(f"{l}:")
        if sleep: A(f"s_sleep {sleep}")
        refresh_prog()
        A(f"s_cmp_ge_u32 s{sPROG}, {v}")
        A(f"s_cbranch_scc0 {l}")
        A(f"{d}:")
    def signal(off):
        A("s_mov_b64 exec, 1")
        A(f"ds_add_u32 v9, v{vONE} offset:{off}")
        A("s_mov_b64 exec, -1")
    def cwait(off, val, sleep=0):
        lds_wait_ge(off, val, vtmp=f"v{vTMP}", sleep=sleep)
    def cwait_rd(off, val, nrd, reads):
        l = g.lab("L_cw")
        A(f"{l}:")
        A(f"ds_read_b32 v{vTMP}, v9 offset:{off}")
        reads()
        A(f"s_waitcnt lgkmcnt({nrd})")
        A(f"v_readfirstlane_b32 s{sTMP}, v{vTMP}")
        A(f"s_cmp_ge_u32 s{sTMP}, {val}")
        A(f"s_cbranch_scc0 {l}")
    def fbits(x): return struct.unpack("<I", struct.pack("<f", x))[0]
    ADJ = 1.0
    LQ, LO_, LG, LF = [x + opt.sbias for x in (8, 12, 10, 20)]
    def setscale(lg):
        A(f"s_mov_b32 s{sSC}, {fbits(2.0**lg):#x}")
    def encode(sc=None, tp=vTP, ta=vTA):
        src = vACC
        d = g.lab("L_en")
        scs = f"s[{sSC}:{sSC+1}]" if sc is None else f"v[{sc}:{sc+1}]"
        A(f"v_pk_mul_f32 v[{src}:{src+1}], v[{src}:{src+1}], {scs} op_sel_hi:[1,0]")
        A(f"v_pk_mul_f32 v[{src+2}:{src+3}], v[{src+2}:{src+3}], {scs} op_sel_hi:[1,0]")
        A(f"v_max3_f32 v{vTMP}, |v{src}|, |v{src+1}|, |v{src+2}|")
        A(f"v_max_f32 v{vTMP}, |v{src+3}|, v{vTMP}")
        A(f"v_subrev_u32 v{vTMP2}, {115 << 23:#x}, v{vTMP}")
        A(f"v_cmp_le_u32 vcc, s{sRNG}, v{vTMP2}")
        r = g.lab("L_er")
        A(f"{r}:")
        A(f"v_cvt_pkrtz_f16_f32 v{vEN}, v{src}, v{src+1}")
        A(f"v_cvt_pkrtz_f16_f32 v{vEN+1}, v{src+2}, v{src+3}")
        A(f"v_add_u32 v{vEN}, 0x00020002, v{vEN}")
        A(f"v_add_u32 v{vEN+1}, 0x00020002, v{vEN+1}")
        A(f"v_and_or_b32 v{vEN}, v{vEN}, s{sMN}, v{vAX}")
        A(f"v_and_or_b32 v{vEN+1}, v{vEN+1}, s{sMN}, v{tp}")
        A(f"s_cbranch_vccz {d}")
        A(f"s_call_b64 s[6:7], L_encs")
        A(f"s_branch {r}")
        A(f"{d}:")
    def publish(src, base=sGA, sc=None):
        encode(sc)
        A("s_mov_b32 exec_lo, 0x00ff00ff\ns_mov_b32 exec_hi, 0x00ff00ff")
        if not (opt.dbg & (33 | (2048 if base == sGA else 0))): A(f"global_store_dwordx2 v{vPUB}, v[{vEN}:{vEN+1}], s[{base}:{base+1}] sc1")
    NREP = opt.nrep; HREP = max(1, NREP // 4)
    sNH = 9
    def bump(kind):
        if opt.dbg & (33 | 1024): return
        if opt.satom:
            A(f"s_mov_b32 s8, 1")
            if kind == "h":
                e = g.lab("L_bh")
                for r in range(HREP): A(f"s_atomic_add s8, s[{sGB}:{sGB+1}], {CS*r}")
                A(f"s_cmp_eq_u32 s{sNH}, {HREP}")
                A(f"s_cbranch_scc1 {e}")
                for r in range(HREP, 2*HREP): A(f"s_atomic_add s8, s[{sGB}:{sGB+1}], {CS*r}")
                A(f"{e}:")
            else:
                for r in range(NREP): A(f"s_atomic_add s8, s[{sGB}:{sGB+1}], {CS*r}")
        else:
            if kind == "h": A(f"s_bfm_b64 exec, s{sNH}, 0")
            else: A(f"s_bfm_b64 exec, {NREP}, 0")
            A(f"global_atomic_add v{vFLG}, v{vONE}, s[{sGB}:{sGB+1}] sc1")
    def flag(cnt, nrep, last=7):
        d = g.lab("L_fl")
        A("s_mov_b64 exec, 1")
        A(f"ds_add_rtn_u32 v{vTMP}, v9, v{vONE} offset:{cnt}")
        A("s_waitcnt lgkmcnt(0)")
        A(f"v_readfirstlane_b32 s{sTMP}, v{vTMP}")
        A(f"s_cmp_lg_u32 s{sTMP}, {last}")
        A(f"s_cbranch_scc1 {d}")
        bump(nrep)
        A(f"{d}:")
        A("s_mov_b64 exec, -1")
    def staged(cnt, last, hi_off, kind):
        d = g.lab("L_sg")
        A(f"ds_write_b64 v{vSTW}, v[{vEN}:{vEN+1}]")
        A("s_mov_b64 exec, 1")
        A(f"ds_add_rtn_u32 v{vTMP}, v9, v{vONE} offset:{cnt}")
        A("s_mov_b64 exec, -1")
        A(f"ds_read_b128 v[{vGA}:{vGA+3}], v{vSTR}")
        A(f"ds_read_b128 v[{vGA+4}:{vGA+7}], v{vSTR} offset:1024")
        A(f"v_add_u32 v{vTMP2}, {hi_off}, v{vPUB}")
        A("s_waitcnt lgkmcnt(2)")
        A(f"v_readfirstlane_b32 s{sTMP}, v{vTMP}")
        A(f"s_cmp_lg_u32 s{sTMP}, {last}")
        A(f"s_cbranch_scc1 {d}")
        A("s_waitcnt lgkmcnt(0)")
        if not (opt.dbg & (1 | (256 if last == 3 else 512))):
            A(f"global_store_dwordx4 v{vPUB}, v[{vGA}:{vGA+3}], s[{sGA}:{sGA+1}] sc1")
            A(f"global_store_dwordx4 v{vTMP2}, v[{vGA+4}:{vGA+7}], s[{sGA}:{sGA+1}] sc1")
        if kind: bump(kind)
        A("s_mov_b64 exec, -1")
        A("s_nop 0")
        A(f"{d}:")
        A("s_waitcnt lgkmcnt(0)")
    def flag_now(nrep):
        d = g.lab("L_fn")
        A(f"s_cmp_lg_u32 s{sC}, {opt.flagwave}")
        A(f"s_cbranch_scc1 {d}")
        bump(nrep)
        A("s_mov_b64 exec, -1")
        A(f"{d}:")
    def ws_addr(dst, base_const, soff):
        A(f"s_add_u32 s{soff}, s{soff}, {base_const}")
        A(f"s_add_u32 s{dst}, s{sWS}, s{soff}")
        A(f"s_addc_u32 s{dst+1}, s{sWS+1}, 0")
    def pub_voff(shift):
        A(f"v_and_b32 v{vTMP2}, 15, v0")
        A(f"v_lshrrev_b32 v{vTMP3}, 4, v0")
        A(f"v_lshlrev_b32 v{vTMP3}, 3, v{vTMP3}")
        A(f"v_lshl_or_b32 v{vPUB}, v{vTMP2}, {shift}, v{vTMP3}")
    def sample(base, offs, sleep=0, cntstamp=None):
        l = g.lab("L_sm"); d = g.lab("L_smd"); e = g.lab("L_sme")
        if opt.dbg & 7: return
        A(f"s_mov_b32 s{sCNT}, 0")
        if sleep: A(f"s_branch {e}")
        A(f"{l}:")
        if sleep:
            A(f"s_sleep {sleep}")
            A(f"{e}:")
        for i, o in enumerate(offs):
            A(f"s_load_dword s{sSM+i}, s[{base}:{base+1}], {o} glc")
        A(f"s_add_u32 s{sCNT}, s{sCNT}, 1")
        A(f"s_cmp_gt_u32 s{sCNT}, {opt.maxpoll}")
        A("s_waitcnt lgkmcnt(0)")
        A(f"s_cbranch_scc1 {d}")
        for i in range(len(offs)):
            A(f"s_xor_b32 s{sSM+i}, s{sSM+i}, s{sT}")
            if i: A(f"s_or_b32 s{sSM}, s{sSM}, s{sSM+i}")
        A(f"s_and_b32 s{sSM}, s{sSM}, 0xff")
        A(f"s_cbranch_scc1 {l}")
        A(f"{d}:")
        if cntstamp is not None: stampval(cntstamp, sCNT)
    def pollcnt(base, target, sleep, cntstamp=None):
        l = g.lab("L_pf"); d = g.lab("L_pfd"); e = g.lab("L_pfe")
        if opt.dbg & 7: return
        A(f"s_mov_b32 s{sCNT}, 0")
        if sleep: A(f"s_branch {e}")
        A(f"{l}:")
        if sleep:
            A(f"s_sleep {sleep}")
            A(f"{e}:")
        A(f"s_load_dword s8, s[{base}:{base+1}], 0 glc")
        A(f"s_add_u32 s{sCNT}, s{sCNT}, 1")
        A(f"s_cmp_gt_u32 s{sCNT}, {opt.maxhint}")
        A("s_waitcnt lgkmcnt(0)")
        A(f"s_cbranch_scc1 {d}")
        A(f"s_cmp_eq_u32 s8, s{target}")
        A(f"s_cbranch_scc0 {l}")
        A(f"{d}:")
        if cntstamp is not None: stampval(cntstamp, sCNT)
    kfr = [None]
    def gather(nld=4, mid=None, cntstamp=None, sleep=0, work=None, kind='M', defer=False):
        l = g.lab("L_ga"); d = g.lab("L_gad"); c = g.lab("L_gac"); rt = g.lab("L_gar")
        assert nld in (1, 4)
        def issue():
            if opt.dbg & 2: return
            if opt.gprio: A(f"s_setprio {opt.gprio}")
            if opt.x4dbg and nld == 4:
                nn = 2
                if opt.x4dbg == 2 and mid is not kfr[0]: nn = 1
                if opt.x4dbg == 3: nn = 1
                if opt.x4dbg == 4 and mid is not kfr[0]: nn = 0
                if opt.x4dbg == 5: nn = 0
                for i in range(nn): A(f"global_load_dwordx4 v[{vGA+4*i}:{vGA+4*i+3}], v{vL16}, s[{sGA}:{sGA+1}] offset:{1024*i} sc1")
                return
            for i in range(nld):
                A(f"global_load_dwordx2 v[{vGA+2*i}:{vGA+2*i+1}], v{vL8}, s[{sGA}:{sGA+1}] offset:{512*i} sc1")
        if mid is not None or sleep:
            issue()
            if mid is not None: mid()
            A(f"s_mov_b32 s{sEM}, s{sM3}")
            A(f"s_mov_b32 s{sCNT}, 0")
            A(f"s_branch {c}")
            pad(kind)
        else:
            A(f"s_mov_b32 s{sEM}, s{sM3}")
            A(f"s_mov_b32 s{sCNT}, 0")
        A(f"{l}:")
        if sleep: A(f"s_sleep {sleep}")
        issue()
        A(f"{c}:")
        A(f"s_add_u32 s{sCNT}, s{sCNT}, 1")
        vC, vC0 = vTMP2, vTMP
        for i in range(nld):
            A(f"s_waitcnt vmcnt({((1 - i//2) if opt.x4dbg == 1 else 0) if (opt.x4dbg and nld == 4) else nld-1-i})")
            A(f"v_xor_b32 v{vGA+2*i+1}, v{vTC}, v{vGA+2*i+1}")
            if i == 2:
                A(f"v_or3_b32 v{vC0}, v{vGA}, v{vGA+2}, v{vGA+4}")
                A(f"v_or3_b32 v{vC}, v{vGA+1}, v{vGA+3}, v{vGA+5}")
            if i == nld-1:
                if nld == 4:
                    A(f"v_or_b32 v{vC0}, v{vC0}, v{vGA+6}")
                    A(f"v_bitop3_b32 v{vC}, v{vC}, v{vGA+7}, s{sM3} bitop3:0xa8")
                else:
                    A(f"v_and_b32 v{vC}, s{sM3}, v{vGA+1}")
                A(f"v_and_or_b32 v{vC0}, v{vC0 if nld == 4 else vGA}, s{sEM}, v{vC}")
                A(f"v_cmp_ne_u32 vcc, 0, v{vC0}")
            if work is not None and (i < nld-1 or opt.specw): work(i)
        A(f"s_cbranch_vccz {d}")
        A(f"v_cmp_ne_u32 vcc, 0, v{vC}")
        A(f"s_cbranch_vccnz {rt}")
        A(f"s_mov_b32 s{sEM}, 0")
        if defer: A(f"s_branch {d}")
        else:
            A("s_call_b64 s[6:7], L_fixr")
            A(f"s_branch {c}")
        A(f"{rt}:")
        A(f"s_cmp_le_u32 s{sCNT}, {0 if ((opt.dbg & 6) or (opt.noretry and nld == 4)) else opt.maxpoll}")
        A(f"s_cbranch_scc1 {l}")
        A(f"{d}:")
        if cntstamp is not None: stampval(cntstamp, sCNT)
        if work is not None and not opt.specw: work(nld-1)
    vS0, vS1, vSCA = vGA + 12, vGA + 8, vLS
    def acc(i, dst, first):
        for r in range(4):
            c2 = "0" if first else f"v{dst+r}"
            A(f"v_fma_mix_f32 v{dst+r}, v{vGA+2*i+(r>>1)}, v{vSCA+i}, {c2} op_sel:[{r&1},0,0] op_sel_hi:[1,0,0]")
    def setsca(lg):
        for i in range(4): A(f"v_mov_b32 v{vSCA+i}, {fbits(2.0**-lg):#x}")
    def wreads(k0, k1):
        for kb in range(k0, k1):
            o = 8192*kb
            A(f"ds_read_b64_tr_b16 v[{vK+4*kb}:{vK+4*kb+1}], v{vWA} offset:{o}")
            A(f"ds_read_b64_tr_b16 v[{vK+4*kb+2}:{vK+4*kb+3}], v{vWA} offset:{o+1024}")
    def mf(kb, first):
        c = "0" if first else f"v[{vACC}:{vACC+3}]"
        A(f"v_mfma_f32_16x16x32_bf16 v[{vACC}:{vACC+3}], v[{vK+4*kb}:{vK+4*kb+3}], v[{vQ+4*kb}:{vQ+4*kb+3}], {c}")
    vAB = vW
    def actreads(n, swz=False):
        for kb in range(n):
            A(f"ds_read_b128 v[{vQ+4*kb}:{vQ+4*kb+3}], v{vAB if (swz and kb & 1) else vAA} offset:{512*kb}")
    sFA, sRA, sPE = 12, 10, 14
    def late_setup(wbase, padd, pend):
        A(f"v_add_u32 v{vWA}, {wbase}, v{vTR}")
        A(f"v_add_u32 v{vAA}, {AF}, v{vACT}")
        afswz(vAA)
        A(f"v_xor_b32 v{vAB}, 64, v{vAA}")
        A(f"v_and_b32 v{vTMP2}, 4, v0")
        A(f"v_lshlrev_b32 v{vPUB}, 10, v{vTMP2}")
        A(f"v_and_b32 v{vTMP2}, 3, v0")
        A(f"v_lshl_or_b32 v{vPUB}, v{vTMP2}, 5, v{vPUB}")
        A(f"v_lshrrev_b32 v{vTMP2}, 4, v0")
        A(f"v_lshl_or_b32 v{vPUB}, v{vTMP2}, 3, v{vPUB}")
        A(f"s_lshl3_add_u32 s{sTMP}, s{sCB}, s{sC}")
        A(f"s_lshl_b32 s{sTMP}, s{sTMP}, 6")
        A(f"s_add_u32 s{sTMP}, s{sTMP}, s{sRBK}")
        A(f"s_lshl_b32 s{sTMP}, s{sTMP}, 7")
        ws_addr(sFA, WS_FP + 128*padd, sTMP)
        A(f"s_mov_b32 s{sPE}, {pend}")
        setscale(LF)
        A(f"v_mov_b32 v{vAX}, 0")
        A(f"s_mov_b32 s{sWDN}, 21")
        A(f"s_add_u32 s{sTMP}, s{sKB0}, s{sC}")
        A(f"s_lshl_b32 s{sTMP}, s{sTMP}, 11")
    sRET = 6
    def wcatch():
        d = g.lab("L_wc")
        A(f"s_cmp_lt_u32 s{sPROG}, s{sWDN}")
        A(f"s_cbranch_scc1 {d}")
        A(f"s_call_b64 s[{sRET}:{sRET+1}], L_wcatch")
        A(f"{d}:")
    def late_wait():
        l = g.lab("L_lw"); d = g.lab("L_lwd")
        A(f"{l}:")
        A(f"ds_read_b64 v[{vTMP}:{vTMP+1}], v9 offset:{F_PROG}")
        A("s_waitcnt lgkmcnt(0)")
        A(f"v_readfirstlane_b32 s{sTMP}, v{vTMP+1}")
        A(f"v_readfirstlane_b32 s{sPROG}, v{vTMP}")
        A(f"s_cmp_lg_u32 s{sTMP}, 0")
        A(f"s_cbranch_scc1 {d}")
        wcatch()
        A(f"s_branch {l}")
        A(f"{d}:")
    def late_mid():
        A(f"s_add_u32 s{sTMP2}, s{sPROG}, {opt.midahead}")
        A(f"s_min_u32 s{sTMP2}, s{sTMP2}, s{sPE}")
        wcatch()
        wait_prog(True, sTMP2)
        wcatch()
    vPG = 126
    def late_post_issue():
        if opt.lflow == 1: A(f"ds_read_b32 v{vPG}, v9 offset:{F_PROG}")
    def late_post():
        if opt.fgate == 2: signal(F_BA)
        if opt.lflow != 1: return
        A("s_waitcnt lgkmcnt(0)")
        A(f"v_readfirstlane_b32 s{sPROG}, v{vPG}")
        wcatch()

    if opt.cprio: A(f"s_setprio {opt.cprio}")
    signal(F_ERD)
    A(f"s_cmp_eq_u32 s3, 9")
    A("s_cbranch_scc1 L_poller")
    if opt.nocomm:
        signal(F_FREE0); signal(F_FREE1)
        A("s_branch L_exit")
    def egloop(last, name, lead=None, nrep=0):
        A(f"L_eg_loop{name}:")
        A(f"ds_read_b128 v[{vB}:{vB+3}], v{vAA}")
        wait_prog(True, sCNT)
        A(f"ds_read_b64_tr_b16 v[{vW}:{vW+1}], v{vWA}")
        A(f"ds_read_b64_tr_b16 v[{vW+2}:{vW+3}], v{vWA} offset:1024")
        if lead is not None and lead >= 0:
            A(f"s_cmp_lg_u32 s{sCNT}, {last - lead}")
            A(f"s_cbranch_scc1 L_eg_nf{name}")
            flag_now(nrep)
            A(f"L_eg_nf{name}:")
        A(f"v_add_u32 v{vWA}, 8192, v{vWA}")
        A(f"v_add_u32 v{vAA}, 512, v{vAA}")
        A(f"s_add_u32 s{sCNT}, s{sCNT}, 1")
        A(f"s_cmp_le_u32 s{sCNT}, {last}")
        A("s_waitcnt lgkmcnt(0)")
        A(f"v_mfma_f32_16x16x32_bf16 v[{vACC}:{vACC+3}], v[{vW}:{vW+3}], v[{vB}:{vB+3}], v[{vACC}:{vACC+3}]")
        A(f"s_cbranch_scc1 L_eg_loop{name}")
    C('q partial = x[:, 128 rows] @ wq tile (four waves, two 16-column slices each)')
    A(f"s_cmp_ge_u32 s{sC}, 4")
    A("s_cbranch_scc1 L_noq")
    A(f"v_and_b32 v{vTMP2}, 7, v0")
    A(f"v_lshlrev_b32 v{vSTW}, 8, v{vTMP2}")
    A(f"v_and_b32 v{vTMP2}, 8, v0")
    A(f"v_lshl_or_b32 v{vSTW}, v{vTMP2}, 2, v{vSTW}")
    A(f"v_lshrrev_b32 v{vTMP3}, 4, v0")
    A(f"v_lshl_or_b32 v{vSTW}, v{vTMP3}, 3, v{vSTW}")
    A(f"s_lshl_b32 s{sTMP}, s{sC}, 6")
    A(f"s_add_u32 s{sTMP}, s{sTMP}, {ST}")
    A(f"v_add_u32 v{vSTW}, s{sTMP}, v{vSTW}")
    A(f"v_add_u32 v{vSTR}, {ST}, v{vL16}")
    A(f"v_and_b32 v{vPUB}, 0xf0, v{vL16}")
    A(f"v_lshl_or_b32 v{vPUB}, v{vTMP3}, 16, v{vPUB}")
    A(f"v_lshlrev_b32 v{vTMP3}, 2, v{vTMP3}")
    A(f"v_lshl_or_b32 v{vTMP3}, v{vTMP2}, 1, v{vTMP3}")
    tagbits(vB, vTMP3)
    setscale(LQ)
    A(f"s_and_b32 s{sTMP3}, s{sU}, 7")
    A(f"s_lshl3_add_u32 s{sTMP}, s{sG}, s{sTMP3}")
    A(f"s_lshl3_add_u32 s{sTMP}, s{sTMP}, s{sKS}")
    A(f"s_lshl_b32 s{sTMP}, s{sTMP}, 8")
    ws_addr(sGA, WS_QP, sTMP)
    A(f"s_mul_i32 s{sTMP}, s{sG}, {32*CS}")
    ws_addr(sGB, WS_QC, sTMP)
    A(f"s_lshl_b32 s{sTMP}, s{sC}, 1")
    A(f"s_xor_b32 s{sTMP}, s{sTMP}, s{sC}")
    A(f"s_lshl_b32 s{sTMP}, s{sTMP}, 5")
    A(f"v_xor_b32 v{vWA}, s{sTMP}, v{vTR}")
    A(f"v_add_u32 v{vWA}, {RQ}, v{vWA}")
    A(f"v_xor_b32 v{vW}, 32, v{vWA}")
    A(f"v_add_u32 v{vAA}, {XF}, v{vACT}")
    A(f"v_cmp_eq_u32 s[4:5], 0, v{vTMP2}")
    cwait(F_ERD, 9, sleep=1)
    wait_prog(False, 4, sleep=1)
    if opt.qlead >= 0: flag_now("q")
    actreads(4)
    wreads(0, 4)
    for kb in range(4):
        A(f"s_waitcnt lgkmcnt({6 if kb == 0 else 6})")
        A(f"ds_read_b64_tr_b16 v[{vK+16+4*kb}:{vK+16+4*kb+1}], v{vW} offset:{8192*kb}")
        A(f"ds_read_b64_tr_b16 v[{vK+16+4*kb+2}:{vK+16+4*kb+3}], v{vW} offset:{8192*kb+1024}")
        mf(kb, kb == 0)
    A("s_mov_b64 exec, 3")
    A(f"ds_add_u32 v9, v{vONE} offset:{F_FREE0}")
    A("s_mov_b64 exec, -1")
    for kb in range(4):
        A(f"s_waitcnt lgkmcnt({7-2*kb})")
        c1 = "0" if kb == 0 else f"v[{vACC2}:{vACC2+3}]"
        A(f"v_mfma_f32_16x16x32_bf16 v[{vACC2}:{vACC2+3}], v[{vK+16+4*kb}:{vK+16+4*kb+3}], v[{vQ+4*kb}:{vQ+4*kb+3}], {c1}")
    A("s_nop 7")
    for r in range(4): A(f"v_cndmask_b32 v{vACC+r}, v{vACC2+r}, v{vACC+r}, s[4:5]")
    encode(None, vB, vB+1)
    staged(F_PUB0, 3, 4 << 16, "q" if opt.qhint else None)
    if opt.ackst:
        stamp(2); A("s_waitcnt vmcnt(0)"); stamp(5)
    A(f"v_mov_b32 v{vAX}, 0")
    A("L_noq:")
    if not opt.ackst: stamp(2)
    A(f"s_cmp_ge_u32 s{sR}, 16")
    A("s_cbranch_scc1 L_roleM")
    def rbf(v):
        A(f"v_cvt_pk_bf16_f32 v{v}, v{v}, v{v}")
        A(f"v_and_b32 v{v}, 0xffff0000, v{v}")
    A(f"s_cmp_eq_u32 s{sROLE}, 2")
    A("s_cbranch_scc1 L_gate")
    C('role B: gate or up partial over 512 rows')
    pub_voff(5)
    setscale(LG)
    A(f"s_and_b32 s{sTMP}, s{sBETA}, -4")
    A(f"s_lshr_b32 s{sTMP2}, s{sC}, 1")
    A(f"s_add_u32 s{sTMP}, s{sTMP}, s{sTMP2}")
    A(f"s_and_b32 s{sTMP2}, s{sBETA}, 3")
    A(f"s_lshl2_add_u32 s{sTMP}, s{sTMP}, s{sTMP2}")
    A(f"s_and_b32 s{sTMP2}, s{sC}, 1")
    A(f"s_lshl1_add_u32 s{sTMP}, s{sTMP}, s{sTMP2}")
    A(f"s_lshl_b32 s{sTMP}, s{sTMP}, 8")
    ws_addr(sGA, WS_GP, sTMP)
    def hc_addr():
        A(f"s_and_b32 s{sTMP}, s{sBETA}, -4")
        A(f"s_or_b32 s{sTMP2}, s{sBETA}, 3")
        A(f"s_mul_i32 s{sTMP}, s{sTMP}, 147")
        A(f"s_mul_i32 s{sTMP2}, s{sTMP2}, 147")
        A(f"s_lshr_b32 s{sTMP}, s{sTMP}, 10")
        A(f"s_lshr_b32 s{sTMP2}, s{sTMP2}, 10")
        A(f"s_cmp_eq_u32 s{sTMP}, s{sTMP2}")
        A(f"s_cselect_b32 s{sNH}, {HREP}, {2*HREP}")
        A(f"s_mul_i32 s{sTMP}, s{sTMP}, {CS*HREP}")
        ws_addr(sGB, WS_HC, sTMP)
    if not opt.notif: hc_addr()
    for r in range(4): A(f"v_mov_b32 v{vACC+r}, 0")
    A(f"v_mov_b32 v{vWA}, v{vTR}")
    A(f"v_add_u32 v{vAA}, {XF + 2048}, v{vACT}")
    A(f"s_mov_b32 s{sCNT}, 5")
    wait_prog(False, opt.xgat + 1, sleep=1)
    egloop(12, "G1")
    signal(F_FREE1)
    stamp(3)
    egloop(20, "G2", opt.hlead, "h")
    A("s_nop 7")
    publish(vACC)
    if opt.hlead < 0 and not opt.notif: flag(F_PUB1, "h")
    else: A("s_mov_b64 exec, -1")
    stamp(6)
    if opt.ackst:
        A("s_waitcnt vmcnt(0)"); stamp(4)
    C('roles B and C: gather the four attention partials, combine them with the softmax weights')
    A("L_bc_late:")
    late_setup(RA, 0, 28)
    ws_addr(sGA, WS_OP, sTMP)
    A(f"s_lshl_b32 s{sTMP2}, s{sC}, 4")
    A(f"v_and_b32 v{vTMP3}, 32, v0")
    A(f"v_lshlrev_b32 v{vTMP3}, 2, v{vTMP3}")
    A(f"v_add3_u32 v{vTMP3}, v{vTMP3}, s{sTMP2}, v9")
    A(f"s_lshl_b32 s{sTMP3}, s{sLR}, 3")
    A(f"v_subrev_u32 v{vAFW}, s{sTMP3}, v0")
    A(f"v_and_b32 v{vAFW}, 62, v{vAFW}")
    A(f"v_lshlrev_b32 v{vAFW}, 6, v{vAFW}")
    A(f"v_and_b32 v{vTMP2}, 1, v0")
    A(f"v_lshl_or_b32 v{vAFW}, v{vTMP2}, 3, v{vAFW}")
    A(f"s_add_u32 s{sTMP2}, s{sTMP2}, {AF}")
    A(f"v_add_u32 v{vAFW}, s{sTMP2}, v{vAFW}")
    afswz(vAFW)
    late_wait()
    stamp(7)
    def owork(i):
        if i == 2: late_post_issue()
        if i == 3: late_post()
    gather(mid=late_mid, cntstamp=13, sleep=opt.gsleep, work=owork, kind='B', defer=True)
    if STAMP == 1: A("s_waitcnt lgkmcnt(0)")
    cwait_rd(F_WRDY, 1, 0, lambda: A(f"ds_read_b128 v[{vSCA}:{vSCA+3}], v{vTMP3} offset:{F_WT}"))
    stamp(8)
    A(f"s_cmp_lg_u32 s{sEM}, 0")
    A("s_cbranch_scc1 L_onofix")
    A("s_call_b64 s[6:7], L_fix")
    A("L_onofix:")
    for i in range(4): acc(i, vS0, i == 0)
    A("s_branch L_late")

    C('role M: sum the q partials, scores, true max over the 256 keys, P, P @ V')
    A("L_roleM:")
    A(f"s_lshl2_add_u32 s{sTMP}, s{sBB}, s{sG}")
    A(f"s_lshl3_add_u32 s{sTMP}, s{sTMP}, s{sC}")
    A(f"s_lshl_b32 s{sTMP}, s{sTMP}, 11")
    ws_addr(sGA, WS_QP, sTMP)
    A(f"v_bfe_u32 v{vTMP2}, v0, 2, 2")
    A(f"v_and_b32 v{vTMP3}, 3, v0")
    A(f"v_lshl_add_u32 v{vTMP2}, v{vTMP2}, 3, v{vTMP3}")
    A(f"v_lshlrev_b32 v{vWA}, 8, v{vTMP2}")
    A(f"v_lshrrev_b32 v{vTMP2}, 5, v0")
    A(f"v_and_b32 v{vTMP3}, 7, v0")
    A(f"v_xor_b32 v{vTMP2}, v{vTMP2}, v{vTMP3}")
    A(f"v_lshl_or_b32 v{vWA}, v{vTMP2}, 5, v{vWA}")
    A(f"v_and_b32 v{vTMP2}, 16, v0")
    A(f"s_lshl_b32 s{sTMP}, s{sC}, 13")
    A(f"v_add3_u32 v{vWA}, v{vWA}, v{vTMP2}, s{sTMP}")
    vQA, vMX, vPA = vW, vW + 1, vW + 2
    A(f"v_and_b32 v{vQA}, 30, v0")
    A(f"v_lshlrev_b32 v{vQA}, 6, v{vQA}")
    A(f"v_and_b32 v{vTMP2}, 1, v0")
    A(f"v_lshl_or_b32 v{vQA}, v{vTMP2}, 3, v{vQA}")
    A(f"v_lshrrev_b32 v{vTMP2}, 5, v0")
    A(f"v_lshl_or_b32 v{vQA}, v{vTMP2}, 2, v{vQA}")
    A(f"s_lshl_b32 s{sTMP}, s{sC}, 4")
    A(f"s_add_u32 s{sTMP}, s{sTMP}, {QF}")
    A(f"v_add_u32 v{vQA}, s{sTMP}, v{vQA}")
    A(f"v_lshl_add_u32 v{vMX}, v{vTMP3}, 2, v9")
    A(f"s_lshl_b32 s{sTMP}, s{sC}, 9")
    A(f"s_add_u32 s{sTMP}, s{sTMP}, {PF}")
    A(f"v_add_u32 v{vPA}, s{sTMP}, v{vACT}")
    vOTP, vOTA = vRW, vRR
    A(f"v_lshrrev_b32 v{vTMP3}, 4, v0")
    A(f"v_and_b32 v{vTMP2}, 7, v0")
    A(f"v_lshlrev_b32 v{vSTW}, 8, v{vTMP2}")
    A(f"v_lshl_or_b32 v{vSTW}, v{vTMP3}, 3, v{vSTW}")
    A(f"s_lshl_b32 s{sTMP}, s{sC}, 5")
    A(f"s_add_u32 s{sTMP}, s{sTMP}, {ST}")
    A(f"v_add_u32 v{vSTW}, s{sTMP}, v{vSTW}")
    A(f"v_add_u32 v{vSTR}, {ST}, v{vL16}")
    A(f"v_and_b32 v{vPUB}, 0x1f0, v{vL16}")
    A(f"v_and_b32 v{vTMP2}, 32, v0")
    A(f"v_lshl_or_b32 v{vPUB}, v{vTMP2}, 9, v{vPUB}")
    A(f"s_and_b32 s{sTMP}, s{sC}, 1")
    A(f"s_lshl_b32 s{sTMP}, s{sTMP}, 4")
    A(f"v_lshl_or_b32 v{vTMP3}, v{vTMP3}, 2, s{sTMP}")
    tagbits(vOTP, vTMP3)
    if opt.qhint: cwait(F_QRDY, 1, sleep=1)
    else: wait_prog(False, opt.qgate, sleep=1)
    stamp(3)
    def kfrags():
        A(f"s_add_u32 s{sTMP2}, s{sC}, 5")
        wait_prog(True, sTMP2)
        for db in range(4):
            if db: A(f"v_xor_b32 v{vAA}, {64*db}, v{vWA}")
            a = vAA if db else vWA
            A(f"ds_read_b128 v[{vK+4*db}:{vK+4*db+3}], v{a}")
            A(f"ds_read_b128 v[{vK+16+4*db}:{vK+16+4*db+3}], v{a} offset:1024")
        signal(F_FREE1)
        A(f"v_add_u32 v{vAA}, {QF}, v{vACT}")
    kfr[0] = kfrags
    setsca(LQ)
    def qwork(i): acc(i, vS0, i == 0)
    gather(nld=4, mid=kfrags, cntstamp=11, sleep=opt.qsleep, work=qwork)
    stamp(4)
    A("s_nop 1")
    A(f"v_permlane32_swap_b32 v{vS0}, v{vS0+2}")
    A(f"v_permlane32_swap_b32 v{vS0+1}, v{vS0+3}")
    A(f"v_add_f32 v{vS0}, v{vS0}, v{vS0+2}")
    A(f"v_add_f32 v{vS0+1}, v{vS0+1}, v{vS0+3}")
    A(f"v_cvt_pk_bf16_f32 v{vGA}, v{vS0}, v{vS0+1}")
    A(f"ds_write_b32 v{vQA}, v{vGA}")
    signal(F_BQ)
    A(f"s_lshl_b32 s{sTMP}, s{sG}, 5")
    A(f"s_add_u32 s{sTMP}, s{sTMP}, s{sBB}")
    A(f"s_lshl2_add_u32 s{sTMP}, s{sTMP}, s{sSPL}")
    A(f"s_lshl_b32 s{sTMP}, s{sTMP}, 9")
    ws_addr(sGA, WS_OP, sTMP)
    A(f"s_lshl2_add_u32 s{sTMP3}, s{sBB}, s{sSPL}")
    A(f"s_mul_i32 s{sTMP}, s{sG}, {32*CS}")
    ws_addr(sGB, WS_OC, sTMP)
    A(f"s_lshl_b32 s{sTMP}, s{sG}, 5")
    A(f"s_add_u32 s{sTMP}, s{sTMP}, s{sTMP3}")
    A(f"s_lshl_b32 s{sTMP}, s{sTMP}, 6")
    ws_addr(sFA, WS_LSE, sTMP)
    cbits = struct.unpack("<I", struct.pack("<f", math.log2(math.e) / math.sqrt(128.0)))[0]
    A(f"s_mov_b32 s{sTMP2}, {cbits:#x}")
    if STAMP == 1: A("s_waitcnt lgkmcnt(0)")
    if opt.spec: cwait_rd(F_BQ, 8, 4, lambda: actreads(4))
    else:
        cwait(F_BQ, 8); actreads(4)
    for db in range(4):
        A(f"s_waitcnt lgkmcnt({3-db})")
        c0 = "0" if db == 0 else f"v[{vACC}:{vACC+3}]"
        c1 = "0" if db == 0 else f"v[{vACC2}:{vACC2+3}]"
        A(f"v_mfma_f32_16x16x32_bf16 v[{vACC}:{vACC+3}], v[{vK+4*db}:{vK+4*db+3}], v[{vQ+4*db}:{vQ+4*db+3}], {c0}")
        A(f"v_mfma_f32_16x16x32_bf16 v[{vACC2}:{vACC2+3}], v[{vK+16+4*db}:{vK+16+4*db+3}], v[{vQ+4*db}:{vQ+4*db+3}], {c1}")
    A(f"v_add_u32 v{vAA}, {PF}, v{vACT}")
    A(f"v_add_u32 v{vWA}, {RB}, v{vTR}")
    vONES = vGA
    for r in range(4): A(f"v_mov_b32 v{vONES+r}, 0x3f803f80")
    A("s_nop 1")
    A(f"v_max3_f32 v{vTMP2}, v{vACC}, v{vACC+1}, v{vACC+2}")
    A(f"v_max3_f32 v{vTMP2}, v{vTMP2}, v{vACC+3}, v{vACC2}")
    A(f"v_max3_f32 v{vTMP2}, v{vTMP2}, v{vACC2+1}, v{vACC2+2}")
    A(f"v_max_f32 v{vTMP2}, v{vTMP2}, v{vACC2+3}")
    A("s_mov_b32 exec_lo, 0x00ff00ff\ns_mov_b32 exec_hi, 0x00ff00ff")
    A(f"ds_max_f32 v{vMX}, v{vTMP2} offset:{F_MAX}")
    signal(F_BM)
    vM = vLS
    cwait_rd(F_BM, 8, 1, lambda: A(f"ds_read_b32 v{vM}, v{vMX} offset:{F_MAX}"))
    if opt.olead >= 0 and opt.oearly:
        A(f"ds_read_b32 v{vTMP}, v9 offset:{F_PROG}")
    A("s_waitcnt lgkmcnt(0)")
    A(f"s_mov_b32 s{sWDN}, 0")
    if opt.olead >= 0 and opt.oearly:
        A(f"v_readfirstlane_b32 s{sPROG}, v{vTMP}")
        A(f"s_cmp_lt_u32 s{sPROG}, {20 - opt.olead}")
        A("s_cbranch_scc1 L_of_no1")
        flag_now("q")
        A(f"s_mov_b32 s{sWDN}, 1")
        A("L_of_no1:")
    A(f"v_mul_f32 v{vM}, s{sTMP2}, v{vM}")
    for r in range(8):
        A(f"v_fma_f32 v{vACC+r}, v{vACC+r}, s{sTMP2}, -v{vM}")
    for r in range(8):
        A(f"v_exp_f32 v{vACC+r}, v{vACC+r}")
    A("s_nop 0")
    for r in range(4):
        A(f"v_cvt_pk_bf16_f32 v{vB+r}, v{vACC+2*r}, v{vACC+2*r+1}")
    A(f"ds_write_b128 v{vPA}, v[{vB}:{vB+3}]")
    signal(F_BP)
    if opt.spec: cwait_rd(F_BP, 8, 8, lambda: actreads(8))
    else:
        cwait(F_BP, 8); actreads(8)
    A(f"ds_read_b32 v{vTMP}, v9 offset:{F_PROG}")
    for kb in range(8):
        A(f"s_waitcnt lgkmcnt({8-kb})")
        c1 = "0" if kb == 0 else f"v[{vACC2}:{vACC2+3}]"
        A(f"v_mfma_f32_16x16x32_bf16 v[{vACC2}:{vACC2+3}], v[{vONES}:{vONES+3}], v[{vQ+4*kb}:{vQ+4*kb+3}], {c1}")
    A("s_waitcnt lgkmcnt(0)")
    A(f"v_readfirstlane_b32 s{sPROG}, v{vTMP}")
    stamp(5)
    vRL = vLS + 2
    def lse_part():
        A(f"v_log_f32 v{vLS+1}, v{vACC2}")
        A(f"v_rcp_f32 v{vRL}, v{vACC2}")
        A("s_nop 0")
        A(f"v_mul_f32 v{vRL}, {fbits(2.0**LO_):#x}, v{vRL}")
        d = g.lab("L_nolse")
        A(f"s_cmp_lg_u32 s{sC}, 0")
        A(f"s_cbranch_scc1 {d}")
        A(f"v_add_f32 v{vM}, v{vM}, v{vLS+1}")
        A(f"v_mov_b32 v{vLS+1}, s{sT}")
        A(f"v_lshlrev_b32 v{vTMP2}, 3, v0")
        A("s_mov_b64 exec, 0xff")
        if not (opt.dbg & 1):
            A(f"global_store_dwordx2 v{vTMP2}, v[{vLS}:{vLS+1}], s[{sFA}:{sFA+1}] sc1")
            if opt.lcnt:
                A(f"s_bfm_b64 exec, {NREP}, 0")
                A(f"v_mov_b32 v{vTMP2}, 0x10000")
                A(f"global_atomic_add v{vFLG}, v{vTMP2}, s[{sGB}:{sGB+1}] sc1")
        A("s_mov_b64 exec, -1")
        A(f"{d}:")
    A(f"s_cmp_lt_u32 s{sPROG}, 20")
    A("s_cbranch_scc1 L_pv_slow")
    def oflag():
        if opt.olead < 0: return
        d = g.lab("L_of")
        A(f"s_cmp_lg_u32 s{sWDN}, 0")
        A(f"s_cbranch_scc1 {d}")
        flag_now("q")
        A(f"{d}:")
    wreads(0, 7)
    lse_part()
    oflag()
    for kb in range(7):
        A(f"s_waitcnt lgkmcnt({14-2*kb if kb else 12})")
        if kb == 0: wreads(7, 8)
        mf(kb, kb == 0)
    A("s_branch L_pv_last")
    pad("M")
    A("L_pv_slow:")
    A("s_nop 4")
    lse_part()
    for kb in range(8):
        wait_prog(False, 12 + kb + 1)
        wreads(kb, kb+1)
        if 12 + kb + 1 == 20 - opt.olead: oflag()
        if kb:
            A("s_waitcnt lgkmcnt(2)")
            mf(kb-1, kb == 1)
    A("L_pv_last:")
    A("s_waitcnt lgkmcnt(0)")
    mf(7, False)
    A("s_nop 7")
    encode(vRL, vOTP, vOTA)
    A("s_mov_b32 exec_lo, 0x00ff00ff\ns_mov_b32 exec_hi, 0x00ff00ff")
    staged(F_PUB1, 7, 2 << 14, "q" if (opt.olead < 0 and not opt.notif) else None)
    stamp(6)
    if opt.ackst:
        A("s_waitcnt vmcnt(0)"); stamp(3)
    C('role M: set-up of the final reduction and of the W_down tile; h = relu(gate) * up')
    A(f"s_and_b32 s{sTMP2}, s{sXCD if opt.rmap else sR}, 1")
    A(f"s_lshl_b32 s{sTMP2}, s{sTMP2}, 4")
    A(f"v_and_b32 v{vTMP2}, 12, v0")
    A(f"v_add_u32 v{vTMP2}, v{vTMP2}, v9")
    cwait_rd(F_QRDY, 1, 0, lambda: A(f"ds_read_b32 v{vRG}, v{vTMP2} offset:{F_G}"))
    if opt.rmap:
        assert not opt.fgate
        A(f"s_sub_u32 s{sTMP3}, s2, 128")
    else:
        A(f"s_lshl4_add_u32 s{sTMP}, s{sXCD}, s{sR}")
        A(f"s_sub_u32 s{sTMP3}, s{sTMP}, 16")
    A(f"s_lshl3_add_u32 s{sTMP}, s{sTMP3}, s{sC}")
    A(f"s_lshl_b32 s{sTMP}, s{sTMP}, 9")
    ws_addr(sRA, WS_FP, sTMP)
    A(f"v_lshlrev_b32 v{vRR}, 2, v0")
    A(f"v_add_u32 v{vRR}, {RS}, v{vRR}")
    A(f"s_lshl_b32 s{sTMP}, s{sC}, 8")
    A(f"v_add_u32 v{vRW}, s{sTMP}, v{vRR}")
    A(f"v_and_b32 v{vOUT}, 12, v0")
    A(f"v_lshlrev_b32 v{vOUT}, 9, v{vOUT}")
    A(f"v_and_b32 v{vTMP2}, 3, v0")
    A(f"v_lshl_or_b32 v{vOUT}, v{vTMP2}, 3, v{vOUT}")
    A(f"v_lshrrev_b32 v{vTMP2}, 4, v0")
    A(f"v_lshl_or_b32 v{vOUT}, v{vTMP2}, 1, v{vOUT}")
    A(f"s_lshl_b32 s{sTMP2}, s{sTMP2}, 9")
    A(f"s_lshr_b32 s{sTMP3}, s{sTMP3}, 1")
    A(f"s_lshl_b32 s{sTMP3}, s{sTMP3}, 5")
    A(f"s_add_u32 s{sTMP2}, s{sTMP2}, s{sTMP3}")
    A(f"v_add_u32 v{vOUT}, s{sTMP2}, v{vOUT}")
    if opt.vtouch & 1:
        A(f"s_cmp_lg_u32 s{sC}, 7")
        A("s_cbranch_scc1 L_novt")
        A("s_mov_b64 exec, 1")
        A(f"global_load_ushort v127, v{vOUT}, s[{sOUT}:{sOUT+1}] sc1")
        A("s_mov_b64 exec, -1")
        A("L_novt:")
    A("s_waitcnt lgkmcnt(0)")
    A(f"s_cmp_lt_u32 s{sC}, 4")
    A("s_cbranch_scc1 L_wg_done")
    A(f"v_sub_f32 v{vRG}, 1.0, v{vRG}")
    rbf(vRG)
    A("L_wg_done:")
    A(f"v_mul_f32 v{vRG}, {fbits(2.0**-LF):#x}, v{vRG}")
    setsca(LG)
    late_setup(RA, 16, 27)
    A(f"s_add_u32 s{sTMP}, s{sC}, s{sLR}")
    A(f"s_cmp_ge_u32 s{sTMP}, 7")
    A(f"s_cselect_b32 s{sTMP2}, 7, 0")
    A(f"s_sub_u32 s{sTMP}, s{sTMP}, s{sTMP2}")
    A(f"s_add_u32 s{sTMP}, s{sTMP}, s{sKB0}")
    A(f"s_lshl_b32 s{sTMP}, s{sTMP}, 11")
    ws_addr(sGA, WS_GP, sTMP)
    for r in range(4): A(f"v_mov_b32 v{vS0+r}, 0")
    late_wait()
    A(f"s_cmp_eq_u32 s{sC}, 7")
    A("s_cbranch_scc1 L_late")
    stamp(7)
    def rnd4(v):
        A(f"v_cvt_pk_bf16_f32 v{vB}, v{v}, v{v+1}")
        A(f"v_cvt_pk_bf16_f32 v{vB+1}, v{v+2}, v{v+3}")
        for h in range(2):
            A(f"v_lshlrev_b32 v{v+2*h}, 16, v{vB+h}")
            A(f"v_and_b32 v{v+2*h+1}, 0xffff0000, v{vB+h}")
    def hwork(i):
        if i == 2: late_post_issue()
        if i == 3: late_post()
        acc(i, vS0 if i < 2 else vS1, i in (0, 2))
        if i == 1:
            for r in range(4): A(f"v_max_f32 v{vS0+r}, 0, v{vS0+r}")
            if opt.hround: rnd4(vS0)
        if i == 3:
            if opt.hround: rnd4(vS1)
            for r in (0, 2): A(f"v_pk_mul_f32 v[{vS0+r}:{vS0+r+1}], v[{vS0+r}:{vS0+r+1}], v[{vS1+r}:{vS1+r+1}]")
    gather(mid=late_mid, cntstamp=13, sleep=opt.gsleep, work=hwork)
    stamp(8)

    C('late GEMV against the wo / W_down tile, partial result out')
    if opt.touch: A("s_branch L_late")
    pad("A")
    A("L_late:")
    A(f"v_cvt_pk_bf16_f32 v{vGA}, v{vS0}, v{vS0+1}")
    A(f"v_cvt_pk_bf16_f32 v{vGA+1}, v{vS0+2}, v{vS0+3}")
    A(f"ds_write_b64 v{vAFW}, v[{vGA}:{vGA+1}]")
    if opt.lflow == 1:
        signal(F_BA)
        if opt.fine: stamp(3)
        A(f"s_cmp_eq_u32 s{sWDN}, 99")
        A("s_cbranch_scc1 L_late_bar")
        A("L_late_spin:")
        A(f"ds_read2_b32 v[{vTMP}:{vTMP+1}], v9 offset0:{F_PROG//4} offset1:{F_BA//4}")
        A("s_waitcnt lgkmcnt(0)")
        A(f"v_readfirstlane_b32 s{sPROG}, v{vTMP}")
        A(f"v_readfirstlane_b32 s{sTMP2}, v{vTMP+1}")
        wcatch()
        A(f"s_cmp_eq_u32 s{sWDN}, 99")
        A("s_cbranch_scc1 L_late_bar0")
        A(f"s_cmp_lt_u32 s{sWDN}, 27")
        A("s_cbranch_scc1 L_late_spin")
        A(f"s_cmp_lt_u32 s{sTMP2}, 8")
        A("s_cbranch_scc1 L_late_spin")
        actreads(8, True)
        for kb in range(6):
            A(f"s_waitcnt lgkmcnt({7-kb})")
            mf(kb, kb == 0)
        A("s_barrier")
        wreads(6, 8)
        A("s_waitcnt lgkmcnt(2)")
        mf(6, False)
        A("s_waitcnt lgkmcnt(0)")
        mf(7, False)
        A("s_branch L_late_done")
        pad("A")
        A("L_late_bar:")
        A("s_waitcnt lgkmcnt(0)")
        A("L_late_bar0:")
        A("s_barrier")
        if opt.fine: stamp(4)
        actreads(8, True)
        for kb in range(8):
            A(f"s_waitcnt lgkmcnt({7-kb})")
            mf(kb, kb == 0)
    else:
        if opt.fine: stamp(3)
        if opt.lflow == 3: signal(F_BA)
        A(f"s_cmp_ge_u32 s{sWDN}, {opt.wmin}")
        A(f"s_cbranch_scc1 {'L_late_w6' if opt.lflow == 3 else 'L_late_bar'}")
        wait_prog(False, opt.wmin - 1)
        wcatch()
        if opt.lflow == 3:
            A("L_late_w6:")
            A(f"s_cmp_eq_u32 s{sWDN}, 99")
            A("s_cbranch_scc1 L_late_bar")
            A("L_late_spin:")
            A(f"ds_read2_b32 v[{vTMP}:{vTMP+1}], v9 offset0:{F_PROG//4} offset1:{F_BA//4}")
            A("s_waitcnt lgkmcnt(0)")
            A(f"v_readfirstlane_b32 s{sPROG}, v{vTMP}")
            A(f"v_readfirstlane_b32 s{sTMP2}, v{vTMP+1}")
            A(f"s_cmp_ge_u32 s{sPROG}, s{sPE}")
            A("s_cbranch_scc1 L_late_bar")
            A(f"s_cmp_lt_u32 s{sTMP2}, 8")
            A("s_cbranch_scc1 L_late_spin")
            n0 = opt.wmin - 21
            actreads(8, True)
            for kb in range(n0):
                A(f"s_waitcnt lgkmcnt({7-kb})")
                mf(kb, kb == 0)
            A("s_barrier")
            wreads(n0, 8)
            for kb in range(n0, 8):
                A(f"s_waitcnt lgkmcnt({2*(7-kb)})")
                mf(kb, False)
            A("s_branch L_late_done")
        A("L_late_bar:")
        A(f"s_cmp_eq_u32 s{sWDN}, 99")
        A("s_waitcnt lgkmcnt(0)")
        A("s_barrier")
        A("s_cbranch_scc1 L_late_act")
        wreads(opt.wmin - 21, 8)
        A("L_late_act:")
        if opt.fine: stamp(4)
        actreads(8, True)
        for kb in range(8):
            A(f"s_waitcnt lgkmcnt({7-kb})")
            mf(kb, kb == 0)
    A("L_late_done:")
    if opt.fine: stamp(5)
    A("s_nop 7")
    publish(vACC, sFA)
    A("s_mov_b64 exec, -1")
    stamp(9)
    A(f"s_cmp_ge_u32 s{sR}, 16")
    A("s_cbranch_scc1 L_red")
    if opt.fixdur:
        A(f"s_cmp_eq_u32 s{sC}, 0")
        A("s_cbranch_scc1 L_noepoch")
    A("s_branch L_exit")
    pad("A")
    C('final reduction: out = g * sum(a partials) + (1 - g) * sum(b partials)')
    A("L_red:")
    A(f"s_mov_b64 s[{sGA}:{sGA+1}], s[{sRA}:{sRA+1}]")
    if opt.fgate and not opt.fbar: cwait(F_FRDY, 1)
    A(f"v_mov_b32 v{vSCA}, v{vRG}")
    if opt.fgate and opt.fbar: A("s_barrier")
    def fwork(i): acc(0, vS0, True)
    gather(nld=1, cntstamp=12, sleep=opt.fgsleep, work=fwork)
    if not opt.stq: stamp(2)
    A("s_nop 1")
    A(f"v_permlane32_swap_b32 v{vS0}, v{vS0+2}")
    A(f"v_permlane32_swap_b32 v{vS0+1}, v{vS0+3}")
    A(f"v_add_f32 v{vS0}, v{vS0}, v{vS0+2}")
    A(f"v_add_f32 v{vS0+1}, v{vS0+1}, v{vS0+3}")
    A("s_nop 1")
    A(f"v_permlane16_swap_b32 v{vS0}, v{vS0+1}")
    A(f"v_add_f32 v{vGA}, v{vS0}, v{vS0+1}")
    A(f"ds_write_b32 v{vRW}, v{vGA}")
    A("s_mov_b64 exec, 1")
    A(f"ds_add_rtn_u32 v{vTMP}, v9, v{vONE} offset:{F_RED}")
    A("s_mov_b64 exec, -1")
    for i in range(4):
        A(f"ds_read2st64_b32 v[{vGA+2*i}:{vGA+2*i+1}], v{vRR} offset0:{2*i} offset1:{2*i+1}")
    A("s_waitcnt lgkmcnt(4)")
    A(f"v_readfirstlane_b32 s{sTMP}, v{vTMP}")
    A(f"s_cmp_lg_u32 s{sTMP}, 7")
    A("s_cbranch_scc1 L_exit")
    A("s_waitcnt lgkmcnt(0)")
    A(f"v_pk_add_f32 v[{vGA}:{vGA+1}], v[{vGA}:{vGA+1}], v[{vGA+2}:{vGA+3}]")
    A(f"v_pk_add_f32 v[{vGA+4}:{vGA+5}], v[{vGA+4}:{vGA+5}], v[{vGA+6}:{vGA+7}]")
    A(f"v_pk_add_f32 v[{vGA}:{vGA+1}], v[{vGA}:{vGA+1}], v[{vGA+4}:{vGA+5}]")
    A(f"v_add_f32 v{vGA}, v{vGA}, v{vGA+1}")
    A(f"v_cvt_pk_bf16_f32 v{vGA}, v{vGA}, v{vGA}")
    A(f"global_store_short v{vOUT}, v{vGA}, s[{sOUT}:{sOUT+1}] {opt.outflags}")
    A(f"s_cmp_lg_u32 s2, 128")
    A("s_cbranch_scc1 L_noepoch")
    A("s_mov_b64 exec, 1")
    A(f"v_mov_b32 v{vTMP}, 0")
    A(f"global_store_dword v{vTMP}, v{vT}, s[{sWS}:{sWS+1}] sc1")
    A("s_mov_b64 exec, -1")
    A("L_noepoch:")
    if opt.fixdur:
        A(f"s_cmp_lg_u32 s2, {opt.fixwg}")
        A("s_cbranch_scc1 L_nofix")
        if opt.lprobe:
            A("s_cmp_lg_u32 s3, 0")
            A("s_cbranch_scc1 L_nofix")
        if opt.probe == 20: A("s_memrealtime s[96:97]")
        A("s_waitcnt lgkmcnt(0)")
        A(f"s_sub_u32 s96, s96, s{94 if opt.probe0 >= 0 else 98}")
        A("s_min_u32 s96, s96, 3000")
        A(f"s_mul_i32 s96, s96, {opt.amp if opt.probe >= 0 else 0}")
        A(f"s_add_u32 s96, s96, {opt.fixdur}")
        A("L_fixd:")
        A("s_memrealtime s[14:15]")
        A("s_waitcnt lgkmcnt(0)")
        A("s_sub_u32 s14, s14, s98")
        A(f"s_cmp_lt_u32 s14, s96")
        A("s_cbranch_scc1 L_fixd")
        A("L_nofix:")
    if STAMP:
        A("s_waitcnt vmcnt(0)")
        stamp(1, True)
    A("s_branch L_exit")

    pad("A")
    C('subroutine: transposing LDS reads of the late tile blocks that have landed')
    A("L_wcatch:")
    for kb in range(8):
        nx = f"L_wcn{kb}"
        if kb < 7:
            A(f"s_cmp_gt_u32 s{sWDN}, {21+kb}")
            A(f"s_cbranch_scc1 {nx}")
        if kb:
            A(f"s_cmp_lt_u32 s{sPROG}, s{sWDN}")
            A("s_cbranch_scc1 L_wcret")
        wreads(kb, kb+1)
        if kb < 6: A(f"s_mov_b32 s{sWDN}, {22+kb}")
        elif kb == 6: A(f"s_mov_b32 s{sWDN}, s{sPE}")
        else: A(f"s_mov_b32 s{sWDN}, 99")
        if kb < 7: A(f"{nx}:")
    A("L_wcret:")
    A(f"s_setpc_b64 s[{sRET}:{sRET+1}]")

    C('role C: g = sigmoid(x . gate_w) for four batch rows')
    A("L_gate:")
    vXr, vGWr = vK, vK + 8
    A(f"s_cmp_lt_u32 s{sC}, 4")
    A("s_cbranch_scc1 L_bc_late")
    wait_prog(False, 4, sleep=1)
    A(f"s_and_b32 s{sTMP}, s{sR}, 1")
    A(f"s_lshl2_add_u32 s{sTMP}, s{sTMP}, s{sC}")
    A(f"s_sub_u32 s{sTMP3}, s{sTMP}, 4")
    A(f"s_lshl_b32 s{sTMP}, s{sTMP3}, 11")
    A(f"v_add_u32 v{vTMP3}, s{sTMP}, v{vL16}")
    for i in range(2):
        A(f"global_load_dwordx4 v[{vXr+4*i}:{vXr+4*i+3}], v{vTMP3}, s[{sX}:{sX+1}] offset:{1024*i}")
        A(f"global_load_dwordx4 v[{vGWr+4*i}:{vGWr+4*i+3}], v{vL16}, s[{sGW}:{sGW+1}] offset:{1024*i}")
    A(f"v_mov_b32 v{vACC2}, 0")
    A("s_waitcnt vmcnt(0)")
    for i in range(8):
        A(f"v_lshlrev_b32 v{vW}, 16, v{vXr+i}")
        A(f"v_and_b32 v{vW+1}, 0xffff0000, v{vXr+i}")
        A(f"v_lshlrev_b32 v{vW+2}, 16, v{vGWr+i}")
        A(f"v_and_b32 v{vW+3}, 0xffff0000, v{vGWr+i}")
        A(f"v_mul_f32 v{vW}, v{vW}, v{vW+2}")
        A(f"v_mul_f32 v{vW+1}, v{vW+1}, v{vW+3}")
        A(f"v_cvt_pk_bf16_f32 v{vW}, v{vW}, v{vW+1}")
        A(f"v_lshlrev_b32 v{vW+1}, 16, v{vW}")
        A(f"v_and_b32 v{vW}, 0xffff0000, v{vW}")
        A(f"v_add_f32 v{vACC2}, v{vACC2}, v{vW+1}")
        A(f"v_add_f32 v{vACC2}, v{vACC2}, v{vW}")
    for off in (0x041F, 0x081F, 0x101F, 0x201F, 0x401F):
        A(f"ds_swizzle_b32 v{vW}, v{vACC2} offset:{off:#x}")
        A("s_waitcnt lgkmcnt(0)")
        A(f"v_add_f32 v{vACC2}, v{vACC2}, v{vW}")
    A(f"v_mov_b32 v{vW}, v{vACC2}")
    A("s_nop 1")
    A(f"v_permlane32_swap_b32 v{vACC2}, v{vW}")
    A(f"v_add_f32 v{vACC2}, v{vACC2}, v{vW}")
    rbf(vACC2)
    A(f"v_mul_f32 v{vACC2}, 0xbfb8aa3b, v{vACC2}")
    A(f"v_exp_f32 v{vACC2}, v{vACC2}")
    A("s_nop 0")
    A(f"v_add_f32 v{vACC2}, 1.0, v{vACC2}")
    A(f"v_rcp_f32 v{vACC2}, v{vACC2}")
    A("s_nop 0")
    rbf(vACC2)
    A(f"s_and_b32 s{sTMP}, s{sR}, 1")
    A(f"s_lshl1_add_u32 s{sTMP}, s{sXCD}, s{sTMP}")
    A(f"s_lshl4_add_u32 s{sTMP}, s{sTMP}, s{sC}")
    A(f"s_lshl_b32 s{sTMP}, s{sTMP}, 3")
    A(f"s_add_u32 s{sTMP}, s{sTMP}, {WS_GL - 32}")
    A(f"v_mov_b32 v{vTMP2}, s{sTMP}")
    A(f"v_mov_b32 v{vACC2+1}, s{sT}")
    A("s_mov_b64 exec, 1")
    if not (opt.dbg & 1): A(f"global_store_dwordx2 v{vTMP2}, v[{vACC2}:{vACC2+1}], s[{sWS}:{sWS+1}] sc1")
    A("s_mov_b64 exec, -1")
    A("s_branch L_bc_late")

    C('hand-off format: 4 x f16 per 8 bytes, low two bits = exponent code / tag. Rare paths for other magnitudes')
    A("L_encs:")
    A(f"v_lshrrev_b32 v{vTMP}, 23, v{vTMP}")
    A(f"v_subrev_u32 v{vTMP}, 126, v{vTMP}")
    A(f"v_ashrrev_i32 v{vTMP}, 4, v{vTMP}")
    A(f"v_med3_i32 v{vTMP}, v{vTMP}, -8, 7")
    A(f"v_cndmask_b32 v{vTMP}, 0, v{vTMP}, vcc")
    A(f"v_and_b32 v{vAX}, 15, v{vTMP}")
    A(f"v_lshl_or_b32 v{vAX}, v{vAX}, 14, v{vAX}")
    A(f"v_and_b32 v{vAX}, s{sM3}, v{vAX}")
    A(f"v_mul_i32_i24 v{vTMP}, -16, v{vTMP}")
    for r in range(4): A(f"v_ldexp_f32 v{vACC+r}, v{vACC+r}, v{vTMP}")
    A("s_mov_b64 vcc, 0")
    A("s_setpc_b64 s[6:7]")
    A("L_fixr:")
    for i in range(4): A(f"v_xor_b32 v{vGA+2*i+1}, v{vTC}, v{vGA+2*i+1}")
    A("L_fix:")
    for i in range(4):
        A(f"v_and_b32 v{vTMP}, 3, v{vGA+2*i}")
        A(f"v_bfe_i32 v{vTMP2}, v{vGA+2*i}, 16, 2")
        A(f"v_lshl_or_b32 v{vTMP}, v{vTMP2}, 2, v{vTMP}")
        A(f"v_lshlrev_b32 v{vTMP}, 4, v{vTMP}")
        A(f"v_ldexp_f32 v{vSCA+i}, v{vSCA+i}, v{vTMP}")
    A("s_setpc_b64 s[6:7]")

    if opt.notif:
        C('wave 10: bumps the ready counters (hints only, the tags decide) once the last early block has landed')
        A("L_notif:")
        if opt.nocomm: A("s_branch L_exit")
        if opt.tlb:
            A("s_mov_b64 exec, 1")
            A(f"v_mov_b32 v{vGA}, 0")
            if opt.tlb & 1:
                A(f"global_load_dword v{vGA+1}, v{vGA}, s[{sOUT}:{sOUT+1}] sc1")
                A(f"global_load_dword v{vGA+2}, v{vGA}, s[{sWS}:{sWS+1}] offset:512 sc1")
            if opt.tlb & 2:
                A(f"s_lshl_b32 s{sTMP}, s{sKB0}, 16")
                A(f"v_mov_b32 v{vGA+8}, s{sTMP}")
                A(f"s_cmp_ge_u32 s{sR}, 16")
                A("s_cbranch_scc1 L_tlbM")
                A(f"global_load_dword v{vGA+3}, v{vGA+8}, s[{sWO}:{sWO+1}] nt")
                A(f"s_cmp_eq_u32 s{sROLE}, 2")
                A("s_cbranch_scc1 L_tlbD")
                A(f"s_bitcmp0_b32 s{sBETA}, 1")
                A(f"s_cselect_b64 s[4:5], s[{sWG}:{sWG+1}], s[{sWU}:{sWU+1}]")
                A(f"s_and_b32 s{sTMP}, s{sBETA}, 1")
                A(f"s_mul_i32 s{sTMP}, s{sTMP}, {512*7168}")
                A("s_mov_b64 exec, 7")
                A(f"v_mul_u32_u24 v{vGA+9}, {255*7168}, v0")
                A(f"v_add_u32 v{vGA+9}, s{sTMP}, v{vGA+9}")
                A(f"global_load_dword v{vGA+4}, v{vGA+9}, s[4:5] nt")
                A("s_branch L_tlbD")
                A("L_tlbM:")
                A(f"global_load_dword v{vGA+3}, v{vGA+8}, s[{sWD}:{sWD+1}] nt")
                A(f"s_lshl2_add_u32 s{sTMP}, s{sBB}, s{sG}")
                A(f"s_lshl_b32 s{sTMP}, s{sTMP}, 20")
                A(f"v_mov_b32 v{vGA+9}, s{sTMP}")
                A(f"global_load_dword v{vGA+4}, v{vGA+9}, s[{sV}:{sV+1}] nt")
                A("L_tlbD:")
            A("s_mov_b64 exec, -1")
        A(f"s_cmp_eq_u32 s{sROLE}, 2")
        A("s_cbranch_scc1 L_exit")
        A(f"s_cmp_ge_u32 s{sR}, 16")
        A("s_cbranch_scc1 L_notifM")
        hc_addr()
        wait_prog(False, opt.nprogh - 1, sleep=2)
        wait_prog(False, opt.nprogh)
        if opt.ndelay: A(f"s_sleep {opt.ndelay}")
        bump("h")
        A("s_branch L_exit")
        A("L_notifM:")
        A(f"s_mul_i32 s{sTMP}, s{sG}, {32*CS}")
        ws_addr(sGB, WS_OC, sTMP)
        cwait(F_BP, 8, sleep=2)
        refresh_prog()
        A(f"s_cmp_lt_u32 s{sPROG}, {opt.nprogo}")
        A("s_cbranch_scc1 L_notifV")
        cwait(F_PUB1, 1)
        A("L_notifV:")
        wait_prog(False, opt.nprogo - 1, sleep=2)
        wait_prog(False, opt.nprogo)
        if opt.ndelay + opt.odelay: A(f"s_sleep {opt.ndelay + opt.odelay}")
        bump("q")
        A("s_branch L_exit")

    C('wave 9: watches the ready counters through the scalar path, softmax weights of the four key splits')
    A("L_poller:")
    if opt.nocomm: A("s_branch L_exit")
    A(f"s_cmp_ge_u32 s{sR}, 16")
    A("s_cbranch_scc1 L_pollM")
    A(f"s_lshl3_add_u32 s{sTMP}, s{sRBK}, s{sCB}")
    A(f"s_and_b32 s{sTMP}, s{sTMP}, {NREP-1}")
    A(f"s_lshl_b32 s{sTMP2}, s{sG}, 5")
    A(f"s_add_u32 s{sTMP}, s{sTMP}, s{sTMP2}")
    A(f"s_mul_i32 s{sTMP}, s{sTMP}, {CS}")
    ws_addr(sGB, WS_OC, sTMP)
    A(f"s_load_dword s4, s[{sGB}:{sGB+1}], 0 glc")
    A(f"s_and_b32 s{sTMP}, s{sRBK}, 3")
    A(f"s_lshl_b32 s{sTMP}, s{sTMP}, 4")
    A(f"s_lshl_b32 s{sTMP2}, s{sG}, 11")
    A(f"s_add_u32 s{sTMP}, s{sTMP}, s{sTMP2}")
    ws_addr(sGA, WS_LSE, sTMP)
    A(f"v_and_b32 v{vTMP3}, 31, v0")
    A(f"v_lshlrev_b32 v{vTMP3}, 6, v{vTMP3}")
    A(f"v_lshrrev_b32 v{vTMP2}, 5, v0")
    A(f"v_lshl_or_b32 v{vTMP3}, v{vTMP2}, 3, v{vTMP3}")
    A("s_waitcnt lgkmcnt(0)")
    A(f"v_lshl_add_u32 v{vWA}, v0, 2, v9")
    A(f"s_cmp_eq_u32 s{sROLE}, 2")
    A(f"s_cselect_b32 s{sTMP2}, {opt.ogatec}, {opt.ogate}")
    A(f"s_add_u32 s5, s4, {0x200020 if opt.lcnt else 32}")
    for k, l in touch:
        if k in "AB": A(f"s_call_b64 s[6:7], {l}")
    wait_prog(True, sTMP2, sleep=2)
    stamp(2)
    if not (opt.dbg & 7):
        A(f"s_mov_b32 s{sCNT}, 0")
        if opt.psleep: A("s_branch L_pl1e")
        A("L_pl1:")
        if opt.psleep:
            A(f"s_sleep {opt.psleep}")
            A("L_pl1e:")
        A(f"s_load_dword s8, s[{sGB}:{sGB+1}], 0 glc")
        A(f"s_add_u32 s{sCNT}, s{sCNT}, 1")
        A(f"s_cmp_gt_u32 s{sCNT}, {opt.maxhint}")
        A("s_waitcnt lgkmcnt(0)")
        A("s_cbranch_scc1 L_pl1d")
        A("s_sub_u32 s9, s8, s4")
        A(f"s_cmp_lt_u32 s9, {0x200000 if opt.lcnt else opt.lthr}")
        A("s_cbranch_scc1 L_pl1")
        A("L_pl1d:")
        stampval(10, sCNT)
    stamp(3)
    A("s_mov_b32 s9, 0")
    A(f"s_mov_b32 s{sTMP3}, 0")
    A("L_lse:")
    if not (opt.dbg & 2): A(f"global_load_dwordx2 v[{vLS}:{vLS+1}], v{vTMP3}, s[{sGA}:{sGA+1}] sc1")
    if not (opt.dbg & 7):
        A("s_cmp_lg_u32 s9, 0")
        A("s_cbranch_scc1 L_lse_wait")
        A("L_pl2:")
        A("s_cmp_eq_u32 s8, s5")
        A("s_cbranch_scc1 L_pl_sig")
        A(f"s_cmp_gt_u32 s{sCNT}, {opt.maxhint}")
        A("s_cbranch_scc1 L_pl_sig")
        A("s_getreg_b32 s10, hwreg(HW_REG_IB_STS, 0, 4)")
        A("s_cmp_eq_u32 s10, 0")
        A("s_cbranch_scc1 L_lse_wait")
        A(f"s_load_dword s8, s[{sGB}:{sGB+1}], 0 glc")
        A(f"s_add_u32 s{sCNT}, s{sCNT}, 1")
        A("s_waitcnt lgkmcnt(0)")
        A("s_branch L_pl2")
        A("L_pl_sig:")
        signal(F_LRDY)
        A("s_mov_b32 s9, 1")
        stamp(5)
    A("L_lse_wait:")
    if not (opt.dbg & 7):
        A(f"s_load_dword s8, s[{sGB}:{sGB+1}], 0 glc")
    A(f"s_add_u32 s{sTMP3}, s{sTMP3}, 1")
    A("s_waitcnt vmcnt(0)")
    A(f"v_cmp_ne_u32 vcc, s{sT}, v{vLS+1}")
    A(f"s_cbranch_vccz L_lsed")
    A(f"s_cmp_le_u32 s{sTMP3}, {0 if (opt.dbg & 7) else opt.maxpoll}")
    A("s_waitcnt lgkmcnt(0)")
    A(f"s_cbranch_scc1 L_lse")
    A("L_lsed:")
    stampval(12, sTMP3)
    A(f"v_max_f32_dpp v{vTMP}, v{vLS}, v{vLS} quad_perm:[1,0,3,2] row_mask:0xf bank_mask:0xf")
    A("s_nop 1")
    A(f"v_max_f32_dpp v{vTMP}, v{vTMP}, v{vTMP} quad_perm:[2,3,0,1] row_mask:0xf bank_mask:0xf")
    A(f"v_sub_f32 v{vLS}, v{vLS}, v{vTMP}")
    A(f"v_exp_f32 v{vLS}, v{vLS}")
    A("s_nop 1")
    A(f"v_add_f32_dpp v{vTMP}, v{vLS}, v{vLS} quad_perm:[1,0,3,2] row_mask:0xf bank_mask:0xf")
    A("s_nop 1")
    A(f"v_add_f32_dpp v{vTMP}, v{vTMP}, v{vTMP} quad_perm:[2,3,0,1] row_mask:0xf bank_mask:0xf")
    A(f"v_rcp_f32 v{vTMP}, v{vTMP}")
    A("s_nop 0")
    A(f"v_mul_f32 v{vLS}, v{vLS}, v{vTMP}")
    A(f"v_mul_f32 v{vLS}, {fbits(2.0**-LO_):#x}, v{vLS}")
    A(f"ds_write_b32 v{vWA}, v{vLS} offset:{F_WT}")
    signal(F_WRDY)
    stamp(4)
    if not (opt.dbg & 7):
        A("s_cmp_lg_u32 s9, 0")
        A("s_cbranch_scc1 L_pl_fin")
        A("s_waitcnt lgkmcnt(0)")
        A("s_cmp_eq_u32 s8, s5")
        A("s_cbranch_scc1 L_pl_sig2")
    pollcnt(sGB, 5, opt.psleep, cntstamp=11)
    A("L_pl_sig2:")
    signal(F_LRDY)
    stamp(5)
    A("L_pl_fin:")
    A("s_barrier")
    A("s_branch L_exit")
    A("L_pollM:")
    A(f"s_lshl2_add_u32 s{sTMP}, s{sBB}, s{sSPL}")
    A(f"s_lshr_b32 s{sTMP}, s{sTMP}, {int(math.log2(32//NREP))}")
    A(f"s_lshl_b32 s{sTMP2}, s{sG}, 5")
    A(f"s_add_u32 s{sTMP}, s{sTMP}, s{sTMP2}")
    A(f"s_mul_i32 s{sTMP}, s{sTMP}, {CS}")
    ws_addr(sGB, WS_QC, sTMP)
    if opt.qhint: A(f"s_load_dword s4, s[{sGB}:{sGB+1}], 0 glc")
    A(f"s_mul_i32 s{sTMP}, s{sRBK}, {HREP}")
    A(f"s_and_b32 s{sTMP2}, s{sCB}, {HREP-1}")
    A(f"s_add_u32 s{sTMP}, s{sTMP}, s{sTMP2}")
    A(f"s_mul_i32 s{sTMP}, s{sTMP}, {CS}")
    ws_addr(sGA, WS_HC, sTMP)
    A(f"s_load_dword s5, s[{sGA}:{sGA+1}], 0 glc")
    if opt.fgate:
        A(f"s_and_b32 s{sTMP}, s{sR}, {opt.frep-1}")
        A(f"s_lshl4_add_u32 s{sTMP}, s{sXCD}, s{sTMP}")
        A(f"s_mul_i32 s{sTMP}, s{sTMP}, {CS}")
        ws_addr(10, WS_FC, sTMP)
        A(f"s_load_dword s6, s[10:11], 0 glc")
    A(f"s_bitcmp1_b32 s{sKB0}, 1")
    A(f"s_cselect_b32 s{sTMP}, 12, 8")
    A("s_waitcnt lgkmcnt(0)")
    if opt.fgate: A("s_add_u32 s6, s6, 32")
    A("s_add_u32 s4, s4, 64")
    A(f"s_add_u32 s5, s5, s{sTMP}")
    if opt.fgate: A("s_mov_b32 s9, s6")
    for k, l in touch:
        if k in "AM": A(f"s_call_b64 s[6:7], {l}")
    if opt.qhint:
        wait_prog(False, opt.qgate, sleep=2)
        stamp(2)
        pollcnt(sGB, 4, opt.psleep, cntstamp=10)
        signal(F_QRDY)
        stamp(3)
    assert not opt.qhint
    if opt.rmap:
        A(f"s_and_b32 s{sTMP}, s{sR}, 1")
        A(f"s_xor_b32 s{sTMP2}, s{sXCD}, s{sTMP}")
        A(f"s_and_b32 s{sTMP}, s{sXCD}, 1")
        A(f"s_lshl1_add_u32 s{sTMP}, s{sTMP2}, s{sTMP}")
    else:
        A(f"s_and_b32 s{sTMP}, s{sR}, 1")
        A(f"s_lshl1_add_u32 s{sTMP}, s{sXCD}, s{sTMP}")
    A(f"s_lshl_b32 s{sTMP}, s{sTMP}, 7")
    ws_addr(sGB, WS_GL, sTMP)
    wait_prog(False, opt.ggate, sleep=2)
    A(f"s_mov_b32 s{sCNT}, 0")
    A("L_gp:")
    A(f"s_load_dwordx8 s[16:23], s[{sGB}:{sGB+1}], 0 glc")
    A(f"s_add_u32 s{sCNT}, s{sCNT}, 1")
    A(f"s_cmp_gt_u32 s{sCNT}, {0 if (opt.dbg & 7) else opt.maxpoll}")
    A("s_waitcnt lgkmcnt(0)")
    A("s_cbranch_scc1 L_gpd")
    for i in range(4):
        A(f"s_cmp_eq_u32 s{17+2*i}, s{sT}")
        A("s_cbranch_scc0 L_gp")
    A("L_gpd:")
    for i in range(4): A(f"v_mov_b32 v{vGA+i}, s{16+2*i}")
    A("s_mov_b64 exec, 1")
    A(f"ds_write_b128 v9, v[{vGA}:{vGA+3}] offset:{F_G}")
    signal(F_QRDY)
    stamp(3)
    wait_prog(False, opt.hgate, sleep=2)
    stamp(4)
    pollcnt(sGA, 5, opt.psleep, cntstamp=11)
    signal(F_LRDY)
    stamp(5)
    A("s_barrier")
    if opt.fgate:
        stamp(6)
        pollcnt(10, 9, 0, cntstamp=12)
        if opt.fbar: A("s_barrier")
        else: signal(F_FRDY)
        stamp(7)

    A("L_exit:")
    if STAMP:
        A("s_waitcnt lgkmcnt(0)")
        A(f"s_mul_i32 s{sTMP}, s2, {NWAVES}")
        A(f"s_add_u32 s{sTMP}, s{sTMP}, s3")
        A(f"s_lshl_b32 s{sTMP}, s{sTMP}, 6")
        A(f"s_add_u32 s{sTMP}, s{sTMP}, {WS_STAMP}")
        A(f"v_mov_b32 v1, s{sTMP}")
        A("s_mov_b64 exec, 1")
        for i in range(NST if STAMP == 1 else 10):
            A(f"v_mov_b32 v2, s{sST+2*i}")
            A(f"global_store_dword v1, v2, s[{sWS}:{sWS+1}] offset:{4*i}")
        A(f"v_mov_b32 v2, s{sROLE}")
        A(f"global_store_dword v1, v2, s[{sWS}:{sWS+1}] offset:60")
    A("L_end:")
    A("s_endpgm")

    body = "\n".join(g.o)
    PADTXT = f".p2align 12\n.fill {opt.pad//4}, 4, 0xbf810000\n" if opt.pad >= 0 else ""
    txt = HEADER
    txt += f"; @launch grid=(256,1,1) block=({64*NWAVES},1,1) lds={LDS_BYTES}\n"
    txt += """; One persistent launch, one workgroup per CU; every weight / K / V byte is streamed once into LDS.
;   role M (128 wgs): wq tile, 256 keys of one (batch, kv head), W_down tile, final reduction
"""
    txt += f""".amdgcn_target "amdgcn-amd-amdhsa--gfx950"
.text
.globl {KNAME}
{PADTXT}.p2align 8
.type {KNAME},@function
{KNAME}:
{body}
.section .rodata,"a"
.p2align 6
.amdhsa_kernel {KNAME}
  .amdhsa_next_free_vgpr {NV}
  .amdhsa_next_free_sgpr 102
  .amdhsa_accum_offset {NV}
  .amdhsa_group_segment_fixed_size 0
  .amdhsa_kernarg_size 104
  .amdhsa_user_sgpr_count 2
  .amdhsa_user_sgpr_kernarg_segment_ptr 1
  .amdhsa_system_sgpr_workgroup_id_x 1
.end_amdhsa_kernel
"""
    return txt

def parse(argv):
    ap = argparse.ArgumentParser()
    ap.add_argument("--nt", default="nt")
    ap.add_argument("--pb", default="20:24,8:22")
    ap.add_argument("--pc", default="4:20,d,3:4,5:12")
    ap.add_argument("--pm", default="20:24,7:20")
    ap.add_argument("--nb0", type=int, default=3)
    ap.add_argument("--stamp", type=int, default=0)
    ap.add_argument("--stq", type=int, default=0)
    ap.add_argument("--fdelay", type=int, default=0)
    ap.add_argument("--qgate", type=int, default=9)
    ap.add_argument("--ogate", type=int, default=19)
    ap.add_argument("--ogatec", type=int, default=26)
    ap.add_argument("--hgate", type=int, default=19)
    ap.add_argument("--ggate", type=int, default=13)
    ap.add_argument("--maxpoll", type=int, default=100000)
    ap.add_argument("--psleep", type=int, default=0)
    ap.add_argument("--fsleep", type=int, default=2)
    ap.add_argument("--gsleep", type=int, default=0)
    ap.add_argument("--fgsleep", type=int, default=0)
    ap.add_argument("--sample", type=int, default=0)
    ap.add_argument("--outflags", default="sc1")
    ap.add_argument("--fixdur", type=int, default=0)
    ap.add_argument("--fixwg", type=int, default=128)
    ap.add_argument("--nocomm", type=int, default=0)
    ap.add_argument("--dbg", type=int, default=0)
    ap.add_argument("--cpf", type=int, default=2)
    ap.add_argument("--qlead", type=int, default=-1)
    ap.add_argument("--hlead", type=int, default=-1)
    ap.add_argument("--olead", type=int, default=-1)
    ap.add_argument("--oearly", type=int, default=0)
    ap.add_argument("--flagwave", type=int, default=1)
    ap.add_argument("--xgat", type=int, default=10)
    ap.add_argument("--nrep", type=int, default=8)
    ap.add_argument("--satom", type=int, default=1)
    ap.add_argument("--maxhint", type=int, default=20)
    ap.add_argument("--hround", type=int, default=0)
    ap.add_argument("--fgate", type=int, default=0)
    ap.add_argument("--frep", type=int, default=8)
    ap.add_argument("--flag_delay", type=int, default=1)
    ap.add_argument("--qhint", type=int, default=0)
    ap.add_argument("--qsleep", type=int, default=4)
    ap.add_argument("--lcnt", type=int, default=0)
    ap.add_argument("--lthr", type=int, default=16)
    ap.add_argument("--spec", type=int, default=0)
    ap.add_argument("--ackst", type=int, default=0)
    ap.add_argument("--cstride", type=int, default=640)
    ap.add_argument("--midahead", type=int, default=1)
    ap.add_argument("--fine", type=int, default=0)
    ap.add_argument("--pad", type=lambda x: int(x, 0), default=0xd00)
    ap.add_argument("--touch", type=int, default=0)
    ap.add_argument("--sbias", type=int, default=0)
    ap.add_argument("--period", type=int, default=0)
    ap.add_argument("--toff", type=int, default=650)
    ap.add_argument("--qsync", type=int, default=0)
    ap.add_argument("--lprio", type=int, default=3)
    ap.add_argument("--cprio", type=int, default=0)
    ap.add_argument("--gprio", type=int, default=0)
    ap.add_argument("--kvmode", default="row")
    ap.add_argument("--kvrot", type=int, default=9)
    ap.add_argument("--rotw", type=int, default=1)
    ap.add_argument("--lrot", type=int, default=3)
    ap.add_argument("--lflow", type=int, default=2)
    ap.add_argument("--wmin", type=int, default=27)
    ap.add_argument("--notif", type=int, default=1)
    ap.add_argument("--ndelay", type=int, default=0)
    ap.add_argument("--odelay", type=int, default=0)
    ap.add_argument("--pdelay", type=int, default=6)
    ap.add_argument("--nprogh", type=int, default=20)
    ap.add_argument("--nprogo", type=int, default=20)
    ap.add_argument("--gran", type=int, default=2)
    ap.add_argument("--barpos", type=int, default=1)
    ap.add_argument("--fsat", type=int, default=1)
    ap.add_argument("--gok", type=int, default=7)
    ap.add_argument("--fbar", type=int, default=1)
    ap.add_argument("--specw", type=int, default=1)
    ap.add_argument("--fearly", type=int, default=0)
    ap.add_argument("--tlb", type=int, default=0)
    ap.add_argument("--cpfc", type=int, default=1)
    ap.add_argument("--stlb", type=int, default=7)
    ap.add_argument("--vtouch", type=int, default=0)
    ap.add_argument("--probe", type=int, default=-1)
    ap.add_argument("--pol", default="nnnnnn")
    ap.add_argument("--probe0", type=int, default=-1)
    ap.add_argument("--lprobe", type=int, default=0)
    ap.add_argument("--amp", type=int, default=4)
    ap.add_argument("--tbar", type=int, default=1)
    ap.add_argument("--vden", type=int, default=1)
    ap.add_argument("--tsleep", type=int, default=0)
    ap.add_argument("--qrot", type=int, default=1)
    ap.add_argument("--rmap", type=int, default=0)
    ap.add_argument("--x4dbg", type=int, default=0)
    ap.add_argument("--noretry", type=int, default=0)
    ap.add_argument("--womap", type=int, default=1)
    ap.add_argument("--kvib", default="567234")
    ap.add_argument("--kvsb", default="01")
    ap.add_argument("--kvrots", type=int, default=21)
    ap.add_argument("--pfo", type=int, default=0)
    ap.add_argument("--pfd", type=int, default=0)
    ap.add_argument("--pfw", type=int, default=24)
    ap.add_argument("--pfpol", default="")
    ap.add_argument("--pfg", type=int, default=0)
    ap.add_argument("-o", default=None)
    return ap.parse_args(argv)

if __name__ == "__main__":
    opt = parse(sys.argv[1:])
    t = gen(opt)
    if opt.o: open(opt.o, "w").write(t)
    else: print(t)
```
